```python
import torch

def _softmax(x, axis=-1):
    return torch.softmax(x, dim=axis)
def _gelu(x):
    return torch.nn.functional.gelu(x, approximate="tanh")
def _silu(x):
    return torch.nn.functional.silu(x)
def _sigmoid(x):
    return torch.sigmoid(x)
def _layernorm(x, axis=-1, eps=1e-5):
    m = x.mean(dim=axis, keepdim=True)
    v = x.var(dim=axis, keepdim=True, unbiased=False)
    return (x - m) / torch.sqrt(v + eps)
def _scatter_add(tgt, idx, src, axis=0):
    return tgt.clone().index_add_(axis, idx, src)
def _segment_sum(src, seg, n):
    out = torch.zeros((n,) + src.shape[1:], dtype=src.dtype)
    return out.index_add_(0, seg, src)
def _pad(x, pw):
    flat = tuple(v for pair in reversed(pw) for v in pair)
    return torch.nn.functional.pad(x, flat)

kernel_name = 'gated_mix__compressed_kv_cla__sliding_local_dilated__prompt'

def setup_inputs():

    _w = (lambda a: (lambda t: t.to(torch.bfloat16) if t.is_floating_point() else t)(torch.as_tensor(a)))
    def _A_setup():
        B, H, Sq, Sk, D, M = 1, 32, 2048, 2048, 128, 1024
        Dc = 4 * D
        return {
            "x": _w((lambda *s: torch.randn(*s, dtype=torch.bfloat16) * 0.05)(B, Sq, M)),
            "c_kv": _w((lambda *s: torch.randn(*s, dtype=torch.bfloat16) * 1.6)(B, Sk, Dc)),
            "w_q": _w((lambda *s: torch.randn(*s, dtype=torch.bfloat16) * 6.4)(M, H, D) * (M ** -0.5)),
            "w_uk": _w((lambda *s: torch.randn(*s, dtype=torch.bfloat16) * 6.4)(Dc, H, D) * (Dc ** -0.5)),
            "w_uv": _w((lambda *s: torch.randn(*s, dtype=torch.bfloat16) * 1.6)(Dc, H, D) * (Dc ** -0.5)),
            "w_o": _w((lambda *s: torch.randn(*s, dtype=torch.bfloat16) * 1.6)(H, D, M) * ((H * D) ** -0.5)),
        }
    _A_in = _A_setup()

    def _B_setup():
        B, S, D = 1, 2048, 1024
        return {
            "x": _w((lambda *s: torch.randn(*s, dtype=torch.bfloat16) * 0.05)(B, S, D)),
            "wqkv": _w((lambda *s: torch.randn(*s, dtype=torch.bfloat16) * 0.8)(D, 3 * D)),
            "wo": _w((lambda *s: torch.randn(*s, dtype=torch.bfloat16) * 0.05)(D, D)),
        }
    _B_in = _B_setup()

    return {
        "A_x": _A_in["x"],
        "A_c_kv": _A_in["c_kv"],
        "A_w_q": _A_in["w_q"],
        "A_w_uk": _A_in["w_uk"],
        "A_w_uv": _A_in["w_uv"],
        "A_w_o": _A_in["w_o"],
        "B_x": _B_in["x"],
        "B_wqkv": _B_in["wqkv"],
        "B_wo": _B_in["wo"],
        "gate_w": _w((lambda *s: torch.randn(*s, dtype=torch.bfloat16) * 0.05)(1024) * 16.0),
    }

def reference(A_x, A_c_kv, A_w_q, A_w_uk, A_w_uv, A_w_o, B_x, B_wqkv, B_wo, gate_w):
    def _A_ref(x, c_kv, w_q, w_uk, w_uv, w_o):
        B, Sq, M = x.shape[0], x.shape[1], x.shape[2]
        Sk = c_kv.shape[1]
        H, D = w_q.shape[1], w_q.shape[2]
        q = torch.einsum("bqm,mhd->bhqd", x, w_q)
        k = torch.einsum("bkc,chd->bhkd", c_kv, w_uk)
        v = torch.einsum("bkc,chd->bhkd", c_kv, w_uv)
        scores = torch.einsum("bhqd,bhkd->bhqk", q, k) * (D ** -0.5)
        off = Sk - Sq
        qi = torch.arange(Sq)[:, None]
        kj = torch.arange(Sk)[None, :]
        cmask = kj <= (qi + off)
        scores = torch.where(cmask[None, None], scores, -1e9)
        p = _softmax(scores, axis=-1)
        ctx = torch.einsum("bhqk,bhkd->bhqd", p, v)
        return torch.einsum("bhqd,hdm->bqm", ctx, w_o)

    def _B_ref(x, wqkv, wo):
        B, S, D = x.shape
        H = 32; Dh = D // H
        W, dil = 8, 2
        qkv = (lambda x, *d: x.permute(*d))((x @ wqkv).reshape(B, S, 3, H, Dh), 2, 0, 3, 1, 4)
        q, k, v = qkv[0], qkv[1], qkv[2]
        scale = Dh ** -0.5
        pos = torch.arange(S)
        off = torch.arange(W) * dil
        idx = pos[:, None] - off[None, :]
        mask = idx >= 0
        idx_c = torch.where(mask, idx, 0).reshape(-1)
        kg = k[:, :, idx_c, :].reshape(B, H, S, W, Dh)
        vg = v[:, :, idx_c, :].reshape(B, H, S, W, Dh)
        logits = torch.einsum("bhsd,bhswd->bhsw", q, kg) * scale
        logits = torch.where(mask[None, None, :, :], logits, -1e9)
        attn = _softmax(logits, axis=-1)
        o = torch.einsum("bhsw,bhswd->bhsd", attn, vg)
        return (lambda x, *d: x.permute(*d))(o, 0, 2, 1, 3).reshape(B, S, D) @ wo

    x = A_x
    g = _sigmoid((x * gate_w).sum(-1, keepdims=True))
    a = _A_ref(x, A_c_kv, A_w_q, A_w_uk, A_w_uv, A_w_o)
    b = _B_ref(x, B_wqkv, B_wo)
    return g * a + (1 - g) * b
```

```python
import re, sys
M32 = 0xffffffff

def parse_reg(tok):
    tok = tok.strip()
    neg = tok.lstrip("-")
    if neg.startswith("abs(") : neg = neg[4:-1]
    if neg.startswith("|"): neg = neg.strip("|")
    m = re.fullmatch(r"([vas])(\d+)", neg)
    if m: return [(m.group(1), int(m.group(2)))]
    m = re.fullmatch(r"([vas])\[(\d+):(\d+)\]", neg)
    if m: return [(m.group(1), i) for i in range(int(m.group(2)), int(m.group(3)) + 1)]
    if neg == "vcc": return [("s", "vcc")]
    if neg == "exec": return [("s", "exec")]
    if neg == "m0": return [("s", "m0")]
    return None

def split_ops(s):
    out = []; depth = 0; cur = ""
    for ch in s:
        if ch in "[(": depth += 1
        if ch in "])": depth -= 1
        if ch == "," and depth == 0:
            out.append(cur.strip()); cur = ""
        else: cur += ch
    if cur.strip(): out.append(cur.strip())
    return out

TRANS = ("v_exp_f32", "v_log_f32", "v_rcp_f32", "v_rsq_f32", "v_sqrt_f32", "v_sin_f32", "v_cos_f32")

class Ins:
    __slots__ = ("op", "ops", "mods", "text", "ann", "rd", "wr", "kind", "srcc", "ab", "line", "data")
    def __init__(self, text, line):
        self.line = line
        body, _, cm = text.partition(";")
        self.text = body.strip(); self.ann = cm
        p = self.text.split(None, 1)
        self.op = p[0]
        for suf in ("_e32", "_e64"):
            if self.op.endswith(suf): self.op = self.op[:-4]
        rest = p[1] if len(p) > 1 else ""
        ops = split_ops(rest)
        self.mods = []
        if ops and not self.op.startswith("s_waitcnt"):
            last = ops[-1].split()
            ops[-1] = last[0]; self.mods = last[1:]
        self.ops = ops
        self.classify()
    def classify(self):
        op, ops = self.op, self.ops
        R = lambda i: (parse_reg(ops[i]) or []) if i < len(ops) else []
        self.rd, self.wr, self.srcc, self.ab, self.data = [], [], [], [], []
        if op.startswith("v_mfma"):
            self.kind = "mfma"; self.wr = R(0); self.ab = R(1) + R(2); self.srcc = R(3); self.rd = self.ab + self.srcc
        elif op.startswith("ds_read") or op.startswith("ds_bpermute") or op.startswith("ds_swizzle"):
            self.kind = "dsr"; self.wr = R(0); self.rd = R(1) + R(2)
        elif op.startswith("ds_write") or op.startswith("ds_add") or op.startswith("ds_or") or op.startswith("ds_max"):
            self.kind = "dsw"; self.rd = R(0) + R(1) + R(2)
        elif op.startswith("buffer_load"):
            if "lds" in self.mods:
                self.kind = "dma"; self.rd = R(0) + R(1) + R(2) + [("s", "m0")]
            else:
                self.kind = "vld"; self.wr = R(0); self.rd = R(1) + R(2) + R(3)
        elif op.startswith("buffer_store"):
            self.kind = "vst"; self.rd = R(0) + R(1) + R(2) + R(3); self.data = R(0)
        elif op.startswith("buffer_atomic"):
            self.kind = "vst"; self.rd = R(0) + R(1) + R(2) + R(3)
            if "sc0" in self.mods: self.kind = "vld"; self.wr = R(0)
        elif op.startswith("global_load"):
            self.kind = "vld"; self.wr = R(0); self.rd = R(1) + R(2)
        elif op.startswith("global_store"):
            self.kind = "vst"; self.rd = R(0) + R(1) + R(2); self.data = R(1)
        elif op.startswith("global_atomic"):
            self.kind = "vst"; self.rd = R(0) + R(1) + R(2)
        elif op in ("buffer_inv", "buffer_wbl2"):
            self.kind = "vst"
        elif op.startswith("v_"):
            self.kind = "valu"
            if op.startswith("v_permlane") and "swap" in op:
                self.wr = R(0) + R(1); self.rd = R(0) + R(1)
            elif op.startswith("v_nop"): pass
            else:
                self.wr = R(0)
                st = 1
                if op in ("v_add_co_u32", "v_sub_co_u32", "v_addc_co_u32"): self.wr += R(1); st = 2
                for i in range(st, len(ops)): self.rd += R(i)
                if op.startswith("v_fmac") or op.startswith("v_writelane") or op.startswith("v_dot2c"): self.rd += R(0)
                if op.startswith("v_cmpx"): self.wr += [("s", "exec")]
        elif op.startswith("s_load") or op.startswith("s_memtime") or op.startswith("s_memrealtime"):
            self.kind = "smem"; self.wr = R(0); self.rd = R(1)
        elif op.startswith("s_"):
            self.kind = "salu"
            if op.startswith("s_cmp") or op.startswith("s_bitcmp"): self.rd = R(0) + R(1)
            elif op.startswith(("s_cbranch", "s_branch", "s_waitcnt", "s_nop", "s_barrier", "s_endpgm", "s_setprio", "s_sleep")): pass
            elif op.startswith("s_setpc"): self.rd = R(0)
            elif op.startswith("s_call"): self.wr = R(0)
            else:
                self.wr = R(0)
                for i in range(1, len(ops)): self.rd += R(i)
                if "saveexec" in op: self.wr += [("s", "exec")]
        else:
            raise ValueError("unknown op " + self.text)

def load(path):
    ins = []; labels = {}
    insect = True
    for n, l in enumerate(open(path), 1):
        t = l.strip()
        if not t or t.startswith(";") or t.startswith("//"): continue
        if t.startswith(".section"): insect = False
        if t.startswith(".text"): insect = True
        if t.startswith(".") and not re.match(r"^\.?\w+:", t): continue
        if not insect: continue
        m = re.match(r"^([\w.]+):\s*(;.*)?$", t)
        if m: labels[m.group(1)] = len(ins); continue
        ins.append(Ins(t, n))
    return ins, labels

def const(tok):
    try:
        if re.fullmatch(r"-?\d+", tok): return int(tok) & M32
        if re.fullmatch(r"-?0x[0-9a-fA-F]+", tok): return int(tok, 16) & M32
    except ValueError: pass
    return None

def sx(v): return v - (1 << 32) if v & 0x80000000 else v

def run(path, kernel, wg, wave, maxn=2000000, verbose=True, force=None):
    ins, labels = load(path)
    pc = labels[kernel]
    S = {2: wg}; scc = None
    errs = []; seen = set()
    t = 0
    lastw = {}
    mfma_c_rd = {}
    st_data = {}
    lg = []; vm = []
    pend = {}
    cnt = {}; nbar = 0
    force = dict(force or {})
    def err(i, msg):
        k = (i.line, msg.split(":")[0])
        if k not in seen:
            seen.add(k); errs.append(f"line {i.line}: {i.text}  <<< {msg}")
    def sval(tok):
        c = const(tok)
        if c is not None: return c
        r = parse_reg(tok)
        if r and len(r) == 1 and r[0][0] == "s": return S.get(r[0][1])
        return None
    n = 0
    while True:
        n += 1
        if n > maxn: errs.append("trace too long"); break
        i = ins[pc]; pc += 1
        op = i.op; cnt[i.kind] = cnt.get(i.kind, 0) + 1
        for r in i.rd + i.wr:
            if r in pend: err(i, f"PENDING: {r} not waited (load line {pend[r].line})")
        def need(r, k, why):
            w = lastw.get(r)
            if w and t - w[0] - 1 < k: err(i, f"{why}: {r} needs {k} has {t - w[0] - 1} (producer line {w[2].line})")
        for r in i.rd:
            w = lastw.get(r)
            if not w: continue
            wk, wi = w[1], w[2]
            if r[0] in "va":
                if wk == "valu":
                    if i.kind == "mfma": need(r, 2, "VALU->MFMA")
                    if op.startswith("v_permlane"): need(r, 2, "VALU->permlane")
                    if op.startswith(("v_readlane", "v_readfirstlane")): need(r, 1, "VALU->readlane")
                    if "dpp" in " ".join(i.mods) or any(m.startswith(("row_", "quad_perm")) for m in i.mods): need(r, 2, "VALU->DPP")
                    if wi.op in TRANS and i.kind == "valu" and op not in TRANS: need(r, 1, "trans->valu")
                if wk == "mfma":
                    big = "32x32" in wi.op
                    if i.kind == "mfma":
                        if r in i.ab: need(r, 12 if big else 8, "MFMA->AB")
                        if r in i.srcc and i.srcc != wi.wr: need(r, 10 if big else 6, "MFMA->C overlap")
                    else: need(r, 12 if big else 8, "MFMA->read")
            else:
                if wk == "valu":
                    if i.kind in ("dma", "vld", "vst"): need(r, 5, "VALU sgpr->VMEM")
                    if i.kind == "valu":
                        need(r, 4 if op.startswith(("v_readlane", "v_writelane")) else 2, "VALU sgpr->VALU")
                    if i.kind == "salu": need(r, 1, "VALU sgpr->SALU(pad)")
                if wk == "salu" and r[1] == "m0" and i.kind == "dma": need(r, 1, "M0->DMA")
        for r in i.wr:
            w = lastw.get(r)
            if w and r[0] in "va" and w[1] == "mfma" and i.kind != "mfma":
                need(r, 12 if "32x32" in w[2].op else 8, "MFMA->WAW")
            if w and r[0] in "va" and w[1] == "mfma" and i.kind == "mfma" and i.srcc != w[2].wr:
                need(r, 6, "MFMA->MFMA WAW(nonchain)")
            if i.kind == "valu" and r in mfma_c_rd and t - mfma_c_rd[r] - 1 < 3: err(i, f"MFMA C WAR: {r}")
            if r in st_data and t - st_data[r] - 1 < 2: err(i, f"store data WAR: {r}")
        if i.kind == "mfma":
            w = lastw.get(("s", "exec"))
            if w and w[1] == "valu" and t - w[0] - 1 < 4: err(i, "EXEC->MFMA")
            for r in i.srcc: mfma_c_rd[r] = t
        if i.kind == "vst" and len(i.data) >= 3:
            for r in i.data: st_data[r] = t
        if i.kind in ("dsr", "dsw"):
            lg.append((i, i.wr, 1))
            for r in i.wr: pend[r] = i; lastw.pop(r, None)
        elif i.kind == "smem":
            lg.append((i, i.wr, "s"))
            for r in i.wr: pend[r] = i; S.pop(r[1], None); lastw.pop(r, None)
        elif i.kind in ("dma", "vld", "vst"):
            vm.append((i, i.wr))
            if len(vm) > 63: err(i, "vmcnt overflow (>63 outstanding)")
            for r in i.wr: pend[r] = i; lastw.pop(r, None)
        else:
            for r in i.wr: lastw[r] = (t, i.kind, i)
        step = 1
        if op == "s_nop": step = int(i.ops[0], 0) + 1
        elif op == "s_waitcnt":
            txt = i.text
            m = re.search(r"vmcnt\((\d+)\)", txt)
            if m:
                k = int(m.group(1))
                while len(vm) > k:
                    _, regs = vm.pop(0)
                    for r in regs: pend.pop(r, None)
            m = re.search(r"lgkmcnt\((\d+)\)", txt)
            if m:
                k = int(m.group(1))
                if k > 15: err(i, "lgkmcnt > 15")
                if any(e[2] == "s" for e in lg) and k > 0: err(i, "counted lgkmcnt with SMEM outstanding")
                while len(lg) > k:
                    _, regs, _ = lg.pop(0)
                    for r in regs: pend.pop(r, None)
        elif op == "s_barrier": nbar += 1
        elif op == "s_endpgm": break
        elif op == "s_branch": pc = labels[i.ops[0]]
        elif op == "s_call_b64":
            S[("ret", i.ops[0])] = pc; pc = labels[i.ops[1]]
        elif op == "s_setpc_b64": pc = S[("ret", i.ops[0])]
        elif op.startswith("s_cbranch"):
            c = None
            if op == "s_cbranch_scc1": c = scc
            elif op == "s_cbranch_scc0": c = None if scc is None else (not scc)
            m = re.search(r"@br=(\w+)", i.ann)
            if m and m.group(1) in force and force[m.group(1)] > 0:
                force[m.group(1)] -= 1; c = True
            if c is None:
                if "@taken" in i.ann: c = True
                elif "@nottaken" in i.ann: c = False
                else: errs.append(f"line {i.line}: unknown branch {i.text}"); break
            if c: pc = labels[i.ops[0]]
        elif op.startswith("s_cmp"):
            a, b = sval(i.ops[0]), sval(i.ops[1])
            if a is None or b is None: scc = None
            else:
                cc, ty = op.split("_")[2], op.split("_")[3]
                if ty == "i32": a, b = sx(a), sx(b)
                scc = {"eq": a == b, "lg": a != b, "lt": a < b, "le": a <= b, "gt": a > b, "ge": a >= b}[cc]
        elif op.startswith("s_bitcmp"):
            a, b = sval(i.ops[0]), sval(i.ops[1])
            scc = None if a is None or b is None else bool(((a >> b) & 1) == int(op[8]))
        elif i.kind == "salu" and i.wr:
            d = i.wr[0][1]
            a = sval(i.ops[1]) if len(i.ops) > 1 else None
            b = sval(i.ops[2]) if len(i.ops) > 2 else None
            v = None; ns = None; setscc = True
            if len(parse_reg(i.ops[0])) == 1:
                if op in ("s_mov_b32", "s_movk_i32"): v = a; setscc = False
                elif op == "s_cselect_b32":
                    setscc = False; v = None if scc is None else (a if scc else b)
                elif op == "s_mul_i32":
                    setscc = False; v = None if None in (a, b) else (a * b) & M32
                elif op == "s_getreg_b32": setscc = False
                elif None not in (a, b):
                    if op == "s_add_u32": v = (a + b) & M32; ns = a + b > M32
                    elif op == "s_sub_u32": v = (a - b) & M32; ns = b > a
                    elif op == "s_add_i32": v = (a + b) & M32
                    elif op == "s_sub_i32": v = (a - b) & M32
                    elif op == "s_lshl_b32": v = (a << (b & 31)) & M32; ns = v != 0
                    elif op == "s_lshr_b32": v = a >> (b & 31); ns = v != 0
                    elif op == "s_and_b32": v = a & b; ns = v != 0
                    elif op == "s_or_b32": v = a | b; ns = v != 0
                    elif op == "s_xor_b32": v = a ^ b; ns = v != 0
                    elif op == "s_min_u32": v = min(a, b); ns = a < b
                    elif op == "s_max_u32": v = max(a, b); ns = a > b
                    elif op == "s_max_i32": v = max(sx(a), sx(b)) & M32
                    elif op == "s_min_i32": v = min(sx(a), sx(b)) & M32
                    elif op.startswith("s_lshl") and op.endswith("_add_u32"): v = ((a << int(op[6])) + b) & M32
                if v is None: S.pop(d, None)
                else: S[d] = v
            else:
                if op in ("s_mov_b64", "s_getpc_b64", "s_cselect_b64"): setscc = False
                for r in i.wr: S.pop(r[1], None)
            if setscc: scc = ns
        elif i.kind == "valu":
            for r in i.wr:
                if r[0] == "s":
                    S.pop(r[1], None)
                    m = re.search(r"@val=(\w+)", i.ann)
                    if m: S[r[1]] = wave if m.group(1) == "wave" else int(m.group(1), 0)
        t += step
    return errs, cnt, nbar

if __name__ == "__main__":
    path = sys.argv[1]
    txt = open(path).read()
    ks = re.findall(r"^\.amdhsa_kernel\s+(\S+)", txt, re.M)
    bad = 0
    for k in ks:
        for wg in (0, 9, 100, 255):
            bars = []
            for wave in range(4):
                errs, cnt, nbar = run(path, k, wg, wave)
                bars.append(nbar)
                for e in errs[:20]: print(k, wg, wave, e)
                bad += len(errs)
            print(k, "wg", wg, cnt, "barriers", bars)
            if len(set(bars)) != 1: print("BARRIER MISMATCH"); bad += 1
    print("ERRORS:", bad)
    sys.exit(1 if bad else 0)
```

```python
from check import Ins

class P:
    def __init__(self):
        self.l = []
        self.uid = 0
    def __call__(self, s):
        if isinstance(s, (list, tuple)):
            for x in s: self(x)
            return
        for x in s.split("\n"):
            x = x.strip()
            if x: self.l.append(x)
    def label(self, n): self.l.append(n + ":")
    def new(self, base):
        self.uid += 1
        return f"L_{base}_{self.uid}"
    def text(self): return "\n".join(self.l) + "\n"

def rr(f, b, n=4):
    return f"{f}{b}" if n == 1 else f"{f}[{b}:{b+n-1}]"
class R:
    def __init__(self, f, b, n=4): self.f, self.b, self.n = f, b, n
    def __str__(self): return rr(self.f, self.b, self.n)
    def __getitem__(self, i):
        if isinstance(i, slice): return R(self.f, self.b + i.start, i.stop - i.start)
        return R(self.f, self.b + i, 1)

def mfma(d, a, b, c=None):
    return f"v_mfma_f32_16x16x32_bf16 {d}, {a}, {b}, {d if c is None else c}"

def weave(mf, gaps):
    out = list(gaps.get(-1, []))
    for i, m in enumerate(mf):
        out.append(m)
        out += gaps.get(i, [])
    extra = [g for g in gaps if g >= len(mf) and gaps[g]]
    assert not extra, f"gaps beyond end {extra}"
    return out

def autowait(seq, pend=None):
    import re
    pend = [list(x) for x in (pend or [])]
    out = []
    slot = None; since = 0
    for s in seq:
        if s.endswith(":") or s.startswith("."):
            out.append(s); slot = None; since = 0; continue
        i = Ins(s, 0)
        need = -1
        touched = set(i.rd + i.wr)
        for k, regs in enumerate(pend):
            if touched & set(regs): need = k
        if need >= 0:
            n_after = len(pend) - 1 - need
            if slot is not None and n_after >= since:
                out.insert(slot, f"s_waitcnt lgkmcnt({min(n_after - since, 15)})")
            else:
                out.append(f"s_waitcnt lgkmcnt({min(n_after, 15)})")
            pend = pend[need + 1:]
        if i.op == "s_waitcnt":
            m = re.search(r"lgkmcnt\((\d+)\)", s)
            if m:
                k = int(m.group(1))
                pend = pend[max(0, len(pend) - k):] if k else []
        out.append(s)
        if i.kind in ("dsr", "dsw"):
            pend.append(list(i.wr)); since += 1
        if i.kind == "mfma":
            slot = len(out); since = 0
        if i.op.startswith(("s_cbranch", "s_branch", "s_barrier", "s_call")):
            slot = None; since = 0
    return out, pend

def autowait_loop(body, pend=None):
    _, p1 = autowait(body, pend)
    out, p2 = autowait(body, p1)
    return out, p2
```

```python
import sys, math
from genlib import *

NAME = "gated_mix__compressed_kv_cla__sliding_local_dilated__prompt"
WS_KV = 0
WS_CTX = 32 << 20
WS_G = 56 << 20
WS_STAMP = 64 << 20
LDS_BYTES = 152 * 1024
LDS_X = 128 * 1024

sX, sC, sWQ, sWUK, sWUV, sWOA, sWQKV, sWOB, sGATE, sOUT, sDBG, sWS = 4, 6, 8, 10, 12, 14, 18, 20, 22, 24, 26, 28
sW, sH, sJ = 30, 31, 3
SA, SB, SC, SD, SE = 32, 36, 40, 44, 48
def srd(b): return f"s[{b}:{b+3}]"

OPT = dict(stamps=False)

def mk_srd(p, b, ptr, nbytes, off=None):
    if off is None:
        p(f"s_mov_b32 s{b}, s{ptr}\ns_mov_b32 s{b+1}, s{ptr+1}")
    else:
        p(f"s_add_u32 s{b}, s{ptr}, {off}\ns_addc_u32 s{b+1}, s{ptr+1}, 0")
    p(f"s_mov_b32 s{b+2}, {nbytes}\ns_mov_b32 s{b+3}, 0x20000")

def prologue(p, endlabel):
    p(f"s_cmp_ge_u32 s2, 256\ns_cbranch_scc1 {endlabel}")
    p("s_load_dwordx16 s[4:19], s[0:1], 0\ns_load_dwordx8 s[20:27], s[0:1], 64\ns_load_dwordx2 s[28:29], s[0:1], 96")
    p("v_lshrrev_b32 v1, 6, v0\nv_and_b32 v0, 63, v0")
    p(f"v_readfirstlane_b32 s{sW}, v1 ;@val=wave")
    p(f"s_and_b32 s52, s2, 7\ns_lshr_b32 s53, s2, 3\ns_and_b32 s54, s53, 3\ns_lshl2_add_u32 s{sH}, s52, s54\ns_lshr_b32 s{sJ}, s53, 2")
    p("s_waitcnt lgkmcnt(0)")

def stamp(p, idx):
    if not OPT["stamps"]: return
    p("v_accvgpr_write_b32 a253, v1\nv_accvgpr_write_b32 a254, v2\nv_accvgpr_write_b32 a255, v3")
    p("s_waitcnt lgkmcnt(0)\ns_memtime s[92:93]\ns_memrealtime s[94:95]\ns_waitcnt lgkmcnt(0)")
    p(f"s_lshl_b32 s96, s2, 2\ns_add_u32 s96, s96, s{sW}\ns_lshl_b32 s96, s96, 8\ns_add_u32 s96, s96, {WS_STAMP + idx*8}")
    p("v_mov_b32 v1, s96\nv_mov_b32 v2, s92\nv_mov_b32 v3, s94")
    p(f"global_store_dwordx2 v1, v[2:3], s[{sWS}:{sWS+1}]")
    p("s_nop 1\nv_accvgpr_read_b32 v1, a253\nv_accvgpr_read_b32 v2, a254\nv_accvgpr_read_b32 v3, a255\ns_nop 1")

def place(gaps, g, *ins):
    gaps.setdefault(g, []).extend(ins)

def gemm_substep(mf, reads, dmas, rstart=0):
    n = len(mf); gaps = {}
    nd = len(dmas)
    mg = []
    if nd:
        per = n / nd
        mg = [min(n - 1, int(q * per) + 2) for q in range(nd)]
        assert len(set(mg)) == nd
    free = [g for g in range(rstart, n) if g not in mg]
    for q, (sal, d) in enumerate(dmas):
        g = mg[q]
        for k, s in enumerate(sal):
            place(gaps, g - len(sal) + k, s)
    assert len(reads) <= len(free), (len(reads), len(free))
    for r, g in zip(reads, free): place(gaps, g, r)
    for q, (sal, d) in enumerate(dmas): place(gaps, mg[q], d)
    return weave(mf, gaps)

def gate(p, vt):
    a = vt
    p(f"s_lshl_b32 s52, s2, 3\ns_lshl1_add_u32 s52, s{sW}, s52")
    p(f"v_lshrrev_b32 v{a}, 5, v0\nv_add_u32 v{a}, s52, v{a}")
    p(f"v_and_b32 v{a+1}, 31, v0\nv_lshlrev_b32 v{a+1}, 4, v{a+1}")
    p(f"v_lshl_add_u32 v{a+2}, v{a}, 11, v{a+1}")
    for i in range(4):
        p(f"global_load_dwordx4 v[{a+4+4*i}:{a+7+4*i}], v{a+2}, s[{sX}:{sX+1}] offset:{512*i}")
    for i in range(4):
        p(f"global_load_dwordx4 v[{a+20+4*i}:{a+23+4*i}], v{a+1}, s[{sGATE}:{sGATE+1}] offset:{512*i}")
def gate_finish(p, vt):
    a = vt
    t0, t1, t2, t3, acc = a+36, a+37, a+38, a+39, a+3
    p(f"v_mov_b32 v{acc}, 0")
    for i in range(16):
        x, w = a+4+i, a+20+i
        p(f"v_lshlrev_b32 v{t0}, 16, v{x}\nv_and_b32 v{t1}, 0xffff0000, v{x}\nv_lshlrev_b32 v{t2}, 16, v{w}\nv_and_b32 v{t3}, 0xffff0000, v{w}")
        p(f"v_mul_f32 v{t0}, v{t0}, v{t2}\nv_mul_f32 v{t1}, v{t1}, v{t3}\nv_cvt_pk_bf16_f32 v{t0}, v{t0}, v{t1}")
        p(f"v_lshlrev_b32 v{t1}, 16, v{t0}\nv_and_b32 v{t0}, 0xffff0000, v{t0}\nv_add_f32 v{acc}, v{acc}, v{t1}\nv_add_f32 v{acc}, v{acc}, v{t0}")
    for r in (8, 4, 2, 1):
        p(f"s_nop 1\nv_add_f32_dpp v{acc}, v{acc}, v{acc} row_ror:{r} row_mask:0xf bank_mask:0xf")
    p(f"v_mov_b32 v{t0}, v{acc}\ns_nop 1\nv_permlane16_swap_b32 v{t0}, v{acc}\nv_add_f32 v{acc}, v{acc}, v{t0}")
    p(f"v_cvt_pk_bf16_f32 v{acc}, v{acc}, v{acc}\nv_and_b32 v{acc}, 0xffff0000, v{acc}")
    p(f"v_mul_f32 v{acc}, 0xbfb8aa3b, v{acc}\nv_exp_f32 v{acc}, v{acc}\ns_nop 0\nv_add_f32 v{acc}, 1.0, v{acc}\nv_rcp_f32 v{acc}, v{acc}\ns_nop 0")
    p(f"v_cvt_pk_bf16_f32 v{t0}, v{acc}, v{acc}\nv_and_b32 v{t0}, 0xffff0000, v{t0}")
    p(f"v_sub_f32 v{t1}, 1.0, v{t0}\nv_cvt_pk_bf16_f32 v{t1}, v{t1}, v{t1}\nv_and_b32 v{t1}, 0xffff0000, v{t1}")
    p(f"v_lshlrev_b32 v{a}, 3, v{a}\nv_add_u32 v{a}, {WS_G}, v{a}")
    p(f"s_mov_b32 exec_lo, 1\ns_mov_b32 exec_hi, 1")
    p(f"global_store_dwordx2 v{a}, v[{t0}:{t1}], s[{sWS}:{sWS+1}]")
    p("s_mov_b64 exec, -1")

def phase1(p):
    vDC, vDW, vGC, vGW, vL16 = 2, 4, 8, 10, 12
    sCoff, sWoff, sLC, sLW, sT, sCnt = 56, 57, 58, 59, 60, 61
    def acc(kv, kb, db):
        t = (kb * 2 + kv) * 4 + db
        return R("v", 16 + 4 * t) if t < 60 else R("a", 128 + 4 * (t - 60))
    def fc(st, kb): return R("a", 64 * st + 4 * kb)
    def fw(st, kv, db): return R("a", 64 * st + 32 + 16 * kv + 4 * db)
    mk_srd(p, SA, sC, 2 << 20); mk_srd(p, SB, sWUK, 4 << 20); mk_srd(p, SC, sWUV, 4 << 20)
    p(f"""v_lshrrev_b32 v13, 3, v0
          v_lshrrev_b32 v14, 4, v0
          v_and_b32 v15, 7, v0
          v_xor_b32 v15, v15, v14
          v_lshlrev_b32 v15, 4, v15
          v_lshl_add_u32 v{vGC}, v13, 10, v15
          v_xor_b32 v{vGC+1}, 64, v{vGC}
          v_bfe_u32 v15, v0, 1, 3
          v_xor_b32 v15, v15, v14
          v_lshlrev_b32 v15, 5, v15
          v_and_b32 v13, 1, v0
          v_lshl_add_u32 v15, v13, 4, v15
          v_lshl_add_u32 v{vGW}, v14, 13, v15
          v_xor_b32 v{vGW+1}, 128, v{vGW}""")
    p(f"s_lshl_b32 s{sCoff}, s{sJ}, 18\ns_lshl_b32 s52, s{sW}, 16\ns_add_u32 s{sCoff}, s{sCoff}, s52")
    p(f"s_lshl_b32 s{sWoff}, s{sW}, 17\ns_lshl_b32 s52, s{sH}, 8\ns_add_u32 s{sWoff}, s{sWoff}, s52")
    p(f"s_lshl_b32 s{sLC}, s{sW}, 13\ns_lshl_b32 s{sLW}, s{sW}, 12\ns_add_u32 s{sLW}, s{sLW}, 65536")
    def dmas(par):
        d = []
        for i in range(8):
            d.append(([f"s_add_u32 m0, s{sLC}, {par*32768 + i*1024}", f"s_add_u32 s{sT}, s{sCoff}, {i*8192}"],
                      f"buffer_load_dwordx4 v{vGC + (i&1)}, {srd(SA)}, s{sT} offen lds"))
        for kv in range(2):
            for i in range(4):
                d.append(([f"s_add_u32 m0, s{sLW}, {par*32768 + kv*16384 + i*1024}", f"s_add_u32 s{sT}, s{sWoff}, {i*32768}"],
                          f"buffer_load_dwordx4 v{vGW + (i>>1)}, {srd(SB if kv == 0 else SC)}, s{sT} offen lds"))
        return d
    adv = [f"s_add_u32 s{sCoff}, s{sCoff}, 128", f"s_add_u32 s{sWoff}, s{sWoff}, {64*8192}"]
    for par in range(2):
        for sal, d in dmas(par): p(sal); p(d)
        p(adv)
    gate(p, 16)
    p(f"""v_and_b32 v13, 15, v0
          v_lshrrev_b32 v15, 1, v13
          v_xor_b32 v15, v15, v14
          v_lshlrev_b32 v15, 4, v15
          v_lshl_add_u32 v15, v13, 7, v15
          s_lshr_b32 s52, s{sW}, 1
          s_lshl_b32 s52, s52, 14
          v_add_u32 v{vDC}, s52, v15
          v_xor_b32 v{vDC+1}, 64, v{vDC}
          v_bfe_u32 v13, v0, 2, 2
          v_lshl_add_u32 v15, v14, 3, v13
          v_lshlrev_b32 v15, 8, v15
          v_and_b32 v1, 3, v0
          v_lshl_add_u32 v15, v1, 3, v15
          v_add_u32 v15, 65536, v15
          v_and_b32 v1, 1, v14
          v_lshl_add_u32 v13, v1, 2, v13
          s_and_b32 s52, s{sW}, 1
          s_lshl_b32 s52, s52, 2
          v_xor_b32 v13, s52, v13""")
    for n in range(4):
        p(f"v_xor_b32 v1, {n}, v13\nv_lshl_add_u32 v{vDW+n}, v1, 5, v15")
    p(f"v_lshlrev_b32 v{vL16}, 4, v0")
    p("s_waitcnt vmcnt(0)")
    gate_finish(p, 16)
    p("s_nop 1")
    for t in range(64):
        kb, kv, db = t // 8, (t // 4) & 1, t & 3
        r = acc(kv, kb, db)
        for k in range(4):
            p(f"v_mov_b32 {r[k]}, 0" if r.f == "v" else f"v_accvgpr_write_b32 {r[k]}, 0")
    def reads(par, s):
        st = s
        rd = [f"ds_read_b128 {fc(st, 0)}, v{vDC+s} offset:{par*32768}"]
        for kv in range(2):
            for db in range(4):
                for i in range(2):
                    rd.append(f"ds_read_b64_tr_b16 {fw(st, kv, db)[2*i:2*i+2]}, v{vDW+db} offset:{par*32768 + kv*16384 + s*8192 + i*1024}")
        for kb in range(1, 8):
            rd.append(f"ds_read_b128 {fc(st, kb)}, v{vDC+s} offset:{par*32768 + kb*2048}")
        return rd
    def mfs(st):
        m = []
        for kb in range(8):
            for kv in range(2):
                for db in range(4):
                    m.append(mfma(acc(kv, kb, db), fw(st, 0, db), fc(st, kb)) if kv == 0 else mfma(acc(kv, kb, db), fc(st, kb), fw(st, 1, db)))
        return m
    def stage(par, dma, nxt):
        s = gemm_substep(mfs(0), reads(par, 1), [])
        if nxt: s += ["s_waitcnt vmcnt(0) lgkmcnt(0)", "s_barrier"]
        s += gemm_substep(mfs(1), reads(par ^ 1, 0) if nxt else [], dmas(par) if dma else [])
        if dma: s += adv
        return s
    p("s_waitcnt vmcnt(0)\ns_barrier")
    stamp(p, 1)
    p(reads(0, 0))
    p(f"s_mov_b32 s{sCnt}, 3\ns_waitcnt lgkmcnt(0)")
    L = p.new("p1")
    p(".p2align 3"); p.label(L)
    body = stage(0, True, True) + stage(1, True, True) + [f"s_sub_u32 s{sCnt}, s{sCnt}, 1", f"s_cmp_lg_u32 s{sCnt}, 0"]
    body, pend = autowait_loop(body)
    p(body); p(f"s_cbranch_scc1 {L}")
    tail, _ = autowait(stage(0, False, True) + stage(1, False, False), pend)
    p(tail)
    stamp(p, 2)
    mk_srd(p, SD, sWS, 32 << 20, WS_KV)
    sB = 56
    p(f"""s_lshl_b32 s{sB}, s{sH}, 20
          s_lshl_b32 s52, s{sJ}, 17
          s_add_u32 s{sB}, s{sB}, s52
          s_lshr_b32 s52, s{sW}, 1
          s_lshl_b32 s52, s52, 16
          s_add_u32 s{sB}, s{sB}, s52
          s_and_b32 s52, s{sW}, 1
          s_lshl_b32 s53, s52, 11
          s_add_u32 s57, s{sB}, s53
          s_lshl_b32 s53, s52, 12
          s_add_u32 s58, s{sB}, s53""")
    def tov(r, tmp):
        if r.f == "v": return r
        for k in range(4): p(f"v_accvgpr_read_b32 v{tmp+k}, {r[k]}")
        return R("v", tmp)
    def pack(t0, t1):
        p(f"v_cvt_pk_bf16_f32 {t0[0]}, {t0[0]}, {t0[1]}\nv_cvt_pk_bf16_f32 {t0[1]}, {t0[2]}, {t0[3]}")
        p(f"v_cvt_pk_bf16_f32 {t0[2]}, {t1[0]}, {t1[1]}\nv_cvt_pk_bf16_f32 {t0[3]}, {t1[2]}, {t1[3]}")
    for u in range(4):
        for kb in (2*u, 2*u+1):
            p(f"s_add_u32 s{sT}, s57, {u*16384 + (kb&1)*4096}")
            for t in range(2):
                t0, t1 = acc(0, kb, 2*t), acc(0, kb, 2*t+1)
                pack(t0, t1)
                p(f"buffer_store_dwordx4 {t0}, v{vL16}, {srd(SD)}, s{sT} offen offset:{t*1024} {OPT.get('st','')}")
        p(f"s_add_u32 s{sT}, s58, {u*16384 + 8192}")
        for db in range(4):
            t0, t1 = acc(1, 2*u, db), tov(acc(1, 2*u+1, db), 20)
            pack(t0, t1)
            p(f"buffer_store_dwordx4 {t0}, v{vL16}, {srd(SD)}, s{sT} offen offset:{db*1024} {OPT.get('st','')}")

def kdesc(name):
    return f""".amdhsa_kernel {name}
  .amdhsa_next_free_vgpr 512
  .amdhsa_next_free_sgpr 102
  .amdhsa_accum_offset 256
  .amdhsa_group_segment_fixed_size 0
  .amdhsa_kernarg_size 104
  .amdhsa_user_sgpr_count 2
  .amdhsa_user_sgpr_kernarg_segment_ptr 1
  .amdhsa_system_sgpr_workgroup_id_x 1
.end_amdhsa_kernel"""

def kernel(p, name, fns):
    p(f".globl {name}\n.p2align 8\n.type {name},@function"); p.label(name)
    end = p.new("end")
    prologue(p, end)
    for f in fns: f(p)
    p.label(end); p("s_endpgm")

QSCALE = 128 ** -0.5 * math.log2(math.e)
BSCALE = 32 ** -0.5 * math.log2(math.e)
import struct
def f32(x): return "0x%08x" % struct.unpack("<I", struct.pack("<f", x))[0]

vQ = 24
vG = 8
vONE = 16
sBLo, sBHi = 62, 63

def phase2(p):
    vDX, vDH, vDQ, vDB, vDBH = 2, 4, 6, 14, 16
    vGX, vGH, vGW, vGB = 17, 19, 20, 22
    sXlo, sXhi, sXh, sWoff, sBoff, sLX, sLH, sLW, sLB, sT, sCnt = 64, 65, 66, 67, 68, 69, 70, 71, 72, 73, 74
    XB, WQB, WBB = 0, 73728, 106496
    def aq(db, rb): return R("v", (vQ if db % 2 == 0 else 88) + 16 * rb + 4 * (db // 2))
    def bt(part, db, rb): return R("v", 152 + 32 * part + 8 * rb + 4 * db)
    hk, hv = R("v", 248), R("v", 252)
    def fx(st, rb): return R("a", 84 * st + 4 * rb)
    def fw(st, cb): return R("a", 84 * st + 20 + 4 * cb)
    mk_srd(p, SA, sX, 4 << 20); mk_srd(p, SB, sWQ, 8 << 20); mk_srd(p, SC, sWQKV, 6 << 20)
    p(f"s_mov_b32 s{sBLo}, s{sJ}\ns_sub_u32 s{sBHi}, 15, s{sJ}")
    t0, t1, t2 = 24, 25, 26
    p(f"""v_lshrrev_b32 v{t0}, 3, v0
          v_lshrrev_b32 v{t1}, 4, v0
          v_and_b32 v{t2}, 7, v0
          v_xor_b32 v{t2}, v{t2}, v{t1}
          v_lshlrev_b32 v{t2}, 4, v{t2}
          v_lshl_add_u32 v{vGX}, v{t0}, 11, v{t2}
          v_xor_b32 v{vGX+1}, 64, v{vGX}
          s_and_b32 s52, s{sW}, 1
          s_lshl_b32 s53, s52, 6
          v_xor_b32 v{vGH}, s53, v{vGX}
          v_bfe_u32 v{t2}, v0, 1, 3
          v_xor_b32 v{t2}, v{t2}, v{t1}
          v_lshlrev_b32 v{t2}, 5, v{t2}
          v_and_b32 v{t0}, 1, v0
          v_lshl_add_u32 v{t2}, v{t0}, 4, v{t2}
          v_lshl_add_u32 v{vGW}, v{t1}, 13, v{t2}
          v_xor_b32 v{vGW+1}, 128, v{vGW}
          v_bfe_u32 v{t2}, v0, 1, 1
          v_lshrrev_b32 v1, 5, v0
          v_xor_b32 v{t2}, v{t2}, v1
          v_lshlrev_b32 v{t2}, 5, v{t2}
          v_lshl_add_u32 v{t2}, v{t0}, 4, v{t2}
          v_lshrrev_b32 v1, 2, v0
          v_mul_u32_u24 v1, 6144, v1
          v_add_u32 v{vGB}, v1, v{t2}""")
    p(f"""s_lshl_b32 s53, s{sW}, 16
          s_lshl_b32 s{sXlo}, s{sBLo}, 18
          s_lshl_b32 s{sXhi}, s{sBHi}, 18
          s_cmp_lt_u32 s{sW}, 2
          s_cselect_b32 s{sXh}, s{sXlo}, s{sXhi}
          s_max_u32 s{sXh}, s{sXh}, 32768
          s_sub_u32 s{sXh}, s{sXh}, 32768
          s_lshl_b32 s54, s52, 14
          s_add_u32 s{sXh}, s{sXh}, s54
          s_add_u32 s{sXlo}, s{sXlo}, s53
          s_add_u32 s{sXhi}, s{sXhi}, s53
          s_lshl_b32 s{sWoff}, s{sW}, 17
          s_lshl_b32 s53, s{sH}, 8
          s_add_u32 s{sWoff}, s{sWoff}, s53
          s_mul_i32 s{sBoff}, s{sW}, {16*6144}
          s_lshl_b32 s53, s{sH}, 6
          s_add_u32 s{sBoff}, s{sBoff}, s53
          s_lshl_b32 s{sLX}, s{sW}, 13
          s_lshl_b32 s{sLH}, s{sW}, 10
          s_lshl_b32 s{sLW}, s{sW}, 12""")
    def dmas(par):
        d = []
        for i in range(4):
            d.append(([f"s_add_u32 m0, s{sLW}, {WQB + par*16384 + i*1024}", f"s_add_u32 s{sT}, s{sWoff}, {i*32768}"],
                      f"buffer_load_dwordx4 v{vGW + (i>>1)}, {srd(SB)}, s{sT} offen lds"))
        for pp in range(3):
            d.append(([f"s_add_u32 m0, s{sLH}, {WBB + par*12288 + pp*4096}", f"s_add_u32 s{sT}, s{sBoff}, {pp*2048}"],
                      f"buffer_load_dwordx4 v{vGB}, {srd(SC)}, s{sT} offen lds"))
        for i in range(8):
            d.append(([f"s_add_u32 m0, s{sLX}, {XB + par*36864 + i*1024}", f"s_add_u32 s{sT}, s{sXlo if i < 4 else sXhi}, {(i&3)*16384}"],
                      f"buffer_load_dwordx4 v{vGX + (i&1)}, {srd(SA)}, s{sT} offen lds"))
        d.append(([f"s_add_u32 m0, s{sLH}, {XB + par*36864 + 32768}", "s_nop 0"], f"buffer_load_dwordx4 v{vGH}, {srd(SA)}, s{sXh} offen lds"))
        return d
    adv = [f"s_add_u32 s{sXlo}, s{sXlo}, 128", f"s_add_u32 s{sXhi}, s{sXhi}, 128", f"s_add_u32 s{sXh}, s{sXh}, 128",
           f"s_add_u32 s{sWoff}, s{sWoff}, {64*8192}", f"s_add_u32 s{sBoff}, s{sBoff}, {64*6144}"]
    for par in range(2):
        for sal, d in dmas(par): p(sal); p(d)
        p(adv)
    p(f"""v_and_b32 v{t0}, 15, v0
          v_lshrrev_b32 v{t2}, 1, v{t0}
          v_xor_b32 v{t2}, v{t2}, v{t1}
          v_lshlrev_b32 v{t2}, 4, v{t2}
          v_lshl_add_u32 v{t2}, v{t0}, 7, v{t2}
          v_add_u32 v{vDX}, s{sLX}, v{t2}
          v_xor_b32 v{vDX+1}, 64, v{vDX}
          s_lshr_b32 s53, s{sW}, 1
          s_lshl_b32 s53, s53, 11
          s_add_u32 s53, s53, 32768
          v_add_u32 v{vDH}, s53, v{t2}
          v_xor_b32 v{vDH+1}, 64, v{vDH}
          v_bfe_u32 v{t0}, v0, 2, 2
          v_lshl_add_u32 v27, v{t1}, 3, v{t0}
          v_and_b32 v1, 3, v0
          v_lshlrev_b32 v1, 3, v1
          v_lshl_add_u32 v{t2}, v27, 8, v1
          v_add_u32 v{t2}, {WQB}, v{t2}
          v_lshl_add_u32 v27, v27, 6, v1
          v_add_u32 v27, {WBB}, v27
          v_and_b32 v1, 1, v{t1}
          v_lshl_add_u32 v{vDB}, v1, 5, v27
          v_xor_b32 v{vDB+1}, 32, v{vDB}
          s_lshl_b32 s53, s52, 5
          v_xor_b32 v{vDBH}, s53, v{vDB}
          v_lshl_add_u32 v{t0}, v1, 2, v{t0}""")
    for n in range(8):
        p(f"v_xor_b32 v1, {n}, v{t0}\nv_lshl_add_u32 v{vDQ+n}, v1, 5, v{t2}")
    for r in range(24, 256): p(f"v_mov_b32 v{r}, 0")
    def reads(par, s):
        rd = []
        for rb in range(4): rd.append(f"ds_read_b128 {fx(s, rb)}, v{vDX+s} offset:{par*36864 + rb*2048}")
        for cb in range(16):
            for i in range(2):
                if cb < 8: a, off = vDQ + cb, par*16384 + s*8192 + i*1024
                elif cb < 14: a, off = vDB + (cb & 1), par*12288 + ((cb-8) >> 1)*4096 + s*2048 + i*256
                else: a, off = vDBH, par*12288 + (cb-13)*4096 + s*2048 + i*256
                if cb == 14 and i == 0: rd.append(f"ds_read_b128 {fx(s, 4)}, v{vDH+s} offset:{par*36864}")
                rd.append(f"ds_read_b64_tr_b16 {fw(s, cb)[2*i:2*i+2]}, v{a} offset:{off}")
        return rd
    def mfs(st):
        m = []
        for cb in range(14):
            for rb in range(4):
                if cb < 8: m.append(mfma(aq(cb, rb), fw(st, cb), fx(st, rb)))
                elif cb < 12: m.append(mfma(bt((cb-8) >> 1, cb & 1, rb), fw(st, cb), fx(st, rb)))
                else: m.append(mfma(bt(2, cb & 1, rb), fx(st, rb), fw(st, cb)))
        m.append(mfma(hk, fw(st, 14), fx(st, 4)))
        m.append(mfma(hv, fx(st, 4), fw(st, 15)))
        return m
    def stage(par, dma, nxt, advance):
        s = gemm_substep(mfs(0), reads(par, 1) + (adv if advance else []), [])
        if nxt: s += ["s_waitcnt vmcnt(0) lgkmcnt(0)", "s_barrier"]
        s += gemm_substep(mfs(1), reads(par ^ 1, 0) if nxt else [], dmas(par) if dma else [])
        return s
    p("s_waitcnt vmcnt(16)\ns_barrier")
    stamp(p, 4)
    p(reads(0, 0))
    p([a.replace("s_add_u32", "s_sub_u32") for a in adv])
    p(f"s_mov_b32 s{sCnt}, 7\ns_waitcnt lgkmcnt(0)")
    L = p.new("p2")
    p(".p2align 3"); p.label(L)
    body = stage(0, True, True, True) + stage(1, True, True, True) + [f"s_sub_u32 s{sCnt}, s{sCnt}, 1", f"s_cmp_lg_u32 s{sCnt}, 0"]
    body, pend = autowait_loop(body)
    p(body); p(f"s_cbranch_scc1 {L}")
    tail, _ = autowait(stage(0, False, True, False) + stage(1, False, False, False), pend)
    p(tail)
    stamp(p, 5)
    p(f"""s_lshl_b32 s52, s{sW}, 8
          s_add_u32 s52, s52, {WS_G}
          s_lshl_b32 s53, s{sBLo}, 10
          s_add_u32 s53, s53, s52
          s_lshl_b32 s54, s{sBHi}, 10
          s_add_u32 s54, s54, s52
          v_and_b32 v2, 15, v0
          v_lshlrev_b32 v2, 3, v2
          v_add_u32 v3, s54, v2
          v_add_u32 v2, s53, v2""")
    for rb in range(4):
        p(f"global_load_dwordx2 v[{vG+2*rb}:{vG+2*rb+1}], v{2 + (rb>>1)}, s[{sWS}:{sWS+1}] offset:{(rb&1)*128}")
    p(f"s_mov_b32 s52, {f32(QSCALE)}\ns_mov_b32 s53, s52")
    def pk(d, a, b): p(f"v_cvt_pk_bf16_f32 {d}, {a}, {b}")
    for rb in range(4):
        for t in range(4):
            a, b = aq(2*t, rb), aq(2*t+1, rb)
            for r in (a, b):
                p(f"v_pk_mul_f32 {r[0:2]}, {r[0:2]}, s[52:53]\nv_pk_mul_f32 {r[2:4]}, {r[2:4]}, s[52:53]")
            pk(a[0], a[0], a[1]); pk(a[1], a[2], a[3]); pk(a[2], b[0], b[1]); pk(a[3], b[2], b[3])
    def VB(s, db): return R("v", 88 + 8 * (2*s + db), 6)
    def kprev(s): return R("v", 120 + 4*s)
    for part in (1, 0):
        for rb in range(4):
            a, b = bt(part, 0, rb), bt(part, 1, rb)
            pk(a[0], a[0], a[1]); pk(a[1], a[2], a[3]); pk(a[2], b[0], b[1]); pk(a[3], b[2], b[3])
    for rb in range(4):
        for db in range(2):
            a = bt(2, db, rb); d = VB(rb >> 1, db)
            pk(d[2 + 2*(rb&1)], a[0], a[1]); pk(d[3 + 2*(rb&1)], a[2], a[3])
    pk(hk[0], hk[0], hk[1]); pk(hk[1], hk[2], hk[3]); pk(hv[0], hv[0], hv[1]); pk(hv[1], hv[2], hv[3])
    p(f"""v_lshlrev_b32 v4, 4, v0
          s_lshl_b32 s52, s{sW}, 11
          s_add_u32 s52, s52, {LDS_X}
          v_add_u32 v5, s52, v4
          s_lshr_b32 s52, s{sW}, 1
          s_mul_i32 s52, s52, 10240
          s_and_b32 s53, s{sW}, 1
          s_lshl3_add_u32 s52, s53, s52
          s_add_u32 s52, s52, {LDS_X}
          v_add_u32 v6, s52, v4""")
    for s in range(2):
        p(f"ds_write_b128 v5, {bt(1, 0, 2*s+1)} offset:{s*10240 + 2048}")
        for db in range(2):
            p(f"ds_write_b64 v5, {VB(s, db)[4:6]} offset:{s*10240 + 2048 + 1024 + db*8}")
    p(f"ds_write_b64 v6, {hk[0:2]}\nds_write_b64 v6, {hv[0:2]} offset:1024")
    mP, mO, mP0 = R("v", 128), R("v", 132), R("v", 136)
    p(f"""v_and_b32 v20, 15, v0
          v_lshrrev_b32 v21, 4, v0
          v_lshlrev_b32 v21, 2, v21
          v_sub_u32 v20, v20, v21
          v_mov_b32 v21, 0xff800000
          s_or_b32 s52, s{sJ}, s{sW}
          s_cmp_eq_u32 s52, 0
          s_cselect_b32 s52, 0xff800000, 0""")
    for r in range(4):
        p(f"""v_subrev_u32 v22, {r}, v20
              v_and_b32 v23, 0x80000001, v22
              v_cmp_eq_u32 vcc, 0, v23
              s_nop 1
              v_cndmask_b32 {mO[r]}, v21, v23, vcc
              v_xor_b32 v23, 0x80000000, v23
              v_cmp_eq_u32 vcc, 0, v23
              s_nop 1
              v_cndmask_b32 {mP[r]}, v21, v23, vcc
              v_or_b32 {mP0[r]}, s52, {mP[r]}""")
    p(f"""v_and_b32 v22, 3, v0
          v_cmp_eq_u32 vcc, 0, v22
          v_mov_b32 v23, 0x3f803f80
          v_mov_b32 v22, 0
          v_cndmask_b32 v{vONE}, v22, v23, vcc
          v_mov_b32 v{vONE+1}, v{vONE}
          v_mov_b32 v{vONE+2}, v{vONE}
          v_mov_b32 v{vONE+3}, v{vONE}""")
    p("s_waitcnt lgkmcnt(0)\ns_barrier")
    for s in range(2):
        p(f"ds_read_b128 {kprev(s)}, v5 offset:{s*10240}")
        for db in range(2):
            p(f"ds_read_b64 {VB(s, db)[0:2]}, v5 offset:{s*10240 + 1024 + db*8}")
    def Sp(rb): return R("v", 216 + 8*rb)
    def So(rb): return R("v", 220 + 8*rb)
    for rb in range(4): p(mfma(So(rb), bt(1, 0, rb), bt(0, 0, rb), mO))
    for rb in (1, 3): p(mfma(Sp(rb), bt(1, 0, rb-1), bt(0, 0, rb), mP))
    p("s_waitcnt lgkmcnt(0)")
    for rb in (0, 2): p(mfma(Sp(rb), kprev(rb >> 1), bt(0, 0, rb), mP0 if rb == 0 else mP))
    mx, mc = 140, 144
    p(f"s_mov_b32 s52, {f32(BSCALE)}\ns_nop 6")
    order = (1, 3, 0, 2)
    for rb in order:
        a, b = Sp(rb), So(rb)
        p(f"v_max3_f32 v{mx+rb}, {b[0]}, {b[1]}, {b[2]}\nv_max3_f32 v{mx+rb}, v{mx+rb}, {b[3]}, {a[0]}")
        p(f"v_max3_f32 v{mx+rb}, v{mx+rb}, {a[1]}, {a[2]}\nv_max_f32 v{mx+rb}, v{mx+rb}, {a[3]}")
    for op in ("v_permlane16_swap_b32", "v_permlane32_swap_b32"):
        for rb in order: p(f"v_mov_b32 v{mc+rb}, v{mx+rb}")
        p("s_nop 0")
        for rb in order: p(f"{op} v{mc+rb}, v{mx+rb}")
        for rb in order: p(f"v_max_f32 v{mx+rb}, v{mx+rb}, v{mc+rb}")
    for rb in order: p(f"v_mul_f32 v{mx+rb}, s52, v{mx+rb}")
    for rb in order:
        for k in range(8): p(f"v_fma_f32 v{216+8*rb+k}, v{216+8*rb+k}, s52, -v{mx+rb}")
        for k in range(8): p(f"v_exp_f32 v{216+8*rb+k}, v{216+8*rb+k}")
    for rb in order:
        a, b = Sp(rb), So(rb)
        pk(a[0], a[0], a[1]); pk(a[1], a[2], a[3]); pk(a[2], b[0], b[1]); pk(a[3], b[2], b[3])
    p("s_nop 1")
    for rb in order:
        p(mfma(So(rb), R("v", vONE), Sp(rb), 0))
        for db in range(2):
            p(mfma(bt(db, 1, rb), VB(rb >> 1, db)[2*(rb&1):2*(rb&1)+4], Sp(rb), 0))
    mk_srd(p, SD, sWS, 20 << 20, WS_CTX)
    p(f"""s_add_u32 s52, s{sH}, 128
          s_lshl_b32 s52, s52, 13
          s_lshl_b32 s53, s{sW}, 11
          s_add_u32 s52, s52, s53
          s_mul_i32 s53, s{sBLo}, {160*8192}
          s_add_u32 s53, s53, s52
          s_mul_i32 s54, s{sBHi}, {160*8192}
          s_add_u32 s54, s54, s52
          s_waitcnt vmcnt(0)""")
    for rb in order: p(f"v_rcp_f32 v{mx+rb}, {So(rb)[0]}")
    for rb in order: p(f"v_mul_f32 v{mx+rb}, v{mx+rb}, v{vG+2*rb+1}")
    for rb in order:
        a, b = bt(0, 1, rb), bt(1, 1, rb)
        for r in (a, b):
            for k in range(4): p(f"v_mul_f32 {r[k]}, {r[k]}, v{mx+rb}")
        pk(a[0], a[0], a[1]); pk(a[1], a[2], a[3]); pk(a[2], b[0], b[1]); pk(a[3], b[2], b[3])
        p(f"buffer_store_dwordx4 {a}, v4, {srd(SD)}, s{53 + (rb>>1)} offen offset:{(rb&1)*1024} {OPT.get('st','')}")
    if OPT.get("dumpq"):
        p(f"s_lshl_b32 s52, s2, 2\ns_add_u32 s52, s52, s{sW}\ns_lshl_b32 s52, s52, 14\ns_add_u32 s52, s52, {96<<20}\nv_add_u32 v5, s52, v4")
        for k in range(16):
            p(f"global_store_dwordx4 v5, v[{vQ+4*k}:{vQ+4*k+3}], s[{sWS}:{sWS+1}]\nv_add_u32 v5, 1024, v5")

LO, HI, BOTH = (0, 1), (2, 3), (0, 1, 2, 3)
RA = 6
LTHR = 2.0 ** 60

def attention(p):
    vDS, vL16, vNI = 2, 4, 5
    sSrc, sM0, sD1, sCnt, sFB, sT, sRet = 64, 65, 66, 67, 68, 69, 70
    sMask = 72
    def Q(qb, t): return R("v", vQ + 16*qb + 4*t)
    def S(b, kb, qb): return R("v", 88 + 32*b + 8*qb + 4*kb)
    def Pp(b, qb): return R("v", 152 + 16*b + 4*qb)
    def C(kb, qb): return R("v", 184 + 8*qb + 4*kb)
    def O(db, qb): return R("a", 32*qb + 4*db)
    def Lr(qb): return R("a", 128 + 4*qb)
    def F(f): return R("a", 144 + 4*f)
    FLAG = LDS_X + 20480
    fnlo, fnhi = p.new("masklo"), p.new("maskhi")
    stubs = []
    def rd(f, i):
        return f"ds_read_b128 {F(f)}, v{vDS} offset:{(32768 if f >= 8 else 0) + i*8192 + (f & 7)*1024}"
    def dma(k):
        sal = []
        if k == 0: sal = [f"s_mov_b32 m0, s{sM0}"]
        if k == 4: sal = [f"s_add_u32 m0, s{sM0}, 4096", f"s_add_u32 s{sT}, s{sSrc}, 4096"]
        return sal, f"buffer_load_dwordx4 v{vL16}, {srd(SA)}, s{sSrc if k < 4 else sT} offen offset:{(k&3)*1024} lds"
    def check(fn):
        st, bk = p.new("st"), p.new("bk")
        stubs.append((st, bk, fn))
        return [f"s_cmp_le_u32 s{sD1}, 1", f"s_cbranch_scc1 {st}", bk + ":", f"s_sub_u32 s{sD1}, s{sD1}, 1"]
    def rnd(i, qk, sm, pv, czero=False, knext=True, chk=None, dodma=True, pre=None):
        mf = []
        for f in range(8):
            kb, t = f >> 2, f & 3
            for qb in qk: mf.append(mfma(S(i & 1, kb, qb), F(f), Q(qb, t), C(kb, qb) if t == 0 else None))
        for db in range(8):
            for qb in pv: mf.append(mfma(O(db, qb), F(8 + db), Pp(i & 1, qb), 0 if czero else None))
        for qb in pv: mf.append(mfma(Lr(qb), R("v", vONE), Pp(i & 1, qb), 0 if czero else None))
        b = (i + 1) & 1
        E = []; Cv = []
        for qb in sm:
            for kb in range(2):
                s = S(b, kb, qb)
                for r in range(4): E.append(f"v_exp_f32 {s[r]}, {s[r]}")
                Cv.append(f"v_cvt_pk_bf16_f32 {Pp(b, qb)[2*kb]}, {s[0]}, {s[1]}")
                Cv.append(f"v_cvt_pk_bf16_f32 {Pp(b, qb)[2*kb+1]}, {s[2]}, {s[3]}")
        D = []
        for d in range(16):
            f = d + RA
            if f < 8: D.append(rd(f, i) if qk else None)
            elif f < 16: D.append(rd(f, i) if pv else None)
            else: D.append(rd(f - 16, (i + 1) & 3) if knext else None)
        bar = []
        if i & 1 and knext:
            bar = ["s_waitcnt vmcnt(8)", "s_barrier", f"s_xor_b32 s{sM0}, s{sM0}, {16384 if i == 1 else 16384 + 65536}",
                   f"s_add_u32 s{sSrc}, s{sSrc}, 32768"]
            if i == 3: bar.insert(0, f"v_xor_b32 v{vDS}, 0x10000, v{vDS}")
        n = len(mf); gaps = {}
        if (len(qk), len(sm), len(pv)) == (2, 2, 2):
            eg = [2*e + 1 for e in range(16)]; cg = [4*k + 4 for k in range(8)]
            dg = [0, 2, 2, 4, 8, 10, 12, 16, 18, 18, 20, 24, 26, 28, 32, 33]
            mg = [6, 14, 22, 30]; sg = 26
        elif (len(qk), len(sm), len(pv)) == (4, 4, 4):
            eg = [2*e + 1 for e in range(32)]; cg = [4*k + 4 for k in range(16)]
            dg = [4*d for d in range(16)]
            mg = [10, 26, 46, 58]; sg = 62
        else:
            eg = [int((e + 0.5) * (n - 2) / len(E)) for e in range(len(E))]
            cg = [min(n - 1, eg[2*k + 1] + 1) for k in range(len(Cv))]
            nq, npv = len(qk), len(pv)
            use = [f * nq for f in range(8)] + [8*nq + d * npv for d in range(8)]
            dg = [min(n - 1, use[d]) for d in range(16)]
            bg = dg[16 - RA]
            mg = [max(0, bg * 1 // 3), max(0, bg * 2 // 3), min(n - 1, bg + (n - bg) // 3), min(n - 1, bg + 2 * (n - bg) // 3)]
            sg = n - 2
        bgap = dg[16 - RA]
        assert mg[1] < bgap <= mg[2] or not (bar and dodma), (mg, bgap)
        kidx = [6, 7, 0, 1] if i & 1 else [2, 3, 4, 5]
        if dodma:
            for g, k in zip(mg, kidx):
                sal, d = dma(k)
                if k == 0: bar = bar + sal
                else:
                    for q, s in enumerate(sal): place(gaps, g - 2, s)
        if chk: place(gaps, sg, *check(chk))
        for d in range(16):
            if d == 16 - RA: place(gaps, dg[d], *bar)
            if D[d]: place(gaps, dg[d], D[d])
        if dodma:
            for g, k in zip(mg, kidx): place(gaps, g, dma(k)[1])
        for g, c in zip(cg, Cv): place(gaps, g, c)
        for g, e in zip(eg, E): place(gaps, g, e)
        return (pre or []) + weave(mf, gaps)

    p(f"""s_lshl_b32 s52, s{sH}, 20
          s_add_u32 s52, s52, {WS_KV}
          s_add_u32 s{SA}, s{sWS}, s52
          s_addc_u32 s{SA+1}, s{sWS+1}, 0
          s_add_u32 s52, s{sBHi}, 1
          s_lshl_b32 s{SA+2}, s52, 16
          s_mov_b32 s{SA+3}, 0x20000
          s_mov_b32 s{sFB}, 0
          v_lshlrev_b32 v{vL16}, 4, v0
          v_mov_b32 v{vNI}, 0xff800000
          v_and_b32 v6, 15, v0
          v_lshrrev_b32 v7, 4, v0
          v_lshlrev_b32 v7, 2, v7
          v_sub_u32 v6, v6, v7""")
    for r in range(4): p(f"v_cmp_gt_i32 s[{sMask+2*r}:{sMask+2*r+1}], {r}, v6")
    for k in range(32): p(f"v_mov_b32 v{184+k}, 0")
    START = p.new("attstart")
    p.label(START)
    p(f"""s_waitcnt vmcnt(0) lgkmcnt(0)
          s_barrier
          v_mov_b32 v{vDS}, v{vL16}
          v_mov_b32 v6, {FLAG}
          v_mov_b32 v7, 0
          ds_write_b32 v6, v7
          s_and_b32 s52, s{sW}, 1
          s_lshr_b32 s53, s{sW}, 1
          s_lshl_b32 s{sM0}, s52, 13
          s_lshl_b32 s54, s53, 15
          s_add_u32 s{sM0}, s{sM0}, s54
          s_lshl_b32 s55, s52, 14
          s_cmp_eq_u32 s53, 0
          s_cselect_b32 s{sSrc}, s55, 0x7000000""")
    def dma8():
        for k in range(8):
            sal, d = dma(k); p(sal);
            if k == 0: p("s_nop 0")
            p(d)
    dma8()
    p(f"""s_xor_b32 s{sM0}, s{sM0}, 16384
          s_cmp_eq_u32 s53, 0
          s_cselect_b32 s54, 4, 1
          s_lshl_b32 s54, s54, 13
          s_add_u32 s{sSrc}, s55, s54""")
    dma8()
    p(f"""s_xor_b32 s{sM0}, s{sM0}, {16384 + 65536}
          s_add_u32 s{sSrc}, s{sSrc}, 32768
          s_lshl2_add_u32 s{sD1}, s{sBLo}, s{sW}
          s_add_u32 s{sD1}, s{sD1}, 1""")
    p(check(fnlo))
    p("s_waitcnt vmcnt(8) lgkmcnt(0)\ns_barrier")
    stamp_x = 1 if OPT["stamps"] else 0
    seq = [rd(f, 0) for f in range(RA)]
    for k in range(2):
        sal, d = dma(k); seq += sal + (["s_nop 0"] if k == 0 else []) + [d]
    seq += rnd(0, BOTH, (), ())
    mx, mc = 216, 220
    seq += ["s_nop 7", f"s_cmp_eq_u32 s{sFB}, 0", f"s_cselect_b32 s52, -1, 0"]
    for qb in BOTH:
        a, b = S(0, 0, qb), S(0, 1, qb)
        seq += [f"v_max3_f32 v{mx+qb}, {a[0]}, {a[1]}, {a[2]}", f"v_max3_f32 v{mx+qb}, v{mx+qb}, {a[3]}, {b[0]}",
                f"v_max3_f32 v{mx+qb}, v{mx+qb}, {b[1]}, {b[2]}", f"v_max_f32 v{mx+qb}, v{mx+qb}, {b[3]}"]
    def xmax():
        o = []
        for op in ("v_permlane16_swap_b32", "v_permlane32_swap_b32"):
            o += [f"v_mov_b32 v{mc+qb}, v{mx+qb}" for qb in BOTH] + ["s_nop 0"]
            o += [f"{op} v{mc+qb}, v{mx+qb}" for qb in BOTH]
            o += [f"v_max_f32 v{mx+qb}, v{mx+qb}, v{mc+qb}" for qb in BOTH]
        return o
    seq += xmax()
    seq += [f"v_and_b32 v{mx+qb}, s52, v{mx+qb}" for qb in BOTH]
    for qb in BOTH:
        for kb in range(2):
            for r in range(4): seq.append(f"v_sub_f32 {C(kb, qb)[r]}, {C(kb, qb)[r]}, v{mx+qb}")
    seq += check(fnlo)
    for qb in BOTH:
        for kb in range(2):
            for r in range(4): seq.append(f"v_sub_f32 {S(0, kb, qb)[r]}, {S(0, kb, qb)[r]}, v{mx+qb}")
    seq += rnd(1, BOTH, BOTH, (), chk=fnlo)
    seq += rnd(2, BOTH, BOTH, BOTH, czero=True, chk=fnlo)
    seq += rnd(3, BOTH, BOTH, BOTH, chk=fnlo)
    seq, pend = autowait(seq)
    p(seq)
    LD, LT, LS, LE = p.new("dual"), p.new("trans"), p.new("single"), p.new("tail")
    p(f"s_mov_b32 s{sCnt}, s{sJ}\ns_cmp_eq_u32 s{sCnt}, 0\ns_cbranch_scc1 {LT}")
    body = []
    for i in range(4): body += rnd(i, BOTH, BOTH, BOTH, chk=fnlo)
    body += [f"s_sub_u32 s{sCnt}, s{sCnt}, 1", f"s_cmp_lg_u32 s{sCnt}, 0"]
    body, pend2 = autowait_loop(body, pend)
    assert pend2 == pend
    p(".p2align 3"); p.label(LD); p(body); p(f"s_cbranch_scc1 {LD}")
    p.label(LT)
    p(f"""s_sub_u32 s52, s{sBHi}, s{sBLo}
          s_sub_u32 s52, s52, 1
          s_sub_u32 s{sCnt}, s52, 0
          s_lshl2_add_u32 s{sD1}, s52, s{sW}
          s_add_u32 s{sD1}, s{sD1}, 1""")
    seq = check(fnhi)
    seq += rnd(0, HI, BOTH, BOTH, chk=fnhi) + rnd(1, HI, HI, BOTH, chk=fnhi) + rnd(2, HI, HI, HI, chk=fnhi) + rnd(3, HI, HI, HI, chk=fnhi)
    seq, pend3 = autowait(seq, pend)
    p(seq)
    p(f"s_cmp_eq_u32 s{sCnt}, 0\ns_cbranch_scc1 {LE}")
    body = []
    for i in range(4): body += rnd(i, HI, HI, HI, chk=fnhi)
    body += [f"s_sub_u32 s{sCnt}, s{sCnt}, 1", f"s_cmp_lg_u32 s{sCnt}, 0"]
    body, pend4 = autowait_loop(body, pend3)
    assert pend4 == pend3
    p(".p2align 3"); p.label(LS); p(body); p(f"s_cbranch_scc1 {LS}")
    p.label(LE)
    seq = ["s_waitcnt lgkmcnt(0)"] + [rd(8 + d, 0) for d in range(8)]
    seq += [f"ds_read_b128 {F(d)}, v{vDS} offset:{32768 + 8192 + d*1024}" for d in range(8)]
    mf = []
    for db in range(8):
        for qb in HI: mf.append(mfma(O(db, qb), F(8 + db), Pp(0, qb)))
    for qb in HI: mf.append(mfma(Lr(qb), R("v", vONE), Pp(0, qb)))
    gaps = {}
    e = 0
    for qb in HI:
        for kb in range(2):
            s = S(1, kb, qb)
            for r in range(4):
                place(gaps, e - 1 if e else -1, f"v_exp_f32 {s[r]}, {s[r]}"); e += 1
            place(gaps, e, f"v_cvt_pk_bf16_f32 {Pp(1, qb)[2*kb]}, {s[0]}, {s[1]}", f"v_cvt_pk_bf16_f32 {Pp(1, qb)[2*kb+1]}, {s[2]}, {s[3]}")
    seq += weave(mf, gaps)
    seq += ["s_nop 0"]
    for qb in HI: seq.append(mfma(Lr(qb), R("v", vONE), Pp(1, qb)))
    for db in range(8):
        for qb in HI: seq.append(mfma(O(db, qb), F(db), Pp(1, qb)))
    seq, _ = autowait(seq, pend3)
    p(seq)
    stamp(p, 7)
    p(f"""s_lshl_b32 s52, s{sH}, 15
          s_lshl_b32 s53, s{sW}, 11
          s_add_u32 s52, s52, s53
          s_mul_i32 s53, s{sBLo}, {160*8192}
          s_add_u32 s53, s53, s52
          s_mul_i32 s54, s{sBHi}, {160*8192}
          s_add_u32 s54, s54, s52
          s_mov_b32 s55, {f32(LTHR)}""")
    for qb in BOTH: p(f"v_accvgpr_read_b32 v{mx+qb}, {Lr(qb)[0]}")
    p(f"v_max3_f32 v{mc}, v{mx}, v{mx+1}, v{mx+2}\nv_max_f32 v{mc}, v{mc}, v{mx+3}\nv_cmp_le_f32 vcc, s55, v{mc}")
    for qb in BOTH: p(f"v_rcp_f32 v{mx+qb}, v{mx+qb}")
    NOF = p.new("noflag")
    p(f"s_cbranch_vccz {NOF} ;@taken\nv_mov_b32 v6, {FLAG}\nv_mov_b32 v7, 1\nds_write_b32 v6, v7")
    p.label(NOF)
    for qb in BOTH: p(f"v_mul_f32 v{mx+qb}, v{mx+qb}, v{vG+2*qb}")
    k = 0
    for qb in BOTH:
        for t in range(4):
            tmp = R("v", 88 + 8 * (k & 7), 8); k += 1
            for r in range(8): p(f"v_accvgpr_read_b32 {tmp[r]}, {O(2*t + (r >> 2), qb)[r & 3]}")
            for r in range(8): p(f"v_mul_f32 {tmp[r]}, {tmp[r]}, v{mx+qb}")
            for r in range(4): p(f"v_cvt_pk_bf16_f32 {tmp[r]}, {tmp[2*r]}, {tmp[2*r+1]}")
            p(f"s_add_u32 s{sT}, s{53 + (qb>>1)}, {t*8192}")
            p(f"buffer_store_dwordx4 {tmp[0:4]}, v{vL16}, {srd(SD)}, s{sT} offen offset:{(qb&1)*1024} {OPT.get('st','')}")
    DONE, FB = p.new("attdone"), p.new("fallback")
    p(f"""s_waitcnt vmcnt(0) lgkmcnt(0)
          s_barrier
          v_mov_b32 v6, {FLAG}
          ds_read_b32 v7, v6
          s_waitcnt lgkmcnt(0)
          v_readfirstlane_b32 s52, v7 ;@val=0
          s_nop 0
          s_cmp_gt_u32 s52, s{sFB}
          s_cbranch_scc1 {FB} ;@br=fb
          s_branch {DONE}""")
    for st, bk, fn in stubs:
        p.label(st); p(f"s_call_b64 s[{sRet}:{sRet+1}], {fn}\ns_branch {bk}")
    for fn, (q0, q1) in ((fnlo, LO), (fnhi, HI)):
        full = p.new("full")
        p.label(fn)
        p(f"s_nop 2\ns_cmp_eq_u32 s{sD1}, 0\ns_cbranch_scc1 {full}")
        for r in range(4):
            p(f"v_cndmask_b32 {C(0, q0)[r]}, {C(0, q0)[r]}, v{vNI}, s[{sMask+2*r}:{sMask+2*r+1}]")
            p(f"v_cndmask_b32 {C(1, q1)[r]}, {C(1, q1)[r]}, v{vNI}, s[{sMask+2*r}:{sMask+2*r+1}]")
            p(f"v_mov_b32 {C(1, q0)[r]}, v{vNI}")
        p(f"s_nop 1\ns_setpc_b64 s[{sRet}:{sRet+1}]")
        p.label(full)
        for r in range(4):
            for kb, qb in ((0, q0), (1, q1), (0, q1)): p(f"v_mov_b32 {C(kb, qb)[r]}, v{vNI}")
        p(f"s_nop 1\ns_setpc_b64 s[{sRet}:{sRet+1}]")
    p.label(FB)
    sDl, sDh, sU = 80, 81, 82
    for k in range(32): p(f"v_mov_b32 v{184+k}, 0")
    for qb in BOTH: p(f"v_mov_b32 v{mx+qb}, v{vNI}")
    p(f"""s_mov_b32 s{sFB}, 1
          s_lshl2_add_u32 s{sDl}, s{sBLo}, s{sW}
          s_add_u32 s{sDl}, s{sDl}, 1
          s_lshl2_add_u32 s{sDh}, s{sBHi}, s{sW}
          s_add_u32 s{sDh}, s{sDh}, 1
          s_mov_b32 s{sU}, 0""")
    FL = p.new("fbl"); p.label(FL)
    for f in range(8):
        if f == 4: p(f"s_add_u32 s{sT}, s{sU}, 4096")
        p(f"buffer_load_dwordx4 {F(f)}, v{vL16}, {srd(SA)}, s{sU if f < 4 else sT} offen offset:{(f&3)*1024}")
    for sd, fn in ((sDl, fnlo), (sDh, fnhi)):
        sk = p.new("sk")
        p(f"s_mov_b32 s{sD1}, s{sd}\ns_cmp_le_u32 s{sD1}, 1\ns_cbranch_scc0 {sk}\ns_call_b64 s[{sRet}:{sRet+1}], {fn}")
        p.label(sk); p(f"s_sub_u32 s{sd}, s{sd}, 1")
    p("s_waitcnt vmcnt(0)")
    for f in range(8):
        for qb in BOTH: p(mfma(S(0, f >> 2, qb), F(f), Q(qb, f & 3), C(f >> 2, qb) if f & 3 == 0 else None))
    p("s_nop 7")
    for qb in BOTH:
        for kb in range(2):
            a = S(0, kb, qb)
            p(f"v_max3_f32 v{mx+qb}, v{mx+qb}, {a[0]}, {a[1]}\nv_max3_f32 v{mx+qb}, v{mx+qb}, {a[2]}, {a[3]}")
    p(f"s_add_u32 s{sU}, s{sU}, 16384\ns_cmp_lt_u32 s{sU}, s{SA+2}\ns_cbranch_scc1 {FL}")
    p(xmax())
    for qb in BOTH:
        for kb in range(2):
            for r in range(4): p(f"v_sub_f32 {C(kb, qb)[r]}, 0, v{mx+qb}")
    p(f"s_branch {START}")
    p.label(DONE)

def phase5(p):
    vDW, vGW, vL16 = 2, 6, 7
    sR, sCg, sCtx, sWoff, sLW, sT, sCnt, sT2 = 64, 65, 66, 67, 68, 69, 70, 71
    def acc(rb, cb): return R("v", 16 + 16*rb + 4*cb)
    def fc(slot, ks, rb): return R("a", 32*slot + 8*ks + 4*rb)
    def fw(b, cb): return R("a", 128 + 16*b + 4*cb)
    p(f"""s_and_b32 s52, s2, 7
          s_lshr_b32 s53, s2, 3
          s_lshr_b32 s54, s52, 1
          s_and_b32 s55, s53, 3
          s_lshl2_add_u32 s{sR}, s54, s55
          s_and_b32 s54, s52, 1
          s_lshr_b32 s55, s53, 2
          s_lshl3_add_u32 s{sCg}, s54, s55""")
    p(f"s_mul_i32 s52, s{sR}, {160*8192}\ns_add_u32 s52, s52, {WS_CTX}")
    mk_srd(p, SA, sWS, 160*8192, "s52")
    mk_srd(p, SB, sWOB, 2 << 20)
    p(f"""v_lshlrev_b32 v{vL16}, 4, v0
          v_lshrrev_b32 v8, 3, v0
          v_lshrrev_b32 v9, 4, v0
          v_bfe_u32 v10, v0, 1, 2
          v_xor_b32 v10, v10, v9
          v_lshlrev_b32 v10, 5, v10
          v_and_b32 v11, 1, v0
          v_lshl_add_u32 v10, v11, 4, v10
          v_lshl_add_u32 v{vGW}, v8, 11, v10
          s_lshl_b32 s{sCtx}, s{sW}, 11
          s_add_u32 s{sCtx}, s{sCtx}, {128*8192}
          s_lshl_b32 s{sWoff}, s{sW}, 16
          s_lshl_b32 s52, s{sCg}, 7
          s_add_u32 s{sWoff}, s{sWoff}, s52
          s_mov_b32 s72, s{sWoff}
          s_lshl_b32 s73, s{sW}, 11
          s_lshl_b32 s{sLW}, s{sW}, 12
          s_mov_b32 s{sCnt}, 0""")
    def loadsW(slot):
        return [([f"s_add_u32 m0, s{sLW}, {slot*16384 + i*1024}", f"s_add_u32 s{sT}, s{sWoff}, {i*16384}"],
                 f"buffer_load_dwordx4 v{vGW}, {srd(SB)}, s{sT} offen lds") for i in range(4)]
    def loadsC(slot):
        o = []
        for ks in range(4):
            for rb in range(2):
                o.append(([f"s_add_u32 s{sT2}, s{sCtx}, {ks*8192}"] if rb == 0 else [],
                          f"buffer_load_dwordx4 {fc(slot, ks, rb)}, v{vL16}, {srd(SA)}, s{sT2} offen offset:{rb*1024}"))
        return o
    def adv():
        return [f"s_add_u32 s{sCnt}, s{sCnt}, 1", f"s_add_u32 s{sCtx}, s{sCtx}, 32768", f"s_add_u32 s{sWoff}, s{sWoff}, {128*2048}",
                f"s_cmp_eq_u32 s{sCnt}, 8", f"s_cselect_b32 s{sCtx}, s73, s{sCtx}", f"s_cselect_b32 s{sWoff}, s72, s{sWoff}",
                f"s_cselect_b32 s{SB}, s{sWOA}, s{SB}", f"s_cselect_b32 s{SB+1}, s{sWOA+1}, s{SB+1}", f"s_cselect_b32 s{SB+2}, {8<<20}, s{SB+2}",
                f"s_cmp_eq_u32 s{sCnt}, 40", f"s_cselect_b32 s{SA+2}, 0, s{SA+2}"]
    for slot in range(3):
        for sal, d in loadsW(slot) + loadsC(slot): p(sal); p(d)
        p(adv())
    p(f"""v_bfe_u32 v8, v0, 2, 2
          v_lshl_add_u32 v8, v9, 2, v8
          v_and_b32 v10, 3, v0
          v_lshlrev_b32 v10, 3, v10
          v_lshl_add_u32 v10, v8, 7, v10
          v_bfe_u32 v8, v8, 1, 2""")
    for n in range(4): p(f"v_xor_b32 v11, {n}, v8\nv_lshl_add_u32 v{vDW+n}, v11, 5, v10")
    for r in range(16, 48): p(f"v_mov_b32 v{r}, 0")
    def reads(slot, ks):
        return [f"ds_read_b64_tr_b16 {fw(ks & 1, cb)[2*i:2*i+2]}, v{vDW+cb} offset:{slot*16384 + ks*4096 + i*2048}" for cb in range(4) for i in range(2)]
    p("s_waitcnt vmcnt(24)\ns_barrier")
    stamp(p, 9)
    if OPT["stamps"]: p("s_waitcnt vmcnt(0)")
    p(reads(0, 0))
    body = []
    for slot in range(4):
        ld = loadsW((slot + 3) & 3) + loadsC((slot + 3) & 3)
        for ks in range(4):
            mf = [mfma(acc(rb, cb), fw(ks & 1, cb), fc(slot, ks, rb)) for cb in range(4) for rb in range(2)]
            gaps = {}
            if ks == 3:
                place(gaps, -1, "s_waitcnt vmcnt(24) lgkmcnt(0)", "s_barrier")
                rds = reads((slot + 1) & 3, 0)
                a = adv()
                for k, s in enumerate(a): place(gaps, min(7, k * 8 // len(a)), s)
            else:
                rds = reads(slot, ks + 1)
            for k, r in enumerate(rds): place(gaps, k, r)
            if ks < 3:
                for k in range(4):
                    sal, d = ld[ks*4 + k]
                    gaps.setdefault(2*k, [])[0:0] = sal
                    place(gaps, 2*k + 1, d)
            body += weave(mf, gaps)
    body += [f"s_cmp_lt_u32 s{sCnt}, 43"]
    body, _ = autowait_loop(body)
    L = p.new("p5")
    p(".p2align 3"); p.label(L); p(body); p(f"s_cbranch_scc1 {L}")
    stamp(p, 10)
    mk_srd(p, SD, sOUT, 4 << 20)
    p(f"""s_lshl_b32 s52, s{sR}, 18
          s_lshl_b32 s53, s{sW}, 16
          s_add_u32 s52, s52, s53
          s_lshl_b32 s53, s{sCg}, 7
          s_add_u32 s52, s52, s53
          s_add_u32 s53, s52, 32768
          v_and_b32 v8, 15, v0
          v_lshlrev_b32 v8, 11, v8
          v_bfe_u32 v10, v0, 4, 1
          v_lshl_add_u32 v8, v10, 5, v8
          v_lshrrev_b32 v10, 5, v0
          v_lshl_add_u32 v8, v10, 4, v8""")
    for rb in range(2):
        for c2 in range(2):
            a, b = acc(rb, 2*c2), acc(rb, 2*c2+1)
            p(f"""v_cvt_pk_bf16_f32 {a[0]}, {a[0]}, {a[1]}
                  v_cvt_pk_bf16_f32 {a[1]}, {a[2]}, {a[3]}
                  v_cvt_pk_bf16_f32 {a[2]}, {b[0]}, {b[1]}
                  v_cvt_pk_bf16_f32 {a[3]}, {b[2]}, {b[3]}
                  s_nop 1
                  v_permlane16_swap_b32 {a[0]}, {a[2]}
                  v_permlane16_swap_b32 {a[1]}, {a[3]}
                  buffer_store_dwordx4 {a}, v8, {srd(SD)}, s{52+rb} offen offset:{c2*64}""")
    p("s_waitcnt vmcnt(0) lgkmcnt(0)")

def build():
    p = P()
    hdr = open("/code/" + NAME + ".s.ref").read() if not OPT.get("ref") else open(OPT["ref"]).read()
    hl = [l for l in hdr.split("\n") if l.startswith(";") and "@launch" not in l and "Override" not in l and "grid=ceil" not in l]
    p.l += hl
    ks = [("k1_kernel", [lambda p: stamp(p, 0), phase1, lambda p: stamp(p, 3)]),
          ("k2_kernel", [phase2, lambda p: stamp(p, 6), attention, lambda p: stamp(p, 8)]),
          ("k3_kernel", [phase5, lambda p: stamp(p, 11)])]
    for k, _ in ks: p.l.append(f"; @launch kernel={k} grid=(256,1,1) block=(256,1,1) lds={LDS_BYTES}")
    p('.amdgcn_target "amdgcn-amd-amdhsa--gfx950"\n.text')
    for k, f in ks: kernel(p, k, f)
    p('.section .rodata,"a"')
    for k, _ in ks:
        p(".p2align 6"); p.l += kdesc(k).split("\n")
    return p.text()

if __name__ == "__main__":
    out = sys.argv[1]
    for a in sys.argv[2:]:
        k, _, v = a.partition("=")
        OPT[k] = True if v == "" else (int(v) if v.lstrip("-").isdigit() else v)
    open(out, "w").write(build())
```

```python
import re, sys
import numpy as np
M32 = 0xffffffff

def parse_reg(tok):
    tok = tok.strip()
    neg = tok.lstrip("-")
    if neg.startswith("abs(") : neg = neg[4:-1]
    if neg.startswith("|"): neg = neg.strip("|")
    m = re.fullmatch(r"([vas])(\d+)", neg)
    if m: return [(m.group(1), int(m.group(2)))]
    m = re.fullmatch(r"([vas])\[(\d+):(\d+)\]", neg)
    if m: return [(m.group(1), i) for i in range(int(m.group(2)), int(m.group(3)) + 1)]
    if neg == "vcc": return [("s", "vcc")]
    if neg == "exec": return [("s", "exec")]
    if neg == "m0": return [("s", "m0")]
    return None

def split_ops(s):
    out = []; depth = 0; cur = ""
    for ch in s:
        if ch in "[(": depth += 1
        if ch in "])": depth -= 1
        if ch == "," and depth == 0:
            out.append(cur.strip()); cur = ""
        else: cur += ch
    if cur.strip(): out.append(cur.strip())
    return out

TRANS = ("v_exp_f32", "v_log_f32", "v_rcp_f32", "v_rsq_f32", "v_sqrt_f32", "v_sin_f32", "v_cos_f32")

class Ins:
    __slots__ = ("op", "ops", "mods", "text", "ann", "rd", "wr", "kind", "srcc", "ab", "line", "data")
    def __init__(self, text, line):
        self.line = line
        body, _, cm = text.partition(";")
        self.text = body.strip(); self.ann = cm
        p = self.text.split(None, 1)
        self.op = p[0]
        for suf in ("_e32", "_e64"):
            if self.op.endswith(suf): self.op = self.op[:-4]
        rest = p[1] if len(p) > 1 else ""
        ops = split_ops(rest)
        self.mods = []
        if ops and not self.op.startswith("s_waitcnt"):
            last = ops[-1].split()
            ops[-1] = last[0]; self.mods = last[1:]
        self.ops = ops
        self.classify()
    def classify(self):
        op, ops = self.op, self.ops
        R = lambda i: (parse_reg(ops[i]) or []) if i < len(ops) else []
        self.rd, self.wr, self.srcc, self.ab, self.data = [], [], [], [], []
        if op.startswith("v_mfma"):
            self.kind = "mfma"; self.wr = R(0); self.ab = R(1) + R(2); self.srcc = R(3); self.rd = self.ab + self.srcc
        elif op.startswith("ds_read") or op.startswith("ds_bpermute") or op.startswith("ds_swizzle"):
            self.kind = "dsr"; self.wr = R(0); self.rd = R(1) + R(2)
        elif op.startswith("ds_write") or op.startswith("ds_add") or op.startswith("ds_or") or op.startswith("ds_max"):
            self.kind = "dsw"; self.rd = R(0) + R(1) + R(2)
        elif op.startswith("buffer_load"):
            if "lds" in self.mods:
                self.kind = "dma"; self.rd = R(0) + R(1) + R(2) + [("s", "m0")]
            else:
                self.kind = "vld"; self.wr = R(0); self.rd = R(1) + R(2) + R(3)
        elif op.startswith("buffer_store"):
            self.kind = "vst"; self.rd = R(0) + R(1) + R(2) + R(3); self.data = R(0)
        elif op.startswith("buffer_atomic"):
            self.kind = "vst"; self.rd = R(0) + R(1) + R(2) + R(3)
            if "sc0" in self.mods: self.kind = "vld"; self.wr = R(0)
        elif op.startswith("global_load"):
            self.kind = "vld"; self.wr = R(0); self.rd = R(1) + R(2)
        elif op.startswith("global_store"):
            self.kind = "vst"; self.rd = R(0) + R(1) + R(2); self.data = R(1)
        elif op.startswith("global_atomic"):
            self.kind = "vst"; self.rd = R(0) + R(1) + R(2)
        elif op in ("buffer_inv", "buffer_wbl2"):
            self.kind = "vst"
        elif op.startswith("v_"):
            self.kind = "valu"
            if op.startswith("v_permlane") and "swap" in op:
                self.wr = R(0) + R(1); self.rd = R(0) + R(1)
            elif op.startswith("v_nop"): pass
            else:
                self.wr = R(0)
                st = 1
                if op in ("v_add_co_u32", "v_sub_co_u32", "v_addc_co_u32"): self.wr += R(1); st = 2
                for i in range(st, len(ops)): self.rd += R(i)
                if op.startswith("v_fmac") or op.startswith("v_writelane") or op.startswith("v_dot2c"): self.rd += R(0)
                if op.startswith("v_cmpx"): self.wr += [("s", "exec")]
        elif op.startswith("s_load") or op.startswith("s_memtime") or op.startswith("s_memrealtime"):
            self.kind = "smem"; self.wr = R(0); self.rd = R(1)
        elif op.startswith("s_"):
            self.kind = "salu"
            if op.startswith("s_cmp") or op.startswith("s_bitcmp"): self.rd = R(0) + R(1)
            elif op.startswith(("s_cbranch", "s_branch", "s_waitcnt", "s_nop", "s_barrier", "s_endpgm", "s_setprio", "s_sleep")): pass
            elif op.startswith("s_setpc"): self.rd = R(0)
            elif op.startswith("s_call"): self.wr = R(0)
            else:
                self.wr = R(0)
                for i in range(1, len(ops)): self.rd += R(i)
                if "saveexec" in op: self.wr += [("s", "exec")]
        else:
            raise ValueError("unknown op " + self.text)

def load(path):
    ins = []; labels = {}
    insect = True
    for n, l in enumerate(open(path), 1):
        t = l.strip()
        if not t or t.startswith(";") or t.startswith("//"): continue
        if t.startswith(".section"): insect = False
        if t.startswith(".text"): insect = True
        if t.startswith(".") and not re.match(r"^\.?\w+:", t): continue
        if not insect: continue
        m = re.match(r"^([\w.]+):\s*(;.*)?$", t)
        if m: labels[m.group(1)] = len(ins); continue
        ins.append(Ins(t, n))
    return ins, labels

def const(tok):
    try:
        if re.fullmatch(r"-?\d+", tok): return int(tok) & M32
        if re.fullmatch(r"-?0x[0-9a-fA-F]+", tok): return int(tok, 16) & M32
    except ValueError: pass
    return None

def sx(v): return v - (1 << 32) if v & 0x80000000 else v

def run(path, kernel, wg, wave, maxn=2000000, verbose=True, force=None):
    ins, labels = load(path)
    pc = labels[kernel]
    S = {2: wg}; scc = None
    errs = []; seen = set()
    t = 0
    lastw = {}
    mfma_c_rd = {}
    st_data = {}
    lg = []; vm = []
    pend = {}
    cnt = {}; nbar = 0
    V = {0: (np.arange(64) + 64 * wave).astype(np.int64)}
    sts = []; run.sts = sts
    acc = []
    def vval(tok):
        c = const(tok)
        if c is not None: return c
        r = parse_reg(tok)
        if r and len(r) == 1:
            if r[0][0] == "s": return S.get(r[0][1])
            if r[0][0] == "v": return V.get(r[0][1])
        return None
    def imm():
        for m_ in i.mods:
            if m_.startswith("offset:"): return int(m_[7:])
        return 0
    def ldsacc(w, addr, nb):
        gr = set()
        for k in range(0, nb, 4): gr.update(((addr + k) >> 2).tolist())
        if max(gr) * 4 >= 163840: err(i, "LDS address out of range")
        a = dict(w=w, gran=gr, ie=nbar, ip=n, re=None, rp=None, line=i.line, wave=wave)
        acc.append(a); return a
    force = dict(force or {})
    def err(i, msg):
        k = (i.line, msg.split(":")[0])
        if k not in seen:
            seen.add(k); errs.append(f"line {i.line}: {i.text}  <<< {msg}")
    def sval(tok):
        c = const(tok)
        if c is not None: return c
        r = parse_reg(tok)
        if r and len(r) == 1 and r[0][0] == "s": return S.get(r[0][1])
        return None
    n = 0
    while True:
        n += 1
        if n > maxn: errs.append("trace too long"); break
        i = ins[pc]; pc += 1
        op = i.op; cnt[i.kind] = cnt.get(i.kind, 0) + 1
        for r in i.rd + i.wr:
            if r in pend: err(i, f"PENDING: {r} not waited (load line {pend[r].line})")
        def need(r, k, why):
            w = lastw.get(r)
            if w and t - w[0] - 1 < k: err(i, f"{why}: {r} needs {k} has {t - w[0] - 1} (producer line {w[2].line})")
        for r in i.rd:
            w = lastw.get(r)
            if not w: continue
            wk, wi = w[1], w[2]
            if r[0] in "va":
                if wk == "valu":
                    if i.kind == "mfma": need(r, 2, "VALU->MFMA")
                    if op.startswith("v_permlane"): need(r, 2, "VALU->permlane")
                    if op.startswith(("v_readlane", "v_readfirstlane")): need(r, 1, "VALU->readlane")
                    if "dpp" in " ".join(i.mods) or any(m.startswith(("row_", "quad_perm")) for m in i.mods): need(r, 2, "VALU->DPP")
                    if wi.op in TRANS and i.kind == "valu" and op not in TRANS: need(r, 1, "trans->valu")
                if wk == "mfma":
                    big = "32x32" in wi.op
                    if i.kind == "mfma":
                        if r in i.ab: need(r, 12 if big else 8, "MFMA->AB")
                        if r in i.srcc and i.srcc != wi.wr: need(r, 10 if big else 6, "MFMA->C overlap")
                    else: need(r, 12 if big else 8, "MFMA->read")
            else:
                if wk == "valu":
                    if i.kind in ("dma", "vld", "vst"): need(r, 5, "VALU sgpr->VMEM")
                    if i.kind == "valu":
                        need(r, 4 if op.startswith(("v_readlane", "v_writelane")) else 2, "VALU sgpr->VALU")
                    if i.kind == "salu": need(r, 1, "VALU sgpr->SALU(pad)")
                if wk == "salu" and r[1] == "m0" and i.kind == "dma": need(r, 1, "M0->DMA")
        for r in i.wr:
            w = lastw.get(r)
            if w and r[0] in "va" and w[1] == "mfma" and i.kind != "mfma":
                need(r, 12 if "32x32" in w[2].op else 8, "MFMA->WAW")
            if w and r[0] in "va" and w[1] == "mfma" and i.kind == "mfma" and i.srcc != w[2].wr:
                need(r, 6, "MFMA->MFMA WAW(nonchain)")
            if i.kind == "valu" and r in mfma_c_rd and t - mfma_c_rd[r] - 1 < 3: err(i, f"MFMA C WAR: {r}")
            if r in st_data and t - st_data[r] - 1 < 2: err(i, f"store data WAR: {r}")
        if i.kind == "mfma":
            w = lastw.get(("s", "exec"))
            if w and w[1] == "valu" and t - w[0] - 1 < 4: err(i, "EXEC->MFMA")
            for r in i.srcc: mfma_c_rd[r] = t
        if i.kind == "vst" and len(i.data) >= 3:
            for r in i.data: st_data[r] = t
        if i.kind in ("dsr", "dsw"):
            ad = vval(i.ops[1] if i.kind == "dsr" else i.ops[0])
            a_ = None
            if ad is None: err(i, "unknown LDS address")
            else:
                nb = int(re.search(r"_b(\d+)", op).group(1)) // 8
                a_ = ldsacc(i.kind == "dsw", (ad + np.zeros(64, np.int64)) + imm(), nb)
            lg.append((i, i.wr, a_))
            for r in i.wr: pend[r] = i; lastw.pop(r, None)
        elif i.kind == "smem":
            lg.append((i, i.wr, "s"))
            for r in i.wr: pend[r] = i; S.pop(r[1], None); lastw.pop(r, None)
        elif i.kind in ("dma", "vld", "vst"):
            dummy = "@dummy" in i.ann
            a_ = None
            if i.kind == "dma":
                if S.get("m0") is None: err(i, "unknown m0")
                else: a_ = ldsacc(True, S["m0"] + imm() + 16 * np.arange(64), 16)
            if i.kind == "vst":
                m_ = re.search(r"@sig=(\w+)", i.ann)
                a_ = dict(ie=nbar, ip=n, re=None, rp=None, line=i.line, wave=wave, sig=m_.group(1) if m_ else None)
                sts.append(a_)
            vm.append((a_, [] if dummy else i.wr))
            if len(vm) > 63: err(i, "vmcnt overflow (>63 outstanding)")
            if not dummy:
                for r in i.wr: pend[r] = i; lastw.pop(r, None)
        else:
            for r in i.wr: lastw[r] = (t, i.kind, i)
        step = 1
        if op == "s_nop": step = int(i.ops[0], 0) + 1
        elif op == "s_waitcnt":
            txt = i.text
            m = re.search(r"vmcnt\((\d+)\)", txt)
            if m:
                k = int(m.group(1))
                while len(vm) > k:
                    a_, regs = vm.pop(0)
                    if a_: a_["re"], a_["rp"] = nbar, n
                    for r in regs: pend.pop(r, None)
            m = re.search(r"lgkmcnt\((\d+)\)", txt)
            if m:
                k = int(m.group(1))
                if k > 15: err(i, "lgkmcnt > 15")
                if any(isinstance(e[2], str) for e in lg) and k > 0: err(i, "counted lgkmcnt with SMEM outstanding")
                while len(lg) > k:
                    _, regs, a_ = lg.pop(0)
                    if isinstance(a_, dict): a_["re"], a_["rp"] = nbar, n
                    for r in regs: pend.pop(r, None)
        elif op == "s_barrier": nbar += 1
        elif op == "s_endpgm": break
        elif op == "s_branch": pc = labels[i.ops[0]]
        elif op == "s_call_b64":
            S[("ret", i.ops[0])] = pc; pc = labels[i.ops[1]]
        elif op == "s_setpc_b64": pc = S[("ret", i.ops[0])]
        elif op.startswith("s_cbranch"):
            c = None
            if op == "s_cbranch_scc1": c = scc
            elif op == "s_cbranch_scc0": c = None if scc is None else (not scc)
            m = re.search(r"@br=(\w+)", i.ann)
            if m and m.group(1) in force and force[m.group(1)] > 0:
                force[m.group(1)] -= 1; c = True
            if c is None:
                if "@taken" in i.ann: c = True
                elif "@nottaken" in i.ann: c = False
                else: errs.append(f"line {i.line}: unknown branch {i.text}"); break
            if c: pc = labels[i.ops[0]]
        elif op.startswith("s_cmp"):
            a, b = sval(i.ops[0]), sval(i.ops[1])
            if a is None or b is None: scc = None
            else:
                cc, ty = op.split("_")[2], op.split("_")[3]
                if ty == "i32": a, b = sx(a), sx(b)
                scc = {"eq": a == b, "lg": a != b, "lt": a < b, "le": a <= b, "gt": a > b, "ge": a >= b}[cc]
        elif op.startswith("s_bitcmp"):
            a, b = sval(i.ops[0]), sval(i.ops[1])
            scc = None if a is None or b is None else bool(((a >> b) & 1) == int(op[8]))
        elif i.kind == "salu" and i.wr:
            d = i.wr[0][1]
            a = sval(i.ops[1]) if len(i.ops) > 1 else None
            b = sval(i.ops[2]) if len(i.ops) > 2 else None
            v = None; ns = None; setscc = True
            if len(parse_reg(i.ops[0])) == 1:
                if op in ("s_mov_b32", "s_movk_i32"): v = a; setscc = False
                elif op == "s_cselect_b32":
                    setscc = False; v = None if scc is None else (a if scc else b)
                elif op == "s_mul_i32":
                    setscc = False; v = None if None in (a, b) else (a * b) & M32
                elif op == "s_getreg_b32": setscc = False
                elif None not in (a, b):
                    if op == "s_add_u32": v = (a + b) & M32; ns = a + b > M32
                    elif op == "s_sub_u32": v = (a - b) & M32; ns = b > a
                    elif op == "s_add_i32": v = (a + b) & M32
                    elif op == "s_sub_i32": v = (a - b) & M32
                    elif op == "s_lshl_b32": v = (a << (b & 31)) & M32; ns = v != 0
                    elif op == "s_lshr_b32": v = a >> (b & 31); ns = v != 0
                    elif op == "s_and_b32": v = a & b; ns = v != 0
                    elif op == "s_or_b32": v = a | b; ns = v != 0
                    elif op == "s_xor_b32": v = a ^ b; ns = v != 0
                    elif op == "s_min_u32": v = min(a, b); ns = a < b
                    elif op == "s_max_u32": v = max(a, b); ns = a > b
                    elif op == "s_max_i32": v = max(sx(a), sx(b)) & M32
                    elif op == "s_min_i32": v = min(sx(a), sx(b)) & M32
                    elif op.startswith("s_lshl") and op.endswith("_add_u32"): v = ((a << int(op[6])) + b) & M32
                if v is None: S.pop(d, None)
                else: S[d] = v
            else:
                if op in ("s_mov_b64", "s_getpc_b64", "s_cselect_b64"): setscc = False
                for r in i.wr: S.pop(r[1], None)
            if setscc: scc = ns
        elif i.kind == "valu":
            res = None
            if len(i.wr) == 1 and i.wr[0][0] == "v":
                x = [vval(o) for o in i.ops[1:]]
                if all(y is not None for y in x):
                    f = VOPS.get(op)
                    if f: res = (f(*x) + np.zeros(64, np.int64)) & M32
            for r in i.wr:
                if r[0] == "v": V.pop(r[1], None)
            if res is not None: V[i.wr[0][1]] = res
            for r in i.wr:
                if r[0] == "s":
                    S.pop(r[1], None)
                    m = re.search(r"@val=(\w+)", i.ann)
                    if m: S[r[1]] = wave if m.group(1) == "wave" else int(m.group(1), 0)
        if i.kind in ("mfma", "dsr", "vld"):
            for r in i.wr:
                if r[0] == "v": V.pop(r[1], None)
        t += step
    run.acc = acc
    return errs, cnt, nbar

VOPS = {
 "v_mov_b32": lambda a: a, "v_and_b32": lambda a, b: a & b, "v_or_b32": lambda a, b: a | b, "v_xor_b32": lambda a, b: a ^ b,
 "v_lshlrev_b32": lambda a, b: b << a, "v_lshrrev_b32": lambda a, b: b >> a, "v_add_u32": lambda a, b: a + b,
 "v_sub_u32": lambda a, b: a - b, "v_subrev_u32": lambda a, b: b - a, "v_bfe_u32": lambda a, b, c: (a >> b) & ((1 << c) - 1),
 "v_lshl_add_u32": lambda a, b, c: (a << b) + c, "v_mul_u32_u24": lambda a, b: a * b, "v_lshl_or_b32": lambda a, b, c: (a << b) | c,
 "v_add3_u32": lambda a, b, c: a + b + c, "v_and_or_b32": lambda a, b, c: (a & b) | c,
}

def races(accs):
    BIG = 10 ** 9
    idx = {}
    for al in accs:
        for a in al:
            if a["re"] is None: a["re"] = a["rp"] = BIG
            for b in {x >> 8 for x in a["gran"]}: idx.setdefault(b, []).append(a)
    out = set()
    def before(a, b):
        return a["rp"] < b["ip"] if a["wave"] == b["wave"] else a["re"] < b["ie"]
    for blk, al in idx.items():
        ws = [a for a in al if a["w"]]
        for w in ws:
            for a in al:
                if a is w or before(a, w) or before(w, a): continue
                if a["gran"].isdisjoint(w["gran"]): continue
                out.add((w["line"], a["line"], w["wave"] == a["wave"]))
    return out

if __name__ == "__main__":
    path = sys.argv[1]
    txt = open(path).read()
    ks = re.findall(r"^\.amdhsa_kernel\s+(\S+)", txt, re.M)
    bad = 0
    for k in ks:
        for wg in (0, 41, 100, 200, 255):
            bars = []; accs = []
            for wave in range(4):
                errs, cnt, nbar = run(path, k, wg, wave, force={"fb": 1} if wg == 200 else None)
                bars.append(nbar); accs.append(run.acc)
                for k_, sg in enumerate(run.sts):
                    if not sg["sig"]: continue
                    for st_ in run.sts[:k_]:
                        if st_["sig"]: continue
                        ok = st_["re"] is not None and (st_["re"] < sg["ie"] if sg["sig"] == "wg" else st_["rp"] < sg["ip"])
                        if not ok: print("SIGNAL line", sg["line"], "not ordered after store line", st_["line"]); bad += 1
                for e in errs[:20]: print(k, wg, wave, e)
                bad += len(errs)
            rc = races(accs)
            for x in sorted(rc)[:20]: print("LDS RACE write line %d vs line %d samewave=%s" % x)
            bad += len(rc)
            print("wg", wg, cnt, "barriers", bars)
            if len(set(bars)) != 1: print("BARRIER MISMATCH"); bad += 1
        errs, cnt, nbar = run(path, k, 70, 1, force={"fb": 1, "spin": 6})
        for e in errs[:20]: print(k, "forced", e)
        bad += len(errs); print(k, "forced", cnt, nbar)
    print("ERRORS:", bad)
    sys.exit(1 if bad else 0)
```

```python
import re
from check import Ins

class Sched:
    def __init__(self, mf):
        self.mf = list(mf); self.n = len(mf)
        self.chains = {}; self.auto = 0
    def add(self, kind, text, lo, hi=None, chain=None, sep=0, pre=None):
        if chain is None:
            self.auto += 1; chain = ("auto", self.auto)
        it = dict(kind=kind, text=text if isinstance(text, list) else [text], lo=lo, hi=(10**9 if hi is None else hi), sep=sep, pre=pre or [], g=None)
        self.chains.setdefault(chain, []).append(it)
        return it
    def run(self, verbose=None):
        n = self.n
        for c in self.chains.values():
            for k in range(len(c) - 2, -1, -1):
                c[k]["hi"] = min(c[k]["hi"], c[k + 1]["hi"] - c[k + 1]["sep"])
        heads = {c: 0 for c in self.chains}
        last = {c: -10**9 for c in self.chains}
        G = [dict(X=[], S=[], mem=[], val=[], memk=None, nv=0) for _ in range(n + 2)]
        forced = 0
        def fits(st, k):
            if st["X"] and k != "S": return False
            if k == "S": return len(st["S"]) < (1 if (st["mem"] or st["nv"]) else 3)
            if k == "X": return not st["mem"] and not st["nv"]
            if len(st["S"]) > 1: return False
            if k == "M": return not st["mem"] and st["nv"] == 0
            if k in "TD": return not st["mem"] and st["nv"] <= 1 and not st.get("E")
            if k == "E": return not st["mem"] and st["nv"] == 0
            if k == "A":
                if st["memk"] == "M": return False
                return st["nv"] < (1 if st["mem"] else 2)
        def put(st, it, g):
            k = it["kind"]; it["g"] = g
            if k == "X": st["X"] += it["text"]
            elif k == "S": st["S"] += it["text"]
            elif k in "TDM":
                if st["val"] and it.get("after_val"): st["val"] += it["text"]
                else: st["mem"] += it["text"]
                st["memk"] = "M" if k == "M" else (st["memk"] or k)
            else:
                st["val"] += it["text"]; st["nv"] += 2 if k == "E" else 1
                if k == "E": st["E"] = True
        active = [c for c in self.chains]
        for g in range(-1, n + 1):
            st = G[g + 1]
            while True:
                cand = []
                for c in active:
                    h = heads[c]
                    if h >= len(self.chains[c]): continue
                    it = self.chains[c][h]
                    if g < n and (it["lo"] > g or last[c] + it["sep"] > g): continue
                    cand.append((it["hi"], it["lo"], id(it), c, it))
                cand.sort(key=lambda x: x[:2])
                done = False
                for hi, lo, _, c, it in cand:
                    same = last[c] == g
                    ok = g == n or g == -1 or fits(st, it["kind"])
                    if same and it["kind"] in "TDMSX" and g not in (-1, n):
                        prev = self.chains[c][heads[c] - 1]
                        rank = {"X": 1, "S": 0, "T": 2, "D": 2, "M": 2, "A": 3, "E": 3}
                        if rank[prev["kind"]] > rank[it["kind"]]:
                            if hi > g: continue
                            it["kind"] = "A"
                    if ok or hi <= g:
                        if not ok: forced += 1
                        if g in (-1, n): st["val"] += it["pre"] + it["text"]; it["g"] = g; it["pre"] = []
                        else: put(st, it, g)
                        heads[c] += 1; last[c] = g; done = True
                        break
                if not done: break
            active = [c for c in active if heads[c] < len(self.chains[c])]
        for c in self.chains.values():
            prevg = -2
            for it in c:
                if it["pre"]:
                    g = it["g"]; pre = it["pre"]
                    slots = [x for x in range(max(prevg + 1, g - 4, it.get("prelo", -1), 0), g)]
                    good = [x for x in slots if not G[x + 1]["S"] and not G[x + 1]["X"] and G[x + 1]["memk"] != "M" and not (G[x+1]["mem"] and G[x+1]["nv"])]
                    if len(good) >= len(pre): use = good[-len(pre):]
                    elif slots: use = [slots[-1]] * len(pre) if len(slots) < len(pre) else slots[-len(pre):]
                    else: use = None
                    if use is None:
                        st = G[g + 1]; i = st["mem"].index(it["text"][0]); st["mem"][i:i] = pre + ["s_nop 0"]
                    else:
                        for x, s in zip(use, pre):
                            (G[x + 1]["X"] if G[x + 1]["X"] else G[x + 1]["S"]).append(s)
                prevg = it["g"]
        out = []
        for g in range(-1, n + 1):
            if 0 <= g < n: out.append(self.mf[g])
            st = G[g + 1]
            out += st["S"] + st["X"] + st["mem"] + st["val"]
        if verbose: print(f"[sched {verbose}] mfma {n} forced {forced} tail {len(G[n+1]['val'])} head {len(G[0]['val'])}")
        return out

def resolve(seq, lg=None, vm=None, eager=0):
    from check import parse_reg
    lg = [(list(r), a) for r, a in (lg or [])]
    vm = list(vm or [])
    out = []; slot = None; since = 0; vsince = 0; now = 0
    lg = [(r, -a) for r, a in lg]
    for s in seq:
        if s.endswith(":") or s.startswith("."):
            out.append(s); slot = None; since = 0; vsince = 0; continue
        if s.startswith("WAITVM"):
            f = s.split(); tags = f[1].split(",")
            idx = [k for k, e in enumerate(vm) if e[0] in tags]
            w = []
            if idx:
                nn = len(vm) - 1 - idx[-1]; assert nn <= 63
                w.append(f"vmcnt({nn})"); vm = vm[idx[-1] + 1:]
            if len(f) > 2: w.append("lgkmcnt(0)"); lg = []
            if w: out.append("s_waitcnt " + " ".join(w))
            continue
        pseudo = s.startswith("USE ")
        if pseudo: touched = set(parse_reg(s.split()[1])); i = None
        else:
            i = Ins(s, 0); touched = set(i.rd + i.wr)
        need = -1
        for k, (regs, _) in enumerate(lg):
            if touched & set(regs): need = k
        if need >= 0:
            while eager and need + 1 < len(lg) and now - lg[need + 1][1] >= eager: need += 1
            n_after = len(lg) - 1 - need
            if not pseudo and slot is not None and n_after >= since:
                out.insert(slot, f"s_waitcnt lgkmcnt({min(n_after - since, 15)})")
            else:
                out.append(f"s_waitcnt lgkmcnt({min(n_after, 15)})")
            lg = lg[need + 1:]
        need = -1
        for k, e in enumerate(vm):
            if touched & set(e[1]): need = k
        if need >= 0:
            n_after = len(vm) - 1 - need
            if not pseudo and slot is not None and n_after >= vsince:
                out.insert(slot, f"s_waitcnt vmcnt({n_after - vsince})")
            else: out.append(f"s_waitcnt vmcnt({n_after})")
            vm = vm[need + 1:]
        if pseudo: continue
        if i.op == "s_waitcnt":
            m = re.search(r"lgkmcnt\((\d+)\)", s)
            if m:
                k = int(m.group(1)); lg = lg[max(0, len(lg) - k):] if k else []
            m = re.search(r"vmcnt\((\d+)\)", s)
            if m:
                k = int(m.group(1)); vm = vm[max(0, len(vm) - k):] if k else []
        out.append(s)
        if i.kind in ("dsr", "dsw"): lg.append((list(i.wr), now)); since += 1
        if i.kind in ("dma", "vld", "vst"):
            m = re.search(r"@tag=(\w+)", s)
            regs = [] if "@dummy" in s else list(i.wr)
            vm.append((m.group(1) if m else None, regs)); vsince += 1
        if i.kind == "mfma": slot = len(out); since = 0; vsince = 0; now += 1
        if i.op.startswith(("s_cbranch", "s_branch", "s_barrier", "s_call")): slot = None; since = 0; vsince = 0
    return out, [(r, now - t) for r, t in lg], vm
```

```python
import sys, math, struct
from genlib import P, R, mfma
from sched import Sched, resolve

NAME = "gated_mix__compressed_kv_cla__sliding_local_dilated__prompt"
WS_KV, WS_CTX, WS_G, WS_CNT, WS_INBOX, WS_XCH, WS_STAMP = 0, 32 << 20, 56 << 20, 57 << 20, (57 << 20) + 65536, 64 << 20, 96 << 20
LDS_BYTES = 160 * 1024
def f32(x): return "0x%08x" % struct.unpack("<I", struct.pack("<f", x))[0]
QSCALE = 128 ** -0.5 * math.log2(math.e)
BSCALE = 32 ** -0.5 * math.log2(math.e)
LTHR = 2.0 ** 60

sX, sC, sWQ, sWUK, sWUV, sWOA, sWQKV, sWOB, sGATE, sOUT, sDBG, sWS = 4, 6, 8, 10, 12, 14, 18, 20, 22, 24, 26, 28
sW, sH, sJ = 30, 31, 3
SA, SB, SC, SD, SE, SF, SG, SH = 32, 36, 40, 44, 48, 52, 56, 60
sT, sT2, sBHi = 64, 65, 16
t0_, t1_, t2_, t3_ = 66, 67, 68, 69
def srd(b): return f"s[{b}:{b+3}]"
OPT = dict(stamps=False)
ST = "sc1"

vDX, vDQ, vGX, vGW, vL16, vDH, vDB, vDBH, vGH, vGB = 2, 4, 12, 14, 16, 17, 19, 21, 22, 23
vQ, vG, vONE = 24, 4, 12
aONE, aDUM = 251, 252

def L(s): return [x.strip() for x in s.strip().split("\n") if x.strip()]
def mk_srd(b, ptr, nbytes, off=None):
    if off is None: o = [f"s_mov_b32 s{b}, s{ptr}", f"s_mov_b32 s{b+1}, s{ptr+1}"]
    else: o = [f"s_add_u32 s{b}, s{ptr}, {off}", f"s_addc_u32 s{b+1}, s{ptr+1}, 0"]
    return o + [f"s_mov_b32 s{b+2}, {nbytes}", f"s_mov_b32 s{b+3}, 0x20000"]

NST = [0]
def stamp(idx):
    if not OPT["stamps"]: return []
    return L(f"""s_waitcnt lgkmcnt(0)
        s_memtime s[92:93]
        s_memrealtime s[94:95]
        v_accvgpr_write_b32 a253, v1
        v_accvgpr_read_b32 v1, a249
        s_waitcnt lgkmcnt(0)
        v_writelane_b32 v1, s92, {2*idx}
        v_writelane_b32 v1, s94, {2*idx+1}
        v_accvgpr_write_b32 a249, v1
        v_accvgpr_read_b32 v1, a253
        s_nop 1""")
def stamp_flush():
    if not OPT["stamps"]: return []
    return L(f"""s_lshl_b32 s96, s2, 2
        s_add_u32 s96, s96, s{sW}
        s_lshl_b32 s96, s96, 8
        s_add_u32 s96, s96, {WS_STAMP}
        v_lshlrev_b32 v1, 2, v0
        buffer_store_dword a249, v1, {srd(SD)}, s96 offen
        s_waitcnt vmcnt(0)""")

class G:
    def __init__(self):
        self.p = P(); self.lg = []; self.vm = []; self.ool = []
    def emit(self, seq, eager=0):
        out, self.lg, self.vm = resolve(seq, self.lg, self.vm, eager)
        self.p(out)
    def spin(self, vreg, srdb, soff, imm, target):
        st, bk, lp = self.p.new("spin"), self.p.new("spinbk"), self.p.new("spinlp")
        self.ool += L(f"""{st}:
            s_mov_b32 s{t1_}, 0x8000
            {lp}:
            s_sleep 1
            buffer_load_dword v{vreg}, off, {srd(srdb)}, {soff} offset:{imm} sc1
            s_waitcnt vmcnt(0)
            v_readfirstlane_b32 s{t0_}, v{vreg}
            s_sub_u32 s{t1_}, s{t1_}, 1
            s_cbranch_scc1 {bk} ;@nottaken
            s_cmp_lt_u32 s{t0_}, {target}
            s_cbranch_scc1 {lp} ;@nottaken
            s_branch {bk}""")
        return L(f"""v_readfirstlane_b32 s{t0_}, v{vreg}
            s_nop 0
            s_cmp_lt_u32 s{t0_}, {target}
            s_cbranch_scc1 {st}
            {bk}:""")

def signal(srdb, soff, imm):
    return ([f"s_lshl_b32 s{t0_}, s{sW}, 30", f"v_lshl_add_u32 v1, v0, 24, s{t0_}"],
            f"buffer_atomic_add a{aONE}, v1, {srd(srdb)}, {soff} offen offset:{imm} sc1 ;@sig=wg")

def gemm12(g):
    p = g.p
    sCo, sWo, sXlo, sXhi, sXh, sBo, sLX, sLW, sLH, sKV, sPF = 70, 71, 72, 73, 74, 75, 76, 77, 78, 79, 80
    def fx(st, rb): return R("a", 20 * st + 4 * rb)
    def fw(cb): return R("a", 40 + 4 * cb)
    def aq(db, rb): return R("v", (vQ if db % 2 == 0 else 88) + 16 * rb + 4 * (db // 2))
    def bt(part, db, rb): return R("v", 152 + 32 * part + 8 * rb + 4 * db)
    def tile(k):
        cb, rb = k >> 2, k & 3
        if k >= 58: return R("a", 104 + 4 * (k - 58))
        if k >= 56: return R("v", 248 + 4 * (k - 56))
        return aq(cb, rb) if cb < 8 else bt((cb - 8) >> 1, cb & 1, rb)
    def stash(i): return R("a", 128 + 4 * i)
    end = "L_end"
    p(f"s_cmp_ge_u32 s2, 256\ns_cbranch_scc1 {end}")
    p("s_load_dwordx16 s[4:19], s[0:1], 0\ns_load_dwordx8 s[20:27], s[0:1], 64\ns_load_dwordx2 s[28:29], s[0:1], 96")
    p("s_getpc_b64 s[90:91]"); p.label("L_pc")
    p(f"""v_lshrrev_b32 v1, 6, v0
          v_and_b32 v0, 63, v0
          v_readfirstlane_b32 s{sW}, v1 ;@val=wave
          v_lshrrev_b32 v24, 3, v0
          v_lshrrev_b32 v25, 4, v0
          v_and_b32 v26, 7, v0
          v_xor_b32 v26, v26, v25
          v_lshlrev_b32 v26, 4, v26
          v_lshl_add_u32 v{vGX}, v24, 10, v26
          v_xor_b32 v{vGX+1}, 64, v{vGX}
          v_bfe_u32 v26, v0, 1, 3
          v_xor_b32 v26, v26, v25
          v_lshlrev_b32 v26, 5, v26
          v_and_b32 v24, 1, v0
          v_lshl_add_u32 v26, v24, 4, v26
          v_lshl_add_u32 v{vGW}, v25, 13, v26
          v_xor_b32 v{vGW+1}, 128, v{vGW}
          s_and_b32 s{t0_}, s2, 7
          s_lshr_b32 s{t1_}, s2, 3
          s_and_b32 s{t2_}, s{t1_}, 3
          s_lshl2_add_u32 s{sH}, s{t0_}, s{t2_}
          s_lshr_b32 s{sJ}, s{t1_}, 2
          s_lshl2_add_u32 s{sPF}, s{t1_}, s{sW}
          s_lshl_b32 s{sCo}, s{sJ}, 18
          s_lshl_b32 s{t0_}, s{sW}, 16
          s_add_u32 s{sCo}, s{sCo}, s{t0_}
          s_lshl_b32 s{sWo}, s{sW}, 17
          s_lshl_b32 s{t0_}, s{sH}, 8
          s_add_u32 s{sWo}, s{sWo}, s{t0_}
          s_lshl_b32 s{sLX}, s{sW}, 13
          s_lshl_b32 s{sLW}, s{sW}, 12
          s_lshl_b32 s{sLH}, s{sW}, 10
          s_waitcnt lgkmcnt(0)""")
    p(mk_srd(SA, sC, 2 << 20) + mk_srd(SB, sWUK, 4 << 20) + mk_srd(SC, sWUV, 4 << 20))
    def xdma(sg):
        par = sg & 1; d = []
        for i in range(8):
            if sg < 8: so, sr = f"s_add_u32 s{sT}, s{sCo}, {sg*128 + i*8192}", SA
            else: so, sr = f"s_add_u32 s{sT}, s{sXlo if i < 4 else sXhi}, {(sg-8)*128 + ((i>>1)&1)*64*2048 + (i&1)*16384}", SE
            d.append(([f"s_add_u32 m0, s{sLX}, {par*32768 + i*1024}", so], f"buffer_load_dwordx4 v{vGX + (i&1)}, {srd(sr)}, s{sT} offen lds ;@tag=x{sg}"))
        return d
    def wdma(sg):
        par = sg & 1; d = []; B = 65536 + par * 32768
        for kv in range(2 if sg < 8 else 1):
            for i in range(4):
                st = sg if sg < 8 else sg - 8
                d.append(([f"s_add_u32 m0, s{sLW}, {B + kv*16384 + i*1024}", f"s_add_u32 s{sT}, s{sWo}, {st*64*8192 + i*32768}"],
                          f"buffer_load_dwordx4 v{vGW + (i>>1)}, {srd((SB, SC)[kv] if sg < 8 else SG)}, s{sT} offen lds ;@tag=w{sg}"))
        if sg >= 8:
            for pp in range(3):
                d.append(([f"s_add_u32 m0, s{sLH}, {B + 16384 + pp*4096}", f"s_add_u32 s{sT}, s{sBo}, {(sg-8)*64*6144 + pp*2048}"],
                          f"buffer_load_dwordx4 v{vGB}, {srd(SH)}, s{sT} offen lds ;@tag=w{sg}"))
            d.append(([f"s_add_u32 m0, s{sLH}, {B + 28672}", f"s_add_u32 s{sT}, s{sXh}, {(sg-8)*128}"],
                      f"buffer_load_dwordx4 v{vGH}, {srd(SE)}, s{sT} offen lds ;@tag=w{sg}"))
        return d
    seq = stamp(0) if False else []
    for sal, d in xdma(0) + wdma(0): seq += sal + [d]
    seq += L(f"""v_lshlrev_b32 v27, 7, v0
          s_and_b32 s{t0_}, s{sPF}, 15
          s_min_u32 s{t0_}, s{t0_}, NCHUNK
          s_lshl_b32 s{t0_}, s{t0_}, 13
          v_add_u32 v28, s{t0_}, v27
          global_load_dword a{aDUM}, v28, s[90:91] ;@dummy""")
    for sal, d in xdma(1) + wdma(1): seq += sal + [d]
    seq += mk_srd(SD, sWS, 128 << 20) + mk_srd(SE, sX, 4 << 20) + mk_srd(SF, sDBG, 256) + mk_srd(SG, sWQ, 8 << 20) + mk_srd(SH, sWQKV, 6 << 20)
    seq += L(f"""s_lshl_b32 s{t0_}, s{sPF}, 14
          buffer_load_dword a{aDUM}, v27, {srd(SA)}, s{t0_} offen ;@dummy
          s_add_u32 s{t0_}, s{t0_}, 8192
          buffer_load_dword a{aDUM}, v27, {srd(SA)}, s{t0_} offen ;@dummy
          v_and_b32 v28, 7, v0
          v_lshlrev_b32 v28, 7, v28
          v_lshrrev_b32 v29, 3, v0
          v_lshl_add_u32 v28, v29, 13, v28
          s_and_b32 s{t0_}, s{sPF}, 63
          s_lshl_b32 s{t0_}, s{t0_}, 16
          s_and_b32 s{t1_}, s2, 7
          s_lshl_b32 s{t1_}, s{t1_}, 10
          s_add_u32 s{t0_}, s{t0_}, s{t1_}
          s_cmp_lt_u32 s{sPF}, 64
          s_cselect_b32 s{t2_}, s{t0_}, 0x7000000
          s_cselect_b32 s{t3_}, 0x7000000, s{t0_}
          buffer_load_dword a{aDUM}, v28, {srd(SB)}, s{t2_} offen ;@dummy
          buffer_load_dword a{aDUM}, v28, {srd(SC)}, s{t3_} offen ;@dummy""")
    seq += L(f"""s_lshl_b32 s{t0_}, s2, 3
          s_lshl1_add_u32 s{t0_}, s{sW}, s{t0_}
          v_lshrrev_b32 v29, 5, v0
          v_add_u32 v29, s{t0_}, v29
          v_and_b32 v30, 31, v0
          v_lshlrev_b32 v30, 4, v30
          v_lshl_add_u32 v29, v29, 11, v30""")
    for i in range(4): seq.append(f"global_load_dwordx4 a[{128+4*i}:{131+4*i}], v29, s[{sX}:{sX+1}] offset:{512*i}")
    for i in range(4): seq.append(f"global_load_dwordx4 a[{144+4*i}:{147+4*i}], v30, s[{sGATE}:{sGATE+1}] offset:{512*i}")
    seq += L(f"""v_mov_b32 v30, 0
          s_lshl_b32 s{t0_}, s2, 8
          s_lshl_b32 s{t1_}, s{sW}, 6
          s_add_u32 s{t0_}, s{t0_}, s{t1_}
          s_add_u32 s{t0_}, s{t0_}, {WS_INBOX}
          v_cmp_eq_u32 vcc, 0, v0
          v_mov_b32 v29, 0x70000000
          s_and_b32 s{t1_}, s2, 15
          v_cndmask_b32 v29, v29, v30, vcc
          s_lshl_b32 s{t1_}, s{t1_}, 8
          s_add_u32 s{t1_}, s{t1_}, {WS_CNT}
          buffer_store_dword v30, v29, {srd(SD)}, s{t0_} offen {ST}
          buffer_store_dword v30, v29, {srd(SD)}, s{t1_} offen {ST}
          v_accvgpr_write_b32 a{aONE}, 1""")
    if OPT["stamps"]: seq += ["v_accvgpr_write_b32 a249, 0"] + stamp(0)
    seq += L(f"""v_and_b32 v24, 15, v0
          v_lshrrev_b32 v26, 1, v24
          v_xor_b32 v26, v26, v25
          v_lshlrev_b32 v26, 4, v26
          v_lshl_add_u32 v26, v24, 7, v26
          v_add_u32 v{vDX}, s{sLX}, v26
          v_xor_b32 v{vDX+1}, 64, v{vDX}
          v_bfe_u32 v24, v0, 2, 2
          v_lshl_add_u32 v27, v25, 3, v24
          v_and_b32 v1, 3, v0
          v_lshlrev_b32 v1, 3, v1
          v_lshl_add_u32 v26, v27, 8, v1
          v_add_u32 v26, 65536, v26
          v_and_b32 v1, 1, v25
          v_lshl_add_u32 v24, v1, 2, v24
          v_lshlrev_b32 v{vL16}, 4, v0""")
    for n in range(8): seq += [f"v_xor_b32 v1, {n}, v24", f"v_lshl_add_u32 v{vDQ+n}, v1, 5, v26"]
    seq += L(f"""s_sub_u32 s{sBHi}, 15, s{sJ}
          s_lshl_b32 s{sXlo}, s{sJ}, 18
          s_lshl_b32 s{sXhi}, s{sBHi}, 18
          s_cmp_lt_u32 s{sW}, 2
          s_cselect_b32 s{sXh}, s{sXlo}, s{sXhi}
          s_max_u32 s{sXh}, s{sXh}, 32768
          s_sub_u32 s{sXh}, s{sXh}, 32768
          s_and_b32 s{t0_}, s{sW}, 1
          s_lshl_b32 s{t0_}, s{t0_}, 14
          s_add_u32 s{sXh}, s{sXh}, s{t0_}
          s_lshl_b32 s{t0_}, s{sW}, 15
          s_add_u32 s{sXlo}, s{sXlo}, s{t0_}
          s_add_u32 s{sXhi}, s{sXhi}, s{t0_}
          s_mul_i32 s{sBo}, s{sW}, {16*6144}
          s_lshl_b32 s{t0_}, s{sH}, 6
          s_add_u32 s{sBo}, s{sBo}, s{t0_}
          s_lshl_b32 s{sKV}, s{sH}, 20
          s_lshl_b32 s{t0_}, s{sJ}, 17
          s_add_u32 s{sKV}, s{sKV}, s{t0_}
          s_lshl_b32 s{t0_}, s{sW}, 15
          s_add_u32 s{sKV}, s{sKV}, s{t0_}""")
    def xread(sg, s): return [f"ds_read_b128 {fx(s, rb)}, v{vDX+s} offset:{(sg&1)*32768 + rb*2048}" for rb in range(4)]
    def hread(sg, s): return f"ds_read_b128 {fx(s, 4)}, v{vDH+s} offset:{(sg&1)*32768}"
    def wread(sg, s, cb):
        par = sg & 1; o = []
        for i in range(2):
            if sg < 8 or cb < 8: a, off = vDQ + (cb & 7), par*32768 + (cb >> 3)*16384 + s*8192 + i*1024
            elif cb < 14: a, off = vDB + (cb & 1), par*32768 + ((cb-8) >> 1)*4096 + s*2048 + i*256
            else: a, off = vDBH, par*32768 + (cb-13)*4096 + s*2048 + i*256
            o.append(f"ds_read_b64_tr_b16 {fw(cb)[2*i:2*i+2]}, v{a} offset:{off}")
        return o
    seq += ["WAITVM w0", "s_barrier"] + stamp(1) + xread(0, 0)
    for cb in range(16): seq += wread(0, 0, cb)
    g.emit(seq)
    def nsub(sg): return 64 if sg < 8 else 58
    def first(sg, cb): return 4*cb if (sg < 8 or cb < 14) else 56 + (cb - 14)
    def last(sg, cb): return 4*cb + 3 if (sg < 8 or cb < 14) else 56 + (cb - 14)
    mf = []; G0 = []
    for sg in range(24):
        G0.append(len(mf))
        for s in range(2):
            c0 = 0 if (s == 0 and sg in (0, 8)) else None
            for k in range(nsub(sg)):
                cb, rb = (k >> 2, k & 3) if k < 56 or sg < 8 else (k - 42, 4)
                swap = clean = (cb >= 8) if sg < 8 else (cb in (12, 13, 15))
                mf.append(mfma(tile(k), fx(s, rb), fw(cb), c0) if swap else mfma(tile(k), fw(cb), fx(s, rb), c0))
    G0.append(len(mf))
    S = Sched(mf); BO = 8
    def pace(items, lo, hi, chain, slack=6):
        n = len(items)
        for q, (sal, d) in enumerate(items):
            x = lo + int(q * (hi - lo) / n)
            it = S.add("M", d, x, x + slack, chain=chain, sep=3, pre=sal)
            if q == 0: it["prelo"] = lo - 2
    BAR = {}
    for sg in range(24):
        g0, n = G0[sg], nsub(sg); B = g0 + n + BO; BAR[sg] = B; nx = G0[sg + 1]
        for q, r in enumerate(xread(sg, 1)): S.add("D", r, g0, g0 + 5 + q, chain=("x", sg))
        if sg >= 8: S.add("D", hread(sg, 1), g0, g0 + n - 6)
        for cb in range(16):
            lo = g0 + last(sg, cb)
            for r in wread(sg, 1, cb): S.add("T", r, lo, min(lo + 14, B - 5), chain=("w", sg, cb))
        blk = [f"WAITVM w{sg+1} L", "s_barrier"]
        if sg == 7: blk += stamp(2)
        S.add("X", blk, B, B)
        if sg < 23:
            for cb in range(16):
                lo = max(B + 1, g0 + n + last(sg, cb))
                for r in wread(sg + 1, 0, cb): S.add("T", r, lo, min(lo + 24, nx + first(sg + 1, cb) - 8), chain=("w", sg, cb))
            for r in xread(sg + 1, 0): S.add("D", r, B + 1, nx - 10)
            if sg + 1 >= 8: S.add("D", hread(sg + 1, 0), B + 1, nx + 20)
        if sg + 2 < 24:
            S.add("S", f"USE {fx(1, 3)}", g0 + 13, g0 + 13, chain="dma")
            pace(xdma(sg + 2), g0 + 15, B - 2, "dma")
            pace(wdma(sg + 2), B + 3, nx + 8, "dma", slack=4)
    a0, a1, a2, a3, acc = 18, 19, 20, 21, 17
    ch = [f"v_mov_b32 v{acc}, 0"]
    for i in range(16):
        ch += L(f"""v_accvgpr_read_b32 v{a1}, a{128+i}
            v_accvgpr_read_b32 v{a3}, a{144+i}
            v_lshlrev_b32 v{a0}, 16, v{a1}
            v_and_b32 v{a1}, 0xffff0000, v{a1}
            v_lshlrev_b32 v{a2}, 16, v{a3}
            v_and_b32 v{a3}, 0xffff0000, v{a3}
            v_mul_f32 v{a0}, v{a0}, v{a2}
            v_mul_f32 v{a1}, v{a1}, v{a3}
            v_cvt_pk_bf16_f32 v{a0}, v{a0}, v{a1}
            v_lshlrev_b32 v{a1}, 16, v{a0}
            v_and_b32 v{a0}, 0xffff0000, v{a0}
            v_add_f32 v{acc}, v{acc}, v{a1}
            v_add_f32 v{acc}, v{acc}, v{a0}""")
    lo = BAR[1] + 2
    for c in ch: S.add("A", c, lo, chain="gate")
    for r in (8, 4, 2, 1): S.add("A", f"v_add_f32_dpp v{acc}, v{acc}, v{acc} row_ror:{r} row_mask:0xf bank_mask:0xf", lo, chain="gate", sep=2)
    S.add("A", f"v_mov_b32 v{a0}, v{acc}", lo, chain="gate")
    S.add("A", f"v_permlane16_swap_b32 v{a0}, v{acc}", lo, chain="gate", sep=2)
    for c in L(f"""v_add_f32 v{acc}, v{acc}, v{a0}
            v_cvt_pk_bf16_f32 v{acc}, v{acc}, v{acc}
            v_and_b32 v{acc}, 0xffff0000, v{acc}
            v_mul_f32 v{acc}, 0xbfb8aa3b, v{acc}
            v_exp_f32 v{acc}, v{acc}
            v_add_f32 v{acc}, 1.0, v{acc}
            v_rcp_f32 v{acc}, v{acc}
            v_cvt_pk_bf16_f32 v{a0}, v{acc}, v{acc}
            v_and_b32 v{a0}, 0xffff0000, v{a0}
            v_sub_f32 v{a1}, 1.0, v{a0}
            v_cvt_pk_bf16_f32 v{a1}, v{a1}, v{a1}
            v_and_b32 v{a1}, 0xffff0000, v{a1}
            v_and_b32 v{a2}, 31, v0
            v_lshlrev_b32 v{a2}, 27, v{a2}
            v_lshrrev_b32 v{a3}, 2, v0
            v_add_u32 v{a2}, v{a2}, v{a3}"""):
        S.add("E" if c.startswith(("v_exp", "v_rcp")) else "A", c, lo, chain="gate", sep=1)
    S.add("M", f"buffer_store_dwordx2 v[{a0}:{a1}], v{a2}, {srd(SD)}, s{sT2} offen {ST}", lo, G0[5] - 10, chain="gate", sep=4,
          pre=[f"s_lshl2_add_u32 s{sT2}, s2, s{sW}", f"s_lshl4_add_u32 s{sT2}, s{sT2}, {WS_G}"])
    lo = G0[5]
    ch = L(f"""v_bfe_u32 v{vGB}, v0, 1, 1
          v_lshrrev_b32 v1, 5, v0
          v_xor_b32 v{vGB}, v{vGB}, v1
          v_lshlrev_b32 v{vGB}, 5, v{vGB}
          v_and_b32 v1, 1, v0
          v_lshl_add_u32 v{vGB}, v1, 4, v{vGB}
          v_lshrrev_b32 v1, 2, v0
          v_mul_u32_u24 v1, 6144, v1
          v_add_u32 v{vGB}, v1, v{vGB}
          s_lshr_b32 s{t0_}, s{sW}, 1
          s_lshl_b32 s{t0_}, s{t0_}, 11
          s_add_u32 s{t0_}, s{t0_}, {65536 + 28672}
          s_sub_u32 s{t0_}, s{t0_}, s{sLX}
          v_add_u32 v{vDH}, s{t0_}, v{vDX}
          v_xor_b32 v{vDH+1}, 64, v{vDH}
          v_lshrrev_b32 v1, 4, v0
          v_bfe_u32 v{vDB}, v0, 2, 2
          v_lshl_add_u32 v{vDB}, v1, 3, v{vDB}
          v_lshlrev_b32 v{vDB}, 6, v{vDB}
          v_and_b32 v1, 1, v1
          v_lshl_add_u32 v{vDB}, v1, 5, v{vDB}
          v_and_b32 v1, 3, v0
          v_lshl_add_u32 v{vDB}, v1, 3, v{vDB}
          v_add_u32 v{vDB}, {65536 + 16384}, v{vDB}
          v_xor_b32 v{vDB+1}, 32, v{vDB}
          s_and_b32 s{t0_}, s{sW}, 1
          s_lshl_b32 s{t1_}, s{t0_}, 5
          v_xor_b32 v{vDBH}, s{t1_}, v{vDB}
          s_lshl_b32 s{t1_}, s{t0_}, 6
          v_lshrrev_b32 v1, 3, v0""")
    for c in ch: S.add("S" if c.startswith("s_") else "A", c, lo, chain="gate", sep=1)
    for c in L(f"""v_lshl_add_u32 v{vGX}, v1, 10, v{vGX}
          v_xor_b32 v{vGX+1}, 64, v{vGX}
          v_xor_b32 v{vGH}, s{t1_}, v{vGX}"""):
        S.add("A", c, BAR[5] + 6, G0[6] + 6, chain="gate")
    pf = []
    pf.append((G0[0] + 2, L(f"""v_lshlrev_b32 v22, 7, v0
          s_lshl2_add_u32 s{t0_}, s2, s{sW}
          s_lshl_b32 s{t0_}, s{t0_}, 13"""), f"buffer_load_dword a{aDUM}, v22, {srd(SE)}, s{t0_} offen ;@dummy"))
    pf.append((G0[1] + 2, L(f"""v_and_b32 v22, 7, v0
          v_lshlrev_b32 v22, 7, v22
          v_lshrrev_b32 v23, 3, v0
          v_lshl_add_u32 v22, v23, 13, v22
          s_lshl_b32 s{t0_}, s{sPF}, 16
          s_and_b32 s{t1_}, s2, 7
          s_lshl_b32 s{t1_}, s{t1_}, 10
          s_add_u32 s{t0_}, s{t0_}, s{t1_}"""), f"buffer_load_dword a{aDUM}, v22, {srd(SG)}, s{t0_} offen ;@dummy"))
    pf.append((G0[2] + 2, L(f"""v_and_b32 v22, 1, v0
          v_lshlrev_b32 v22, 7, v22
          v_lshrrev_b32 v23, 1, v0
          v_lshl_add_u32 v22, v23, 11, v22
          s_lshl_b32 s{t0_}, s{sPF}, 16
          s_and_b32 s{t1_}, s2, 7
          s_lshl_b32 s{t1_}, s{t1_}, 8
          s_add_u32 s{t0_}, s{t0_}, s{t1_}"""), f"buffer_load_dword a{aDUM}, v22, {srd(SH)}, s{t0_} offen ;@dummy"))
    if not OPT.get("nopf"):
        for lo, pre, d in pf:
            for c in pre: S.add("S" if c.startswith("s_") else "A", c, lo, chain="pf", sep=1)
            S.add("M", d, lo, lo + 40, chain="pf", sep=1)
    e0 = G0[7] + 64; n0 = G0[8]
    frs = []
    for t in range(4):
        for rb in range(4): frs.append((8*t + rb, 8*t + 4 + rb, (rb >> 1)*16384 + (rb & 1)*4096 + t*1024))
    for db in range(8):
        for u in range(2): frs.append((32 + 4*db + 2*u, 33 + 4*db + 2*u, u*16384 + 8192 + db*1024))
    NDIRECT = 8; ns = 0; later = []
    tmpA, tmpB = tile(54), tile(56)
    for q, (ka, kb, off) in enumerate(frs):
        A, B_ = tile(ka), tile(kb); lo = e0 + kb + 8; hi = n0 + ka - 1; hi2 = n0 + kb - 3
        ch = ("drain",)
        if A.f == "a":
            hi = hi2 = n0 + 52
            for r in range(4): S.add("A", f"v_accvgpr_read_b32 {tmpA[r]}, {A[r]}", lo, hi, chain=ch)
            for r in range(4): S.add("A", f"v_accvgpr_read_b32 {tmpB[r]}, {B_[r]}", lo, hi, chain=ch)
            A, B_ = tmpA, tmpB
        for c in (f"v_cvt_pk_bf16_f32 {B_[3]}, {B_[2]}, {B_[3]}", f"v_cvt_pk_bf16_f32 {B_[2]}, {B_[0]}, {B_[1]}",
                  f"v_cvt_pk_bf16_f32 {B_[0]}, {A[0]}, {A[1]}", f"v_cvt_pk_bf16_f32 {B_[1]}, {A[2]}, {A[3]}"):
            S.add("A", c, lo, hi, chain=ch)
        if q % 4 == 0:
            S.add("M", f"buffer_store_dwordx4 {B_}, v{vL16}, {srd(SD)}, s{sT2} offen {ST} ;@tag=kv", lo, hi2, chain=ch, sep=1)
            S.chains[ch].insert(len(S.chains[ch]) - 5, dict(kind="S", text=[f"s_add_u32 s{sT2}, s{sKV}, {off}"], lo=lo - 2, hi=hi, sep=0, pre=[], g=None))
        else:
            for r in range(4): S.add("A", f"v_accvgpr_write_b32 {stash(ns)[r]}, {B_[r]}", lo, hi2, chain=ch)
            later.append((ns, off)); ns += 1
    assert ns == 24
    for q, (i, off) in enumerate(later):
        sg = 9 + q // 3
        lo = G0[sg] + 4 + (q % 3) * 20
        S.add("M", f"buffer_store_dwordx4 {stash(i)}, v{vL16}, {srd(SD)}, s{sT2} offen {ST} ;@tag=kv", lo, lo + 12, chain="kvst", sep=3,
              pre=[f"s_add_u32 s{sT2}, s{sKV}, {off}"])
    pre, d = signal(SF, 0, 0)
    S.add("S", pre[0], BAR[17] + 1, chain="sig"); S.add("A", pre[1], BAR[17] + 1, chain="sig", sep=1)
    S.add("M", d, BAR[17] + 1, BAR[17] + 12, chain="sig", sep=1)
    S.add("M", f"buffer_load_dword v1, off, {srd(SF)}, 0 sc1", BAR[21] - 12, BAR[21] - 2, chain="sig")
    S.add("X", g.spin(1, SF, 0, 0, 256), BAR[22] + 1, BAR[22] + 1, chain="sig")
    for c in L(f"""s_lshl_b32 s{t2_}, s{sH}, 20
          s_add_u32 s{SA}, s{sWS}, s{t2_}
          s_addc_u32 s{SA+1}, s{sWS+1}, 0"""): pass
    S.add("X", L(f"""s_lshl_b32 s{t2_}, s{sH}, 20
          s_add_u32 s{SA}, s{sWS}, s{t2_}
          s_addc_u32 s{SA+1}, s{sWS+1}, 0"""), G0[22], G0[22] + 30, chain="sa")
    S.add("X", L(f"""s_add_u32 s{t2_}, s{sBHi}, 1
          s_lshl_b32 s{SA+2}, s{t2_}, 16"""), G0[22], G0[22] + 40, chain="sa")
    pace(att_first_dmas(sLX), BAR[22] + 5, BAR[22] + 5 + 12 * 6, "dma")
    lo = BAR[23] + 1
    for c in L(f"""v_and_b32 v12, 15, v0
          v_lshlrev_b32 v12, 3, v12
          s_lshl_b32 s{t0_}, s{sW}, 7
          s_add_u32 s{t0_}, s{t0_}, {WS_G}
          s_lshl_b32 s{t1_}, s{sJ}, 10
          s_add_u32 s{t1_}, s{t1_}, s{t0_}
          s_lshl_b32 s{t2_}, s{sBHi}, 10
          s_add_u32 s{t2_}, s{t2_}, s{t0_}"""): S.add("S" if c.startswith("s_") else "A", c, lo, chain="g", sep=1)
    for rb in range(4):
        S.add("M", f"buffer_load_dwordx2 v[{vG+2*rb}:{vG+2*rb+1}], v12, {srd(SD)}, s{t1_ + (rb>>1)} offen offset:{(rb&1)*512} sc1", lo, chain="g", sep=1)
    g.emit(S.run("gemm12"), eager=10)
    g.emit(stamp(5))
    local_attention(g, aq, bt)

def att_first_dmas(sLX):
    d = []
    for k in range(8):
        sal = []
        if k == 0: sal = [f"s_mov_b32 m0, s{sLX}", f"s_lshl_b32 s{sT}, s{sW}, 14"]
        if k == 4: sal = [f"s_add_u32 m0, s{sLX}, 4096", f"s_add_u32 s{sT}, s{sT}, 4096"]
        d.append((sal, f"buffer_load_dwordx4 v{vL16}, {srd(SA)}, s{sT} offen offset:{(k&3)*1024} sc1 lds ;@tag=k0"))
    for k in range(4):
        sal = []
        if k == 0: sal = [f"s_lshr_b32 s{sT}, s{sLX}, 1", f"s_add_u32 m0, s{sT}, {65536 + 16384}", f"s_and_b32 s{t3_}, s{sT}, 8192",
                          f"s_add_u32 s{sT}, s{sT}, s{t3_}", f"s_add_u32 s{sT}, s{sT}, 8192"]
        d.append((sal, f"buffer_load_dwordx4 v{vL16}, {srd(SA)}, s{sT} offen offset:{k*1024} sc1 lds ;@tag=v0"))
    return d

def local_attention(g, aq, bt):
    q = []
    def e(s): q.extend(L(s))
    hk, hv = R("v", 248), R("v", 252)
    def pk(d, a, b): e(f"v_cvt_pk_bf16_f32 {d}, {a}, {b}")
    e(f"s_mov_b32 s{t0_}, {f32(QSCALE)}\ns_mov_b32 s{t1_}, s{t0_}")
    for rb in range(4):
        for t in range(4):
            a, b = aq(2*t, rb), aq(2*t+1, rb)
            for r in (a, b): e(f"v_pk_mul_f32 {r[0:2]}, {r[0:2]}, s[{t0_}:{t1_}]\nv_pk_mul_f32 {r[2:4]}, {r[2:4]}, s[{t0_}:{t1_}]")
            pk(a[0], a[0], a[1]); pk(a[1], a[2], a[3]); pk(a[2], b[0], b[1]); pk(a[3], b[2], b[3])
    def VB(rb, db): return R("v", 88 + 8*rb + 4*db)
    def kprev(rb): return R("v", 120 + 4*rb)
    e(f"""s_lshl_b32 s{t0_}, s{sW}, 11
          s_add_u32 s{t0_}, s{t0_}, 32768
          v_add_u32 v17, s{t0_}, v{vL16}
          v_add_u32 v18, 0x10000, v17
          s_lshr_b32 s{t0_}, s{sW}, 1
          s_lshl_b32 s{t0_}, s{t0_}, 16
          s_and_b32 s{t1_}, s{sW}, 1
          s_lshl3_add_u32 s{t0_}, s{t1_}, s{t0_}
          s_add_u32 s{t0_}, s{t0_}, 32768
          v_add_u32 v19, s{t0_}, v{vL16}""")
    for rb in range(4):
        a, b = bt(1, 0, rb), bt(1, 1, rb)
        pk(a[0], a[0], a[1]); pk(a[1], a[2], a[3]); pk(a[2], b[0], b[1]); pk(a[3], b[2], b[3])
        e(f"ds_write_b128 v{17 + (rb>>1)}, {a} offset:{(rb&1)*8192 + 2048}")
        for db in range(2):
            a = bt(2, db, rb); d = VB(rb, db)
            pk(d[2], a[0], a[1]); pk(d[3], a[2], a[3])
            e(f"ds_write_b64 v{17 + (rb>>1)}, {d[2:4]} offset:{(rb&1)*8192 + 2048 + 1024 + db*8}")
    pk(hk[0], hk[0], hk[1]); pk(hk[1], hk[2], hk[3]); pk(hv[0], hv[0], hv[1]); pk(hv[1], hv[2], hv[3])
    e(f"ds_write_b64 v19, {hk[0:2]}\nds_write_b64 v19, {hv[0:2]} offset:1024")
    for rb in range(4):
        a, b = bt(0, 0, rb), bt(0, 1, rb)
        pk(a[0], a[0], a[1]); pk(a[1], a[2], a[3]); pk(a[2], b[0], b[1]); pk(a[3], b[2], b[3])
    mP, mO, mP0 = R("v", 136), R("v", 140), R("v", 144)
    e(f"""v_and_b32 v20, 15, v0
          v_lshrrev_b32 v21, 4, v0
          v_lshlrev_b32 v21, 2, v21
          v_sub_u32 v20, v20, v21
          v_mov_b32 v21, 0xff800000
          s_or_b32 s{t0_}, s{sJ}, s{sW}
          s_cmp_eq_u32 s{t0_}, 0
          s_cselect_b32 s{t0_}, 0xff800000, 0""")
    for r in range(4):
        e(f"""v_subrev_u32 v22, {r}, v20
              v_and_b32 v23, 0x80000001, v22
              v_cmp_eq_u32 vcc, 0, v23
              v_xor_b32 v22, 0x80000000, v23
              v_cmp_eq_u32 s[{t2_}:{t3_}], 0, v22
              v_cndmask_b32 {mO[r]}, v21, v23, vcc
              s_nop 0
              v_cndmask_b32 {mP[r]}, v21, v22, s[{t2_}:{t3_}]
              v_or_b32 {mP0[r]}, s{t0_}, {mP[r]}""")
    e(f"""v_and_b32 v22, 3, v0
          v_cmp_eq_u32 vcc, 0, v22
          v_mov_b32 v23, 0x3f803f80
          v_mov_b32 v22, 0
          v_cndmask_b32 v{vONE}, v22, v23, vcc
          v_mov_b32 v{vONE+1}, v{vONE}
          v_mov_b32 v{vONE+2}, v{vONE}
          v_mov_b32 v{vONE+3}, v{vONE}
          s_waitcnt lgkmcnt(0)
          s_barrier""")
    for rb in range(4): e(f"ds_read_b128 {kprev(rb)}, v{17 + (rb>>1)} offset:{(rb&1)*8192}")
    for rb in range(4):
        for db in range(2): e(f"ds_read_b64 {VB(rb, db)[0:2]}, v{17 + (rb>>1)} offset:{(rb&1)*8192 + 1024 + db*8}")
    def Sp(rb): return R("v", 216 + 8*rb)
    def So(rb): return R("v", 220 + 8*rb)
    for rb in range(4): e(mfma(So(rb), bt(1, 0, rb), bt(0, 0, rb), mO))
    for rb in range(4): e(mfma(Sp(rb), kprev(rb), bt(0, 0, rb), mP0 if rb == 0 else mP))
    mx, mc = 148, 20
    e(f"s_mov_b32 s{t0_}, {f32(BSCALE)}\ns_nop 1")
    for rb in range(4):
        b = So(rb); e(f"v_max3_f32 v{mx+rb}, {b[0]}, {b[1]}, {b[2]}")
    for rb in range(4):
        a, b = Sp(rb), So(rb)
        e(f"v_max3_f32 v{mx+rb}, v{mx+rb}, {b[3]}, {a[0]}\nv_max3_f32 v{mx+rb}, v{mx+rb}, {a[1]}, {a[2]}\nv_max_f32 v{mx+rb}, v{mx+rb}, {a[3]}")
    for op in ("v_permlane16_swap_b32", "v_permlane32_swap_b32"):
        for rb in range(4): e(f"v_mov_b32 v{mc+rb}, v{mx+rb}")
        for rb in range(4): e(f"{op} v{mc+rb}, v{mx+rb}")
        for rb in range(4): e(f"v_max_f32 v{mx+rb}, v{mx+rb}, v{mc+rb}")
    for rb in range(4): e(f"v_mul_f32 v{mx+rb}, s{t0_}, v{mx+rb}")
    for rb in range(4):
        for k in range(8): e(f"v_fma_f32 v{216+8*rb+k}, v{216+8*rb+k}, s{t0_}, -v{mx+rb}")
        for k in range(8): e(f"v_exp_f32 v{216+8*rb+k}, v{216+8*rb+k}")
    for rb in range(4):
        a, b = Sp(rb), So(rb)
        pk(a[0], a[0], a[1]); pk(a[1], a[2], a[3]); pk(a[2], b[0], b[1]); pk(a[3], b[2], b[3])
    for rb in range(4):
        e(mfma(So(rb), R("v", vONE), Sp(rb), 0))
        for db in range(2): e(mfma(bt(db, 1, rb), VB(rb, db), Sp(rb), 0))
    e(f"""s_add_u32 s{t0_}, s{sH}, 128
          s_lshl_b32 s{t0_}, s{t0_}, 13
          s_lshl_b32 s{t1_}, s{sW}, 10
          s_add_u32 s{t0_}, s{t0_}, s{t1_}
          s_add_u32 s{t0_}, s{t0_}, {WS_CTX}
          s_mul_i32 s{t1_}, s{sJ}, {160*8192}
          s_add_u32 s{t1_}, s{t1_}, s{t0_}
          s_mul_i32 s{t2_}, s{sBHi}, {160*8192}
          s_add_u32 s{t2_}, s{t2_}, s{t0_}""")
    for rb in range(4): e(f"v_rcp_f32 v{mx+rb}, {So(rb)[0]}")
    for rb in range(4): e(f"v_mul_f32 v{mx+rb}, v{mx+rb}, v{vG+2*rb+1}")
    for rb in range(4):
        a, b = bt(0, 1, rb), bt(1, 1, rb)
        for r in (a, b):
            for k in range(4): e(f"v_mul_f32 {r[k]}, {r[k]}, v{mx+rb}")
        pk(a[0], a[0], a[1]); pk(a[1], a[2], a[3]); pk(a[2], b[0], b[1]); pk(a[3], b[2], b[3])
        if rb & 1: e(f"s_add_u32 s{t1_ + (rb>>1)}, s{t1_ + (rb>>1)}, 4096")
        e(f"buffer_store_dwordx4 {a}, v{vL16}, {srd(SD)}, s{t1_ + (rb>>1)} offen {ST} ;@tag=ob")
    g.emit(q)

RA = 6
sR5, sKh, sCtx, sWo5, sL5, sCol = 82, 83, 84, 85, 86, 87
vG5 = 17
def p5_ctx(slot, ks, rb): return R("v", (224, 240, 192, 208)[slot & 3] + 8*ks + 4*rb)
def p5_lds(tau): return (131072, 147456, 98304, 114688, 65536, 81920, 32768, 49152)[tau & 7]
def p5_wdma(tau, rel):
    return [([f"s_add_u32 m0, s{sL5}, {p5_lds(tau) + i*1024}", f"s_add_u32 s{sT}, s{sWo5}, {rel*131072 + i*8192}"],
             f"buffer_load_dwordx4 v{vG5 + (i&1)}, {srd(SB if tau < 8 else SC)}, s{sT} offen lds ;@tag=w5_{tau&7}") for i in range(4)]
def p5_cld(tau, rel):
    o = []
    for ks in range(2):
        for rb in range(2):
            o.append(([f"s_add_u32 s{sT2}, s{sCtx}, {rel*16384 + ks*8192}"] if rb == 0 else [],
                      f"buffer_load_dwordx4 {p5_ctx(tau, ks, rb)}, v{vL16}, {srd(SD)}, s{sT2} offen offset:{rb*1024} sc1"))
    return o
def p5_setup():
    return L(f"""s_and_b32 s{t0_}, s2, 7
          s_lshr_b32 s{t1_}, s2, 3
          s_lshr_b32 s{sKh}, s{t0_}, 2
          s_and_b32 s{t2_}, s{t0_}, 1
          s_and_b32 s{t3_}, s{t1_}, 7
          s_lshl3_add_u32 s{sR5}, s{t2_}, s{t3_}
          s_and_b32 s{t2_}, s{t0_}, 2
          s_lshr_b32 s{t3_}, s{t1_}, 3
          s_lshl1_add_u32 s{sCol}, s{t2_}, s{t3_}
          s_lshl_b32 s{sCol}, s{sCol}, 8
          s_lshl_b32 s{sL5}, s{sW}, 12
          s_lshl_b32 s{sWo5}, s{sW}, 15
          s_add_u32 s{sWo5}, s{sWo5}, s{sCol}
          s_lshl_b32 s{t0_}, s{sKh}, 20
          s_add_u32 s{sWo5}, s{sWo5}, s{t0_}
          s_mul_i32 s{sCtx}, s{sR5}, {160*8192}
          s_lshl_b32 s{t0_}, s{sW}, 11
          s_add_u32 s{sCtx}, s{sCtx}, s{t0_}
          s_lshl_b32 s{t0_}, s{sKh}, 17
          s_add_u32 s{sCtx}, s{sCtx}, s{t0_}
          s_add_u32 s{sCtx}, s{sCtx}, {WS_CTX + 128*8192}
          s_mov_b32 s{SB}, s{sWOB}
          s_mov_b32 s{SB+1}, s{sWOB+1}
          s_mov_b32 s{SB+2}, {2<<20}
          s_mov_b32 s{SC}, s{sWOA}
          s_mov_b32 s{SC+1}, s{sWOA+1}
          s_mov_b32 s{SC+2}, {8<<20}
          v_lshrrev_b32 v19, 4, v0
          v_bfe_u32 v{vG5}, v0, 1, 3
          v_xor_b32 v{vG5}, v{vG5}, v19
          v_lshlrev_b32 v{vG5}, 5, v{vG5}
          v_lshl_add_u32 v{vG5}, v19, 11, v{vG5}
          v_and_b32 v19, 1, v0
          v_lshl_add_u32 v{vG5}, v19, 4, v{vG5}
          v_xor_b32 v{vG5+1}, 128, v{vG5}""")

def attention(g):
    p = g.p
    vDK, vDV = 2, 3
    sSrc, sM0, sCnt, sFB, sLX, sCb = 70, 71, 72, 73, 76, 74
    def Q(qb, t): return R("v", vQ + 16*qb + 4*t)
    def S_(b, kb, qb): return R("v", 88 + 32*b + 8*qb + 4*kb)
    def Pp(b, qb): return R("v", 152 + 16*b + 4*qb)
    def NM(qb): return R("v", 184 + 4*qb)
    def MK(kbg): return R("v", 200 + 4*kbg)
    def CD(kb): return R("v", 216 + 4*kb)
    def O(db, qb): return R("a", 32*qb + 4*db)
    def Lr(qb): return R("a", 128 + 4*qb)
    def F(f): return R("a", 144 + 4*f)
    mx, mc, vBad = 20, 224, 1
    def rd(f, i): return f"ds_read_b128 {F(f)}, v{vDV if f >= 8 else vDK} offset:{i*8192 + (f & 7)*1024}"
    def dma(k, tag):
        sal = []
        if k == 0: sal = [f"s_mov_b32 m0, s{sM0}"]
        if k == 4: sal = [f"s_add_u32 m0, s{sM0}, 4096", f"s_add_u32 s{sT}, s{sSrc}, 4096"]
        return sal, f"buffer_load_dwordx4 v{vL16}, {srd(SA)}, s{sSrc if k < 4 else sT} offen offset:{(k&3)*1024} sc1 lds ;@tag={tag}"
    def act(st, uu, base):
        if st == "full" or (st == "diag" and uu < 2): return (base, base + 1)
        if st == "diag": return (base + 1,)
        return ()
    def acts(sts, uu): return act(sts[0], uu, 0) + act(sts[1], uu, 2)
    def masked(sts, uu):
        for b, st in enumerate(sts):
            if st == "diag": return 2*b + (uu >> 1)
        return None
    def cdcalc(sts, uu):
        qb = masked(sts, uu)
        if qb is None: return []
        return [f"v_add_f32 {CD(kb)[r]}, {NM(qb)[0]}, {MK(2*(uu & 1) + kb)[r]}" for kb in range(2) for r in range(4)]
    def epi(qbs, tmpb):
        o = []
        for qb in qbs: o.append(f"v_accvgpr_read_b32 v{mx+qb}, {Lr(qb)[0]}")
        o.append(f"v_max3_f32 v{vBad}, v{vBad}, v{mx+qbs[0]}, v{mx+qbs[1]}")
        for qb in qbs: o.append(f"v_rcp_f32 v{mx+qb}, v{mx+qb}")
        o.append("s_nop 0")
        for qb in qbs: o.append(f"v_mul_f32 v{mx+qb}, v{mx+qb}, v{vG+2*qb}")
        k = 0
        for qb in qbs:
            for t in range(4):
                tmp = R("v", tmpb[k & 1], 8); k += 1
                for r in range(8): o.append(f"v_accvgpr_read_b32 {tmp[r]}, {O(2*t + (r >> 2), qb)[r & 3]}")
                o.append(f"s_add_u32 s{sT2}, s{sCb + (qb>>1)}, {t*8192 + (qb&1)*4096}")
                for r in range(8): o.append(f"v_mul_f32 {tmp[r]}, {tmp[r]}, v{mx+qb}")
                for r in range(4): o.append(f"v_cvt_pk_bf16_f32 {tmp[r]}, {tmp[2*r]}, {tmp[2*r+1]}")
                o.append(f"buffer_store_dwordx4 {tmp[0:4]}, v{vL16}, {srd(SD)}, s{sT2} offen {ST} ;@tag=ctx")
        return o

    def rnd(i, cur, prev, first=False, lastg=False, hook=None):
        qk = acts(cur, i)
        sm = acts(cur, i - 1) if i >= 1 else acts(prev, 3)
        pv = acts(cur, i - 2) if i >= 2 else acts(prev, i + 2)
        czero = first and i == 2
        mq = masked(cur, i)
        mf = []
        for f in range(8):
            kb, t = f >> 2, f & 3
            for qb in qk: mf.append(mfma(S_(i & 1, kb, qb), F(f), Q(qb, t), (CD(kb) if qb == mq else NM(qb)) if t == 0 else None))
        for db in range(8):
            for qb in pv: mf.append(mfma(O(db, qb), F(8 + db), Pp(i & 1, qb), 0 if czero else None))
        for qb in pv: mf.append(mfma(Lr(qb), R("v", vONE), Pp(i & 1, qb), 0 if czero else None))
        n = len(mf); nq, npv = len(qk), len(pv)
        b = (i + 1) & 1
        E = []; Cv = []
        for qb in sm:
            for kb in range(2):
                s = S_(b, kb, qb)
                for r in range(4): E.append(f"v_exp_f32 {s[r]}, {s[r]}")
                Cv += [f"v_cvt_pk_bf16_f32 {Pp(b, qb)[2*kb]}, {s[0]}, {s[1]}", f"v_cvt_pk_bf16_f32 {Pp(b, qb)[2*kb+1]}, {s[2]}, {s[3]}"]
        knext = not (lastg and i == 3)
        D = []
        for d in range(16):
            f = d + RA
            if f < 8: D.append(rd(f, i))
            elif f < 16: D.append(rd(f, i) if pv else None)
            else: D.append(rd(f - 16, (i + 1) & 3) if knext else None)
        S = Sched(mf)
        steady = (nq, len(sm), npv) in ((2, 2, 2), (4, 4, 4))
        if (nq, len(sm), npv) == (2, 2, 2):
            eg = [2*e + 1 for e in range(16)]; cg = [4*k + 4 for k in range(8)]
            if i & 1: dg = [0, 2, 2, 4, 6, 8, 12, 14, 14, 16, 20, 24, 26, 28, 32, 33]; mg = [10, None, 22, 30]; bg = 18
            else: dg = [0, 2, 2, 4, 8, 12, 14, 14, 16, 20, 24, 26, 26, 28, 32, 33]; mg = [6, 10, 18, 22, 30]; bg = None
        elif (nq, len(sm), npv) == (4, 4, 4):
            eg = [2*e + 1 for e in range(32)]; cg = [4*k + 4 for k in range(16)]
            dg = [4*d for d in range(16)]
            if i & 1: mg = [14, None, 46, 58]; bg = 38
            else: mg = [6, 18, 30, 42, 58]; bg = None
        else:
            use = [f * nq for f in range(8)] + [8*nq + d * npv for d in range(8)]
            dg = [min(n - 1, use[d]) for d in range(16)]
            bg = max(dg[16 - RA] - 1, dg[15 - RA]) if i & 1 else None
            if i & 1: mg = [bg // 2, None, bg + (n - bg) // 3, bg + 2 * (n - bg) // 3]
            else: mg = [(q * n) // 5 + 1 for q in range(5)]
            eg = cg = None
        tA, tB = ("kvA", "kvB") if i in (0, 1) else ("kvB", "kvA")
        if i & 1: ks = [(mg[0], 7, tA, not (lastg and i == 3)), (mg[2], 0, tB, not lastg), (mg[3], 1, tB, not lastg)]
        else: ks = [(gq, 2 + q, tA, not (lastg and i == 2)) for q, gq in enumerate(mg)]
        w = 0 if steady else 3
        ch = "rd"
        for d in range(16):
            if d == 16 - RA and i & 1:
                wt = ("kvB" if i == 1 else "kvA") + (",v0,ob" if first else "")
                S.add("X", [f"WAITVM {wt}", "s_barrier"], bg, bg if steady else min(bg + 2, n - 1), chain=ch)
            if D[d]: S.add("D", D[d], dg[d], min(dg[d] + w, n - 1), chain=ch)
        for gq, k, tag, on in ks:
            if not on: continue
            sal, dd = dma(k, tag)
            if k == 0: sal = [f"s_xor_b32 s{sM0}, s{sM0}, {16384 if i == 1 else 16384 + 32768}", f"s_add_u32 s{sSrc}, s{sSrc}, 32768"] + sal
            lo = gq if (k != 0 or steady) else max(gq, min(bg + 3, n - 1))
            hi = min(lo + w, n - 1) if k != 7 else min(lo + w, bg - 1)
            if steady:
                if k == 0:
                    for q, s_ in enumerate(sal): S.add("S", s_, (12, 16, 20)[q] * nq // 2, (12, 16, 20)[q] * nq // 2 , chain="m")
                elif sal:
                    for q, s_ in enumerate(sal): S.add("S", s_, gq - 6 + 4*q if nq == 2 else gq - 6 + 2*q, gq - 6 + 4*q if nq == 2 else gq - 6 + 2*q, chain="m")
                S.add("M", dd, lo, lo, chain="m")
            else:
                S.add("M", dd, lo, hi, chain="m", pre=sal, sep=1)
        if i == 3:
            x = dg[16 - RA] - 1
            S.add("A", f"v_xor_b32 v{vDK}, 0x8000, v{vDK}", min(dg[7 - RA] + w + 1, x), x)
            S.add("A", f"v_xor_b32 v{vDV}, 0x8000, v{vDV}", min(dg[15 - RA] + w + 1, n - 1), n - 1)
        if eg:
            for k in range(len(Cv)):
                S.add("E", E[2*k], eg[2*k], eg[2*k]); S.add("E", E[2*k+1], eg[2*k+1], eg[2*k+1]); S.add("A", Cv[k], cg[k], cg[k])
        else:
            ne = len(E)
            for k in range(len(Cv)):
                for e in (2*k, 2*k + 1):
                    S.add("E", E[e], 0, int((e + 1) * (n - 2) / ne), chain=("e", k))
                S.add("A", Cv[k], 0, n - 1, chain=("e", k), sep=1)
        if i < 3 and not (first and i == 0):
            for c in cdcalc(cur, i + 1): S.add("A", c, min(4*nq + nq + 3, n - 3), n - 3)
        if hook: hook(S, n, bg)
        return S.run()

    FULL2, LD, TR, TD = ("full", "full"), ("diag", "full"), ("off", "full"), ("off", "diag")
    NONE = ("off", "off")
    def xmax():
        o = []
        for op in ("v_permlane16_swap_b32", "v_permlane32_swap_b32"):
            o += [f"v_mov_b32 v{mc+qb}, v{mx+qb}" for qb in range(4)]
            o += [f"{op} v{mc+qb}, v{mx+qb}" for qb in range(4)]
            o += [f"v_max_f32 v{mx+qb}, v{mx+qb}, v{mc+qb}" for qb in range(4)]
        return o
    def hook_sig(S, n, bg):
        pre, d = signal(SF, 0, 128)
        S.add("S", pre[0], 0, chain="sig"); S.add("A", pre[1].replace("v1,", "v19,"), 0, chain="sig", sep=1)
        skip = f"s_cmp_eq_u32 s{sFB}, 0"
        S.add("X", [skip, f"s_cselect_b32 s{t1_}, 0, 0x1000"], 0, chain="sig")
        S.add("M", d.replace("v1,", "v19,").replace(f"{srd(SF)}, 0", f"{srd(SF)}, s{t1_}"), 0, n - 1, chain="sig", sep=1)
    def hook_pf(S, n, bg):
        if OPT.get("nopf"): return
        for c in L(f"""v_lshlrev_b32 v19, 7, v0
              s_lshl2_add_u32 s{t0_}, s2, s{sW}
              s_lshl_b32 s{t0_}, s{t0_}, 13
              v_add_u32 v19, s{t0_}, v19"""): S.add("S" if c.startswith("s_") else "A", c, 0, chain="pf", sep=1)
        S.add("M", f"global_load_dword a{aDUM}, v19, s[{sWOA}:{sWOA+1}] ;@dummy", bg + 1, n - 4, chain="pf", sep=1)
        S.add("A", f"v_and_b32 v19, {(2<<20)-1}, v19", 0, chain="pf", sep=1)
        S.add("M", f"global_load_dword a{aDUM}, v19, s[{sWOB}:{sWOB+1}] ;@dummy", bg + 1, n - 1, chain="pf", sep=1)
    def first_group(cur):
        seq = cdcalc(cur, 0)
        seq += [rd(f, 0) for f in range(RA)]
        for k in range(2):
            sal, d = dma(k, "kvA"); seq += sal + (["s_nop 0"] if k == 0 else []) + [d]
        seq += rnd(0, cur, NONE, first=True)
        seq += ["s_nop 3", f"s_cmp_eq_u32 s{sFB}, 0", f"s_cselect_b32 s{t0_}, -1, 0"]
        for qb in range(4):
            a = S_(0, 0, qb); seq += [f"v_max3_f32 v{mx+qb}, {a[0]}, {a[1]}, {a[2]}"]
        for qb in range(4):
            a, b = S_(0, 0, qb), S_(0, 1, qb)
            seq += [f"v_max3_f32 v{mx+qb}, v{mx+qb}, {a[3]}, {b[0]}", f"v_max3_f32 v{mx+qb}, v{mx+qb}, {b[1]}, {b[2]}", f"v_max_f32 v{mx+qb}, v{mx+qb}, {b[3]}"]
        seq += xmax()
        seq += [f"v_and_b32 v{mx+qb}, s{t0_}, v{mx+qb}" for qb in range(4)]
        for qb in range(4): seq += [f"v_sub_f32 {NM(qb)[r]}, {NM(qb)[r]}, v{mx+qb}" for r in range(4)]
        seq += cdcalc(cur, 1)
        for qb in range(4):
            for kb in range(2): seq += [f"v_sub_f32 {S_(0, kb, qb)[r]}, {S_(0, kb, qb)[r]}, v{mx+qb}" for r in range(4)]
        seq += rnd(1, cur, NONE, first=True) + rnd(2, cur, NONE, first=True, hook=hook_sig) + rnd(3, cur, NONE, first=True, hook=hook_pf)
        return seq
    def hook_p5a(S, n, bg):
        for c in p5_setup(): S.add("S" if c.startswith("s_") else "A", c, 0, n - 1, chain="p5")
        S.add("M", f"buffer_load_dword v19, off, {srd(SF)}, 0 offset:128 sc1", 0, n - 1, chain="p5")
    def hook_p5b(S, n, bg):
        S.add("X", g.spin(19, SF, 0, 128, 256), 0, 0, chain="p5")
        for sal, d in p5_wdma(0, 0) + p5_cld(0, 0): S.add("M", d, 3, n - 1, chain="p5", pre=sal, sep=3)
    def hook_p5c(S, n, bg):
        for sal, d in p5_wdma(1, 1) + p5_cld(1, 1): S.add("M", d, 2, n - 1, chain="p5", pre=sal, sep=2)
    def group(cur, prev, lastg=False, loepi=False):
        seq = cdcalc(cur, 0) + (["s_nop 0"] if masked(cur, 0) is not None else [])
        hk = (hook_p5a, None, hook_p5b, hook_p5c) if lastg else (None,) * 4
        for i in range(4):
            seq += rnd(i, cur, prev, lastg=lastg, hook=hk[i])
            if loepi and i == 1: seq += ["s_nop 7"] + epi((0, 1), (88, 120))
        return seq

    q = L(f"""s_mov_b32 s{sFB}, 0
          v_and_b32 v20, 15, v0
          v_lshrrev_b32 v21, 4, v0
          v_lshlrev_b32 v21, 2, v21
          v_sub_u32 v20, v20, v21
          s_lshl_b32 s{t0_}, s{sW}, 4
          v_add_u32 v20, s{t0_}, v20""")
    for k in range(16):
        q += [f"v_subrev_u32 v21, {16*(k >> 2) + (k & 3)}, v20", f"v_ashrrev_i32 v21, 31, v21", f"v_and_b32 v{200+k}, 0xff800000, v21"]
    for k in range(16): q.append(f"v_mov_b32 v{184+k}, 0")
    q += L(f"""s_lshl_b32 s{t0_}, s{sH}, 15
          s_lshl_b32 s{t1_}, s{sW}, 10
          s_add_u32 s{t0_}, s{t0_}, s{t1_}
          s_add_u32 s{t0_}, s{t0_}, {WS_CTX}
          s_mul_i32 s{sCb}, s{sJ}, {160*8192}
          s_add_u32 s{sCb}, s{sCb}, s{t0_}
          s_mul_i32 s{sCb+1}, s{sBHi}, {160*8192}
          s_add_u32 s{sCb+1}, s{sCb+1}, s{t0_}""")
    START = p.new("attstart")
    q += [START + ":"] + L(f"""v_mov_b32 v{vDK}, v{vL16}
          v_add_u32 v{vDV}, 0x10000, v{vL16}
          v_mov_b32 v{vBad}, 0
          s_and_b32 s{t0_}, s{sW}, 1
          s_lshr_b32 s{t1_}, s{sW}, 1
          s_lshl_b32 s{sM0}, s{t0_}, 13
          s_lshl_b32 s{t2_}, s{t1_}, 16
          s_add_u32 s{sM0}, s{sM0}, s{t2_}
          s_add_u32 s{sM0}, s{sM0}, 32768
          s_lshl_b32 s{sSrc}, s{t0_}, 14
          s_mul_i32 s{t1_}, s{t1_}, 24576
          s_sub_u32 s{sSrc}, s{sSrc}, s{t1_}
          s_add_u32 s{sSrc}, s{sSrc}, 65536
          WAITVM k0 L
          s_barrier""") + stamp(6)
    g.emit(q)
    lab = {k: p.new(k) for k in ("F1", "D", "DD", "T", "T1", "S", "SD", "TAIL")}
    st0 = (list(g.lg), list(g.vm))
    def setst(s): g.lg, g.vm = list(s[0]), list(s[1])
    def getst(): return (list(g.lg), list(g.vm))
    def canon():
        lg = [(r, 0) for r, a in g.lg]
        return (lg, [("kvB", [])] * 8 + [("kvA", [])] * 2)
    p(f"s_cmp_eq_u32 s{sJ}, 0\ns_cbranch_scc1 {lab['F1']}")
    g.emit(first_group(FULL2)); cs = canon()
    g.emit(stamp(12))
    p(f"s_sub_u32 s{sCnt}, s{sJ}, 1\ns_cmp_eq_u32 s{sCnt}, 0\ns_cbranch_scc1 {lab['DD']}")
    p(".p2align 3"); p.label(lab["D"]); setst(cs)
    g.emit(group(FULL2, FULL2) + [f"s_sub_u32 s{sCnt}, s{sCnt}, 1", f"s_cmp_lg_u32 s{sCnt}, 0"]); assert canon() == cs
    p(f"s_cbranch_scc1 {lab['D']}")
    p.label(lab["DD"]); setst(cs)
    g.emit(stamp(13) + group(LD, FULL2)); assert canon() == cs or OPT["stamps"]
    p(f"s_cmp_eq_u32 s{sJ}, 7\ns_cbranch_scc1 {lab['T1']}")
    p.label(lab["T"]); setst(cs)
    g.emit(stamp(14) + group(TR, LD, loepi=True) + stamp(15))
    p(f"s_lshl_b32 s{sCnt}, s{sJ}, 1\ns_sub_u32 s{sCnt}, 13, s{sCnt}")
    p(".p2align 3"); p.label(lab["S"]); setst(cs)
    g.emit(group(TR, TR) + [f"s_sub_u32 s{sCnt}, s{sCnt}, 1", f"s_cmp_lg_u32 s{sCnt}, 0"]); assert canon() == cs
    p(f"s_cbranch_scc1 {lab['S']}")
    setst(cs)
    g.emit(stamp(16) + group(TD, TR, lastg=True))
    ts = getst()
    p.label(lab["TAIL"])
    seq = stamp(17) + [rd(8 + d, 0) for d in range(8)] + [f"ds_read_b128 {F(d)}, v{vDV} offset:{8192 + d*1024}" for d in range(8)]
    for kb in range(2):
        s = S_(1, kb, 3); seq += [f"v_exp_f32 {s[r]}, {s[r]}" for r in range(4)]
    for kb in range(2):
        s = S_(1, kb, 3); seq += [f"v_cvt_pk_bf16_f32 {Pp(1, 3)[2*kb]}, {s[0]}, {s[1]}", f"v_cvt_pk_bf16_f32 {Pp(1, 3)[2*kb+1]}, {s[2]}, {s[3]}"]
    seq += [mfma(Lr(3), R("v", vONE), Pp(0, 3))] + [mfma(O(db, 3), F(8 + db), Pp(0, 3)) for db in range(8)]
    seq += [mfma(Lr(3), R("v", vONE), Pp(1, 3))] + [mfma(O(db, 3), F(db), Pp(1, 3)) for db in range(8)]
    seq += stamp(7)
    ep = epi((2, 3), (88, 120))
    k = ep.index("s_nop 0")
    ep[k:k+1] = L(f"""s_mov_b32 s{t0_}, {f32(LTHR)}
          v_cmp_le_f32 vcc, s{t0_}, v{vBad}
          s_lshl_b32 s{t1_}, s{sW}, 2
          s_cmp_lg_u64 vcc, 0
          s_cselect_b32 s{t0_}, 1, 0
          v_mov_b32 v96, s{t1_}
          v_mov_b32 v97, s{t0_}
          ds_write_b32 v96, v97""")
    seq += ep
    FB = p.new("fallback")
    seq += L(f"""v_mov_b32 v96, 0
          WAITVM w5_0 L
          s_barrier
          ds_read_b128 v[100:103], v96""") + stamp(8)
    g.emit(seq)
    g.fbcheck = L(f"""v_or3_b32 v100, v100, v101, v102
          v_or_b32 v100, v100, v103
          s_nop 0
          v_readfirstlane_b32 s{t0_}, v100 ;@val=0
          s_nop 0
          s_cmp_gt_u32 s{t0_}, s{sFB}
          s_cbranch_scc1 {FB} ;@br=fb""")
    es = getst()
    main = g.p; g.p = P(); g.p.uid = main.uid + 1000
    g.p.label(lab["F1"]); setst(st0)
    g.emit(first_group(LD) + stamp(12) + stamp(13)); assert canon() == cs or OPT["stamps"]
    g.p(f"s_branch {lab['T']}")
    g.p.label(lab["T1"]); setst(cs)
    g.emit(stamp(14) + stamp(15) + stamp(16) + group(TD, LD, lastg=True, loepi=True))
    assert [e for e in g.vm[-16:]] == [e for e in ts[1][-16:]] and g.lg == [] and ts[0] == [], (g.lg, ts[0])
    g.p(f"s_branch {lab['TAIL']}")
    g.p.label(FB); setst(([], []))
    sU = 88
    q = L(f"""s_waitcnt vmcnt(0) lgkmcnt(0)
          s_barrier
          s_mov_b32 s{sFB}, 1
          s_mov_b32 s{sU}, 0
          v_and_b32 v228, 15, v0
          v_lshrrev_b32 v229, 4, v0
          v_lshlrev_b32 v229, 2, v229
          v_sub_u32 v228, v228, v229
          s_lshl_b32 s{t0_}, s{sW}, 4
          v_add_u32 v228, s{t0_}, v228
          s_lshl_b32 s{t0_}, s{sBHi}, 7
          v_add_u32 v230, s{t0_}, v228
          s_lshl_b32 s{t0_}, s{sJ}, 7
          v_add_u32 v228, s{t0_}, v228
          v_add_u32 v229, 64, v228
          v_add_u32 v231, 64, v230""")
    for sal, d in att_first_dmas(sLX): q += sal + ["s_nop 0", d]
    for qb in range(4): q.append(f"v_mov_b32 v{mx+qb}, 0xff800000")
    FL = g.p.new("fbl"); q.append(FL + ":")
    for f in range(8):
        if f == 4: q.append(f"s_add_u32 s{sT}, s{sU}, 4096")
        q.append(f"buffer_load_dwordx4 {F(f)}, v{vL16}, {srd(SA)}, s{sU if f < 4 else sT} offen offset:{(f&3)*1024} sc1")
    for qb in range(4):
        for kb in range(2):
            for r in range(4):
                c = S_(0, kb, qb)[r]
                q += [f"v_subrev_u32 {c}, {16*kb + r}, v{228+qb}", f"v_ashrrev_i32 {c}, 31, {c}", f"v_and_b32 {c}, 0xff800000, {c}"]
        q.append(f"v_subrev_u32 v{228+qb}, 32, v{228+qb}")
    q.append("s_waitcnt vmcnt(0)")
    for f in range(8):
        for qb in range(4): q.append(mfma(S_(0, f >> 2, qb), F(f), Q(qb, f & 3)))
    q.append("s_nop 7")
    for qb in range(4):
        for kb in range(2):
            a = S_(0, kb, qb)
            q += [f"v_max3_f32 v{mx+qb}, v{mx+qb}, {a[0]}, {a[1]}", f"v_max3_f32 v{mx+qb}, v{mx+qb}, {a[2]}, {a[3]}"]
    q += L(f"s_add_u32 s{sU}, s{sU}, 16384\ns_cmp_lt_u32 s{sU}, s{SA+2}\ns_cbranch_scc1 {FL}")
    q += xmax()
    for qb in range(4): q += [f"v_sub_f32 {NM(qb)[r]}, 0, v{mx+qb}" for r in range(4)]
    q.append(f"s_branch {START}")
    g.emit(q)
    g.ool += g.p.l; main.uid = g.p.uid + 1000; g.p = main
    setst(es)

def phase5(g):
    p = g.p
    vD = 88
    sCnt = 70
    def acc(rb, cb): return R("v", 24 + 32*rb + 4*cb)
    def fw(b, cb): return R("a", 32*b + 4*cb)
    def wread(tau, ks, cb):
        base = p5_lds(tau); win = 0 if base >= 98304 else 1
        off = base - (98304 if win == 0 else 32768)
        return [f"ds_read_b64_tr_b16 {fw(ks, cb)[2*i:2*i+2]}, v{vD + 16*win + cb} offset:{off + ks*8192 + i*4096}" for i in range(2)]
    q = L(f"""v_lshrrev_b32 v112, 4, v0
          v_bfe_u32 v113, v0, 2, 2
          v_lshl_add_u32 v114, v112, 2, v113
          v_and_b32 v115, 3, v0
          v_lshlrev_b32 v115, 3, v115
          v_lshl_add_u32 v115, v114, 8, v115
          v_add_u32 v115, 98304, v115
          v_and_b32 v114, 7, v114
          s_lshl_b32 s{t0_}, s{sKh}, 2
          v_xor_b32 v114, s{t0_}, v114""")
    for n in range(8):
        q += [f"v_xor_b32 v112, {n}, v114", f"v_lshl_add_u32 v{vD+n}, v112, 5, v115", f"v_xor_b32 v{vD+16+n}, 0x10000, v{vD+n}"]
    q += g.fbcheck
    for cb in range(8): q += wread(0, 0, cb)
    q += L(f"""s_lshr_b32 s{t0_}, s{sH}, 4
          s_lshl1_add_u32 s{t0_}, s{sJ}, s{t0_}
          s_lshl_b32 s71, s{t0_}, 8
          s_sub_u32 s{t0_}, 15, s{sR5}
          s_min_u32 s{t0_}, s{t0_}, s{sR5}
          s_lshl1_add_u32 s{t0_}, s{t0_}, s{sKh}
          s_lshl_b32 s72, s{t0_}, 8""") + mk_srd(SF, sWS, 4096, WS_CNT)
    g.emit(q)
    DW, DC = 4, 3
    def body(t0, kind):
        mf = []
        for st in range(8):
            for ks in range(2):
                c0 = 0 if (kind == "first" and st == 0 and ks == 0) else None
                mf += [mfma(acc(rb, cb), fw(ks, cb), p5_ctx(st, ks, rb), c0) for cb in range(8) for rb in range(2)]
        S = Sched(mf)
        for st in range(8):
            tau = t0 + st; g0 = 32 * st; B = g0 + 15
            k = 0
            for cb in range(8):
                for r in wread(tau, 1, cb): S.add("T", r, g0 + (k * 13) // 16 - (1 if k == 0 and st else 0) * 0, g0 + 2 + (k * 13) // 16, chain="t"); k += 1
            if tau < 39:
                S.add("X", [f"WAITVM w5_{(tau+1)&7}" + (",ctx" if (kind == "first" and st == 1) else ""), "s_barrier"], B, B + 1, chain="t")
                k = 0
                for cb in range(8):
                    for r in wread(tau + 1, 0, cb): S.add("T", r, B + 1 + (k * 13) // 16, min(B + 3 + (k * 13) // 16, g0 + 31), chain="t"); k += 1
            lw, lc = [], []
            if kind == "first":
                wl = {0: (2, 3), 1: (4, 5)}.get(st, (st + DW,)); cl = {0: (2, 3)}.get(st, (st + DC,))
            else: wl, cl = (st + DW,), (st + DC,)
            for x in cl:
                if t0 + x < 40: lc += p5_cld(t0 + x, x if (kind != "first" or x < 8) else x - 8)
            for x in wl:
                if t0 + x < 40: lw += p5_wdma(t0 + x, x if (kind != "first" or x < 8) else x - 8)
            if kind == "first":
                if st == 8 - DW:
                    S.add("X", L(f"s_mul_i32 s{t0_}, s{sKh}, {3<<20}\ns_add_u32 s{sWo5}, s{sWo5}, s{t0_}"), g0, g0, chain="ld")
                if st == 8 - DC - 1:
                    S.add("M", f"buffer_load_dword v19, off, {srd(SF)}, s72 sc1", g0, g0 + 2, chain="ld")
                if st == 8 - DC:
                    S.add("X", g.spin(19, SF, "s72", 0, 16) + L(f"s_mul_i32 s{t0_}, s{sKh}, {(64-16)*8192}\ns_add_u32 s{sCtx}, s{sCtx}, s{t0_}\ns_sub_u32 s{sCtx}, s{sCtx}, {128*8192}") + stamp(9), g0, g0, chain="ld")
            ld = lc + lw
            for k, (sal, d) in enumerate(ld):
                x = g0 + 2 + (k * 30) // len(ld)
                S.add("M", d, x, min(x + 1, g0 + 31), chain="ld", pre=sal, sep=1)
            if kind == "first" and st == 1:
                pre, d = signal(SF, "s71", 0)
                S.add("S", pre[0], B - 4, B, chain="sig"); S.add("A", pre[1], B - 3, B, chain="sig", sep=1)
                S.add("M", d, B + 2, B + 2, chain="sig")
        return S.run("p5" + kind)
    g.emit(body(0, "first"))
    p(f"s_mov_b32 s{sCnt}, 3")
    Lp = p.new("p5"); p(".p2align 3"); p.label(Lp)
    st = ([(r, 0) for r, a in g.lg], list(g.vm))
    g.emit(body(8, "loop") + [f"s_add_u32 s{sWo5}, s{sWo5}, {8*131072}", f"s_add_u32 s{sCtx}, s{sCtx}, {8*16384}", f"s_sub_u32 s{sCnt}, s{sCnt}, 1", f"s_cmp_lg_u32 s{sCnt}, 0"])
    assert st == ([(r, 0) for r, a in g.lg], list(g.vm)), (st, g.lg, g.vm)
    p(f"s_cbranch_scc1 {Lp}")
    g.emit(body(32, "last") + stamp(10))
    q = L(f"""s_xor_b32 s{t0_}, s2, 4
          s_lshl2_add_u32 s{t0_}, s{t0_}, s{sW}
          s_lshl_b32 s{t1_}, s{t0_}, 13
          s_add_u32 s{t1_}, s{t1_}, {WS_XCH}
          s_add_u32 s{t2_}, s{t1_}, 4096
          s_lshl_b32 s71, s{t0_}, 6
          s_lshl2_add_u32 s{t0_}, s2, s{sW}
          s_lshl_b32 s72, s{t0_}, 6
          s_lshl_b32 s73, s{t0_}, 13
          s_add_u32 s73, s73, {WS_XCH}
          s_add_u32 s74, s73, 4096""") + mk_srd(SF, sWS, 65536, WS_INBOX)
    for rb in range(2):
        for c in range(4): q.append(f"buffer_store_dwordx4 {acc(rb, 4+c)}, v{vL16}, {srd(SD)}, s{t1_+rb} offen offset:{c*1024} {ST}")
    q += mk_srd(SE, sOUT, 4 << 20)
    q += L(f"""v_lshlrev_b32 v1, 24, v0
          s_lshl_b32 s75, s{sR5}, 18
          s_lshl_b32 s{t0_}, s{sW}, 16
          s_add_u32 s75, s75, s{t0_}
          s_add_u32 s75, s75, s{sCol}
          s_lshl_b32 s{t0_}, s{sKh}, 7
          s_add_u32 s75, s75, s{t0_}
          s_add_u32 s76, s75, 32768
          v_and_b32 v8, 15, v0
          v_lshlrev_b32 v8, 11, v8
          v_bfe_u32 v10, v0, 4, 1
          v_lshl_add_u32 v8, v10, 5, v8
          v_lshrrev_b32 v10, 5, v0
          v_lshl_add_u32 v8, v10, 4, v8
          s_waitcnt vmcnt(0)
          buffer_store_dword a{aONE}, v1, {srd(SF)}, s71 offen {ST} ;@sig=wave
          buffer_load_dword v19, off, {srd(SF)}, s72 sc1""") + g.spin(19, SF, "s72", 0, 1)
    for rb in range(2):
        for c in range(4): q.append(f"buffer_load_dwordx4 {acc(rb, 4+c)}, v{vL16}, {srd(SD)}, s{73+rb} offen offset:{c*1024} sc1")
    for rb in range(2):
        for c2 in range(2):
            a, b = acc(rb, 2*c2), acc(rb, 2*c2+1)
            for c in (2*c2, 2*c2+1):
                for r in range(4): q.append(f"v_add_f32 {acc(rb, c)[r]}, {acc(rb, c)[r]}, {acc(rb, 4+c)[r]}")
            q += L(f"""v_cvt_pk_bf16_f32 {a[0]}, {a[0]}, {a[1]}
                  v_cvt_pk_bf16_f32 {a[1]}, {a[2]}, {a[3]}
                  v_cvt_pk_bf16_f32 {a[2]}, {b[0]}, {b[1]}
                  v_cvt_pk_bf16_f32 {a[3]}, {b[2]}, {b[3]}
                  s_nop 1
                  v_permlane16_swap_b32 {a[0]}, {a[2]}
                  v_permlane16_swap_b32 {a[1]}, {a[3]}
                  buffer_store_dwordx4 {a}, v8, {srd(SE)}, s{75+rb} offen offset:{c2*64}""")
    q += stamp(11) + stamp_flush()
    g.emit(q)

def build():
    g = G(); p = g.p
    hdr = open("/code/" + NAME + ".s.ref").read()
    p.l += [l for l in hdr.split("\n") if l.startswith(";") and "@launch" not in l]
    p.l.append(f"; @launch grid=(256,1,1) block=(256,1,1) lds={LDS_BYTES}")
    k = NAME + "_kernel"
    p(f'.amdgcn_target "amdgcn-amd-amdhsa--gfx950"\n.text\n.globl {k}\n.p2align 8\n.type {k},@function'); p.label(k)
    gemm12(g); attention(g); phase5(g)
    p.label("L_end"); p("s_endpgm")
    p(g.ool)
    p.label("L_codeend")
    p(".fill 2048, 4, 0xbf810000")
    p('.section .rodata,"a"\n.p2align 6')
    p.l += f""".amdhsa_kernel {k}
  .amdhsa_next_free_vgpr 512
  .amdhsa_next_free_sgpr 102
  .amdhsa_accum_offset 256
  .amdhsa_group_segment_fixed_size 0
  .amdhsa_kernarg_size 104
  .amdhsa_user_sgpr_count 2
  .amdhsa_user_sgpr_kernarg_segment_ptr 1
  .amdhsa_system_sgpr_workgroup_id_x 1
.end_amdhsa_kernel""".split("\n")
    return p.text()

if __name__ == "__main__":
    out = sys.argv[1]
    for a in sys.argv[2:]:
        k, _, v = a.partition("=")
        OPT[k] = True if v == "" else (int(v) if v.lstrip("-").isdigit() else v)
    txt = build()
    import subprocess, re, os
    open("_sz.s", "w").write(txt.replace("NCHUNK", "0"))
    subprocess.check_call(["clang", "-x", "assembler", "-target", "amdgcn-amd-amdhsa", "-mcpu=gfx950", "-c", "_sz.s", "-o", "_sz.o"])
    sz = int(re.search(r"\.text\s+PROGBITS\s+\S+\s+\S+\s+(\S+)", subprocess.check_output(["llvm-readelf", "-S", "_sz.o"]).decode()).group(1), 16)
    nch = (sz - 8192 - 256) // 8192
    print("code bytes", sz - 8192, "chunks", nch + 1, "file", len(txt))
    assert nch <= 15
    open(out, "w").write(txt.replace("NCHUNK", str(nch)))
```

```python
import sys, math, struct
from genlib import P, R, mfma
from sched import Sched, resolve

NAME = "gated_mix__compressed_kv_cla__sliding_local_dilated__prompt"
WS_KV, WS_CTX, WS_G, WS_CNT, WS_INBOX, WS_XCH, WS_STAMP = 0, 32 << 20, 56 << 20, 57 << 20, (57 << 20) + 65536, 64 << 20, 96 << 20
LDS_BYTES = 160 * 1024
def f32(x): return "0x%08x" % struct.unpack("<I", struct.pack("<f", x))[0]
QSCALE = 128 ** -0.5 * math.log2(math.e)
BSCALE = 32 ** -0.5 * math.log2(math.e)
LTHR = 2.0 ** 60

sX, sC, sWQ, sWUK, sWUV, sWOA, sWQKV, sWOB, sGATE, sOUT, sDBG, sWS = 4, 6, 8, 10, 12, 14, 18, 20, 22, 24, 26, 28
sW, sH, sJ = 30, 31, 3
SA, SB, SC, SD, SE, SF, SG, SH = 32, 36, 40, 44, 48, 52, 56, 60
sT, sT2, sBHi = 64, 65, 16
t0_, t1_, t2_, t3_ = 66, 67, 68, 69
def srd(b): return f"s[{b}:{b+3}]"
OPT = dict(stamps=False)
ST = "sc1"

vDX, vDQ, vGX, vGW, vL16, vDH, vDB, vDBH, vGH, vGB = 2, 4, 12, 14, 16, 17, 19, 21, 22, 23
vQ, vG, vONE = 24, 4, 12
aONE, aDUM = 251, 252

def L(s): return [x.strip() for x in s.strip().split("\n") if x.strip()]
def mk_srd(b, ptr, nbytes, off=None):
    if off is None: o = [f"s_mov_b32 s{b}, s{ptr}", f"s_mov_b32 s{b+1}, s{ptr+1}"]
    else: o = [f"s_add_u32 s{b}, s{ptr}, {off}", f"s_addc_u32 s{b+1}, s{ptr+1}, 0"]
    return o + [f"s_mov_b32 s{b+2}, {nbytes}", f"s_mov_b32 s{b+3}, 0x20000"]

NST = [0]
def stamp(idx):
    if not OPT["stamps"]: return []
    return L(f"""s_waitcnt lgkmcnt(0)
        s_memtime s[92:93]
        s_memrealtime s[94:95]
        v_accvgpr_write_b32 a253, v1
        v_accvgpr_read_b32 v1, a249
        s_waitcnt lgkmcnt(0)
        v_writelane_b32 v1, s92, {2*idx}
        v_writelane_b32 v1, s94, {2*idx+1}
        v_accvgpr_write_b32 a249, v1
        v_accvgpr_read_b32 v1, a253
        s_nop 1""")
def stamp_flush():
    if not OPT["stamps"]: return []
    return L(f"""s_lshl_b32 s96, s2, 2
        s_add_u32 s96, s96, s{sW}
        s_lshl_b32 s96, s96, 8
        s_add_u32 s96, s96, {WS_STAMP}
        v_lshlrev_b32 v1, 2, v0
        buffer_store_dword a249, v1, {srd(SD)}, s96 offen
        s_waitcnt vmcnt(0)""")

class G:
    def __init__(self):
        self.p = P(); self.lg = []; self.vm = []; self.ool = []
    def emit(self, seq, eager=0):
        out, self.lg, self.vm = resolve(seq, self.lg, self.vm, eager)
        self.p(out)
    def spin(self, vreg, srdb, soff, imm, target):
        st, bk, lp = self.p.new("spin"), self.p.new("spinbk"), self.p.new("spinlp")
        self.ool += L(f"""{st}:
            s_mov_b32 s{t1_}, 0x8000
            {lp}:
            s_sleep 1
            buffer_load_dword v{vreg}, off, {srd(srdb)}, {soff} offset:{imm} sc1
            s_waitcnt vmcnt(0)
            v_readfirstlane_b32 s{t0_}, v{vreg}
            s_sub_u32 s{t1_}, s{t1_}, 1
            s_cbranch_scc1 {bk} ;@nottaken
            s_cmp_lt_u32 s{t0_}, {target}
            s_cbranch_scc1 {lp} ;@nottaken
            s_branch {bk}""")
        return L(f"""v_readfirstlane_b32 s{t0_}, v{vreg}
            s_nop 0
            s_cmp_lt_u32 s{t0_}, {target}
            s_cbranch_scc1 {st}
            {bk}:""")

def signal(srdb, soff, imm):
    return ([f"s_lshl_b32 s{t0_}, s{sW}, 30", f"v_lshl_add_u32 v1, v0, 24, s{t0_}"],
            f"buffer_atomic_add a{aONE}, v1, {srd(srdb)}, {soff} offen offset:{imm} sc1 ;@sig=wg")

def gemm12(g):
    p = g.p
    sCo, sWo, sXlo, sXhi, sXh, sBo, sLX, sLW, sLH, sKV, sPF = 70, 71, 72, 73, 74, 75, 76, 77, 78, 79, 80
    def fx(st, rb): return R("a", 20 * st + 4 * rb)
    def fw(cb): return R("a", 40 + 4 * cb)
    def aq(db, rb): return R("v", (vQ if db % 2 == 0 else 88) + 16 * rb + 4 * (db // 2))
    def bt(part, db, rb): return R("v", 152 + 32 * part + 8 * rb + 4 * db)
    def tile(k):
        cb, rb = k >> 2, k & 3
        if k >= 58: return R("a", 104 + 4 * (k - 58))
        if k >= 56: return R("v", 248 + 4 * (k - 56))
        return aq(cb, rb) if cb < 8 else bt((cb - 8) >> 1, cb & 1, rb)
    def stash(i): return R("a", 128 + 4 * i)
    end = "L_end"
    p(f"s_cmp_ge_u32 s2, 256\ns_cbranch_scc1 {end}")
    p("s_load_dwordx16 s[4:19], s[0:1], 0\ns_load_dwordx8 s[20:27], s[0:1], 64\ns_load_dwordx2 s[28:29], s[0:1], 96")
    if OPT["stamps"]: p("s_memtime s[96:97]\ns_memrealtime s[98:99]")
    p("s_getpc_b64 s[90:91]"); p.label("L_pc")
    p(f"""v_lshrrev_b32 v1, 6, v0
          s_lshr_b32 s{t1_}, s2, 3
          v_lshl_add_u32 v24, s{t1_}, 2, v1
          v_min_u32 v24, NCHUNK, v24
          v_and_b32 v25, 7, v0
          v_lshlrev_b32 v25, 7, v25
          v_lshl_add_u32 v24, v24, 10, v25
          global_load_dword a{aDUM}, v24, s[90:91] ;@dummy
          v_and_b32 v0, 63, v0
          v_readfirstlane_b32 s{sW}, v1 ;@val=wave
          v_lshrrev_b32 v24, 3, v0
          v_lshrrev_b32 v25, 4, v0
          v_and_b32 v26, 7, v0
          v_xor_b32 v26, v26, v25
          v_lshlrev_b32 v26, 4, v26
          v_lshl_add_u32 v{vGX}, v24, 10, v26
          v_xor_b32 v{vGX+1}, 64, v{vGX}
          v_bfe_u32 v26, v0, 1, 3
          v_xor_b32 v26, v26, v25
          v_lshlrev_b32 v26, 5, v26
          v_and_b32 v24, 1, v0
          v_lshl_add_u32 v26, v24, 4, v26
          v_lshl_add_u32 v{vGW}, v25, 13, v26
          v_xor_b32 v{vGW+1}, 128, v{vGW}
          s_and_b32 s{t0_}, s2, 7
          s_lshr_b32 s{t1_}, s2, 3
          s_and_b32 s{t2_}, s{t1_}, 3
          s_lshl2_add_u32 s{sH}, s{t0_}, s{t2_}
          s_lshr_b32 s{sJ}, s{t1_}, 2
          s_lshl2_add_u32 s{sPF}, s{t1_}, s{sW}
          s_lshl_b32 s{sCo}, s{sJ}, 18
          s_lshl_b32 s{t0_}, s{sW}, 16
          s_add_u32 s{sCo}, s{sCo}, s{t0_}
          s_lshl_b32 s{sWo}, s{sW}, 17
          s_lshl_b32 s{t0_}, s{sH}, 8
          s_add_u32 s{sWo}, s{sWo}, s{t0_}
          s_lshl_b32 s{sLX}, s{sW}, 13
          s_lshl_b32 s{sLW}, s{sW}, 12
          s_lshl_b32 s{sLH}, s{sW}, 10
          s_waitcnt lgkmcnt(0)""")
    p(mk_srd(SA, sC, 2 << 20) + mk_srd(SB, sWUK, 4 << 20) + mk_srd(SC, sWUV, 4 << 20))
    def xdma(sg):
        par = sg & 1; d = []
        for i in range(8):
            if sg < 8: so, sr = f"s_add_u32 s{sT}, s{sCo}, {sg*128 + i*8192}", SA
            else: so, sr = f"s_add_u32 s{sT}, s{sXlo if i < 4 else sXhi}, {(sg-8)*128 + ((i>>1)&1)*64*2048 + (i&1)*16384}", SE
            d.append(([f"s_add_u32 m0, s{sLX}, {par*32768 + i*1024}", so], f"buffer_load_dwordx4 v{vGX + (i&1)}, {srd(sr)}, s{sT} offen lds ;@tag=x{sg}"))
        return d
    def wdma(sg):
        par = sg & 1; d = []; B = 65536 + par * 32768
        for kv in range(2 if sg < 8 else 1):
            for i in range(4):
                st = sg if sg < 8 else sg - 8
                d.append(([f"s_add_u32 m0, s{sLW}, {B + kv*16384 + i*1024}", f"s_add_u32 s{sT}, s{sWo}, {st*64*8192 + i*32768}"],
                          f"buffer_load_dwordx4 v{vGW + (i>>1)}, {srd((SB, SC)[kv] if sg < 8 else SG)}, s{sT} offen lds ;@tag=w{sg}"))
        if sg >= 8:
            for pp in range(3):
                d.append(([f"s_add_u32 m0, s{sLH}, {B + 16384 + pp*4096}", f"s_add_u32 s{sT}, s{sBo}, {(sg-8)*64*6144 + pp*2048}"],
                          f"buffer_load_dwordx4 v{vGB}, {srd(SH)}, s{sT} offen lds ;@tag=w{sg}"))
            d.append(([f"s_add_u32 m0, s{sLH}, {B + 28672}", f"s_add_u32 s{sT}, s{sXh}, {(sg-8)*128}"],
                      f"buffer_load_dwordx4 v{vGH}, {srd(SE)}, s{sT} offen lds ;@tag=w{sg}"))
        return d
    seq = []
    for sal, d in xdma(0) + wdma(0): seq += sal + [d]
    seq += mk_srd(SD, sWS, 128 << 20) + mk_srd(SE, sX, 4 << 20) + mk_srd(SF, sDBG, 256) + mk_srd(SG, sWQ, 8 << 20) + mk_srd(SH, sWQKV, 6 << 20)
    seq += [f"v_accvgpr_write_b32 a{aONE}, 1"]
    if OPT["stamps"]: seq += ["v_mov_b32 v30, 0", "v_writelane_b32 v30, s96, 60", "v_writelane_b32 v30, s98, 61", "v_accvgpr_write_b32 a249, v30"] + stamp(0)
    seq += L(f"""v_and_b32 v24, 15, v0
          v_lshrrev_b32 v26, 1, v24
          v_xor_b32 v26, v26, v25
          v_lshlrev_b32 v26, 4, v26
          v_lshl_add_u32 v26, v24, 7, v26
          v_add_u32 v{vDX}, s{sLX}, v26
          v_xor_b32 v{vDX+1}, 64, v{vDX}
          v_bfe_u32 v24, v0, 2, 2
          v_lshl_add_u32 v27, v25, 3, v24
          v_and_b32 v1, 3, v0
          v_lshlrev_b32 v1, 3, v1
          v_lshl_add_u32 v26, v27, 8, v1
          v_add_u32 v26, 65536, v26
          v_and_b32 v1, 1, v25
          v_lshl_add_u32 v24, v1, 2, v24
          v_lshlrev_b32 v{vL16}, 4, v0""")
    for n in range(8): seq += [f"v_xor_b32 v1, {n}, v24", f"v_lshl_add_u32 v{vDQ+n}, v1, 5, v26"]
    seq += L(f"""s_sub_u32 s{sBHi}, 15, s{sJ}
          s_lshl_b32 s{sXlo}, s{sJ}, 18
          s_lshl_b32 s{sXhi}, s{sBHi}, 18
          s_cmp_lt_u32 s{sW}, 2
          s_cselect_b32 s{sXh}, s{sXlo}, s{sXhi}
          s_max_u32 s{sXh}, s{sXh}, 32768
          s_sub_u32 s{sXh}, s{sXh}, 32768
          s_and_b32 s{t0_}, s{sW}, 1
          s_lshl_b32 s{t0_}, s{t0_}, 14
          s_add_u32 s{sXh}, s{sXh}, s{t0_}
          s_lshl_b32 s{t0_}, s{sW}, 15
          s_add_u32 s{sXlo}, s{sXlo}, s{t0_}
          s_add_u32 s{sXhi}, s{sXhi}, s{t0_}
          s_mul_i32 s{sBo}, s{sW}, {16*6144}
          s_lshl_b32 s{t0_}, s{sH}, 6
          s_add_u32 s{sBo}, s{sBo}, s{t0_}
          s_lshl_b32 s{sKV}, s{sH}, 20
          s_lshl_b32 s{t0_}, s{sJ}, 17
          s_add_u32 s{sKV}, s{sKV}, s{t0_}
          s_lshl_b32 s{t0_}, s{sW}, 15
          s_add_u32 s{sKV}, s{sKV}, s{t0_}""")
    def xread(sg, s): return [f"ds_read_b128 {fx(s, rb)}, v{vDX+s} offset:{(sg&1)*32768 + rb*2048}" for rb in range(4)]
    def hread(sg, s): return f"ds_read_b128 {fx(s, 4)}, v{vDH+s} offset:{(sg&1)*32768}"
    def wread(sg, s, cb):
        par = sg & 1; o = []
        for i in range(2):
            if sg < 8 or cb < 8: a, off = vDQ + (cb & 7), par*32768 + (cb >> 3)*16384 + s*8192 + i*1024
            elif cb < 14: a, off = vDB + (cb & 1), par*32768 + ((cb-8) >> 1)*4096 + s*2048 + i*256
            else: a, off = vDBH, par*32768 + (cb-13)*4096 + s*2048 + i*256
            o.append(f"ds_read_b64_tr_b16 {fw(cb)[2*i:2*i+2]}, v{a} offset:{off}")
        return o
    for sal, d in xdma(1) + wdma(1): seq += sal + [d]
    seq += ["WAITVM w0", "s_barrier"] + stamp(1) + xread(0, 0)
    for cb in range(16): seq += wread(0, 0, cb)
    g.emit(seq)
    def nsub(sg): return 64 if sg < 8 else 58
    def first(sg, cb): return 4*cb if (sg < 8 or cb < 14) else 56 + (cb - 14)
    def last(sg, cb): return 4*cb + 3 if (sg < 8 or cb < 14) else 56 + (cb - 14)
    mf = []; G0 = []
    for sg in range(24):
        G0.append(len(mf))
        for s in range(2):
            c0 = 0 if (s == 0 and sg in (0, 8)) else None
            for k in range(nsub(sg)):
                cb, rb = (k >> 2, k & 3) if k < 56 or sg < 8 else (k - 42, 4)
                swap = clean = (cb >= 8) if sg < 8 else (cb in (12, 13, 15))
                mf.append(mfma(tile(k), fx(s, rb), fw(cb), c0) if swap else mfma(tile(k), fw(cb), fx(s, rb), c0))
    G0.append(len(mf))
    S = Sched(mf); BO = 8
    def pace(items, lo, hi, chain, slack=6):
        n = len(items)
        for q, (sal, d) in enumerate(items):
            x = lo + int(q * (hi - lo) / n)
            it = S.add("M", d, x, x + slack, chain=chain, sep=3, pre=sal)
            if q == 0: it["prelo"] = lo - 2
    BAR = {}
    for sg in range(24):
        g0, n = G0[sg], nsub(sg); B = g0 + n + BO; BAR[sg] = B; nx = G0[sg + 1]
        for q, r in enumerate(xread(sg, 1)): S.add("D", r, g0, g0 + 5 + q, chain=("x", sg))
        if sg >= 8: S.add("D", hread(sg, 1), g0, g0 + n - 6)
        for cb in range(16):
            lo = g0 + last(sg, cb)
            for r in wread(sg, 1, cb): S.add("T", r, lo, min(lo + 14, B - 5), chain=("w", sg, cb))
        blk = [f"WAITVM w{sg+1} L", "s_barrier"]
        if sg == 7: blk += stamp(2)
        if OPT.get("fine") and sg in (0, 1, 2, 3, 4, 5, 9, 11, 13, 15, 17, 19): blk += stamp(18 + (0, 1, 2, 3, 4, 5, 9, 11, 13, 15, 17, 19).index(sg))
        S.add("X", blk, B, B)
        if sg < 23:
            for cb in range(16):
                lo = max(B + 1, g0 + n + last(sg, cb))
                for r in wread(sg + 1, 0, cb): S.add("T", r, lo, min(lo + 24, nx + first(sg + 1, cb) - 8), chain=("w", sg, cb))
            for r in xread(sg + 1, 0): S.add("D", r, B + 1, nx - 10)
            if sg + 1 >= 8: S.add("D", hread(sg + 1, 0), B + 1, nx + 20)
        if sg + 2 < 24:
            S.add("S", f"USE {fx(1, 3)}", g0 + 13, g0 + 13, chain="dma")
            pace(xdma(sg + 2), g0 + 15, B - 2, "dma")
            pace(wdma(sg + 2), B + 3, nx + 8, "dma", slack=4)
    a0, a1, a2, a3, acc = 18, 19, 20, 21, 17
    ch = [f"v_mov_b32 v{acc}, 0"]
    for i in range(16):
        ch += L(f"""v_accvgpr_read_b32 v{a1}, a{128+i}
            v_accvgpr_read_b32 v{a3}, a{144+i}
            v_lshlrev_b32 v{a0}, 16, v{a1}
            v_and_b32 v{a1}, 0xffff0000, v{a1}
            v_lshlrev_b32 v{a2}, 16, v{a3}
            v_and_b32 v{a3}, 0xffff0000, v{a3}
            v_mul_f32 v{a0}, v{a0}, v{a2}
            v_mul_f32 v{a1}, v{a1}, v{a3}
            v_cvt_pk_bf16_f32 v{a0}, v{a0}, v{a1}
            v_lshlrev_b32 v{a1}, 16, v{a0}
            v_and_b32 v{a0}, 0xffff0000, v{a0}
            v_add_f32 v{acc}, v{acc}, v{a1}
            v_add_f32 v{acc}, v{acc}, v{a0}""")
    lo = G0[1] + 8
    for c in L(f"""s_lshl_b32 s{t2_}, s2, 3
          s_lshl1_add_u32 s{t2_}, s{sW}, s{t2_}
          v_lshrrev_b32 v18, 5, v0
          v_add_u32 v18, s{t2_}, v18
          v_and_b32 v19, 31, v0
          v_lshlrev_b32 v19, 4, v19
          v_lshl_add_u32 v18, v18, 11, v19"""): S.add("S" if c.startswith("s_") else "A", c, lo - 20, chain="gate", sep=1)
    for i in range(4): S.add("M", f"global_load_dwordx4 a[{128+4*i}:{131+4*i}], v18, s[{sX}:{sX+1}] offset:{512*i}", lo, BAR[1] - 2, chain="gate", sep=4)
    for i in range(4): S.add("M", f"global_load_dwordx4 a[{144+4*i}:{147+4*i}], v19, s[{sGATE}:{sGATE+1}] offset:{512*i}", lo, BAR[1] - 2, chain="gate", sep=4)
    lo = G0[2] + 8
    for c in L(f"""v_mov_b32 v19, 0
          v_min_u32 v18, 1, v0
          v_lshlrev_b32 v18, 30, v18
          s_lshl2_add_u32 s{t2_}, s2, s{sW}
          s_lshl_b32 s{t2_}, s{t2_}, 6
          s_add_u32 s{t2_}, s{t2_}, {WS_INBOX}
          s_and_b32 s{t3_}, s2, 15
          s_lshl_b32 s{t3_}, s{t3_}, 8
          s_add_u32 s{t3_}, s{t3_}, {WS_CNT}"""): S.add("S" if c.startswith("s_") else "A", c, lo - 20, chain="gate", sep=1)
    S.add("M", f"buffer_store_dword v19, v18, {srd(SD)}, s{t2_} offen {ST}", lo, chain="gate", sep=1)
    S.add("M", f"buffer_store_dword v19, v18, {srd(SD)}, s{t3_} offen {ST}", lo, BAR[2] - 2, chain="gate", sep=1)
    lo = BAR[2] + 2
    for c in ch: S.add("A", c, lo, chain="gate")
    for r in (8, 4, 2, 1): S.add("A", f"v_add_f32_dpp v{acc}, v{acc}, v{acc} row_ror:{r} row_mask:0xf bank_mask:0xf", lo, chain="gate", sep=2)
    S.add("A", f"v_mov_b32 v{a0}, v{acc}", lo, chain="gate")
    S.add("A", f"v_permlane16_swap_b32 v{a0}, v{acc}", lo, chain="gate", sep=2)
    for c in L(f"""v_add_f32 v{acc}, v{acc}, v{a0}
            v_cvt_pk_bf16_f32 v{acc}, v{acc}, v{acc}
            v_and_b32 v{acc}, 0xffff0000, v{acc}
            v_mul_f32 v{acc}, 0xbfb8aa3b, v{acc}
            v_exp_f32 v{acc}, v{acc}
            v_add_f32 v{acc}, 1.0, v{acc}
            v_rcp_f32 v{acc}, v{acc}
            v_cvt_pk_bf16_f32 v{a0}, v{acc}, v{acc}
            v_and_b32 v{a0}, 0xffff0000, v{a0}
            v_sub_f32 v{a1}, 1.0, v{a0}
            v_cvt_pk_bf16_f32 v{a1}, v{a1}, v{a1}
            v_and_b32 v{a1}, 0xffff0000, v{a1}
            v_and_b32 v{a2}, 31, v0
            v_lshlrev_b32 v{a2}, 27, v{a2}
            v_lshrrev_b32 v{a3}, 2, v0
            v_add_u32 v{a2}, v{a2}, v{a3}"""):
        S.add("E" if c.startswith(("v_exp", "v_rcp")) else "A", c, lo, chain="gate", sep=1)
    S.add("M", f"buffer_store_dwordx2 v[{a0}:{a1}], v{a2}, {srd(SD)}, s{sT2} offen {ST}", lo, G0[5] + 20, chain="gate", sep=4,
          pre=[f"s_lshl2_add_u32 s{sT2}, s2, s{sW}", f"s_lshl4_add_u32 s{sT2}, s{sT2}, {WS_G}"])
    lo = G0[5]
    ch = L(f"""v_bfe_u32 v{vGB}, v0, 1, 1
          v_lshrrev_b32 v1, 5, v0
          v_xor_b32 v{vGB}, v{vGB}, v1
          v_lshlrev_b32 v{vGB}, 5, v{vGB}
          v_and_b32 v1, 1, v0
          v_lshl_add_u32 v{vGB}, v1, 4, v{vGB}
          v_lshrrev_b32 v1, 2, v0
          v_mul_u32_u24 v1, 6144, v1
          v_add_u32 v{vGB}, v1, v{vGB}
          s_lshr_b32 s{t0_}, s{sW}, 1
          s_lshl_b32 s{t0_}, s{t0_}, 11
          s_add_u32 s{t0_}, s{t0_}, {65536 + 28672}
          s_sub_u32 s{t0_}, s{t0_}, s{sLX}
          v_add_u32 v{vDH}, s{t0_}, v{vDX}
          v_xor_b32 v{vDH+1}, 64, v{vDH}
          v_lshrrev_b32 v1, 4, v0
          v_bfe_u32 v{vDB}, v0, 2, 2
          v_lshl_add_u32 v{vDB}, v1, 3, v{vDB}
          v_lshlrev_b32 v{vDB}, 6, v{vDB}
          v_and_b32 v1, 1, v1
          v_lshl_add_u32 v{vDB}, v1, 5, v{vDB}
          v_and_b32 v1, 3, v0
          v_lshl_add_u32 v{vDB}, v1, 3, v{vDB}
          v_add_u32 v{vDB}, {65536 + 16384}, v{vDB}
          v_xor_b32 v{vDB+1}, 32, v{vDB}
          s_and_b32 s{t0_}, s{sW}, 1
          s_lshl_b32 s{t1_}, s{t0_}, 5
          v_xor_b32 v{vDBH}, s{t1_}, v{vDB}
          s_lshl_b32 s{t1_}, s{t0_}, 6
          v_lshrrev_b32 v1, 3, v0""")
    for c in ch: S.add("S" if c.startswith("s_") else "A", c, lo, chain="gate", sep=1)
    for c in L(f"""v_lshl_add_u32 v{vGX}, v1, 10, v{vGX}
          v_xor_b32 v{vGX+1}, 64, v{vGX}
          v_xor_b32 v{vGH}, s{t1_}, v{vGX}"""):
        S.add("A", c, BAR[5] + 6, G0[6] + 6, chain="gate")
    pf = []
    def pfi(lo, lanes, rowsh, lg_per_row, srdb, so):
        pre = [f"v_and_b32 v22, {(1 << lg_per_row) - 1}, v0", "v_lshlrev_b32 v22, 7, v22"]
        if lg_per_row < 6: pre += [f"v_lshrrev_b32 v23, {lg_per_row}, v0", f"v_lshl_add_u32 v22, v23, {rowsh}, v22"]
        if lanes < 64: pre += [f"v_subrev_u32 v23, {lanes}, v0", "v_not_b32 v23, v23", "v_and_b32 v23, 0x80000000, v23", "v_or_b32 v22, v22, v23"]
        pf.append((lo, pre + L(so), f"buffer_load_dword a{aDUM}, v22, {srd(srdb)}, s{t0_} offen ;@dummy"))
    gw = f"s_lshl2_add_u32 s{t0_}, s2, s{sW}"
    def xc(sh): return f"s_and_b32 s{t1_}, s2, 7\ns_lshl_b32 s{t1_}, s{t1_}, {sh}\ns_add_u32 s{t0_}, s{t0_}, s{t1_}"
    PL = OPT.get("pl", 0)
    pfi(PL, 16, 0, 6, SA, f"{gw}\ns_lshl_b32 s{t0_}, s{t0_}, 11")
    pfi(PL, 32, 13, 3, SB, f"s_lshl_b32 s{t0_}, s{sPF}, 15\n" + xc(10))
    pfi(PL, 32, 13, 3, SC, f"s_lshl_b32 s{t0_}, s{sPF}, 15\n" + xc(10))
    pfi(G0[1] + 8, 32, 0, 6, SE, f"{gw}\ns_lshl_b32 s{t0_}, s{t0_}, 12")
    pfi(G0[2] + 8, 32, 13, 3, SG, f"s_lshl_b32 s{t0_}, s{sPF}, 15\n" + xc(10))
    pfi(G0[3] + 8, 24, 11, 1, SH, f"s_mul_i32 s{t0_}, s{sPF}, 24576\n" + xc(8))
    pfi(G0[3] + 72, 32, 13, 3, SG, f"s_lshl_b32 s{t0_}, s{sPF}, 15\ns_add_u32 s{t0_}, s{t0_}, {4<<20}\n" + xc(10))
    pfi(G0[4] + 8, 24, 11, 1, SH, f"s_mul_i32 s{t0_}, s{sPF}, 24576\ns_add_u32 s{t0_}, s{t0_}, {3<<20}\n" + xc(8))
    if not OPT.get("nopf"):
        for lo, pre, d in pf:
            for c in pre: S.add("S" if c.startswith("s_") else "A", c, max(lo - 20, 0), chain="pf")
            S.add("M", d, lo, lo + 50, chain="pf", sep=1)
    e0 = G0[7] + 64; n0 = G0[8]
    frs = []
    for t in range(4):
        for rb in range(4): frs.append((8*t + rb, 8*t + 4 + rb, (rb >> 1)*16384 + (rb & 1)*4096 + t*1024))
    for db in range(8):
        for u in range(2): frs.append((32 + 4*db + 2*u, 33 + 4*db + 2*u, u*16384 + 8192 + db*1024))
    NDIRECT = 8; ns = 0; later = []
    tmpA, tmpB = tile(54), tile(56)
    for q, (ka, kb, off) in enumerate(frs):
        A, B_ = tile(ka), tile(kb); lo = e0 + kb + 8; hi = n0 + ka - 1; hi2 = n0 + kb - 3
        ch = ("drain",)
        if A.f == "a":
            hi = hi2 = n0 + 52
            for r in range(4): S.add("A", f"v_accvgpr_read_b32 {tmpA[r]}, {A[r]}", lo, hi, chain=ch)
            for r in range(4): S.add("A", f"v_accvgpr_read_b32 {tmpB[r]}, {B_[r]}", lo, hi, chain=ch)
            A, B_ = tmpA, tmpB
        for c in (f"v_cvt_pk_bf16_f32 {B_[3]}, {B_[2]}, {B_[3]}", f"v_cvt_pk_bf16_f32 {B_[2]}, {B_[0]}, {B_[1]}",
                  f"v_cvt_pk_bf16_f32 {B_[0]}, {A[0]}, {A[1]}", f"v_cvt_pk_bf16_f32 {B_[1]}, {A[2]}, {A[3]}"):
            S.add("A", c, lo, hi, chain=ch)
        if q % 4 == 0:
            S.add("M", f"buffer_store_dwordx4 {B_}, v{vL16}, {srd(SD)}, s{sT2} offen {ST} ;@tag=kv", lo, hi2, chain=ch, sep=1)
            S.chains[ch].insert(len(S.chains[ch]) - 5, dict(kind="S", text=[f"s_add_u32 s{sT2}, s{sKV}, {off}"], lo=lo - 2, hi=hi, sep=0, pre=[], g=None))
        else:
            for r in range(4): S.add("A", f"v_accvgpr_write_b32 {stash(ns)[r]}, {B_[r]}", lo, hi2, chain=ch)
            later.append((ns, off)); ns += 1
    assert ns == 24
    for q, (i, off) in enumerate(later):
        sg = 9 + q // 3
        lo = G0[sg] + 4 + (q % 3) * 20
        S.add("M", f"buffer_store_dwordx4 {stash(i)}, v{vL16}, {srd(SD)}, s{sT2} offen {ST} ;@tag=kv", lo, lo + 12, chain="kvst", sep=3,
              pre=[f"s_add_u32 s{sT2}, s{sKV}, {off}"])
    pre, d = signal(SF, 0, 0)
    S.add("S", pre[0], BAR[17] + 1, chain="sig"); S.add("A", pre[1], BAR[17] + 1, chain="sig", sep=1)
    S.add("M", d, BAR[17] + 1, BAR[17] + 12, chain="sig", sep=1)
    S.add("M", f"buffer_load_dword v1, off, {srd(SF)}, 0 sc1", BAR[21] - 12, BAR[21] - 2, chain="sig")
    S.add("X", g.spin(1, SF, 0, 0, 256), BAR[22] + 1, BAR[22] + 1, chain="sig")
    for c in L(f"""s_lshl_b32 s{t2_}, s{sH}, 20
          s_add_u32 s{SA}, s{sWS}, s{t2_}
          s_addc_u32 s{SA+1}, s{sWS+1}, 0"""): pass
    S.add("X", L(f"""s_lshl_b32 s{t2_}, s{sH}, 20
          s_add_u32 s{SA}, s{sWS}, s{t2_}
          s_addc_u32 s{SA+1}, s{sWS+1}, 0"""), G0[22], G0[22] + 30, chain="sa")
    S.add("X", L(f"""s_add_u32 s{t2_}, s{sBHi}, 1
          s_lshl_b32 s{SA+2}, s{t2_}, 16"""), G0[22], G0[22] + 40, chain="sa")
    pace(att_first_dmas(sLX), BAR[22] + 5, BAR[22] + 5 + 12 * 6, "dma")
    lo = BAR[23] + 1
    for c in L(f"""v_and_b32 v12, 15, v0
          v_lshlrev_b32 v12, 3, v12
          s_lshl_b32 s{t0_}, s{sW}, 7
          s_add_u32 s{t0_}, s{t0_}, {WS_G}
          s_lshl_b32 s{t1_}, s{sJ}, 10
          s_add_u32 s{t1_}, s{t1_}, s{t0_}
          s_lshl_b32 s{t2_}, s{sBHi}, 10
          s_add_u32 s{t2_}, s{t2_}, s{t0_}"""): S.add("S" if c.startswith("s_") else "A", c, lo, chain="g", sep=1)
    for rb in range(4):
        S.add("M", f"buffer_load_dwordx2 v[{vG+2*rb}:{vG+2*rb+1}], v12, {srd(SD)}, s{t1_ + (rb>>1)} offen offset:{(rb&1)*512} sc1", lo, chain="g", sep=1)
    g.emit(S.run("gemm12"), eager=10)
    g.emit(stamp(5))
    local_attention(g, aq, bt)

def att_first_dmas(sLX):
    d = []
    for k in range(8):
        sal = []
        if k == 0: sal = [f"s_mov_b32 m0, s{sLX}", f"s_lshl_b32 s{sT}, s{sW}, 14"]
        if k == 4: sal = [f"s_add_u32 m0, s{sLX}, 4096", f"s_add_u32 s{sT}, s{sT}, 4096"]
        d.append((sal, f"buffer_load_dwordx4 v{vL16}, {srd(SA)}, s{sT} offen offset:{(k&3)*1024} sc1 lds ;@tag=k0"))
    for k in range(4):
        sal = []
        if k == 0: sal = [f"s_lshr_b32 s{sT}, s{sLX}, 1", f"s_add_u32 m0, s{sT}, {65536 + 16384}", f"s_and_b32 s{t3_}, s{sT}, 8192",
                          f"s_add_u32 s{sT}, s{sT}, s{t3_}", f"s_add_u32 s{sT}, s{sT}, 8192"]
        d.append((sal, f"buffer_load_dwordx4 v{vL16}, {srd(SA)}, s{sT} offen offset:{k*1024} sc1 lds ;@tag=v0"))
    return d

def local_attention(g, aq, bt):
    q = []
    def e(s): q.extend(L(s))
    hk, hv = R("v", 248), R("v", 252)
    def pk(d, a, b): e(f"v_cvt_pk_bf16_f32 {d}, {a}, {b}")
    if not OPT.get("nopf"):
        e(f"""v_lshlrev_b32 v19, 7, v0
              s_lshl2_add_u32 s{t0_}, s2, s{sW}
              s_lshl_b32 s{t1_}, s{t0_}, 13
              v_add_u32 v18, s{t1_}, v19
              global_load_dword a{aDUM}, v18, s[{sWOA}:{sWOA+1}] ;@dummy
              v_and_b32 v19, 0x7ff, v19
              s_lshl_b32 s{t1_}, s{t0_}, 11
              v_add_u32 v18, s{t1_}, v19
              global_load_dword a{aDUM}, v18, s[{sWOB}:{sWOB+1}] ;@dummy""")
    e(f"s_mov_b32 s{t0_}, {f32(QSCALE)}\ns_mov_b32 s{t1_}, s{t0_}")
    for rb in range(4):
        for t in range(4):
            a, b = aq(2*t, rb), aq(2*t+1, rb)
            for r in (a, b): e(f"v_pk_mul_f32 {r[0:2]}, {r[0:2]}, s[{t0_}:{t1_}]\nv_pk_mul_f32 {r[2:4]}, {r[2:4]}, s[{t0_}:{t1_}]")
            pk(a[0], a[0], a[1]); pk(a[1], a[2], a[3]); pk(a[2], b[0], b[1]); pk(a[3], b[2], b[3])
    def VB(rb, db): return R("v", 88 + 8*rb + 4*db)
    def kprev(rb): return R("v", 120 + 4*rb)
    e(f"""s_lshl_b32 s{t0_}, s{sW}, 11
          s_add_u32 s{t0_}, s{t0_}, 32768
          v_add_u32 v17, s{t0_}, v{vL16}
          v_add_u32 v18, 0x10000, v17
          s_lshr_b32 s{t0_}, s{sW}, 1
          s_lshl_b32 s{t0_}, s{t0_}, 16
          s_and_b32 s{t1_}, s{sW}, 1
          s_lshl3_add_u32 s{t0_}, s{t1_}, s{t0_}
          s_add_u32 s{t0_}, s{t0_}, 32768
          v_add_u32 v19, s{t0_}, v{vL16}""")
    for rb in range(4):
        a, b = bt(1, 0, rb), bt(1, 1, rb)
        pk(a[0], a[0], a[1]); pk(a[1], a[2], a[3]); pk(a[2], b[0], b[1]); pk(a[3], b[2], b[3])
        e(f"ds_write_b128 v{17 + (rb>>1)}, {a} offset:{(rb&1)*8192 + 2048}")
        for db in range(2):
            a = bt(2, db, rb); d = VB(rb, db)
            pk(d[2], a[0], a[1]); pk(d[3], a[2], a[3])
            e(f"ds_write_b64 v{17 + (rb>>1)}, {d[2:4]} offset:{(rb&1)*8192 + 2048 + 1024 + db*8}")
    pk(hk[0], hk[0], hk[1]); pk(hk[1], hk[2], hk[3]); pk(hv[0], hv[0], hv[1]); pk(hv[1], hv[2], hv[3])
    e(f"ds_write_b64 v19, {hk[0:2]}\nds_write_b64 v19, {hv[0:2]} offset:1024")
    for rb in range(4):
        a, b = bt(0, 0, rb), bt(0, 1, rb)
        pk(a[0], a[0], a[1]); pk(a[1], a[2], a[3]); pk(a[2], b[0], b[1]); pk(a[3], b[2], b[3])
    mP, mO, mP0 = R("v", 136), R("v", 140), R("v", 144)
    e(f"""v_and_b32 v20, 15, v0
          v_lshrrev_b32 v21, 4, v0
          v_lshlrev_b32 v21, 2, v21
          v_sub_u32 v20, v20, v21
          v_mov_b32 v21, 0xff800000
          s_or_b32 s{t0_}, s{sJ}, s{sW}
          s_cmp_eq_u32 s{t0_}, 0
          s_cselect_b32 s{t0_}, 0xff800000, 0""")
    for r in range(4):
        e(f"""v_subrev_u32 v22, {r}, v20
              v_and_b32 v23, 0x80000001, v22
              v_cmp_eq_u32 vcc, 0, v23
              v_xor_b32 v22, 0x80000000, v23
              v_cmp_eq_u32 s[{t2_}:{t3_}], 0, v22
              v_cndmask_b32 {mO[r]}, v21, v23, vcc
              s_nop 0
              v_cndmask_b32 {mP[r]}, v21, v22, s[{t2_}:{t3_}]
              v_or_b32 {mP0[r]}, s{t0_}, {mP[r]}""")
    e(f"""v_and_b32 v22, 3, v0
          v_cmp_eq_u32 vcc, 0, v22
          v_mov_b32 v23, 0x3f803f80
          v_mov_b32 v22, 0
          v_cndmask_b32 v{vONE}, v22, v23, vcc
          v_mov_b32 v{vONE+1}, v{vONE}
          v_mov_b32 v{vONE+2}, v{vONE}
          v_mov_b32 v{vONE+3}, v{vONE}
          s_waitcnt lgkmcnt(0)
          s_barrier""")
    for rb in range(4): e(f"ds_read_b128 {kprev(rb)}, v{17 + (rb>>1)} offset:{(rb&1)*8192}")
    for rb in range(4):
        for db in range(2): e(f"ds_read_b64 {VB(rb, db)[0:2]}, v{17 + (rb>>1)} offset:{(rb&1)*8192 + 1024 + db*8}")
    def Sp(rb): return R("v", 216 + 8*rb)
    def So(rb): return R("v", 220 + 8*rb)
    for rb in range(4): e(mfma(So(rb), bt(1, 0, rb), bt(0, 0, rb), mO))
    for rb in range(4): e(mfma(Sp(rb), kprev(rb), bt(0, 0, rb), mP0 if rb == 0 else mP))
    mx, mc = 148, 20
    e(f"s_mov_b32 s{t0_}, {f32(BSCALE)}\ns_nop 1")
    for rb in range(4):
        b = So(rb); e(f"v_max3_f32 v{mx+rb}, {b[0]}, {b[1]}, {b[2]}")
    for rb in range(4):
        a, b = Sp(rb), So(rb)
        e(f"v_max3_f32 v{mx+rb}, v{mx+rb}, {b[3]}, {a[0]}\nv_max3_f32 v{mx+rb}, v{mx+rb}, {a[1]}, {a[2]}\nv_max_f32 v{mx+rb}, v{mx+rb}, {a[3]}")
    for op in ("v_permlane16_swap_b32", "v_permlane32_swap_b32"):
        for rb in range(4): e(f"v_mov_b32 v{mc+rb}, v{mx+rb}")
        for rb in range(4): e(f"{op} v{mc+rb}, v{mx+rb}")
        for rb in range(4): e(f"v_max_f32 v{mx+rb}, v{mx+rb}, v{mc+rb}")
    for rb in range(4): e(f"v_mul_f32 v{mx+rb}, s{t0_}, v{mx+rb}")
    for rb in range(4):
        for k in range(8): e(f"v_fma_f32 v{216+8*rb+k}, v{216+8*rb+k}, s{t0_}, -v{mx+rb}")
        for k in range(8): e(f"v_exp_f32 v{216+8*rb+k}, v{216+8*rb+k}")
    for rb in range(4):
        a, b = Sp(rb), So(rb)
        pk(a[0], a[0], a[1]); pk(a[1], a[2], a[3]); pk(a[2], b[0], b[1]); pk(a[3], b[2], b[3])
    for rb in range(4):
        e(mfma(So(rb), R("v", vONE), Sp(rb), 0))
        for db in range(2): e(mfma(bt(db, 1, rb), VB(rb, db), Sp(rb), 0))
    e(f"""s_add_u32 s{t0_}, s{sH}, 128
          s_lshl_b32 s{t0_}, s{t0_}, 13
          s_lshl_b32 s{t1_}, s{sW}, 10
          s_add_u32 s{t0_}, s{t0_}, s{t1_}
          s_add_u32 s{t0_}, s{t0_}, {WS_CTX}
          s_mul_i32 s{t1_}, s{sJ}, {160*8192}
          s_add_u32 s{t1_}, s{t1_}, s{t0_}
          s_mul_i32 s{t2_}, s{sBHi}, {160*8192}
          s_add_u32 s{t2_}, s{t2_}, s{t0_}""")
    for rb in range(4): e(f"v_rcp_f32 v{mx+rb}, {So(rb)[0]}")
    for rb in range(4): e(f"v_mul_f32 v{mx+rb}, v{mx+rb}, v{vG+2*rb+1}")
    for rb in range(4):
        a, b = bt(0, 1, rb), bt(1, 1, rb)
        for r in (a, b):
            for k in range(4): e(f"v_mul_f32 {r[k]}, {r[k]}, v{mx+rb}")
        pk(a[0], a[0], a[1]); pk(a[1], a[2], a[3]); pk(a[2], b[0], b[1]); pk(a[3], b[2], b[3])
        if rb & 1: e(f"s_add_u32 s{t1_ + (rb>>1)}, s{t1_ + (rb>>1)}, 4096")
        e(f"buffer_store_dwordx4 {a}, v{vL16}, {srd(SD)}, s{t1_ + (rb>>1)} offen {ST} ;@tag=ob")
    g.emit(q)

RA = 6
sR5, sKh, sCtx, sWo5, sL5, sCol = 82, 83, 84, 85, 86, 87
vG5 = 17
def p5_ctx(slot, ks, rb): return R("v", (224, 240, 192, 208)[slot & 3] + 8*ks + 4*rb)
def p5_lds(tau): return (131072, 147456, 98304, 114688, 65536, 81920, 32768, 49152)[tau & 7]
def p5_wdma(tau, rel):
    return [([f"s_add_u32 m0, s{sL5}, {p5_lds(tau) + i*1024}", f"s_add_u32 s{sT}, s{sWo5}, {rel*131072 + i*8192}"],
             f"buffer_load_dwordx4 v{vG5 + (i&1)}, {srd(SB if tau < 8 else SC)}, s{sT} offen lds ;@tag=w5_{tau&7}") for i in range(4)]
def p5_cld(tau, rel):
    o = []
    for ks in range(2):
        for rb in range(2):
            o.append(([f"s_add_u32 s{sT2}, s{sCtx}, {rel*16384 + ks*8192}"] if rb == 0 else [],
                      f"buffer_load_dwordx4 {p5_ctx(tau, ks, rb)}, v{vL16}, {srd(SD)}, s{sT2} offen offset:{rb*1024} sc1"))
    return o
def p5_setup():
    return L(f"""s_and_b32 s{t0_}, s2, 7
          s_lshr_b32 s{t1_}, s2, 3
          s_lshr_b32 s{sKh}, s{t0_}, 2
          s_and_b32 s{t2_}, s{t0_}, 1
          s_and_b32 s{t3_}, s{t1_}, 7
          s_lshl3_add_u32 s{sR5}, s{t2_}, s{t3_}
          s_and_b32 s{t2_}, s{t0_}, 2
          s_lshr_b32 s{t3_}, s{t1_}, 3
          s_lshl1_add_u32 s{sCol}, s{t2_}, s{t3_}
          s_lshl_b32 s{sCol}, s{sCol}, 8
          s_lshl_b32 s{sL5}, s{sW}, 12
          s_lshl_b32 s{sWo5}, s{sW}, 15
          s_add_u32 s{sWo5}, s{sWo5}, s{sCol}
          s_lshl_b32 s{t0_}, s{sKh}, 20
          s_add_u32 s{sWo5}, s{sWo5}, s{t0_}
          s_mul_i32 s{sCtx}, s{sR5}, {160*8192}
          s_lshl_b32 s{t0_}, s{sW}, 11
          s_add_u32 s{sCtx}, s{sCtx}, s{t0_}
          s_lshl_b32 s{t0_}, s{sKh}, 17
          s_add_u32 s{sCtx}, s{sCtx}, s{t0_}
          s_add_u32 s{sCtx}, s{sCtx}, {WS_CTX + 128*8192}
          s_mov_b32 s{SB}, s{sWOB}
          s_mov_b32 s{SB+1}, s{sWOB+1}
          s_mov_b32 s{SB+2}, {2<<20}
          s_mov_b32 s{SC}, s{sWOA}
          s_mov_b32 s{SC+1}, s{sWOA+1}
          s_mov_b32 s{SC+2}, {8<<20}
          v_lshrrev_b32 v19, 4, v0
          v_bfe_u32 v{vG5}, v0, 1, 3
          v_xor_b32 v{vG5}, v{vG5}, v19
          v_lshlrev_b32 v{vG5}, 5, v{vG5}
          v_lshl_add_u32 v{vG5}, v19, 11, v{vG5}
          v_and_b32 v19, 1, v0
          v_lshl_add_u32 v{vG5}, v19, 4, v{vG5}
          v_xor_b32 v{vG5+1}, 128, v{vG5}""")

def attention(g):
    p = g.p
    vDK, vDV = 2, 3
    sSrc, sM0, sCnt, sFB, sLX, sCb = 70, 71, 72, 73, 76, 74
    def Q(qb, t): return R("v", vQ + 16*qb + 4*t)
    def S_(b, kb, qb): return R("v", 88 + 32*b + 8*qb + 4*kb)
    def Pp(b, qb): return R("v", 152 + 16*b + 4*qb)
    def NM(qb): return R("v", 184 + 4*qb)
    def MK(kbg): return R("v", 200 + 4*kbg)
    def CD(kb): return R("v", 216 + 4*kb)
    def O(db, qb): return R("a", 32*qb + 4*db)
    def Lr(qb): return R("a", 128 + 4*qb)
    def F(f): return R("a", 144 + 4*f)
    mx, mc, vBad = 20, 224, 1
    def rd(f, i): return f"ds_read_b128 {F(f)}, v{vDV if f >= 8 else vDK} offset:{i*8192 + (f & 7)*1024}"
    def dma(k, tag):
        sal = []
        if k == 0: sal = [f"s_mov_b32 m0, s{sM0}"]
        if k == 4: sal = [f"s_add_u32 m0, s{sM0}, 4096", f"s_add_u32 s{sT}, s{sSrc}, 4096"]
        return sal, f"buffer_load_dwordx4 v{vL16}, {srd(SA)}, s{sSrc if k < 4 else sT} offen offset:{(k&3)*1024} sc1 lds ;@tag={tag}"
    def act(st, uu, base):
        if st == "full" or (st == "diag" and uu < 2): return (base, base + 1)
        if st == "diag": return (base + 1,)
        return ()
    def acts(sts, uu): return act(sts[0], uu, 0) + act(sts[1], uu, 2)
    def masked(sts, uu):
        for b, st in enumerate(sts):
            if st == "diag": return 2*b + (uu >> 1)
        return None
    def cdcalc(sts, uu):
        qb = masked(sts, uu)
        if qb is None: return []
        return [f"v_add_f32 {CD(kb)[r]}, {NM(qb)[0]}, {MK(2*(uu & 1) + kb)[r]}" for kb in range(2) for r in range(4)]
    def epi(qbs, tmpb):
        o = []
        for qb in qbs: o.append(f"v_accvgpr_read_b32 v{mx+qb}, {Lr(qb)[0]}")
        o.append(f"v_max3_f32 v{vBad}, v{vBad}, v{mx+qbs[0]}, v{mx+qbs[1]}")
        for qb in qbs: o.append(f"v_rcp_f32 v{mx+qb}, v{mx+qb}")
        o.append("s_nop 0")
        for qb in qbs: o.append(f"v_mul_f32 v{mx+qb}, v{mx+qb}, v{vG+2*qb}")
        k = 0
        for qb in qbs:
            for t in range(4):
                tmp = R("v", tmpb[k & 1], 8); k += 1
                for r in range(8): o.append(f"v_accvgpr_read_b32 {tmp[r]}, {O(2*t + (r >> 2), qb)[r & 3]}")
                o.append(f"s_add_u32 s{sT2}, s{sCb + (qb>>1)}, {t*8192 + (qb&1)*4096}")
                for r in range(8): o.append(f"v_mul_f32 {tmp[r]}, {tmp[r]}, v{mx+qb}")
                for r in range(4): o.append(f"v_cvt_pk_bf16_f32 {tmp[r]}, {tmp[2*r]}, {tmp[2*r+1]}")
                o.append(f"buffer_store_dwordx4 {tmp[0:4]}, v{vL16}, {srd(SD)}, s{sT2} offen {ST} ;@tag=ctx")
        return o

    def rnd(i, cur, prev, first=False, lastg=False, hook=None):
        qk = acts(cur, i)
        sm = acts(cur, i - 1) if i >= 1 else acts(prev, 3)
        pv = acts(cur, i - 2) if i >= 2 else acts(prev, i + 2)
        czero = first and i == 2
        mq = masked(cur, i)
        mf = []
        for f in range(8):
            kb, t = f >> 2, f & 3
            for qb in qk: mf.append(mfma(S_(i & 1, kb, qb), F(f), Q(qb, t), (CD(kb) if qb == mq else NM(qb)) if t == 0 else None))
        for db in range(8):
            for qb in pv: mf.append(mfma(O(db, qb), F(8 + db), Pp(i & 1, qb), 0 if czero else None))
        for qb in pv: mf.append(mfma(Lr(qb), R("v", vONE), Pp(i & 1, qb), 0 if czero else None))
        n = len(mf); nq, npv = len(qk), len(pv)
        b = (i + 1) & 1
        E = []; Cv = []
        for qb in sm:
            for kb in range(2):
                s = S_(b, kb, qb)
                for r in range(4): E.append(f"v_exp_f32 {s[r]}, {s[r]}")
                Cv += [f"v_cvt_pk_bf16_f32 {Pp(b, qb)[2*kb]}, {s[0]}, {s[1]}", f"v_cvt_pk_bf16_f32 {Pp(b, qb)[2*kb+1]}, {s[2]}, {s[3]}"]
        knext = not (lastg and i == 3)
        D = []
        for d in range(16):
            f = d + RA
            if f < 8: D.append(rd(f, i))
            elif f < 16: D.append(rd(f, i) if pv else None)
            else: D.append(rd(f - 16, (i + 1) & 3) if knext else None)
        S = Sched(mf)
        steady = (nq, len(sm), npv) in ((2, 2, 2), (4, 4, 4))
        if (nq, len(sm), npv) == (2, 2, 2):
            eg = [2*e + 1 for e in range(16)]; cg = [4*k + 4 for k in range(8)]
            if i & 1: dg = [0, 2, 2, 4, 6, 8, 12, 14, 14, 16, 20, 24, 26, 28, 32, 33]; mg = [10, None, 22, 30]; bg = 18
            else: dg = [0, 2, 2, 4, 8, 12, 14, 14, 16, 20, 24, 26, 26, 28, 32, 33]; mg = [6, 10, 18, 22, 30]; bg = None
        elif (nq, len(sm), npv) == (4, 4, 4):
            eg = [2*e + 1 for e in range(32)]; cg = [4*k + 4 for k in range(16)]
            dg = [4*d for d in range(16)]
            if i & 1: mg = [14, None, 46, 58]; bg = 38
            else: mg = [6, 18, 30, 42, 58]; bg = None
        else:
            use = [f * nq for f in range(8)] + [8*nq + d * npv for d in range(8)]
            dg = [min(n - 1, use[d]) for d in range(16)]
            bg = max(dg[16 - RA] - 1, dg[15 - RA]) if i & 1 else None
            if i & 1: mg = [bg // 2, None, bg + (n - bg) // 3, bg + 2 * (n - bg) // 3]
            else: mg = [(q * n) // 5 + 1 for q in range(5)]
            eg = cg = None
        tA, tB = ("kvA", "kvB") if i in (0, 1) else ("kvB", "kvA")
        if i & 1: ks = [(mg[0], 7, tA, not (lastg and i == 3)), (mg[2], 0, tB, not lastg), (mg[3], 1, tB, not lastg)]
        else: ks = [(gq, 2 + q, tA, not (lastg and i == 2)) for q, gq in enumerate(mg)]
        w = 0 if steady else 3
        ch = "rd"
        for d in range(16):
            if d == 16 - RA and i & 1:
                wt = ("kvB" if i == 1 else "kvA") + (",v0,ob" if first else "")
                S.add("X", [f"WAITVM {wt}", "s_barrier"], bg, bg if steady else min(bg + 2, n - 1), chain=ch)
            if D[d]: S.add("D", D[d], dg[d], min(dg[d] + w, n - 1), chain=ch)
        for gq, k, tag, on in ks:
            if not on: continue
            sal, dd = dma(k, tag)
            if k == 0: sal = [f"s_xor_b32 s{sM0}, s{sM0}, {16384 if i == 1 else 16384 + 32768}", f"s_add_u32 s{sSrc}, s{sSrc}, 32768"] + sal
            lo = gq if (k != 0 or steady) else max(gq, min(bg + 3, n - 1))
            hi = min(lo + w, n - 1) if k != 7 else min(lo + w, bg - 1)
            if steady:
                if k == 0:
                    for q, s_ in enumerate(sal): S.add("S", s_, (12, 16, 20)[q] * nq // 2, (12, 16, 20)[q] * nq // 2 , chain="m")
                elif sal:
                    for q, s_ in enumerate(sal): S.add("S", s_, gq - 6 + 4*q if nq == 2 else gq - 6 + 2*q, gq - 6 + 4*q if nq == 2 else gq - 6 + 2*q, chain="m")
                S.add("M", dd, lo, lo, chain="m")
            else:
                S.add("M", dd, lo, hi, chain="m", pre=sal, sep=1)
        if i == 3:
            x = dg[16 - RA] - 1
            S.add("A", f"v_xor_b32 v{vDK}, 0x8000, v{vDK}", min(dg[7 - RA] + w + 1, x), x)
            S.add("A", f"v_xor_b32 v{vDV}, 0x8000, v{vDV}", min(dg[15 - RA] + w + 1, n - 1), n - 1)
        if eg:
            for k in range(len(Cv)):
                S.add("E", E[2*k], eg[2*k], eg[2*k]); S.add("E", E[2*k+1], eg[2*k+1], eg[2*k+1]); S.add("A", Cv[k], cg[k], cg[k])
        else:
            ne = len(E)
            for k in range(len(Cv)):
                for e in (2*k, 2*k + 1):
                    S.add("E", E[e], 0, int((e + 1) * (n - 2) / ne), chain=("e", k))
                S.add("A", Cv[k], 0, n - 1, chain=("e", k), sep=1)
        if i < 3 and not (first and i == 0):
            for c in cdcalc(cur, i + 1): S.add("A", c, min(4*nq + nq + 3, n - 3), n - 3)
        if hook: hook(S, n, bg)
        return S.run()

    FULL2, LD, TR, TD = ("full", "full"), ("diag", "full"), ("off", "full"), ("off", "diag")
    NONE = ("off", "off")
    def xmax():
        o = []
        for op in ("v_permlane16_swap_b32", "v_permlane32_swap_b32"):
            o += [f"v_mov_b32 v{mc+qb}, v{mx+qb}" for qb in range(4)]
            o += [f"{op} v{mc+qb}, v{mx+qb}" for qb in range(4)]
            o += [f"v_max_f32 v{mx+qb}, v{mx+qb}, v{mc+qb}" for qb in range(4)]
        return o
    def hook_sig(S, n, bg):
        pre, d = signal(SF, 0, 128)
        S.add("S", pre[0], 0, chain="sig"); S.add("A", pre[1].replace("v1,", "v19,"), 0, chain="sig", sep=1)
        skip = f"s_cmp_eq_u32 s{sFB}, 0"
        S.add("X", [skip, f"s_cselect_b32 s{t1_}, 0, 0x1000"], 0, chain="sig")
        S.add("M", d.replace("v1,", "v19,").replace(f"{srd(SF)}, 0", f"{srd(SF)}, s{t1_}"), 0, n - 1, chain="sig", sep=1)
    def hook_pf(S, n, bg):
        if OPT.get("nopf"): return
        for c in L(f"""v_lshlrev_b32 v19, 7, v0
              s_lshl2_add_u32 s{t0_}, s2, s{sW}
              s_lshl_b32 s{t0_}, s{t0_}, 13
              v_add_u32 v19, s{t0_}, v19"""): S.add("S" if c.startswith("s_") else "A", c, 0, chain="pf", sep=1)
        S.add("M", f"global_load_dword a{aDUM}, v19, s[{sWOA}:{sWOA+1}] ;@dummy", bg + 1, n - 4, chain="pf", sep=1)
        S.add("A", f"v_and_b32 v19, {(2<<20)-1}, v19", 0, chain="pf", sep=1)
        S.add("M", f"global_load_dword a{aDUM}, v19, s[{sWOB}:{sWOB+1}] ;@dummy", bg + 1, n - 1, chain="pf", sep=1)
    def first_group(cur):
        seq = cdcalc(cur, 0)
        seq += [rd(f, 0) for f in range(RA)]
        for k in range(2):
            sal, d = dma(k, "kvA"); seq += sal + (["s_nop 0"] if k == 0 else []) + [d]
        seq += rnd(0, cur, NONE, first=True)
        seq += ["s_nop 3", f"s_cmp_eq_u32 s{sFB}, 0", f"s_cselect_b32 s{t0_}, -1, 0"]
        for qb in range(4):
            a = S_(0, 0, qb); seq += [f"v_max3_f32 v{mx+qb}, {a[0]}, {a[1]}, {a[2]}"]
        for qb in range(4):
            a, b = S_(0, 0, qb), S_(0, 1, qb)
            seq += [f"v_max3_f32 v{mx+qb}, v{mx+qb}, {a[3]}, {b[0]}", f"v_max3_f32 v{mx+qb}, v{mx+qb}, {b[1]}, {b[2]}", f"v_max_f32 v{mx+qb}, v{mx+qb}, {b[3]}"]
        seq += xmax()
        seq += [f"v_and_b32 v{mx+qb}, s{t0_}, v{mx+qb}" for qb in range(4)]
        for qb in range(4): seq += [f"v_sub_f32 {NM(qb)[r]}, {NM(qb)[r]}, v{mx+qb}" for r in range(4)]
        seq += cdcalc(cur, 1)
        for qb in range(4):
            for kb in range(2): seq += [f"v_sub_f32 {S_(0, kb, qb)[r]}, {S_(0, kb, qb)[r]}, v{mx+qb}" for r in range(4)]
        seq += rnd(1, cur, NONE, first=True) + rnd(2, cur, NONE, first=True, hook=hook_sig) + rnd(3, cur, NONE, first=True)
        return seq
    def hook_p5a(S, n, bg):
        for c in p5_setup(): S.add("S" if c.startswith("s_") else "A", c, 0, n - 1, chain="p5")
        S.add("M", f"buffer_load_dword v19, off, {srd(SF)}, 0 offset:128 sc1", 0, n - 1, chain="p5")
    def hook_p5b(S, n, bg):
        S.add("X", g.spin(19, SF, 0, 128, 256), 0, 0, chain="p5")
        for sal, d in p5_wdma(0, 0) + p5_cld(0, 0): S.add("M", d, 3, n - 1, chain="p5", pre=sal, sep=3)
    def hook_p5c(S, n, bg):
        for sal, d in p5_wdma(1, 1) + p5_cld(1, 1): S.add("M", d, 2, n - 1, chain="p5", pre=sal, sep=2)
    def group(cur, prev, lastg=False, loepi=False):
        seq = cdcalc(cur, 0) + (["s_nop 0"] if masked(cur, 0) is not None else [])
        hk = (hook_p5a, None, hook_p5b, hook_p5c) if lastg else (None,) * 4
        for i in range(4):
            seq += rnd(i, cur, prev, lastg=lastg, hook=hk[i])
            if loepi and i == 1: seq += ["s_nop 7"] + epi((0, 1), (88, 120))
        return seq

    q = L(f"""s_mov_b32 s{sFB}, 0
          v_and_b32 v20, 15, v0
          v_lshrrev_b32 v21, 4, v0
          v_lshlrev_b32 v21, 2, v21
          v_sub_u32 v20, v20, v21
          s_lshl_b32 s{t0_}, s{sW}, 4
          v_add_u32 v20, s{t0_}, v20""")
    for k in range(16):
        q += [f"v_subrev_u32 v21, {16*(k >> 2) + (k & 3)}, v20", f"v_ashrrev_i32 v21, 31, v21", f"v_and_b32 v{200+k}, 0xff800000, v21"]
    for k in range(16): q.append(f"v_mov_b32 v{184+k}, 0")
    q += L(f"""s_lshl_b32 s{t0_}, s{sH}, 15
          s_lshl_b32 s{t1_}, s{sW}, 10
          s_add_u32 s{t0_}, s{t0_}, s{t1_}
          s_add_u32 s{t0_}, s{t0_}, {WS_CTX}
          s_mul_i32 s{sCb}, s{sJ}, {160*8192}
          s_add_u32 s{sCb}, s{sCb}, s{t0_}
          s_mul_i32 s{sCb+1}, s{sBHi}, {160*8192}
          s_add_u32 s{sCb+1}, s{sCb+1}, s{t0_}""")
    START = p.new("attstart")
    q += [START + ":"] + L(f"""v_mov_b32 v{vDK}, v{vL16}
          v_add_u32 v{vDV}, 0x10000, v{vL16}
          v_mov_b32 v{vBad}, 0
          s_and_b32 s{t0_}, s{sW}, 1
          s_lshr_b32 s{t1_}, s{sW}, 1
          s_lshl_b32 s{sM0}, s{t0_}, 13
          s_lshl_b32 s{t2_}, s{t1_}, 16
          s_add_u32 s{sM0}, s{sM0}, s{t2_}
          s_add_u32 s{sM0}, s{sM0}, 32768
          s_lshl_b32 s{sSrc}, s{t0_}, 14
          s_mul_i32 s{t1_}, s{t1_}, 24576
          s_sub_u32 s{sSrc}, s{sSrc}, s{t1_}
          s_add_u32 s{sSrc}, s{sSrc}, 65536
          WAITVM k0 L
          s_barrier""") + stamp(6)
    g.emit(q)
    lab = {k: p.new(k) for k in ("F1", "D", "DD", "T", "T1", "S", "SD", "TAIL")}
    st0 = (list(g.lg), list(g.vm))
    def setst(s): g.lg, g.vm = list(s[0]), list(s[1])
    def getst(): return (list(g.lg), list(g.vm))
    def canon():
        lg = [(r, 0) for r, a in g.lg]
        return (lg, [("kvB", [])] * 8 + [("kvA", [])] * 2)
    p(f"s_cmp_eq_u32 s{sJ}, 0\ns_cbranch_scc1 {lab['F1']}")
    g.emit(first_group(FULL2)); cs = canon()
    g.emit(stamp(12))
    p(f"s_sub_u32 s{sCnt}, s{sJ}, 1\ns_cmp_eq_u32 s{sCnt}, 0\ns_cbranch_scc1 {lab['DD']}")
    p(".p2align 3"); p.label(lab["D"]); setst(cs)
    g.emit(group(FULL2, FULL2) + [f"s_sub_u32 s{sCnt}, s{sCnt}, 1", f"s_cmp_lg_u32 s{sCnt}, 0"]); assert canon() == cs
    p(f"s_cbranch_scc1 {lab['D']}")
    p.label(lab["DD"]); setst(cs)
    g.emit(stamp(13) + group(LD, FULL2)); assert canon() == cs or OPT["stamps"]
    p(f"s_cmp_eq_u32 s{sJ}, 7\ns_cbranch_scc1 {lab['T1']}")
    p.label(lab["T"]); setst(cs)
    g.emit(stamp(14) + group(TR, LD, loepi=True) + stamp(15))
    p(f"s_lshl_b32 s{sCnt}, s{sJ}, 1\ns_sub_u32 s{sCnt}, 13, s{sCnt}")
    p(".p2align 3"); p.label(lab["S"]); setst(cs)
    g.emit(group(TR, TR) + [f"s_sub_u32 s{sCnt}, s{sCnt}, 1", f"s_cmp_lg_u32 s{sCnt}, 0"]); assert canon() == cs
    p(f"s_cbranch_scc1 {lab['S']}")
    setst(cs)
    g.emit(stamp(16) + group(TD, TR, lastg=True))
    ts = getst()
    p.label(lab["TAIL"])
    seq = stamp(17) + [rd(8 + d, 0) for d in range(8)] + [f"ds_read_b128 {F(d)}, v{vDV} offset:{8192 + d*1024}" for d in range(8)]
    for kb in range(2):
        s = S_(1, kb, 3); seq += [f"v_exp_f32 {s[r]}, {s[r]}" for r in range(4)]
    for kb in range(2):
        s = S_(1, kb, 3); seq += [f"v_cvt_pk_bf16_f32 {Pp(1, 3)[2*kb]}, {s[0]}, {s[1]}", f"v_cvt_pk_bf16_f32 {Pp(1, 3)[2*kb+1]}, {s[2]}, {s[3]}"]
    seq += [mfma(Lr(3), R("v", vONE), Pp(0, 3))] + [mfma(O(db, 3), F(8 + db), Pp(0, 3)) for db in range(8)]
    seq += [mfma(Lr(3), R("v", vONE), Pp(1, 3))] + [mfma(O(db, 3), F(db), Pp(1, 3)) for db in range(8)]
    seq += stamp(7)
    ep = epi((2, 3), (88, 120))
    k = ep.index("s_nop 0")
    ep[k:k+1] = L(f"""s_mov_b32 s{t0_}, {f32(LTHR)}
          v_cmp_le_f32 vcc, s{t0_}, v{vBad}
          s_lshl_b32 s{t1_}, s{sW}, 2
          s_cmp_lg_u64 vcc, 0
          s_cselect_b32 s{t0_}, 1, 0
          v_mov_b32 v96, s{t1_}
          v_mov_b32 v97, s{t0_}
          ds_write_b32 v96, v97""")
    seq += ep
    FB = p.new("fallback")
    seq += L(f"""v_mov_b32 v96, 0
          WAITVM w5_0 L
          s_barrier
          ds_read_b128 v[100:103], v96""") + stamp(8)
    g.emit(seq)
    g.fbcheck = L(f"""v_or3_b32 v100, v100, v101, v102
          v_or_b32 v100, v100, v103
          s_nop 0
          v_readfirstlane_b32 s{t0_}, v100 ;@val=0
          s_nop 0
          s_cmp_gt_u32 s{t0_}, s{sFB}
          s_cbranch_scc1 {FB} ;@br=fb""")
    es = getst()
    main = g.p; g.p = P(); g.p.uid = main.uid + 1000
    g.p.label(lab["F1"]); setst(st0)
    g.emit(first_group(LD) + stamp(12) + stamp(13)); assert canon() == cs or OPT["stamps"]
    g.p(f"s_branch {lab['T']}")
    g.p.label(lab["T1"]); setst(cs)
    g.emit(stamp(14) + stamp(15) + stamp(16) + group(TD, LD, lastg=True, loepi=True))
    assert [e for e in g.vm[-16:]] == [e for e in ts[1][-16:]] and g.lg == [] and ts[0] == [], (g.lg, ts[0])
    g.p(f"s_branch {lab['TAIL']}")
    g.p.label(FB); setst(([], []))
    sU = 88
    q = L(f"""s_waitcnt vmcnt(0) lgkmcnt(0)
          s_barrier
          s_mov_b32 s{sFB}, 1
          s_mov_b32 s{sU}, 0
          v_and_b32 v228, 15, v0
          v_lshrrev_b32 v229, 4, v0
          v_lshlrev_b32 v229, 2, v229
          v_sub_u32 v228, v228, v229
          s_lshl_b32 s{t0_}, s{sW}, 4
          v_add_u32 v228, s{t0_}, v228
          s_lshl_b32 s{t0_}, s{sBHi}, 7
          v_add_u32 v230, s{t0_}, v228
          s_lshl_b32 s{t0_}, s{sJ}, 7
          v_add_u32 v228, s{t0_}, v228
          v_add_u32 v229, 64, v228
          v_add_u32 v231, 64, v230""")
    for sal, d in att_first_dmas(sLX): q += sal + ["s_nop 0", d]
    for qb in range(4): q.append(f"v_mov_b32 v{mx+qb}, 0xff800000")
    FL = g.p.new("fbl"); q.append(FL + ":")
    for f in range(8):
        if f == 4: q.append(f"s_add_u32 s{sT}, s{sU}, 4096")
        q.append(f"buffer_load_dwordx4 {F(f)}, v{vL16}, {srd(SA)}, s{sU if f < 4 else sT} offen offset:{(f&3)*1024} sc1")
    for qb in range(4):
        for kb in range(2):
            for r in range(4):
                c = S_(0, kb, qb)[r]
                q += [f"v_subrev_u32 {c}, {16*kb + r}, v{228+qb}", f"v_ashrrev_i32 {c}, 31, {c}", f"v_and_b32 {c}, 0xff800000, {c}"]
        q.append(f"v_subrev_u32 v{228+qb}, 32, v{228+qb}")
    q.append("s_waitcnt vmcnt(0)")
    for f in range(8):
        for qb in range(4): q.append(mfma(S_(0, f >> 2, qb), F(f), Q(qb, f & 3)))
    q.append("s_nop 7")
    for qb in range(4):
        for kb in range(2):
            a = S_(0, kb, qb)
            q += [f"v_max3_f32 v{mx+qb}, v{mx+qb}, {a[0]}, {a[1]}", f"v_max3_f32 v{mx+qb}, v{mx+qb}, {a[2]}, {a[3]}"]
    q += L(f"s_add_u32 s{sU}, s{sU}, 16384\ns_cmp_lt_u32 s{sU}, s{SA+2}\ns_cbranch_scc1 {FL}")
    q += xmax()
    for qb in range(4): q += [f"v_sub_f32 {NM(qb)[r]}, 0, v{mx+qb}" for r in range(4)]
    q.append(f"s_branch {START}")
    g.emit(q)
    g.ool += g.p.l; main.uid = g.p.uid + 1000; g.p = main
    setst(es)

def phase5(g):
    p = g.p
    vD = 88
    sCnt = 70
    def acc(rb, cb): return R("v", 24 + 32*rb + 4*cb)
    def fw(b, cb): return R("a", 32*b + 4*cb)
    def wread(tau, ks, cb):
        base = p5_lds(tau); win = 0 if base >= 98304 else 1
        off = base - (98304 if win == 0 else 32768)
        return [f"ds_read_b64_tr_b16 {fw(ks, cb)[2*i:2*i+2]}, v{vD + 16*win + cb} offset:{off + ks*8192 + i*4096}" for i in range(2)]
    q = L(f"""v_lshrrev_b32 v112, 4, v0
          v_bfe_u32 v113, v0, 2, 2
          v_lshl_add_u32 v114, v112, 2, v113
          v_and_b32 v115, 3, v0
          v_lshlrev_b32 v115, 3, v115
          v_lshl_add_u32 v115, v114, 8, v115
          v_add_u32 v115, 98304, v115
          v_and_b32 v114, 7, v114
          s_lshl_b32 s{t0_}, s{sKh}, 2
          v_xor_b32 v114, s{t0_}, v114""")
    for n in range(8):
        q += [f"v_xor_b32 v112, {n}, v114", f"v_lshl_add_u32 v{vD+n}, v112, 5, v115", f"v_xor_b32 v{vD+16+n}, 0x10000, v{vD+n}"]
    q += g.fbcheck
    for cb in range(8): q += wread(0, 0, cb)
    q += L(f"""s_lshr_b32 s{t0_}, s{sH}, 4
          s_lshl1_add_u32 s{t0_}, s{sJ}, s{t0_}
          s_lshl_b32 s71, s{t0_}, 8
          s_sub_u32 s{t0_}, 15, s{sR5}
          s_min_u32 s{t0_}, s{t0_}, s{sR5}
          s_lshl1_add_u32 s{t0_}, s{t0_}, s{sKh}
          s_lshl_b32 s72, s{t0_}, 8""") + mk_srd(SF, sWS, 4096, WS_CNT)
    g.emit(q)
    DW, DC = 4, 3
    def body(t0, kind):
        mf = []
        for st in range(8):
            for ks in range(2):
                c0 = 0 if (kind == "first" and st == 0 and ks == 0) else None
                mf += [mfma(acc(rb, cb), fw(ks, cb), p5_ctx(st, ks, rb), c0) for cb in range(8) for rb in range(2)]
        S = Sched(mf)
        for st in range(8):
            tau = t0 + st; g0 = 32 * st; B = g0 + 15
            k = 0
            for cb in range(8):
                for r in wread(tau, 1, cb): S.add("T", r, g0 + (k * 13) // 16 - (1 if k == 0 and st else 0) * 0, g0 + 2 + (k * 13) // 16, chain="t"); k += 1
            if tau < 39:
                S.add("X", [f"WAITVM w5_{(tau+1)&7}" + (",ctx" if (kind == "first" and st == 1) else ""), "s_barrier"], B, B + 1, chain="t")
                k = 0
                for cb in range(8):
                    for r in wread(tau + 1, 0, cb): S.add("T", r, B + 1 + (k * 13) // 16, min(B + 3 + (k * 13) // 16, g0 + 31), chain="t"); k += 1
            lw, lc = [], []
            if kind == "first":
                wl = {0: (2, 3), 1: (4, 5)}.get(st, (st + DW,)); cl = {0: (2, 3)}.get(st, (st + DC,))
            else: wl, cl = (st + DW,), (st + DC,)
            for x in cl:
                if t0 + x < 40: lc += p5_cld(t0 + x, x if (kind != "first" or x < 8) else x - 8)
            for x in wl:
                if t0 + x < 40: lw += p5_wdma(t0 + x, x if (kind != "first" or x < 8) else x - 8)
            if kind == "first":
                if st == 8 - DW:
                    S.add("X", L(f"s_mul_i32 s{t0_}, s{sKh}, {3<<20}\ns_add_u32 s{sWo5}, s{sWo5}, s{t0_}"), g0, g0, chain="ld")
                if st == 8 - DC - 1:
                    S.add("M", f"buffer_load_dword v19, off, {srd(SF)}, s72 sc1", g0, g0 + 2, chain="ld")
                if st == 8 - DC:
                    S.add("X", g.spin(19, SF, "s72", 0, 16) + L(f"s_mul_i32 s{t0_}, s{sKh}, {(64-16)*8192}\ns_add_u32 s{sCtx}, s{sCtx}, s{t0_}\ns_sub_u32 s{sCtx}, s{sCtx}, {128*8192}") + stamp(9), g0, g0, chain="ld")
            ld = lc + lw
            for k, (sal, d) in enumerate(ld):
                x = g0 + 2 + (k * 30) // len(ld)
                S.add("M", d, x, min(x + 1, g0 + 31), chain="ld", pre=sal, sep=1)
            if kind == "first" and st == 1:
                pre, d = signal(SF, "s71", 0)
                S.add("S", pre[0], B - 4, B, chain="sig"); S.add("A", pre[1], B - 3, B, chain="sig", sep=1)
                S.add("M", d, B + 2, B + 2, chain="sig")
        return S.run("p5" + kind)
    g.emit(body(0, "first"))
    p(f"s_mov_b32 s{sCnt}, 3")
    Lp = p.new("p5"); p(".p2align 3"); p.label(Lp)
    st = ([(r, 0) for r, a in g.lg], list(g.vm))
    g.emit(body(8, "loop") + [f"s_add_u32 s{sWo5}, s{sWo5}, {8*131072}", f"s_add_u32 s{sCtx}, s{sCtx}, {8*16384}", f"s_sub_u32 s{sCnt}, s{sCnt}, 1", f"s_cmp_lg_u32 s{sCnt}, 0"])
    assert st == ([(r, 0) for r, a in g.lg], list(g.vm)), (st, g.lg, g.vm)
    p(f"s_cbranch_scc1 {Lp}")
    g.emit(body(32, "last") + stamp(10))
    q = L(f"""s_xor_b32 s{t0_}, s2, 4
          s_lshl2_add_u32 s{t0_}, s{t0_}, s{sW}
          s_lshl_b32 s{t1_}, s{t0_}, 13
          s_add_u32 s{t1_}, s{t1_}, {WS_XCH}
          s_add_u32 s{t2_}, s{t1_}, 4096
          s_lshl_b32 s71, s{t0_}, 6
          s_lshl2_add_u32 s{t0_}, s2, s{sW}
          s_lshl_b32 s72, s{t0_}, 6
          s_lshl_b32 s73, s{t0_}, 13
          s_add_u32 s73, s73, {WS_XCH}
          s_add_u32 s74, s73, 4096""") + mk_srd(SF, sWS, 65536, WS_INBOX)
    for rb in range(2):
        for c in range(4): q.append(f"buffer_store_dwordx4 {acc(rb, 4+c)}, v{vL16}, {srd(SD)}, s{t1_+rb} offen offset:{c*1024} {ST}")
    q += mk_srd(SE, sOUT, 4 << 20)
    q += L(f"""v_lshlrev_b32 v1, 24, v0
          s_lshl_b32 s75, s{sR5}, 18
          s_lshl_b32 s{t0_}, s{sW}, 16
          s_add_u32 s75, s75, s{t0_}
          s_add_u32 s75, s75, s{sCol}
          s_lshl_b32 s{t0_}, s{sKh}, 7
          s_add_u32 s75, s75, s{t0_}
          s_add_u32 s76, s75, 32768
          v_and_b32 v8, 15, v0
          v_lshlrev_b32 v8, 11, v8
          v_bfe_u32 v10, v0, 4, 1
          v_lshl_add_u32 v8, v10, 5, v8
          v_lshrrev_b32 v10, 5, v0
          v_lshl_add_u32 v8, v10, 4, v8
          s_waitcnt vmcnt(0)
          buffer_store_dword a{aONE}, v1, {srd(SF)}, s71 offen {ST} ;@sig=wave
          buffer_load_dword v19, off, {srd(SF)}, s72 sc1""") + g.spin(19, SF, "s72", 0, 1)
    for rb in range(2):
        for c in range(4): q.append(f"buffer_load_dwordx4 {acc(rb, 4+c)}, v{vL16}, {srd(SD)}, s{73+rb} offen offset:{c*1024} sc1")
    for rb in range(2):
        for c2 in range(2):
            a, b = acc(rb, 2*c2), acc(rb, 2*c2+1)
            for c in (2*c2, 2*c2+1):
                for r in range(4): q.append(f"v_add_f32 {acc(rb, c)[r]}, {acc(rb, c)[r]}, {acc(rb, 4+c)[r]}")
            q += L(f"""v_cvt_pk_bf16_f32 {a[0]}, {a[0]}, {a[1]}
                  v_cvt_pk_bf16_f32 {a[1]}, {a[2]}, {a[3]}
                  v_cvt_pk_bf16_f32 {a[2]}, {b[0]}, {b[1]}
                  v_cvt_pk_bf16_f32 {a[3]}, {b[2]}, {b[3]}
                  s_nop 1
                  v_permlane16_swap_b32 {a[0]}, {a[2]}
                  v_permlane16_swap_b32 {a[1]}, {a[3]}
                  buffer_store_dwordx4 {a}, v8, {srd(SE)}, s{75+rb} offen offset:{c2*64}""")
    q += stamp(11) + stamp_flush()
    g.emit(q)

def build():
    g = G(); p = g.p
    hdr = open("/code/" + NAME + ".s.ref").read()
    p.l += [l for l in hdr.split("\n") if l.startswith(";") and "@launch" not in l]
    p.l.append(f"; @launch grid=(256,1,1) block=(256,1,1) lds={LDS_BYTES}")
    k = NAME + "_kernel"
    p(f'.amdgcn_target "amdgcn-amd-amdhsa--gfx950"\n.text\n.globl {k}\n.p2align 8\n.type {k},@function'); p.label(k)
    gemm12(g); attention(g); phase5(g)
    p.label("L_end"); p("s_endpgm")
    p(g.ool)
    p.label("L_codeend")
    p(".fill 512, 4, 0xbf810000")
    p('.section .rodata,"a"\n.p2align 6')
    p.l += f""".amdhsa_kernel {k}
  .amdhsa_next_free_vgpr 512
  .amdhsa_next_free_sgpr 102
  .amdhsa_accum_offset 256
  .amdhsa_group_segment_fixed_size 0
  .amdhsa_kernarg_size 104
  .amdhsa_user_sgpr_count 2
  .amdhsa_user_sgpr_kernarg_segment_ptr 1
  .amdhsa_system_sgpr_workgroup_id_x 1
.end_amdhsa_kernel""".split("\n")
    return p.text()

if __name__ == "__main__":
    out = sys.argv[1]
    for a in sys.argv[2:]:
        k, _, v = a.partition("=")
        OPT[k] = True if v == "" else (int(v) if v.lstrip("-").isdigit() else v)
    txt = build()
    import subprocess, re, os
    open("_sz.s", "w").write(txt.replace("NCHUNK", "100"))
    subprocess.check_call(["clang", "-x", "assembler", "-target", "amdgcn-amd-amdhsa", "-mcpu=gfx950", "-c", "_sz.s", "-o", "_sz.o"])
    sz = int(re.search(r"\.text\s+PROGBITS\s+\S+\s+\S+\s+(\S+)", subprocess.check_output(["llvm-readelf", "-S", "_sz.o"]).decode()).group(1), 16)
    nch = (sz - 2048) // 1024
    print("code bytes", sz - 2048, "chunks", nch + 1, "file", len(txt))
    assert nch <= 127
    open(out, "w").write(txt.replace("NCHUNK", str(nch)))
```

```python
import sys, math, struct
from genlib import P, R, mfma
from sched import Sched, resolve

NAME = "gated_mix__compressed_kv_cla__sliding_local_dilated__prompt"
WS_KV, WS_CTX, WS_G, WS_CNT, WS_INBOX, WS_XCH, WS_STAMP = 0, 32 << 20, 56 << 20, 57 << 20, (57 << 20) + 65536, 64 << 20, 96 << 20
LDS_BYTES = 160 * 1024
def f32(x): return "0x%08x" % struct.unpack("<I", struct.pack("<f", x))[0]
QSCALE = 128 ** -0.5 * math.log2(math.e)
BSCALE = 32 ** -0.5 * math.log2(math.e)
LTHR = 2.0 ** 60

sX, sC, sWQ, sWUK, sWUV, sWOA, sWQKV, sWOB, sGATE, sOUT, sDBG, sWS = 4, 6, 8, 10, 12, 14, 18, 20, 22, 24, 26, 28
sW, sH, sJ = 30, 31, 3
SA, SB, SC, SD, SE, SF, SG, SH = 32, 36, 40, 44, 48, 52, 56, 60
sT, sT2, sBHi = 64, 65, 16
t0_, t1_, t2_, t3_ = 66, 67, 68, 69
def srd(b): return f"s[{b}:{b+3}]"
OPT = dict(stamps=False)
ST = "sc1"

vDX, vDQ, vGX, vGW, vL16, vDH, vDB, vDBH, vGH, vGB = 2, 4, 12, 14, 16, 17, 19, 21, 22, 23
vQ, vG, vONE = 24, 4, 12
aONE, aDUM = 251, 252

def L(s): return [x.strip() for x in s.strip().split("\n") if x.strip()]
def mk_srd(b, ptr, nbytes, off=None):
    if off is None: o = [f"s_mov_b32 s{b}, s{ptr}", f"s_mov_b32 s{b+1}, s{ptr+1}"]
    else: o = [f"s_add_u32 s{b}, s{ptr}, {off}", f"s_addc_u32 s{b+1}, s{ptr+1}, 0"]
    return o + [f"s_mov_b32 s{b+2}, {nbytes}", f"s_mov_b32 s{b+3}, 0x20000"]

NST = [0]
def stamp(idx):
    if not OPT["stamps"]: return []
    return L(f"""s_waitcnt lgkmcnt(0)
        s_memtime s[92:93]
        s_memrealtime s[94:95]
        v_accvgpr_write_b32 a253, v1
        v_accvgpr_read_b32 v1, a249
        s_waitcnt lgkmcnt(0)
        v_writelane_b32 v1, s92, {2*idx}
        v_writelane_b32 v1, s94, {2*idx+1}
        v_accvgpr_write_b32 a249, v1
        v_accvgpr_read_b32 v1, a253
        s_nop 1""")
def stamp_flush():
    if not OPT["stamps"]: return []
    return L(f"""s_lshl_b32 s96, s2, 2
        s_add_u32 s96, s96, s{sW}
        s_lshl_b32 s96, s96, 8
        s_add_u32 s96, s96, {WS_STAMP}
        v_lshlrev_b32 v1, 2, v0
        buffer_store_dword a249, v1, {srd(SD)}, s96 offen
        s_waitcnt vmcnt(0)""")

class G:
    def __init__(self):
        self.p = P(); self.lg = []; self.vm = []; self.ool = []
    def emit(self, seq, eager=0):
        out, self.lg, self.vm = resolve(seq, self.lg, self.vm, eager)
        self.p(out)
    def spin(self, vreg, srdb, soff, imm, target):
        st, bk, lp = self.p.new("spin"), self.p.new("spinbk"), self.p.new("spinlp")
        self.ool += L(f"""{st}:
            s_mov_b32 s{t1_}, 0x8000
            {lp}:
            s_sleep 1
            buffer_load_dword v{vreg}, off, {srd(srdb)}, {soff} offset:{imm} sc1
            s_waitcnt vmcnt(0)
            v_readfirstlane_b32 s{t0_}, v{vreg}
            s_sub_u32 s{t1_}, s{t1_}, 1
            s_cbranch_scc1 {bk} ;@nottaken
            s_cmp_lt_u32 s{t0_}, {target}
            s_cbranch_scc1 {lp} ;@nottaken
            s_branch {bk}""")
        return L(f"""v_readfirstlane_b32 s{t0_}, v{vreg}
            s_nop 0
            s_cmp_lt_u32 s{t0_}, {target}
            s_cbranch_scc1 {st}
            {bk}:""")

def signal(srdb, soff, imm):
    return ([f"s_lshl_b32 s{t0_}, s{sW}, 30", f"v_lshl_add_u32 v1, v0, 24, s{t0_}"],
            f"buffer_atomic_add a{aONE}, v1, {srd(srdb)}, {soff} offen offset:{imm} sc1 ;@sig=wg")

def gemm12(g):
    p = g.p
    sCo, sWo, sXlo, sXhi, sXh, sBo, sLX, sLW, sLH, sKV, sPF = 70, 71, 72, 73, 74, 75, 76, 77, 78, 79, 80
    def fx(st, rb): return R("a", 20 * st + 4 * rb)
    def fw(cb): return R("a", 40 + 4 * cb)
    def aq(db, rb): return R("v", (vQ if db % 2 == 0 else 88) + 16 * rb + 4 * (db // 2))
    def bt(part, db, rb): return R("v", 152 + 32 * part + 8 * rb + 4 * db)
    def tile(k):
        cb, rb = k >> 2, k & 3
        if k >= 58: return R("a", 104 + 4 * (k - 58))
        if k >= 56: return R("v", 248 + 4 * (k - 56))
        return aq(cb, rb) if cb < 8 else bt((cb - 8) >> 1, cb & 1, rb)
    def stash(i): return R("a", 128 + 4 * i)
    end = "L_end"
    p(f"s_cmp_ge_u32 s2, 256\ns_cbranch_scc1 {end}")
    p("s_load_dwordx16 s[4:19], s[0:1], 0\ns_load_dwordx8 s[20:27], s[0:1], 64\ns_load_dwordx2 s[28:29], s[0:1], 96")
    if OPT["stamps"]: p("s_memtime s[96:97]\ns_memrealtime s[98:99]")
    p("s_getpc_b64 s[90:91]"); p.label("L_pc")
    p(f"""v_lshrrev_b32 v1, 6, v0
          s_lshr_b32 s{t1_}, s2, 3
          v_lshl_add_u32 v24, s{t1_}, 2, v1
          v_min_u32 v24, NCHUNK, v24
          v_and_b32 v25, 7, v0
          v_lshlrev_b32 v25, 7, v25
          v_lshl_add_u32 v24, v24, 10, v25
          global_load_dword a{aDUM}, v24, s[90:91] ;@dummy
          v_and_b32 v0, 63, v0
          v_readfirstlane_b32 s{sW}, v1 ;@val=wave
          v_lshrrev_b32 v24, 3, v0
          v_lshrrev_b32 v25, 4, v0
          v_and_b32 v26, 7, v0
          v_xor_b32 v26, v26, v25
          v_lshlrev_b32 v26, 4, v26
          v_lshl_add_u32 v{vGX}, v24, 10, v26
          v_xor_b32 v{vGX+1}, 64, v{vGX}
          v_bfe_u32 v26, v0, 1, 3
          v_xor_b32 v26, v26, v25
          v_lshlrev_b32 v26, 5, v26
          v_and_b32 v24, 1, v0
          v_lshl_add_u32 v26, v24, 4, v26
          v_lshl_add_u32 v{vGW}, v25, 13, v26
          v_xor_b32 v{vGW+1}, 128, v{vGW}
          s_and_b32 s{t0_}, s2, 7
          s_lshr_b32 s{t1_}, s2, 3
          s_and_b32 s{t2_}, s{t1_}, 3
          s_lshl2_add_u32 s{sH}, s{t0_}, s{t2_}
          s_lshr_b32 s{sJ}, s{t1_}, 2
          s_lshl2_add_u32 s{sPF}, s{t1_}, s{sW}
          s_lshl_b32 s{sCo}, s{sJ}, 18
          s_lshl_b32 s{t0_}, s{sW}, 16
          s_add_u32 s{sCo}, s{sCo}, s{t0_}
          s_lshl_b32 s{sWo}, s{sW}, 17
          s_lshl_b32 s{t0_}, s{sH}, 8
          s_add_u32 s{sWo}, s{sWo}, s{t0_}
          s_lshl_b32 s{sLX}, s{sW}, 13
          s_lshl_b32 s{sLW}, s{sW}, 12
          s_lshl_b32 s{sLH}, s{sW}, 10
          s_waitcnt lgkmcnt(0)""")
    p(mk_srd(SA, sC, 2 << 20) + mk_srd(SB, sWUK, 4 << 20) + mk_srd(SC, sWUV, 4 << 20))
    def xdma(sg):
        par = sg & 1; d = []
        for i in range(8):
            if sg < 8: so, sr = f"s_add_u32 s{sT}, s{sCo}, {sg*128 + i*8192}", SA
            else: so, sr = f"s_add_u32 s{sT}, s{sXlo if i < 4 else sXhi}, {(sg-8)*128 + ((i>>1)&1)*64*2048 + (i&1)*16384}", SE
            d.append(([f"s_add_u32 m0, s{sLX}, {par*32768 + i*1024}", so], f"buffer_load_dwordx4 v{vGX + (i&1)}, {srd(sr)}, s{sT} offen lds ;@tag=x{sg}"))
        return d
    def wdma(sg):
        par = sg & 1; d = []; B = 65536 + par * 32768
        for kv in range(2 if sg < 8 else 1):
            for i in range(4):
                st = sg if sg < 8 else sg - 8
                d.append(([f"s_add_u32 m0, s{sLW}, {B + kv*16384 + i*1024}", f"s_add_u32 s{sT}, s{sWo}, {st*64*8192 + i*32768}"],
                          f"buffer_load_dwordx4 v{vGW + (i>>1)}, {srd((SB, SC)[kv] if sg < 8 else SG)}, s{sT} offen lds ;@tag=w{sg}"))
        if sg >= 8:
            for pp in range(3 if not OPT.get("x_nowb") else 0):
                d.append(([f"s_add_u32 m0, s{sLH}, {B + 16384 + pp*4096}", f"s_add_u32 s{sT}, s{sBo}, {(sg-8)*64*6144 + pp*2048}"],
                          f"buffer_load_dwordx4 v{vGB}, {srd(SH)}, s{sT} offen lds ;@tag=w{sg}"))
            d.append(([f"s_add_u32 m0, s{sLH}, {B + 28672}", f"s_add_u32 s{sT}, s{sXh}, {(sg-8)*128}"],
                      f"buffer_load_dwordx4 v{vGH}, {srd(SE)}, s{sT} offen lds ;@tag=w{sg}"))
            if OPT.get("wbmix"): d = [d[k] for k in (4, 0, 1, 5, 2, 3, 6, 7)]
        return d
    seq = []
    for sal, d in xdma(0) + wdma(0): seq += sal + [d]
    seq += mk_srd(SD, sWS, 128 << 20) + mk_srd(SE, sX, 4 << 20) + mk_srd(SF, sDBG, 256) + mk_srd(SG, sWQ, 8 << 20) + mk_srd(SH, sWQKV, 6 << 20)
    seq += [f"v_accvgpr_write_b32 a{aONE}, 1"]
    if OPT["stamps"]: seq += ["v_mov_b32 v30, 0", "v_writelane_b32 v30, s96, 60", "v_writelane_b32 v30, s98, 61", "v_accvgpr_write_b32 a249, v30"] + stamp(0)
    seq += L(f"""v_and_b32 v24, 15, v0
          v_lshrrev_b32 v26, 1, v24
          v_xor_b32 v26, v26, v25
          v_lshlrev_b32 v26, 4, v26
          v_lshl_add_u32 v26, v24, 7, v26
          v_add_u32 v{vDX}, s{sLX}, v26
          v_xor_b32 v{vDX+1}, 64, v{vDX}
          v_bfe_u32 v24, v0, 2, 2
          v_lshl_add_u32 v27, v25, 3, v24
          v_and_b32 v1, 3, v0
          v_lshlrev_b32 v1, 3, v1
          v_lshl_add_u32 v26, v27, 8, v1
          v_add_u32 v26, 65536, v26
          v_and_b32 v1, 1, v25
          v_lshl_add_u32 v24, v1, 2, v24
          v_lshlrev_b32 v{vL16}, 4, v0""")
    for n in range(8): seq += [f"v_xor_b32 v1, {n}, v24", f"v_lshl_add_u32 v{vDQ+n}, v1, 5, v26"]
    seq += L(f"""s_sub_u32 s{sBHi}, 15, s{sJ}
          s_lshl_b32 s{sXlo}, s{sJ}, 18
          s_lshl_b32 s{sXhi}, s{sBHi}, 18
          s_cmp_lt_u32 s{sW}, 2
          s_cselect_b32 s{sXh}, s{sXlo}, s{sXhi}
          s_max_u32 s{sXh}, s{sXh}, 32768
          s_sub_u32 s{sXh}, s{sXh}, 32768
          s_and_b32 s{t0_}, s{sW}, 1
          s_lshl_b32 s{t0_}, s{t0_}, 14
          s_add_u32 s{sXh}, s{sXh}, s{t0_}
          s_lshl_b32 s{t0_}, s{sW}, 15
          s_add_u32 s{sXlo}, s{sXlo}, s{t0_}
          s_add_u32 s{sXhi}, s{sXhi}, s{t0_}
          s_mul_i32 s{sBo}, s{sW}, {16*6144}
          s_lshl_b32 s{t0_}, s{sH}, 6
          s_add_u32 s{sBo}, s{sBo}, s{t0_}
          s_lshl_b32 s{sKV}, s{sH}, 20
          s_lshl_b32 s{t0_}, s{sJ}, 17
          s_add_u32 s{sKV}, s{sKV}, s{t0_}
          s_lshl_b32 s{t0_}, s{sW}, 15
          s_add_u32 s{sKV}, s{sKV}, s{t0_}""")
    def xread(sg, s): return [f"ds_read_b128 {fx(s, rb)}, v{vDX+s} offset:{(sg&1)*32768 + rb*2048}" for rb in range(4)]
    def hread(sg, s): return f"ds_read_b128 {fx(s, 4)}, v{vDH+s} offset:{(sg&1)*32768}"
    def wread(sg, s, cb):
        par = sg & 1; o = []
        for i in range(2):
            if sg < 8 or cb < 8: a, off = vDQ + (cb & 7), par*32768 + (cb >> 3)*16384 + s*8192 + i*1024
            elif cb < 14: a, off = vDB + (cb & 1), par*32768 + ((cb-8) >> 1)*4096 + s*2048 + i*256
            else: a, off = vDBH, par*32768 + (cb-13)*4096 + s*2048 + i*256
            o.append(f"ds_read_b64_tr_b16 {fw(cb)[2*i:2*i+2]}, v{a} offset:{off}")
        return o
    for sal, d in xdma(1) + wdma(1): seq += sal + [d]
    seq += ["WAITVM w0", "s_barrier"] + stamp(1) + xread(0, 0)
    for cb in range(16): seq += wread(0, 0, cb)
    g.emit(seq)
    def nsub(sg): return 64 if sg < 8 else 58
    def first(sg, cb): return 4*cb if (sg < 8 or cb < 14) else 56 + (cb - 14)
    def last(sg, cb): return 4*cb + 3 if (sg < 8 or cb < 14) else 56 + (cb - 14)
    mf = []; G0 = []
    for sg in range(24):
        G0.append(len(mf))
        for s in range(2):
            c0 = 0 if (s == 0 and sg in (0, 8)) else None
            for k in range(nsub(sg)):
                cb, rb = (k >> 2, k & 3) if k < 56 or sg < 8 else (k - 42, 4)
                swap = clean = (cb >= 8) if sg < 8 else (cb in (12, 13, 15))
                mf.append(mfma(tile(k), fx(s, rb), fw(cb), c0) if swap else mfma(tile(k), fw(cb), fx(s, rb), c0))
    G0.append(len(mf))
    S = Sched(mf); BO = 8
    def pace(items, lo, hi, chain, slack=6):
        n = len(items)
        for q, (sal, d) in enumerate(items):
            x = lo + int(q * (hi - lo) / n)
            it = S.add("M", d, x, x + slack, chain=chain, sep=3, pre=sal)
            if q == 0: it["prelo"] = lo - 2
    BAR = {}
    for sg in range(24):
        g0, n = G0[sg], nsub(sg); B = g0 + n + BO; BAR[sg] = B; nx = G0[sg + 1]
        for q, r in enumerate(xread(sg, 1)): S.add("D", r, g0, g0 + 5 + q, chain=("x", sg))
        if sg >= 8: S.add("D", hread(sg, 1), g0, g0 + n - 6)
        for cb in range(16):
            lo = g0 + last(sg, cb)
            for r in wread(sg, 1, cb): S.add("T", r, lo, min(lo + 14, B - 5), chain=("w", sg, cb))
        blk = [f"WAITVM w{sg+1 if not OPT.get('x_nowait') else sg} L", "s_barrier"]
        if sg == 7: blk += stamp(2)
        if OPT.get("fine") and sg in (0, 1, 2, 3, 4, 5, 9, 11, 13, 15, 17, 19): blk += stamp(18 + (0, 1, 2, 3, 4, 5, 9, 11, 13, 15, 17, 19).index(sg))
        S.add("X", blk, B, B)
        if sg < 23:
            for cb in range(16):
                lo = max(B + 1, g0 + n + last(sg, cb))
                for r in wread(sg + 1, 0, cb): S.add("T", r, lo, min(lo + 24, nx + first(sg + 1, cb) - 8), chain=("w", sg, cb))
            for r in xread(sg + 1, 0): S.add("D", r, B + 1, nx - 10)
            if sg + 1 >= 8: S.add("D", hread(sg + 1, 0), B + 1, nx + 20)
        if sg + 2 < 24:
            S.add("S", f"USE {fx(1, 3)}", g0 + 13, g0 + 13, chain="dma")
            pace(xdma(sg + 2), g0 + 15, B - 2, "dma")
            pace(wdma(sg + 2), B + 3, nx + 8, "dma", slack=4)
    a0, a1, a2, a3, acc = 18, 19, 20, 21, 17
    ch = [f"v_mov_b32 v{acc}, 0"]
    for i in range(16):
        ch += L(f"""v_accvgpr_read_b32 v{a1}, a{128+i}
            v_accvgpr_read_b32 v{a3}, a{144+i}
            v_lshlrev_b32 v{a0}, 16, v{a1}
            v_and_b32 v{a1}, 0xffff0000, v{a1}
            v_lshlrev_b32 v{a2}, 16, v{a3}
            v_and_b32 v{a3}, 0xffff0000, v{a3}
            v_mul_f32 v{a0}, v{a0}, v{a2}
            v_mul_f32 v{a1}, v{a1}, v{a3}
            v_cvt_pk_bf16_f32 v{a0}, v{a0}, v{a1}
            v_lshlrev_b32 v{a1}, 16, v{a0}
            v_and_b32 v{a0}, 0xffff0000, v{a0}
            v_add_f32 v{acc}, v{acc}, v{a1}
            v_add_f32 v{acc}, v{acc}, v{a0}""")
    lo = G0[1] + 8
    for c in L(f"""s_lshl_b32 s{t2_}, s2, 3
          s_lshl1_add_u32 s{t2_}, s{sW}, s{t2_}
          v_lshrrev_b32 v18, 5, v0
          v_add_u32 v18, s{t2_}, v18
          v_and_b32 v19, 31, v0
          v_lshlrev_b32 v19, 4, v19
          v_lshl_add_u32 v18, v18, 11, v19"""): S.add("S" if c.startswith("s_") else "A", c, lo - 20, chain="gate", sep=1)
    for i in range(4): S.add("M", f"global_load_dwordx4 a[{128+4*i}:{131+4*i}], v18, s[{sX}:{sX+1}] offset:{512*i}", lo, BAR[1] - 2, chain="gate", sep=4)
    for i in range(4): S.add("M", f"global_load_dwordx4 a[{144+4*i}:{147+4*i}], v19, s[{sGATE}:{sGATE+1}] offset:{512*i}", lo, BAR[1] - 2, chain="gate", sep=4)
    lo = G0[2] + 8
    for c in L(f"""v_mov_b32 v19, 0
          v_min_u32 v18, 1, v0
          v_lshlrev_b32 v18, 30, v18
          s_lshl2_add_u32 s{t2_}, s2, s{sW}
          s_lshl_b32 s{t2_}, s{t2_}, 6
          s_add_u32 s{t2_}, s{t2_}, {WS_INBOX}
          s_and_b32 s{t3_}, s2, 15
          s_lshl_b32 s{t3_}, s{t3_}, 8
          s_add_u32 s{t3_}, s{t3_}, {WS_CNT}"""): S.add("S" if c.startswith("s_") else "A", c, lo - 20, chain="gate", sep=1)
    S.add("M", f"buffer_store_dword v19, v18, {srd(SD)}, s{t2_} offen {ST}", lo, chain="gate", sep=1)
    S.add("M", f"buffer_store_dword v19, v18, {srd(SD)}, s{t3_} offen {ST}", lo, BAR[2] - 2, chain="gate", sep=1)
    lo = BAR[2] + 2
    for c in ch: S.add("A", c, lo, chain="gate")
    for r in (8, 4, 2, 1): S.add("A", f"v_add_f32_dpp v{acc}, v{acc}, v{acc} row_ror:{r} row_mask:0xf bank_mask:0xf", lo, chain="gate", sep=2)
    S.add("A", f"v_mov_b32 v{a0}, v{acc}", lo, chain="gate")
    S.add("A", f"v_permlane16_swap_b32 v{a0}, v{acc}", lo, chain="gate", sep=2)
    for c in L(f"""v_add_f32 v{acc}, v{acc}, v{a0}
            v_cvt_pk_bf16_f32 v{acc}, v{acc}, v{acc}
            v_and_b32 v{acc}, 0xffff0000, v{acc}
            v_mul_f32 v{acc}, 0xbfb8aa3b, v{acc}
            v_exp_f32 v{acc}, v{acc}
            v_add_f32 v{acc}, 1.0, v{acc}
            v_rcp_f32 v{acc}, v{acc}
            v_cvt_pk_bf16_f32 v{a0}, v{acc}, v{acc}
            v_and_b32 v{a0}, 0xffff0000, v{a0}
            v_sub_f32 v{a1}, 1.0, v{a0}
            v_cvt_pk_bf16_f32 v{a1}, v{a1}, v{a1}
            v_and_b32 v{a1}, 0xffff0000, v{a1}
            v_and_b32 v{a2}, 31, v0
            v_lshlrev_b32 v{a2}, 27, v{a2}
            v_lshrrev_b32 v{a3}, 2, v0
            v_add_u32 v{a2}, v{a2}, v{a3}"""):
        S.add("E" if c.startswith(("v_exp", "v_rcp")) else "A", c, lo, chain="gate", sep=1)
    S.add("M", f"buffer_store_dwordx2 v[{a0}:{a1}], v{a2}, {srd(SD)}, s{sT2} offen {ST}", lo, G0[5] + 20, chain="gate", sep=4,
          pre=[f"s_lshl2_add_u32 s{sT2}, s2, s{sW}", f"s_lshl4_add_u32 s{sT2}, s{sT2}, {WS_G}"])
    lo = G0[5]
    ch = L(f"""v_bfe_u32 v{vGB}, v0, 1, 1
          v_lshrrev_b32 v1, 5, v0
          v_xor_b32 v{vGB}, v{vGB}, v1
          v_lshlrev_b32 v{vGB}, 5, v{vGB}
          v_and_b32 v1, 1, v0
          v_lshl_add_u32 v{vGB}, v1, 4, v{vGB}
          v_lshrrev_b32 v1, 2, v0
          v_mul_u32_u24 v1, 6144, v1
          v_add_u32 v{vGB}, v1, v{vGB}
          s_lshr_b32 s{t0_}, s{sW}, 1
          s_lshl_b32 s{t0_}, s{t0_}, 11
          s_add_u32 s{t0_}, s{t0_}, {65536 + 28672}
          s_sub_u32 s{t0_}, s{t0_}, s{sLX}
          v_add_u32 v{vDH}, s{t0_}, v{vDX}
          v_xor_b32 v{vDH+1}, 64, v{vDH}
          v_lshrrev_b32 v1, 4, v0
          v_bfe_u32 v{vDB}, v0, 2, 2
          v_lshl_add_u32 v{vDB}, v1, 3, v{vDB}
          v_lshlrev_b32 v{vDB}, 6, v{vDB}
          v_and_b32 v1, 1, v1
          v_lshl_add_u32 v{vDB}, v1, 5, v{vDB}
          v_and_b32 v1, 3, v0
          v_lshl_add_u32 v{vDB}, v1, 3, v{vDB}
          v_add_u32 v{vDB}, {65536 + 16384}, v{vDB}
          v_xor_b32 v{vDB+1}, 32, v{vDB}
          s_and_b32 s{t0_}, s{sW}, 1
          s_lshl_b32 s{t1_}, s{t0_}, 5
          v_xor_b32 v{vDBH}, s{t1_}, v{vDB}
          s_lshl_b32 s{t1_}, s{t0_}, 6
          v_lshrrev_b32 v1, 3, v0""")
    for c in ch: S.add("S" if c.startswith("s_") else "A", c, lo, chain="gate", sep=1)
    for c in L(f"""v_lshl_add_u32 v{vGX}, v1, 10, v{vGX}
          v_xor_b32 v{vGX+1}, 64, v{vGX}
          v_xor_b32 v{vGH}, s{t1_}, v{vGX}"""):
        S.add("A", c, BAR[5] + 6, G0[6] + 6, chain="gate")
    pf = []
    def pfi(lo, lanes, rowsh, lg_per_row, srdb, so):
        pre = [f"v_and_b32 v22, {(1 << lg_per_row) - 1}, v0", "v_lshlrev_b32 v22, 7, v22"]
        if lg_per_row < 6: pre += [f"v_lshrrev_b32 v23, {lg_per_row}, v0", f"v_lshl_add_u32 v22, v23, {rowsh}, v22"]
        if lanes < 64: pre += [f"v_subrev_u32 v23, {lanes}, v0", "v_not_b32 v23, v23", "v_and_b32 v23, 0x80000000, v23", "v_or_b32 v22, v22, v23"]
        pf.append((lo, pre + L(so), f"buffer_load_dword a{aDUM}, v22, {srd(srdb)}, s{t0_} offen ;@dummy"))
    gw = f"s_lshl2_add_u32 s{t0_}, s2, s{sW}"
    def xc(sh): return f"s_and_b32 s{t1_}, s2, 7\ns_lshl_b32 s{t1_}, s{t1_}, {sh}\ns_add_u32 s{t0_}, s{t0_}, s{t1_}"
    PL = OPT.get("pl", 0)
    pfi(PL, 16, 0, 6, SA, f"{gw}\ns_lshl_b32 s{t0_}, s{t0_}, 11")
    pfi(PL, 32, 13, 3, SB, f"s_lshl_b32 s{t0_}, s{sPF}, 15\n" + xc(10))
    pfi(PL, 32, 13, 3, SC, f"s_lshl_b32 s{t0_}, s{sPF}, 15\n" + xc(10))
    pfi(G0[1] + 8, 32, 0, 6, SE, f"{gw}\ns_lshl_b32 s{t0_}, s{t0_}, 12")
    pfi(G0[2] + 8, 32, 13, 3, SG, f"s_lshl_b32 s{t0_}, s{sPF}, 15\n" + xc(10))
    pfi(G0[3] + 8, 24, 11, 1, SH, f"s_mul_i32 s{t0_}, s{sPF}, 24576\n" + xc(8))
    pfi(G0[3] + 72, 32, 13, 3, SG, f"s_lshl_b32 s{t0_}, s{sPF}, 15\ns_add_u32 s{t0_}, s{t0_}, {4<<20}\n" + xc(10))
    pfi(G0[4] + 8, 24, 11, 1, SH, f"s_mul_i32 s{t0_}, s{sPF}, 24576\ns_add_u32 s{t0_}, s{t0_}, {3<<20}\n" + xc(8))
    if not OPT.get("nopf"):
        for lo, pre, d in pf:
            for c in pre: S.add("S" if c.startswith("s_") else "A", c, max(lo - 20, 0), chain="pf")
            S.add("M", d, lo, lo + 50, chain="pf", sep=1)
    e0 = G0[7] + 64; n0 = G0[8]
    frs = []
    for t in range(4):
        for rb in range(4): frs.append((8*t + rb, 8*t + 4 + rb, (rb >> 1)*16384 + (rb & 1)*4096 + t*1024))
    for db in range(8):
        for u in range(2): frs.append((32 + 4*db + 2*u, 33 + 4*db + 2*u, u*16384 + 8192 + db*1024))
    NDIRECT = 8; ns = 0; later = []
    tmpA, tmpB = tile(54), tile(56)
    for q, (ka, kb, off) in enumerate(frs):
        A, B_ = tile(ka), tile(kb); lo = e0 + kb + 8; hi = n0 + ka - 1; hi2 = n0 + kb - 3
        ch = ("drain",)
        if A.f == "a":
            hi = hi2 = n0 + 52
            for r in range(4): S.add("A", f"v_accvgpr_read_b32 {tmpA[r]}, {A[r]}", lo, hi, chain=ch)
            for r in range(4): S.add("A", f"v_accvgpr_read_b32 {tmpB[r]}, {B_[r]}", lo, hi, chain=ch)
            A, B_ = tmpA, tmpB
        for c in (f"v_cvt_pk_bf16_f32 {B_[3]}, {B_[2]}, {B_[3]}", f"v_cvt_pk_bf16_f32 {B_[2]}, {B_[0]}, {B_[1]}",
                  f"v_cvt_pk_bf16_f32 {B_[0]}, {A[0]}, {A[1]}", f"v_cvt_pk_bf16_f32 {B_[1]}, {A[2]}, {A[3]}"):
            S.add("A", c, lo, hi, chain=ch)
        if q % 4 == 0:
            S.add("M", f"buffer_store_dwordx4 {B_}, v{vL16}, {srd(SD)}, s{sT2} offen {ST} ;@tag=kv", lo, hi2, chain=ch, sep=1)
            S.chains[ch].insert(len(S.chains[ch]) - 5, dict(kind="S", text=[f"s_add_u32 s{sT2}, s{sKV}, {off}"], lo=lo - 2, hi=hi, sep=0, pre=[], g=None))
        else:
            for r in range(4): S.add("A", f"v_accvgpr_write_b32 {stash(ns)[r]}, {B_[r]}", lo, hi2, chain=ch)
            later.append((ns, off)); ns += 1
    assert ns == 24
    for q, (i, off) in enumerate(later if not OPT.get("x_nost") else []):
        sg = 9 + q // 3
        lo = G0[sg] + 4 + (q % 3) * 20
        S.add("M", f"buffer_store_dwordx4 {stash(i)}, v{vL16}, {srd(SD)}, s{sT2} offen {ST} ;@tag=kv", lo, lo + 12, chain="kvst", sep=3,
              pre=[f"s_add_u32 s{sT2}, s{sKV}, {off}"])
    pre, d = signal(SF, 0, 0)
    S.add("S", pre[0], BAR[17] + 1, chain="sig"); S.add("A", pre[1], BAR[17] + 1, chain="sig", sep=1)
    S.add("M", d, BAR[17] + 1, BAR[17] + 12, chain="sig", sep=1)
    S.add("M", f"buffer_load_dword v1, off, {srd(SF)}, 0 sc1", BAR[21] - 12, BAR[21] - 2, chain="sig")
    S.add("X", g.spin(1, SF, 0, 0, 256), BAR[22] + 1, BAR[22] + 1, chain="sig")
    for c in L(f"""s_lshl_b32 s{t2_}, s{sH}, 20
          s_add_u32 s{SA}, s{sWS}, s{t2_}
          s_addc_u32 s{SA+1}, s{sWS+1}, 0"""): pass
    S.add("X", L(f"""s_lshl_b32 s{t2_}, s{sH}, 20
          s_add_u32 s{SA}, s{sWS}, s{t2_}
          s_addc_u32 s{SA+1}, s{sWS+1}, 0"""), G0[22], G0[22] + 30, chain="sa")
    S.add("X", L(f"""s_add_u32 s{t2_}, s{sBHi}, 1
          s_lshl_b32 s{SA+2}, s{t2_}, 16"""), G0[22], G0[22] + 40, chain="sa")
    pace(att_first_dmas(sLX), BAR[22] + 5, BAR[22] + 5 + 12 * 6, "dma")
    lo = BAR[23] + 1
    for c in L(f"""v_and_b32 v12, 15, v0
          v_lshlrev_b32 v12, 3, v12
          s_lshl_b32 s{t0_}, s{sW}, 7
          s_add_u32 s{t0_}, s{t0_}, {WS_G}
          s_lshl_b32 s{t1_}, s{sJ}, 10
          s_add_u32 s{t1_}, s{t1_}, s{t0_}
          s_lshl_b32 s{t2_}, s{sBHi}, 10
          s_add_u32 s{t2_}, s{t2_}, s{t0_}"""): S.add("S" if c.startswith("s_") else "A", c, lo, chain="g", sep=1)
    for rb in range(4):
        S.add("M", f"buffer_load_dwordx2 v[{vG+2*rb}:{vG+2*rb+1}], v12, {srd(SD)}, s{t1_ + (rb>>1)} offen offset:{(rb&1)*512} sc1", lo, chain="g", sep=1)
    g.emit(S.run("gemm12"), eager=10)
    g.emit(stamp(5))
    local_attention(g, aq, bt)

def att_first_dmas(sLX):
    d = []
    for k in range(8):
        sal = []
        if k == 0: sal = [f"s_mov_b32 m0, s{sLX}", f"s_lshl_b32 s{sT}, s{sW}, 14"]
        if k == 4: sal = [f"s_add_u32 m0, s{sLX}, 4096", f"s_add_u32 s{sT}, s{sT}, 4096"]
        d.append((sal, f"buffer_load_dwordx4 v{vL16}, {srd(SA)}, s{sT} offen offset:{(k&3)*1024} sc1 lds ;@tag=k0"))
    for k in range(4):
        sal = []
        if k == 0: sal = [f"s_lshr_b32 s{sT}, s{sLX}, 1", f"s_add_u32 m0, s{sT}, {65536 + 16384}", f"s_and_b32 s{t3_}, s{sT}, 8192",
                          f"s_add_u32 s{sT}, s{sT}, s{t3_}", f"s_add_u32 s{sT}, s{sT}, 8192"]
        d.append((sal, f"buffer_load_dwordx4 v{vL16}, {srd(SA)}, s{sT} offen offset:{k*1024} sc1 lds ;@tag=v0"))
    return d

def local_attention(g, aq, bt):
    q = []
    def e(s): q.extend(L(s))
    hk, hv = R("v", 248), R("v", 252)
    def pk(d, a, b): e(f"v_cvt_pk_bf16_f32 {d}, {a}, {b}")
    if not OPT.get("nopf"):
        e(f"""v_lshlrev_b32 v19, 7, v0
              s_lshl2_add_u32 s{t0_}, s2, s{sW}
              s_lshl_b32 s{t1_}, s{t0_}, 13
              v_add_u32 v18, s{t1_}, v19
              global_load_dword a{aDUM}, v18, s[{sWOA}:{sWOA+1}] ;@dummy
              v_and_b32 v19, 0x7ff, v19
              s_lshl_b32 s{t1_}, s{t0_}, 11
              v_add_u32 v18, s{t1_}, v19
              global_load_dword a{aDUM}, v18, s[{sWOB}:{sWOB+1}] ;@dummy""")
    e(f"s_mov_b32 s{t0_}, {f32(QSCALE)}\ns_mov_b32 s{t1_}, s{t0_}")
    for rb in range(4):
        for t in range(4):
            a, b = aq(2*t, rb), aq(2*t+1, rb)
            for r in (a, b): e(f"v_pk_mul_f32 {r[0:2]}, {r[0:2]}, s[{t0_}:{t1_}]\nv_pk_mul_f32 {r[2:4]}, {r[2:4]}, s[{t0_}:{t1_}]")
            pk(a[0], a[0], a[1]); pk(a[1], a[2], a[3]); pk(a[2], b[0], b[1]); pk(a[3], b[2], b[3])
    def VB(rb, db): return R("v", 88 + 8*rb + 4*db)
    def kprev(rb): return R("v", 120 + 4*rb)
    e(f"""s_lshl_b32 s{t0_}, s{sW}, 11
          s_add_u32 s{t0_}, s{t0_}, 32768
          v_add_u32 v17, s{t0_}, v{vL16}
          v_add_u32 v18, 0x10000, v17
          s_lshr_b32 s{t0_}, s{sW}, 1
          s_lshl_b32 s{t0_}, s{t0_}, 16
          s_and_b32 s{t1_}, s{sW}, 1
          s_lshl3_add_u32 s{t0_}, s{t1_}, s{t0_}
          s_add_u32 s{t0_}, s{t0_}, 32768
          v_add_u32 v19, s{t0_}, v{vL16}""")
    for rb in range(4):
        a, b = bt(1, 0, rb), bt(1, 1, rb)
        pk(a[0], a[0], a[1]); pk(a[1], a[2], a[3]); pk(a[2], b[0], b[1]); pk(a[3], b[2], b[3])
        e(f"ds_write_b128 v{17 + (rb>>1)}, {a} offset:{(rb&1)*8192 + 2048}")
        for db in range(2):
            a = bt(2, db, rb); d = VB(rb, db)
            pk(d[2], a[0], a[1]); pk(d[3], a[2], a[3])
            e(f"ds_write_b64 v{17 + (rb>>1)}, {d[2:4]} offset:{(rb&1)*8192 + 2048 + 1024 + db*8}")
    pk(hk[0], hk[0], hk[1]); pk(hk[1], hk[2], hk[3]); pk(hv[0], hv[0], hv[1]); pk(hv[1], hv[2], hv[3])
    e(f"ds_write_b64 v19, {hk[0:2]}\nds_write_b64 v19, {hv[0:2]} offset:1024")
    for rb in range(4):
        a, b = bt(0, 0, rb), bt(0, 1, rb)
        pk(a[0], a[0], a[1]); pk(a[1], a[2], a[3]); pk(a[2], b[0], b[1]); pk(a[3], b[2], b[3])
    mP, mO, mP0 = R("v", 136), R("v", 140), R("v", 144)
    e(f"""v_and_b32 v20, 15, v0
          v_lshrrev_b32 v21, 4, v0
          v_lshlrev_b32 v21, 2, v21
          v_sub_u32 v20, v20, v21
          v_mov_b32 v21, 0xff800000
          s_or_b32 s{t0_}, s{sJ}, s{sW}
          s_cmp_eq_u32 s{t0_}, 0
          s_cselect_b32 s{t0_}, 0xff800000, 0""")
    for r in range(4):
        e(f"""v_subrev_u32 v22, {r}, v20
              v_and_b32 v23, 0x80000001, v22
              v_cmp_eq_u32 vcc, 0, v23
              v_xor_b32 v22, 0x80000000, v23
              v_cmp_eq_u32 s[{t2_}:{t3_}], 0, v22
              v_cndmask_b32 {mO[r]}, v21, v23, vcc
              s_nop 0
              v_cndmask_b32 {mP[r]}, v21, v22, s[{t2_}:{t3_}]
              v_or_b32 {mP0[r]}, s{t0_}, {mP[r]}""")
    e(f"""v_and_b32 v22, 3, v0
          v_cmp_eq_u32 vcc, 0, v22
          v_mov_b32 v23, 0x3f803f80
          v_mov_b32 v22, 0
          v_cndmask_b32 v{vONE}, v22, v23, vcc
          v_mov_b32 v{vONE+1}, v{vONE}
          v_mov_b32 v{vONE+2}, v{vONE}
          v_mov_b32 v{vONE+3}, v{vONE}
          s_waitcnt lgkmcnt(0)
          s_barrier""")
    for rb in range(4): e(f"ds_read_b128 {kprev(rb)}, v{17 + (rb>>1)} offset:{(rb&1)*8192}")
    for rb in range(4):
        for db in range(2): e(f"ds_read_b64 {VB(rb, db)[0:2]}, v{17 + (rb>>1)} offset:{(rb&1)*8192 + 1024 + db*8}")
    def Sp(rb): return R("v", 216 + 8*rb)
    def So(rb): return R("v", 220 + 8*rb)
    for rb in range(4): e(mfma(So(rb), bt(1, 0, rb), bt(0, 0, rb), mO))
    for rb in range(4): e(mfma(Sp(rb), kprev(rb), bt(0, 0, rb), mP0 if rb == 0 else mP))
    mx, mc = 148, 20
    e(f"s_mov_b32 s{t0_}, {f32(BSCALE)}\ns_nop 1")
    for rb in range(4):
        b = So(rb); e(f"v_max3_f32 v{mx+rb}, {b[0]}, {b[1]}, {b[2]}")
    for rb in range(4):
        a, b = Sp(rb), So(rb)
        e(f"v_max3_f32 v{mx+rb}, v{mx+rb}, {b[3]}, {a[0]}\nv_max3_f32 v{mx+rb}, v{mx+rb}, {a[1]}, {a[2]}\nv_max_f32 v{mx+rb}, v{mx+rb}, {a[3]}")
    for op in ("v_permlane16_swap_b32", "v_permlane32_swap_b32"):
        for rb in range(4): e(f"v_mov_b32 v{mc+rb}, v{mx+rb}")
        for rb in range(4): e(f"{op} v{mc+rb}, v{mx+rb}")
        for rb in range(4): e(f"v_max_f32 v{mx+rb}, v{mx+rb}, v{mc+rb}")
    for rb in range(4): e(f"v_mul_f32 v{mx+rb}, s{t0_}, v{mx+rb}")
    for rb in range(4):
        for k in range(8): e(f"v_fma_f32 v{216+8*rb+k}, v{216+8*rb+k}, s{t0_}, -v{mx+rb}")
        for k in range(8): e(f"v_exp_f32 v{216+8*rb+k}, v{216+8*rb+k}")
    for rb in range(4):
        a, b = Sp(rb), So(rb)
        pk(a[0], a[0], a[1]); pk(a[1], a[2], a[3]); pk(a[2], b[0], b[1]); pk(a[3], b[2], b[3])
    for rb in range(4):
        e(mfma(So(rb), R("v", vONE), Sp(rb), 0))
        for db in range(2): e(mfma(bt(db, 1, rb), VB(rb, db), Sp(rb), 0))
    e(f"""s_add_u32 s{t0_}, s{sH}, 128
          s_lshl_b32 s{t0_}, s{t0_}, 13
          s_lshl_b32 s{t1_}, s{sW}, 10
          s_add_u32 s{t0_}, s{t0_}, s{t1_}
          s_add_u32 s{t0_}, s{t0_}, {WS_CTX}
          s_mul_i32 s{t1_}, s{sJ}, {160*8192}
          s_add_u32 s{t1_}, s{t1_}, s{t0_}
          s_mul_i32 s{t2_}, s{sBHi}, {160*8192}
          s_add_u32 s{t2_}, s{t2_}, s{t0_}""")
    for rb in range(4): e(f"v_rcp_f32 v{mx+rb}, {So(rb)[0]}")
    for rb in range(4): e(f"v_mul_f32 v{mx+rb}, v{mx+rb}, v{vG+2*rb+1}")
    for rb in range(4):
        a, b = bt(0, 1, rb), bt(1, 1, rb)
        for r in (a, b):
            for k in range(4): e(f"v_mul_f32 {r[k]}, {r[k]}, v{mx+rb}")
        pk(a[0], a[0], a[1]); pk(a[1], a[2], a[3]); pk(a[2], b[0], b[1]); pk(a[3], b[2], b[3])
        if rb & 1: e(f"s_add_u32 s{t1_ + (rb>>1)}, s{t1_ + (rb>>1)}, 4096")
        e(f"buffer_store_dwordx4 {a}, v{vL16}, {srd(SD)}, s{t1_ + (rb>>1)} offen {ST} ;@tag=ob")
    g.emit(q)

RA = 6
sR5, sKh, sCtx, sWo5, sL5, sCol = 82, 83, 84, 85, 86, 87
vG5 = 17
def p5_ctx(slot, ks, rb): return R("v", (224, 240, 192, 208)[slot & 3] + 8*ks + 4*rb)
def p5_lds(tau): return (131072, 147456, 98304, 114688, 65536, 81920, 32768, 49152)[tau & 7]
def p5_wdma(tau, rel):
    return [([f"s_add_u32 m0, s{sL5}, {p5_lds(tau) + i*1024}", f"s_add_u32 s{sT}, s{sWo5}, {rel*131072 + i*8192}"],
             f"buffer_load_dwordx4 v{vG5 + (i&1)}, {srd(SB if tau < 8 else SC)}, s{sT} offen lds ;@tag=w5_{tau&7}") for i in range(4)]
def p5_cld(tau, rel):
    o = []
    for ks in range(2):
        for rb in range(2):
            o.append(([f"s_add_u32 s{sT2}, s{sCtx}, {rel*16384 + ks*8192}"] if rb == 0 else [],
                      f"buffer_load_dwordx4 {p5_ctx(tau, ks, rb)}, v{vL16}, {srd(SD)}, s{sT2} offen offset:{rb*1024} sc1"))
    return o
def p5_setup():
    return L(f"""s_and_b32 s{t0_}, s2, 7
          s_lshr_b32 s{t1_}, s2, 3
          s_lshr_b32 s{sKh}, s{t0_}, 2
          s_and_b32 s{t2_}, s{t0_}, 1
          s_and_b32 s{t3_}, s{t1_}, 7
          s_lshl3_add_u32 s{sR5}, s{t2_}, s{t3_}
          s_and_b32 s{t2_}, s{t0_}, 2
          s_lshr_b32 s{t3_}, s{t1_}, 3
          s_lshl1_add_u32 s{sCol}, s{t2_}, s{t3_}
          s_lshl_b32 s{sCol}, s{sCol}, 8
          s_lshl_b32 s{sL5}, s{sW}, 12
          s_lshl_b32 s{sWo5}, s{sW}, 15
          s_add_u32 s{sWo5}, s{sWo5}, s{sCol}
          s_lshl_b32 s{t0_}, s{sKh}, 20
          s_add_u32 s{sWo5}, s{sWo5}, s{t0_}
          s_mul_i32 s{sCtx}, s{sR5}, {160*8192}
          s_lshl_b32 s{t0_}, s{sW}, 11
          s_add_u32 s{sCtx}, s{sCtx}, s{t0_}
          s_lshl_b32 s{t0_}, s{sKh}, 17
          s_add_u32 s{sCtx}, s{sCtx}, s{t0_}
          s_add_u32 s{sCtx}, s{sCtx}, {WS_CTX + 128*8192}
          s_mov_b32 s{SB}, s{sWOB}
          s_mov_b32 s{SB+1}, s{sWOB+1}
          s_mov_b32 s{SB+2}, {2<<20}
          s_mov_b32 s{SC}, s{sWOA}
          s_mov_b32 s{SC+1}, s{sWOA+1}
          s_mov_b32 s{SC+2}, {8<<20}
          v_lshrrev_b32 v19, 4, v0
          v_bfe_u32 v{vG5}, v0, 1, 3
          v_xor_b32 v{vG5}, v{vG5}, v19
          v_lshlrev_b32 v{vG5}, 5, v{vG5}
          v_lshl_add_u32 v{vG5}, v19, 11, v{vG5}
          v_and_b32 v19, 1, v0
          v_lshl_add_u32 v{vG5}, v19, 4, v{vG5}
          v_xor_b32 v{vG5+1}, 128, v{vG5}""")

def attention(g):
    p = g.p
    vDK, vDV = 2, 3
    sSrc, sM0, sCnt, sFB, sLX, sCb = 70, 71, 72, 73, 76, 74
    def Q(qb, t): return R("v", vQ + 16*qb + 4*t)
    def S_(b, kb, qb): return R("v", 88 + 32*b + 8*qb + 4*kb)
    def Pp(b, qb): return R("v", 152 + 16*b + 4*qb)
    def NM(qb): return R("v", 184 + 4*qb)
    def MK(kbg): return R("v", 200 + 4*kbg)
    def CD(kb): return R("v", 216 + 4*kb)
    def O(db, qb): return R("a", 32*qb + 4*db)
    def Lr(qb): return R("a", 128 + 4*qb)
    def F(f): return R("a", 144 + 4*f)
    mx, mc, vBad = 20, 224, 1
    def rd(f, i): return f"ds_read_b128 {F(f)}, v{vDV if f >= 8 else vDK} offset:{i*8192 + (f & 7)*1024}"
    def dma(k, tag):
        sal = []
        if k == 0: sal = [f"s_mov_b32 m0, s{sM0}"]
        if k == 4: sal = [f"s_add_u32 m0, s{sM0}, 4096", f"s_add_u32 s{sT}, s{sSrc}, 4096"]
        return sal, f"buffer_load_dwordx4 v{vL16}, {srd(SA)}, s{sSrc if k < 4 else sT} offen offset:{(k&3)*1024} sc1 lds ;@tag={tag}"
    def act(st, uu, base):
        if st == "full" or (st == "diag" and uu < 2): return (base, base + 1)
        if st == "diag": return (base + 1,)
        return ()
    def acts(sts, uu): return act(sts[0], uu, 0) + act(sts[1], uu, 2)
    def masked(sts, uu):
        for b, st in enumerate(sts):
            if st == "diag": return 2*b + (uu >> 1)
        return None
    def cdcalc(sts, uu):
        qb = masked(sts, uu)
        if qb is None: return []
        return [f"v_add_f32 {CD(kb)[r]}, {NM(qb)[0]}, {MK(2*(uu & 1) + kb)[r]}" for kb in range(2) for r in range(4)]
    def epi(qbs, tmpb):
        o = []
        for qb in qbs: o.append(f"v_accvgpr_read_b32 v{mx+qb}, {Lr(qb)[0]}")
        o.append(f"v_max3_f32 v{vBad}, v{vBad}, v{mx+qbs[0]}, v{mx+qbs[1]}")
        for qb in qbs: o.append(f"v_rcp_f32 v{mx+qb}, v{mx+qb}")
        o.append("s_nop 0")
        for qb in qbs: o.append(f"v_mul_f32 v{mx+qb}, v{mx+qb}, v{vG+2*qb}")
        k = 0
        for qb in qbs:
            for t in range(4):
                tmp = R("v", tmpb[k & 1], 8); k += 1
                for r in range(8): o.append(f"v_accvgpr_read_b32 {tmp[r]}, {O(2*t + (r >> 2), qb)[r & 3]}")
                o.append(f"s_add_u32 s{sT2}, s{sCb + (qb>>1)}, {t*8192 + (qb&1)*4096}")
                for r in range(8): o.append(f"v_mul_f32 {tmp[r]}, {tmp[r]}, v{mx+qb}")
                for r in range(4): o.append(f"v_cvt_pk_bf16_f32 {tmp[r]}, {tmp[2*r]}, {tmp[2*r+1]}")
                o.append(f"buffer_store_dwordx4 {tmp[0:4]}, v{vL16}, {srd(SD)}, s{sT2} offen {ST} ;@tag=ctx")
        return o

    def rnd(i, cur, prev, first=False, lastg=False, hook=None):
        qk = acts(cur, i)
        sm = acts(cur, i - 1) if i >= 1 else acts(prev, 3)
        pv = acts(cur, i - 2) if i >= 2 else acts(prev, i + 2)
        czero = first and i == 2
        mq = masked(cur, i)
        mf = []
        for f in range(8):
            kb, t = f >> 2, f & 3
            for qb in qk: mf.append(mfma(S_(i & 1, kb, qb), F(f), Q(qb, t), (CD(kb) if qb == mq else NM(qb)) if t == 0 else None))
        for db in range(8):
            for qb in pv: mf.append(mfma(O(db, qb), F(8 + db), Pp(i & 1, qb), 0 if czero else None))
        for qb in pv: mf.append(mfma(Lr(qb), R("v", vONE), Pp(i & 1, qb), 0 if czero else None))
        n = len(mf); nq, npv = len(qk), len(pv)
        b = (i + 1) & 1
        E = []; Cv = []
        for qb in sm:
            for kb in range(2):
                s = S_(b, kb, qb)
                for r in range(4): E.append(f"v_exp_f32 {s[r]}, {s[r]}")
                Cv += [f"v_cvt_pk_bf16_f32 {Pp(b, qb)[2*kb]}, {s[0]}, {s[1]}", f"v_cvt_pk_bf16_f32 {Pp(b, qb)[2*kb+1]}, {s[2]}, {s[3]}"]
        knext = not (lastg and i == 3)
        D = []
        for d in range(16):
            f = d + RA
            if f < 8: D.append(rd(f, i))
            elif f < 16: D.append(rd(f, i) if pv else None)
            else: D.append(rd(f - 16, (i + 1) & 3) if knext else None)
        S = Sched(mf)
        steady = (nq, len(sm), npv) in ((2, 2, 2), (4, 4, 4))
        if (nq, len(sm), npv) == (2, 2, 2):
            eg = [2*e + 1 for e in range(16)]; cg = [4*k + 4 for k in range(8)]
            if i & 1: dg = [0, 2, 2, 4, 6, 8, 12, 14, 14, 16, 20, 24, 26, 28, 32, 33]; mg = [10, None, 22, 30]; bg = 18
            else: dg = [0, 2, 2, 4, 8, 12, 14, 14, 16, 20, 24, 26, 26, 28, 32, 33]; mg = [6, 10, 18, 22, 30]; bg = None
        elif (nq, len(sm), npv) == (4, 4, 4):
            eg = [2*e + 1 for e in range(32)]; cg = [4*k + 4 for k in range(16)]
            dg = [4*d for d in range(16)]
            if i & 1: mg = [14, None, 46, 58]; bg = 38
            else: mg = [6, 18, 30, 42, 58]; bg = None
        else:
            use = [f * nq for f in range(8)] + [8*nq + d * npv for d in range(8)]
            dg = [min(n - 1, use[d]) for d in range(16)]
            bg = max(dg[16 - RA] - 1, dg[15 - RA]) if i & 1 else None
            if i & 1: mg = [bg // 2, None, bg + (n - bg) // 3, bg + 2 * (n - bg) // 3]
            else: mg = [(q * n) // 5 + 1 for q in range(5)]
            eg = cg = None
        tA, tB = ("kvA", "kvB") if i in (0, 1) else ("kvB", "kvA")
        if i & 1: ks = [(mg[0], 7, tA, not (lastg and i == 3)), (mg[2], 0, tB, not lastg), (mg[3], 1, tB, not lastg)]
        else: ks = [(gq, 2 + q, tA, not (lastg and i == 2)) for q, gq in enumerate(mg)]
        w = 0 if steady else 3
        ch = "rd"
        for d in range(16):
            if d == 16 - RA and i & 1:
                wt = ("kvB" if i == 1 else "kvA") + (",v0,ob" if first else "")
                S.add("X", [f"WAITVM {wt}", "s_barrier"], bg, bg if steady else min(bg + 2, n - 1), chain=ch)
            if D[d]: S.add("D", D[d], dg[d], min(dg[d] + w, n - 1), chain=ch)
        for gq, k, tag, on in ks:
            if not on: continue
            sal, dd = dma(k, tag)
            if k == 0: sal = [f"s_xor_b32 s{sM0}, s{sM0}, {16384 if i == 1 else 16384 + 32768}", f"s_add_u32 s{sSrc}, s{sSrc}, 32768"] + sal
            lo = gq if (k != 0 or steady) else max(gq, min(bg + 3, n - 1))
            hi = min(lo + w, n - 1) if k != 7 else min(lo + w, bg - 1)
            if steady:
                if k == 0:
                    for q, s_ in enumerate(sal): S.add("S", s_, (12, 16, 20)[q] * nq // 2, (12, 16, 20)[q] * nq // 2 , chain="m")
                elif sal:
                    for q, s_ in enumerate(sal): S.add("S", s_, gq - 6 + 4*q if nq == 2 else gq - 6 + 2*q, gq - 6 + 4*q if nq == 2 else gq - 6 + 2*q, chain="m")
                S.add("M", dd, lo, lo, chain="m")
            else:
                S.add("M", dd, lo, hi, chain="m", pre=sal, sep=1)
        if i == 3:
            x = dg[16 - RA] - 1
            S.add("A", f"v_xor_b32 v{vDK}, 0x8000, v{vDK}", min(dg[7 - RA] + w + 1, x), x)
            S.add("A", f"v_xor_b32 v{vDV}, 0x8000, v{vDV}", min(dg[15 - RA] + w + 1, n - 1), n - 1)
        if eg:
            for k in range(len(Cv)):
                S.add("E", E[2*k], eg[2*k], eg[2*k]); S.add("E", E[2*k+1], eg[2*k+1], eg[2*k+1]); S.add("A", Cv[k], cg[k], cg[k])
        else:
            ne = len(E)
            for k in range(len(Cv)):
                for e in (2*k, 2*k + 1):
                    S.add("E", E[e], 0, int((e + 1) * (n - 2) / ne), chain=("e", k))
                S.add("A", Cv[k], 0, n - 1, chain=("e", k), sep=1)
        if i < 3 and not (first and i == 0):
            for c in cdcalc(cur, i + 1): S.add("A", c, min(4*nq + nq + 3, n - 3), n - 3)
        if hook: hook(S, n, bg)
        return S.run()

    FULL2, LD, TR, TD = ("full", "full"), ("diag", "full"), ("off", "full"), ("off", "diag")
    NONE = ("off", "off")
    def xmax():
        o = []
        for op in ("v_permlane16_swap_b32", "v_permlane32_swap_b32"):
            o += [f"v_mov_b32 v{mc+qb}, v{mx+qb}" for qb in range(4)]
            o += [f"{op} v{mc+qb}, v{mx+qb}" for qb in range(4)]
            o += [f"v_max_f32 v{mx+qb}, v{mx+qb}, v{mc+qb}" for qb in range(4)]
        return o
    def hook_sig(S, n, bg):
        pre, d = signal(SF, 0, 128)
        S.add("S", pre[0], 0, chain="sig"); S.add("A", pre[1].replace("v1,", "v19,"), 0, chain="sig", sep=1)
        skip = f"s_cmp_eq_u32 s{sFB}, 0"
        S.add("X", [skip, f"s_cselect_b32 s{t1_}, 0, 0x1000"], 0, chain="sig")
        S.add("M", d.replace("v1,", "v19,").replace(f"{srd(SF)}, 0", f"{srd(SF)}, s{t1_}"), 0, n - 1, chain="sig", sep=1)
    def hook_pf(S, n, bg):
        if OPT.get("nopf"): return
        for c in L(f"""v_lshlrev_b32 v19, 7, v0
              s_lshl2_add_u32 s{t0_}, s2, s{sW}
              s_lshl_b32 s{t0_}, s{t0_}, 13
              v_add_u32 v19, s{t0_}, v19"""): S.add("S" if c.startswith("s_") else "A", c, 0, chain="pf", sep=1)
        S.add("M", f"global_load_dword a{aDUM}, v19, s[{sWOA}:{sWOA+1}] ;@dummy", bg + 1, n - 4, chain="pf", sep=1)
        S.add("A", f"v_and_b32 v19, {(2<<20)-1}, v19", 0, chain="pf", sep=1)
        S.add("M", f"global_load_dword a{aDUM}, v19, s[{sWOB}:{sWOB+1}] ;@dummy", bg + 1, n - 1, chain="pf", sep=1)
    def first_group(cur):
        seq = cdcalc(cur, 0)
        seq += [rd(f, 0) for f in range(RA)]
        for k in range(2):
            sal, d = dma(k, "kvA"); seq += sal + (["s_nop 0"] if k == 0 else []) + [d]
        seq += rnd(0, cur, NONE, first=True)
        seq += ["s_nop 3", f"s_cmp_eq_u32 s{sFB}, 0", f"s_cselect_b32 s{t0_}, -1, 0"]
        for qb in range(4):
            a = S_(0, 0, qb); seq += [f"v_max3_f32 v{mx+qb}, {a[0]}, {a[1]}, {a[2]}"]
        for qb in range(4):
            a, b = S_(0, 0, qb), S_(0, 1, qb)
            seq += [f"v_max3_f32 v{mx+qb}, v{mx+qb}, {a[3]}, {b[0]}", f"v_max3_f32 v{mx+qb}, v{mx+qb}, {b[1]}, {b[2]}", f"v_max_f32 v{mx+qb}, v{mx+qb}, {b[3]}"]
        seq += xmax()
        seq += [f"v_and_b32 v{mx+qb}, s{t0_}, v{mx+qb}" for qb in range(4)]
        for qb in range(4): seq += [f"v_sub_f32 {NM(qb)[r]}, {NM(qb)[r]}, v{mx+qb}" for r in range(4)]
        seq += cdcalc(cur, 1)
        for qb in range(4):
            for kb in range(2): seq += [f"v_sub_f32 {S_(0, kb, qb)[r]}, {S_(0, kb, qb)[r]}, v{mx+qb}" for r in range(4)]
        seq += rnd(1, cur, NONE, first=True) + rnd(2, cur, NONE, first=True, hook=hook_sig) + rnd(3, cur, NONE, first=True)
        return seq
    def hook_p5a(S, n, bg):
        for c in p5_setup(): S.add("S" if c.startswith("s_") else "A", c, 0, n - 1, chain="p5")
        S.add("M", f"buffer_load_dword v19, off, {srd(SF)}, 0 offset:128 sc1", 0, n - 1, chain="p5")
    def hook_p5b(S, n, bg):
        S.add("X", g.spin(19, SF, 0, 128, 256), 0, 0, chain="p5")
        for sal, d in p5_wdma(0, 0) + p5_cld(0, 0): S.add("M", d, 3, n - 1, chain="p5", pre=sal, sep=3)
    def hook_p5c(S, n, bg):
        for sal, d in p5_wdma(1, 1) + p5_cld(1, 1): S.add("M", d, 2, n - 1, chain="p5", pre=sal, sep=2)
    def group(cur, prev, lastg=False, loepi=False):
        seq = cdcalc(cur, 0) + (["s_nop 0"] if masked(cur, 0) is not None else [])
        hk = (hook_p5a, None, hook_p5b, hook_p5c) if lastg else (None,) * 4
        for i in range(4):
            seq += rnd(i, cur, prev, lastg=lastg, hook=hk[i])
            if loepi and i == 1: seq += ["s_nop 7"] + epi((0, 1), (88, 120))
        return seq

    q = L(f"""s_mov_b32 s{sFB}, 0
          v_and_b32 v20, 15, v0
          v_lshrrev_b32 v21, 4, v0
          v_lshlrev_b32 v21, 2, v21
          v_sub_u32 v20, v20, v21
          s_lshl_b32 s{t0_}, s{sW}, 4
          v_add_u32 v20, s{t0_}, v20""")
    for k in range(16):
        q += [f"v_subrev_u32 v21, {16*(k >> 2) + (k & 3)}, v20", f"v_ashrrev_i32 v21, 31, v21", f"v_and_b32 v{200+k}, 0xff800000, v21"]
    for k in range(16): q.append(f"v_mov_b32 v{184+k}, 0")
    q += L(f"""s_lshl_b32 s{t0_}, s{sH}, 15
          s_lshl_b32 s{t1_}, s{sW}, 10
          s_add_u32 s{t0_}, s{t0_}, s{t1_}
          s_add_u32 s{t0_}, s{t0_}, {WS_CTX}
          s_mul_i32 s{sCb}, s{sJ}, {160*8192}
          s_add_u32 s{sCb}, s{sCb}, s{t0_}
          s_mul_i32 s{sCb+1}, s{sBHi}, {160*8192}
          s_add_u32 s{sCb+1}, s{sCb+1}, s{t0_}""")
    START = p.new("attstart")
    q += [START + ":"] + L(f"""v_mov_b32 v{vDK}, v{vL16}
          v_add_u32 v{vDV}, 0x10000, v{vL16}
          v_mov_b32 v{vBad}, 0
          s_and_b32 s{t0_}, s{sW}, 1
          s_lshr_b32 s{t1_}, s{sW}, 1
          s_lshl_b32 s{sM0}, s{t0_}, 13
          s_lshl_b32 s{t2_}, s{t1_}, 16
          s_add_u32 s{sM0}, s{sM0}, s{t2_}
          s_add_u32 s{sM0}, s{sM0}, 32768
          s_lshl_b32 s{sSrc}, s{t0_}, 14
          s_mul_i32 s{t1_}, s{t1_}, 24576
          s_sub_u32 s{sSrc}, s{sSrc}, s{t1_}
          s_add_u32 s{sSrc}, s{sSrc}, 65536
          WAITVM k0 L
          s_barrier""") + stamp(6)
    g.emit(q)
    lab = {k: p.new(k) for k in ("F1", "D", "DD", "T", "T1", "S", "SD", "TAIL")}
    st0 = (list(g.lg), list(g.vm))
    def setst(s): g.lg, g.vm = list(s[0]), list(s[1])
    def getst(): return (list(g.lg), list(g.vm))
    def canon():
        lg = [(r, 0) for r, a in g.lg]
        return (lg, [("kvB", [])] * 8 + [("kvA", [])] * 2)
    p(f"s_cmp_eq_u32 s{sJ}, 0\ns_cbranch_scc1 {lab['F1']}")
    g.emit(first_group(FULL2)); cs = canon()
    g.emit(stamp(12))
    p(f"s_sub_u32 s{sCnt}, s{sJ}, 1\ns_cmp_eq_u32 s{sCnt}, 0\ns_cbranch_scc1 {lab['DD']}")
    p(".p2align 3"); p.label(lab["D"]); setst(cs)
    g.emit(group(FULL2, FULL2) + [f"s_sub_u32 s{sCnt}, s{sCnt}, 1", f"s_cmp_lg_u32 s{sCnt}, 0"]); assert canon() == cs
    p(f"s_cbranch_scc1 {lab['D']}")
    p.label(lab["DD"]); setst(cs)
    g.emit(stamp(13) + group(LD, FULL2)); assert canon() == cs or OPT["stamps"]
    p(f"s_cmp_eq_u32 s{sJ}, 7\ns_cbranch_scc1 {lab['T1']}")
    p.label(lab["T"]); setst(cs)
    g.emit(stamp(14) + group(TR, LD, loepi=True) + stamp(15))
    p(f"s_lshl_b32 s{sCnt}, s{sJ}, 1\ns_sub_u32 s{sCnt}, 13, s{sCnt}")
    p(".p2align 3"); p.label(lab["S"]); setst(cs)
    g.emit(group(TR, TR) + [f"s_sub_u32 s{sCnt}, s{sCnt}, 1", f"s_cmp_lg_u32 s{sCnt}, 0"]); assert canon() == cs
    p(f"s_cbranch_scc1 {lab['S']}")
    setst(cs)
    g.emit(stamp(16) + group(TD, TR, lastg=True))
    ts = getst()
    p.label(lab["TAIL"])
    seq = stamp(17) + [rd(8 + d, 0) for d in range(8)] + [f"ds_read_b128 {F(d)}, v{vDV} offset:{8192 + d*1024}" for d in range(8)]
    for kb in range(2):
        s = S_(1, kb, 3); seq += [f"v_exp_f32 {s[r]}, {s[r]}" for r in range(4)]
    for kb in range(2):
        s = S_(1, kb, 3); seq += [f"v_cvt_pk_bf16_f32 {Pp(1, 3)[2*kb]}, {s[0]}, {s[1]}", f"v_cvt_pk_bf16_f32 {Pp(1, 3)[2*kb+1]}, {s[2]}, {s[3]}"]
    seq += [mfma(Lr(3), R("v", vONE), Pp(0, 3))] + [mfma(O(db, 3), F(8 + db), Pp(0, 3)) for db in range(8)]
    seq += [mfma(Lr(3), R("v", vONE), Pp(1, 3))] + [mfma(O(db, 3), F(db), Pp(1, 3)) for db in range(8)]
    seq += stamp(7)
    ep = epi((2, 3), (88, 120))
    k = ep.index("s_nop 0")
    ep[k:k+1] = L(f"""s_mov_b32 s{t0_}, {f32(LTHR if not OPT.get('forcefb') else 0.0)}
          v_cmp_le_f32 vcc, s{t0_}, v{vBad}
          s_lshl_b32 s{t1_}, s{sW}, 2
          s_cmp_lg_u64 vcc, 0
          s_cselect_b32 s{t0_}, 1, 0
          v_mov_b32 v96, s{t1_}
          v_mov_b32 v97, s{t0_}
          ds_write_b32 v96, v97""")
    seq += ep
    FB = p.new("fallback")
    seq += L(f"""v_mov_b32 v96, 0
          WAITVM w5_0 L
          s_barrier
          ds_read_b128 v[100:103], v96""") + stamp(8)
    g.emit(seq)
    g.fbcheck = L(f"""v_or3_b32 v100, v100, v101, v102
          v_or_b32 v100, v100, v103
          s_nop 0
          v_readfirstlane_b32 s{t0_}, v100 ;@val=0
          s_nop 0
          s_cmp_gt_u32 s{t0_}, s{sFB}
          s_cbranch_scc1 {FB} ;@br=fb""")
    es = getst()
    main = g.p; g.p = P(); g.p.uid = main.uid + 1000
    g.p.label(lab["F1"]); setst(st0)
    g.emit(first_group(LD) + stamp(12) + stamp(13)); assert canon() == cs or OPT["stamps"]
    g.p(f"s_branch {lab['T']}")
    g.p.label(lab["T1"]); setst(cs)
    g.emit(stamp(14) + stamp(15) + stamp(16) + group(TD, LD, lastg=True, loepi=True))
    assert [e for e in g.vm[-16:]] == [e for e in ts[1][-16:]] and g.lg == [] and ts[0] == [], (g.lg, ts[0])
    g.p(f"s_branch {lab['TAIL']}")
    g.p.label(FB); setst(([], []))
    sU = 88
    q = L(f"""s_waitcnt vmcnt(0) lgkmcnt(0)
          s_barrier
          s_mov_b32 s{sFB}, 1
          s_mov_b32 s{sU}, 0
          v_and_b32 v228, 15, v0
          v_lshrrev_b32 v229, 4, v0
          v_lshlrev_b32 v229, 2, v229
          v_sub_u32 v228, v228, v229
          s_lshl_b32 s{t0_}, s{sW}, 4
          v_add_u32 v228, s{t0_}, v228
          s_lshl_b32 s{t0_}, s{sBHi}, 7
          v_add_u32 v230, s{t0_}, v228
          s_lshl_b32 s{t0_}, s{sJ}, 7
          v_add_u32 v228, s{t0_}, v228
          v_add_u32 v229, 64, v228
          v_add_u32 v231, 64, v230""")
    for sal, d in att_first_dmas(sLX): q += sal + ["s_nop 0", d]
    for qb in range(4): q.append(f"v_mov_b32 v{mx+qb}, 0xff800000")
    FL = g.p.new("fbl"); q.append(FL + ":")
    for f in range(8):
        if f == 4: q.append(f"s_add_u32 s{sT}, s{sU}, 4096")
        q.append(f"buffer_load_dwordx4 {F(f)}, v{vL16}, {srd(SA)}, s{sU if f < 4 else sT} offen offset:{(f&3)*1024} sc1")
    for qb in range(4):
        for kb in range(2):
            for r in range(4):
                c = S_(0, kb, qb)[r]
                q += [f"v_subrev_u32 {c}, {16*kb + r}, v{228+qb}", f"v_ashrrev_i32 {c}, 31, {c}", f"v_and_b32 {c}, 0xff800000, {c}"]
        q.append(f"v_subrev_u32 v{228+qb}, 32, v{228+qb}")
    q.append("s_waitcnt vmcnt(0)")
    for f in range(8):
        for qb in range(4): q.append(mfma(S_(0, f >> 2, qb), F(f), Q(qb, f & 3)))
    q.append("s_nop 7")
    for qb in range(4):
        for kb in range(2):
            a = S_(0, kb, qb)
            q += [f"v_max3_f32 v{mx+qb}, v{mx+qb}, {a[0]}, {a[1]}", f"v_max3_f32 v{mx+qb}, v{mx+qb}, {a[2]}, {a[3]}"]
    q += L(f"s_add_u32 s{sU}, s{sU}, 16384\ns_cmp_lt_u32 s{sU}, s{SA+2}\ns_cbranch_scc1 {FL}")
    q += xmax()
    for qb in range(4): q += [f"v_sub_f32 {NM(qb)[r]}, 0, v{mx+qb}" for r in range(4)]
    q.append(f"s_branch {START}")
    g.emit(q)
    g.ool += g.p.l; main.uid = g.p.uid + 1000; g.p = main
    setst(es)

def phase5(g):
    p = g.p
    vD = 88
    sCnt = 70
    def acc(rb, cb): return R("v", 24 + 32*rb + 4*cb)
    def fw(b, cb): return R("a", 32*b + 4*cb)
    def wread(tau, ks, cb):
        base = p5_lds(tau); win = 0 if base >= 98304 else 1
        off = base - (98304 if win == 0 else 32768)
        return [f"ds_read_b64_tr_b16 {fw(ks, cb)[2*i:2*i+2]}, v{vD + 16*win + cb} offset:{off + ks*8192 + i*4096}" for i in range(2)]
    q = L(f"""v_lshrrev_b32 v112, 4, v0
          v_bfe_u32 v113, v0, 2, 2
          v_lshl_add_u32 v114, v112, 2, v113
          v_and_b32 v115, 3, v0
          v_lshlrev_b32 v115, 3, v115
          v_lshl_add_u32 v115, v114, 8, v115
          v_add_u32 v115, 98304, v115
          v_and_b32 v114, 7, v114
          s_lshl_b32 s{t0_}, s{sKh}, 2
          v_xor_b32 v114, s{t0_}, v114""")
    for n in range(8):
        q += [f"v_xor_b32 v112, {n}, v114", f"v_lshl_add_u32 v{vD+n}, v112, 5, v115", f"v_xor_b32 v{vD+16+n}, 0x10000, v{vD+n}"]
    q += g.fbcheck
    for cb in range(8): q += wread(0, 0, cb)
    q += L(f"""s_lshr_b32 s{t0_}, s{sH}, 4
          s_lshl1_add_u32 s{t0_}, s{sJ}, s{t0_}
          s_lshl_b32 s71, s{t0_}, 8
          s_sub_u32 s{t0_}, 15, s{sR5}
          s_min_u32 s{t0_}, s{t0_}, s{sR5}
          s_lshl1_add_u32 s{t0_}, s{t0_}, s{sKh}
          s_lshl_b32 s72, s{t0_}, 8""") + mk_srd(SF, sWS, 4096, WS_CNT)
    g.emit(q)
    DW, DC = 4, 3
    def body(t0, kind):
        mf = []
        for st in range(8):
            for ks in range(2):
                c0 = 0 if (kind == "first" and st == 0 and ks == 0) else None
                mf += [mfma(acc(rb, cb), fw(ks, cb), p5_ctx(st, ks, rb), c0) for cb in range(8) for rb in range(2)]
        S = Sched(mf)
        for st in range(8):
            tau = t0 + st; g0 = 32 * st; B = g0 + 15
            k = 0
            for cb in range(8):
                for r in wread(tau, 1, cb): S.add("T", r, g0 + (k * 13) // 16 - (1 if k == 0 and st else 0) * 0, g0 + 2 + (k * 13) // 16, chain="t"); k += 1
            if tau < 39:
                S.add("X", [f"WAITVM w5_{(tau+1)&7}" + (",ctx" if (kind == "first" and st == 1) else ""), "s_barrier"], B, B + 1, chain="t")
                k = 0
                for cb in range(8):
                    for r in wread(tau + 1, 0, cb): S.add("T", r, B + 1 + (k * 13) // 16, min(B + 3 + (k * 13) // 16, g0 + 31), chain="t"); k += 1
            lw, lc = [], []
            if kind == "first":
                wl = {0: (2, 3), 1: (4, 5)}.get(st, (st + DW,)); cl = {0: (2, 3)}.get(st, (st + DC,))
            else: wl, cl = (st + DW,), (st + DC,)
            for x in cl:
                if t0 + x < 40: lc += p5_cld(t0 + x, x if (kind != "first" or x < 8) else x - 8)
            for x in wl:
                if t0 + x < 40: lw += p5_wdma(t0 + x, x if (kind != "first" or x < 8) else x - 8)
            if kind == "first":
                if st == 8 - DW:
                    S.add("X", L(f"s_mul_i32 s{t0_}, s{sKh}, {3<<20}\ns_add_u32 s{sWo5}, s{sWo5}, s{t0_}"), g0, g0, chain="ld")
                if st == 8 - DC - 1:
                    S.add("M", f"buffer_load_dword v19, off, {srd(SF)}, s72 sc1", g0, g0 + 2, chain="ld")
                if st == 8 - DC:
                    S.add("X", g.spin(19, SF, "s72", 0, 16) + L(f"s_mul_i32 s{t0_}, s{sKh}, {(64-16)*8192}\ns_add_u32 s{sCtx}, s{sCtx}, s{t0_}\ns_sub_u32 s{sCtx}, s{sCtx}, {128*8192}") + stamp(9), g0, g0, chain="ld")
            ld = lc + lw
            for k, (sal, d) in enumerate(ld):
                x = g0 + 2 + (k * 30) // len(ld)
                S.add("M", d, x, min(x + 1, g0 + 31), chain="ld", pre=sal, sep=1)
            if kind == "first" and st == 1:
                pre, d = signal(SF, "s71", 0)
                S.add("S", pre[0], B - 4, B, chain="sig"); S.add("A", pre[1], B - 3, B, chain="sig", sep=1)
                S.add("M", d, B + 2, B + 2, chain="sig")
        return S.run("p5" + kind)
    g.emit(body(0, "first"))
    p(f"s_mov_b32 s{sCnt}, 3")
    Lp = p.new("p5"); p(".p2align 3"); p.label(Lp)
    st = ([(r, 0) for r, a in g.lg], list(g.vm))
    g.emit(body(8, "loop") + [f"s_add_u32 s{sWo5}, s{sWo5}, {8*131072}", f"s_add_u32 s{sCtx}, s{sCtx}, {8*16384}", f"s_sub_u32 s{sCnt}, s{sCnt}, 1", f"s_cmp_lg_u32 s{sCnt}, 0"])
    assert st == ([(r, 0) for r, a in g.lg], list(g.vm)), (st, g.lg, g.vm)
    p(f"s_cbranch_scc1 {Lp}")
    g.emit(body(32, "last") + stamp(10))
    q = L(f"""s_xor_b32 s{t0_}, s2, 4
          s_lshl2_add_u32 s{t0_}, s{t0_}, s{sW}
          s_lshl_b32 s{t1_}, s{t0_}, 13
          s_add_u32 s{t1_}, s{t1_}, {WS_XCH}
          s_add_u32 s{t2_}, s{t1_}, 4096
          s_lshl_b32 s71, s{t0_}, 6
          s_lshl2_add_u32 s{t0_}, s2, s{sW}
          s_lshl_b32 s72, s{t0_}, 6
          s_lshl_b32 s73, s{t0_}, 13
          s_add_u32 s73, s73, {WS_XCH}
          s_add_u32 s74, s73, 4096""") + mk_srd(SF, sWS, 65536, WS_INBOX)
    for rb in range(2):
        for c in range(4): q.append(f"buffer_store_dwordx4 {acc(rb, 4+c)}, v{vL16}, {srd(SD)}, s{t1_+rb} offen offset:{c*1024} {ST}")
    q += mk_srd(SE, sOUT, 4 << 20)
    q += L(f"""v_lshlrev_b32 v1, 24, v0
          s_lshl_b32 s75, s{sR5}, 18
          s_lshl_b32 s{t0_}, s{sW}, 16
          s_add_u32 s75, s75, s{t0_}
          s_add_u32 s75, s75, s{sCol}
          s_lshl_b32 s{t0_}, s{sKh}, 7
          s_add_u32 s75, s75, s{t0_}
          s_add_u32 s76, s75, 32768
          v_and_b32 v8, 15, v0
          v_lshlrev_b32 v8, 11, v8
          v_bfe_u32 v10, v0, 4, 1
          v_lshl_add_u32 v8, v10, 5, v8
          v_lshrrev_b32 v10, 5, v0
          v_lshl_add_u32 v8, v10, 4, v8
          s_waitcnt vmcnt(0)
          buffer_store_dword a{aONE}, v1, {srd(SF)}, s71 offen {ST} ;@sig=wave
          buffer_load_dword v19, off, {srd(SF)}, s72 sc1""") + g.spin(19, SF, "s72", 0, 1)
    for rb in range(2):
        for c in range(4): q.append(f"buffer_load_dwordx4 {acc(rb, 4+c)}, v{vL16}, {srd(SD)}, s{73+rb} offen offset:{c*1024} sc1")
    for rb in range(2):
        for c2 in range(2):
            a, b = acc(rb, 2*c2), acc(rb, 2*c2+1)
            for c in (2*c2, 2*c2+1):
                for r in range(4): q.append(f"v_add_f32 {acc(rb, c)[r]}, {acc(rb, c)[r]}, {acc(rb, 4+c)[r]}")
            q += L(f"""v_cvt_pk_bf16_f32 {a[0]}, {a[0]}, {a[1]}
                  v_cvt_pk_bf16_f32 {a[1]}, {a[2]}, {a[3]}
                  v_cvt_pk_bf16_f32 {a[2]}, {b[0]}, {b[1]}
                  v_cvt_pk_bf16_f32 {a[3]}, {b[2]}, {b[3]}
                  s_nop 1
                  v_permlane16_swap_b32 {a[0]}, {a[2]}
                  v_permlane16_swap_b32 {a[1]}, {a[3]}
                  buffer_store_dwordx4 {a}, v8, {srd(SE)}, s{75+rb} offen offset:{c2*64}""")
    q += stamp(11) + stamp_flush()
    g.emit(q)

def build():
    g = G(); p = g.p
    hdr = open("/code/" + NAME + ".s.ref").read()
    p.l += [l for l in hdr.split("\n") if l.startswith(";") and "@launch" not in l]
    p.l.append(f"; @launch grid=(256,1,1) block=(256,1,1) lds={LDS_BYTES}")
    k = NAME + "_kernel"
    p(f'.amdgcn_target "amdgcn-amd-amdhsa--gfx950"\n.text\n.globl {k}\n.p2align 8\n.type {k},@function'); p.label(k)
    gemm12(g); attention(g); phase5(g)
    p.label("L_end"); p("s_endpgm")
    p(g.ool)
    p.label("L_codeend")
    p(".fill 512, 4, 0xbf810000")
    p('.section .rodata,"a"\n.p2align 6')
    p.l += f""".amdhsa_kernel {k}
  .amdhsa_next_free_vgpr 512
  .amdhsa_next_free_sgpr 102
  .amdhsa_accum_offset 256
  .amdhsa_group_segment_fixed_size 0
  .amdhsa_kernarg_size 104
  .amdhsa_user_sgpr_count 2
  .amdhsa_user_sgpr_kernarg_segment_ptr 1
  .amdhsa_system_sgpr_workgroup_id_x 1
.end_amdhsa_kernel""".split("\n")
    return p.text()

if __name__ == "__main__":
    out = sys.argv[1]
    for a in sys.argv[2:]:
        k, _, v = a.partition("=")
        OPT[k] = True if v == "" else (int(v) if v.lstrip("-").isdigit() else v)
    txt = build()
    import subprocess, re, os
    open("_sz.s", "w").write(txt.replace("NCHUNK", "100"))
    subprocess.check_call(["clang", "-x", "assembler", "-target", "amdgcn-amd-amdhsa", "-mcpu=gfx950", "-c", "_sz.s", "-o", "_sz.o"])
    sz = int(re.search(r"\.text\s+PROGBITS\s+\S+\s+\S+\s+(\S+)", subprocess.check_output(["llvm-readelf", "-S", "_sz.o"]).decode()).group(1), 16)
    nch = (sz - 2048) // 1024
    print("code bytes", sz - 2048, "chunks", nch + 1, "file", len(txt))
    assert nch <= 127
    open(out, "w").write(txt.replace("NCHUNK", str(nch)))
```

```python
import re, sys
import numpy as np
M32 = 0xffffffff

def parse_reg(tok):
    tok = tok.strip()
    neg = tok.lstrip("-")
    if neg.startswith("abs(") : neg = neg[4:-1]
    if neg.startswith("|"): neg = neg.strip("|")
    m = re.fullmatch(r"([vas])(\d+)", neg)
    if m: return [(m.group(1), int(m.group(2)))]
    m = re.fullmatch(r"([vas])\[(\d+):(\d+)\]", neg)
    if m: return [(m.group(1), i) for i in range(int(m.group(2)), int(m.group(3)) + 1)]
    if neg in ("vcc", "vcc_lo"): return [("s", "vcc")]
    if neg == "vcc_hi": return [("s", "vcchi")]
    if neg == "exec": return [("s", "exec")]
    if neg == "m0": return [("s", "m0")]
    return None

def split_ops(s):
    out = []; depth = 0; cur = ""
    for ch in s:
        if ch in "[(": depth += 1
        if ch in "])": depth -= 1
        if ch == "," and depth == 0:
            out.append(cur.strip()); cur = ""
        else: cur += ch
    if cur.strip(): out.append(cur.strip())
    return out

TRANS = ("v_exp_f32", "v_log_f32", "v_rcp_f32", "v_rsq_f32", "v_sqrt_f32", "v_sin_f32", "v_cos_f32")

class Ins:
    __slots__ = ("op", "ops", "mods", "text", "ann", "rd", "wr", "kind", "srcc", "ab", "line", "data")
    def __init__(self, text, line):
        self.line = line
        body, _, cm = text.partition(";")
        self.text = body.strip(); self.ann = cm
        p = self.text.split(None, 1)
        self.op = p[0]
        for suf in ("_e32", "_e64"):
            if self.op.endswith(suf): self.op = self.op[:-4]
        rest = p[1] if len(p) > 1 else ""
        ops = split_ops(rest)
        self.mods = []
        if ops and not self.op.startswith("s_waitcnt"):
            last = ops[-1].split()
            ops[-1] = last[0]; self.mods = last[1:]
        self.ops = ops
        self.classify()
    def classify(self):
        op, ops = self.op, self.ops
        R = lambda i: (parse_reg(ops[i]) or []) if i < len(ops) else []
        self.rd, self.wr, self.srcc, self.ab, self.data = [], [], [], [], []
        if op.startswith("v_smfmac"):
            self.kind = "mfma"; self.wr = R(0); self.ab = R(1) + R(2) + R(3); self.srcc = R(0); self.rd = self.ab + self.srcc
        elif op.startswith("v_mfma"):
            self.kind = "mfma"; self.wr = R(0); self.ab = R(1) + R(2); self.srcc = R(3); self.rd = self.ab + self.srcc
        elif op.startswith("ds_read") or op.startswith("ds_bpermute") or op.startswith("ds_swizzle"):
            self.kind = "dsr"; self.wr = R(0); self.rd = R(1) + R(2)
        elif op.startswith("ds_write") or op.startswith("ds_add") or op.startswith("ds_or") or op.startswith("ds_max"):
            self.kind = "dsw"; self.rd = R(0) + R(1) + R(2)
        elif op.startswith("buffer_load"):
            if "lds" in self.mods:
                self.kind = "dma"; self.rd = R(0) + R(1) + R(2) + [("s", "m0")]
            else:
                self.kind = "vld"; self.wr = R(0); self.rd = R(1) + R(2) + R(3)
        elif op.startswith("buffer_store"):
            self.kind = "vst"; self.rd = R(0) + R(1) + R(2) + R(3); self.data = R(0)
        elif op.startswith("buffer_atomic"):
            self.kind = "vst"; self.rd = R(0) + R(1) + R(2) + R(3)
            if "sc0" in self.mods: self.kind = "vld"; self.wr = R(0)
        elif op.startswith("global_load"):
            self.kind = "vld"; self.wr = R(0); self.rd = R(1) + R(2)
        elif op.startswith("global_store"):
            self.kind = "vst"; self.rd = R(0) + R(1) + R(2); self.data = R(1)
        elif op.startswith("global_atomic"):
            self.kind = "vst"; self.rd = R(0) + R(1) + R(2)
        elif op in ("buffer_inv", "buffer_wbl2"):
            self.kind = "vst"
        elif op.startswith("v_"):
            self.kind = "valu"
            if op.startswith("v_permlane") and "swap" in op:
                self.wr = R(0) + R(1); self.rd = R(0) + R(1)
            elif op.startswith("v_nop"): pass
            else:
                self.wr = R(0)
                st = 1
                if op in ("v_add_co_u32", "v_sub_co_u32", "v_addc_co_u32"): self.wr += R(1); st = 2
                for i in range(st, len(ops)): self.rd += R(i)
                if op.endswith("_dpp") or op.startswith("v_fmac") or op.startswith("v_writelane") or op.startswith("v_dot2c"): self.rd += R(0)
                if op.startswith("v_cmpx"): self.wr += [("s", "exec")]
        elif op.startswith("s_load") or op.startswith("s_memtime") or op.startswith("s_memrealtime"):
            self.kind = "smem"; self.wr = R(0); self.rd = R(1)
        elif op.startswith("s_"):
            self.kind = "salu"
            if op.startswith("s_cmp") or op.startswith("s_bitcmp"): self.rd = R(0) + R(1)
            elif op.startswith(("s_cbranch", "s_branch", "s_waitcnt", "s_nop", "s_barrier", "s_endpgm", "s_setprio", "s_sleep")): pass
            elif op.startswith("s_setpc"): self.rd = R(0)
            elif op.startswith("s_call"): self.wr = R(0)
            else:
                self.wr = R(0)
                for i in range(1, len(ops)): self.rd += R(i)
                if "saveexec" in op: self.wr += [("s", "exec")]
        else:
            raise ValueError("unknown op " + self.text)

def load(path):
    ins = []; labels = {}
    insect = True
    for n, l in enumerate(open(path), 1):
        t = l.strip()
        if not t or t.startswith(";") or t.startswith("//"): continue
        if t.startswith(".section"): insect = False
        if t.startswith(".text"): insect = True
        if t.startswith(".") and not re.match(r"^\.?\w+:", t): continue
        if not insect: continue
        m = re.match(r"^([\w.]+):\s*(;.*)?$", t)
        if m: labels[m.group(1)] = len(ins); continue
        ins.append(Ins(t, n))
    return ins, labels

def const(tok):
    try:
        if re.fullmatch(r"-?\d+", tok): return int(tok) & M32
        if re.fullmatch(r"-?0x[0-9a-fA-F]+", tok): return int(tok, 16) & M32
    except ValueError: pass
    return None

def sx(v): return v - (1 << 32) if v & 0x80000000 else v

def run(path, kernel, wg, wave, maxn=2000000, verbose=True, force=None):
    ins, labels = load(path)
    pc = labels[kernel]
    S = {2: wg}; scc = None
    errs = []; seen = set()
    t = 0
    lastw = {}
    mfma_c_rd = {}
    st_data = {}
    lg = []; vm = []
    pend = {}
    cnt = {}; nbar = 0
    V = {0: (np.arange(64) + 64 * wave).astype(np.int64)}
    sts = []; run.sts = sts
    acc = []
    def vval(tok):
        c = const(tok)
        if c is not None: return c
        r = parse_reg(tok)
        if r and len(r) == 1:
            if r[0][0] == "s": return S.get(r[0][1])
            if r[0][0] == "v": return V.get(r[0][1])
        return None
    def imm():
        for m_ in i.mods:
            if m_.startswith("offset:"): return int(m_[7:])
        return 0
    def ldsacc(w, addr, nb):
        gr = set()
        for k in range(0, nb, 4): gr.update(((addr + k) >> 2).tolist())
        if max(gr) * 4 >= 163840: err(i, "LDS address out of range")
        a = dict(w=w, gran=gr, ie=nbar, ip=n, re=None, rp=None, line=i.line, wave=wave)
        acc.append(a); return a
    force = dict(force or {})
    def err(i, msg):
        k = (i.line, msg.split(":")[0])
        if k not in seen:
            seen.add(k); errs.append(f"line {i.line}: {i.text}  <<< {msg}")
    def sval(tok):
        c = const(tok)
        if c is not None: return c
        r = parse_reg(tok)
        if r and len(r) == 1 and r[0][0] == "s": return S.get(r[0][1])
        return None
    n = 0
    while True:
        n += 1
        if n > maxn: errs.append("trace too long"); break
        i = ins[pc]; pc += 1
        op = i.op; cnt[i.kind] = cnt.get(i.kind, 0) + 1
        for r in i.rd + i.wr:
            if r in pend: err(i, f"PENDING: {r} not waited (load line {pend[r].line})")
        def need(r, k, why):
            w = lastw.get(r)
            if w and t - w[0] - 1 < k: err(i, f"{why}: {r} needs {k} has {t - w[0] - 1} (producer line {w[2].line})")
        for r in i.rd:
            w = lastw.get(r)
            if not w: continue
            wk, wi = w[1], w[2]
            if r[0] in "va":
                if wk == "valu":
                    if i.kind == "mfma": need(r, 2, "VALU->MFMA")
                    if op.startswith("v_permlane"): need(r, 2, "VALU->permlane")
                    if op.startswith(("v_readlane", "v_readfirstlane")): need(r, 1, "VALU->readlane")
                    if "dpp" in " ".join(i.mods) or any(m.startswith(("row_", "quad_perm")) for m in i.mods): need(r, 2, "VALU->DPP")
                    if wi.op in TRANS and i.kind == "valu" and op not in TRANS: need(r, 1, "trans->valu")
                if wk == "mfma":
                    big = "32x32" in wi.op
                    if i.kind == "mfma":
                        if r in i.ab: need(r, 12 if big else 8, "MFMA->AB")
                        if r in i.srcc and i.srcc != wi.wr: need(r, 10 if big else 6, "MFMA->C overlap")
                    else: need(r, 12 if big else 8, "MFMA->read")
            else:
                if wk == "valu":
                    if i.kind in ("dma", "vld", "vst"): need(r, 5, "VALU sgpr->VMEM")
                    if i.kind == "valu":
                        need(r, 4 if op.startswith(("v_readlane", "v_writelane")) else 2, "VALU sgpr->VALU")
                    if i.kind == "salu": need(r, 1, "VALU sgpr->SALU(pad)")
                if wk == "salu" and r[1] == "m0" and i.kind == "dma": need(r, 1, "M0->DMA")
        for r in i.wr:
            w = lastw.get(r)
            if w and r[0] in "va" and w[1] == "mfma" and i.kind != "mfma":
                need(r, 12 if "32x32" in w[2].op else 8, "MFMA->WAW")
            if w and r[0] in "va" and w[1] == "mfma" and i.kind == "mfma" and i.srcc != w[2].wr:
                need(r, 6, "MFMA->MFMA WAW(nonchain)")
            if i.kind == "valu" and r in mfma_c_rd and t - mfma_c_rd[r] - 1 < 3: err(i, f"MFMA C WAR: {r}")
            if r in st_data and t - st_data[r] - 1 < 2: err(i, f"store data WAR: {r}")
        if i.kind == "mfma":
            w = lastw.get(("s", "exec"))
            if w and w[1] == "valu" and t - w[0] - 1 < 4: err(i, "EXEC->MFMA")
            for r in i.srcc: mfma_c_rd[r] = t
        if i.kind == "vst" and len(i.data) >= 3:
            for r in i.data: st_data[r] = t
        if i.kind in ("dsr", "dsw"):
            ad = vval(i.ops[1] if i.kind == "dsr" else i.ops[0])
            a_ = None
            if ad is None: err(i, "unknown LDS address")
            else:
                nb = int(re.search(r"_b(\d+)", op).group(1)) // 8
                a_ = ldsacc(i.kind == "dsw", (ad + np.zeros(64, np.int64)) + imm(), nb)
            lg.append((i, i.wr, a_))
            for r in i.wr: pend[r] = i; lastw.pop(r, None)
        elif i.kind == "smem":
            lg.append((i, i.wr, "s"))
            for r in i.wr: pend[r] = i; S.pop(r[1], None); lastw.pop(r, None)
        elif i.kind in ("dma", "vld", "vst"):
            dummy = "@dummy" in i.ann
            a_ = None
            if i.kind == "dma":
                if S.get("m0") is None: err(i, "unknown m0")
                else: a_ = ldsacc(True, S["m0"] + imm() + 16 * np.arange(64), 16)
            if i.kind == "vst":
                m_ = re.search(r"@sig=(\w+):(\w+)", i.ann); m2 = re.search(r"@tag=(\w+)", i.ann)
                a_ = dict(ie=nbar, ip=n, re=None, rp=None, line=i.line, wave=wave, sig=m_.group(1) if m_ else None, tag=(m_.group(2) if m_ else m2.group(1) if m2 else None))
                sts.append(a_)
            vm.append((a_, [] if dummy else i.wr))
            if len(vm) > 63: err(i, "vmcnt overflow (>63 outstanding)")
            if not dummy:
                for r in i.wr: pend[r] = i; lastw.pop(r, None)
        else:
            for r in i.wr: lastw[r] = (t, i.kind, i)
        step = 1
        if op == "s_nop": step = int(i.ops[0], 0) + 1
        elif op == "s_waitcnt":
            txt = i.text
            m = re.search(r"vmcnt\((\d+)\)", txt)
            if m:
                k = int(m.group(1))
                while len(vm) > k:
                    a_, regs = vm.pop(0)
                    if a_: a_["re"], a_["rp"] = nbar, n
                    for r in regs: pend.pop(r, None)
            m = re.search(r"lgkmcnt\((\d+)\)", txt)
            if m:
                k = int(m.group(1))
                if k > 15: err(i, "lgkmcnt > 15")
                if any(isinstance(e[2], str) for e in lg) and k > 0: err(i, "counted lgkmcnt with SMEM outstanding")
                while len(lg) > k:
                    _, regs, a_ = lg.pop(0)
                    if isinstance(a_, dict): a_["re"], a_["rp"] = nbar, n
                    for r in regs: pend.pop(r, None)
        elif op == "s_barrier": nbar += 1
        elif op == "s_endpgm": break
        elif op == "s_branch": pc = labels[i.ops[0]]
        elif op == "s_call_b64":
            S[("ret", i.ops[0])] = pc; pc = labels[i.ops[1]]
        elif op == "s_setpc_b64": pc = S[("ret", i.ops[0])]
        elif op.startswith("s_cbranch"):
            c = None
            if op == "s_cbranch_scc1": c = scc
            elif op == "s_cbranch_scc0": c = None if scc is None else (not scc)
            m = re.search(r"@br=(\w+)", i.ann)
            if m and m.group(1) in force and force[m.group(1)] > 0:
                force[m.group(1)] -= 1; c = True
            if c is None:
                if "@taken" in i.ann: c = True
                elif "@nottaken" in i.ann: c = False
                else: errs.append(f"line {i.line}: unknown branch {i.text}"); break
            if c: pc = labels[i.ops[0]]
        elif op.startswith("s_cmp"):
            a, b = sval(i.ops[0]), sval(i.ops[1])
            if a is None or b is None: scc = None
            else:
                cc, ty = op.split("_")[2], op.split("_")[3]
                if ty == "i32": a, b = sx(a), sx(b)
                scc = {"eq": a == b, "lg": a != b, "lt": a < b, "le": a <= b, "gt": a > b, "ge": a >= b}[cc]
        elif op.startswith("s_bitcmp"):
            a, b = sval(i.ops[0]), sval(i.ops[1])
            scc = None if a is None or b is None else bool(((a >> b) & 1) == int(op[8]))
        elif i.kind == "salu" and i.wr:
            d = i.wr[0][1]
            a = sval(i.ops[1]) if len(i.ops) > 1 else None
            b = sval(i.ops[2]) if len(i.ops) > 2 else None
            v = None; ns = None; setscc = True
            if len(parse_reg(i.ops[0])) == 1:
                if op in ("s_mov_b32", "s_movk_i32"): v = a; setscc = False
                elif op == "s_cselect_b32":
                    setscc = False; v = None if scc is None else (a if scc else b)
                elif op == "s_mul_i32":
                    setscc = False; v = None if None in (a, b) else (a * b) & M32
                elif op == "s_getreg_b32": setscc = False
                elif None not in (a, b):
                    if op == "s_add_u32": v = (a + b) & M32; ns = a + b > M32
                    elif op == "s_sub_u32": v = (a - b) & M32; ns = b > a
                    elif op == "s_add_i32": v = (a + b) & M32
                    elif op == "s_sub_i32": v = (a - b) & M32
                    elif op == "s_lshl_b32": v = (a << (b & 31)) & M32; ns = v != 0
                    elif op == "s_lshr_b32": v = a >> (b & 31); ns = v != 0
                    elif op == "s_and_b32": v = a & b; ns = v != 0
                    elif op == "s_or_b32": v = a | b; ns = v != 0
                    elif op == "s_xor_b32": v = a ^ b; ns = v != 0
                    elif op == "s_min_u32": v = min(a, b); ns = a < b
                    elif op == "s_max_u32": v = max(a, b); ns = a > b
                    elif op == "s_max_i32": v = max(sx(a), sx(b)) & M32
                    elif op == "s_min_i32": v = min(sx(a), sx(b)) & M32
                    elif op.startswith("s_lshl") and op.endswith("_add_u32"): v = ((a << int(op[6])) + b) & M32
                if v is None: S.pop(d, None)
                else: S[d] = v
            else:
                if op in ("s_mov_b64", "s_getpc_b64", "s_cselect_b64"): setscc = False
                for r in i.wr: S.pop(r[1], None)
            if setscc: scc = ns
        elif i.kind == "valu":
            res = None
            if len(i.wr) == 1 and i.wr[0][0] == "v":
                x = [vval(o) for o in i.ops[1:]]
                if all(y is not None for y in x):
                    f = VOPS.get(op)
                    if f: res = (f(*x) + np.zeros(64, np.int64)) & M32
            for r in i.wr:
                if r[0] == "v": V.pop(r[1], None)
            if res is not None: V[i.wr[0][1]] = res
            for r in i.wr:
                if r[0] == "s":
                    S.pop(r[1], None)
                    m = re.search(r"@val=(\w+)", i.ann)
                    if m: S[r[1]] = wave if m.group(1) == "wave" else int(m.group(1), 0)
        if i.kind in ("mfma", "dsr", "vld"):
            for r in i.wr:
                if r[0] == "v": V.pop(r[1], None)
        t += step
    run.acc = acc
    return errs, cnt, nbar

VOPS = {
 "v_mov_b32": lambda a: a, "v_and_b32": lambda a, b: a & b, "v_or_b32": lambda a, b: a | b, "v_xor_b32": lambda a, b: a ^ b,
 "v_lshlrev_b32": lambda a, b: b << a, "v_lshrrev_b32": lambda a, b: b >> a, "v_add_u32": lambda a, b: a + b,
 "v_sub_u32": lambda a, b: a - b, "v_subrev_u32": lambda a, b: b - a, "v_bfe_u32": lambda a, b, c: (a >> b) & ((1 << c) - 1),
 "v_lshl_add_u32": lambda a, b, c: (a << b) + c, "v_mul_u32_u24": lambda a, b: a * b, "v_lshl_or_b32": lambda a, b, c: (a << b) | c,
 "v_add3_u32": lambda a, b, c: a + b + c, "v_and_or_b32": lambda a, b, c: (a & b) | c,
}

def races(accs):
    BIG = 10 ** 9
    idx = {}
    for al in accs:
        for a in al:
            if a["re"] is None: a["re"] = a["rp"] = BIG
            for b in {x >> 8 for x in a["gran"]}: idx.setdefault(b, []).append(a)
    out = set()
    def before(a, b):
        return a["rp"] < b["ip"] if a["wave"] == b["wave"] else a["re"] < b["ie"]
    for blk, al in idx.items():
        ws = [a for a in al if a["w"]]
        for w in ws:
            for a in al:
                if a is w or before(a, w) or before(w, a): continue
                if a["gran"].isdisjoint(w["gran"]): continue
                out.add((w["line"], a["line"], w["wave"] == a["wave"]))
    return out

if __name__ == "__main__":
    path = sys.argv[1]
    txt = open(path).read()
    ks = re.findall(r"^\.amdhsa_kernel\s+(\S+)", txt, re.M)
    bad = 0
    for k in ks:
        for wg in (0, 41, 100, 200, 255):
            bars = []; accs = []
            for wave in range(4):
                errs, cnt, nbar = run(path, k, wg, wave, force={"fb": 1} if wg == 200 else None)
                bars.append(nbar); accs.append(run.acc)
                for k_, sg in enumerate(run.sts):
                    if not sg["sig"]: continue
                    for st_ in run.sts:
                        if st_["sig"] or st_["tag"] != sg["tag"]: continue
                        ok = st_["re"] is not None and (st_["re"] < sg["ie"] if sg["sig"] == "wg" else st_["rp"] < sg["ip"])
                        if not ok: print("SIGNAL line", sg["line"], "not ordered after store line", st_["line"]); bad += 1
                for e in errs[:20]: print(k, wg, wave, e)
                bad += len(errs)
            rc = races(accs)
            for x in sorted(rc)[:20]: print("LDS RACE write line %d vs line %d samewave=%s" % x)
            bad += len(rc)
            print("wg", wg, cnt, "barriers", bars)
            if len(set(bars)) != 1: print("BARRIER MISMATCH"); bad += 1
        errs, cnt, nbar = run(path, k, 70, 1, force={"fb": 1, "spin": 6})
        for e in errs[:20]: print(k, "forced", e)
        bad += len(errs); print(k, "forced", cnt, nbar)
    print("ERRORS:", bad)
    sys.exit(1 if bad else 0)
```

```python
import re
from check import Ins

class Sched:
    def __init__(self, mf):
        self.mf = list(mf); self.n = len(mf)
        self.chains = {}; self.auto = 0
    def add(self, kind, text, lo, hi=None, chain=None, sep=0, pre=None):
        if chain is None:
            self.auto += 1; chain = ("auto", self.auto)
        it = dict(kind=kind, text=text if isinstance(text, list) else [text], lo=lo, hi=(10**9 if hi is None else hi), sep=sep, pre=pre or [], g=None)
        self.chains.setdefault(chain, []).append(it)
        return it
    def run(self, verbose=None):
        n = self.n
        for c in self.chains.values():
            for k in range(len(c) - 2, -1, -1):
                c[k]["hi"] = min(c[k]["hi"], c[k + 1]["hi"] - c[k + 1]["sep"])
        for _ in range(3):
            for c in self.chains.values():
                for it in c:
                    aft = it.get("after")
                    if aft:
                        for a in (aft if isinstance(aft, list) else [aft]): a["hi"] = min(a["hi"], it["hi"] - 1)
            for c in self.chains.values():
                for k in range(len(c) - 2, -1, -1):
                    c[k]["hi"] = min(c[k]["hi"], c[k + 1]["hi"] - c[k + 1]["sep"])
        heads = {c: 0 for c in self.chains}
        last = {c: -10**9 for c in self.chains}
        G = [dict(X=[], S=[], mem=[], val=[], memk=None, nv=0) for _ in range(n + 2)]
        for g_ in range(-1, n + 1): G[g_ + 1]["cap"] = 4 if (0 <= g_ < n and self.mf[g_].startswith("v_smfmac")) else 8
        forced = 0
        def vec(st): return 4 * st["nv"] + (8 if st["memk"] == "M" else 4 * len(st["mem"]))
        def fits(st, k, dd=False):
            if st["X"] and k != "S": return False
            ns = len(st["S"]); v = vec(st)
            if k == "S": return 4 * (ns + 1) + v <= 12
            if k == "X": return not st["mem"] and not st["nv"]
            room = min(st["cap"], 12 - 4 * ns) - v
            if k in "ME": return room >= 8
            if k in "TD": return room >= 4 and (dd or not st["mem"])
            return room >= 4
        def put(st, it, g):
            k = it["kind"]; it["g"] = g
            if k == "X": st["X"] += it["text"]
            elif k == "S": st["S"] += it["text"]
            elif k in "TDM":
                st["mem"] += it["text"]
                st["memk"] = "M" if k == "M" else (st["memk"] or k)
            else:
                st["val"] += it["text"]; st["nv"] += 2 if k == "E" else 1
                if k == "E": st["E"] = True
        active = [c for c in self.chains]
        for g in range(-1, n + 1):
            st = G[g + 1]
            while True:
                cand = []
                for c in active:
                    h = heads[c]
                    if h >= len(self.chains[c]): continue
                    it = self.chains[c][h]
                    if g < n and (it["lo"] > g or last[c] + it["sep"] > g): continue
                    aft = it.get("after")
                    if aft:
                        aft = aft if isinstance(aft, list) else [aft]
                        if any(a["g"] is None or (a["g"] >= g and g < n) for a in aft): continue
                    cand.append((it["hi"], it["lo"], id(it), c, it))
                cand.sort(key=lambda x: x[:2])
                done = False
                for hi, lo, _, c, it in cand:
                    same = last[c] == g
                    ok = g == n or g == -1 or fits(st, it["kind"], it.get("dd", False))
                    if ok and it.get("soft") and g < n and not st["mem"] and not st["nv"] and any(x[4]["kind"] in "EMDTX" for x in cand): ok = False
                    if same and it["kind"] in "TDMSX" and g not in (-1, n):
                        prev = self.chains[c][heads[c] - 1]
                        rank = {"X": 1, "S": 0, "T": 2, "D": 2, "M": 2, "A": 3, "E": 3}
                        if rank[prev["kind"]] > rank[it["kind"]]:
                            if hi > g: continue
                            it["kind"] = "A"
                    if ok and it["kind"] in "TD" and st["mem"] and hi > g and any(x[4]["kind"] == "A" and x[3] != c for x in cand): continue
                    if ok and it["kind"] == "A" and 0 <= g < n and not st["mem"] and st["nv"] == 0 and len(st["S"]) <= 1:
                        best = None
                        for c2 in active:
                            h2 = heads[c2]
                            if c2 == c or h2 >= len(self.chains[c2]): continue
                            i2 = self.chains[c2][h2]
                            if i2["kind"] in "TD" and i2.get("early", i2["lo"]) <= g and last[c2] + i2["sep"] <= g and not i2.get("after"):
                                if best is None or i2["hi"] < best[1]["hi"]: best = (c2, i2)
                        if best:
                            put(st, best[1], g); heads[best[0]] += 1; last[best[0]] = g
                    if ok or hi <= g:
                        if not ok: forced += 1
                        if g in (-1, n): st["val"] += it["pre"] + it["text"]; it["g"] = g; it["pre"] = []
                        else: put(st, it, g)
                        heads[c] += 1; last[c] = g; done = True
                        break
                if not done: break
            active = [c for c in active if heads[c] < len(self.chains[c])]
        late = [(it["text"][0], it["g"], it["hi"]) for c in self.chains.values() for it in c if it["g"] > it["hi"]]
        assert not late, ("deadline missed", verbose, late[:5])
        for c in self.chains.values():
            prevg = -2
            for it in c:
                if it["pre"]:
                    g = it["g"]; pre = it["pre"]
                    slots = [x for x in range(max(prevg + 1, g - 6, it.get("prelo", -1), 0), g)]
                    use = []
                    cnt = {x: len(G[x + 1]["S"]) for x in slots}
                    xs = [x for x in slots if not G[x + 1]["X"]]
                    for _ in pre:
                        while xs and 4 * (cnt[xs[-1]] + 1) + vec(G[xs[-1] + 1]) > 12: xs.pop()
                        if not xs: use = None; break
                        use.append(xs[-1]); cnt[xs[-1]] += 1
                        if len(xs) > len(pre) - len(use): xs.pop()
                    if use: use = use[::-1]
                    elif slots: use = [slots[-1]] * len(pre) if len(slots) < len(pre) else slots[-len(pre):]
                    else: use = None
                    if use is None:
                        st = G[g + 1]; i = st["mem"].index(it["text"][0]); st["mem"][i:i] = pre + ["s_nop 0"]
                    else:
                        for x, s in zip(use, pre):
                            (G[x + 1]["X"] if G[x + 1]["X"] else G[x + 1]["S"]).append(s)
                prevg = it["g"]
        out = []
        for g in range(-1, n + 1):
            if 0 <= g < n: out.append(self.mf[g])
            st = G[g + 1]
            out += st["S"] + st["X"] + st["mem"] + st["val"]
        if verbose: print(f"[sched {verbose}] mfma {n} forced {forced} tail {len(G[n+1]['val'])} head {len(G[0]['val'])}")
        return out

def resolve(seq, lg=None, vm=None, eager=0):
    from check import parse_reg
    lg = [(list(r), a) for r, a in (lg or [])]
    vm = list(vm or [])
    out = []; slot = None; since = 0; vsince = 0; now = 0
    lg = [(r, -a) for r, a in lg]
    for s in seq:
        if s.endswith(":") or s.startswith((".", ";")):
            out.append(s); slot = None; since = 0; vsince = 0; continue
        if s.startswith("WAITVM"):
            f = s.split(); tags = f[1].split(",")
            idx = [k for k, e in enumerate(vm) if e[0] in tags]
            w = []
            if idx:
                nn = len(vm) - 1 - idx[-1]; assert nn <= 63
                w.append(f"vmcnt({nn})"); vm = vm[idx[-1] + 1:]
            if len(f) > 2: w.append("lgkmcnt(0)"); lg = []
            if w: out.append("s_waitcnt " + " ".join(w))
            continue
        pseudo = s.startswith("USE ")
        if pseudo: touched = set(parse_reg(s.split()[1])); i = None
        else:
            i = Ins(s, 0); touched = set(i.rd + i.wr)
        need = -1
        for k, (regs, _) in enumerate(lg):
            if touched & set(regs): need = k
        if need >= 0:
            while eager and need + 1 < len(lg) and now - lg[need + 1][1] >= eager: need += 1
            n_after = len(lg) - 1 - need
            if not pseudo and slot is not None and n_after >= since:
                out.insert(slot, f"s_waitcnt lgkmcnt({min(n_after - since, 15)})")
            else:
                out.append(f"s_waitcnt lgkmcnt({min(n_after, 15)})")
            lg = lg[need + 1:]
        need = -1
        for k, e in enumerate(vm):
            if touched & set(e[1]): need = k
        if need >= 0:
            n_after = len(vm) - 1 - need
            if not pseudo and slot is not None and n_after >= vsince:
                out.insert(slot, f"s_waitcnt vmcnt({n_after - vsince})")
            else: out.append(f"s_waitcnt vmcnt({n_after})")
            vm = vm[need + 1:]
        if pseudo: continue
        if i.op == "s_waitcnt":
            m = re.search(r"lgkmcnt\((\d+)\)", s)
            if m:
                k = int(m.group(1)); lg = lg[max(0, len(lg) - k):] if k else []
            m = re.search(r"vmcnt\((\d+)\)", s)
            if m:
                k = int(m.group(1)); vm = vm[max(0, len(vm) - k):] if k else []
        out.append(s)
        if i.kind in ("dsr", "dsw"): lg.append((list(i.wr), now)); since += 1
        if i.kind in ("dma", "vld", "vst"):
            m = re.search(r"@tag=(\w+)", s)
            regs = [] if "@dummy" in s else list(i.wr)
            vm.append((m.group(1) if m else None, regs)); vsince += 1
        if i.kind == "mfma": slot = len(out); since = 0; vsince = 0; now += 1
        if i.op.startswith(("s_cbranch", "s_branch", "s_barrier", "s_call")): slot = None; since = 0; vsince = 0
    return out, [(r, now - t) for r, t in lg], vm
```

```python
import sys, math, struct
from genlib import P, R, mfma
from sched import Sched, resolve

NAME = "gated_mix__compressed_kv_cla__sliding_local_dilated__prompt"
WS_KV, WS_CTX, WS_G, WS_CNT, WS_INBOX, WS_XCH, WS_STAMP = 0, 32 << 20, 56 << 20, 57 << 20, (57 << 20) + 65536, 64 << 20, 96 << 20
LDS_BYTES = 160 * 1024
def f32(x): return "0x%08x" % struct.unpack("<I", struct.pack("<f", x))[0]
QSCALE = 128 ** -0.5 * math.log2(math.e)
BSCALE = 32 ** -0.5 * math.log2(math.e)
LTHR = 2.0 ** 60

sX, sC, sWQ, sWUK, sWUV, sWOA, sWQKV, sWOB, sGATE, sOUT, sDBG, sWS = 4, 6, 8, 10, 12, 14, 18, 20, 22, 24, 26, 28
sW, sH, sJ = 30, 31, 3
SA, SB, SC, SD, SE, SF, SG, SH = 32, 36, 40, 44, 48, 52, 56, 60
sT, sT2, sBHi = 64, 65, 16
t0_, t1_, t2_, t3_ = 66, 67, 68, 69
def srd(b): return f"s[{b}:{b+3}]"
OPT = dict(stamps=False)
ST = "sc1" if "x_plain" not in sys.argv else ""

vDX, vDQ, vGX, vGW, vL16, vDH, vDB, vDBH, vGH, vGB = 2, 4, 12, 14, 16, 17, 19, 21, 22, 23
vQ, vG = 24, 4
aONE, aDUM = 251, 252
ONES = R("a", 244)
MSK = [0, 4, 6, 8, 10, 12, 18, 22, 26, 56, 58, 60, 62, 48, 50, 100]
def msk(k): return f"s[{MSK[k]}:{MSK[k]+1}]"
def kind(c): return "S" if c.startswith("s_") else ("E" if c.startswith(("v_exp", "v_rcp")) else "A")

def L(s): return [x.strip() for x in s.strip().split("\n") if x.strip()]
def mk_srd(b, ptr, nbytes, off=None):
    if off is None: o = [f"s_mov_b32 s{b}, s{ptr}", f"s_mov_b32 s{b+1}, s{ptr+1}"]
    else: o = [f"s_add_u32 s{b}, s{ptr}, {off}", f"s_addc_u32 s{b+1}, s{ptr+1}, 0"]
    return o + [f"s_mov_b32 s{b+2}, {nbytes}", f"s_mov_b32 s{b+3}, 0x20000"]

NST = [0]
def stamp(idx):
    if not OPT["stamps"]: return []
    return L(f"""s_waitcnt lgkmcnt(0)
        s_memtime s[92:93]
        s_memrealtime s[94:95]
        v_accvgpr_write_b32 a253, v1
        v_accvgpr_read_b32 v1, a249
        s_waitcnt lgkmcnt(0)
        v_writelane_b32 v1, s92, {2*idx}
        v_writelane_b32 v1, s94, {2*idx+1}
        v_accvgpr_write_b32 a249, v1
        v_accvgpr_read_b32 v1, a253
        s_nop 1""")
def stamp_flush():
    if not OPT["stamps"]: return []
    return L(f"""s_lshl_b32 s96, s2, 2
        s_add_u32 s96, s96, s{sW}
        s_lshl_b32 s96, s96, 8
        s_add_u32 s96, s96, {WS_STAMP}
        v_lshlrev_b32 v1, 2, v0
        buffer_store_dword a249, v1, {srd(SD)}, s96 offen
        s_waitcnt vmcnt(0)""")

class G:
    def __init__(self):
        self.p = P(); self.lg = []; self.vm = []; self.ool = []
    def emit(self, seq, eager=0, name=None):
        if name: self.p.l.append(";@seg " + name)
        out, self.lg, self.vm = resolve(seq, self.lg, self.vm, eager)
        self.p(out)
    def spin(self, vreg, srdb, soff, imm, target):
        st, bk, lp = self.p.new("spin"), self.p.new("spinbk"), self.p.new("spinlp")
        self.ool += L(f"""{st}:
            s_mov_b32 s{t1_}, 0x8000
            {lp}:
            s_sleep 1
            buffer_load_dword v{vreg}, off, {srd(srdb)}, {soff} offset:{imm} sc1
            s_waitcnt vmcnt(0)
            v_readfirstlane_b32 s{t0_}, v{vreg}
            s_sub_u32 s{t1_}, s{t1_}, 1
            s_cbranch_scc1 {bk} ;@nottaken
            s_cmp_lt_u32 s{t0_}, {target}
            s_cbranch_scc1 {lp} ;@nottaken
            s_branch {bk}""")
        return L(f"""v_readfirstlane_b32 s{t0_}, v{vreg}
            s_nop 0
            s_cmp_lt_u32 s{t0_}, {target}
            s_cbranch_scc1 {st}
            {bk}:""")

sLH = 78
def cpf(expr):
    return ([f"s_add_u32 s17, s{sLH}, {expr}"], f"buffer_load_dword a{aDUM}, v{vL16}, s[88:91], s17 offen ;@dummy")
def one_lane(d): return ["s_mov_b64 exec, 1", d, "s_mov_b64 exec, -1"]
def signal(srdb, soff, imm, tags):
    return ([f"s_lshl_b32 s{t0_}, s{sW}, 30", f"v_lshl_add_u32 v1, v0, 24, s{t0_}"],
            f"buffer_atomic_add a{aONE}, v1, {srd(srdb)}, {soff} offen offset:{imm} sc1 ;@sig=wg:{tags}")

def snake(n, k): return list(range(n)) if k % 2 == 0 else list(range(n - 1, -1, -1))

def aq(db, rb): return R("v", (vQ if db % 2 == 0 else 88) + 16 * rb + 4 * (db // 2))
def bt(part, db, rb): return R("v", 152 + 32 * part + 8 * rb + 4 * db)
HK, HV = R("v", 248), R("v", 252)
P2ORD = [10, 14, 11, 12, 15, 13, 8, 9, 0, 1, 2, 3, 4, 5, 6, 7]
def p2tile(cb, rb):
    if cb < 8: return aq(cb, rb)
    if cb < 14: return bt((cb - 8) >> 1, cb & 1, rb)
    return HK if cb == 14 else HV

def gemm12(g):
    p = g.p
    sCo, sWo, sXlo, sXhi, sXh, sBo, sLX, sLW, sKV, sPF = 70, 71, 72, 73, 74, 75, 76, 77, 79, 80
    NR = 6
    def fx(sg, rb, s): return R("a", 32 * (sg & 1) + 8 * rb + 4 * s) if rb < 4 else R("a", 64 + 4 * s)
    def fw(J, s): return R("a", 72 + 8 * (J % NR) + 4 * s)
    def stash(i): return R("a", 144 + 4 * i)
    GA = 144
    def order(sg):
        o = []; k = 0
        for j, cb in enumerate(range(16) if sg < 8 else P2ORD):
            if sg >= 8 and cb >= 14: o.append((j, cb, 4))
            else:
                o += [(j, cb, rb) for rb in snake(4, k)]; k += 1
        return o
    o1, o2 = order(0), order(8)
    pos1 = {(cb, rb): k for k, (j, cb, rb) in enumerate(o1)}
    def treg(k): return p2tile(o2[k][1], o2[k][2]) if k < 58 else R("a", 120 + 4 * (k - 58))
    p("s_cmp_ge_u32 s2, 256\ns_cbranch_scc1 L_end")
    p("s_load_dwordx16 s[4:19], s[0:1], 0\ns_load_dwordx8 s[20:27], s[0:1], 64\ns_load_dwordx2 s[28:29], s[0:1], 96")
    if OPT["stamps"]: p("s_memtime s[96:97]\ns_memrealtime s[98:99]")
    p("s_getpc_b64 s[88:89]"); p.label("L_pc")
    p(f"""v_lshrrev_b32 v1, 6, v0
          s_lshr_b32 s{t1_}, s2, 3
          v_lshl_add_u32 v24, s{t1_}, 2, v1
          s_mov_b32 s90, L_codeend-L_pc
          s_mov_b32 s91, 0x20000
          v_and_b32 v25, 7, v0
          v_lshlrev_b32 v25, 7, v25
          v_lshl_add_u32 v24, v24, 10, v25
          buffer_load_dword a{aDUM}, v24, s[88:91], 0 offen ;@dummy
          v_and_b32 v0, 63, v0
          v_readfirstlane_b32 s{sW}, v1 ;@val=wave
          v_lshrrev_b32 v24, 3, v0
          v_lshrrev_b32 v25, 4, v0
          v_and_b32 v26, 7, v0
          v_xor_b32 v26, v26, v25
          v_lshlrev_b32 v26, 4, v26
          v_lshl_add_u32 v{vGX}, v24, 10, v26
          v_xor_b32 v{vGX+1}, 64, v{vGX}
          v_bfe_u32 v26, v0, 1, 3
          v_xor_b32 v26, v26, v25
          v_lshlrev_b32 v26, 5, v26
          v_and_b32 v24, 1, v0
          v_lshl_add_u32 v26, v24, 4, v26
          v_lshl_add_u32 v{vGW}, v25, 13, v26
          v_xor_b32 v{vGW+1}, 128, v{vGW}
          s_and_b32 s{t0_}, s2, 7
          s_and_b32 s{t2_}, s{t1_}, 3
          s_lshl2_add_u32 s{sH}, s{t0_}, s{t2_}
          s_lshr_b32 s{sJ}, s{t1_}, 2
          s_lshl2_add_u32 s{sPF}, s{t1_}, s{sW}
          s_lshl_b32 s{sCo}, s{sJ}, 18
          s_lshl_b32 s{t0_}, s{sW}, 16
          s_add_u32 s{sCo}, s{sCo}, s{t0_}
          s_lshl_b32 s{sWo}, s{sW}, 17
          s_lshl_b32 s{t0_}, s{sH}, 8
          s_add_u32 s{sWo}, s{sWo}, s{t0_}
          s_lshl_b32 s{sLX}, s{sW}, 13
          s_lshl_b32 s{sLW}, s{sW}, 12
          s_lshl_b32 s{sLH}, s{sW}, 10
          s_waitcnt lgkmcnt(0)""")
    p(mk_srd(SA, sC, 2 << 20) + mk_srd(SB, sWUK, 4 << 20) + mk_srd(SC, sWUV, 4 << 20))
    def xdma(sg):
        par = sg & 1; d = []
        for i in range(8):
            if sg < 8: so, sr = f"s_add_u32 s{sT}, s{sCo}, {sg*128 + i*8192}", SA
            else: so, sr = f"s_add_u32 s{sT}, s{sXlo if i < 4 else sXhi}, {(sg-8)*128 + ((i>>1)&1)*64*2048 + (i&1)*16384}", SE
            d.append(([f"s_add_u32 m0, s{sLX}, {par*32768 + i*1024}", so], f"buffer_load_dwordx4 v{vGX + (i&1)}, {srd(sr)}, s{sT} offen lds ;@tag=x{sg}"))
        return d
    def wdma(sg):
        d = []; B = 65536 + (sg % 3) * 32768
        for kv in range(2 if sg < 8 else 1):
            for i in range(4):
                st = sg if sg < 8 else sg - 8
                d.append(([f"s_add_u32 m0, s{sLW}, {B + kv*16384 + i*1024}", f"s_add_u32 s{sT}, s{sWo}, {st*64*8192 + i*32768}"],
                          f"buffer_load_dwordx4 v{vGW + (i>>1)}, {srd((SB, SC)[kv] if sg < 8 else SG)}, s{sT} offen lds ;@tag=w{sg}"))
        if sg >= 8:
            for pp in range(3):
                d.append(([f"s_add_u32 m0, s{sLH}, {B + 16384 + pp*4096}", f"s_add_u32 s{sT}, s{sBo}, {(sg-8)*64*6144 + pp*2048}"],
                          f"buffer_load_dwordx4 v{vGB}, {srd(SH)}, s{sT} offen lds ;@tag=w{sg}"))
            d.append(([f"s_add_u32 m0, s{sLH}, {B + 28672}", f"s_add_u32 s{sT}, s{sXh}, {(sg-8)*128}"],
                      f"buffer_load_dwordx4 v{vGH}, {srd(SE)}, s{sT} offen lds ;@tag=w{sg}"))
            d = [d[k] for k in (0, 4, 1, 5, 2, 6, 3, 7)]
        return d
    seq = []
    for sal, d in xdma(0) + wdma(0): seq += sal + [d]
    seq += mk_srd(SD, sWS, 128 << 20) + mk_srd(SE, sX, 4 << 20) + mk_srd(SF, sDBG, 256) + mk_srd(SG, sWQ, 8 << 20) + mk_srd(SH, sWQKV, 6 << 20)
    seq += [f"v_accvgpr_write_b32 a{aONE}, 1"]
    if OPT["stamps"]: seq += ["v_mov_b32 v30, 0", "v_writelane_b32 v30, s96, 60", "v_writelane_b32 v30, s98, 61", "v_accvgpr_write_b32 a249, v30"] + stamp(0)
    seq += L(f"""v_and_b32 v24, 15, v0
          v_lshrrev_b32 v26, 1, v24
          v_xor_b32 v26, v26, v25
          v_lshlrev_b32 v26, 4, v26
          v_lshl_add_u32 v26, v24, 7, v26
          v_add_u32 v{vDX}, s{sLX}, v26
          v_xor_b32 v{vDX+1}, 64, v{vDX}
          v_bfe_u32 v24, v0, 2, 2
          v_lshl_add_u32 v27, v25, 3, v24
          v_and_b32 v1, 3, v0
          v_cmp_eq_u32 vcc, 0, v1
          v_lshlrev_b32 v1, 3, v1
          v_lshl_add_u32 v26, v27, 8, v1
          v_add_u32 v26, 65536, v26
          v_and_b32 v1, 1, v25
          v_lshl_add_u32 v24, v1, 2, v24
          v_lshlrev_b32 v{vL16}, 4, v0
          v_mov_b32 v28, 0x3f803f80
          v_cndmask_b32 v28, 0, v28, vcc""")
    seq += [f"v_accvgpr_write_b32 {ONES[r]}, v28" for r in range(4)]
    for n in range(8): seq += [f"v_xor_b32 v1, {n}, v24", f"v_lshl_add_u32 v{vDQ+n}, v1, 5, v26"]
    seq += L(f"""s_sub_u32 s{sBHi}, 15, s{sJ}
          s_lshl_b32 s{sXlo}, s{sJ}, 18
          s_lshl_b32 s{sXhi}, s{sBHi}, 18
          s_cmp_lt_u32 s{sW}, 2
          s_cselect_b32 s{sXh}, s{sXlo}, s{sXhi}
          s_max_u32 s{sXh}, s{sXh}, 32768
          s_sub_u32 s{sXh}, s{sXh}, 32768
          s_and_b32 s{t0_}, s{sW}, 1
          s_lshl_b32 s{t0_}, s{t0_}, 14
          s_add_u32 s{sXh}, s{sXh}, s{t0_}
          s_lshl_b32 s{t0_}, s{sW}, 15
          s_add_u32 s{sXlo}, s{sXlo}, s{t0_}
          s_add_u32 s{sXhi}, s{sXhi}, s{t0_}
          s_mul_i32 s{sBo}, s{sW}, {16*6144}
          s_lshl_b32 s{t0_}, s{sH}, 6
          s_add_u32 s{sBo}, s{sBo}, s{t0_}
          s_lshl_b32 s{sKV}, s{sH}, 20
          s_lshl_b32 s{t0_}, s{sJ}, 17
          s_add_u32 s{sKV}, s{sKV}, s{t0_}
          s_lshl_b32 s{t0_}, s{sW}, 15
          s_add_u32 s{sKV}, s{sKV}, s{t0_}
          v_bfe_u32 v{vGB}, v0, 1, 1
          v_lshrrev_b32 v1, 5, v0
          v_xor_b32 v{vGB}, v{vGB}, v1
          v_lshlrev_b32 v{vGB}, 5, v{vGB}
          v_and_b32 v1, 1, v0
          v_lshl_add_u32 v{vGB}, v1, 4, v{vGB}
          v_lshrrev_b32 v1, 2, v0
          v_mul_u32_u24 v1, 6144, v1
          v_add_u32 v{vGB}, v1, v{vGB}
          s_and_b32 s{t2_}, s{sW}, 1
          s_lshl_b32 s{t2_}, s{t2_}, 6
          v_lshrrev_b32 v1, 3, v0
          v_lshl_add_u32 v{vGH}, v1, 10, v{vGX}
          v_xor_b32 v{vGH}, s{t2_}, v{vGH}
          s_lshl_b32 s81, s{sPF}, 13
          s_and_b32 s{t1_}, s2, 7
          s_lshl_b32 s82, s{t1_}, 8
          s_add_u32 s82, s82, s81
          s_lshl_b32 s{t1_}, s{t1_}, 10
          s_add_u32 s81, s81, s{t1_}
          v_mul_u32_u24 v1, 1792, v25
          v_add_u32 v1, v1, v{vL16}
          s_lshl_b32 s{t2_}, s2, 3
          s_lshl1_add_u32 s{t2_}, s{sW}, s{t2_}
          v_lshrrev_b32 v18, 5, v0
          v_add_u32 v18, s{t2_}, v18
          v_and_b32 v19, 31, v0
          v_lshlrev_b32 v19, 4, v19
          v_lshl_add_u32 v18, v18, 11, v19
          v_mov_b32 v21, 0
          v_min_u32 v20, 1, v0
          v_lshlrev_b32 v20, 30, v20
          s_lshl2_add_u32 s{t2_}, s2, s{sW}
          s_lshl_b32 s{t2_}, s{t2_}, 6
          s_add_u32 s{t2_}, s{t2_}, {WS_INBOX}
          s_lshr_b32 s{t3_}, s2, 6
          s_or_b32 s{t3_}, s{t3_}, s{sW}
          s_lshl_b32 s{t3_}, s{t3_}, 20
          s_add_u32 s{t3_}, s{t3_}, s2
          s_lshl_b32 s{t3_}, s{t3_}, 8
          s_add_u32 s{t3_}, s{t3_}, {WS_CNT}""")
    def xread(sg): return [f"ds_read_b128 {fx(sg, rb, s)}, v{vDX+s} offset:{(sg&1)*32768 + rb*2048}" for rb in range(4) for s in range(2)]
    def hread(sg): return [f"ds_read_b128 {fx(sg, 4, s)}, v{vDH+s} offset:{min(sg % 3, 1)*32768}" for s in range(2)]
    def wread(sg, j):
        par = min(sg % 3, 1); o = []; cb = j if sg < 8 else P2ORD[j]
        for s in range(2):
            for i in range(2):
                if sg < 8 or cb < 8: a, off = vDQ + (cb & 7), par*32768 + (cb >> 3)*16384 + s*8192 + i*1024
                elif cb < 14: a, off = vDB + (cb & 1), par*32768 + ((cb-8) >> 1)*4096 + s*2048 + i*256
                else: a, off = vDBH, par*32768 + (cb-13)*4096 + s*2048 + i*256
                o.append((a, f"ds_read_b64_tr_b16 {fw(16*sg + j, s)[2*i:2*i+2]}, v{a} offset:{off}"))
        return o
    for sal, d in xdma(1) + wdma(1): seq += sal + [d]
    seq += ["WAITVM w0", "s_barrier"] + stamp(1)
    xr = xread(0); NPRE = 3
    seq += xr[:2] + [r for _, r in wread(0, 0)] + xr[2:]
    for j in range(1, NPRE): seq += [r for _, r in wread(0, j)]
    g.emit(seq)
    mf = []; G0 = []; FU = []; LU = []; done = {}
    for sg in range(24):
        G0.append(len(mf))
        for k, (j, cb, rb) in enumerate(o1 if sg < 8 else o2):
            J = 16 * sg + j
            if len(FU) == J: FU.append(len(mf)); LU.append(0)
            swap = (cb >= 8) if sg < 8 else (cb in (12, 13, 15))
            for q, s in enumerate(snake(2, k)):
                c0 = 0 if (q == 0 and sg in (0, 8)) else None
                mf.append(mfma(treg(k), fx(sg, rb, s), fw(J, s), c0) if swap else mfma(treg(k), fw(J, s), fx(sg, rb, s), c0))
            LU[J] = len(mf) - 1; done[(sg, cb, rb)] = len(mf) - 1
    G0.append(len(mf))
    S = Sched(mf)
    def pace(items, lo, hi, chain, slack=5):
        n = len(items)
        for q, (sal, d) in enumerate(items):
            x = lo + int(q * (hi - lo) / n)
            it = S.add("M", d, x, x + slack, chain=chain, sep=3, pre=sal)
            if q == 0: it["prelo"] = lo - 2
    def chain(txt, lo, hi=None, name=None, sep=1):
        for c in (L(txt) if isinstance(txt, str) else txt): S.add(kind(c), c, lo, hi, chain=name, sep=sep)
    BAR = {sg: G0[sg + 1] - 30 for sg in range(24)}; BAR[-1] = -1
    XW = 54
    pace(wdma(2), 2, 38, "dma")
    for sg in range(24):
        g0, nx, B = G0[sg], G0[sg + 1], BAR[sg]
        lastuse = {}
        for j in range(16):
            J = 16 * sg + j
            if J < NPRE: continue
            lo = max(LU[J - NR] if J >= NR else 0, BAR[sg - 1] + 1, FU[J] - 44)
            hi = FU[J] - 8
            if sg < 23: hi = min(hi, B - 5)
            for a, r in wread(sg, j): S.add("T", r, lo, hi, chain="t"); lastuse[a] = hi
        if sg >= 8:
            for r in hread(sg): S.add("D", r, BAR[sg - 1] + 1, g0 - 1)
            lastuse[vDH] = lastuse[vDH + 1] = g0
        if sg < 23:
            if sg % 3:
                for r, lu in lastuse.items():
                    S.add("A", f"v_add_u32 v{r}, 0x8000, v{r}" if sg % 3 == 1 else f"v_subrev_u32 v{r}, 0x8000, v{r}", lu + 1, B - 1)
            blk = [f"WAITVM w{sg+1} L", "s_barrier"]
            if sg == 7: blk += stamp(2)
            fine = (0, 1, 2, 3, 4, 5, 9, 11, 13, 15, 17, 19) if OPT.get("fine") != 2 else (4, 5, 6, 8, 9, 10, 11, 12, 19, 20, 21, 22)
            if OPT.get("fine") and sg in fine: blk += stamp(18 + fine.index(sg))
            S.add("X", blk, B, B)
            S.add("S", f"WAITVM x{sg+1}", g0 + XW, g0 + XW, chain=("xn", sg))
            for q, r in enumerate(xread(sg + 1)): S.add("D", r, g0 + XW, B - 5, chain=("xn", sg))
        if sg + 2 < 24: pace(xdma(sg + 2), g0 + 40, B - 2, "dma")
        if sg + 3 < 24: pace(wdma(sg + 3), B + 3, nx + 38, "dma")
    GS = 56; lo = 40
    for i in range(4):
        S.add("M", f"global_load_dwordx4 a[{GA+4*i}:{GA+3+4*i}], v18, s[{sX}:{sX+1}] offset:{512*i}", lo + GS*i, lo + GS*i + 10, chain="gate")
        S.add("M", f"global_load_dwordx4 a[{GA+16+4*i}:{GA+19+4*i}], v19, s[{sGATE}:{sGATE+1}] offset:{512*i}", lo + GS*i + GS//2, lo + GS*i + GS//2 + 10, chain="gate")
    S.add("M", f"buffer_store_dword v21, v20, {srd(SD)}, s{t2_} offen {ST} ;@tag=z", G0[2] + 10, chain="gate", sep=1)
    S.add("M", f"buffer_store_dword v21, v20, {srd(SD)}, s{t3_} offen {ST} ;@tag=z", G0[2] + 20, G0[2] + 40, chain="gate", sep=1)
    a0, a1, a2, a3, acc = 18, 19, 20, 21, 17
    ch = [f"v_mov_b32 v{acc}, 0"]
    for i in range(16):
        ch += L(f"""v_accvgpr_read_b32 v{a1}, a{GA+i}
            v_accvgpr_read_b32 v{a3}, a{GA+16+i}
            v_lshlrev_b32 v{a0}, 16, v{a1}
            v_and_b32 v{a1}, 0xffff0000, v{a1}
            v_lshlrev_b32 v{a2}, 16, v{a3}
            v_and_b32 v{a3}, 0xffff0000, v{a3}
            v_mul_f32 v{a0}, v{a0}, v{a2}
            v_mul_f32 v{a1}, v{a1}, v{a3}
            v_cvt_pk_bf16_f32 v{a0}, v{a0}, v{a1}
            v_lshlrev_b32 v{a1}, 16, v{a0}
            v_and_b32 v{a0}, 0xffff0000, v{a0}
            v_add_f32 v{acc}, v{acc}, v{a1}
            v_add_f32 v{acc}, v{acc}, v{a0}""")
    lo = G0[3]
    chain(ch, lo, name="gate", sep=0)
    chain([f"v_add_f32_dpp v{acc}, v{acc}, v{acc} row_ror:{r} row_mask:0xf bank_mask:0xf" for r in (8, 4, 2, 1)], lo, name="gate", sep=2)
    chain([f"v_mov_b32 v{a0}, v{acc}"], lo, name="gate", sep=0)
    chain([f"v_permlane16_swap_b32 v{a0}, v{acc}"], lo, name="gate", sep=2)
    chain(f"""v_add_f32 v{acc}, v{acc}, v{a0}
            v_cvt_pk_bf16_f32 v{acc}, v{acc}, v{acc}
            v_and_b32 v{acc}, 0xffff0000, v{acc}
            v_mul_f32 v{acc}, 0xbfb8aa3b, v{acc}
            v_exp_f32 v{acc}, v{acc}
            v_add_f32 v{acc}, 1.0, v{acc}
            v_rcp_f32 v{acc}, v{acc}
            v_cvt_pk_bf16_f32 v{a0}, v{acc}, v{acc}
            v_and_b32 v{a0}, 0xffff0000, v{a0}
            v_sub_f32 v{a1}, 1.0, v{a0}
            v_cvt_pk_bf16_f32 v{a1}, v{a1}, v{a1}
            v_and_b32 v{a1}, 0xffff0000, v{a1}
            v_and_b32 v{a2}, 31, v0
            v_lshlrev_b32 v{a2}, 27, v{a2}
            v_lshrrev_b32 v{a3}, 2, v0
            v_add_u32 v{a2}, v{a2}, v{a3}""", lo, name="gate")
    S.add("M", f"buffer_store_dwordx2 v[{a0}:{a1}], v{a2}, {srd(SD)}, s{sT2} offen {ST} ;@tag=z", lo, G0[6] + 30, chain="gate", sep=4,
          pre=[f"s_lshl2_add_u32 s{sT2}, s2, s{sW}", f"s_lshl4_add_u32 s{sT2}, s{sT2}, {WS_G}"])
    chain(f"""s_lshr_b32 s{t0_}, s{sW}, 1
          s_lshl_b32 s{t0_}, s{t0_}, 11
          s_add_u32 s{t0_}, s{t0_}, {98304 + 28672}
          s_sub_u32 s{t0_}, s{t0_}, s{sLX}
          v_add_u32 v{vDH}, s{t0_}, v{vDX}
          v_xor_b32 v{vDH+1}, 64, v{vDH}
          v_lshrrev_b32 v{vDBH}, 4, v0
          v_bfe_u32 v{vDB}, v0, 2, 2
          v_lshl_add_u32 v{vDB}, v{vDBH}, 3, v{vDB}
          v_lshlrev_b32 v{vDB}, 6, v{vDB}
          v_and_b32 v{vDBH}, 1, v{vDBH}
          v_lshl_add_u32 v{vDB}, v{vDBH}, 5, v{vDB}
          v_and_b32 v{vDBH}, 3, v0
          v_lshl_add_u32 v{vDB}, v{vDBH}, 3, v{vDB}
          v_add_u32 v{vDB}, {98304 + 16384}, v{vDB}
          v_xor_b32 v{vDB+1}, 32, v{vDB}
          s_and_b32 s{t0_}, s{sW}, 1
          s_lshl_b32 s{t1_}, s{t0_}, 5
          v_xor_b32 v{vDBH}, s{t1_}, v{vDB}""", lo, G0[7] - 2, name="gate")
    chain(f"""v_lshrrev_b32 v{vGX+1}, 3, v0
          v_lshl_add_u32 v{vGX}, v{vGX+1}, 10, v{vGX}
          v_xor_b32 v{vGX+1}, 64, v{vGX}""", BAR[5] + 6, G0[6] + 30, name="gx", sep=0)
    if not OPT.get("nopf"):
        P0, PS = OPT.get("p0", G0[2]), OPT.get("ps", 44); order_ = "qkqkqqkqkqqkqk"
        for k, c in enumerate(order_):
            r = 81 if c == "q" else 82
            S.add("M", f"buffer_load_dword a{aDUM}, v{vL16 if c == 'q' else 1}, {srd(SG if c == 'q' else SH)}, s{r} offen ;@dummy", P0 + k*PS, P0 + k*PS + 16, chain="pf",
                  pre=[] if order_[:k].count(c) == 0 else [f"s_add_u32 s{r}, s{r}, {1<<20}"])
    n0 = G0[8]; frs = []
    for t in range(4):
        for rb in (3, 2, 1, 0): frs.append(((2*t, rb), (2*t + 1, rb), (rb >> 1)*16384 + (rb & 1)*4096 + t*1024))
    for db in range(8):
        for u in snake(2, db): frs.append(((8 + db, 2*u), (8 + db, 2*u + 1), u*16384 + 8192 + db*1024))
    ns = 0; later = []
    tmpA, tmpB = treg(54), treg(56)
    for q, (ta, tb, off) in enumerate(frs):
        ka, kb = pos1[ta], pos1[tb]; A, B_ = treg(ka), treg(kb)
        lo = G0[7] + 2*max(ka, kb) + 1 + 8; hi = n0 + 2*min(ka, kb) - 1; hi2 = n0 + 2*max(ka, kb) - 3
        D_ = B_ if kb > ka else A
        ch = ("drain",)
        if A.f == "a":
            hi = hi2 = n0 + 104
            for r in range(4): S.add("A", f"v_accvgpr_read_b32 {tmpA[r]}, {A[r]}", lo, hi, chain=ch)
            for r in range(4): S.add("A", f"v_accvgpr_read_b32 {tmpB[r]}, {B_[r]}", lo, hi, chain=ch)
            A, B_ = tmpA, tmpB; D_ = B_
        direct = q % 4 == 0
        if direct: S.add("S", f"s_add_u32 s{sT2}, s{sKV}, {off}", lo - 2, hi, chain=ch)
        if D_ is B_: cv = ((3, B_, 2), (2, B_, 0), (0, A, 0), (1, A, 2))
        else: cv = ((0, A, 0), (1, A, 2), (2, B_, 0), (3, B_, 2))
        for d_, src, r in cv: S.add("A", f"v_cvt_pk_bf16_f32 {D_[d_]}, {src[r]}, {src[r+1]}", lo, hi, chain=ch)
        if direct and OPT.get("x_nodirect"): pass
        elif direct: S.add("M", f"buffer_store_dwordx4 {D_}, v{vL16}, {srd(SD)}, s{sT2} offen {ST} ;@tag=kv", lo, hi2, chain=ch, sep=1)
        else:
            for r in range(4): S.add("A", f"v_accvgpr_write_b32 {stash(ns)[r]}, {D_[r]}", lo, hi2, chain=ch)
            later.append((ns, off)); ns += 1
    assert ns == 24 and pos1[frs[27][0]] in (54, 55) and pos1[frs[28][0]] in (56, 57), (pos1[frs[27][0]],)
    NSTG = OPT.get("nstg", 8); KVP = 21
    t_a, t_b = G0[9] + 2, BAR[8 + NSTG] - 14
    for q, (i, off) in enumerate(later if not OPT.get("x_nost") else []):
        lo = t_a + (q * (t_b - t_a)) // 23
        S.add("M", f"buffer_store_dwordx4 {stash(i)}, v{vL16}, {srd(SD)}, s{sT2} offen {ST} ;@tag=kv", lo - 6, lo, chain="kvst", sep=3,
              pre=[f"s_add_u32 s{sT2}, s{sKV}, {off}"])
    pre, d = signal(SF, f"s{t2_}", 0, "z")
    chain(pre + [f"s_lshr_b32 s{t0_}, s{sJ}, 1", f"s_lshl_b32 s{t0_}, s{t0_}, 12"], G0[7], BAR[7], name="sig")
    for k in range(4):
        lo = BAR[8 + k] + 20
        S.add("X", one_lane(d), lo, lo + 14, chain="sig", sep=3, pre=[f"s_xor_b32 s{t2_}, s{t0_}, {k << 12}"])
    E0 = NSTG + 7
    S.add("X", L(f"s_cmp_eq_u32 s{sW}, 0\ns_cselect_b32 s81, 256, 0\ns_cselect_b32 s82, 8, 0"), G0[E0 - 1], G0[E0 - 1] + 40, chain="sig")
    S.add("M", f"buffer_load_dword v1, off, {srd(SF)}, s{sLH} sc1", BAR[E0 - 1] - 14, BAR[E0 - 1] - 8, chain="sig")
    S.add("X", g.spin(1, SF, f"s{sLH}", 0, "s81"), G0[E0] + XW + 12, G0[E0] + XW + 24, chain="sig")
    S.add("X", mk_srd(SF, sWS, 16384, WS_CNT)[:3], BAR[E0] - 4, BAR[E0] + 30, chain="sig")
    E1 = NSTG + 9
    pre, d = signal(SF, f"s{sPF}", 0, "kv")
    chain(pre + [f"s_lshl_b32 s{sPF}, s{sH}, 8"], G0[E1], BAR[E1], name="sig")
    S.add("X", one_lane(d), BAR[E1] + 1, BAR[E1] + 12, chain="sig", sep=1)
    chain([f"s_lshl_b32 s{t0_}, s{sW}, 14", f"s_add_u32 s{sPF}, s{sPF}, s{t0_}"], BAR[E1] + 1, name="sig")
    S.add("M", f"buffer_load_dword v1, off, {srd(SF)}, s{sPF} sc1", BAR[KVP - 1] - 14, BAR[KVP - 1] - 8, chain="sig")
    S.add("X", g.spin(1, SF, f"s{sPF}", 0, "s82"), G0[KVP] + XW + 6, BAR[KVP] - 1, chain="sig")
    if not OPT.get("nocpf"):
        for sg in range(0, 22, OPT.get("cps", 2)):
            pre, d = cpf(".-L_pc+6144"); S.add("M", d, G0[sg] + 4, G0[sg] + 30, chain="cpf", pre=pre)
        for k in range(3):
            pre, d = cpf(".-L_pc+%d" % (6144 + 3584 * k)); S.add("M", d, G0[22] + 50 + 8 * k, G0[22] + 80, chain="cpf", pre=pre, sep=3)
    S.add("X", L(f"s_lshl_b32 s{t2_}, s{sH}, 20\ns_add_u32 s{SA}, s{sWS}, s{t2_}\ns_addc_u32 s{SA+1}, s{sWS+1}, 0"), G0[21], G0[21] + 40, chain="sa")
    S.add("X", L(f"s_add_u32 s{t2_}, s{sBHi}, 1\ns_lshl_b32 s{SA+2}, s{t2_}, 16"), G0[21], G0[21] + 50, chain="sa")
    pace(att_first_dmas(sLX), BAR[KVP] + 5, BAR[KVP] + 5 + 12 * 6, "dma")
    lo = G0[22]
    chain(f"""v_and_b32 v12, 15, v0
          v_lshrrev_b32 v13, 4, v0
          v_lshlrev_b32 v13, 2, v13
          v_sub_u32 v12, v12, v13
          s_lshl_b32 s{t0_}, s{sW}, 4
          v_add_u32 v13, s{t0_}, v12""", lo, name="la")
    chain([f"v_cmp_gt_i32 {msk(k)}, {16*(k >> 2) + (k & 3)}, v13" for k in range(16)], lo, name="la", sep=0)
    if not OPT.get("nopf"):
        chain(f"""v_lshlrev_b32 v14, 7, v0
              s_lshl2_add_u32 s{t0_}, s2, s{sW}
              s_lshl_b32 s{t1_}, s{t0_}, 13
              v_add_u32 v13, s{t1_}, v14
              v_and_b32 v14, 0x7ff, v14
              s_lshl_b32 s{t1_}, s{t0_}, 11
              v_add_u32 v14, s{t1_}, v14""", lo, name="la")
    chain(p5_setup()[:-11], G0[22] + 50, name="la", sep=0)
    chain(f"""s_lshl_b32 s{t0_}, s{sW}, 11
          s_add_u32 s{t0_}, s{t0_}, 32768
          v_add_u32 v22, s{t0_}, v{vL16}
          v_add_u32 v23, 0x10000, v22
          s_lshr_b32 s{t0_}, s{sW}, 1
          s_lshl_b32 s{t0_}, s{t0_}, 16
          s_and_b32 s{t1_}, s{sW}, 1
          s_lshl3_add_u32 s{t0_}, s{t1_}, s{t0_}
          s_add_u32 s{t0_}, s{t0_}, 32768
          v_add_u32 v15, s{t0_}, v{vL16}
          v_and_b32 v1, 15, v0
          v_lshlrev_b32 v1, 3, v1
          s_lshl_b32 s{t0_}, s{sW}, 7
          s_add_u32 s{t0_}, s{t0_}, {WS_G}
          s_lshl_b32 s{t1_}, s{sJ}, 10
          s_add_u32 s{t1_}, s{t1_}, s{t0_}
          s_lshl_b32 s{t2_}, s{sBHi}, 10
          s_add_u32 s{t2_}, s{t2_}, s{t0_}""", lo, G0[23] - 4, name="la")
    for rb in range(4):
        S.add("M", f"buffer_load_dwordx2 a[{232+2*rb}:{233+2*rb}], v1, {srd(SD)}, s{t1_ + (rb>>1)} offen offset:{(rb&1)*512} sc1", BAR[22] + 1, G0[23] + 10, chain="la", sep=2)
    if not OPT.get("nopf"):
        S.add("M", f"global_load_dword a{aDUM}, v13, s[{sWOA}:{sWOA+1}] ;@dummy", G0[23], G0[23] + 16, chain="la", sep=2)
        S.add("M", f"global_load_dword a{aDUM}, v14, s[{sWOB}:{sWOB+1}] ;@dummy", G0[23], G0[23] + 20, chain="la", sep=2)
    def rdy(*tiles): return max(done[(23, cb, rb)] for cb, rb in tiles) + 8
    def pk(d, a, b, lo): S.add("A", f"v_cvt_pk_bf16_f32 {d}, {a}, {b}", lo, chain="la")
    lo = rdy((14, 4)); pk(HK[0], HK[0], HK[1], lo); pk(HK[1], HK[2], HK[3], lo)
    S.add("M", f"ds_write_b64 v15, {HK[0:2]}", lo, chain="la", sep=1)
    for rb in (3, 2, 1, 0):
        a, b = bt(1, 0, rb), bt(1, 1, rb); lo = rdy((11, rb))
        pk(a[0], a[0], a[1], lo); pk(a[1], a[2], a[3], lo); pk(a[2], b[0], b[1], lo); pk(a[3], b[2], b[3], lo)
        S.add("M", f"ds_write_b128 v{22 + (rb>>1)}, {a} offset:{(rb&1)*8192 + 2048}", lo, chain="la", sep=1)
    lo = rdy((15, 4)); pk(HV[0], HV[0], HV[1], lo); pk(HV[1], HV[2], HV[3], lo)
    S.add("M", f"ds_write_b64 v15, {HV[0:2]} offset:1024", lo, chain="la", sep=1)
    for rb in (3, 2, 1, 0):
        lo = rdy((13, rb))
        for db in range(2):
            a = bt(2, db, rb); pk(a[3], a[2], a[3], lo); pk(a[2], a[0], a[1], lo)
        for db in range(2):
            S.add("M", f"ds_write_b64 v{22 + (rb>>1)}, {bt(2, db, rb)[2:4]} offset:{(rb&1)*8192 + 3072 + db*8}", lo, chain="la", sep=1)
    for rb in (3, 2, 1, 0):
        a, b = bt(0, 0, rb), bt(0, 1, rb); lo = rdy((9, rb))
        pk(a[0], a[0], a[1], lo); pk(a[1], a[2], a[3], lo); pk(a[2], b[0], b[1], lo); pk(a[3], b[2], b[3], lo)
        if rb == 2: S.add("X", ["s_waitcnt lgkmcnt(0)", "s_barrier"], lo, chain="la", sep=1)
    rds = [f"ds_read_b128 a[{4*rb}:{4*rb+3}], v{22 + (rb>>1)} offset:{(rb&1)*8192}" for rb in range(4)]
    rds += [f"ds_read_b64 {bt(2, db, rb)[0:2]}, v{22 + (rb>>1)} offset:{(rb&1)*8192 + 1024 + db*8}" for rb in range(4) for db in range(2)]
    S.add("X", L(f"s_or_b32 s{t0_}, s{sJ}, s{sW}\ns_cmp_eq_u32 s{t0_}, 0\ns_cselect_b32 s{t0_}, 0xff800000, 0"), G0[23] + 12, G0[23] + 50)
    mk = []
    for r in range(4):
        mk += L(f"""v_subrev_u32 v13, {r}, v12
              v_lshlrev_b32 v14, 31, v13
              v_or_b32 v17, v13, v14
              v_ashrrev_i32 v17, 31, v17
              v_and_b32 {HK[r]}, 0xff800000, v17
              v_not_b32 v13, v13
              v_or_b32 v17, v13, v14
              v_ashrrev_i32 v17, 31, v17
              v_and_b32 {HV[r]}, 0xff800000, v17
              v_or_b32 v{18+r}, s{t0_}, {HV[r]}""")
    for k, c in enumerate(mk):
        if k % 2 == 0 and rds: S.add("D", rds.pop(0), lo, chain="la")
        S.add("A", c, lo, chain="la")
    g.emit(S.run("gemm12"), eager=10, name="gemm12")
    g.emit(stamp(5))
    local_attention(g)

def att_first_dmas(sLX):
    d = []
    for k in range(8):
        sal = []
        if k == 0: sal = [f"s_mov_b32 m0, s{sLX}", f"s_lshl_b32 s{sT}, s{sW}, 14"]
        if k == 4: sal = [f"s_add_u32 m0, s{sLX}, 4096", f"s_add_u32 s{sT}, s{sT}, 4096"]
        d.append((sal, f"buffer_load_dwordx4 v{vL16}, {srd(SA)}, s{sT} offen offset:{(k&3)*1024} sc1 lds ;@tag=k0"))
    for k in range(4):
        sal = []
        if k == 0: sal = [f"s_lshr_b32 s{sT}, s{sLX}, 1", f"s_add_u32 m0, s{sT}, {65536 + 16384}", f"s_and_b32 s{t3_}, s{sT}, 8192",
                          f"s_add_u32 s{sT}, s{sT}, s{t3_}", f"s_add_u32 s{sT}, s{sT}, 8192"]
        d.append((sal, f"buffer_load_dwordx4 v{vL16}, {srd(SA)}, s{sT} offen offset:{k*1024} sc1 lds ;@tag=v0"))
    return d

def local_attention(g):
    q = []
    def e(s): q.extend(L(s))
    def pk(d, a, b): return f"v_cvt_pk_bf16_f32 {d}, {a}, {b}"
    mO, mP, mP0 = HK, HV, R("v", 18)
    qp = []
    for t in range(4):
        for rb in range(4):
            a, b = aq(2*t, rb), aq(2*t+1, rb)
            for r in (a, b): qp += [f"v_pk_mul_f32 {r[0:2]}, {r[0:2]}, s[{t2_}:{t3_}]", f"v_pk_mul_f32 {r[2:4]}, {r[2:4]}, s[{t2_}:{t3_}]"]
            qp += [pk(a[0], a[0], a[1]), pk(a[1], a[2], a[3]), pk(a[2], b[0], b[1]), pk(a[3], b[2], b[3])]
    def fill(n):
        q.extend(qp[:n]); del qp[:n]
    def Sp(rb): return bt(0, 1, rb)
    def So(rb): return bt(1, 1, rb)
    e(f"s_mov_b32 s{t2_}, {f32(QSCALE)}\ns_mov_b32 s{t3_}, s{t2_}\ns_mov_b32 s{t0_}, {f32(BSCALE)}")
    for rb in range(4): e(mfma(So(rb), bt(1, 0, rb), bt(0, 0, rb), mO))
    for rb in range(4): e(mfma(Sp(rb), R("a", 4*rb), bt(0, 0, rb), mP0 if rb == 0 else mP))
    for k in range(8): e(f"v_accvgpr_read_b32 v{vG+k}, a{232+k}")
    fill(16)
    mx, mc = 12, 20
    for rb in range(4):
        a, b = Sp(rb), So(rb)
        e(f"v_max3_f32 v{mx+rb}, {b[0]}, {b[1]}, {b[2]}\nv_max3_f32 v{mx+rb}, v{mx+rb}, {b[3]}, {a[0]}")
        e(f"v_max3_f32 v{mx+rb}, v{mx+rb}, {a[1]}, {a[2]}\nv_max_f32 v{mx+rb}, v{mx+rb}, {a[3]}")
    for op in ("v_permlane16_swap_b32", "v_permlane32_swap_b32"):
        for rb in range(4): e(f"v_mov_b32 v{mc+rb}, v{mx+rb}")
        for rb in range(4): e(f"{op} v{mc+rb}, v{mx+rb}")
        for rb in range(4): e(f"v_max_f32 v{mx+rb}, v{mx+rb}, v{mc+rb}")
    for rb in range(4): e(f"v_mul_f32 v{mx+rb}, s{t0_}, v{mx+rb}")
    for rb in range(4):
        a, b = Sp(rb), So(rb)
        for r in (a, b):
            for k in range(4): e(f"v_fma_f32 {r[k]}, {r[k]}, s{t0_}, -v{mx+rb}")
        for r in (a, b):
            for k in range(4): e(f"v_exp_f32 {r[k]}, {r[k]}")
        q.extend([pk(a[0], a[0], a[1]), pk(a[1], a[2], a[3]), pk(a[2], b[0], b[1]), pk(a[3], b[2], b[3])])
        fill(2)
        e(mfma(So(rb), ONES, Sp(rb), 0))
        for db in range(2): e(mfma(bt(db, 0, rb), bt(2, db, rb), Sp(rb), 0))
    fill(24)
    e(f"""s_add_u32 s{t0_}, s{sH}, 128
          s_lshl_b32 s{t0_}, s{t0_}, 13
          s_add_u32 s{t0_}, s{t0_}, s{sLH}
          s_add_u32 s{t0_}, s{t0_}, {WS_CTX}
          s_mul_i32 s{sT}, s{sJ}, {160*8192}
          s_add_u32 s{sT}, s{sT}, s{t0_}
          s_mul_i32 s{sT2}, s{sBHi}, {160*8192}
          s_add_u32 s{sT2}, s{sT2}, s{t0_}""")
    for rb in range(4): e(f"v_rcp_f32 v{mx+rb}, {So(rb)[0]}")
    for rb in range(4): e(f"v_mul_f32 v{mx+rb}, v{mx+rb}, v{vG+2*rb+1}")
    for rb in range(4):
        a, b = bt(0, 0, rb), bt(1, 0, rb)
        for r in (a, b):
            for k in range(4): e(f"v_mul_f32 {r[k]}, {r[k]}, v{mx+rb}")
        q.extend([pk(a[0], a[0], a[1]), pk(a[1], a[2], a[3]), pk(a[2], b[0], b[1]), pk(a[3], b[2], b[3])])
        if rb & 1: e(f"s_add_u32 s{sT + (rb>>1)}, s{sT + (rb>>1)}, 4096")
        e(f"buffer_store_dwordx4 {a}, v{vL16}, {srd(SD)}, s{sT + (rb>>1)} offen {ST} ;@tag=ob")
    g.qrest = qp
    g.emit(q, name="local")

sR5, sKh, sCtx, sWo5, sL5, sCol, sSig, sWt = 82, 83, 84, 85, 86, 87, 79, 80
vG5, vC5 = 12, 14
def p5_ctx(tau, rb, s):
    f, b = (("a", 208), ("v", 152), ("a", 0), ("a", 32))[tau & 3]
    return R(f, b + 8*rb + 4*s)
def p5_lds(tau): return (131072, 32768, 65536, 98304)[tau & 3]
def p5_wdma(tau, rel):
    return [([f"s_add_u32 m0, s{sL5}, {p5_lds(tau) + i*1024}", f"s_add_u32 s{sT}, s{sWo5}, {rel*262144 + i*8192}"],
             f"buffer_load_dwordx4 v{vG5 + (i&1)}, {srd(SB if tau < 4 else SC)}, s{sT} offen lds ;@tag=w5_{tau&3}") for i in range(8)]
def p5_cld(tau, rel):
    o = []
    for s in range(2):
        for rb in range(4):
            o.append(([f"s_add_u32 s{sT2}, s{sCtx}, {rel*32768 + s*8192}"] if rb == 0 else [],
                      f"buffer_load_dwordx4 {p5_ctx(tau, rb, s)}, v{vC5 + (rb>>1)}, {srd(SD)}, s{sT2} offen offset:{(rb&1)*1024} {OPT.get('cpol', 'sc1').replace('+', ' ')}"))
    return o
def p5_setup():
    return L(f"""s_and_b32 s{t0_}, s2, 7
          s_lshr_b32 s{t1_}, s2, 3
          s_lshr_b32 s{sKh}, s{t0_}, 2
          s_and_b32 s{t2_}, s{t0_}, 1
          s_and_b32 s{t3_}, s{t1_}, 7
          s_lshl3_add_u32 s{sR5}, s{t2_}, s{t3_}
          s_and_b32 s{t2_}, s{t0_}, 2
          s_lshr_b32 s{t3_}, s{t1_}, 3
          s_lshl1_add_u32 s{sCol}, s{t2_}, s{t3_}
          s_lshl_b32 s{sCol}, s{sCol}, 8
          s_lshl_b32 s{sL5}, s{sW}, 13
          s_lshl_b32 s{sWo5}, s{sW}, 16
          s_add_u32 s{sWo5}, s{sWo5}, s{sCol}
          s_lshl_b32 s{t0_}, s{sKh}, 20
          s_add_u32 s{sWo5}, s{sWo5}, s{t0_}
          s_mul_i32 s{sCtx}, s{sR5}, {160*8192}
          s_and_b32 s{t0_}, s{sW}, 1
          s_lshl_b32 s{t0_}, s{t0_}, 14
          s_add_u32 s{sCtx}, s{sCtx}, s{t0_}
          s_lshl_b32 s{t0_}, s{sKh}, 17
          s_add_u32 s{sCtx}, s{sCtx}, s{t0_}
          s_add_u32 s{sCtx}, s{sCtx}, {WS_CTX + 128*8192}
          s_sub_u32 s{t0_}, 15, s{sR5}
          s_min_u32 s{t0_}, s{t0_}, s{sR5}
          s_lshl1_add_u32 s{t0_}, s{t0_}, s{sKh}
          s_lshl_b32 s{sWt}, s{t0_}, 8
          s_add_u32 s{sWt}, s{sWt}, {32*256}
          s_mov_b32 s{SB}, s{sWOB}
          s_mov_b32 s{SB+1}, s{sWOB+1}
          s_mov_b32 s{SB+2}, {2<<20}
          s_mov_b32 s{SC}, s{sWOA}
          s_mov_b32 s{SC+1}, s{sWOA+1}
          s_mov_b32 s{SC+2}, {8<<20}
          s_lshl_b32 s{t0_}, s{sW}, 11
          v_lshrrev_b32 v{vC5}, 4, v0
          v_bfe_u32 v{vG5}, v0, 1, 3
          v_xor_b32 v{vG5}, v{vG5}, v{vC5}
          v_lshlrev_b32 v{vG5}, 5, v{vG5}
          v_lshl_add_u32 v{vG5}, v{vC5}, 11, v{vG5}
          v_and_b32 v{vC5}, 1, v0
          v_lshl_add_u32 v{vG5}, v{vC5}, 4, v{vG5}
          v_xor_b32 v{vG5+1}, 128, v{vG5}
          v_add_u32 v{vC5}, s{t0_}, v{vL16}
          v_xor_b32 v{vC5+1}, 0x800, v{vC5}""")

def attention(g):
    p = g.p
    RA = 8
    vDK, vDV, vNI, vBad = 2, 3, 17, 1
    sSrc, sM0, sCnt, sFB, sLX, sCb = 70, 71, 72, 73, 76, 74
    def Q(qb, t): return R("v", vQ + 16*qb + 4*t)
    def S_(kb, qb): return R("v", 88 + 16*qb + 4*kb)
    def Pp(b, u, qb): return R("v", 152 + 32*(qb >> 1) + 16*b + 8*(qb & 1) + 4*u)
    def NM(qb): return R("v", 216 + 4*qb)
    def O(db, qb): return R("a", 32*qb + 4*db)
    def Lr(qb): return R("a", 128 + 4*qb)
    def F(f): return R("a", 144 + 4*(f & 15))
    mx, mc, mt, TMP = 20, 248, 252, (232, 240)
    lab = {k: p.new(k) for k in ("F1", "D", "DD", "T", "T1", "S", "SD", "TAIL")}
    def rdK(f, i): return f"ds_read_b128 {F(f)}, v{vDK} offset:{i*16384 + f*1024}"
    def rdV(f, i): return f"ds_read_b128 {F(f)}, v{vDV} offset:{i*16384 + (f & 1)*8192 + (f >> 1)*1024}"
    def dma(k, tag):
        sal = []
        if k == 0: sal = [f"s_mov_b32 m0, s{sM0}"]
        if k == 4: sal = [f"s_add_u32 m0, s{sM0}, 4096", f"s_add_u32 s{sT}, s{sSrc}, 4096"]
        return sal, f"buffer_load_dwordx4 v{vL16}, {srd(SA)}, s{sSrc if k < 4 else sT} offen offset:{(k&3)*1024} sc1 lds ;@tag={tag}"
    def act(st, i, base):
        if st == "full" or (st == "diag" and i == 0): return [base, base + 1]
        if st == "diag": return [base + 1]
        return []
    def acts(sts, i): return act(sts[0], i, 0) + act(sts[1], i, 2)
    def masked(sts, i):
        for b, st in enumerate(sts):
            if st == "diag": return 2*b + i
        return None
    def epi_head(qb):
        return [f"v_accvgpr_read_b32 v{mx+qb}, {Lr(qb)[0]}", f"v_max_f32 v{vBad}, v{vBad}, v{mx+qb}", f"v_rcp_f32 v{mx+qb}, v{mx+qb}"]
    def epi_frag(qb, t, pkm=False):
        o = []; tmp = R("v", TMP[t & 1], 8)
        for r in range(8): o.append(f"v_accvgpr_read_b32 {tmp[r]}, {O(2*t + (r >> 2), qb)[r & 3]}")
        if t == 0: o.append(f"v_mul_f32 v{mx+qb}, v{mx+qb}, v{vG+2*qb}")
        if pkm:
            sel = "op_sel_hi:[1,0]" if qb % 2 == 0 else "op_sel:[0,1]"
            for r in range(4): o.append(f"v_pk_mul_f32 {tmp[2*r:2*r+2]}, {tmp[2*r:2*r+2]}, v[{mx+(qb&2)}:{mx+(qb&2)+1}] {sel}")
        else:
            for r in range(8): o.append(f"v_mul_f32 {tmp[r]}, {tmp[r]}, v{mx+qb}")
        for r in range(4): o.append(f"v_cvt_pk_bf16_f32 {tmp[r]}, {tmp[2*r]}, {tmp[2*r+1]}")
        o.append(f"s_add_u32 s77, s{sCb + (qb>>1)}, {t*8192 + (qb&1)*4096}")
        o.append(f"buffer_store_dwordx4 {tmp[0:4]}, v{vL16}, {srd(SD)}, s77 offen {ST} ;@tag=ctx")
        return o
    def xmax():
        o = []
        for op in ("v_permlane16_swap_b32", "v_permlane32_swap_b32"):
            o += [f"v_mov_b32 v{mc+qb}, v{mx+qb}" for qb in range(4)]
            o += [f"{op} v{mc+qb}, v{mx+qb}" for qb in range(4)]
            o += [f"v_max_f32 v{mx+qb}, v{mx+qb}, v{mc+qb}" for qb in range(4)]
        return o

    def group(cur, prev, first=False, lastg=False, hook=None, name=None, extra=None):
        mf = []; rs = []
        for i in range(2):
            qk = acts(cur, i); pv = acts(cur, 0) if i == 1 else acts(prev, 1); mq = masked(cur, i)
            r = dict(g0=len(mf), qk=qk, pv=pv, mq=mq, tiles=[], fu=[None]*32, lu=[None]*32)
            k = 0
            for kb in range(4):
                qs = [qk[x] for x in snake(len(qk), kb)]
                if mq is not None and kb == 0: qs = [x for x in qs if x != mq] + [mq]
                for qb in qs:
                    st = len(mf)
                    for q_, t in enumerate(snake(4, k)):
                        c = None
                        if q_ == 0 and qb != mq: c = 0 if (first and i == 0 and kb == 0) else NM(qb)
                        f = 4*kb + t
                        if r["fu"][f] is None: r["fu"][f] = len(mf)
                        r["lu"][f] = len(mf)
                        mf.append(mfma(S_(kb, qb), F(f), Q(qb, t), c))
                    k += 1
                    r["tiles"].append((kb, qb, st, len(mf) - 1))
            r["pv0"] = len(mf); k = 0; r["od"] = {}
            for qb in pv:
                for u in range(2): mf.append(mfma(Lr(qb), ONES, Pp(i ^ 1, u, qb), 0 if (first and u == 0) else None))
                r["od"][("l", qb)] = len(mf) - 1
            for db in range(8):
                for qb in [pv[x] for x in snake(len(pv), db)]:
                    for q_, u in enumerate(snake(2, k)):
                        f = 16 + 2*db + u
                        if r["fu"][f] is None: r["fu"][f] = len(mf)
                        r["lu"][f] = len(mf)
                        mf.append(mfma(O(db, qb), F(f), Pp(i ^ 1, u, qb), 0 if (first and q_ == 0) else None))
                    k += 1; r["od"][(db, qb)] = len(mf) - 1
            r["end"] = len(mf); rs.append(r)
        N = len(mf); S = Sched(mf)
        head = []
        for i, r in enumerate(rs):
            g0, n = r["g0"], r["end"] - r["g0"]; nq, npv = len(r["qk"]), len(r["pv"])
            single = (nq, npv) == (2, 2)
            knext = not (lastg and i == 1)
            if single:
                dg = [0, 0, 1, 3, 3, 4, 6, 6, 12, 14, 16, 18, 22, 24, 24, 26, 30, 32, 32, 34, 38, 40, 42, 46, 50, 52, 54, 58, 60, 62, 66, 67]
                mg = [2, 5, 20, 28, 36, 44, None, 56, 64]; bg = 48
                eg = [7, 8, 9, 10, 11] + [13 + 2*x for x in range(27)]
                cg = [12, 14, 16] + [4*x + 6 for x in range(3, 16)]
            else:
                bg = n - max(int(n * 0.27), 12)
                if npv == 0: bg = n - 18
                dg = None
                mg = [2 + (q_ * (bg - 4)) // 6 for q_ in range(6)] + [None] + [bg + 4, bg + 4 + (n - bg - 4) // 2]
            for d in range(32):
                f = d + RA
                if d == 32 - RA:
                    wt = ("kvB" if i == 0 else "kvA") + (",v0,ob" if first else "")
                    S.add("X", [f"WAITVM {wt}", "s_barrier"], g0 + bg, g0 + bg, chain="rd")
                if f < 16:
                    txt = rdK(f, i); fu = r["fu"][f]; free = g0
                elif f < 32:
                    if npv == 0: continue
                    txt = rdV(f - 16, i); fu = r["fu"][f]; free = r["lu"][f - 16]
                else:
                    f -= 32
                    if knext: txt = rdK(f, i ^ 1)
                    else: txt = rdV(f, 0)
                    fu = r["end"] + 4 + f; free = r["lu"][16 + f] if npv else r["lu"][f]
                if dg: lo = hi = g0 + dg[d]; assert lo >= free and lo <= fu - 6, (d, lo, free, fu)
                else:
                    if d < 32 - RA: hi = min(fu - 8, g0 + bg - 1); lo = min(max(free, g0 + (d * bg) // 24 - 6), hi)
                    else: hi = min(r["end"] - 1, fu - 10 + (f >> 2) * 4); lo = min(max(free, g0 + bg + 1), hi)
                    hi = max(hi, free); lo = max(lo, free)
                it = S.add("D", txt, lo, hi, chain="rd"); it["dd"] = first or lastg
                if not dg: it["early"] = free if d < 32 - RA else lo
            tA, tB = ("kvA", "kvB") if i == 0 else ("kvB", "kvA")
            for q_, gq in enumerate(mg):
                if gq is None: continue
                k = q_ + 2 if q_ < 6 else q_ - 7
                if lastg and (i == 1 or q_ > 6): continue
                sal, dd = dma(k, tA if q_ < 6 else tB)
                if k == 0: sal = [f"s_xor_b32 s{sM0}, s{sM0}, {16384 if i == 0 else 16384 + 32768}", f"s_add_u32 s{sSrc}, s{sSrc}, 32768"] + sal
                if single:
                    sg_ = {0: (45, 49, 53), 4: (9, 13)}.get(k, ())
                    for x, s_ in zip(sg_, sal): S.add("S", s_, g0 + x, g0 + x, chain="m")
                    S.add("M", dd, g0 + gq, g0 + gq, chain="m")
                else:
                    S.add("M", dd, g0 + gq, min(g0 + gq + 3, (g0 + bg - 1) if q_ < 6 else r["end"] - 1), chain="m", pre=sal, sep=3)
                    if extra and extra[0] == i and k in (3, 7):
                        for sal2, d2 in extra[1][(k >> 2)*4:(k >> 2)*4 + 4]: S.add("M", d2, g0 + gq, chain="m", pre=sal2, sep=3)
            if i == 1:
                lastK = g0 + (dg[15 - RA] if dg else r["fu"][15] - g0 - 8)
                S.add("A", f"v_xor_b32 v{vDK}, 0x8000, v{vDK}", max(lastK + 1, g0), g0 + bg - 1)
                if knext: S.add("A", f"v_xor_b32 v{vDV}, 0x8000, v{vDV}", g0 + bg + 1, N - 1)
                else: S.chains["rd"][[x["kind"] for x in S.chains["rd"]].index("X", len(S.chains["rd"]) - RA - 1)]["text"].append(f"v_xor_b32 v{vDV}, 0x8000, v{vDV}")
            nt = len(r["tiles"]); e = 0
            nxt = {(kb, qb): st for kb, qb, st, _ in rs[1]["tiles"]} if i == 0 else {}
            span0 = g0 + 8; span1 = r["end"] - 2
            if first and i == 0: span0 = g0 + 4*nq; span1 = r["end"] + 40
            if first and i == 1: span0 = g0 + 40
            for x, (kb, qb, st, en) in enumerate(r["tiles"]):
                s = S_(kb, qb); ch = ("sm", kb, qb); pdst = Pp(i, kb >> 1, qb)
                lim = nxt[(kb, qb)] - (7 if rs[1]["mq"] == qb else 1) if (kb, qb) in nxt else N - 1
                if not first: lim = min(lim, r["end"] - 1)
                if i == 0 and qb in rs[1]["pv"]: lim = min(lim, rs[1]["pv0"] - 3)
                if qb == r["mq"]:
                    src = "0" if (first and i == 0 and kb == 0) else str(NM(qb)[0])
                    for r_ in range(4):
                        c = f"v_cndmask_b32 {s[r_]}, {src}, v{vNI}, {msk(4*kb + r_)}"
                        if st - 3 < 0: head.append(c)
                        else: S.add("A", c, (g0 + 4*nq) if (first and i == 0 and kb > 0) else (0 if i == 0 else max(g0 - 20, 0)), st - 3, chain=ch)
                lo = en + 7
                if first and i == 0 and kb == 0:
                    lo = g0 + 4*nq
                    for r_ in range(4): S.add("A", f"v_add_f32 {s[r_]}, {s[r_]}, {NM(qb)[0]}", lo, lim - 4, chain=ch)
                for r_ in range(4):
                    pace_ = span0 + ((e + 1) * (span1 - span0)) // (4 * nt)
                    elo, ehi, clo, chi = min(lo, lim - 1), min(max(pace_, lo), lim - 1), min(lo, lim), min(lim, max(pace_, lo) + 8)
                    if single: elo = ehi = g0 + eg[e]; clo = chi = g0 + cg[e >> 1]
                    e += 1
                    S.add("E", f"v_exp_f32 {s[r_]}, {s[r_]}", elo, ehi, chain=ch)
                    if r_ & 1:
                        it = S.add("A", f"v_cvt_pk_bf16_f32 {pdst[2*(kb & 1) + (r_ >> 1)]}, {s[r_-1]}, {s[r_]}", clo, chi, chain=("cv", i, kb, qb, r_), sep=1)
                        it["after"] = S.chains[ch][-1]; it["soft"] = True
                        if r_ == 3: r.setdefault("lastcv", {})[(kb, qb)] = [it, S.chains[("cv", i, kb, qb, 1)][0]]
            if first and i == 0:
                blk = ["s_nop 1"]
                for qb in [x[1] for x in r["tiles"][:4]]:
                    a = S_(0, qb); blk += [f"v_max3_f32 v{mx+qb}, {a[0]}, {a[1]}, {a[2]}", f"v_max_f32 v{mx+qb}, v{mx+qb}, {a[3]}"]
                blk += xmax() + [f"s_cmp_eq_u32 s{sFB}, 0", "s_cselect_b64 vcc, 0, -1"]
                blk += [f"v_cndmask_b32 v{mx+qb}, v{mx+qb}, v{mt+qb}, vcc" for qb in range(4)]
                for qb in (3, 2, 1, 0): blk += [f"v_sub_f32 {NM(qb)[r_]}, 0, v{mx+qb}" for r_ in range(4)]
                S.add("X", blk, g0 + 4*nq - 1, g0 + 4*nq - 1)
        if rs[1]["mq"] is not None:
            for kb in range(4):
                key = (kb, rs[1]["mq"]); its = S.chains[("sm",) + key]
                k0 = [x for x in its if "cndmask" in x["text"][0]][-4]
                k0["after"] = rs[0]["lastcv"][key]
        if hook: hook(S, rs)
        return head + (["s_nop 0"] if head else []) + S.run(name)

    FULL2, LD, TR, TD, NONE = ("full", "full"), ("diag", "full"), ("off", "full"), ("off", "diag"), ("off", "off")
    def add_cpf(S, lo, hi, exprs):
        if OPT.get("nocpf"): return
        for e_ in exprs:
            pre, d = cpf(e_); S.add("M", d, lo, hi, chain="cpf", pre=pre, sep=3 if lo >= 0 else 0)
    def hook_first(S, rs):
        lo = rs[1]["g0"] + 40; N = rs[1]["end"]
        pre, d = signal(SF, f"s{t1_}", 0, "ob")
        for c in [pre[0], pre[1].replace("v1,", "v19,")] + L(f"""s_lshr_b32 s{t1_}, s{sH}, 4
              s_lshl1_add_u32 s{t1_}, s{sJ}, s{t1_}
              s_lshl_b32 s{sSig}, s{t1_}, 8
              s_add_u32 s{sSig}, s{sSig}, {32*256}
              s_lshl_b32 s{t1_}, s{sFB}, 16
              s_add_u32 s{t1_}, s{t1_}, s{sSig}"""): S.add(kind(c), c, lo, chain="sig", sep=1)
        S.add("X", one_lane(d.replace("v1,", "v19,")), lo, N - 1, chain="sig", sep=1)
        add_cpf(S, lo, N - 1, [f"{lab['D']}-L_pc+{4096*k}" for k in range(4)])
    def add_epi(S, r, qb, ts, hi, head=False):
        def put(cs_, lo):
            for c in cs_: S.add("M" if c.startswith("buffer") else kind(c), c, min(lo, hi), hi, chain="epi")
        if head: put(epi_head(qb), r["od"][("l", qb)] + 8)
        for t in ts: put(epi_frag(qb, t), r["od"][(2*t + 1, qb)] + 8 if r else 8)
    def hook_dd(S, rs):
        add_cpf(S, 2, rs[1]["end"] - 1, [f"{lab['T']}-L_pc", f"{lab['T']}-L_pc+4096", f"{lab['T1']}-L_pc", f"{lab['T1']}-L_pc+4096"])
    def hook_e0(S, rs): add_epi(S, rs[1], 0, (0, 1, 2), rs[1]["end"], True)
    def hook_t(S, rs):
        add_epi(S, None, 0, (3,), rs[0]["pv0"] + 10); add_epi(S, rs[0], 1, (0, 1, 2, 3), rs[1]["g0"] + 10, True)
    def hook_last(S, rs):
        g1 = rs[1]["g0"]; N = rs[1]["end"]
        S.add("M", f"buffer_load_dword v19, off, {srd(SF)}, s{sWt} sc1", -1, -1, chain="p5")
        S.add("X", g.spin(19, SF, f"s{sWt}", 0, 16), g1 - 16, g1 - 16, chain="p5")
        for k, (sal, d) in enumerate(p5_cld(0, 0) + p5_cld(1, 1)): S.add("M", d, g1 - 14 if k < 8 else g1, N - 1, chain="p5", pre=sal, sep=2)
        add_cpf(S, -1, -1, [f"{lab['TAIL']}-L_pc+{4096*k}" for k in range(2)])
        add_epi(S, rs[1], 2, (0,), N, True)
    def both(*hs):
        def h(S, rs):
            for x in hs: x(S, rs)
        return h
    def first_group(cur, name, hook, extra=None):
        seq = [rdK(f, 0) for f in range(RA)]
        for k in range(2):
            sal, d = dma(k, "kvA"); seq += sal + (["s_nop 0"] if k == 0 else []) + [d]
        return seq + group(cur, NONE, first=True, hook=hook, name=name, extra=extra)

    START = p.new("attstart")
    q = g.qrest + [c for c in p5_setup()[-11:]] + L(f"""s_mov_b32 s{sFB}, 0
          v_mov_b32 v{vNI}, 0xff800000
          s_lshl_b32 s{t0_}, s{sH}, 15
          s_add_u32 s{t0_}, s{t0_}, s{sLH}
          s_add_u32 s{t0_}, s{t0_}, {WS_CTX}
          s_mul_i32 s{sCb}, s{sJ}, {160*8192}
          s_add_u32 s{sCb}, s{sCb}, s{t0_}
          s_mul_i32 s{sCb+1}, s{sBHi}, {160*8192}
          s_add_u32 s{sCb+1}, s{sCb+1}, s{t0_}""")
    q += [START + ":"] + L(f"""v_mov_b32 v{vDK}, v{vL16}
          v_add_u32 v{vDV}, 0x10000, v{vL16}
          v_mov_b32 v{vBad}, 0
          s_and_b32 s{t0_}, s{sW}, 1
          s_lshr_b32 s{t1_}, s{sW}, 1
          s_lshl_b32 s{sM0}, s{t0_}, 13
          s_lshl_b32 s{t2_}, s{t1_}, 16
          s_add_u32 s{sM0}, s{sM0}, s{t2_}
          s_add_u32 s{sM0}, s{sM0}, 32768
          s_lshl_b32 s{sSrc}, s{t0_}, 14
          s_mul_i32 s{t1_}, s{t1_}, 24576
          s_sub_u32 s{sSrc}, s{sSrc}, s{t1_}
          s_add_u32 s{sSrc}, s{sSrc}, 65536
          WAITVM k0 L
          s_barrier""") + stamp(6)
    g.emit(q)
    st0 = (list(g.lg), list(g.vm))
    def setst(s): g.lg, g.vm = list(s[0]), list(s[1])
    def getst(): return (list(g.lg), list(g.vm))
    cs = ([([("a", 144 + 4*f + r) for r in range(4)], 0) for f in range(RA)], [("kvB", [])] * 8 + [("kvA", [])] * 2)
    def chk():
        a = [r for r, _ in g.lg]; b = [r for r, _ in cs[0]]
        assert a == b[len(b) - len(a):], a
    EG = 6
    p(f"s_cmp_eq_u32 s{sJ}, 0\ns_cbranch_scc1 {lab['F1']}")
    g.emit(first_group(FULL2, "F0", hook_first), EG); chk()
    g.emit(stamp(12))
    p(f"s_sub_u32 s{sCnt}, s{sJ}, 1\ns_cmp_eq_u32 s{sCnt}, 0\ns_cbranch_scc1 {lab['DD']}")
    def hook_cnt(S, rs):
        N = rs[1]["end"]
        S.add("S", f"s_sub_u32 s{sCnt}, s{sCnt}, 1", N - 11, N - 11); S.add("S", f"s_cmp_lg_u32 s{sCnt}, 0", N - 7, N - 7)
    p(".p2align 3"); p.label(lab["D"]); setst(cs)
    g.emit(group(FULL2, FULL2, hook=hook_cnt, name="D"), EG); chk()
    p(f"s_cbranch_scc1 {lab['D']}")
    p.label(lab["DD"]); setst(cs)
    g.emit(stamp(13) + group(LD, FULL2, hook=both(hook_dd, hook_e0), name="DD", extra=(0, p5_wdma(0, 0))), EG); chk()
    p(f"s_cmp_eq_u32 s{sJ}, 7\ns_cbranch_scc1 {lab['T1']}")
    p.label(lab["T"]); setst(cs)
    g.emit(stamp(14) + group(TR, LD, hook=hook_t, name="T") + stamp(15), EG); chk()
    p(f"s_lshl_b32 s{sCnt}, s{sJ}, 1\ns_sub_u32 s{sCnt}, 13, s{sCnt}")
    p(".p2align 3"); p.label(lab["S"]); setst(cs)
    g.emit(group(TR, TR, hook=hook_cnt, name="S"), EG); chk()
    p(f"s_cbranch_scc1 {lab['S']}")
    setst(cs)
    g.emit(stamp(16) + group(TD, TR, lastg=True, hook=hook_last, name="SD"), EG, name="SD"); chk()
    ts = (cs[0], list(g.vm)); setst(ts)
    p.label(lab["TAIL"])
    mf = [mfma(Lr(3), ONES, Pp(1, u, 3)) for u in range(2)]
    for db in range(8): mf += [mfma(O(db, 3), F(2*db + u), Pp(1, u, 3)) for u in snake(2, db)]
    S = Sched(mf)
    for f in range(8, 16): S.add("D", rdV(f, 0), -1 if f < 12 else 0, -1 if f < 12 else 1, chain="rd")["dd"] = True
    for k, (sal, d) in enumerate(p5_wdma(1, 1)): S.add("M", d, 3 + 2*k, 3 + 2*k, chain="p5", pre=sal)
    e1 = epi_frag(2, 1)
    for c in e1[:-2]: S.add("A", c, 2, chain="epi")
    seq = stamp(17) + S.run("tail") + e1[-2:] + stamp(7)
    seq += epi_head(3) + L(f"""s_mov_b32 s{t0_}, {f32(LTHR if not OPT.get('forcefb') else 0.0)}
          v_cmp_le_f32 vcc, s{t0_}, v{vBad}
          s_lshl_b32 s{t1_}, s{sW}, 2
          s_cmp_lg_u64 vcc, 0
          s_cselect_b32 s{t0_}, 1, 0
          v_mov_b32 v248, s{t1_}
          v_mov_b32 v249, s{t0_}
          ds_write_b32 v248, v249""") + epi_frag(2, 2, True) + epi_frag(2, 3, True)
    for t in range(4): seq += epi_frag(3, t, True)
    FB = p.new("fallback")
    seq += L(f"""v_mov_b32 v248, 0
          s_waitcnt lgkmcnt(0)
          s_barrier
          ds_read_b128 v[248:251], v248""") + stamp(8)
    g.emit(seq)
    g.fbcheck = L(f"""v_or3_b32 v248, v248, v249, v250
          v_or_b32 v248, v248, v251
          s_nop 0
          v_readfirstlane_b32 s{t0_}, v248 ;@val=0
          s_nop 0
          s_cmp_gt_u32 s{t0_}, s{sFB}
          s_cbranch_scc1 {FB} ;@br=fb""")
    es = getst()
    main = g.p; g.p = P(); g.p.uid = main.uid + 1000
    g.p.label(lab["F1"]); setst(st0)
    g.emit(first_group(LD, "F1", both(hook_first, hook_e0), (1, p5_wdma(0, 0))) + stamp(12) + stamp(13), EG); chk()
    g.p(f"s_branch {lab['T']}")
    g.p.label(lab["T1"]); setst(cs)
    g.emit(stamp(14) + stamp(15) + stamp(16) + group(TD, LD, lastg=True, hook=both(hook_t, hook_last), name="T1"), EG); chk()
    def sig_(vm): return [(t, tuple(r)) for t, r in vm if (t and t.startswith("w5")) or r]
    assert sig_(g.vm) == sig_(ts[1])[len(sig_(ts[1])) - len(sig_(g.vm)):], (sig_(g.vm), sig_(ts[1]))
    g.p(f"s_branch {lab['TAIL']}")
    g.p.label(FB); setst(([], []))
    sU = 81
    q = L(f"""s_waitcnt vmcnt(0) lgkmcnt(0)
          s_barrier
          s_mov_b32 s{sFB}, 1
          s_mov_b32 s{sU}, 0
          v_and_b32 v232, 15, v0
          v_lshrrev_b32 v233, 4, v0
          v_lshlrev_b32 v233, 2, v233
          v_sub_u32 v232, v232, v233
          s_lshl_b32 s{t0_}, s{sW}, 4
          v_add_u32 v232, s{t0_}, v232
          s_lshl_b32 s{t0_}, s{sBHi}, 7
          v_add_u32 v234, s{t0_}, v232
          s_lshl_b32 s{t0_}, s{sJ}, 7
          v_add_u32 v232, s{t0_}, v232
          v_add_u32 v233, 64, v232
          v_add_u32 v235, 64, v234""")
    for sal, d in att_first_dmas(sLX): q += sal + ["s_nop 0", d]
    for qb in range(4): q.append(f"v_mov_b32 v{mx+qb}, 0xff800000")
    FL = g.p.new("fbl"); q.append(FL + ":")
    for f in range(8):
        if f == 4: q.append(f"s_add_u32 s{sT}, s{sU}, 4096")
        q.append(f"buffer_load_dwordx4 {F(f)}, v{vL16}, {srd(SA)}, s{sU if f < 4 else sT} offen offset:{(f&3)*1024} sc1")
    for qb in range(4):
        for kb in range(2):
            for r in range(4):
                c = S_(kb, qb)[r]
                q += [f"v_subrev_u32 {c}, {16*kb + r}, v{232+qb}", f"v_ashrrev_i32 {c}, 31, {c}", f"v_and_b32 {c}, 0xff800000, {c}"]
        q.append(f"v_subrev_u32 v{232+qb}, 32, v{232+qb}")
    q.append("s_waitcnt vmcnt(0)")
    for f in range(8):
        for qb in range(4): q.append(mfma(S_(f >> 2, qb), F(f), Q(qb, f & 3)))
    q.append("s_nop 7")
    for qb in range(4):
        for kb in range(2):
            a = S_(kb, qb)
            q += [f"v_max3_f32 v{mx+qb}, v{mx+qb}, {a[0]}, {a[1]}", f"v_max3_f32 v{mx+qb}, v{mx+qb}, {a[2]}, {a[3]}"]
    q += L(f"s_add_u32 s{sU}, s{sU}, 16384\ns_cmp_lt_u32 s{sU}, s{SA+2}\ns_cbranch_scc1 {FL}")
    q += xmax()
    q += [f"v_mov_b32 v{mt+qb}, v{mx+qb}" for qb in range(4)]
    q.append(f"s_branch {START}")
    g.emit(q)
    g.ool += g.p.l; main.uid = g.p.uid + 1000; g.p = main
    setst(es)

def phase5(g):
    p = g.p
    vD = 184
    sCnt = 70
    CO = [4, 5, 6, 7, 0, 1, 2, 3]
    def acc(rb, cb): return R("v", 24 + 32*rb + 4*cb)
    def fw(j, s): return R("a", 64 + 8*j + 4*s)
    def wread(tau, j):
        base = p5_lds(tau); win = 0 if base >= 98304 else 1
        off = base - (98304 if win == 0 else 32768)
        return [f"ds_read_b64_tr_b16 {fw(j, s)[2*i:2*i+2]}, v{vD + 8*win + CO[j]} offset:{off + s*8192 + i*4096}" for s in range(2) for i in range(2)]
    q = L(f"""v_lshrrev_b32 v200, 4, v0
          v_bfe_u32 v201, v0, 2, 2
          v_lshl_add_u32 v202, v200, 2, v201
          v_and_b32 v203, 3, v0
          v_lshlrev_b32 v203, 3, v203
          v_lshl_add_u32 v203, v202, 8, v203
          s_and_b32 s{t0_}, s{sW}, 1
          s_lshl_b32 s{t0_}, s{t0_}, 14
          s_add_u32 s{t0_}, s{t0_}, 98304
          v_add_u32 v203, s{t0_}, v203
          v_and_b32 v202, 7, v202
          s_lshl_b32 s{t0_}, s{sKh}, 2
          v_xor_b32 v202, s{t0_}, v202""")
    for n in CO: q += [f"v_xor_b32 v200, {n}, v202", f"v_lshl_add_u32 v{vD+n}, v200, 5, v203"]
    q += g.fbcheck
    NPRE = 3
    for j in range(NPRE): q += wread(0, j)
    for n in range(8): q += [f"v_xor_b32 v{vD+8+n}, 0x10000, v{vD+n}"]
    q += [f"s_add_u32 s71, s{sSig}, 4096", f"s_add_u32 s72, s{sWt}, 4096"]
    g.emit(q)
    BP = 40
    xs = L(f"""s_xor_b32 s{t0_}, s2, 4
          s_lshl2_add_u32 s{t0_}, s{t0_}, s{sW}
          s_lshl_b32 s73, s{t0_}, 13
          s_add_u32 s73, s73, {WS_XCH}
          s_add_u32 s74, s73, 4096
          s_lshl_b32 s71, s{t0_}, 6
          s_lshl2_add_u32 s{t0_}, s2, s{sW}
          s_lshl_b32 s72, s{t0_}, 6
          s_lshl_b32 s75, s{t0_}, 13
          s_add_u32 s75, s75, {WS_XCH}
          s_add_u32 s76, s75, 4096
          s_lshl_b32 s77, s{sR5}, 18
          s_lshl_b32 s{t0_}, s{sW}, 16
          s_add_u32 s77, s77, s{t0_}
          s_add_u32 s77, s77, s{sCol}
          s_lshl_b32 s{t0_}, s{sKh}, 7
          s_add_u32 s77, s77, s{t0_}
          s_add_u32 s78, s77, 32768
          v_lshlrev_b32 v1, 24, v0
          v_and_b32 v8, 15, v0
          v_lshlrev_b32 v8, 11, v8
          v_bfe_u32 v10, v0, 4, 1
          v_lshl_add_u32 v8, v10, 5, v8
          v_lshrrev_b32 v10, 5, v0
          v_lshl_add_u32 v8, v10, 4, v8
          v_add_u32 v2, s{sL5}, v{vL16}
          v_xor_b32 v3, 0x2000, v2""")
    def tmp(rb, c): return R("v", 200 + 16*rb + 4*c)
    def body(t0, kd):
        mf = []; dn = {}
        for st in range(4):
            k = 0
            for j in range(8):
                for rb in snake(4, j + 1):
                    for q_, s in enumerate(snake(2, k)):
                        c0 = 0 if (kd == "first" and st == 0 and q_ == 0) else None
                        mf.append(mfma(acc(rb, CO[j]), fw(j, s), p5_ctx(st, rb, s), c0))
                    k += 1; dn[(rb, CO[j])] = len(mf) - 1
        S = Sched(mf)
        def pace(items, lo, hi):
            for k, (sal, d) in enumerate(items):
                x = lo + (k * (hi - lo)) // len(items)
                S.add("M", d, x, min(x + 2, 255), chain="ld", pre=sal, sep=2)
        def rel(x): return x if (kd != "first" or x < 4) else x - 4
        for st in range(4):
            tau = t0 + st; g0 = 64 * st; B = g0 + BP
            for j in range(NPRE, 8):
                for r in wread(tau, j): S.add("T", r, max(g0 + 8*j - 30, g0), min(g0 + 8*j - 8, B - 1), chain="t")
            if tau < 19:
                S.add("X", [f"WAITVM w5_{(tau+1)&3}" + (",ctx" if (kd == "first" and st == 1) else ""), "s_barrier"], B, B, chain="t")
                for j in range(NPRE):
                    for r in wread(tau + 1, j): S.add("T", r, B + 1, min(g0 + 64 + 8*j - 8, g0 + 63), chain="t")
            w_prev = p5_wdma(tau + 2, rel(st + 2)) if tau + 2 < 20 else []
            w_next = p5_wdma(tau + 3, rel(st + 3)) if tau + 3 < 20 else []
            cl = p5_cld(tau + 2, rel(st + 2)) if tau + 2 < 20 else []
            if kd == "first":
                if st == 0: pace(w_prev + cl, g0 + 2, B - 1)
                elif st == 2:
                    pace(w_prev[5:], g0 + 2, g0 + 12)
                    S.add("M", f"buffer_load_dword v19, off, {srd(SF)}, s72 sc1", g0 + 24, g0 + 28, chain="ld")
                elif st == 3:
                    S.add("X", g.spin(19, SF, "s72", 0, 16) + L(f"s_mul_i32 s{t0_}, s{sKh}, {(64-16)*8192}\ns_add_u32 s{sCtx}, s{sCtx}, s{t0_}\ns_sub_u32 s{sCtx}, s{sCtx}, {128*8192}") + stamp(9), g0, g0, chain="ld")
                    pace(p5_cld(4, 0) + w_prev[5:] + cl, g0 + 2, B - 1)
                else: pace(w_prev[5:] + cl, g0 + 2, B - 1)
                if st == 1: S.add("X", L(f"s_mul_i32 s{t0_}, s{sKh}, {3<<20}\ns_add_u32 s{sWo5}, s{sWo5}, s{t0_}"), B + 1, B + 1, chain="ld")
            elif w_prev: pace(w_prev[5:] + cl, g0 + 2, B - 1)
            if w_next: pace(w_next[:5], B + 4, g0 + 64)
            if kd == "first" and st == 1:
                pre, d = signal(SF, "s71", 0, "ctx")
                S.add("S", pre[0], B - 12, B - 4, chain="sig"); S.add("A", pre[1], B - 12, B - 1, chain="sig", sep=1)
                S.add("X", one_lane(d), B + 2, B + 2, chain="sig")
        if kd == "loop":
            for k, c in enumerate([f"s_sub_u32 s{sCnt}, s{sCnt}, 1", f"s_add_u32 s{sCtx}, s{sCtx}, {0 if 'c' in OPT.get('x_same', '') else 4*32768}", f"s_add_u32 s{sWo5}, s{sWo5}, {0 if 'w' in OPT.get('x_same', '') else 4*262144}", f"s_cmp_lg_u32 s{sCnt}, 0"]):
                S.add("S", c, 250, 256, chain="ld")
        if kd == "first" and not OPT.get("nocpf"):
            for k in range(3):
                pre, d = cpf(".-L_pc+%d" % (2048 + 4096*k)); S.add("M", d, 128 + 14 + 3*k, 128 + 38, chain="cpf", pre=pre, sep=3)
        if kd == "last":
            for c in xs: S.add(kind(c), c, 130, 200, chain="x")
            S.add("X", mk_srd(SF, sWS, 65536, WS_INBOX)[:3], 130, 205, chain="x")
            for c in mk_srd(SE, sOUT, 4 << 20): S.add("S", c, 130, 210, chain="x")
            for c in range(4):
                for rb in range(2):
                    S.add("M", f"ds_write_b128 v3, {acc(2 + rb, 4 + c)} offset:{rb*4096 + c*1024}", dn[(2 + rb, 4 + c)] + 8, chain="x")
            S.add("X", ["s_waitcnt lgkmcnt(0)", "s_barrier"], 0, chain="x", sep=3)
            for rb in range(2):
                for c in range(4): S.add("D", f"ds_read_b128 {tmp(rb, c)}, v2 offset:{rb*4096 + c*1024}", 0, chain="x")
            for rb in range(2):
                for c in range(4):
                    for r in range(4): S.add("A", f"v_add_f32 {tmp(rb, c)[r]}, {tmp(rb, c)[r]}, {acc(rb, 4 + c)[r]}", 0, chain="x")
                    S.add("M", f"buffer_store_dwordx4 {tmp(rb, c)}, v{vL16}, {srd(SD)}, s{73+rb} offen offset:{c*1024} {ST} ;@tag=xch", 0, chain="x")
        return S.run("p5" + kd)
    g.emit(body(0, "first"), 8, name="p5first")
    p(stamp(4)); p(f"s_mov_b32 s{sCnt}, 3")
    Lp = p.new("p5"); p(".p2align 3"); p.label(Lp)
    bl = body(4, "loop")
    ent = ([(r, 0) for r, a in g.lg], list(g.vm))
    _, lg2, vm2 = resolve(bl, ent[0], ent[1], 8)
    g.lg, g.vm = [(r, 0) for r, a in lg2], vm2
    assert [r for r, _ in ent[0]] == [r for r, _ in lg2][len(lg2) - len(ent[0]):], (ent[0], lg2)
    g.vm = ent[1]
    g.emit(bl, 8)
    p(f"s_cbranch_scc1 {Lp}")
    g.lg = [(r, 0) for r, a in g.lg]
    g.emit(stamp(3) + body(16, "last") + stamp(10), 8, name="p5last")
    q = ["s_nop 4"]
    for c in range(4):
        for rb in range(2): q.append(f"ds_write_b128 v3, {acc(2 + rb, c)} offset:{32768 + rb*4096 + c*1024}")
    q += L(f"""s_waitcnt lgkmcnt(0)
          s_barrier""")
    for rb in range(2):
        for c in range(4): q.append(f"ds_read_b128 {acc(2 + rb, c)}, v2 offset:{32768 + rb*4096 + c*1024}")
    q += L(f"""s_waitcnt vmcnt(0)
          buffer_store_dword a{aONE}, v1, {srd(SF)}, s71 offen {ST} ;@sig=wave:xch
          buffer_load_dword v19, off, {srd(SF)}, s72 sc1""")
    for rb in range(2):
        for c in range(4):
            for r in range(4): q.append(f"v_add_f32 {acc(rb, c)[r]}, {acc(rb, c)[r]}, {acc(2 + rb, c)[r]}")
    q += g.spin(19, SF, "s72", 0, 1)
    for rb in range(2):
        for c in range(4): q.append(f"buffer_load_dwordx4 {acc(rb, 4+c)}, v{vL16}, {srd(SD)}, s{75+rb} offen offset:{c*1024} sc1")
    for rb in range(2):
        for c2 in range(2):
            a, b = acc(rb, 2*c2), acc(rb, 2*c2+1)
            for c in (2*c2, 2*c2+1):
                for r in range(4): q.append(f"v_add_f32 {acc(rb, c)[r]}, {acc(rb, c)[r]}, {acc(rb, 4+c)[r]}")
            q += L(f"""v_cvt_pk_bf16_f32 {a[0]}, {a[0]}, {a[1]}
                  v_cvt_pk_bf16_f32 {a[1]}, {a[2]}, {a[3]}
                  v_cvt_pk_bf16_f32 {a[2]}, {b[0]}, {b[1]}
                  v_cvt_pk_bf16_f32 {a[3]}, {b[2]}, {b[3]}
                  s_nop 1
                  v_permlane16_swap_b32 {a[0]}, {a[2]}
                  v_permlane16_swap_b32 {a[1]}, {a[3]}
                  buffer_store_dwordx4 {a}, v8, {srd(SE)}, s{77+rb} offen offset:{c2*64} {OPT.get("ost", "")}""")
    q += stamp(11) + stamp_flush()
    g.emit(q, name="final")

def build():
    g = G(); p = g.p
    hdr = open("/code/" + NAME + ".s.ref").read()
    p.l += [l for l in hdr.split("\n") if l.startswith(";") and "@launch" not in l]
    p.l.append(f"; @launch grid=(256,1,1) block=(256,1,1) lds={LDS_BYTES}")
    k = NAME + "_kernel"
    p(f'.amdgcn_target "amdgcn-amd-amdhsa--gfx950"\n.text\n.globl {k}\n.p2align 8\n.type {k},@function'); p.label(k)
    gemm12(g); attention(g); phase5(g)
    p.label("L_end"); p("s_endpgm")
    p(g.ool)
    p.label("L_codeend")
    p('.section .rodata,"a"\n.p2align 6')
    p.l += f""".amdhsa_kernel {k}
  .amdhsa_next_free_vgpr 512
  .amdhsa_next_free_sgpr 102
  .amdhsa_accum_offset 256
  .amdhsa_group_segment_fixed_size 0
  .amdhsa_kernarg_size 104
  .amdhsa_user_sgpr_count 2
  .amdhsa_user_sgpr_kernarg_segment_ptr 1
  .amdhsa_system_sgpr_workgroup_id_x 1
.end_amdhsa_kernel""".split("\n")
    return p.text()

if __name__ == "__main__":
    out = sys.argv[1]
    for a in sys.argv[2:]:
        k, _, v = a.partition("=")
        OPT[k] = True if v == "" else (int(v) if v.lstrip("-").isdigit() else v)
    txt = build()
    import subprocess, re, os
    open("_sz.s", "w").write(txt.replace("NCHUNK", "100"))
    subprocess.check_call(["clang", "-x", "assembler", "-target", "amdgcn-amd-amdhsa", "-mcpu=gfx950", "-c", "_sz.s", "-o", "_sz.o"])
    sz = int(re.search(r"\.text\s+PROGBITS\s+\S+\s+\S+\s+(\S+)", subprocess.check_output(["llvm-readelf", "-S", "_sz.o"]).decode()).group(1), 16)
    nch = 0
    print("code bytes", sz, "file", len(txt))
    open(out, "w").write(txt.replace("NCHUNK", str(nch)))
```

```python
import sys, math, struct
from genlib import P, R, mfma
from sched import Sched, resolve

NAME = "gated_mix__compressed_kv_cla__sliding_local_dilated__prompt"
WS_KV, WS_CTX, WS_G, WS_CNT, WS_INBOX, WS_XCH, WS_STAMP = 0, 32 << 20, 56 << 20, 57 << 20, (57 << 20) + 65536, 64 << 20, 96 << 20
LDS_BYTES = 160 * 1024
def f32(x): return "0x%08x" % struct.unpack("<I", struct.pack("<f", x))[0]
QSCALE = 128 ** -0.5 * math.log2(math.e)
BSCALE = 32 ** -0.5 * math.log2(math.e)
LTHR = 2.0 ** 60

sX, sC, sWQ, sWUK, sWUV, sWOA, sWQKV, sWOB, sGATE, sOUT, sDBG, sWS = 4, 6, 8, 10, 12, 14, 18, 20, 22, 24, 26, 28
sW, sH, sJ = 30, 31, 3
SA, SB, SC, SD, SE, SF, SG, SH = 32, 36, 40, 44, 48, 52, 56, 60
sT, sT2, sBHi = 64, 65, 16
t0_, t1_, t2_, t3_ = 66, 67, 68, 69
def srd(b): return f"s[{b}:{b+3}]"
OPT = dict(stamps=False)
ST = "sc1" if "x_plain" not in sys.argv else ""

vDX, vDQ, vGX, vGW, vL16, vDH, vDB, vDBH, vGH, vGB = 2, 4, 12, 14, 16, 17, 19, 21, 22, 23
vQ, vG = 24, 4
aONE, aDUM = 251, 252
ONES = R("a", 244)
MSK = [0, 4, 6, 8, 10, 12, 18, 22, 26, 56, 58, 60, 62, 48, 50, 100]
def msk(k): return f"s[{MSK[k]}:{MSK[k]+1}]"
def kind(c): return "S" if c.startswith("s_") else ("E" if c.startswith(("v_exp", "v_rcp")) else "A")

def L(s): return [x.strip() for x in s.strip().split("\n") if x.strip()]
def mk_srd(b, ptr, nbytes, off=None):
    if off is None: o = [f"s_mov_b32 s{b}, s{ptr}", f"s_mov_b32 s{b+1}, s{ptr+1}"]
    else: o = [f"s_add_u32 s{b}, s{ptr}, {off}", f"s_addc_u32 s{b+1}, s{ptr+1}, 0"]
    return o + [f"s_mov_b32 s{b+2}, {nbytes}", f"s_mov_b32 s{b+3}, 0x20000"]

NST = [0]
def stamp(idx):
    if not OPT["stamps"]: return []
    return L(f"""s_waitcnt lgkmcnt(0)
        s_memtime s[92:93]
        s_memrealtime s[94:95]
        v_accvgpr_write_b32 a253, v1
        v_accvgpr_read_b32 v1, a249
        s_waitcnt lgkmcnt(0)
        v_writelane_b32 v1, s92, {2*idx}
        v_writelane_b32 v1, s94, {2*idx+1}
        v_accvgpr_write_b32 a249, v1
        v_accvgpr_read_b32 v1, a253
        s_nop 1""")
def stamp_flush():
    if not OPT["stamps"]: return []
    return L(f"""s_lshl_b32 s96, s2, 2
        s_add_u32 s96, s96, s{sW}
        s_lshl_b32 s96, s96, 8
        s_add_u32 s96, s96, {WS_STAMP}
        v_lshlrev_b32 v1, 2, v0
        buffer_store_dword a249, v1, {srd(SD)}, s96 offen
        s_waitcnt vmcnt(0)""")

class G:
    def __init__(self):
        self.p = P(); self.lg = []; self.vm = []; self.ool = []
    def emit(self, seq, eager=0, name=None):
        if name: self.p.l.append(";@seg " + name)
        out, self.lg, self.vm = resolve(seq, self.lg, self.vm, eager)
        self.p(out)
    def spin(self, vreg, srdb, soff, imm, target):
        st, bk, lp = self.p.new("spin"), self.p.new("spinbk"), self.p.new("spinlp")
        self.ool += L(f"""{st}:
            s_mov_b32 s{t1_}, 0x8000
            {lp}:
            s_sleep 1
            buffer_load_dword v{vreg}, off, {srd(srdb)}, {soff} offset:{imm} sc1
            s_waitcnt vmcnt(0)
            v_readfirstlane_b32 s{t0_}, v{vreg}
            s_sub_u32 s{t1_}, s{t1_}, 1
            s_cbranch_scc1 {bk} ;@nottaken
            s_cmp_lt_u32 s{t0_}, {target}
            s_cbranch_scc1 {lp} ;@nottaken
            s_branch {bk}""")
        return L(f"""v_readfirstlane_b32 s{t0_}, v{vreg}
            s_nop 0
            s_cmp_lt_u32 s{t0_}, {target}
            s_cbranch_scc1 {st}
            {bk}:""")

sLH = 78
def cpf(expr):
    return ([f"s_add_u32 s17, s{sLH}, {expr}"], f"buffer_load_dword a{aDUM}, v{vL16}, s[88:91], s17 offen ;@dummy")
def one_lane(d): return ["s_mov_b64 exec, 1", d, "s_mov_b64 exec, -1"]
def signal(srdb, soff, imm, tags):
    return ([f"s_lshl_b32 s{t0_}, s{sW}, 30", f"v_lshl_add_u32 v1, v0, 24, s{t0_}"],
            f"buffer_atomic_add a{aONE}, v1, {srd(srdb)}, {soff} offen offset:{imm} sc1 ;@sig=wg:{tags}")

def snake(n, k): return list(range(n)) if k % 2 == 0 else list(range(n - 1, -1, -1))

def aq(db, rb): return R("v", (vQ if db % 2 == 0 else 88) + 16 * rb + 4 * (db // 2))
def bt(part, db, rb): return R("v", 152 + 32 * part + 8 * rb + 4 * db)
HK, HV = R("v", 248), R("v", 252)
P2ORD = [10, 14, 11, 12, 15, 13, 8, 9, 0, 1, 2, 3, 4, 5, 6, 7]
def p2tile(cb, rb):
    if cb < 8: return aq(cb, rb)
    if cb < 14: return bt((cb - 8) >> 1, cb & 1, rb)
    return HK if cb == 14 else HV

def gemm12(g):
    p = g.p
    sCo, sWo, sXlo, sXhi, sXh, sBo, sLX, sLW, sKV, sPF = 70, 71, 72, 73, 74, 75, 76, 77, 79, 80
    NR = 6
    def fx(sg, rb, s): return R("a", 32 * (sg & 1) + 8 * rb + 4 * s) if rb < 4 else R("a", 64 + 4 * s)
    def fw(J, s): return R("a", 72 + 8 * (J % NR) + 4 * s)
    def stash(i): return R("a", 144 + 4 * i)
    GA = 144
    def order(sg):
        o = []; k = 0
        for j, cb in enumerate(range(16) if sg < 8 else P2ORD):
            if sg >= 8 and cb >= 14: o.append((j, cb, 4))
            else:
                o += [(j, cb, rb) for rb in snake(4, k)]; k += 1
        return o
    o1, o2 = order(0), order(8)
    pos1 = {(cb, rb): k for k, (j, cb, rb) in enumerate(o1)}
    def treg(k): return p2tile(o2[k][1], o2[k][2]) if k < 58 else R("a", 120 + 4 * (k - 58))
    p("s_cmp_ge_u32 s2, 256\ns_cbranch_scc1 L_end")
    p("s_load_dwordx16 s[4:19], s[0:1], 0\ns_load_dwordx8 s[20:27], s[0:1], 64\ns_load_dwordx2 s[28:29], s[0:1], 96")
    if OPT["stamps"] or OPT.get("dbgt"): p("s_memtime s[96:97]\ns_memrealtime s[98:99]")
    if OPT.get("dbgt"): p("s_load_dwordx2 s[94:95], s[0:1], 88")
    p("s_getpc_b64 s[88:89]"); p.label("L_pc")
    p(f"""v_lshrrev_b32 v1, 6, v0
          s_lshr_b32 s{t1_}, s2, 3
          v_lshl_add_u32 v24, s{t1_}, 2, v1
          s_mov_b32 s90, L_codeend-L_pc
          s_mov_b32 s91, 0x20000
          v_and_b32 v25, 7, v0
          v_lshlrev_b32 v25, 7, v25
          v_lshl_add_u32 v24, v24, 10, v25
          buffer_load_dword a{aDUM}, v24, s[88:91], 0 offen ;@dummy
          v_and_b32 v0, 63, v0
          v_readfirstlane_b32 s{sW}, v1 ;@val=wave
          v_lshrrev_b32 v24, 3, v0
          v_lshrrev_b32 v25, 4, v0
          v_and_b32 v26, 7, v0
          v_xor_b32 v26, v26, v25
          v_lshlrev_b32 v26, 4, v26
          v_lshl_add_u32 v{vGX}, v24, 10, v26
          v_xor_b32 v{vGX+1}, 64, v{vGX}
          v_bfe_u32 v26, v0, 1, 3
          v_xor_b32 v26, v26, v25
          v_lshlrev_b32 v26, 5, v26
          v_and_b32 v24, 1, v0
          v_lshl_add_u32 v26, v24, 4, v26
          v_lshl_add_u32 v{vGW}, v25, 13, v26
          v_xor_b32 v{vGW+1}, 128, v{vGW}
          s_and_b32 s{t0_}, s2, 7
          s_and_b32 s{t2_}, s{t1_}, 3
          s_lshl2_add_u32 s{sH}, s{t0_}, s{t2_}
          s_lshr_b32 s{sJ}, s{t1_}, 2
          s_lshl2_add_u32 s{sPF}, s{t1_}, s{sW}
          s_lshl_b32 s{sCo}, s{sJ}, 18
          s_lshl_b32 s{t0_}, s{sW}, 16
          s_add_u32 s{sCo}, s{sCo}, s{t0_}
          s_lshl_b32 s{sWo}, s{sW}, 17
          s_lshl_b32 s{t0_}, s{sH}, 8
          s_add_u32 s{sWo}, s{sWo}, s{t0_}
          s_lshl_b32 s{sLX}, s{sW}, 13
          s_lshl_b32 s{sLW}, s{sW}, 12
          s_lshl_b32 s{sLH}, s{sW}, 10
          s_waitcnt lgkmcnt(0)""")
    p(mk_srd(SA, sC, 2 << 20) + mk_srd(SB, sWUK, 4 << 20) + mk_srd(SC, sWUV, 4 << 20))
    def xdma(sg):
        par = sg & 1; d = []
        for i in range(8):
            if sg < 8: so, sr = f"s_add_u32 s{sT}, s{sCo}, {sg*128 + i*8192}", SA
            else: so, sr = f"s_add_u32 s{sT}, s{sXlo if i < 4 else sXhi}, {(sg-8)*128 + ((i>>1)&1)*64*2048 + (i&1)*16384}", SE
            d.append(([f"s_add_u32 m0, s{sLX}, {par*32768 + i*1024}", so], f"buffer_load_dwordx4 v{vGX + (i&1)}, {srd(sr)}, s{sT} offen lds ;@tag=x{sg}"))
        return d
    def wdma(sg):
        d = []; B = 65536 + (sg % 3) * 32768
        for kv in range(2 if sg < 8 else 1):
            for i in range(4):
                st = sg if sg < 8 else sg - 8
                d.append(([f"s_add_u32 m0, s{sLW}, {B + kv*16384 + i*1024}", f"s_add_u32 s{sT}, s{sWo}, {st*64*8192 + i*32768}"],
                          f"buffer_load_dwordx4 v{vGW + (i>>1)}, {srd((SB, SC)[kv] if sg < 8 else SG)}, s{sT} offen lds ;@tag=w{sg}"))
        if sg >= 8:
            for pp in range(3):
                d.append(([f"s_add_u32 m0, s{sLH}, {B + 16384 + pp*4096}", f"s_add_u32 s{sT}, s{sBo}, {(sg-8)*64*6144 + pp*2048}"],
                          f"buffer_load_dwordx4 v{vGB}, {srd(SH)}, s{sT} offen lds ;@tag=w{sg}"))
            d.append(([f"s_add_u32 m0, s{sLH}, {B + 28672}", f"s_add_u32 s{sT}, s{sXh}, {(sg-8)*128}"],
                      f"buffer_load_dwordx4 v{vGH}, {srd(SE)}, s{sT} offen lds ;@tag=w{sg}"))
            d = [d[k] for k in (0, 4, 1, 5, 2, 6, 3, 7)]
        return d
    seq = []
    for sal, d in xdma(0) + wdma(0): seq += sal + [d]
    seq += mk_srd(SD, sWS, 128 << 20) + mk_srd(SE, sX, 4 << 20) + mk_srd(SF, sDBG, 256) + mk_srd(SG, sWQ, 8 << 20) + mk_srd(SH, sWQKV, 6 << 20)
    seq += [f"v_accvgpr_write_b32 a{aONE}, 1"]
    if OPT["stamps"]: seq += ["v_mov_b32 v30, 0", "v_writelane_b32 v30, s96, 60", "v_writelane_b32 v30, s98, 61", "v_accvgpr_write_b32 a249, v30"] + stamp(0)
    seq += L(f"""v_and_b32 v24, 15, v0
          v_lshrrev_b32 v26, 1, v24
          v_xor_b32 v26, v26, v25
          v_lshlrev_b32 v26, 4, v26
          v_lshl_add_u32 v26, v24, 7, v26
          v_add_u32 v{vDX}, s{sLX}, v26
          v_xor_b32 v{vDX+1}, 64, v{vDX}
          v_bfe_u32 v24, v0, 2, 2
          v_lshl_add_u32 v27, v25, 3, v24
          v_and_b32 v1, 3, v0
          v_cmp_eq_u32 vcc, 0, v1
          v_lshlrev_b32 v1, 3, v1
          v_lshl_add_u32 v26, v27, 8, v1
          v_add_u32 v26, 65536, v26
          v_and_b32 v1, 1, v25
          v_lshl_add_u32 v24, v1, 2, v24
          v_lshlrev_b32 v{vL16}, 4, v0
          v_mov_b32 v28, 0x3f803f80
          v_cndmask_b32 v28, 0, v28, vcc""")
    seq += [f"v_accvgpr_write_b32 {ONES[r]}, v28" for r in range(4)]
    for n in range(8): seq += [f"v_xor_b32 v1, {n}, v24", f"v_lshl_add_u32 v{vDQ+n}, v1, 5, v26"]
    seq += L(f"""s_sub_u32 s{sBHi}, 15, s{sJ}
          s_lshl_b32 s{sXlo}, s{sJ}, 18
          s_lshl_b32 s{sXhi}, s{sBHi}, 18
          s_cmp_lt_u32 s{sW}, 2
          s_cselect_b32 s{sXh}, s{sXlo}, s{sXhi}
          s_max_u32 s{sXh}, s{sXh}, 32768
          s_sub_u32 s{sXh}, s{sXh}, 32768
          s_and_b32 s{t0_}, s{sW}, 1
          s_lshl_b32 s{t0_}, s{t0_}, 14
          s_add_u32 s{sXh}, s{sXh}, s{t0_}
          s_lshl_b32 s{t0_}, s{sW}, 15
          s_add_u32 s{sXlo}, s{sXlo}, s{t0_}
          s_add_u32 s{sXhi}, s{sXhi}, s{t0_}
          s_mul_i32 s{sBo}, s{sW}, {16*6144}
          s_lshl_b32 s{t0_}, s{sH}, 6
          s_add_u32 s{sBo}, s{sBo}, s{t0_}
          s_lshl_b32 s{sKV}, s{sH}, 20
          s_lshl_b32 s{t0_}, s{sJ}, 17
          s_add_u32 s{sKV}, s{sKV}, s{t0_}
          s_lshl_b32 s{t0_}, s{sW}, 15
          s_add_u32 s{sKV}, s{sKV}, s{t0_}
          v_bfe_u32 v{vGB}, v0, 1, 1
          v_lshrrev_b32 v1, 5, v0
          v_xor_b32 v{vGB}, v{vGB}, v1
          v_lshlrev_b32 v{vGB}, 5, v{vGB}
          v_and_b32 v1, 1, v0
          v_lshl_add_u32 v{vGB}, v1, 4, v{vGB}
          v_lshrrev_b32 v1, 2, v0
          v_mul_u32_u24 v1, 6144, v1
          v_add_u32 v{vGB}, v1, v{vGB}
          s_and_b32 s{t2_}, s{sW}, 1
          s_lshl_b32 s{t2_}, s{t2_}, 6
          v_lshrrev_b32 v1, 3, v0
          v_lshl_add_u32 v{vGH}, v1, 10, v{vGX}
          v_xor_b32 v{vGH}, s{t2_}, v{vGH}
          s_lshl_b32 s81, s{sPF}, 13
          s_and_b32 s{t1_}, s2, 7
          s_lshl_b32 s82, s{t1_}, 8
          s_add_u32 s82, s82, s81
          s_lshl_b32 s{t1_}, s{t1_}, 10
          s_add_u32 s81, s81, s{t1_}
          v_mul_u32_u24 v1, 1792, v25
          v_add_u32 v1, v1, v{vL16}
          s_lshl_b32 s{t2_}, s2, 3
          s_lshl1_add_u32 s{t2_}, s{sW}, s{t2_}
          v_lshrrev_b32 v18, 5, v0
          v_add_u32 v18, s{t2_}, v18
          v_and_b32 v19, 31, v0
          v_lshlrev_b32 v19, 4, v19
          v_lshl_add_u32 v18, v18, 11, v19
          v_mov_b32 v21, 0
          v_min_u32 v20, 1, v0
          v_lshlrev_b32 v20, 30, v20
          s_lshl2_add_u32 s{t2_}, s2, s{sW}
          s_lshl_b32 s{t2_}, s{t2_}, 6
          s_add_u32 s{t2_}, s{t2_}, {WS_INBOX}
          s_lshr_b32 s{t3_}, s2, 6
          s_or_b32 s{t3_}, s{t3_}, s{sW}
          s_lshl_b32 s{t3_}, s{t3_}, 20
          s_add_u32 s{t3_}, s{t3_}, s2
          s_lshl_b32 s{t3_}, s{t3_}, 8
          s_add_u32 s{t3_}, s{t3_}, {WS_CNT}""")
    def xread(sg): return [f"ds_read_b128 {fx(sg, rb, s)}, v{vDX+s} offset:{(sg&1)*32768 + rb*2048}" for rb in range(4) for s in range(2)]
    def hread(sg): return [f"ds_read_b128 {fx(sg, 4, s)}, v{vDH+s} offset:{min(sg % 3, 1)*32768}" for s in range(2)]
    def wread(sg, j):
        par = min(sg % 3, 1); o = []; cb = j if sg < 8 else P2ORD[j]
        for s in range(2):
            for i in range(2):
                if sg < 8 or cb < 8: a, off = vDQ + (cb & 7), par*32768 + (cb >> 3)*16384 + s*8192 + i*1024
                elif cb < 14: a, off = vDB + (cb & 1), par*32768 + ((cb-8) >> 1)*4096 + s*2048 + i*256
                else: a, off = vDBH, par*32768 + (cb-13)*4096 + s*2048 + i*256
                o.append((a, f"ds_read_b64_tr_b16 {fw(16*sg + j, s)[2*i:2*i+2]}, v{a} offset:{off}"))
        return o
    for sal, d in xdma(1) + wdma(1): seq += sal + [d]
    seq += ["WAITVM w0", "s_barrier"] + stamp(1)
    xr = xread(0); NPRE = 3
    seq += xr[:2] + [r for _, r in wread(0, 0)] + xr[2:]
    for j in range(1, NPRE): seq += [r for _, r in wread(0, j)]
    g.emit(seq)
    mf = []; G0 = []; FU = []; LU = []; done = {}
    for sg in range(24):
        G0.append(len(mf))
        for k, (j, cb, rb) in enumerate(o1 if sg < 8 else o2):
            J = 16 * sg + j
            if len(FU) == J: FU.append(len(mf)); LU.append(0)
            swap = (cb >= 8) if sg < 8 else (cb in (12, 13, 15))
            for q, s in enumerate(snake(2, k)):
                c0 = 0 if (q == 0 and sg in (0, 8)) else None
                mf.append(mfma(treg(k), fx(sg, rb, s), fw(J, s), c0) if swap else mfma(treg(k), fw(J, s), fx(sg, rb, s), c0))
            LU[J] = len(mf) - 1; done[(sg, cb, rb)] = len(mf) - 1
    G0.append(len(mf))
    S = Sched(mf)
    def pace(items, lo, hi, chain, slack=5):
        n = len(items)
        for q, (sal, d) in enumerate(items):
            x = lo + int(q * (hi - lo) / n)
            it = S.add("M", d, x, x + slack, chain=chain, sep=3, pre=sal)
            if q == 0: it["prelo"] = lo - 2
    def chain(txt, lo, hi=None, name=None, sep=1):
        for c in (L(txt) if isinstance(txt, str) else txt): S.add(kind(c), c, lo, hi, chain=name, sep=sep)
    BAR = {sg: G0[sg + 1] - 30 for sg in range(24)}; BAR[-1] = -1
    XW = 54
    pace(wdma(2), 2, 38, "dma")
    for sg in range(24):
        g0, nx, B = G0[sg], G0[sg + 1], BAR[sg]
        lastuse = {}
        for j in range(16):
            J = 16 * sg + j
            if J < NPRE: continue
            lo = max(LU[J - NR] if J >= NR else 0, BAR[sg - 1] + 1, FU[J] - 44)
            hi = FU[J] - 8
            if sg < 23: hi = min(hi, B - 5)
            for a, r in wread(sg, j): S.add("T", r, lo, hi, chain="t"); lastuse[a] = hi
        if sg >= 8:
            for r in hread(sg): S.add("D", r, BAR[sg - 1] + 1, g0 - 1)
            lastuse[vDH] = lastuse[vDH + 1] = g0
        if sg < 23:
            if sg % 3:
                for r, lu in lastuse.items():
                    S.add("A", f"v_add_u32 v{r}, 0x8000, v{r}" if sg % 3 == 1 else f"v_subrev_u32 v{r}, 0x8000, v{r}", lu + 1, B - 1)
            blk = [f"WAITVM w{sg+1} L", "s_barrier"]
            if sg == 7: blk += stamp(2)
            fine = (0, 1, 2, 3, 4, 5, 9, 11, 13, 15, 17, 19) if OPT.get("fine") != 2 else (4, 5, 6, 8, 9, 10, 11, 12, 19, 20, 21, 22)
            if OPT.get("fine") and sg in fine: blk += stamp(18 + fine.index(sg))
            S.add("X", blk, B, B)
            S.add("S", f"WAITVM x{sg+1}", g0 + XW, g0 + XW, chain=("xn", sg))
            for q, r in enumerate(xread(sg + 1)): S.add("D", r, g0 + XW, B - 5, chain=("xn", sg))
        if sg + 2 < 24: pace(xdma(sg + 2), g0 + 40, B - 2, "dma")
        if sg + 3 < 24: pace(wdma(sg + 3), B + 3, nx + 38, "dma")
    GS = 56; lo = 40
    for i in range(4):
        S.add("M", f"global_load_dwordx4 a[{GA+4*i}:{GA+3+4*i}], v18, s[{sX}:{sX+1}] offset:{512*i}", lo + GS*i, lo + GS*i + 10, chain="gate")
        S.add("M", f"global_load_dwordx4 a[{GA+16+4*i}:{GA+19+4*i}], v19, s[{sGATE}:{sGATE+1}] offset:{512*i}", lo + GS*i + GS//2, lo + GS*i + GS//2 + 10, chain="gate")
    S.add("M", f"buffer_store_dword v21, v20, {srd(SD)}, s{t2_} offen {ST} ;@tag=z", G0[2] + 10, chain="gate", sep=1)
    S.add("M", f"buffer_store_dword v21, v20, {srd(SD)}, s{t3_} offen {ST} ;@tag=z", G0[2] + 20, G0[2] + 40, chain="gate", sep=1)
    a0, a1, a2, a3, acc = 18, 19, 20, 21, 17
    ch = [f"v_mov_b32 v{acc}, 0"]
    for i in range(16):
        ch += L(f"""v_accvgpr_read_b32 v{a1}, a{GA+i}
            v_accvgpr_read_b32 v{a3}, a{GA+16+i}
            v_lshlrev_b32 v{a0}, 16, v{a1}
            v_and_b32 v{a1}, 0xffff0000, v{a1}
            v_lshlrev_b32 v{a2}, 16, v{a3}
            v_and_b32 v{a3}, 0xffff0000, v{a3}
            v_mul_f32 v{a0}, v{a0}, v{a2}
            v_mul_f32 v{a1}, v{a1}, v{a3}
            v_cvt_pk_bf16_f32 v{a0}, v{a0}, v{a1}
            v_lshlrev_b32 v{a1}, 16, v{a0}
            v_and_b32 v{a0}, 0xffff0000, v{a0}
            v_add_f32 v{acc}, v{acc}, v{a1}
            v_add_f32 v{acc}, v{acc}, v{a0}""")
    lo = G0[3]
    chain(ch, lo, name="gate", sep=0)
    chain([f"v_add_f32_dpp v{acc}, v{acc}, v{acc} row_ror:{r} row_mask:0xf bank_mask:0xf" for r in (8, 4, 2, 1)], lo, name="gate", sep=2)
    chain([f"v_mov_b32 v{a0}, v{acc}"], lo, name="gate", sep=0)
    chain([f"v_permlane16_swap_b32 v{a0}, v{acc}"], lo, name="gate", sep=2)
    chain(f"""v_add_f32 v{acc}, v{acc}, v{a0}
            v_cvt_pk_bf16_f32 v{acc}, v{acc}, v{acc}
            v_and_b32 v{acc}, 0xffff0000, v{acc}
            v_mul_f32 v{acc}, 0xbfb8aa3b, v{acc}
            v_exp_f32 v{acc}, v{acc}
            v_add_f32 v{acc}, 1.0, v{acc}
            v_rcp_f32 v{acc}, v{acc}
            v_cvt_pk_bf16_f32 v{a0}, v{acc}, v{acc}
            v_and_b32 v{a0}, 0xffff0000, v{a0}
            v_sub_f32 v{a1}, 1.0, v{a0}
            v_cvt_pk_bf16_f32 v{a1}, v{a1}, v{a1}
            v_and_b32 v{a1}, 0xffff0000, v{a1}
            v_and_b32 v{a2}, 31, v0
            v_lshlrev_b32 v{a2}, 27, v{a2}
            v_lshrrev_b32 v{a3}, 2, v0
            v_add_u32 v{a2}, v{a2}, v{a3}""", lo, name="gate")
    S.add("M", f"buffer_store_dwordx2 v[{a0}:{a1}], v{a2}, {srd(SD)}, s{sT2} offen {ST} ;@tag=z", lo, G0[6] + 30, chain="gate", sep=4,
          pre=[f"s_lshl2_add_u32 s{sT2}, s2, s{sW}", f"s_lshl4_add_u32 s{sT2}, s{sT2}, {WS_G}"])
    chain(f"""s_lshr_b32 s{t0_}, s{sW}, 1
          s_lshl_b32 s{t0_}, s{t0_}, 11
          s_add_u32 s{t0_}, s{t0_}, {98304 + 28672}
          s_sub_u32 s{t0_}, s{t0_}, s{sLX}
          v_add_u32 v{vDH}, s{t0_}, v{vDX}
          v_xor_b32 v{vDH+1}, 64, v{vDH}
          v_lshrrev_b32 v{vDBH}, 4, v0
          v_bfe_u32 v{vDB}, v0, 2, 2
          v_lshl_add_u32 v{vDB}, v{vDBH}, 3, v{vDB}
          v_lshlrev_b32 v{vDB}, 6, v{vDB}
          v_and_b32 v{vDBH}, 1, v{vDBH}
          v_lshl_add_u32 v{vDB}, v{vDBH}, 5, v{vDB}
          v_and_b32 v{vDBH}, 3, v0
          v_lshl_add_u32 v{vDB}, v{vDBH}, 3, v{vDB}
          v_add_u32 v{vDB}, {98304 + 16384}, v{vDB}
          v_xor_b32 v{vDB+1}, 32, v{vDB}
          s_and_b32 s{t0_}, s{sW}, 1
          s_lshl_b32 s{t1_}, s{t0_}, 5
          v_xor_b32 v{vDBH}, s{t1_}, v{vDB}""", lo, G0[7] - 2, name="gate")
    chain(f"""v_lshrrev_b32 v{vGX+1}, 3, v0
          v_lshl_add_u32 v{vGX}, v{vGX+1}, 10, v{vGX}
          v_xor_b32 v{vGX+1}, 64, v{vGX}""", BAR[5] + 6, G0[6] + 30, name="gx", sep=0)
    if not OPT.get("nopf"):
        P0, PS = OPT.get("p0", G0[2]), OPT.get("ps", 44); order_ = "qkqkqqkqkqqkqk"
        for k, c in enumerate(order_):
            r = 81 if c == "q" else 82
            S.add("M", f"buffer_load_dword a{aDUM}, v{vL16 if c == 'q' else 1}, {srd(SG if c == 'q' else SH)}, s{r} offen ;@dummy", P0 + k*PS, P0 + k*PS + 16, chain="pf",
                  pre=[] if order_[:k].count(c) == 0 else [f"s_add_u32 s{r}, s{r}, {1<<20}"])
    n0 = G0[8]; frs = []
    for t in range(4):
        for rb in (3, 2, 1, 0): frs.append(((2*t, rb), (2*t + 1, rb), (rb >> 1)*16384 + (rb & 1)*4096 + t*1024))
    for db in range(8):
        for u in snake(2, db): frs.append(((8 + db, 2*u), (8 + db, 2*u + 1), u*16384 + 8192 + db*1024))
    ns = 0; later = []
    tmpA, tmpB = treg(54), treg(56)
    for q, (ta, tb, off) in enumerate(frs):
        ka, kb = pos1[ta], pos1[tb]; A, B_ = treg(ka), treg(kb)
        lo = G0[7] + 2*max(ka, kb) + 1 + 8; hi = n0 + 2*min(ka, kb) - 1; hi2 = n0 + 2*max(ka, kb) - 3
        D_ = B_ if kb > ka else A
        ch = ("drain",)
        if A.f == "a":
            hi = hi2 = n0 + 104
            for r in range(4): S.add("A", f"v_accvgpr_read_b32 {tmpA[r]}, {A[r]}", lo, hi, chain=ch)
            for r in range(4): S.add("A", f"v_accvgpr_read_b32 {tmpB[r]}, {B_[r]}", lo, hi, chain=ch)
            A, B_ = tmpA, tmpB; D_ = B_
        direct = q % 4 == 0
        if direct: S.add("S", f"s_add_u32 s{sT2}, s{sKV}, {off}", lo - 2, hi, chain=ch)
        if D_ is B_: cv = ((3, B_, 2), (2, B_, 0), (0, A, 0), (1, A, 2))
        else: cv = ((0, A, 0), (1, A, 2), (2, B_, 0), (3, B_, 2))
        for d_, src, r in cv: S.add("A", f"v_cvt_pk_bf16_f32 {D_[d_]}, {src[r]}, {src[r+1]}", lo, hi, chain=ch)
        if direct and OPT.get("x_nodirect"): pass
        elif direct: S.add("M", f"buffer_store_dwordx4 {D_}, v{vL16}, {srd(SD)}, s{sT2} offen {ST} ;@tag=kv", lo, hi2, chain=ch, sep=1)
        else:
            for r in range(4): S.add("A", f"v_accvgpr_write_b32 {stash(ns)[r]}, {D_[r]}", lo, hi2, chain=ch)
            later.append((ns, off)); ns += 1
    assert ns == 24 and pos1[frs[27][0]] in (54, 55) and pos1[frs[28][0]] in (56, 57), (pos1[frs[27][0]],)
    NSTG = OPT.get("nstg", 8); KVP = 21
    t_a, t_b = G0[9] + 2, BAR[8 + NSTG] - 14
    for q, (i, off) in enumerate(later if not OPT.get("x_nost") else []):
        lo = t_a + (q * (t_b - t_a)) // 23
        S.add("M", f"buffer_store_dwordx4 {stash(i)}, v{vL16}, {srd(SD)}, s{sT2} offen {ST} ;@tag=kv", lo - 6, lo, chain="kvst", sep=3,
              pre=[f"s_add_u32 s{sT2}, s{sKV}, {off}"])
    pre, d = signal(SF, f"s{t2_}", 0, "z")
    chain(pre + [f"s_lshr_b32 s{t0_}, s{sJ}, 1", f"s_lshl_b32 s{t0_}, s{t0_}, 12"], G0[7], BAR[7], name="sig")
    for k in range(4):
        lo = BAR[8 + k] + 20
        S.add("X", one_lane(d), lo, lo + 14, chain="sig", sep=3, pre=[f"s_xor_b32 s{t2_}, s{t0_}, {k << 12}"])
    E0 = NSTG + 7
    S.add("X", L(f"s_cmp_eq_u32 s{sW}, 0\ns_cselect_b32 s81, 256, 0\ns_cselect_b32 s82, 8, 0"), G0[E0 - 1], G0[E0 - 1] + 40, chain="sig")
    S.add("M", f"buffer_load_dword v1, off, {srd(SF)}, s{sLH} sc1", BAR[E0 - 1] - 14, BAR[E0 - 1] - 8, chain="sig")
    S.add("X", g.spin(1, SF, f"s{sLH}", 0, "s81"), G0[E0] + XW + 12, G0[E0] + XW + 24, chain="sig")
    S.add("X", mk_srd(SF, sWS, 16384, WS_CNT)[:3], BAR[E0] - 4, BAR[E0] + 30, chain="sig")
    E1 = NSTG + 9
    pre, d = signal(SF, f"s{sPF}", 0, "kv")
    chain(pre + [f"s_lshl_b32 s{sPF}, s{sH}, 8"], G0[E1], BAR[E1], name="sig")
    S.add("X", one_lane(d), BAR[E1] + 1, BAR[E1] + 12, chain="sig", sep=1)
    chain([f"s_lshl_b32 s{t0_}, s{sW}, 14", f"s_add_u32 s{sPF}, s{sPF}, s{t0_}"], BAR[E1] + 1, name="sig")
    S.add("M", f"buffer_load_dword v1, off, {srd(SF)}, s{sPF} sc1", BAR[KVP - 1] - 14, BAR[KVP - 1] - 8, chain="sig")
    S.add("X", g.spin(1, SF, f"s{sPF}", 0, "s82"), G0[KVP] + XW + 6, BAR[KVP] - 1, chain="sig")
    if not OPT.get("nocpf"):
        for sg in range(0, 22, OPT.get("cps", 2)):
            pre, d = cpf(".-L_pc+6144"); S.add("M", d, G0[sg] + 4, G0[sg] + 30, chain="cpf", pre=pre)
        for k in range(3):
            pre, d = cpf(".-L_pc+%d" % (6144 + 3584 * k)); S.add("M", d, G0[22] + 50 + 8 * k, G0[22] + 80, chain="cpf", pre=pre, sep=3)
    S.add("X", L(f"s_lshl_b32 s{t2_}, s{sH}, 20\ns_add_u32 s{SA}, s{sWS}, s{t2_}\ns_addc_u32 s{SA+1}, s{sWS+1}, 0"), G0[21], G0[21] + 40, chain="sa")
    S.add("X", L(f"s_add_u32 s{t2_}, s{sBHi}, 1\ns_lshl_b32 s{SA+2}, s{t2_}, 16"), G0[21], G0[21] + 50, chain="sa")
    pace(att_first_dmas(sLX), BAR[KVP] + 5, BAR[KVP] + 5 + 12 * 6, "dma")
    lo = G0[22]
    chain(f"""v_and_b32 v12, 15, v0
          v_lshrrev_b32 v13, 4, v0
          v_lshlrev_b32 v13, 2, v13
          v_sub_u32 v12, v12, v13
          s_lshl_b32 s{t0_}, s{sW}, 4
          v_add_u32 v13, s{t0_}, v12""", lo, name="la")
    chain([f"v_cmp_gt_i32 {msk(k)}, {16*(k >> 2) + (k & 3)}, v13" for k in range(16)], lo, name="la", sep=0)
    if not OPT.get("nopf"):
        chain(f"""v_lshlrev_b32 v14, 7, v0
              s_lshl2_add_u32 s{t0_}, s2, s{sW}
              s_lshl_b32 s{t1_}, s{t0_}, 13
              v_add_u32 v13, s{t1_}, v14
              v_and_b32 v14, 0x7ff, v14
              s_lshl_b32 s{t1_}, s{t0_}, 11
              v_add_u32 v14, s{t1_}, v14""", lo, name="la")
    chain(p5_setup()[:-11], G0[22] + 50, name="la", sep=0)
    chain(f"""s_lshl_b32 s{t0_}, s{sW}, 11
          s_add_u32 s{t0_}, s{t0_}, 32768
          v_add_u32 v22, s{t0_}, v{vL16}
          v_add_u32 v23, 0x10000, v22
          s_lshr_b32 s{t0_}, s{sW}, 1
          s_lshl_b32 s{t0_}, s{t0_}, 16
          s_and_b32 s{t1_}, s{sW}, 1
          s_lshl3_add_u32 s{t0_}, s{t1_}, s{t0_}
          s_add_u32 s{t0_}, s{t0_}, 32768
          v_add_u32 v15, s{t0_}, v{vL16}
          v_and_b32 v1, 15, v0
          v_lshlrev_b32 v1, 3, v1
          s_lshl_b32 s{t0_}, s{sW}, 7
          s_add_u32 s{t0_}, s{t0_}, {WS_G}
          s_lshl_b32 s{t1_}, s{sJ}, 10
          s_add_u32 s{t1_}, s{t1_}, s{t0_}
          s_lshl_b32 s{t2_}, s{sBHi}, 10
          s_add_u32 s{t2_}, s{t2_}, s{t0_}""", lo, G0[23] - 4, name="la")
    for rb in range(4):
        S.add("M", f"buffer_load_dwordx2 a[{232+2*rb}:{233+2*rb}], v1, {srd(SD)}, s{t1_ + (rb>>1)} offen offset:{(rb&1)*512} sc1", BAR[22] + 1, G0[23] + 10, chain="la", sep=2)
    if not OPT.get("nopf"):
        S.add("M", f"global_load_dword a{aDUM}, v13, s[{sWOA}:{sWOA+1}] ;@dummy", G0[23], G0[23] + 16, chain="la", sep=2)
        S.add("M", f"global_load_dword a{aDUM}, v14, s[{sWOB}:{sWOB+1}] ;@dummy", G0[23], G0[23] + 20, chain="la", sep=2)
    def rdy(*tiles): return max(done[(23, cb, rb)] for cb, rb in tiles) + 8
    def pk(d, a, b, lo): S.add("A", f"v_cvt_pk_bf16_f32 {d}, {a}, {b}", lo, chain="la")
    lo = rdy((14, 4)); pk(HK[0], HK[0], HK[1], lo); pk(HK[1], HK[2], HK[3], lo)
    S.add("M", f"ds_write_b64 v15, {HK[0:2]}", lo, chain="la", sep=1)
    for rb in (3, 2, 1, 0):
        a, b = bt(1, 0, rb), bt(1, 1, rb); lo = rdy((11, rb))
        pk(a[0], a[0], a[1], lo); pk(a[1], a[2], a[3], lo); pk(a[2], b[0], b[1], lo); pk(a[3], b[2], b[3], lo)
        S.add("M", f"ds_write_b128 v{22 + (rb>>1)}, {a} offset:{(rb&1)*8192 + 2048}", lo, chain="la", sep=1)
    lo = rdy((15, 4)); pk(HV[0], HV[0], HV[1], lo); pk(HV[1], HV[2], HV[3], lo)
    S.add("M", f"ds_write_b64 v15, {HV[0:2]} offset:1024", lo, chain="la", sep=1)
    for rb in (3, 2, 1, 0):
        lo = rdy((13, rb))
        for db in range(2):
            a = bt(2, db, rb); pk(a[3], a[2], a[3], lo); pk(a[2], a[0], a[1], lo)
        for db in range(2):
            S.add("M", f"ds_write_b64 v{22 + (rb>>1)}, {bt(2, db, rb)[2:4]} offset:{(rb&1)*8192 + 3072 + db*8}", lo, chain="la", sep=1)
    for rb in (3, 2, 1, 0):
        a, b = bt(0, 0, rb), bt(0, 1, rb); lo = rdy((9, rb))
        pk(a[0], a[0], a[1], lo); pk(a[1], a[2], a[3], lo); pk(a[2], b[0], b[1], lo); pk(a[3], b[2], b[3], lo)
        if rb == 2: S.add("X", ["s_waitcnt lgkmcnt(0)", "s_barrier"], lo, chain="la", sep=1)
    rds = [f"ds_read_b128 a[{4*rb}:{4*rb+3}], v{22 + (rb>>1)} offset:{(rb&1)*8192}" for rb in range(4)]
    rds += [f"ds_read_b64 {bt(2, db, rb)[0:2]}, v{22 + (rb>>1)} offset:{(rb&1)*8192 + 1024 + db*8}" for rb in range(4) for db in range(2)]
    S.add("X", L(f"s_or_b32 s{t0_}, s{sJ}, s{sW}\ns_cmp_eq_u32 s{t0_}, 0\ns_cselect_b32 s{t0_}, 0xff800000, 0"), G0[23] + 12, G0[23] + 50)
    mk = []
    for r in range(4):
        mk += L(f"""v_subrev_u32 v13, {r}, v12
              v_lshlrev_b32 v14, 31, v13
              v_or_b32 v17, v13, v14
              v_ashrrev_i32 v17, 31, v17
              v_and_b32 {HK[r]}, 0xff800000, v17
              v_not_b32 v13, v13
              v_or_b32 v17, v13, v14
              v_ashrrev_i32 v17, 31, v17
              v_and_b32 {HV[r]}, 0xff800000, v17
              v_or_b32 v{18+r}, s{t0_}, {HV[r]}""")
    for k, c in enumerate(mk):
        if k % 2 == 0 and rds: S.add("D", rds.pop(0), lo, chain="la")
        S.add("A", c, lo, chain="la")
    g.emit(S.run("gemm12"), eager=10, name="gemm12")
    g.emit(stamp(5))
    local_attention(g)

def att_first_dmas(sLX):
    d = []
    for k in range(8):
        sal = []
        if k == 0: sal = [f"s_mov_b32 m0, s{sLX}", f"s_lshl_b32 s{sT}, s{sW}, 14"]
        if k == 4: sal = [f"s_add_u32 m0, s{sLX}, 4096", f"s_add_u32 s{sT}, s{sT}, 4096"]
        d.append((sal, f"buffer_load_dwordx4 v{vL16}, {srd(SA)}, s{sT} offen offset:{(k&3)*1024} sc1 lds ;@tag=k0"))
    for k in range(4):
        sal = []
        if k == 0: sal = [f"s_lshr_b32 s{sT}, s{sLX}, 1", f"s_add_u32 m0, s{sT}, {65536 + 16384}", f"s_and_b32 s{t3_}, s{sT}, 8192",
                          f"s_add_u32 s{sT}, s{sT}, s{t3_}", f"s_add_u32 s{sT}, s{sT}, 8192"]
        d.append((sal, f"buffer_load_dwordx4 v{vL16}, {srd(SA)}, s{sT} offen offset:{k*1024} sc1 lds ;@tag=v0"))
    return d

def local_attention(g):
    q = []
    def e(s): q.extend(L(s))
    def pk(d, a, b): return f"v_cvt_pk_bf16_f32 {d}, {a}, {b}"
    mO, mP, mP0 = HK, HV, R("v", 18)
    qp = []
    for t in range(4):
        for rb in range(4):
            a, b = aq(2*t, rb), aq(2*t+1, rb)
            for r in (a, b): qp += [f"v_pk_mul_f32 {r[0:2]}, {r[0:2]}, s[{t2_}:{t3_}]", f"v_pk_mul_f32 {r[2:4]}, {r[2:4]}, s[{t2_}:{t3_}]"]
            qp += [pk(a[0], a[0], a[1]), pk(a[1], a[2], a[3]), pk(a[2], b[0], b[1]), pk(a[3], b[2], b[3])]
    def fill(n):
        q.extend(qp[:n]); del qp[:n]
    def Sp(rb): return bt(0, 1, rb)
    def So(rb): return bt(1, 1, rb)
    e(f"s_mov_b32 s{t2_}, {f32(QSCALE)}\ns_mov_b32 s{t3_}, s{t2_}\ns_mov_b32 s{t0_}, {f32(BSCALE)}")
    for rb in range(4): e(mfma(So(rb), bt(1, 0, rb), bt(0, 0, rb), mO))
    for rb in range(4): e(mfma(Sp(rb), R("a", 4*rb), bt(0, 0, rb), mP0 if rb == 0 else mP))
    for k in range(8): e(f"v_accvgpr_read_b32 v{vG+k}, a{232+k}")
    fill(16)
    mx, mc = 12, 20
    for rb in range(4):
        a, b = Sp(rb), So(rb)
        e(f"v_max3_f32 v{mx+rb}, {b[0]}, {b[1]}, {b[2]}\nv_max3_f32 v{mx+rb}, v{mx+rb}, {b[3]}, {a[0]}")
        e(f"v_max3_f32 v{mx+rb}, v{mx+rb}, {a[1]}, {a[2]}\nv_max_f32 v{mx+rb}, v{mx+rb}, {a[3]}")
    for op in ("v_permlane16_swap_b32", "v_permlane32_swap_b32"):
        for rb in range(4): e(f"v_mov_b32 v{mc+rb}, v{mx+rb}")
        for rb in range(4): e(f"{op} v{mc+rb}, v{mx+rb}")
        for rb in range(4): e(f"v_max_f32 v{mx+rb}, v{mx+rb}, v{mc+rb}")
    for rb in range(4): e(f"v_mul_f32 v{mx+rb}, s{t0_}, v{mx+rb}")
    for rb in range(4):
        a, b = Sp(rb), So(rb)
        for r in (a, b):
            for k in range(4): e(f"v_fma_f32 {r[k]}, {r[k]}, s{t0_}, -v{mx+rb}")
        for r in (a, b):
            for k in range(4): e(f"v_exp_f32 {r[k]}, {r[k]}")
        q.extend([pk(a[0], a[0], a[1]), pk(a[1], a[2], a[3]), pk(a[2], b[0], b[1]), pk(a[3], b[2], b[3])])
        fill(2)
        e(mfma(So(rb), ONES, Sp(rb), 0))
        for db in range(2): e(mfma(bt(db, 0, rb), bt(2, db, rb), Sp(rb), 0))
    fill(24)
    e(f"""s_add_u32 s{t0_}, s{sH}, 128
          s_lshl_b32 s{t0_}, s{t0_}, 13
          s_add_u32 s{t0_}, s{t0_}, s{sLH}
          s_add_u32 s{t0_}, s{t0_}, {WS_CTX}
          s_mul_i32 s{sT}, s{sJ}, {160*8192}
          s_add_u32 s{sT}, s{sT}, s{t0_}
          s_mul_i32 s{sT2}, s{sBHi}, {160*8192}
          s_add_u32 s{sT2}, s{sT2}, s{t0_}""")
    for rb in range(4): e(f"v_rcp_f32 v{mx+rb}, {So(rb)[0]}")
    for rb in range(4): e(f"v_mul_f32 v{mx+rb}, v{mx+rb}, v{vG+2*rb+1}")
    for rb in range(4):
        a, b = bt(0, 0, rb), bt(1, 0, rb)
        for r in (a, b):
            for k in range(4): e(f"v_mul_f32 {r[k]}, {r[k]}, v{mx+rb}")
        q.extend([pk(a[0], a[0], a[1]), pk(a[1], a[2], a[3]), pk(a[2], b[0], b[1]), pk(a[3], b[2], b[3])])
        if rb & 1: e(f"s_add_u32 s{sT + (rb>>1)}, s{sT + (rb>>1)}, 4096")
        e(f"buffer_store_dwordx4 {a}, v{vL16}, {srd(SD)}, s{sT + (rb>>1)} offen {ST} ;@tag=ob")
    g.qrest = qp
    g.emit(q, name="local")

sR5, sKh, sCtx, sWo5, sL5, sCol, sSig, sWt = 82, 83, 84, 85, 86, 87, 79, 80
vG5, vC5 = 12, 14
def p5_ctx(tau, rb, s):
    f, b = (("a", 208), ("v", 152), ("a", 0), ("a", 32))[tau & 3]
    return R(f, b + 8*rb + 4*s)
def p5_lds(tau): return (131072, 32768, 65536, 98304)[tau & 3]
def p5_wdma(tau, rel):
    return [([f"s_add_u32 m0, s{sL5}, {p5_lds(tau) + i*1024}", f"s_add_u32 s{sT}, s{sWo5}, {rel*262144 + i*8192}"],
             f"buffer_load_dwordx4 v{vG5 + (i&1)}, {srd(SB if tau < 4 else SC)}, s{sT} offen lds ;@tag=w5_{tau&3}") for i in range(8)]
def p5_cld(tau, rel):
    o = []
    for s in range(2):
        for rb in range(4):
            o.append(([f"s_add_u32 s{sT2}, s{sCtx}, {rel*32768 + s*8192}"] if rb == 0 else [],
                      f"buffer_load_dwordx4 {p5_ctx(tau, rb, s)}, v{vC5 + (rb>>1)}, {srd(SD)}, s{sT2} offen offset:{(rb&1)*1024} {OPT.get('cpol', 'sc1').replace('+', ' ')}"))
    return o
def p5_setup():
    return L(f"""s_and_b32 s{t0_}, s2, 7
          s_lshr_b32 s{t1_}, s2, 3
          s_lshr_b32 s{sKh}, s{t0_}, 2
          s_and_b32 s{t2_}, s{t0_}, 1
          s_and_b32 s{t3_}, s{t1_}, 7
          s_lshl3_add_u32 s{sR5}, s{t2_}, s{t3_}
          s_and_b32 s{t2_}, s{t0_}, 2
          s_lshr_b32 s{t3_}, s{t1_}, 3
          s_lshl1_add_u32 s{sCol}, s{t2_}, s{t3_}
          s_lshl_b32 s{sCol}, s{sCol}, 8
          s_lshl_b32 s{sL5}, s{sW}, 13
          s_lshl_b32 s{sWo5}, s{sW}, 16
          s_add_u32 s{sWo5}, s{sWo5}, s{sCol}
          s_lshl_b32 s{t0_}, s{sKh}, 20
          s_add_u32 s{sWo5}, s{sWo5}, s{t0_}
          s_mul_i32 s{sCtx}, s{sR5}, {160*8192}
          s_and_b32 s{t0_}, s{sW}, 1
          s_lshl_b32 s{t0_}, s{t0_}, 14
          s_add_u32 s{sCtx}, s{sCtx}, s{t0_}
          s_lshl_b32 s{t0_}, s{sKh}, 17
          s_add_u32 s{sCtx}, s{sCtx}, s{t0_}
          s_add_u32 s{sCtx}, s{sCtx}, {WS_CTX + 128*8192}
          s_sub_u32 s{t0_}, 15, s{sR5}
          s_min_u32 s{t0_}, s{t0_}, s{sR5}
          s_lshl1_add_u32 s{t0_}, s{t0_}, s{sKh}
          s_lshl_b32 s{sWt}, s{t0_}, 8
          s_add_u32 s{sWt}, s{sWt}, {32*256}
          s_mov_b32 s{SB}, s{sWOB}
          s_mov_b32 s{SB+1}, s{sWOB+1}
          s_mov_b32 s{SB+2}, {2<<20}
          s_mov_b32 s{SC}, s{sWOA}
          s_mov_b32 s{SC+1}, s{sWOA+1}
          s_mov_b32 s{SC+2}, {8<<20}
          s_lshl_b32 s{t0_}, s{sW}, 11
          v_lshrrev_b32 v{vC5}, 4, v0
          v_bfe_u32 v{vG5}, v0, 1, 3
          v_xor_b32 v{vG5}, v{vG5}, v{vC5}
          v_lshlrev_b32 v{vG5}, 5, v{vG5}
          v_lshl_add_u32 v{vG5}, v{vC5}, 11, v{vG5}
          v_and_b32 v{vC5}, 1, v0
          v_lshl_add_u32 v{vG5}, v{vC5}, 4, v{vG5}
          v_xor_b32 v{vG5+1}, 128, v{vG5}
          v_add_u32 v{vC5}, s{t0_}, v{vL16}
          v_xor_b32 v{vC5+1}, 0x800, v{vC5}""")

def attention(g):
    p = g.p
    RA = 8
    vDK, vDV, vNI, vBad = 2, 3, 17, 1
    sSrc, sM0, sCnt, sFB, sLX, sCb = 70, 71, 72, 73, 76, 74
    def Q(qb, t): return R("v", vQ + 16*qb + 4*t)
    def S_(kb, qb): return R("v", 88 + 16*qb + 4*kb)
    def Pp(b, u, qb): return R("v", 152 + 32*(qb >> 1) + 16*b + 8*(qb & 1) + 4*u)
    def NM(qb): return R("v", 216 + 4*qb)
    def O(db, qb): return R("a", 32*qb + 4*db)
    def Lr(qb): return R("a", 128 + 4*qb)
    def F(f): return R("a", 144 + 4*(f & 15))
    mx, mc, mt, TMP = 20, 248, 252, (232, 240)
    lab = {k: p.new(k) for k in ("F1", "D", "DD", "T", "T1", "S", "SD", "TAIL")}
    def rdK(f, i): return f"ds_read_b128 {F(f)}, v{vDK} offset:{i*16384 + f*1024}"
    def rdV(f, i): return f"ds_read_b128 {F(f)}, v{vDV} offset:{i*16384 + (f & 1)*8192 + (f >> 1)*1024}"
    def dma(k, tag):
        sal = []
        if k == 0: sal = [f"s_mov_b32 m0, s{sM0}"]
        if k == 4: sal = [f"s_add_u32 m0, s{sM0}, 4096", f"s_add_u32 s{sT}, s{sSrc}, 4096"]
        return sal, f"buffer_load_dwordx4 v{vL16}, {srd(SA)}, s{sSrc if k < 4 else sT} offen offset:{(k&3)*1024} sc1 lds ;@tag={tag}"
    def act(st, i, base):
        if st == "full" or (st == "diag" and i == 0): return [base, base + 1]
        if st == "diag": return [base + 1]
        return []
    def acts(sts, i): return act(sts[0], i, 0) + act(sts[1], i, 2)
    def masked(sts, i):
        for b, st in enumerate(sts):
            if st == "diag": return 2*b + i
        return None
    def epi_head(qb):
        return [f"v_accvgpr_read_b32 v{mx+qb}, {Lr(qb)[0]}", f"v_max_f32 v{vBad}, v{vBad}, v{mx+qb}", f"v_rcp_f32 v{mx+qb}, v{mx+qb}"]
    def epi_frag(qb, t, pkm=False):
        o = []; tmp = R("v", TMP[t & 1], 8)
        for r in range(8): o.append(f"v_accvgpr_read_b32 {tmp[r]}, {O(2*t + (r >> 2), qb)[r & 3]}")
        if t == 0: o.append(f"v_mul_f32 v{mx+qb}, v{mx+qb}, v{vG+2*qb}")
        if pkm:
            sel = "op_sel_hi:[1,0]" if qb % 2 == 0 else "op_sel:[0,1]"
            for r in range(4): o.append(f"v_pk_mul_f32 {tmp[2*r:2*r+2]}, {tmp[2*r:2*r+2]}, v[{mx+(qb&2)}:{mx+(qb&2)+1}] {sel}")
        else:
            for r in range(8): o.append(f"v_mul_f32 {tmp[r]}, {tmp[r]}, v{mx+qb}")
        for r in range(4): o.append(f"v_cvt_pk_bf16_f32 {tmp[r]}, {tmp[2*r]}, {tmp[2*r+1]}")
        o.append(f"s_add_u32 s77, s{sCb + (qb>>1)}, {t*8192 + (qb&1)*4096}")
        o.append(f"buffer_store_dwordx4 {tmp[0:4]}, v{vL16}, {srd(SD)}, s77 offen {ST} ;@tag=ctx")
        return o
    def xmax():
        o = []
        for op in ("v_permlane16_swap_b32", "v_permlane32_swap_b32"):
            o += [f"v_mov_b32 v{mc+qb}, v{mx+qb}" for qb in range(4)]
            o += [f"{op} v{mc+qb}, v{mx+qb}" for qb in range(4)]
            o += [f"v_max_f32 v{mx+qb}, v{mx+qb}, v{mc+qb}" for qb in range(4)]
        return o

    def group(cur, prev, first=False, lastg=False, hook=None, name=None, extra=None):
        mf = []; rs = []
        for i in range(2):
            qk = acts(cur, i); pv = acts(cur, 0) if i == 1 else acts(prev, 1); mq = masked(cur, i)
            r = dict(g0=len(mf), qk=qk, pv=pv, mq=mq, tiles=[], fu=[None]*32, lu=[None]*32)
            k = 0
            for kb in range(4):
                qs = [qk[x] for x in snake(len(qk), kb)]
                if mq is not None and kb == 0: qs = [x for x in qs if x != mq] + [mq]
                for qb in qs:
                    st = len(mf)
                    for q_, t in enumerate(snake(4, k)):
                        c = None
                        if q_ == 0 and qb != mq: c = 0 if (first and i == 0 and kb == 0) else NM(qb)
                        f = 4*kb + t
                        if r["fu"][f] is None: r["fu"][f] = len(mf)
                        r["lu"][f] = len(mf)
                        mf.append(mfma(S_(kb, qb), F(f), Q(qb, t), c))
                    k += 1
                    r["tiles"].append((kb, qb, st, len(mf) - 1))
            r["pv0"] = len(mf); k = 0; r["od"] = {}
            for qb in pv:
                for u in range(2): mf.append(mfma(Lr(qb), ONES, Pp(i ^ 1, u, qb), 0 if (first and u == 0) else None))
                r["od"][("l", qb)] = len(mf) - 1
            for db in range(8):
                for qb in [pv[x] for x in snake(len(pv), db)]:
                    for q_, u in enumerate(snake(2, k)):
                        f = 16 + 2*db + u
                        if r["fu"][f] is None: r["fu"][f] = len(mf)
                        r["lu"][f] = len(mf)
                        mf.append(mfma(O(db, qb), F(f), Pp(i ^ 1, u, qb), 0 if (first and q_ == 0) else None))
                    k += 1; r["od"][(db, qb)] = len(mf) - 1
            r["end"] = len(mf); rs.append(r)
        N = len(mf); S = Sched(mf)
        head = []
        for i, r in enumerate(rs):
            g0, n = r["g0"], r["end"] - r["g0"]; nq, npv = len(r["qk"]), len(r["pv"])
            single = (nq, npv) == (2, 2)
            knext = not (lastg and i == 1)
            if single:
                dg = [0, 0, 1, 3, 3, 4, 6, 6, 12, 14, 16, 18, 22, 24, 24, 26, 30, 32, 32, 34, 38, 40, 42, 46, 50, 52, 54, 58, 60, 62, 66, 67]
                mg = [2, 5, 20, 28, 36, 44, None, 56, 64]; bg = 48
                eg = [7, 8, 9, 10, 11] + [13 + 2*x for x in range(27)]
                cg = [12, 14, 16] + [4*x + 6 for x in range(3, 16)]
            else:
                bg = n - max(int(n * 0.27), 12)
                if npv == 0: bg = n - 18
                dg = None
                mg = [2 + (q_ * (bg - 4)) // 6 for q_ in range(6)] + [None] + [bg + 4, bg + 4 + (n - bg - 4) // 2]
            for d in range(32):
                f = d + RA
                if d == 32 - RA:
                    wt = ("kvB" if i == 0 else "kvA") + (",v0,ob" if first else "")
                    S.add("X", [f"WAITVM {wt}", "s_barrier"], g0 + bg, g0 + bg, chain="rd")
                if f < 16:
                    txt = rdK(f, i); fu = r["fu"][f]; free = g0
                elif f < 32:
                    if npv == 0: continue
                    txt = rdV(f - 16, i); fu = r["fu"][f]; free = r["lu"][f - 16]
                else:
                    f -= 32
                    if knext: txt = rdK(f, i ^ 1)
                    else: txt = rdV(f, 0)
                    fu = r["end"] + 4 + f; free = r["lu"][16 + f] if npv else r["lu"][f]
                if dg: lo = hi = g0 + dg[d]; assert lo >= free and lo <= fu - 6, (d, lo, free, fu)
                else:
                    if d < 32 - RA: hi = min(fu - 8, g0 + bg - 1); lo = min(max(free, g0 + (d * bg) // 24 - 6), hi)
                    else: hi = min(r["end"] - 1, fu - 10 + (f >> 2) * 4); lo = min(max(free, g0 + bg + 1), hi)
                    hi = max(hi, free); lo = max(lo, free)
                it = S.add("D", txt, lo, hi, chain="rd"); it["dd"] = first or lastg
                if not dg: it["early"] = free if d < 32 - RA else lo
            tA, tB = ("kvA", "kvB") if i == 0 else ("kvB", "kvA")
            for q_, gq in enumerate(mg):
                if gq is None: continue
                k = q_ + 2 if q_ < 6 else q_ - 7
                if lastg and (i == 1 or q_ > 6): continue
                sal, dd = dma(k, tA if q_ < 6 else tB)
                if k == 0: sal = [f"s_xor_b32 s{sM0}, s{sM0}, {16384 if i == 0 else 16384 + 32768}", f"s_add_u32 s{sSrc}, s{sSrc}, 32768"] + sal
                if single:
                    sg_ = {0: (45, 49, 53), 4: (9, 13)}.get(k, ())
                    for x, s_ in zip(sg_, sal): S.add("S", s_, g0 + x, g0 + x, chain="m")
                    S.add("M", dd, g0 + gq, g0 + gq, chain="m")
                else:
                    S.add("M", dd, g0 + gq, min(g0 + gq + 3, (g0 + bg - 1) if q_ < 6 else r["end"] - 1), chain="m", pre=sal, sep=3)
                    if extra and extra[0] == i and k in (3, 7):
                        for sal2, d2 in extra[1][(k >> 2)*4:(k >> 2)*4 + 4]: S.add("M", d2, g0 + gq, chain="m", pre=sal2, sep=3)
            if i == 1:
                lastK = g0 + (dg[15 - RA] if dg else r["fu"][15] - g0 - 8)
                S.add("A", f"v_xor_b32 v{vDK}, 0x8000, v{vDK}", max(lastK + 1, g0), g0 + bg - 1)
                if knext: S.add("A", f"v_xor_b32 v{vDV}, 0x8000, v{vDV}", g0 + bg + 1, N - 1)
                else: S.chains["rd"][[x["kind"] for x in S.chains["rd"]].index("X", len(S.chains["rd"]) - RA - 1)]["text"].append(f"v_xor_b32 v{vDV}, 0x8000, v{vDV}")
            nt = len(r["tiles"]); e = 0
            nxt = {(kb, qb): st for kb, qb, st, _ in rs[1]["tiles"]} if i == 0 else {}
            span0 = g0 + 8; span1 = r["end"] - 2
            if first and i == 0: span0 = g0 + 4*nq; span1 = r["end"] + 40
            if first and i == 1: span0 = g0 + 40
            for x, (kb, qb, st, en) in enumerate(r["tiles"]):
                s = S_(kb, qb); ch = ("sm", kb, qb); pdst = Pp(i, kb >> 1, qb)
                lim = nxt[(kb, qb)] - (7 if rs[1]["mq"] == qb else 1) if (kb, qb) in nxt else N - 1
                if not first: lim = min(lim, r["end"] - 1)
                if i == 0 and qb in rs[1]["pv"]: lim = min(lim, rs[1]["pv0"] - 3)
                if qb == r["mq"]:
                    src = "0" if (first and i == 0 and kb == 0) else str(NM(qb)[0])
                    for r_ in range(4):
                        c = f"v_cndmask_b32 {s[r_]}, {src}, v{vNI}, {msk(4*kb + r_)}"
                        if st - 3 < 0: head.append(c)
                        else: S.add("A", c, (g0 + 4*nq) if (first and i == 0 and kb > 0) else (0 if i == 0 else max(g0 - 20, 0)), st - 3, chain=ch)
                lo = en + 7
                if first and i == 0 and kb == 0:
                    lo = g0 + 4*nq
                    for r_ in range(4): S.add("A", f"v_add_f32 {s[r_]}, {s[r_]}, {NM(qb)[0]}", lo, lim - 4, chain=ch)
                for r_ in range(4):
                    pace_ = span0 + ((e + 1) * (span1 - span0)) // (4 * nt)
                    elo, ehi, clo, chi = min(lo, lim - 1), min(max(pace_, lo), lim - 1), min(lo, lim), min(lim, max(pace_, lo) + 8)
                    if single: elo = ehi = g0 + eg[e]; clo = chi = g0 + cg[e >> 1]
                    e += 1
                    S.add("E", f"v_exp_f32 {s[r_]}, {s[r_]}", elo, ehi, chain=ch)
                    if r_ & 1:
                        it = S.add("A", f"v_cvt_pk_bf16_f32 {pdst[2*(kb & 1) + (r_ >> 1)]}, {s[r_-1]}, {s[r_]}", clo, chi, chain=("cv", i, kb, qb, r_), sep=1)
                        it["after"] = S.chains[ch][-1]; it["soft"] = True
                        if r_ == 3: r.setdefault("lastcv", {})[(kb, qb)] = [it, S.chains[("cv", i, kb, qb, 1)][0]]
            if first and i == 0:
                blk = ["s_nop 1"]
                for qb in [x[1] for x in r["tiles"][:4]]:
                    a = S_(0, qb); blk += [f"v_max3_f32 v{mx+qb}, {a[0]}, {a[1]}, {a[2]}", f"v_max_f32 v{mx+qb}, v{mx+qb}, {a[3]}"]
                blk += xmax() + [f"s_cmp_eq_u32 s{sFB}, 0", "s_cselect_b64 vcc, 0, -1"]
                blk += [f"v_cndmask_b32 v{mx+qb}, v{mx+qb}, v{mt+qb}, vcc" for qb in range(4)]
                for qb in (3, 2, 1, 0): blk += [f"v_sub_f32 {NM(qb)[r_]}, 0, v{mx+qb}" for r_ in range(4)]
                S.add("X", blk, g0 + 4*nq - 1, g0 + 4*nq - 1)
        if rs[1]["mq"] is not None:
            for kb in range(4):
                key = (kb, rs[1]["mq"]); its = S.chains[("sm",) + key]
                k0 = [x for x in its if "cndmask" in x["text"][0]][-4]
                k0["after"] = rs[0]["lastcv"][key]
        if hook: hook(S, rs)
        return head + (["s_nop 0"] if head else []) + S.run(name)

    FULL2, LD, TR, TD, NONE = ("full", "full"), ("diag", "full"), ("off", "full"), ("off", "diag"), ("off", "off")
    def add_cpf(S, lo, hi, exprs):
        if OPT.get("nocpf"): return
        for e_ in exprs:
            pre, d = cpf(e_); S.add("M", d, lo, hi, chain="cpf", pre=pre, sep=3 if lo >= 0 else 0)
    def hook_first(S, rs):
        lo = rs[1]["g0"] + 40; N = rs[1]["end"]
        pre, d = signal(SF, f"s{t1_}", 0, "ob")
        for c in [pre[0], pre[1].replace("v1,", "v19,")] + L(f"""s_lshr_b32 s{t1_}, s{sH}, 4
              s_lshl1_add_u32 s{t1_}, s{sJ}, s{t1_}
              s_lshl_b32 s{sSig}, s{t1_}, 8
              s_add_u32 s{sSig}, s{sSig}, {32*256}
              s_lshl_b32 s{t1_}, s{sFB}, 16
              s_add_u32 s{t1_}, s{t1_}, s{sSig}"""): S.add(kind(c), c, lo, chain="sig", sep=1)
        S.add("X", one_lane(d.replace("v1,", "v19,")), lo, N - 1, chain="sig", sep=1)
        add_cpf(S, lo, N - 1, [f"{lab['D']}-L_pc+{4096*k}" for k in range(4)])
    def add_epi(S, r, qb, ts, hi, head=False):
        def put(cs_, lo):
            for c in cs_: S.add("M" if c.startswith("buffer") else kind(c), c, min(lo, hi), hi, chain="epi")
        if head: put(epi_head(qb), r["od"][("l", qb)] + 8)
        for t in ts: put(epi_frag(qb, t), r["od"][(2*t + 1, qb)] + 8 if r else 8)
    def hook_dd(S, rs):
        add_cpf(S, 2, rs[1]["end"] - 1, [f"{lab['T']}-L_pc", f"{lab['T']}-L_pc+4096", f"{lab['T1']}-L_pc", f"{lab['T1']}-L_pc+4096"])
    def hook_e0(S, rs): add_epi(S, rs[1], 0, (0, 1, 2), rs[1]["end"], True)
    def hook_t(S, rs):
        add_epi(S, None, 0, (3,), rs[0]["pv0"] + 10); add_epi(S, rs[0], 1, (0, 1, 2, 3), rs[1]["g0"] + 10, True)
    def hook_last(S, rs):
        g1 = rs[1]["g0"]; N = rs[1]["end"]
        S.add("M", f"buffer_load_dword v19, off, {srd(SF)}, s{sWt} sc1", -1, -1, chain="p5")
        S.add("X", g.spin(19, SF, f"s{sWt}", 0, 16), g1 - 16, g1 - 16, chain="p5")
        for k, (sal, d) in enumerate(p5_cld(0, 0) + p5_cld(1, 1)): S.add("M", d, g1 - 14 if k < 8 else g1, N - 1, chain="p5", pre=sal, sep=2)
        add_cpf(S, -1, -1, [f"{lab['TAIL']}-L_pc+{4096*k}" for k in range(2)])
        add_epi(S, rs[1], 2, (0,), N, True)
    def both(*hs):
        def h(S, rs):
            for x in hs: x(S, rs)
        return h
    def first_group(cur, name, hook, extra=None):
        seq = [rdK(f, 0) for f in range(RA)]
        for k in range(2):
            sal, d = dma(k, "kvA"); seq += sal + (["s_nop 0"] if k == 0 else []) + [d]
        return seq + group(cur, NONE, first=True, hook=hook, name=name, extra=extra)

    START = p.new("attstart")
    q = g.qrest + [c for c in p5_setup()[-11:]] + L(f"""s_mov_b32 s{sFB}, 0
          v_mov_b32 v{vNI}, 0xff800000
          s_lshl_b32 s{t0_}, s{sH}, 15
          s_add_u32 s{t0_}, s{t0_}, s{sLH}
          s_add_u32 s{t0_}, s{t0_}, {WS_CTX}
          s_mul_i32 s{sCb}, s{sJ}, {160*8192}
          s_add_u32 s{sCb}, s{sCb}, s{t0_}
          s_mul_i32 s{sCb+1}, s{sBHi}, {160*8192}
          s_add_u32 s{sCb+1}, s{sCb+1}, s{t0_}""")
    q += [START + ":"] + L(f"""v_mov_b32 v{vDK}, v{vL16}
          v_add_u32 v{vDV}, 0x10000, v{vL16}
          v_mov_b32 v{vBad}, 0
          s_and_b32 s{t0_}, s{sW}, 1
          s_lshr_b32 s{t1_}, s{sW}, 1
          s_lshl_b32 s{sM0}, s{t0_}, 13
          s_lshl_b32 s{t2_}, s{t1_}, 16
          s_add_u32 s{sM0}, s{sM0}, s{t2_}
          s_add_u32 s{sM0}, s{sM0}, 32768
          s_lshl_b32 s{sSrc}, s{t0_}, 14
          s_mul_i32 s{t1_}, s{t1_}, 24576
          s_sub_u32 s{sSrc}, s{sSrc}, s{t1_}
          s_add_u32 s{sSrc}, s{sSrc}, 65536
          WAITVM k0 L
          s_barrier""") + stamp(6)
    g.emit(q)
    st0 = (list(g.lg), list(g.vm))
    def setst(s): g.lg, g.vm = list(s[0]), list(s[1])
    def getst(): return (list(g.lg), list(g.vm))
    cs = ([([("a", 144 + 4*f + r) for r in range(4)], 0) for f in range(RA)], [("kvB", [])] * 8 + [("kvA", [])] * 2)
    def chk():
        a = [r for r, _ in g.lg]; b = [r for r, _ in cs[0]]
        assert a == b[len(b) - len(a):], a
    EG = 6
    p(f"s_cmp_eq_u32 s{sJ}, 0\ns_cbranch_scc1 {lab['F1']}")
    g.emit(first_group(FULL2, "F0", hook_first), EG); chk()
    g.emit(stamp(12))
    p(f"s_sub_u32 s{sCnt}, s{sJ}, 1\ns_cmp_eq_u32 s{sCnt}, 0\ns_cbranch_scc1 {lab['DD']}")
    def hook_cnt(S, rs):
        N = rs[1]["end"]
        S.add("S", f"s_sub_u32 s{sCnt}, s{sCnt}, 1", N - 11, N - 11); S.add("S", f"s_cmp_lg_u32 s{sCnt}, 0", N - 7, N - 7)
    p(".p2align 3"); p.label(lab["D"]); setst(cs)
    g.emit(group(FULL2, FULL2, hook=hook_cnt, name="D"), EG); chk()
    p(f"s_cbranch_scc1 {lab['D']}")
    p.label(lab["DD"]); setst(cs)
    g.emit(stamp(13) + group(LD, FULL2, hook=both(hook_dd, hook_e0), name="DD", extra=(0, p5_wdma(0, 0))), EG); chk()
    p(f"s_cmp_eq_u32 s{sJ}, 7\ns_cbranch_scc1 {lab['T1']}")
    p.label(lab["T"]); setst(cs)
    g.emit(stamp(14) + group(TR, LD, hook=hook_t, name="T") + stamp(15), EG); chk()
    p(f"s_lshl_b32 s{sCnt}, s{sJ}, 1\ns_sub_u32 s{sCnt}, 13, s{sCnt}")
    p(".p2align 3"); p.label(lab["S"]); setst(cs)
    g.emit(group(TR, TR, hook=hook_cnt, name="S"), EG); chk()
    p(f"s_cbranch_scc1 {lab['S']}")
    setst(cs)
    g.emit(stamp(16) + group(TD, TR, lastg=True, hook=hook_last, name="SD"), EG, name="SD"); chk()
    ts = (cs[0], list(g.vm)); setst(ts)
    p.label(lab["TAIL"])
    mf = [mfma(Lr(3), ONES, Pp(1, u, 3)) for u in range(2)]
    for db in range(8): mf += [mfma(O(db, 3), F(2*db + u), Pp(1, u, 3)) for u in snake(2, db)]
    S = Sched(mf)
    for f in range(8, 16): S.add("D", rdV(f, 0), -1 if f < 12 else 0, -1 if f < 12 else 1, chain="rd")["dd"] = True
    for k, (sal, d) in enumerate(p5_wdma(1, 1)): S.add("M", d, 3 + 2*k, 3 + 2*k, chain="p5", pre=sal)
    e1 = epi_frag(2, 1)
    for c in e1[:-2]: S.add("A", c, 2, chain="epi")
    seq = stamp(17) + S.run("tail") + e1[-2:] + stamp(7)
    seq += epi_head(3) + L(f"""s_mov_b32 s{t0_}, {f32(LTHR if not OPT.get('forcefb') else 0.0)}
          v_cmp_le_f32 vcc, s{t0_}, v{vBad}
          s_lshl_b32 s{t1_}, s{sW}, 2
          s_cmp_lg_u64 vcc, 0
          s_cselect_b32 s{t0_}, 1, 0
          v_mov_b32 v248, s{t1_}
          v_mov_b32 v249, s{t0_}
          ds_write_b32 v248, v249""") + epi_frag(2, 2, True) + epi_frag(2, 3, True)
    for t in range(4): seq += epi_frag(3, t, True)
    FB = p.new("fallback")
    seq += L(f"""v_mov_b32 v248, 0
          s_waitcnt lgkmcnt(0)
          s_barrier
          ds_read_b128 v[248:251], v248""") + stamp(8)
    g.emit(seq)
    g.fbcheck = L(f"""v_or3_b32 v248, v248, v249, v250
          v_or_b32 v248, v248, v251
          s_nop 0
          v_readfirstlane_b32 s{t0_}, v248 ;@val=0
          s_nop 0
          s_cmp_gt_u32 s{t0_}, s{sFB}
          s_cbranch_scc1 {FB} ;@br=fb""")
    es = getst()
    main = g.p; g.p = P(); g.p.uid = main.uid + 1000
    g.p.label(lab["F1"]); setst(st0)
    g.emit(first_group(LD, "F1", both(hook_first, hook_e0), (1, p5_wdma(0, 0))) + stamp(12) + stamp(13), EG); chk()
    g.p(f"s_branch {lab['T']}")
    g.p.label(lab["T1"]); setst(cs)
    g.emit(stamp(14) + stamp(15) + stamp(16) + group(TD, LD, lastg=True, hook=both(hook_t, hook_last), name="T1"), EG); chk()
    def sig_(vm): return [(t, tuple(r)) for t, r in vm if (t and t.startswith("w5")) or r]
    assert sig_(g.vm) == sig_(ts[1])[len(sig_(ts[1])) - len(sig_(g.vm)):], (sig_(g.vm), sig_(ts[1]))
    g.p(f"s_branch {lab['TAIL']}")
    g.p.label(FB); setst(([], []))
    sU = 81
    q = L(f"""s_waitcnt vmcnt(0) lgkmcnt(0)
          s_barrier
          s_mov_b32 s{sFB}, 1
          s_mov_b32 s{sU}, 0
          v_and_b32 v232, 15, v0
          v_lshrrev_b32 v233, 4, v0
          v_lshlrev_b32 v233, 2, v233
          v_sub_u32 v232, v232, v233
          s_lshl_b32 s{t0_}, s{sW}, 4
          v_add_u32 v232, s{t0_}, v232
          s_lshl_b32 s{t0_}, s{sBHi}, 7
          v_add_u32 v234, s{t0_}, v232
          s_lshl_b32 s{t0_}, s{sJ}, 7
          v_add_u32 v232, s{t0_}, v232
          v_add_u32 v233, 64, v232
          v_add_u32 v235, 64, v234""")
    for sal, d in att_first_dmas(sLX): q += sal + ["s_nop 0", d]
    for qb in range(4): q.append(f"v_mov_b32 v{mx+qb}, 0xff800000")
    FL = g.p.new("fbl"); q.append(FL + ":")
    for f in range(8):
        if f == 4: q.append(f"s_add_u32 s{sT}, s{sU}, 4096")
        q.append(f"buffer_load_dwordx4 {F(f)}, v{vL16}, {srd(SA)}, s{sU if f < 4 else sT} offen offset:{(f&3)*1024} sc1")
    for qb in range(4):
        for kb in range(2):
            for r in range(4):
                c = S_(kb, qb)[r]
                q += [f"v_subrev_u32 {c}, {16*kb + r}, v{232+qb}", f"v_ashrrev_i32 {c}, 31, {c}", f"v_and_b32 {c}, 0xff800000, {c}"]
        q.append(f"v_subrev_u32 v{232+qb}, 32, v{232+qb}")
    q.append("s_waitcnt vmcnt(0)")
    for f in range(8):
        for qb in range(4): q.append(mfma(S_(f >> 2, qb), F(f), Q(qb, f & 3)))
    q.append("s_nop 7")
    for qb in range(4):
        for kb in range(2):
            a = S_(kb, qb)
            q += [f"v_max3_f32 v{mx+qb}, v{mx+qb}, {a[0]}, {a[1]}", f"v_max3_f32 v{mx+qb}, v{mx+qb}, {a[2]}, {a[3]}"]
    q += L(f"s_add_u32 s{sU}, s{sU}, 16384\ns_cmp_lt_u32 s{sU}, s{SA+2}\ns_cbranch_scc1 {FL}")
    q += xmax()
    q += [f"v_mov_b32 v{mt+qb}, v{mx+qb}" for qb in range(4)]
    q.append(f"s_branch {START}")
    g.emit(q)
    g.ool += g.p.l; main.uid = g.p.uid + 1000; g.p = main
    setst(es)

def phase5(g):
    p = g.p
    vD = 184
    sCnt = 70
    CO = [4, 5, 6, 7, 0, 1, 2, 3]
    def acc(rb, cb): return R("v", 24 + 32*rb + 4*cb)
    def fw(j, s): return R("a", 64 + 8*j + 4*s)
    def wread(tau, j):
        base = p5_lds(tau); win = 0 if base >= 98304 else 1
        off = base - (98304 if win == 0 else 32768)
        return [f"ds_read_b64_tr_b16 {fw(j, s)[2*i:2*i+2]}, v{vD + 8*win + CO[j]} offset:{off + s*8192 + i*4096}" for s in range(2) for i in range(2)]
    q = L(f"""v_lshrrev_b32 v200, 4, v0
          v_bfe_u32 v201, v0, 2, 2
          v_lshl_add_u32 v202, v200, 2, v201
          v_and_b32 v203, 3, v0
          v_lshlrev_b32 v203, 3, v203
          v_lshl_add_u32 v203, v202, 8, v203
          s_and_b32 s{t0_}, s{sW}, 1
          s_lshl_b32 s{t0_}, s{t0_}, 14
          s_add_u32 s{t0_}, s{t0_}, 98304
          v_add_u32 v203, s{t0_}, v203
          v_and_b32 v202, 7, v202
          s_lshl_b32 s{t0_}, s{sKh}, 2
          v_xor_b32 v202, s{t0_}, v202""")
    for n in CO: q += [f"v_xor_b32 v200, {n}, v202", f"v_lshl_add_u32 v{vD+n}, v200, 5, v203"]
    q += g.fbcheck
    NPRE = 3
    for j in range(NPRE): q += wread(0, j)
    for n in range(8): q += [f"v_xor_b32 v{vD+8+n}, 0x10000, v{vD+n}"]
    q += [f"s_add_u32 s71, s{sSig}, 4096", f"s_add_u32 s72, s{sWt}, 4096"]
    g.emit(q)
    BP = 40
    xs = L(f"""s_xor_b32 s{t0_}, s2, 4
          s_lshl2_add_u32 s{t0_}, s{t0_}, s{sW}
          s_lshl_b32 s73, s{t0_}, 13
          s_add_u32 s73, s73, {WS_XCH}
          s_add_u32 s74, s73, 4096
          s_lshl_b32 s71, s{t0_}, 6
          s_lshl2_add_u32 s{t0_}, s2, s{sW}
          s_lshl_b32 s72, s{t0_}, 6
          s_lshl_b32 s75, s{t0_}, 13
          s_add_u32 s75, s75, {WS_XCH}
          s_add_u32 s76, s75, 4096
          s_lshl_b32 s77, s{sR5}, 18
          s_lshl_b32 s{t0_}, s{sW}, 16
          s_add_u32 s77, s77, s{t0_}
          s_add_u32 s77, s77, s{sCol}
          s_lshl_b32 s{t0_}, s{sKh}, 7
          s_add_u32 s77, s77, s{t0_}
          s_add_u32 s78, s77, 32768
          v_lshlrev_b32 v1, 24, v0
          v_and_b32 v8, 15, v0
          v_lshlrev_b32 v8, 11, v8
          v_bfe_u32 v10, v0, 4, 1
          v_lshl_add_u32 v8, v10, 5, v8
          v_lshrrev_b32 v10, 5, v0
          v_lshl_add_u32 v8, v10, 4, v8
          v_add_u32 v2, s{sL5}, v{vL16}
          v_xor_b32 v3, 0x2000, v2""")
    def tmp(rb, c): return R("v", 200 + 16*rb + 4*c)
    def body(t0, kd):
        mf = []; dn = {}
        for st in range(4):
            k = 0
            for j in range(8):
                for rb in snake(4, j + 1):
                    for q_, s in enumerate(snake(2, k)):
                        c0 = 0 if (kd == "first" and st == 0 and q_ == 0) else None
                        mf.append(mfma(acc(rb, CO[j]), fw(j, s), p5_ctx(st, rb, s), c0))
                    k += 1; dn[(rb, CO[j])] = len(mf) - 1
        S = Sched(mf)
        def pace(items, lo, hi):
            for k, (sal, d) in enumerate(items):
                x = lo + (k * (hi - lo)) // len(items)
                S.add("M", d, x, min(x + 2, 255), chain="ld", pre=sal, sep=2)
        def rel(x): return x if (kd != "first" or x < 4) else x - 4
        for st in range(4):
            tau = t0 + st; g0 = 64 * st; B = g0 + BP
            for j in range(NPRE, 8):
                for r in wread(tau, j): S.add("T", r, max(g0 + 8*j - 30, g0), min(g0 + 8*j - 8, B - 1), chain="t")
            if tau < 19:
                S.add("X", [f"WAITVM w5_{(tau+1)&3}" + (",ctx" if (kd == "first" and st == 1) else ""), "s_barrier"], B, B, chain="t")
                for j in range(NPRE):
                    for r in wread(tau + 1, j): S.add("T", r, B + 1, min(g0 + 64 + 8*j - 8, g0 + 63), chain="t")
            w_prev = p5_wdma(tau + 2, rel(st + 2)) if tau + 2 < 20 else []
            w_next = p5_wdma(tau + 3, rel(st + 3)) if tau + 3 < 20 else []
            cl = p5_cld(tau + 2, rel(st + 2)) if tau + 2 < 20 else []
            if kd == "first":
                if st == 0: pace(w_prev + cl, g0 + 2, B - 1)
                elif st == 2:
                    pace(w_prev[5:], g0 + 2, g0 + 12)
                    S.add("M", f"buffer_load_dword v19, off, {srd(SF)}, s72 sc1", g0 + 24, g0 + 28, chain="ld")
                elif st == 3:
                    S.add("X", g.spin(19, SF, "s72", 0, 16) + L(f"s_mul_i32 s{t0_}, s{sKh}, {(64-16)*8192}\ns_add_u32 s{sCtx}, s{sCtx}, s{t0_}\ns_sub_u32 s{sCtx}, s{sCtx}, {128*8192}") + stamp(9), g0, g0, chain="ld")
                    pace(p5_cld(4, 0) + w_prev[5:] + cl, g0 + 2, B - 1)
                else: pace(w_prev[5:] + cl, g0 + 2, B - 1)
                if st == 1: S.add("X", L(f"s_mul_i32 s{t0_}, s{sKh}, {3<<20}\ns_add_u32 s{sWo5}, s{sWo5}, s{t0_}"), B + 1, B + 1, chain="ld")
            elif w_prev: pace(w_prev[5:] + cl, g0 + 2, B - 1)
            if w_next: pace(w_next[:5], B + 4, g0 + 64)
            if kd == "first" and st == 1:
                pre, d = signal(SF, "s71", 0, "ctx")
                S.add("S", pre[0], B - 12, B - 4, chain="sig"); S.add("A", pre[1], B - 12, B - 1, chain="sig", sep=1)
                S.add("X", one_lane(d), B + 2, B + 2, chain="sig")
        if kd == "loop":
            for k, c in enumerate([f"s_sub_u32 s{sCnt}, s{sCnt}, 1", f"s_add_u32 s{sCtx}, s{sCtx}, {0 if 'c' in OPT.get('x_same', '') else 4*32768}", f"s_add_u32 s{sWo5}, s{sWo5}, {0 if 'w' in OPT.get('x_same', '') else 4*262144}", f"s_cmp_lg_u32 s{sCnt}, 0"]):
                S.add("S", c, 250, 256, chain="ld")
        if kd == "first" and not OPT.get("nocpf"):
            for k in range(3):
                pre, d = cpf(".-L_pc+%d" % (2048 + 4096*k)); S.add("M", d, 128 + 14 + 3*k, 128 + 38, chain="cpf", pre=pre, sep=3)
        if kd == "last":
            for c in xs: S.add(kind(c), c, 130, 200, chain="x")
            S.add("X", mk_srd(SF, sWS, 65536, WS_INBOX)[:3], 130, 205, chain="x")
            for c in mk_srd(SE, sOUT, 4 << 20): S.add("S", c, 130, 210, chain="x")
            for c in range(4):
                for rb in range(2):
                    S.add("M", f"ds_write_b128 v3, {acc(2 + rb, 4 + c)} offset:{rb*4096 + c*1024}", dn[(2 + rb, 4 + c)] + 8, chain="x")
            S.add("X", ["s_waitcnt lgkmcnt(0)", "s_barrier"], 0, chain="x", sep=3)
            for rb in range(2):
                for c in range(4): S.add("D", f"ds_read_b128 {tmp(rb, c)}, v2 offset:{rb*4096 + c*1024}", 0, chain="x")
            for rb in range(2):
                for c in range(4):
                    for r in range(4): S.add("A", f"v_add_f32 {tmp(rb, c)[r]}, {tmp(rb, c)[r]}, {acc(rb, 4 + c)[r]}", 0, chain="x")
                    S.add("M", f"buffer_store_dwordx4 {tmp(rb, c)}, v{vL16}, {srd(SD)}, s{73+rb} offen offset:{c*1024} {ST} ;@tag=xch", 0, chain="x")
        return S.run("p5" + kd)
    g.emit(body(0, "first"), 8, name="p5first")
    p(stamp(4)); p(f"s_mov_b32 s{sCnt}, 3")
    Lp = p.new("p5"); p(".p2align 3"); p.label(Lp)
    bl = body(4, "loop")
    ent = ([(r, 0) for r, a in g.lg], list(g.vm))
    _, lg2, vm2 = resolve(bl, ent[0], ent[1], 8)
    g.lg, g.vm = [(r, 0) for r, a in lg2], vm2
    assert [r for r, _ in ent[0]] == [r for r, _ in lg2][len(lg2) - len(ent[0]):], (ent[0], lg2)
    g.vm = ent[1]
    g.emit(bl, 8)
    p(f"s_cbranch_scc1 {Lp}")
    g.lg = [(r, 0) for r, a in g.lg]
    g.emit(stamp(3) + body(16, "last") + stamp(10), 8, name="p5last")
    q = ["s_nop 4"]
    for c in range(4):
        for rb in range(2): q.append(f"ds_write_b128 v3, {acc(2 + rb, c)} offset:{32768 + rb*4096 + c*1024}")
    q += L(f"""s_waitcnt lgkmcnt(0)
          s_barrier""")
    for rb in range(2):
        for c in range(4): q.append(f"ds_read_b128 {acc(2 + rb, c)}, v2 offset:{32768 + rb*4096 + c*1024}")
    q += L(f"""s_waitcnt vmcnt(0)
          buffer_store_dword a{aONE}, v1, {srd(SF)}, s71 offen {ST} ;@sig=wave:xch
          buffer_load_dword v19, off, {srd(SF)}, s72 sc1""")
    for rb in range(2):
        for c in range(4):
            for r in range(4): q.append(f"v_add_f32 {acc(rb, c)[r]}, {acc(rb, c)[r]}, {acc(2 + rb, c)[r]}")
    q += g.spin(19, SF, "s72", 0, 1)
    for rb in range(2):
        for c in range(4): q.append(f"buffer_load_dwordx4 {acc(rb, 4+c)}, v{vL16}, {srd(SD)}, s{75+rb} offen offset:{c*1024} sc1")
    for rb in range(2):
        for c2 in range(2):
            a, b = acc(rb, 2*c2), acc(rb, 2*c2+1)
            for c in (2*c2, 2*c2+1):
                for r in range(4): q.append(f"v_add_f32 {acc(rb, c)[r]}, {acc(rb, c)[r]}, {acc(rb, 4+c)[r]}")
            q += L(f"""v_cvt_pk_bf16_f32 {a[0]}, {a[0]}, {a[1]}
                  v_cvt_pk_bf16_f32 {a[1]}, {a[2]}, {a[3]}
                  v_cvt_pk_bf16_f32 {a[2]}, {b[0]}, {b[1]}
                  v_cvt_pk_bf16_f32 {a[3]}, {b[2]}, {b[3]}
                  s_nop 1
                  v_permlane16_swap_b32 {a[0]}, {a[2]}
                  v_permlane16_swap_b32 {a[1]}, {a[3]}
                  buffer_store_dwordx4 {a}, v8, {srd(SE)}, s{77+rb} offen offset:{c2*64} {OPT.get("ost", "")}""")
    if OPT.get("dbgt"):
        q += L(f"""s_waitcnt vmcnt(0)
            s_memtime s[70:71]
            s_memrealtime s[72:73]
            s_waitcnt lgkmcnt(0)
            s_sub_u32 s70, s70, s96
            s_sub_u32 s72, s72, s98
            v_mov_b32 v2, s70
            v_mov_b32 v3, s72
            s_lshl_b32 s70, s2, 3
            s_add_u32 s70, s70, 8
            s_lshl_b32 s71, s{sW}, 12
            s_add_u32 s70, s70, s71""") + mk_srd(SF, 94, 64) + [f"buffer_store_dwordx2 v[2:3], v1, {srd(SF)}, s70 offen"]
    q += stamp(11) + stamp_flush()
    g.emit(q, name="final")

def build():
    g = G(); p = g.p
    hdr = open("/code/" + NAME + ".s.ref").read()
    p.l += [l for l in hdr.split("\n") if l.startswith(";") and "@launch" not in l]
    p.l.append(f"; @launch grid=(256,1,1) block=(256,1,1) lds={LDS_BYTES}")
    k = NAME + "_kernel"
    p(f'.amdgcn_target "amdgcn-amd-amdhsa--gfx950"\n.text\n.globl {k}\n.p2align 8\n.type {k},@function'); p.label(k)
    gemm12(g); attention(g); phase5(g)
    p.label("L_end"); p("s_endpgm")
    p(g.ool)
    p.label("L_codeend")
    p('.section .rodata,"a"\n.p2align 6')
    p.l += f""".amdhsa_kernel {k}
  .amdhsa_next_free_vgpr 512
  .amdhsa_next_free_sgpr 102
  .amdhsa_accum_offset 256
  .amdhsa_group_segment_fixed_size 0
  .amdhsa_kernarg_size 104
  .amdhsa_user_sgpr_count 2
  .amdhsa_user_sgpr_kernarg_segment_ptr 1
  .amdhsa_system_sgpr_workgroup_id_x 1
.end_amdhsa_kernel""".split("\n")
    return p.text()

if __name__ == "__main__":
    out = sys.argv[1]
    for a in sys.argv[2:]:
        k, _, v = a.partition("=")
        OPT[k] = True if v == "" else (int(v) if v.lstrip("-").isdigit() else v)
    txt = build()
    import subprocess, re, os
    open("_sz.s", "w").write(txt.replace("NCHUNK", "100"))
    subprocess.check_call(["clang", "-x", "assembler", "-target", "amdgcn-amd-amdhsa", "-mcpu=gfx950", "-c", "_sz.s", "-o", "_sz.o"])
    sz = int(re.search(r"\.text\s+PROGBITS\s+\S+\s+\S+\s+(\S+)", subprocess.check_output(["llvm-readelf", "-S", "_sz.o"]).decode()).group(1), 16)
    nch = 0
    print("code bytes", sz, "file", len(txt))
    open(out, "w").write(txt.replace("NCHUNK", str(nch)))
```

```python
import sys, math, struct
from genlib import P, R, mfma
from sched import Sched, resolve

NAME = "gated_mix__compressed_kv_cla__sliding_local_dilated__prompt"
WS_HALO = 58 << 20
WS_KV, WS_CTX, WS_G, WS_CNT, WS_INBOX, WS_XCH, WS_STAMP = 0, 32 << 20, 56 << 20, 57 << 20, (57 << 20) + 65536, 64 << 20, 96 << 20
LDS_BYTES = 160 * 1024
def f32(x): return "0x%08x" % struct.unpack("<I", struct.pack("<f", x))[0]
QSCALE = 128 ** -0.5 * math.log2(math.e)
BSCALE = 32 ** -0.5 * math.log2(math.e)
LTHR = 2.0 ** 60

sX, sC, sWQ, sWUK, sWUV, sWOA, sWQKV, sWOB, sGATE, sOUT, sDBG, sWS = 4, 6, 8, 10, 12, 14, 18, 20, 22, 24, 26, 28
sW, sH, sJ = 30, 31, 3
SA, SB, SC, SD, SE, SF, SG, SH = 32, 36, 40, 44, 48, 52, 56, 60
sT, sT2, sBHi = 64, 65, 16
t0_, t1_, t2_, t3_ = 66, 67, 68, 69
def srd(b): return f"s[{b}:{b+3}]"
OPT = dict(stamps=False)
ST = "sc1" if "x_plain" not in sys.argv else ""

vDX, vDQ, vGX, vGW, vL16, vDH, vDB, vDBH, vGH, vGB = 2, 4, 12, 14, 16, 17, 19, 21, 22, 23
vQ, vG = 24, 4
aONE, aDUM = 251, 252
ONES = R("a", 244)
MSK = [0, 4, 6, 8, 10, 12, 18, 22, 26, 56, 58, 60, 62, 48, 50, 100]
def msk(k): return f"s[{MSK[k]}:{MSK[k]+1}]"
def kind(c): return "S" if c.startswith("s_") else ("E" if c.startswith(("v_exp", "v_rcp")) else "A")

def L(s): return [x.strip() for x in s.strip().split("\n") if x.strip()]
def mk_srd(b, ptr, nbytes, off=None):
    if off is None: o = [f"s_mov_b32 s{b}, s{ptr}", f"s_mov_b32 s{b+1}, s{ptr+1}"]
    else: o = [f"s_add_u32 s{b}, s{ptr}, {off}", f"s_addc_u32 s{b+1}, s{ptr+1}, 0"]
    return o + [f"s_mov_b32 s{b+2}, {nbytes}", f"s_mov_b32 s{b+3}, 0x20000"]

NST = [0]
def stamp(idx):
    if not OPT["stamps"]: return []
    return L(f"""s_waitcnt lgkmcnt(0)
        s_memtime s[92:93]
        s_memrealtime s[94:95]
        v_accvgpr_write_b32 a253, v1
        v_accvgpr_read_b32 v1, a249
        s_waitcnt lgkmcnt(0)
        v_writelane_b32 v1, s92, {2*idx}
        v_writelane_b32 v1, s94, {2*idx+1}
        v_accvgpr_write_b32 a249, v1
        v_accvgpr_read_b32 v1, a253
        s_nop 1""")
def stamp_flush():
    if not OPT["stamps"]: return []
    return L(f"""s_lshl_b32 s96, s2, 2
        s_add_u32 s96, s96, s{sW}
        s_lshl_b32 s96, s96, 8
        s_add_u32 s96, s96, {WS_STAMP}
        v_lshlrev_b32 v1, 2, v0
        buffer_store_dword a249, v1, {srd(SD)}, s96 offen
        s_waitcnt vmcnt(0)""")

class G:
    def __init__(self):
        self.p = P(); self.lg = []; self.vm = []; self.ool = []
    def emit(self, seq, eager=0, name=None):
        if name: self.p.l.append(";@seg " + name)
        out, self.lg, self.vm = resolve(seq, self.lg, self.vm, eager)
        self.p(out)
    def spin(self, vreg, srdb, soff, imm, target):
        st, bk, lp = self.p.new("spin"), self.p.new("spinbk"), self.p.new("spinlp")
        self.ool += L(f"""{st}:
            s_mov_b32 vcc_hi, 0x8000
            {lp}:
            s_sleep 1
            buffer_load_dword v{vreg}, off, {srd(srdb)}, {soff} offset:{imm} sc1
            s_waitcnt vmcnt(0)
            v_readfirstlane_b32 vcc_lo, v{vreg}
            s_sub_u32 vcc_hi, vcc_hi, 1
            s_cbranch_scc1 {bk} ;@nottaken
            s_cmp_lt_u32 vcc_lo, {target}
            s_cbranch_scc1 {lp} ;@nottaken
            s_branch {bk}""")
        return L(f"""v_readfirstlane_b32 vcc_lo, v{vreg}
            s_nop 0
            s_cmp_lt_u32 vcc_lo, {target}
            s_cbranch_scc1 {st}
            {bk}:""")

sLH = 78
def cpf(expr):
    return ([f"s_add_u32 s17, s{sLH}, {expr}"], f"buffer_load_dword a{aDUM}, v{vL16}, s[88:91], s17 offen ;@dummy")
def one_lane(d): return ["s_mov_b64 exec, 1", d, "s_mov_b64 exec, -1"]
def signal(srdb, soff, imm, tags):
    return ([f"s_lshl_b32 s{t0_}, s{sW}, 30", f"v_lshl_add_u32 v1, v0, 24, s{t0_}"],
            f"buffer_atomic_add a{aONE}, v1, {srd(srdb)}, {soff} offen offset:{imm} sc1 ;@sig=wg:{tags}")

def snake(n, k): return list(range(n)) if k % 2 == 0 else list(range(n - 1, -1, -1))

def aq(db, rb): return R("v", (vQ if db % 2 == 0 else 88) + 16 * rb + 4 * (db // 2))
def bt(part, db, rb): return R("v", 152 + 32 * part + 8 * rb + 4 * db)
HK, HV = R("v", 248), R("v", 252)
P2ORD = [10, 11, 12, 13, 8, 9, 0, 1, 2, 3, 4, 5, 6, 7]
def p2tile(cb, rb):
    if cb < 8: return aq(cb, rb)
    if cb < 14: return bt((cb - 8) >> 1, cb & 1, rb)
    return HK if cb == 14 else HV

def gemm12(g):
    p = g.p
    sCo, sWo, sXlo, sXhi, sXh, sBo, sLX, sLW, sKV, sPF = 70, 71, 72, 73, 74, 75, 76, 77, 79, 80
    NR = 6
    def fx(sg, rb, s): return R("a", 32 * (sg & 1) + 8 * rb + 4 * s) if rb < 4 else R("a", 64 + 4 * s)
    def fw(J, s): return R("a", 72 + 8 * (J % NR) + 4 * s)
    def stash(i): return R("a", 144 + 4 * i)
    GA = 144
    def order(sg):
        o = []; k = 0
        for j, cb in enumerate(range(16) if sg < 8 else P2ORD):
            if sg >= 8 and cb >= 14: o.append((j, cb, 4))
            else:
                o += [(j, cb, rb) for rb in snake(4, k)]; k += 1
        return o
    o1, o2 = order(0), order(8)
    pos1 = {(cb, rb): k for k, (j, cb, rb) in enumerate(o1)}
    def treg(k): return p2tile(o2[k][1], o2[k][2]) if k < 56 else (HK, HV)[k - 56] if k < 58 else R("a", 120 + 4 * (k - 58))
    def Jx(sg, j): return 16 * sg + j if sg < 8 else 128 + 14 * (sg - 8) + j
    p("s_cmp_ge_u32 s2, 256\ns_cbranch_scc1 L_end")
    p("s_load_dwordx16 s[4:19], s[0:1], 0\ns_load_dwordx8 s[20:27], s[0:1], 64\ns_load_dwordx2 s[28:29], s[0:1], 96")
    if OPT["stamps"] or OPT.get("dbgt"): p("s_memtime s[96:97]\ns_memrealtime s[98:99]")
    if OPT.get("dbgt"): p("s_load_dwordx2 s[94:95], s[0:1], 88")
    p("s_getpc_b64 s[88:89]"); p.label("L_pc")
    p(f"""v_lshrrev_b32 v1, 6, v0
          s_lshr_b32 s{t1_}, s2, 3
          v_lshl_add_u32 v24, s{t1_}, 2, v1
          s_mov_b32 s90, L_codeend-L_pc
          s_mov_b32 s91, 0x20000
          v_and_b32 v25, 7, v0
          v_lshlrev_b32 v25, 7, v25
          v_lshl_add_u32 v24, v24, 10, v25
          buffer_load_dword a{aDUM}, v24, s[88:91], 0 offen ;@dummy
          v_and_b32 v0, 63, v0
          v_readfirstlane_b32 s{sW}, v1 ;@val=wave
          v_lshrrev_b32 v24, 3, v0
          v_lshrrev_b32 v25, 4, v0
          v_and_b32 v26, 7, v0
          v_xor_b32 v26, v26, v25
          v_lshlrev_b32 v26, 4, v26
          v_lshl_add_u32 v{vGX}, v24, 10, v26
          v_xor_b32 v{vGX+1}, 64, v{vGX}
          v_bfe_u32 v26, v0, 1, 3
          v_xor_b32 v26, v26, v25
          v_lshlrev_b32 v26, 5, v26
          v_and_b32 v24, 1, v0
          v_lshl_add_u32 v26, v24, 4, v26
          v_lshl_add_u32 v{vGW}, v25, 13, v26
          v_xor_b32 v{vGW+1}, 128, v{vGW}
          s_and_b32 s{t0_}, s2, 7
          s_and_b32 s{t2_}, s{t1_}, 3
          s_lshl2_add_u32 s{sH}, s{t0_}, s{t2_}
          s_lshr_b32 s{sJ}, s{t1_}, 2
          s_lshl2_add_u32 s{sPF}, s{t1_}, s{sW}
          s_lshl_b32 s{sCo}, s{sJ}, 18
          s_lshl_b32 s{t0_}, s{sW}, 16
          s_add_u32 s{sCo}, s{sCo}, s{t0_}
          s_lshl_b32 s{sWo}, s{sW}, 17
          s_lshl_b32 s{t0_}, s{sH}, 8
          s_add_u32 s{sWo}, s{sWo}, s{t0_}
          s_lshl_b32 s{sLX}, s{sW}, 13
          s_lshl_b32 s{sLW}, s{sW}, 12
          s_lshl_b32 s{sLH}, s{sW}, 10
          s_waitcnt lgkmcnt(0)""")
    p(mk_srd(SA, sC, 2 << 20) + mk_srd(SB, sWUK, 4 << 20) + mk_srd(SC, sWUV, 4 << 20))
    def xdma(sg):
        par = sg & 1; d = []
        for i in range(8):
            if sg < 8: so, sr = f"s_add_u32 s{sT}, s{sCo}, {sg*128 + i*8192}", SA
            else: so, sr = f"s_add_u32 s{sT}, s{sXlo if i < 4 else sXhi}, {(sg-8)*128 + ((i>>1)&1)*64*2048 + (i&1)*16384}", SE
            d.append(([f"s_add_u32 m0, s{sLX}, {par*32768 + i*1024}", so], f"buffer_load_dwordx4 v{vGX + (i&1)}, {srd(sr)}, s{sT} offen lds ;@tag=x{sg}"))
        return d
    def wdma(sg):
        d = []; B = 65536 + (sg % 3) * 32768
        for kv in range(2 if sg < 8 else 1):
            for i in range(4):
                st = sg if sg < 8 else sg - 8
                d.append(([f"s_add_u32 m0, s{sLW}, {B + kv*16384 + i*1024}", f"s_add_u32 s{sT}, s{sWo}, {st*64*8192 + i*32768}"],
                          f"buffer_load_dwordx4 v{vGW + (i>>1)}, {srd((SB, SC)[kv] if sg < 8 else SG)}, s{sT} offen lds ;@tag=w{sg}"))
        if sg >= 8:
            for pp in range(3):
                d.append(([f"s_add_u32 m0, s{sLH}, {B + 16384 + pp*4096}", f"s_add_u32 s{sT}, s{sBo}, {(sg-8)*64*6144 + pp*2048}"],
                          f"buffer_load_dwordx4 v{vGB}, {srd(SH)}, s{sT} offen lds ;@tag=w{sg}"))
            d = [d[k] for k in (0, 4, 1, 5, 2, 6, 3)]
        return d
    seq = []
    for sal, d in (xdma(0) + wdma(0) if not OPT.get("wfirst") else wdma(0) + xdma(0)): seq += sal + [d]
    seq += mk_srd(SD, sWS, 128 << 20) + mk_srd(SE, sX, 4 << 20) + mk_srd(SF, sDBG, 256) + mk_srd(SG, sWQ, 8 << 20) + mk_srd(SH, sWQKV, 6 << 20)
    seq += [f"v_accvgpr_write_b32 a{aONE}, 1"]
    if OPT["stamps"]: seq += ["v_mov_b32 v30, 0", "v_writelane_b32 v30, s96, 60", "v_writelane_b32 v30, s98, 61", "v_accvgpr_write_b32 a249, v30"] + stamp(0)
    seq += L(f"""v_and_b32 v24, 15, v0
          v_lshrrev_b32 v26, 1, v24
          v_xor_b32 v26, v26, v25
          v_lshlrev_b32 v26, 4, v26
          v_lshl_add_u32 v26, v24, 7, v26
          v_add_u32 v{vDX}, s{sLX}, v26
          v_xor_b32 v{vDX+1}, 64, v{vDX}
          v_bfe_u32 v24, v0, 2, 2
          v_lshl_add_u32 v27, v25, 3, v24
          v_and_b32 v1, 3, v0
          v_cmp_eq_u32 vcc, 0, v1
          v_lshlrev_b32 v1, 3, v1
          v_lshl_add_u32 v26, v27, 8, v1
          v_add_u32 v26, 65536, v26
          v_and_b32 v1, 1, v25
          v_lshl_add_u32 v24, v1, 2, v24
          v_lshlrev_b32 v{vL16}, 4, v0
          v_mov_b32 v28, 0x3f803f80
          v_cndmask_b32 v28, 0, v28, vcc""")
    seq += [f"v_accvgpr_write_b32 {ONES[r]}, v28" for r in range(4)]
    for n in range(8): seq += [f"v_xor_b32 v1, {n}, v24", f"v_lshl_add_u32 v{vDQ+n}, v1, 5, v26"]
    seq += L(f"""s_sub_u32 s{sBHi}, 15, s{sJ}
          s_lshl_b32 s{sXlo}, s{sJ}, 18
          s_lshl_b32 s{sXhi}, s{sBHi}, 18
          s_cmp_lt_u32 s{sW}, 2
          s_cselect_b32 s{t1_}, s{sJ}, s{sBHi}
          s_lshl4_add_u32 s{sXh}, s{sH}, s{t1_}
          s_and_b32 s{t0_}, s{sW}, 1
          s_lshl1_add_u32 s{sXh}, s{sXh}, s{t0_}
          s_lshl_b32 s{sXh}, s{sXh}, 10
          s_add_u32 s{sXh}, s{sXh}, {WS_HALO}
          s_lshl_b32 s{t0_}, s{sW}, 15
          s_add_u32 s{sXlo}, s{sXlo}, s{t0_}
          s_add_u32 s{sXhi}, s{sXhi}, s{t0_}
          s_mul_i32 s{sBo}, s{sW}, {16*6144}
          s_lshl_b32 s{t0_}, s{sH}, 6
          s_add_u32 s{sBo}, s{sBo}, s{t0_}
          s_lshl_b32 s{sKV}, s{sH}, 20
          s_lshl_b32 s{t0_}, s{sJ}, 17
          s_add_u32 s{sKV}, s{sKV}, s{t0_}
          s_lshl_b32 s{t0_}, s{sW}, 15
          s_add_u32 s{sKV}, s{sKV}, s{t0_}
          v_bfe_u32 v{vGB}, v0, 1, 1
          v_lshrrev_b32 v1, 5, v0
          v_xor_b32 v{vGB}, v{vGB}, v1
          v_lshlrev_b32 v{vGB}, 5, v{vGB}
          v_and_b32 v1, 1, v0
          v_lshl_add_u32 v{vGB}, v1, 4, v{vGB}
          v_lshrrev_b32 v1, 2, v0
          v_mul_u32_u24 v1, 6144, v1
          v_add_u32 v{vGB}, v1, v{vGB}
          s_lshl_b32 s81, s{sPF}, 13
          s_and_b32 s{t1_}, s2, 7
          s_lshl_b32 s82, s{t1_}, 8
          s_add_u32 s82, s82, s81
          s_lshl_b32 s{t1_}, s{t1_}, 10
          s_add_u32 s81, s81, s{t1_}
          s_add_u32 s83, s81, {1<<20}
          v_mul_u32_u24 v1, 1792, v25
          v_add_u32 v1, v1, v{vL16}
          s_lshl_b32 s{t2_}, s2, 3
          s_lshl1_add_u32 s{t2_}, s{sW}, s{t2_}
          v_lshrrev_b32 v18, 5, v0
          v_add_u32 v18, s{t2_}, v18
          v_and_b32 v19, 31, v0
          v_lshlrev_b32 v19, 4, v19
          v_lshl_add_u32 v18, v18, 11, v19
          v_mov_b32 v21, 0
          v_min_u32 v20, 1, v0
          v_lshlrev_b32 v20, 30, v20
          v_accvgpr_write_b32 a240, -1
          v_accvgpr_write_b32 a241, -1
          v_accvgpr_write_b32 a242, -1
          v_accvgpr_write_b32 a243, -1
          s_lshr_b32 s{t3_}, s2, 6
          s_or_b32 s{t3_}, s{t3_}, s{sW}
          s_lshl_b32 s{t3_}, s{t3_}, 20
          s_add_u32 s{t3_}, s{t3_}, s2
          s_lshl_b32 s{t3_}, s{t3_}, 8
          s_add_u32 s{t3_}, s{t3_}, {WS_CNT}""")
    def xread(sg): return [f"ds_read_b128 {fx(sg, rb, s)}, v{vDX+s} offset:{(sg&1)*32768 + rb*2048}" for rb in range(4) for s in range(2)]
    def hread(sg): return [f"ds_read_b128 {fx(sg, 4, s)}, v{vDH+s} offset:{min(sg % 3, 1)*32768}" for s in range(2)]
    def wread(sg, j):
        par = min(sg % 3, 1); o = []; cb = j if sg < 8 else P2ORD[j]
        for s in range(2):
            for i in range(2):
                if sg < 8 or cb < 8: a, off = vDQ + (cb & 7), par*32768 + (cb >> 3)*16384 + s*8192 + i*1024
                elif cb < 14: a, off = vDB + (cb & 1), par*32768 + ((cb-8) >> 1)*4096 + s*2048 + i*256
                else: a, off = vDBH, par*32768 + (cb-13)*4096 + s*2048 + i*256
                o.append((a, f"ds_read_b64_tr_b16 {fw(Jx(sg, j), s)[2*i:2*i+2]}, v{a} offset:{off}"))
        return o
    def wpf(sr): return f"buffer_load_dword a{aDUM}, v{vL16}, {srd(sr)}, s83 offen ;@dummy"
    P1PF = OPT.get("p1pf", 0)
    if P1PF == 2: seq += [wpf(SB), wpf(SC)]
    LATE, WD = OPT.get("late1", 1), OPT.get("wd", 3)
    for sal, d in (xdma(1) + wdma(1) if LATE == 0 else wdma(1) if LATE == 1 else []): seq += sal + [d]
    if P1PF == 1: seq += [wpf(SB), wpf(SC)]
    seq += ["WAITVM w0,x0", "s_barrier"] + stamp(1)
    xr = xread(0); NPRE = 3
    seq += xr[:2] + [r for _, r in wread(0, 0)] + xr[2:]
    for j in range(1, NPRE): seq += [r for _, r in wread(0, j)]
    g.emit(seq)
    mf = []; G0 = []; FU = []; LU = []; done = {}
    for sg in range(24):
        G0.append(len(mf))
        for k, (j, cb, rb) in enumerate(o1 if sg < 8 else o2):
            J = Jx(sg, j)
            if len(FU) == J: FU.append(len(mf)); LU.append(0)
            swap = (cb >= 8) if sg < 8 else (cb in (12, 13, 15))
            for q, s in enumerate(snake(2, k)):
                c0 = 0 if (q == 0 and sg in (0, 8)) else None
                mf.append(mfma(treg(k), fx(sg, rb, s), fw(J, s), c0) if swap else mfma(treg(k), fw(J, s), fx(sg, rb, s), c0))
            LU[J] = len(mf) - 1; done[(sg, cb, rb)] = len(mf) - 1
    G0.append(len(mf))
    S = Sched(mf)
    def pace(items, lo, hi, chain, slack=5):
        n = len(items)
        for q, (sal, d) in enumerate(items):
            x = lo + int(q * (hi - lo) / n)
            it = S.add("M", d, x, x + slack, chain=chain, sep=3, pre=sal)
            if q == 0: it["prelo"] = lo - 2
    def chain(txt, lo, hi=None, name=None, sep=1):
        for c in (L(txt) if isinstance(txt, str) else txt): S.add(kind(c), c, lo, hi, chain=name, sep=sep)
    BAR = {sg: G0[sg + 1] - 30 for sg in range(24)}; BAR[-1] = -1
    XW = 54
    IL = OPT.get("il", 0)
    gxupd = f"v_lshrrev_b32 v{vGX+1}, 3, v0\nv_lshl_add_u32 v{vGX}, v{vGX+1}, 10, v{vGX}\nv_xor_b32 v{vGX+1}, 64, v{vGX}"
    def mix(a, b): return [x for pr in zip(b, a) for x in pr]
    ini = (wdma(1) if LATE == 2 else []) + (xdma(1) if LATE else []) + (wdma(2) if WD == 3 else [])
    X0 = max(40, 2 + 3 * len(ini) + len(ini) // 2)
    if IL:
        ini = (xdma(1) if LATE else []) + mix(xdma(2), wdma(2)); X0 = BAR[0]
    if ini: pace(ini, 2, X0 - 2, "dma", slack=2)
    for sg in range(24):
        g0, nx, B = G0[sg], G0[sg + 1], BAR[sg]
        lastuse = {}
        for j in range(16 if sg < 8 else 14):
            J = Jx(sg, j)
            if J < NPRE: continue
            lo = max(LU[J - NR] if J >= NR else 0, BAR[sg - 1] + 1, FU[J] - 44)
            hi = FU[J] - 8
            if sg < 23: hi = min(hi, B - 5)
            for a, r in wread(sg, j): S.add("T", r, lo, hi, chain="t"); lastuse[a] = hi
        if sg < 23:
            if sg % 3:
                for r, lu in lastuse.items():
                    S.add("A", f"v_add_u32 v{r}, 0x8000, v{r}" if sg % 3 == 1 else f"v_subrev_u32 v{r}, 0x8000, v{r}", lu + 1, B - 1)
            blk = [f"WAITVM w{sg+1}" + (" L" if (WD == 3 or sg >= 21) else ""), "s_barrier"]
            if sg == 7: blk += stamp(2)
            if OPT.get("x_nop"): blk += [f"s_sleep {OPT['x_nop']}"]
            fine = (0, 1, 2, 3, 4, 5, 9, 11, 13, 15, 17, 19) if OPT.get("fine") != 2 else (0, 1, 2, 3, 4, 5, 6, 8, 9, 10, 11, 12)
            if OPT.get("fine") and sg in fine: blk += stamp(18 + fine.index(sg))
            S.add("X", blk, B, B)
            xw, xh = (g0 + XW, B - 5) if not (LATE and sg == 0) else (B + 8, nx - 8)
            S.add("S", f"WAITVM x{sg+1}", xw, xw, chain=("xn", sg))
            for q, r in enumerate(xread(sg + 1)): S.add("D", r, xw, xh, chain=("xn", sg))
        if IL:
            if sg == 5: chain(gxupd, B - 8, B + 2, name="dma", sep=0)
            if sg == 0 and LATE:
                pace(wdma(3), B + 3, nx + 30, "dma"); pace(xdma(3), nx + 32, BAR[1] - 2, "dma")
            elif sg + 3 < 24: pace(mix(xdma(sg + 3), wdma(sg + 3)), B + 5, BAR[sg + 1] - 2, "dma", slack=4)
            continue
        if sg + 2 < 24: pace(xdma(sg + 2), g0 + (40 if sg else X0), B - 2, "dma")
        if sg + WD < 24: pace(wdma(sg + WD), B + 3, nx + 38, "dma")
    GS = 56; lo = 40
    for i in range(4):
        S.add("M", f"global_load_dwordx4 a[{GA+4*i}:{GA+3+4*i}], v18, s[{sX}:{sX+1}] offset:{512*i}", lo + GS*i, lo + GS*i + 10, chain="gate")
        S.add("M", f"global_load_dwordx4 a[{GA+16+4*i}:{GA+19+4*i}], v19, s[{sGATE}:{sGATE+1}] offset:{512*i}", lo + GS*i + GS//2, lo + GS*i + GS//2 + 10, chain="gate")
    S.add("M", f"buffer_store_dword v21, v20, {srd(SD)}, s{t3_} offen {ST} ;@tag=z", G0[2] + 20, G0[2] + 40, chain="gate", sep=1)
    a0, a1, a2, a3, acc = 18, 19, 20, 21, 17
    ch = [f"v_mov_b32 v{acc}, 0"]
    for i in range(16):
        ch += L(f"""v_accvgpr_read_b32 v{a1}, a{GA+i}
            v_accvgpr_read_b32 v{a3}, a{GA+16+i}
            v_lshlrev_b32 v{a0}, 16, v{a1}
            v_and_b32 v{a1}, 0xffff0000, v{a1}
            v_lshlrev_b32 v{a2}, 16, v{a3}
            v_and_b32 v{a3}, 0xffff0000, v{a3}
            v_mul_f32 v{a0}, v{a0}, v{a2}
            v_mul_f32 v{a1}, v{a1}, v{a3}
            v_cvt_pk_bf16_f32 v{a0}, v{a0}, v{a1}
            v_lshlrev_b32 v{a1}, 16, v{a0}
            v_and_b32 v{a0}, 0xffff0000, v{a0}
            v_add_f32 v{acc}, v{acc}, v{a1}
            v_add_f32 v{acc}, v{acc}, v{a0}""")
    lo = G0[3]
    chain(ch, lo, name="gate", sep=0)
    chain([f"v_add_f32_dpp v{acc}, v{acc}, v{acc} row_ror:{r} row_mask:0xf bank_mask:0xf" for r in (8, 4, 2, 1)], lo, name="gate", sep=2)
    chain([f"v_mov_b32 v{a0}, v{acc}"], lo, name="gate", sep=0)
    chain([f"v_permlane16_swap_b32 v{a0}, v{acc}"], lo, name="gate", sep=2)
    chain(f"""v_add_f32 v{acc}, v{acc}, v{a0}
            v_cvt_pk_bf16_f32 v{acc}, v{acc}, v{acc}
            v_and_b32 v{acc}, 0xffff0000, v{acc}
            v_mul_f32 v{acc}, 0xbfb8aa3b, v{acc}
            v_exp_f32 v{acc}, v{acc}
            v_add_f32 v{acc}, 1.0, v{acc}
            v_rcp_f32 v{acc}, v{acc}
            v_cvt_pk_bf16_f32 v{a0}, v{acc}, v{acc}
            v_and_b32 v{a0}, 0xffff0000, v{a0}
            v_sub_f32 v{a1}, 1.0, v{a0}
            v_cvt_pk_bf16_f32 v{a1}, v{a1}, v{a1}
            v_and_b32 v{a1}, 0xffff0000, v{a1}
            v_and_b32 v{a2}, 31, v0
            v_lshlrev_b32 v{a2}, 27, v{a2}
            v_lshrrev_b32 v{a3}, 2, v0
            v_add_u32 v{a2}, v{a2}, v{a3}""", lo, name="gate")
    S.add("M", f"buffer_store_dwordx2 v[{a0}:{a1}], v{a2}, {srd(SD)}, s{sT2} offen {ST} ;@tag=z", lo, G0[6] + 30, chain="gate", sep=4,
          pre=[f"s_lshl2_add_u32 s{sT2}, s2, s{sW}", f"s_lshl4_add_u32 s{sT2}, s{sT2}, {WS_G}"])
    chain(f"""v_lshrrev_b32 v21, 4, v0
          v_bfe_u32 v{vDB}, v0, 2, 2
          v_lshl_add_u32 v{vDB}, v21, 3, v{vDB}
          v_lshlrev_b32 v{vDB}, 6, v{vDB}
          v_and_b32 v21, 1, v21
          v_lshl_add_u32 v{vDB}, v21, 5, v{vDB}
          v_and_b32 v21, 3, v0
          v_lshl_add_u32 v{vDB}, v21, 3, v{vDB}
          v_add_u32 v{vDB}, {98304 + 16384}, v{vDB}
          v_xor_b32 v{vDB+1}, 32, v{vDB}""", lo, G0[7] - 2, name="gate")
    if not IL: chain(gxupd, BAR[5] + 6, G0[6] + 30, name="gx", sep=0)
    if P1PF:
        for lo in (OPT.get("q1", 80), OPT.get("q2", 210)):
            S.add("M", wpf(SB), lo, lo + 10, chain="pf1", pre=[f"s_add_u32 s83, s83, {1<<20}"])
            S.add("M", wpf(SC), lo + 20, lo + 30, chain="pf1")
    if not OPT.get("nopf"):
        P0, PS = OPT.get("p0", 200), OPT.get("ps", 36); order_ = "qkqkqqkqkqqkqk"
        for k, c in enumerate(order_):
            r = 81 if c == "q" else 82
            S.add("M", f"buffer_load_dword a{aDUM}, v{vL16 if c == 'q' else 1}, {srd(SG if c == 'q' else SH)}, s{r} offen ;@dummy", P0 + k*PS, P0 + k*PS + 16, chain="pf",
                  pre=[] if order_[:k].count(c) == 0 else [f"s_add_u32 s{r}, s{r}, {1<<20}"])
    if OPT.get("wo", "E") == "P":
        chain(mk_srd(84, sWOA, 8 << 20) + [f"s_lshl2_add_u32 s83, s2, s{sW}", "s_lshl_b32 s83, s83, 11", "v_lshlrev_b32 v22, 5, v0"], 20, 100, name="wp", sep=0)
        for k in range(4):
            x = OPT.get("wp0", 120) + k * OPT.get("wps", 144)
            S.add("M", f"buffer_load_dword a{aDUM}, v22, s[84:87], s83 offen ;@dummy", x, x + 10, chain="wp", pre=[f"s_add_u32 s83, s83, {2<<20}"] if k else [])
    n0 = G0[8]; frs = []
    for t in range(4):
        for rb in (3, 2, 1, 0): frs.append(((2*t, rb), (2*t + 1, rb), (rb >> 1)*16384 + (rb & 1)*4096 + t*1024))
    for db in range(8):
        for u in snake(2, db): frs.append(((8 + db, 2*u), (8 + db, 2*u + 1), u*16384 + 8192 + db*1024))
    ns = 0; later = []
    tmpA, tmpB = HK, HV
    for q, (ta, tb, off) in enumerate(frs):
        ka, kb = pos1[ta], pos1[tb]; A, B_ = treg(ka), treg(kb)
        lo = G0[7] + 2*max(ka, kb) + 1 + 8; hi = n0 + 2*min(ka, kb) - 1; hi2 = n0 + 2*max(ka, kb) - 3
        D_ = B_ if kb > ka else A
        ch = ("drain",)
        if min(ka, kb) >= 56: hi = hi2 = G0[10]
        if A.f == "a":
            for r in range(4): S.add("A", f"v_accvgpr_read_b32 {tmpA[r]}, {A[r]}", lo, hi, chain=ch, sep=2 if r == 0 else 0)
            for r in range(4): S.add("A", f"v_accvgpr_read_b32 {tmpB[r]}, {B_[r]}", lo, hi, chain=ch)
            A, B_ = tmpA, tmpB; D_ = B_
        direct = q % 4 == 0
        if direct: S.add("S", f"s_add_u32 s{t1_}, s{sKV}, {off}", lo - 2, hi, chain=ch)
        if D_ is B_: cv = ((3, B_, 2), (2, B_, 0), (0, A, 0), (1, A, 2))
        else: cv = ((0, A, 0), (1, A, 2), (2, B_, 0), (3, B_, 2))
        for d_, src, r in cv: S.add("A", f"v_cvt_pk_bf16_f32 {D_[d_]}, {src[r]}, {src[r+1]}", lo, hi, chain=ch)
        if direct and OPT.get("x_nodirect"): pass
        elif direct: S.add("M", f"buffer_store_dwordx4 {D_}, v{vL16}, {srd(SD)}, s{t1_} offen {OPT.get('kvst', ST).replace('+', ' ').replace('-', '')} ;@tag=kv", lo, hi2, chain=ch, sep=1)
        else:
            for r in range(4): S.add("A", f"v_accvgpr_write_b32 {stash(ns)[r]}, {D_[r]}", lo, hi2, chain=ch)
            later.append((ns, off)); ns += 1
    assert ns == 24 and pos1[frs[27][0]] in (54, 55) and pos1[frs[28][0]] in (56, 57), (pos1[frs[27][0]],)
    NSTG = OPT.get("nstg", 9); KVP = 21 if (NSTG <= 9 and WD == 3) else 22
    t_a, t_b = G0[9] + 2, BAR[8 + NSTG] - 14
    sts = [([f"s_add_u32 s{sT2}, s{sKV}, {off}"], f"buffer_store_dwordx4 {stash(i)}, v{vL16}, {srd(SD)}, s{sT2} offen {OPT.get('kvst', ST).replace('+', ' ').replace('-', '')} ;@tag=kv") for i, off in later]
    sts.append(([], f"buffer_store_dwordx4 a[240:243], v{vL16}, {srd(SD)}, s{sXh} offen {ST} ;@tag=kv"))
    for q, (pre, d) in enumerate(sts if not OPT.get("x_nost") else []):
        lo = t_a + (q * (t_b - t_a)) // (len(sts) - 1)
        S.add("M", d, lo - 6, lo, chain="kvst", sep=3, pre=pre)
    pre, d = signal(SF, f"s{t2_}", 0, "z")
    chain(pre + [f"s_lshr_b32 s{t0_}, s{sJ}, 1", f"s_lshl_b32 s{t0_}, s{t0_}, 12"], G0[7], BAR[7], name="sig")
    for k in range(4):
        lo = BAR[8 + k] + 20
        S.add("X", one_lane(d), lo, lo + 14, chain="sig", sep=3, pre=[f"s_xor_b32 s{t2_}, s{t0_}, {k << 12}"])
    E0 = max(NSTG + 7, 14)
    S.add("X", L(f"s_cmp_eq_u32 s{sW}, 0\ns_cselect_b32 s81, 256, 0"), G0[E0 - 1], G0[E0 - 1] + 40, chain="sig")
    S.add("M", f"buffer_load_dword v1, off, {srd(SF)}, s{sLH} sc1", BAR[E0 - 1] - 14, BAR[E0 - 1] - 8, chain="sig")
    S.add("X", g.spin(1, SF, f"s{sLH}", 0, "s81"), G0[E0] + XW + 12, G0[E0] + XW + 24, chain="sig")
    S.add("X", mk_srd(SF, sWS, 16384, WS_CNT)[:3], BAR[E0] - 4, BAR[E0] + 30, chain="sig")
    E1 = max(NSTG + 9, 16)
    pre, d = signal(SF, "s70", 0, "kv")
    chain(pre + [f"s_lshl_b32 s70, s{sH}, 8"], G0[E1], BAR[E1], name="sig")
    S.add("X", one_lane(d), BAR[E1] + 1, BAR[E1] + 12, chain="sig", sep=1)
    chain([f"s_lshl4_add_u32 s70, s{sLH}, s70", "s_lshr_b32 s81, s81, 5"], BAR[E1] + 1, name="sig")
    S.add("M", f"buffer_load_dword v1, off, {srd(SF)}, s70 sc1", BAR[KVP - 1] - 14, BAR[KVP - 1] - 8, chain="sig")
    S.add("X", g.spin(1, SF, "s70", 0, "s81"), G0[KVP] + XW + 6, BAR[KVP] - 1, chain="sig")
    if not OPT.get("nocpf"):
        for sg in range(0, 22, OPT.get("cps", 2)):
            pre, d = cpf(".-L_pc+6144"); S.add("M", d, G0[sg] + 4, G0[sg] + 30, chain="cpf", pre=pre)
        for k, e_ in enumerate([".-L_pc+6144", ".-L_pc+9984", ".-L_pc+13824", "L_F1-L_pc", "L_F1-L_pc+4096"]):
            x = G0[22] + (50 if OPT.get("wo", "E") != "E" else 0)
            pre, d = cpf(e_); S.add("M", d, x + 6 * k, x + 34, chain="cpf", pre=pre, sep=3)
    S.add("X", L(f"s_lshl_b32 s{t2_}, s{sH}, 20\ns_add_u32 s{SA}, s{sWS}, s{t2_}\ns_addc_u32 s{SA+1}, s{sWS+1}, 0"), G0[21], G0[21] + 40, chain="sa")
    S.add("X", L(f"s_add_u32 s{t2_}, s{sBHi}, 1\ns_lshl_b32 s{SA+2}, s{t2_}, 16"), G0[21], G0[21] + 50, chain="sa")
    pace(att_first_dmas(sLX), BAR[KVP] + 5, BAR[KVP] + 5 + 12 * (6 if KVP == 21 else 4), "dma", slack=2)
    lo = G0[22] if WD == 3 else G0[22] + 40
    chain(f"""v_and_b32 v12, 15, v0
          v_lshrrev_b32 v13, 4, v0
          v_lshlrev_b32 v13, 2, v13
          v_sub_u32 v12, v12, v13
          s_lshl_b32 s{t0_}, s{sW}, 4
          v_add_u32 v13, s{t0_}, v12""", lo, name="la")
    chain([f"v_cmp_gt_i32 {msk(k)}, {16*(k >> 2) + (k & 3)}, v13" for k in range(16)], lo, name="la", sep=0)
    chain(f"""v_lshlrev_b32 v14, 7, v0
          s_lshl2_add_u32 s{t0_}, s2, s{sW}
          s_lshl_b32 s{t1_}, s{t0_}, 13
          v_add_u32 v13, s{t1_}, v14
          v_and_b32 v14, 0x7ff, v14
          s_lshl_b32 s{t1_}, s{t0_}, 11
          v_add_u32 v14, s{t1_}, v14""", lo, name="la")
    chain(p5_setup()[:-13], G0[22], name="la", sep=0)
    for r in range(4):
        chain(f"""v_subrev_u32 v17, {r}, v12
              v_lshlrev_b32 v18, 31, v17
              v_or_b32 v21, v17, v18
              v_ashrrev_i32 v21, 31, v21
              v_and_b32 {HK[r]}, 0xff800000, v21
              v_not_b32 v17, v17
              v_or_b32 v21, v17, v18
              v_ashrrev_i32 v21, 31, v21
              v_and_b32 {HV[r]}, 0xff800000, v21""", lo, name="la", sep=0)
    chain(f"""s_lshl_b32 s{t0_}, s{sW}, 11
          s_add_u32 s{t0_}, s{t0_}, 32768
          v_add_u32 v17, s{t0_}, v{vL16}
          v_add_u32 v18, 0x10000, v17
          s_lshr_b32 s{t0_}, s{sW}, 1
          s_lshl_b32 s{t0_}, s{t0_}, 16
          s_and_b32 s{t1_}, s{sW}, 1
          s_lshl_b32 s{t1_}, s{t1_}, 10
          s_add_u32 s{t0_}, s{t0_}, s{t1_}
          s_add_u32 s{t0_}, s{t0_}, 32768
          v_add_u32 v15, s{t0_}, v{vL16}
          """, lo, BAR[22] + 10, name="la", sep=0)
    chain(f"""v_and_b32 v22, 15, v0
          v_lshlrev_b32 v22, 3, v22
          s_lshl_b32 s85, s{sW}, 7
          s_add_u32 s85, s85, {WS_G}
          s_lshl_b32 s86, s{sJ}, 10
          s_add_u32 s86, s86, s85
          s_lshl_b32 s87, s{sBHi}, 10
          s_add_u32 s87, s87, s85""", G0[21], name="g", sep=0)
    for rb in range(4):
        S.add("M", f"buffer_load_dwordx2 a[{64+2*rb}:{65+2*rb}], v22, {srd(SD)}, s{86 + (rb>>1)} offen offset:{(rb&1)*512} sc1", BAR[21] - 4, G0[22] - 2, chain="g", sep=1)
    chain(f"""s_mov_b32 s{SB}, s{sWOB}
          s_mov_b32 s{SB+1}, s{sWOB+1}
          s_mov_b32 s{SB+2}, {2<<20}
          s_mov_b32 s{SC}, s{sWOA}
          s_mov_b32 s{SC+1}, s{sWOA+1}
          s_mov_b32 s{SC+2}, {8<<20}""", G0[12], G0[13], name="pf")
    if not OPT.get("nopf"):
        x = G0[23] + (0 if KVP == 21 else 26)
        if OPT.get("wo", "E") == "E": x = G0[22] + OPT.get("wox", 62)
        if OPT.get("wo", "E") in "LE": S.add("M", f"buffer_load_dword a{aDUM}, v13, {srd(SC)}, 0 offen ;@dummy", x, x + 12, chain="wpf", sep=2)
        S.add("M", f"buffer_load_dword a{aDUM}, v14, {srd(SB)}, 0 offen ;@dummy", x, x + 16, chain="wpf", sep=2)
    chain(f"s_lshl2_add_u32 s72, s2, s{sW}\ns_lshl_b32 s72, s72, 12\ns_add_u32 s72, s72, {WS_XCH}", BAR[21] + 2, G0[22], name="pre")
    g.prefill = [f"buffer_store_dwordx4 a[240:243], v{vL16}, {srd(SD)}, s72 offen offset:{k*1024} {ST} ;@tag=ob" for k in range(4)]
    PRIN = OPT.get("prin", -16)
    if PRIN < 200:
        for k, d in enumerate(g.prefill): S.add("M", d, G0[22] + PRIN + 14*k, G0[22] + PRIN + 14*k + 6, chain="pre")
        g.prefill = []
    def rdy(*tiles): return max(done[(23, cb, rb)] for cb, rb in tiles) + 8
    def pk(d, a, b, lo): S.add("A", f"v_cvt_pk_bf16_f32 {d}, {a}, {b}", lo, chain="la")
    for rb in (3, 2, 1, 0):
        a, b = bt(1, 0, rb), bt(1, 1, rb); lo = rdy((11, rb))
        pk(a[0], a[0], a[1], lo); pk(a[1], a[2], a[3], lo); pk(a[2], b[0], b[1], lo); pk(a[3], b[2], b[3], lo)
        S.add("M", f"ds_write_b128 v{17 + (rb>>1)}, {a} offset:{(rb&1)*8192 + 2048}", lo, lo + 12, chain="la", sep=1)
    for db in range(2):
        for rb in snake(4, db):
            lo = rdy((12 + db, rb)); a = bt(2, db, rb); pk(a[3], a[2], a[3], lo); pk(a[2], a[0], a[1], lo)
            S.add("M", f"ds_write_b64 v{17 + (rb>>1)}, {a[2:4]} offset:{(rb&1)*8192 + 3072 + db*8}", lo, lo + 16, chain="la", sep=1)
    x = lo + 19
    S.add("X", ["s_waitcnt lgkmcnt(0)", "s_barrier"], lo, x, chain="la", sep=2)
    S.add("D", "ds_read_b128 a[16:19], v15 offset:16384", lo, x + 1, chain="la", sep=1)
    def prevrd(rbs):
        return [f"ds_read_b128 a[{4*rb}:{4*rb+3}], v{17 + (rb>>1)} offset:{(rb&1)*8192}" for rb in rbs] + \
               [f"ds_read_b64 {bt(2, db, rb)[0:2]}, v{17 + (rb>>1)} offset:{(rb&1)*8192 + 1024 + db*8}" for rb in rbs for db in range(2)]
    g.prevrd = prevrd
    S.add("M", f"buffer_store_dwordx4 a[16:19], v{vL16}, {srd(SD)}, s{sXh} offen {ST}", lo, x + 7, chain="la", sep=6)
    for c in prevrd((1, 3)): S.add("D", c, lo, chain="la")
    for rb in (3, 2, 1, 0):
        a, b = bt(0, 0, rb), bt(0, 1, rb); lo = rdy((9, rb))
        for d_, src, r in ((0, a, 0), (1, a, 2), (2, b, 0), (3, b, 2)): S.add("A", f"v_cvt_pk_bf16_f32 {a[d_]}, {src[r]}, {src[r+1]}", lo, chain="lq")
    S.add("X", L(f"s_or_b32 s{t0_}, s{sJ}, s{sW}\ns_cmp_eq_u32 s{t0_}, 0\ns_cselect_b32 s{t0_}, 0xff800000, 0"), G0[23] + 2, G0[23] + 50, chain="lx")
    S.add("X", L(f"s_and_b32 s{t1_}, s{sXh}, 0x7800\ns_cselect_b32 s{t1_}, -2048, 0x70000000\ns_add_u32 s75, s{sXh}, s{t1_}").__class__(
          [f"s_and_b32 s{t1_}, s{sXh}, 0x7800", f"s_cselect_b32 s{t1_}, 0, 0x70000000", f"s_add_u32 s75, s{sXh}, s{t1_}"]), G0[23] + 2, G0[23] + 54, chain="lx")
    chain(f"s_sub_u32 s75, s75, 2048\ns_mov_b32 s{t2_}, {f32(QSCALE)}\ns_mov_b32 s{t3_}, s{t2_}", G0[23] + 2, G0[23] + 58, name="lx")
    chain([f"v_or_b32 v{20+r}, s{t0_}, {HV[r]}" for r in range(4)], lo, name="lq", sep=0)
    NQ = OPT.get("nq", 6); g.qdone = []
    for t, rb in [(t, rb) for t in range(4) for rb in (3, 2, 1, 0)][:NQ]:
        a, b = aq(2*t, rb), aq(2*t+1, rb); lo = rdy((2*t + 1, rb)); g.qdone.append((t, rb))
        for r_ in (a, b):
            for k in range(4): S.add("A", f"v_mul_f32 {r_[k]}, s{t2_}, {r_[k]}", lo, chain="lq")
        for d_, src, r in ((0, a, 0), (1, a, 2), (2, b, 0), (3, b, 2)): S.add("A", f"v_cvt_pk_bf16_f32 {a[d_]}, {src[r]}, {src[r+1]}", lo, chain="lq")
    g.emit(S.run("gemm12"), eager=10, name="gemm12")
    g.emit(stamp(5))
    if OPT.get("x_sleep"): g.emit([f"s_sleep {OPT['x_sleep']}"])
    g.att_setup = L(f"""s_mov_b32 s73, 0
          s_lshl_b32 s{t1_}, s{sH}, 15
          s_add_u32 s{t1_}, s{t1_}, s{sLH}
          s_add_u32 s{t1_}, s{t1_}, {WS_CTX}
          s_mul_i32 s92, s{sJ}, {160*8192}
          s_add_u32 s92, s92, s{t1_}
          s_mul_i32 s93, s{sBHi}, {160*8192}
          s_add_u32 s93, s93, s{t1_}""")
    local_attention(g)
    g.emit(["s_mov_b32 s74, s92", "s_mov_b32 s75, s93"])

def att_first_dmas(sLX):
    d = []
    for k in range(8):
        sal = []
        if k == 0: sal = [f"s_mov_b32 m0, s{sLX}", f"s_lshl_b32 s{sT}, s{sW}, 14"]
        if k == 4: sal = [f"s_add_u32 m0, s{sLX}, 4096", f"s_add_u32 s{sT}, s{sT}, 4096"]
        d.append((sal, f"buffer_load_dwordx4 v{vL16}, {srd(SA)}, s{sT} offen offset:{(k&3)*1024} sc1 lds ;@tag=k0"))
    for k in range(4):
        sal = []
        if k == 0: sal = [f"s_lshr_b32 s{sT}, s{sLX}, 1", f"s_add_u32 m0, s{sT}, {65536 + 16384}", f"s_and_b32 s71, s{sT}, 8192",
                          f"s_add_u32 s{sT}, s{sT}, s71", f"s_add_u32 s{sT}, s{sT}, 8192"]
        d.append((sal, f"buffer_load_dwordx4 v{vL16}, {srd(SA)}, s{sT} offen offset:{k*1024} sc1 lds ;@tag=v0"))
    return d

def local_attention(g):
    q = []
    def e(s): q.extend(L(s))
    def pk(d, a, b): return f"v_cvt_pk_bf16_f32 {d}, {a}, {b}"
    mO, mP, mP0 = HK, HV, R("v", 20)
    qp = []
    for t in range(4):
        for rb in range(4):
            if (t, rb) in g.qdone: continue
            a, b = aq(2*t, rb), aq(2*t+1, rb)
            for r in (a, b): qp += [f"v_pk_mul_f32 {r[0:2]}, {r[0:2]}, s[{t2_}:{t3_}]", f"v_pk_mul_f32 {r[2:4]}, {r[2:4]}, s[{t2_}:{t3_}]"]
            qp += [pk(a[0], a[0], a[1]), pk(a[1], a[2], a[3]), pk(a[2], b[0], b[1]), pk(a[3], b[2], b[3])]
    assert all((0, rb) in g.qdone for rb in range(4))
    def fill(n):
        assert len(qp) >= n
        q.extend(qp[:n]); del qp[:n]
    def Sp(rb): return bt(0, 1, rb)
    def So(rb): return bt(1, 1, rb)
    mx, mc, hin = aq(1, 2), aq(1, 1), aq(1, 0)
    hld = f"buffer_load_dwordx4 {hin}, v{vL16}, {srd(SD)}, s75 offen sc1"
    def part(rbs, f0, mid=None):
        for rb in rbs: e(mfma(So(rb), bt(1, 0, rb), bt(0, 0, rb), mO))
        for rb in rbs: e(mfma(Sp(rb), R("a", 4*rb), bt(0, 0, rb), mP0 if rb == 0 else mP))
        f0()
        for rb in rbs:
            a, b = Sp(rb), So(rb)
            e(f"v_max3_f32 {mx[rb]}, {b[0]}, {b[1]}, {b[2]}\nv_max3_f32 {mx[rb]}, {mx[rb]}, {b[3]}, {a[0]}")
            e(f"v_max3_f32 {mx[rb]}, {mx[rb]}, {a[1]}, {a[2]}\nv_max_f32 {mx[rb]}, {mx[rb]}, {a[3]}")
        for op in ("v_permlane16_swap_b32", "v_permlane32_swap_b32"):
            for rb in rbs: e(f"v_mov_b32 {mc[rb]}, {mx[rb]}")
            fill(1)
            for rb in rbs: e(f"{op} {mc[rb]}, {mx[rb]}")
            for rb in rbs: e(f"v_max_f32 {mx[rb]}, {mx[rb]}, {mc[rb]}")
        for rb in rbs: e(f"v_mul_f32 {mx[rb]}, s{t0_}, {mx[rb]}")
        for rb in rbs:
            a, b = Sp(rb), So(rb)
            for r in (a, b):
                for k in range(4): e(f"v_fma_f32 {r[k]}, {r[k]}, s{t0_}, -{mx[rb]}")
            for r in (a, b):
                for k in range(4): e(f"v_exp_f32 {r[k]}, {r[k]}")
            q.extend([pk(a[0], a[0], a[1]), pk(a[1], a[2], a[3]), pk(a[2], b[0], b[1]), pk(a[3], b[2], b[3])])
            fill(2)
            e(mfma(So(rb), ONES, Sp(rb), 0))
            for db in range(2): e(mfma(bt(db, 0, rb), bt(2, db, rb), Sp(rb), 0))
        if mid: e(mid)
        fill(6)
        for rb in rbs: e(f"v_rcp_f32 {mx[rb]}, {So(rb)[0]}")
        for rb in rbs: e(f"v_mul_f32 {mx[rb]}, {mx[rb]}, v{vG+2*rb+1}")
        for rb in rbs:
            a, b = bt(0, 0, rb), bt(1, 0, rb)
            for r in (a, b):
                for k in range(4): e(f"v_mul_f32 {r[k]}, {r[k]}, {mx[rb]}")
            q.extend([pk(a[0], a[0], a[1]), pk(a[1], a[2], a[3]), pk(a[2], b[0], b[1]), pk(a[3], b[2], b[3])])
            e(f"buffer_store_dwordx4 {a}, v{vL16}, {srd(SD)}, s{sT + (rb>>1)} offen {ST} ;@tag=ob")
    def f0():
        for k in range(8): e(f"v_accvgpr_read_b32 v{vG+k}, a{64+k}")
        e(f"""s_add_u32 s{t0_}, s{sH}, 128
          s_lshl_b32 s{t0_}, s{t0_}, 13
          s_add_u32 s{t0_}, s{t0_}, s{sLH}
          s_add_u32 s{t0_}, s{t0_}, {WS_CTX + 4096}
          s_mul_i32 s{sT}, s{sJ}, {160*8192}
          s_add_u32 s{sT}, s{sT}, s{t0_}
          s_mul_i32 s{sT2}, s{sBHi}, {160*8192}
          s_add_u32 s{sT2}, s{sT2}, s{t0_}
          s_mov_b32 s{t0_}, {f32(BSCALE)}""")
    part((1, 3), f0, hld)
    fill(len(qp) - 44)
    q += g.att_setup
    e(f"""s_mov_b32 s72, 0x4000
          USE {hin}
          L_hchk:
          v_max3_u32 v1, {hin[0]}, {hin[1]}, {hin[2]}
          v_max_u32 v1, v1, {hin[3]}
          v_cmp_eq_u32 vcc, -1, v1
          s_cbranch_vccnz L_hretry
          L_hgo:
          {f"buffer_load_dword a{aDUM}, v13, {srd(SC)}, 0 offen ;@dummy" if OPT.get("wo", "E") == "M" else ""}
          ds_write_b128 v15, {hin}
          s_sub_u32 s{sT}, s{sT}, 4096
          s_sub_u32 s{sT2}, s{sT2}, 4096""")
    g.ool += ["L_hretry:", "s_sub_u32 s72, s72, 1", "s_cbranch_scc1 L_hgo ;@nottaken", hld, "s_waitcnt vmcnt(0)", "s_branch L_hchk"]
    fill(8)
    e("s_waitcnt lgkmcnt(0)\ns_barrier")
    q += g.prevrd((0, 2))
    fill(16)
    part((0, 2), lambda: fill(8))
    assert not qp
    g.emit(q, name="local")

sR5, sKh, sCtx, sWo5, sL5, sCol, sSig, sWt = 82, 83, 84, 85, 86, 87, 79, 80
vG5, vC5 = 12, 14
def p5_ctx(tau, rb, s):
    f, b = (("a", 208), ("v", 152), ("a", 0), ("a", 32))[tau & 3]
    return R(f, b + 8*rb + 4*s)
def p5_lds(tau): return (131072, 32768, 65536, 98304)[tau & 3]
def p5_wdma(tau, rel):
    return [([f"s_add_u32 m0, s{sL5}, {p5_lds(tau) + i*1024}", f"s_add_u32 s{sT}, s{sWo5}, {rel*262144 + i*8192}"],
             f"buffer_load_dwordx4 v{vG5 + (i&1)}, {srd(SB if tau < 4 else SC)}, s{sT} offen lds ;@tag=w5_{tau&3}") for i in range(8)]
def p5_cld(tau, rel):
    o = []
    for s in range(2):
        for rb in range(4):
            o.append(([f"s_add_u32 s{sT2}, s{sCtx}, {rel*32768 + s*8192}"] if rb == 0 else [],
                      f"buffer_load_dwordx4 {p5_ctx(tau, rb, s)}, v{vC5 + (rb>>1)}, {srd(SD)}, s{sT2} offen offset:{(rb&1)*1024} {OPT.get('cpol', 'sc1').replace('+', ' ')}"))
    return o
def p5_setup():
    CI = OPT.get("ci", 0)
    return L(f"""s_and_b32 s{t0_}, s2, 7
          s_lshr_b32 s{t1_}, s2, 3
          s_lshr_b32 s{sKh}, s{t0_}, 2
          s_xor_b32 s{sKh}, s{sKh}, 1
          s_and_b32 s{t2_}, s{t0_}, 1
          s_and_b32 s{t3_}, s{t1_}, 7
          s_lshl3_add_u32 s{sR5}, s{t2_}, s{t3_}
          s_and_b32 s{t2_}, s{t0_}, 2
          s_lshr_b32 s{t3_}, s{t1_}, 3
          s_lshl{2 if CI else 1}_add_u32 s{sCol}, s{t2_}, s{t3_}
          s_lshl_b32 s{sCol}, s{sCol}, {7 if CI else 8}
          s_lshl_b32 s{sL5}, s{sW}, 13
          s_lshl_b32 s{sWo5}, s{sW}, 16
          s_add_u32 s{sWo5}, s{sWo5}, s{sCol}
          s_lshl_b32 s{t0_}, s{sKh}, 20
          s_add_u32 s{sWo5}, s{sWo5}, s{t0_}
          s_mul_i32 s{sCtx}, s{sR5}, {160*8192}
          s_and_b32 s{t0_}, s{sW}, 1
          s_lshl_b32 s{t0_}, s{t0_}, 14
          s_add_u32 s{sCtx}, s{sCtx}, s{t0_}
          s_lshl_b32 s{t0_}, s{sKh}, 17
          s_add_u32 s{sCtx}, s{sCtx}, s{t0_}
          s_add_u32 s{sCtx}, s{sCtx}, {WS_CTX + 128*8192}
          s_sub_u32 s{t0_}, 15, s{sR5}
          s_min_u32 s{t0_}, s{t0_}, s{sR5}
          s_lshl1_add_u32 s{t0_}, s{t0_}, s{sKh}
          s_lshl_b32 s{sWt}, s{t0_}, 8
          s_add_u32 s{sWt}, s{sWt}, {32*256}
          s_lshl_b32 s{t0_}, s{sW}, 11
          v_lshrrev_b32 v{vC5}, 4, v0
          v_bfe_u32 v{vG5}, v0, 1, 3
          v_xor_b32 v{vG5}, v{vG5}, v{vC5}
          v_lshlrev_b32 v{vG5}, 5, v{vG5}
          v_and_b32 v{vG5+1}, 128, v{vG5}
          v_mad_u32_u24 v{vG5}, v{vG5+1}, {3 if CI else 0}, v{vG5}
          v_lshl_add_u32 v{vG5}, v{vC5}, 11, v{vG5}
          v_and_b32 v{vC5}, 1, v0
          v_lshl_add_u32 v{vG5}, v{vC5}, 4, v{vG5}
          v_xor_b32 v{vG5+1}, {512 if CI else 128}, v{vG5}
          v_add_u32 v{vC5}, s{t0_}, v{vL16}
          v_xor_b32 v{vC5+1}, 0x800, v{vC5}""")

def attention(g):
    p = g.p
    RA = 8
    vDK, vDV, vNI, vBad = 2, 3, 17, 1
    sSrc, sM0, sCnt, sFB, sLX, sCb = 70, 71, 72, 73, 76, 74
    def Q(qb, t): return R("v", vQ + 16*qb + 4*t)
    def S_(kb, qb): return R("v", 88 + 16*qb + 4*kb)
    def Pp(b, u, qb): return R("v", 152 + 32*(qb >> 1) + 16*b + 8*(qb & 1) + 4*u)
    def NM(qb): return R("v", 216 + 4*qb)
    def O(db, qb): return R("a", 32*qb + 4*db)
    def Lr(qb): return R("a", 128 + 4*qb)
    def F(f): return R("a", 144 + 4*(f & 15))
    mx, mc, mt, TMP = 20, 248, 252, (232, 240)
    lab = {k: "L_" + k for k in ("F1", "D", "DD", "T", "T1", "S", "SD", "TAIL")}
    def rdK(f, i): return f"ds_read_b128 {F(f)}, v{vDK} offset:{i*16384 + f*1024}"
    def rdV(f, i): return f"ds_read_b128 {F(f)}, v{vDV} offset:{i*16384 + (f & 1)*8192 + (f >> 1)*1024}"
    def dma(k, tag):
        sal = []
        if k == 0: sal = [f"s_mov_b32 m0, s{sM0}"]
        if k == 4: sal = [f"s_add_u32 m0, s{sM0}, 4096", f"s_add_u32 s{sT}, s{sSrc}, 4096"]
        return sal, f"buffer_load_dwordx4 v{vL16}, {srd(SA)}, s{sSrc if k < 4 else sT} offen offset:{(k&3)*1024} sc1 lds ;@tag={tag}"
    def act(st, i, base):
        if st == "full" or (st == "diag" and i == 0): return [base, base + 1]
        if st == "diag": return [base + 1]
        return []
    def acts(sts, i): return act(sts[0], i, 0) + act(sts[1], i, 2)
    def masked(sts, i):
        for b, st in enumerate(sts):
            if st == "diag": return 2*b + i
        return None
    def epi_head(qb):
        return [f"v_accvgpr_read_b32 v{mx+qb}, {Lr(qb)[0]}", f"v_max_f32 v{vBad}, v{vBad}, v{mx+qb}", f"v_rcp_f32 v{mx+qb}, v{mx+qb}"]
    def epi_frag(qb, t, pkm=False):
        o = []; tmp = R("v", TMP[t & 1], 8)
        for r in range(8): o.append(f"v_accvgpr_read_b32 {tmp[r]}, {O(2*t + (r >> 2), qb)[r & 3]}")
        if t == 0: o.append(f"v_mul_f32 v{mx+qb}, v{mx+qb}, v{vG+2*qb}")
        if pkm:
            sel = "op_sel_hi:[1,0]" if qb % 2 == 0 else "op_sel:[0,1]"
            for r in range(4): o.append(f"v_pk_mul_f32 {tmp[2*r:2*r+2]}, {tmp[2*r:2*r+2]}, v[{mx+(qb&2)}:{mx+(qb&2)+1}] {sel}")
        else:
            for r in range(8): o.append(f"v_mul_f32 {tmp[r]}, {tmp[r]}, v{mx+qb}")
        for r in range(4): o.append(f"v_cvt_pk_bf16_f32 {tmp[r]}, {tmp[2*r]}, {tmp[2*r+1]}")
        o.append(f"s_add_u32 s77, s{sCb + (qb>>1)}, {t*8192 + (qb&1)*4096}")
        o.append(f"buffer_store_dwordx4 {tmp[0:4]}, v{vL16}, {srd(SD)}, s77 offen {ST} ;@tag=ctx")
        return o
    def xmax():
        o = []
        for op in ("v_permlane16_swap_b32", "v_permlane32_swap_b32"):
            o += [f"v_mov_b32 v{mc+qb}, v{mx+qb}" for qb in range(4)]
            o += [f"{op} v{mc+qb}, v{mx+qb}" for qb in range(4)]
            o += [f"v_max_f32 v{mx+qb}, v{mx+qb}, v{mc+qb}" for qb in range(4)]
        return o

    def group(cur, prev, first=False, lastg=False, hook=None, name=None, extra=None):
        mf = []; rs = []
        for i in range(2):
            qk = acts(cur, i); pv = acts(cur, 0) if i == 1 else acts(prev, 1); mq = masked(cur, i)
            r = dict(g0=len(mf), qk=qk, pv=pv, mq=mq, tiles=[], fu=[None]*32, lu=[None]*32)
            k = 0
            for kb in range(4):
                qs = [qk[x] for x in snake(len(qk), kb)]
                if mq is not None and kb == 0: qs = [x for x in qs if x != mq] + [mq]
                for qb in qs:
                    st = len(mf)
                    for q_, t in enumerate(snake(4, k)):
                        c = None
                        if q_ == 0 and qb != mq: c = 0 if (first and i == 0 and kb == 0) else NM(qb)
                        f = 4*kb + t
                        if r["fu"][f] is None: r["fu"][f] = len(mf)
                        r["lu"][f] = len(mf)
                        mf.append(mfma(S_(kb, qb), F(f), Q(qb, t), c))
                    k += 1
                    r["tiles"].append((kb, qb, st, len(mf) - 1))
            r["pv0"] = len(mf); k = 0; r["od"] = {}
            for qb in pv:
                for u in range(2): mf.append(mfma(Lr(qb), ONES, Pp(i ^ 1, u, qb), 0 if (first and u == 0) else None))
                r["od"][("l", qb)] = len(mf) - 1
            for db in range(8):
                for qb in [pv[x] for x in snake(len(pv), db)]:
                    for q_, u in enumerate(snake(2, k)):
                        f = 16 + 2*db + u
                        if r["fu"][f] is None: r["fu"][f] = len(mf)
                        r["lu"][f] = len(mf)
                        mf.append(mfma(O(db, qb), F(f), Pp(i ^ 1, u, qb), 0 if (first and q_ == 0) else None))
                    k += 1; r["od"][(db, qb)] = len(mf) - 1
            r["end"] = len(mf); rs.append(r)
        N = len(mf); S = Sched(mf)
        head = []
        for i, r in enumerate(rs):
            g0, n = r["g0"], r["end"] - r["g0"]; nq, npv = len(r["qk"]), len(r["pv"])
            single = (nq, npv) == (2, 2)
            knext = not (lastg and i == 1)
            if single:
                dg = [0, 0, 1, 3, 3, 4, 6, 6, 12, 14, 16, 18, 22, 24, 24, 26, 30, 32, 32, 34, 38, 40, 42, 46, 50, 52, 54, 58, 60, 62, 66, 67]
                mg = [2, 5, 20, 28, 36, 44, None, 56, 64]; bg = 48
                eg = [7, 8, 9, 10, 11] + [13 + 2*x for x in range(27)]
                cg = [12, 14, 16] + [4*x + 6 for x in range(3, 16)]
            else:
                bg = n - max(int(n * 0.27), 12)
                if npv == 0: bg = n - 18
                dg = None
                mg = [2 + (q_ * (bg - 4)) // 6 for q_ in range(6)] + [None] + [bg + 4, bg + 4 + (n - bg - 4) // 2]
            for d in range(32):
                f = d + RA
                if d == 32 - RA:
                    wt = ("kvB" if i == 0 else "kvA") + (",v0,ob" if first else "")
                    S.add("X", [f"WAITVM {wt}", "s_barrier"], g0 + bg, g0 + bg, chain="rd")
                if f < 16:
                    txt = rdK(f, i); fu = r["fu"][f]; free = g0
                elif f < 32:
                    if npv == 0: continue
                    txt = rdV(f - 16, i); fu = r["fu"][f]; free = r["lu"][f - 16]
                else:
                    f -= 32
                    if knext: txt = rdK(f, i ^ 1)
                    else: txt = rdV(f, 0)
                    fu = r["end"] + 4 + f; free = r["lu"][16 + f] if npv else r["lu"][f]
                if dg: lo = hi = g0 + dg[d]; assert lo >= free and lo <= fu - 6, (d, lo, free, fu)
                else:
                    if d < 32 - RA: hi = min(fu - 8, g0 + bg - 1); lo = min(max(free, g0 + (d * bg) // 24 - 6), hi)
                    else: hi = min(r["end"] - 1, fu - 10 + (f >> 2) * 4); lo = min(max(free, g0 + bg + 1), hi)
                    hi = max(hi, free); lo = max(lo, free)
                it = S.add("D", txt, lo, hi, chain="rd"); it["dd"] = first or lastg
                if not dg: it["early"] = free if d < 32 - RA else lo
            tA, tB = ("kvA", "kvB") if i == 0 else ("kvB", "kvA")
            for q_, gq in enumerate(mg):
                if gq is None: continue
                k = q_ + 2 if q_ < 6 else q_ - 7
                if lastg and (i == 1 or q_ > 6): continue
                sal, dd = dma(k, tA if q_ < 6 else tB)
                if k == 0: sal = [f"s_xor_b32 s{sM0}, s{sM0}, {16384 if i == 0 else 16384 + 32768}", f"s_add_u32 s{sSrc}, s{sSrc}, 32768"] + sal
                if single:
                    sg_ = {0: (45, 49, 53), 4: (9, 13)}.get(k, ())
                    for x, s_ in zip(sg_, sal): S.add("S", s_, g0 + x, g0 + x, chain="m")
                    S.add("M", dd, g0 + gq, g0 + gq, chain="m")
                else:
                    S.add("M", dd, g0 + gq, min(g0 + gq + 3, (g0 + bg - 1) if q_ < 6 else r["end"] - 1), chain="m", pre=sal, sep=3)
                    if extra and extra[0] == i and k in (3, 7):
                        for sal2, d2 in extra[1][(k >> 2)*4:(k >> 2)*4 + 4]: S.add("M", d2, g0 + gq, chain="m", pre=sal2, sep=3)
            if i == 1:
                lastK = g0 + (dg[15 - RA] if dg else r["fu"][15] - g0 - 8)
                S.add("A", f"v_xor_b32 v{vDK}, 0x8000, v{vDK}", max(lastK + 1, g0), g0 + bg - 1)
                if knext: S.add("A", f"v_xor_b32 v{vDV}, 0x8000, v{vDV}", g0 + bg + 1, N - 1)
                else: S.chains["rd"][[x["kind"] for x in S.chains["rd"]].index("X", len(S.chains["rd"]) - RA - 1)]["text"].append(f"v_xor_b32 v{vDV}, 0x8000, v{vDV}")
            nt = len(r["tiles"]); e = 0
            nxt = {(kb, qb): st for kb, qb, st, _ in rs[1]["tiles"]} if i == 0 else {}
            span0 = g0 + 8; span1 = r["end"] - 2
            if first and i == 0: span0 = g0 + 4*nq; span1 = r["end"] + 40
            if first and i == 1: span0 = g0 + 40
            for x, (kb, qb, st, en) in enumerate(r["tiles"]):
                s = S_(kb, qb); ch = ("sm", kb, qb); pdst = Pp(i, kb >> 1, qb)
                lim = nxt[(kb, qb)] - (7 if rs[1]["mq"] == qb else 1) if (kb, qb) in nxt else N - 1
                if not first: lim = min(lim, r["end"] - 1)
                if i == 0 and qb in rs[1]["pv"]: lim = min(lim, rs[1]["pv0"] - 3)
                if qb == r["mq"]:
                    src = "0" if (first and i == 0 and kb == 0) else str(NM(qb)[0])
                    for r_ in range(4):
                        c = f"v_cndmask_b32 {s[r_]}, {src}, v{vNI}, {msk(4*kb + r_)}"
                        if st - 3 < 0: head.append(c)
                        else: S.add("A", c, (g0 + 4*nq) if (first and i == 0 and kb > 0) else (0 if i == 0 else max(g0 - 20, 0)), st - 3, chain=ch)
                lo = en + 7
                if first and i == 0 and kb == 0:
                    lo = g0 + 4*nq
                    for r_ in range(4): S.add("A", f"v_add_f32 {s[r_]}, {s[r_]}, {NM(qb)[0]}", lo, lim - 4, chain=ch)
                for r_ in range(4):
                    pace_ = span0 + ((e + 1) * (span1 - span0)) // (4 * nt)
                    elo, ehi, clo, chi = min(lo, lim - 1), min(max(pace_, lo), lim - 1), min(lo, lim), min(lim, max(pace_, lo) + 8)
                    if single: elo = ehi = g0 + eg[e]; clo = chi = g0 + cg[e >> 1]
                    e += 1
                    S.add("E", f"v_exp_f32 {s[r_]}, {s[r_]}", elo, ehi, chain=ch)
                    if r_ & 1:
                        it = S.add("A", f"v_cvt_pk_bf16_f32 {pdst[2*(kb & 1) + (r_ >> 1)]}, {s[r_-1]}, {s[r_]}", clo, chi, chain=("cv", i, kb, qb, r_), sep=1)
                        it["after"] = S.chains[ch][-1]; it["soft"] = True
                        if r_ == 3: r.setdefault("lastcv", {})[(kb, qb)] = [it, S.chains[("cv", i, kb, qb, 1)][0]]
            if first and i == 0:
                blk = ["s_nop 1"]
                for qb in [x[1] for x in r["tiles"][:4]]:
                    a = S_(0, qb); blk += [f"v_max3_f32 v{mx+qb}, {a[0]}, {a[1]}, {a[2]}", f"v_max_f32 v{mx+qb}, v{mx+qb}, {a[3]}"]
                blk += xmax() + [f"s_cmp_eq_u32 s{sFB}, 0", "s_cselect_b64 vcc, 0, -1"]
                blk += [f"v_cndmask_b32 v{mx+qb}, v{mx+qb}, v{mt+qb}, vcc" for qb in range(4)]
                for qb in (3, 2, 1, 0): blk += [f"v_sub_f32 {NM(qb)[r_]}, 0, v{mx+qb}" for r_ in range(4)]
                S.add("X", blk, g0 + 4*nq - 1, g0 + 4*nq - 1)
        if rs[1]["mq"] is not None:
            for kb in range(4):
                key = (kb, rs[1]["mq"]); its = S.chains[("sm",) + key]
                k0 = [x for x in its if "cndmask" in x["text"][0]][-4]
                k0["after"] = rs[0]["lastcv"][key]
        if hook: hook(S, rs)
        return head + (["s_nop 0"] if head else []) + S.run(name)

    FULL2, LD, TR, TD, NONE = ("full", "full"), ("diag", "full"), ("off", "full"), ("off", "diag"), ("off", "off")
    def add_cpf(S, lo, hi, exprs):
        if OPT.get("nocpf"): return
        for e_ in exprs:
            pre, d = cpf(e_); S.add("M", d, lo, hi, chain="cpf", pre=pre, sep=3 if lo >= 0 else 0)
    def hook_first(S, rs):
        lo = rs[1]["g0"] + 40; N = rs[1]["end"]
        pre, d = signal(SF, f"s{t1_}", 0, "ob")
        for c in [pre[0], pre[1].replace("v1,", "v19,")] + L(f"""s_lshr_b32 s{t1_}, s{sH}, 4
              s_lshl1_add_u32 s{t1_}, s{sJ}, s{t1_}
              s_lshl_b32 s{sSig}, s{t1_}, 8
              s_add_u32 s{sSig}, s{sSig}, {32*256}
              s_lshl_b32 s{t1_}, s{sFB}, 16
              s_xor_b32 s{t2_}, s{sWt}, 256
              s_add_u32 s{t2_}, s{t2_}, s{t1_}
              s_add_u32 s{t1_}, s{t1_}, s{sSig}"""): S.add(kind(c), c, lo, chain="sig", sep=1)
        d = d.replace("v1,", "v19,"); ol = one_lane(d); ol.insert(2, d.replace(f"s{t1_} offen", f"s{t2_} offen"))
        S.add("X", ol, lo, N - 1, chain="sig", sep=1)
        if rs[1]["mq"] is None: add_cpf(S, lo, N - 1, [f"{lab['D']}-L_pc+{4096*k}" for k in range(3)])
        else: add_cpf(S, lo, N - 1, [f"{lab['T']}-L_pc+{4096*k}" for k in range(2)])
    def add_epi(S, r, qb, ts, hi, head=False):
        def put(cs_, lo):
            for c in cs_: S.add("M" if c.startswith("buffer") else kind(c), c, min(lo, hi), hi, chain="epi")
        if head: put(epi_head(qb), r["od"][("l", qb)] + 8)
        for t in ts: put(epi_frag(qb, t), r["od"][(2*t + 1, qb)] + 8 if r else 8)
    def hook_dd(S, rs):
        if OPT.get("wo", "E") == "D" and not OPT.get("nopf"):
            S.add("A", "v_lshlrev_b32 v18, 5, v0", 0, 8, chain="wo")
            for c in (f"s_lshl2_add_u32 s81, s2, s{sW}", "s_sub_u32 s81, s81, 128", "s_lshl_b32 s81, s81, 11"): S.add("S", c, 0, 10, chain="wo")
            for k in range(5):
                x = 12 + k * OPT.get("wos", 40)
                S.add("M", f"buffer_load_dword a{aDUM}, v18, {srd(SC)}, s81 offen ;@dummy", x, x + 10, chain="wo", pre=[f"s_add_u32 s81, s81, {896*2048}"] if k else [])
        add_cpf(S, 2, rs[1]["end"] - 1, [f"{lab['T']}-L_pc", f"{lab['T']}-L_pc+4096", f"{lab['T1']}-L_pc", f"{lab['T1']}-L_pc+4096"])
    def hook_e0(S, rs): add_epi(S, rs[1], 0, (0, 1, 2), rs[1]["end"], True)
    def hook_t(S, rs):
        add_epi(S, None, 0, (3,), rs[0]["pv0"] + 10); add_epi(S, rs[0], 1, (0, 1, 2, 3), rs[1]["g0"] + 10, True)
    def hook_last(S, rs):
        g1 = rs[1]["g0"]; N = rs[1]["end"]
        S.add("M", f"buffer_load_dword v19, off, {srd(SF)}, s{sWt} sc1", -1, -1, chain="p5")
        S.add("X", g.spin(19, SF, f"s{sWt}", 0, 32), g1 - 16, g1 - 16, chain="p5")
        for k, (sal, d) in enumerate(p5_cld(0, 0) + p5_cld(1, 1)): S.add("M", d, g1 - 14 if k < 8 else g1, N - 1, chain="p5", pre=sal, sep=2)
        add_cpf(S, -1, -1, [f"{lab['TAIL']}-L_pc+{4096*k}" for k in range(2)])
        add_epi(S, rs[1], 2, (0,), N, True)
    def both(*hs):
        def h(S, rs):
            for x in hs: x(S, rs)
        return h
    def first_group(cur, name, hook, extra=None):
        seq = [rdK(f, 0) for f in range(RA)]
        for k in range(2):
            sal, d = dma(k, "kvA"); seq += sal + (["s_nop 0"] if k == 0 else []) + [d]
        return seq + group(cur, NONE, first=True, hook=hook, name=name, extra=extra)

    START = p.new("attstart")
    q = [c for c in p5_setup()[-13:]] + [f"v_mov_b32 v{vNI}, 0xff800000"]
    q += [START + ":"] + L(f"""v_mov_b32 v{vDK}, v{vL16}
          v_add_u32 v{vDV}, 0x10000, v{vL16}
          v_mov_b32 v{vBad}, 0
          s_and_b32 s{t0_}, s{sW}, 1
          s_lshr_b32 s{t1_}, s{sW}, 1
          s_lshl_b32 s{sM0}, s{t0_}, 13
          s_lshl_b32 s{t2_}, s{t1_}, 16
          s_add_u32 s{sM0}, s{sM0}, s{t2_}
          s_add_u32 s{sM0}, s{sM0}, 32768
          s_lshl_b32 s{sSrc}, s{t0_}, 14
          s_mul_i32 s{t1_}, s{t1_}, 24576
          s_sub_u32 s{sSrc}, s{sSrc}, s{t1_}
          s_add_u32 s{sSrc}, s{sSrc}, 65536
          WAITVM k0 L
          s_barrier""") + stamp(6)
    g.emit(q)
    st0 = (list(g.lg), list(g.vm))
    def setst(s): g.lg, g.vm = list(s[0]), list(s[1])
    def getst(): return (list(g.lg), list(g.vm))
    cs = ([([("a", 144 + 4*f + r) for r in range(4)], 0) for f in range(RA)], [("kvB", [])] * 8 + [("kvA", [])] * 2)
    def chk():
        a = [r for r, _ in g.lg]; b = [r for r, _ in cs[0]]
        assert a == b[len(b) - len(a):], a
    EG = 6
    p(f"s_cmp_eq_u32 s{sJ}, 0\ns_cbranch_scc1 {lab['F1']}")
    g.emit(first_group(FULL2, "F0", hook_first), EG); chk()
    g.emit(stamp(12))
    p(f"s_sub_u32 s{sCnt}, s{sJ}, 1\ns_cmp_eq_u32 s{sCnt}, 0\ns_cbranch_scc1 {lab['DD']}")
    def hook_cnt(S, rs):
        N = rs[1]["end"]
        S.add("S", f"s_sub_u32 s{sCnt}, s{sCnt}, 1", N - 11, N - 11); S.add("S", f"s_cmp_lg_u32 s{sCnt}, 0", N - 7, N - 7)
    p(".p2align 3"); p.label(lab["D"]); setst(cs)
    g.emit(group(FULL2, FULL2, hook=hook_cnt, name="D"), EG); chk()
    p(f"s_cbranch_scc1 {lab['D']}")
    p.label(lab["DD"]); setst(cs)
    g.emit(stamp(13) + group(LD, FULL2, hook=both(hook_dd, hook_e0), name="DD", extra=(0, p5_wdma(0, 0))), EG); chk()
    p(f"s_cmp_eq_u32 s{sJ}, 7\ns_cbranch_scc1 {lab['T1']}")
    p.label(lab["T"]); setst(cs)
    g.emit(stamp(14) + group(TR, LD, hook=hook_t, name="T") + stamp(15), EG); chk()
    p(f"s_lshl_b32 s{sCnt}, s{sJ}, 1\ns_sub_u32 s{sCnt}, 13, s{sCnt}")
    p(".p2align 3"); p.label(lab["S"]); setst(cs)
    g.emit(group(TR, TR, hook=hook_cnt, name="S"), EG); chk()
    p(f"s_cbranch_scc1 {lab['S']}")
    setst(cs)
    g.emit(stamp(16) + group(TD, TR, lastg=True, hook=hook_last, name="SD"), EG, name="SD"); chk()
    ts = (cs[0], list(g.vm)); setst(ts)
    p.label(lab["TAIL"])
    mf = [mfma(Lr(3), ONES, Pp(1, u, 3)) for u in range(2)]
    for db in range(8): mf += [mfma(O(db, 3), F(2*db + u), Pp(1, u, 3)) for u in snake(2, db)]
    S = Sched(mf)
    for f in range(8, 16): S.add("D", rdV(f, 0), -1 if f < 12 else 0, -1 if f < 12 else 1, chain="rd")["dd"] = True
    for k, (sal, d) in enumerate(p5_wdma(1, 1)): S.add("M", d, 3 + 2*k, 3 + 2*k, chain="p5", pre=sal)
    e1 = epi_frag(2, 1)
    for c in e1[:-2]: S.add("A", c, 2, chain="epi")
    seq = stamp(17) + S.run("tail") + e1[-2:] + stamp(7)
    seq += epi_head(3) + L(f"""s_mov_b32 s{t0_}, {f32(LTHR if not OPT.get('forcefb') else 0.0)}
          v_cmp_le_f32 vcc, s{t0_}, v{vBad}
          s_lshl_b32 s{t1_}, s{sW}, 2
          s_cmp_lg_u64 vcc, 0
          s_cselect_b32 s{t0_}, 1, 0
          v_mov_b32 v248, s{t1_}
          v_mov_b32 v249, s{t0_}
          ds_write_b32 v248, v249""") + epi_frag(2, 2, True) + epi_frag(2, 3, True)
    for t in range(4): seq += epi_frag(3, t, True)
    FB = p.new("fallback")
    seq += L(f"""v_mov_b32 v248, 0
          s_waitcnt lgkmcnt(0)
          s_barrier
          ds_read_b128 v[248:251], v248""") + stamp(8)
    g.emit(seq)
    g.fbcheck = L(f"""v_or3_b32 v248, v248, v249, v250
          v_or_b32 v248, v248, v251
          s_nop 0
          v_readfirstlane_b32 s{t0_}, v248 ;@val=0
          s_nop 0
          s_cmp_gt_u32 s{t0_}, s{sFB}
          s_cbranch_scc1 {FB} ;@br=fb""")
    es = getst()
    main = g.p; g.p = P(); g.p.uid = main.uid + 1000
    g.p.label(lab["F1"]); setst(st0)
    g.emit(first_group(LD, "F1", both(hook_first, hook_e0), (1, p5_wdma(0, 0))) + stamp(12) + stamp(13), EG); chk()
    g.p(f"s_branch {lab['T']}")
    g.p.label(lab["T1"]); setst(cs)
    g.emit(stamp(14) + stamp(15) + stamp(16) + group(TD, LD, lastg=True, hook=both(hook_t, hook_last), name="T1"), EG); chk()
    def sig_(vm): return [(t, tuple(r)) for t, r in vm if (t and t.startswith("w5")) or r]
    assert sig_(g.vm) == sig_(ts[1])[len(sig_(ts[1])) - len(sig_(g.vm)):], (sig_(g.vm), sig_(ts[1]))
    g.p(f"s_branch {lab['TAIL']}")
    g.p.label(FB); setst(([], []))
    sU = 81
    q = L(f"""s_waitcnt vmcnt(0) lgkmcnt(0)
          s_barrier
          s_mov_b32 s{sFB}, 1
          s_mov_b32 s{sU}, 0
          v_and_b32 v232, 15, v0
          v_lshrrev_b32 v233, 4, v0
          v_lshlrev_b32 v233, 2, v233
          v_sub_u32 v232, v232, v233
          s_lshl_b32 s{t0_}, s{sW}, 4
          v_add_u32 v232, s{t0_}, v232
          s_lshl_b32 s{t0_}, s{sBHi}, 7
          v_add_u32 v234, s{t0_}, v232
          s_lshl_b32 s{t0_}, s{sJ}, 7
          v_add_u32 v232, s{t0_}, v232
          v_add_u32 v233, 64, v232
          v_add_u32 v235, 64, v234""")
    for sal, d in att_first_dmas(sLX): q += sal + ["s_nop 0", d]
    for qb in range(4): q.append(f"v_mov_b32 v{mx+qb}, 0xff800000")
    FL = g.p.new("fbl"); q.append(FL + ":")
    for f in range(8):
        if f == 4: q.append(f"s_add_u32 s{sT}, s{sU}, 4096")
        q.append(f"buffer_load_dwordx4 {F(f)}, v{vL16}, {srd(SA)}, s{sU if f < 4 else sT} offen offset:{(f&3)*1024} sc1")
    for qb in range(4):
        for kb in range(2):
            for r in range(4):
                c = S_(kb, qb)[r]
                q += [f"v_subrev_u32 {c}, {16*kb + r}, v{232+qb}", f"v_ashrrev_i32 {c}, 31, {c}", f"v_and_b32 {c}, 0xff800000, {c}"]
        q.append(f"v_subrev_u32 v{232+qb}, 32, v{232+qb}")
    q.append("s_waitcnt vmcnt(0)")
    for f in range(8):
        for qb in range(4): q.append(mfma(S_(f >> 2, qb), F(f), Q(qb, f & 3)))
    q.append("s_nop 7")
    for qb in range(4):
        for kb in range(2):
            a = S_(kb, qb)
            q += [f"v_max3_f32 v{mx+qb}, v{mx+qb}, {a[0]}, {a[1]}", f"v_max3_f32 v{mx+qb}, v{mx+qb}, {a[2]}, {a[3]}"]
    q += L(f"s_add_u32 s{sU}, s{sU}, 16384\ns_cmp_lt_u32 s{sU}, s{SA+2}\ns_cbranch_scc1 {FL}")
    q += xmax()
    q += [f"v_mov_b32 v{mt+qb}, v{mx+qb}" for qb in range(4)]
    q.append(f"s_branch {START}")
    g.emit(q)
    g.ool += g.p.l; main.uid = g.p.uid + 1000; g.p = main
    setst(es)

def phase5(g):
    p = g.p
    vD = 184
    sCnt = 70
    CO = [4, 5, 6, 7, 0, 1, 2, 3]
    def acc(rb, cb): return R("v", 24 + 32*rb + 4*cb)
    def fw(j, s): return R("a", 64 + 8*j + 4*s)
    def wread(tau, j, slot=None):
        base = p5_lds(tau); win = 0 if base >= 98304 else 1
        off = base - (98304 if win == 0 else 32768)
        return [f"ds_read_b64_tr_b16 {fw(j if slot is None else slot, s)[2*i:2*i+2]}, v{vD + 8*win + CO[j]} offset:{off + s*8192 + i*4096}" for s in range(2) for i in range(2)]
    q = L(f"""v_lshrrev_b32 v200, 4, v0
          v_bfe_u32 v201, v0, 2, 2
          v_lshl_add_u32 v202, v200, 2, v201
          v_and_b32 v203, 3, v0
          v_lshlrev_b32 v203, 3, v203
          v_lshl_add_u32 v203, v202, 8, v203
          s_and_b32 s{t0_}, s{sW}, 1
          s_lshl_b32 s{t0_}, s{t0_}, 14
          s_add_u32 s{t0_}, s{t0_}, 98304
          v_add_u32 v203, s{t0_}, v203
          v_and_b32 v202, 7, v202
          s_lshl_b32 s{t0_}, s{sKh}, 2
          v_xor_b32 v202, s{t0_}, v202""")
    for n in CO: q += [f"v_xor_b32 v200, {n}, v202", f"v_lshl_add_u32 v{vD+n}, v200, 5, v203"]
    q += g.fbcheck
    NPRE = 3
    for j in range(NPRE): q += wread(0, j)
    for n in range(8): q += [f"v_xor_b32 v{vD+8+n}, 0x10000, v{vD+n}"]
    q += [f"s_add_u32 s71, s{sSig}, 4096", f"s_add_u32 s72, s{sWt}, 4096"]
    q += L(f"""s_lshr_b32 s74, s2, 3
          s_lshl2_add_u32 s74, s74, s{sW}
          s_lshl_b32 s74, s74, 11
          s_and_b32 s{t0_}, s{sCol}, 1024
          s_add_u32 s74, s74, s{t0_}
          s_lshl_b32 s{t0_}, s{sKh}, 22
          s_add_u32 s74, s74, s{t0_}""")
    g.emit(q)
    BP = 40
    xs = L(f"""s_xor_b32 s{t0_}, s2, 4
          s_lshl2_add_u32 s{t0_}, s{t0_}, s{sW}
          s_lshl_b32 s73, s{t0_}, 12
          s_add_u32 s73, s73, {WS_XCH}
          s_lshl2_add_u32 s{t0_}, s2, s{sW}
          s_lshl_b32 s75, s{t0_}, 12
          s_add_u32 s75, s75, {WS_XCH}
          s_lshl_b32 s77, s{sR5}, 18
          s_lshl_b32 s{t0_}, s{sW}, 16
          s_add_u32 s77, s77, s{t0_}
          s_add_u32 s77, s77, s{sCol}
          s_lshl_b32 s{t0_}, s{sKh}, {9 if OPT.get("ci", 0) else 7}
          s_add_u32 s77, s77, s{t0_}
          v_lshlrev_b32 v1, 24, v0
          v_and_b32 v8, 7, v0
          v_lshlrev_b32 v8, 11, v8
          v_bfe_u32 v10, v0, 3, 1
          v_lshl_add_u32 v8, v10, 6, v8
          v_bfe_u32 v10, v0, 4, 1
          v_lshl_add_u32 v8, v10, 5, v8
          v_lshrrev_b32 v10, 5, v0
          v_lshl_add_u32 v8, v10, 4, v8
          v_add_u32 v2, s{sL5}, v{vL16}
          v_xor_b32 v3, 0x2000, v2""")
    def tmp(rb, c): return R("v", 200 + 16*rb + 4*c)
    def body(t0, kd):
        prs = [(st, j) for st in range(4) for j in range(8)]
        if kd == "last": prs = prs[:16] + [(2, j) for j in range(4)] + [(3, j) for j in range(4)] + [(2, j) for j in range(4, 8)] + [(3, j) for j in range(4, 8)]
        mf = []; dn = {}; k = 0
        for x, (st, j) in enumerate(prs):
            for rb in snake(4, j + 1):
                for q_, s in enumerate(snake(2, k)):
                    c0 = 0 if (kd == "first" and st == 0 and q_ == 0) else None
                    mf.append(mfma(acc(rb, CO[j]), fw(x & 7, s), p5_ctx(st, rb, s), c0))
                k += 1; dn[(rb, CO[j])] = len(mf) - 1
        S = Sched(mf)
        def pace(items, lo, hi):
            for k, (sal, d) in enumerate(items):
                x = lo + (k * (hi - lo)) // len(items)
                S.add("M", d, x, min(x + 2, 255), chain="ld", pre=sal, sep=2)
        def rel(x): return x if (kd != "first" or x < 4) else x - 4
        for st in range(4):
            tau = t0 + st; g0 = 64 * st; B = g0 + BP
            if kd == "last" and st >= 2:
                for x in range(8*st + (NPRE if st == 2 else 0), 8*st + 8):
                    if x == 20: S.add("X", ["WAITVM w5_3", "s_barrier"], g0 + 6, g0 + 6, chain="t")
                    for r in wread(t0 + prs[x][0], prs[x][1], x & 7): S.add("T", r, max(8*x - 30, 128), 8*x - 8, chain="t")
                continue
            for j in range(NPRE, 8):
                for r in wread(tau, j): S.add("T", r, max(g0 + 8*j - 30, g0), min(g0 + 8*j - 8, B - 1), chain="t")
            S.add("X", [f"WAITVM w5_{(tau+1)&3}" + (",ctx" if (kd == "first" and st == 1) else ""), "s_barrier"], B, B, chain="t")
            for j in range(NPRE):
                for r in wread(tau + 1, j): S.add("T", r, B + 1, min(g0 + 64 + 8*j - 8, g0 + 63), chain="t")
            def batch(x):
                if t0 + x >= 20: return []
                w, c = p5_wdma(t0 + x, rel(x)), p5_cld(t0 + x, rel(x))
                if OPT.get("il5", 0): return [y for pr in zip(w, c) for y in pr]
                return w + c
            NA = 6 if OPT.get("il5", 0) else 5
            swW = L(f"s_mul_i32 s{t0_}, s{sKh}, {3<<20}\ns_add_u32 s{sWo5}, s{sWo5}, s{t0_}")
            if kd == "first":
                if st == 0: pace(batch(2), g0 + 2, B - 1); pace(batch(3)[:NA], B + 3, g0 + 64)
                elif st == 1:
                    pace(batch(3)[NA:], g0 + 2, B - 1)
                    S.add("X", swW, B + 1, B + 1, chain="ld")
                    pace(p5_wdma(4, 0)[:4], B + 5, g0 + 64)
                elif st == 2:
                    pace(p5_wdma(4, 0)[4:], g0 + 2, g0 + 20)
                    S.add("M", f"buffer_load_dword v19, off, {srd(SF)}, s72 sc1", g0 + 24, g0 + 28, chain="ld")
                    pace(p5_wdma(5, 1)[:6], B + 3, g0 + 64)
                else:
                    S.add("X", g.spin(19, SF, "s72", 0, 16) + L(f"s_mul_i32 s{t0_}, s{sKh}, {(64-16)*8192}\ns_add_u32 s{sCtx}, s{sCtx}, s{t0_}\ns_sub_u32 s{sCtx}, s{sCtx}, {128*8192}") + stamp(9), g0, g0, chain="ld")
                    w_, c_ = p5_wdma(5, 1), p5_cld(5, 1)
                    pace(p5_cld(4, 0) + (c_[:6] + [w_[6], c_[6], w_[7], c_[7]] if OPT.get("il5", 0) else w_[6:] + c_), g0 + 2, B - 1)
                    pace(batch(6)[:NA], B + 3, g0 + 64)
            else:
                if batch(st + 2): pace(batch(st + 2)[NA:], g0 + 1, B - 1)
                if batch(st + 3): pace(batch(st + 3)[:NA], B + 3, g0 + 64)
            if OPT.get("p5pf", 0) and kd != "last":
                x = g0 + OPT.get("p5x", 36)
                S.add("M", f"buffer_load_dword a{aDUM}, v{vL16}, {srd(SC)}, s74 offen ;@dummy", x, x + 6, chain="pf")
                S.add("S", f"s_add_u32 s74, s74, 262144", x + 1, x + 10, chain="pf", sep=1)
            if kd == "first" and st == 1:
                pre, d = signal(SF, "s71", 0, "ctx")
                S.add("S", pre[0], B - 12, B - 4, chain="sig"); S.add("A", pre[1], B - 12, B - 1, chain="sig", sep=1)
                S.add("X", one_lane(d), B + 2, B + 2, chain="sig")
        if kd == "loop":
            for k, c in enumerate([f"s_sub_u32 s{sCnt}, s{sCnt}, 1", f"s_add_u32 s{sCtx}, s{sCtx}, {0 if 'c' in OPT.get('x_same', '') else 4*32768}", f"s_add_u32 s{sWo5}, s{sWo5}, {0 if 'w' in OPT.get('x_same', '') else 4*262144}", f"s_cmp_lg_u32 s{sCnt}, 0"]):
                S.add("S", c, 250, 256, chain="ld")
        if kd == "first" and not OPT.get("nocpf"):
            for k in range(3):
                pre, d = cpf(".-L_pc+%d" % (2048 + 4096*k)); S.add("M", d, 128 + 14 + 3*k, 128 + 38, chain="cpf", pre=pre, sep=3)
        if kd == "last":
            for c in xs + mk_srd(SE, sOUT, 4 << 20): S.add(kind(c), c, 108, 165, chain="x")
            for c in range(4):
                for rb in snake(2, c + 1):
                    S.add("M", f"ds_write_b128 v3, {acc(2 + rb, 4 + c)} offset:{rb*4096 + c*1024}", dn[(2 + rb, 4 + c)] + 7, dn[(2 + rb, 4 + c)] + 9, chain="x")
            S.add("X", ["s_waitcnt lgkmcnt(0)", "s_barrier"], 0, 204, chain="x", sep=3)
            for rb in range(2):
                for c in range(4): S.add("D", f"ds_read_b128 {tmp(rb, c)}, v2 offset:{rb*4096 + c*1024}", 0, 205 + 2*rb + (c >> 1), chain="x")["dd"] = True
            x = 210
            for rb in range(2):
                for c2 in range(2):
                    a, b = tmp(rb, 2*c2), tmp(rb, 2*c2 + 1); x += 8
                    for c in (2*c2, 2*c2 + 1):
                        for r in range(4): S.add("A", f"v_add_f32 {tmp(rb, c)[r]}, {tmp(rb, c)[r]}, {acc(rb, 4 + c)[r]}", 210, x - 1, chain="x")
                    for d_, src, r in ((0, a, 0), (1, a, 2), (2, b, 0), (3, b, 2)): S.add("A", f"v_cvt_pk_bf16_f32 {a[d_]}, {src[r]}, {src[r+1]}", 0, x - 1, chain="x")
                    S.add("M", f"buffer_store_dwordx4 {a}, v{vL16}, {srd(SD)}, s73 offen offset:{(2*rb + c2)*1024} {ST}", 0, x, chain="x", sep=1)
            for c in range(3):
                for rb in snake(2, c + 1):
                    S.add("M", f"ds_write_b128 v3, {acc(2 + rb, c)} offset:{32768 + rb*4096 + c*1024}", dn[(2 + rb, c)] + 7, chain="x")
        return S.run("p5" + kd)
    g.emit(body(0, "first"), 8, name="p5first")
    p(stamp(4)); p(f"s_mov_b32 s{sCnt}, 3")
    Lp = p.new("p5"); p(".p2align 3"); p.label(Lp)
    bl = body(4, "loop")
    ent = ([(r, 0) for r, a in g.lg], list(g.vm))
    _, lg2, vm2 = resolve(bl, ent[0], ent[1], 8)
    g.lg, g.vm = [(r, 0) for r, a in lg2], vm2
    assert [r for r, _ in ent[0]] == [r for r, _ in lg2][len(lg2) - len(ent[0]):], (ent[0], lg2)
    g.vm = ent[1]
    g.emit(bl, 8)
    p(f"s_cbranch_scc1 {Lp}")
    g.lg = [(r, 0) for r, a in g.lg]
    g.emit(stamp(3) + body(16, "last") + stamp(10), 8, name="p5last")
    def rx(k): return R("v", 152 + 4*k)
    ldx = [f"buffer_load_dwordx4 {rx(k)}, v{vL16}, {srd(SD)}, s75 offen offset:{k*1024} sc1" for k in range(4)]
    q = ldx + ["s_nop 3"]
    for rb in range(2): q.append(f"ds_write_b128 v3, {acc(2 + rb, 3)} offset:{32768 + rb*4096 + 3*1024}")
    q += L(f"""s_mov_b32 s72, 0x4000
          s_waitcnt lgkmcnt(0)
          s_barrier""")
    for rb in range(2):
        for c in range(4): q.append(f"ds_read_b128 {acc(2 + rb, c)}, v2 offset:{32768 + rb*4096 + c*1024}")
    for rb in range(2):
        for c in range(4):
            for r in range(4): q.append(f"v_add_f32 {acc(rb, c)[r]}, {acc(rb, c)[r]}, {acc(2 + rb, c)[r]}")
    q += ["L_xchk:", "s_waitcnt vmcnt(0)", "v_max3_u32 v9, v152, v153, v154"] + [f"v_max3_u32 v9, v9, v{155+2*k}, v{156+2*k}" for k in range(6)]
    q += L("""v_max_u32 v9, v9, v167
          v_cmp_eq_u32 vcc, -1, v9
          s_cbranch_vccnz L_xretry
          L_xgo:""")
    g.ool += ["L_xretry:", "s_sub_u32 s72, s72, 1", "s_cbranch_scc1 L_xgo ;@nottaken"] + ldx + ["s_branch L_xchk"]
    for rb in range(2):
        for c2 in range(2):
            a, b = acc(rb, 2*c2), acc(rb, 2*c2+1); x = rx(2*rb + c2)
            for r in range(4):
                t_ = (a, b)[r >> 1]; k = 2*(r & 1)
                q += [f"v_lshlrev_b32 v9, 16, {x[r]}", f"v_and_b32 {x[r]}, 0xffff0000, {x[r]}", f"v_add_f32 {t_[k]}, {t_[k]}, v9", f"v_add_f32 {t_[k+1]}, {t_[k+1]}, {x[r]}"]
            q += L(f"""v_cvt_pk_bf16_f32 {a[0]}, {a[0]}, {a[1]}
                  v_cvt_pk_bf16_f32 {a[1]}, {a[2]}, {a[3]}
                  v_cvt_pk_bf16_f32 {a[2]}, {b[0]}, {b[1]}
                  v_cvt_pk_bf16_f32 {a[3]}, {b[2]}, {b[3]}""")
        a, b, t_ = acc(rb, 0), acc(rb, 2), acc(rb, 1)
        q += [f"v_permlane16_swap_b32 {a[0]}, {a[2]}", f"v_permlane16_swap_b32 {a[1]}, {a[3]}", f"v_permlane16_swap_b32 {b[0]}, {b[2]}", f"v_permlane16_swap_b32 {b[1]}, {b[3]}"]
        q += [f"v_mov_b32 {t_[r]}, {a[r]}" for r in range(4)]
        q += [f"v_mov_b32_dpp {a[r]}, {b[r]} row_ror:8 row_mask:0xf bank_mask:0xc" for r in range(4)]
        q += [f"v_mov_b32_dpp {b[r]}, {t_[r]} row_ror:8 row_mask:0xf bank_mask:0x3" for r in range(4)]
        q += [f"buffer_store_dwordx4 {a}, v8, {srd(SE)}, s77 offen {OPT.get('ost', 'sc1')}", "s_add_u32 s77, s77, 16384",
              f"buffer_store_dwordx4 {b}, v8, {srd(SE)}, s77 offen {OPT.get('ost', 'sc1')}", "s_add_u32 s77, s77, 16384"]
    if OPT.get("dbgt"):
        q += L(f"""s_waitcnt vmcnt(0)
            s_memtime s[70:71]
            s_memrealtime s[72:73]
            s_waitcnt lgkmcnt(0)
            s_sub_u32 s70, s70, s96
            s_sub_u32 s72, s72, s98
            v_mov_b32 v2, s70
            v_mov_b32 v3, s72
            s_lshl_b32 s70, s2, 3
            s_add_u32 s70, s70, 8
            s_lshl_b32 s71, s{sW}, 12
            s_add_u32 s70, s70, s71""") + mk_srd(SF, 94, 64) + [f"buffer_store_dwordx2 v[2:3], v1, {srd(SF)}, s70 offen"]
    q += stamp(11) + stamp_flush()
    g.emit(q, name="final")

def build():
    g = G(); p = g.p
    hdr = open("/code/" + NAME + ".s.ref").read()
    p.l += [l for l in hdr.split("\n") if l.startswith(";") and "@launch" not in l]
    p.l.append(f"; @launch grid=(256,1,1) block=(256,1,1) lds={LDS_BYTES}")
    k = NAME + "_kernel"
    p(f'.amdgcn_target "amdgcn-amd-amdhsa--gfx950"\n.text\n.globl {k}\n.p2align 8\n.type {k},@function'); p.label(k)
    gemm12(g); attention(g); phase5(g)
    p.label("L_end"); p("s_endpgm")
    p(g.ool)
    p.label("L_codeend")
    p('.section .rodata,"a"\n.p2align 6')
    p.l += f""".amdhsa_kernel {k}
  .amdhsa_next_free_vgpr 512
  .amdhsa_next_free_sgpr 102
  .amdhsa_accum_offset 256
  .amdhsa_group_segment_fixed_size 0
  .amdhsa_kernarg_size 104
  .amdhsa_user_sgpr_count 2
  .amdhsa_user_sgpr_kernarg_segment_ptr 1
  .amdhsa_system_sgpr_workgroup_id_x 1
.end_amdhsa_kernel""".split("\n")
    return p.text()

if __name__ == "__main__":
    out = sys.argv[1]
    for a in sys.argv[2:]:
        k, _, v = a.partition("=")
        OPT[k] = True if v == "" else (int(v) if v.lstrip("-").isdigit() else v)
    txt = build()
    if OPT.get("al"):
        from align import align
        txt, n_ = align(txt, OPT["al"]); print("widened", n_)
    import subprocess, re, os
    open("_sz.s", "w").write(txt.replace("NCHUNK", "100"))
    subprocess.check_call(["clang", "-x", "assembler", "-target", "amdgcn-amd-amdhsa", "-mcpu=gfx950", "-c", "_sz.s", "-o", "_sz.o"])
    sz = int(re.search(r"\.text\s+PROGBITS\s+\S+\s+\S+\s+(\S+)", subprocess.check_output(["llvm-readelf", "-S", "_sz.o"]).decode()).group(1), 16)
    nch = 0
    print("code bytes", sz, "file", len(txt))
    open(out, "w").write(txt.replace("NCHUNK", str(nch)))
```

```python
import sys, math, struct
from genlib import P, R, mfma
from sched import Sched, resolve

NAME = "gated_mix__compressed_kv_cla__sliding_local_dilated__prompt"
WS_HALO = 58 << 20
WS_KV, WS_CTX, WS_G, WS_CNT, WS_INBOX, WS_XCH, WS_STAMP = 0, 32 << 20, 56 << 20, 57 << 20, (57 << 20) + 65536, 64 << 20, 96 << 20
LDS_BYTES = 160 * 1024
def f32(x): return "0x%08x" % struct.unpack("<I", struct.pack("<f", x))[0]
QSCALE = 128 ** -0.5 * math.log2(math.e)
BSCALE = 32 ** -0.5 * math.log2(math.e)
LTHR = 2.0 ** 60

sX, sC, sWQ, sWUK, sWUV, sWOA, sWQKV, sWOB, sGATE, sOUT, sDBG, sWS = 4, 6, 8, 10, 12, 14, 18, 20, 22, 24, 26, 28
sW, sH, sJ = 30, 31, 3
SA, SB, SC, SD, SE, SF, SG, SH = 32, 36, 40, 44, 48, 52, 56, 60
sT, sT2, sBHi = 64, 65, 16
t0_, t1_, t2_, t3_ = 66, 67, 68, 69
def srd(b): return f"s[{b}:{b+3}]"
OPT = dict(stamps=False)
ST = "sc1" if "x_plain" not in sys.argv else ""

vDX, vDQ, vGX, vGW, vL16, vDH, vDB, vDBH, vGH, vGB = 2, 4, 12, 14, 16, 17, 19, 21, 22, 23
vQ, vG = 24, 4
aONE, aDUM = 251, 252
ONES = R("a", 244)
MSK = [0, 4, 6, 8, 10, 12, 18, 22, 26, 56, 58, 60, 62, 48, 50, 100]
def msk(k): return f"s[{MSK[k]}:{MSK[k]+1}]"
def kind(c): return "S" if c.startswith("s_") else ("E" if c.startswith(("v_exp", "v_rcp")) else "A")

def L(s): return [x.strip() for x in s.strip().split("\n") if x.strip()]
def mk_srd(b, ptr, nbytes, off=None):
    if off is None: o = [f"s_mov_b32 s{b}, s{ptr}", f"s_mov_b32 s{b+1}, s{ptr+1}"]
    else: o = [f"s_add_u32 s{b}, s{ptr}, {off}", f"s_addc_u32 s{b+1}, s{ptr+1}, 0"]
    return o + [f"s_mov_b32 s{b+2}, {nbytes}", f"s_mov_b32 s{b+3}, 0x20000"]

NST = [0]
def stamp(idx):
    if not OPT["stamps"]: return []
    return L(f"""s_waitcnt lgkmcnt(0)
        s_memtime s[92:93]
        s_memrealtime s[94:95]
        v_accvgpr_write_b32 a253, v1
        v_accvgpr_read_b32 v1, a249
        s_waitcnt lgkmcnt(0)
        v_writelane_b32 v1, s92, {2*idx}
        v_writelane_b32 v1, s94, {2*idx+1}
        v_accvgpr_write_b32 a249, v1
        v_accvgpr_read_b32 v1, a253
        s_nop 1""")
def stamp_flush():
    if not OPT["stamps"]: return []
    return L(f"""s_lshl_b32 s96, s2, 2
        s_add_u32 s96, s96, s{sW}
        s_lshl_b32 s96, s96, 8
        s_add_u32 s96, s96, {WS_STAMP}
        v_lshlrev_b32 v1, 2, v0
        buffer_store_dword a249, v1, {srd(SD)}, s96 offen
        s_waitcnt vmcnt(0)""")

class G:
    def __init__(self):
        self.p = P(); self.lg = []; self.vm = []; self.ool = []
    def emit(self, seq, eager=0, name=None):
        if name: self.p.l.append(";@seg " + name)
        out, self.lg, self.vm = resolve(seq, self.lg, self.vm, eager)
        self.p(out)
    def spin(self, vreg, srdb, soff, imm, target):
        st, bk, lp = self.p.new("spin"), self.p.new("spinbk"), self.p.new("spinlp")
        self.ool += L(f"""{st}:
            s_mov_b32 vcc_hi, 0x8000
            {lp}:
            s_sleep 1
            buffer_load_dword v{vreg}, off, {srd(srdb)}, {soff} offset:{imm} sc1
            s_waitcnt vmcnt(0)
            v_readfirstlane_b32 vcc_lo, v{vreg}
            s_sub_u32 vcc_hi, vcc_hi, 1
            s_cbranch_scc1 {bk} ;@nottaken
            s_cmp_lt_u32 vcc_lo, {target}
            s_cbranch_scc1 {lp} ;@nottaken
            s_branch {bk}""")
        return L(f"""v_readfirstlane_b32 vcc_lo, v{vreg}
            s_nop 0
            s_cmp_lt_u32 vcc_lo, {target}
            s_cbranch_scc1 {st}
            {bk}:""")

sLH = 78
def cpf(expr):
    return ([f"s_add_u32 s17, s{sLH}, {expr}"], f"buffer_load_dword a{aDUM}, v{vL16}, s[88:91], s17 offen ;@dummy")
def one_lane(d): return ["s_mov_b64 exec, 1", d, "s_mov_b64 exec, -1"]
def signal(srdb, soff, imm, tags):
    return ([f"s_lshl_b32 s{t0_}, s{sW}, 30", f"v_lshl_add_u32 v1, v0, 24, s{t0_}"],
            f"buffer_atomic_add a{aONE}, v1, {srd(srdb)}, {soff} offen offset:{imm} sc1 ;@sig=wg:{tags}")

def snake(n, k): return list(range(n)) if k % 2 == 0 else list(range(n - 1, -1, -1))

def aq(db, rb): return R("v", (vQ if db % 2 == 0 else 88) + 16 * rb + 4 * (db // 2))
def bt(part, db, rb): return R("v", 152 + 32 * part + 8 * rb + 4 * db)
HK, HV = R("v", 248), R("v", 252)
P2ORD = [10, 11, 12, 13, 8, 9, 0, 1, 2, 3, 4, 5, 6, 7]
def p2tile(cb, rb):
    if cb < 8: return aq(cb, rb)
    if cb < 14: return bt((cb - 8) >> 1, cb & 1, rb)
    return HK if cb == 14 else HV

def gemm12(g):
    p = g.p
    sCo, sWo, sXlo, sXhi, sXh, sBo, sLX, sLW, sKV, sPF = 70, 71, 72, 73, 74, 75, 76, 77, 79, 80
    NR = 6
    def fx(sg, rb, s): return R("a", 32 * (sg & 1) + 8 * rb + 4 * s) if rb < 4 else R("a", 64 + 4 * s)
    def fw(J, s): return R("a", 72 + 8 * (J % NR) + 4 * s)
    def stash(i): return R("a", 144 + 4 * i)
    GA = 144
    def order(sg):
        o = []; k = 0
        for j, cb in enumerate(range(16) if sg < 8 else P2ORD):
            if sg >= 8 and cb >= 14: o.append((j, cb, 4))
            else:
                o += [(j, cb, rb) for rb in snake(4, k)]; k += 1
        return o
    o1, o2 = order(0), order(8)
    pos1 = {(cb, rb): k for k, (j, cb, rb) in enumerate(o1)}
    def treg(k): return p2tile(o2[k][1], o2[k][2]) if k < 56 else (HK, HV)[k - 56] if k < 58 else R("a", 120 + 4 * (k - 58))
    def Jx(sg, j): return 16 * sg + j if sg < 8 else 128 + 14 * (sg - 8) + j
    p("s_cmp_ge_u32 s2, 256\ns_cbranch_scc1 L_end")
    p("s_load_dwordx16 s[4:19], s[0:1], 0\ns_load_dwordx8 s[20:27], s[0:1], 64\ns_load_dwordx2 s[28:29], s[0:1], 96")
    if OPT["stamps"] or OPT.get("dbgt"): p("s_memtime s[96:97]\ns_memrealtime s[98:99]")
    if OPT.get("dbgt"): p("s_load_dwordx2 s[94:95], s[0:1], 88")
    p("s_getpc_b64 s[88:89]"); p.label("L_pc")
    p(f"""v_lshrrev_b32 v1, 6, v0
          s_lshr_b32 s{t1_}, s2, 3
          v_lshl_add_u32 v24, s{t1_}, 2, v1
          s_mov_b32 s90, L_codeend-L_pc
          s_mov_b32 s91, 0x20000
          v_and_b32 v25, 7, v0
          v_lshlrev_b32 v25, 7, v25
          v_lshl_add_u32 v24, v24, 10, v25
          buffer_load_dword a{aDUM}, v24, s[88:91], 0 offen ;@dummy
          v_and_b32 v0, 63, v0
          v_readfirstlane_b32 s{sW}, v1 ;@val=wave
          v_lshrrev_b32 v24, 3, v0
          v_lshrrev_b32 v25, 4, v0
          v_and_b32 v26, 7, v0
          v_xor_b32 v26, v26, v25
          v_lshlrev_b32 v26, 4, v26
          v_lshl_add_u32 v{vGX}, v24, 10, v26
          v_xor_b32 v{vGX+1}, 64, v{vGX}
          v_bfe_u32 v26, v0, 1, 3
          v_xor_b32 v26, v26, v25
          v_lshlrev_b32 v26, 5, v26
          v_and_b32 v24, 1, v0
          v_lshl_add_u32 v26, v24, 4, v26
          v_lshl_add_u32 v{vGW}, v25, 13, v26
          v_xor_b32 v{vGW+1}, 128, v{vGW}
          s_and_b32 s{t0_}, s2, 7
          s_and_b32 s{t2_}, s{t1_}, 3
          s_lshl2_add_u32 s{sH}, s{t0_}, s{t2_}
          s_lshr_b32 s{sJ}, s{t1_}, 2
          s_lshl2_add_u32 s{sPF}, s{t1_}, s{sW}
          s_lshl_b32 s{sCo}, s{sJ}, 18
          s_lshl_b32 s{t0_}, s{sW}, 16
          s_add_u32 s{sCo}, s{sCo}, s{t0_}
          s_lshl_b32 s{sWo}, s{sW}, 17
          s_lshl_b32 s{t0_}, s{sH}, 8
          s_add_u32 s{sWo}, s{sWo}, s{t0_}
          s_lshl_b32 s{sLX}, s{sW}, 13
          s_lshl_b32 s{sLW}, s{sW}, 12
          s_lshl_b32 s{sLH}, s{sW}, 10
          s_waitcnt lgkmcnt(0)""")
    p(mk_srd(SA, sC, 2 << 20) + mk_srd(SB, sWUK, 4 << 20) + mk_srd(SC, sWUV, 4 << 20))
    def xdma(sg):
        par = sg & 1; d = []
        for i in range(8):
            if sg < 8: so, sr = f"s_add_u32 s{sT}, s{sCo}, {sg*128 + i*8192}", SA
            else: so, sr = f"s_add_u32 s{sT}, s{sXlo if i < 4 else sXhi}, {(sg-8)*128 + ((i>>1)&1)*64*2048 + (i&1)*16384}", SE
            d.append(([f"s_add_u32 m0, s{sLX}, {par*32768 + i*1024}", so], f"buffer_load_dwordx4 v{vGX + (i&1)}, {srd(sr)}, s{sT} offen lds ;@tag=x{sg}"))
        return d
    def wdma(sg):
        d = []; B = 65536 + (sg % 3) * 32768
        for kv in range(2 if sg < 8 else 1):
            for i in range(4):
                st = sg if sg < 8 else sg - 8
                d.append(([f"s_add_u32 m0, s{sLW}, {B + kv*16384 + i*1024}", f"s_add_u32 s{sT}, s{sWo}, {st*64*8192 + i*32768}"],
                          f"buffer_load_dwordx4 v{vGW + (i>>1)}, {srd((SB, SC)[kv] if sg < 8 else SG)}, s{sT} offen lds ;@tag=w{sg}"))
        if sg >= 8:
            for pp in range(3):
                d.append(([f"s_add_u32 m0, s{sLH}, {B + 16384 + pp*4096}", f"s_add_u32 s{sT}, s{sBo}, {(sg-8)*64*6144 + pp*2048}"],
                          f"buffer_load_dwordx4 v{vGB}, {srd(SH)}, s{sT} offen lds ;@tag=w{sg}"))
            d = [d[k] for k in (0, 4, 1, 5, 2, 6, 3)]
        return d
    seq = []
    for sal, d in (xdma(0) + wdma(0) if not OPT.get("wfirst") else wdma(0) + xdma(0)): seq += sal + [d]
    seq += mk_srd(SD, sWS, 128 << 20) + mk_srd(SE, sX, 4 << 20) + mk_srd(SF, sDBG, 256) + mk_srd(SG, sWQ, 8 << 20) + mk_srd(SH, sWQKV, 6 << 20)
    seq += [f"v_accvgpr_write_b32 a{aONE}, 1"]
    if OPT["stamps"]: seq += ["v_mov_b32 v30, 0", "v_writelane_b32 v30, s96, 60", "v_writelane_b32 v30, s98, 61", "s_getreg_b32 s96, hwreg(HW_REG_XCC_ID)", "v_writelane_b32 v30, s96, 62", "v_accvgpr_write_b32 a249, v30"] + stamp(0)
    seq += L(f"""v_and_b32 v24, 15, v0
          v_lshrrev_b32 v26, 1, v24
          v_xor_b32 v26, v26, v25
          v_lshlrev_b32 v26, 4, v26
          v_lshl_add_u32 v26, v24, 7, v26
          v_add_u32 v{vDX}, s{sLX}, v26
          v_xor_b32 v{vDX+1}, 64, v{vDX}
          v_bfe_u32 v24, v0, 2, 2
          v_lshl_add_u32 v27, v25, 3, v24
          v_and_b32 v1, 3, v0
          v_cmp_eq_u32 vcc, 0, v1
          v_lshlrev_b32 v1, 3, v1
          v_lshl_add_u32 v26, v27, 8, v1
          v_add_u32 v26, 65536, v26
          v_and_b32 v1, 1, v25
          v_lshl_add_u32 v24, v1, 2, v24
          v_lshlrev_b32 v{vL16}, 4, v0
          v_mov_b32 v28, 0x3f803f80
          v_cndmask_b32 v28, 0, v28, vcc""")
    seq += [f"v_accvgpr_write_b32 {ONES[r]}, v28" for r in range(4)]
    for n in range(8): seq += [f"v_xor_b32 v1, {n}, v24", f"v_lshl_add_u32 v{vDQ+n}, v1, 5, v26"]
    seq += L(f"""s_sub_u32 s{sBHi}, 15, s{sJ}
          s_lshl_b32 s{sXlo}, s{sJ}, 18
          s_lshl_b32 s{sXhi}, s{sBHi}, 18
          s_cmp_lt_u32 s{sW}, 2
          s_cselect_b32 s{t1_}, s{sJ}, s{sBHi}
          s_lshl4_add_u32 s{sXh}, s{sH}, s{t1_}
          s_and_b32 s{t0_}, s{sW}, 1
          s_lshl1_add_u32 s{sXh}, s{sXh}, s{t0_}
          s_lshl_b32 s{sXh}, s{sXh}, 10
          s_add_u32 s{sXh}, s{sXh}, {WS_HALO}
          s_lshl_b32 s{t0_}, s{sW}, 15
          s_add_u32 s{sXlo}, s{sXlo}, s{t0_}
          s_add_u32 s{sXhi}, s{sXhi}, s{t0_}
          s_mul_i32 s{sBo}, s{sW}, {16*6144}
          s_lshl_b32 s{t0_}, s{sH}, 6
          s_add_u32 s{sBo}, s{sBo}, s{t0_}
          s_lshl_b32 s{sKV}, s{sH}, 20
          s_lshl_b32 s{t0_}, s{sJ}, 17
          s_add_u32 s{sKV}, s{sKV}, s{t0_}
          s_lshl_b32 s{t0_}, s{sW}, 15
          s_add_u32 s{sKV}, s{sKV}, s{t0_}
          v_bfe_u32 v{vGB}, v0, 1, 1
          v_lshrrev_b32 v1, 5, v0
          v_xor_b32 v{vGB}, v{vGB}, v1
          v_lshlrev_b32 v{vGB}, 5, v{vGB}
          v_and_b32 v1, 1, v0
          v_lshl_add_u32 v{vGB}, v1, 4, v{vGB}
          v_lshrrev_b32 v1, 2, v0
          v_mul_u32_u24 v1, 6144, v1
          v_add_u32 v{vGB}, v1, v{vGB}
          s_lshl_b32 s81, s{sPF}, 13
          s_and_b32 s{t1_}, s2, 7
          s_lshl_b32 s82, s{t1_}, 8
          s_add_u32 s82, s82, s81
          s_lshl_b32 s{t1_}, s{t1_}, 10
          s_add_u32 s81, s81, s{t1_}
          s_add_u32 s83, s81, {1<<20}
          v_mul_u32_u24 v1, 1792, v25
          v_add_u32 v1, v1, v{vL16}
          s_lshl_b32 s{t2_}, s2, 3
          s_lshl1_add_u32 s{t2_}, s{sW}, s{t2_}
          v_lshrrev_b32 v18, 5, v0
          v_add_u32 v18, s{t2_}, v18
          v_and_b32 v19, 31, v0
          v_lshlrev_b32 v19, 4, v19
          v_lshl_add_u32 v18, v18, 11, v19
          v_mov_b32 v21, 0
          v_min_u32 v20, 1, v0
          v_lshlrev_b32 v20, 30, v20
          v_accvgpr_write_b32 a240, -1
          v_accvgpr_write_b32 a241, -1
          v_accvgpr_write_b32 a242, -1
          v_accvgpr_write_b32 a243, -1
          s_lshr_b32 s{t3_}, s2, 7
          s_or_b32 s{t3_}, s{t3_}, s{sW}
          s_lshl_b32 s{t3_}, s{t3_}, 21
          s_add_u32 s{t3_}, s{t3_}, s2
          s_lshl_b32 s{t3_}, s{t3_}, 7
          s_add_u32 s{t3_}, s{t3_}, {WS_CNT}""")
    def xread(sg): return [f"ds_read_b128 {fx(sg, rb, s)}, v{vDX+s} offset:{(sg&1)*32768 + rb*2048}" for rb in range(4) for s in range(2)]
    def hread(sg): return [f"ds_read_b128 {fx(sg, 4, s)}, v{vDH+s} offset:{min(sg % 3, 1)*32768}" for s in range(2)]
    def wread(sg, j):
        par = min(sg % 3, 1); o = []; cb = j if sg < 8 else P2ORD[j]
        for s in range(2):
            for i in range(2):
                if sg < 8 or cb < 8: a, off = vDQ + (cb & 7), par*32768 + (cb >> 3)*16384 + s*8192 + i*1024
                elif cb < 14: a, off = vDB + (cb & 1), par*32768 + ((cb-8) >> 1)*4096 + s*2048 + i*256
                else: a, off = vDBH, par*32768 + (cb-13)*4096 + s*2048 + i*256
                o.append((a, f"ds_read_b64_tr_b16 {fw(Jx(sg, j), s)[2*i:2*i+2]}, v{a} offset:{off}"))
        return o
    def wpf(sr): return f"buffer_load_dword a{aDUM}, off, {srd(sr)}, s83 offset:384 ;@dummy"
    P1PF = OPT.get("p1pf", 0)
    if P1PF == 2: seq += [wpf(SB), wpf(SC)]
    LATE, WD = OPT.get("late1", 1), OPT.get("wd", 3)
    for sal, d in (xdma(1) + wdma(1) if LATE == 0 else wdma(1) if LATE == 1 else []): seq += sal + [d]
    if P1PF == 1: seq += [wpf(SB), wpf(SC)]
    seq += ["WAITVM w0,x0", "s_barrier"] + stamp(1)
    xr = xread(0); NPRE = 3
    seq += xr[:2] + [r for _, r in wread(0, 0)] + xr[2:]
    for j in range(1, NPRE): seq += [r for _, r in wread(0, j)]
    g.emit(seq)
    mf = []; G0 = []; FU = []; LU = []; done = {}
    for sg in range(24):
        G0.append(len(mf))
        for k, (j, cb, rb) in enumerate(o1 if sg < 8 else o2):
            J = Jx(sg, j)
            if len(FU) == J: FU.append(len(mf)); LU.append(0)
            swap = (cb >= 8) if sg < 8 else (cb in (12, 13, 15))
            for q, s in enumerate(snake(2, k)):
                c0 = 0 if (q == 0 and sg in (0, 8)) else None
                mf.append(mfma(treg(k), fx(sg, rb, s), fw(J, s), c0) if swap else mfma(treg(k), fw(J, s), fx(sg, rb, s), c0))
            LU[J] = len(mf) - 1; done[(sg, cb, rb)] = len(mf) - 1
    G0.append(len(mf))
    S = Sched(mf)
    def pace(items, lo, hi, chain, slack=5):
        n = len(items)
        for q, (sal, d) in enumerate(items):
            x = lo + int(q * (hi - lo) / n)
            it = S.add("M", d, x, x + slack, chain=chain, sep=3, pre=sal)
            if q == 0: it["prelo"] = lo - 2
    def chain(txt, lo, hi=None, name=None, sep=1):
        for c in (L(txt) if isinstance(txt, str) else txt): S.add(kind(c), c, lo, hi, chain=name, sep=sep)
    BAR = {sg: G0[sg + 1] - 30 for sg in range(24)}; BAR[-1] = -1
    XW = 54
    IL = OPT.get("il", 0)
    gxupd = f"v_lshrrev_b32 v{vGX+1}, 3, v0\nv_lshl_add_u32 v{vGX}, v{vGX+1}, 10, v{vGX}\nv_xor_b32 v{vGX+1}, 64, v{vGX}"
    def mix(a, b): return [x for pr in zip(b, a) for x in pr]
    ini = (wdma(1) if LATE == 2 else []) + (xdma(1) if LATE else []) + (wdma(2) if WD == 3 else [])
    X0 = max(40, 2 + 3 * len(ini) + len(ini) // 2)
    if IL:
        ini = (xdma(1) if LATE else []) + mix(xdma(2), wdma(2)); X0 = BAR[0]
    if ini: pace(ini, 2, X0 - 2, "dma", slack=2)
    for sg in range(24):
        g0, nx, B = G0[sg], G0[sg + 1], BAR[sg]
        lastuse = {}
        for j in range(16 if sg < 8 else 14):
            J = Jx(sg, j)
            if J < NPRE: continue
            lo = max(LU[J - NR] if J >= NR else 0, BAR[sg - 1] + 1, FU[J] - 44)
            hi = FU[J] - 8
            if sg < 23: hi = min(hi, B - 5)
            for a, r in wread(sg, j): S.add("T", r, lo, hi, chain="t"); lastuse[a] = hi
        if sg < 23:
            if sg % 3:
                for r, lu in lastuse.items():
                    S.add("A", f"v_add_u32 v{r}, 0x8000, v{r}" if sg % 3 == 1 else f"v_subrev_u32 v{r}, 0x8000, v{r}", lu + 1, B - 1)
            blk = [f"WAITVM w{sg+1}" + (" L" if (WD == 3 or sg >= 21) else ""), "s_barrier"]
            if sg == 7: blk += stamp(2)
            if OPT.get("x_nop"): blk += [f"s_sleep {OPT['x_nop']}"]
            fine = (0, 1, 2, 3, 4, 5, 9, 11, 13, 15, 17, 19) if OPT.get("fine") != 2 else (0, 1, 2, 3, 4, 5, 6, 8, 9, 10, 11, 12)
            if OPT.get("fine") and sg in fine: blk += stamp(18 + fine.index(sg))
            S.add("X", blk, B, B)
            xw, xh = (g0 + XW, B - 5) if not (LATE and sg == 0) else (B + 8, nx - 8)
            S.add("S", f"WAITVM x{sg+1}", xw, xw, chain=("xn", sg))
            for q, r in enumerate(xread(sg + 1)): S.add("D", r, xw, xh, chain=("xn", sg))
        if IL:
            if sg == 5: chain(gxupd, B - 8, B + 2, name="dma", sep=0)
            if sg == 0 and LATE:
                pace(wdma(3), B + 3, nx + 30, "dma"); pace(xdma(3), nx + 32, BAR[1] - 2, "dma")
            elif sg + 3 < 24: pace(mix(xdma(sg + 3), wdma(sg + 3)), B + 5, BAR[sg + 1] - 2, "dma", slack=4)
            continue
        if sg + 2 < 24: pace(xdma(sg + 2), g0 + (40 if sg else X0), B - 2, "dma")
        if sg + WD < 24: pace(wdma(sg + WD), B + 3, nx + 38, "dma")
    GS = 56; lo = 40
    for i in range(4):
        S.add("M", f"global_load_dwordx4 a[{GA+4*i}:{GA+3+4*i}], v18, s[{sX}:{sX+1}] offset:{512*i}", lo + GS*i, lo + GS*i + 10, chain="gate")
        S.add("M", f"global_load_dwordx4 a[{GA+16+4*i}:{GA+19+4*i}], v19, s[{sGATE}:{sGATE+1}] offset:{512*i}", lo + GS*i + GS//2, lo + GS*i + GS//2 + 10, chain="gate")
    S.add("M", f"buffer_store_dword v21, v20, {srd(SD)}, s{t3_} offen {ST} ;@tag=z", G0[2] + 20, G0[2] + 40, chain="gate", sep=1)
    a0, a1, a2, a3, acc = 18, 19, 20, 21, 17
    ch = [f"v_mov_b32 v{acc}, 0"]
    for i in range(16):
        ch += L(f"""v_accvgpr_read_b32 v{a1}, a{GA+i}
            v_accvgpr_read_b32 v{a3}, a{GA+16+i}
            v_lshlrev_b32 v{a0}, 16, v{a1}
            v_and_b32 v{a1}, 0xffff0000, v{a1}
            v_lshlrev_b32 v{a2}, 16, v{a3}
            v_and_b32 v{a3}, 0xffff0000, v{a3}
            v_mul_f32 v{a0}, v{a0}, v{a2}
            v_mul_f32 v{a1}, v{a1}, v{a3}
            v_cvt_pk_bf16_f32 v{a0}, v{a0}, v{a1}
            v_lshlrev_b32 v{a1}, 16, v{a0}
            v_and_b32 v{a0}, 0xffff0000, v{a0}
            v_add_f32 v{acc}, v{acc}, v{a1}
            v_add_f32 v{acc}, v{acc}, v{a0}""")
    lo = G0[3]
    chain(ch, lo, name="gate", sep=0)
    chain([f"v_add_f32_dpp v{acc}, v{acc}, v{acc} row_ror:{r} row_mask:0xf bank_mask:0xf" for r in (8, 4, 2, 1)], lo, name="gate", sep=2)
    chain([f"v_mov_b32 v{a0}, v{acc}"], lo, name="gate", sep=0)
    chain([f"v_permlane16_swap_b32 v{a0}, v{acc}"], lo, name="gate", sep=2)
    chain(f"""v_add_f32 v{acc}, v{acc}, v{a0}
            v_cvt_pk_bf16_f32 v{acc}, v{acc}, v{acc}
            v_and_b32 v{acc}, 0xffff0000, v{acc}
            v_mul_f32 v{acc}, 0xbfb8aa3b, v{acc}
            v_exp_f32 v{acc}, v{acc}
            v_add_f32 v{acc}, 1.0, v{acc}
            v_rcp_f32 v{acc}, v{acc}
            v_cvt_pk_bf16_f32 v{a0}, v{acc}, v{acc}
            v_and_b32 v{a0}, 0xffff0000, v{a0}
            v_sub_f32 v{a1}, 1.0, v{a0}
            v_cvt_pk_bf16_f32 v{a1}, v{a1}, v{a1}
            v_and_b32 v{a1}, 0xffff0000, v{a1}
            v_and_b32 v{a2}, 31, v0
            v_lshlrev_b32 v{a2}, 27, v{a2}
            v_lshrrev_b32 v{a3}, 2, v0
            v_add_u32 v{a2}, v{a2}, v{a3}""", lo, name="gate")
    S.add("M", f"buffer_store_dwordx2 v[{a0}:{a1}], v{a2}, {srd(SD)}, s{sT2} offen {ST} ;@tag=z", lo, G0[6] + 30, chain="gate", sep=4,
          pre=[f"s_lshl2_add_u32 s{sT2}, s2, s{sW}", f"s_lshl4_add_u32 s{sT2}, s{sT2}, {WS_G}"])
    chain(f"""v_lshrrev_b32 v21, 4, v0
          v_bfe_u32 v{vDB}, v0, 2, 2
          v_lshl_add_u32 v{vDB}, v21, 3, v{vDB}
          v_lshlrev_b32 v{vDB}, 6, v{vDB}
          v_and_b32 v21, 1, v21
          v_lshl_add_u32 v{vDB}, v21, 5, v{vDB}
          v_and_b32 v21, 3, v0
          v_lshl_add_u32 v{vDB}, v21, 3, v{vDB}
          v_add_u32 v{vDB}, {98304 + 16384}, v{vDB}
          v_xor_b32 v{vDB+1}, 32, v{vDB}""", lo, G0[7] - 2, name="gate")
    if not IL: chain(gxupd, BAR[5] + 6, G0[6] + 30, name="gx", sep=0)
    if P1PF:
        for lo in (OPT.get("q1", 80), OPT.get("q2", 210)):
            S.add("M", wpf(SB), lo, lo + 10, chain="pf1", pre=[f"s_add_u32 s83, s83, {1<<20}"])
            S.add("M", wpf(SC), lo + 20, lo + 30, chain="pf1")
    if not OPT.get("nopf"):
        P0, PS = OPT.get("p0", 200), OPT.get("ps", 36); order_ = "qkqkqqkqkqqkqk"
        for k, c in enumerate(order_):
            r = 81 if c == "q" else 82
            S.add("M", f"buffer_load_dword a{aDUM}, v{vL16 if c == 'q' else 1}, {srd(SG if c == 'q' else SH)}, s{r} offen ;@dummy", P0 + k*PS, P0 + k*PS + 16, chain="pf",
                  pre=[] if order_[:k].count(c) == 0 else [f"s_add_u32 s{r}, s{r}, {1<<20}"])
    if OPT.get("wo", "M") == "P":
        chain(mk_srd(84, sWOA, 8 << 20) + [f"s_lshl2_add_u32 s83, s2, s{sW}", "s_lshl_b32 s83, s83, 11", "v_lshlrev_b32 v22, 5, v0"], 20, 100, name="wp", sep=0)
        for k in range(4):
            x = OPT.get("wp0", 120) + k * OPT.get("wps", 144)
            S.add("M", f"buffer_load_dword a{aDUM}, v22, s[84:87], s83 offen ;@dummy", x, x + 10, chain="wp", pre=[f"s_add_u32 s83, s83, {2<<20}"] if k else [])
    n0 = G0[8]; frs = []
    for t in range(4):
        for rb in (3, 2, 1, 0): frs.append(((2*t, rb), (2*t + 1, rb), (rb >> 1)*16384 + (rb & 1)*4096 + t*1024))
    for db in range(8):
        for u in snake(2, db): frs.append(((8 + db, 2*u), (8 + db, 2*u + 1), u*16384 + 8192 + db*1024))
    ns = 0; later = []
    tmpA, tmpB = HK, HV
    for q, (ta, tb, off) in enumerate(frs):
        ka, kb = pos1[ta], pos1[tb]; A, B_ = treg(ka), treg(kb)
        lo = G0[7] + 2*max(ka, kb) + 1 + 8; hi = n0 + 2*min(ka, kb) - 1; hi2 = n0 + 2*max(ka, kb) - 3
        D_ = B_ if kb > ka else A
        ch = ("drain",)
        if min(ka, kb) >= 56: hi = hi2 = G0[10]
        if A.f == "a":
            for r in range(4): S.add("A", f"v_accvgpr_read_b32 {tmpA[r]}, {A[r]}", lo, hi, chain=ch, sep=2 if r == 0 else 0)
            for r in range(4): S.add("A", f"v_accvgpr_read_b32 {tmpB[r]}, {B_[r]}", lo, hi, chain=ch)
            A, B_ = tmpA, tmpB; D_ = B_
        direct = q % 4 == 0
        if direct: S.add("S", f"s_add_u32 s{t1_}, s{sKV}, {off}", lo - 2, hi, chain=ch)
        if D_ is B_: cv = ((3, B_, 2), (2, B_, 0), (0, A, 0), (1, A, 2))
        else: cv = ((0, A, 0), (1, A, 2), (2, B_, 0), (3, B_, 2))
        for d_, src, r in cv: S.add("A", f"v_cvt_pk_bf16_f32 {D_[d_]}, {src[r]}, {src[r+1]}", lo, hi, chain=ch)
        if direct and OPT.get("x_nodirect"): pass
        elif direct: S.add("M", f"buffer_store_dwordx4 {D_}, v{vL16}, {srd(SD)}, s{t1_} offen {OPT.get('kvst', ST).replace('+', ' ').replace('-', '')} ;@tag=kv", lo, hi2, chain=ch, sep=1)
        else:
            for r in range(4): S.add("A", f"v_accvgpr_write_b32 {stash(ns)[r]}, {D_[r]}", lo, hi2, chain=ch)
            later.append((ns, off)); ns += 1
    assert ns == 24 and pos1[frs[27][0]] in (54, 55) and pos1[frs[28][0]] in (56, 57), (pos1[frs[27][0]],)
    NSTG = OPT.get("nstg", 11); KVP = 21 if (NSTG <= 9 and WD == 3) else 22
    t_a, t_b = G0[9] + 2, BAR[8 + NSTG] - 14
    sts = [([f"s_add_u32 s{sT2}, s{sKV}, {off}"], f"buffer_store_dwordx4 {stash(i)}, v{vL16}, {srd(SD)}, s{sT2} offen {OPT.get('kvst', ST).replace('+', ' ').replace('-', '')} ;@tag=kv") for i, off in later]
    sts.append(([], f"buffer_store_dwordx4 a[240:243], v{vL16}, {srd(SD)}, s{sXh} offen {ST} ;@tag=kv"))
    for q, (pre, d) in enumerate(sts if not OPT.get("x_nost") else []):
        lo = t_a + (q * (t_b - t_a)) // (len(sts) - 1)
        S.add("M", d, lo - 6, lo, chain="kvst", sep=3, pre=pre)
    pre, d = signal(SF, f"s{t2_}", 0, "z")
    chain(pre + [f"s_lshr_b32 s{t0_}, s{sJ}, 1", f"s_lshl_b32 s{t0_}, s{t0_}, 12"], G0[7], BAR[7], name="sig")
    for k in range(4):
        lo = BAR[8 + k] + 20
        S.add("X", one_lane(d), lo, lo + 14, chain="sig", sep=3, pre=[f"s_xor_b32 s{t2_}, s{t0_}, {k << 12}"])
    E0 = max(NSTG + 7, 14)
    S.add("X", L(f"s_cmp_eq_u32 s{sW}, 0\ns_cselect_b32 s81, 256, 0"), G0[E0 - 1], G0[E0 - 1] + 40, chain="sig")
    S.add("M", f"buffer_load_dword v1, off, {srd(SF)}, s{sLH} sc1", BAR[E0 - 1] - 14, BAR[E0 - 1] - 8, chain="sig")
    S.add("X", g.spin(1, SF, f"s{sLH}", 0, "s81"), G0[E0] + XW + 12, G0[E0] + XW + 24, chain="sig")
    S.add("X", mk_srd(SF, sWS, 16384, WS_CNT)[:3], BAR[E0] - 4, BAR[E0] + 30, chain="sig")
    E1 = max(NSTG + 9, 16)
    pre, d = signal(SF, "s70", 0, "kv")
    chain(pre + [f"s_lshl_b32 s70, s{sH}, 8"], G0[E1], BAR[E1], name="sig")
    S.add("X", one_lane(d), BAR[E1] + 1, BAR[E1] + 12, chain="sig", sep=1)
    chain([f"s_lshl4_add_u32 s70, s{sLH}, s70", "s_lshr_b32 s81, s81, 5"], BAR[E1] + 1, name="sig")
    S.add("M", f"buffer_load_dword v1, off, {srd(SF)}, s70 sc1", BAR[KVP - 1] - 14, BAR[KVP - 1] - 8, chain="sig")
    S.add("X", g.spin(1, SF, "s70", 0, "s81"), G0[KVP] + XW + 6, BAR[KVP] - 1, chain="sig")
    if not OPT.get("nocpf"):
        for sg in range(0, 22, OPT.get("cps", 2)):
            pre, d = cpf(".-L_pc+6144"); S.add("M", d, G0[sg] + 4, G0[sg] + 30, chain="cpf", pre=pre)
        for k, e_ in enumerate([".-L_pc+6144", ".-L_pc+9984", ".-L_pc+13824", "L_F1-L_pc", "L_F1-L_pc+4096"]):
            x = G0[22] + (50 if OPT.get("wo", "M") != "E" else 0)
            pre, d = cpf(e_); S.add("M", d, x + 6 * k, x + 34, chain="cpf", pre=pre, sep=3)
    S.add("X", L(f"s_lshl_b32 s{t2_}, s{sH}, 20\ns_add_u32 s{SA}, s{sWS}, s{t2_}\ns_addc_u32 s{SA+1}, s{sWS+1}, 0"), G0[21], G0[21] + 40, chain="sa")
    S.add("X", L(f"s_add_u32 s{t2_}, s{sBHi}, 1\ns_lshl_b32 s{SA+2}, s{t2_}, 16"), G0[21], G0[21] + 50, chain="sa")
    pace(att_first_dmas(sLX), BAR[KVP] + 5, BAR[KVP] + 5 + 12 * (6 if KVP == 21 else 4), "dma", slack=2)
    lo = G0[22] if WD == 3 else G0[22] + 40
    chain(f"""v_and_b32 v12, 15, v0
          v_lshrrev_b32 v13, 4, v0
          v_lshlrev_b32 v13, 2, v13
          v_sub_u32 v12, v12, v13
          s_lshl_b32 s{t0_}, s{sW}, 4
          v_add_u32 v13, s{t0_}, v12""", lo, name="la")
    chain([f"v_cmp_gt_i32 {msk(k)}, {16*(k >> 2) + (k & 3)}, v13" for k in range(16)], lo, name="la", sep=0)
    for r in range(4):
        chain(f"""v_subrev_u32 v17, {r}, v12
              v_lshlrev_b32 v18, 31, v17
              v_or_b32 v21, v17, v18
              v_ashrrev_i32 v21, 31, v21
              v_and_b32 {HK[r]}, 0xff800000, v21
              v_not_b32 v17, v17
              v_or_b32 v21, v17, v18
              v_ashrrev_i32 v21, 31, v21
              v_and_b32 {HV[r]}, 0xff800000, v21""", lo, name="la", sep=0)
    chain([c.replace("s81", f"s{t1_}") for c in p5_setup()], lo, name="la", sep=0)
    chain(f"""s_lshr_b32 s{t0_}, s{sW}, 1
          s_lshl_b32 s{t0_}, s{t0_}, 16
          s_and_b32 s{t1_}, s{sW}, 1
          s_lshl_b32 s{t1_}, s{t1_}, 10
          s_add_u32 s{t0_}, s{t0_}, s{t1_}
          s_add_u32 s{t0_}, s{t0_}, 32768
          v_add_u32 v17, s{t0_}, v{vL16}
          v_lshlrev_b32 v21, 5, v0
          s_lshl2_add_u32 s73, s2, s{sW}
          s_lshl_b32 s73, s73, 11
          s_lshl_b32 s{t0_}, s{sW}, 11
          s_add_u32 s{t0_}, s{t0_}, 32768""", lo, name="la", sep=0)
    chain(f"v_add_u32 v2, s{t0_}, v{vL16}\nv_add_u32 v3, 0x10000, v2", BAR[22] - 4, G0[23] - 2, name="la", sep=0)
    chain(f"""v_and_b32 v22, 15, v0
          v_lshlrev_b32 v22, 3, v22
          s_lshl_b32 s85, s{sW}, 7
          s_add_u32 s85, s85, {WS_G}
          s_lshl_b32 s86, s{sJ}, 10
          s_add_u32 s86, s86, s85
          s_lshl_b32 s87, s{sBHi}, 10
          s_add_u32 s87, s87, s85""", G0[21], name="g", sep=0)
    for rb in range(4):
        S.add("M", f"buffer_load_dwordx2 a[{64+2*rb}:{65+2*rb}], v22, {srd(SD)}, s{86 + (rb>>1)} offen offset:{(rb&1)*512} sc1", BAR[21] - 4, G0[22] - 2, chain="g", sep=1)
    chain(f"""s_mov_b32 s{SB}, s{sWOB}
          s_mov_b32 s{SB+1}, s{sWOB+1}
          s_mov_b32 s{SB+2}, {2<<20}
          s_mov_b32 s{SC}, s{sWOA}
          s_mov_b32 s{SC+1}, s{sWOA+1}
          s_mov_b32 s{SC+2}, {8<<20}""", G0[12], G0[13], name="pf")
    if not OPT.get("nopf"):
        x = G0[23] + (0 if KVP == 21 else 26)
        S.add("M", f"buffer_load_dword a{aDUM}, v21, {srd(SB)}, s73 offen ;@dummy", x, x + 16, chain="wpf", sep=2)
    chain(f"s_lshl2_add_u32 s72, s2, s{sW}\ns_lshl_b32 s72, s72, 12\ns_add_u32 s72, s72, {WS_XCH}", BAR[21] + 2, G0[22], name="pre")
    g.prefill = [f"buffer_store_dwordx4 a[240:243], v{vL16}, {srd(SD)}, s72 offen offset:{k*1024} {ST} ;@tag=ob" for k in range(4)]
    PRIN = OPT.get("prin", -16)
    if PRIN < 200:
        for k, d in enumerate(g.prefill): S.add("M", d, G0[22] + PRIN + 14*k, G0[22] + PRIN + 14*k + 6, chain="pre")
        g.prefill = []
    def rdy(*tiles): return max(done[(23, cb, rb)] for cb, rb in tiles) + 8
    def pk(d, a, b, lo): S.add("A", f"v_cvt_pk_bf16_f32 {d}, {a}, {b}", lo, chain="la")
    for rb in (3, 2, 1, 0):
        a, b = bt(1, 0, rb), bt(1, 1, rb); lo = rdy((11, rb))
        pk(a[0], a[0], a[1], lo); pk(a[1], a[2], a[3], lo); pk(a[2], b[0], b[1], lo); pk(a[3], b[2], b[3], lo)
        S.add("M", f"ds_write_b128 v{2 + (rb>>1)}, {a} offset:{(rb&1)*8192 + 2048}", lo, lo + 12, chain="la", sep=1)
    for db in range(2):
        for rb in snake(4, db):
            lo = rdy((12 + db, rb)); a = bt(2, db, rb); pk(a[3], a[2], a[3], lo); pk(a[2], a[0], a[1], lo)
            S.add("M", f"ds_write_b64 v{2 + (rb>>1)}, {a[2:4]} offset:{(rb&1)*8192 + 3072 + db*8}", lo, lo + 16, chain="la", sep=1)
    x = lo + 19
    S.add("X", ["s_waitcnt lgkmcnt(0)", "s_barrier"], lo, x, chain="la", sep=2)
    S.add("D", "ds_read_b128 a[16:19], v17 offset:16384", lo, x + 1, chain="la", sep=1)
    def prevrd(rbs):
        return [f"ds_read_b128 a[{4*rb}:{4*rb+3}], v{2 + (rb>>1)} offset:{(rb&1)*8192}" for rb in rbs] + \
               [f"ds_read_b64 {bt(2, db, rb)[0:2]}, v{2 + (rb>>1)} offset:{(rb&1)*8192 + 1024 + db*8}" for rb in rbs for db in range(2)]
    g.prevrd = prevrd
    S.add("M", f"buffer_store_dwordx4 a[16:19], v{vL16}, {srd(SD)}, s{sXh} offen {ST}", lo, x + 7, chain="la", sep=6)
    for c in prevrd((1, 3)): S.add("D", c, lo, chain="la")
    for rb in (3, 2, 1, 0):
        a, b = bt(0, 0, rb), bt(0, 1, rb); lo = rdy((9, rb))
        for d_, src, r in ((0, a, 0), (1, a, 2), (2, b, 0), (3, b, 2)): S.add("A", f"v_cvt_pk_bf16_f32 {a[d_]}, {src[r]}, {src[r+1]}", lo, chain="lq")
    S.add("X", L(f"s_or_b32 s{t0_}, s{sJ}, s{sW}\ns_cmp_eq_u32 s{t0_}, 0\ns_cselect_b32 s{t0_}, 0xff800000, 0"), G0[23] + 2, G0[23] + 50, chain="lx")
    S.add("X", [f"s_and_b32 s{t1_}, s{sXh}, 0x7800", f"s_cselect_b32 s{t1_}, 0, 0x70000000", f"s_add_u32 s77, s{sXh}, s{t1_}"], G0[23] + 2, G0[23] + 54, chain="lx")
    chain(f"s_sub_u32 s77, s77, 2048\ns_mov_b32 s{t2_}, {f32(QSCALE)}\ns_mov_b32 s{t3_}, s{t2_}", G0[23] + 2, G0[23] + 58, name="lx")
    chain(L(f"""s_sub_u32 s81, s{sJ}, 1
          s_sub_u32 s{t1_}, s{sJ}, 2
          s_mul_i32 s81, s81, s{t1_}
          s_lshl4_add_u32 s81, s81, s{sH}
          s_lshl2_add_u32 s81, s81, s{sW}
          s_mul_i32 s81, s81, 3328
          s_mov_b32 s73, 0
          s_mov_b32 s72, 0x4000
          s_lshl_b32 s{t1_}, s{sH}, 15
          s_add_u32 s{t1_}, s{t1_}, s{sLH}
          s_add_u32 s{t1_}, s{t1_}, {WS_CTX}
          s_mul_i32 s74, s{sJ}, {160*8192}
          s_add_u32 s74, s74, s{t1_}
          s_mul_i32 s75, s{sBHi}, {160*8192}
          s_add_u32 s75, s75, s{t1_}
          s_mul_i32 s{t1_}, s{sH}, {3*8192}
          s_sub_u32 s{t1_}, {128*8192 + 4096}, s{t1_}
          s_add_u32 s{sT}, s74, s{t1_}
          s_add_u32 s{sT2}, s75, s{t1_}""") + att_scalars(), x + 9, name="lx")
    chain([f"v_or_b32 v{20+r}, s{t0_}, {HV[r]}" for r in range(4)], lo, name="lq", sep=0)
    S.add("S", f"s_mov_b32 s{t0_}, {f32(BSCALE)}", lo, chain="lq", sep=1)
    NQ = OPT.get("nq", 6); g.qdone = []
    for t, rb in [(t, rb) for t in range(4) for rb in (3, 2, 1, 0)][:NQ]:
        a, b = aq(2*t, rb), aq(2*t+1, rb); lo = rdy((2*t + 1, rb)); g.qdone.append((t, rb))
        for r_ in (a, b):
            for k in range(4): S.add("A", f"v_mul_f32 {r_[k]}, s{t2_}, {r_[k]}", lo, chain="lq")
        for d_, src, r in ((0, a, 0), (1, a, 2), (2, b, 0), (3, b, 2)): S.add("A", f"v_cvt_pk_bf16_f32 {a[d_]}, {src[r]}, {src[r+1]}", lo, chain="lq")
    g.emit(S.run("gemm12"), eager=10, name="gemm12")
    g.emit(stamp(5))
    if OPT.get("x_sleep"): g.emit([f"s_sleep {OPT['x_sleep']}"])
    local_attention(g)

def att_scalars():
    return L(f"""s_and_b32 s70, s{sW}, 1
          s_lshr_b32 s{t1_}, s{sW}, 1
          s_lshl3_add_u32 s71, s{t1_}, s70
          s_add_u32 s71, s71, 4
          s_lshl_b32 s71, s71, 13
          s_lshl_b32 s70, s70, 14
          s_mul_i32 s{t1_}, s{t1_}, 24576
          s_sub_u32 s70, s70, s{t1_}
          s_add_u32 s70, s70, 65536""")

def att_first_dmas(sLX):
    d = []
    for k in range(8):
        sal = []
        if k == 0: sal = [f"s_mov_b32 m0, s{sLX}", f"s_lshl_b32 s{sT}, s{sW}, 14"]
        if k == 4: sal = [f"s_add_u32 m0, s{sLX}, 4096", f"s_add_u32 s{sT}, s{sT}, 4096"]
        d.append((sal, f"buffer_load_dwordx4 v{vL16}, {srd(SA)}, s{sT} offen offset:{(k&3)*1024} sc1 lds ;@tag=k0"))
    for k in range(4):
        sal = []
        if k == 0: sal = [f"s_lshr_b32 s{sT}, s{sLX}, 1", f"s_add_u32 m0, s{sT}, {65536 + 16384}", f"s_and_b32 s71, s{sT}, 8192",
                          f"s_add_u32 s{sT}, s{sT}, s71", f"s_add_u32 s{sT}, s{sT}, 8192"]
        d.append((sal, f"buffer_load_dwordx4 v{vL16}, {srd(SA)}, s{sT} offen offset:{k*1024} sc1 lds ;@tag=v0"))
    return d

def local_attention(g):
    q = []
    def e(s): q.extend(L(s))
    def pk(d, a, b): return f"v_cvt_pk_bf16_f32 {d}, {a}, {b}"
    mO, mP, mP0 = HK, HV, R("v", 20)
    qp = []
    for t in range(4):
        for rb in range(4):
            if (t, rb) in g.qdone: continue
            a, b = aq(2*t, rb), aq(2*t+1, rb)
            for r in (a, b): qp += [f"v_pk_mul_f32 {r[0:2]}, {r[0:2]}, s[{t2_}:{t3_}]", f"v_pk_mul_f32 {r[2:4]}, {r[2:4]}, s[{t2_}:{t3_}]"]
            qp += [pk(a[0], a[0], a[1]), pk(a[1], a[2], a[3]), pk(a[2], b[0], b[1]), pk(a[3], b[2], b[3])]
    assert all((0, rb) in g.qdone for rb in range(4))
    def fill(n):
        assert len(qp) >= n
        q.extend(qp[:n]); del qp[:n]
    def Sp(rb): return bt(0, 1, rb)
    def So(rb): return bt(1, 1, rb)
    mx, mc, hin = aq(1, 2), aq(1, 1), aq(1, 0)
    hld = f"buffer_load_dwordx4 {hin}, v{vL16}, {srd(SD)}, s77 offen sc1"
    def part(rbs, f0, mid=None):
        for rb in rbs: e(mfma(So(rb), bt(1, 0, rb), bt(0, 0, rb), mO))
        for rb in rbs: e(mfma(Sp(rb), R("a", 4*rb), bt(0, 0, rb), mP0 if rb == 0 else mP))
        f0()
        for rb in rbs:
            a, b = Sp(rb), So(rb)
            e(f"v_max3_f32 {mx[rb]}, {b[0]}, {b[1]}, {b[2]}\nv_max3_f32 {mx[rb]}, {mx[rb]}, {b[3]}, {a[0]}")
            e(f"v_max3_f32 {mx[rb]}, {mx[rb]}, {a[1]}, {a[2]}\nv_max_f32 {mx[rb]}, {mx[rb]}, {a[3]}")
        for op in ("v_permlane16_swap_b32", "v_permlane32_swap_b32"):
            for rb in rbs: e(f"v_mov_b32 {mc[rb]}, {mx[rb]}")
            fill(1)
            for rb in rbs: e(f"{op} {mc[rb]}, {mx[rb]}")
            for rb in rbs: e(f"v_max_f32 {mx[rb]}, {mx[rb]}, {mc[rb]}")
        for rb in rbs: e(f"v_mul_f32 {mx[rb]}, s{t0_}, {mx[rb]}")
        for rb in rbs:
            a, b = Sp(rb), So(rb)
            for r in (a, b):
                for k in range(4): e(f"v_fma_f32 {r[k]}, {r[k]}, s{t0_}, -{mx[rb]}")
            for r in (a, b):
                for k in range(4): e(f"v_exp_f32 {r[k]}, {r[k]}")
            q.extend([pk(a[0], a[0], a[1]), pk(a[1], a[2], a[3]), pk(a[2], b[0], b[1]), pk(a[3], b[2], b[3])])
            fill(2)
            e(mfma(So(rb), ONES, Sp(rb), 0))
            for db in range(2): e(mfma(bt(db, 0, rb), bt(2, db, rb), Sp(rb), 0))
        if mid: e(mid)
        fill(6)
        for rb in rbs: e(f"v_rcp_f32 {mx[rb]}, {So(rb)[0]}")
        for rb in rbs: e(f"v_mul_f32 {mx[rb]}, {mx[rb]}, v{vG+2*rb+1}")
        for rb in rbs:
            a, b = bt(0, 0, rb), bt(1, 0, rb)
            for r in (a, b):
                for k in range(4): e(f"v_mul_f32 {r[k]}, {r[k]}, {mx[rb]}")
            q.extend([pk(a[0], a[0], a[1]), pk(a[1], a[2], a[3]), pk(a[2], b[0], b[1]), pk(a[3], b[2], b[3])])
            e(f"buffer_store_dwordx4 {a}, v{vL16}, {srd(SD)}, s{sT + (rb>>1)} offen {ST} ;@tag=ob")
    def f0():
        for k in range(8): e(f"v_accvgpr_read_b32 v{vG+k}, a{64+k}")
    HE, WB = OPT.get("he", 1), OPT.get("wb", 0)
    def wpf(k): return [f"buffer_load_dword a{aDUM}, v19, {srd(SC)}, s81 offen ;@dummy"] + ([f"s_add_u32 s81, s81, {8192 // WB}"] if k + 1 < WB else [])
    if WB: e(f"v_lshlrev_b32 v19, {7 if WB == 1 else 6 if WB == 2 else 5}, v0")
    if OPT.get("nopf") or WB == 0: wpf = lambda k: []
    if HE:
        e(hld)
        if WB > 1: q.extend(wpf(0))
    part((1, 3), f0, (hld if not HE else "\n".join(wpf(1)) if WB == 4 else None))
    fill(len(qp) - 44)
    e(f"""USE {hin}
          L_hchk:
          v_max3_u32 v1, {hin[0]}, {hin[1]}, {hin[2]}
          v_max_u32 v1, v1, {hin[3]}
          v_cmp_eq_u32 vcc, -1, v1
          s_cbranch_vccnz L_hretry
          L_hgo:
          ds_write_b128 v17, {hin}
          s_sub_u32 s{sT}, s{sT}, 4096
          s_sub_u32 s{sT2}, s{sT2}, 4096""")
    g.ool += ["L_hretry:", "s_sub_u32 s72, s72, 1", "s_cbranch_scc1 L_hgo ;@nottaken", hld, "s_waitcnt vmcnt(0)", "s_branch L_hchk"]
    q.extend(wpf(WB // 2))
    fill(8)
    e("s_waitcnt lgkmcnt(0)\ns_barrier")
    q += g.prevrd((0, 2))
    fill(16)
    part((0, 2), lambda: fill(8), "\n".join(wpf(3)) if WB == 4 else None)
    assert not qp
    g.emit(q, name="local")

sR5, sKh, sCtx, sWo5, sL5, sCol, sSig, sWt = 82, 83, 84, 85, 86, 87, 79, 80
vG5, vC5 = 12, 14
def p5_ctx(sl, rb, s):
    f, b = (("a", 208), ("v", 152), ("a", 0), ("a", 32), ("a", 128))[sl]
    return R(f, b + 8*rb + 4*s)
def p5_lds(sl): return (131072, 32768, 65536, 98304, 0)[sl]
def p5_wdma(sl, rel, sr=SB):
    return [([f"s_add_u32 m0, s{sL5}, {p5_lds(sl) + i*1024}", f"s_add_u32 s{sT}, s{sWo5}, {rel*262144 + i*8192}"],
             f"buffer_load_dwordx4 v{vG5 + (i&1)}, {srd(sr)}, s{sT} offen lds ;@tag=w5_{sl}") for i in range(8)]
def p5_cld(sl, rel):
    o = []
    for s in range(2):
        for rb in range(4):
            o.append(([f"s_add_u32 s{sT2}, s{sCtx}, {rel*32768 + s*8192}"] if rb == 0 else [],
                      f"buffer_load_dwordx4 {p5_ctx(sl, rb, s)}, v{vC5 + (rb>>1)}, {srd(SD)}, s{sT2} offen offset:{(rb&1)*1024} sc1"))
    return o
def NB0(): return OPT.get("nb0", 5)
def p5_setup():
    CI = OPT.get("ci", 0)
    return L(f"""s_and_b32 s{t0_}, s2, 7
          s_lshr_b32 s{t1_}, s2, 3
          s_and_b32 s{sKh}, s{t0_}, 1
          s_and_b32 s{t2_}, s{t0_}, 2
          {f"s_and_b32 s{t3_}, s{t1_}, 7" if not OPT.get("rm", 1) else f"s_lshr_b32 s{t3_}, s{t1_}, 2"}
          s_lshl2_add_u32 s{sR5}, s{t2_}, s{t3_}
          s_and_b32 s{t2_}, s{t0_}, 4
          {f"s_lshr_b32 s{t3_}, s{t1_}, 3" if not OPT.get("rm", 1) else f"s_and_b32 s{t3_}, s{t1_}, 3"}
          s_xor_b32 s{t3_}, s{t3_}, {OPT.get("rm", 1)}
          s_add_u32 s{sCol}, s{t2_}, s{t3_}
          s_lshl_b32 s{sCol}, s{sCol}, 8
          s_lshl_b32 s{sL5}, s{sW}, 13
          s_lshl_b32 s{sWo5}, s{sW}, 16
          s_add_u32 s{sWo5}, s{sWo5}, s{sCol}
          {f"s_xor_b32 s{t2_}, s{t3_}, 1" if OPT.get("x_c3") else ""}
          {f"s_min_u32 s{t2_}, s{t2_}, 1" if OPT.get("x_c3") else ""}
          {f"s_xor_b32 s{t2_}, s{t2_}, 1" if OPT.get("x_c3") else ""}
          {f"s_mul_i32 s{t2_}, s{t2_}, 0x500" if OPT.get("x_c3") else ""}
          {f"s_xor_b32 s{sWo5}, s{sWo5}, s{t2_}" if OPT.get("x_c3") else ""}
          s_mul_i32 s{t0_}, s{sKh}, {NB0()*262144}
          s_add_u32 s{sWo5}, s{sWo5}, s{t0_}
          s_mul_i32 s{sCtx}, s{sR5}, {160*8192}
          s_and_b32 s{t0_}, s{sW}, 1
          s_lshl_b32 s{t0_}, s{t0_}, 14
          s_add_u32 s{sCtx}, s{sCtx}, s{t0_}
          s_mul_i32 s{t0_}, s{sKh}, {NB0()*32768}
          s_add_u32 s{sCtx}, s{sCtx}, s{t0_}
          s_add_u32 s{sCtx}, s{sCtx}, {WS_CTX + 128*8192}
          s_sub_u32 s{t0_}, 15, s{sR5}
          s_min_u32 s{t0_}, s{t0_}, s{sR5}
          s_lshl1_add_u32 s{t0_}, s{t0_}, s{sKh}
          s_lshl_b32 s{sWt}, s{t0_}, 8
          s_add_u32 s{sWt}, s{sWt}, {32*256}
          s_and_b32 s81, s{sW}, 1
          s_lshl_b32 s81, s81, 7
          s_add_u32 s81, s81, s{sKh}
          s_lshl_b32 s81, s81, 7
          s_add_u32 s81, s81, 98304
          s_lshl_b32 s{t0_}, s{sW}, 11
          v_lshrrev_b32 v{vC5}, 4, v0
          v_bfe_u32 v{vG5}, v0, 1, 3
          v_xor_b32 v{vG5}, v{vG5}, v{vC5}
          v_lshlrev_b32 v{vG5}, 5, v{vG5}
          v_lshl_add_u32 v{vG5}, v{vC5}, 11, v{vG5}
          v_and_b32 v{vC5}, 1, v0
          v_lshl_add_u32 v{vG5}, v{vC5}, 4, v{vG5}
          v_xor_b32 v{vG5+1}, {512 if CI else 128}, v{vG5}
          v_lshrrev_b32 v{vC5}, 4, v0
          v_bfe_u32 v18, v0, 2, 2
          v_lshl_add_u32 v{vC5}, v{vC5}, 2, v18
          v_and_b32 v18, 3, v0
          v_lshlrev_b32 v18, 3, v18
          v_lshl_add_u32 v18, v{vC5}, 8, v18
          v_and_b32 v{vC5}, 7, v{vC5}
          v_lshl_add_u32 v18, v{vC5}, 5, v18
          v_xor_b32 v18, s81, v18
          v_add_u32 v{vC5}, s{t0_}, v{vL16}
          v_xor_b32 v{vC5+1}, 0x800, v{vC5}""")

def attention(g):
    p = g.p
    RA = 8
    vDK, vDV, vNI, vBad = 2, 3, 17, 1
    sSrc, sM0, sCnt, sFB, sLX, sCb = 70, 71, 72, 73, 76, 74
    def Q(qb, t): return R("v", vQ + 16*qb + 4*t)
    def S_(kb, qb): return R("v", 88 + 16*qb + 4*kb)
    def Pp(b, u, qb): return R("v", 152 + 32*(qb >> 1) + 16*b + 8*(qb & 1) + 4*u)
    def NM(qb): return R("v", 216 + 4*qb)
    def O(db, qb): return R("a", 32*qb + 4*db)
    def Lr(qb): return R("a", 128 + 4*qb)
    def F(f): return R("a", 144 + 4*(f & 15))
    mx, mc, mt, TMP = 20, 248, 252, (232, 240)
    lab = {k: "L_" + k for k in ("F1", "D", "DD", "T", "T1", "S", "SD", "TAIL")}
    def rdK(f, i): return f"ds_read_b128 {F(f)}, v{vDK} offset:{i*16384 + f*1024}"
    def rdV(f, i): return f"ds_read_b128 {F(f)}, v{vDV} offset:{i*16384 + (f & 1)*8192 + (f >> 1)*1024}"
    def dma(k, tag):
        sal = []
        if k == 0: sal = [f"s_mov_b32 m0, s{sM0}"]
        if k == 4: sal = [f"s_add_u32 m0, s{sM0}, 4096", f"s_add_u32 s{sT}, s{sSrc}, 4096"]
        return sal, f"buffer_load_dwordx4 v{vL16}, {srd(SA)}, s{sSrc if k < 4 else sT} offen offset:{(k&3)*1024} sc1 lds ;@tag={tag}"
    def act(st, i, base):
        if st == "full" or (st == "diag" and i == 0): return [base, base + 1]
        if st == "diag": return [base + 1]
        return []
    def acts(sts, i): return act(sts[0], i, 0) + act(sts[1], i, 2)
    def masked(sts, i):
        for b, st in enumerate(sts):
            if st == "diag": return 2*b + i
        return None
    def epi_head(qb):
        return [f"v_accvgpr_read_b32 v{mx+qb}, {Lr(qb)[0]}", f"v_max_f32 v{vBad}, v{vBad}, v{mx+qb}", f"v_rcp_f32 v{mx+qb}, v{mx+qb}"]
    def epi_frag(qb, t, pkm=False):
        o = []; tmp = R("v", TMP[t & 1], 8)
        for r in range(8): o.append(f"v_accvgpr_read_b32 {tmp[r]}, {O(2*t + (r >> 2), qb)[r & 3]}")
        if t == 0: o.append(f"v_mul_f32 v{mx+qb}, v{mx+qb}, v{vG+2*qb}")
        if pkm:
            sel = "op_sel_hi:[1,0]" if qb % 2 == 0 else "op_sel:[0,1]"
            for r in range(4): o.append(f"v_pk_mul_f32 {tmp[2*r:2*r+2]}, {tmp[2*r:2*r+2]}, v[{mx+(qb&2)}:{mx+(qb&2)+1}] {sel}")
        else:
            for r in range(8): o.append(f"v_mul_f32 {tmp[r]}, {tmp[r]}, v{mx+qb}")
        for r in range(4): o.append(f"v_cvt_pk_bf16_f32 {tmp[r]}, {tmp[2*r]}, {tmp[2*r+1]}")
        o.append(f"s_add_u32 s77, s{sCb + (qb>>1)}, {t*8192 + (qb&1)*4096}")
        o.append(f"buffer_store_dwordx4 {tmp[0:4]}, v{vL16}, {srd(SD)}, s77 offen {ST} ;@tag=ctx")
        return o
    def xmax():
        o = []
        for op in ("v_permlane16_swap_b32", "v_permlane32_swap_b32"):
            o += [f"v_mov_b32 v{mc+qb}, v{mx+qb}" for qb in range(4)]
            o += [f"{op} v{mc+qb}, v{mx+qb}" for qb in range(4)]
            o += [f"v_max_f32 v{mx+qb}, v{mx+qb}, v{mc+qb}" for qb in range(4)]
        return o

    def group(cur, prev, first=False, lastg=False, hook=None, name=None, extra=None):
        mf = []; rs = []
        for i in range(2):
            qk = acts(cur, i); pv = acts(cur, 0) if i == 1 else acts(prev, 1); mq = masked(cur, i)
            r = dict(g0=len(mf), qk=qk, pv=pv, mq=mq, tiles=[], fu=[None]*32, lu=[None]*32)
            k = 0
            for kb in range(4):
                qs = [qk[x] for x in snake(len(qk), kb)]
                if mq is not None and kb == 0: qs = [x for x in qs if x != mq] + [mq]
                for qb in qs:
                    st = len(mf)
                    for q_, t in enumerate(snake(4, k)):
                        c = None
                        if q_ == 0 and qb != mq: c = 0 if (first and i == 0 and kb == 0) else NM(qb)
                        f = 4*kb + t
                        if r["fu"][f] is None: r["fu"][f] = len(mf)
                        r["lu"][f] = len(mf)
                        mf.append(mfma(S_(kb, qb), F(f), Q(qb, t), c))
                    k += 1
                    r["tiles"].append((kb, qb, st, len(mf) - 1))
            r["pv0"] = len(mf); k = 0; r["od"] = {}
            for qb in pv:
                for u in range(2): mf.append(mfma(Lr(qb), ONES, Pp(i ^ 1, u, qb), 0 if (first and u == 0) else None))
                r["od"][("l", qb)] = len(mf) - 1
            for db in range(8):
                for qb in [pv[x] for x in snake(len(pv), db)]:
                    for q_, u in enumerate(snake(2, k)):
                        f = 16 + 2*db + u
                        if r["fu"][f] is None: r["fu"][f] = len(mf)
                        r["lu"][f] = len(mf)
                        mf.append(mfma(O(db, qb), F(f), Pp(i ^ 1, u, qb), 0 if (first and q_ == 0) else None))
                    k += 1; r["od"][(db, qb)] = len(mf) - 1
            r["end"] = len(mf); rs.append(r)
        N = len(mf); S = Sched(mf)
        head = []
        for i, r in enumerate(rs):
            g0, n = r["g0"], r["end"] - r["g0"]; nq, npv = len(r["qk"]), len(r["pv"])
            single = (nq, npv) == (2, 2)
            knext = not (lastg and i == 1)
            if single:
                dg = [0, 0, 1, 3, 3, 4, 6, 6, 12, 14, 16, 18, 22, 24, 24, 26, 30, 32, 32, 34, 38, 40, 42, 46, 50, 52, 54, 58, 60, 62, 66, 67]
                mg = [2, 5, 20, 28, 36, 44, None, 56, 64]; bg = 48
                eg = [7, 8, 9, 10, 11] + [13 + 2*x for x in range(27)]
                cg = [12, 14, 16] + [4*x + 6 for x in range(3, 16)]
            else:
                bg = n - max(int(n * 0.27), 12)
                if npv == 0: bg = n - 18
                dg = None
                mg = [2 + (q_ * (bg - 4)) // 6 for q_ in range(6)] + [None] + [bg + 4, bg + 4 + (n - bg - 4) // 2]
            for d in range(32):
                f = d + RA
                if d == 32 - RA:
                    wt = ("kvB" if i == 0 else "kvA") + (",v0,ob" if first else "")
                    S.add("X", [f"WAITVM {wt}", "s_barrier"], g0 + bg, g0 + bg, chain="rd")
                if f < 16:
                    txt = rdK(f, i); fu = r["fu"][f]; free = g0
                elif f < 32:
                    if npv == 0: continue
                    txt = rdV(f - 16, i); fu = r["fu"][f]; free = r["lu"][f - 16]
                else:
                    f -= 32
                    if knext: txt = rdK(f, i ^ 1)
                    else: txt = rdV(f, 0)
                    fu = r["end"] + 4 + f; free = r["lu"][16 + f] if npv else r["lu"][f]
                if dg: lo = hi = g0 + dg[d]; assert lo >= free and lo <= fu - 6, (d, lo, free, fu)
                else:
                    if d < 32 - RA: hi = min(fu - 8, g0 + bg - 1); lo = min(max(free, g0 + (d * bg) // 24 - 6), hi)
                    else: hi = min(r["end"] - 1, fu - 10 + (f >> 2) * 4); lo = min(max(free, g0 + bg + 1), hi)
                    hi = max(hi, free); lo = max(lo, free)
                it = S.add("D", txt, lo, hi, chain="rd"); it["dd"] = first or lastg
                if not dg: it["early"] = free if d < 32 - RA else lo
            tA, tB = ("kvA", "kvB") if i == 0 else ("kvB", "kvA")
            for q_, gq in enumerate(mg):
                if gq is None: continue
                k = q_ + 2 if q_ < 6 else q_ - 7
                if lastg and (i == 1 or q_ > 6): continue
                sal, dd = dma(k, tA if q_ < 6 else tB)
                if k == 0: sal = [f"s_xor_b32 s{sM0}, s{sM0}, {16384 if i == 0 else 16384 + 32768}", f"s_add_u32 s{sSrc}, s{sSrc}, 32768"] + sal
                if single:
                    sg_ = {0: (45, 49, 53), 4: (9, 13)}.get(k, ())
                    for x, s_ in zip(sg_, sal): S.add("S", s_, g0 + x, g0 + x, chain="m")
                    S.add("M", dd, g0 + gq, g0 + gq, chain="m")
                else:
                    S.add("M", dd, g0 + gq, min(g0 + gq + 3, (g0 + bg - 1) if q_ < 6 else r["end"] - 1), chain="m", pre=sal, sep=3)
                    if extra and extra[0] == i and k in (3, 7):
                        for sal2, d2 in extra[1][(k >> 2)*4:(k >> 2)*4 + 4]: S.add("M", d2, g0 + gq, chain="m", pre=sal2, sep=3)
            if i == 1:
                lastK = g0 + (dg[15 - RA] if dg else r["fu"][15] - g0 - 8)
                S.add("A", f"v_xor_b32 v{vDK}, 0x8000, v{vDK}", max(lastK + 1, g0), g0 + bg - 1)
                if knext: S.add("A", f"v_xor_b32 v{vDV}, 0x8000, v{vDV}", g0 + bg + 1, N - 1)
                else: S.chains["rd"][[x["kind"] for x in S.chains["rd"]].index("X", len(S.chains["rd"]) - RA - 1)]["text"].append(f"v_xor_b32 v{vDV}, 0x8000, v{vDV}")
            nt = len(r["tiles"]); e = 0
            nxt = {(kb, qb): st for kb, qb, st, _ in rs[1]["tiles"]} if i == 0 else {}
            span0 = g0 + 8; span1 = r["end"] - 2
            if first and i == 0: span0 = g0 + 4*nq; span1 = r["end"] + 40
            if first and i == 1: span0 = g0 + 40
            for x, (kb, qb, st, en) in enumerate(r["tiles"]):
                s = S_(kb, qb); ch = ("sm", kb, qb); pdst = Pp(i, kb >> 1, qb)
                lim = nxt[(kb, qb)] - (7 if rs[1]["mq"] == qb else 1) if (kb, qb) in nxt else N - 1
                if not first: lim = min(lim, r["end"] - 1)
                if i == 0 and qb in rs[1]["pv"]: lim = min(lim, rs[1]["pv0"] - 3)
                if qb == r["mq"]:
                    src = "0" if (first and i == 0 and kb == 0) else str(NM(qb)[0])
                    for r_ in range(4):
                        c = f"v_cndmask_b32 {s[r_]}, {src}, v{vNI}, {msk(4*kb + r_)}"
                        if st - 3 < 0: head.append(c)
                        else: S.add("A", c, (g0 + 4*nq) if (first and i == 0 and kb > 0) else (0 if i == 0 else max(g0 - 20, 0)), st - 3, chain=ch)
                lo = en + 7
                if first and i == 0 and kb == 0:
                    lo = g0 + 4*nq
                    for r_ in range(4): S.add("A", f"v_add_f32 {s[r_]}, {s[r_]}, {NM(qb)[0]}", lo, lim - 4, chain=ch)
                for r_ in range(4):
                    pace_ = span0 + ((e + 1) * (span1 - span0)) // (4 * nt)
                    elo, ehi, clo, chi = min(lo, lim - 1), min(max(pace_, lo), lim - 1), min(lo, lim), min(lim, max(pace_, lo) + 8)
                    if single: elo = ehi = g0 + eg[e]; clo = chi = g0 + cg[e >> 1]
                    e += 1
                    S.add("E", f"v_exp_f32 {s[r_]}, {s[r_]}", elo, ehi, chain=ch)
                    if r_ & 1:
                        it = S.add("A", f"v_cvt_pk_bf16_f32 {pdst[2*(kb & 1) + (r_ >> 1)]}, {s[r_-1]}, {s[r_]}", clo, chi, chain=("cv", i, kb, qb, r_), sep=1)
                        it["after"] = S.chains[ch][-1]; it["soft"] = True
                        if r_ == 3: r.setdefault("lastcv", {})[(kb, qb)] = [it, S.chains[("cv", i, kb, qb, 1)][0]]
            if first and i == 0:
                blk = ["s_nop 1"]
                for qb in [x[1] for x in r["tiles"][:4]]:
                    a = S_(0, qb); blk += [f"v_max3_f32 v{mx+qb}, {a[0]}, {a[1]}, {a[2]}", f"v_max_f32 v{mx+qb}, v{mx+qb}, {a[3]}"]
                blk += xmax() + [f"s_cmp_eq_u32 s{sFB}, 0", "s_cselect_b64 vcc, 0, -1"]
                blk += [f"v_cndmask_b32 v{mx+qb}, v{mx+qb}, v{mt+qb}, vcc" for qb in range(4)]
                for qb in (3, 2, 1, 0): blk += [f"v_sub_f32 {NM(qb)[r_]}, 0, v{mx+qb}" for r_ in range(4)]
                S.add("X", blk, g0 + 4*nq - 1, g0 + 4*nq - 1)
        if rs[1]["mq"] is not None:
            for kb in range(4):
                key = (kb, rs[1]["mq"]); its = S.chains[("sm",) + key]
                k0 = [x for x in its if "cndmask" in x["text"][0]][-4]
                k0["after"] = rs[0]["lastcv"][key]
        if hook: hook(S, rs)
        return head + (["s_nop 0"] if head else []) + S.run(name)

    FULL2, LD, TR, TD, NONE = ("full", "full"), ("diag", "full"), ("off", "full"), ("off", "diag"), ("off", "off")
    def add_cpf(S, lo, hi, exprs):
        if OPT.get("nocpf"): return
        for e_ in exprs:
            pre, d = cpf(e_); S.add("M", d, lo, hi, chain="cpf", pre=pre, sep=3 if lo >= 0 else 0)
    def hook_first(S, rs):
        lo = rs[1]["g0"] + 40; N = rs[1]["end"]
        pre, d = signal(SF, f"s{t1_}", 0, "ob")
        for c in [pre[0], pre[1].replace("v1,", "v19,")] + L(f"""s_lshr_b32 s{t1_}, s{sH}, 4
              s_lshl1_add_u32 s{t1_}, s{sJ}, s{t1_}
              s_lshl_b32 s{sSig}, s{t1_}, 8
              s_add_u32 s{sSig}, s{sSig}, {32*256}
              s_add_u32 s{t3_}, s{sH}, {32 - 4*NB0()}
              s_lshr_b32 s{t3_}, s{t3_}, 5
              s_lshl1_add_u32 s{t3_}, s{sJ}, s{t3_}
              s_lshl_b32 s{t3_}, s{t3_}, 8
              s_add_u32 s{t3_}, s{t3_}, {32*256}
              s_lshl_b32 s{t1_}, s{sFB}, 16
              s_xor_b32 s{t2_}, s{sWt}, 256
              s_add_u32 s{t2_}, s{t2_}, s{t1_}
              s_add_u32 s{t1_}, s{t1_}, s{t3_}"""): S.add(kind(c), c, lo, chain="sig", sep=1)
        d = d.replace("v1,", "v19,"); ol = one_lane(d); ol.insert(2, d.replace(f"s{t1_} offen", f"s{t2_} offen"))
        S.add("X", ol, lo, N - 2, chain="sig", sep=1)
        S.add("A", "v_mul_u32_u24 v19, 52, v0", lo, N - 1, chain="sig", sep=1)
        if rs[1]["mq"] is None: add_cpf(S, lo, N - 1, [f"{lab['D']}-L_pc+{4096*k}" for k in range(3)])
        else: add_cpf(S, lo, N - 1, [f"{lab['T']}-L_pc+{4096*k}" for k in range(2)])
    def add_epi(S, r, qb, ts, hi, head=False):
        def put(cs_, lo):
            for c in cs_: S.add("M" if c.startswith("buffer") else kind(c), c, min(lo, hi), hi, chain="epi")
        if head: put(epi_head(qb), r["od"][("l", qb)] + 8)
        for t in ts: put(epi_frag(qb, t), r["od"][(2*t + 1, qb)] + 8 if r else 8)
    def hook_dd(S, rs):
        add_cpf(S, 2, rs[1]["end"] - 1, [f"{lab['T']}-L_pc", f"{lab['T']}-L_pc+4096", f"{lab['T1']}-L_pc", f"{lab['T1']}-L_pc+4096"])
    def hook_e0(S, rs): add_epi(S, rs[1], 0, (0, 1, 2), rs[1]["end"], True)
    def hook_t(S, rs):
        add_epi(S, None, 0, (3,), rs[0]["pv0"] + 10); add_epi(S, rs[0], 1, (0, 1, 2, 3), rs[1]["g0"] + 10, True)
    def hook_last(S, rs):
        g1 = rs[1]["g0"]; N = rs[1]["end"]
        S.add("M", f"buffer_load_dword v19, off, {srd(SF)}, s{sWt} sc1", -1, -1, chain="p5")
        for c in (f"s_mul_i32 s{t3_}, s{sKh}, {8*NB0() - 32}", f"s_sub_u32 s{t3_}, {16 + 4*NB0()}, s{t3_}"): S.add("S", c, 14, g1 - 20, chain="p5")
        S.add("X", g.spin(19, SF, f"s{sWt}", 0, f"s{t3_}"), g1 - 16, g1 - 16, chain="p5")
        for k, (sal, d) in enumerate(p5_cld(0, 0) + p5_cld(1, 1)): S.add("M", d, g1 - 14 if k < 8 else g1, N - 1, chain="p5", pre=sal, sep=2)
        add_cpf(S, -1, -1, [f"{lab['TAIL']}-L_pc", f"{lab['TAIL']}-L_pc+4096", "L_p5f0-L_pc", "L_p5f0-L_pc+4096"][:OPT.get("ncp", 4)])
        add_epi(S, rs[1], 2, (0,), N, True)
    def both(*hs):
        def h(S, rs):
            for x in hs: x(S, rs)
        return h
    def first_group(cur, name, hook, extra=None):
        seq = [rdK(f, 0) for f in range(RA)]
        for k in range(2):
            sal, d = dma(k, "kvA"); seq += sal + (["s_nop 0"] if k == 0 else []) + [d]
        return seq + group(cur, NONE, first=True, hook=hook, name=name, extra=extra)

    START = p.new("attstart")
    q = [f"v_mov_b32 v{vNI}, 0xff800000"]
    q += [START + ":"] + L(f"""v_mov_b32 v{vDK}, v{vL16}
          v_add_u32 v{vDV}, 0x10000, v{vL16}
          v_mov_b32 v{vBad}, 0
          WAITVM k0 L
          s_barrier""") + stamp(6)
    g.emit(q)
    st0 = (list(g.lg), list(g.vm))
    def setst(s): g.lg, g.vm = list(s[0]), list(s[1])
    def getst(): return (list(g.lg), list(g.vm))
    cs = ([([("a", 144 + 4*f + r) for r in range(4)], 0) for f in range(RA)], [("kvB", [])] * 8 + [("kvA", [])] * 2)
    def chk():
        a = [r for r, _ in g.lg]; b = [r for r, _ in cs[0]]
        assert a == b[len(b) - len(a):], a
    EG = 6
    p(f"s_cmp_eq_u32 s{sJ}, 0\ns_cbranch_scc1 {lab['F1']}")
    g.emit(first_group(FULL2, "F0", hook_first), EG); chk()
    g.emit(stamp(12))
    p(f"s_sub_u32 s{sCnt}, s{sJ}, 1\ns_cmp_eq_u32 s{sCnt}, 0\ns_cbranch_scc1 {lab['DD']}")
    def hook_cnt(S, rs):
        N = rs[1]["end"]
        S.add("S", f"s_sub_u32 s{sCnt}, s{sCnt}, 1", N - 11, N - 11); S.add("S", f"s_cmp_lg_u32 s{sCnt}, 0", N - 7, N - 7)
        if not OPT.get("wb", 0) and not OPT.get("nopf") and N > 200:
            S.add("M", f"buffer_load_dword a{aDUM}, v19, {srd(SC)}, s81 offen ;@dummy", 5, 5, chain="wo")
            S.add("S", f"s_add_u32 s81, s81, {128*3328}", 15, 17, chain="wo")
        if N > 200: add_cpf(S, N - 30, N - 14, [f"{lab['DD']}-L_pc", f"{lab['DD']}-L_pc+4096"])
    p(".p2align %d" % OPT.get("pa", 3)); p(["s_nop 0"] * OPT.get("pn", 0)); p.label(lab["D"]); setst(cs)
    g.emit(group(FULL2, FULL2, hook=hook_cnt, name="D"), EG); chk()
    p(f"s_cbranch_scc1 {lab['D']}")
    p.label(lab["DD"]); setst(cs)
    g.emit(stamp(13) + group(LD, FULL2, hook=both(hook_dd, hook_e0), name="DD", extra=(0, p5_wdma(0, 0))), EG); chk()
    p(f"s_cmp_eq_u32 s{sJ}, 7\ns_cbranch_scc1 {lab['T1']}")
    p.label(lab["T"]); setst(cs)
    g.emit(stamp(14) + group(TR, LD, hook=hook_t, name="T") + stamp(15), EG); chk()
    p(f"s_lshl_b32 s{sCnt}, s{sJ}, 1\ns_sub_u32 s{sCnt}, 13, s{sCnt}")
    p(".p2align %d" % OPT.get("pa", 3)); p(["s_nop 0"] * OPT.get("pn", 0)); p.label(lab["S"]); setst(cs)
    g.emit(group(TR, TR, hook=hook_cnt, name="S"), EG); chk()
    p(f"s_cbranch_scc1 {lab['S']}")
    setst(cs)
    g.emit(stamp(16) + group(TD, TR, lastg=True, hook=hook_last, name="SD"), EG, name="SD"); chk()
    ts = (cs[0], list(g.vm)); setst(ts)
    p.label(lab["TAIL"])
    mf = [mfma(Lr(3), ONES, Pp(1, u, 3)) for u in range(2)]
    for db in range(8): mf += [mfma(O(db, 3), F(2*db + u), Pp(1, u, 3)) for u in snake(2, db)]
    S = Sched(mf)
    for f in range(8, 16): S.add("D", rdV(f, 0), -1 if f < 12 else 0, -1 if f < 12 else 1, chain="rd")["dd"] = True
    for k, (sal, d) in enumerate(p5_wdma(1, 1)): S.add("M", d, 3 + 2*k, 3 + 2*k, chain="p5", pre=sal)
    e1 = epi_frag(2, 1)
    for c in e1[:-2]: S.add("A", c, 2, chain="epi")
    seq = stamp(17) + S.run("tail") + e1[-2:] + stamp(7)
    seq += epi_head(3) + L(f"""s_mov_b32 s{t0_}, {f32(LTHR if not OPT.get('forcefb') else 0.0)}
          v_cmp_le_f32 vcc, s{t0_}, v{vBad}
          s_lshl_b32 s{t1_}, s{sW}, 2
          s_cmp_lg_u64 vcc, 0
          s_cselect_b32 s{t0_}, 1, 0
          v_mov_b32 v248, s{t1_}
          v_mov_b32 v249, s{t0_}
          ds_write_b32 v248, v249""") + epi_frag(2, 2, True) + epi_frag(2, 3, True)
    for t in range(4): seq += epi_frag(3, t, True)
    FB = p.new("fallback")
    seq += L(f"""v_mov_b32 v248, 0
          s_waitcnt lgkmcnt(0)
          s_barrier
          ds_read_b128 v[248:251], v248""") + stamp(8)
    g.emit(seq)
    g.fbcheck = L(f"""v_or3_b32 v248, v248, v249, v250
          v_or_b32 v248, v248, v251
          s_nop 0
          v_readfirstlane_b32 s{t0_}, v248 ;@val=0
          s_nop 0
          s_cmp_gt_u32 s{t0_}, s{sFB}
          s_cbranch_scc1 {FB} ;@br=fb""")
    es = getst()
    main = g.p; g.p = P(); g.p.uid = main.uid + 1000
    g.p.label(lab["F1"]); setst(st0)
    g.emit(first_group(LD, "F1", both(hook_first, hook_e0), (1, p5_wdma(0, 0))) + stamp(12) + stamp(13), EG); chk()
    g.p(f"s_branch {lab['T']}")
    g.p.label(lab["T1"]); setst(cs)
    g.emit(stamp(14) + stamp(15) + stamp(16) + group(TD, LD, lastg=True, hook=both(hook_t, hook_last), name="T1"), EG); chk()
    def sig_(vm): return [(t, tuple(r)) for t, r in vm if (t and t.startswith("w5")) or r]
    assert sig_(g.vm) == sig_(ts[1])[len(sig_(ts[1])) - len(sig_(g.vm)):], (sig_(g.vm), sig_(ts[1]))
    g.p(f"s_branch {lab['TAIL']}")
    g.p.label(FB); setst(([], []))
    sU = 81
    q = L(f"""s_waitcnt vmcnt(0) lgkmcnt(0)
          s_barrier
          s_mov_b32 s{sFB}, 1
          s_mov_b32 s{sU}, 0
          v_and_b32 v232, 15, v0
          v_lshrrev_b32 v233, 4, v0
          v_lshlrev_b32 v233, 2, v233
          v_sub_u32 v232, v232, v233
          s_lshl_b32 s{t0_}, s{sW}, 4
          v_add_u32 v232, s{t0_}, v232
          s_lshl_b32 s{t0_}, s{sBHi}, 7
          v_add_u32 v234, s{t0_}, v232
          s_lshl_b32 s{t0_}, s{sJ}, 7
          v_add_u32 v232, s{t0_}, v232
          v_add_u32 v233, 64, v232
          v_add_u32 v235, 64, v234""")
    for sal, d in att_first_dmas(sLX): q += sal + ["s_nop 0", d]
    for qb in range(4): q.append(f"v_mov_b32 v{mx+qb}, 0xff800000")
    FL = g.p.new("fbl"); q.append(FL + ":")
    for f in range(8):
        if f == 4: q.append(f"s_add_u32 s{sT}, s{sU}, 4096")
        q.append(f"buffer_load_dwordx4 {F(f)}, v{vL16}, {srd(SA)}, s{sU if f < 4 else sT} offen offset:{(f&3)*1024} sc1")
    for qb in range(4):
        for kb in range(2):
            for r in range(4):
                c = S_(kb, qb)[r]
                q += [f"v_subrev_u32 {c}, {16*kb + r}, v{232+qb}", f"v_ashrrev_i32 {c}, 31, {c}", f"v_and_b32 {c}, 0xff800000, {c}"]
        q.append(f"v_subrev_u32 v{232+qb}, 32, v{232+qb}")
    q.append("s_waitcnt vmcnt(0)")
    for f in range(8):
        for qb in range(4): q.append(mfma(S_(f >> 2, qb), F(f), Q(qb, f & 3)))
    q.append("s_nop 7")
    for qb in range(4):
        for kb in range(2):
            a = S_(kb, qb)
            q += [f"v_max3_f32 v{mx+qb}, v{mx+qb}, {a[0]}, {a[1]}", f"v_max3_f32 v{mx+qb}, v{mx+qb}, {a[2]}, {a[3]}"]
    q += L(f"s_add_u32 s{sU}, s{sU}, 16384\ns_cmp_lt_u32 s{sU}, s{SA+2}\ns_cbranch_scc1 {FL}")
    q += xmax()
    q += [f"v_mov_b32 v{mt+qb}, v{mx+qb}" for qb in range(4)] + att_scalars()
    q.append(f"s_branch {START}")
    g.emit(q)
    g.ool += g.p.l; main.uid = g.p.uid + 1000; g.p = main
    setst(es)

def phase5(g):
    p = g.p
    vD = 184
    sCnt = 70
    CO = [4, 5, 6, 7, 0, 1, 2, 3]
    def acc(rb, cb): return R("v", 24 + 32*rb + 4*cb)
    def fw(j, s): return R("a", 64 + 8*j + 4*s)
    def wread(sl, j, slot=None):
        win, off = ((0, 32768), (1, 0), (1, 32768), (0, 0), (2, 0))[sl]
        return [f"ds_read_b64_tr_b16 {fw(j if slot is None else slot, s)[2*i:2*i+2]}, v{vD + 8*win + CO[j]} offset:{off + s*8192 + i*4096}" for s in range(2) for i in range(2)]
    NPRE = 3
    q = [f"v_xor_b32 v{vD+n}, {32*n}, v18" for n in CO[:NPRE]]
    for j in range(NPRE): q += wread(0, j)
    q += [f"v_xor_b32 v{vD+n}, {32*n}, v18" for n in CO[NPRE:]] + g.fbcheck
    g.emit(q)
    BP = 40
    xs = L(f"""s_xor_b32 s{t0_}, s2, 1
          s_lshl2_add_u32 s{t0_}, s{t0_}, s{sW}
          s_lshl_b32 s73, s{t0_}, 12
          s_add_u32 s73, s73, {WS_XCH}
          s_lshl2_add_u32 s{t0_}, s2, s{sW}
          s_lshl_b32 s75, s{t0_}, 12
          s_add_u32 s75, s75, {WS_XCH}
          s_lshl_b32 s77, s{sR5}, 18
          s_lshl_b32 s{t0_}, s{sW}, 16
          s_add_u32 s77, s77, s{t0_}
          s_add_u32 s77, s77, s{sCol}
          s_lshl_b32 s{t0_}, s{sKh}, {9 if OPT.get("ci", 0) else 7}
          s_add_u32 s77, s77, s{t0_}
          v_lshlrev_b32 v1, 24, v0
          v_and_b32 v8, 7, v0
          v_lshlrev_b32 v8, 11, v8
          v_bfe_u32 v10, v0, 3, 1
          v_lshl_add_u32 v8, v10, 6, v8
          v_bfe_u32 v10, v0, 4, 1
          v_lshl_add_u32 v8, v10, 5, v8
          v_lshrrev_b32 v10, 5, v0
          v_lshl_add_u32 v8, v10, 4, v8
          v_add_u32 v2, s{sL5}, v{vL16}
          v_xor_b32 v3, 0x2000, v2
          v_mov_b32 v232, 0
          v_mov_b32 v233, 0
          v_mov_b32 v236, 0
          v_mov_b32 v237, 0
          v_and_b32 v9, 1, v0
          v_lshlrev_b32 v9, 4, v9
          v_mov_b32 v10, 0x3f80
          v_lshlrev_b32 v9, v9, v10
          v_lshrrev_b32 v10, 4, v0
          v_lshlrev_b32 v10, 1, v10
          v_bfe_u32 v11, v0, 1, 3
          v_xor_b32 v10, v10, v11
          v_subrev_u32 v11, 1, v10
          v_ashrrev_i32 v11, 31, v11
          v_and_b32 v234, v11, v9
          v_xor_b32 v10, 1, v10
          v_subrev_u32 v11, 1, v10
          v_ashrrev_i32 v11, 31, v11
          v_and_b32 v235, v11, v9""")
    def tmp(rb, c): return R("v", 200 + 16*rb + 4*c)
    G2 = OPT.get("g2", 1)
    def mfs(prs, czero):
        mf = []; dn = {}; k = 0
        for x, (sl, j) in enumerate(prs):
            for rb in snake(4, j + 1):
                for q_, s in enumerate(snake(2, k)):
                    mf.append(mfma(acc(rb, CO[j]), fw(x & 7, s), p5_ctx(sl, rb, s), 0 if (czero and x < 8 and q_ == 0) else None))
                k += 1; dn[(rb, CO[j])] = len(mf) - 1
        return mf, dn
    def pacer(S):
        def pace(items, lo, hi):
            its = []
            for k, (sal, d) in enumerate(items):
                x = lo + (k * (hi - lo)) // len(items)
                its.append(S.add("M", d, x, min(x + 2, S.n - 1), chain="ld", pre=sal, sep=2))
            return its[0]
        return pace
    def first(role):
        nb = NB0() if role == 0 else 8 - NB0()
        na4 = 4 if nb == 2 else 0
        ns = nb + na4
        sl = {3: [0, 1, 3], 4: [0, 1, 2, 3], 5: [0, 1, 2, 4, 3], 6: [0, 1, 3, 4, 2, 3]}[ns] + [0, 1, 2]
        S = Sched(mfs([(sl[st], j) for st in range(ns) for j in range(8)], True)[0]); pace = pacer(S)
        gs = 8 if G2 else 4
        def arel(k): return k - nb if (k < ns or not na4) else k - ns + gs
        def W(k): return p5_wdma(sl[k], k, SB) if k < nb else p5_wdma(sl[k], arel(k), SC)
        def C(k): return p5_cld(sl[k], k if k < nb else arel(k))
        sigst = OPT.get("sig%d" % role, 1)
        EG_ = OPT.get("eg%d" % role, role if nb > 2 else 0)
        swW = f"s_add_u32 s{sWo5}, s{sWo5}, {(4<<20) - NB0()*262144}"
        if nb == 2 and role: S.add("S", swW, -1, -1, chain="ld")
        for st in range(ns):
            g0 = 64 * st; B = g0 + BP; dr = sl[st + 3] == sl[st]
            for j in range(NPRE, 8):
                for r in wread(sl[st], j): S.add("T", r, max(g0 + 8*j - 30, g0), min(g0 + 8*j - 8, B - (5 if dr else 1)), chain="t")
            S.add("X", [f"WAITVM w5_{sl[st+1]}" + (",ctx" if st == sigst else "") + (" L" if dr else ""), "s_barrier"], B, B, chain="t")
            for j in range(NPRE):
                for r in wread(sl[st + 1], j): S.add("T", r, B + 1, min(g0 + 64 + 8*j - 8, g0 + 63), chain="t")
            na = 6 if (st == nb - 2 and not EG_) else 5
            gate = g.spin(19, SF, "s72", 0, 8 if G2 else 16) + [f"s_sub_u32 s{sCtx}, s{sCtx}, {128*8192 - role*(64*8192 - NB0()*32768)}"] + stamp(9) if st == nb - 1 - EG_ else None
            poll = f"buffer_load_dword v19, off, {srd(SF)}, s72 sc1"
            wr = W(2) if st == 0 else W(st + 2)[5:]
            if EG_:
                if gate: S.add("X", gate, g0, g0, chain="ld")
                pace(wr + C(st + 2), g0 + 2, B - 1)
                if st == nb - 3: S.add("M", poll, B - 1, B + 2, chain="ld")
            elif st == nb - 2:
                pace(wr, g0 + 2, g0 + 28)
                S.add("M", poll, g0 + 30, g0 + 36, chain="ld")
            elif st == nb - 1:
                S.add("X", gate, g0, g0, chain="ld")
                pace(C(nb) + W(nb + 1)[6:] + C(nb + 1), g0 + 2, B - 1)
            else: pace(wr + C(st + 2), g0 + 2, B - 1)
            if st + 3 == nb and role: S.add("S", swW, B - 1, B + 3, chain="ld")
            pace(W(st + 3)[:na], B + 5, g0 + 64)
            if st == sigst:
                pre, d = signal(SF, "s71", 0, "ctx")
                S.add("S", pre[0], B - 12, B - 4, chain="sig"); S.add("A", pre[1], B - 12, B - 1, chain="sig", sep=1)
                S.add("X", one_lane(d), B + 1, B + 1, chain="sig")
        fin = [f"s_mov_b32 s{sCnt}, {2 if na4 else 3}", f"s_mov_b32 s73, {1 if not G2 else -1 if na4 else 2}"]
        if na4: fin += [f"s_add_u32 s{sWo5}, s{sWo5}, {gs*262144}", f"s_add_u32 s{sCtx}, s{sCtx}, {gs*32768}"]
        for c in fin: S.add("S", c, S.n - 6, S.n, chain="ld")
        nb = ns
        for n in range(8): S.add("A", f"v_xor_b32 v{vD+8+n}, 0x10000, v{vD+n}", 0, BP - 1)
        if nb >= 5:
            for n in range(8): S.add("A", f"v_xor_b32 v{vD+16+n}, 0x18000, v{vD+n}", 64, 128)
        for c in [f"s_and_b32 s71, s{sH}, {4 if G2 else 0}", "s_lshl_b32 s71, s71, 5", f"s_add_u32 s71, s71, s{sSig}", "s_add_u32 s71, s71, 4096", f"s_add_u32 s72, s{sWt}, 4096"]: S.add("S", c, 4, 28, chain="sc")
        if not OPT.get("nocpf"):
            for k in range(3):
                pre, d = cpf("L_p5loop-L_pc+%d" % (4096*k)); x = 64*(nb - 2) + 18
                S.add("M", d, x + 3*k, x + 20, chain="cpf", pre=pre, sep=3)
        return S.run("p5first%d" % role)
    def body(kd):
        prs = [(st, j) for st in range(4) for j in range(8)]
        if kd == "last": prs = prs[:16] + [(2, j) for j in range(4)] + [(3, j) for j in range(4)] + [(2, j) for j in range(4, 8)] + [(3, j) for j in range(4, 8)]
        mf, dn = mfs(prs, False)
        S = Sched(mf); pace = pacer(S)
        for st in range(4):
            g0 = 64 * st; B = g0 + BP
            if kd == "last" and st >= 2:
                for x in range(8*st + (NPRE if st == 2 else 0), 8*st + 8):
                    if x == 20: S.add("X", ["WAITVM w5_3", "s_barrier"], g0 + 6, g0 + 6, chain="t")
                    for r in wread(prs[x][0], prs[x][1], x & 7): S.add("T", r, max(8*x - 30, 128), 8*x - 8, chain="t")
                continue
            for j in range(NPRE, 8):
                for r in wread(st, j): S.add("T", r, max(g0 + 8*j - 30, g0), min(g0 + 8*j - 8, B - 1), chain="t")
            S.add("X", [f"WAITVM w5_{(st+1)&3}", "s_barrier"], B, B, chain="t")
            for j in range(NPRE):
                for r in wread((st + 1) & 3, j): S.add("T", r, B + 1, min(g0 + 64 + 8*j - 8, g0 + 63), chain="t")
            def batch(x): return [] if (kd == "last" and x >= 4) else p5_wdma(x & 3, x & 3, SC) + p5_cld(x & 3, x & 3)
            if kd == "loop" and st == 2:
                if G2: S.add("X", g.spin(19, SF, "s72", 128, "s74"), g0, g0, chain="ld")
                for c in (f"s_lshl_b32 s75, s73, 17", f"s_add_u32 s{sCtx}, s{sCtx}, s75"): S.add("S", c, g0 - 20, g0 + 6, chain="ac")
            if batch(st + 2): pace(batch(st + 2)[5:], g0 + (3 if st == 2 else 1), B - 1)
            if kd == "loop" and st == 1:
                for c in (f"s_lshl_b32 s75, s73, 20", f"s_add_u32 s{sWo5}, s{sWo5}, s75", "s_lshr_b32 s74, s73, 28", "s_and_b32 s74, s74, 8"): S.add("S", c, g0 + 16, B, chain="ac")
                if G2: S.add("M", f"buffer_load_dword v19, off, {srd(SF)}, s72 offset:128 sc1", g0 - 1, g0, chain="pl")
            if batch(st + 3): pace(batch(st + 3)[:5], B + 3, g0 + 64)["prelo"] = B + 1
        if kd == "loop":
            for c in ([f"s_sub_u32 s73, 1, s73"] if G2 else []) + [f"s_sub_u32 s{sCnt}, s{sCnt}, 1", f"s_cmp_lg_u32 s{sCnt}, 0"]: S.add("S", c, 250, 256, chain="ld")
        if kd == "last":
            for c in xs + mk_srd(SE, sOUT, 4 << 20): S.add(kind(c), c, 108, 165, chain="x")
            for c in range(4):
                for rb in snake(2, c + 1):
                    S.add("M", f"ds_write_b128 v3, {acc(2 + rb, 4 + c)} offset:{rb*4096 + c*1024}", dn[(2 + rb, 4 + c)] + 7, dn[(2 + rb, 4 + c)] + 9, chain="x")
            S.add("X", ["s_waitcnt lgkmcnt(0)", "s_barrier"], 0, 204, chain="x", sep=3)
            for rb in range(2):
                for c in range(4): S.add("D", f"ds_read_b128 {tmp(rb, c)}, v2 offset:{rb*4096 + c*1024}", 0, 205 + 2*rb + (c >> 1), chain="x")["dd"] = True
            x = 210
            for rb in range(2):
                for c2 in range(2):
                    a, b = tmp(rb, 2*c2), tmp(rb, 2*c2 + 1); x += 8
                    for c in (2*c2, 2*c2 + 1):
                        for r in range(4): S.add("A", f"v_add_f32 {tmp(rb, c)[r]}, {tmp(rb, c)[r]}, {acc(rb, 4 + c)[r]}", 210, x - 1, chain="x")
                    for d_, src, r in ((0, a, 0), (1, a, 2), (2, b, 0), (3, b, 2)): S.add("A", f"v_cvt_pk_bf16_f32 {a[d_]}, {src[r]}, {src[r+1]}", 0, x - 1, chain="x")
                    S.add("M", f"buffer_store_dwordx4 {a}, v{vL16}, {srd(SD)}, s73 offen offset:{(2*rb + c2)*1024} {ST}", 0, x, chain="x", sep=1)
            for c in range(3):
                for rb in snake(2, c + 1):
                    S.add("M", f"ds_write_b128 v3, {acc(2 + rb, c)} offset:{32768 + rb*4096 + c*1024}", dn[(2 + rb, c)] + 7, chain="x")
        return S.run("p5" + kd)
    st0 = (list(g.lg), list(g.vm))
    p(f"s_cmp_eq_u32 s{sKh}, 0\ns_cbranch_scc1 L_p5f0")
    g.emit(first(1), 8, name="p5first1")
    ent = (list(g.lg), list(g.vm))
    main = g.p; g.p = P(); g.p.uid = main.uid + 1000
    g.p.label("L_p5f0"); g.lg, g.vm = st0
    g.emit(first(0), 8); g.p("s_branch L_p5join")
    def cregs(sl): return [(None, [(p5_ctx(sl, rb, s_).f, p5_ctx(sl, rb, s_).b + k) for k in range(4)]) for s_ in range(2) for rb in range(4)]
    ent = (None, cregs(0) + [("w5_1", [])] * 2 + cregs(1) + [("w5_2", [])] * 5)
    g.ool += g.p.l; main.uid = g.p.uid + 1000; g.p = main
    p.label("L_p5join")
    p(stamp(4))
    p(".p2align 3"); p.label("L_p5loop")
    pre_ = [([("a", 64 + 2*k), ("a", 65 + 2*k)], 0) for k in range(4 * NPRE)]
    g.lg = pre_; g.vm = ent[1]
    g.emit(body("loop"), 8)
    p("s_cbranch_scc1 L_p5loop")
    g.lg = pre_
    g.emit(stamp(3) + body("last") + stamp(10), 8, name="p5last")
    def rx(k): return R("v", 152 + 4*k)
    ldx = [f"buffer_load_dwordx4 {rx(k)}, v{vL16}, {srd(SD)}, s75 offen offset:{k*1024} sc1" for k in range(4)]
    q = ldx + ["s_nop 3"]
    for rb in range(2): q.append(f"ds_write_b128 v3, {acc(2 + rb, 3)} offset:{32768 + rb*4096 + 3*1024}")
    q += L(f"""s_mov_b32 s72, 0x4000
          s_waitcnt lgkmcnt(0)
          s_barrier""")
    for rb in range(2):
        for c in range(4): q.append(f"ds_read_b128 {acc(2 + rb, c)}, v2 offset:{32768 + rb*4096 + c*1024}")
    for rb in range(2):
        for c in range(4):
            for r in range(4): q.append(f"v_add_f32 {acc(rb, c)[r]}, {acc(rb, c)[r]}, {acc(2 + rb, c)[r]}")
    q += ["L_xchk:", "s_waitcnt vmcnt(0)", "v_max3_u32 v9, v152, v153, v154"] + [f"v_max3_u32 v9, v9, v{155+2*k}, v{156+2*k}" for k in range(6)]
    q += L("""v_max_u32 v9, v9, v167
          v_cmp_eq_u32 vcc, -1, v9
          s_cbranch_vccnz L_xretry
          L_xgo:""")
    g.ool += ["L_xretry:", "s_sub_u32 s72, s72, 1", "s_cbranch_scc1 L_xgo ;@nottaken"] + ldx + ["s_branch L_xchk"]
    SEL = R("v", 232, 6)
    q += [mfma(acc(rb, c), SEL[2:6] if c % 2 == 0 else SEL[0:4], rx(2*rb + (c >> 1))) for rb in range(2) for c in range(4)] + ["s_nop 1"]
    for rb in range(2):
        for c2 in range(2):
            a, b = acc(rb, 2*c2), acc(rb, 2*c2+1)
            q += L(f"""v_cvt_pk_bf16_f32 {a[0]}, {a[0]}, {a[1]}
                  v_cvt_pk_bf16_f32 {a[1]}, {a[2]}, {a[3]}
                  v_cvt_pk_bf16_f32 {a[2]}, {b[0]}, {b[1]}
                  v_cvt_pk_bf16_f32 {a[3]}, {b[2]}, {b[3]}""")
        a, b, t_ = acc(rb, 0), acc(rb, 2), acc(rb, 1)
        q += [f"v_permlane16_swap_b32 {a[0]}, {a[2]}", f"v_permlane16_swap_b32 {a[1]}, {a[3]}", f"v_permlane16_swap_b32 {b[0]}, {b[2]}", f"v_permlane16_swap_b32 {b[1]}, {b[3]}"]
        q += [f"v_mov_b32 {t_[r]}, {a[r]}" for r in range(4)]
        q += [f"v_mov_b32_dpp {a[r]}, {b[r]} row_ror:8 row_mask:0xf bank_mask:0xc" for r in range(4)]
        q += [f"v_mov_b32_dpp {b[r]}, {t_[r]} row_ror:8 row_mask:0xf bank_mask:0x3" for r in range(4)]
        q += [f"buffer_store_dwordx4 {a}, v8, {srd(SE)}, s77 offen {OPT.get('ost', 'sc1')}", "s_add_u32 s77, s77, 16384",
              f"buffer_store_dwordx4 {b}, v8, {srd(SE)}, s77 offen {OPT.get('ost', 'sc1')}", "s_add_u32 s77, s77, 16384"]
    if OPT.get("dbgt"):
        q += L(f"""s_waitcnt vmcnt(0)
            s_memtime s[70:71]
            s_memrealtime s[72:73]
            s_waitcnt lgkmcnt(0)
            s_sub_u32 s70, s70, s96
            s_sub_u32 s72, s72, s98
            v_mov_b32 v2, s70
            v_mov_b32 v3, s72
            s_lshl_b32 s70, s2, 3
            s_add_u32 s70, s70, 8
            s_lshl_b32 s71, s{sW}, 12
            s_add_u32 s70, s70, s71""") + mk_srd(SF, 94, 64) + [f"buffer_store_dwordx2 v[2:3], v1, {srd(SF)}, s70 offen"]
    q += stamp(11) + stamp_flush()
    g.emit(q, name="final")

def build():
    g = G(); p = g.p
    hdr = open("/code/" + NAME + ".s.ref").read()
    p.l += [l for l in hdr.split("\n") if l.startswith(";") and "@launch" not in l]
    p.l.append(f"; @launch grid=(256,1,1) block=(256,1,1) lds={LDS_BYTES}")
    k = NAME + "_kernel"
    p(f'.amdgcn_target "amdgcn-amd-amdhsa--gfx950"\n.text\n.globl {k}\n.p2align 8\n.type {k},@function'); p.label(k)
    gemm12(g); attention(g); phase5(g)
    p.label("L_end"); p("s_endpgm")
    p(g.ool)
    p.label("L_codeend")
    p('.section .rodata,"a"\n.p2align 6')
    p.l += f""".amdhsa_kernel {k}
  .amdhsa_next_free_vgpr 512
  .amdhsa_next_free_sgpr 102
  .amdhsa_accum_offset 256
  .amdhsa_group_segment_fixed_size 0
  .amdhsa_kernarg_size 104
  .amdhsa_user_sgpr_count 2
  .amdhsa_user_sgpr_kernarg_segment_ptr 1
  .amdhsa_system_sgpr_workgroup_id_x 1
.end_amdhsa_kernel""".split("\n")
    return p.text()

if __name__ == "__main__":
    out = sys.argv[1]
    for a in sys.argv[2:]:
        k, _, v = a.partition("=")
        OPT[k] = True if v == "" else (int(v) if v.lstrip("-").isdigit() else v)
    txt = build()
    if OPT.get("al"):
        from align import align
        txt, n_ = align(txt, OPT["al"]); print("widened", n_)
    import subprocess, re, os
    open("_sz.s", "w").write(txt.replace("NCHUNK", "100"))
    subprocess.check_call(["clang", "-x", "assembler", "-target", "amdgcn-amd-amdhsa", "-mcpu=gfx950", "-c", "_sz.s", "-o", "_sz.o"])
    sz = int(re.search(r"\.text\s+PROGBITS\s+\S+\s+\S+\s+(\S+)", subprocess.check_output(["llvm-readelf", "-S", "_sz.o"]).decode()).group(1), 16)
    nch = 0
    print("code bytes", sz, "file", len(txt))
    open(out, "w").write(txt.replace("NCHUNK", str(nch)))
```

```python
import sys, math, struct
from genlib import P, R, mfma
from sched import Sched, resolve

NAME = "gated_mix__compressed_kv_cla__sliding_local_dilated__prompt"
WS_HALO = 58 << 20
WS_KV, WS_CTX, WS_G, WS_CNT, WS_INBOX, WS_XCH, WS_STAMP = 0, 32 << 20, 56 << 20, 57 << 20, (57 << 20) + 65536, 64 << 20, 96 << 20
LDS_BYTES = 160 * 1024
def f32(x): return "0x%08x" % struct.unpack("<I", struct.pack("<f", x))[0]
QSCALE = 128 ** -0.5 * math.log2(math.e)
BSCALE = 32 ** -0.5 * math.log2(math.e)
LTHR = 2.0 ** 60

sX, sC, sWQ, sWUK, sWUV, sWOA, sWQKV, sWOB, sGATE, sOUT, sDBG, sWS = 4, 6, 8, 10, 12, 14, 18, 20, 22, 24, 26, 28
sW, sH, sJ = 30, 31, 3
SA, SB, SC, SD, SE, SF, SG, SH = 32, 36, 40, 44, 48, 52, 56, 60
sT, sT2, sBHi = 64, 65, 16
t0_, t1_, t2_, t3_ = 66, 67, 68, 69
def srd(b): return f"s[{b}:{b+3}]"
OPT = dict(stamps=False)
ST = "sc1" if "x_plain" not in sys.argv else ""

vDX, vDQ, vGX, vGW, vL16, vDH, vDB, vDBH, vGH, vGB = 2, 4, 12, 14, 16, 17, 19, 21, 22, 23
vQ, vG = 24, 4
aONE, aDUM = 251, 252
ONES = R("a", 244)
MSK = [0, 4, 6, 8, 10, 12, 18, 22, 26, 56, 58, 60, 62, 48, 50, 100]
def msk(k): return f"s[{MSK[k]}:{MSK[k]+1}]"
def kind(c): return "S" if c.startswith("s_") else ("E" if c.startswith(("v_exp", "v_rcp")) else "A")

def L(s): return [x.strip() for x in s.strip().split("\n") if x.strip()]
def mk_srd(b, ptr, nbytes, off=None):
    if off is None: o = [f"s_mov_b32 s{b}, s{ptr}", f"s_mov_b32 s{b+1}, s{ptr+1}"]
    else: o = [f"s_add_u32 s{b}, s{ptr}, {off}", f"s_addc_u32 s{b+1}, s{ptr+1}, 0"]
    return o + [f"s_mov_b32 s{b+2}, {nbytes}", f"s_mov_b32 s{b+3}, 0x20000"]

NST = [0]
def stamp(idx):
    if not OPT["stamps"]: return []
    return L(f"""s_waitcnt lgkmcnt(0)
        s_memtime s[92:93]
        s_memrealtime s[94:95]
        v_accvgpr_write_b32 a253, v1
        v_accvgpr_read_b32 v1, a249
        s_waitcnt lgkmcnt(0)
        v_writelane_b32 v1, s92, {2*idx}
        v_writelane_b32 v1, s94, {2*idx+1}
        v_accvgpr_write_b32 a249, v1
        v_accvgpr_read_b32 v1, a253
        s_nop 1""")
def stamp_flush():
    if not OPT["stamps"]: return []
    return L(f"""s_lshl_b32 s96, s2, 2
        s_add_u32 s96, s96, s{sW}
        s_lshl_b32 s96, s96, 8
        s_add_u32 s96, s96, {WS_STAMP}
        v_lshlrev_b32 v1, 2, v0
        buffer_store_dword a249, v1, {srd(SD)}, s96 offen
        s_waitcnt vmcnt(0)""")

class G:
    def __init__(self):
        self.p = P(); self.lg = []; self.vm = []; self.ool = []
    def emit(self, seq, eager=0, name=None):
        if name: self.p.l.append(";@seg " + name)
        out, self.lg, self.vm = resolve(seq, self.lg, self.vm, eager)
        self.p(out)
    def spin(self, vreg, srdb, soff, imm, target):
        st, bk, lp = self.p.new("spin"), self.p.new("spinbk"), self.p.new("spinlp")
        self.ool += L(f"""{st}:
            s_mov_b32 vcc_hi, 0x8000
            {lp}:
            s_sleep 1
            buffer_load_dword v{vreg}, off, {srd(srdb)}, {soff} offset:{imm} sc1
            s_waitcnt vmcnt(0)
            v_readfirstlane_b32 vcc_lo, v{vreg}
            s_sub_u32 vcc_hi, vcc_hi, 1
            s_cbranch_scc1 {bk} ;@nottaken
            s_cmp_lt_u32 vcc_lo, {target}
            s_cbranch_scc1 {lp} ;@nottaken
            s_branch {bk}""")
        return L(f"""v_readfirstlane_b32 vcc_lo, v{vreg}
            s_nop 0
            s_cmp_lt_u32 vcc_lo, {target}
            s_cbranch_scc1 {st}
            {bk}:""")

sLH = 78
def cpf(expr):
    return ([f"s_add_u32 s17, s{sLH}, {expr}"], f"buffer_load_dword a{aDUM}, v{vL16}, s[88:91], s17 offen ;@dummy")
def one_lane(d): return ["s_mov_b64 exec, 1", d, "s_mov_b64 exec, -1"]
def signal(srdb, soff, imm, tags):
    return ([f"s_lshl_b32 s{t0_}, s{sW}, 30", f"v_lshl_add_u32 v1, v0, 24, s{t0_}"],
            f"buffer_atomic_add a{aONE}, v1, {srd(srdb)}, {soff} offen offset:{imm} sc1 ;@sig=wg:{tags}")

def snake(n, k): return list(range(n)) if k % 2 == 0 else list(range(n - 1, -1, -1))

def aq(db, rb): return R("v", (vQ if db % 2 == 0 else 88) + 16 * rb + 4 * (db // 2))
def bt(part, db, rb): return R("v", 152 + 32 * part + 8 * rb + 4 * db)
HK, HV = R("v", 248), R("v", 252)
P2ORD = [10, 11, 12, 13, 8, 9, 0, 1, 2, 3, 4, 5, 6, 7]
def p2tile(cb, rb):
    if cb < 8: return aq(cb, rb)
    if cb < 14: return bt((cb - 8) >> 1, cb & 1, rb)
    return HK if cb == 14 else HV

def gemm12(g):
    p = g.p
    sCo, sWo, sXlo, sXhi, sXh, sBo, sLX, sLW, sKV, sPF = 70, 71, 72, 73, 74, 75, 76, 77, 79, 80
    NR = 6
    def fx(sg, rb, s): return R("a", 32 * (sg & 1) + 8 * rb + 4 * s) if rb < 4 else R("a", 64 + 4 * s)
    def fw(J, s): return R("a", 72 + 8 * (J % NR) + 4 * s)
    def stash(i): return R("a", 144 + 4 * i)
    GA = 144
    def order(sg):
        o = []; k = 0
        for j, cb in enumerate(range(16) if sg < 8 else P2ORD):
            if sg >= 8 and cb >= 14: o.append((j, cb, 4))
            else:
                o += [(j, cb, rb) for rb in snake(4, k)]; k += 1
        return o
    o1, o2 = order(0), order(8)
    pos1 = {(cb, rb): k for k, (j, cb, rb) in enumerate(o1)}
    def treg(k): return p2tile(o2[k][1], o2[k][2]) if k < 56 else (HK, HV)[k - 56] if k < 58 else R("a", 120 + 4 * (k - 58))
    def Jx(sg, j): return 16 * sg + j if sg < 8 else 128 + 14 * (sg - 8) + j
    p("s_cmp_ge_u32 s2, 256\ns_cbranch_scc1 L_end")
    p("s_load_dwordx16 s[4:19], s[0:1], 0\ns_load_dwordx8 s[20:27], s[0:1], 64\ns_load_dwordx2 s[28:29], s[0:1], 96")
    if OPT["stamps"] or OPT.get("dbgt"): p("s_memtime s[96:97]\ns_memrealtime s[98:99]")
    if OPT.get("dbgt"): p("s_load_dwordx2 s[94:95], s[0:1], 88")
    p("s_getpc_b64 s[88:89]"); p.label("L_pc")
    p(f"""v_lshrrev_b32 v1, 6, v0
          s_lshr_b32 s{t1_}, s2, 3
          v_lshl_add_u32 v24, s{t1_}, 2, v1
          s_mov_b32 s90, L_codeend-L_pc
          s_mov_b32 s91, 0x20000
          v_and_b32 v25, 7, v0
          v_lshlrev_b32 v25, 7, v25
          v_lshl_add_u32 v24, v24, 10, v25
          buffer_load_dword a{aDUM}, v24, s[88:91], 0 offen ;@dummy
          v_and_b32 v0, 63, v0
          v_readfirstlane_b32 s{sW}, v1 ;@val=wave
          v_lshrrev_b32 v24, 3, v0
          v_lshrrev_b32 v25, 4, v0
          v_and_b32 v26, 7, v0
          v_xor_b32 v26, v26, v25
          v_lshlrev_b32 v26, 4, v26
          v_lshl_add_u32 v{vGX}, v24, 10, v26
          v_xor_b32 v{vGX+1}, 64, v{vGX}
          v_bfe_u32 v26, v0, 1, 3
          v_xor_b32 v26, v26, v25
          v_lshlrev_b32 v26, 5, v26
          v_and_b32 v24, 1, v0
          v_lshl_add_u32 v26, v24, 4, v26
          v_lshl_add_u32 v{vGW}, v25, 13, v26
          v_xor_b32 v{vGW+1}, 128, v{vGW}
          s_and_b32 s{t0_}, s2, 7
          s_and_b32 s{t2_}, s{t1_}, 3
          s_lshl2_add_u32 s{sH}, s{t0_}, s{t2_}
          s_lshr_b32 s{sJ}, s{t1_}, 2
          s_lshl2_add_u32 s{sPF}, s{t1_}, s{sW}
          s_lshl_b32 s{sCo}, s{sJ}, 18
          s_lshl_b32 s{t0_}, s{sW}, 16
          s_add_u32 s{sCo}, s{sCo}, s{t0_}
          s_lshl_b32 s{sWo}, s{sW}, 17
          s_lshl_b32 s{t0_}, s{sH}, 8
          s_add_u32 s{sWo}, s{sWo}, s{t0_}
          s_lshl_b32 s{sLX}, s{sW}, 13
          s_lshl_b32 s{sLW}, s{sW}, 12
          s_lshl_b32 s{sLH}, s{sW}, 10
          s_waitcnt lgkmcnt(0)""")
    if OPT.get("pst"): p("s_memtime s[84:85]\ns_memrealtime s[86:87]")
    p(mk_srd(SA, sC, 2 << 20) + mk_srd(SB, sWUK, 4 << 20) + mk_srd(SC, sWUV, 4 << 20))
    def xdma(sg):
        par = sg & 1; d = []
        for i in range(8 if not (OPT.get("x_nox") and sg > 9) else 1):
            if sg < 8: so, sr = f"s_add_u32 s{sT}, s{sCo}, {sg*128 + i*8192}", SA
            else: so, sr = f"s_add_u32 s{sT}, s{sXlo if i < 4 else sXhi}, {(sg-8)*128 + ((i>>1)&1)*64*2048 + (i&1)*16384}", SE
            d.append(([f"s_add_u32 m0, s{sLX}, {par*32768 + i*1024}", so], f"buffer_load_dwordx4 v{vGX + (i&1)}, {srd(sr)}, s{sT} offen lds ;@tag=x{sg}"))
        return d
    def wdma(sg):
        d = []; B = 65536 + (sg % 3) * 32768
        for kv in range(2 if sg < 8 else 1):
            for i in range(4):
                st = sg if sg < 8 else sg - 8
                d.append(([f"s_add_u32 m0, s{sLW}, {B + kv*16384 + i*1024}", f"s_add_u32 s{sT}, s{sWo}, {st*64*8192 + i*32768}"],
                          f"buffer_load_dwordx4 v{vGW + (i>>1)}, {srd((SB, SC)[kv] if sg < 8 else SG)}, s{sT} offen lds ;@tag=w{sg}"))
        if sg >= 8:
            for pp in range(3):
                d.append(([f"s_add_u32 m0, s{sLH}, {B + 16384 + pp*4096}", f"s_add_u32 s{sT}, s{sBo}, {(sg-8)*64*6144 + pp*2048}"],
                          f"buffer_load_dwordx4 v{vGB}, {srd(SH)}, s{sT} offen lds ;@tag=w{sg}"))
            d = [d[k] for k in (0, 4, 1, 5, 2, 6, 3)]
            if sg > 10 and OPT.get("x_now") == 1: d = d[:1]
            if sg > 10 and OPT.get("x_now") == 2: d = d[::2]
        return d
    seq = []
    for k_, (sal, d) in enumerate(xdma(0) + wdma(0) if not OPT.get("wfirst") else wdma(0) + xdma(0)):
        seq += sal + [d]
        if OPT.get("pst") and k_ == 7: seq += ["s_memtime s[100:101]", "s_memrealtime s[0:1]"]
    seq += mk_srd(SD, sWS, 128 << 20) + mk_srd(SE, sX, 4 << 20) + mk_srd(SF, sDBG, 256) + mk_srd(SG, sWQ, 8 << 20) + mk_srd(SH, sWQKV, 6 << 20)
    seq += [f"v_accvgpr_write_b32 a{aONE}, 1"]
    if OPT["stamps"]: seq += ["v_mov_b32 v30, 0", "v_writelane_b32 v30, s96, 60", "v_writelane_b32 v30, s98, 61", "s_getreg_b32 s96, hwreg(HW_REG_XCC_ID)", "v_writelane_b32 v30, s96, 62"] + (["s_waitcnt lgkmcnt(0)", "v_writelane_b32 v30, s84, 58", "v_writelane_b32 v30, s86, 59", "v_writelane_b32 v30, s100, 56", "v_writelane_b32 v30, s0, 57"] if OPT.get("pst") else []) + [ "v_accvgpr_write_b32 a249, v30"] + stamp(0)
    seq += L(f"""v_and_b32 v24, 15, v0
          v_lshrrev_b32 v26, 1, v24
          v_xor_b32 v26, v26, v25
          v_lshlrev_b32 v26, 4, v26
          v_lshl_add_u32 v26, v24, 7, v26
          v_add_u32 v{vDX}, s{sLX}, v26
          v_xor_b32 v{vDX+1}, 64, v{vDX}
          v_bfe_u32 v24, v0, 2, 2
          v_lshl_add_u32 v27, v25, 3, v24
          v_and_b32 v1, 3, v0
          v_cmp_eq_u32 vcc, 0, v1
          v_lshlrev_b32 v1, 3, v1
          v_lshl_add_u32 v26, v27, 8, v1
          v_add_u32 v26, 65536, v26
          v_and_b32 v1, 1, v25
          v_lshl_add_u32 v24, v1, 2, v24
          v_lshlrev_b32 v{vL16}, 4, v0
          v_mov_b32 v28, 0x3f803f80
          v_cndmask_b32 v28, 0, v28, vcc""")
    seq += [f"v_accvgpr_write_b32 {ONES[r]}, v28" for r in range(4)]
    for n in range(8): seq += [f"v_xor_b32 v1, {n}, v24", f"v_lshl_add_u32 v{vDQ+n}, v1, 5, v26"]
    seq += L(f"""s_sub_u32 s{sBHi}, 15, s{sJ}
          s_lshl_b32 s{sXlo}, s{sJ}, 18
          s_lshl_b32 s{sXhi}, s{sBHi}, 18
          s_cmp_lt_u32 s{sW}, 2
          s_cselect_b32 s{t1_}, s{sJ}, s{sBHi}
          s_lshl4_add_u32 s{sXh}, s{sH}, s{t1_}
          s_and_b32 s{t0_}, s{sW}, 1
          s_lshl1_add_u32 s{sXh}, s{sXh}, s{t0_}
          s_lshl_b32 s{sXh}, s{sXh}, 10
          s_add_u32 s{sXh}, s{sXh}, {WS_HALO}
          s_lshl_b32 s{t0_}, s{sW}, 15
          s_add_u32 s{sXlo}, s{sXlo}, s{t0_}
          s_add_u32 s{sXhi}, s{sXhi}, s{t0_}
          s_mul_i32 s{sBo}, s{sW}, {16*6144}
          s_lshl_b32 s{t0_}, s{sH}, 6
          s_add_u32 s{sBo}, s{sBo}, s{t0_}
          s_lshl_b32 s{sKV}, s{sH}, 20
          s_lshl_b32 s{t0_}, s{sJ}, 17
          s_add_u32 s{sKV}, s{sKV}, s{t0_}
          s_lshl_b32 s{t0_}, s{sW}, 15
          s_add_u32 s{sKV}, s{sKV}, s{t0_}
          v_bfe_u32 v{vGB}, v0, 1, 1
          v_lshrrev_b32 v1, 5, v0
          v_xor_b32 v{vGB}, v{vGB}, v1
          v_lshlrev_b32 v{vGB}, 5, v{vGB}
          v_and_b32 v1, 1, v0
          v_lshl_add_u32 v{vGB}, v1, 4, v{vGB}
          v_lshrrev_b32 v1, 2, v0
          v_mul_u32_u24 v1, 6144, v1
          v_add_u32 v{vGB}, v1, v{vGB}
          s_lshl_b32 s81, s{sPF}, 13
          s_and_b32 s{t1_}, s2, 7
          s_lshl_b32 s82, s{t1_}, 8
          s_add_u32 s82, s82, s81
          s_lshl_b32 s{t1_}, s{t1_}, 10
          s_add_u32 s81, s81, s{t1_}
          s_add_u32 s83, s81, {1<<20}
          v_mul_u32_u24 v1, 1792, v25
          v_add_u32 v1, v1, v{vL16}
          s_lshl_b32 s{t2_}, s2, 3
          s_lshl1_add_u32 s{t2_}, s{sW}, s{t2_}
          v_lshrrev_b32 v18, 5, v0
          v_add_u32 v18, s{t2_}, v18
          v_and_b32 v19, 31, v0
          v_lshlrev_b32 v19, 4, v19
          v_lshl_add_u32 v18, v18, 11, v19
          v_mov_b32 v21, 0
          v_min_u32 v20, 1, v0
          v_lshlrev_b32 v20, 30, v20
          v_accvgpr_write_b32 a240, -1
          v_accvgpr_write_b32 a241, -1
          v_accvgpr_write_b32 a242, -1
          v_accvgpr_write_b32 a243, -1
          s_lshr_b32 s{t3_}, s2, 7
          s_or_b32 s{t3_}, s{t3_}, s{sW}
          s_lshl_b32 s{t3_}, s{t3_}, 21
          s_add_u32 s{t3_}, s{t3_}, s2
          s_lshl_b32 s{t3_}, s{t3_}, 7
          s_add_u32 s{t3_}, s{t3_}, {WS_CNT}""")
    def xread(sg): return [f"ds_read_b128 {fx(sg, rb, s)}, v{vDX+s} offset:{(sg&1)*32768 + rb*2048}" for rb in range(4) for s in range(2)]
    def hread(sg): return [f"ds_read_b128 {fx(sg, 4, s)}, v{vDH+s} offset:{min(sg % 3, 1)*32768}" for s in range(2)]
    def wread(sg, j):
        par = min(sg % 3, 1); o = []; cb = j if sg < 8 else P2ORD[j]
        for s in range(2):
            for i in range(2):
                if sg < 8 or cb < 8: a, off = vDQ + (cb & 7), par*32768 + (cb >> 3)*16384 + s*8192 + i*1024
                elif cb < 14: a, off = vDB + (cb & 1), par*32768 + ((cb-8) >> 1)*4096 + s*2048 + i*256
                else: a, off = vDBH, par*32768 + (cb-13)*4096 + s*2048 + i*256
                o.append((a, f"ds_read_b64_tr_b16 {fw(Jx(sg, j), s)[2*i:2*i+2]}, v{a} offset:{off}"))
        return o
    if OPT.get("pst"): seq += stamp(26)
    def wpf(sr): return f"buffer_load_dword a{aDUM}, off, {srd(sr)}, s83 offset:384 ;@dummy"
    P1PF = OPT.get("p1pf", 0)
    if P1PF == 2: seq += [wpf(SB), wpf(SC)]
    LATE, WD = OPT.get("late1", 1), OPT.get("wd", 3)
    for sal, d in (xdma(1) + wdma(1) if LATE == 0 else wdma(1) if LATE == 1 else []): seq += sal + [d]
    if P1PF == 1: seq += [wpf(SB), wpf(SC)]
    seq += ["WAITVM w0,x0", "s_barrier"] + stamp(1)
    xr = xread(0); NPRE = 3
    seq += xr[:2] + [r for _, r in wread(0, 0)] + xr[2:]
    for j in range(1, NPRE): seq += [r for _, r in wread(0, j)]
    if OPT.get("pst"): seq += stamp(27)
    g.emit(seq)
    mf = []; G0 = []; FU = []; LU = []; done = {}
    for sg in range(24):
        G0.append(len(mf))
        for k, (j, cb, rb) in enumerate(o1 if sg < 8 else o2):
            J = Jx(sg, j)
            if len(FU) == J: FU.append(len(mf)); LU.append(0)
            swap = (cb >= 8) if sg < 8 else (cb in (12, 13, 15))
            for q, s in enumerate(snake(2, k)):
                c0 = 0 if (q == 0 and sg in (0, 8)) else None
                mf.append(mfma(treg(k), fx(sg, rb, s), fw(J, s), c0) if swap else mfma(treg(k), fw(J, s), fx(sg, rb, s), c0))
            LU[J] = len(mf) - 1; done[(sg, cb, rb)] = len(mf) - 1
    G0.append(len(mf))
    S = Sched(mf)
    def pace(items, lo, hi, chain, slack=5):
        n = len(items)
        for q, (sal, d) in enumerate(items):
            x = lo + int(q * (hi - lo) / n)
            it = S.add("M", d, x, x + slack, chain=chain, sep=3, pre=sal)
            if q == 0: it["prelo"] = lo - 2
    def chain(txt, lo, hi=None, name=None, sep=1):
        for c in (L(txt) if isinstance(txt, str) else txt): S.add(kind(c), c, lo, hi, chain=name, sep=sep)
    BAR = {sg: G0[sg + 1] - 30 for sg in range(24)}; BAR[-1] = -1
    XW = 54
    IL = OPT.get("il", 0)
    gxupd = f"v_lshrrev_b32 v{vGX+1}, 3, v0\nv_lshl_add_u32 v{vGX}, v{vGX+1}, 10, v{vGX}\nv_xor_b32 v{vGX+1}, 64, v{vGX}"
    def mix(a, b): return [x for pr in zip(b, a) for x in pr]
    ini = (wdma(1) if LATE == 2 else []) + (xdma(1) if LATE else []) + (wdma(2) if WD == 3 else [])
    X0 = max(40, 2 + 3 * len(ini) + len(ini) // 2)
    if IL:
        ini = (xdma(1) if LATE else []) + mix(xdma(2), wdma(2)); X0 = BAR[0]
    if ini: pace(ini, 2, X0 - 2, "dma", slack=2)
    for sg in range(24):
        g0, nx, B = G0[sg], G0[sg + 1], BAR[sg]
        lastuse = {}
        for j in range(16 if sg < 8 else 14):
            J = Jx(sg, j)
            if J < NPRE: continue
            lo = max(LU[J - NR] if J >= NR else 0, BAR[sg - 1] + 1, FU[J] - 44)
            hi = FU[J] - 8
            if sg < 23: hi = min(hi, B - 5)
            for a, r in wread(sg, j): S.add("T", r, lo, hi, chain="t"); lastuse[a] = hi
        if sg < 23:
            if sg % 3:
                for r, lu in lastuse.items():
                    S.add("A", f"v_add_u32 v{r}, 0x8000, v{r}" if sg % 3 == 1 else f"v_subrev_u32 v{r}, 0x8000, v{r}", lu + 1, B - 1)
            blk = [f"WAITVM w{sg+1}" + (" L" if (WD == 3 or sg >= 21) else ""), "s_barrier"]
            if sg == 7: blk += stamp(2)
            if OPT.get("x_nop"): blk += [f"s_sleep {OPT['x_nop']}"]
            fine = (0, 1, 2, 3, 4, 5, 9, 11, 13, 15, 17, 19) if OPT.get("fine") != 2 else (12, 17)
            if OPT.get("fine") and sg in fine: blk += stamp(18 + fine.index(sg))
            S.add("X", blk, B, B)
            xw, xh = (g0 + XW, B - 5) if not (LATE and sg == 0) else (B + 8, nx - 8)
            S.add("S", f"WAITVM x{sg+1}", xw, xw, chain=("xn", sg))
            for q, r in enumerate(xread(sg + 1)): S.add("D", r, xw, xh, chain=("xn", sg))
        if IL:
            if sg == 5: chain(gxupd, B - 8, B + 2, name="dma", sep=0)
            if sg == 0 and LATE:
                pace(wdma(3), B + 3, nx + 30, "dma"); pace(xdma(3), nx + 32, BAR[1] - 2, "dma")
            elif sg + 3 < 24: pace(mix(xdma(sg + 3), wdma(sg + 3)), B + 5, BAR[sg + 1] - 2, "dma", slack=4)
            continue
        if sg + 2 < 24: pace(xdma(sg + 2), g0 + (40 if sg else X0), B - 2, "dma")
        if sg + WD < 24: pace(wdma(sg + WD), B + 3, nx + 38, "dma")
    GS = 56; lo = 40
    for i in range(4):
        S.add("M", f"global_load_dwordx4 a[{GA+4*i}:{GA+3+4*i}], v18, s[{sX}:{sX+1}] offset:{512*i}", lo + GS*i, lo + GS*i + 10, chain="gate")
        S.add("M", f"global_load_dwordx4 a[{GA+16+4*i}:{GA+19+4*i}], v19, s[{sGATE}:{sGATE+1}] offset:{512*i}", lo + GS*i + GS//2, lo + GS*i + GS//2 + 10, chain="gate")
    S.add("M", f"buffer_store_dword v21, v20, {srd(SD)}, s{t3_} offen {ST} ;@tag=z", G0[2] + 20, G0[2] + 40, chain="gate", sep=1)
    a0, a1, a2, a3, acc = 18, 19, 20, 21, 17
    ch = [f"v_mov_b32 v{acc}, 0"]
    for i in range(16):
        ch += L(f"""v_accvgpr_read_b32 v{a1}, a{GA+i}
            v_accvgpr_read_b32 v{a3}, a{GA+16+i}
            v_lshlrev_b32 v{a0}, 16, v{a1}
            v_and_b32 v{a1}, 0xffff0000, v{a1}
            v_lshlrev_b32 v{a2}, 16, v{a3}
            v_and_b32 v{a3}, 0xffff0000, v{a3}
            v_mul_f32 v{a0}, v{a0}, v{a2}
            v_mul_f32 v{a1}, v{a1}, v{a3}
            v_cvt_pk_bf16_f32 v{a0}, v{a0}, v{a1}
            v_lshlrev_b32 v{a1}, 16, v{a0}
            v_and_b32 v{a0}, 0xffff0000, v{a0}
            v_add_f32 v{acc}, v{acc}, v{a1}
            v_add_f32 v{acc}, v{acc}, v{a0}""")
    lo = G0[3]
    chain(ch, lo, name="gate", sep=0)
    chain([f"v_add_f32_dpp v{acc}, v{acc}, v{acc} row_ror:{r} row_mask:0xf bank_mask:0xf" for r in (8, 4, 2, 1)], lo, name="gate", sep=2)
    chain([f"v_mov_b32 v{a0}, v{acc}"], lo, name="gate", sep=0)
    chain([f"v_permlane16_swap_b32 v{a0}, v{acc}"], lo, name="gate", sep=2)
    chain(f"""v_add_f32 v{acc}, v{acc}, v{a0}
            v_cvt_pk_bf16_f32 v{acc}, v{acc}, v{acc}
            v_and_b32 v{acc}, 0xffff0000, v{acc}
            v_mul_f32 v{acc}, 0xbfb8aa3b, v{acc}
            v_exp_f32 v{acc}, v{acc}
            v_add_f32 v{acc}, 1.0, v{acc}
            v_rcp_f32 v{acc}, v{acc}
            v_cvt_pk_bf16_f32 v{a0}, v{acc}, v{acc}
            v_and_b32 v{a0}, 0xffff0000, v{a0}
            v_sub_f32 v{a1}, 1.0, v{a0}
            v_cvt_pk_bf16_f32 v{a1}, v{a1}, v{a1}
            v_and_b32 v{a1}, 0xffff0000, v{a1}
            v_and_b32 v{a2}, 31, v0
            v_lshlrev_b32 v{a2}, 27, v{a2}
            v_lshrrev_b32 v{a3}, 2, v0
            v_add_u32 v{a2}, v{a2}, v{a3}""", lo, name="gate")
    S.add("M", f"buffer_store_dwordx2 v[{a0}:{a1}], v{a2}, {srd(SD)}, s{sT2} offen {ST} ;@tag=z", lo, G0[6] + 30, chain="gate", sep=4,
          pre=[f"s_lshl2_add_u32 s{sT2}, s2, s{sW}", f"s_lshl4_add_u32 s{sT2}, s{sT2}, {WS_G}"])
    chain(f"""v_lshrrev_b32 v21, 4, v0
          v_bfe_u32 v{vDB}, v0, 2, 2
          v_lshl_add_u32 v{vDB}, v21, 3, v{vDB}
          v_lshlrev_b32 v{vDB}, 6, v{vDB}
          v_and_b32 v21, 1, v21
          v_lshl_add_u32 v{vDB}, v21, 5, v{vDB}
          v_and_b32 v21, 3, v0
          v_lshl_add_u32 v{vDB}, v21, 3, v{vDB}
          v_add_u32 v{vDB}, {98304 + 16384}, v{vDB}
          v_xor_b32 v{vDB+1}, 32, v{vDB}""", lo, G0[7] - 2, name="gate")
    if not IL: chain(gxupd, BAR[5] + 6, G0[6] + 30, name="gx", sep=0)
    if P1PF:
        for lo in (OPT.get("q1", 80), OPT.get("q2", 210)):
            S.add("M", wpf(SB), lo, lo + 10, chain="pf1", pre=[f"s_add_u32 s83, s83, {1<<20}"])
            S.add("M", wpf(SC), lo + 20, lo + 30, chain="pf1")
    if OPT.get("tlb"):
        sh = OPT["tlb"]
        S.add("A", f"v_lshlrev_b32 v22, {sh}, v0", 0, 10, chain="tlb")
        S.add("S", f"s_lshl_b32 s84, s{sPF}, {sh + 6}", 0, 12, chain="tlb")
        S.add("S", f"s_min_u32 s84, s84, 0x10000000", 0, 14, chain="tlb")
        S.add("M", f"buffer_load_dword a{aDUM}, v22, {srd(SD)}, s84 offen sc1 ;@dummy", 60, 70, chain="tlb")
    if not OPT.get("nopf"):
        P0, PS = OPT.get("p0", 200), OPT.get("ps", 36); order_ = "qkqkqqkqkqqkqk"
        for k, c in enumerate(order_):
            r = 81 if c == "q" else 82
            S.add("M", f"buffer_load_dword a{aDUM}, v{vL16 if c == 'q' else 1}, {srd(SG if c == 'q' else SH)}, s{r} offen ;@dummy", P0 + k*PS, P0 + k*PS + 16, chain="pf",
                  pre=[] if order_[:k].count(c) == 0 else [f"s_add_u32 s{r}, s{r}, {1<<20}"])
    if OPT.get("wo", "M") == "P":
        chain(mk_srd(84, sWOA, 8 << 20) + [f"s_lshl2_add_u32 s83, s2, s{sW}", "s_lshl_b32 s83, s83, 11", "v_lshlrev_b32 v22, 5, v0"], 20, 100, name="wp", sep=0)
        for k in range(4):
            x = OPT.get("wp0", 120) + k * OPT.get("wps", 144)
            S.add("M", f"buffer_load_dword a{aDUM}, v22, s[84:87], s83 offen ;@dummy", x, x + 10, chain="wp", pre=[f"s_add_u32 s83, s83, {2<<20}"] if k else [])
    n0 = G0[8]; frs = []
    for t in range(4):
        for rb in (3, 2, 1, 0): frs.append(((2*t, rb), (2*t + 1, rb), (rb >> 1)*16384 + (rb & 1)*4096 + t*1024))
    for db in range(8):
        for u in snake(2, db): frs.append(((8 + db, 2*u), (8 + db, 2*u + 1), u*16384 + 8192 + db*1024))
    ns = 0; later = []
    tmpA, tmpB = HK, HV
    for q, (ta, tb, off) in enumerate(frs):
        ka, kb = pos1[ta], pos1[tb]; A, B_ = treg(ka), treg(kb)
        lo = G0[7] + 2*max(ka, kb) + 1 + 8; hi = n0 + 2*min(ka, kb) - 1; hi2 = n0 + 2*max(ka, kb) - 3
        D_ = B_ if kb > ka else A
        ch = ("drain",)
        if min(ka, kb) >= 56: hi = hi2 = G0[10]
        if A.f == "a":
            for r in range(4): S.add("A", f"v_accvgpr_read_b32 {tmpA[r]}, {A[r]}", lo, hi, chain=ch, sep=2 if r == 0 else 0)
            for r in range(4): S.add("A", f"v_accvgpr_read_b32 {tmpB[r]}, {B_[r]}", lo, hi, chain=ch)
            A, B_ = tmpA, tmpB; D_ = B_
        direct = q % 4 == 0
        if direct: S.add("S", f"s_add_u32 s{t1_}, s{sKV}, {off}", lo - 2, hi, chain=ch)
        if D_ is B_: cv = ((3, B_, 2), (2, B_, 0), (0, A, 0), (1, A, 2))
        else: cv = ((0, A, 0), (1, A, 2), (2, B_, 0), (3, B_, 2))
        for d_, src, r in cv: S.add("A", f"v_cvt_pk_bf16_f32 {D_[d_]}, {src[r]}, {src[r+1]}", lo, hi, chain=ch)
        if direct and OPT.get("x_nodirect"): pass
        elif direct: S.add("M", f"buffer_store_dwordx4 {D_}, v{vL16}, {srd(SD)}, s{t1_} offen {OPT.get('kvst', ST).replace('+', ' ').replace('-', '')} ;@tag=kv", lo, hi2, chain=ch, sep=1)
        else:
            for r in range(4): S.add("A", f"v_accvgpr_write_b32 {stash(ns)[r]}, {D_[r]}", lo, hi2, chain=ch)
            later.append((ns, off)); ns += 1
    assert ns == 24 and pos1[frs[27][0]] in (54, 55) and pos1[frs[28][0]] in (56, 57), (pos1[frs[27][0]],)
    NSTG = OPT.get("nstg", 11); KVP = 21 if (NSTG <= 9 and WD == 3) else 22
    t_a, t_b = G0[9] + 2, BAR[8 + NSTG] - 14
    sts = [([f"s_add_u32 s{sT2}, s{sKV}, {off}"], f"buffer_store_dwordx4 {stash(i)}, v{vL16}, {srd(SD)}, s{sT2} offen {OPT.get('kvst', ST).replace('+', ' ').replace('-', '')} ;@tag=kv") for i, off in later]
    sts.append(([], f"buffer_store_dwordx4 a[240:243], v{vL16}, {srd(SD)}, s{sXh} offen {ST} ;@tag=kv"))
    for q, (pre, d) in enumerate(sts if not OPT.get("x_nost") else []):
        lo = t_a + (q * (t_b - t_a)) // (len(sts) - 1)
        S.add("M", d, lo - 6, lo, chain="kvst", sep=3, pre=pre)
    pre, d = signal(SF, f"s{t2_}", 0, "z")
    chain(pre + [f"s_lshr_b32 s{t0_}, s{sJ}, 1", f"s_lshl_b32 s{t0_}, s{t0_}, 12"], G0[7], BAR[7], name="sig")
    for k in range(4):
        lo = BAR[8 + k] + 20
        S.add("X", one_lane(d), lo, lo + 14, chain="sig", sep=3, pre=[f"s_xor_b32 s{t2_}, s{t0_}, {k << 12}"])
    E0 = max(NSTG + 7, 14)
    S.add("X", L(f"s_cmp_eq_u32 s{sW}, 0\ns_cselect_b32 s81, 256, 0"), G0[E0 - 1], G0[E0 - 1] + 40, chain="sig")
    S.add("M", f"buffer_load_dword v1, off, {srd(SF)}, s{sLH} sc1", BAR[E0 - 1] - 14, BAR[E0 - 1] - 8, chain="sig")
    S.add("X", g.spin(1, SF, f"s{sLH}", 0, "s81"), G0[E0] + XW + 12, G0[E0] + XW + 24, chain="sig")
    S.add("X", mk_srd(SF, sWS, 16384, WS_CNT)[:3], BAR[E0] - 4, BAR[E0] + 30, chain="sig")
    E1 = max(NSTG + 9, 16)
    pre, d = signal(SF, "s70", 0, "kv")
    chain(pre + [f"s_lshl_b32 s70, s{sH}, 8"], G0[E1], BAR[E1], name="sig")
    S.add("X", one_lane(d), BAR[E1] + 1, BAR[E1] + 12, chain="sig", sep=1)
    chain([f"s_lshl4_add_u32 s70, s{sLH}, s70", "s_lshr_b32 s81, s81, 5"], BAR[E1] + 1, name="sig")
    S.add("M", f"buffer_load_dword v1, off, {srd(SF)}, s70 sc1", BAR[KVP - 1] - 14, BAR[KVP - 1] - 8, chain="sig")
    S.add("X", g.spin(1, SF, "s70", 0, "s81"), G0[KVP] + XW + 6, BAR[KVP] - 1, chain="sig")
    if not OPT.get("nocpf"):
        for sg in range(0, 22, OPT.get("cps", 2)):
            pre, d = cpf(".-L_pc+6144"); S.add("M", d, G0[sg] + 4, G0[sg] + 30, chain="cpf", pre=pre)
        for k, e_ in enumerate([".-L_pc+6144", ".-L_pc+9984", ".-L_pc+13824", "L_F1-L_pc", "L_F1-L_pc+4096"]):
            x = G0[22] + (50 if OPT.get("wo", "M") != "E" else 0)
            pre, d = cpf(e_); S.add("M", d, x + 6 * k, x + 34, chain="cpf", pre=pre, sep=3)
    S.add("X", L(f"s_lshl_b32 s{t2_}, s{sH}, 20\ns_add_u32 s{SA}, s{sWS}, s{t2_}\ns_addc_u32 s{SA+1}, s{sWS+1}, 0"), G0[21], G0[21] + 40, chain="sa")
    S.add("X", L(f"s_add_u32 s{t2_}, s{sBHi}, 1\ns_lshl_b32 s{SA+2}, s{t2_}, 16"), G0[21], G0[21] + 50, chain="sa")
    pace(att_first_dmas(sLX), BAR[KVP] + 5, BAR[KVP] + 5 + 12 * (6 if KVP == 21 else 4), "dma", slack=2)
    lo = G0[22] if WD == 3 else G0[22] + 40
    chain(f"""v_and_b32 v12, 15, v0
          v_lshrrev_b32 v13, 4, v0
          v_lshlrev_b32 v13, 2, v13
          v_sub_u32 v12, v12, v13
          s_lshl_b32 s{t0_}, s{sW}, 4
          v_add_u32 v13, s{t0_}, v12""", lo, name="la")
    chain([f"v_cmp_gt_i32 {msk(k)}, {16*(k >> 2) + (k & 3)}, v13" for k in range(16)], lo, name="la", sep=0)
    for r in range(4):
        chain(f"""v_subrev_u32 v17, {r}, v12
              v_lshlrev_b32 v18, 31, v17
              v_or_b32 v21, v17, v18
              v_ashrrev_i32 v21, 31, v21
              v_and_b32 {HK[r]}, 0xff800000, v21
              v_not_b32 v17, v17
              v_or_b32 v21, v17, v18
              v_ashrrev_i32 v21, 31, v21
              v_and_b32 {HV[r]}, 0xff800000, v21""", lo, name="la", sep=0)
    chain([c.replace("s81", f"s{t1_}") for c in p5_setup()], lo, name="la", sep=0)
    chain(f"""s_lshr_b32 s{t0_}, s{sW}, 1
          s_lshl_b32 s{t0_}, s{t0_}, 16
          s_and_b32 s{t1_}, s{sW}, 1
          s_lshl_b32 s{t1_}, s{t1_}, 10
          s_add_u32 s{t0_}, s{t0_}, s{t1_}
          s_add_u32 s{t0_}, s{t0_}, 32768
          v_add_u32 v17, s{t0_}, v{vL16}
          v_lshlrev_b32 v21, 5, v0
          s_lshl2_add_u32 s73, s2, s{sW}
          s_lshl_b32 s73, s73, 11
          s_lshl_b32 s{t0_}, s{sW}, 11
          s_add_u32 s{t0_}, s{t0_}, 32768""", lo, name="la", sep=0)
    chain(f"v_add_u32 v2, s{t0_}, v{vL16}\nv_add_u32 v3, 0x10000, v2", BAR[22] - 4, G0[23] - 2, name="la", sep=0)
    chain(f"""v_and_b32 v22, 15, v0
          v_lshlrev_b32 v22, 3, v22
          s_lshl_b32 s85, s{sW}, 7
          s_add_u32 s85, s85, {WS_G}
          s_lshl_b32 s86, s{sJ}, 10
          s_add_u32 s86, s86, s85
          s_lshl_b32 s87, s{sBHi}, 10
          s_add_u32 s87, s87, s85""", G0[21], name="g", sep=0)
    for rb in range(4):
        S.add("M", f"buffer_load_dwordx2 a[{64+2*rb}:{65+2*rb}], v22, {srd(SD)}, s{86 + (rb>>1)} offen offset:{(rb&1)*512} sc1", BAR[21] - 4, G0[22] - 2, chain="g", sep=1)
    chain(f"""s_mov_b32 s{SB}, s{sWOB}
          s_mov_b32 s{SB+1}, s{sWOB+1}
          s_mov_b32 s{SB+2}, {2<<20}
          s_mov_b32 s{SC}, s{sWOA}
          s_mov_b32 s{SC+1}, s{sWOA+1}
          s_mov_b32 s{SC+2}, {8<<20}""", G0[12], G0[13], name="pf")
    if not OPT.get("nopf"):
        x = G0[23] + (0 if KVP == 21 else 26)
        S.add("M", f"buffer_load_dword a{aDUM}, v21, {srd(SB)}, s73 offen ;@dummy", x, x + 16, chain="wpf", sep=2)
    chain(f"s_lshl2_add_u32 s72, s2, s{sW}\ns_lshl_b32 s72, s72, 12\ns_add_u32 s72, s72, {WS_XCH}", BAR[21] + 2, G0[22], name="pre")
    g.prefill = [f"buffer_store_dwordx4 a[240:243], v{vL16}, {srd(SD)}, s72 offen offset:{k*1024} {ST} ;@tag=ob" for k in range(4)]
    PRIN = OPT.get("prin", -16)
    if PRIN < 200:
        for k, d in enumerate(g.prefill): S.add("M", d, G0[22] + PRIN + 14*k, G0[22] + PRIN + 14*k + 6, chain="pre")
        g.prefill = []
    def rdy(*tiles): return max(done[(23, cb, rb)] for cb, rb in tiles) + 8
    def pk(d, a, b, lo): S.add("A", f"v_cvt_pk_bf16_f32 {d}, {a}, {b}", lo, chain="la")
    for rb in (3, 2, 1, 0):
        a, b = bt(1, 0, rb), bt(1, 1, rb); lo = rdy((11, rb))
        pk(a[0], a[0], a[1], lo); pk(a[1], a[2], a[3], lo); pk(a[2], b[0], b[1], lo); pk(a[3], b[2], b[3], lo)
        S.add("M", f"ds_write_b128 v{2 + (rb>>1)}, {a} offset:{(rb&1)*8192 + 2048}", lo, lo + 12, chain="la", sep=1)
    for db in range(2):
        for rb in snake(4, db):
            lo = rdy((12 + db, rb)); a = bt(2, db, rb); pk(a[3], a[2], a[3], lo); pk(a[2], a[0], a[1], lo)
            S.add("M", f"ds_write_b64 v{2 + (rb>>1)}, {a[2:4]} offset:{(rb&1)*8192 + 3072 + db*8}", lo, lo + 16, chain="la", sep=1)
    x = lo + 19
    S.add("X", ["s_waitcnt lgkmcnt(0)", "s_barrier"], lo, x, chain="la", sep=2)
    S.add("D", "ds_read_b128 a[16:19], v17 offset:16384", lo, x + 1, chain="la", sep=1)
    def prevrd(rbs):
        return [f"ds_read_b128 a[{4*rb}:{4*rb+3}], v{2 + (rb>>1)} offset:{(rb&1)*8192}" for rb in rbs] + \
               [f"ds_read_b64 {bt(2, db, rb)[0:2]}, v{2 + (rb>>1)} offset:{(rb&1)*8192 + 1024 + db*8}" for rb in rbs for db in range(2)]
    g.prevrd = prevrd
    S.add("M", f"buffer_store_dwordx4 a[16:19], v{vL16}, {srd(SD)}, s{sXh} offen {ST}", lo, x + 7, chain="la", sep=6)
    for c in prevrd((1, 3)): S.add("D", c, lo, chain="la")
    for rb in (3, 2, 1, 0):
        a, b = bt(0, 0, rb), bt(0, 1, rb); lo = rdy((9, rb))
        for d_, src, r in ((0, a, 0), (1, a, 2), (2, b, 0), (3, b, 2)): S.add("A", f"v_cvt_pk_bf16_f32 {a[d_]}, {src[r]}, {src[r+1]}", lo, chain="lq")
    S.add("X", L(f"s_or_b32 s{t0_}, s{sJ}, s{sW}\ns_cmp_eq_u32 s{t0_}, 0\ns_cselect_b32 s{t0_}, 0xff800000, 0"), G0[23] + 2, G0[23] + 50, chain="lx")
    S.add("X", [f"s_and_b32 s{t1_}, s{sXh}, 0x7800", f"s_cselect_b32 s{t1_}, 0, 0x70000000", f"s_add_u32 s77, s{sXh}, s{t1_}"], G0[23] + 2, G0[23] + 54, chain="lx")
    chain(f"s_sub_u32 s77, s77, 2048\ns_mov_b32 s{t2_}, {f32(QSCALE)}\ns_mov_b32 s{t3_}, s{t2_}", G0[23] + 2, G0[23] + 58, name="lx")
    chain(L(f"""s_sub_u32 s81, s{sJ}, 1
          s_sub_u32 s{t1_}, s{sJ}, 2
          s_mul_i32 s81, s81, s{t1_}
          s_lshl4_add_u32 s81, s81, s{sH}
          s_lshl2_add_u32 s81, s81, s{sW}
          s_mul_i32 s81, s81, 3328
          s_mov_b32 s73, 0
          s_mov_b32 s72, 0x4000
          s_lshl_b32 s{t1_}, s{sH}, 15
          s_add_u32 s{t1_}, s{t1_}, s{sLH}
          s_add_u32 s{t1_}, s{t1_}, {WS_CTX}
          s_mul_i32 s74, s{sJ}, {160*8192}
          s_add_u32 s74, s74, s{t1_}
          s_mul_i32 s75, s{sBHi}, {160*8192}
          s_add_u32 s75, s75, s{t1_}
          s_mul_i32 s{t1_}, s{sH}, {3*8192}
          s_sub_u32 s{t1_}, {128*8192 + 4096}, s{t1_}
          s_add_u32 s{sT}, s74, s{t1_}
          s_add_u32 s{sT2}, s75, s{t1_}""") + att_scalars(), x + 9, name="lx")
    chain([f"v_or_b32 v{20+r}, s{t0_}, {HV[r]}" for r in range(4)], lo, name="lq", sep=0)
    S.add("S", f"s_mov_b32 s{t0_}, {f32(BSCALE)}", lo, chain="lq", sep=1)
    NQ = OPT.get("nq", 6); g.qdone = []
    for t, rb in [(t, rb) for t in range(4) for rb in (3, 2, 1, 0)][:NQ]:
        a, b = aq(2*t, rb), aq(2*t+1, rb); lo = rdy((2*t + 1, rb)); g.qdone.append((t, rb))
        for r_ in (a, b):
            for k in range(4): S.add("A", f"v_mul_f32 {r_[k]}, s{t2_}, {r_[k]}", lo, chain="lq")
        for d_, src, r in ((0, a, 0), (1, a, 2), (2, b, 0), (3, b, 2)): S.add("A", f"v_cvt_pk_bf16_f32 {a[d_]}, {src[r]}, {src[r+1]}", lo, chain="lq")
    g.emit(S.run("gemm12"), eager=10, name="gemm12")
    g.emit(stamp(5))
    if OPT.get("x_sleep"): g.emit([f"s_sleep {OPT['x_sleep']}"])
    local_attention(g)

def att_scalars():
    return L(f"""s_and_b32 s70, s{sW}, 1
          s_lshr_b32 s{t1_}, s{sW}, 1
          s_lshl3_add_u32 s71, s{t1_}, s70
          s_add_u32 s71, s71, 4
          s_lshl_b32 s71, s71, 13
          s_lshl_b32 s70, s70, 14
          s_mul_i32 s{t1_}, s{t1_}, 24576
          s_sub_u32 s70, s70, s{t1_}
          s_add_u32 s70, s70, 65536""")

def att_first_dmas(sLX):
    d = []
    for k in range(8):
        sal = []
        if k == 0: sal = [f"s_mov_b32 m0, s{sLX}", f"s_lshl_b32 s{sT}, s{sW}, 14"]
        if k == 4: sal = [f"s_add_u32 m0, s{sLX}, 4096", f"s_add_u32 s{sT}, s{sT}, 4096"]
        d.append((sal, f"buffer_load_dwordx4 v{vL16}, {srd(SA)}, s{sT} offen offset:{(k&3)*1024} sc1 lds ;@tag=k0"))
    for k in range(4):
        sal = []
        if k == 0: sal = [f"s_lshr_b32 s{sT}, s{sLX}, 1", f"s_add_u32 m0, s{sT}, {65536 + 16384}", f"s_and_b32 s71, s{sT}, 8192",
                          f"s_add_u32 s{sT}, s{sT}, s71", f"s_add_u32 s{sT}, s{sT}, 8192"]
        d.append((sal, f"buffer_load_dwordx4 v{vL16}, {srd(SA)}, s{sT} offen offset:{k*1024} sc1 lds ;@tag=v0"))
    return d

def local_attention(g):
    q = []
    def e(s): q.extend(L(s))
    def pk(d, a, b): return f"v_cvt_pk_bf16_f32 {d}, {a}, {b}"
    mO, mP, mP0 = HK, HV, R("v", 20)
    qp = []
    for t in range(4):
        for rb in range(4):
            if (t, rb) in g.qdone: continue
            a, b = aq(2*t, rb), aq(2*t+1, rb)
            for r in (a, b): qp += [f"v_pk_mul_f32 {r[0:2]}, {r[0:2]}, s[{t2_}:{t3_}]", f"v_pk_mul_f32 {r[2:4]}, {r[2:4]}, s[{t2_}:{t3_}]"]
            qp += [pk(a[0], a[0], a[1]), pk(a[1], a[2], a[3]), pk(a[2], b[0], b[1]), pk(a[3], b[2], b[3])]
    assert all((0, rb) in g.qdone for rb in range(4))
    def fill(n):
        assert len(qp) >= n
        q.extend(qp[:n]); del qp[:n]
    def Sp(rb): return bt(0, 1, rb)
    def So(rb): return bt(1, 1, rb)
    mx, mc, hin = aq(1, 2), aq(1, 1), aq(1, 0)
    hld = f"buffer_load_dwordx4 {hin}, v{vL16}, {srd(SD)}, s77 offen sc1"
    def part(rbs, f0, mid=None):
        for rb in rbs: e(mfma(So(rb), bt(1, 0, rb), bt(0, 0, rb), mO))
        for rb in rbs: e(mfma(Sp(rb), R("a", 4*rb), bt(0, 0, rb), mP0 if rb == 0 else mP))
        f0()
        for rb in rbs:
            a, b = Sp(rb), So(rb)
            e(f"v_max3_f32 {mx[rb]}, {b[0]}, {b[1]}, {b[2]}\nv_max3_f32 {mx[rb]}, {mx[rb]}, {b[3]}, {a[0]}")
            e(f"v_max3_f32 {mx[rb]}, {mx[rb]}, {a[1]}, {a[2]}\nv_max_f32 {mx[rb]}, {mx[rb]}, {a[3]}")
        for op in ("v_permlane16_swap_b32", "v_permlane32_swap_b32"):
            for rb in rbs: e(f"v_mov_b32 {mc[rb]}, {mx[rb]}")
            fill(1)
            for rb in rbs: e(f"{op} {mc[rb]}, {mx[rb]}")
            for rb in rbs: e(f"v_max_f32 {mx[rb]}, {mx[rb]}, {mc[rb]}")
        for rb in rbs: e(f"v_mul_f32 {mx[rb]}, s{t0_}, {mx[rb]}")
        for rb in rbs:
            a, b = Sp(rb), So(rb)
            for r in (a, b):
                for k in range(4): e(f"v_fma_f32 {r[k]}, {r[k]}, s{t0_}, -{mx[rb]}")
            for r in (a, b):
                for k in range(4): e(f"v_exp_f32 {r[k]}, {r[k]}")
            q.extend([pk(a[0], a[0], a[1]), pk(a[1], a[2], a[3]), pk(a[2], b[0], b[1]), pk(a[3], b[2], b[3])])
            fill(2)
            e(mfma(So(rb), ONES, Sp(rb), 0))
            for db in range(2): e(mfma(bt(db, 0, rb), bt(2, db, rb), Sp(rb), 0))
        if mid: e(mid)
        fill(6)
        for rb in rbs: e(f"v_rcp_f32 {mx[rb]}, {So(rb)[0]}")
        for rb in rbs: e(f"v_mul_f32 {mx[rb]}, {mx[rb]}, v{vG+2*rb+1}")
        for rb in rbs:
            a, b = bt(0, 0, rb), bt(1, 0, rb)
            for r in (a, b):
                for k in range(4): e(f"v_mul_f32 {r[k]}, {r[k]}, {mx[rb]}")
            q.extend([pk(a[0], a[0], a[1]), pk(a[1], a[2], a[3]), pk(a[2], b[0], b[1]), pk(a[3], b[2], b[3])])
            e(f"buffer_store_dwordx4 {a}, v{vL16}, {srd(SD)}, s{sT + (rb>>1)} offen {ST} ;@tag=ob")
    def f0():
        for k in range(8): e(f"v_accvgpr_read_b32 v{vG+k}, a{64+k}")
    HE, WB = OPT.get("he", 1), OPT.get("wb", 0)
    def wpf(k): return [f"buffer_load_dword a{aDUM}, v19, {srd(SC)}, s81 offen ;@dummy"] + ([f"s_add_u32 s81, s81, {8192 // WB}"] if k + 1 < WB else [])
    if WB: e(f"v_lshlrev_b32 v19, {7 if WB == 1 else 6 if WB == 2 else 5}, v0")
    if OPT.get("nopf") or WB == 0: wpf = lambda k: []
    if HE:
        e(hld)
        if WB > 1: q.extend(wpf(0))
    part((1, 3), f0, (hld if not HE else "\n".join(wpf(1)) if WB == 4 else None))
    fill(len(qp) - 44)
    e(f"""USE {hin}
          L_hchk:
          v_max3_u32 v1, {hin[0]}, {hin[1]}, {hin[2]}
          v_max_u32 v1, v1, {hin[3]}
          v_cmp_eq_u32 vcc, -1, v1
          s_cbranch_vccnz L_hretry
          L_hgo:
          ds_write_b128 v17, {hin}
          s_sub_u32 s{sT}, s{sT}, 4096
          s_sub_u32 s{sT2}, s{sT2}, 4096""")
    g.ool += ["L_hretry:", "s_sub_u32 s72, s72, 1", "s_cbranch_scc1 L_hgo ;@nottaken", hld, "s_waitcnt vmcnt(0)", "s_branch L_hchk"]
    q.extend(wpf(WB // 2))
    fill(8)
    e("s_waitcnt lgkmcnt(0)\ns_barrier")
    q += g.prevrd((0, 2))
    fill(16)
    part((0, 2), lambda: fill(8), "\n".join(wpf(3)) if WB == 4 else None)
    assert not qp
    g.emit(q, name="local")

sR5, sKh, sCtx, sWo5, sL5, sCol, sSig, sWt = 82, 83, 84, 85, 86, 87, 79, 80
vG5, vC5 = 12, 14
def p5_ctx(sl, rb, s):
    f, b = (("a", 208), ("v", 152), ("a", 0), ("a", 32), ("a", 128))[sl]
    return R(f, b + 8*rb + 4*s)
def p5_lds(sl): return (131072, 32768, 65536, 98304, 0)[sl]
def p5_wdma(sl, rel, sr=SB):
    return [([f"s_add_u32 m0, s{sL5}, {p5_lds(sl) + i*1024}", f"s_add_u32 s{sT}, s{sWo5}, {rel*262144 + i*8192}"],
             f"buffer_load_dwordx4 v{vG5 + (i&1)}, {srd(sr)}, s{sT} offen lds ;@tag=w5_{sl}") for i in range(8)]
def p5_cld(sl, rel):
    o = []
    for s in range(2):
        for rb in range(4):
            o.append(([f"s_add_u32 s{sT2}, s{sCtx}, {rel*32768 + s*8192}"] if rb == 0 else [],
                      f"buffer_load_dwordx4 {p5_ctx(sl, rb, s)}, v{vC5 + (rb>>1)}, {srd(SD)}, s{sT2} offen offset:{(rb&1)*1024} sc1"))
    return o
def NB0(): return OPT.get("nb0", 5)
def p5_setup():
    CI = OPT.get("ci", 0)
    return L(f"""s_and_b32 s{t0_}, s2, 7
          s_lshr_b32 s{t1_}, s2, 3
          s_and_b32 s{sKh}, s{t0_}, 1
          s_and_b32 s{t2_}, s{t0_}, 2
          {f"s_and_b32 s{t3_}, s{t1_}, 7" if not OPT.get("rm", 0) else f"s_lshr_b32 s{t3_}, s{t1_}, 2"}
          s_lshl2_add_u32 s{sR5}, s{t2_}, s{t3_}
          s_and_b32 s{t2_}, s{t0_}, 4
          {f"s_lshr_b32 s{t3_}, s{t1_}, 3" if not OPT.get("rm", 0) else f"s_and_b32 s{t3_}, s{t1_}, 3"}
          s_xor_b32 s{t3_}, s{t3_}, {OPT.get("rm", 0)}
          s_add_u32 s{sCol}, s{t2_}, s{t3_}
          s_lshl_b32 s{sCol}, s{sCol}, 8
          s_lshl_b32 s{sL5}, s{sW}, 13
          s_lshl_b32 s{sWo5}, s{sW}, 16
          s_add_u32 s{sWo5}, s{sWo5}, s{sCol}
          {f"s_xor_b32 s{t2_}, s{t3_}, 1" if OPT.get("x_c3") else ""}
          {f"s_min_u32 s{t2_}, s{t2_}, 1" if OPT.get("x_c3") else ""}
          {f"s_xor_b32 s{t2_}, s{t2_}, 1" if OPT.get("x_c3") else ""}
          {f"s_mul_i32 s{t2_}, s{t2_}, 0x500" if OPT.get("x_c3") else ""}
          {f"s_xor_b32 s{sWo5}, s{sWo5}, s{t2_}" if OPT.get("x_c3") else ""}
          s_mul_i32 s{t0_}, s{sKh}, {NB0()*262144}
          s_add_u32 s{sWo5}, s{sWo5}, s{t0_}
          s_mul_i32 s{sCtx}, s{sR5}, {160*8192}
          s_and_b32 s{t0_}, s{sW}, 1
          s_lshl_b32 s{t0_}, s{t0_}, 14
          s_add_u32 s{sCtx}, s{sCtx}, s{t0_}
          s_mul_i32 s{t0_}, s{sKh}, {NB0()*32768}
          s_add_u32 s{sCtx}, s{sCtx}, s{t0_}
          s_add_u32 s{sCtx}, s{sCtx}, {WS_CTX + 128*8192}
          s_sub_u32 s{t0_}, 15, s{sR5}
          s_min_u32 s{t0_}, s{t0_}, s{sR5}
          s_lshl1_add_u32 s{t0_}, s{t0_}, s{sKh}
          s_lshl_b32 s{sWt}, s{t0_}, 8
          s_add_u32 s{sWt}, s{sWt}, {32*256}
          s_and_b32 s81, s{sW}, 1
          s_lshl_b32 s81, s81, 7
          s_add_u32 s81, s81, s{sKh}
          s_lshl_b32 s81, s81, 7
          s_add_u32 s81, s81, 98304
          s_lshl_b32 s{t0_}, s{sW}, 11
          v_lshrrev_b32 v{vC5}, 4, v0
          v_bfe_u32 v{vG5}, v0, 1, 3
          v_xor_b32 v{vG5}, v{vG5}, v{vC5}
          v_lshlrev_b32 v{vG5}, 5, v{vG5}
          v_lshl_add_u32 v{vG5}, v{vC5}, 11, v{vG5}
          v_and_b32 v{vC5}, 1, v0
          v_lshl_add_u32 v{vG5}, v{vC5}, 4, v{vG5}
          v_xor_b32 v{vG5+1}, {512 if CI else 128}, v{vG5}
          v_lshrrev_b32 v{vC5}, 4, v0
          v_bfe_u32 v18, v0, 2, 2
          v_lshl_add_u32 v{vC5}, v{vC5}, 2, v18
          v_and_b32 v18, 3, v0
          v_lshlrev_b32 v18, 3, v18
          v_lshl_add_u32 v18, v{vC5}, 8, v18
          v_and_b32 v{vC5}, 7, v{vC5}
          v_lshl_add_u32 v18, v{vC5}, 5, v18
          v_xor_b32 v18, s81, v18
          v_add_u32 v{vC5}, s{t0_}, v{vL16}
          v_xor_b32 v{vC5+1}, 0x800, v{vC5}""")

def attention(g):
    p = g.p
    RA = 8
    vDK, vDV, vNI, vBad = 2, 3, 17, 1
    sSrc, sM0, sCnt, sFB, sLX, sCb = 70, 71, 72, 73, 76, 74
    def Q(qb, t): return R("v", vQ + 16*qb + 4*t)
    def S_(kb, qb): return R("v", 88 + 16*qb + 4*kb)
    def Pp(b, u, qb): return R("v", 152 + 32*(qb >> 1) + 16*b + 8*(qb & 1) + 4*u)
    def NM(qb): return R("v", 216 + 4*qb)
    def O(db, qb): return R("a", 32*qb + 4*db)
    def Lr(qb): return R("a", 128 + 4*qb)
    def F(f): return R("a", 144 + 4*(f & 15))
    mx, mc, mt, TMP = 20, 248, 252, (232, 240)
    lab = {k: "L_" + k for k in ("F1", "D", "DD", "T", "T1", "S", "SD", "TAIL")}
    def rdK(f, i): return f"ds_read_b128 {F(f)}, v{vDK} offset:{i*16384 + f*1024}"
    def rdV(f, i): return f"ds_read_b128 {F(f)}, v{vDV} offset:{i*16384 + (f & 1)*8192 + (f >> 1)*1024}"
    def dma(k, tag):
        sal = []
        if k == 0: sal = [f"s_mov_b32 m0, s{sM0}"]
        if k == 4: sal = [f"s_add_u32 m0, s{sM0}, 4096", f"s_add_u32 s{sT}, s{sSrc}, 4096"]
        return sal, f"buffer_load_dwordx4 v{vL16}, {srd(SA)}, s{sSrc if k < 4 else sT} offen offset:{(k&3)*1024} sc1 lds ;@tag={tag}"
    def act(st, i, base):
        if st == "full" or (st == "diag" and i == 0): return [base, base + 1]
        if st == "diag": return [base + 1]
        return []
    def acts(sts, i): return act(sts[0], i, 0) + act(sts[1], i, 2)
    def masked(sts, i):
        for b, st in enumerate(sts):
            if st == "diag": return 2*b + i
        return None
    def epi_head(qb):
        return [f"v_accvgpr_read_b32 v{mx+qb}, {Lr(qb)[0]}", f"v_max_f32 v{vBad}, v{vBad}, v{mx+qb}", f"v_rcp_f32 v{mx+qb}, v{mx+qb}"]
    def epi_frag(qb, t, pkm=False):
        o = []; tmp = R("v", TMP[t & 1], 8)
        for r in range(8): o.append(f"v_accvgpr_read_b32 {tmp[r]}, {O(2*t + (r >> 2), qb)[r & 3]}")
        if t == 0: o.append(f"v_mul_f32 v{mx+qb}, v{mx+qb}, v{vG+2*qb}")
        if pkm:
            sel = "op_sel_hi:[1,0]" if qb % 2 == 0 else "op_sel:[0,1]"
            for r in range(4): o.append(f"v_pk_mul_f32 {tmp[2*r:2*r+2]}, {tmp[2*r:2*r+2]}, v[{mx+(qb&2)}:{mx+(qb&2)+1}] {sel}")
        else:
            for r in range(8): o.append(f"v_mul_f32 {tmp[r]}, {tmp[r]}, v{mx+qb}")
        for r in range(4): o.append(f"v_cvt_pk_bf16_f32 {tmp[r]}, {tmp[2*r]}, {tmp[2*r+1]}")
        o.append(f"s_add_u32 s77, s{sCb + (qb>>1)}, {t*8192 + (qb&1)*4096}")
        o.append(f"buffer_store_dwordx4 {tmp[0:4]}, v{vL16}, {srd(SD)}, s77 offen {ST} ;@tag=ctx")
        return o
    def xmax():
        o = []
        for op in ("v_permlane16_swap_b32", "v_permlane32_swap_b32"):
            o += [f"v_mov_b32 v{mc+qb}, v{mx+qb}" for qb in range(4)]
            o += [f"{op} v{mc+qb}, v{mx+qb}" for qb in range(4)]
            o += [f"v_max_f32 v{mx+qb}, v{mx+qb}, v{mc+qb}" for qb in range(4)]
        return o

    def group(cur, prev, first=False, lastg=False, hook=None, name=None, extra=None):
        mf = []; rs = []
        for i in range(2):
            qk = acts(cur, i); pv = acts(cur, 0) if i == 1 else acts(prev, 1); mq = masked(cur, i)
            r = dict(g0=len(mf), qk=qk, pv=pv, mq=mq, tiles=[], fu=[None]*32, lu=[None]*32)
            k = 0
            for kb in range(4):
                qs = [qk[x] for x in snake(len(qk), kb)]
                if mq is not None and kb == 0: qs = [x for x in qs if x != mq] + [mq]
                for qb in qs:
                    st = len(mf)
                    for q_, t in enumerate(snake(4, k)):
                        c = None
                        if q_ == 0 and qb != mq: c = 0 if (first and i == 0 and kb == 0) else NM(qb)
                        f = 4*kb + t
                        if r["fu"][f] is None: r["fu"][f] = len(mf)
                        r["lu"][f] = len(mf)
                        mf.append(mfma(S_(kb, qb), F(f), Q(qb, t), c))
                    k += 1
                    r["tiles"].append((kb, qb, st, len(mf) - 1))
            r["pv0"] = len(mf); k = 0; r["od"] = {}
            for qb in pv:
                for u in range(2): mf.append(mfma(Lr(qb), ONES, Pp(i ^ 1, u, qb), 0 if (first and u == 0) else None))
                r["od"][("l", qb)] = len(mf) - 1
            for db in range(8):
                for qb in [pv[x] for x in snake(len(pv), db)]:
                    for q_, u in enumerate(snake(2, k)):
                        f = 16 + 2*db + u
                        if r["fu"][f] is None: r["fu"][f] = len(mf)
                        r["lu"][f] = len(mf)
                        mf.append(mfma(O(db, qb), F(f), Pp(i ^ 1, u, qb), 0 if (first and q_ == 0) else None))
                    k += 1; r["od"][(db, qb)] = len(mf) - 1
            r["end"] = len(mf); rs.append(r)
        N = len(mf); S = Sched(mf)
        head = []
        for i, r in enumerate(rs):
            g0, n = r["g0"], r["end"] - r["g0"]; nq, npv = len(r["qk"]), len(r["pv"])
            single = (nq, npv) == (2, 2)
            knext = not (lastg and i == 1)
            if single:
                dg = [0, 0, 1, 3, 3, 4, 6, 6, 12, 14, 16, 18, 22, 24, 24, 26, 30, 32, 32, 34, 38, 40, 42, 46, 50, 52, 54, 58, 60, 62, 66, 67]
                mg = [2, 5, 20, 28, 36, 44, None, 56, 64]; bg = 48
                eg = [7, 8, 9, 10, 11] + [13 + 2*x for x in range(27)]
                cg = [12, 14, 16] + [4*x + 6 for x in range(3, 16)]
            else:
                bg = n - max(int(n * 0.27), 12)
                if npv == 0: bg = n - 18
                dg = None
                mg = [2 + (q_ * (bg - 4)) // 6 for q_ in range(6)] + [None] + [bg + 4, bg + 4 + (n - bg - 4) // 2]
            for d in range(32):
                f = d + RA
                if d == 32 - RA:
                    wt = ("kvB" if i == 0 else "kvA") + (",v0,ob" if first else "")
                    S.add("X", [f"WAITVM {wt}", "s_barrier"], g0 + bg, g0 + bg, chain="rd")
                if f < 16:
                    txt = rdK(f, i); fu = r["fu"][f]; free = g0
                elif f < 32:
                    if npv == 0: continue
                    txt = rdV(f - 16, i); fu = r["fu"][f]; free = r["lu"][f - 16]
                else:
                    f -= 32
                    if knext: txt = rdK(f, i ^ 1)
                    else: txt = rdV(f, 0)
                    fu = r["end"] + 4 + f; free = r["lu"][16 + f] if npv else r["lu"][f]
                if dg: lo = hi = g0 + dg[d]; assert lo >= free and lo <= fu - 6, (d, lo, free, fu)
                else:
                    if d < 32 - RA: hi = min(fu - 8, g0 + bg - 1); lo = min(max(free, g0 + (d * bg) // 24 - 6), hi)
                    else: hi = min(r["end"] - 1, fu - 10 + (f >> 2) * 4); lo = min(max(free, g0 + bg + 1), hi)
                    hi = max(hi, free); lo = max(lo, free)
                it = S.add("D", txt, lo, hi, chain="rd"); it["dd"] = first or lastg
                if not dg: it["early"] = free if d < 32 - RA else lo
            tA, tB = ("kvA", "kvB") if i == 0 else ("kvB", "kvA")
            for q_, gq in enumerate(mg):
                if gq is None: continue
                k = q_ + 2 if q_ < 6 else q_ - 7
                if lastg and (i == 1 or q_ > 6): continue
                sal, dd = dma(k, tA if q_ < 6 else tB)
                if k == 0: sal = [f"s_xor_b32 s{sM0}, s{sM0}, {16384 if i == 0 else 16384 + 32768}", f"s_add_u32 s{sSrc}, s{sSrc}, 32768"] + sal
                if single:
                    sg_ = {0: (45, 49, 53), 4: (9, 13)}.get(k, ())
                    for x, s_ in zip(sg_, sal): S.add("S", s_, g0 + x, g0 + x, chain="m")
                    S.add("M", dd, g0 + gq, g0 + gq, chain="m")
                else:
                    S.add("M", dd, g0 + gq, min(g0 + gq + 3, (g0 + bg - 1) if q_ < 6 else r["end"] - 1), chain="m", pre=sal, sep=3)
                    if extra and extra[0] == i and k in (3, 7):
                        for sal2, d2 in extra[1][(k >> 2)*4:(k >> 2)*4 + 4]: S.add("M", d2, g0 + gq, chain="m", pre=sal2, sep=3)
            if i == 1:
                lastK = g0 + (dg[15 - RA] if dg else r["fu"][15] - g0 - 8)
                S.add("A", f"v_xor_b32 v{vDK}, 0x8000, v{vDK}", max(lastK + 1, g0), g0 + bg - 1)
                if knext: S.add("A", f"v_xor_b32 v{vDV}, 0x8000, v{vDV}", g0 + bg + 1, N - 1)
                else: S.chains["rd"][[x["kind"] for x in S.chains["rd"]].index("X", len(S.chains["rd"]) - RA - 1)]["text"].append(f"v_xor_b32 v{vDV}, 0x8000, v{vDV}")
            nt = len(r["tiles"]); e = 0
            nxt = {(kb, qb): st for kb, qb, st, _ in rs[1]["tiles"]} if i == 0 else {}
            span0 = g0 + 8; span1 = r["end"] - 2
            if first and i == 0: span0 = g0 + 4*nq; span1 = r["end"] + 40
            if first and i == 1: span0 = g0 + 40
            for x, (kb, qb, st, en) in enumerate(r["tiles"]):
                s = S_(kb, qb); ch = ("sm", kb, qb); pdst = Pp(i, kb >> 1, qb)
                lim = nxt[(kb, qb)] - (7 if rs[1]["mq"] == qb else 1) if (kb, qb) in nxt else N - 1
                if not first: lim = min(lim, r["end"] - 1)
                if i == 0 and qb in rs[1]["pv"]: lim = min(lim, rs[1]["pv0"] - 3)
                if qb == r["mq"]:
                    src = "0" if (first and i == 0 and kb == 0) else str(NM(qb)[0])
                    for r_ in range(4):
                        c = f"v_cndmask_b32 {s[r_]}, {src}, v{vNI}, {msk(4*kb + r_)}"
                        if st - 3 < 0: head.append(c)
                        else: S.add("A", c, (g0 + 4*nq) if (first and i == 0 and kb > 0) else (0 if i == 0 else max(g0 - 20, 0)), st - 3, chain=ch)
                lo = en + 7
                if first and i == 0 and kb == 0:
                    lo = g0 + 4*nq
                    for r_ in range(4): S.add("A", f"v_add_f32 {s[r_]}, {s[r_]}, {NM(qb)[0]}", lo, lim - 4, chain=ch)
                for r_ in range(4):
                    pace_ = span0 + ((e + 1) * (span1 - span0)) // (4 * nt)
                    elo, ehi, clo, chi = min(lo, lim - 1), min(max(pace_, lo), lim - 1), min(lo, lim), min(lim, max(pace_, lo) + 8)
                    if single: elo = ehi = g0 + eg[e]; clo = chi = g0 + cg[e >> 1]
                    e += 1
                    S.add("E", f"v_exp_f32 {s[r_]}, {s[r_]}", elo, ehi, chain=ch)
                    if r_ & 1:
                        it = S.add("A", f"v_cvt_pk_bf16_f32 {pdst[2*(kb & 1) + (r_ >> 1)]}, {s[r_-1]}, {s[r_]}", clo, chi, chain=("cv", i, kb, qb, r_), sep=1)
                        it["after"] = S.chains[ch][-1]; it["soft"] = True
                        if r_ == 3: r.setdefault("lastcv", {})[(kb, qb)] = [it, S.chains[("cv", i, kb, qb, 1)][0]]
            if first and i == 0:
                blk = ["s_nop 1"]
                for qb in [x[1] for x in r["tiles"][:4]]:
                    a = S_(0, qb); blk += [f"v_max3_f32 v{mx+qb}, {a[0]}, {a[1]}, {a[2]}", f"v_max_f32 v{mx+qb}, v{mx+qb}, {a[3]}"]
                blk += xmax() + [f"s_cmp_eq_u32 s{sFB}, 0", "s_cselect_b64 vcc, 0, -1"]
                blk += [f"v_cndmask_b32 v{mx+qb}, v{mx+qb}, v{mt+qb}, vcc" for qb in range(4)]
                for qb in (3, 2, 1, 0): blk += [f"v_sub_f32 {NM(qb)[r_]}, 0, v{mx+qb}" for r_ in range(4)]
                S.add("X", blk, g0 + 4*nq - 1, g0 + 4*nq - 1)
        if rs[1]["mq"] is not None:
            for kb in range(4):
                key = (kb, rs[1]["mq"]); its = S.chains[("sm",) + key]
                k0 = [x for x in its if "cndmask" in x["text"][0]][-4]
                k0["after"] = rs[0]["lastcv"][key]
        if hook: hook(S, rs)
        return head + (["s_nop 0"] if head else []) + S.run(name)

    FULL2, LD, TR, TD, NONE = ("full", "full"), ("diag", "full"), ("off", "full"), ("off", "diag"), ("off", "off")
    def add_cpf(S, lo, hi, exprs):
        if OPT.get("nocpf"): return
        for e_ in exprs:
            pre, d = cpf(e_); S.add("M", d, lo, hi, chain="cpf", pre=pre, sep=3 if lo >= 0 else 0)
    def hook_first(S, rs):
        lo = rs[1]["g0"] + 40; N = rs[1]["end"]
        pre, d = signal(SF, f"s{t1_}", 0, "ob")
        for c in [pre[0], pre[1].replace("v1,", "v19,")] + L(f"""s_lshr_b32 s{t1_}, s{sH}, 4
              s_lshl1_add_u32 s{t1_}, s{sJ}, s{t1_}
              s_lshl_b32 s{sSig}, s{t1_}, 8
              s_add_u32 s{sSig}, s{sSig}, {32*256}
              s_add_u32 s{t3_}, s{sH}, {32 - 4*NB0()}
              s_lshr_b32 s{t3_}, s{t3_}, 5
              s_lshl1_add_u32 s{t3_}, s{sJ}, s{t3_}
              s_lshl_b32 s{t3_}, s{t3_}, 8
              s_add_u32 s{t3_}, s{t3_}, {32*256}
              s_lshl_b32 s{t1_}, s{sFB}, 16
              s_xor_b32 s{t2_}, s{sWt}, 256
              s_add_u32 s{t2_}, s{t2_}, s{t1_}
              s_add_u32 s{t1_}, s{t1_}, s{t3_}"""): S.add(kind(c), c, lo, chain="sig", sep=1)
        d = d.replace("v1,", "v19,"); ol = one_lane(d); ol.insert(2, d.replace(f"s{t1_} offen", f"s{t2_} offen"))
        S.add("X", ol, lo, N - 2, chain="sig", sep=1)
        S.add("A", "v_mul_u32_u24 v19, 52, v0", lo, N - 1, chain="sig", sep=1)
        if rs[1]["mq"] is None: add_cpf(S, lo, N - 1, [f"{lab['D']}-L_pc+{4096*k}" for k in range(3)])
        else: add_cpf(S, lo, N - 1, [f"{lab['T']}-L_pc+{4096*k}" for k in range(2)])
    def add_epi(S, r, qb, ts, hi, head=False):
        def put(cs_, lo):
            for c in cs_: S.add("M" if c.startswith("buffer") else kind(c), c, min(lo, hi), hi, chain="epi")
        if head: put(epi_head(qb), r["od"][("l", qb)] + 8)
        for t in ts: put(epi_frag(qb, t), r["od"][(2*t + 1, qb)] + 8 if r else 8)
    def hook_dd(S, rs):
        add_cpf(S, 2, rs[1]["end"] - 1, [f"{lab['T']}-L_pc", f"{lab['T']}-L_pc+4096", f"{lab['T1']}-L_pc", f"{lab['T1']}-L_pc+4096"])
    def hook_e0(S, rs): add_epi(S, rs[1], 0, (0, 1, 2), rs[1]["end"], True)
    def hook_t(S, rs):
        add_epi(S, None, 0, (3,), rs[0]["pv0"] + 10); add_epi(S, rs[0], 1, (0, 1, 2, 3), rs[1]["g0"] + 10, True)
    def hook_last(S, rs):
        g1 = rs[1]["g0"]; N = rs[1]["end"]
        S.add("M", f"buffer_load_dword v19, off, {srd(SF)}, s{sWt} sc1", -1, -1, chain="p5")
        for c in (f"s_mul_i32 s{t3_}, s{sKh}, {8*NB0() - 32}", f"s_sub_u32 s{t3_}, {16 + 4*NB0()}, s{t3_}"): S.add("S", c, 14, g1 - 20, chain="p5")
        S.add("X", g.spin(19, SF, f"s{sWt}", 0, f"s{t3_}"), g1 - 16, g1 - 16, chain="p5")
        for k, (sal, d) in enumerate(p5_cld(0, 0) + p5_cld(1, 1)): S.add("M", d, g1 - 14 if k < 8 else g1, N - 1, chain="p5", pre=sal, sep=2)
        add_cpf(S, -1, -1, [f"{lab['TAIL']}-L_pc", f"{lab['TAIL']}-L_pc+4096", "L_p5f0-L_pc", "L_p5f0-L_pc+4096"][:OPT.get("ncp", 4)])
        add_epi(S, rs[1], 2, (0,), N, True)
    def both(*hs):
        def h(S, rs):
            for x in hs: x(S, rs)
        return h
    def first_group(cur, name, hook, extra=None):
        seq = [rdK(f, 0) for f in range(RA)]
        for k in range(2):
            sal, d = dma(k, "kvA"); seq += sal + (["s_nop 0"] if k == 0 else []) + [d]
        return seq + group(cur, NONE, first=True, hook=hook, name=name, extra=extra)

    START = p.new("attstart")
    q = [f"v_mov_b32 v{vNI}, 0xff800000"]
    q += [START + ":"] + L(f"""v_mov_b32 v{vDK}, v{vL16}
          v_add_u32 v{vDV}, 0x10000, v{vL16}
          v_mov_b32 v{vBad}, 0
          WAITVM k0 L
          s_barrier""") + stamp(6)
    g.emit(q)
    st0 = (list(g.lg), list(g.vm))
    def setst(s): g.lg, g.vm = list(s[0]), list(s[1])
    def getst(): return (list(g.lg), list(g.vm))
    cs = ([([("a", 144 + 4*f + r) for r in range(4)], 0) for f in range(RA)], [("kvB", [])] * 8 + [("kvA", [])] * 2)
    def chk():
        a = [r for r, _ in g.lg]; b = [r for r, _ in cs[0]]
        assert a == b[len(b) - len(a):], a
    EG = 6
    p(f"s_cmp_eq_u32 s{sJ}, 0\ns_cbranch_scc1 {lab['F1']}")
    g.emit(first_group(FULL2, "F0", hook_first), EG); chk()
    g.emit(stamp(12))
    p(f"s_sub_u32 s{sCnt}, s{sJ}, 1\ns_cmp_eq_u32 s{sCnt}, 0\ns_cbranch_scc1 {lab['DD']}")
    def hook_cnt(S, rs):
        N = rs[1]["end"]
        S.add("S", f"s_sub_u32 s{sCnt}, s{sCnt}, 1", N - 11, N - 11); S.add("S", f"s_cmp_lg_u32 s{sCnt}, 0", N - 7, N - 7)
        if not OPT.get("wb", 0) and not OPT.get("nopf") and N > 200:
            S.add("M", f"buffer_load_dword a{aDUM}, v19, {srd(SC)}, s81 offen ;@dummy", 5, 5, chain="wo")
            S.add("S", f"s_add_u32 s81, s81, {128*3328}", 15, 17, chain="wo")
        if N > 200: add_cpf(S, N - 30, N - 14, [f"{lab['DD']}-L_pc", f"{lab['DD']}-L_pc+4096"])
    p(".p2align %d" % OPT.get("pa", 3)); p(["s_nop 0"] * OPT.get("pn", 0)); p.label(lab["D"]); setst(cs)
    g.emit(group(FULL2, FULL2, hook=hook_cnt, name="D"), EG); chk()
    p(f"s_cbranch_scc1 {lab['D']}")
    p.label(lab["DD"]); setst(cs)
    g.emit(stamp(13) + group(LD, FULL2, hook=both(hook_dd, hook_e0), name="DD", extra=(0, p5_wdma(0, 0))), EG); chk()
    p(f"s_cmp_eq_u32 s{sJ}, 7\ns_cbranch_scc1 {lab['T1']}")
    p.label(lab["T"]); setst(cs)
    g.emit(stamp(14) + group(TR, LD, hook=hook_t, name="T") + stamp(15), EG); chk()
    p(f"s_lshl_b32 s{sCnt}, s{sJ}, 1\ns_sub_u32 s{sCnt}, 13, s{sCnt}")
    p(".p2align %d" % OPT.get("pa", 3)); p(["s_nop 0"] * OPT.get("pn", 0)); p.label(lab["S"]); setst(cs)
    g.emit(group(TR, TR, hook=hook_cnt, name="S"), EG); chk()
    p(f"s_cbranch_scc1 {lab['S']}")
    setst(cs)
    g.emit(stamp(16) + group(TD, TR, lastg=True, hook=hook_last, name="SD"), EG, name="SD"); chk()
    ts = (cs[0], list(g.vm)); setst(ts)
    p.label(lab["TAIL"])
    mf = [mfma(Lr(3), ONES, Pp(1, u, 3)) for u in range(2)]
    for db in range(8): mf += [mfma(O(db, 3), F(2*db + u), Pp(1, u, 3)) for u in snake(2, db)]
    S = Sched(mf)
    for f in range(8, 16): S.add("D", rdV(f, 0), -1 if f < 12 else 0, -1 if f < 12 else 1, chain="rd")["dd"] = True
    for k, (sal, d) in enumerate(p5_wdma(1, 1)): S.add("M", d, 3 + 2*k, 3 + 2*k, chain="p5", pre=sal)
    e1 = epi_frag(2, 1)
    for c in e1[:-2]: S.add("A", c, 2, chain="epi")
    seq = stamp(17) + S.run("tail") + e1[-2:] + stamp(7)
    seq += epi_head(3) + L(f"""s_mov_b32 s{t0_}, {f32(LTHR if not OPT.get('forcefb') else 0.0)}
          v_cmp_le_f32 vcc, s{t0_}, v{vBad}
          s_lshl_b32 s{t1_}, s{sW}, 2
          s_cmp_lg_u64 vcc, 0
          s_cselect_b32 s{t0_}, 1, 0
          v_mov_b32 v248, s{t1_}
          v_mov_b32 v249, s{t0_}
          ds_write_b32 v248, v249""") + epi_frag(2, 2, True) + epi_frag(2, 3, True)
    for t in range(4): seq += epi_frag(3, t, True)
    FB = p.new("fallback")
    seq += L(f"""v_mov_b32 v248, 0
          s_waitcnt lgkmcnt(0)
          s_barrier
          ds_read_b128 v[248:251], v248""") + stamp(8)
    g.emit(seq)
    g.fbcheck = L(f"""v_or3_b32 v248, v248, v249, v250
          v_or_b32 v248, v248, v251
          s_nop 0
          v_readfirstlane_b32 s{t0_}, v248 ;@val=0
          s_nop 0
          s_cmp_gt_u32 s{t0_}, s{sFB}
          s_cbranch_scc1 {FB} ;@br=fb""")
    es = getst()
    main = g.p; g.p = P(); g.p.uid = main.uid + 1000
    g.p.label(lab["F1"]); setst(st0)
    g.emit(first_group(LD, "F1", both(hook_first, hook_e0), (1, p5_wdma(0, 0))) + stamp(12) + stamp(13), EG); chk()
    g.p(f"s_branch {lab['T']}")
    g.p.label(lab["T1"]); setst(cs)
    g.emit(stamp(14) + stamp(15) + stamp(16) + group(TD, LD, lastg=True, hook=both(hook_t, hook_last), name="T1"), EG); chk()
    def sig_(vm): return [(t, tuple(r)) for t, r in vm if (t and t.startswith("w5")) or r]
    assert sig_(g.vm) == sig_(ts[1])[len(sig_(ts[1])) - len(sig_(g.vm)):], (sig_(g.vm), sig_(ts[1]))
    g.p(f"s_branch {lab['TAIL']}")
    g.p.label(FB); setst(([], []))
    sU = 81
    q = L(f"""s_waitcnt vmcnt(0) lgkmcnt(0)
          s_barrier
          s_mov_b32 s{sFB}, 1
          s_mov_b32 s{sU}, 0
          v_and_b32 v232, 15, v0
          v_lshrrev_b32 v233, 4, v0
          v_lshlrev_b32 v233, 2, v233
          v_sub_u32 v232, v232, v233
          s_lshl_b32 s{t0_}, s{sW}, 4
          v_add_u32 v232, s{t0_}, v232
          s_lshl_b32 s{t0_}, s{sBHi}, 7
          v_add_u32 v234, s{t0_}, v232
          s_lshl_b32 s{t0_}, s{sJ}, 7
          v_add_u32 v232, s{t0_}, v232
          v_add_u32 v233, 64, v232
          v_add_u32 v235, 64, v234""")
    for sal, d in att_first_dmas(sLX): q += sal + ["s_nop 0", d]
    for qb in range(4): q.append(f"v_mov_b32 v{mx+qb}, 0xff800000")
    FL = g.p.new("fbl"); q.append(FL + ":")
    for f in range(8):
        if f == 4: q.append(f"s_add_u32 s{sT}, s{sU}, 4096")
        q.append(f"buffer_load_dwordx4 {F(f)}, v{vL16}, {srd(SA)}, s{sU if f < 4 else sT} offen offset:{(f&3)*1024} sc1")
    for qb in range(4):
        for kb in range(2):
            for r in range(4):
                c = S_(kb, qb)[r]
                q += [f"v_subrev_u32 {c}, {16*kb + r}, v{232+qb}", f"v_ashrrev_i32 {c}, 31, {c}", f"v_and_b32 {c}, 0xff800000, {c}"]
        q.append(f"v_subrev_u32 v{232+qb}, 32, v{232+qb}")
    q.append("s_waitcnt vmcnt(0)")
    for f in range(8):
        for qb in range(4): q.append(mfma(S_(f >> 2, qb), F(f), Q(qb, f & 3)))
    q.append("s_nop 7")
    for qb in range(4):
        for kb in range(2):
            a = S_(kb, qb)
            q += [f"v_max3_f32 v{mx+qb}, v{mx+qb}, {a[0]}, {a[1]}", f"v_max3_f32 v{mx+qb}, v{mx+qb}, {a[2]}, {a[3]}"]
    q += L(f"s_add_u32 s{sU}, s{sU}, 16384\ns_cmp_lt_u32 s{sU}, s{SA+2}\ns_cbranch_scc1 {FL}")
    q += xmax()
    q += [f"v_mov_b32 v{mt+qb}, v{mx+qb}" for qb in range(4)] + att_scalars()
    q.append(f"s_branch {START}")
    g.emit(q)
    g.ool += g.p.l; main.uid = g.p.uid + 1000; g.p = main
    setst(es)

def phase5(g):
    p = g.p
    vD = 184
    sCnt = 70
    CO = [4, 5, 6, 7, 0, 1, 2, 3]
    def acc(rb, cb): return R("v", 24 + 32*rb + 4*cb)
    def fw(j, s): return R("a", 64 + 8*j + 4*s)
    def wread(sl, j, slot=None):
        win, off = ((0, 32768), (1, 0), (1, 32768), (0, 0), (2, 0))[sl]
        return [f"ds_read_b64_tr_b16 {fw(j if slot is None else slot, s)[2*i:2*i+2]}, v{vD + 8*win + CO[j]} offset:{off + s*8192 + i*4096}" for s in range(2) for i in range(2)]
    NPRE = 3
    q = [f"v_xor_b32 v{vD+n}, {32*n}, v18" for n in CO[:NPRE]]
    for j in range(NPRE): q += wread(0, j)
    q += [f"v_xor_b32 v{vD+n}, {32*n}, v18" for n in CO[NPRE:]] + g.fbcheck
    g.emit(q)
    BP = 40
    xs = L(f"""s_xor_b32 s{t0_}, s2, 1
          s_lshl2_add_u32 s{t0_}, s{t0_}, s{sW}
          s_lshl_b32 s73, s{t0_}, 12
          s_add_u32 s73, s73, {WS_XCH}
          s_lshl2_add_u32 s{t0_}, s2, s{sW}
          s_lshl_b32 s75, s{t0_}, 12
          s_add_u32 s75, s75, {WS_XCH}
          s_lshl_b32 s77, s{sR5}, 18
          s_lshl_b32 s{t0_}, s{sW}, 16
          s_add_u32 s77, s77, s{t0_}
          s_add_u32 s77, s77, s{sCol}
          s_lshl_b32 s{t0_}, s{sKh}, {9 if OPT.get("ci", 0) else 7}
          s_add_u32 s77, s77, s{t0_}
          v_lshlrev_b32 v1, 24, v0
          v_and_b32 v8, 7, v0
          v_lshlrev_b32 v8, 11, v8
          v_bfe_u32 v10, v0, 3, 1
          v_lshl_add_u32 v8, v10, 6, v8
          v_bfe_u32 v10, v0, 4, 1
          v_lshl_add_u32 v8, v10, 5, v8
          v_lshrrev_b32 v10, 5, v0
          v_lshl_add_u32 v8, v10, 4, v8
          v_add_u32 v2, s{sL5}, v{vL16}
          v_xor_b32 v3, 0x2000, v2
          v_mov_b32 v232, 0
          v_mov_b32 v233, 0
          v_mov_b32 v236, 0
          v_mov_b32 v237, 0
          v_and_b32 v9, 1, v0
          v_lshlrev_b32 v9, 4, v9
          v_mov_b32 v10, 0x3f80
          v_lshlrev_b32 v9, v9, v10
          v_lshrrev_b32 v10, 4, v0
          v_lshlrev_b32 v10, 1, v10
          v_bfe_u32 v11, v0, 1, 3
          v_xor_b32 v10, v10, v11
          v_subrev_u32 v11, 1, v10
          v_ashrrev_i32 v11, 31, v11
          v_and_b32 v234, v11, v9
          v_xor_b32 v10, 1, v10
          v_subrev_u32 v11, 1, v10
          v_ashrrev_i32 v11, 31, v11
          v_and_b32 v235, v11, v9""")
    def tmp(rb, c): return R("v", 200 + 16*rb + 4*c)
    G2 = OPT.get("g2", 1)
    def mfs(prs, czero):
        mf = []; dn = {}; k = 0
        for x, (sl, j) in enumerate(prs):
            for rb in snake(4, j + 1):
                for q_, s in enumerate(snake(2, k)):
                    mf.append(mfma(acc(rb, CO[j]), fw(x & 7, s), p5_ctx(sl, rb, s), 0 if (czero and x < 8 and q_ == 0) else None))
                k += 1; dn[(rb, CO[j])] = len(mf) - 1
        return mf, dn
    def pacer(S):
        def pace(items, lo, hi):
            its = []
            for k, (sal, d) in enumerate(items):
                x = lo + (k * (hi - lo)) // len(items)
                its.append(S.add("M", d, x, min(x + 2, S.n - 1), chain="ld", pre=sal, sep=2))
            return its[0]
        return pace
    def first(role):
        nb = NB0() if role == 0 else 8 - NB0()
        na4 = 4 if nb == 2 else 0
        ns = nb + na4
        sl = {3: [0, 1, 3], 4: [0, 1, 2, 3], 5: [0, 1, 2, 4, 3], 6: [0, 1, 3, 4, 2, 3]}[ns] + [0, 1, 2]
        S = Sched(mfs([(sl[st], j) for st in range(ns) for j in range(8)], True)[0]); pace = pacer(S)
        gs = 8 if G2 else 4
        def arel(k): return k - nb if (k < ns or not na4) else k - ns + gs
        def W(k): return p5_wdma(sl[k], k, SB) if k < nb else p5_wdma(sl[k], arel(k), SC)
        def C(k): return p5_cld(sl[k], k if k < nb else arel(k))
        sigst = OPT.get("sig%d" % role, 1)
        EG_ = OPT.get("eg%d" % role, role if nb > 2 else 0)
        swW = f"s_add_u32 s{sWo5}, s{sWo5}, {(4<<20) - NB0()*262144}"
        if nb == 2 and role: S.add("S", swW, -1, -1, chain="ld")
        for st in range(ns):
            g0 = 64 * st; B = g0 + BP; dr = sl[st + 3] == sl[st]
            for j in range(NPRE, 8):
                for r in wread(sl[st], j): S.add("T", r, max(g0 + 8*j - 30, g0), min(g0 + 8*j - 8, B - (5 if dr else 1)), chain="t")
            S.add("X", [f"WAITVM w5_{sl[st+1]}" + (",ctx" if st == sigst else "") + (" L" if dr else ""), "s_barrier"], B, B, chain="t")
            for j in range(NPRE):
                for r in wread(sl[st + 1], j): S.add("T", r, B + 1, min(g0 + 64 + 8*j - 8, g0 + 63), chain="t")
            na = 6 if (st == nb - 2 and not EG_) else 5
            gate = g.spin(19, SF, "s72", 0, 8 if G2 else 16) + [f"s_sub_u32 s{sCtx}, s{sCtx}, {128*8192 - role*(64*8192 - NB0()*32768)}"] + stamp(9) if st == nb - 1 - EG_ else None
            poll = f"buffer_load_dword v19, off, {srd(SF)}, s72 sc1"
            wr = W(2) if st == 0 else W(st + 2)[5:]
            if EG_:
                if gate: S.add("X", gate, g0, g0, chain="ld")
                pace(wr + C(st + 2), g0 + 2, B - 1)
                if st == nb - 3: S.add("M", poll, B - 1, B + 2, chain="ld")
            elif st == nb - 2:
                pace(wr, g0 + 2, g0 + 28)
                S.add("M", poll, g0 + 30, g0 + 36, chain="ld")
            elif st == nb - 1:
                S.add("X", gate, g0, g0, chain="ld")
                pace(C(nb) + W(nb + 1)[6:] + C(nb + 1), g0 + 2, B - 1)
            else: pace(wr + C(st + 2), g0 + 2, B - 1)
            if st + 3 == nb and role: S.add("S", swW, B - 1, B + 3, chain="ld")
            pace(W(st + 3)[:na], B + 5, g0 + 64)
            if st == sigst:
                pre, d = signal(SF, "s71", 0, "ctx")
                S.add("S", pre[0], B - 12, B - 4, chain="sig"); S.add("A", pre[1], B - 12, B - 1, chain="sig", sep=1)
                S.add("X", one_lane(d), B + 1, B + 1, chain="sig")
        fin = [f"s_mov_b32 s{sCnt}, {2 if na4 else 3}", f"s_mov_b32 s73, {1 if not G2 else -1 if na4 else 2}"]
        if na4: fin += [f"s_add_u32 s{sWo5}, s{sWo5}, {gs*262144}", f"s_add_u32 s{sCtx}, s{sCtx}, {gs*32768}"]
        for c in fin: S.add("S", c, S.n - 6, S.n, chain="ld")
        nb = ns
        for n in range(8): S.add("A", f"v_xor_b32 v{vD+8+n}, 0x10000, v{vD+n}", 0, BP - 1)
        if nb >= 5:
            for n in range(8): S.add("A", f"v_xor_b32 v{vD+16+n}, 0x18000, v{vD+n}", 64, 128)
        for c in [f"s_and_b32 s71, s{sH}, {4 if G2 else 0}", "s_lshl_b32 s71, s71, 5", f"s_add_u32 s71, s71, s{sSig}", "s_add_u32 s71, s71, 4096", f"s_add_u32 s72, s{sWt}, 4096"]: S.add("S", c, 4, 28, chain="sc")
        if not OPT.get("nocpf"):
            for k in range(3):
                pre, d = cpf("L_p5loop-L_pc+%d" % (4096*k)); x = 64*(nb - 2) + 18
                S.add("M", d, x + 3*k, x + 20, chain="cpf", pre=pre, sep=3)
        return S.run("p5first%d" % role)
    def body(kd):
        prs = [(st, j) for st in range(4) for j in range(8)]
        if kd == "last": prs = prs[:16] + [(2, j) for j in range(4)] + [(3, j) for j in range(4)] + [(2, j) for j in range(4, 8)] + [(3, j) for j in range(4, 8)]
        mf, dn = mfs(prs, False)
        S = Sched(mf); pace = pacer(S)
        for st in range(4):
            g0 = 64 * st; B = g0 + BP
            if kd == "last" and st >= 2:
                for x in range(8*st + (NPRE if st == 2 else 0), 8*st + 8):
                    if x == 20: S.add("X", ["WAITVM w5_3", "s_barrier"], g0 + 6, g0 + 6, chain="t")
                    for r in wread(prs[x][0], prs[x][1], x & 7): S.add("T", r, max(8*x - 30, 128), 8*x - 8, chain="t")
                continue
            for j in range(NPRE, 8):
                for r in wread(st, j): S.add("T", r, max(g0 + 8*j - 30, g0), min(g0 + 8*j - 8, B - 1), chain="t")
            S.add("X", [f"WAITVM w5_{(st+1)&3}", "s_barrier"], B, B, chain="t")
            for j in range(NPRE):
                for r in wread((st + 1) & 3, j): S.add("T", r, B + 1, min(g0 + 64 + 8*j - 8, g0 + 63), chain="t")
            def batch(x): return [] if (kd == "last" and x >= 4) else p5_wdma(x & 3, x & 3, SC) + p5_cld(x & 3, x & 3)
            if kd == "loop" and st == 2:
                if G2: S.add("X", g.spin(19, SF, "s72", 128, "s74"), g0, g0, chain="ld")
                for c in (f"s_lshl_b32 s75, s73, 17", f"s_add_u32 s{sCtx}, s{sCtx}, s75"): S.add("S", c, g0 - 20, g0 + 6, chain="ac")
            if batch(st + 2): pace(batch(st + 2)[5:], g0 + (3 if st == 2 else 1), B - 1)
            if kd == "loop" and st == 1:
                for c in (f"s_lshl_b32 s75, s73, 20", f"s_add_u32 s{sWo5}, s{sWo5}, s75", "s_lshr_b32 s74, s73, 28", "s_and_b32 s74, s74, 8"): S.add("S", c, g0 + 16, B, chain="ac")
                if G2: S.add("M", f"buffer_load_dword v19, off, {srd(SF)}, s72 offset:128 sc1", g0 - 1, g0, chain="pl")
            if batch(st + 3): pace(batch(st + 3)[:5], B + 3, g0 + 64)["prelo"] = B + 1
        if kd == "loop":
            for c in ([f"s_sub_u32 s73, 1, s73"] if G2 else []) + [f"s_sub_u32 s{sCnt}, s{sCnt}, 1", f"s_cmp_lg_u32 s{sCnt}, 0"]: S.add("S", c, 250, 256, chain="ld")
        if kd == "last":
            for c in xs + mk_srd(SE, sOUT, 4 << 20): S.add(kind(c), c, 108, 165, chain="x")
            for c in range(4):
                for rb in snake(2, c + 1):
                    S.add("M", f"ds_write_b128 v3, {acc(2 + rb, 4 + c)} offset:{rb*4096 + c*1024}", dn[(2 + rb, 4 + c)] + 7, dn[(2 + rb, 4 + c)] + 9, chain="x")
            S.add("X", ["s_waitcnt lgkmcnt(0)", "s_barrier"], 0, 204, chain="x", sep=3)
            for rb in range(2):
                for c in range(4): S.add("D", f"ds_read_b128 {tmp(rb, c)}, v2 offset:{rb*4096 + c*1024}", 0, 205 + 2*rb + (c >> 1), chain="x")["dd"] = True
            x = 210
            for rb in range(2):
                for c2 in range(2):
                    a, b = tmp(rb, 2*c2), tmp(rb, 2*c2 + 1); x += 8
                    for c in (2*c2, 2*c2 + 1):
                        for r in range(4): S.add("A", f"v_add_f32 {tmp(rb, c)[r]}, {tmp(rb, c)[r]}, {acc(rb, 4 + c)[r]}", 210, x - 1, chain="x")
                    for d_, src, r in ((0, a, 0), (1, a, 2), (2, b, 0), (3, b, 2)): S.add("A", f"v_cvt_pk_bf16_f32 {a[d_]}, {src[r]}, {src[r+1]}", 0, x - 1, chain="x")
                    S.add("M", f"buffer_store_dwordx4 {a}, v{vL16}, {srd(SD)}, s73 offen offset:{(2*rb + c2)*1024} {ST}", 0, x, chain="x", sep=1)
            for c in range(3):
                for rb in snake(2, c + 1):
                    S.add("M", f"ds_write_b128 v3, {acc(2 + rb, c)} offset:{32768 + rb*4096 + c*1024}", dn[(2 + rb, c)] + 7, chain="x")
        return S.run("p5" + kd)
    st0 = (list(g.lg), list(g.vm))
    p(f"s_cmp_eq_u32 s{sKh}, 0\ns_cbranch_scc1 L_p5f0")
    g.emit(first(1), 8, name="p5first1")
    ent = (list(g.lg), list(g.vm))
    main = g.p; g.p = P(); g.p.uid = main.uid + 1000
    g.p.label("L_p5f0"); g.lg, g.vm = st0
    g.emit(first(0), 8); g.p("s_branch L_p5join")
    def cregs(sl): return [(None, [(p5_ctx(sl, rb, s_).f, p5_ctx(sl, rb, s_).b + k) for k in range(4)]) for s_ in range(2) for rb in range(4)]
    ent = (None, cregs(0) + [("w5_1", [])] * 2 + cregs(1) + [("w5_2", [])] * 5)
    g.ool += g.p.l; main.uid = g.p.uid + 1000; g.p = main
    p.label("L_p5join")
    p(stamp(4))
    p(".p2align 3"); p.label("L_p5loop")
    pre_ = [([("a", 64 + 2*k), ("a", 65 + 2*k)], 0) for k in range(4 * NPRE)]
    g.lg = pre_; g.vm = ent[1]
    g.emit(body("loop"), 8)
    p("s_cbranch_scc1 L_p5loop")
    g.lg = pre_
    g.emit(stamp(3) + body("last") + stamp(10), 8, name="p5last")
    def rx(k): return R("v", 152 + 4*k)
    ldx = [f"buffer_load_dwordx4 {rx(k)}, v{vL16}, {srd(SD)}, s75 offen offset:{k*1024} sc1" for k in range(4)]
    q = ldx + ["s_nop 3"]
    for rb in range(2): q.append(f"ds_write_b128 v3, {acc(2 + rb, 3)} offset:{32768 + rb*4096 + 3*1024}")
    q += L(f"""s_mov_b32 s72, 0x4000
          s_waitcnt lgkmcnt(0)
          s_barrier""")
    for rb in range(2):
        for c in range(4): q.append(f"ds_read_b128 {acc(2 + rb, c)}, v2 offset:{32768 + rb*4096 + c*1024}")
    for rb in range(2):
        for c in range(4):
            for r in range(4): q.append(f"v_add_f32 {acc(rb, c)[r]}, {acc(rb, c)[r]}, {acc(2 + rb, c)[r]}")
    q += ["L_xchk:", "s_waitcnt vmcnt(0)", "v_max3_u32 v9, v152, v153, v154"] + [f"v_max3_u32 v9, v9, v{155+2*k}, v{156+2*k}" for k in range(6)]
    q += L("""v_max_u32 v9, v9, v167
          v_cmp_eq_u32 vcc, -1, v9
          s_cbranch_vccnz L_xretry
          L_xgo:""")
    g.ool += ["L_xretry:", "s_sub_u32 s72, s72, 1", "s_cbranch_scc1 L_xgo ;@nottaken"] + ldx + ["s_branch L_xchk"]
    SEL = R("v", 232, 6)
    q += [mfma(acc(rb, c), SEL[2:6] if c % 2 == 0 else SEL[0:4], rx(2*rb + (c >> 1))) for rb in range(2) for c in range(4)] + ["s_nop 1"]
    for rb in range(2):
        for c2 in range(2):
            a, b = acc(rb, 2*c2), acc(rb, 2*c2+1)
            q += L(f"""v_cvt_pk_bf16_f32 {a[0]}, {a[0]}, {a[1]}
                  v_cvt_pk_bf16_f32 {a[1]}, {a[2]}, {a[3]}
                  v_cvt_pk_bf16_f32 {a[2]}, {b[0]}, {b[1]}
                  v_cvt_pk_bf16_f32 {a[3]}, {b[2]}, {b[3]}""")
        a, b, t_ = acc(rb, 0), acc(rb, 2), acc(rb, 1)
        q += [f"v_permlane16_swap_b32 {a[0]}, {a[2]}", f"v_permlane16_swap_b32 {a[1]}, {a[3]}", f"v_permlane16_swap_b32 {b[0]}, {b[2]}", f"v_permlane16_swap_b32 {b[1]}, {b[3]}"]
        q += [f"v_mov_b32 {t_[r]}, {a[r]}" for r in range(4)]
        q += [f"v_mov_b32_dpp {a[r]}, {b[r]} row_ror:8 row_mask:0xf bank_mask:0xc" for r in range(4)]
        q += [f"v_mov_b32_dpp {b[r]}, {t_[r]} row_ror:8 row_mask:0xf bank_mask:0x3" for r in range(4)]
        q += [f"buffer_store_dwordx4 {a}, v8, {srd(SE)}, s77 offen {OPT.get('ost', 'sc1')}", "s_add_u32 s77, s77, 16384",
              f"buffer_store_dwordx4 {b}, v8, {srd(SE)}, s77 offen {OPT.get('ost', 'sc1')}", "s_add_u32 s77, s77, 16384"]
    if OPT.get("dbgt"):
        q += L(f"""s_waitcnt vmcnt(0)
            s_memtime s[70:71]
            s_memrealtime s[72:73]
            s_waitcnt lgkmcnt(0)
            s_sub_u32 s70, s70, s96
            s_sub_u32 s72, s72, s98
            v_mov_b32 v2, s70
            v_mov_b32 v3, s72
            s_lshl_b32 s70, s2, 3
            s_add_u32 s70, s70, 8
            s_lshl_b32 s71, s{sW}, 12
            s_add_u32 s70, s70, s71""") + mk_srd(SF, 94, 64) + [f"buffer_store_dwordx2 v[2:3], v1, {srd(SF)}, s70 offen"]
    q += stamp(11) + stamp_flush()
    g.emit(q, name="final")

def build():
    g = G(); p = g.p
    hdr = open("/code/" + NAME + ".s.ref").read()
    p.l += [l for l in hdr.split("\n") if l.startswith(";") and "@launch" not in l]
    p.l.append(f"; @launch grid=(256,1,1) block=(256,1,1) lds={LDS_BYTES}")
    k = NAME + "_kernel"
    p(f'.amdgcn_target "amdgcn-amd-amdhsa--gfx950"\n.text\n.globl {k}\n.p2align 8\n.type {k},@function'); p.label(k)
    gemm12(g); attention(g); phase5(g)
    p.label("L_end"); p("s_endpgm")
    p(g.ool)
    p.label("L_codeend")
    p('.section .rodata,"a"\n.p2align 6')
    p.l += f""".amdhsa_kernel {k}
  .amdhsa_next_free_vgpr 512
  .amdhsa_next_free_sgpr 102
  .amdhsa_accum_offset 256
  .amdhsa_group_segment_fixed_size 0
  .amdhsa_kernarg_size 104
  .amdhsa_user_sgpr_count 2
  .amdhsa_user_sgpr_kernarg_segment_ptr 1
  .amdhsa_system_sgpr_workgroup_id_x 1
.end_amdhsa_kernel""".split("\n")
    return p.text()

if __name__ == "__main__":
    out = sys.argv[1]
    for a in sys.argv[2:]:
        k, _, v = a.partition("=")
        OPT[k] = True if v == "" else (int(v) if v.lstrip("-").isdigit() else v)
    txt = build()
    if OPT.get("al"):
        from align import align
        txt, n_ = align(txt, OPT["al"]); print("widened", n_)
    import subprocess, re, os
    open("_sz.s", "w").write(txt.replace("NCHUNK", "100"))
    subprocess.check_call(["clang", "-x", "assembler", "-target", "amdgcn-amd-amdhsa", "-mcpu=gfx950", "-c", "_sz.s", "-o", "_sz.o"])
    sz = int(re.search(r"\.text\s+PROGBITS\s+\S+\s+\S+\s+(\S+)", subprocess.check_output(["llvm-readelf", "-S", "_sz.o"]).decode()).group(1), 16)
    nch = 0
    print("code bytes", sz, "file", len(txt))
    open(out, "w").write(txt.replace("NCHUNK", str(nch)))
```

```python
import sys, math, struct
from genlib import P, R, mfma
from sched import Sched, resolve

NAME = "gated_mix__compressed_kv_cla__sliding_local_dilated__prompt"
WS_HALO = 58 << 20
WS_KV, WS_CTX, WS_G, WS_CNT, WS_INBOX, WS_XCH, WS_STAMP = 0, 32 << 20, 56 << 20, 57 << 20, (57 << 20) + 65536, 64 << 20, 96 << 20
LDS_BYTES = 160 * 1024
def f32(x): return "0x%08x" % struct.unpack("<I", struct.pack("<f", x))[0]
QSCALE = 128 ** -0.5 * math.log2(math.e)
BSCALE = 32 ** -0.5 * math.log2(math.e)
LTHR = 2.0 ** 60

sX, sC, sWQ, sWUK, sWUV, sWOA, sWQKV, sWOB, sGATE, sOUT, sDBG, sWS = 4, 6, 8, 10, 12, 14, 18, 20, 22, 24, 26, 28
sW, sH, sJ = 30, 31, 3
SA, SB, SC, SD, SE, SF, SG, SH = 32, 36, 40, 44, 48, 52, 56, 60
sT, sT2, sBHi = 64, 65, 16
t0_, t1_, t2_, t3_ = 66, 67, 68, 69
def srd(b): return f"s[{b}:{b+3}]"
OPT = dict(stamps=False)
ST = "sc1" if "x_plain" not in sys.argv else ""

vDX, vDQ, vGX, vGW, vL16, vDH, vDB, vDBH, vGH, vGB = 2, 4, 12, 14, 16, 17, 19, 21, 22, 23
vQ, vG = 24, 4
aONE, aDUM = 251, 252
ONES = R("a", 244)
ONES2, vIDX = R("a", 240), 5
MSK = [0, 4, 6, 8, 10, 12, 18, 22, 26, 56, 58, 60, 62, 48, 50, 100]
def msk(k): return f"s[{MSK[k]}:{MSK[k]+1}]"
def kind(c): return "S" if c.startswith("s_") else ("E" if c.startswith(("v_exp", "v_rcp")) else "A")

def L(s): return [x.strip() for x in s.strip().split("\n") if x.strip()]
def mk_srd(b, ptr, nbytes, off=None):
    if off is None: o = [f"s_mov_b32 s{b}, s{ptr}", f"s_mov_b32 s{b+1}, s{ptr+1}"]
    else: o = [f"s_add_u32 s{b}, s{ptr}, {off}", f"s_addc_u32 s{b+1}, s{ptr+1}, 0"]
    return o + [f"s_mov_b32 s{b+2}, {nbytes}", f"s_mov_b32 s{b+3}, 0x20000"]

NST = [0]
def stamp(idx):
    if not OPT["stamps"]: return []
    return L(f"""s_waitcnt lgkmcnt(0)
        s_memtime s[92:93]
        s_memrealtime s[94:95]
        v_accvgpr_write_b32 a253, v1
        v_accvgpr_read_b32 v1, a249
        s_waitcnt lgkmcnt(0)
        v_writelane_b32 v1, s92, {2*idx}
        v_writelane_b32 v1, s94, {2*idx+1}
        v_accvgpr_write_b32 a249, v1
        v_accvgpr_read_b32 v1, a253
        s_nop 1""")
def stamp_flush():
    if not OPT["stamps"]: return []
    return L(f"""s_lshl_b32 s96, s2, 2
        s_add_u32 s96, s96, s{sW}
        s_lshl_b32 s96, s96, 8
        s_add_u32 s96, s96, {WS_STAMP}
        v_lshlrev_b32 v1, 2, v0
        buffer_store_dword a249, v1, {srd(SD)}, s96 offen
        s_waitcnt vmcnt(0)""")

class G:
    def __init__(self):
        self.p = P(); self.lg = []; self.vm = []; self.ool = []
    def emit(self, seq, eager=0, name=None):
        if name: self.p.l.append(";@seg " + name)
        out, self.lg, self.vm = resolve(seq, self.lg, self.vm, eager)
        self.p(out)
    def spin(self, vreg, srdb, soff, imm, target):
        st, bk, lp = self.p.new("spin"), self.p.new("spinbk"), self.p.new("spinlp")
        self.ool += L(f"""{st}:
            s_mov_b32 vcc_hi, 0x80000
            {lp}:
            s_sleep 1
            buffer_load_dword v{vreg}, off, {srd(srdb)}, {soff} offset:{imm} sc1
            s_waitcnt vmcnt(0)
            v_readfirstlane_b32 vcc_lo, v{vreg}
            s_sub_u32 vcc_hi, vcc_hi, 1
            s_cbranch_scc1 {bk} ;@nottaken
            s_cmp_lt_u32 vcc_lo, {target}
            s_cbranch_scc1 {lp} ;@nottaken
            s_branch {bk}""")
        return L(f"""v_readfirstlane_b32 vcc_lo, v{vreg}
            s_nop 0
            s_cmp_lt_u32 vcc_lo, {target}
            s_cbranch_scc1 {st}
            {bk}:""")

sLH = 78
def cpf(expr):
    return ([f"s_add_u32 s17, s{sLH}, {expr}"], f"buffer_load_dword a{aDUM}, v{vL16}, s[88:91], s17 offen ;@dummy")
def one_lane(d): return ["s_mov_b64 exec, 1", d, "s_mov_b64 exec, -1"]
def signal(srdb, soff, imm, tags):
    return ([f"s_lshl_b32 s{t0_}, s{sW}, 30", f"v_lshl_add_u32 v1, v0, 24, s{t0_}"],
            f"buffer_atomic_add a{aONE}, v1, {srd(srdb)}, {soff} offen offset:{imm} sc1 ;@sig=wg:{tags}")

def snake(n, k): return list(range(n)) if k % 2 == 0 else list(range(n - 1, -1, -1))

def aq(db, rb): return R("v", (vQ if db % 2 == 0 else 88) + 16 * rb + 4 * (db // 2))
def bt(part, db, rb): return R("v", 152 + 32 * part + 8 * rb + 4 * db)
HK, HV = R("v", 248), R("v", 252)
P2ORD = [10, 11, 12, 13, 8, 9, 0, 1, 2, 3, 4, 5, 6, 7]
def p2tile(cb, rb):
    if cb < 8: return aq(cb, rb)
    if cb < 14: return bt((cb - 8) >> 1, cb & 1, rb)
    return HK if cb == 14 else HV

def gemm12(g):
    p = g.p
    sCo, sWo, sXlo, sXhi, sXh, sBo, sLX, sLW, sKV, sPF = 70, 71, 72, 73, 74, 75, 76, 77, 79, 80
    NR = 6
    def fx(sg, rb, s): return R("a", 32 * (sg & 1) + 8 * rb + 4 * s) if rb < 4 else R("a", 64 + 4 * s)
    ES = OPT.get("es", 1)
    def fw(J, s): return R("a", 176 + 8 * J + 4 * s) if (ES and J < 2) else R("a", 72 + 8 * (J % NR) + 4 * s)
    def stash(i): return R("a", 144 + 4 * i)
    GA = 144
    def order(sg):
        o = []; k = 0
        for j, cb in enumerate(range(16) if sg < 8 else P2ORD):
            if sg >= 8 and cb >= 14: o.append((j, cb, 4))
            else:
                o += [(j, cb, rb) for rb in snake(4, k)]; k += 1
        return o
    o1, o2 = order(0), order(8)
    pos1 = {(cb, rb): k for k, (j, cb, rb) in enumerate(o1)}
    def treg(k): return p2tile(o2[k][1], o2[k][2]) if k < 56 else (HK, HV)[k - 56] if k < 58 else R("a", 120 + 4 * (k - 58))
    def Jx(sg, j): return 16 * sg + j if sg < 8 else 128 + 14 * (sg - 8) + j
    p("s_cmp_ge_u32 s2, 256\ns_cbranch_scc1 L_end")
    p("s_load_dwordx16 s[4:19], s[0:1], 0\ns_load_dwordx8 s[20:27], s[0:1], 64\ns_load_dwordx2 s[28:29], s[0:1], 96")
    if OPT["stamps"] or OPT.get("dbgt"): p("s_memtime s[96:97]\ns_memrealtime s[98:99]")
    if OPT.get("dbgt"): p("s_load_dwordx2 s[94:95], s[0:1], 88")
    p("s_getpc_b64 s[88:89]"); p.label("L_pc")
    p(f"""v_lshrrev_b32 v1, 6, v0
          s_lshr_b32 s{t1_}, s2, 3
          v_lshl_add_u32 v24, s{t1_}, 2, v1
          s_mov_b32 s90, L_codeend-L_pc
          s_mov_b32 s91, 0x20000
          v_and_b32 v25, 7, v0
          v_lshlrev_b32 v25, 7, v25
          v_lshl_add_u32 v24, v24, 10, v25
          buffer_load_dword a{aDUM}, v24, s[88:91], 0 offen ;@dummy
          v_and_b32 v0, 63, v0
          v_readfirstlane_b32 s{sW}, v1 ;@val=wave
          v_lshrrev_b32 v24, 3, v0
          v_lshrrev_b32 v25, 4, v0
          v_and_b32 v26, 7, v0
          v_xor_b32 v26, v26, v25
          v_lshlrev_b32 v26, 4, v26
          v_lshl_add_u32 v{vGX}, v24, 10, v26
          v_xor_b32 v{vGX+1}, 64, v{vGX}
          v_bfe_u32 v26, v0, 1, 3
          v_xor_b32 v26, v26, v25
          v_lshlrev_b32 v26, 5, v26
          v_and_b32 v24, 1, v0
          v_lshl_add_u32 v26, v24, 4, v26
          v_lshl_add_u32 v{vGW}, v25, 13, v26
          v_xor_b32 v{vGW+1}, 128, v{vGW}
          s_and_b32 s{t0_}, s2, 7
          s_and_b32 s{t2_}, s{t1_}, 3
          s_lshl2_add_u32 s{sH}, s{t0_}, s{t2_}
          s_cmp_eq_u32 s{t2_}, 0
          {"s_cselect_b32 s90, s90, 0" if OPT.get("c4", 1) else ""}
          s_lshr_b32 s{sJ}, s{t1_}, 2
          s_lshl2_add_u32 s{sPF}, s{t1_}, s{sW}
          s_lshl_b32 s{sCo}, s{sJ}, 18
          s_lshl_b32 s{t0_}, s{sW}, 16
          s_add_u32 s{sCo}, s{sCo}, s{t0_}
          s_lshl_b32 s{sWo}, s{sW}, 17
          s_lshl_b32 s{t0_}, s{sH}, 8
          s_add_u32 s{sWo}, s{sWo}, s{t0_}
          {f"s_xor_b32 s{t2_}, s{t2_}, 1" if OPT.get("x_h1") else ""}
          {f"s_min_u32 s{t2_}, s{t2_}, 1" if OPT.get("x_h1") else ""}
          {f"s_xor_b32 s{t2_}, s{t2_}, 1" if OPT.get("x_h1") else ""}
          {f"s_mul_i32 s{t2_}, s{t2_}, 128" if OPT.get("x_h1") else ""}
          {f"s_sub_u32 s{sWo}, s{sWo}, s{t2_}" if OPT.get("x_h1") else ""}
          s_lshl_b32 s{sLX}, s{sW}, 13
          s_lshl_b32 s{sLW}, s{sW}, 12
          s_lshl_b32 s{sLH}, s{sW}, 10
          s_waitcnt lgkmcnt(0)""")
    if OPT.get("pst"): p("s_memtime s[84:85]\ns_memrealtime s[86:87]")
    p(mk_srd(SA, sC, 2 << 20) + mk_srd(SB, sWUK, 4 << 20) + mk_srd(SC, sWUV, 4 << 20))
    def xdma(sg):
        par = sg & 1; d = []
        for i in range(8 if not (OPT.get("x_nox") and sg > 9) else 1):
            if sg < 8: so, sr = f"s_add_u32 s{sT}, s{sCo}, {sg*128 + i*8192}", SA
            else: so, sr = f"s_add_u32 s{sT}, s{sXlo if i < 4 else sXhi}, {(sg-8)*128 + ((i>>1)&1)*64*2048 + (i&1)*16384}", SE
            d.append(([f"s_add_u32 m0, s{sLX}, {par*32768 + i*1024}", so], f"buffer_load_dwordx4 v{vGX + (i&1)}, {srd(sr)}, s{sT} offen lds ;@tag=x{sg}"))
        return d
    def wdma(sg):
        d = []; B = 65536 + (sg % 3) * 32768
        for kv in range(2 if sg < 8 else 1):
            for i in range(4):
                st = sg if sg < 8 else sg - 8
                d.append(([f"s_add_u32 m0, s{sLW}, {B + kv*16384 + i*1024}", f"s_add_u32 s{sT}, s{sWo}, {st*64*8192 + i*32768}"],
                          f"buffer_load_dwordx4 v{vGW + (i>>1)}, {srd((SB, SC)[kv] if sg < 8 else SG)}, s{sT} offen lds ;@tag=w{sg}"))
        if sg >= 8:
            for pp in range(3):
                d.append(([f"s_add_u32 m0, s{sLH}, {B + 16384 + pp*4096}", f"s_add_u32 s{sT}, s{sBo}, {(sg-8)*64*6144 + pp*2048}"],
                          f"buffer_load_dwordx4 v{vGB}, {srd(SH)}, s{sT} offen lds ;@tag=w{sg}"))
            d = [d[k] for k in (0, 4, 1, 5, 2, 6, 3)]
            if sg > 10 and OPT.get("x_now") == 1: d = d[:1]
            if sg > 10 and OPT.get("x_now") == 2: d = d[::2]
        return d
    seq = []
    x0, w0 = xdma(0), wdma(0)
    b0, b1 = (x0[:4] + w0[:4], x0[4:] + w0[4:]) if ES else (x0 + w0, [])
    for sal, d in b0: seq += sal + [d.replace("@tag=w0", "@tag=a0") if ES else d]
    if OPT.get("cpre") == 2: seq += [f"s_lshl2_add_u32 s84, s2, s{sW}", "s_lshl_b32 s84, s84, 11", "v_lshlrev_b32 v22, 5, v0", f"buffer_load_dword a{aDUM}, v22, {srd(SA)}, s84 offen ;@dummy"]
    seq += mk_srd(SD, sWS, 128 << 20) + mk_srd(SE, sX, 4 << 20) + mk_srd(SF, sDBG, 256) + mk_srd(SG, sWQ, 8 << 20) + mk_srd(SH, sWQKV, 6 << 20)
    seq += [f"v_accvgpr_write_b32 a{aONE}, 1"]
    if OPT["stamps"]: seq += ["v_mov_b32 v30, 0", "v_writelane_b32 v30, s96, 60", "v_writelane_b32 v30, s98, 61", "s_getreg_b32 s96, hwreg(HW_REG_XCC_ID)", "v_writelane_b32 v30, s96, 62"] + (["s_waitcnt lgkmcnt(0)", "v_writelane_b32 v30, s84, 58", "v_writelane_b32 v30, s86, 59", "v_writelane_b32 v30, s100, 56", "v_writelane_b32 v30, s0, 57"] if OPT.get("pst") else []) + [ "v_accvgpr_write_b32 a249, v30"] + stamp(0)
    seq += L(f"""v_and_b32 v24, 15, v0
          v_lshrrev_b32 v26, 1, v24
          v_xor_b32 v26, v26, v25
          v_lshlrev_b32 v26, 4, v26
          v_lshl_add_u32 v26, v24, 7, v26
          v_add_u32 v{vDX}, s{sLX}, v26
          v_xor_b32 v{vDX+1}, 64, v{vDX}
          v_bfe_u32 v24, v0, 2, 2
          v_lshl_add_u32 v27, v25, 3, v24
          v_and_b32 v1, 3, v0
          v_cmp_eq_u32 vcc, 0, v1
          v_lshlrev_b32 v1, 3, v1
          v_lshl_add_u32 v26, v27, 8, v1
          v_add_u32 v26, 65536, v26
          v_and_b32 v1, 1, v25
          v_lshl_add_u32 v24, v1, 2, v24
          v_lshlrev_b32 v{vL16}, 4, v0
          v_mov_b32 v28, 0x3f803f80
          v_cndmask_b32 v28, 0, v28, vcc""")
    seq += [f"v_accvgpr_write_b32 {ONES[r]}, v28" for r in range(4)]
    for n in range(8): seq += [f"v_xor_b32 v1, {n}, v24", f"v_lshl_add_u32 v{vDQ+n}, v1, 5, v26"]
    seq += L(f"""s_sub_u32 s{sBHi}, 15, s{sJ}
          s_lshl_b32 s{sXlo}, s{sJ}, 18
          s_lshl_b32 s{sXhi}, s{sBHi}, 18
          s_cmp_lt_u32 s{sW}, 2
          s_cselect_b32 s{t1_}, s{sJ}, s{sBHi}
          s_lshl4_add_u32 s{sXh}, s{sH}, s{t1_}
          s_and_b32 s{t0_}, s{sW}, 1
          s_lshl1_add_u32 s{sXh}, s{sXh}, s{t0_}
          s_lshl_b32 s{sXh}, s{sXh}, 10
          s_add_u32 s{sXh}, s{sXh}, {WS_HALO}
          s_lshl_b32 s{t0_}, s{sW}, 15
          s_add_u32 s{sXlo}, s{sXlo}, s{t0_}
          s_add_u32 s{sXhi}, s{sXhi}, s{t0_}
          s_mul_i32 s{sBo}, s{sW}, {16*6144}
          s_lshl_b32 s{t0_}, s{sH}, 6
          s_add_u32 s{sBo}, s{sBo}, s{t0_}
          s_lshl_b32 s{sKV}, s{sH}, 20
          s_lshl_b32 s{t0_}, s{sJ}, 17
          s_add_u32 s{sKV}, s{sKV}, s{t0_}
          s_lshl_b32 s{t0_}, s{sW}, 15
          s_add_u32 s{sKV}, s{sKV}, s{t0_}
          v_bfe_u32 v{vGB}, v0, 1, 1
          v_lshrrev_b32 v1, 5, v0
          v_xor_b32 v{vGB}, v{vGB}, v1
          v_lshlrev_b32 v{vGB}, 5, v{vGB}
          v_and_b32 v1, 1, v0
          v_lshl_add_u32 v{vGB}, v1, 4, v{vGB}
          v_lshrrev_b32 v1, 2, v0
          v_mul_u32_u24 v1, 6144, v1
          v_add_u32 v{vGB}, v1, v{vGB}
          s_lshl_b32 s81, s{sPF}, 13
          s_and_b32 s{t1_}, s2, 7
          s_lshl_b32 s82, s{t1_}, 8
          s_add_u32 s82, s82, s81
          s_lshl_b32 s{t1_}, s{t1_}, 10
          s_add_u32 s81, s81, s{t1_}
          s_add_u32 s83, s81, {1<<20}
          v_mul_u32_u24 v1, 1792, v25
          v_add_u32 v1, v1, v{vL16}
          s_lshl_b32 s{t2_}, s2, 3
          s_lshl1_add_u32 s{t2_}, s{sW}, s{t2_}
          v_lshrrev_b32 v18, 5, v0
          v_add_u32 v18, s{t2_}, v18
          v_and_b32 v19, 31, v0
          v_lshlrev_b32 v19, 4, v19
          v_lshl_add_u32 v18, v18, 11, v19
          v_mov_b32 v21, 0
          v_min_u32 v20, 1, v0
          v_lshlrev_b32 v20, 30, v20
          v_accvgpr_write_b32 a240, -1
          v_accvgpr_write_b32 a241, -1
          v_accvgpr_write_b32 a242, -1
          v_accvgpr_write_b32 a243, -1
          s_lshr_b32 s{t3_}, s2, 7
          s_or_b32 s{t3_}, s{t3_}, s{sW}
          s_lshl_b32 s{t3_}, s{t3_}, 21
          s_add_u32 s{t3_}, s{t3_}, s2
          s_lshl_b32 s{t3_}, s{t3_}, 7
          s_add_u32 s{t3_}, s{t3_}, {WS_CNT}""")
    def xread(sg): return [f"ds_read_b128 {fx(sg, rb, s)}, v{vDX+s} offset:{(sg&1)*32768 + rb*2048}" for rb in range(4) for s in range(2)]
    def hread(sg): return [f"ds_read_b128 {fx(sg, 4, s)}, v{vDH+s} offset:{min(sg % 3, 1)*32768}" for s in range(2)]
    def wread(sg, j):
        par = min(sg % 3, 1); o = []; cb = j if sg < 8 else P2ORD[j]
        for s in range(2):
            for i in range(2):
                if sg < 8 or cb < 8: a, off = vDQ + (cb & 7), par*32768 + (cb >> 3)*16384 + s*8192 + i*1024
                elif cb < 14: a, off = vDB + (cb & 1), par*32768 + ((cb-8) >> 1)*4096 + s*2048 + i*256
                else: a, off = vDBH, par*32768 + (cb-13)*4096 + s*2048 + i*256
                o.append((a, f"ds_read_b64_tr_b16 {fw(Jx(sg, j), s)[2*i:2*i+2]}, v{a} offset:{off}"))
        return o
    if OPT.get("pst"): seq += stamp(26)
    def wpf(sr): return f"buffer_load_dword a{aDUM}, v{vL16}, {srd(sr)}, s83 offen ;@dummy"
    P1PF = OPT.get("p1pf", 0)
    if P1PF == 2: seq += [wpf(SB), wpf(SC)]
    LATE, WD = OPT.get("late1", 1), OPT.get("wd", 3)
    for sal, d in b1 + ([] if ES else xdma(1) + wdma(1) if LATE == 0 else wdma(1) if LATE == 1 else []): seq += sal + [d]
    if ES: LATE = 2
    if P1PF == 1: seq += [wpf(SB), wpf(SC)]
    cpf_c = [f"s_lshl2_add_u32 s84, s2, s{sW}", "s_lshl_b32 s84, s84, 11", "v_lshlrev_b32 v22, 5, v0", f"buffer_load_dword a{aDUM}, v22, {srd(SA)}, s84 offen ;@dummy"]
    if OPT.get("cpre") == 1: seq += cpf_c
    seq += ["WAITVM a0" if ES else "WAITVM w0,x0", "s_barrier"] + stamp(1)
    xr = xread(0); NPRE = 3
    seq += xr[:2] + [r for _, r in wread(0, 0)] + xr[2:4 if ES else 8]
    for j in range(1, NPRE): seq += [r for _, r in wread(0, j)]
    if OPT.get("pst"): seq += stamp(27)
    g.emit(seq)
    mf = []; G0 = []; FU = []; LU = []; done = {}
    for sg in range(24):
        G0.append(len(mf))
        oo = list(enumerate(o1 if sg < 8 else o2))
        if ES and sg == 0:
            oo = [(pos1[(cb, rb)], (cb, cb, rb)) for cb in range(8) for rb in snake(2, cb)] + \
                 [(pos1[(cb, rb + 2)], (cb, cb, rb + 2)) for cb in (2, 3, 4, 5, 6, 7, 0, 1) for rb in snake(2, cb)] + oo[32:]
        for k, (j, cb, rb) in oo:
            J = Jx(sg, j)
            if len(FU) == J: FU.append(len(mf)); LU.append(0)
            swap = (cb >= 8) if sg < 8 else (cb in (12, 13, 15))
            for q, s in enumerate(snake(2, k)):
                c0 = 0 if (q == 0 and sg in (0, 8)) else None
                mf.append(mfma(treg(k), fx(sg, rb, s), fw(J, s), c0) if swap else mfma(treg(k), fw(J, s), fx(sg, rb, s), c0))
            LU[J] = len(mf) - 1; done[(sg, cb, rb)] = len(mf) - 1
    G0.append(len(mf))
    S = Sched(mf)
    def pace(items, lo, hi, chain, slack=5):
        n = len(items)
        for q, (sal, d) in enumerate(items):
            x = lo + int(q * (hi - lo) / n)
            it = S.add("M", d, x, x + slack, chain=chain, sep=3, pre=sal)
            if q == 0: it["prelo"] = lo - 2
    def chain(txt, lo, hi=None, name=None, sep=1):
        for c in (L(txt) if isinstance(txt, str) else txt): S.add(kind(c), c, lo, hi, chain=name, sep=sep)
    BAR = {sg: G0[sg + 1] - 30 for sg in range(24)}; BAR[-1] = -1
    XW = 54
    IL = OPT.get("il", 0)
    gxupd = f"v_lshrrev_b32 v{vGX+1}, 3, v0\nv_lshl_add_u32 v{vGX}, v{vGX+1}, 10, v{vGX}\nv_xor_b32 v{vGX+1}, 64, v{vGX}"
    def mix(a, b): return [x for pr in zip(b, a) for x in pr]
    ini = (wdma(1) if LATE == 2 else []) + (xdma(1) if LATE else []) + (wdma(2) if WD == 3 else [])
    X0 = max(40, 2 + 3 * len(ini) + len(ini) // 2)
    if IL:
        ini = (xdma(1) if LATE else []) + mix(xdma(2), wdma(2)); X0 = BAR[0]
    if ES:
        E0_ = OPT.get("es0", 2); X0 = 70
        pace(wdma(1) + xdma(1), E0_, X0 - 2, "dma", slack=2)
    elif ini: pace(ini, 2, X0 - 2, "dma", slack=2)
    for sg in range(24):
        g0, nx, B = G0[sg], G0[sg + 1], BAR[sg]
        lastuse = {}
        for j in range(16 if sg < 8 else 14):
            J = Jx(sg, j)
            if J < NPRE: continue
            lo = max(LU[J - NR] if J >= (NR + 2 if ES else NR) else 0, BAR[sg - 1] + 1, FU[J] - 44)
            hi = FU[J] - (8 if J >= 8 or not ES else 6)
            if ES and J == 8:
                S.add("S", "WAITVM x0", OPT.get("esx", 22), OPT.get("esx", 22), chain="t")
                for r in xr[4:]: S.add("D", r, 0, 27, chain="t")["dd"] = True
                S.add("X", ["WAITVM w0", "s_barrier"], 38, 38, chain="t")
            if sg < 23: hi = min(hi, B - 5)
            for a, r in wread(sg, j): S.add("T", r, lo, hi, chain="t"); lastuse[a] = hi
        if sg < 23:
            if sg % 3:
                for r, lu in lastuse.items():
                    S.add("A", f"v_add_u32 v{r}, 0x8000, v{r}" if sg % 3 == 1 else f"v_subrev_u32 v{r}, 0x8000, v{r}", lu + 1, B - 1)
            blk = [f"WAITVM w{sg+1}" + (" L" if (WD == 3 or sg >= 21) else ""), "s_barrier"]
            if sg == 7: blk += stamp(2)
            if OPT.get("x_nop"): blk += [f"s_sleep {OPT['x_nop']}"]
            fine = (0, 1, 2, 3, 4, 5, 9, 11, 13, 15, 17, 19) if OPT.get("fine") != 2 else (12, 17)
            if OPT.get("fine") and sg in fine: blk += stamp(18 + fine.index(sg))
            S.add("X", blk, B, B)
            xw, xh = (g0 + XW, B - 5) if not (LATE and sg <= OPT.get("ramp", 0)) else (B + 8, nx - 8)
            S.add("S", f"WAITVM x{sg+1}", xw, xw, chain=("xn", sg))
            for q, r in enumerate(xread(sg + 1)): S.add("D", r, xw, xh, chain=("xn", sg))
        if IL:
            if sg == 5: chain(gxupd, B - 8, B + 2, name="dma", sep=0)
            if sg == 0 and LATE:
                pace(wdma(3), B + 3, nx + 30, "dma"); pace(xdma(3), nx + 32, BAR[1] - 2, "dma")
            elif sg + 3 < 24: pace(mix(xdma(sg + 3), wdma(sg + 3)), B + 5, BAR[sg + 1] - 2, "dma", slack=4)
            continue
        RP = OPT.get("ramp", 0)
        if ES and RP and sg <= RP:
            if sg == 0: pace(wdma(2), X0 + 10, nx + 10, "dma", slack=2); pace(xdma(2), nx + 12, nx + 50, "dma", slack=2); continue
            if sg < RP:
                pace(wdma(sg + 2), g0 + 56, nx - 10, "dma"); pace(xdma(sg + 2), nx - 8, nx + 50, "dma"); continue
            pace(wdma(sg + 2) + xdma(sg + 2), g0 + 54, nx - 6, "dma", slack=2); pace(wdma(sg + 3), nx - 4, nx + 38, "dma", slack=2)
            continue
        if ES and sg == 0:
            pace(wdma(2) + xdma(2), X0, nx + 2, "dma", slack=2); pace(wdma(3), nx + 4, nx + 38, "dma", slack=2)
            continue
        if sg + 2 < 24: pace(xdma(sg + 2), g0 + (40 if sg else X0), B - 2, "dma")
        if sg + WD < 24: pace(wdma(sg + WD), B + 3, nx + 38, "dma")
    GS = OPT.get("gs", 44); lo = OPT.get("g0", 100)
    for i in range(4):
        S.add("M", f"global_load_dwordx4 a[{GA+4*i}:{GA+3+4*i}], v18, s[{sX}:{sX+1}] offset:{512*i}", lo + GS*i, lo + GS*i + 10, chain="gate")
        S.add("M", f"global_load_dwordx4 a[{GA+16+4*i}:{GA+19+4*i}], v19, s[{sGATE}:{sGATE+1}] offset:{512*i}", lo + GS*i + GS//2, lo + GS*i + GS//2 + 10, chain="gate")
    S.add("M", f"buffer_store_dword v21, v20, {srd(SD)}, s{t3_} offen {ST} ;@tag=z", G0[2] + 20, G0[2] + 40, chain="gate", sep=1)
    a0, a1, a2, a3, acc = 18, 19, 20, 21, 17
    ch = [f"v_mov_b32 v{acc}, 0"]
    for i in range(16):
        ch += L(f"""v_accvgpr_read_b32 v{a1}, a{GA+i}
            v_accvgpr_read_b32 v{a3}, a{GA+16+i}
            v_lshlrev_b32 v{a0}, 16, v{a1}
            v_and_b32 v{a1}, 0xffff0000, v{a1}
            v_lshlrev_b32 v{a2}, 16, v{a3}
            v_and_b32 v{a3}, 0xffff0000, v{a3}
            v_mul_f32 v{a0}, v{a0}, v{a2}
            v_mul_f32 v{a1}, v{a1}, v{a3}
            v_cvt_pk_bf16_f32 v{a0}, v{a0}, v{a1}
            v_lshlrev_b32 v{a1}, 16, v{a0}
            v_and_b32 v{a0}, 0xffff0000, v{a0}
            v_add_f32 v{acc}, v{acc}, v{a1}
            v_add_f32 v{acc}, v{acc}, v{a0}""")
    lo = G0[3]
    chain(ch, lo, name="gate", sep=0)
    chain([f"v_add_f32_dpp v{acc}, v{acc}, v{acc} row_ror:{r} row_mask:0xf bank_mask:0xf" for r in (8, 4, 2, 1)], lo, name="gate", sep=2)
    chain([f"v_mov_b32 v{a0}, v{acc}"], lo, name="gate", sep=0)
    chain([f"v_permlane16_swap_b32 v{a0}, v{acc}"], lo, name="gate", sep=2)
    chain(f"""v_add_f32 v{acc}, v{acc}, v{a0}
            v_cvt_pk_bf16_f32 v{acc}, v{acc}, v{acc}
            v_and_b32 v{acc}, 0xffff0000, v{acc}
            v_mul_f32 v{acc}, 0xbfb8aa3b, v{acc}
            v_exp_f32 v{acc}, v{acc}
            v_add_f32 v{acc}, 1.0, v{acc}
            v_rcp_f32 v{acc}, v{acc}
            v_cvt_pk_bf16_f32 v{a0}, v{acc}, v{acc}
            v_and_b32 v{a0}, 0xffff0000, v{a0}
            v_sub_f32 v{a1}, 1.0, v{a0}
            v_cvt_pk_bf16_f32 v{a1}, v{a1}, v{a1}
            v_and_b32 v{a1}, 0xffff0000, v{a1}
            v_and_b32 v{a2}, 31, v0
            v_lshlrev_b32 v{a2}, 27, v{a2}
            v_lshrrev_b32 v{a3}, 2, v0
            v_add_u32 v{a2}, v{a2}, v{a3}""", lo, name="gate")
    S.add("M", f"buffer_store_dwordx2 v[{a0}:{a1}], v{a2}, {srd(SD)}, s{sT2} offen {ST} ;@tag=z", lo, G0[6] + 30, chain="gate", sep=4,
          pre=[f"s_lshl2_add_u32 s{sT2}, s2, s{sW}", f"s_lshl4_add_u32 s{sT2}, s{sT2}, {WS_G}"])
    chain(f"""v_lshrrev_b32 v21, 4, v0
          v_bfe_u32 v{vDB}, v0, 2, 2
          v_lshl_add_u32 v{vDB}, v21, 3, v{vDB}
          v_lshlrev_b32 v{vDB}, 6, v{vDB}
          v_and_b32 v21, 1, v21
          v_lshl_add_u32 v{vDB}, v21, 5, v{vDB}
          v_and_b32 v21, 3, v0
          v_lshl_add_u32 v{vDB}, v21, 3, v{vDB}
          v_add_u32 v{vDB}, {98304 + 16384}, v{vDB}
          v_xor_b32 v{vDB+1}, 32, v{vDB}""", lo, G0[7] - 2, name="gate")
    if not IL: chain(gxupd, BAR[5] + 6, G0[6] + 30, name="gx", sep=0)
    if P1PF:
        for lo in (OPT.get("q1", 80), OPT.get("q2", 210)):
            S.add("M", wpf(SB), lo, lo + 10, chain="pf1", pre=[f"s_add_u32 s83, s83, {1<<20}"])
            S.add("M", wpf(SC), lo + 20, lo + 30, chain="pf1")
    if OPT.get("tlb"):
        sh = OPT["tlb"]
        S.add("A", f"v_lshlrev_b32 v22, {sh}, v0", 0, 10, chain="tlb")
        S.add("S", f"s_lshl_b32 s84, s{sPF}, {sh + 6}", 0, 12, chain="tlb")
        S.add("S", f"s_min_u32 s84, s84, 0x10000000", 0, 14, chain="tlb")
        S.add("M", f"buffer_load_dword a{aDUM}, v22, {srd(SD)}, s84 offen sc1 ;@dummy", 60, 70, chain="tlb")
    if not OPT.get("nopf"):
        P0, PS = OPT.get("p0", 280), OPT.get("ps", 32); order_ = "qkqkqqkqkqqkqk"
        for k, c in enumerate(order_):
            r = 81 if c == "q" else 82
            S.add("M", f"buffer_load_dword a{aDUM}, v{vL16 if c == 'q' else 1}, {srd(SG if c == 'q' else SH)}, s{r} offen ;@dummy", P0 + k*PS, P0 + k*PS + 16, chain="pf",
                  pre=[] if order_[:k].count(c) == 0 else [f"s_add_u32 s{r}, s{r}, {1<<20}"])
    if OPT.get("wo", "M") == "P":
        chain(mk_srd(84, sWOA, 8 << 20) + [f"s_lshl2_add_u32 s83, s2, s{sW}", "s_lshl_b32 s83, s83, 11", "v_lshlrev_b32 v22, 5, v0"], 20, 100, name="wp", sep=0)
        for k in range(4):
            x = OPT.get("wp0", 120) + k * OPT.get("wps", 144)
            S.add("M", f"buffer_load_dword a{aDUM}, v22, s[84:87], s83 offen ;@dummy", x, x + 10, chain="wp", pre=[f"s_add_u32 s83, s83, {2<<20}"] if k else [])
    n0 = G0[8]; frs = []
    for t in range(4):
        for rb in (3, 2, 1, 0): frs.append(((2*t, rb), (2*t + 1, rb), (rb >> 1)*16384 + (rb & 1)*4096 + t*1024))
    for db in range(8):
        for u in snake(2, db): frs.append(((8 + db, 2*u), (8 + db, 2*u + 1), u*16384 + 8192 + db*1024))
    ns = 0; later = []
    tmpA, tmpB = HK, HV
    for q, (ta, tb, off) in enumerate(frs):
        ka, kb = pos1[ta], pos1[tb]; A, B_ = treg(ka), treg(kb)
        lo = G0[7] + 2*max(ka, kb) + 1 + 8; hi = n0 + 2*min(ka, kb) - 1; hi2 = n0 + 2*max(ka, kb) - 3
        D_ = B_ if kb > ka else A
        ch = ("drain",)
        if min(ka, kb) >= 56: hi = hi2 = G0[10]
        if A.f == "a":
            for r in range(4): S.add("A", f"v_accvgpr_read_b32 {tmpA[r]}, {A[r]}", lo, hi, chain=ch, sep=2 if r == 0 else 0)
            for r in range(4): S.add("A", f"v_accvgpr_read_b32 {tmpB[r]}, {B_[r]}", lo, hi, chain=ch)
            A, B_ = tmpA, tmpB; D_ = B_
        direct = q % 4 == 0
        if direct: S.add("S", f"s_add_u32 s{t1_}, s{sKV}, {off}", lo - 2, hi, chain=ch)
        if D_ is B_: cv = ((3, B_, 2), (2, B_, 0), (0, A, 0), (1, A, 2))
        else: cv = ((0, A, 0), (1, A, 2), (2, B_, 0), (3, B_, 2))
        for d_, src, r in cv: S.add("A", f"v_cvt_pk_bf16_f32 {D_[d_]}, {src[r]}, {src[r+1]}", lo, hi, chain=ch)
        if direct and OPT.get("x_nodirect"): pass
        elif direct: S.add("M", f"buffer_store_dwordx4 {D_}, v{vL16}, {srd(SD)}, s{t1_} offen {OPT.get('kvst', ST).replace('+', ' ').replace('-', '')} ;@tag=kv", lo, hi2, chain=ch, sep=1)
        else:
            for r in range(4): S.add("A", f"v_accvgpr_write_b32 {stash(ns)[r]}, {D_[r]}", lo, hi2, chain=ch)
            later.append((ns, off)); ns += 1
    assert ns == 24 and pos1[frs[27][0]] in (54, 55) and pos1[frs[28][0]] in (56, 57), (pos1[frs[27][0]],)
    NSTG = OPT.get("nstg", 11); KVP = 21 if (NSTG <= 9 and WD == 3) else 22
    t_a, t_b = G0[9] + 2, BAR[8 + NSTG] - 14
    sts = [([f"s_add_u32 s{sT2}, s{sKV}, {off}"], f"buffer_store_dwordx4 {stash(i)}, v{vL16}, {srd(SD)}, s{sT2} offen {OPT.get('kvst', ST).replace('+', ' ').replace('-', '')} ;@tag=kv") for i, off in later]
    sts.append(([], f"buffer_store_dwordx4 a[240:243], v{vL16}, {srd(SD)}, s{sXh} offen {ST} ;@tag=kv"))
    for q, (pre, d) in enumerate(sts if not OPT.get("x_nost") else []):
        lo = t_a + (q * (t_b - t_a)) // (len(sts) - 1)
        S.add("M", d, lo - 6, lo, chain="kvst", sep=3, pre=pre)
    pre, d = signal(SF, f"s{t2_}", 0, "z")
    chain(pre + [f"s_lshr_b32 s{t0_}, s{sJ}, 1", f"s_lshl_b32 s{t0_}, s{t0_}, 12"], G0[7], BAR[7], name="sig")
    for k in range(4):
        lo = BAR[8 + k] + 20
        S.add("X", one_lane(d), lo, lo + 14, chain="sig", sep=3, pre=[f"s_xor_b32 s{t2_}, s{t0_}, {k << 12}"])
    E0 = max(NSTG + 7, 14)
    S.add("X", L(f"s_cmp_eq_u32 s{sW}, 0\ns_cselect_b32 s81, 256, 0"), G0[E0 - 1], G0[E0 - 1] + 40, chain="sig")
    S.add("M", f"buffer_load_dword v1, off, {srd(SF)}, s{sLH} sc1", BAR[E0 - 1] - 14, BAR[E0 - 1] - 8, chain="sig")
    S.add("X", g.spin(1, SF, f"s{sLH}", 0, "s81"), G0[E0] + XW + 12, G0[E0] + XW + 24, chain="sig")
    S.add("X", mk_srd(SF, sWS, 16384, WS_CNT)[:3], BAR[E0] - 4, BAR[E0] + 30, chain="sig")
    E1 = max(NSTG + 9, 16)
    pre, d = signal(SF, "s70", 0, "kv")
    chain(pre + [f"s_lshl_b32 s70, s{sH}, 8"], G0[E1], BAR[E1], name="sig")
    S.add("X", one_lane(d), BAR[E1] + 1, BAR[E1] + 12, chain="sig", sep=1)
    chain([f"s_lshl4_add_u32 s70, s{sLH}, s70", "s_lshr_b32 s81, s81, 5"], BAR[E1] + 1, name="sig")
    S.add("M", f"buffer_load_dword v1, off, {srd(SF)}, s70 sc1", BAR[KVP - 1] - 14, BAR[KVP - 1] - 8, chain="sig")
    S.add("X", g.spin(1, SF, "s70", 0, "s81"), G0[KVP] + XW + 6, BAR[KVP] - 1, chain="sig")
    if not OPT.get("nocpf"):
        for sg in range(0, 22, OPT.get("cps", 2)):
            pre, d = cpf(".-L_pc+6144"); S.add("M", d, G0[sg] + 4, G0[sg] + 30, chain="cpf", pre=pre)
        for k, e_ in enumerate([".-L_pc+6144", ".-L_pc+9984", ".-L_pc+13824", "L_F1-L_pc", "L_F1-L_pc+4096"]):
            x = G0[22] + (50 if OPT.get("wo", "M") != "E" else 0)
            pre, d = cpf(e_); S.add("M", d, x + 6 * k, x + 34, chain="cpf", pre=pre, sep=3)
    S.add("X", L(f"s_lshl_b32 s{t2_}, s{sH}, 20\ns_add_u32 s{SA}, s{sWS}, s{t2_}\ns_addc_u32 s{SA+1}, s{sWS+1}, 0"), G0[21], G0[21] + 40, chain="sa")
    S.add("X", L(f"s_add_u32 s{t2_}, s{sBHi}, 1\ns_lshl_b32 s{SA+2}, s{t2_}, 16"), G0[21], G0[21] + 50, chain="sa")
    pace(att_first_dmas(sLX), BAR[KVP] + 5, BAR[KVP] + 5 + 12 * (6 if KVP == 21 else 4), "dma", slack=2)
    lo = G0[22] if WD == 3 else G0[22] + 40
    chain(f"""v_and_b32 v12, 15, v0
          v_lshrrev_b32 v13, 4, v0
          v_lshlrev_b32 v13, 2, v13
          v_sub_u32 v12, v12, v13
          s_lshl_b32 s{t0_}, s{sW}, 4
          v_add_u32 v13, s{t0_}, v12""", lo, name="la")
    chain([f"v_cmp_gt_i32 {msk(k)}, {16*(k >> 2) + (k & 3)}, v13" for k in range(16)], lo, name="la", sep=0)
    for r in range(4):
        chain(f"""v_subrev_u32 v17, {r}, v12
              v_lshlrev_b32 v18, 31, v17
              v_or_b32 v21, v17, v18
              v_ashrrev_i32 v21, 31, v21
              v_and_b32 {HK[r]}, 0xff800000, v21
              v_not_b32 v17, v17
              v_or_b32 v21, v17, v18
              v_ashrrev_i32 v21, 31, v21
              v_and_b32 {HV[r]}, 0xff800000, v21""", lo, name="la", sep=0)
    chain([c.replace("s81", f"s{t1_}") for c in p5_setup()], lo, name="la", sep=0)
    chain(f"""s_lshr_b32 s{t0_}, s{sW}, 1
          s_lshl_b32 s{t0_}, s{t0_}, 16
          s_and_b32 s{t1_}, s{sW}, 1
          s_lshl_b32 s{t1_}, s{t1_}, 10
          s_add_u32 s{t0_}, s{t0_}, s{t1_}
          s_add_u32 s{t0_}, s{t0_}, 32768
          v_add_u32 v17, s{t0_}, v{vL16}
          v_lshlrev_b32 v21, 5, v0
          s_lshl2_add_u32 s73, s2, s{sW}
          s_lshl_b32 s73, s73, 11
          s_lshl_b32 s{t0_}, s{sW}, 11
          s_add_u32 s{t0_}, s{t0_}, 32768""", lo, name="la", sep=0)
    chain(f"v_add_u32 v2, s{t0_}, v{vL16}\nv_add_u32 v3, 0x10000, v2", BAR[22] - 4, G0[23] - 2, name="la", sep=0)
    chain(f"""v_and_b32 v22, 15, v0
          v_lshlrev_b32 v22, 3, v22
          s_lshl_b32 s85, s{sW}, 7
          s_add_u32 s85, s85, {WS_G}
          s_lshl_b32 s86, s{sJ}, 10
          s_add_u32 s86, s86, s85
          s_lshl_b32 s87, s{sBHi}, 10
          s_add_u32 s87, s87, s85""", G0[21], name="g", sep=0)
    for rb in range(4):
        S.add("M", f"buffer_load_dwordx2 a[{64+2*rb}:{65+2*rb}], v22, {srd(SD)}, s{86 + (rb>>1)} offen offset:{(rb&1)*512} sc1", BAR[21] - 4, G0[22] - 2, chain="g", sep=1)
    chain(f"""s_mov_b32 s{SB}, s{sWOB}
          s_mov_b32 s{SB+1}, s{sWOB+1}
          s_mov_b32 s{SB+2}, {2<<20}
          s_mov_b32 s{SC}, s{sWOA}
          s_mov_b32 s{SC+1}, s{sWOA+1}
          s_mov_b32 s{SC+2}, {8<<20}""", G0[12], G0[13], name="pf")
    if not OPT.get("nopf"):
        x = G0[23] + (0 if KVP == 21 else 26)
        S.add("M", f"buffer_load_dword a{aDUM}, v21, {srd(SB)}, s73 offen ;@dummy", x, x + 16, chain="wpf", sep=2)
    chain(f"s_lshl2_add_u32 s72, s2, s{sW}\ns_lshl_b32 s72, s72, 12\ns_add_u32 s72, s72, {WS_XCH}", BAR[21] + 2, G0[22], name="pre")
    g.prefill = [f"buffer_store_dwordx4 a[240:243], v{vL16}, {srd(SD)}, s72 offen offset:{k*1024} {ST} ;@tag=ob" for k in range(4)]
    PRIN = OPT.get("prin", -16)
    if PRIN < 200:
        for k, d in enumerate(g.prefill): S.add("M", d, G0[22] + PRIN + 14*k, G0[22] + PRIN + 14*k + 6, chain="pre")
        g.prefill = []
    def rdy(*tiles): return max(done[(23, cb, rb)] for cb, rb in tiles) + 8
    def pk(d, a, b, lo): S.add("A", f"v_cvt_pk_bf16_f32 {d}, {a}, {b}", lo, chain="la")
    for rb in (3, 2, 1, 0):
        a, b = bt(1, 0, rb), bt(1, 1, rb); lo = rdy((11, rb))
        pk(a[0], a[0], a[1], lo); pk(a[1], a[2], a[3], lo); pk(a[2], b[0], b[1], lo); pk(a[3], b[2], b[3], lo)
        S.add("M", f"ds_write_b128 v{2 + (rb>>1)}, {a} offset:{(rb&1)*8192 + 2048}", lo, lo + 12, chain="la", sep=1)
    for db in range(2):
        for rb in snake(4, db):
            lo = rdy((12 + db, rb)); a = bt(2, db, rb); pk(a[3], a[2], a[3], lo); pk(a[2], a[0], a[1], lo)
            S.add("M", f"ds_write_b64 v{2 + (rb>>1)}, {a[2:4]} offset:{(rb&1)*8192 + 3072 + db*8}", lo, lo + 16, chain="la", sep=1)
    x = lo + 19
    S.add("X", ["s_waitcnt lgkmcnt(0)", "s_barrier"], lo, x, chain="la", sep=2)
    S.add("D", "ds_read_b128 a[16:19], v17 offset:16384", lo, x + 1, chain="la", sep=1)
    def prevrd(rbs):
        return [f"ds_read_b128 a[{4*rb}:{4*rb+3}], v{2 + (rb>>1)} offset:{(rb&1)*8192}" for rb in rbs] + \
               [f"ds_read_b64 {bt(2, db, rb)[0:2]}, v{2 + (rb>>1)} offset:{(rb&1)*8192 + 1024 + db*8}" for rb in rbs for db in range(2)]
    g.prevrd = prevrd
    S.add("M", f"buffer_store_dwordx4 a[16:19], v{vL16}, {srd(SD)}, s{sXh} offen {ST}", lo, x + 7, chain="la", sep=6)
    for c in prevrd((1, 3)): S.add("D", c, lo, chain="la")
    for rb in (3, 2, 1, 0):
        a, b = bt(0, 0, rb), bt(0, 1, rb); lo = rdy((9, rb))
        for d_, src, r in ((0, a, 0), (1, a, 2), (2, b, 0), (3, b, 2)): S.add("A", f"v_cvt_pk_bf16_f32 {a[d_]}, {src[r]}, {src[r+1]}", lo, chain="lq")
    S.add("X", L(f"s_or_b32 s{t0_}, s{sJ}, s{sW}\ns_cmp_eq_u32 s{t0_}, 0\ns_cselect_b32 s{t0_}, 0xff800000, 0"), G0[23] + 2, G0[23] + 50, chain="lx")
    S.add("X", [f"s_and_b32 s{t1_}, s{sXh}, 0x7800", f"s_cselect_b32 s{t1_}, 0, 0x70000000", f"s_add_u32 s77, s{sXh}, s{t1_}"], G0[23] + 2, G0[23] + 54, chain="lx")
    chain(f"s_sub_u32 s77, s77, 2048\ns_mov_b32 s{t2_}, {f32(QSCALE)}\ns_mov_b32 s{t3_}, s{t2_}", G0[23] + 2, G0[23] + 58, name="lx")
    if OPT.get("sm", 1):
        chain(["v_bfe_u32 v1, v0, 1, 1", "v_subrev_u32 v1, 1, v1", "v_and_b32 v1, 0x3f803f80, v1"] + [f"v_accvgpr_write_b32 {ONES2[r]}, v1" for r in range(4)], G0[23], G0[23] + 30, name="o2", sep=0)
    chain(L(f"""s_sub_u32 s81, s{sJ}, 1
          s_sub_u32 s{t1_}, s{sJ}, 2
          s_mul_i32 s81, s81, s{t1_}
          s_lshl4_add_u32 s81, s81, s{sH}
          s_lshl2_add_u32 s81, s81, s{sW}
          s_mul_i32 s81, s81, 3328
          s_mov_b32 s73, 0
          s_mov_b32 s72, 0x20000
          s_lshl_b32 s{t1_}, s{sH}, 15
          s_add_u32 s{t1_}, s{t1_}, s{sLH}
          s_add_u32 s{t1_}, s{t1_}, {WS_CTX}
          s_mul_i32 s74, s{sJ}, {160*8192}
          s_add_u32 s74, s74, s{t1_}
          s_mul_i32 s75, s{sBHi}, {160*8192}
          s_add_u32 s75, s75, s{t1_}
          s_mul_i32 s{t1_}, s{sH}, {3*8192}
          s_sub_u32 s{t1_}, {128*8192 + 4096}, s{t1_}
          s_add_u32 s{sT}, s74, s{t1_}
          s_add_u32 s{sT2}, s75, s{t1_}""") + att_scalars(), x + 9, name="lx")
    chain([f"v_or_b32 v{20+r}, s{t0_}, {HV[r]}" for r in range(4)], lo, name="lq", sep=0)
    S.add("S", f"s_mov_b32 s{t0_}, {f32(BSCALE)}", lo, chain="lq", sep=1)
    NQ = OPT.get("nq", 6); g.qdone = []
    for t, rb in [(t, rb) for t in range(4) for rb in (3, 2, 1, 0)][:NQ]:
        a, b = aq(2*t, rb), aq(2*t+1, rb); lo = rdy((2*t + 1, rb)); g.qdone.append((t, rb))
        for r_ in (a, b):
            for k in range(4): S.add("A", f"v_mul_f32 {r_[k]}, s{t2_}, {r_[k]}", lo, chain="lq")
        for d_, src, r in ((0, a, 0), (1, a, 2), (2, b, 0), (3, b, 2)): S.add("A", f"v_cvt_pk_bf16_f32 {a[d_]}, {src[r]}, {src[r+1]}", lo, chain="lq")
    g.emit(S.run("gemm12"), eager=10, name="gemm12")
    g.emit(stamp(5))
    if OPT.get("x_sleep"): g.emit([f"s_sleep {OPT['x_sleep']}"])
    local_attention(g)

def att_scalars():
    return L(f"""s_and_b32 s70, s{sW}, 1
          s_lshr_b32 s{t1_}, s{sW}, 1
          s_lshl3_add_u32 s71, s{t1_}, s70
          s_add_u32 s71, s71, 4
          s_lshl_b32 s71, s71, 13
          s_lshl_b32 s70, s70, 14
          s_mul_i32 s{t1_}, s{t1_}, 24576
          s_sub_u32 s70, s70, s{t1_}
          s_add_u32 s70, s70, 65536""")

def att_first_dmas(sLX):
    d = []
    for k in range(8):
        sal = []
        if k == 0: sal = [f"s_mov_b32 m0, s{sLX}", f"s_lshl_b32 s{sT}, s{sW}, 14"]
        if k == 4: sal = [f"s_add_u32 m0, s{sLX}, 4096", f"s_add_u32 s{sT}, s{sT}, 4096"]
        d.append((sal, f"buffer_load_dwordx4 v{vL16}, {srd(SA)}, s{sT} offen offset:{(k&3)*1024} sc1 lds ;@tag=k0"))
    for k in range(4):
        sal = []
        if k == 0: sal = [f"s_lshr_b32 s{sT}, s{sLX}, 1", f"s_add_u32 m0, s{sT}, {65536 + 16384}", f"s_and_b32 s71, s{sT}, 8192",
                          f"s_add_u32 s{sT}, s{sT}, s71", f"s_add_u32 s{sT}, s{sT}, 8192"]
        d.append((sal, f"buffer_load_dwordx4 v{vL16}, {srd(SA)}, s{sT} offen offset:{k*1024} sc1 lds ;@tag=v0"))
    return d

def local_attention(g):
    q = []
    def e(s): q.extend(L(s))
    def pk(d, a, b): return f"v_cvt_pk_bf16_f32 {d}, {a}, {b}"
    mO, mP, mP0 = HK, HV, R("v", 20)
    qp = []
    for t in range(4):
        for rb in range(4):
            if (t, rb) in g.qdone: continue
            a, b = aq(2*t, rb), aq(2*t+1, rb)
            for r in (a, b): qp += [f"v_pk_mul_f32 {r[0:2]}, {r[0:2]}, s[{t2_}:{t3_}]", f"v_pk_mul_f32 {r[2:4]}, {r[2:4]}, s[{t2_}:{t3_}]"]
            qp += [pk(a[0], a[0], a[1]), pk(a[1], a[2], a[3]), pk(a[2], b[0], b[1]), pk(a[3], b[2], b[3])]
    assert all((0, rb) in g.qdone for rb in range(4))
    def fill(n):
        assert len(qp) >= n
        q.extend(qp[:n]); del qp[:n]
    def Sp(rb): return bt(0, 1, rb)
    def So(rb): return bt(1, 1, rb)
    mx, mc, hin = aq(1, 2), aq(1, 1), aq(1, 0)
    hld = f"buffer_load_dwordx4 {hin}, v{vL16}, {srd(SD)}, s77 offen sc1"
    def part(rbs, f0, mid=None):
        for rb in rbs: e(mfma(So(rb), bt(1, 0, rb), bt(0, 0, rb), mO))
        for rb in rbs: e(mfma(Sp(rb), R("a", 4*rb), bt(0, 0, rb), mP0 if rb == 0 else mP))
        f0()
        for rb in rbs:
            a, b = Sp(rb), So(rb)
            e(f"v_max3_f32 {mx[rb]}, {b[0]}, {b[1]}, {b[2]}\nv_max3_f32 {mx[rb]}, {mx[rb]}, {b[3]}, {a[0]}")
            e(f"v_max3_f32 {mx[rb]}, {mx[rb]}, {a[1]}, {a[2]}\nv_max_f32 {mx[rb]}, {mx[rb]}, {a[3]}")
        for op in ("v_permlane16_swap_b32", "v_permlane32_swap_b32"):
            for rb in rbs: e(f"v_mov_b32 {mc[rb]}, {mx[rb]}")
            fill(1)
            for rb in rbs: e(f"{op} {mc[rb]}, {mx[rb]}")
            for rb in rbs: e(f"v_max_f32 {mx[rb]}, {mx[rb]}, {mc[rb]}")
        for rb in rbs: e(f"v_mul_f32 {mx[rb]}, s{t0_}, {mx[rb]}")
        for rb in rbs:
            a, b = Sp(rb), So(rb)
            for r in (a, b):
                for k in range(4): e(f"v_fma_f32 {r[k]}, {r[k]}, s{t0_}, -{mx[rb]}")
            for r in (a, b):
                for k in range(4): e(f"v_exp_f32 {r[k]}, {r[k]}")
            q.extend([pk(a[0], a[0], a[1]), pk(a[1], a[2], a[3]), pk(a[2], b[0], b[1]), pk(a[3], b[2], b[3])])
            fill(2)
            e(mfma(So(rb), ONES, Sp(rb), 0))
            for db in range(2): e(mfma(bt(db, 0, rb), bt(2, db, rb), Sp(rb), 0))
        if mid: e(mid)
        fill(6)
        for rb in rbs: e(f"v_rcp_f32 {mx[rb]}, {So(rb)[0]}")
        for rb in rbs: e(f"v_mul_f32 {mx[rb]}, {mx[rb]}, v{vG+2*rb+1}")
        for rb in rbs:
            a, b = bt(0, 0, rb), bt(1, 0, rb)
            for r in (a, b):
                for k in range(4): e(f"v_mul_f32 {r[k]}, {r[k]}, {mx[rb]}")
            q.extend([pk(a[0], a[0], a[1]), pk(a[1], a[2], a[3]), pk(a[2], b[0], b[1]), pk(a[3], b[2], b[3])])
            e(f"buffer_store_dwordx4 {a}, v{vL16}, {srd(SD)}, s{sT + (rb>>1)} offen {ST} ;@tag=ob")
    def f0():
        for k in range(8): e(f"v_accvgpr_read_b32 v{vG+k}, a{64+k}")
    HE, WB = OPT.get("he", 1), OPT.get("wb", 0)
    def wpf(k): return [f"buffer_load_dword a{aDUM}, v19, {srd(SC)}, s81 offen ;@dummy"] + ([f"s_add_u32 s81, s81, {8192 // WB}"] if k + 1 < WB else [])
    if WB: e(f"v_lshlrev_b32 v19, {7 if WB == 1 else 6 if WB == 2 else 5}, v0")
    if OPT.get("nopf") or WB == 0: wpf = lambda k: []
    if HE:
        e(hld)
        if WB > 1: q.extend(wpf(0))
    part((1, 3), f0, (hld if not HE else "\n".join(wpf(1)) if WB == 4 else None))
    fill(len(qp) - 44)
    e(f"""USE {hin}
          L_hchk:
          v_max3_u32 v1, {hin[0]}, {hin[1]}, {hin[2]}
          v_max_u32 v1, v1, {hin[3]}
          v_cmp_eq_u32 vcc, -1, v1
          s_cbranch_vccnz L_hretry
          L_hgo:
          ds_write_b128 v17, {hin}
          s_sub_u32 s{sT}, s{sT}, 4096
          s_sub_u32 s{sT2}, s{sT2}, 4096""")
    g.ool += ["L_hretry:", "s_sub_u32 s72, s72, 1", "s_cbranch_scc1 L_hgo ;@nottaken", hld, "s_waitcnt vmcnt(0)", "s_branch L_hchk"]
    q.extend(wpf(WB // 2))
    fill(8)
    e("s_waitcnt lgkmcnt(0)\ns_barrier")
    q += g.prevrd((0, 2))
    fill(16)
    part((0, 2), lambda: fill(8), "\n".join(wpf(3)) if WB == 4 else None)
    assert not qp
    g.emit(q, name="local")

sR5, sKh, sCtx, sWo5, sL5, sCol, sSig, sWt = 82, 83, 84, 85, 86, 87, 79, 80
vG5, vC5 = 12, 14
def p5_ctx(sl, rb, s):
    f, b = (("a", 208), ("v", 152), ("a", 0), ("a", 32), ("a", 64))[sl]
    return R(f, b + 8*rb + 4*s)
def p5_lds(sl): return (131072, 32768, 65536, 98304, 0)[sl]
def p5_wdma(sl, rel, sr=SB):
    return [([f"s_add_u32 m0, s{sL5}, {p5_lds(sl) + i*1024}", f"s_add_u32 s{sT}, s{sWo5}, {rel*262144 + i*8192}"],
             f"buffer_load_dwordx4 v{vG5 + (i&1)}, {srd(sr)}, s{sT} offen lds ;@tag=w5_{sl}") for i in range(8)]
def p5_cld(sl, rel):
    o = []
    for s in range(2):
        for rb in range(4):
            o.append(([f"s_add_u32 s{sT2}, s{sCtx}, {rel*32768 + s*8192}"] if rb == 0 else [],
                      f"buffer_load_dwordx4 {p5_ctx(sl, rb, s)}, v{vC5 + (rb>>1)}, {srd(SD)}, s{sT2} offen offset:{(rb&1)*1024} sc1"))
    return o
def NB0(): return OPT.get("nb0", 5)
def p5_setup():
    CI = OPT.get("ci", 0)
    return L(f"""s_and_b32 s{t0_}, s2, 7
          s_lshr_b32 s{t1_}, s2, 3
          s_and_b32 s{sKh}, s{t0_}, 1
          s_and_b32 s{t2_}, s{t0_}, 2
          {f"s_and_b32 s{t3_}, s{t1_}, 7" if not OPT.get("rm", 0) else f"s_lshr_b32 s{t3_}, s{t1_}, 2"}
          s_lshl2_add_u32 s{sR5}, s{t2_}, s{t3_}
          s_and_b32 s{t2_}, s{t0_}, 4
          {f"s_lshr_b32 s{t3_}, s{t1_}, 3" if not OPT.get("rm", 0) else f"s_and_b32 s{t3_}, s{t1_}, 3"}
          s_xor_b32 s{t3_}, s{t3_}, {OPT.get("rm", 0)}
          s_add_u32 s{sCol}, s{t2_}, s{t3_}
          s_lshl_b32 s{sCol}, s{sCol}, 8
          s_lshl_b32 s{sL5}, s{sW}, 13
          s_lshl_b32 s{sWo5}, s{sW}, 16
          s_add_u32 s{sWo5}, s{sWo5}, s{sCol}
          {f"s_xor_b32 s{t2_}, s{t3_}, 1" if OPT.get("x_c3") else ""}
          {f"s_min_u32 s{t2_}, s{t2_}, 1" if OPT.get("x_c3") else ""}
          {f"s_xor_b32 s{t2_}, s{t2_}, 1" if OPT.get("x_c3") else ""}
          {f"s_mul_i32 s{t2_}, s{t2_}, 0x500" if OPT.get("x_c3") else ""}
          {f"s_xor_b32 s{sWo5}, s{sWo5}, s{t2_}" if OPT.get("x_c3") else ""}
          s_mul_i32 s{t0_}, s{sKh}, {NB0()*262144}
          s_add_u32 s{sWo5}, s{sWo5}, s{t0_}
          s_mul_i32 s{sCtx}, s{sR5}, {160*8192}
          s_and_b32 s{t0_}, s{sW}, 1
          s_lshl_b32 s{t0_}, s{t0_}, 14
          s_add_u32 s{sCtx}, s{sCtx}, s{t0_}
          s_mul_i32 s{t0_}, s{sKh}, {NB0()*32768}
          s_add_u32 s{sCtx}, s{sCtx}, s{t0_}
          s_add_u32 s{sCtx}, s{sCtx}, {WS_CTX + 128*8192}
          s_sub_u32 s{t0_}, 15, s{sR5}
          s_min_u32 s{t0_}, s{t0_}, s{sR5}
          s_lshl1_add_u32 s{t0_}, s{t0_}, s{sKh}
          s_lshl_b32 s{sWt}, s{t0_}, 8
          s_add_u32 s{sWt}, s{sWt}, {32*256}
          s_and_b32 s81, s{sW}, 1
          s_lshl_b32 s81, s81, 7
          s_add_u32 s81, s81, s{sKh}
          s_lshl_b32 s81, s81, 7
          s_add_u32 s81, s81, 98304
          s_lshl_b32 s{t0_}, s{sW}, 11
          v_lshrrev_b32 v{vC5}, 4, v0
          v_bfe_u32 v{vG5}, v0, 1, 3
          v_xor_b32 v{vG5}, v{vG5}, v{vC5}
          v_lshlrev_b32 v{vG5}, 5, v{vG5}
          v_lshl_add_u32 v{vG5}, v{vC5}, 11, v{vG5}
          v_and_b32 v{vC5}, 1, v0
          v_lshl_add_u32 v{vG5}, v{vC5}, 4, v{vG5}
          v_xor_b32 v{vG5+1}, {512 if CI else 128}, v{vG5}
          v_lshrrev_b32 v{vC5}, 4, v0
          v_bfe_u32 v18, v0, 2, 2
          v_lshl_add_u32 v{vC5}, v{vC5}, 2, v18
          v_and_b32 v18, 3, v0
          v_lshlrev_b32 v18, 3, v18
          v_lshl_add_u32 v18, v{vC5}, 8, v18
          v_and_b32 v{vC5}, 7, v{vC5}
          v_lshl_add_u32 v18, v{vC5}, 5, v18
          v_xor_b32 v18, s81, v18
          v_add_u32 v{vC5}, s{t0_}, v{vL16}
          v_xor_b32 v{vC5+1}, 0x800, v{vC5}""")

def attention(g):
    p = g.p
    RA = 8
    vDK, vDV, vNI, vBad = 2, 3, 17, 1
    sSrc, sM0, sCnt, sFB, sLX, sCb = 70, 71, 72, 73, 76, 74
    def Q(qb, t): return R("v", vQ + 16*qb + 4*t)
    def S_(kb, qb): return R("v", 88 + 16*qb + 4*kb)
    def Pp(b, u, qb): return R("v", 152 + 32*(qb >> 1) + 16*b + 8*(qb & 1) + 4*u)
    def NM(qb): return R("v", 216 + 4*qb)
    def O(db, qb): return R("a", 32*qb + 4*db)
    def Lr(qb): return R("a", 128 + 4*qb)
    def F(f): return R("a", 144 + 4*(f & 15))
    mx, mc, mt, TMP = 20, 248, 252, (232, 240)
    lab = {k: "L_" + k for k in ("F1", "D", "DD", "T", "T1", "S", "SD", "TAIL")}
    def rdK(f, i): return f"ds_read_b128 {F(f)}, v{vDK} offset:{i*16384 + f*1024}"
    def rdV(f, i): return f"ds_read_b128 {F(f)}, v{vDV} offset:{i*16384 + (f & 1)*8192 + (f >> 1)*1024}"
    def dma(k, tag):
        sal = []
        if k == 0: sal = [f"s_mov_b32 m0, s{sM0}"]
        if k == 4: sal = [f"s_add_u32 m0, s{sM0}, 4096", f"s_add_u32 s{sT}, s{sSrc}, 4096"]
        return sal, f"buffer_load_dwordx4 v{vL16}, {srd(SA)}, s{sSrc if k < 4 else sT} offen offset:{(k&3)*1024} sc1 lds ;@tag={tag}"
    def act(st, i, base):
        if st == "full" or (st == "diag" and i == 0): return [base, base + 1]
        if st == "diag": return [base + 1]
        return []
    def acts(sts, i): return act(sts[0], i, 0) + act(sts[1], i, 2)
    def masked(sts, i):
        for b, st in enumerate(sts):
            if st == "diag": return 2*b + i
        return None
    SM = OPT.get("sm", 1)
    def rowsum(qb, b, zero=False):
        if SM: return [f"v_smfmac_f32_16x16x64_bf16 {Lr(qb)}, {ONES2}, {R('v', Pp(b, 0, qb).b, 8)}, v{vIDX}"]
        return [mfma(Lr(qb), ONES, Pp(b, u, qb), 0 if (zero and u == 0) else None) for u in range(2)]
    def epi_head(qb):
        return [f"v_accvgpr_read_b32 v{mx+qb}, {Lr(qb)[0]}"] + ([f"v_accvgpr_read_b32 v{mc}, {Lr(qb)[1]}", f"v_add_f32 v{mx+qb}, v{mx+qb}, v{mc}"] if SM else []) + [f"v_max_f32 v{vBad}, v{vBad}, v{mx+qb}", f"v_rcp_f32 v{mx+qb}, v{mx+qb}"]
    def epi_frag(qb, t, pkm=False):
        o = []; tmp = R("v", TMP[t & 1], 8)
        for r in range(8): o.append(f"v_accvgpr_read_b32 {tmp[r]}, {O(2*t + (r >> 2), qb)[r & 3]}")
        if t == 0: o.append(f"v_mul_f32 v{mx+qb}, v{mx+qb}, v{vG+2*qb}")
        if pkm:
            sel = "op_sel_hi:[1,0]" if qb % 2 == 0 else "op_sel:[0,1]"
            for r in range(4): o.append(f"v_pk_mul_f32 {tmp[2*r:2*r+2]}, {tmp[2*r:2*r+2]}, v[{mx+(qb&2)}:{mx+(qb&2)+1}] {sel}")
        else:
            for r in range(8): o.append(f"v_mul_f32 {tmp[r]}, {tmp[r]}, v{mx+qb}")
        for r in range(4): o.append(f"v_cvt_pk_bf16_f32 {tmp[r]}, {tmp[2*r]}, {tmp[2*r+1]}")
        o.append(f"s_add_u32 s77, s{sCb + (qb>>1)}, {t*8192 + (qb&1)*4096}")
        o.append(f"buffer_store_dwordx4 {tmp[0:4]}, v{vL16}, {srd(SD)}, s77 offen {ST} ;@tag=ctx")
        return o
    def xmax():
        o = []
        for op in ("v_permlane16_swap_b32", "v_permlane32_swap_b32"):
            o += [f"v_mov_b32 v{mc+qb}, v{mx+qb}" for qb in range(4)]
            o += [f"{op} v{mc+qb}, v{mx+qb}" for qb in range(4)]
            o += [f"v_max_f32 v{mx+qb}, v{mx+qb}, v{mc+qb}" for qb in range(4)]
        return o

    def group(cur, prev, first=False, lastg=False, hook=None, name=None, extra=None):
        mf = []; rs = []
        for i in range(2):
            qk = acts(cur, i); pv = acts(cur, 0) if i == 1 else acts(prev, 1); mq = masked(cur, i)
            r = dict(g0=len(mf), qk=qk, pv=pv, mq=mq, tiles=[], fu=[None]*32, lu=[None]*32)
            k = 0
            for kb in range(4):
                qs = [qk[x] for x in snake(len(qk), kb)]
                if mq is not None and kb == 0: qs = [x for x in qs if x != mq] + [mq]
                for qb in qs:
                    st = len(mf)
                    for q_, t in enumerate(snake(4, k)):
                        c = None
                        if q_ == 0 and qb != mq: c = 0 if (first and i == 0 and kb == 0) else NM(qb)
                        f = 4*kb + t
                        if r["fu"][f] is None: r["fu"][f] = len(mf)
                        r["lu"][f] = len(mf)
                        mf.append(mfma(S_(kb, qb), F(f), Q(qb, t), c))
                    k += 1
                    r["tiles"].append((kb, qb, st, len(mf) - 1))
            r["pv0"] = len(mf); k = 0; r["od"] = {}
            for qb in pv:
                mf += rowsum(qb, i ^ 1, first)
                r["od"][("l", qb)] = len(mf) - 1
            for db in range(8):
                for qb in [pv[x] for x in snake(len(pv), db)]:
                    for q_, u in enumerate(snake(2, k)):
                        f = 16 + 2*db + u
                        if r["fu"][f] is None: r["fu"][f] = len(mf)
                        r["lu"][f] = len(mf)
                        mf.append(mfma(O(db, qb), F(f), Pp(i ^ 1, u, qb), 0 if (first and q_ == 0) else None))
                    k += 1; r["od"][(db, qb)] = len(mf) - 1
            r["end"] = len(mf); rs.append(r)
        N = len(mf); S = Sched(mf)
        head = []
        for i, r in enumerate(rs):
            g0, n = r["g0"], r["end"] - r["g0"]; nq, npv = len(r["qk"]), len(r["pv"])
            single = (nq, npv) == (2, 2)
            knext = not (lastg and i == 1)
            if single:
                dg = [0, 0, 1, 3, 3, 4, 6, 6, 12, 14, 16, 18, 22, 24, 24, 26, 30, 32, 32, 34, 38, 40, 42, 46, 50, 52, 54, 58, 60, 62, 66, 67]
                mg = [2, 5, 20, 28, 36, 44, None, 56, 64]; bg = 48
                eg = [7, 8, 9, 10, 11] + [13 + 2*x for x in range(27)]
                cg = [12, 14, 16] + [4*x + 6 for x in range(3, 16)]
                if SM:
                    dg = [0, 0, 2, 2, 4, 4, 6, 6, 12, 14, 16, 18, 22, 24, 24, 26, 28, 30, 32, 33, 37, 39, 41, 45, 49, 51, 51, 53, 57, 59, 61, 65]
                    mg = [1, 3, 5, 20, 28, 43, None, 55, 63]; bg = 47
                    eg = [7, 8, 9, 10, 11] + [13 + 2*x for x in range(10)] + [34, 35, 36] + [38 + 2*x for x in range(14)]
                    cg = [12, 14, 16, 18, 22, 26, 30, 37, 39] + [41 + 4*x for x in range(7)]
            else:
                bg = n - max(int(n * 0.27), 12)
                if npv == 0: bg = n - 18
                dg = None
                mg = [2 + (q_ * (bg - 4)) // 6 for q_ in range(6)] + [None] + [bg + 4, bg + 4 + (n - bg - 4) // 2]
            for d in range(32):
                f = d + RA
                if d == 32 - RA:
                    wt = ("kvB" if i == 0 else "kvA") + (",v0,ob" if first else "")
                    S.add("X", [f"WAITVM {wt}", "s_barrier"], g0 + bg, g0 + bg, chain="rd")
                if f < 16:
                    txt = rdK(f, i); fu = r["fu"][f]; free = g0
                elif f < 32:
                    if npv == 0: continue
                    txt = rdV(f - 16, i); fu = r["fu"][f]; free = r["lu"][f - 16]
                else:
                    f -= 32
                    if knext: txt = rdK(f, i ^ 1)
                    else: txt = rdV(f, 0)
                    fu = r["end"] + 4 + f; free = r["lu"][16 + f] if npv else r["lu"][f]
                if dg: lo = hi = g0 + dg[d]; assert lo >= free and lo <= fu - 6, (d, lo, free, fu)
                else:
                    if d < 32 - RA: hi = min(fu - 8, g0 + bg - 1); lo = min(max(free, g0 + (d * bg) // 24 - 6), hi)
                    else: hi = min(r["end"] - 1, fu - 10 + (f >> 2) * 4); lo = min(max(free, g0 + bg + 1), hi)
                    hi = max(hi, free); lo = max(lo, free)
                it = S.add("D", txt, lo, hi, chain="rd"); it["dd"] = first or lastg
                if not dg: it["early"] = free if d < 32 - RA else lo
            tA, tB = ("kvA", "kvB") if i == 0 else ("kvB", "kvA")
            for q_, gq in enumerate(mg):
                if gq is None: continue
                k = q_ + 2 if q_ < 6 else q_ - 7
                if lastg and (i == 1 or q_ > 6): continue
                sal, dd = dma(k, tA if q_ < 6 else tB)
                if k == 0: sal = [f"s_xor_b32 s{sM0}, s{sM0}, {16384 if i == 0 else 16384 + 32768}", f"s_add_u32 s{sSrc}, s{sSrc}, 32768"] + sal
                if single:
                    sg_ = ({0: (45, 49, 53), 4: (9, 13)} if not SM else {0: (44, 46, 48), 4: (4, 2)}).get(k, ())
                    for x, s_ in zip(sg_, sal): S.add("S", s_, g0 + x, g0 + x, chain="m" if x != 2 else None)
                    S.add("M", dd, g0 + gq, g0 + gq, chain="m")
                else:
                    S.add("M", dd, g0 + gq, min(g0 + gq + 3, (g0 + bg - 1) if q_ < 6 else r["end"] - 1), chain="m", pre=sal, sep=3)
                    if extra and extra[0] == i and k in (3, 7):
                        for sal2, d2 in extra[1][(k >> 2)*4:(k >> 2)*4 + 4]: S.add("M", d2, g0 + gq, chain="m", pre=sal2, sep=3)
            if i == 1:
                lastK = g0 + (dg[15 - RA] if dg else r["fu"][15] - g0 - 8)
                S.add("A", f"v_xor_b32 v{vDK}, 0x8000, v{vDK}", max(lastK + 1, g0), g0 + bg - 1)
                if knext: S.add("A", f"v_xor_b32 v{vDV}, 0x8000, v{vDV}", g0 + bg + 1, N - 1)
                else: S.chains["rd"][[x["kind"] for x in S.chains["rd"]].index("X", len(S.chains["rd"]) - RA - 1)]["text"].append(f"v_xor_b32 v{vDV}, 0x8000, v{vDV}")
            nt = len(r["tiles"]); e = 0
            nxt = {(kb, qb): st for kb, qb, st, _ in rs[1]["tiles"]} if i == 0 else {}
            span0 = g0 + 8; span1 = r["end"] - 2
            if first and i == 0: span0 = g0 + 4*nq; span1 = r["end"] + 40
            if first and i == 1: span0 = g0 + 40
            for x, (kb, qb, st, en) in enumerate(r["tiles"]):
                s = S_(kb, qb); ch = ("sm", kb, qb); pdst = Pp(i, kb >> 1, qb)
                lim = nxt[(kb, qb)] - (7 if rs[1]["mq"] == qb else 1) if (kb, qb) in nxt else N - 1
                if not first: lim = min(lim, r["end"] - 1)
                if i == 0 and qb in rs[1]["pv"]: lim = min(lim, rs[1]["pv0"] - 3)
                if qb == r["mq"]:
                    src = "0" if (first and i == 0 and kb == 0) else str(NM(qb)[0])
                    for r_ in range(4):
                        c = f"v_cndmask_b32 {s[r_]}, {src}, v{vNI}, {msk(4*kb + r_)}"
                        if st - 3 < 0: head.append(c)
                        else: S.add("A", c, (g0 + 4*nq) if (first and i == 0 and kb > 0) else (0 if i == 0 else max(g0 - 20, 0)), st - 3, chain=ch)
                lo = en + 7
                if first and i == 0 and kb == 0:
                    lo = g0 + 4*nq
                    for r_ in range(4): S.add("A", f"v_add_f32 {s[r_]}, {s[r_]}, {NM(qb)[0]}", lo, lim - 4, chain=ch)
                for r_ in range(4):
                    pace_ = span0 + ((e + 1) * (span1 - span0)) // (4 * nt)
                    elo, ehi, clo, chi = min(lo, lim - 1), min(max(pace_, lo), lim - 1), min(lo, lim), min(lim, max(pace_, lo) + 8)
                    if single: elo = ehi = g0 + eg[e]; clo = chi = g0 + cg[e >> 1]
                    e += 1
                    S.add("E", f"v_exp_f32 {s[r_]}, {s[r_]}", elo, ehi, chain=ch)
                    if r_ & 1:
                        it = S.add("A", f"v_cvt_pk_bf16_f32 {pdst[2*(kb & 1) + (r_ >> 1)]}, {s[r_-1]}, {s[r_]}", clo, chi, chain=("cv", i, kb, qb, r_), sep=1)
                        it["after"] = S.chains[ch][-1]; it["soft"] = True
                        if r_ == 3: r.setdefault("lastcv", {})[(kb, qb)] = [it, S.chains[("cv", i, kb, qb, 1)][0]]
            if first and i == 0 and SM:
                for qb in range(4):
                    for r_ in range(4): S.add("A", f"v_accvgpr_write_b32 {Lr(qb)[r_]}, 0", 0, rs[1]["pv0"] - 3)
            if first and i == 0:
                blk = ["s_nop 1"]
                for qb in [x[1] for x in r["tiles"][:4]]:
                    a = S_(0, qb); blk += [f"v_max3_f32 v{mx+qb}, {a[0]}, {a[1]}, {a[2]}", f"v_max_f32 v{mx+qb}, v{mx+qb}, {a[3]}"]
                blk += xmax() + [f"s_cmp_eq_u32 s{sFB}, 0", "s_cselect_b64 vcc, 0, -1"]
                blk += [f"v_cndmask_b32 v{mx+qb}, v{mx+qb}, v{mt+qb}, vcc" for qb in range(4)]
                for qb in (3, 2, 1, 0): blk += [f"v_sub_f32 {NM(qb)[r_]}, 0, v{mx+qb}" for r_ in range(4)]
                S.add("X", blk, g0 + 4*nq - 1, g0 + 4*nq - 1)
        if rs[1]["mq"] is not None:
            for kb in range(4):
                key = (kb, rs[1]["mq"]); its = S.chains[("sm",) + key]
                k0 = [x for x in its if "cndmask" in x["text"][0]][-4]
                k0["after"] = rs[0]["lastcv"][key]
        if hook: hook(S, rs)
        return head + (["s_nop 0"] if head else []) + S.run(name)

    FULL2, LD, TR, TD, NONE = ("full", "full"), ("diag", "full"), ("off", "full"), ("off", "diag"), ("off", "off")
    def add_cpf(S, lo, hi, exprs):
        if OPT.get("nocpf"): return
        for e_ in exprs:
            pre, d = cpf(e_); S.add("M", d, lo, hi, chain="cpf", pre=pre, sep=3 if lo >= 0 else 0)
    def hook_first(S, rs):
        lo = rs[1]["g0"] + 40; N = rs[1]["end"]
        pre, d = signal(SF, f"s{t1_}", 0, "ob")
        for c in [pre[0], pre[1].replace("v1,", "v19,")] + L(f"""s_lshr_b32 s{t1_}, s{sH}, 4
              s_lshl1_add_u32 s{t1_}, s{sJ}, s{t1_}
              s_lshl_b32 s{sSig}, s{t1_}, 8
              s_add_u32 s{sSig}, s{sSig}, {32*256}
              s_add_u32 s{t3_}, s{sH}, {32 - 4*NB0()}
              s_lshr_b32 s{t3_}, s{t3_}, 5
              s_lshl1_add_u32 s{t3_}, s{sJ}, s{t3_}
              s_lshl_b32 s{t3_}, s{t3_}, 8
              s_add_u32 s{t3_}, s{t3_}, {32*256}
              s_lshl_b32 s{t1_}, s{sFB}, 16
              s_xor_b32 s{t2_}, s{sWt}, 256
              s_add_u32 s{t2_}, s{t2_}, s{t1_}
              s_add_u32 s{t1_}, s{t1_}, s{t3_}"""): S.add(kind(c), c, lo, chain="sig", sep=1)
        d = d.replace("v1,", "v19,"); ol = one_lane(d); ol.insert(2, d.replace(f"s{t1_} offen", f"s{t2_} offen"))
        S.add("X", ol, lo, N - 2, chain="sig", sep=1)
        S.add("A", "v_mul_u32_u24 v19, 52, v0", lo, N - 1, chain="sig", sep=1)
        if rs[1]["mq"] is None: add_cpf(S, lo, N - 1, [f"{lab['D']}-L_pc+{4096*k}" for k in range(3)])
        else: add_cpf(S, lo, N - 1, [f"{lab['T']}-L_pc+{4096*k}" for k in range(2)])
    def add_epi(S, r, qb, ts, hi, head=False):
        def put(cs_, lo):
            for c in cs_: S.add("M" if c.startswith("buffer") else kind(c), c, min(lo, hi), hi, chain="epi")
        if head: put(epi_head(qb), r["od"][("l", qb)] + 8)
        for t in ts: put(epi_frag(qb, t), r["od"][(2*t + 1, qb)] + 8 if r else 8)
    def hook_dd(S, rs):
        add_cpf(S, 2, rs[1]["end"] - 1, [f"{lab['T']}-L_pc", f"{lab['T']}-L_pc+4096", f"{lab['T1']}-L_pc", f"{lab['T1']}-L_pc+4096"])
    def hook_e0(S, rs): add_epi(S, rs[1], 0, (0, 1, 2), rs[1]["end"], True)
    def hook_t(S, rs):
        add_epi(S, None, 0, (3,), rs[0]["pv0"] + 10); add_epi(S, rs[0], 1, (0, 1, 2, 3), rs[1]["g0"] + 10, True)
    def hook_last(S, rs):
        g1 = rs[1]["g0"]; N = rs[1]["end"]
        S.add("M", f"buffer_load_dword v19, off, {srd(SF)}, s{sWt} sc1", -1, -1, chain="p5")
        for c in (f"s_mul_i32 s{t3_}, s{sKh}, {8*NB0() - 32}", f"s_sub_u32 s{t3_}, {16 + 4*NB0()}, s{t3_}"): S.add("S", c, 14, g1 - 20, chain="p5")
        S.add("X", g.spin(19, SF, f"s{sWt}", 0, f"s{t3_}"), g1 - 16, g1 - 16, chain="p5")
        for k, (sal, d) in enumerate(p5_cld(0, 0) + p5_cld(1, 1)): S.add("M", d, g1 - 14 if k < 8 else g1, N - 1, chain="p5", pre=sal, sep=2)
        add_cpf(S, -1, -1, [f"{lab['TAIL']}-L_pc", f"{lab['TAIL']}-L_pc+4096", "L_p5f0-L_pc", "L_p5f0-L_pc+4096"][:OPT.get("ncp", 4)])
        add_epi(S, rs[1], 2, (0,), N, True)
    def both(*hs):
        def h(S, rs):
            for x in hs: x(S, rs)
        return h
    def first_group(cur, name, hook, extra=None):
        seq = [rdK(f, 0) for f in range(RA)]
        for k in range(2):
            sal, d = dma(k, "kvA"); seq += sal + (["s_nop 0"] if k == 0 else []) + [d]
        return seq + group(cur, NONE, first=True, hook=hook, name=name, extra=extra)

    START = p.new("attstart")
    q = [f"v_mov_b32 v{vNI}, 0xff800000"]
    if SM: q += [f"v_and_b32 v{vIDX}, 1, v0", f"v_mul_u32_u24 v{vIDX}, 0xaaaa, v{vIDX}", f"v_add_u32 v{vIDX}, 0x4444, v{vIDX}", f"v_lshl_or_b32 v{vIDX}, v{vIDX}, 16, v{vIDX}"]
    q += [START + ":"] + L(f"""v_mov_b32 v{vDK}, v{vL16}
          v_add_u32 v{vDV}, 0x10000, v{vL16}
          v_mov_b32 v{vBad}, 0
          WAITVM k0 L
          s_barrier""") + stamp(6)
    g.emit(q)
    st0 = (list(g.lg), list(g.vm))
    def setst(s): g.lg, g.vm = list(s[0]), list(s[1])
    def getst(): return (list(g.lg), list(g.vm))
    cs = ([([("a", 144 + 4*f + r) for r in range(4)], 0) for f in range(RA)], [("kvB", [])] * 8 + [("kvA", [])] * 2)
    def chk():
        a = [r for r, _ in g.lg]; b = [r for r, _ in cs[0]]
        assert a == b[len(b) - len(a):], a
    EG = 6
    p(f"s_cmp_eq_u32 s{sJ}, 0\ns_cbranch_scc1 {lab['F1']}")
    g.emit(first_group(FULL2, "F0", hook_first), EG); chk()
    g.emit(stamp(12))
    p(f"s_sub_u32 s{sCnt}, s{sJ}, 1\ns_cmp_eq_u32 s{sCnt}, 0\ns_cbranch_scc1 {lab['DD']}")
    def hook_cnt(S, rs):
        N = rs[1]["end"]
        S.add("S", f"s_sub_u32 s{sCnt}, s{sCnt}, 1", N - 11 + SM, N - 11 + SM); S.add("S", f"s_cmp_lg_u32 s{sCnt}, 0", N - 7 + SM, N - 7 + SM)
        if not OPT.get("wb", 0) and not OPT.get("nopf") and N > 200:
            S.add("M", f"buffer_load_dword a{aDUM}, v19, {srd(SC)}, s81 offen ;@dummy", 5, 5, chain="wo")
            S.add("S", f"s_add_u32 s81, s81, {128*3328}", 15, 17, chain="wo")
        if N > 200: add_cpf(S, N - 30, N - 14, [f"{lab['DD']}-L_pc", f"{lab['DD']}-L_pc+4096"])
    p(".p2align %d" % OPT.get("pa", 3)); p(["s_nop 0"] * OPT.get("pn", 0)); p.label(lab["D"]); setst(cs)
    g.emit(group(FULL2, FULL2, hook=hook_cnt, name="D"), EG); chk()
    p(f"s_cbranch_scc1 {lab['D']}")
    p.label(lab["DD"]); setst(cs)
    g.emit(stamp(13) + group(LD, FULL2, hook=both(hook_dd, hook_e0), name="DD", extra=(0, p5_wdma(0, 0))), EG); chk()
    p(f"s_cmp_eq_u32 s{sJ}, 7\ns_cbranch_scc1 {lab['T1']}")
    p.label(lab["T"]); setst(cs)
    g.emit(stamp(14) + group(TR, LD, hook=hook_t, name="T") + stamp(15), EG); chk()
    p(f"s_lshl_b32 s{sCnt}, s{sJ}, 1\ns_sub_u32 s{sCnt}, 13, s{sCnt}")
    p(".p2align %d" % OPT.get("pa", 3)); p(["s_nop 0"] * OPT.get("pn", 0)); p.label(lab["S"]); setst(cs)
    g.emit(group(TR, TR, hook=hook_cnt, name="S"), EG); chk()
    p(f"s_cbranch_scc1 {lab['S']}")
    setst(cs)
    g.emit(stamp(16) + group(TD, TR, lastg=True, hook=hook_last, name="SD"), EG, name="SD"); chk()
    ts = (cs[0], list(g.vm)); setst(ts)
    p.label(lab["TAIL"])
    mf = rowsum(3, 1)
    for db in range(8): mf += [mfma(O(db, 3), F(2*db + u), Pp(1, u, 3)) for u in snake(2, db)]
    S = Sched(mf)
    for f in range(8, 16): S.add("D", rdV(f, 0), -1 if f < 12 else 0, -1 if f < 12 else 1, chain="rd")["dd"] = True
    for k, (sal, d) in enumerate(p5_wdma(1, 1)): S.add("M", d, 3 - SM + 2*k, 3 - SM + 2*k, chain="p5", pre=sal)
    e1 = epi_frag(2, 1)
    for c in e1[:-2]: S.add("A", c, 2, chain="epi")
    seq = stamp(17) + S.run("tail") + e1[-2:] + stamp(7)
    seq += epi_head(3) + L(f"""s_mov_b32 s{t0_}, {f32(LTHR if not OPT.get('forcefb') else 0.0)}
          v_cmp_le_f32 vcc, s{t0_}, v{vBad}
          s_lshl_b32 s{t1_}, s{sW}, 2
          s_cmp_lg_u64 vcc, 0
          s_cselect_b32 s{t0_}, 1, 0
          v_mov_b32 v248, s{t1_}
          v_mov_b32 v249, s{t0_}
          ds_write_b32 v248, v249""")
    rest = [(2, 2), (2, 3), (3, 0), (3, 1), (3, 2), (3, 3)]; NX = OPT.get("nx", 6)
    for qb, t in rest[:NX]: seq += epi_frag(qb, t, True)
    g.epi = [epi_frag(qb, t) for qb, t in rest[NX:]]
    FB = p.new("fallback")
    seq += L(f"""v_mov_b32 v248, 0
          s_waitcnt lgkmcnt(0)
          s_barrier
          ds_read_b128 v[248:251], v248""") + stamp(8)
    g.emit(seq)
    g.fbcheck = L(f"""v_or3_b32 v248, v248, v249, v250
          v_or_b32 v248, v248, v251
          s_nop 0
          v_readfirstlane_b32 s{t0_}, v248 ;@val=0
          s_nop 0
          s_cmp_gt_u32 s{t0_}, s{sFB}
          s_cbranch_scc1 {FB} ;@br=fb""")
    es = getst()
    main = g.p; g.p = P(); g.p.uid = main.uid + 1000
    g.p.label(lab["F1"]); setst(st0)
    g.emit(first_group(LD, "F1", both(hook_first, hook_e0), (1, p5_wdma(0, 0))) if not OPT.get("x_j0") else first_group(LD, "F1", hook_first) + stamp(12) + stamp(13), EG); chk()
    g.p(f"s_branch {lab['T']}")
    g.p.label(lab["T1"]); setst(cs)
    g.emit(stamp(14) + stamp(15) + stamp(16) + group(TD, LD, lastg=True, hook=both(hook_t, hook_last), name="T1"), EG); chk()
    def sig_(vm): return [(t, tuple(r)) for t, r in vm if (t and t.startswith("w5")) or r]
    assert sig_(g.vm) == sig_(ts[1])[len(sig_(ts[1])) - len(sig_(g.vm)):], (sig_(g.vm), sig_(ts[1]))
    g.p(f"s_branch {lab['TAIL']}")
    g.p.label(FB); setst(([], []))
    sU = 81
    q = L(f"""s_waitcnt vmcnt(0) lgkmcnt(0)
          s_barrier
          s_mov_b32 s{sFB}, 1
          s_mov_b32 s{sU}, 0
          v_and_b32 v232, 15, v0
          v_lshrrev_b32 v233, 4, v0
          v_lshlrev_b32 v233, 2, v233
          v_sub_u32 v232, v232, v233
          s_lshl_b32 s{t0_}, s{sW}, 4
          v_add_u32 v232, s{t0_}, v232
          s_lshl_b32 s{t0_}, s{sBHi}, 7
          v_add_u32 v234, s{t0_}, v232
          s_lshl_b32 s{t0_}, s{sJ}, 7
          v_add_u32 v232, s{t0_}, v232
          v_add_u32 v233, 64, v232
          v_add_u32 v235, 64, v234""")
    for sal, d in att_first_dmas(sLX): q += sal + ["s_nop 0", d]
    for qb in range(4): q.append(f"v_mov_b32 v{mx+qb}, 0xff800000")
    FL = g.p.new("fbl"); q.append(FL + ":")
    for f in range(8):
        if f == 4: q.append(f"s_add_u32 s{sT}, s{sU}, 4096")
        q.append(f"buffer_load_dwordx4 {F(f)}, v{vL16}, {srd(SA)}, s{sU if f < 4 else sT} offen offset:{(f&3)*1024} sc1")
    for qb in range(4):
        for kb in range(2):
            for r in range(4):
                c = S_(kb, qb)[r]
                q += [f"v_subrev_u32 {c}, {16*kb + r}, v{232+qb}", f"v_ashrrev_i32 {c}, 31, {c}", f"v_and_b32 {c}, 0xff800000, {c}"]
        q.append(f"v_subrev_u32 v{232+qb}, 32, v{232+qb}")
    q.append("s_waitcnt vmcnt(0)")
    for f in range(8):
        for qb in range(4): q.append(mfma(S_(f >> 2, qb), F(f), Q(qb, f & 3)))
    q.append("s_nop 7")
    for qb in range(4):
        for kb in range(2):
            a = S_(kb, qb)
            q += [f"v_max3_f32 v{mx+qb}, v{mx+qb}, {a[0]}, {a[1]}", f"v_max3_f32 v{mx+qb}, v{mx+qb}, {a[2]}, {a[3]}"]
    q += L(f"s_add_u32 s{sU}, s{sU}, 16384\ns_cmp_lt_u32 s{sU}, s{SA+2}\ns_cbranch_scc1 {FL}")
    q += xmax()
    q += [f"v_mov_b32 v{mt+qb}, v{mx+qb}" for qb in range(4)] + att_scalars()
    q.append(f"s_branch {START}")
    g.emit(q)
    g.ool += g.p.l; main.uid = g.p.uid + 1000; g.p = main
    setst(es)

def phase5(g):
    p = g.p
    vD = 184
    sCnt = 70
    CO = [4, 5, 6, 7, 0, 1, 2, 3]
    def acc(rb, cb): return R("v", 24 + 32*rb + 4*cb)
    def fw(j, s): return R("a", 144 + 8*j + 4*s)
    def wread(sl, j, slot=None):
        win, off = ((0, 32768), (1, 0), (1, 32768), (0, 0), (2, 0))[sl]
        return [f"ds_read_b64_tr_b16 {fw(j if slot is None else slot, s)[2*i:2*i+2]}, v{vD + 8*win + CO[j]} offset:{off + s*8192 + i*4096}" for s in range(2) for i in range(2)]
    NPRE = 3
    q = [f"v_xor_b32 v{vD+n}, {32*n}, v18" for n in CO[:NPRE]]
    for j in range(NPRE): q += wread(0, j)
    q += [f"v_xor_b32 v{vD+n}, {32*n}, v18" for n in CO[NPRE:]] + g.fbcheck
    g.emit(q)
    BP = 40
    xs = L(f"""s_xor_b32 s{t0_}, s2, 1
          s_lshl2_add_u32 s{t0_}, s{t0_}, s{sW}
          s_lshl_b32 s73, s{t0_}, 12
          s_add_u32 s73, s73, {WS_XCH}
          s_lshl2_add_u32 s{t0_}, s2, s{sW}
          s_lshl_b32 s75, s{t0_}, 12
          s_add_u32 s75, s75, {WS_XCH}
          s_lshl_b32 s77, s{sR5}, 18
          s_lshl_b32 s{t0_}, s{sW}, 16
          s_add_u32 s77, s77, s{t0_}
          s_add_u32 s77, s77, s{sCol}
          s_lshl_b32 s{t0_}, s{sKh}, {9 if OPT.get("ci", 0) else 7}
          s_add_u32 s77, s77, s{t0_}
          v_lshlrev_b32 v1, 24, v0
          v_and_b32 v8, 7, v0
          v_lshlrev_b32 v8, 11, v8
          v_bfe_u32 v10, v0, 3, 1
          v_lshl_add_u32 v8, v10, 6, v8
          v_bfe_u32 v10, v0, 4, 1
          v_lshl_add_u32 v8, v10, 5, v8
          v_lshrrev_b32 v10, 5, v0
          v_lshl_add_u32 v8, v10, 4, v8
          v_add_u32 v2, s{sL5}, v{vL16}
          v_xor_b32 v3, 0x2000, v2
          v_mov_b32 v232, 0
          v_mov_b32 v233, 0
          v_mov_b32 v236, 0
          v_mov_b32 v237, 0
          v_and_b32 v9, 1, v0
          v_lshlrev_b32 v9, 4, v9
          v_mov_b32 v10, 0x3f80
          v_lshlrev_b32 v9, v9, v10
          v_lshrrev_b32 v10, 4, v0
          v_lshlrev_b32 v10, 1, v10
          v_bfe_u32 v11, v0, 1, 3
          v_xor_b32 v10, v10, v11
          v_subrev_u32 v11, 1, v10
          v_ashrrev_i32 v11, 31, v11
          v_and_b32 v234, v11, v9
          v_xor_b32 v10, 1, v10
          v_subrev_u32 v11, 1, v10
          v_ashrrev_i32 v11, 31, v11
          v_and_b32 v235, v11, v9""")
    def tmp(rb, c): return R("v", 200 + 16*rb + 4*c)
    G2 = OPT.get("g2", 1)
    def mfs(prs, czero):
        mf = []; dn = {}; k = 0
        for x, (sl, j) in enumerate(prs):
            for rb in snake(4, j + 1):
                for q_, s in enumerate(snake(2, k)):
                    mf.append(mfma(acc(rb, CO[j]), fw(x & 7, s), p5_ctx(sl, rb, s), 0 if (czero and x < 8 and q_ == 0) else None))
                k += 1; dn[(rb, CO[j])] = len(mf) - 1
        return mf, dn
    def pacer(S):
        def pace(items, lo, hi):
            its = []
            for k, (sal, d) in enumerate(items):
                x = lo + (k * (hi - lo)) // len(items)
                its.append(S.add("M", d, x, min(x + 2, S.n - 1), chain="ld", pre=sal, sep=2))
            return its[0]
        return pace
    def first(role):
        nb = NB0() if role == 0 else 8 - NB0()
        na4 = 4 if nb == 2 else 0
        ns = nb + na4
        sl = {3: [0, 1, 3], 4: [0, 1, 2, 3], 5: [0, 1, 2, 4, 3], 6: [0, 1, 3, 4, 2, 3]}[ns] + [0, 1, 2]
        S = Sched(mfs([(sl[st], j) for st in range(ns) for j in range(8)], True)[0]); pace = pacer(S)
        gs = 8 if G2 else 4
        def arel(k): return k - nb if (k < ns or not na4) else k - ns + gs
        def W(k): return p5_wdma(sl[k], k, SB) if k < nb else p5_wdma(sl[k], arel(k), SC)
        def C(k): return p5_cld(sl[k], k if k < nb else arel(k))
        sigst = OPT.get("sig%d" % role, 1)
        EG_ = OPT.get("eg%d" % role, role if nb > 2 else 0)
        swW = f"s_add_u32 s{sWo5}, s{sWo5}, {(4<<20) - NB0()*262144}"
        if nb == 2 and role: S.add("S", swW, -1, -1, chain="ld")
        for st in range(ns):
            g0 = 64 * st; B = g0 + BP; dr = sl[st + 3] == sl[st]
            for j in range(NPRE, 8):
                for r in wread(sl[st], j): S.add("T", r, max(g0 + 8*j - 30, g0), min(g0 + 8*j - 8, B - (5 if dr else 1)), chain="t")
            S.add("X", [f"WAITVM w5_{sl[st+1]}" + (",ctx" if st == sigst else "") + (" L" if dr else ""), "s_barrier"], B, B, chain="t")
            for j in range(NPRE):
                for r in wread(sl[st + 1], j): S.add("T", r, B + 1, min(g0 + 64 + 8*j - 8, g0 + 63), chain="t")
            na = 6 if (st == nb - 2 and not EG_) else 5
            gate = g.spin(19, SF, "s72", 0, 8 if G2 else 16) + [f"s_sub_u32 s{sCtx}, s{sCtx}, {128*8192 - role*(64*8192 - NB0()*32768)}"] + stamp(9) if st == nb - 1 - EG_ else None
            poll = f"buffer_load_dword v19, off, {srd(SF)}, s72 sc1"
            wr = W(2) if st == 0 else W(st + 2)[5:]
            if EG_:
                if gate: S.add("X", gate, g0, g0, chain="ld")
                pace(wr + C(st + 2), g0 + 2, B - 1)
                if st == nb - 3: S.add("M", poll, B - 1, B + 2, chain="ld")
            elif st == nb - 2:
                pace(wr, g0 + 2, g0 + 28)
                S.add("M", poll, g0 + 30, g0 + 36, chain="ld")
            elif st == nb - 1:
                S.add("X", gate, g0, g0, chain="ld")
                pace(C(nb) + W(nb + 1)[6:] + C(nb + 1), g0 + 2, B - 1)
            else: pace(wr + C(st + 2), g0 + 2, B - 1)
            if st + 3 == nb and role: S.add("S", swW, B - 1, B + 3, chain="ld")
            pace(W(st + 3)[:na], B + 5, g0 + 64)
            if st == sigst:
                pre, d = signal(SF, "s71", 0, "ctx")
                S.add("S", pre[0], B - 12, B - 4, chain="sig"); S.add("A", pre[1], B - 12, B - 1, chain="sig", sep=1)
                S.add("X", one_lane(d), B + 1, B + 1, chain="sig")
        EH = 64*sigst + BP - OPT.get("eh", 24)
        for k, fr in enumerate(g.epi):
            for c in fr: S.add("M" if c.startswith("buffer") else kind(c), c, 0, min(60, EH) if "a6" <= c.split()[-1][:2] <= "a9" and len(c.split()[-1]) == 3 else EH, chain="epi")
        fin = [f"s_mov_b32 s{sCnt}, {2 if na4 else 3}", f"s_mov_b32 s73, {1 if not G2 else -1 if na4 else 2}"]
        if na4: fin += [f"s_add_u32 s{sWo5}, s{sWo5}, {gs*262144}", f"s_add_u32 s{sCtx}, s{sCtx}, {gs*32768}"]
        for c in fin: S.add("S", c, S.n - 6, S.n, chain="ld")
        nb = ns
        for n in range(8): S.add("A", f"v_xor_b32 v{vD+8+n}, 0x10000, v{vD+n}", 0, BP - 1)
        if nb >= 5:
            for n in range(8): S.add("A", f"v_xor_b32 v{vD+16+n}, 0x18000, v{vD+n}", 64, 128)
        for c in [f"s_and_b32 s71, s{sH}, {4 if G2 else 0}", "s_lshl_b32 s71, s71, 5", f"s_add_u32 s71, s71, s{sSig}", "s_add_u32 s71, s71, 4096", f"s_add_u32 s72, s{sWt}, 4096"]: S.add("S", c, 4, 28, chain="sc")
        if not OPT.get("nocpf"):
            for k in range(3):
                pre, d = cpf("L_p5loop-L_pc+%d" % (4096*k)); x = 64*(nb - 2) + 18
                S.add("M", d, x + 3*k, x + 20, chain="cpf", pre=pre, sep=3)
        return S.run("p5first%d" % role)
    def body(kd):
        prs = [(st, j) for st in range(4) for j in range(8)]
        if kd == "last": prs = prs[:16] + [(2, j) for j in range(4)] + [(3, j) for j in range(4)] + [(2, j) for j in range(4, 8)] + [(3, j) for j in range(4, 8)]
        mf, dn = mfs(prs, False)
        S = Sched(mf); pace = pacer(S)
        for st in range(4):
            g0 = 64 * st; B = g0 + BP
            if kd == "last" and st >= 2:
                for x in range(8*st + (NPRE if st == 2 else 0), 8*st + 8):
                    if x == 20: S.add("X", ["WAITVM w5_3", "s_barrier"], g0 + 6, g0 + 6, chain="t")
                    for r in wread(prs[x][0], prs[x][1], x & 7): S.add("T", r, max(8*x - 30, 128), 8*x - 8, chain="t")
                continue
            for j in range(NPRE, 8):
                for r in wread(st, j): S.add("T", r, max(g0 + 8*j - 30, g0), min(g0 + 8*j - 8, B - 1), chain="t")
            S.add("X", [f"WAITVM w5_{(st+1)&3}", "s_barrier"], B, B, chain="t")
            for j in range(NPRE):
                for r in wread((st + 1) & 3, j): S.add("T", r, B + 1, min(g0 + 64 + 8*j - 8, g0 + 63), chain="t")
            def batch(x): return [] if (kd == "last" and x >= 4) else p5_wdma(x & 3, x & 3, SC) + p5_cld(x & 3, x & 3)
            if kd == "loop" and st == 2:
                if G2: S.add("X", g.spin(19, SF, "s72", 128, "s74"), g0, g0, chain="ld")
                for c in (f"s_lshl_b32 s75, s73, 17", f"s_add_u32 s{sCtx}, s{sCtx}, s75"): S.add("S", c, g0 - 20, g0 + 6, chain="ac")
            if batch(st + 2): pace(batch(st + 2)[5:], g0 + (3 if st == 2 else 1), B - 1)
            if kd == "loop" and st == 1:
                for c in (f"s_lshl_b32 s75, s73, 20", f"s_add_u32 s{sWo5}, s{sWo5}, s75", "s_lshr_b32 s74, s73, 28", "s_and_b32 s74, s74, 8"): S.add("S", c, g0 + 16, B, chain="ac")
                if G2: S.add("M", f"buffer_load_dword v19, off, {srd(SF)}, s72 offset:128 sc1", g0 - 1, g0, chain="pl")
            if batch(st + 3): pace(batch(st + 3)[:5], B + 3, g0 + 64)["prelo"] = B + 1
        if kd == "loop":
            for c in ([f"s_sub_u32 s73, 1, s73"] if G2 else []) + [f"s_sub_u32 s{sCnt}, s{sCnt}, 1", f"s_cmp_lg_u32 s{sCnt}, 0"]: S.add("S", c, 250, 256, chain="ld")
        if kd == "last":
            for c in xs + mk_srd(SE, sOUT, 4 << 20): S.add(kind(c), c, 108, 165, chain="x")
            for c in range(4):
                for rb in snake(2, c + 1):
                    S.add("M", f"ds_write_b128 v3, {acc(2 + rb, 4 + c)} offset:{rb*4096 + c*1024}", dn[(2 + rb, 4 + c)] + 7, dn[(2 + rb, 4 + c)] + 9, chain="x")
            S.add("X", ["s_waitcnt lgkmcnt(0)", "s_barrier"], 0, 204, chain="x", sep=3)
            for rb in range(2):
                for c in range(4): S.add("D", f"ds_read_b128 {tmp(rb, c)}, v2 offset:{rb*4096 + c*1024}", 0, 205 + 2*rb + (c >> 1), chain="x")["dd"] = True
            x = 210
            for rb in range(2):
                for c2 in range(2):
                    a, b = tmp(rb, 2*c2), tmp(rb, 2*c2 + 1); x += 8
                    for c in (2*c2, 2*c2 + 1):
                        for r in range(4): S.add("A", f"v_add_f32 {tmp(rb, c)[r]}, {tmp(rb, c)[r]}, {acc(rb, 4 + c)[r]}", 210, x - 1, chain="x")
                    for d_, src, r in ((0, a, 0), (1, a, 2), (2, b, 0), (3, b, 2)): S.add("A", f"v_cvt_pk_bf16_f32 {a[d_]}, {src[r]}, {src[r+1]}", 0, x - 1, chain="x")
                    S.add("M", f"buffer_store_dwordx4 {a}, v{vL16}, {srd(SD)}, s73 offen offset:{(2*rb + c2)*1024} {ST}", 0, x, chain="x", sep=1)
            for c in range(3):
                for rb in snake(2, c + 1):
                    S.add("M", f"ds_write_b128 v3, {acc(2 + rb, c)} offset:{32768 + rb*4096 + c*1024}", dn[(2 + rb, c)] + 7, chain="x")
        return S.run("p5" + kd)
    st0 = (list(g.lg), list(g.vm))
    p(f"s_cmp_eq_u32 s{sKh}, 0\ns_cbranch_scc1 L_p5f0")
    g.emit(first(1), 8, name="p5first1")
    ent = (list(g.lg), list(g.vm))
    main = g.p; g.p = P(); g.p.uid = main.uid + 1000
    g.p.label("L_p5f0"); g.lg, g.vm = st0
    g.emit(first(0), 8); g.p("s_branch L_p5join")
    def cregs(sl): return [(None, [(p5_ctx(sl, rb, s_).f, p5_ctx(sl, rb, s_).b + k) for k in range(4)]) for s_ in range(2) for rb in range(4)]
    ent = (None, cregs(0) + [("w5_1", [])] * 2 + cregs(1) + [("w5_2", [])] * 5)
    g.ool += g.p.l; main.uid = g.p.uid + 1000; g.p = main
    p.label("L_p5join")
    p(stamp(4))
    p(".p2align 3"); p.label("L_p5loop")
    pre_ = [([("a", 144 + 2*k), ("a", 145 + 2*k)], 0) for k in range(4 * NPRE)]
    g.lg = pre_; g.vm = ent[1]
    g.emit(body("loop"), 8)
    p("s_cbranch_scc1 L_p5loop")
    g.lg = pre_
    g.emit(stamp(3) + body("last") + stamp(10), 8, name="p5last")
    def rx(k): return R("v", 152 + 4*k)
    ldx = [f"buffer_load_dwordx4 {rx(k)}, v{vL16}, {srd(SD)}, s75 offen offset:{k*1024} sc1" for k in range(4)]
    q = ldx + ["s_nop 3"]
    for rb in range(2): q.append(f"ds_write_b128 v3, {acc(2 + rb, 3)} offset:{32768 + rb*4096 + 3*1024}")
    q += L(f"""s_mov_b32 s72, 0x20000
          s_waitcnt lgkmcnt(0)
          s_barrier""")
    for rb in range(2):
        for c in range(4): q.append(f"ds_read_b128 {acc(2 + rb, c)}, v2 offset:{32768 + rb*4096 + c*1024}")
    for rb in range(2):
        for c in range(4):
            for r in range(4): q.append(f"v_add_f32 {acc(rb, c)[r]}, {acc(rb, c)[r]}, {acc(2 + rb, c)[r]}")
    q += ["L_xchk:", "s_waitcnt vmcnt(0)", "v_max3_u32 v9, v152, v153, v154"] + [f"v_max3_u32 v9, v9, v{155+2*k}, v{156+2*k}" for k in range(6)]
    q += L("""v_max_u32 v9, v9, v167
          v_cmp_eq_u32 vcc, -1, v9
          s_cbranch_vccnz L_xretry
          L_xgo:""")
    g.ool += ["L_xretry:", "s_sub_u32 s72, s72, 1", "s_cbranch_scc1 L_xgo ;@nottaken"] + ldx + ["s_branch L_xchk"]
    SEL = R("v", 232, 6)
    q += [mfma(acc(rb, c), SEL[2:6] if c % 2 == 0 else SEL[0:4], rx(2*rb + (c >> 1))) for rb in range(2) for c in range(4)] + ["s_nop 1"]
    for rb in range(2):
        for c2 in range(2):
            a, b = acc(rb, 2*c2), acc(rb, 2*c2+1)
            q += L(f"""v_cvt_pk_bf16_f32 {a[0]}, {a[0]}, {a[1]}
                  v_cvt_pk_bf16_f32 {a[1]}, {a[2]}, {a[3]}
                  v_cvt_pk_bf16_f32 {a[2]}, {b[0]}, {b[1]}
                  v_cvt_pk_bf16_f32 {a[3]}, {b[2]}, {b[3]}""")
        a, b, t_ = acc(rb, 0), acc(rb, 2), acc(rb, 1)
        q += [f"v_permlane16_swap_b32 {a[0]}, {a[2]}", f"v_permlane16_swap_b32 {a[1]}, {a[3]}", f"v_permlane16_swap_b32 {b[0]}, {b[2]}", f"v_permlane16_swap_b32 {b[1]}, {b[3]}"]
        q += [f"v_mov_b32 {t_[r]}, {a[r]}" for r in range(4)]
        q += [f"v_mov_b32_dpp {a[r]}, {b[r]} row_ror:8 row_mask:0xf bank_mask:0xc" for r in range(4)]
        q += [f"v_mov_b32_dpp {b[r]}, {t_[r]} row_ror:8 row_mask:0xf bank_mask:0x3" for r in range(4)]
        q += [f"buffer_store_dwordx4 {a}, v8, {srd(SE)}, s77 offen {OPT.get('ost', 'sc1')}", "s_add_u32 s77, s77, 16384",
              f"buffer_store_dwordx4 {b}, v8, {srd(SE)}, s77 offen {OPT.get('ost', 'sc1')}", "s_add_u32 s77, s77, 16384"]
    if OPT.get("dbgt"):
        q += L(f"""s_waitcnt vmcnt(0)
            s_memtime s[70:71]
            s_memrealtime s[72:73]
            s_waitcnt lgkmcnt(0)
            s_sub_u32 s70, s70, s96
            s_sub_u32 s72, s72, s98
            v_mov_b32 v2, s70
            v_mov_b32 v3, s72
            s_lshl_b32 s70, s2, 3
            s_add_u32 s70, s70, 8
            s_lshl_b32 s71, s{sW}, 12
            s_add_u32 s70, s70, s71""") + mk_srd(SF, 94, 64) + [f"buffer_store_dwordx2 v[2:3], v1, {srd(SF)}, s70 offen"]
    q += stamp(11) + stamp_flush()
    g.emit(q, name="final")

def build():
    g = G(); p = g.p
    hdr = open("/code/" + NAME + ".s.ref").read()
    p.l += [l for l in hdr.split("\n") if l.startswith(";") and "@launch" not in l]
    p.l.append(f"; @launch grid=(256,1,1) block=(256,1,1) lds={LDS_BYTES}")
    k = NAME + "_kernel"
    p(f'.amdgcn_target "amdgcn-amd-amdhsa--gfx950"\n.text\n.globl {k}\n.p2align 8\n.type {k},@function'); p.label(k)
    gemm12(g); attention(g); phase5(g)
    p.label("L_end"); p("s_endpgm")
    p(g.ool)
    p.label("L_codeend")
    p('.section .rodata,"a"\n.p2align 6')
    p.l += f""".amdhsa_kernel {k}
  .amdhsa_next_free_vgpr 512
  .amdhsa_next_free_sgpr 102
  .amdhsa_accum_offset 256
  .amdhsa_group_segment_fixed_size 0
  .amdhsa_kernarg_size 104
  .amdhsa_user_sgpr_count 2
  .amdhsa_user_sgpr_kernarg_segment_ptr 1
  .amdhsa_system_sgpr_workgroup_id_x 1
.end_amdhsa_kernel""".split("\n")
    return p.text()

if __name__ == "__main__":
    out = sys.argv[1]
    for a in sys.argv[2:]:
        k, _, v = a.partition("=")
        OPT[k] = True if v == "" else (int(v) if v.lstrip("-").isdigit() else v)
    txt = build()
    if OPT.get("al"):
        from align import align
        txt, n_ = align(txt, OPT["al"]); print("widened", n_)
    import subprocess, re, os
    open("_sz.s", "w").write(txt.replace("NCHUNK", "100"))
    subprocess.check_call(["clang", "-x", "assembler", "-target", "amdgcn-amd-amdhsa", "-mcpu=gfx950", "-c", "_sz.s", "-o", "_sz.o"])
    sz = int(re.search(r"\.text\s+PROGBITS\s+\S+\s+\S+\s+(\S+)", subprocess.check_output(["llvm-readelf", "-S", "_sz.o"]).decode()).group(1), 16)
    nch = 0
    print("code bytes", sz, "file", len(txt))
    open(out, "w").write(txt.replace("NCHUNK", str(nch)))
```

```python
import re
from align import sizes
def pages(txt, sW, plan, half=None):
    lines = txt.split("\n")
    out = []
    for l in lines:
        t = l.strip()
        if t.startswith(";@touch"):
            k = t.split()[1]
            def four(o):
                r = []
                for w in range(3): r += [f"s_cmp_eq_u32 s{sW}, {w}", f"s_cbranch_scc1 @F{k}_{o + w}@"]
                return r + [f"s_branch @F{k}_{o + 3}@"]
            if half is None: out += four(0)
            else: out += [f"s_bitcmp1_b32 s2, {half}", f"s_cbranch_scc1 L_th{k}"] + four(0) + [f"L_th{k}:"] + four(4)
            out += [f"L_tr{k}:"]
        else: out.append(l)
    lines = out
    def isins(t): return t and not t.startswith((";", ".")) and not re.match(r"^[\w.]+:", t)
    probe = re.sub(r"@F\w+@", "L_end", "\n".join(lines)).replace(".p2align 12\n", "")
    sz = sizes(probe)
    res = []; k = 0; intext = False; pos = None; batch = -1; stubs = []; pending = False; prev_m = False; nst = 0
    def stub(b, fall):
        nonlocal nst
        nst += 1; stubs.append((b, f"L_pg{nst}"))
        if fall: return [f"s_branch L_po{nst}", f"L_pg{nst}:", f"s_branch @N{nst}@", f"L_po{nst}:"], 8
        return [f"L_pg{nst}:", f"s_branch @N{nst}@"], 4
    page = 0
    for idx, l in enumerate(lines):
        t = l.strip()
        if t.startswith(".text"): intext = True
        if t.startswith(".section"): intext = False
        if t.startswith(";@base"): pos = 0; page = 0
        if t.startswith(";@batch"): batch = int(t.split()[1])
        if t.startswith(";@palign"):
            res.append(".p2align 12"); pos = (pos + 4095) // 4096 * 4096; page = pos // 4096; pending = False
            if batch >= 0:
                o, n = stub(batch, False); res += o; pos += n
            continue
        if t.startswith(";@stub"):
            f = t.split(); o, n = stub(int(f[1]), len(f) > 2); res += o
            if pos is not None: pos += n
            continue
        if intext and isins(t):
            s = sz[k][1]; k += 1
            if pos is not None:
                if pos // 4096 > page: page = pos // 4096; pending = batch >= 0
                if pending and (prev_m or pos % 4096 + s > 40):
                    o, n = stub(batch, True); res += o; pos += n; pending = False
                pos += s
            prev_m = t.startswith(("v_mfma", "v_smfmac"))
        res.append(l)
    txt = "\n".join(res)
    grp = {}
    for b, x in stubs: grp.setdefault(b, []).append(x)
    info = {b: len(v) for b, v in grp.items()}
    for site, takes in plan.items():
        ls = []
        for b, n in takes: ls += grp.get(b, [])[:n]; grp[b] = grp.get(b, [])[n:]
        nw = 4 if half is None else 8
        for w in range(nw):
            ch = ls[w::nw]
            txt = txt.replace(f"@F{site}_{w}@", ch[0] if ch else f"L_tr{site}")
            for a, nx in zip(ch, ch[1:] + [f"L_tr{site}"]): txt = txt.replace(f"@N{a[4:]}@", nx)
    assert not any(grp.values()), grp
    assert "@F" not in txt and "@N" not in txt
    return txt, info
```

```python
import sys, math, struct
from genlib import P, R, mfma
from sched import Sched, resolve

NAME = "gated_mix__compressed_kv_cla__sliding_local_dilated__prompt"
WS_HALO = 58 << 20
WS_KV, WS_CTX, WS_G, WS_CNT, WS_INBOX, WS_XCH, WS_STAMP = 0, 32 << 20, 56 << 20, 57 << 20, (57 << 20) + 65536, 64 << 20, 96 << 20
LDS_BYTES = 160 * 1024
def f32(x): return "0x%08x" % struct.unpack("<I", struct.pack("<f", x))[0]
QSCALE = 128 ** -0.5 * math.log2(math.e)
BSCALE = 32 ** -0.5 * math.log2(math.e)
LTHR = 2.0 ** 60

sX, sC, sWQ, sWUK, sWUV, sWOA, sWQKV, sWOB, sGATE, sOUT, sDBG, sWS = 4, 6, 8, 10, 12, 14, 18, 20, 22, 24, 26, 28
sW, sH, sJ = 30, 31, 3
SA, SB, SC, SD, SE, SF, SG, SH = 32, 36, 40, 44, 48, 52, 56, 60
sT, sT2, sBHi = 64, 65, 16
t0_, t1_, t2_, t3_ = 66, 67, 68, 69
def srd(b): return f"s[{b}:{b+3}]"
OPT = dict(stamps=False)
ST = "sc1" if "x_plain" not in sys.argv else ""

vDX, vDQ, vGX, vGW, vL16, vDH, vDB, vDBH, vGH, vGB = 2, 4, 12, 14, 16, 17, 19, 21, 22, 23
vQ, vG = 24, 4
aONE, aDUM = 251, 252
ONES = R("a", 244)
ONES2, vIDX = R("a", 240), 5
MSK = [0, 4, 6, 8, 10, 12, 18, 22, 26, 56, 58, 60, 62, 48, 50, 100]
def msk(k): return f"s[{MSK[k]}:{MSK[k]+1}]"
def kind(c): return "S" if c.startswith("s_") else ("E" if c.startswith(("v_exp", "v_rcp")) else "A")

def L(s): return [x.strip() for x in s.strip().split("\n") if x.strip()]
def mk_srd(b, ptr, nbytes, off=None):
    if off is None: o = [f"s_mov_b32 s{b}, s{ptr}", f"s_mov_b32 s{b+1}, s{ptr+1}"]
    else: o = [f"s_add_u32 s{b}, s{ptr}, {off}", f"s_addc_u32 s{b+1}, s{ptr+1}, 0"]
    return o + [f"s_mov_b32 s{b+2}, {nbytes}", f"s_mov_b32 s{b+3}, 0x20000"]

NST = [0]
def stamp(idx):
    if not OPT["stamps"]: return []
    return L(f"""s_waitcnt lgkmcnt(0)
        s_memtime s[92:93]
        s_memrealtime s[94:95]
        v_accvgpr_write_b32 a253, v1
        v_accvgpr_read_b32 v1, a249
        s_waitcnt lgkmcnt(0)
        v_writelane_b32 v1, s92, {2*idx}
        v_writelane_b32 v1, s94, {2*idx+1}
        v_accvgpr_write_b32 a249, v1
        v_accvgpr_read_b32 v1, a253
        s_nop 1""")
def stamp_flush():
    if not OPT["stamps"]: return []
    return L(f"""s_lshl_b32 s96, s2, 2
        s_add_u32 s96, s96, s{sW}
        s_lshl_b32 s96, s96, 8
        s_add_u32 s96, s96, {WS_STAMP}
        v_lshlrev_b32 v1, 2, v0
        buffer_store_dword a249, v1, {srd(SD)}, s96 offen
        s_waitcnt vmcnt(0)""")

class G:
    def __init__(self):
        self.p = P(); self.lg = []; self.vm = []; self.ool = []
    def emit(self, seq, eager=0, name=None):
        if name: self.p.l.append(";@seg " + name)
        out, self.lg, self.vm = resolve(seq, self.lg, self.vm, eager)
        self.p(out)
    def spin(self, vreg, srdb, soff, imm, target):
        st, bk, lp = self.p.new("spin"), self.p.new("spinbk"), self.p.new("spinlp")
        self.ool += L(f"""{st}:
            s_mov_b32 vcc_hi, 0x80000
            {lp}:
            s_sleep 1
            buffer_load_dword v{vreg}, off, {srd(srdb)}, {soff} offset:{imm} sc1
            s_waitcnt vmcnt(0)
            v_readfirstlane_b32 vcc_lo, v{vreg}
            s_sub_u32 vcc_hi, vcc_hi, 1
            s_cbranch_scc1 {bk} ;@nottaken
            s_cmp_lt_u32 vcc_lo, {target}
            s_cbranch_scc1 {lp} ;@nottaken
            s_branch {bk}""")
        return L(f"""v_readfirstlane_b32 vcc_lo, v{vreg}
            s_nop 0
            s_cmp_lt_u32 vcc_lo, {target}
            s_cbranch_scc1 {st}
            {bk}:""")

sLH = 78
def cpf(expr):
    return ([f"s_add_u32 s17, s{sLH}, {expr}"], f"buffer_load_dword a{aDUM}, v{vL16}, s[88:91], s17 offen ;@dummy")
def one_lane(d): return ["s_mov_b64 exec, 1", d, "s_mov_b64 exec, -1"]
def signal(srdb, soff, imm, tags):
    return ([f"s_lshl_b32 s{t0_}, s{sW}, 30", f"v_lshl_add_u32 v1, v0, 24, s{t0_}"],
            f"buffer_atomic_add a{aONE}, v1, {srd(srdb)}, {soff} offen offset:{imm} sc1 ;@sig=wg:{tags}")

def TSITES(): return [int(x) for x in str(OPT.get("ts", 20)).split("_")]
def snake(n, k): return list(range(n)) if k % 2 == 0 else list(range(n - 1, -1, -1))

def aq(db, rb): return R("v", (vQ if db % 2 == 0 else 88) + 16 * rb + 4 * (db // 2))
def bt(part, db, rb): return R("v", 152 + 32 * part + 8 * rb + 4 * db)
HK, HV = R("v", 248), R("v", 252)
P2ORD = [10, 11, 12, 13, 8, 9, 0, 1, 2, 3, 4, 5, 6, 7]
def p2tile(cb, rb):
    if cb < 8: return aq(cb, rb)
    if cb < 14: return bt((cb - 8) >> 1, cb & 1, rb)
    return HK if cb == 14 else HV

def gemm12(g):
    p = g.p
    sCo, sWo, sXlo, sXhi, sXh, sBo, sLX, sLW, sKV, sPF = 70, 71, 72, 73, 74, 75, 76, 77, 79, 80
    NR = 6
    def fx(sg, rb, s): return R("a", 32 * (sg & 1) + 8 * rb + 4 * s) if rb < 4 else R("a", 64 + 4 * s)
    ES = OPT.get("es", 1)
    def fw(J, s): return R("a", 176 + 8 * J + 4 * s) if (ES and J < 2) else R("a", 72 + 8 * (J % NR) + 4 * s)
    def stash(i): return R("a", 144 + 4 * i)
    GA = 144
    def order(sg):
        o = []; k = 0
        for j, cb in enumerate(range(16) if sg < 8 else P2ORD):
            if sg >= 8 and cb >= 14: o.append((j, cb, 4))
            else:
                o += [(j, cb, rb) for rb in snake(4, k)]; k += 1
        return o
    o1, o2 = order(0), order(8)
    pos1 = {(cb, rb): k for k, (j, cb, rb) in enumerate(o1)}
    def treg(k): return p2tile(o2[k][1], o2[k][2]) if k < 56 else (HK, HV)[k - 56] if k < 58 else R("a", 120 + 4 * (k - 58))
    def Jx(sg, j): return 16 * sg + j if sg < 8 else 128 + 14 * (sg - 8) + j
    p("s_cmp_ge_u32 s2, 256\ns_cbranch_scc1 L_end")
    p("s_load_dwordx16 s[4:19], s[0:1], 0\ns_load_dwordx8 s[20:27], s[0:1], 64\ns_load_dwordx2 s[28:29], s[0:1], 96")
    if OPT["stamps"] or OPT.get("dbgt"): p("s_memtime s[96:97]\ns_memrealtime s[98:99]")
    if OPT.get("dbgt"): p("s_load_dwordx2 s[94:95], s[0:1], 88")
    p("s_getpc_b64 s[88:89]"); p.label("L_pc")
    p(f"""v_lshrrev_b32 v1, 6, v0
          s_lshr_b32 s{t1_}, s2, 3
          v_lshl_add_u32 v24, s{t1_}, 2, v1
          s_mov_b32 s90, L_codeend-L_pc
          s_mov_b32 s91, 0x20000
          v_and_b32 v25, 7, v0
          v_lshlrev_b32 v25, 7, v25
          v_lshl_add_u32 v24, v24, 10, v25
          buffer_load_dword a{aDUM}, v24, s[88:91], 0 offen ;@dummy
          v_and_b32 v0, 63, v0
          v_readfirstlane_b32 s{sW}, v1 ;@val=wave
          v_lshrrev_b32 v24, 3, v0
          v_lshrrev_b32 v25, 4, v0
          v_and_b32 v26, 7, v0
          v_xor_b32 v26, v26, v25
          v_lshlrev_b32 v26, 4, v26
          v_lshl_add_u32 v{vGX}, v24, 10, v26
          v_xor_b32 v{vGX+1}, 64, v{vGX}
          v_bfe_u32 v26, v0, 1, 3
          v_xor_b32 v26, v26, v25
          v_lshlrev_b32 v26, 5, v26
          v_and_b32 v24, 1, v0
          v_lshl_add_u32 v26, v24, 4, v26
          v_lshl_add_u32 v{vGW}, v25, 13, v26
          v_xor_b32 v{vGW+1}, 128, v{vGW}
          s_and_b32 s{t0_}, s2, 7
          s_and_b32 s{t2_}, s{t1_}, 3
          s_lshl2_add_u32 s{sH}, s{t0_}, s{t2_}
          s_cmp_eq_u32 s{t2_}, 0
          {"s_cselect_b32 s90, s90, 0" if OPT.get("c4", 1) else ""}
          s_lshr_b32 s{sJ}, s{t1_}, 2
          s_lshl2_add_u32 s{sPF}, s{t1_}, s{sW}
          s_lshl_b32 s{sCo}, s{sJ}, 18
          s_lshl_b32 s{t0_}, s{sW}, 16
          s_add_u32 s{sCo}, s{sCo}, s{t0_}
          s_lshl_b32 s{sWo}, s{sW}, 17
          s_lshl_b32 s{t0_}, s{sH}, 8
          s_add_u32 s{sWo}, s{sWo}, s{t0_}
          {f"s_xor_b32 s{t2_}, s{t2_}, 1" if OPT.get("x_h1") else ""}
          {f"s_min_u32 s{t2_}, s{t2_}, 1" if OPT.get("x_h1") else ""}
          {f"s_xor_b32 s{t2_}, s{t2_}, 1" if OPT.get("x_h1") else ""}
          {f"s_mul_i32 s{t2_}, s{t2_}, 128" if OPT.get("x_h1") else ""}
          {f"s_sub_u32 s{sWo}, s{sWo}, s{t2_}" if OPT.get("x_h1") else ""}
          s_lshl_b32 s{sLX}, s{sW}, 13
          s_lshl_b32 s{sLW}, s{sW}, 12
          s_lshl_b32 s{sLH}, s{sW}, 10
          {";@touch 9" if OPT.get("na", 4) and OPT.get("pg", 1) else ""}
          s_waitcnt lgkmcnt(0)""")
    if OPT.get("pst"): p("s_memtime s[84:85]\ns_memrealtime s[86:87]")
    p(mk_srd(SA, sC, 2 << 20) + mk_srd(SB, sWUK, 4 << 20) + mk_srd(SC, sWUV, 4 << 20))
    def xdma(sg):
        par = sg & 1; d = []
        for i in range(8 if not (OPT.get("x_nox") and sg > 9) else 1):
            if sg < 8: so, sr = f"s_xor_b32 s{sT}, s{sCo}, {sg*128 + i*8192}", SA
            else: so, sr = f"s_xor_b32 s{sT}, s{sXlo if i < 4 else sXhi}, {(sg-8)*128 + ((i>>1)&1)*64*2048 + (i&1)*16384}", SE
            d.append(([f"s_xor_b32 m0, s{sLX if sg == 0 else 84}, {par*32768 + i*1024}", so], f"buffer_load_dwordx4 v{vGX + (i&1)}, {srd(sr)}, s{sT} offen lds ;@tag=x{sg}"))
        return d
    def wdma(sg):
        d = []; B = 65536 + (sg % 3) * 32768
        for kv in range(2 if sg < 8 else 1):
            for i in range(4):
                st = sg if sg < 8 else sg - 8
                d.append(([f"s_xor_b32 m0, s{sLW}, {B + kv*16384 + i*1024}", f"s_xor_b32 s{sT}, s{sWo}, {st*64*8192 + i*32768}"],
                          f"buffer_load_dwordx4 v{vGW + (i>>1)}, {srd((SB, SC)[kv] if sg < 8 else SG)}, s{sT} offen lds ;@tag=w{sg}"))
        if sg >= 8:
            for pp in range(3):
                d.append(([f"s_add_u32 m0, s{sLH}, {B + 16384 + pp*4096}", f"s_add_u32 s{sT}, s{sBo}, {(sg-8)*64*6144 + pp*2048}"],
                          f"buffer_load_dwordx4 v{vGB}, {srd(SH)}, s{sT} offen lds ;@tag=w{sg}"))
            d = [d[k] for k in (0, 4, 1, 5, 2, 6, 3)]
            if sg > 10 and OPT.get("x_now") == 1: d = d[:1]
            if sg > 10 and OPT.get("x_now") == 2: d = d[::2]
        return d
    seq = []
    x0, w0 = xdma(0), wdma(0)
    b0, b1 = (x0[:4] + w0[:4], x0[4:] + w0[4:]) if ES else (x0 + w0, [])
    for sal, d in b0: seq += sal + [d.replace("@tag=w0", "@tag=a0") if ES else d]
    if OPT.get("cpre") == 2: seq += [f"s_lshl2_add_u32 s84, s2, s{sW}", "s_lshl_b32 s84, s84, 11", "v_lshlrev_b32 v22, 5, v0", f"buffer_load_dword a{aDUM}, v22, {srd(SA)}, s84 offen ;@dummy"]
    seq += mk_srd(SD, sWS, 128 << 20) + mk_srd(SE, sX, 4 << 20) + mk_srd(SF, sDBG, 256) + mk_srd(SG, sWQ, 8 << 20) + mk_srd(SH, sWQKV, 6 << 20)
    seq += [f"v_accvgpr_write_b32 a{aONE}, 1"]
    if OPT["stamps"]: seq += ["v_mov_b32 v30, 0", "v_writelane_b32 v30, s96, 60", "v_writelane_b32 v30, s98, 61", "s_getreg_b32 s96, hwreg(HW_REG_XCC_ID)", "v_writelane_b32 v30, s96, 62"] + (["s_waitcnt lgkmcnt(0)", "v_writelane_b32 v30, s84, 58", "v_writelane_b32 v30, s86, 59", "v_writelane_b32 v30, s100, 56", "v_writelane_b32 v30, s0, 57"] if OPT.get("pst") else []) + [ "v_accvgpr_write_b32 a249, v30"] + stamp(0)
    seq += L(f"""v_and_b32 v24, 15, v0
          v_lshrrev_b32 v26, 1, v24
          v_xor_b32 v26, v26, v25
          v_lshlrev_b32 v26, 4, v26
          v_lshl_add_u32 v26, v24, 7, v26
          v_add_u32 v{vDX}, s{sLX}, v26
          v_xor_b32 v{vDX+1}, 64, v{vDX}
          v_bfe_u32 v24, v0, 2, 2
          v_lshl_add_u32 v27, v25, 3, v24
          v_and_b32 v1, 3, v0
          v_cmp_eq_u32 vcc, 0, v1
          v_lshlrev_b32 v1, 3, v1
          v_lshl_add_u32 v26, v27, 8, v1
          v_add_u32 v26, 65536, v26
          v_and_b32 v1, 1, v25
          v_lshl_add_u32 v24, v1, 2, v24
          v_lshlrev_b32 v{vL16}, 4, v0
          v_mov_b32 v28, 0x3f803f80
          v_cndmask_b32 v28, 0, v28, vcc""")
    seq += [f"v_accvgpr_write_b32 {ONES[r]}, v28" for r in range(4)]
    for n in range(8): seq += [f"v_xor_b32 v1, {n}, v24", f"v_lshl_add_u32 v{vDQ+n}, v1, 5, v26"]
    seq += L(f"""s_sub_u32 s{sBHi}, 15, s{sJ}
          s_lshl_b32 s{sXlo}, s{sJ}, 18
          s_lshl_b32 s{sXhi}, s{sBHi}, 18
          s_cmp_lt_u32 s{sW}, 2
          s_cselect_b32 s{t1_}, s{sJ}, s{sBHi}
          s_lshl4_add_u32 s{sXh}, s{sH}, s{t1_}
          s_and_b32 s{t0_}, s{sW}, 1
          s_lshl1_add_u32 s{sXh}, s{sXh}, s{t0_}
          s_lshl_b32 s{sXh}, s{sXh}, 10
          s_add_u32 s{sXh}, s{sXh}, {WS_HALO}
          s_lshl_b32 s{t0_}, s{sW}, 15
          s_add_u32 s{sXlo}, s{sXlo}, s{t0_}
          s_add_u32 s{sXhi}, s{sXhi}, s{t0_}
          s_mul_i32 s{sBo}, s{sW}, {16*6144}
          s_lshl_b32 s{t0_}, s{sH}, 6
          s_add_u32 s{sBo}, s{sBo}, s{t0_}
          s_lshl_b32 s{sKV}, s{sH}, 20
          s_lshl_b32 s{t0_}, s{sJ}, 17
          s_add_u32 s{sKV}, s{sKV}, s{t0_}
          s_lshl_b32 s{t0_}, s{sW}, 15
          s_add_u32 s{sKV}, s{sKV}, s{t0_}
          v_bfe_u32 v{vGB}, v0, 1, 1
          v_lshrrev_b32 v1, 5, v0
          v_xor_b32 v{vGB}, v{vGB}, v1
          v_lshlrev_b32 v{vGB}, 5, v{vGB}
          v_and_b32 v1, 1, v0
          v_lshl_add_u32 v{vGB}, v1, 4, v{vGB}
          v_lshrrev_b32 v1, 2, v0
          v_mul_u32_u24 v1, 6144, v1
          v_add_u32 v{vGB}, v1, v{vGB}
          s_lshl_b32 s81, s{sPF}, 13
          s_and_b32 s{t1_}, s2, 7
          s_lshl_b32 s82, s{t1_}, 8
          s_add_u32 s82, s82, s81
          s_lshl_b32 s{t1_}, s{t1_}, 10
          s_add_u32 s81, s81, s{t1_}
          s_add_u32 s83, s81, {1<<20}
          v_mul_u32_u24 v1, 1792, v25
          v_add_u32 v1, v1, v{vL16}
          s_lshl_b32 s{t2_}, s2, 3
          s_lshl1_add_u32 s{t2_}, s{sW}, s{t2_}
          v_lshrrev_b32 v18, 5, v0
          v_add_u32 v18, s{t2_}, v18
          v_and_b32 v19, 31, v0
          v_lshlrev_b32 v19, 4, v19
          v_lshl_add_u32 v18, v18, 11, v19
          v_mov_b32 v21, 0
          v_min_u32 v20, 1, v0
          v_lshlrev_b32 v20, 30, v20
          v_accvgpr_write_b32 a240, -1
          v_accvgpr_write_b32 a241, -1
          v_accvgpr_write_b32 a242, -1
          v_accvgpr_write_b32 a243, -1
          s_lshr_b32 s{t3_}, s2, 7
          s_or_b32 s{t3_}, s{t3_}, s{sW}
          s_lshl_b32 s{t3_}, s{t3_}, 21
          s_add_u32 s{t3_}, s{t3_}, s2
          s_lshl_b32 s{t3_}, s{t3_}, 7
          s_add_u32 s{t3_}, s{t3_}, {WS_CNT}""")
    def xread(sg): return [f"ds_read_b128 {fx(sg, rb, s)}, v{vDX+s} offset:{(sg&1)*32768 + rb*2048}" for rb in range(4) for s in range(2)]
    def hread(sg): return [f"ds_read_b128 {fx(sg, 4, s)}, v{vDH+s} offset:{min(sg % 3, 1)*32768}" for s in range(2)]
    def wread(sg, j):
        par = min(sg % 3, 1); o = []; cb = j if sg < 8 else P2ORD[j]
        for s in range(2):
            for i in range(2):
                if sg < 8 or cb < 8: a, off = vDQ + (cb & 7), par*32768 + (cb >> 3)*16384 + s*8192 + i*1024
                elif cb < 14: a, off = vDB + (cb & 1), par*32768 + ((cb-8) >> 1)*4096 + s*2048 + i*256
                else: a, off = vDBH, par*32768 + (cb-13)*4096 + s*2048 + i*256
                o.append((a, f"ds_read_b64_tr_b16 {fw(Jx(sg, j), s)[2*i:2*i+2]}, v{a} offset:{off}"))
        return o
    if OPT.get("pg", 1): seq += [";@touch 0", "s_branch L_base", ".p2align 12", ";@base", ";@batch 0", ";@stub 0", "L_base:"]
    if OPT.get("pst"): seq += stamp(26)
    def wpf(sr): return f"buffer_load_dword a{aDUM}, v{vL16}, {srd(sr)}, s83 offen ;@dummy"
    P1PF = OPT.get("p1pf", 0)
    if P1PF == 2: seq += [wpf(SB), wpf(SC)]
    LATE, WD = OPT.get("late1", 1), OPT.get("wd", 3)
    for sal, d in b1 + ([] if ES else xdma(1) + wdma(1) if LATE == 0 else wdma(1) if LATE == 1 else []): seq += sal + [d]
    if ES: LATE = 2
    RX, RW = OPT.get("rx", 3), OPT.get("rw", 7)
    assert ES
    seq += L(f"""s_and_b32 s{t0_}, s{sH}, {RX}
          s_lshl_b32 s{t1_}, s{t0_}, 11
          s_add_u32 s84, s{sLX}, s{t1_}
          s_lshl3_add_u32 s{sCo}, s{t1_}, s{sCo}
          s_and_b32 s{t1_}, s{t0_}, 1
          s_lshl_b32 s{t1_}, s{t1_}, 17
          s_add_u32 s{sXlo}, s{sXlo}, s{t1_}
          s_add_u32 s{t1_}, s{sXhi}, s{t1_}
          s_bitcmp1_b32 s{t0_}, 1
          s_cselect_b32 s{sXhi}, s{sXlo}, s{t1_}
          s_cselect_b32 s{sXlo}, s{t1_}, s{sXlo}
          s_and_b32 s{t0_}, s{sJ}, {RW & 3}
          s_lshl_b32 s{t1_}, s{t0_}, 10
          s_add_u32 s{sLW}, s{sLW}, s{t1_}
          s_lshl_b32 s{t1_}, s{t0_}, 15
          s_add_u32 s{sWo}, s{sWo}, s{t1_}
          s_and_b32 s{t1_}, s{t0_}, 2
          s_lshl_b32 s{t1_}, s{t1_}, 6
          v_xor_b32 v{vGW}, s{t1_}, v{vGW}
          v_xor_b32 v{vGW+1}, s{t1_}, v{vGW+1}
          s_and_b32 s{t0_}, s{sJ}, {RW & 4}
          s_cselect_b64 s[{SB}:{SB+1}], s[{sWUV}:{sWUV+1}], s[{sWUK}:{sWUK+1}]
          s_cselect_b64 s[{SC}:{SC+1}], s[{sWUK}:{sWUK+1}], s[{sWUV}:{sWUV+1}]
          s_lshl_b32 s{t0_}, s{t0_}, 12
          s_add_u32 s{sLW}, s{sLW}, s{t0_}""")
    if P1PF == 1: seq += [wpf(SB), wpf(SC)]
    cpf_c = [f"s_lshl2_add_u32 s84, s2, s{sW}", "s_lshl_b32 s84, s84, 11", "v_lshlrev_b32 v22, 5, v0", f"buffer_load_dword a{aDUM}, v22, {srd(SA)}, s84 offen ;@dummy"]
    if OPT.get("cpre") == 1: seq += cpf_c
    seq += ["WAITVM a0" if ES else "WAITVM w0,x0", "s_barrier"] + stamp(1)
    xr = xread(0); NPRE = 3
    seq += xr[:2] + [r for _, r in wread(0, 0)] + xr[2:4 if ES else 8]
    for j in range(1, NPRE): seq += [r for _, r in wread(0, j)]
    if OPT.get("pst"): seq += stamp(27)
    g.emit(seq)
    mf = []; G0 = []; FU = []; LU = []; done = {}
    for sg in range(24):
        G0.append(len(mf))
        oo = list(enumerate(o1 if sg < 8 else o2))
        if ES and sg == 0:
            oo = [(pos1[(cb, rb)], (cb, cb, rb)) for cb in range(8) for rb in snake(2, cb)] + \
                 [(pos1[(cb, rb + 2)], (cb, cb, rb + 2)) for cb in (2, 3, 4, 5, 6, 7, 0, 1) for rb in snake(2, cb)] + oo[32:]
        for k, (j, cb, rb) in oo:
            J = Jx(sg, j)
            if len(FU) == J: FU.append(len(mf)); LU.append(0)
            swap = (cb >= 8) if sg < 8 else (cb in (12, 13, 15))
            for q, s in enumerate(snake(2, k)):
                c0 = 0 if (q == 0 and sg in (0, 8)) else None
                mf.append(mfma(treg(k), fx(sg, rb, s), fw(J, s), c0) if swap else mfma(treg(k), fw(J, s), fx(sg, rb, s), c0))
            LU[J] = len(mf) - 1; done[(sg, cb, rb)] = len(mf) - 1
    G0.append(len(mf))
    S = Sched(mf)
    def pace(items, lo, hi, chain, slack=5):
        n = len(items)
        for q, (sal, d) in enumerate(items):
            x = lo + int(q * (hi - lo) / n)
            it = S.add("M", d, x, x + slack, chain=chain, sep=3, pre=sal)
            if q == 0: it["prelo"] = lo - 2
    def chain(txt, lo, hi=None, name=None, sep=1):
        for c in (L(txt) if isinstance(txt, str) else txt): S.add(kind(c), c, lo, hi, chain=name, sep=sep)
    BAR = {sg: G0[sg + 1] - 30 for sg in range(24)}; BAR[-1] = -1
    XW = 54
    IL = OPT.get("il", 0)
    gxupd = f"v_lshrrev_b32 v{vGX+1}, 3, v0\nv_lshl_add_u32 v{vGX}, v{vGX+1}, 10, v{vGX}\nv_xor_b32 v{vGX+1}, 64, v{vGX}"
    def mix(a, b): return [x for pr in zip(b, a) for x in pr]
    ini = (wdma(1) if LATE == 2 else []) + (xdma(1) if LATE else []) + (wdma(2) if WD == 3 else [])
    X0 = max(40, 2 + 3 * len(ini) + len(ini) // 2)
    if IL:
        ini = (xdma(1) if LATE else []) + mix(xdma(2), wdma(2)); X0 = BAR[0]
    if ES:
        E0_ = OPT.get("es0", 2); X0 = 70
        pace(wdma(1) + xdma(1), E0_, X0 - 2, "dma", slack=2)
    elif ini: pace(ini, 2, X0 - 2, "dma", slack=2)
    for sg in range(24):
        g0, nx, B = G0[sg], G0[sg + 1], BAR[sg]
        lastuse = {}
        for j in range(16 if sg < 8 else 14):
            J = Jx(sg, j)
            if J < NPRE: continue
            lo = max(LU[J - NR] if J >= (NR + 2 if ES else NR) else 0, BAR[sg - 1] + 1, FU[J] - 44)
            hi = FU[J] - (8 if J >= 8 or not ES else 6)
            if ES and J == 8:
                S.add("S", "WAITVM x0", OPT.get("esx", 22), OPT.get("esx", 22), chain="t")
                for r in xr[4:]: S.add("D", r, 0, 27, chain="t")["dd"] = True
                S.add("X", ["WAITVM w0", "s_barrier"], 38, 38, chain="t")
            if sg < 23: hi = min(hi, B - 5)
            for a, r in wread(sg, j): S.add("T", r, lo, hi, chain="t"); lastuse[a] = hi
        if sg < 23:
            if sg % 3:
                for r, lu in lastuse.items():
                    S.add("A", f"v_add_u32 v{r}, 0x8000, v{r}" if sg % 3 == 1 else f"v_subrev_u32 v{r}, 0x8000, v{r}", lu + 1, B - 1)
            blk = [f"WAITVM w{sg+1}" + (" L" if (WD == 3 or sg >= 21) else ""), "s_barrier"]
            TS = TSITES()
            if OPT.get("pg", 1) and sg in TS:
                blk = [f";@touch {TS.index(sg) + 1}"] + blk
                p0_ = OPT.get("na", 4) + OPT.get("n0", 8) + TS.index(sg) * OPT.get("n1", 4)
                if OPT.get("dp", 1):
                    for c in ("v_lshrrev_b32 v22, 2, v0", "v_mul_u32_u24 v22, 3584, v22", "v_lshl_add_u32 v22, v0, 7, v22"): S.add("A", c, g0 - 40, g0 - 24, chain="pgp")
                    S.add("M", f"buffer_load_dword a{aDUM}, v22, s[88:91], s17 offen ;@dummy", g0 - OPT.get("dpx", 24), g0 + 20, chain="pgp", sep=3,
                          pre=[f"s_lshr_b32 s17, s{sLH}, 1", f"s_add_u32 s17, s17, L_base-L_pc-4+{4096*p0_}"])
                else:
                    S.add("A", "v_lshlrev_b32 v22, 12, v0", g0 - 20, g0 - 4, chain="pgp")
                    S.add("M", f"buffer_load_dword a{aDUM}, v22, s[88:91], s17 offen ;@dummy", g0 - 10, g0 + 10, chain="pgp", sep=3, pre=["s_mov_b32 s17, L_base-L_pc"])
            if sg == 7: blk += stamp(2)
            if OPT.get("x_nop"): blk += [f"s_sleep {OPT['x_nop']}"]
            fine = (0, 1, 2, 3, 4, 5, 9, 11, 13, 15, 17, 19) if OPT.get("fine") != 2 else (15, 16, 17, 18, 19, 20, 21, 22)
            if OPT.get("fine") and sg in fine: blk += stamp(18 + fine.index(sg))
            S.add("X", blk, B, B)
            xw, xh = (g0 + XW, B - 5) if not (LATE and sg <= OPT.get("ramp", 0)) else (B + 8, nx - 8)
            S.add("S", f"WAITVM x{sg+1}", xw, xw, chain=("xn", sg))
            for q, r in enumerate(xread(sg + 1)): S.add("D", r, xw, xh, chain=("xn", sg))
        if IL:
            if sg == 5: chain(gxupd, B - 8, B + 2, name="dma", sep=0)
            if sg == 0 and LATE:
                pace(wdma(3), B + 3, nx + 30, "dma"); pace(xdma(3), nx + 32, BAR[1] - 2, "dma")
            elif sg + 3 < 24: pace(mix(xdma(sg + 3), wdma(sg + 3)), B + 5, BAR[sg + 1] - 2, "dma", slack=4)
            continue
        RP = OPT.get("ramp", 0)
        if ES and RP and sg <= RP:
            if sg == 0: pace(wdma(2), X0 + 10, nx + 10, "dma", slack=2); pace(xdma(2), nx + 12, nx + 50, "dma", slack=2); continue
            if sg < RP:
                pace(wdma(sg + 2), g0 + 56, nx - 10, "dma"); pace(xdma(sg + 2), nx - 8, nx + 50, "dma"); continue
            pace(wdma(sg + 2) + xdma(sg + 2), g0 + 54, nx - 6, "dma", slack=2); pace(wdma(sg + 3), nx - 4, nx + 38, "dma", slack=2)
            continue
        if ES and sg == 0:
            pace(wdma(2) + xdma(2), X0, nx + 2, "dma", slack=2); pace(wdma(3), nx + 4, nx + 38, "dma", slack=2)
            continue
        if sg + 2 < 24: pace(xdma(sg + 2), g0 + (40 if sg else X0), B - 2, "dma")
        if sg + WD == 8:
            for c in (f"s_and_b32 s{sLW}, s{sLW}, 0x3fff",): S.add("S", c, B - 4, B + 1, chain="dma")
        if sg + WD < 24: pace(wdma(sg + WD), B + 3, nx + 38, "dma")
    GS = OPT.get("gs", 44); lo = OPT.get("g0", 100)
    for i in range(4):
        S.add("M", f"global_load_dwordx4 a[{GA+4*i}:{GA+3+4*i}], v18, s[{sX}:{sX+1}] offset:{512*i}", lo + GS*i, lo + GS*i + 10, chain="gate")
        S.add("M", f"global_load_dwordx4 a[{GA+16+4*i}:{GA+19+4*i}], v19, s[{sGATE}:{sGATE+1}] offset:{512*i}", lo + GS*i + GS//2, lo + GS*i + GS//2 + 10, chain="gate")
    S.add("M", f"buffer_store_dword v21, v20, {srd(SD)}, s{t3_} offen {ST} ;@tag=z", G0[2] + 20, G0[2] + 40, chain="gate", sep=1)
    a0, a1, a2, a3, acc = 18, 19, 20, 21, 17
    ch = [f"v_mov_b32 v{acc}, 0"]
    for i in range(16):
        ch += L(f"""v_accvgpr_read_b32 v{a1}, a{GA+i}
            v_accvgpr_read_b32 v{a3}, a{GA+16+i}
            v_lshlrev_b32 v{a0}, 16, v{a1}
            v_and_b32 v{a1}, 0xffff0000, v{a1}
            v_lshlrev_b32 v{a2}, 16, v{a3}
            v_and_b32 v{a3}, 0xffff0000, v{a3}
            v_mul_f32 v{a0}, v{a0}, v{a2}
            v_mul_f32 v{a1}, v{a1}, v{a3}
            v_cvt_pk_bf16_f32 v{a0}, v{a0}, v{a1}
            v_lshlrev_b32 v{a1}, 16, v{a0}
            v_and_b32 v{a0}, 0xffff0000, v{a0}
            v_add_f32 v{acc}, v{acc}, v{a1}
            v_add_f32 v{acc}, v{acc}, v{a0}""")
    lo = G0[3]
    chain(ch, lo, name="gate", sep=0)
    chain([f"v_add_f32_dpp v{acc}, v{acc}, v{acc} row_ror:{r} row_mask:0xf bank_mask:0xf" for r in (8, 4, 2, 1)], lo, name="gate", sep=2)
    chain([f"v_mov_b32 v{a0}, v{acc}"], lo, name="gate", sep=0)
    chain([f"v_permlane16_swap_b32 v{a0}, v{acc}"], lo, name="gate", sep=2)
    chain(f"""v_add_f32 v{acc}, v{acc}, v{a0}
            v_cvt_pk_bf16_f32 v{acc}, v{acc}, v{acc}
            v_and_b32 v{acc}, 0xffff0000, v{acc}
            v_mul_f32 v{acc}, 0xbfb8aa3b, v{acc}
            v_exp_f32 v{acc}, v{acc}
            v_add_f32 v{acc}, 1.0, v{acc}
            v_rcp_f32 v{acc}, v{acc}
            v_cvt_pk_bf16_f32 v{a0}, v{acc}, v{acc}
            v_and_b32 v{a0}, 0xffff0000, v{a0}
            v_sub_f32 v{a1}, 1.0, v{a0}
            v_cvt_pk_bf16_f32 v{a1}, v{a1}, v{a1}
            v_and_b32 v{a1}, 0xffff0000, v{a1}
            v_and_b32 v{a2}, 31, v0
            v_lshlrev_b32 v{a2}, 27, v{a2}
            v_lshrrev_b32 v{a3}, 2, v0
            v_add_u32 v{a2}, v{a2}, v{a3}""", lo, name="gate")
    S.add("M", f"buffer_store_dwordx2 v[{a0}:{a1}], v{a2}, {srd(SD)}, s{sT2} offen {ST} ;@tag=z", lo, G0[6] + 30, chain="gate", sep=4,
          pre=[f"s_lshl2_add_u32 s{sT2}, s2, s{sW}", f"s_lshl4_add_u32 s{sT2}, s{sT2}, {WS_G}"])
    chain(f"""v_lshrrev_b32 v21, 4, v0
          v_bfe_u32 v{vDB}, v0, 2, 2
          v_lshl_add_u32 v{vDB}, v21, 3, v{vDB}
          v_lshlrev_b32 v{vDB}, 6, v{vDB}
          v_and_b32 v21, 1, v21
          v_lshl_add_u32 v{vDB}, v21, 5, v{vDB}
          v_and_b32 v21, 3, v0
          v_lshl_add_u32 v{vDB}, v21, 3, v{vDB}
          v_add_u32 v{vDB}, {98304 + 16384}, v{vDB}
          v_xor_b32 v{vDB+1}, 32, v{vDB}""", lo, G0[7] - 2, name="gate")
    if not IL: chain(gxupd, BAR[5] + 6, G0[6] + 30, name="gx", sep=0)
    if P1PF:
        for lo in (OPT.get("q1", 80), OPT.get("q2", 210)):
            S.add("M", wpf(SB), lo, lo + 10, chain="pf1", pre=[f"s_add_u32 s83, s83, {1<<20}"])
            S.add("M", wpf(SC), lo + 20, lo + 30, chain="pf1")
    if OPT.get("tlb"):
        sh = OPT["tlb"]
        S.add("A", f"v_lshlrev_b32 v22, {sh}, v0", 0, 10, chain="tlb")
        S.add("S", f"s_lshl_b32 s84, s{sPF}, {sh + 6}", 0, 12, chain="tlb")
        S.add("S", f"s_min_u32 s84, s84, 0x10000000", 0, 14, chain="tlb")
        S.add("M", f"buffer_load_dword a{aDUM}, v22, {srd(SD)}, s84 offen sc1 ;@dummy", 60, 70, chain="tlb")
    if not OPT.get("nopf"):
        P0, PS = OPT.get("p0", 280), OPT.get("ps", 32); order_ = "qkqkqqkqkqqkqk"
        for k, c in enumerate(order_):
            r = 81 if c == "q" else 82
            S.add("M", f"buffer_load_dword a{aDUM}, v{vL16 if c == 'q' else 1}, {srd(SG if c == 'q' else SH)}, s{r} offen ;@dummy", P0 + k*PS, P0 + k*PS + 16, chain="pf",
                  pre=[] if order_[:k].count(c) == 0 else [f"s_add_u32 s{r}, s{r}, {1<<20}"])
    if OPT.get("wo", "M") == "P":
        chain(mk_srd(84, sWOA, 8 << 20) + [f"s_lshl2_add_u32 s83, s2, s{sW}", "s_lshl_b32 s83, s83, 11", "v_lshlrev_b32 v22, 5, v0"], 20, 100, name="wp", sep=0)
        for k in range(4):
            x = OPT.get("wp0", 120) + k * OPT.get("wps", 144)
            S.add("M", f"buffer_load_dword a{aDUM}, v22, s[84:87], s83 offen ;@dummy", x, x + 10, chain="wp", pre=[f"s_add_u32 s83, s83, {2<<20}"] if k else [])
    n0 = G0[8]; frs = []
    for t in range(4):
        for rb in (3, 2, 1, 0): frs.append(((2*t, rb), (2*t + 1, rb), (rb >> 1)*16384 + (rb & 1)*4096 + t*1024))
    for db in range(8):
        for u in snake(2, db): frs.append(((8 + db, 2*u), (8 + db, 2*u + 1), u*16384 + 8192 + db*1024))
    ns = 0; later = []
    tmpA, tmpB = HK, HV
    for q, (ta, tb, off) in enumerate(frs):
        ka, kb = pos1[ta], pos1[tb]; A, B_ = treg(ka), treg(kb)
        lo = G0[7] + 2*max(ka, kb) + 1 + 8; hi = n0 + 2*min(ka, kb) - 1; hi2 = n0 + 2*max(ka, kb) - 3
        D_ = B_ if kb > ka else A
        ch = ("drain",)
        if min(ka, kb) >= 56: hi = hi2 = G0[10]
        if A.f == "a":
            for r in range(4): S.add("A", f"v_accvgpr_read_b32 {tmpA[r]}, {A[r]}", lo, hi, chain=ch, sep=2 if r == 0 else 0)
            for r in range(4): S.add("A", f"v_accvgpr_read_b32 {tmpB[r]}, {B_[r]}", lo, hi, chain=ch)
            A, B_ = tmpA, tmpB; D_ = B_
        direct = q % 4 == 0
        if direct: S.add("S", f"s_add_u32 s{t1_}, s{sKV}, {off}", lo - 2, hi, chain=ch)
        if D_ is B_: cv = ((3, B_, 2), (2, B_, 0), (0, A, 0), (1, A, 2))
        else: cv = ((0, A, 0), (1, A, 2), (2, B_, 0), (3, B_, 2))
        for d_, src, r in cv: S.add("A", f"v_cvt_pk_bf16_f32 {D_[d_]}, {src[r]}, {src[r+1]}", lo, hi, chain=ch)
        if direct and OPT.get("x_nodirect"): pass
        elif direct: S.add("M", f"buffer_store_dwordx4 {D_}, v{vL16}, {srd(SD)}, s{t1_} offen {OPT.get('kvst', ST).replace('+', ' ').replace('-', '')} ;@tag=kv", lo, hi2, chain=ch, sep=1)
        else:
            for r in range(4): S.add("A", f"v_accvgpr_write_b32 {stash(ns)[r]}, {D_[r]}", lo, hi2, chain=ch)
            later.append((ns, off)); ns += 1
    assert ns == 24 and pos1[frs[27][0]] in (54, 55) and pos1[frs[28][0]] in (56, 57), (pos1[frs[27][0]],)
    NSTG = OPT.get("nstg", 11); KVP = 21 if (NSTG <= 9 and WD == 3) else 22
    t_a, t_b = G0[9] + 2, BAR[8 + NSTG] - 14
    sts = [([f"s_add_u32 s{sT2}, s{sKV}, {off}"], f"buffer_store_dwordx4 {stash(i)}, v{vL16}, {srd(SD)}, s{sT2} offen {OPT.get('kvst', ST).replace('+', ' ').replace('-', '')} ;@tag=kv") for i, off in later]
    sts.append(([], f"buffer_store_dwordx4 a[240:243], v{vL16}, {srd(SD)}, s{sXh} offen {ST} ;@tag=kv"))
    for q, (pre, d) in enumerate(sts if not OPT.get("x_nost") else []):
        lo = t_a + (q * (t_b - t_a)) // (len(sts) - 1)
        S.add("M", d, lo - 6, lo, chain="kvst", sep=3, pre=pre)
    pre, d = signal(SF, f"s{t2_}", 0, "z")
    chain(pre + [f"s_lshr_b32 s{t0_}, s{sJ}, 1", f"s_lshl_b32 s{t0_}, s{t0_}, 12"], G0[7], BAR[7], name="sig")
    for k in range(4):
        lo = BAR[8 + k] + 20
        S.add("X", one_lane(d), lo, lo + 14, chain="sig", sep=3, pre=[f"s_xor_b32 s{t2_}, s{t0_}, {k << 12}"])
    E0 = max(NSTG + 7, 14)
    S.add("X", L(f"s_cmp_eq_u32 s{sW}, 0\ns_cselect_b32 s81, 256, 0"), G0[E0 - 1], G0[E0 - 1] + 40, chain="sig")
    S.add("M", f"buffer_load_dword v1, off, {srd(SF)}, s{sLH} sc1", BAR[E0 - 1] - 14, BAR[E0 - 1] - 8, chain="sig")
    S.add("X", g.spin(1, SF, f"s{sLH}", 0, "s81"), G0[E0] + XW + 12, G0[E0] + XW + 24, chain="sig")
    S.add("X", mk_srd(SF, sWS, 16384, WS_CNT)[:3], BAR[E0] - 4, BAR[E0] + 30, chain="sig")
    E1 = max(NSTG + 9, 16)
    pre, d = signal(SF, "s70", 0, "kv")
    chain(pre + [f"s_lshl_b32 s70, s{sH}, 8"], G0[E1], BAR[E1], name="sig")
    S.add("X", one_lane(d), BAR[E1] + 1, BAR[E1] + 12, chain="sig", sep=1)
    chain([f"s_lshl4_add_u32 s70, s{sLH}, s70", "s_lshr_b32 s81, s81, 5"], BAR[E1] + 1, name="sig")
    S.add("M", f"buffer_load_dword v1, off, {srd(SF)}, s70 sc1", BAR[KVP - 1] - 14, BAR[KVP - 1] - 8, chain="sig")
    S.add("X", g.spin(1, SF, "s70", 0, "s81"), G0[KVP] + XW + 6, BAR[KVP] - 1, chain="sig")
    if OPT.get("pg", 1):
        for k, e_ in enumerate(["L_F1-L_pc", "L_F1-L_pc+4096"][:OPT.get("vf", 0)]):
            pre, d = cpf(e_); S.add("M", d, G0[22] + 50 + 6 * k, G0[22] + 84, chain="cpf", pre=pre, sep=3)
    elif not OPT.get("nocpf"):
        for sg in range(0, 22, OPT.get("cps", 2)):
            pre, d = cpf(".-L_pc+6144"); S.add("M", d, G0[sg] + 4, G0[sg] + 30, chain="cpf", pre=pre)
        for k, e_ in enumerate([".-L_pc+6144", ".-L_pc+9984", ".-L_pc+13824", "L_F1-L_pc", "L_F1-L_pc+4096"]):
            x = G0[22] + (50 if OPT.get("wo", "M") != "E" else 0)
            pre, d = cpf(e_); S.add("M", d, x + 6 * k, x + 34, chain="cpf", pre=pre, sep=3)
    S.add("X", L(f"s_lshl_b32 s{t2_}, s{sH}, 20\ns_add_u32 s{SA}, s{sWS}, s{t2_}\ns_addc_u32 s{SA+1}, s{sWS+1}, 0"), G0[21], G0[21] + 40, chain="sa")
    S.add("X", L(f"s_add_u32 s{t2_}, s{sBHi}, 1\ns_lshl_b32 s{SA+2}, s{t2_}, 16"), G0[21], G0[21] + 50, chain="sa")
    pace(att_first_dmas(sLX), BAR[KVP] + 5, BAR[KVP] + 5 + 12 * (6 if KVP == 21 else 4), "dma", slack=2)
    lo = G0[22] if WD == 3 else G0[22] + 40
    chain(f"""v_and_b32 v12, 15, v0
          v_lshrrev_b32 v13, 4, v0
          v_lshlrev_b32 v13, 2, v13
          v_sub_u32 v12, v12, v13
          s_lshl_b32 s{t0_}, s{sW}, 4
          v_add_u32 v13, s{t0_}, v12""", lo, name="la")
    chain([f"v_cmp_gt_i32 {msk(k)}, {16*(k >> 2) + (k & 3)}, v13" for k in range(16)], lo, name="la", sep=0)
    for r in range(4):
        chain(f"""v_subrev_u32 v17, {r}, v12
              v_lshlrev_b32 v18, 31, v17
              v_or_b32 v21, v17, v18
              v_ashrrev_i32 v21, 31, v21
              v_and_b32 {HK[r]}, 0xff800000, v21
              v_not_b32 v17, v17
              v_or_b32 v21, v17, v18
              v_ashrrev_i32 v21, 31, v21
              v_and_b32 {HV[r]}, 0xff800000, v21""", lo, name="la", sep=0)
    chain([c.replace("s81", f"s{t1_}") for c in p5_setup()], lo, name="la", sep=0)
    chain(f"""s_lshr_b32 s{t0_}, s{sW}, 1
          s_lshl_b32 s{t0_}, s{t0_}, 16
          s_and_b32 s{t1_}, s{sW}, 1
          s_lshl_b32 s{t1_}, s{t1_}, 10
          s_add_u32 s{t0_}, s{t0_}, s{t1_}
          s_add_u32 s{t0_}, s{t0_}, 32768
          v_add_u32 v17, s{t0_}, v{vL16}
          v_lshlrev_b32 v21, 5, v0
          s_lshl2_add_u32 s73, s2, s{sW}
          s_lshl_b32 s73, s73, 11
          s_lshl_b32 s{t0_}, s{sW}, 11
          s_add_u32 s{t0_}, s{t0_}, 32768""", lo, name="la", sep=0)
    chain(f"v_add_u32 v2, s{t0_}, v{vL16}\nv_add_u32 v3, 0x10000, v2", BAR[22] - 4, G0[23] - 2, name="la", sep=0)
    chain(f"""v_and_b32 v22, 15, v0
          v_lshlrev_b32 v22, 3, v22
          s_lshl_b32 s85, s{sW}, 7
          s_add_u32 s85, s85, {WS_G}
          s_lshl_b32 s86, s{sJ}, 10
          s_add_u32 s86, s86, s85
          s_lshl_b32 s87, s{sBHi}, 10
          s_add_u32 s87, s87, s85""", G0[21], name="g", sep=0)
    for rb in range(4):
        S.add("M", f"buffer_load_dwordx2 a[{64+2*rb}:{65+2*rb}], v22, {srd(SD)}, s{86 + (rb>>1)} offen offset:{(rb&1)*512} sc1", BAR[21] - 4, G0[22] - 2, chain="g", sep=1)
    chain(f"""s_mov_b32 s{SB}, s{sWOB}
          s_mov_b32 s{SB+1}, s{sWOB+1}
          s_mov_b32 s{SB+2}, {2<<20}
          s_mov_b32 s{SC}, s{sWOA}
          s_mov_b32 s{SC+1}, s{sWOA+1}
          s_mov_b32 s{SC+2}, {8<<20}""", G0[12], G0[13], name="pf")
    if not OPT.get("nopf"):
        x = G0[23] + (0 if KVP == 21 else 26)
        S.add("M", f"buffer_load_dword a{aDUM}, v21, {srd(SB)}, s73 offen ;@dummy", x, x + 16, chain="wpf", sep=2)
    chain(f"s_lshl2_add_u32 s72, s2, s{sW}\ns_lshl_b32 s72, s72, 12\ns_add_u32 s72, s72, {WS_XCH}", BAR[21] + 2, G0[22], name="pre")
    g.prefill = [f"buffer_store_dwordx4 a[240:243], v{vL16}, {srd(SD)}, s72 offen offset:{k*1024} {ST} ;@tag=ob" for k in range(4)]
    PRIN = OPT.get("prin", -16)
    if PRIN < 200:
        for k, d in enumerate(g.prefill): S.add("M", d, G0[22] + PRIN + 14*k, G0[22] + PRIN + 14*k + 6, chain="pre")
        g.prefill = []
    def rdy(*tiles): return max(done[(23, cb, rb)] for cb, rb in tiles) + 8
    def pk(d, a, b, lo): S.add("A", f"v_cvt_pk_bf16_f32 {d}, {a}, {b}", lo, chain="la")
    for rb in (3, 2, 1, 0):
        a, b = bt(1, 0, rb), bt(1, 1, rb); lo = rdy((11, rb))
        pk(a[0], a[0], a[1], lo); pk(a[1], a[2], a[3], lo); pk(a[2], b[0], b[1], lo); pk(a[3], b[2], b[3], lo)
        S.add("M", f"ds_write_b128 v{2 + (rb>>1)}, {a} offset:{(rb&1)*8192 + 2048}", lo, lo + 12, chain="la", sep=1)
    for db in range(2):
        for rb in snake(4, db):
            lo = rdy((12 + db, rb)); a = bt(2, db, rb); pk(a[3], a[2], a[3], lo); pk(a[2], a[0], a[1], lo)
            S.add("M", f"ds_write_b64 v{2 + (rb>>1)}, {a[2:4]} offset:{(rb&1)*8192 + 3072 + db*8}", lo, lo + 16, chain="la", sep=1)
    x = lo + 19
    S.add("X", ["s_waitcnt lgkmcnt(0)", "s_barrier"], lo, x, chain="la", sep=2)
    S.add("D", "ds_read_b128 a[16:19], v17 offset:16384", lo, x + 1, chain="la", sep=1)
    def prevrd(rbs):
        return [f"ds_read_b128 a[{4*rb}:{4*rb+3}], v{2 + (rb>>1)} offset:{(rb&1)*8192}" for rb in rbs] + \
               [f"ds_read_b64 {bt(2, db, rb)[0:2]}, v{2 + (rb>>1)} offset:{(rb&1)*8192 + 1024 + db*8}" for rb in rbs for db in range(2)]
    g.prevrd = prevrd
    S.add("M", f"buffer_store_dwordx4 a[16:19], v{vL16}, {srd(SD)}, s{sXh} offen {ST}", lo, x + 7, chain="la", sep=6)
    for c in prevrd((1, 3)): S.add("D", c, lo, chain="la")
    for rb in (3, 2, 1, 0):
        a, b = bt(0, 0, rb), bt(0, 1, rb); lo = rdy((9, rb))
        for d_, src, r in ((0, a, 0), (1, a, 2), (2, b, 0), (3, b, 2)): S.add("A", f"v_cvt_pk_bf16_f32 {a[d_]}, {src[r]}, {src[r+1]}", lo, chain="lq")
    S.add("X", L(f"s_or_b32 s{t0_}, s{sJ}, s{sW}\ns_cmp_eq_u32 s{t0_}, 0\ns_cselect_b32 s{t0_}, 0xff800000, 0"), G0[23] + 2, G0[23] + 50, chain="lx")
    S.add("X", [f"s_and_b32 s{t1_}, s{sXh}, 0x7800", f"s_cselect_b32 s{t1_}, 0, 0x70000000", f"s_add_u32 s77, s{sXh}, s{t1_}"], G0[23] + 2, G0[23] + 54, chain="lx")
    chain(f"s_sub_u32 s77, s77, 2048\ns_mov_b32 s{t2_}, {f32(QSCALE)}\ns_mov_b32 s{t3_}, s{t2_}", G0[23] + 2, G0[23] + 58, name="lx")
    if OPT.get("sm", 1):
        chain(["v_bfe_u32 v1, v0, 1, 1", "v_subrev_u32 v1, 1, v1", "v_and_b32 v1, 0x3f803f80, v1"] + [f"v_accvgpr_write_b32 {ONES2[r]}, v1" for r in range(4)], G0[23], G0[23] + 30, name="o2", sep=0)
    chain(L(f"""s_sub_u32 s81, s{sJ}, 1
          s_sub_u32 s{t1_}, s{sJ}, 2
          s_mul_i32 s81, s81, s{t1_}
          s_lshl4_add_u32 s81, s81, s{sH}
          s_lshl2_add_u32 s81, s81, s{sW}
          s_mul_i32 s81, s81, 3328
          s_mov_b32 s73, 0
          s_mov_b32 s72, 0x20000
          s_lshl_b32 s{t1_}, s{sH}, 15
          s_add_u32 s{t1_}, s{t1_}, s{sLH}
          s_add_u32 s{t1_}, s{t1_}, {WS_CTX}
          s_mul_i32 s74, s{sJ}, {160*8192}
          s_add_u32 s74, s74, s{t1_}
          s_mul_i32 s75, s{sBHi}, {160*8192}
          s_add_u32 s75, s75, s{t1_}
          s_mul_i32 s{t1_}, s{sH}, {3*8192}
          s_sub_u32 s{t1_}, {128*8192 + 4096}, s{t1_}
          s_add_u32 s{sT}, s74, s{t1_}
          s_add_u32 s{sT2}, s75, s{t1_}""") + att_scalars(), x + 9, name="lx")
    chain([f"v_or_b32 v{20+r}, s{t0_}, {HV[r]}" for r in range(4)], lo, name="lq", sep=0)
    S.add("S", f"s_mov_b32 s{t0_}, {f32(BSCALE)}", lo, chain="lq", sep=1)
    NQ = OPT.get("nq", 6); g.qdone = []
    for t, rb in [(t, rb) for t in range(4) for rb in (3, 2, 1, 0)][:NQ]:
        a, b = aq(2*t, rb), aq(2*t+1, rb); lo = rdy((2*t + 1, rb)); g.qdone.append((t, rb))
        for r_ in (a, b):
            for k in range(4): S.add("A", f"v_mul_f32 {r_[k]}, s{t2_}, {r_[k]}", lo, chain="lq")
        for d_, src, r in ((0, a, 0), (1, a, 2), (2, b, 0), (3, b, 2)): S.add("A", f"v_cvt_pk_bf16_f32 {a[d_]}, {src[r]}, {src[r+1]}", lo, chain="lq")
    g.emit(S.run("gemm12"), eager=10, name="gemm12")
    g.emit(stamp(5))
    if OPT.get("x_sleep"): g.emit([f"s_sleep {OPT['x_sleep']}"])
    local_attention(g)

def att_scalars():
    return L(f"""s_and_b32 s70, s{sW}, 1
          s_lshr_b32 s{t1_}, s{sW}, 1
          s_lshl3_add_u32 s71, s{t1_}, s70
          s_add_u32 s71, s71, 4
          s_lshl_b32 s71, s71, 13
          s_lshl_b32 s70, s70, 14
          s_mul_i32 s{t1_}, s{t1_}, 24576
          s_sub_u32 s70, s70, s{t1_}
          s_add_u32 s70, s70, 65536""")

def att_first_dmas(sLX):
    d = []
    for k in range(8):
        sal = []
        if k == 0: sal = [f"s_mov_b32 m0, s{sLX}", f"s_lshl_b32 s{sT}, s{sW}, 14"]
        if k == 4: sal = [f"s_add_u32 m0, s{sLX}, 4096", f"s_add_u32 s{sT}, s{sT}, 4096"]
        d.append((sal, f"buffer_load_dwordx4 v{vL16}, {srd(SA)}, s{sT} offen offset:{(k&3)*1024} sc1 lds ;@tag=k0"))
    for k in range(4):
        sal = []
        if k == 0: sal = [f"s_lshr_b32 s{sT}, s{sLX}, 1", f"s_add_u32 m0, s{sT}, {65536 + 16384}", f"s_and_b32 s71, s{sT}, 8192",
                          f"s_add_u32 s{sT}, s{sT}, s71", f"s_add_u32 s{sT}, s{sT}, 8192"]
        d.append((sal, f"buffer_load_dwordx4 v{vL16}, {srd(SA)}, s{sT} offen offset:{k*1024} sc1 lds ;@tag=v0"))
    return d

def local_attention(g):
    q = []
    def e(s): q.extend(L(s))
    def pk(d, a, b): return f"v_cvt_pk_bf16_f32 {d}, {a}, {b}"
    mO, mP, mP0 = HK, HV, R("v", 20)
    qp = []
    for t in range(4):
        for rb in range(4):
            if (t, rb) in g.qdone: continue
            a, b = aq(2*t, rb), aq(2*t+1, rb)
            for r in (a, b): qp += [f"v_pk_mul_f32 {r[0:2]}, {r[0:2]}, s[{t2_}:{t3_}]", f"v_pk_mul_f32 {r[2:4]}, {r[2:4]}, s[{t2_}:{t3_}]"]
            qp += [pk(a[0], a[0], a[1]), pk(a[1], a[2], a[3]), pk(a[2], b[0], b[1]), pk(a[3], b[2], b[3])]
    assert all((0, rb) in g.qdone for rb in range(4))
    def fill(n):
        assert len(qp) >= n
        q.extend(qp[:n]); del qp[:n]
    def Sp(rb): return bt(0, 1, rb)
    def So(rb): return bt(1, 1, rb)
    mx, mc, hin = aq(1, 2), aq(1, 1), aq(1, 0)
    hld = f"buffer_load_dwordx4 {hin}, v{vL16}, {srd(SD)}, s77 offen sc1"
    def part(rbs, f0, mid=None):
        for rb in rbs: e(mfma(So(rb), bt(1, 0, rb), bt(0, 0, rb), mO))
        for rb in rbs: e(mfma(Sp(rb), R("a", 4*rb), bt(0, 0, rb), mP0 if rb == 0 else mP))
        f0()
        for rb in rbs:
            a, b = Sp(rb), So(rb)
            e(f"v_max3_f32 {mx[rb]}, {b[0]}, {b[1]}, {b[2]}\nv_max3_f32 {mx[rb]}, {mx[rb]}, {b[3]}, {a[0]}")
            e(f"v_max3_f32 {mx[rb]}, {mx[rb]}, {a[1]}, {a[2]}\nv_max_f32 {mx[rb]}, {mx[rb]}, {a[3]}")
        for op in ("v_permlane16_swap_b32", "v_permlane32_swap_b32"):
            for rb in rbs: e(f"v_mov_b32 {mc[rb]}, {mx[rb]}")
            fill(1)
            for rb in rbs: e(f"{op} {mc[rb]}, {mx[rb]}")
            for rb in rbs: e(f"v_max_f32 {mx[rb]}, {mx[rb]}, {mc[rb]}")
        for rb in rbs: e(f"v_mul_f32 {mx[rb]}, s{t0_}, {mx[rb]}")
        for rb in rbs:
            a, b = Sp(rb), So(rb)
            for r in (a, b):
                for k in range(4): e(f"v_fma_f32 {r[k]}, {r[k]}, s{t0_}, -{mx[rb]}")
            for r in (a, b):
                for k in range(4): e(f"v_exp_f32 {r[k]}, {r[k]}")
            q.extend([pk(a[0], a[0], a[1]), pk(a[1], a[2], a[3]), pk(a[2], b[0], b[1]), pk(a[3], b[2], b[3])])
            fill(2)
            e(mfma(So(rb), ONES, Sp(rb), 0))
            for db in range(2): e(mfma(bt(db, 0, rb), bt(2, db, rb), Sp(rb), 0))
        if mid: e(mid)
        fill(6)
        for rb in rbs: e(f"v_rcp_f32 {mx[rb]}, {So(rb)[0]}")
        for rb in rbs: e(f"v_mul_f32 {mx[rb]}, {mx[rb]}, v{vG+2*rb+1}")
        for rb in rbs:
            a, b = bt(0, 0, rb), bt(1, 0, rb)
            for r in (a, b):
                for k in range(4): e(f"v_mul_f32 {r[k]}, {r[k]}, {mx[rb]}")
            q.extend([pk(a[0], a[0], a[1]), pk(a[1], a[2], a[3]), pk(a[2], b[0], b[1]), pk(a[3], b[2], b[3])])
            e(f"buffer_store_dwordx4 {a}, v{vL16}, {srd(SD)}, s{sT + (rb>>1)} offen {ST} ;@tag=ob")
    def f0():
        for k in range(8): e(f"v_accvgpr_read_b32 v{vG+k}, a{64+k}")
    HE, WB = OPT.get("he", 1), OPT.get("wb", 0)
    def wpf(k): return [f"buffer_load_dword a{aDUM}, v19, {srd(SC)}, s81 offen ;@dummy"] + ([f"s_add_u32 s81, s81, {8192 // WB}"] if k + 1 < WB else [])
    if WB: e(f"v_lshlrev_b32 v19, {7 if WB == 1 else 6 if WB == 2 else 5}, v0")
    if OPT.get("nopf") or WB == 0: wpf = lambda k: []
    if HE:
        e(hld)
        if WB > 1: q.extend(wpf(0))
    part((1, 3), f0, (hld if not HE else "\n".join(wpf(1)) if WB == 4 else None))
    fill(len(qp) - 44)
    e(f"""USE {hin}
          L_hchk:
          v_max3_u32 v1, {hin[0]}, {hin[1]}, {hin[2]}
          v_max_u32 v1, v1, {hin[3]}
          v_cmp_eq_u32 vcc, -1, v1
          s_cbranch_vccnz L_hretry
          L_hgo:
          ds_write_b128 v17, {hin}
          s_sub_u32 s{sT}, s{sT}, 4096
          s_sub_u32 s{sT2}, s{sT2}, 4096""")
    g.ool += ["L_hretry:", "s_sub_u32 s72, s72, 1", "s_cbranch_scc1 L_hgo ;@nottaken", hld, "s_waitcnt vmcnt(0)", "s_branch L_hchk"]
    q.extend(wpf(WB // 2))
    fill(8)
    e("s_waitcnt lgkmcnt(0)\ns_barrier")
    q += g.prevrd((0, 2))
    fill(16)
    part((0, 2), lambda: fill(8), "\n".join(wpf(3)) if WB == 4 else None)
    assert not qp
    g.emit(q, name="local")

sR5, sKh, sCtx, sWo5, sL5, sCol, sSig, sWt = 82, 83, 84, 85, 86, 87, 79, 80
vG5, vC5 = 12, 14
def p5_ctx(sl, rb, s):
    f, b = (("a", 208), ("v", 152), ("a", 0), ("a", 32), ("a", 64))[sl]
    return R(f, b + 8*rb + 4*s)
def p5_lds(sl): return (131072, 32768, 65536, 98304, 0)[sl]
def p5_wdma(sl, rel, sr=SB):
    rot = OPT.get("rot", 1) and sr == SC
    return [([f"s_xor_b32 m0, s76, {p5_lds(sl) + i*1024}", f"s_xor_b32 s{sT}, s{sWo5}, {rel*262144 + i*8192}"] if rot else
             [f"s_add_u32 m0, s{sL5}, {p5_lds(sl) + i*1024}", f"s_add_u32 s{sT}, s{sWo5}, {rel*262144 + i*8192}"],
             f"buffer_load_dwordx4 v{vG5 + (i&1)}, {srd(sr)}, s{sT} offen lds ;@tag=w5_{sl}") for i in range(8)]
def p5_cld(sl, rel, xr=False):
    o = []
    for s in range(2):
        for rb in range(4):
            o.append(([f"{'s_xor_b32' if xr else 's_add_u32'} s{sT2}, s{sCtx}, {rel*32768 + s*8192}"] if rb == 0 else [],
                      f"buffer_load_dwordx4 {p5_ctx(sl, rb, s)}, v{vC5 + (rb>>1)}, {srd(SD)}, s{sT2} offen offset:{(rb&1)*1024} sc1"))
    return o
def NB0(): return OPT.get("nb0", 5)
def p5_setup():
    CI = OPT.get("ci", 0)
    return L(f"""s_and_b32 s{t0_}, s2, 7
          s_lshr_b32 s{t1_}, s2, 3
          s_and_b32 s{sKh}, s{t0_}, 1
          s_and_b32 s{t2_}, s{t0_}, 2
          {f"s_and_b32 s{t3_}, s{t1_}, 7" if not OPT.get("rm", 0) else f"s_lshr_b32 s{t3_}, s{t1_}, 2"}
          s_lshl2_add_u32 s{sR5}, s{t2_}, s{t3_}
          s_and_b32 s{t2_}, s{t0_}, 4
          {f"s_lshr_b32 s{t3_}, s{t1_}, 3" if not OPT.get("rm", 0) else f"s_and_b32 s{t3_}, s{t1_}, 3"}
          s_xor_b32 s{t3_}, s{t3_}, {OPT.get("rm", 0)}
          s_add_u32 s{sCol}, s{t2_}, s{t3_}
          s_lshl_b32 s{sCol}, s{sCol}, 8
          s_lshl_b32 s{sL5}, s{sW}, 13
          s_lshl_b32 s{sWo5}, s{sW}, 16
          s_add_u32 s{sWo5}, s{sWo5}, s{sCol}
          {f"s_xor_b32 s{t2_}, s{t3_}, 1" if OPT.get("x_c3") else ""}
          {f"s_min_u32 s{t2_}, s{t2_}, 1" if OPT.get("x_c3") else ""}
          {f"s_xor_b32 s{t2_}, s{t2_}, 1" if OPT.get("x_c3") else ""}
          {f"s_mul_i32 s{t2_}, s{t2_}, 0x500" if OPT.get("x_c3") else ""}
          {f"s_xor_b32 s{sWo5}, s{sWo5}, s{t2_}" if OPT.get("x_c3") else ""}
          s_mul_i32 s{t0_}, s{sKh}, {NB0()*262144}
          s_add_u32 s{sWo5}, s{sWo5}, s{t0_}
          s_mul_i32 s{sCtx}, s{sR5}, {160*8192}
          s_and_b32 s{t0_}, s{sW}, 1
          s_lshl_b32 s{t0_}, s{t0_}, 14
          s_add_u32 s{sCtx}, s{sCtx}, s{t0_}
          s_mul_i32 s{t0_}, s{sKh}, {NB0()*32768}
          s_add_u32 s{sCtx}, s{sCtx}, s{t0_}
          s_add_u32 s{sCtx}, s{sCtx}, {WS_CTX + 128*8192}
          s_sub_u32 s{t0_}, 15, s{sR5}
          s_min_u32 s{t0_}, s{t0_}, s{sR5}
          s_lshl1_add_u32 s{t0_}, s{t0_}, s{sKh}
          s_lshl_b32 s{sWt}, s{t0_}, 8
          s_add_u32 s{sWt}, s{sWt}, {32*256}
          s_and_b32 s81, s{sW}, 1
          s_lshl_b32 s81, s81, 7
          s_add_u32 s81, s81, s{sKh}
          s_lshl_b32 s81, s81, 7
          s_add_u32 s81, s81, 98304
          s_lshl_b32 s{t0_}, s{sW}, 11
          v_lshrrev_b32 v{vC5}, 4, v0
          v_bfe_u32 v{vG5}, v0, 1, 3
          v_xor_b32 v{vG5}, v{vG5}, v{vC5}
          v_lshlrev_b32 v{vG5}, 5, v{vG5}
          v_lshl_add_u32 v{vG5}, v{vC5}, 11, v{vG5}
          v_and_b32 v{vC5}, 1, v0
          v_lshl_add_u32 v{vG5}, v{vC5}, 4, v{vG5}
          v_xor_b32 v{vG5+1}, {512 if CI else 128}, v{vG5}
          v_lshrrev_b32 v{vC5}, 4, v0
          v_bfe_u32 v18, v0, 2, 2
          v_lshl_add_u32 v{vC5}, v{vC5}, 2, v18
          v_and_b32 v18, 3, v0
          v_lshlrev_b32 v18, 3, v18
          v_lshl_add_u32 v18, v{vC5}, 8, v18
          v_and_b32 v{vC5}, 7, v{vC5}
          v_lshl_add_u32 v18, v{vC5}, 5, v18
          v_xor_b32 v18, s81, v18
          v_add_u32 v{vC5}, s{t0_}, v{vL16}
          v_xor_b32 v{vC5+1}, 0x800, v{vC5}""")

def attention(g):
    p = g.p
    RA = 8
    vDK, vDV, vNI, vBad = 2, 3, 17, 1
    sSrc, sM0, sCnt, sFB, sLX, sCb = 70, 71, 72, 73, 76, 74
    def Q(qb, t): return R("v", vQ + 16*qb + 4*t)
    def S_(kb, qb): return R("v", 88 + 16*qb + 4*kb)
    def Pp(b, u, qb): return R("v", 152 + 32*(qb >> 1) + 16*b + 8*(qb & 1) + 4*u)
    def NM(qb): return R("v", 216 + 4*qb)
    def O(db, qb): return R("a", 32*qb + 4*db)
    def Lr(qb): return R("a", 128 + 4*qb)
    def F(f): return R("a", 144 + 4*(f & 15))
    mx, mc, mt, TMP = 20, 248, 252, (232, 240)
    lab = {k: "L_" + k for k in ("F1", "D", "DD", "T", "T1", "S", "SD", "TAIL")}
    def rdK(f, i): return f"ds_read_b128 {F(f)}, v{vDK} offset:{i*16384 + f*1024}"
    def rdV(f, i): return f"ds_read_b128 {F(f)}, v{vDV} offset:{i*16384 + (f & 1)*8192 + (f >> 1)*1024}"
    def dma(k, tag):
        sal = []
        if k == 0: sal = [f"s_mov_b32 m0, s{sM0}"]
        if k == 4: sal = [f"s_add_u32 m0, s{sM0}, 4096", f"s_add_u32 s{sT}, s{sSrc}, 4096"]
        return sal, f"buffer_load_dwordx4 v{vL16}, {srd(SA)}, s{sSrc if k < 4 else sT} offen offset:{(k&3)*1024} sc1 lds ;@tag={tag}"
    def act(st, i, base):
        if st == "full" or (st == "diag" and i == 0): return [base, base + 1]
        if st == "diag": return [base + 1]
        return []
    def acts(sts, i): return act(sts[0], i, 0) + act(sts[1], i, 2)
    def masked(sts, i):
        for b, st in enumerate(sts):
            if st == "diag": return 2*b + i
        return None
    SM = OPT.get("sm", 1)
    def rowsum(qb, b, zero=False):
        if SM: return [f"v_smfmac_f32_16x16x64_bf16 {Lr(qb)}, {ONES2}, {R('v', Pp(b, 0, qb).b, 8)}, v{vIDX}"]
        return [mfma(Lr(qb), ONES, Pp(b, u, qb), 0 if (zero and u == 0) else None) for u in range(2)]
    def epi_head(qb):
        return [f"v_accvgpr_read_b32 v{mx+qb}, {Lr(qb)[0]}"] + ([f"v_accvgpr_read_b32 v{mc}, {Lr(qb)[1]}", f"v_add_f32 v{mx+qb}, v{mx+qb}, v{mc}"] if SM else []) + [f"v_max_f32 v{vBad}, v{vBad}, v{mx+qb}", f"v_rcp_f32 v{mx+qb}, v{mx+qb}"]
    def epi_frag(qb, t, pkm=False):
        o = []; tmp = R("v", TMP[t & 1], 8)
        for r in range(8): o.append(f"v_accvgpr_read_b32 {tmp[r]}, {O(2*t + (r >> 2), qb)[r & 3]}")
        if t == 0: o.append(f"v_mul_f32 v{mx+qb}, v{mx+qb}, v{vG+2*qb}")
        if pkm:
            sel = "op_sel_hi:[1,0]" if qb % 2 == 0 else "op_sel:[0,1]"
            for r in range(4): o.append(f"v_pk_mul_f32 {tmp[2*r:2*r+2]}, {tmp[2*r:2*r+2]}, v[{mx+(qb&2)}:{mx+(qb&2)+1}] {sel}")
        else:
            for r in range(8): o.append(f"v_mul_f32 {tmp[r]}, {tmp[r]}, v{mx+qb}")
        for r in range(4): o.append(f"v_cvt_pk_bf16_f32 {tmp[r]}, {tmp[2*r]}, {tmp[2*r+1]}")
        o.append(f"s_add_u32 s77, s{sCb + (qb>>1)}, {t*8192 + (qb&1)*4096}")
        o.append(f"buffer_store_dwordx4 {tmp[0:4]}, v{vL16}, {srd(SD)}, s77 offen {ST} ;@tag=ctx")
        return o
    def xmax():
        o = []
        for op in ("v_permlane16_swap_b32", "v_permlane32_swap_b32"):
            o += [f"v_mov_b32 v{mc+qb}, v{mx+qb}" for qb in range(4)]
            o += [f"{op} v{mc+qb}, v{mx+qb}" for qb in range(4)]
            o += [f"v_max_f32 v{mx+qb}, v{mx+qb}, v{mc+qb}" for qb in range(4)]
        return o

    def group(cur, prev, first=False, lastg=False, hook=None, name=None, extra=None):
        mf = []; rs = []
        for i in range(2):
            qk = acts(cur, i); pv = acts(cur, 0) if i == 1 else acts(prev, 1); mq = masked(cur, i)
            r = dict(g0=len(mf), qk=qk, pv=pv, mq=mq, tiles=[], fu=[None]*32, lu=[None]*32)
            k = 0
            for kb in range(4):
                qs = [qk[x] for x in snake(len(qk), kb)]
                if mq is not None and kb == 0: qs = [x for x in qs if x != mq] + [mq]
                for qb in qs:
                    st = len(mf)
                    for q_, t in enumerate(snake(4, k)):
                        c = None
                        if q_ == 0 and qb != mq: c = 0 if (first and i == 0 and kb == 0) else NM(qb)
                        f = 4*kb + t
                        if r["fu"][f] is None: r["fu"][f] = len(mf)
                        r["lu"][f] = len(mf)
                        mf.append(mfma(S_(kb, qb), F(f), Q(qb, t), c))
                    k += 1
                    r["tiles"].append((kb, qb, st, len(mf) - 1))
            r["pv0"] = len(mf); k = 0; r["od"] = {}
            for qb in pv:
                mf += rowsum(qb, i ^ 1, first)
                r["od"][("l", qb)] = len(mf) - 1
            for db in range(8):
                for qb in [pv[x] for x in snake(len(pv), db)]:
                    for q_, u in enumerate(snake(2, k)):
                        f = 16 + 2*db + u
                        if r["fu"][f] is None: r["fu"][f] = len(mf)
                        r["lu"][f] = len(mf)
                        mf.append(mfma(O(db, qb), F(f), Pp(i ^ 1, u, qb), 0 if (first and q_ == 0) else None))
                    k += 1; r["od"][(db, qb)] = len(mf) - 1
            r["end"] = len(mf); rs.append(r)
        N = len(mf); S = Sched(mf)
        head = []
        for i, r in enumerate(rs):
            g0, n = r["g0"], r["end"] - r["g0"]; nq, npv = len(r["qk"]), len(r["pv"])
            single = (nq, npv) == (2, 2)
            knext = not (lastg and i == 1)
            if single:
                dg = [0, 0, 1, 3, 3, 4, 6, 6, 12, 14, 16, 18, 22, 24, 24, 26, 30, 32, 32, 34, 38, 40, 42, 46, 50, 52, 54, 58, 60, 62, 66, 67]
                mg = [2, 5, 20, 28, 36, 44, None, 56, 64]; bg = 48
                eg = [7, 8, 9, 10, 11] + [13 + 2*x for x in range(27)]
                cg = [12, 14, 16] + [4*x + 6 for x in range(3, 16)]
                if SM:
                    dg = [0, 0, 2, 2, 4, 4, 6, 6, 12, 14, 16, 18, 22, 24, 24, 26, 28, 30, 32, 33, 37, 39, 41, 45, 49, 51, 51, 53, 57, 59, 61, 65]
                    mg = [1, 3, 5, 20, 28, 43, None, 55, 63]; bg = 47
                    eg = [7, 8, 9, 10, 11] + [13 + 2*x for x in range(10)] + [34, 35, 36] + [38 + 2*x for x in range(14)]
                    cg = [12, 14, 16, 18, 22, 26, 30, 37, 39] + [41 + 4*x for x in range(7)]
            else:
                bg = n - max(int(n * 0.27), 12)
                if npv == 0: bg = n - 18
                dg = None
                mg = [2 + (q_ * (bg - 4)) // 6 for q_ in range(6)] + [None] + [bg + 4, bg + 4 + (n - bg - 4) // 2]
            for d in range(32):
                f = d + RA
                if d == 32 - RA:
                    wt = ("kvB" if i == 0 else "kvA") + (",v0,ob" if first else "")
                    S.add("X", [f"WAITVM {wt}", "s_barrier"], g0 + bg, g0 + bg, chain="rd")
                if f < 16:
                    txt = rdK(f, i); fu = r["fu"][f]; free = g0
                elif f < 32:
                    if npv == 0: continue
                    txt = rdV(f - 16, i); fu = r["fu"][f]; free = r["lu"][f - 16]
                else:
                    f -= 32
                    if knext: txt = rdK(f, i ^ 1)
                    else: txt = rdV(f, 0)
                    fu = r["end"] + 4 + f; free = r["lu"][16 + f] if npv else r["lu"][f]
                if dg: lo = hi = g0 + dg[d]; assert lo >= free and lo <= fu - 6, (d, lo, free, fu)
                else:
                    if d < 32 - RA: hi = min(fu - 8, g0 + bg - 1); lo = min(max(free, g0 + (d * bg) // 24 - 6), hi)
                    else: hi = min(r["end"] - 1, fu - 10 + (f >> 2) * 4); lo = min(max(free, g0 + bg + 1), hi)
                    hi = max(hi, free); lo = max(lo, free)
                it = S.add("D", txt, lo, hi, chain="rd"); it["dd"] = first or lastg
                if not dg: it["early"] = free if d < 32 - RA else lo
            tA, tB = ("kvA", "kvB") if i == 0 else ("kvB", "kvA")
            for q_, gq in enumerate(mg):
                if gq is None: continue
                k = q_ + 2 if q_ < 6 else q_ - 7
                if lastg and (i == 1 or q_ > 6): continue
                sal, dd = dma(k, tA if q_ < 6 else tB)
                if k == 0: sal = [f"s_xor_b32 s{sM0}, s{sM0}, {16384 if i == 0 else 16384 + 32768}", f"s_add_u32 s{sSrc}, s{sSrc}, 32768"] + sal
                if single:
                    sg_ = ({0: (45, 49, 53), 4: (9, 13)} if not SM else {0: (44, 46, 48), 4: (4, 2)}).get(k, ())
                    for x, s_ in zip(sg_, sal): S.add("S", s_, g0 + x, g0 + x, chain="m" if x != 2 else None)
                    S.add("M", dd, g0 + gq, g0 + gq, chain="m")
                else:
                    S.add("M", dd, g0 + gq, min(g0 + gq + 3, (g0 + bg - 1) if q_ < 6 else r["end"] - 1), chain="m", pre=sal, sep=3)
                    if extra and extra[0] == i and k in (3, 7):
                        for sal2, d2 in extra[1][(k >> 2)*4:(k >> 2)*4 + 4]: S.add("M", d2, g0 + gq, chain="m", pre=sal2, sep=3)
            if i == 1:
                lastK = g0 + (dg[15 - RA] if dg else r["fu"][15] - g0 - 8)
                S.add("A", f"v_xor_b32 v{vDK}, 0x8000, v{vDK}", max(lastK + 1, g0), g0 + bg - 1)
                if knext: S.add("A", f"v_xor_b32 v{vDV}, 0x8000, v{vDV}", g0 + bg + 1, N - 1)
                else: S.chains["rd"][[x["kind"] for x in S.chains["rd"]].index("X", len(S.chains["rd"]) - RA - 1)]["text"].append(f"v_xor_b32 v{vDV}, 0x8000, v{vDV}")
            nt = len(r["tiles"]); e = 0
            nxt = {(kb, qb): st for kb, qb, st, _ in rs[1]["tiles"]} if i == 0 else {}
            span0 = g0 + 8; span1 = r["end"] - 2
            if first and i == 0: span0 = g0 + 4*nq; span1 = r["end"] + 40
            if first and i == 1: span0 = g0 + 40
            for x, (kb, qb, st, en) in enumerate(r["tiles"]):
                s = S_(kb, qb); ch = ("sm", kb, qb); pdst = Pp(i, kb >> 1, qb)
                lim = nxt[(kb, qb)] - (7 if rs[1]["mq"] == qb else 1) if (kb, qb) in nxt else N - 1
                if not first: lim = min(lim, r["end"] - 1)
                if i == 0 and qb in rs[1]["pv"]: lim = min(lim, rs[1]["pv0"] - 3)
                if qb == r["mq"]:
                    src = "0" if (first and i == 0 and kb == 0) else str(NM(qb)[0])
                    for r_ in range(4):
                        c = f"v_cndmask_b32 {s[r_]}, {src}, v{vNI}, {msk(4*kb + r_)}"
                        if st - 3 < 0: head.append(c)
                        else: S.add("A", c, (g0 + 4*nq) if (first and i == 0 and kb > 0) else (0 if i == 0 else max(g0 - 20, 0)), st - 3, chain=ch)
                lo = en + 7
                if first and i == 0 and kb == 0:
                    lo = g0 + 4*nq
                    for r_ in range(4): S.add("A", f"v_add_f32 {s[r_]}, {s[r_]}, {NM(qb)[0]}", lo, lim - 4, chain=ch)
                for r_ in range(4):
                    pace_ = span0 + ((e + 1) * (span1 - span0)) // (4 * nt)
                    elo, ehi, clo, chi = min(lo, lim - 1), min(max(pace_, lo), lim - 1), min(lo, lim), min(lim, max(pace_, lo) + 8)
                    if single: elo = ehi = g0 + eg[e]; clo = chi = g0 + cg[e >> 1]
                    e += 1
                    S.add("E", f"v_exp_f32 {s[r_]}, {s[r_]}", elo, ehi, chain=ch)
                    if r_ & 1:
                        it = S.add("A", f"v_cvt_pk_bf16_f32 {pdst[2*(kb & 1) + (r_ >> 1)]}, {s[r_-1]}, {s[r_]}", clo, chi, chain=("cv", i, kb, qb, r_), sep=1)
                        it["after"] = S.chains[ch][-1]; it["soft"] = True
                        if r_ == 3: r.setdefault("lastcv", {})[(kb, qb)] = [it, S.chains[("cv", i, kb, qb, 1)][0]]
            if first and i == 0 and SM:
                for qb in range(4):
                    for r_ in range(4): S.add("A", f"v_accvgpr_write_b32 {Lr(qb)[r_]}, 0", 0, rs[1]["pv0"] - 3)
            if first and i == 0:
                blk = ["s_nop 1"]
                for qb in [x[1] for x in r["tiles"][:4]]:
                    a = S_(0, qb); blk += [f"v_max3_f32 v{mx+qb}, {a[0]}, {a[1]}, {a[2]}", f"v_max_f32 v{mx+qb}, v{mx+qb}, {a[3]}"]
                blk += xmax() + [f"s_cmp_eq_u32 s{sFB}, 0", "s_cselect_b64 vcc, 0, -1"]
                blk += [f"v_cndmask_b32 v{mx+qb}, v{mx+qb}, v{mt+qb}, vcc" for qb in range(4)]
                for qb in (3, 2, 1, 0): blk += [f"v_sub_f32 {NM(qb)[r_]}, 0, v{mx+qb}" for r_ in range(4)]
                S.add("X", blk, g0 + 4*nq - 1, g0 + 4*nq - 1)
        if rs[1]["mq"] is not None:
            for kb in range(4):
                key = (kb, rs[1]["mq"]); its = S.chains[("sm",) + key]
                k0 = [x for x in its if "cndmask" in x["text"][0]][-4]
                k0["after"] = rs[0]["lastcv"][key]
        if hook: hook(S, rs)
        return head + (["s_nop 0"] if head else []) + S.run(name)

    FULL2, LD, TR, TD, NONE = ("full", "full"), ("diag", "full"), ("off", "full"), ("off", "diag"), ("off", "off")
    def add_cpf(S, lo, hi, exprs):
        if OPT.get("nocpf"): return
        if OPT.get("pg", 1): exprs = [e_ for e_ in exprs if e_.startswith("L_T1")][:OPT.get("vf", 0)]
        for e_ in exprs:
            pre, d = cpf(e_); S.add("M", d, lo, hi, chain="cpf", pre=pre, sep=3 if lo >= 0 else 0)
    def hook_first(S, rs):
        lo = rs[1]["g0"] + 40; N = rs[1]["end"]
        pre, d = signal(SF, f"s{t1_}", 0, "ob")
        for c in [pre[0], pre[1].replace("v1,", "v19,")] + L(f"""s_lshr_b32 s{t1_}, s{sH}, 4
              s_lshl1_add_u32 s{t1_}, s{sJ}, s{t1_}
              s_lshl_b32 s{sSig}, s{t1_}, 8
              s_add_u32 s{sSig}, s{sSig}, {32*256}
              s_add_u32 s{t3_}, s{sH}, {32 - 4*NB0()}
              s_lshr_b32 s{t3_}, s{t3_}, 5
              s_lshl1_add_u32 s{t3_}, s{sJ}, s{t3_}
              s_lshl_b32 s{t3_}, s{t3_}, 8
              s_add_u32 s{t3_}, s{t3_}, {32*256}
              s_lshl_b32 s{t1_}, s{sFB}, 16
              s_xor_b32 s{t2_}, s{sWt}, 256
              s_add_u32 s{t2_}, s{t2_}, s{t1_}
              s_add_u32 s{t1_}, s{t1_}, s{t3_}"""): S.add(kind(c), c, lo, chain="sig", sep=1)
        d = d.replace("v1,", "v19,"); ol = one_lane(d); ol.insert(2, d.replace(f"s{t1_} offen", f"s{t2_} offen"))
        S.add("X", ol, lo, N - 2, chain="sig", sep=1)
        S.add("A", "v_mul_u32_u24 v19, 52, v0", lo, N - 1, chain="sig", sep=1)
        if rs[1]["mq"] is None: add_cpf(S, lo, N - 1, [f"{lab['D']}-L_pc+{4096*k}" for k in range(3)])
        else: add_cpf(S, lo, N - 1, [f"{lab['T']}-L_pc+{4096*k}" for k in range(2)])
    def add_epi(S, r, qb, ts, hi, head=False):
        def put(cs_, lo):
            for c in cs_: S.add("M" if c.startswith("buffer") else kind(c), c, min(lo, hi), hi, chain="epi")
        if head: put(epi_head(qb), r["od"][("l", qb)] + 8)
        for t in ts: put(epi_frag(qb, t), r["od"][(2*t + 1, qb)] + 8 if r else 8)
    def hook_dd(S, rs):
        add_cpf(S, 2, rs[1]["end"] - 1, [f"{lab['T']}-L_pc", f"{lab['T']}-L_pc+4096", f"{lab['T1']}-L_pc", f"{lab['T1']}-L_pc+4096"])
    def hook_e0(S, rs): add_epi(S, rs[1], 0, (0, 1, 2), rs[1]["end"], True)
    def hook_t(S, rs):
        add_epi(S, None, 0, (3,), rs[0]["pv0"] + 10); add_epi(S, rs[0], 1, (0, 1, 2, 3), rs[1]["g0"] + 10, True)
    def hook_last(S, rs):
        g1 = rs[1]["g0"]; N = rs[1]["end"]
        S.add("M", f"buffer_load_dword v19, off, {srd(SF)}, s{sWt} sc1", -1, -1, chain="p5")
        for c in (f"s_mul_i32 s{t3_}, s{sKh}, {8*NB0() - 32}", f"s_sub_u32 s{t3_}, {16 + 4*NB0()}, s{t3_}"): S.add("S", c, 14, g1 - 20, chain="p5")
        S.add("X", g.spin(19, SF, f"s{sWt}", 0, f"s{t3_}"), g1 - 16, g1 - 16, chain="p5")
        for k, (sal, d) in enumerate(p5_cld(0, 0) + p5_cld(1, 1)): S.add("M", d, g1 - 14 if k < 8 else g1, N - 1, chain="p5", pre=sal, sep=2)
        add_cpf(S, -1, -1, [f"{lab['TAIL']}-L_pc", f"{lab['TAIL']}-L_pc+4096", "L_p5f0-L_pc", "L_p5f0-L_pc+4096"][:OPT.get("ncp", 4)])
        add_epi(S, rs[1], 2, (0,), N, True)
    def both(*hs):
        def h(S, rs):
            for x in hs: x(S, rs)
        return h
    def first_group(cur, name, hook, extra=None):
        seq = [rdK(f, 0) for f in range(RA)]
        for k in range(2):
            sal, d = dma(k, "kvA"); seq += sal + (["s_nop 0"] if k == 0 else []) + [d]
        return seq + group(cur, NONE, first=True, hook=hook, name=name, extra=extra)

    START = p.new("attstart")
    q = [f"v_mov_b32 v{vNI}, 0xff800000"]
    if SM: q += [f"v_and_b32 v{vIDX}, 1, v0", f"v_mul_u32_u24 v{vIDX}, 0xaaaa, v{vIDX}", f"v_add_u32 v{vIDX}, 0x4444, v{vIDX}", f"v_lshl_or_b32 v{vIDX}, v{vIDX}, 16, v{vIDX}"]
    q += [START + ":"] + L(f"""v_mov_b32 v{vDK}, v{vL16}
          v_add_u32 v{vDV}, 0x10000, v{vL16}
          v_mov_b32 v{vBad}, 0
          WAITVM k0 L
          s_barrier""") + stamp(6)
    g.emit(q)
    st0 = (list(g.lg), list(g.vm))
    def setst(s): g.lg, g.vm = list(s[0]), list(s[1])
    def getst(): return (list(g.lg), list(g.vm))
    cs = ([([("a", 144 + 4*f + r) for r in range(4)], 0) for f in range(RA)], [("kvB", [])] * 8 + [("kvA", [])] * 2)
    def chk():
        a = [r for r, _ in g.lg]; b = [r for r, _ in cs[0]]
        assert a == b[len(b) - len(a):], a
    EG = 6; PG = OPT.get("pg", 1)
    p(f"s_cmp_eq_u32 s{sJ}, 0\ns_cbranch_scc1 {lab['F1']}")
    g.emit(first_group(FULL2, "F0", hook_first), EG); chk()
    g.emit(stamp(12))
    p(f"s_sub_u32 s{sCnt}, s{sJ}, 1\ns_cmp_eq_u32 s{sCnt}, 0\ns_cbranch_scc1 {lab['DD']}")
    def hook_cnt(S, rs):
        N = rs[1]["end"]
        S.add("S", f"s_sub_u32 s{sCnt}, s{sCnt}, 1", N - 11 + SM, N - 11 + SM); S.add("S", f"s_cmp_lg_u32 s{sCnt}, 0", N - 7 + SM, N - 7 + SM)
        if not OPT.get("wb", 0) and not OPT.get("nopf") and N > 200:
            S.add("M", f"buffer_load_dword a{aDUM}, v19, {srd(SC)}, s81 offen ;@dummy", 5, 5, chain="wo")
            S.add("S", f"s_add_u32 s81, s81, {128*3328}", 15, 17, chain="wo")
        if N > 200: add_cpf(S, N - 30, N - 14, [f"{lab['DD']}-L_pc", f"{lab['DD']}-L_pc+4096"])
        elif OPT.get("cs", 0): add_cpf(S, 59, 59, [f"{lab['SD']}-L_pc"])
    pass; p.label(lab["D"]); setst(cs)
    g.emit(group(FULL2, FULL2, hook=hook_cnt, name="D"), EG); chk()
    p(f"s_cbranch_scc1 {lab['D']}")
    p.label(lab["DD"]); setst(cs)
    g.emit(stamp(13) + group(LD, FULL2, hook=both(hook_dd, hook_e0), name="DD", extra=(0, p5_wdma(0, 0))), EG); chk()
    p(f"s_cmp_eq_u32 s{sJ}, 7\ns_cbranch_scc1 {lab['T1']}")
    p.label(lab["T"]); setst(cs)
    g.emit(stamp(14) + group(TR, LD, hook=hook_t, name="T") + stamp(15), EG); chk()
    p(f"s_lshl_b32 s{sCnt}, s{sJ}, 1\ns_sub_u32 s{sCnt}, 13, s{sCnt}")
    pass; p.label(lab["S"]); setst(cs)
    g.emit(group(TR, TR, hook=hook_cnt, name="S"), EG); chk()
    p(f"s_cbranch_scc1 {lab['S']}")
    setst(cs); p.label(lab["SD"])
    g.emit(stamp(16) + group(TD, TR, lastg=True, hook=hook_last, name="SD"), EG, name="SD"); chk()
    ts = (cs[0], list(g.vm)); setst(ts)
    p.label(lab["TAIL"])
    mf = rowsum(3, 1)
    for db in range(8): mf += [mfma(O(db, 3), F(2*db + u), Pp(1, u, 3)) for u in snake(2, db)]
    S = Sched(mf)
    for f in range(8, 16): S.add("D", rdV(f, 0), -1 if f < 12 else 0, -1 if f < 12 else 1, chain="rd")["dd"] = True
    for k, (sal, d) in enumerate(p5_wdma(1, 1)): S.add("M", d, 3 - SM + 2*k, 3 - SM + 2*k, chain="p5", pre=sal)
    e1 = epi_frag(2, 1)
    for c in e1[:-2]: S.add("A", c, 2, chain="epi")
    seq = stamp(17) + S.run("tail") + e1[-2:] + stamp(7)
    seq += epi_head(3) + L(f"""s_mov_b32 s{t0_}, {f32(LTHR if not OPT.get('forcefb') else 0.0)}
          v_cmp_le_f32 vcc, s{t0_}, v{vBad}
          s_lshl_b32 s{t1_}, s{sW}, 2
          s_cmp_lg_u64 vcc, 0
          s_cselect_b32 s{t0_}, 1, 0
          v_mov_b32 v248, s{t1_}
          v_mov_b32 v249, s{t0_}
          ds_write_b32 v248, v249""")
    rest = [(2, 2), (2, 3), (3, 0), (3, 1), (3, 2), (3, 3)]; NX = OPT.get("nx", 6)
    for qb, t in rest[:NX]: seq += epi_frag(qb, t, True)
    g.epi = [epi_frag(qb, t) for qb, t in rest[NX:]]
    FB = p.new("fallback")
    seq += L(f"""v_mov_b32 v248, 0
          s_waitcnt lgkmcnt(0)
          s_barrier
          ds_read_b128 v[248:251], v248""") + stamp(8)
    g.emit(seq)
    g.fbcheck = L(f"""v_or3_b32 v248, v248, v249, v250
          v_or_b32 v248, v248, v251
          s_nop 0
          v_readfirstlane_b32 s{t0_}, v248 ;@val=0
          s_nop 0
          s_cmp_gt_u32 s{t0_}, s{sFB}
          s_cbranch_scc1 {FB} ;@br=fb""")
    es = getst()
    main = g.p; g.p = P(); g.p.uid = main.uid + 1000
    if PG: g.p.l += [";@batch -1"]
    g.p.label(lab["F1"]); setst(st0)
    g.emit(first_group(LD, "F1", both(hook_first, hook_e0), (1, p5_wdma(0, 0))) + stamp(12) + stamp(13), EG); chk()
    g.p(f"s_branch {lab['T']}")
    g.p.label(lab["T1"]); setst(cs)
    g.emit(stamp(14) + stamp(15) + stamp(16) + group(TD, LD, lastg=True, hook=both(hook_t, hook_last), name="T1"), EG); chk()
    def sig_(vm): return [(t, tuple(r)) for t, r in vm if (t and t.startswith("w5")) or r]
    assert sig_(g.vm) == sig_(ts[1])[len(sig_(ts[1])) - len(sig_(g.vm)):], (sig_(g.vm), sig_(ts[1]))
    g.p(f"s_branch {lab['TAIL']}")
    g.p.label(FB); setst(([], []))
    sU = 81
    q = L(f"""s_waitcnt vmcnt(0) lgkmcnt(0)
          s_barrier
          s_mov_b32 s{sFB}, 1
          s_mov_b32 s{sU}, 0
          v_and_b32 v232, 15, v0
          v_lshrrev_b32 v233, 4, v0
          v_lshlrev_b32 v233, 2, v233
          v_sub_u32 v232, v232, v233
          s_lshl_b32 s{t0_}, s{sW}, 4
          v_add_u32 v232, s{t0_}, v232
          s_lshl_b32 s{t0_}, s{sBHi}, 7
          v_add_u32 v234, s{t0_}, v232
          s_lshl_b32 s{t0_}, s{sJ}, 7
          v_add_u32 v232, s{t0_}, v232
          v_add_u32 v233, 64, v232
          v_add_u32 v235, 64, v234""")
    for sal, d in att_first_dmas(sLX): q += sal + ["s_nop 0", d]
    for qb in range(4): q.append(f"v_mov_b32 v{mx+qb}, 0xff800000")
    FL = g.p.new("fbl"); q.append(FL + ":")
    for f in range(8):
        if f == 4: q.append(f"s_add_u32 s{sT}, s{sU}, 4096")
        q.append(f"buffer_load_dwordx4 {F(f)}, v{vL16}, {srd(SA)}, s{sU if f < 4 else sT} offen offset:{(f&3)*1024} sc1")
    for qb in range(4):
        for kb in range(2):
            for r in range(4):
                c = S_(kb, qb)[r]
                q += [f"v_subrev_u32 {c}, {16*kb + r}, v{232+qb}", f"v_ashrrev_i32 {c}, 31, {c}", f"v_and_b32 {c}, 0xff800000, {c}"]
        q.append(f"v_subrev_u32 v{232+qb}, 32, v{232+qb}")
    q.append("s_waitcnt vmcnt(0)")
    for f in range(8):
        for qb in range(4): q.append(mfma(S_(f >> 2, qb), F(f), Q(qb, f & 3)))
    q.append("s_nop 7")
    for qb in range(4):
        for kb in range(2):
            a = S_(kb, qb)
            q += [f"v_max3_f32 v{mx+qb}, v{mx+qb}, {a[0]}, {a[1]}", f"v_max3_f32 v{mx+qb}, v{mx+qb}, {a[2]}, {a[3]}"]
    q += L(f"s_add_u32 s{sU}, s{sU}, 16384\ns_cmp_lt_u32 s{sU}, s{SA+2}\ns_cbranch_scc1 {FL}")
    q += xmax()
    q += [f"v_mov_b32 v{mt+qb}, v{mx+qb}" for qb in range(4)] + att_scalars()
    q.append(f"s_branch {START}")
    g.emit(q)
    g.ool += g.p.l; main.uid = g.p.uid + 1000; g.p = main
    setst(es)

def phase5(g):
    p = g.p
    vD = 184
    sCnt = 70
    CO = [4, 5, 6, 7, 0, 1, 2, 3]
    def acc(rb, cb): return R("v", 24 + 32*rb + 4*cb)
    def fw(j, s): return R("a", 144 + 8*j + 4*s)
    def wread(sl, j, slot=None):
        win, off = ((0, 32768), (1, 0), (1, 32768), (0, 0), (2, 0))[sl]
        return [f"ds_read_b64_tr_b16 {fw(j if slot is None else slot, s)[2*i:2*i+2]}, v{vD + 8*win + CO[j]} offset:{off + s*8192 + i*4096}" for s in range(2) for i in range(2)]
    NPRE = 3
    q = [f"v_xor_b32 v{vD+n}, {32*n}, v18" for n in CO[:NPRE]]
    for j in range(NPRE): q += wread(0, j)
    q += [f"v_xor_b32 v{vD+n}, {32*n}, v18" for n in CO[NPRE:]] + g.fbcheck
    g.emit(q)
    BP = 40
    xs = L(f"""s_xor_b32 s{t0_}, s2, 1
          s_lshl2_add_u32 s{t0_}, s{t0_}, s{sW}
          s_lshl_b32 s73, s{t0_}, 12
          s_add_u32 s73, s73, {WS_XCH}
          s_lshl2_add_u32 s{t0_}, s2, s{sW}
          s_lshl_b32 s75, s{t0_}, 12
          s_add_u32 s75, s75, {WS_XCH}
          s_lshl_b32 s77, s{sR5}, 18
          s_lshl_b32 s{t0_}, s{sW}, 16
          s_add_u32 s77, s77, s{t0_}
          s_add_u32 s77, s77, s{sCol}
          s_lshl_b32 s{t0_}, s{sKh}, {9 if OPT.get("ci", 0) else 7}
          s_add_u32 s77, s77, s{t0_}
          v_lshlrev_b32 v1, 24, v0
          v_and_b32 v8, 7, v0
          v_lshlrev_b32 v8, 11, v8
          v_bfe_u32 v10, v0, 3, 1
          v_lshl_add_u32 v8, v10, 6, v8
          v_bfe_u32 v10, v0, 4, 1
          v_lshl_add_u32 v8, v10, 5, v8
          v_lshrrev_b32 v10, 5, v0
          v_lshl_add_u32 v8, v10, 4, v8
          v_add_u32 v2, s{sL5}, v{vL16}
          v_xor_b32 v3, 0x2000, v2
          v_mov_b32 v232, 0
          v_mov_b32 v233, 0
          v_mov_b32 v236, 0
          v_mov_b32 v237, 0
          v_and_b32 v9, 1, v0
          v_lshlrev_b32 v9, 4, v9
          v_mov_b32 v10, 0x3f80
          v_lshlrev_b32 v9, v9, v10
          v_lshrrev_b32 v10, 4, v0
          v_lshlrev_b32 v10, 1, v10
          v_bfe_u32 v11, v0, 1, 3
          v_xor_b32 v10, v10, v11
          v_subrev_u32 v11, 1, v10
          v_ashrrev_i32 v11, 31, v11
          v_and_b32 v234, v11, v9
          v_xor_b32 v10, 1, v10
          v_subrev_u32 v11, 1, v10
          v_ashrrev_i32 v11, 31, v11
          v_and_b32 v235, v11, v9""")
    def tmp(rb, c): return R("v", 200 + 16*rb + 4*c)
    G2 = OPT.get("g2", 1)
    def mfs(prs, czero):
        mf = []; dn = {}; k = 0
        for x, (sl, j) in enumerate(prs):
            for rb in snake(4, j + 1):
                for q_, s in enumerate(snake(2, k)):
                    mf.append(mfma(acc(rb, CO[j]), fw(x & 7, s), p5_ctx(sl, rb, s), 0 if (czero and x < 8 and q_ == 0) else None))
                k += 1; dn[(rb, CO[j])] = len(mf) - 1
        return mf, dn
    def pacer(S):
        def pace(items, lo, hi):
            its = []
            for k, (sal, d) in enumerate(items):
                x = lo + (k * (hi - lo)) // len(items)
                its.append(S.add("M", d, x, min(x + 2, S.n - 1), chain="ld", pre=sal, sep=2))
            return its[0]
        return pace
    def first(role):
        nb = NB0() if role == 0 else 8 - NB0()
        na4 = 4 if nb == 2 else 0
        ns = nb + na4
        sl = {3: [0, 1, 3], 4: [0, 1, 2, 3], 5: [0, 1, 2, 4, 3], 6: [0, 1, 3, 4, 2, 3]}[ns] + [0, 1, 2]
        S = Sched(mfs([(sl[st], j) for st in range(ns) for j in range(8)], True)[0]); pace = pacer(S)
        gs = 8 if G2 else 4
        def arel(k): return k - nb if (k < ns or not na4) else k - ns + gs
        def W(k): return p5_wdma(sl[k], k, SB) if k < nb else p5_wdma(sl[k], arel(k), SC)
        def C(k): return p5_cld(sl[k], k if k < nb else arel(k), k >= nb)
        sigst = OPT.get("sig%d" % role, 1)
        EG_ = OPT.get("eg%d" % role, role if nb > 2 else 0)
        swW = f"s_add_u32 s{sWo5}, s{sWo5}, {(4<<20) - NB0()*262144}"
        if nb == 2 and role: S.add("S", swW, -1, -1, chain="ld")
        for st in range(ns):
            g0 = 64 * st; B = g0 + BP; dr = sl[st + 3] == sl[st]
            for j in range(NPRE, 8):
                for r in wread(sl[st], j): S.add("T", r, max(g0 + 8*j - 30, g0), min(g0 + 8*j - 8, B - (5 if dr else 1)), chain="t")
            S.add("X", [f"WAITVM w5_{sl[st+1]}" + (",ctx" if st == sigst else "") + (" L" if dr else ""), "s_barrier"], B, B, chain="t")
            for j in range(NPRE):
                for r in wread(sl[st + 1], j): S.add("T", r, B + 1, min(g0 + 64 + 8*j - 8, g0 + 63), chain="t")
            na = 6 if (st == nb - 2 and not EG_) else 5
            gate = g.spin(19, SF, "s72", 0, 8 if G2 else 16) + [f"s_sub_u32 s{sCtx}, s{sCtx}, {128*8192 - role*(64*8192 - NB0()*32768)}", f"s_add_u32 s{sCtx}, s{sCtx}, s{t3_}"] + stamp(9) if st == nb - 1 - EG_ else None
            poll = f"buffer_load_dword v19, off, {srd(SF)}, s72 sc1"
            wr = W(2) if st == 0 else W(st + 2)[5:]
            if EG_:
                if gate: S.add("X", gate, g0, g0, chain="ld")
                pace(wr + C(st + 2), g0 + 2, B - 1)
                if st == nb - 3: S.add("M", poll, B - 1, B + 2, chain="ld")
            elif st == nb - 2:
                pace(wr, g0 + 2, g0 + 28)
                S.add("M", poll, g0 + 30, g0 + 36, chain="ld")
            elif st == nb - 1:
                S.add("X", gate, g0, g0, chain="ld")
                pace(C(nb) + W(nb + 1)[6:] + C(nb + 1), g0 + 2, B - 1)
            else: pace(wr + C(st + 2), g0 + 2, B - 1)
            if st + 3 == nb and role: S.add("S", swW, B - 1, B + 3, chain="ld")
            if st + 3 == nb and OPT.get("rot", 1):
                for c in (f"s_and_b32 s{t2_}, s{sR5}, 3", f"s_lshl_b32 s{t2_}, s{t2_}, 11", f"s_add_u32 s76, s{sL5}, s{t2_}"): S.add("S", c, g0, B - 2, chain="rot")
                for c in (f"s_lshr_b32 s{t3_}, s{sCol}, 8", f"s_lshr_b32 s{t1_}, s{sR5}, {OPT.get('srs', 1)}", f"s_xor_b32 s{t3_}, s{t3_}, s{t1_}", f"s_and_b32 s{t3_}, s{t3_}, {OPT.get('sr', 2)}",
                          f"s_lshl_b32 s{t3_}, s{t3_}, 15", f"s_add_u32 s{t2_}, s{t2_}, s{t3_}"): S.add("S", c, g0, B - 2, chain="rot")
                S.add("S", f"s_lshl3_add_u32 s{sWo5}, s{t2_}, s{sWo5}", B - 1, B + 3, chain="ld")
            pace(W(st + 3)[:na], B + 5, g0 + 64)
            if st == sigst:
                pre, d = signal(SF, "s71", 0, "ctx")
                S.add("S", pre[0], B - 12, B - 4, chain="sig"); S.add("A", pre[1], B - 12, B - 1, chain="sig", sep=1)
                S.add("X", one_lane(d), B + 1, B + 1, chain="sig")
        EH = 64*sigst + BP - OPT.get("eh", 24)
        for k, fr in enumerate(g.epi):
            for c in fr: S.add("M" if c.startswith("buffer") else kind(c), c, 0, min(60, EH) if "a6" <= c.split()[-1][:2] <= "a9" and len(c.split()[-1]) == 3 else EH, chain="epi")
        fin = [f"s_mov_b32 s{sCnt}, {2 if na4 else 3}", f"s_mov_b32 s73, {1 if not G2 else -1 if na4 else 2}"]
        if na4: fin += [f"s_add_u32 s{sWo5}, s{sWo5}, {gs*262144}", f"s_add_u32 s{sCtx}, s{sCtx}, {gs*32768}"]
        for c in fin: S.add("S", c, S.n - 6, S.n, chain="ld")
        nb = ns
        for n in range(8): S.add("A", f"v_xor_b32 v{vD+8+n}, 0x10000, v{vD+n}", 0, BP - 1)
        if nb >= 5:
            for n in range(8): S.add("A", f"v_xor_b32 v{vD+16+n}, 0x18000, v{vD+n}", 64, 128)
        for c in [f"s_and_b32 s71, s{sH}, {4 if G2 else 0}", "s_lshl_b32 s71, s71, 5", f"s_add_u32 s71, s71, s{sSig}", "s_add_u32 s71, s71, 4096", f"s_add_u32 s72, s{sWt}, 4096"]: S.add("S", c, 4, 28, chain="sc")
        if not OPT.get("nocpf") and not OPT.get("pg", 1):
            for k in range(2 if OPT.get("cl", 0) else 3):
                pre, d = cpf("L_p5loop-L_pc+%d" % (4096*k)); x = 64*(nb - 2) + 18
                S.add("M", d, x + 3*k, x + 20, chain="cpf", pre=pre, sep=3)
        return S.run("p5first%d" % role)
    def body(kd):
        prs = [(st, j) for st in range(4) for j in range(8)]
        X2 = OPT.get("x2", 0)
        if kd == "last": prs = prs[:16] + ([(2, j) for j in range(4)] + [(3, j) for j in range(4)] if not X2 else [(2, 0), (2, 1), (2, 2), (3, 0), (3, 1), (2, 3), (3, 2), (3, 3)]) + [(2, j) for j in range(4, 8)] + [(3, j) for j in range(4, 8)]
        mf, dn = mfs(prs, False)
        S = Sched(mf); pace = pacer(S)
        for st in range(4):
            g0 = 64 * st; B = g0 + BP
            if kd == "last" and st >= 2:
                for x in range(8*st + (NPRE if st == 2 else 0), 8*st + 8):
                    if x == (20 if not X2 else 19): S.add("X", ["WAITVM w5_3", "s_barrier"], g0 + (6 if not X2 else 2), g0 + (6 if not X2 else 2), chain="t")
                    for r in wread(prs[x][0], prs[x][1], x & 7): S.add("T", r, max(8*x - 30, 128), 8*x - 8, chain="t")
                continue
            for j in range(NPRE, 8):
                for r in wread(st, j): S.add("T", r, max(g0 + 8*j - 30, g0), min(g0 + 8*j - 8, B - 1), chain="t")
            S.add("X", [f"WAITVM w5_{(st+1)&3}", "s_barrier"], B, B, chain="t")
            for j in range(NPRE):
                for r in wread((st + 1) & 3, j): S.add("T", r, B + 1, min(g0 + 64 + 8*j - 8, g0 + 63), chain="t")
            def batch(x): return [] if (kd == "last" and x >= 4) else p5_wdma(x & 3, x & 3, SC) + p5_cld(x & 3, x & 3, True)
            if kd == "loop" and st == 2:
                if G2: S.add("X", g.spin(19, SF, "s72", 128, "s74"), g0, g0, chain="ld")
                for c in (f"s_lshl_b32 s75, s73, 17", f"s_add_u32 s{sCtx}, s{sCtx}, s75"): S.add("S", c, g0 - 20, g0 + 6, chain="ac")
            if batch(st + 2): pace(batch(st + 2)[5:], g0 + (3 if st == 2 else 1), B - 1)
            if kd == "loop" and st == 1:
                for c in (f"s_lshl_b32 s75, s73, 20", f"s_add_u32 s{sWo5}, s{sWo5}, s75", "s_lshr_b32 s74, s73, 28", "s_and_b32 s74, s74, 8"): S.add("S", c, g0 + 16, B, chain="ac")
                if G2: S.add("M", f"buffer_load_dword v19, off, {srd(SF)}, s72 offset:128 sc1", g0 - 1, g0, chain="pl")
            if batch(st + 3): pace(batch(st + 3)[:5], B + 3, g0 + 64)["prelo"] = B + 1
        if kd == "loop" and OPT.get("cl", 0) and not OPT.get("nocpf"):
            for k in range(2):
                pre, d = cpf("L_p5last-L_pc+%d" % (4096*k)); S.add("M", d, 128 + 64*k + 30, 128 + 64*k + BP - 1, chain="cpf", pre=pre)
        if kd == "loop":
            for c in ([f"s_sub_u32 s73, 1, s73"] if G2 else []) + [f"s_sub_u32 s{sCnt}, s{sCnt}, 1", f"s_cmp_lg_u32 s{sCnt}, 0"]: S.add("S", c, 250, 256, chain="ld")
        if kd == "last":
            for c in xs + mk_srd(SE, sOUT, 4 << 20): S.add(kind(c), c, 60, 150, chain="x")
            XQ = OPT.get("xq", 8)
            for cs_ in ([(0, 1)] if not X2 else [(0,), (1,)]):
                for c in [2*c2 + h for c2 in cs_ for h in range(2)]:
                    for rb in snake(2, c + 1):
                        x = dn[(2 + rb, 4 + c)]
                        S.add("M", f"ds_write_b128 v3, {acc(2 + rb, 4 + c)} offset:{rb*4096 + c*1024}", x + 8, x + 10, chain="x")
                x += 13
                S.add("X", ["s_waitcnt lgkmcnt(0)", "s_barrier"], 0, x, chain="x", sep=3)
                k = 0
                for rb in range(2):
                    for c in [2*c2 + h for c2 in cs_ for h in range(2)]:
                        S.add("D", f"ds_read_b128 {tmp(rb, c)}, v2 offset:{rb*4096 + c*1024}", 0, x + 1 + (k >> 1), chain="x")["dd"] = True; k += 1
                x += 6; x0 = x
                for rb in range(2):
                    for c2 in cs_:
                        a, b = tmp(rb, 2*c2), tmp(rb, 2*c2 + 1); x += XQ
                        for c in (2*c2, 2*c2 + 1):
                            for r in range(4): S.add("A", f"v_add_f32 {tmp(rb, c)[r]}, {tmp(rb, c)[r]}, {acc(rb, 4 + c)[r]}", x0, x - 1, chain="x")
                        for d_, src, r in ((0, a, 0), (1, a, 2), (2, b, 0), (3, b, 2)): S.add("A", f"v_cvt_pk_bf16_f32 {a[d_]}, {src[r]}, {src[r+1]}", 0, x - 1, chain="x")
                        S.add("M", f"buffer_store_dwordx4 {a}, v{vL16}, {srd(SD)}, s73 offen offset:{(2*rb + c2)*1024} {ST}", 0, x, chain="x", sep=1)
            for c in range(3):
                for rb in snake(2, c + 1):
                    S.add("M", f"ds_write_b128 v3, {acc(2 + rb, c)} offset:{32768 + rb*4096 + c*1024}", dn[(2 + rb, c)] + 8, chain="x")
        return S.run("p5" + kd)
    st0 = (list(g.lg), list(g.vm))
    p(f"s_cmp_eq_u32 s{sKh}, 0\ns_cbranch_scc1 L_p5f0")
    g.emit(first(1), 8, name="p5first1")
    ent = (list(g.lg), list(g.vm))
    main = g.p; g.p = P(); g.p.uid = main.uid + 1000
    if OPT.get("pg", 1): g.p.l += [";@batch 1", ";@palign"]
    g.p.label("L_p5f0"); g.lg, g.vm = st0
    g.emit(first(0), 8); g.p("s_branch L_p5join")
    def cregs(sl): return [(None, [(p5_ctx(sl, rb, s_).f, p5_ctx(sl, rb, s_).b + k) for k in range(4)]) for s_ in range(2) for rb in range(4)]
    ent = (None, cregs(0) + [("w5_1", [])] * 2 + cregs(1) + [("w5_2", [])] * 5)
    g.ool += g.p.l; main.uid = g.p.uid + 1000; g.p = main
    if OPT.get("pg", 1): p.l += ["s_branch L_p5join", ";@palign"]
    p.label("L_p5join")
    p(stamp(4))
    p.label("L_p5loop")
    pre_ = [([("a", 144 + 2*k), ("a", 145 + 2*k)], 0) for k in range(4 * NPRE)]
    g.lg = pre_; g.vm = ent[1]
    g.emit(body("loop"), 8)
    p("s_cbranch_scc1 L_p5loop")
    g.lg = pre_; p.label("L_p5last")
    g.emit(stamp(3) + body("last") + stamp(10), 8, name="p5last")
    def rx(k): return R("v", 152 + 4*k)
    ldx = [f"buffer_load_dwordx4 {rx(k)}, v{vL16}, {srd(SD)}, s75 offen offset:{k*1024} sc1" for k in range(4)]
    RL = OPT.get("rl", 0)
    q = (ldx if not RL else ["s_nop 3"]) + ["s_nop 3"]
    for rb in range(2): q.append(f"ds_write_b128 v3, {acc(2 + rb, 3)} offset:{32768 + rb*4096 + 3*1024}")
    q += L(f"""s_mov_b32 s72, 0x20000
          s_waitcnt lgkmcnt(0)
          s_barrier""")
    for rb in range(2):
        for c in range(4): q.append(f"ds_read_b128 {acc(2 + rb, c)}, v2 offset:{32768 + rb*4096 + c*1024}")
    for rb in range(2):
        for c in range(4):
            for r in range(4): q.append(f"v_add_f32 {acc(rb, c)[r]}, {acc(rb, c)[r]}, {acc(2 + rb, c)[r]}")
    if RL: q += ldx
    q += ["L_xchk:", "s_waitcnt vmcnt(0)", "v_max3_u32 v9, v152, v153, v154"] + [f"v_max3_u32 v9, v9, v{155+2*k}, v{156+2*k}" for k in range(6)]
    q += L("""v_max_u32 v9, v9, v167
          v_cmp_eq_u32 vcc, -1, v9
          s_cbranch_vccnz L_xretry
          L_xgo:""")
    g.ool[0:0] = ["L_xretry:", "s_sub_u32 s72, s72, 1", "s_cbranch_scc1 L_xgo ;@nottaken"] + ldx + ["s_branch L_xchk"]
    SEL = R("v", 232, 6)
    q += [mfma(acc(rb, c), SEL[2:6] if c % 2 == 0 else SEL[0:4], rx(2*rb + (c >> 1))) for rb in range(2) for c in range(4)] + ["s_nop 1"]
    for rb in range(2):
        for c2 in range(2):
            a, b = acc(rb, 2*c2), acc(rb, 2*c2+1)
            q += L(f"""v_cvt_pk_bf16_f32 {a[0]}, {a[0]}, {a[1]}
                  v_cvt_pk_bf16_f32 {a[1]}, {a[2]}, {a[3]}
                  v_cvt_pk_bf16_f32 {a[2]}, {b[0]}, {b[1]}
                  v_cvt_pk_bf16_f32 {a[3]}, {b[2]}, {b[3]}""")
        a, b, t_ = acc(rb, 0), acc(rb, 2), acc(rb, 1)
        q += [f"v_permlane16_swap_b32 {a[0]}, {a[2]}", f"v_permlane16_swap_b32 {a[1]}, {a[3]}", f"v_permlane16_swap_b32 {b[0]}, {b[2]}", f"v_permlane16_swap_b32 {b[1]}, {b[3]}"]
        q += [f"v_mov_b32 {t_[r]}, {a[r]}" for r in range(4)]
        q += [f"v_mov_b32_dpp {a[r]}, {b[r]} row_ror:8 row_mask:0xf bank_mask:0xc" for r in range(4)]
        q += [f"v_mov_b32_dpp {b[r]}, {t_[r]} row_ror:8 row_mask:0xf bank_mask:0x3" for r in range(4)]
        q += [f"buffer_store_dwordx4 {a}, v8, {srd(SE)}, s77 offen {OPT.get('ost', 'sc1')}", "s_add_u32 s77, s77, 16384",
              f"buffer_store_dwordx4 {b}, v8, {srd(SE)}, s77 offen {OPT.get('ost', 'sc1')}", "s_add_u32 s77, s77, 16384"]
    if OPT.get("dbgt"):
        q += L(f"""s_waitcnt vmcnt(0)
            s_memtime s[70:71]
            s_memrealtime s[72:73]
            s_waitcnt lgkmcnt(0)
            s_sub_u32 s70, s70, s96
            s_sub_u32 s72, s72, s98
            v_mov_b32 v2, s70
            v_mov_b32 v3, s72
            s_lshl_b32 s70, s2, 3
            s_add_u32 s70, s70, 8
            s_lshl_b32 s71, s{sW}, 12
            s_add_u32 s70, s70, s71""") + mk_srd(SF, 94, 64) + [f"buffer_store_dwordx2 v[2:3], v1, {srd(SF)}, s70 offen"]
    q += stamp(11) + stamp_flush()
    g.emit(q, name="final")

def build():
    g = G(); p = g.p
    hdr = open("/code/" + NAME + ".s.ref").read()
    p.l += [l for l in hdr.split("\n") if l.startswith(";") and "@launch" not in l]
    p.l.append(f"; @launch grid=(256,1,1) block=(256,1,1) lds={LDS_BYTES}")
    k = NAME + "_kernel"
    p(f'.amdgcn_target "amdgcn-amd-amdhsa--gfx950"\n.text\n.globl {k}\n.p2align 8\n.type {k},@function'); p.label(k)
    gemm12(g); attention(g); phase5(g)
    p.label("L_end"); p("s_endpgm")
    p(g.ool)
    p.label("L_codeend")
    p('.section .rodata,"a"\n.p2align 6')
    p.l += f""".amdhsa_kernel {k}
  .amdhsa_next_free_vgpr 512
  .amdhsa_next_free_sgpr 102
  .amdhsa_accum_offset 256
  .amdhsa_group_segment_fixed_size 0
  .amdhsa_kernarg_size 104
  .amdhsa_user_sgpr_count 2
  .amdhsa_user_sgpr_kernarg_segment_ptr 1
  .amdhsa_system_sgpr_workgroup_id_x 1
.end_amdhsa_kernel""".split("\n")
    return p.text()

if __name__ == "__main__":
    out = sys.argv[1]
    for a in sys.argv[2:]:
        k, _, v = a.partition("=")
        OPT[k] = True if v == "" else (int(v) if v.lstrip("-").isdigit() else v)
    txt = build()
    if OPT.get("pg", 1):
        from pages import pages
        plan = {}
        if OPT.get("na", 4): plan[9] = [(0, OPT.get("na", 4))]
        plan[0] = [(0, OPT.get("n0", 8))]
        ts = TSITES()
        for k in range(len(ts)): plan[k + 1] = [(0, OPT.get("n1", 4))] if k + 1 < len(ts) else [(0, 99), (1, 99)]
        txt, info = pages(txt, sW, plan, OPT.get('half')); print("page stubs", info)
    if OPT.get("al"):
        from align import align
        txt, n_ = align(txt, OPT["al"]); print("widened", n_)
    import subprocess, re, os
    open("_sz.s", "w").write(txt.replace("NCHUNK", "100"))
    subprocess.check_call(["clang", "-x", "assembler", "-target", "amdgcn-amd-amdhsa", "-mcpu=gfx950", "-c", "_sz.s", "-o", "_sz.o"])
    sz = int(re.search(r"\.text\s+PROGBITS\s+\S+\s+\S+\s+(\S+)", subprocess.check_output(["llvm-readelf", "-S", "_sz.o"]).decode()).group(1), 16)
    nch = 0
    print("code bytes", sz, "file", len(txt))
    open(out, "w").write(txt.replace("NCHUNK", str(nch)))
```

```python
import re
from align import sizes
def pages(txt, sW, plan, half=None):
    lines = txt.split("\n")
    out = []
    for l in lines:
        t = l.strip()
        if t.startswith(";@touch"):
            k = t.split()[1]
            def four(o):
                r = []
                for w in range(3): r += [f"s_cmp_eq_u32 s{sW}, {w}", f"s_cbranch_scc1 @F{k}_{o + w}@"]
                return r + [f"s_branch @F{k}_{o + 3}@"]
            if half is None: out += four(0)
            else: out += [f"s_bitcmp1_b32 s2, {half}", f"s_cbranch_scc1 L_th{k}"] + four(0) + [f"L_th{k}:"] + four(4)
            out += [f"L_tr{k}:"]
        else: out.append(l)
    lines = out
    def isins(t): return t and not t.startswith((";", ".")) and not re.match(r"^[\w.]+:", t)
    probe = re.sub(r"@F\w+@", "L_end", "\n".join(lines)).replace(".p2align 12\n", "")
    sz = sizes(probe)
    res = []; k = 0; intext = False; pos = None; batch = -1; stubs = []; pending = False; prev_m = False; nst = 0
    def stub(b, fall):
        nonlocal nst
        nst += 1; stubs.append((b, f"L_pg{nst}"))
        if fall: return [f"s_branch L_po{nst}", f"L_pg{nst}:", f"s_branch @N{nst}@", f"L_po{nst}:"], 8
        return [f"L_pg{nst}:", f"s_branch @N{nst}@"], 4
    page = 0
    for idx, l in enumerate(lines):
        t = l.strip()
        if t.startswith(".text"): intext = True
        if t.startswith(".section"): intext = False
        if t.startswith(";@base"): pos = 0; page = 0
        if t.startswith(";@batch"): batch = int(t.split()[1])
        if t.startswith(";@palign"):
            res.append(".p2align 12"); pos = (pos + 4095) // 4096 * 4096; page = pos // 4096; pending = False
            if batch >= 0:
                o, n = stub(batch, False); res += o; pos += n
            continue
        if t.startswith(";@stub"):
            f = t.split(); o, n = stub(int(f[1]), len(f) > 2); res += o
            if pos is not None: pos += n
            continue
        if intext and isins(t):
            s = sz[k][1]; k += 1
            if pos is not None:
                if pos // 4096 > page: page = pos // 4096; pending = batch >= 0
                if pending and (prev_m or pos % 4096 + s > 40):
                    o, n = stub(batch, True); res += o; pos += n; pending = False
                pos += s
            prev_m = t.startswith(("v_mfma", "v_smfmac"))
        res.append(l)
    txt = "\n".join(res)
    grp = {}
    for b, x in stubs: grp.setdefault(b, []).append(x)
    info = {b: len(v) for b, v in grp.items()}
    seen = []
    for site, takes in plan.items():
        ls = []
        for b, n in takes: ls += grp.get(b, [])[:n]; grp[b] = grp.get(b, [])[n:]
        if ls:
            at = txt.index(f"L_tr{site}:"); pend = [x for x in seen if txt.index(x + ":") > at]
            info[f"site{site}"] = (len(ls), "pending", len(pend), "late", len([x for x in ls if txt.index(x + ":") < at]))
            seen += ls
        nw = 4 if half is None else 8
        for w in range(nw):
            ch = ls[w::nw]
            txt = txt.replace(f"@F{site}_{w}@", ch[0] if ch else f"L_tr{site}")
            for a, nx in zip(ch, ch[1:] + [f"L_tr{site}"]): txt = txt.replace(f"@N{a[4:]}@", nx)
    assert not any(grp.values()), grp
    assert "@F" not in txt and "@N" not in txt
    return txt, info
```

```python
import sys, math, struct
from genlib import P, R, mfma
from sched import Sched, resolve

NAME = "gated_mix__compressed_kv_cla__sliding_local_dilated__prompt"
WS_HALO = 58 << 20
WS_KV, WS_CTX, WS_G, WS_CNT, WS_INBOX, WS_XCH, WS_STAMP = 0, 32 << 20, 56 << 20, 57 << 20, (57 << 20) + 65536, 64 << 20, 96 << 20
LDS_BYTES = 160 * 1024
def f32(x): return "0x%08x" % struct.unpack("<I", struct.pack("<f", x))[0]
QSCALE = 128 ** -0.5 * math.log2(math.e)
BSCALE = 32 ** -0.5 * math.log2(math.e)
LTHR = 2.0 ** 60

sX, sC, sWQ, sWUK, sWUV, sWOA, sWQKV, sWOB, sGATE, sOUT, sDBG, sWS = 4, 6, 8, 10, 12, 14, 18, 20, 22, 24, 26, 28
sW, sH, sJ = 30, 31, 3
SA, SB, SC, SD, SE, SF, SG, SH = 32, 36, 40, 44, 48, 52, 56, 60
sT, sT2, sBHi = 64, 65, 16
t0_, t1_, t2_, t3_ = 66, 67, 68, 69
def srd(b): return f"s[{b}:{b+3}]"
OPT = dict(stamps=False)
ST = "sc1" if "x_plain" not in sys.argv else ""

vDX, vDQ, vGX, vGW, vL16, vDH, vDB, vDBH, vGH, vGB = 2, 4, 12, 14, 16, 17, 19, 21, 22, 23
vQ, vG = 24, 4
aONE, aDUM = 251, 252
ONES = R("a", 244)
ONES2, vIDX = R("a", 240), 5
MSK = [0, 4, 6, 8, 10, 12, 18, 22, 26, 56, 58, 60, 62, 48, 50, 100]
def msk(k): return f"s[{MSK[k]}:{MSK[k]+1}]"
def kind(c): return "S" if c.startswith("s_") else ("E" if c.startswith(("v_exp", "v_rcp")) else "A")

def L(s): return [x.strip() for x in s.strip().split("\n") if x.strip()]
def mk_srd(b, ptr, nbytes, off=None):
    if off is None: o = [f"s_mov_b32 s{b}, s{ptr}", f"s_mov_b32 s{b+1}, s{ptr+1}"]
    else: o = [f"s_add_u32 s{b}, s{ptr}, {off}", f"s_addc_u32 s{b+1}, s{ptr+1}, 0"]
    return o + [f"s_mov_b32 s{b+2}, {nbytes}", f"s_mov_b32 s{b+3}, 0x20000"]

NST = [0]
def stamp(idx):
    if not OPT["stamps"]: return []
    return L(f"""s_waitcnt lgkmcnt(0)
        s_memtime s[92:93]
        s_memrealtime s[94:95]
        v_accvgpr_write_b32 a253, v1
        v_accvgpr_read_b32 v1, a249
        s_waitcnt lgkmcnt(0)
        v_writelane_b32 v1, s92, {2*idx}
        v_writelane_b32 v1, s94, {2*idx+1}
        v_accvgpr_write_b32 a249, v1
        v_accvgpr_read_b32 v1, a253
        s_nop 1""")
def stamp_flush():
    if not OPT["stamps"]: return []
    return L(f"""s_lshl_b32 s96, s2, 2
        s_add_u32 s96, s96, s{sW}
        s_lshl_b32 s96, s96, 8
        s_add_u32 s96, s96, {WS_STAMP}
        v_lshlrev_b32 v1, 2, v0
        buffer_store_dword a249, v1, {srd(SD)}, s96 offen
        s_waitcnt vmcnt(0)""")

class G:
    def __init__(self):
        self.p = P(); self.lg = []; self.vm = []; self.ool = []
    def emit(self, seq, eager=0, name=None):
        if name: self.p.l.append(";@seg " + name)
        out, self.lg, self.vm = resolve(seq, self.lg, self.vm, eager)
        self.p(out)
    def spin(self, vreg, srdb, soff, imm, target):
        st, bk, lp = self.p.new("spin"), self.p.new("spinbk"), self.p.new("spinlp")
        self.ool += L(f"""{st}:
            s_mov_b32 vcc_hi, 0x80000
            {lp}:
            s_sleep 1
            buffer_load_dword v{vreg}, off, {srd(srdb)}, {soff} offset:{imm} sc1
            s_waitcnt vmcnt(0)
            v_readfirstlane_b32 vcc_lo, v{vreg}
            s_sub_u32 vcc_hi, vcc_hi, 1
            s_cbranch_scc1 {bk} ;@nottaken
            s_cmp_lt_u32 vcc_lo, {target}
            s_cbranch_scc1 {lp} ;@nottaken
            s_branch {bk}""")
        return L(f"""v_readfirstlane_b32 vcc_lo, v{vreg}
            s_nop 0
            s_cmp_lt_u32 vcc_lo, {target}
            s_cbranch_scc1 {st}
            {bk}:""")

sLH = 78
def cpf(expr):
    return ([f"s_add_u32 s17, s{sLH}, {expr}"], f"buffer_load_dword a{aDUM}, v{vL16}, s[88:91], s17 offen ;@dummy")
def one_lane(d): return ["s_mov_b64 exec, 1", d, "s_mov_b64 exec, -1"]
def signal(srdb, soff, imm, tags):
    return ([f"s_lshl_b32 s{t0_}, s{sW}, 30", f"v_lshl_add_u32 v1, v0, 24, s{t0_}"],
            f"buffer_atomic_add a{aONE}, v1, {srd(srdb)}, {soff} offen offset:{imm} sc1 ;@sig=wg:{tags}")

def TSITES(): return [int(x) for x in str(OPT.get("ts", "1_20")).split("_")]
def snake(n, k): return list(range(n)) if k % 2 == 0 else list(range(n - 1, -1, -1))

def aq(db, rb): return R("v", (vQ if db % 2 == 0 else 88) + 16 * rb + 4 * (db // 2))
def bt(part, db, rb): return R("v", 152 + 32 * part + 8 * rb + 4 * db)
HK, HV = R("v", 248), R("v", 252)
XS = 20480
def KP(rb): return R("a", 176 + 4 * rb)
P2ORD = [10, 11, 12, 13, 8, 9, 0, 1, 2, 3, 4, 5, 6, 7]
def p2tile(cb, rb):
    if cb < 8: return aq(cb, rb)
    if cb < 14: return bt((cb - 8) >> 1, cb & 1, rb)
    return HK if cb == 14 else HV

def gemm12(g):
    p = g.p
    sCo, sWo, sXlo, sXhi, sXh, sBo, sLX, sLW, sKV, sPF = 70, 71, 72, 73, 74, 75, 76, 77, 79, 80
    NR = 6
    def fx(sg, rb, s): return R("a", 32 * (sg & 1) + 8 * rb + 4 * s) if rb < 4 else R("a", 64 + 4 * s)
    ES = OPT.get("es", 1)
    def fw(J, s): return R("a", 176 + 8 * J + 4 * s) if (ES and J < 2) else R("a", 72 + 8 * (J % NR) + 4 * s)
    def stash(i): return R("a", 144 + 4 * i)
    GA = 144
    def order(sg):
        o = []; k = 0
        for j, cb in enumerate(range(16) if sg < 8 else P2ORD):
            if sg >= 8 and cb >= 14: o.append((j, cb, 4))
            else:
                o += [(j, cb, rb) for rb in snake(4, k)]; k += 1
        return o
    o1, o2 = order(0), order(8)
    pos1 = {(cb, rb): k for k, (j, cb, rb) in enumerate(o1)}
    def treg(k): return p2tile(o2[k][1], o2[k][2]) if k < 56 else (HK, HV)[k - 56] if k < 58 else R("a", 120 + 4 * (k - 58))
    FS = [(22, j) for j in range(6)] + [(23, j) for j in range(6)] + [(sg, j) for j in range(6, 14) for sg in (22, 23)]
    def Jx(sg, j): return 16 * sg + j if sg < 8 else 128 + 14 * (sg - 8) + j if sg < 22 else 128 + 14 * 14 + FS.index((sg, j))
    p("s_cmp_ge_u32 s2, 256\ns_cbranch_scc1 L_end")
    p("s_load_dwordx16 s[4:19], s[0:1], 0\ns_load_dwordx8 s[20:27], s[0:1], 64\ns_load_dwordx2 s[28:29], s[0:1], 96")
    if OPT["stamps"] or OPT.get("dbgt"): p("s_memtime s[96:97]\ns_memrealtime s[98:99]")
    if OPT.get("dbgt"): p("s_load_dwordx2 s[94:95], s[0:1], 88")
    p("s_getpc_b64 s[88:89]"); p.label("L_pc")
    p(f"""v_lshrrev_b32 v1, 6, v0
          s_lshr_b32 s{t1_}, s2, 3
          v_lshl_add_u32 v24, s{t1_}, 2, v1
          s_mov_b32 s90, L_codeend-L_pc
          s_mov_b32 s91, 0x20000
          v_and_b32 v25, 7, v0
          v_lshlrev_b32 v25, 7, v25
          v_lshl_add_u32 v24, v24, 10, v25
          buffer_load_dword a{aDUM}, v24, s[88:91], 0 offen ;@dummy
          v_and_b32 v0, 63, v0
          v_readfirstlane_b32 s{sW}, v1 ;@val=wave
          v_lshrrev_b32 v24, 3, v0
          v_lshrrev_b32 v25, 4, v0
          v_and_b32 v26, 7, v0
          v_xor_b32 v26, v26, v25
          v_lshlrev_b32 v26, 4, v26
          v_lshl_add_u32 v{vGX}, v24, 10, v26
          v_xor_b32 v{vGX+1}, 64, v{vGX}
          v_bfe_u32 v26, v0, 1, 3
          v_xor_b32 v26, v26, v25
          v_lshlrev_b32 v26, 5, v26
          v_and_b32 v24, 1, v0
          v_lshl_add_u32 v26, v24, 4, v26
          v_lshl_add_u32 v{vGW}, v25, 13, v26
          v_xor_b32 v{vGW+1}, 128, v{vGW}
          s_and_b32 s{t0_}, s2, 7
          s_and_b32 s{t2_}, s{t1_}, 3
          s_lshl2_add_u32 s{sH}, s{t0_}, s{t2_}
          s_cmp_eq_u32 s{t2_}, 0
          {"s_cselect_b32 s90, s90, 0" if OPT.get("c4", 1) else ""}
          s_lshr_b32 s{sJ}, s{t1_}, 2
          s_lshl2_add_u32 s{sPF}, s{t1_}, s{sW}
          s_lshl_b32 s{sCo}, s{sJ}, 18
          s_lshl_b32 s{t0_}, s{sW}, 16
          s_add_u32 s{sCo}, s{sCo}, s{t0_}
          s_lshl_b32 s{sWo}, s{sW}, 17
          s_lshl_b32 s{t0_}, s{sH}, 8
          s_add_u32 s{sWo}, s{sWo}, s{t0_}
          {f"s_xor_b32 s{t2_}, s{t2_}, 1" if OPT.get("x_h1") else ""}
          {f"s_min_u32 s{t2_}, s{t2_}, 1" if OPT.get("x_h1") else ""}
          {f"s_xor_b32 s{t2_}, s{t2_}, 1" if OPT.get("x_h1") else ""}
          {f"s_mul_i32 s{t2_}, s{t2_}, 128" if OPT.get("x_h1") else ""}
          {f"s_sub_u32 s{sWo}, s{sWo}, s{t2_}" if OPT.get("x_h1") else ""}
          s_lshl_b32 s{sLX}, s{sW}, 13
          s_lshl_b32 s{sLW}, s{sW}, 12
          s_lshl_b32 s{sLH}, s{sW}, 10
          {";@touch 9" if OPT.get("na", 1) and OPT.get("pg", 1) else ""}
          s_waitcnt lgkmcnt(0)""")
    if OPT.get("pst"): p("s_memtime s[84:85]\ns_memrealtime s[86:87]")
    p(mk_srd(SA, sC, 2 << 20) + mk_srd(SB, sWUK, 4 << 20) + mk_srd(SC, sWUV, 4 << 20))
    def xdma(sg):
        par = sg & 1; d = []
        for i in range(8 if not (OPT.get("x_nox") and sg > 9) else 1):
            if sg < 8: so, sr = f"s_xor_b32 s{sT}, s{sCo}, {sg*128 + i*8192}", SA
            else: so, sr = f"s_xor_b32 s{sT}, s{sXlo if i < 4 else sXhi}, {(sg-8)*128 + ((i>>1)&1)*64*2048 + (i&1)*16384}", SE
            d.append(([f"s_xor_b32 m0, s{sLX if sg == 0 else 84}, {par*32768 + i*1024}", so], f"buffer_load_dwordx4 v{vGX + (i&1)}, {srd(sr)}, s{sT} offen lds ;@tag=x{sg}"))
        return d
    def wdma(sg):
        d = []; B = 65536 + (sg % 3) * 32768
        for kv in range(2 if sg < 8 else 1):
            for i in range(4):
                st = sg if sg < 8 else sg - 8
                d.append(([f"s_xor_b32 m0, s{sLW}, {B + kv*16384 + i*1024}", f"s_xor_b32 s{sT}, s{sWo}, {st*64*8192 + i*32768}"],
                          f"buffer_load_dwordx4 v{vGW + (i>>1)}, {srd((SB, SC)[kv] if sg < 8 else SG)}, s{sT} offen lds ;@tag=w{sg}"))
        if sg >= 8:
            for pp in range(3):
                d.append(([f"s_add_u32 m0, s{sLH}, {B + 16384 + pp*4096}", f"s_add_u32 s{sT}, s{sBo}, {(sg-8)*64*6144 + pp*2048}"],
                          f"buffer_load_dwordx4 v{vGB}, {srd(SH)}, s{sT} offen lds ;@tag=w{sg}"))
            d = [d[k] for k in (0, 4, 1, 5, 2, 6, 3)]
            if sg > 10 and OPT.get("x_now") == 1: d = d[:1]
            if sg > 10 and OPT.get("x_now") == 2: d = d[::2]
        return d
    seq = []
    x0, w0 = xdma(0), wdma(0)
    b0, b1 = (x0[:4] + w0[:4], x0[4:] + w0[4:]) if ES else (x0 + w0, [])
    for sal, d in b0: seq += sal + [d.replace("@tag=w0", "@tag=a0") if ES else d]
    if OPT.get("cpre") == 2: seq += [f"s_lshl2_add_u32 s84, s2, s{sW}", "s_lshl_b32 s84, s84, 11", "v_lshlrev_b32 v22, 5, v0", f"buffer_load_dword a{aDUM}, v22, {srd(SA)}, s84 offen ;@dummy"]
    seq += mk_srd(SD, sWS, 128 << 20) + mk_srd(SE, sX, 4 << 20) + mk_srd(SF, sDBG, 256) + mk_srd(SG, sWQ, 8 << 20) + mk_srd(SH, sWQKV, 6 << 20)
    seq += [f"v_accvgpr_write_b32 a{aONE}, 1"]
    if OPT["stamps"]: seq += ["v_mov_b32 v30, 0", "v_writelane_b32 v30, s96, 60", "v_writelane_b32 v30, s98, 61", "s_getreg_b32 s96, hwreg(HW_REG_XCC_ID)", "v_writelane_b32 v30, s96, 62"] + (["s_waitcnt lgkmcnt(0)", "v_writelane_b32 v30, s84, 58", "v_writelane_b32 v30, s86, 59", "v_writelane_b32 v30, s100, 56", "v_writelane_b32 v30, s0, 57"] if OPT.get("pst") else []) + [ "v_accvgpr_write_b32 a249, v30"] + stamp(0)
    seq += L(f"""v_and_b32 v24, 15, v0
          v_lshrrev_b32 v26, 1, v24
          v_xor_b32 v26, v26, v25
          v_lshlrev_b32 v26, 4, v26
          v_lshl_add_u32 v26, v24, 7, v26
          v_add_u32 v{vDX}, s{sLX}, v26
          v_xor_b32 v{vDX+1}, 64, v{vDX}
          v_bfe_u32 v24, v0, 2, 2
          v_lshl_add_u32 v27, v25, 3, v24
          v_and_b32 v1, 3, v0
          v_cmp_eq_u32 vcc, 0, v1
          v_lshlrev_b32 v1, 3, v1
          v_lshl_add_u32 v26, v27, 8, v1
          v_add_u32 v26, 65536, v26
          v_and_b32 v1, 1, v25
          v_lshl_add_u32 v24, v1, 2, v24
          v_lshlrev_b32 v{vL16}, 4, v0
          v_mov_b32 v28, 0x3f803f80
          v_cndmask_b32 v28, 0, v28, vcc""")
    seq += [f"v_accvgpr_write_b32 {ONES[r]}, v28" for r in range(4)]
    for n in range(8): seq += [f"v_xor_b32 v1, {n}, v24", f"v_lshl_add_u32 v{vDQ+n}, v1, 5, v26"]
    seq += L(f"""s_sub_u32 s{sBHi}, 15, s{sJ}
          s_lshl_b32 s{sXlo}, s{sJ}, 18
          s_lshl_b32 s{sXhi}, s{sBHi}, 18
          s_cmp_lt_u32 s{sW}, 2
          s_cselect_b32 s{t1_}, s{sJ}, s{sBHi}
          s_lshl4_add_u32 s{sXh}, s{sH}, s{t1_}
          s_and_b32 s{t0_}, s{sW}, 1
          s_lshl1_add_u32 s{sXh}, s{sXh}, s{t0_}
          s_lshl_b32 s{sXh}, s{sXh}, 10
          s_add_u32 s{sXh}, s{sXh}, {WS_HALO}
          s_lshl_b32 s{t0_}, s{sW}, 15
          s_add_u32 s{sXlo}, s{sXlo}, s{t0_}
          s_add_u32 s{sXhi}, s{sXhi}, s{t0_}
          s_mul_i32 s{sBo}, s{sW}, {16*6144}
          s_lshl_b32 s{t0_}, s{sH}, 6
          s_add_u32 s{sBo}, s{sBo}, s{t0_}
          s_lshl_b32 s{sKV}, s{sH}, 20
          s_lshl_b32 s{t0_}, s{sJ}, 17
          s_add_u32 s{sKV}, s{sKV}, s{t0_}
          s_lshl_b32 s{t0_}, s{sW}, 15
          s_add_u32 s{sKV}, s{sKV}, s{t0_}
          v_bfe_u32 v{vGB}, v0, 1, 1
          v_lshrrev_b32 v1, 5, v0
          v_xor_b32 v{vGB}, v{vGB}, v1
          v_lshlrev_b32 v{vGB}, 5, v{vGB}
          v_and_b32 v1, 1, v0
          v_lshl_add_u32 v{vGB}, v1, 4, v{vGB}
          v_lshrrev_b32 v1, 2, v0
          v_mul_u32_u24 v1, 6144, v1
          v_add_u32 v{vGB}, v1, v{vGB}
          s_lshl_b32 s81, s{sPF}, 13
          s_and_b32 s{t1_}, s2, 7
          s_lshl_b32 s82, s{t1_}, 8
          s_add_u32 s82, s82, s81
          s_lshl_b32 s{t1_}, s{t1_}, 10
          s_add_u32 s81, s81, s{t1_}
          s_add_u32 s83, s81, {1<<20}
          v_mul_u32_u24 v1, 1792, v25
          v_add_u32 v1, v1, v{vL16}
          s_lshl_b32 s{t2_}, s2, 3
          s_lshl1_add_u32 s{t2_}, s{sW}, s{t2_}
          v_lshrrev_b32 v18, 5, v0
          v_add_u32 v18, s{t2_}, v18
          v_and_b32 v19, 31, v0
          v_lshlrev_b32 v19, 4, v19
          v_lshl_add_u32 v18, v18, 11, v19
          v_mov_b32 v21, 0
          v_min_u32 v20, 1, v0
          v_lshlrev_b32 v20, 30, v20
          v_accvgpr_write_b32 a240, -1
          v_accvgpr_write_b32 a241, -1
          v_accvgpr_write_b32 a242, -1
          v_accvgpr_write_b32 a243, -1
          s_lshr_b32 s{t3_}, s2, 7
          s_or_b32 s{t3_}, s{t3_}, s{sW}
          s_lshl_b32 s{t3_}, s{t3_}, 21
          s_add_u32 s{t3_}, s{t3_}, s2
          s_lshl_b32 s{t3_}, s{t3_}, 7
          s_add_u32 s{t3_}, s{t3_}, {WS_CNT}""")
    def xread(sg): return [f"ds_read_b128 {fx(sg, rb, s)}, v{vDX+s} offset:{(sg&1)*32768 + rb*2048}" for rb in range(4) for s in range(2)]
    def hread(sg): return [f"ds_read_b128 {fx(sg, 4, s)}, v{vDH+s} offset:{min(sg % 3, 1)*32768}" for s in range(2)]
    def wread(sg, j):
        par = min(sg % 3, 1) if sg != 22 else 0; o = []; cb = j if sg < 8 else P2ORD[j]
        for s in range(2):
            for i in range(2):
                if sg < 8 or cb < 8: a, off = vDQ + (cb & 7), par*32768 + (cb >> 3)*16384 + s*8192 + i*1024
                elif cb < 14: a, off = vDB + (cb & 1), par*32768 + ((cb-8) >> 1)*4096 + s*2048 + i*256
                else: a, off = vDBH, par*32768 + (cb-13)*4096 + s*2048 + i*256
                o.append((a, f"ds_read_b64_tr_b16 {fw(Jx(sg, j), s)[2*i:2*i+2]}, v{a} offset:{off}"))
        return o
    if OPT.get("pg", 1): seq += ([";@touch 0"] if OPT.get("n0", 4) else []) + ["s_branch L_base", ".p2align 12", ";@base", ";@batch 0", ";@stub 0", "L_base:"]
    if OPT.get("pst"): seq += stamp(26)
    def wpf(sr): return f"buffer_load_dword a{aDUM}, v{vL16}, {srd(sr)}, s83 offen ;@dummy"
    P1PF = OPT.get("p1pf", 0)
    if P1PF == 2: seq += [wpf(SB), wpf(SC)]
    LATE, WD = OPT.get("late1", 1), OPT.get("wd", 3)
    for sal, d in b1 + ([] if ES else xdma(1) + wdma(1) if LATE == 0 else wdma(1) if LATE == 1 else []): seq += sal + [d]
    if ES: LATE = 2
    RX, RW = OPT.get("rx", 3), OPT.get("rw", 7)
    assert ES
    seq += L(f"""s_and_b32 s{t0_}, s{sH}, {RX}
          s_lshl_b32 s{t1_}, s{t0_}, 11
          s_add_u32 s84, s{sLX}, s{t1_}
          s_lshl3_add_u32 s{sCo}, s{t1_}, s{sCo}
          s_and_b32 s{t1_}, s{t0_}, 1
          s_lshl_b32 s{t1_}, s{t1_}, 17
          s_add_u32 s{sXlo}, s{sXlo}, s{t1_}
          s_add_u32 s{t1_}, s{sXhi}, s{t1_}
          s_bitcmp1_b32 s{t0_}, 1
          s_cselect_b32 s{sXhi}, s{sXlo}, s{t1_}
          s_cselect_b32 s{sXlo}, s{t1_}, s{sXlo}
          s_and_b32 s{t0_}, s{sJ}, {RW & 3}
          s_lshl_b32 s{t1_}, s{t0_}, 10
          s_add_u32 s{sLW}, s{sLW}, s{t1_}
          s_lshl_b32 s{t1_}, s{t0_}, 15
          s_add_u32 s{sWo}, s{sWo}, s{t1_}
          s_and_b32 s{t1_}, s{t0_}, 2
          s_lshl_b32 s{t1_}, s{t1_}, 6
          v_xor_b32 v{vGW}, s{t1_}, v{vGW}
          v_xor_b32 v{vGW+1}, s{t1_}, v{vGW+1}
          s_and_b32 s{t0_}, s{sJ}, {RW & 4}
          s_cselect_b64 s[{SB}:{SB+1}], s[{sWUV}:{sWUV+1}], s[{sWUK}:{sWUK+1}]
          s_cselect_b64 s[{SC}:{SC+1}], s[{sWUK}:{sWUK+1}], s[{sWUV}:{sWUV+1}]
          s_lshl_b32 s{t0_}, s{t0_}, 12
          s_add_u32 s{sLW}, s{sLW}, s{t0_}""")
    if P1PF == 1: seq += [wpf(SB), wpf(SC)]
    cpf_c = [f"s_lshl2_add_u32 s84, s2, s{sW}", "s_lshl_b32 s84, s84, 11", "v_lshlrev_b32 v22, 5, v0", f"buffer_load_dword a{aDUM}, v22, {srd(SA)}, s84 offen ;@dummy"]
    if OPT.get("cpre") == 1: seq += cpf_c
    seq += ["WAITVM a0" if ES else "WAITVM w0,x0", "s_barrier"] + stamp(1)
    xr = xread(0); NPRE = 3
    seq += xr[:2] + [r for _, r in wread(0, 0)] + xr[2:4 if ES else 8]
    for j in range(1, NPRE): seq += [r for _, r in wread(0, j)]
    if OPT.get("pst"): seq += stamp(27)
    g.emit(seq)
    mf = []; G0 = []; FU = {}; LU = {}; done = {}
    def tile_mf(k, cb, rb, sgs, j, swap):
        ops = [(sg, s) for sg in sgs for s in range(2)]
        for q, x in enumerate(snake(len(ops), k)):
            sg, s = ops[x]; J = Jx(sg, j)
            FU.setdefault(J, len(mf)); LU[J] = len(mf)
            c0 = 0 if (q == 0 and sg in (0, 8)) else None
            mf.append(mfma(treg(k), fx(sg, rb, s), fw(J, s), c0) if swap else mfma(treg(k), fw(J, s), fx(sg, rb, s), c0))
        done[(sgs[-1], cb, rb)] = len(mf) - 1
    for sg in range(22):
        G0.append(len(mf))
        oo = list(enumerate(o1 if sg < 8 else o2))
        if sg == 0:
            oo = [(pos1[(cb, rb)], (cb, cb, rb)) for cb in range(8) for rb in snake(2, cb)] + \
                 [(pos1[(cb, rb + 2)], (cb, cb, rb + 2)) for cb in (2, 3, 4, 5, 6, 7, 0, 1) for rb in snake(2, cb)] + oo[32:]
        for k, (j, cb, rb) in oo: tile_mf(k, cb, rb, [sg], j, (cb >= 8) if sg < 8 else (cb in (12, 13)))
    Z0 = len(mf); G0.append(Z0)
    for sg in (22, 23):
        for k, (j, cb, rb) in list(enumerate(o2))[:24]: tile_mf(k, cb, rb, [sg], j, cb in (12, 13))
    for k, (j, cb, rb) in list(enumerate(o2))[24:]: tile_mf(k, cb, rb, [22, 23], j, False)
    S = Sched(mf)
    def pace(items, lo, hi, chain, slack=5):
        n = len(items)
        for q, (sal, d) in enumerate(items):
            x = lo + int(q * (hi - lo) / n)
            it = S.add("M", d, x, x + slack, chain=chain, sep=3, pre=sal)
            if q == 0: it["prelo"] = lo - 2
    def chain(txt, lo, hi=None, name=None, sep=1):
        for c in (L(txt) if isinstance(txt, str) else txt): S.add(kind(c), c, lo, hi, chain=name, sep=sep)
    BAR = {sg: G0[sg + 1] - 30 for sg in range(22)}; BAR[-1] = -1; BAR[22] = Z0 + 18
    XW = 54; X0 = 70
    gxupd = f"v_lshrrev_b32 v{vGX+1}, 3, v0\nv_lshl_add_u32 v{vGX}, v{vGX+1}, 10, v{vGX}\nv_xor_b32 v{vGX+1}, 64, v{vGX}"
    pace(wdma(1) + xdma(1), 2, X0 - 2, "dma", slack=2)
    for sg in range(22):
        g0, nx, B = G0[sg], G0[sg + 1], BAR[sg]
        lastuse = {}
        for j in range(16 if sg < 8 else 14):
            J = Jx(sg, j)
            if J < NPRE: continue
            lo = max(LU[J - NR] if J >= NR + 2 else 0, BAR[sg - 1] + 1, FU[J] - 44)
            hi = min(FU[J] - (8 if J >= 8 else 6), B - 5)
            if J == 8:
                S.add("S", "WAITVM x0", 22, 22, chain="t")
                for r in xr[4:]: S.add("D", r, 0, 27, chain="t")["dd"] = True
                S.add("X", ["WAITVM w0", "s_barrier"], 38, 38, chain="t")
            for a, r in wread(sg, j): S.add("T", r, lo, hi, chain="t"); lastuse[a] = hi
        if sg % 3 or sg == 21:
            for r, lu in lastuse.items():
                S.add("A", f"v_add_u32 v{r}, 0x8000, v{r}" if sg % 3 != 2 else f"v_subrev_u32 v{r}, 0x8000, v{r}", lu + 1, B - 1)
        blk = [f"WAITVM w{sg+1} L", "s_barrier"]
        if OPT.get("pg", 1) and sg == 1: blk = [";@touch 1"] + blk
        if sg == 7: blk += stamp(2)
        fine = (0, 1, 2, 3, 4, 5, 9, 11, 13, 15, 17, 19) if OPT.get("fine") != 2 else (15, 16, 17, 18, 19, 20, 21)
        if OPT.get("fine") and sg in fine: blk += stamp(18 + fine.index(sg))
        S.add("X", blk, B, B)
        xw, xh = (g0 + XW, B - 5) if sg else (B + 8, nx - 8)
        S.add("S", f"WAITVM x{sg+1}", xw, xw, chain=("xn", sg))
        for q, r in enumerate(xread(sg + 1)): S.add("D", r, xw, xh, chain=("xn", sg))
        if sg == 0:
            pace(wdma(2) + xdma(2), X0, nx + 2, "dma", slack=2); pace(wdma(3), nx + 4, nx + 38, "dma", slack=2)
            continue
        if sg < 21: pace(xdma(sg + 2), g0 + 40, B - 2, "dma")
        if sg == 5: S.add("S", f"s_and_b32 s{sLW}, s{sLW}, 0x3fff", B - 4, B + 1, chain="dma")
        if sg < 20: pace(wdma(sg + 3), B + 3, nx + 38, "dma")
        if sg == 20: pace(xdma(23) + wdma(23), B + 3, BAR[21] - 16, "dma")
    if OPT.get("pg", 1):
        x = Z0 + OPT.get("tz", 40)
        S.add("X", [";@touch 2"], x, x + 6)
        for c in ("v_lshrrev_b32 v23, 2, v0", "v_mul_u32_u24 v23, 3584, v23", "v_lshl_add_u32 v23, v0, 7, v23"): S.add("A", c, BAR[21] - 8, BAR[21] + 10, chain="pgp")
        S.add("M", f"buffer_load_dword a{aDUM}, v23, s[88:91], s17 offen ;@dummy", BAR[21] + 2, Z0 - 4, chain="pgp", sep=3,
              pre=[f"s_lshr_b32 s17, s{sLH}, 1", f"s_add_u32 s17, s17, L_base-L_pc-4+{4096*13}"])
    if OPT.get("probe"):
        for k, x in enumerate((20, 38, 50, 62, 70, 78, 86, 94, 102, 112, 150)): S.add("X", stamp(18 + k), Z0 + x, Z0 + x)
    S.add("S", "WAITVM x23", Z0, Z0, chain="xz")
    for r in xread(23): S.add("D", r, Z0, Z0 + 12, chain="xz")
    for x, (sg, j) in enumerate(FS):
        J = Jx(sg, j)
        if x == 6: S.add("X", ["WAITVM w23 L", "s_barrier"], BAR[22], BAR[22], chain="t")
        for a, r in wread(sg, j):
            S.add("T", r, max(LU[J - NR], BAR[21] + 1, FU[J] - 44), FU[J] - 8 if x >= 6 else min(FU[J] - 8, BAR[22] - 4), chain="t")
    GS = OPT.get("gs", 44); lo = OPT.get("g0", 100)
    for i in range(4):
        S.add("M", f"global_load_dwordx4 a[{GA+4*i}:{GA+3+4*i}], v18, s[{sX}:{sX+1}] offset:{512*i}", lo + GS*i, lo + GS*i + 10, chain="gate")
        S.add("M", f"global_load_dwordx4 a[{GA+16+4*i}:{GA+19+4*i}], v19, s[{sGATE}:{sGATE+1}] offset:{512*i}", lo + GS*i + GS//2, lo + GS*i + GS//2 + 10, chain="gate")
    S.add("M", f"buffer_store_dword v21, v20, {srd(SD)}, s{t3_} offen {ST} ;@tag=z", G0[2] + 20, G0[2] + 40, chain="gate", sep=1)
    a0, a1, a2, a3, acc = 18, 19, 20, 21, 17
    ch = [f"v_mov_b32 v{acc}, 0"]
    for i in range(16):
        ch += L(f"""v_accvgpr_read_b32 v{a1}, a{GA+i}
            v_accvgpr_read_b32 v{a3}, a{GA+16+i}
            v_lshlrev_b32 v{a0}, 16, v{a1}
            v_and_b32 v{a1}, 0xffff0000, v{a1}
            v_lshlrev_b32 v{a2}, 16, v{a3}
            v_and_b32 v{a3}, 0xffff0000, v{a3}
            v_mul_f32 v{a0}, v{a0}, v{a2}
            v_mul_f32 v{a1}, v{a1}, v{a3}
            v_cvt_pk_bf16_f32 v{a0}, v{a0}, v{a1}
            v_lshlrev_b32 v{a1}, 16, v{a0}
            v_and_b32 v{a0}, 0xffff0000, v{a0}
            v_add_f32 v{acc}, v{acc}, v{a1}
            v_add_f32 v{acc}, v{acc}, v{a0}""")
    lo = G0[3]
    chain(ch, lo, name="gate", sep=0)
    chain([f"v_add_f32_dpp v{acc}, v{acc}, v{acc} row_ror:{r} row_mask:0xf bank_mask:0xf" for r in (8, 4, 2, 1)], lo, name="gate", sep=2)
    chain([f"v_mov_b32 v{a0}, v{acc}"], lo, name="gate", sep=0)
    chain([f"v_permlane16_swap_b32 v{a0}, v{acc}"], lo, name="gate", sep=2)
    chain(f"""v_add_f32 v{acc}, v{acc}, v{a0}
            v_cvt_pk_bf16_f32 v{acc}, v{acc}, v{acc}
            v_and_b32 v{acc}, 0xffff0000, v{acc}
            v_mul_f32 v{acc}, 0xbfb8aa3b, v{acc}
            v_exp_f32 v{acc}, v{acc}
            v_add_f32 v{acc}, 1.0, v{acc}
            v_rcp_f32 v{acc}, v{acc}
            v_cvt_pk_bf16_f32 v{a0}, v{acc}, v{acc}
            v_and_b32 v{a0}, 0xffff0000, v{a0}
            v_sub_f32 v{a1}, 1.0, v{a0}
            v_cvt_pk_bf16_f32 v{a1}, v{a1}, v{a1}
            v_and_b32 v{a1}, 0xffff0000, v{a1}
            v_and_b32 v{a2}, 31, v0
            v_lshlrev_b32 v{a2}, 27, v{a2}
            v_lshrrev_b32 v{a3}, 2, v0
            v_add_u32 v{a2}, v{a2}, v{a3}""", lo, name="gate")
    S.add("M", f"buffer_store_dwordx2 v[{a0}:{a1}], v{a2}, {srd(SD)}, s{sT2} offen {ST} ;@tag=z", lo, G0[6] + 30, chain="gate", sep=4,
          pre=[f"s_lshl2_add_u32 s{sT2}, s2, s{sW}", f"s_lshl4_add_u32 s{sT2}, s{sT2}, {WS_G}"])
    chain(f"""v_lshrrev_b32 v21, 4, v0
          v_bfe_u32 v{vDB}, v0, 2, 2
          v_lshl_add_u32 v{vDB}, v21, 3, v{vDB}
          v_lshlrev_b32 v{vDB}, 6, v{vDB}
          v_and_b32 v21, 1, v21
          v_lshl_add_u32 v{vDB}, v21, 5, v{vDB}
          v_and_b32 v21, 3, v0
          v_lshl_add_u32 v{vDB}, v21, 3, v{vDB}
          v_add_u32 v{vDB}, {98304 + 16384}, v{vDB}
          v_xor_b32 v{vDB+1}, 32, v{vDB}""", lo, G0[7] - 2, name="gate")
    chain(gxupd, BAR[5] + 6, G0[6] + 30, name="gx", sep=0)
    if P1PF:
        for lo in (OPT.get("q1", 80), OPT.get("q2", 210)):
            S.add("M", wpf(SB), lo, lo + 10, chain="pf1", pre=[f"s_add_u32 s83, s83, {1<<20}"])
            S.add("M", wpf(SC), lo + 20, lo + 30, chain="pf1")
    if OPT.get("tlb"):
        sh = OPT["tlb"]
        S.add("A", f"v_lshlrev_b32 v22, {sh}, v0", 0, 10, chain="tlb")
        S.add("S", f"s_lshl_b32 s84, s{sPF}, {sh + 6}", 0, 12, chain="tlb")
        S.add("S", f"s_min_u32 s84, s84, 0x10000000", 0, 14, chain="tlb")
        S.add("M", f"buffer_load_dword a{aDUM}, v22, {srd(SD)}, s84 offen sc1 ;@dummy", 60, 70, chain="tlb")
    if not OPT.get("nopf"):
        P0, PS = OPT.get("p0", 280), OPT.get("ps", 32); order_ = "qkqkqqkqkqqkqk"
        for k, c in enumerate(order_):
            r = 81 if c == "q" else 82
            S.add("M", f"buffer_load_dword a{aDUM}, v{vL16 if c == 'q' else 1}, {srd(SG if c == 'q' else SH)}, s{r} offen ;@dummy", P0 + k*PS, P0 + k*PS + 16, chain="pf",
                  pre=[] if order_[:k].count(c) == 0 else [f"s_add_u32 s{r}, s{r}, {1<<20}"])
    if OPT.get("wo", "M") == "P":
        chain(mk_srd(84, sWOA, 8 << 20) + [f"s_lshl2_add_u32 s83, s2, s{sW}", "s_lshl_b32 s83, s83, 11", "v_lshlrev_b32 v22, 5, v0"], 20, 100, name="wp", sep=0)
        for k in range(4):
            x = OPT.get("wp0", 120) + k * OPT.get("wps", 144)
            S.add("M", f"buffer_load_dword a{aDUM}, v22, s[84:87], s83 offen ;@dummy", x, x + 10, chain="wp", pre=[f"s_add_u32 s83, s83, {2<<20}"] if k else [])
    n0 = G0[8]; frs = []
    for t in range(4):
        for rb in (3, 2, 1, 0): frs.append(((2*t, rb), (2*t + 1, rb), (rb >> 1)*16384 + (rb & 1)*4096 + t*1024))
    for db in range(8):
        for u in snake(2, db): frs.append(((8 + db, 2*u), (8 + db, 2*u + 1), u*16384 + 8192 + db*1024))
    ns = 0; later = []
    tmpA, tmpB = HK, HV
    for q, (ta, tb, off) in enumerate(frs):
        ka, kb = pos1[ta], pos1[tb]; A, B_ = treg(ka), treg(kb)
        lo = G0[7] + 2*max(ka, kb) + 1 + 8; hi = n0 + 2*min(ka, kb) - 1; hi2 = n0 + 2*max(ka, kb) - 3
        D_ = B_ if kb > ka else A
        ch = ("drain",)
        if min(ka, kb) >= 56: hi = hi2 = G0[10]
        if A.f == "a":
            for r in range(4): S.add("A", f"v_accvgpr_read_b32 {tmpA[r]}, {A[r]}", lo, hi, chain=ch, sep=2 if r == 0 else 0)
            for r in range(4): S.add("A", f"v_accvgpr_read_b32 {tmpB[r]}, {B_[r]}", lo, hi, chain=ch)
            A, B_ = tmpA, tmpB; D_ = B_
        direct = q % 4 == 0
        if direct: S.add("S", f"s_add_u32 s{t1_}, s{sKV}, {off}", lo - 2, hi, chain=ch)
        if D_ is B_: cv = ((3, B_, 2), (2, B_, 0), (0, A, 0), (1, A, 2))
        else: cv = ((0, A, 0), (1, A, 2), (2, B_, 0), (3, B_, 2))
        for d_, src, r in cv: S.add("A", f"v_cvt_pk_bf16_f32 {D_[d_]}, {src[r]}, {src[r+1]}", lo, hi, chain=ch)
        if direct and OPT.get("x_nodirect"): pass
        elif direct: S.add("M", f"buffer_store_dwordx4 {D_}, v{vL16}, {srd(SD)}, s{t1_} offen {OPT.get('kvst', ST).replace('+', ' ').replace('-', '')} ;@tag=kv", lo, hi2, chain=ch, sep=1)
        else:
            for r in range(4): S.add("A", f"v_accvgpr_write_b32 {stash(ns)[r]}, {D_[r]}", lo, hi2, chain=ch)
            later.append((ns, off)); ns += 1
    assert ns == 24 and pos1[frs[27][0]] in (54, 55) and pos1[frs[28][0]] in (56, 57), (pos1[frs[27][0]],)
    NSTG = OPT.get("nstg", 10); KVP = OPT.get("kvp", 21)
    t_a, t_b = G0[9] + 2, BAR[8 + NSTG] - 14
    sts = [([f"s_add_u32 s{sT2}, s{sKV}, {off}"], f"buffer_store_dwordx4 {stash(i)}, v{vL16}, {srd(SD)}, s{sT2} offen {OPT.get('kvst', ST).replace('+', ' ').replace('-', '')} ;@tag=kv") for i, off in later]
    sts.append(([], f"buffer_store_dwordx4 a[240:243], v{vL16}, {srd(SD)}, s{sXh} offen {ST} ;@tag=kv"))
    for q, (pre, d) in enumerate(sts if not OPT.get("x_nost") else []):
        lo = t_a + (q * (t_b - t_a)) // (len(sts) - 1)
        S.add("M", d, lo - 6, lo, chain="kvst", sep=3, pre=pre)
    pre, d = signal(SF, f"s{t2_}", 0, "z")
    chain(pre + [f"s_lshr_b32 s{t0_}, s{sJ}, 1", f"s_lshl_b32 s{t0_}, s{t0_}, 12"], G0[7], BAR[7], name="sig")
    for k in range(4):
        lo = BAR[8 + k] + 20
        S.add("X", one_lane(d), lo, lo + 14, chain="sig", sep=3, pre=[f"s_xor_b32 s{t2_}, s{t0_}, {k << 12}"])
    E0 = max(NSTG + 7, 14)
    S.add("X", L(f"s_cmp_eq_u32 s{sW}, 0\ns_cselect_b32 s81, 256, 0"), G0[E0 - 2], G0[E0 - 2] + 40, chain="sig")
    PE = OPT.get("pe", 1)
    x = BAR[E0 - 2] + 5 if PE else BAR[E0 - 1] - 14
    S.add("M", f"buffer_load_dword v1, off, {srd(SF)}, s{sLH} sc1", x, x + 6, chain="sig")
    S.add("X", g.spin(1, SF, f"s{sLH}", 0, "s81"), G0[E0] + XW + 12, G0[E0] + XW + 24, chain="sig")
    S.add("X", mk_srd(SF, sWS, 16384, WS_CNT)[:3], BAR[E0] - 4, BAR[E0] + 30, chain="sig")
    E1 = max(NSTG + 9, 16)
    pre, d = signal(SF, "s70", 0, "kv")
    chain(pre + [f"s_lshl_b32 s70, s{sH}, 8"], G0[E1], BAR[E1], name="sig")
    S.add("X", one_lane(d), BAR[E1] + 1, BAR[E1] + 12, chain="sig", sep=1)
    chain([f"s_lshl4_add_u32 s70, s{sLH}, s70", "s_lshr_b32 s81, s81, 5"], BAR[E1] + 1, name="sig")
    x = BAR[KVP - 2] + 5 if (PE and E1 < KVP - 2) else BAR[KVP - 1] + 1 if PE else BAR[KVP - 1] - 14
    S.add("M", f"buffer_load_dword v1, off, {srd(SF)}, s70 sc1", x, x + 6, chain="sig")
    S.add("X", g.spin(1, SF, "s70", 0, "s81"), G0[KVP] + XW + 6 if not PE else BAR[KVP] - 4, BAR[KVP] - 1, chain="sig")
    if OPT.get("pg", 1):
        for k, e_ in enumerate(["L_F1-L_pc", "L_F1-L_pc+4096"][:OPT.get("vf", 0)]):
            pre, d = cpf(e_); S.add("M", d, G0[22] + 50 + 6 * k, G0[22] + 84, chain="cpf", pre=pre, sep=3)
    elif not OPT.get("nocpf"):
        for sg in range(0, 22, OPT.get("cps", 2)):
            pre, d = cpf(".-L_pc+6144"); S.add("M", d, G0[sg] + 4, G0[sg] + 30, chain="cpf", pre=pre)
        for k, e_ in enumerate([".-L_pc+6144", ".-L_pc+9984", ".-L_pc+13824", "L_F1-L_pc", "L_F1-L_pc+4096"]):
            x = G0[22] + (50 if OPT.get("wo", "M") != "E" else 0)
            pre, d = cpf(e_); S.add("M", d, x + 6 * k, x + 34, chain="cpf", pre=pre, sep=3)
    S.add("X", L(f"s_lshl_b32 s{t2_}, s{sH}, 20\ns_add_u32 s{SA}, s{sWS}, s{t2_}\ns_addc_u32 s{SA+1}, s{sWS+1}, 0"), G0[21], G0[21] + 40, chain="sa")
    S.add("X", L(f"s_add_u32 s{t2_}, s{sBHi}, 1\ns_lshl_b32 s{SA+2}, s{t2_}, 16"), G0[21], G0[21] + 50, chain="sa")
    pace(att_first_dmas(sLX), BAR[KVP] + 5, BAR[KVP] + 5 + 12 * OPT.get("kvs", 8), "dma", slack=2)
    chain("v_and_b32 v22, 15, v0\nv_lshrrev_b32 v17, 4, v0\nv_lshlrev_b32 v17, 2, v17\nv_sub_u32 v22, v22, v17", G0[13], name="bm", sep=0)
    for r in range(4):
        chain(f"""v_subrev_u32 v17, {r}, v22
              v_lshlrev_b32 v18, 31, v17
              v_or_b32 v21, v17, v18
              v_ashrrev_i32 v21, 31, v21
              v_and_b32 {HK[r]}, 0xff800000, v21
              v_not_b32 v17, v17
              v_or_b32 v21, v17, v18
              v_ashrrev_i32 v21, 31, v21
              v_and_b32 {HV[r]}, 0xff800000, v21""", G0[13], name="bm", sep=0)
    chain(f"""s_lshl_b32 s{t3_}, s{sW}, 4
          v_add_u32 v18, s{t3_}, v22
          s_lshr_b32 s{t3_}, s{sW}, 1
          s_mul_i32 s{t3_}, s{t3_}, {XS - 2048}
          s_add_u32 s{t3_}, s{t3_}, s{sLH}
          s_add_u32 s{t3_}, s{t3_}, 32768
          v_add_u32 v17, s{t3_}, v{vL16}
          v_lshlrev_b32 v21, 5, v0""", G0[13], G0[16], name="bm")
    chain([f"v_cmp_gt_i32 {msk(k)}, {16*(k >> 2) + (k & 3)}, v18" for k in range(16)], BAR[21] + 1, name="l0", sep=0)
    chain([c.replace("s81", f"s{t1_}") for c in p5_setup()], Z0, name="l0", sep=0)
    chain(f"""s_lshl2_add_u32 s73, s2, s{sW}
          s_lshl_b32 s73, s73, 11
          s_lshl1_add_u32 s{t0_}, s{sLH}, 32768""", Z0, name="l0", sep=0)
    chain(f"v_add_u32 v2, s{t0_}, v{vL16}", BAR[22] - 4, Z0 + 62, name="l0")
    S.add("X", L(f"s_or_b32 s{t0_}, s{sJ}, s{sW}\ns_cmp_eq_u32 s{t0_}, 0\ns_cselect_b32 s{t0_}, 0xff800000, 0"), Z0, Z0 + 96, chain="l0", sep=1)
    S.add("X", [f"s_and_b32 s{t1_}, s{sXh}, 0x7800", f"s_cselect_b32 s{t1_}, 0, 0x70000000", f"s_add_u32 s77, s{sXh}, s{t1_}"], Z0, Z0 + 100, chain="l0")
    chain(f"s_sub_u32 s77, s77, 2048\ns_mov_b32 s{t2_}, {f32(QSCALE)}\ns_mov_b32 s{t3_}, s{t2_}", Z0, Z0 + 104, name="l0")
    chain(f"""v_and_b32 v22, 15, v0
          v_lshlrev_b32 v22, 3, v22
          s_lshl_b32 s85, s{sW}, 7
          s_add_u32 s85, s85, {WS_G}
          s_lshl_b32 s86, s{sJ}, 10
          s_add_u32 s86, s86, s85
          s_lshl_b32 s87, s{sBHi}, 10
          s_add_u32 s87, s87, s85""", G0[21], name="g", sep=0)
    for rb in range(4):
        S.add("M", f"buffer_load_dwordx2 a[{64+2*rb}:{65+2*rb}], v22, {srd(SD)}, s{86 + (rb>>1)} offen offset:{(rb&1)*512} sc1", BAR[21] - 4, G0[22] - 2, chain="g", sep=1)
    chain(f"""s_mov_b32 s{SB}, s{sWOB}
          s_mov_b32 s{SB+1}, s{sWOB+1}
          s_mov_b32 s{SB+2}, {2<<20}
          s_mov_b32 s{SC}, s{sWOA}
          s_mov_b32 s{SC+1}, s{sWOA+1}
          s_mov_b32 s{SC+2}, {8<<20}""", G0[12], G0[13], name="pf")
    if not OPT.get("nopf"):
        S.add("M", f"buffer_load_dword a{aDUM}, v21, {srd(SB)}, s73 offen ;@dummy", Z0 + 74, Z0 + 94, chain="wpf")
    chain(f"s_lshl2_add_u32 s72, s2, s{sW}\ns_lshl_b32 s72, s72, 12\ns_add_u32 s72, s72, {WS_XCH}", BAR[21] + 2, G0[22], name="pre")
    g.prefill = [f"buffer_store_dwordx4 a[240:243], v{vL16}, {srd(SD)}, s72 offen offset:{k*1024} {ST} ;@tag=ob" for k in range(4)]
    PRIN = OPT.get("prin", -16)
    if PRIN < 200:
        for k, d in enumerate(g.prefill): S.add("M", d, G0[22] + PRIN + 14*k, G0[22] + PRIN + 14*k + 6, chain="pre")
        g.prefill = []
    def rdy(*tiles): return max(done[(23, cb, rb)] for cb, rb in tiles) + 8
    def pk(d, a, b, lo): S.add("A", f"v_cvt_pk_bf16_f32 {d}, {a}, {b}", lo, chain="la")
    def xo(rb): return (rb >> 1) * XS + (rb & 1) * 8192
    for rb in (3, 2, 1, 0):
        a, b = bt(1, 0, rb), bt(1, 1, rb); lo = rdy((11, rb))
        pk(a[0], a[0], a[1], lo); pk(a[1], a[2], a[3], lo); pk(a[2], b[0], b[1], lo); pk(a[3], b[2], b[3], lo)
        S.add("M", f"ds_write_b128 v2, {a} offset:{xo(rb) + 2048}", lo, lo + 12, chain="la", sep=1)
    for rb in (3, 2, 1, 0):
        lo = rdy((13, rb)); a, b = bt(2, 0, rb), bt(2, 1, rb)
        pk(a[3], a[2], a[3], lo - 8); pk(a[2], a[0], a[1], lo - 8); pk(a[0], b[0], b[1], lo); pk(a[1], b[2], b[3], lo)
        S.add("M", f"ds_write_b128 v2, {a} offset:{xo(rb) + 3072}", lo, lo + 16, chain="la", sep=1)
        S.add("A", f"v_mov_b32 {b[2]}, {a[0]}", lo, chain="la"); S.add("A", f"v_mov_b32 {b[3]}, {a[1]}", lo, chain="la")
    x = lo + 19
    S.add("X", ["s_waitcnt lgkmcnt(0)", "s_barrier"], lo, x, chain="la", sep=2)
    S.add("D", "ds_read_b128 a[192:195], v17 offset:16384", lo, x + 1, chain="la", sep=1)
    def prevrd(rbs):
        return [f"ds_read_b128 {KP(rb)}, v2 offset:{xo(rb)}" for rb in rbs] + \
               [f"ds_read_b64 {bt(2, db, rb)[0:2]}, v2 offset:{xo(rb) + 1024 + (1 - db)*8}" for rb in rbs for db in range(2)]
    S.add("M", f"buffer_store_dwordx4 a[192:195], v{vL16}, {srd(SD)}, s{sXh} offen {ST}", lo, x + 7, chain="la", sep=6)
    for c in prevrd((1, 3)): S.add("D", c, lo, chain="la")
    hin = aq(1, 3); N = S.n; HL = N - OPT.get("hl", 54); HC = N - OPT.get("hc", 14)
    hld = f"buffer_load_dwordx4 {hin}, v{vL16}, {srd(SD)}, s77 offen sc1"
    S.add("M", hld, HL, HL + 4, chain="la")
    hmx = [f"v_max3_u32 v1, {hin[0]}, {hin[1]}, {hin[2]}", f"v_max_u32 v1, v1, {hin[3]}"]
    for c in hmx: S.add("A", c, HC, HC, chain="la")
    S.add("X", ["v_cmp_eq_u32 vcc, -1, v1", "s_cbranch_vccnz L_hretry", "L_hgo:"], HC + 1, HC + 1, chain="la")
    g.ool += ["L_hretry:", "s_sub_u32 s72, s72, 1", "s_cbranch_scc1 L_hgo ;@nottaken", hld, "s_waitcnt vmcnt(0)"] + hmx + \
             ["v_cmp_eq_u32 vcc, -1, v1", "s_cbranch_vccnz L_hretry ;@nottaken", "s_branch L_hgo"]
    S.add("M", f"ds_write_b128 v17, {hin}", HC + 2, HC + 2, chain="la")
    S.add("X", ["s_waitcnt lgkmcnt(0)", "s_barrier"], HC + 6, HC + 6, chain="la")
    for k, c in enumerate(prevrd((0, 2))): S.add("D", c, HC + 7, HC + 7 + k, chain="la")
    for rb in (3, 2, 1, 0):
        a, b = bt(0, 0, rb), bt(0, 1, rb); lo = max(rdy((9, rb)), Z0 + 105)
        for d_, src, r in ((0, a, 0), (1, a, 2), (2, b, 0), (3, b, 2)): S.add("A", f"v_cvt_pk_bf16_f32 {a[d_]}, {src[r]}, {src[r+1]}", lo, chain="lq")
    if OPT.get("sm", 1):
        chain(["v_bfe_u32 v1, v0, 1, 1", "v_subrev_u32 v1, 1, v1", "v_and_b32 v1, 0x3f803f80, v1"] + [f"v_accvgpr_write_b32 {ONES2[r]}, v1" for r in range(4)], Z0 + 44, Z0 + 120, name="o2", sep=0)
    chain(L(f"""s_sub_u32 s81, s{sJ}, 1
          s_sub_u32 s{t1_}, s{sJ}, 2
          s_mul_i32 s81, s81, s{t1_}
          s_lshl4_add_u32 s81, s81, s{sH}
          s_lshl2_add_u32 s81, s81, s{sW}
          s_mul_i32 s81, s81, 3328
          s_mov_b32 s73, 0
          s_mov_b32 s72, 0x20000
          s_lshl_b32 s{t1_}, s{sH}, 15
          s_add_u32 s{t1_}, s{t1_}, s{sLH}
          s_add_u32 s{t1_}, s{t1_}, {WS_CTX}
          s_mul_i32 s74, s{sJ}, {160*8192}
          s_add_u32 s74, s74, s{t1_}
          s_mul_i32 s75, s{sBHi}, {160*8192}
          s_add_u32 s75, s75, s{t1_}
          s_mul_i32 s{t1_}, s{sH}, {3*8192}
          s_sub_u32 s{t1_}, {128*8192}, s{t1_}
          s_add_u32 s{sT}, s74, s{t1_}
          s_add_u32 s{sT2}, s75, s{t1_}""") + att_scalars(), x + 9, HC - 1, name="lx")
    chain([f"v_or_b32 v{20+r}, s{t0_}, {HV[r]}" for r in range(4)], lo, name="lq", sep=0)
    S.add("S", f"s_mov_b32 s{t0_}, {f32(BSCALE)}", lo, chain="lq", sep=1)
    NQ = OPT.get("nq", 12); g.qdone = []
    for t, rb in [(t, rb) for t in range(4) for rb in (3, 2, 1, 0)][:NQ]:
        a, b = aq(2*t, rb), aq(2*t+1, rb); lo = rdy((2*t + 1, rb)); g.qdone.append((t, rb))
        for r_ in (a, b):
            for k in range(4): S.add("A", f"v_mul_f32 {r_[k]}, s{t2_}, {r_[k]}", lo, chain="lq")
        for d_, src, r in ((0, a, 0), (1, a, 2), (2, b, 0), (3, b, 2)): S.add("A", f"v_cvt_pk_bf16_f32 {a[d_]}, {src[r]}, {src[r+1]}", lo, HL - 1 if (t, rb) == (0, 3) else None, chain="lq")
    g.emit(S.run("gemm12"), eager=10, name="gemm12")
    g.emit(stamp(5))
    if OPT.get("x_sleep"): g.emit([f"s_sleep {OPT['x_sleep']}"])
    local_attention(g)

def att_head():
    o = L(f"""v_mov_b32 v2, v{vL16}
          v_add_u32 v3, 0x10000, v{vL16}
          v_mov_b32 v1, 0
          s_mov_b32 m0, s71
          WAITVM k0 L
          s_barrier""")
    o += [f"ds_read_b128 a[{144+4*f}:{147+4*f}], v2 offset:{f*1024}" for f in range(8)]
    o += [f"buffer_load_dwordx4 v{vL16}, {srd(SA)}, s70 offen offset:{k*1024} sc1 lds ;@tag=kvA" for k in range(2)]
    return o

def att_scalars():
    return L(f"""s_and_b32 s70, s{sW}, 1
          s_lshr_b32 s{t1_}, s{sW}, 1
          s_lshl3_add_u32 s71, s{t1_}, s70
          s_add_u32 s71, s71, 4
          s_lshl_b32 s71, s71, 13
          s_lshl_b32 s70, s70, 14
          s_mul_i32 s{t1_}, s{t1_}, 24576
          s_sub_u32 s70, s70, s{t1_}
          s_add_u32 s70, s70, 65536""")

def att_first_dmas(sLX):
    d = []
    for k in range(8):
        sal = []
        if k == 0: sal = [f"s_mov_b32 m0, s{sLX}", f"s_lshl_b32 s{sT}, s{sW}, 14"]
        if k == 4: sal = [f"s_add_u32 m0, s{sLX}, 4096", f"s_add_u32 s{sT}, s{sT}, 4096"]
        d.append((sal, f"buffer_load_dwordx4 v{vL16}, {srd(SA)}, s{sT} offen offset:{(k&3)*1024} sc1 lds ;@tag=k0"))
    for k in range(4):
        sal = []
        if k == 0: sal = [f"s_lshr_b32 s{sT}, s{sLX}, 1", f"s_add_u32 m0, s{sT}, {65536 + 16384}", f"s_and_b32 s71, s{sT}, 8192",
                          f"s_add_u32 s{sT}, s{sT}, s71", f"s_add_u32 s{sT}, s{sT}, 8192"]
        d.append((sal, f"buffer_load_dwordx4 v{vL16}, {srd(SA)}, s{sT} offen offset:{k*1024} sc1 lds ;@tag=v0"))
    return d

def local_attention(g):
    q = []
    def e(s): q.extend(L(s))
    def pk(d, a, b): return f"v_cvt_pk_bf16_f32 {d}, {a}, {b}"
    mO, mP, mP0 = HK, HV, R("v", 20)
    qp = []
    for t in range(4):
        for rb in range(4):
            if (t, rb) in g.qdone: continue
            a, b = aq(2*t, rb), aq(2*t+1, rb)
            for r in (a, b): qp += [f"v_pk_mul_f32 {r[0:2]}, {r[0:2]}, s[{t2_}:{t3_}]", f"v_pk_mul_f32 {r[2:4]}, {r[2:4]}, s[{t2_}:{t3_}]"]
            qp += [pk(a[0], a[0], a[1]), pk(a[1], a[2], a[3]), pk(a[2], b[0], b[1]), pk(a[3], b[2], b[3])]
    assert all((0, rb) in g.qdone for rb in range(4))
    def fill(n):
        assert len(qp) >= n
        q.extend(qp[:n]); del qp[:n]
    def Sp(rb): return bt(0, 1, rb)
    def So(rb): return bt(1, 1, rb)
    mx, mc = aq(1, 2), aq(1, 1); rbs = (1, 3, 0, 2)
    for rb in rbs: e(mfma(So(rb), bt(1, 0, rb), bt(0, 0, rb), mO))
    for rb in rbs: e(mfma(Sp(rb), KP(rb), bt(0, 0, rb), mP0 if rb == 0 else mP))
    for k in range(8): e(f"v_accvgpr_read_b32 v{vG+k}, a{64+k}")
    for rb in rbs:
        a, b = Sp(rb), So(rb)
        e(f"v_max3_f32 {mx[rb]}, {b[0]}, {b[1]}, {b[2]}\nv_max3_f32 {mx[rb]}, {mx[rb]}, {b[3]}, {a[0]}")
        e(f"v_max3_f32 {mx[rb]}, {mx[rb]}, {a[1]}, {a[2]}\nv_max_f32 {mx[rb]}, {mx[rb]}, {a[3]}")
    for op in ("v_permlane16_swap_b32", "v_permlane32_swap_b32"):
        for rb in rbs: e(f"v_mov_b32 {mc[rb]}, {mx[rb]}")
        for rb in rbs: e(f"{op} {mc[rb]}, {mx[rb]}")
        for rb in rbs: e(f"v_max_f32 {mx[rb]}, {mx[rb]}, {mc[rb]}")
    for rb in rbs: e(f"v_mul_f32 {mx[rb]}, s{t0_}, {mx[rb]}")
    for rb in rbs:
        a, b = Sp(rb), So(rb)
        for r in (a, b):
            for k in range(4): e(f"v_fma_f32 {r[k]}, {r[k]}, s{t0_}, -{mx[rb]}")
        for r in (a, b):
            for k in range(4): e(f"v_exp_f32 {r[k]}, {r[k]}")
        q.extend([pk(a[0], a[0], a[1]), pk(a[1], a[2], a[3]), pk(a[2], b[0], b[1]), pk(a[3], b[2], b[3])])
        fill(2)
        e(mfma(So(rb), ONES, Sp(rb), 0))
        for db in range(2): e(mfma(bt(db, 0, rb), bt(2, db, rb), Sp(rb), 0))
    fill(len(qp))
    if OPT.get("probe"): q.extend(stamp(29))
    for rb in rbs: e(f"v_rcp_f32 {mx[rb]}, {So(rb)[0]}")
    for rb in rbs: e(f"v_mul_f32 {mx[rb]}, {mx[rb]}, v{vG+2*rb+1}")
    for n_, rb in enumerate((0, 2, 1, 3)):
        a, b = bt(0, 0, rb), bt(1, 0, rb)
        pr = R("v", mx.b + (rb & 2), 2); sel = "op_sel_hi:[1,0]" if rb % 2 == 0 else "op_sel:[0,1]"
        for r in (a, b):
            for k in (0, 2): e(f"v_pk_mul_f32 {r[k:k+2]}, {r[k:k+2]}, {pr} {sel}")
        q.extend([pk(a[0], a[0], a[1]), pk(a[1], a[2], a[3]), pk(a[2], b[0], b[1]), pk(a[3], b[2], b[3])])
        if rb & 1: e(f"s_add_u32 s{sT + (rb>>1)}, s{sT + (rb>>1)}, 4096")
        e(f"buffer_store_dwordx4 {a}, v{vL16}, {srd(SD)}, s{sT + (rb>>1)} offen {ST} ;@tag=ob")
        if n_ == 0: q.extend(att_head())
    g.emit(q, name="local")

sR5, sKh, sCtx, sWo5, sL5, sCol, sSig, sWt = 82, 83, 84, 85, 86, 87, 79, 80
vG5, vC5 = 12, 14
def p5_ctx(sl, rb, s):
    f, b = (("a", 208), ("v", 152), ("a", 0), ("a", 32), ("a", 64))[sl]
    return R(f, b + 8*rb + 4*s)
def p5_lds(sl): return (131072, 32768, 65536, 98304, 0)[sl]
def p5_wdma(sl, rel, sr=SB):
    rot = OPT.get("rot", 1) and sr == SC
    return [([f"s_xor_b32 m0, s76, {p5_lds(sl) + i*1024}", f"s_xor_b32 s{sT}, s{sWo5}, {rel*262144 + i*8192}"] if rot else
             [f"s_add_u32 m0, s{sL5}, {p5_lds(sl) + i*1024}", f"s_add_u32 s{sT}, s{sWo5}, {rel*262144 + i*8192}"],
             f"buffer_load_dwordx4 v{vG5 + (i&1)}, {srd(sr)}, s{sT} offen lds ;@tag=w5_{sl}") for i in range(8)]
def p5_cld(sl, rel, xr=False):
    o = []
    for s in range(2):
        for rb in range(4):
            o.append(([f"{'s_xor_b32' if xr else 's_add_u32'} s{sT2}, s{sCtx}, {rel*32768 + s*8192}"] if rb == 0 else [],
                      f"buffer_load_dwordx4 {p5_ctx(sl, rb, s)}, v{vC5 + (rb>>1)}, {srd(SD)}, s{sT2} offen offset:{(rb&1)*1024} sc1"))
    return o
def NB0(): return OPT.get("nb0", 5)
def p5_setup():
    CI = OPT.get("ci", 0)
    return L(f"""s_and_b32 s{t0_}, s2, 7
          s_lshr_b32 s{t1_}, s2, 3
          s_and_b32 s{sKh}, s{t0_}, 1
          s_and_b32 s{t2_}, s{t0_}, 2
          {f"s_and_b32 s{t3_}, s{t1_}, 7" if not OPT.get("rm", 0) else f"s_lshr_b32 s{t3_}, s{t1_}, 2"}
          s_lshl2_add_u32 s{sR5}, s{t2_}, s{t3_}
          s_and_b32 s{t2_}, s{t0_}, 4
          {f"s_lshr_b32 s{t3_}, s{t1_}, 3" if not OPT.get("rm", 0) else f"s_and_b32 s{t3_}, s{t1_}, 3"}
          s_xor_b32 s{t3_}, s{t3_}, {OPT.get("rm", 0)}
          s_add_u32 s{sCol}, s{t2_}, s{t3_}
          s_lshl_b32 s{sCol}, s{sCol}, 8
          s_lshl_b32 s{sL5}, s{sW}, 13
          s_lshl_b32 s{sWo5}, s{sW}, 16
          s_add_u32 s{sWo5}, s{sWo5}, s{sCol}
          {f"s_xor_b32 s{t2_}, s{t3_}, 1" if OPT.get("x_c3") else ""}
          {f"s_min_u32 s{t2_}, s{t2_}, 1" if OPT.get("x_c3") else ""}
          {f"s_xor_b32 s{t2_}, s{t2_}, 1" if OPT.get("x_c3") else ""}
          {f"s_mul_i32 s{t2_}, s{t2_}, 0x500" if OPT.get("x_c3") else ""}
          {f"s_xor_b32 s{sWo5}, s{sWo5}, s{t2_}" if OPT.get("x_c3") else ""}
          s_mul_i32 s{t0_}, s{sKh}, {NB0()*262144}
          s_add_u32 s{sWo5}, s{sWo5}, s{t0_}
          s_mul_i32 s{sCtx}, s{sR5}, {160*8192}
          s_and_b32 s{t0_}, s{sW}, 1
          s_lshl_b32 s{t0_}, s{t0_}, 14
          s_add_u32 s{sCtx}, s{sCtx}, s{t0_}
          s_mul_i32 s{t0_}, s{sKh}, {NB0()*32768}
          s_add_u32 s{sCtx}, s{sCtx}, s{t0_}
          s_add_u32 s{sCtx}, s{sCtx}, {WS_CTX + 128*8192}
          s_sub_u32 s{t0_}, 15, s{sR5}
          s_min_u32 s{t0_}, s{t0_}, s{sR5}
          s_lshl1_add_u32 s{t0_}, s{t0_}, s{sKh}
          s_lshl_b32 s{sWt}, s{t0_}, 8
          s_add_u32 s{sWt}, s{sWt}, {32*256}
          s_and_b32 s81, s{sW}, 1
          s_lshl_b32 s81, s81, 7
          s_add_u32 s81, s81, s{sKh}
          s_lshl_b32 s81, s81, 7
          s_add_u32 s81, s81, 98304
          s_lshl_b32 s{t0_}, s{sW}, 11
          v_lshrrev_b32 v{vC5}, 4, v0
          v_bfe_u32 v{vG5}, v0, 1, 3
          v_xor_b32 v{vG5}, v{vG5}, v{vC5}
          v_lshlrev_b32 v{vG5}, 5, v{vG5}
          v_lshl_add_u32 v{vG5}, v{vC5}, 11, v{vG5}
          v_and_b32 v{vC5}, 1, v0
          v_lshl_add_u32 v{vG5}, v{vC5}, 4, v{vG5}
          v_xor_b32 v{vG5+1}, {512 if CI else 128}, v{vG5}
          v_lshrrev_b32 v{vC5}, 4, v0
          v_bfe_u32 v18, v0, 2, 2
          v_lshl_add_u32 v{vC5}, v{vC5}, 2, v18
          v_and_b32 v18, 3, v0
          v_lshlrev_b32 v18, 3, v18
          v_lshl_add_u32 v18, v{vC5}, 8, v18
          v_and_b32 v{vC5}, 7, v{vC5}
          v_lshl_add_u32 v18, v{vC5}, 5, v18
          v_xor_b32 v18, s81, v18
          v_add_u32 v{vC5}, s{t0_}, v{vL16}
          v_xor_b32 v{vC5+1}, 0x800, v{vC5}""")

def attention(g):
    p = g.p
    RA = 8
    vDK, vDV, vNI, vBad = 2, 3, 17, 1
    sSrc, sM0, sCnt, sFB, sLX, sCb = 70, 71, 72, 73, 76, 74
    def Q(qb, t): return R("v", vQ + 16*qb + 4*t)
    def S_(kb, qb): return R("v", 88 + 16*qb + 4*kb)
    def Pp(b, u, qb): return R("v", 152 + 32*(qb >> 1) + 16*b + 8*(qb & 1) + 4*u)
    def NM(qb): return R("v", 216 + 4*qb)
    def O(db, qb): return R("a", 32*qb + 4*db)
    def Lr(qb): return R("a", 128 + 4*qb)
    def F(f): return R("a", 144 + 4*(f & 15))
    mx, mc, mt, TMP = 20, 248, 252, (232, 240)
    lab = {k: "L_" + k for k in ("F1", "D", "DD", "T", "T1", "S", "SD", "TAIL")}
    def rdK(f, i): return f"ds_read_b128 {F(f)}, v{vDK} offset:{i*16384 + f*1024}"
    def rdV(f, i): return f"ds_read_b128 {F(f)}, v{vDV} offset:{i*16384 + (f & 1)*8192 + (f >> 1)*1024}"
    def dma(k, tag):
        sal = []
        if k == 0: sal = [f"s_mov_b32 m0, s{sM0}"]
        if k == 4: sal = [f"s_add_u32 m0, s{sM0}, 4096", f"s_add_u32 s{sT}, s{sSrc}, 4096"]
        return sal, f"buffer_load_dwordx4 v{vL16}, {srd(SA)}, s{sSrc if k < 4 else sT} offen offset:{(k&3)*1024} sc1 lds ;@tag={tag}"
    def act(st, i, base):
        if st == "full" or (st == "diag" and i == 0): return [base, base + 1]
        if st == "diag": return [base + 1]
        return []
    def acts(sts, i): return act(sts[0], i, 0) + act(sts[1], i, 2)
    def masked(sts, i):
        for b, st in enumerate(sts):
            if st == "diag": return 2*b + i
        return None
    SM = OPT.get("sm", 1)
    def rowsum(qb, b, zero=False):
        if SM: return [f"v_smfmac_f32_16x16x64_bf16 {Lr(qb)}, {ONES2}, {R('v', Pp(b, 0, qb).b, 8)}, v{vIDX}"]
        return [mfma(Lr(qb), ONES, Pp(b, u, qb), 0 if (zero and u == 0) else None) for u in range(2)]
    def epi_head(qb):
        return [f"v_accvgpr_read_b32 v{mx+qb}, {Lr(qb)[0]}"] + ([f"v_accvgpr_read_b32 v{mc}, {Lr(qb)[1]}", f"v_add_f32 v{mx+qb}, v{mx+qb}, v{mc}"] if SM else []) + [f"v_max_f32 v{vBad}, v{vBad}, v{mx+qb}", f"v_rcp_f32 v{mx+qb}, v{mx+qb}"]
    def epi_frag(qb, t, pkm=False):
        o = []; tmp = R("v", TMP[t & 1], 8)
        for r in range(8): o.append(f"v_accvgpr_read_b32 {tmp[r]}, {O(2*t + (r >> 2), qb)[r & 3]}")
        if t == 0: o.append(f"v_mul_f32 v{mx+qb}, v{mx+qb}, v{vG+2*qb}")
        if pkm:
            sel = "op_sel_hi:[1,0]" if qb % 2 == 0 else "op_sel:[0,1]"
            for r in range(4): o.append(f"v_pk_mul_f32 {tmp[2*r:2*r+2]}, {tmp[2*r:2*r+2]}, v[{mx+(qb&2)}:{mx+(qb&2)+1}] {sel}")
        else:
            for r in range(8): o.append(f"v_mul_f32 {tmp[r]}, {tmp[r]}, v{mx+qb}")
        for r in range(4): o.append(f"v_cvt_pk_bf16_f32 {tmp[r]}, {tmp[2*r]}, {tmp[2*r+1]}")
        o.append(f"s_add_u32 s77, s{sCb + (qb>>1)}, {t*8192 + (qb&1)*4096}")
        o.append(f"buffer_store_dwordx4 {tmp[0:4]}, v{vL16}, {srd(SD)}, s77 offen {ST} ;@tag=ctx")
        return o
    def xmax():
        o = []
        for op in ("v_permlane16_swap_b32", "v_permlane32_swap_b32"):
            o += [f"v_mov_b32 v{mc+qb}, v{mx+qb}" for qb in range(4)]
            o += [f"{op} v{mc+qb}, v{mx+qb}" for qb in range(4)]
            o += [f"v_max_f32 v{mx+qb}, v{mx+qb}, v{mc+qb}" for qb in range(4)]
        return o

    def group(cur, prev, first=False, lastg=False, hook=None, name=None, extra=None):
        mf = []; rs = []
        for i in range(2):
            qk = acts(cur, i); pv = acts(cur, 0) if i == 1 else acts(prev, 1); mq = masked(cur, i)
            r = dict(g0=len(mf), qk=qk, pv=pv, mq=mq, tiles=[], fu=[None]*32, lu=[None]*32)
            k = 0
            for kb in range(4):
                qs = [qk[x] for x in snake(len(qk), kb)]
                if mq is not None and kb == 0: qs = [x for x in qs if x != mq] + [mq]
                for qb in qs:
                    st = len(mf)
                    for q_, t in enumerate(snake(4, k)):
                        c = None
                        if q_ == 0 and qb != mq: c = 0 if (first and i == 0 and kb == 0) else NM(qb)
                        f = 4*kb + t
                        if r["fu"][f] is None: r["fu"][f] = len(mf)
                        r["lu"][f] = len(mf)
                        mf.append(mfma(S_(kb, qb), F(f), Q(qb, t), c))
                    k += 1
                    r["tiles"].append((kb, qb, st, len(mf) - 1))
            r["pv0"] = len(mf); k = 0; r["od"] = {}
            for qb in pv:
                mf += rowsum(qb, i ^ 1, first)
                r["od"][("l", qb)] = len(mf) - 1
            for db in range(8):
                for qb in [pv[x] for x in snake(len(pv), db)]:
                    for q_, u in enumerate(snake(2, k)):
                        f = 16 + 2*db + u
                        if r["fu"][f] is None: r["fu"][f] = len(mf)
                        r["lu"][f] = len(mf)
                        mf.append(mfma(O(db, qb), F(f), Pp(i ^ 1, u, qb), 0 if (first and q_ == 0) else None))
                    k += 1; r["od"][(db, qb)] = len(mf) - 1
            r["end"] = len(mf); rs.append(r)
        N = len(mf); S = Sched(mf)
        head = []
        for i, r in enumerate(rs):
            g0, n = r["g0"], r["end"] - r["g0"]; nq, npv = len(r["qk"]), len(r["pv"])
            single = (nq, npv) == (2, 2)
            knext = not (lastg and i == 1)
            if single:
                dg = [0, 0, 1, 3, 3, 4, 6, 6, 12, 14, 16, 18, 22, 24, 24, 26, 30, 32, 32, 34, 38, 40, 42, 46, 50, 52, 54, 58, 60, 62, 66, 67]
                mg = [2, 5, 20, 28, 36, 44, None, 56, 64]; bg = 48
                eg = [7, 8, 9, 10, 11] + [13 + 2*x for x in range(27)]
                cg = [12, 14, 16] + [4*x + 6 for x in range(3, 16)]
                if SM:
                    dg = [0, 0, 2, 2, 4, 4, 6, 6, 12, 14, 16, 18, 22, 24, 24, 26, 28, 30, 32, 33, 37, 39, 41, 45, 49, 51, 51, 53, 57, 59, 61, 65]
                    mg = [1, 3, 5, 20, 28, 43, None, 55, 63]; bg = 47
                    eg = [7, 8, 9, 10, 11] + [13 + 2*x for x in range(10)] + [34, 35, 36] + [38 + 2*x for x in range(14)]
                    cg = [12, 14, 16, 18, 22, 26, 30, 37, 39] + [41 + 4*x for x in range(7)]
            else:
                bg = n - max(int(n * 0.27), 12)
                if npv == 0: bg = n - 18
                dg = None
                mg = [2 + (q_ * (bg - 4)) // 6 for q_ in range(6)] + [None] + [bg + 4, bg + 4 + (n - bg - 4) // 2]
            for d in range(32):
                f = d + RA
                if d == 32 - RA:
                    wt = ("kvB" if i == 0 else "kvA") + (",v0,ob" if first else "")
                    S.add("X", [f"WAITVM {wt}", "s_barrier"], g0 + bg, g0 + bg, chain="rd")
                if f < 16:
                    txt = rdK(f, i); fu = r["fu"][f]; free = g0
                elif f < 32:
                    if npv == 0: continue
                    txt = rdV(f - 16, i); fu = r["fu"][f]; free = r["lu"][f - 16]
                else:
                    f -= 32
                    if knext: txt = rdK(f, i ^ 1)
                    else: txt = rdV(f, 0)
                    fu = r["end"] + 4 + f; free = r["lu"][16 + f] if npv else r["lu"][f]
                if dg: lo = hi = g0 + dg[d]; assert lo >= free and lo <= fu - 6, (d, lo, free, fu)
                else:
                    if d < 32 - RA: hi = min(fu - 8, g0 + bg - 1); lo = min(max(free, g0 + (d * bg) // 24 - 6), hi)
                    else: hi = min(r["end"] - 1, fu - 10 + (f >> 2) * 4); lo = min(max(free, g0 + bg + 1), hi)
                    hi = max(hi, free); lo = max(lo, free)
                it = S.add("D", txt, lo, hi, chain="rd"); it["dd"] = first or lastg
                if not dg: it["early"] = free if d < 32 - RA else lo
            tA, tB = ("kvA", "kvB") if i == 0 else ("kvB", "kvA")
            for q_, gq in enumerate(mg):
                if gq is None: continue
                k = q_ + 2 if q_ < 6 else q_ - 7
                if lastg and (i == 1 or q_ > 6): continue
                sal, dd = dma(k, tA if q_ < 6 else tB)
                if k == 0: sal = [f"s_xor_b32 s{sM0}, s{sM0}, {16384 if i == 0 else 16384 + 32768}", f"s_add_u32 s{sSrc}, s{sSrc}, 32768"] + sal
                if single:
                    sg_ = ({0: (45, 49, 53), 4: (9, 13)} if not SM else {0: (44, 46, 48), 4: (4, 2)}).get(k, ())
                    for x, s_ in zip(sg_, sal): S.add("S", s_, g0 + x, g0 + x, chain="m" if x != 2 else None)
                    S.add("M", dd, g0 + gq, g0 + gq, chain="m")
                else:
                    S.add("M", dd, g0 + gq, min(g0 + gq + 3, (g0 + bg - 1) if q_ < 6 else r["end"] - 1), chain="m", pre=sal, sep=3)
                    if extra and extra[0] == i and k in (3, 7):
                        for sal2, d2 in extra[1][(k >> 2)*4:(k >> 2)*4 + 4]: S.add("M", d2, g0 + gq, chain="m", pre=sal2, sep=3)
            if i == 1:
                lastK = g0 + (dg[15 - RA] if dg else r["fu"][15] - g0 - 8)
                S.add("A", f"v_xor_b32 v{vDK}, 0x8000, v{vDK}", max(lastK + 1, g0), g0 + bg - 1)
                if knext: S.add("A", f"v_xor_b32 v{vDV}, 0x8000, v{vDV}", g0 + bg + 1, N - 1)
                else: S.chains["rd"][[x["kind"] for x in S.chains["rd"]].index("X", len(S.chains["rd"]) - RA - 1)]["text"].append(f"v_xor_b32 v{vDV}, 0x8000, v{vDV}")
            nt = len(r["tiles"]); e = 0
            nxt = {(kb, qb): st for kb, qb, st, _ in rs[1]["tiles"]} if i == 0 else {}
            span0 = g0 + 8; span1 = r["end"] - 2
            if first and i == 0: span0 = g0 + 4*nq; span1 = r["end"] + 40
            if first and i == 1: span0 = g0 + 40
            for x, (kb, qb, st, en) in enumerate(r["tiles"]):
                s = S_(kb, qb); ch = ("sm", kb, qb); pdst = Pp(i, kb >> 1, qb)
                lim = nxt[(kb, qb)] - (7 if rs[1]["mq"] == qb else 1) if (kb, qb) in nxt else N - 1
                if not first: lim = min(lim, r["end"] - 1)
                if i == 0 and qb in rs[1]["pv"]: lim = min(lim, rs[1]["pv0"] - 3)
                if qb == r["mq"]:
                    src = "0" if (first and i == 0 and kb == 0) else str(NM(qb)[0])
                    for r_ in range(4):
                        c = f"v_cndmask_b32 {s[r_]}, {src}, v{vNI}, {msk(4*kb + r_)}"
                        if st - 3 < 0: head.append(c)
                        else: S.add("A", c, (g0 + 4*nq) if (first and i == 0 and kb > 0) else (0 if i == 0 else max(g0 - 20, 0)), st - 3, chain=ch)
                lo = en + 7
                if first and i == 0 and kb == 0:
                    lo = g0 + 4*nq
                    for r_ in range(4): S.add("A", f"v_add_f32 {s[r_]}, {s[r_]}, {NM(qb)[0]}", lo, lim - 4, chain=ch)
                for r_ in range(4):
                    pace_ = span0 + ((e + 1) * (span1 - span0)) // (4 * nt)
                    elo, ehi, clo, chi = min(lo, lim - 1), min(max(pace_, lo), lim - 1), min(lo, lim), min(lim, max(pace_, lo) + 8)
                    if single: elo = ehi = g0 + eg[e]; clo = chi = g0 + cg[e >> 1]
                    e += 1
                    S.add("E", f"v_exp_f32 {s[r_]}, {s[r_]}", elo, ehi, chain=ch)
                    if r_ & 1:
                        it = S.add("A", f"v_cvt_pk_bf16_f32 {pdst[2*(kb & 1) + (r_ >> 1)]}, {s[r_-1]}, {s[r_]}", clo, chi, chain=("cv", i, kb, qb, r_), sep=1)
                        it["after"] = S.chains[ch][-1]; it["soft"] = True
                        if r_ == 3: r.setdefault("lastcv", {})[(kb, qb)] = [it, S.chains[("cv", i, kb, qb, 1)][0]]
            if first and i == 0 and SM:
                for qb in range(4):
                    for r_ in range(4): S.add("A", f"v_accvgpr_write_b32 {Lr(qb)[r_]}, 0", 0, rs[1]["pv0"] - 3)
            if first and i == 0:
                blk = ["s_nop 1"]
                for qb in [x[1] for x in r["tiles"][:4]]:
                    a = S_(0, qb); blk += [f"v_max3_f32 v{mx+qb}, {a[0]}, {a[1]}, {a[2]}", f"v_max_f32 v{mx+qb}, v{mx+qb}, {a[3]}"]
                blk += xmax() + [f"s_cmp_eq_u32 s{sFB}, 0", "s_cselect_b64 vcc, 0, -1"]
                blk += [f"v_cndmask_b32 v{mx+qb}, v{mx+qb}, v{mt+qb}, vcc" for qb in range(4)]
                for qb in (3, 2, 1, 0): blk += [f"v_sub_f32 {NM(qb)[r_]}, 0, v{mx+qb}" for r_ in range(4)]
                S.add("X", blk, g0 + 4*nq - 1, g0 + 4*nq - 1)
        if rs[1]["mq"] is not None:
            for kb in range(4):
                key = (kb, rs[1]["mq"]); its = S.chains[("sm",) + key]
                k0 = [x for x in its if "cndmask" in x["text"][0]][-4]
                k0["after"] = rs[0]["lastcv"][key]
        if hook: hook(S, rs)
        return head + (["s_nop 0"] if head else []) + S.run(name)

    FULL2, LD, TR, TD, NONE = ("full", "full"), ("diag", "full"), ("off", "full"), ("off", "diag"), ("off", "off")
    def add_cpf(S, lo, hi, exprs):
        if OPT.get("nocpf"): return
        if OPT.get("pg", 1): exprs = [e_ for e_ in exprs if e_.startswith("L_T1")][:OPT.get("vf", 0)]
        for e_ in exprs:
            pre, d = cpf(e_); S.add("M", d, lo, hi, chain="cpf", pre=pre, sep=3 if lo >= 0 else 0)
    def hook_first(S, rs):
        lo = rs[1]["g0"] + 40; N = rs[1]["end"]
        pre, d = signal(SF, f"s{t1_}", 0, "ob")
        for c in [pre[0], pre[1].replace("v1,", "v19,")] + L(f"""s_lshr_b32 s{t1_}, s{sH}, 4
              s_lshl1_add_u32 s{t1_}, s{sJ}, s{t1_}
              s_lshl_b32 s{sSig}, s{t1_}, 8
              s_add_u32 s{sSig}, s{sSig}, {32*256}
              s_add_u32 s{t3_}, s{sH}, {32 - 4*NB0()}
              s_lshr_b32 s{t3_}, s{t3_}, 5
              s_lshl1_add_u32 s{t3_}, s{sJ}, s{t3_}
              s_lshl_b32 s{t3_}, s{t3_}, 8
              s_add_u32 s{t3_}, s{t3_}, {32*256}
              s_lshl_b32 s{t1_}, s{sFB}, 16
              s_xor_b32 s{t2_}, s{sWt}, 256
              s_add_u32 s{t2_}, s{t2_}, s{t1_}
              s_add_u32 s{t1_}, s{t1_}, s{t3_}"""): S.add(kind(c), c, lo, chain="sig", sep=1)
        d = d.replace("v1,", "v19,"); ol = one_lane(d); ol.insert(2, d.replace(f"s{t1_} offen", f"s{t2_} offen"))
        S.add("X", ol, lo, N - 2, chain="sig", sep=1)
        S.add("A", "v_mul_u32_u24 v19, 52, v0", lo, N - 1, chain="sig", sep=1)
        if rs[1]["mq"] is None: add_cpf(S, lo, N - 1, [f"{lab['D']}-L_pc+{4096*k}" for k in range(3)])
        else: add_cpf(S, lo, N - 1, [f"{lab['T']}-L_pc+{4096*k}" for k in range(2)])
    def add_epi(S, r, qb, ts, hi, head=False):
        def put(cs_, lo):
            for c in cs_: S.add("M" if c.startswith("buffer") else kind(c), c, min(lo, hi), hi, chain="epi")
        if head: put(epi_head(qb), r["od"][("l", qb)] + 8)
        for t in ts: put(epi_frag(qb, t), r["od"][(2*t + 1, qb)] + 8 if r else 8)
    def hook_dd(S, rs):
        add_cpf(S, 2, rs[1]["end"] - 1, [f"{lab['T']}-L_pc", f"{lab['T']}-L_pc+4096", f"{lab['T1']}-L_pc", f"{lab['T1']}-L_pc+4096"])
    def hook_e0(S, rs): add_epi(S, rs[1], 0, (0, 1, 2), rs[1]["end"], True)
    def hook_t(S, rs):
        add_epi(S, None, 0, (3,), rs[0]["pv0"] + 10); add_epi(S, rs[0], 1, (0, 1, 2, 3), rs[1]["g0"] + 10, True)
    def hook_last(S, rs):
        g1 = rs[1]["g0"]; N = rs[1]["end"]
        S.add("M", f"buffer_load_dword v19, off, {srd(SF)}, s{sWt} sc1", -1, -1, chain="p5")
        for c in (f"s_mul_i32 s{t3_}, s{sKh}, {8*NB0() - 32}", f"s_sub_u32 s{t3_}, {16 + 4*NB0()}, s{t3_}"): S.add("S", c, 14, g1 - 20, chain="p5")
        S.add("X", g.spin(19, SF, f"s{sWt}", 0, f"s{t3_}"), g1 - 16, g1 - 16, chain="p5")
        for k, (sal, d) in enumerate(p5_cld(0, 0) + p5_cld(1, 1)): S.add("M", d, g1 - 14 if k < 8 else g1, N - 1, chain="p5", pre=sal, sep=2)
        add_cpf(S, -1, -1, [f"{lab['TAIL']}-L_pc", f"{lab['TAIL']}-L_pc+4096", "L_p5f0-L_pc", "L_p5f0-L_pc+4096"][:OPT.get("ncp", 4)])
        add_epi(S, rs[1], 2, (0,), N, True)
    def both(*hs):
        def h(S, rs):
            for x in hs: x(S, rs)
        return h
    def first_group(cur, name, hook, extra=None):
        seq = []
        return seq + group(cur, NONE, first=True, hook=hook, name=name, extra=extra)

    START = p.new("attstart")
    q = [f"v_mov_b32 v{vNI}, 0xff800000"]
    if SM: q += [f"v_and_b32 v{vIDX}, 1, v0", f"v_mul_u32_u24 v{vIDX}, 0xaaaa, v{vIDX}", f"v_add_u32 v{vIDX}, 0x4444, v{vIDX}", f"v_lshl_or_b32 v{vIDX}, v{vIDX}, 16, v{vIDX}"]
    q += [START + ":"] + stamp(6)
    g.emit(q)
    st0 = (list(g.lg), list(g.vm))
    def setst(s): g.lg, g.vm = list(s[0]), list(s[1])
    def getst(): return (list(g.lg), list(g.vm))
    cs = ([([("a", 144 + 4*f + r) for r in range(4)], 0) for f in range(RA)], [("kvB", [])] * 8 + [("kvA", [])] * 2)
    def chk():
        a = [r for r, _ in g.lg]; b = [r for r, _ in cs[0]]
        assert a == b[len(b) - len(a):], a
    EG = 6; PG = OPT.get("pg", 1)
    p(f"s_cmp_eq_u32 s{sJ}, 0\ns_cbranch_scc1 {lab['F1']}")
    g.emit(first_group(FULL2, "F0", hook_first), EG); chk()
    g.emit(stamp(12))
    p(f"s_sub_u32 s{sCnt}, s{sJ}, 1\ns_cmp_eq_u32 s{sCnt}, 0\ns_cbranch_scc1 {lab['DD']}")
    def hook_cnt(S, rs):
        N = rs[1]["end"]
        S.add("S", f"s_sub_u32 s{sCnt}, s{sCnt}, 1", N - 11 + SM, N - 11 + SM); S.add("S", f"s_cmp_lg_u32 s{sCnt}, 0", N - 7 + SM, N - 7 + SM)
        if not OPT.get("wb", 0) and not OPT.get("nopf") and N > 200:
            S.add("M", f"buffer_load_dword a{aDUM}, v19, {srd(SC)}, s81 offen ;@dummy", 5, 5, chain="wo")
            S.add("S", f"s_add_u32 s81, s81, {128*3328}", 15, 17, chain="wo")
        if N > 200: add_cpf(S, N - 30, N - 14, [f"{lab['DD']}-L_pc", f"{lab['DD']}-L_pc+4096"])
        elif OPT.get("cs", 0): add_cpf(S, 59, 59, [f"{lab['SD']}-L_pc"])
    pass; p.label(lab["D"]); setst(cs)
    g.emit(group(FULL2, FULL2, hook=hook_cnt, name="D"), EG); chk()
    p(f"s_cbranch_scc1 {lab['D']}")
    p.label(lab["DD"]); setst(cs)
    g.emit(stamp(13) + group(LD, FULL2, hook=both(hook_dd, hook_e0), name="DD", extra=(0, p5_wdma(0, 0))), EG); chk()
    p(f"s_cmp_eq_u32 s{sJ}, 7\ns_cbranch_scc1 {lab['T1']}")
    p.label(lab["T"]); setst(cs)
    g.emit(stamp(14) + group(TR, LD, hook=hook_t, name="T") + stamp(15), EG); chk()
    p(f"s_lshl_b32 s{sCnt}, s{sJ}, 1\ns_sub_u32 s{sCnt}, 13, s{sCnt}")
    pass; p.label(lab["S"]); setst(cs)
    g.emit(group(TR, TR, hook=hook_cnt, name="S"), EG); chk()
    p(f"s_cbranch_scc1 {lab['S']}")
    setst(cs); p.label(lab["SD"])
    g.emit(stamp(16) + group(TD, TR, lastg=True, hook=hook_last, name="SD"), EG, name="SD"); chk()
    ts = (cs[0], list(g.vm)); setst(ts)
    p.label(lab["TAIL"])
    mf = rowsum(3, 1)
    for db in range(8): mf += [mfma(O(db, 3), F(2*db + u), Pp(1, u, 3)) for u in snake(2, db)]
    S = Sched(mf)
    for f in range(8, 16): S.add("D", rdV(f, 0), -1 if f < 12 else 0, -1 if f < 12 else 1, chain="rd")["dd"] = True
    for k, (sal, d) in enumerate(p5_wdma(1, 1)): S.add("M", d, 3 - SM + 2*k, 3 - SM + 2*k, chain="p5", pre=sal)
    e1 = epi_frag(2, 1)
    for c in e1[:-2]: S.add("A", c, 2, chain="epi")
    seq = stamp(17) + S.run("tail") + e1[-2:] + stamp(7)
    seq += epi_head(3) + L(f"""s_mov_b32 s{t0_}, {f32(LTHR if not OPT.get('forcefb') else 0.0)}
          v_cmp_le_f32 vcc, s{t0_}, v{vBad}
          s_lshl_b32 s{t1_}, s{sW}, 2
          s_cmp_lg_u64 vcc, 0
          s_cselect_b32 s{t0_}, 1, 0
          v_mov_b32 v248, s{t1_}
          v_mov_b32 v249, s{t0_}
          ds_write_b32 v248, v249""")
    rest = [(2, 2), (2, 3), (3, 0), (3, 1), (3, 2), (3, 3)]; NX = OPT.get("nx", 6)
    NL = OPT.get("nl", 2); g.late = []
    for k, (qb, t) in enumerate(rest[:NX]):
        if k < NX - NL: seq += epi_frag(qb, t, True)
        else: g.late += epi_frag(qb, t, True)
    g.epi = [epi_frag(qb, t) for qb, t in rest[NX:]]
    FB = p.new("fallback")
    seq += L(f"""v_mov_b32 v248, 0
          s_waitcnt lgkmcnt(0)
          s_barrier
          ds_read_b128 v[248:251], v248""") + stamp(8)
    g.emit(seq)
    g.fbcheck = L(f"""v_or3_b32 v248, v248, v249, v250
          v_or_b32 v248, v248, v251
          s_nop 0
          v_readfirstlane_b32 s{t0_}, v248 ;@val=0
          s_nop 0
          s_cmp_gt_u32 s{t0_}, s{sFB}
          s_cbranch_scc1 {FB} ;@br=fb""")
    es = getst()
    main = g.p; g.p = P(); g.p.uid = main.uid + 1000
    if PG: g.p.l += [";@batch -1"]
    g.p.label(lab["F1"]); setst(st0)
    g.emit(first_group(LD, "F1", both(hook_first, hook_e0), (1, p5_wdma(0, 0))) + stamp(12) + stamp(13), EG); chk()
    g.p(f"s_branch {lab['T']}")
    g.p.label(lab["T1"]); setst(cs)
    g.emit(stamp(14) + stamp(15) + stamp(16) + group(TD, LD, lastg=True, hook=both(hook_t, hook_last), name="T1"), EG); chk()
    def sig_(vm): return [(t, tuple(r)) for t, r in vm if (t and t.startswith("w5")) or r]
    assert sig_(g.vm) == sig_(ts[1])[len(sig_(ts[1])) - len(sig_(g.vm)):], (sig_(g.vm), sig_(ts[1]))
    g.p(f"s_branch {lab['TAIL']}")
    g.p.label(FB); setst(([], []))
    sU = 81
    q = L(f"""s_waitcnt vmcnt(0) lgkmcnt(0)
          s_barrier
          s_mov_b32 s{sFB}, 1
          s_mov_b32 s{sU}, 0
          v_and_b32 v232, 15, v0
          v_lshrrev_b32 v233, 4, v0
          v_lshlrev_b32 v233, 2, v233
          v_sub_u32 v232, v232, v233
          s_lshl_b32 s{t0_}, s{sW}, 4
          v_add_u32 v232, s{t0_}, v232
          s_lshl_b32 s{t0_}, s{sBHi}, 7
          v_add_u32 v234, s{t0_}, v232
          s_lshl_b32 s{t0_}, s{sJ}, 7
          v_add_u32 v232, s{t0_}, v232
          v_add_u32 v233, 64, v232
          v_add_u32 v235, 64, v234""")
    for sal, d in att_first_dmas(sLX): q += sal + ["s_nop 0", d]
    for qb in range(4): q.append(f"v_mov_b32 v{mx+qb}, 0xff800000")
    FL = g.p.new("fbl"); q.append(FL + ":")
    for f in range(8):
        if f == 4: q.append(f"s_add_u32 s{sT}, s{sU}, 4096")
        q.append(f"buffer_load_dwordx4 {F(f)}, v{vL16}, {srd(SA)}, s{sU if f < 4 else sT} offen offset:{(f&3)*1024} sc1")
    for qb in range(4):
        for kb in range(2):
            for r in range(4):
                c = S_(kb, qb)[r]
                q += [f"v_subrev_u32 {c}, {16*kb + r}, v{232+qb}", f"v_ashrrev_i32 {c}, 31, {c}", f"v_and_b32 {c}, 0xff800000, {c}"]
        q.append(f"v_subrev_u32 v{232+qb}, 32, v{232+qb}")
    q.append("s_waitcnt vmcnt(0)")
    for f in range(8):
        for qb in range(4): q.append(mfma(S_(f >> 2, qb), F(f), Q(qb, f & 3)))
    q.append("s_nop 7")
    for qb in range(4):
        for kb in range(2):
            a = S_(kb, qb)
            q += [f"v_max3_f32 v{mx+qb}, v{mx+qb}, {a[0]}, {a[1]}", f"v_max3_f32 v{mx+qb}, v{mx+qb}, {a[2]}, {a[3]}"]
    q += L(f"s_add_u32 s{sU}, s{sU}, 16384\ns_cmp_lt_u32 s{sU}, s{SA+2}\ns_cbranch_scc1 {FL}")
    q += xmax()
    q += [f"v_mov_b32 v{mt+qb}, v{mx+qb}" for qb in range(4)] + att_scalars() + att_head() + ["s_waitcnt vmcnt(0) lgkmcnt(0)"]
    q.append(f"s_branch {START}")
    g.emit(q)
    g.ool += g.p.l; main.uid = g.p.uid + 1000; g.p = main
    setst(es)

def phase5(g):
    p = g.p
    vD = 184
    sCnt = 70
    CO = [4, 5, 6, 7, 0, 1, 2, 3]
    def acc(rb, cb): return R("v", 24 + 32*rb + 4*cb)
    def fw(j, s): return R("a", 144 + 8*j + 4*s)
    def wread(sl, j, slot=None):
        win, off = ((0, 32768), (1, 0), (1, 32768), (0, 0), (2, 0))[sl]
        return [f"ds_read_b64_tr_b16 {fw(j if slot is None else slot, s)[2*i:2*i+2]}, v{vD + 8*win + CO[j]} offset:{off + s*8192 + i*4096}" for s in range(2) for i in range(2)]
    NPRE = 3
    q = [f"v_xor_b32 v{vD+n}, {32*n}, v18" for n in CO[:NPRE]]
    for j in range(NPRE): q += wread(0, j)
    q += [f"v_xor_b32 v{vD+n}, {32*n}, v18" for n in CO[NPRE:]] + g.late + g.fbcheck
    g.emit(q)
    BP = OPT.get("bp", 43)
    xs = L(f"""s_xor_b32 s{t0_}, s2, 1
          s_lshl2_add_u32 s{t0_}, s{t0_}, s{sW}
          s_lshl_b32 s73, s{t0_}, 12
          s_add_u32 s73, s73, {WS_XCH}
          s_lshl2_add_u32 s{t0_}, s2, s{sW}
          s_lshl_b32 s75, s{t0_}, 12
          s_add_u32 s75, s75, {WS_XCH}
          s_lshl_b32 s77, s{sR5}, 18
          s_lshl_b32 s{t0_}, s{sW}, 16
          s_add_u32 s77, s77, s{t0_}
          s_add_u32 s77, s77, s{sCol}
          s_lshl_b32 s{t0_}, s{sKh}, {9 if OPT.get("ci", 0) else 7}
          s_add_u32 s77, s77, s{t0_}
          v_lshlrev_b32 v1, 24, v0
          v_and_b32 v8, 7, v0
          v_lshlrev_b32 v8, 11, v8
          v_bfe_u32 v10, v0, 3, 1
          v_lshl_add_u32 v8, v10, 6, v8
          v_bfe_u32 v10, v0, 4, 1
          v_lshl_add_u32 v8, v10, 5, v8
          v_lshrrev_b32 v10, 5, v0
          v_lshl_add_u32 v8, v10, 4, v8
          v_add_u32 v2, s{sL5}, v{vL16}
          v_xor_b32 v3, 0x2000, v2
          v_mov_b32 v232, 0
          v_mov_b32 v233, 0
          v_mov_b32 v236, 0
          v_mov_b32 v237, 0
          v_and_b32 v9, 1, v0
          v_lshlrev_b32 v9, 4, v9
          v_mov_b32 v10, 0x3f80
          v_lshlrev_b32 v9, v9, v10
          v_lshrrev_b32 v10, 4, v0
          v_lshlrev_b32 v10, 1, v10
          v_bfe_u32 v11, v0, 1, 3
          v_xor_b32 v10, v10, v11
          v_subrev_u32 v11, 1, v10
          v_ashrrev_i32 v11, 31, v11
          v_and_b32 v234, v11, v9
          v_xor_b32 v10, 1, v10
          v_subrev_u32 v11, 1, v10
          v_ashrrev_i32 v11, 31, v11
          v_and_b32 v235, v11, v9""")
    def tmp(rb, c): return R("v", 200 + 16*rb + 4*c)
    G2 = OPT.get("g2", 1)
    def mfs(prs, czero):
        mf = []; dn = {}; k = 0
        for x, (sl, j) in enumerate(prs):
            for rb in snake(4, j + 1):
                for q_, s in enumerate(snake(2, k)):
                    mf.append(mfma(acc(rb, CO[j]), fw(x & 7, s), p5_ctx(sl, rb, s), 0 if (czero and x < 8 and q_ == 0) else None))
                k += 1; dn[(rb, CO[j])] = len(mf) - 1
        return mf, dn
    def pacer(S):
        def pace(items, lo, hi):
            its = []
            for k, (sal, d) in enumerate(items):
                x = lo + (k * (hi - lo)) // len(items)
                its.append(S.add("M", d, x, min(x + 2, S.n - 1), chain="ld", pre=sal, sep=2))
            return its[0]
        return pace
    def first(role):
        nb = NB0() if role == 0 else 8 - NB0()
        na4 = 4 if nb == 2 else 0
        ns = nb + na4
        sl = {3: [0, 1, 3], 4: [0, 1, 2, 3], 5: [0, 1, 2, 4, 3], 6: [0, 1, 3, 4, 2, 3]}[ns] + [0, 1, 2]
        S = Sched(mfs([(sl[st], j) for st in range(ns) for j in range(8)], True)[0]); pace = pacer(S)
        gs = 8 if G2 else 4
        def arel(k): return k - nb if (k < ns or not na4) else k - ns + gs
        def W(k): return p5_wdma(sl[k], k, SB) if k < nb else p5_wdma(sl[k], arel(k), SC)
        def C(k): return p5_cld(sl[k], k if k < nb else arel(k), k >= nb)
        sigst = OPT.get("sig%d" % role, 1)
        EG_ = OPT.get("eg%d" % role, role if nb > 2 else 0)
        swW = f"s_add_u32 s{sWo5}, s{sWo5}, {(4<<20) - NB0()*262144}"
        if nb == 2 and role: S.add("S", swW, -1, -1, chain="ld")
        for st in range(ns):
            g0 = 64 * st; B = g0 + BP; dr = sl[st + 3] == sl[st]
            for j in range(NPRE, 8):
                for r in wread(sl[st], j): S.add("T", r, max(g0 + 8*j - 30, g0), min(g0 + 8*j - 8, B - (5 if dr else 1)), chain="t")
            S.add("X", [f"WAITVM w5_{sl[st+1]}" + (",ctx" if st == sigst else "") + (" L" if dr else ""), "s_barrier"], B, B, chain="t")
            for j in range(NPRE):
                for r in wread(sl[st + 1], j): S.add("T", r, B + 1, min(g0 + 64 + 8*j - 8, g0 + 63), chain="t")
            na = 6 if (st == nb - 2 and not EG_) else 5
            gate = g.spin(19, SF, "s72", 0, 8 if G2 else 16) + [f"s_sub_u32 s{sCtx}, s{sCtx}, {128*8192 - role*(64*8192 - NB0()*32768)}", f"s_add_u32 s{sCtx}, s{sCtx}, s{t3_}"] + stamp(9) if st == nb - 1 - EG_ else None
            poll = f"buffer_load_dword v19, off, {srd(SF)}, s72 sc1"
            wr = W(2) if st == 0 else W(st + 2)[5:]
            if EG_:
                if gate: S.add("X", gate, g0, g0, chain="ld")
                pace(wr + C(st + 2), g0 + 2, B - 1)
                if st == nb - 3: S.add("M", poll, B - 1, B + 2, chain="ld")
            elif st == nb - 2:
                pace(wr, g0 + 2, g0 + 28)
                S.add("M", poll, g0 + 30, g0 + 36, chain="ld")
            elif st == nb - 1:
                S.add("X", gate, g0, g0, chain="ld")
                pace(C(nb) + W(nb + 1)[6:] + C(nb + 1), g0 + 2, B - 1)
            else: pace(wr + C(st + 2), g0 + 2, B - 1)
            if st + 3 == nb and role: S.add("S", swW, B - 1, B + 3, chain="ld")
            if st + 3 == nb and OPT.get("rot", 1):
                W8 = OPT.get("w8", 0)
                for c in (f"s_and_b32 s{t2_}, s{sR5}, {7 if W8 else 3}", f"s_lshl_b32 s{t2_}, s{t2_}, {10 if W8 else 11}", f"s_add_u32 s76, s{sL5}, s{t2_}"): S.add("S", c, g0 + 16, B - 2, chain="rot")
                if W8:
                    for c in (f"s_and_b32 s17, s{sR5}, 1", "s_lshl_b32 s17, s17, 7"): S.add("S", c, g0 + 16, B - 2, chain="rot")
                    for r_ in range(2): S.add("A", f"v_xor_b32 v{vG5+r_}, s17, v{vG5+r_}", B - 1, B + 2, chain="ld")
                for c in (f"s_lshr_b32 s{t3_}, s{sCol}, 8", f"s_lshr_b32 s{t1_}, s{sR5}, {OPT.get('srs', 1)}", f"s_xor_b32 s{t3_}, s{t3_}, s{t1_}", f"s_and_b32 s{t3_}, s{t3_}, {OPT.get('sr', 2)}",
                          f"s_lshl_b32 s{t3_}, s{t3_}, 15", f"s_add_u32 s{t2_}, s{t2_}, s{t3_}"): S.add("S", c, g0 + 16, B - 2, chain="rot")
                S.add("S", f"s_lshl3_add_u32 s{sWo5}, s{t2_}, s{sWo5}", B - 1, B + 3, chain="ld")
            pace(W(st + 3)[:na], B + 5, g0 + 64)
            if st == sigst:
                pre, d = signal(SF, "s71", 0, "ctx")
                S.add("S", pre[0], B - 12, B - 4, chain="sig"); S.add("A", pre[1], B - 12, B - 1, chain="sig", sep=1)
                S.add("X", one_lane(d), B + 1, B + 1, chain="sig")
        EH = 64*sigst + BP - OPT.get("eh", 24)
        for k, fr in enumerate(g.epi):
            for c in fr: S.add("M" if c.startswith("buffer") else kind(c), c, 0, min(60, EH) if "a6" <= c.split()[-1][:2] <= "a9" and len(c.split()[-1]) == 3 else EH, chain="epi")
        fin = [f"s_mov_b32 s{sCnt}, {2 if na4 else 3}", f"s_mov_b32 s73, {1 if not G2 else -1 if na4 else 2}"]
        if na4: fin += [f"s_add_u32 s{sWo5}, s{sWo5}, {gs*262144}", f"s_add_u32 s{sCtx}, s{sCtx}, {gs*32768}"]
        for c in fin: S.add("S", c, S.n - 6, S.n, chain="ld")
        nb = ns
        for n in range(8): S.add("A", f"v_xor_b32 v{vD+8+n}, 0x10000, v{vD+n}", 0, BP - 1)
        if nb >= 5:
            for n in range(8): S.add("A", f"v_xor_b32 v{vD+16+n}, 0x18000, v{vD+n}", 64, 128)
        for c in [f"s_and_b32 s71, s{sH}, {4 if G2 else 0}", "s_lshl_b32 s71, s71, 5", f"s_add_u32 s71, s71, s{sSig}", "s_add_u32 s71, s71, 4096", f"s_add_u32 s72, s{sWt}, 4096"]: S.add("S", c, 18, 36, chain="sc")
        if not OPT.get("nocpf") and not OPT.get("pg", 1):
            for k in range(2 if OPT.get("cl", 0) else 3):
                pre, d = cpf("L_p5loop-L_pc+%d" % (4096*k)); x = 64*(nb - 2) + 18
                S.add("M", d, x + 3*k, x + 20, chain="cpf", pre=pre, sep=3)
        return S.run("p5first%d" % role)
    def body(kd):
        prs = [(st, j) for st in range(4) for j in range(8)]
        X2 = OPT.get("x2", 0)
        if kd == "last": prs = prs[:16] + ([(2, j) for j in range(4)] + [(3, j) for j in range(4)] if not X2 else [(2, 0), (2, 1), (2, 2), (3, 0), (3, 1), (2, 3), (3, 2), (3, 3)]) + [(2, j) for j in range(4, 8)] + [(3, j) for j in range(4, 8)]
        mf, dn = mfs(prs, False)
        S = Sched(mf); pace = pacer(S)
        for st in range(4):
            g0 = 64 * st; B = g0 + BP
            if kd == "last" and st >= 2:
                for x in range(8*st + (NPRE if st == 2 else 0), 8*st + 8):
                    if x == (20 if not X2 else 19): S.add("X", ["WAITVM w5_3", "s_barrier"], g0 + (6 if not X2 else 2), g0 + (6 if not X2 else 2), chain="t")
                    for r in wread(prs[x][0], prs[x][1], x & 7): S.add("T", r, max(8*x - 30, 128), 8*x - 8, chain="t")
                continue
            for j in range(NPRE, 8):
                for r in wread(st, j): S.add("T", r, max(g0 + 8*j - 30, g0), min(g0 + 8*j - 8, B - 1), chain="t")
            S.add("X", [f"WAITVM w5_{(st+1)&3}", "s_barrier"], B, B, chain="t")
            for j in range(NPRE):
                for r in wread((st + 1) & 3, j): S.add("T", r, B + 1, min(g0 + 64 + 8*j - 8, g0 + 63), chain="t")
            def batch(x): return [] if (kd == "last" and x >= 4) else p5_wdma(x & 3, x & 3, SC) + p5_cld(x & 3, x & 3, True)
            if kd == "loop" and st == 2:
                if G2: S.add("X", g.spin(19, SF, "s72", 128, "s74"), g0, g0, chain="ld")
                for c in (f"s_lshl_b32 s75, s73, 17", f"s_add_u32 s{sCtx}, s{sCtx}, s75"): S.add("S", c, g0 - 20, g0 + 6, chain="ac")
            if batch(st + 2): pace(batch(st + 2)[5:], g0 + (3 if st == 2 else 1), B + OPT.get("pa", 2))
            if kd == "loop" and st == 1:
                for c in (f"s_lshl_b32 s75, s73, 20", f"s_add_u32 s{sWo5}, s{sWo5}, s75", "s_lshr_b32 s74, s73, 28", "s_and_b32 s74, s74, 8"): S.add("S", c, g0 + 16, B, chain="ac")
                if G2: S.add("M", f"buffer_load_dword v19, off, {srd(SF)}, s72 offset:128 sc1", g0 - 1, g0, chain="pl")
            if batch(st + 3): pace(batch(st + 3)[:5], B + OPT.get("pb", 3), g0 + OPT.get("pc", 65))["prelo"] = B + 1
        if kd == "loop" and OPT.get("cl", 0) and not OPT.get("nocpf"):
            for k in range(2):
                pre, d = cpf("L_p5last-L_pc+%d" % (4096*k)); S.add("M", d, 128 + 64*k + 30, 128 + 64*k + BP - 1, chain="cpf", pre=pre)
        if kd == "loop":
            for c in ([f"s_sub_u32 s73, 1, s73"] if G2 else []) + [f"s_sub_u32 s{sCnt}, s{sCnt}, 1", f"s_cmp_lg_u32 s{sCnt}, 0"]: S.add("S", c, 250, 256, chain="ld")
        if kd == "last":
            for c in xs + mk_srd(SE, sOUT, 4 << 20): S.add(kind(c), c, 60, 150, chain="x")
            XQ = OPT.get("xq", 8)
            for cs_ in ([(0, 1)] if not X2 else [(0,), (1,)]):
                for c in [2*c2 + h for c2 in cs_ for h in range(2)]:
                    for rb in snake(2, c + 1):
                        x = dn[(2 + rb, 4 + c)]
                        S.add("M", f"ds_write_b128 v3, {acc(2 + rb, 4 + c)} offset:{rb*4096 + c*1024}", x + 8, x + 10, chain="x")
                x += 13
                S.add("X", ["s_waitcnt lgkmcnt(0)", "s_barrier"], 0, x, chain="x", sep=3)
                k = 0
                for rb in range(2):
                    for c in [2*c2 + h for c2 in cs_ for h in range(2)]:
                        S.add("D", f"ds_read_b128 {tmp(rb, c)}, v2 offset:{rb*4096 + c*1024}", 0, x + 1 + (k >> 1), chain="x")["dd"] = True; k += 1
                x += 6; x0 = x
                for rb in range(2):
                    for c2 in cs_:
                        a, b = tmp(rb, 2*c2), tmp(rb, 2*c2 + 1); x += XQ
                        for c in (2*c2, 2*c2 + 1):
                            for r in range(4): S.add("A", f"v_add_f32 {tmp(rb, c)[r]}, {tmp(rb, c)[r]}, {acc(rb, 4 + c)[r]}", x0, x - 1, chain="x")
                        for d_, src, r in ((0, a, 0), (1, a, 2), (2, b, 0), (3, b, 2)): S.add("A", f"v_cvt_pk_bf16_f32 {a[d_]}, {src[r]}, {src[r+1]}", 0, x - 1, chain="x")
                        S.add("M", f"buffer_store_dwordx4 {a}, v{vL16}, {srd(SD)}, s73 offen offset:{(2*rb + c2)*1024} {ST}", 0, x, chain="x", sep=1)
            for c in range(3):
                for rb in snake(2, c + 1):
                    S.add("M", f"ds_write_b128 v3, {acc(2 + rb, c)} offset:{32768 + rb*4096 + c*1024}", dn[(2 + rb, c)] + 8, chain="x")
        return S.run("p5" + kd)
    st0 = (list(g.lg), list(g.vm))
    p(f"s_cmp_eq_u32 s{sKh}, 0\ns_cbranch_scc1 L_p5f0")
    g.emit(first(1), 8, name="p5first1")
    ent = (list(g.lg), list(g.vm))
    main = g.p; g.p = P(); g.p.uid = main.uid + 1000
    if OPT.get("pg", 1): g.p.l += [";@batch 1", ";@palign"]
    g.p.label("L_p5f0"); g.lg, g.vm = st0
    g.emit(first(0), 8); g.p("s_branch L_p5join")
    def cregs(sl): return [(None, [(p5_ctx(sl, rb, s_).f, p5_ctx(sl, rb, s_).b + k) for k in range(4)]) for s_ in range(2) for rb in range(4)]
    ent = (None, cregs(0) + [("w5_1", [])] * 2 + cregs(1) + [("w5_2", [])] * 5)
    g.ool += g.p.l; main.uid = g.p.uid + 1000; g.p = main
    if OPT.get("pg", 1): p.l += ["s_branch L_p5join", ";@palign"]
    p.label("L_p5join")
    p(stamp(4))
    p.label("L_p5loop")
    pre_ = [([("a", 144 + 2*k), ("a", 145 + 2*k)], 0) for k in range(4 * NPRE)]
    g.lg = pre_; g.vm = ent[1]
    g.emit(body("loop"), 8)
    p("s_cbranch_scc1 L_p5loop")
    g.lg = pre_; p.label("L_p5last")
    g.emit(stamp(3) + body("last") + stamp(10), 8, name="p5last")
    def rx(k): return R("v", 152 + 4*k)
    ldx = [f"buffer_load_dwordx4 {rx(k)}, v{vL16}, {srd(SD)}, s75 offen offset:{k*1024} sc1" for k in range(4)]
    RL = OPT.get("rl", 0)
    q = (ldx if not RL else ["s_nop 3"]) + ["s_nop 3"]
    for rb in range(2): q.append(f"ds_write_b128 v3, {acc(2 + rb, 3)} offset:{32768 + rb*4096 + 3*1024}")
    q += L(f"""s_mov_b32 s72, 0x20000
          s_waitcnt lgkmcnt(0)
          s_barrier""")
    for rb in range(2):
        for c in range(4): q.append(f"ds_read_b128 {acc(2 + rb, c)}, v2 offset:{32768 + rb*4096 + c*1024}")
    for rb in range(2):
        for c in range(4):
            for r in range(4): q.append(f"v_add_f32 {acc(rb, c)[r]}, {acc(rb, c)[r]}, {acc(2 + rb, c)[r]}")
    if RL: q += ldx
    q += ["L_xchk:", "s_waitcnt vmcnt(0)", "v_max3_u32 v9, v152, v153, v154"] + [f"v_max3_u32 v9, v9, v{155+2*k}, v{156+2*k}" for k in range(6)]
    q += L("""v_max_u32 v9, v9, v167
          v_cmp_eq_u32 vcc, -1, v9
          s_cbranch_vccnz L_xretry
          L_xgo:""")
    g.ool[0:0] = ["L_xretry:", "s_sub_u32 s72, s72, 1", "s_cbranch_scc1 L_xgo ;@nottaken"] + ldx + ["s_branch L_xchk"]
    SEL = R("v", 232, 6)
    q += [mfma(acc(rb, c), SEL[2:6] if c % 2 == 0 else SEL[0:4], rx(2*rb + (c >> 1))) for rb in range(2) for c in range(4)] + ["s_nop 1"]
    for rb in range(2):
        for c2 in range(2):
            a, b = acc(rb, 2*c2), acc(rb, 2*c2+1)
            q += L(f"""v_cvt_pk_bf16_f32 {a[0]}, {a[0]}, {a[1]}
                  v_cvt_pk_bf16_f32 {a[1]}, {a[2]}, {a[3]}
                  v_cvt_pk_bf16_f32 {a[2]}, {b[0]}, {b[1]}
                  v_cvt_pk_bf16_f32 {a[3]}, {b[2]}, {b[3]}""")
        a, b, t_ = acc(rb, 0), acc(rb, 2), acc(rb, 1)
        q += [f"v_permlane16_swap_b32 {a[0]}, {a[2]}", f"v_permlane16_swap_b32 {a[1]}, {a[3]}", f"v_permlane16_swap_b32 {b[0]}, {b[2]}", f"v_permlane16_swap_b32 {b[1]}, {b[3]}"]
        q += [f"v_mov_b32 {t_[r]}, {a[r]}" for r in range(4)]
        q += [f"v_mov_b32_dpp {a[r]}, {b[r]} row_ror:8 row_mask:0xf bank_mask:0xc" for r in range(4)]
        q += [f"v_mov_b32_dpp {b[r]}, {t_[r]} row_ror:8 row_mask:0xf bank_mask:0x3" for r in range(4)]
        q += [f"buffer_store_dwordx4 {a}, v8, {srd(SE)}, s77 offen {OPT.get('ost', 'sc1')}", "s_add_u32 s77, s77, 16384",
              f"buffer_store_dwordx4 {b}, v8, {srd(SE)}, s77 offen {OPT.get('ost', 'sc1')}", "s_add_u32 s77, s77, 16384"]
    if OPT.get("dbgt"):
        q += L(f"""s_waitcnt vmcnt(0)
            s_memtime s[70:71]
            s_memrealtime s[72:73]
            s_waitcnt lgkmcnt(0)
            s_sub_u32 s70, s70, s96
            s_sub_u32 s72, s72, s98
            v_mov_b32 v2, s70
            v_mov_b32 v3, s72
            s_lshl_b32 s70, s2, 3
            s_add_u32 s70, s70, 8
            s_lshl_b32 s71, s{sW}, 12
            s_add_u32 s70, s70, s71""") + mk_srd(SF, 94, 64) + [f"buffer_store_dwordx2 v[2:3], v1, {srd(SF)}, s70 offen"]
    q += stamp(11) + stamp_flush()
    g.emit(q, name="final")

def build():
    g = G(); p = g.p
    hdr = open("/code/" + NAME + ".s.ref").read()
    p.l += [l for l in hdr.split("\n") if l.startswith(";") and "@launch" not in l]
    p.l.append(f"; @launch grid=(256,1,1) block=(256,1,1) lds={LDS_BYTES}")
    k = NAME + "_kernel"
    p(f'.amdgcn_target "amdgcn-amd-amdhsa--gfx950"\n.text\n.globl {k}\n.p2align 8\n.type {k},@function'); p.label(k)
    gemm12(g); attention(g); phase5(g)
    p.label("L_end"); p("s_endpgm")
    p(g.ool)
    p.label("L_codeend")
    p('.section .rodata,"a"\n.p2align 6')
    p.l += f""".amdhsa_kernel {k}
  .amdhsa_next_free_vgpr 512
  .amdhsa_next_free_sgpr 102
  .amdhsa_accum_offset 256
  .amdhsa_group_segment_fixed_size 0
  .amdhsa_kernarg_size 104
  .amdhsa_user_sgpr_count 2
  .amdhsa_user_sgpr_kernarg_segment_ptr 1
  .amdhsa_system_sgpr_workgroup_id_x 1
.end_amdhsa_kernel""".split("\n")
    return p.text()

if __name__ == "__main__":
    out = sys.argv[1]
    for a in sys.argv[2:]:
        k, _, v = a.partition("=")
        OPT[k] = True if v == "" else (int(v) if v.lstrip("-").isdigit() else v)
    txt = build()
    if OPT.get("pg", 1):
        from pages import pages
        plan = {}
        if OPT.get("na", 1): plan[9] = [(0, OPT.get("na", 1))]
        plan[0] = [(0, OPT.get("n0", 4))]
        ts = TSITES()
        for k in range(len(ts)): plan[k + 1] = [(0, OPT.get("n1", 8))] if k + 1 < len(ts) else [(0, 99), (1, 99)]
        txt, info = pages(txt, sW, plan, OPT.get('half')); print("page stubs", info)
    if OPT.get("al"):
        from align import align
        txt, n_ = align(txt, OPT["al"]); print("widened", n_)
    import subprocess, re, os
    open("_sz.s", "w").write(txt.replace("NCHUNK", "100"))
    subprocess.check_call(["clang", "-x", "assembler", "-target", "amdgcn-amd-amdhsa", "-mcpu=gfx950", "-c", "_sz.s", "-o", "_sz.o"])
    sz = int(re.search(r"\.text\s+PROGBITS\s+\S+\s+\S+\s+(\S+)", subprocess.check_output(["llvm-readelf", "-S", "_sz.o"]).decode()).group(1), 16)
    nch = 0
    print("code bytes", sz, "file", len(txt))
    open(out, "w").write(txt.replace("NCHUNK", str(nch)))
```

```python
import sys, math, struct
from genlib import P, R, mfma
from sched import Sched, resolve

NAME = "gated_mix__compressed_kv_cla__sliding_local_dilated__prompt"
WS_HALO = 58 << 20
WS_KV, WS_CTX, WS_G, WS_CNT, WS_INBOX, WS_XCH, WS_STAMP = 0, 32 << 20, 56 << 20, 57 << 20, (57 << 20) + 65536, 64 << 20, 96 << 20
LDS_BYTES = 160 * 1024
def f32(x): return "0x%08x" % struct.unpack("<I", struct.pack("<f", x))[0]
QSCALE = 128 ** -0.5 * math.log2(math.e)
BSCALE = 32 ** -0.5 * math.log2(math.e)
LTHR = 2.0 ** 60

sX, sC, sWQ, sWUK, sWUV, sWOA, sWQKV, sWOB, sGATE, sOUT, sDBG, sWS = 4, 6, 8, 10, 12, 14, 18, 20, 22, 24, 26, 28
sW, sH, sJ = 30, 31, 3
SA, SB, SC, SD, SE, SF, SG, SH = 32, 36, 40, 44, 48, 52, 56, 60
sT, sT2, sBHi = 64, 65, 16
t0_, t1_, t2_, t3_ = 66, 67, 68, 69
def srd(b): return f"s[{b}:{b+3}]"
OPT = dict(stamps=False)
ST = "sc1" if "x_plain" not in sys.argv else ""

vDX, vDQ, vGX, vGW, vL16, vDH, vDB, vDBH, vGH, vGB = 2, 4, 12, 14, 16, 17, 19, 21, 22, 23
vQ, vG = 24, 4
aONE, aDUM = 251, 252
ONES = R("a", 244)
ONES2, vIDX = R("a", 240), 5
MSK = [0, 4, 6, 8, 10, 12, 18, 22, 26, 56, 58, 60, 62, 48, 50, 100]
def msk(k): return f"s[{MSK[k]}:{MSK[k]+1}]"
def kind(c): return "S" if c.startswith("s_") else ("E" if c.startswith(("v_exp", "v_rcp")) else "A")

def L(s): return [x.strip() for x in s.strip().split("\n") if x.strip()]
def mk_srd(b, ptr, nbytes, off=None):
    if off is None: o = [f"s_mov_b32 s{b}, s{ptr}", f"s_mov_b32 s{b+1}, s{ptr+1}"]
    else: o = [f"s_add_u32 s{b}, s{ptr}, {off}", f"s_addc_u32 s{b+1}, s{ptr+1}, 0"]
    return o + [f"s_mov_b32 s{b+2}, {nbytes}", f"s_mov_b32 s{b+3}, 0x20000"]

NST = [0]
def stamp(idx):
    if not OPT["stamps"]: return []
    return L(f"""s_waitcnt lgkmcnt(0)
        s_memtime s[92:93]
        s_memrealtime s[94:95]
        v_accvgpr_write_b32 a253, v1
        v_accvgpr_read_b32 v1, a249
        s_waitcnt lgkmcnt(0)
        v_writelane_b32 v1, s92, {2*idx}
        v_writelane_b32 v1, s94, {2*idx+1}
        v_accvgpr_write_b32 a249, v1
        v_accvgpr_read_b32 v1, a253
        s_nop 1""")
def stamp_flush():
    if not OPT["stamps"]: return []
    return L(f"""s_lshl_b32 s96, s2, 2
        s_add_u32 s96, s96, s{sW}
        s_lshl_b32 s96, s96, 8
        s_add_u32 s96, s96, {WS_STAMP}
        v_lshlrev_b32 v1, 2, v0
        buffer_store_dword a249, v1, {srd(SD)}, s96 offen
        s_waitcnt vmcnt(0)""")

class G:
    def __init__(self):
        self.p = P(); self.lg = []; self.vm = []; self.ool = []
    def emit(self, seq, eager=0, name=None):
        if name: self.p.l.append(";@seg " + name)
        out, self.lg, self.vm = resolve(seq, self.lg, self.vm, eager)
        self.p(out)
    def spin(self, vreg, srdb, soff, imm, target):
        st, bk, lp = self.p.new("spin"), self.p.new("spinbk"), self.p.new("spinlp")
        self.ool += L(f"""{st}:
            s_mov_b32 vcc_hi, 0x80000
            {lp}:
            s_sleep 1
            buffer_load_dword v{vreg}, off, {srd(srdb)}, {soff} offset:{imm} sc1
            s_waitcnt vmcnt(0)
            v_readfirstlane_b32 vcc_lo, v{vreg}
            s_sub_u32 vcc_hi, vcc_hi, 1
            s_cbranch_scc1 {bk} ;@nottaken
            s_cmp_lt_u32 vcc_lo, {target}
            s_cbranch_scc1 {lp} ;@nottaken
            s_branch {bk}""")
        return L(f"""v_readfirstlane_b32 vcc_lo, v{vreg}
            s_nop 0
            s_cmp_lt_u32 vcc_lo, {target}
            s_cbranch_scc1 {st}
            {bk}:""")

sLH = 78
def cpf(expr):
    return ([f"s_add_u32 s17, s{sLH}, {expr}"], f"buffer_load_dword a{aDUM}, v{vL16}, s[88:91], s17 offen ;@dummy")
def one_lane(d): return ["s_mov_b64 exec, 1", d, "s_mov_b64 exec, -1"]
def signal(srdb, soff, imm, tags):
    return ([f"s_lshl_b32 s{t0_}, s{sW}, 30", f"v_lshl_add_u32 v1, v0, 24, s{t0_}"],
            f"buffer_atomic_add a{aONE}, v1, {srd(srdb)}, {soff} offen offset:{imm} sc1 ;@sig=wg:{tags}")

def TSITES(): return [int(x) for x in str(OPT.get("ts", "1_20")).split("_")]
def snake(n, k): return list(range(n)) if k % 2 == 0 else list(range(n - 1, -1, -1))

def aq(db, rb): return R("v", (vQ if db % 2 == 0 else 88) + 16 * rb + 4 * (db // 2))
def bt(part, db, rb): return R("v", 152 + 32 * part + 8 * rb + 4 * db)
HK, HV = R("v", 248), R("v", 252)
XS = 20480
def KP(rb): return R("a", 176 + 4 * rb)
P2ORD = [10, 11, 12, 13, 8, 9, 0, 1, 2, 3, 4, 5, 6, 7]
def p2tile(cb, rb):
    if cb < 8: return aq(cb, rb)
    if cb < 14: return bt((cb - 8) >> 1, cb & 1, rb)
    return HK if cb == 14 else HV

def gemm12(g):
    p = g.p
    sCo, sWo, sXlo, sXhi, sXh, sBo, sLX, sLW, sKV, sPF = 70, 71, 72, 73, 74, 75, 76, 77, 79, 80
    NR = 6
    def fx(sg, rb, s): return R("a", 32 * (sg & 1) + 8 * rb + 4 * s) if rb < 4 else R("a", 64 + 4 * s)
    ES = OPT.get("es", 1)
    def fw(J, s): return R("a", 176 + 8 * J + 4 * s) if (ES and J < 2) else R("a", 72 + 8 * (J % NR) + 4 * s)
    def stash(i): return R("a", 144 + 4 * i)
    GA = 144
    def order(sg):
        o = []; k = 0
        for j, cb in enumerate(range(16) if sg < 8 else P2ORD):
            if sg >= 8 and cb >= 14: o.append((j, cb, 4))
            else:
                o += [(j, cb, rb) for rb in snake(4, k)]; k += 1
        return o
    o1, o2 = order(0), order(8)
    pos1 = {(cb, rb): k for k, (j, cb, rb) in enumerate(o1)}
    def treg(k): return p2tile(o2[k][1], o2[k][2]) if k < 56 else (HK, HV)[k - 56] if k < 58 else R("a", 120 + 4 * (k - 58))
    FS = [(22, j) for j in range(6)] + [(23, j) for j in range(6)] + [(sg, j) for j in range(6, 14) for sg in (22, 23)]
    def Jx(sg, j): return 16 * sg + j if sg < 8 else 128 + 14 * (sg - 8) + j if sg < 22 else 128 + 14 * 14 + FS.index((sg, j))
    p("s_cmp_ge_u32 s2, 256\ns_cbranch_scc1 L_end")
    p("s_load_dwordx16 s[4:19], s[0:1], 0\ns_load_dwordx8 s[20:27], s[0:1], 64\ns_load_dwordx2 s[28:29], s[0:1], 96")
    if OPT["stamps"] or OPT.get("dbgt"): p("s_memtime s[96:97]\ns_memrealtime s[98:99]")
    if OPT.get("dbgt"): p("s_load_dwordx2 s[94:95], s[0:1], 88")
    p("s_getpc_b64 s[88:89]"); p.label("L_pc")
    p(f"""v_lshrrev_b32 v1, 6, v0
          s_lshr_b32 s{t1_}, s2, 3
          v_lshl_add_u32 v24, s{t1_}, 2, v1
          s_mov_b32 s90, L_codeend-L_pc
          s_mov_b32 s91, 0x20000
          v_and_b32 v25, 7, v0
          v_lshlrev_b32 v25, 7, v25
          v_lshl_add_u32 v24, v24, 10, v25
          buffer_load_dword a{aDUM}, v24, s[88:91], 0 offen ;@dummy
          v_and_b32 v0, 63, v0
          v_readfirstlane_b32 s{sW}, v1 ;@val=wave
          v_lshrrev_b32 v24, 3, v0
          v_lshrrev_b32 v25, 4, v0
          v_and_b32 v26, 7, v0
          v_xor_b32 v26, v26, v25
          v_lshlrev_b32 v26, 4, v26
          v_lshl_add_u32 v{vGX}, v24, 10, v26
          v_xor_b32 v{vGX+1}, 64, v{vGX}
          v_bfe_u32 v26, v0, 1, 3
          v_xor_b32 v26, v26, v25
          v_lshlrev_b32 v26, 5, v26
          v_and_b32 v24, 1, v0
          v_lshl_add_u32 v26, v24, 4, v26
          v_lshl_add_u32 v{vGW}, v25, 13, v26
          v_xor_b32 v{vGW+1}, 128, v{vGW}
          s_and_b32 s{t0_}, s2, 7
          s_and_b32 s{t2_}, s{t1_}, 3
          s_lshl2_add_u32 s{sH}, s{t0_}, s{t2_}
          s_cmp_eq_u32 s{t2_}, 0
          {"s_cselect_b32 s90, s90, 0" if OPT.get("c4", 1) else ""}
          s_lshr_b32 s{sJ}, s{t1_}, 2
          s_lshl2_add_u32 s{sPF}, s{t1_}, s{sW}
          s_lshl_b32 s{sCo}, s{sJ}, 18
          s_lshl_b32 s{t0_}, s{sW}, 16
          s_add_u32 s{sCo}, s{sCo}, s{t0_}
          s_lshl_b32 s{sWo}, s{sW}, 17
          s_lshl_b32 s{t0_}, s{sH}, 8
          s_add_u32 s{sWo}, s{sWo}, s{t0_}
          {f"s_xor_b32 s{t2_}, s{t2_}, 1" if OPT.get("x_h1") else ""}
          {f"s_min_u32 s{t2_}, s{t2_}, 1" if OPT.get("x_h1") else ""}
          {f"s_xor_b32 s{t2_}, s{t2_}, 1" if OPT.get("x_h1") else ""}
          {f"s_mul_i32 s{t2_}, s{t2_}, 128" if OPT.get("x_h1") else ""}
          {f"s_sub_u32 s{sWo}, s{sWo}, s{t2_}" if OPT.get("x_h1") else ""}
          s_lshl_b32 s{sLX}, s{sW}, 13
          s_lshl_b32 s{sLW}, s{sW}, 12
          s_lshl_b32 s{sLH}, s{sW}, 10
          {";@touch 9" if OPT.get("na", 1) and OPT.get("pg", 1) else ""}
          s_waitcnt lgkmcnt(0)""")
    if OPT.get("pst"): p("s_memtime s[84:85]\ns_memrealtime s[86:87]")
    p(mk_srd(SA, sC, 2 << 20) + mk_srd(SB, sWUK, 4 << 20) + mk_srd(SC, sWUV, 4 << 20))
    def xdma(sg):
        par = sg & 1; d = []
        for i in range(8 if not (OPT.get("x_nox") and sg > 9) else 1):
            if sg < 8: so, sr = f"s_xor_b32 s{sT}, s{sCo}, {sg*128 + i*8192}", SA
            else: so, sr = f"s_xor_b32 s{sT}, s{sXlo if i < 4 else sXhi}, {(sg-8)*128 + ((i>>1)&1)*64*2048 + (i&1)*16384}", SE
            d.append(([f"s_xor_b32 m0, s{sLX if sg == 0 else 84}, {par*32768 + i*1024}", so], f"buffer_load_dwordx4 v{vGX + (i&1)}, {srd(sr)}, s{sT} offen lds ;@tag=x{sg}"))
        return d
    def wdma(sg):
        d = []; B = 65536 + (sg % 3) * 32768
        for kv in range(2 if sg < 8 else 1):
            for i in range(4):
                st = sg if sg < 8 else sg - 8
                d.append(([f"s_xor_b32 m0, s{sLW}, {B + kv*16384 + i*1024}", f"s_xor_b32 s{sT}, s{sWo}, {st*64*8192 + i*32768}"],
                          f"buffer_load_dwordx4 v{vGW + (i>>1)}, {srd((SB, SC)[kv] if sg < 8 else SG)}, s{sT} offen lds ;@tag=w{sg}"))
        if sg >= 8:
            for pp in range(3):
                d.append(([f"s_add_u32 m0, s{sLH}, {B + 16384 + pp*4096}", f"s_add_u32 s{sT}, s{sBo}, {(sg-8)*64*6144 + pp*2048}"],
                          f"buffer_load_dwordx4 v{vGB}, {srd(SH)}, s{sT} offen lds ;@tag=w{sg}"))
            d = [d[k] for k in (0, 4, 1, 5, 2, 6, 3)]
            if sg > 10 and OPT.get("x_now") == 1: d = d[:1]
            if sg > 10 and OPT.get("x_now") == 2: d = d[::2]
        return d
    seq = []
    x0, w0 = xdma(0), wdma(0)
    b0, b1 = (x0[:4] + w0[:4], x0[4:] + w0[4:]) if ES else (x0 + w0, [])
    for sal, d in b0: seq += sal + [d.replace("@tag=w0", "@tag=a0") if ES else d]
    if OPT.get("cpre") == 2: seq += [f"s_lshl2_add_u32 s84, s2, s{sW}", "s_lshl_b32 s84, s84, 11", "v_lshlrev_b32 v22, 5, v0", f"buffer_load_dword a{aDUM}, v22, {srd(SA)}, s84 offen ;@dummy"]
    seq += mk_srd(SD, sWS, 128 << 20) + mk_srd(SE, sX, 4 << 20) + mk_srd(SF, sDBG, 256) + mk_srd(SG, sWQ, 8 << 20) + mk_srd(SH, sWQKV, 6 << 20)
    seq += [f"v_accvgpr_write_b32 a{aONE}, 1"]
    if OPT["stamps"]: seq += ["v_mov_b32 v30, 0", "v_writelane_b32 v30, s96, 60", "v_writelane_b32 v30, s98, 61", "s_getreg_b32 s96, hwreg(HW_REG_XCC_ID)", "v_writelane_b32 v30, s96, 62"] + (["s_waitcnt lgkmcnt(0)", "v_writelane_b32 v30, s84, 58", "v_writelane_b32 v30, s86, 59", "v_writelane_b32 v30, s100, 56", "v_writelane_b32 v30, s0, 57"] if OPT.get("pst") else []) + [ "v_accvgpr_write_b32 a249, v30"] + stamp(0)
    seq += L(f"""v_and_b32 v24, 15, v0
          v_lshrrev_b32 v26, 1, v24
          v_xor_b32 v26, v26, v25
          v_lshlrev_b32 v26, 4, v26
          v_lshl_add_u32 v26, v24, 7, v26
          v_add_u32 v{vDX}, s{sLX}, v26
          v_xor_b32 v{vDX+1}, 64, v{vDX}
          v_bfe_u32 v24, v0, 2, 2
          v_lshl_add_u32 v27, v25, 3, v24
          v_and_b32 v1, 3, v0
          v_cmp_eq_u32 vcc, 0, v1
          v_lshlrev_b32 v1, 3, v1
          v_lshl_add_u32 v26, v27, 8, v1
          v_add_u32 v26, 65536, v26
          v_and_b32 v1, 1, v25
          v_lshl_add_u32 v24, v1, 2, v24
          v_lshlrev_b32 v{vL16}, 4, v0
          v_mov_b32 v28, 0x3f803f80
          v_cndmask_b32 v28, 0, v28, vcc""")
    seq += [f"v_accvgpr_write_b32 {ONES[r]}, v28" for r in range(4)]
    for n in range(8): seq += [f"v_xor_b32 v1, {n}, v24", f"v_lshl_add_u32 v{vDQ+n}, v1, 5, v26"]
    seq += L(f"""s_sub_u32 s{sBHi}, 15, s{sJ}
          s_lshl_b32 s{sXlo}, s{sJ}, 18
          s_lshl_b32 s{sXhi}, s{sBHi}, 18
          s_cmp_lt_u32 s{sW}, 2
          s_cselect_b32 s{t1_}, s{sJ}, s{sBHi}
          s_lshl4_add_u32 s{sXh}, s{sH}, s{t1_}
          s_and_b32 s{t0_}, s{sW}, 1
          s_lshl1_add_u32 s{sXh}, s{sXh}, s{t0_}
          s_lshl_b32 s{sXh}, s{sXh}, 10
          s_add_u32 s{sXh}, s{sXh}, {WS_HALO}
          s_lshl_b32 s{t0_}, s{sW}, 15
          s_add_u32 s{sXlo}, s{sXlo}, s{t0_}
          s_add_u32 s{sXhi}, s{sXhi}, s{t0_}
          s_mul_i32 s{sBo}, s{sW}, {16*6144}
          s_lshl_b32 s{t0_}, s{sH}, 6
          s_add_u32 s{sBo}, s{sBo}, s{t0_}
          s_lshl_b32 s{sKV}, s{sH}, 20
          s_lshl_b32 s{t0_}, s{sJ}, 17
          s_add_u32 s{sKV}, s{sKV}, s{t0_}
          s_lshl_b32 s{t0_}, s{sW}, 15
          s_add_u32 s{sKV}, s{sKV}, s{t0_}
          v_bfe_u32 v{vGB}, v0, 1, 1
          v_lshrrev_b32 v1, 5, v0
          v_xor_b32 v{vGB}, v{vGB}, v1
          v_lshlrev_b32 v{vGB}, 5, v{vGB}
          v_and_b32 v1, 1, v0
          v_lshl_add_u32 v{vGB}, v1, 4, v{vGB}
          v_lshrrev_b32 v1, 2, v0
          v_mul_u32_u24 v1, 6144, v1
          v_add_u32 v{vGB}, v1, v{vGB}
          s_lshl_b32 s81, s{sPF}, 13
          s_and_b32 s{t1_}, s2, 7
          s_lshl_b32 s82, s{t1_}, 8
          s_add_u32 s82, s82, s81
          s_lshl_b32 s{t1_}, s{t1_}, 10
          s_add_u32 s81, s81, s{t1_}
          s_add_u32 s83, s81, {1<<20}
          v_mul_u32_u24 v1, 1792, v25
          v_add_u32 v1, v1, v{vL16}
          s_lshl_b32 s{t2_}, s2, 3
          s_lshl1_add_u32 s{t2_}, s{sW}, s{t2_}
          v_lshrrev_b32 v18, 5, v0
          v_add_u32 v18, s{t2_}, v18
          v_and_b32 v19, 31, v0
          v_lshlrev_b32 v19, 4, v19
          v_lshl_add_u32 v18, v18, 11, v19
          v_mov_b32 v21, 0
          v_min_u32 v20, 1, v0
          v_lshlrev_b32 v20, 30, v20
          v_accvgpr_write_b32 a240, -1
          v_accvgpr_write_b32 a241, -1
          v_accvgpr_write_b32 a242, -1
          v_accvgpr_write_b32 a243, -1
          s_lshr_b32 s{t3_}, s2, 7
          s_or_b32 s{t3_}, s{t3_}, s{sW}
          s_lshl_b32 s{t3_}, s{t3_}, 21
          s_add_u32 s{t3_}, s{t3_}, s2
          s_lshl_b32 s{t3_}, s{t3_}, 7
          s_add_u32 s{t3_}, s{t3_}, {WS_CNT}""")
    def xread(sg): return [f"ds_read_b128 {fx(sg, rb, s)}, v{vDX+s} offset:{(sg&1)*32768 + rb*2048}" for rb in range(4) for s in range(2)]
    def hread(sg): return [f"ds_read_b128 {fx(sg, 4, s)}, v{vDH+s} offset:{min(sg % 3, 1)*32768}" for s in range(2)]
    def wread(sg, j):
        par = min(sg % 3, 1) if sg != 22 else 0; o = []; cb = j if sg < 8 else P2ORD[j]
        for s in range(2):
            for i in range(2):
                if sg < 8 or cb < 8: a, off = vDQ + (cb & 7), par*32768 + (cb >> 3)*16384 + s*8192 + i*1024
                elif cb < 14: a, off = vDB + (cb & 1), par*32768 + ((cb-8) >> 1)*4096 + s*2048 + i*256
                else: a, off = vDBH, par*32768 + (cb-13)*4096 + s*2048 + i*256
                o.append((a, f"ds_read_b64_tr_b16 {fw(Jx(sg, j), s)[2*i:2*i+2]}, v{a} offset:{off}"))
        return o
    if OPT.get("pg", 1): seq += ([";@touch 0"] if OPT.get("n0", 4) else []) + ["s_branch L_base", ".p2align 12", ";@base", ";@batch 0", ";@stub 0", "L_base:"]
    if OPT.get("pst"): seq += stamp(26)
    def wpf(sr): return f"buffer_load_dword a{aDUM}, v{vL16}, {srd(sr)}, s83 offen ;@dummy"
    P1PF = OPT.get("p1pf", 0)
    if P1PF == 2: seq += [wpf(SB), wpf(SC)]
    LATE, WD = OPT.get("late1", 1), OPT.get("wd", 3)
    for sal, d in b1 + ([] if ES else xdma(1) + wdma(1) if LATE == 0 else wdma(1) if LATE == 1 else []): seq += sal + [d]
    if ES: LATE = 2
    RX, RW = OPT.get("rx", 3), OPT.get("rw", 7)
    assert ES
    seq += L(f"""s_and_b32 s{t0_}, s{sH}, {RX}
          s_lshl_b32 s{t1_}, s{t0_}, 11
          s_add_u32 s84, s{sLX}, s{t1_}
          s_lshl3_add_u32 s{sCo}, s{t1_}, s{sCo}
          s_and_b32 s{t1_}, s{t0_}, 1
          s_lshl_b32 s{t1_}, s{t1_}, 17
          s_add_u32 s{sXlo}, s{sXlo}, s{t1_}
          s_add_u32 s{t1_}, s{sXhi}, s{t1_}
          s_bitcmp1_b32 s{t0_}, 1
          s_cselect_b32 s{sXhi}, s{sXlo}, s{t1_}
          s_cselect_b32 s{sXlo}, s{t1_}, s{sXlo}
          s_and_b32 s{t0_}, s{sJ}, {RW & 3}
          s_lshl_b32 s{t1_}, s{t0_}, 10
          s_add_u32 s{sLW}, s{sLW}, s{t1_}
          s_lshl_b32 s{t1_}, s{t0_}, 15
          s_add_u32 s{sWo}, s{sWo}, s{t1_}
          s_and_b32 s{t1_}, s{t0_}, 2
          s_lshl_b32 s{t1_}, s{t1_}, 6
          v_xor_b32 v{vGW}, s{t1_}, v{vGW}
          v_xor_b32 v{vGW+1}, s{t1_}, v{vGW+1}
          s_and_b32 s{t0_}, s{sJ}, {RW & 4}
          s_cselect_b64 s[{SB}:{SB+1}], s[{sWUV}:{sWUV+1}], s[{sWUK}:{sWUK+1}]
          s_cselect_b64 s[{SC}:{SC+1}], s[{sWUK}:{sWUK+1}], s[{sWUV}:{sWUV+1}]
          s_lshl_b32 s{t0_}, s{t0_}, 12
          s_add_u32 s{sLW}, s{sLW}, s{t0_}""")
    if P1PF == 1: seq += [wpf(SB), wpf(SC)]
    cpf_c = [f"s_lshl2_add_u32 s84, s2, s{sW}", "s_lshl_b32 s84, s84, 11", "v_lshlrev_b32 v22, 5, v0", f"buffer_load_dword a{aDUM}, v22, {srd(SA)}, s84 offen ;@dummy"]
    if OPT.get("cpre") == 1: seq += cpf_c
    seq += ["WAITVM a0" if ES else "WAITVM w0,x0", "s_barrier"] + stamp(1)
    xr = xread(0); NPRE = 3
    seq += xr[:2] + [r for _, r in wread(0, 0)] + xr[2:4 if ES else 8]
    for j in range(1, NPRE): seq += [r for _, r in wread(0, j)]
    if OPT.get("pst"): seq += stamp(27)
    g.emit(seq)
    mf = []; G0 = []; FU = {}; LU = {}; done = {}
    def tile_mf(k, cb, rb, sgs, j, swap):
        ops = [(sg, s) for sg in sgs for s in range(2)]
        for q, x in enumerate(snake(len(ops), k)):
            sg, s = ops[x]; J = Jx(sg, j)
            FU.setdefault(J, len(mf)); LU[J] = len(mf)
            c0 = 0 if (q == 0 and sg in (0, 8)) else None
            mf.append(mfma(treg(k), fx(sg, rb, s), fw(J, s), c0) if swap else mfma(treg(k), fw(J, s), fx(sg, rb, s), c0))
        done[(sgs[-1], cb, rb)] = len(mf) - 1
    for sg in range(22):
        G0.append(len(mf))
        oo = list(enumerate(o1 if sg < 8 else o2))
        if sg == 0:
            oo = [(pos1[(cb, rb)], (cb, cb, rb)) for cb in range(8) for rb in snake(2, cb)] + \
                 [(pos1[(cb, rb + 2)], (cb, cb, rb + 2)) for cb in (2, 3, 4, 5, 6, 7, 0, 1) for rb in snake(2, cb)] + oo[32:]
        for k, (j, cb, rb) in oo: tile_mf(k, cb, rb, [sg], j, (cb >= 8) if sg < 8 else (cb in (12, 13)))
    Z0 = len(mf); G0.append(Z0)
    for sg in (22, 23):
        for k, (j, cb, rb) in list(enumerate(o2))[:24]: tile_mf(k, cb, rb, [sg], j, cb in (12, 13))
    for k, (j, cb, rb) in list(enumerate(o2))[24:]: tile_mf(k, cb, rb, [22, 23], j, False)
    S = Sched(mf)
    def pace(items, lo, hi, chain, slack=5):
        n = len(items)
        for q, (sal, d) in enumerate(items):
            x = lo + int(q * (hi - lo) / n)
            it = S.add("M", d, x, x + slack, chain=chain, sep=3, pre=sal)
            if q == 0: it["prelo"] = lo - 2
    def chain(txt, lo, hi=None, name=None, sep=1):
        for c in (L(txt) if isinstance(txt, str) else txt): S.add(kind(c), c, lo, hi, chain=name, sep=sep)
    BAR = {sg: G0[sg + 1] - 30 for sg in range(22)}; BAR[-1] = -1; BAR[22] = Z0 + 18
    XW = 54; X0 = 70
    gxupd = f"v_lshrrev_b32 v{vGX+1}, 3, v0\nv_lshl_add_u32 v{vGX}, v{vGX+1}, 10, v{vGX}\nv_xor_b32 v{vGX+1}, 64, v{vGX}"
    pace(wdma(1) + xdma(1), 2, X0 - 2, "dma", slack=2)
    for sg in range(22):
        g0, nx, B = G0[sg], G0[sg + 1], BAR[sg]
        lastuse = {}
        for j in range(16 if sg < 8 else 14):
            J = Jx(sg, j)
            if J < NPRE: continue
            lo = max(LU[J - NR] if J >= NR + 2 else 0, BAR[sg - 1] + 1, FU[J] - 44)
            hi = min(FU[J] - (8 if J >= 8 else 6), B - 5)
            if J == 8:
                S.add("S", "WAITVM x0", 22, 22, chain="t")
                for r in xr[4:]: S.add("D", r, 0, 27, chain="t")["dd"] = True
                S.add("X", ["WAITVM w0", "s_barrier"], 38, 38, chain="t")
            for a, r in wread(sg, j): S.add("T", r, lo, hi, chain="t"); lastuse[a] = hi
        if sg % 3 or sg == 21:
            for r, lu in lastuse.items():
                S.add("A", f"v_add_u32 v{r}, 0x8000, v{r}" if sg % 3 != 2 else f"v_subrev_u32 v{r}, 0x8000, v{r}", lu + 1, B - 1)
        blk = [f"WAITVM w{sg+1} L", "s_barrier"]
        if OPT.get("pg", 1) and sg == 1: blk = [";@touch 1"] + blk
        if sg == 7: blk += stamp(2)
        fine = (0, 1, 2, 3, 4, 5, 9, 11, 13, 15, 17, 19) if OPT.get("fine") != 2 else (15, 16, 17, 18, 19, 20, 21)
        if OPT.get("fine") and sg in fine: blk += stamp(18 + fine.index(sg))
        S.add("X", blk, B, B)
        xw, xh = (g0 + XW, B - 5) if sg else (B + 8, nx - 8)
        S.add("S", f"WAITVM x{sg+1}", xw, xw, chain=("xn", sg))
        for q, r in enumerate(xread(sg + 1)): S.add("D", r, xw, xh, chain=("xn", sg))
        if sg == 0:
            pace(wdma(2) + xdma(2), X0, nx + 2, "dma", slack=2); pace(wdma(3), nx + 4, nx + 38, "dma", slack=2)
            continue
        if sg < 21: pace(xdma(sg + 2), g0 + 40, B - 2, "dma")
        if sg == 5: S.add("S", f"s_and_b32 s{sLW}, s{sLW}, 0x3fff", B - 4, B + 1, chain="dma")
        if sg < 20: pace(wdma(sg + 3), B + 3, nx + 38, "dma")
        if sg == 20: pace(xdma(23) + wdma(23), B + 3, BAR[21] - 16, "dma")
    if OPT.get("pg", 1):
        x = Z0 + OPT.get("tz", 40)
        S.add("X", [";@touch 2"], x, x + 6)
        for c in ("v_lshrrev_b32 v23, 2, v0", "v_mul_u32_u24 v23, 3584, v23", "v_lshl_add_u32 v23, v0, 7, v23"): S.add("A", c, BAR[21] - 8, BAR[21] + 10, chain="pgp")
        S.add("M", f"buffer_load_dword a{aDUM}, v23, s[88:91], s17 offen ;@dummy", BAR[21] + 2, Z0 - 4, chain="pgp", sep=3,
              pre=[f"s_lshr_b32 s17, s{sLH}, 1", f"s_add_u32 s17, s17, L_base-L_pc-4+{4096*13}"])
    if OPT.get("probe"):
        for k, x in enumerate((20, 38, 50, 62, 70, 78, 86, 94, 102, 112, 150)): S.add("X", stamp(18 + k), Z0 + x, Z0 + x)
    S.add("S", "WAITVM x23", Z0, Z0, chain="xz")
    for r in xread(23): S.add("D", r, Z0, Z0 + 12, chain="xz")
    for x, (sg, j) in enumerate(FS):
        J = Jx(sg, j)
        if x == 6: S.add("X", ["WAITVM w23 L", "s_barrier"], BAR[22], BAR[22], chain="t")
        for a, r in wread(sg, j):
            S.add("T", r, max(LU[J - NR], BAR[21] + 1, FU[J] - 44), FU[J] - 8 if x >= 6 else min(FU[J] - 8, BAR[22] - 4), chain="t")
    GS = OPT.get("gs", 44); lo = OPT.get("g0", 100)
    for i in range(4):
        S.add("M", f"global_load_dwordx4 a[{GA+4*i}:{GA+3+4*i}], v18, s[{sX}:{sX+1}] offset:{512*i}", lo + GS*i, lo + GS*i + 10, chain="gate")
        S.add("M", f"global_load_dwordx4 a[{GA+16+4*i}:{GA+19+4*i}], v19, s[{sGATE}:{sGATE+1}] offset:{512*i}", lo + GS*i + GS//2, lo + GS*i + GS//2 + 10, chain="gate")
    S.add("M", f"buffer_store_dword v21, v20, {srd(SD)}, s{t3_} offen {ST} ;@tag=z", G0[2] + 20, G0[2] + 40, chain="gate", sep=1)
    a0, a1, a2, a3, acc = 18, 19, 20, 21, 17
    ch = [f"v_mov_b32 v{acc}, 0"]
    for i in range(16):
        ch += L(f"""v_accvgpr_read_b32 v{a1}, a{GA+i}
            v_accvgpr_read_b32 v{a3}, a{GA+16+i}
            v_lshlrev_b32 v{a0}, 16, v{a1}
            v_and_b32 v{a1}, 0xffff0000, v{a1}
            v_lshlrev_b32 v{a2}, 16, v{a3}
            v_and_b32 v{a3}, 0xffff0000, v{a3}
            v_mul_f32 v{a0}, v{a0}, v{a2}
            v_mul_f32 v{a1}, v{a1}, v{a3}
            v_cvt_pk_bf16_f32 v{a0}, v{a0}, v{a1}
            v_lshlrev_b32 v{a1}, 16, v{a0}
            v_and_b32 v{a0}, 0xffff0000, v{a0}
            v_add_f32 v{acc}, v{acc}, v{a1}
            v_add_f32 v{acc}, v{acc}, v{a0}""")
    lo = G0[3]
    chain(ch, lo, name="gate", sep=0)
    chain([f"v_add_f32_dpp v{acc}, v{acc}, v{acc} row_ror:{r} row_mask:0xf bank_mask:0xf" for r in (8, 4, 2, 1)], lo, name="gate", sep=2)
    chain([f"v_mov_b32 v{a0}, v{acc}"], lo, name="gate", sep=0)
    chain([f"v_permlane16_swap_b32 v{a0}, v{acc}"], lo, name="gate", sep=2)
    chain(f"""v_add_f32 v{acc}, v{acc}, v{a0}
            v_cvt_pk_bf16_f32 v{acc}, v{acc}, v{acc}
            v_and_b32 v{acc}, 0xffff0000, v{acc}
            v_mul_f32 v{acc}, 0xbfb8aa3b, v{acc}
            v_exp_f32 v{acc}, v{acc}
            v_add_f32 v{acc}, 1.0, v{acc}
            v_rcp_f32 v{acc}, v{acc}
            v_cvt_pk_bf16_f32 v{a0}, v{acc}, v{acc}
            v_and_b32 v{a0}, 0xffff0000, v{a0}
            v_sub_f32 v{a1}, 1.0, v{a0}
            v_cvt_pk_bf16_f32 v{a1}, v{a1}, v{a1}
            v_and_b32 v{a1}, 0xffff0000, v{a1}
            v_and_b32 v{a2}, 31, v0
            v_lshlrev_b32 v{a2}, 27, v{a2}
            v_lshrrev_b32 v{a3}, 2, v0
            v_add_u32 v{a2}, v{a2}, v{a3}""", lo, name="gate")
    S.add("M", f"buffer_store_dwordx2 v[{a0}:{a1}], v{a2}, {srd(SD)}, s{sT2} offen {ST} ;@tag=z", lo, G0[6] + 30, chain="gate", sep=4,
          pre=[f"s_lshl2_add_u32 s{sT2}, s2, s{sW}", f"s_lshl4_add_u32 s{sT2}, s{sT2}, {WS_G}"])
    chain(f"""v_lshrrev_b32 v21, 4, v0
          v_bfe_u32 v{vDB}, v0, 2, 2
          v_lshl_add_u32 v{vDB}, v21, 3, v{vDB}
          v_lshlrev_b32 v{vDB}, 6, v{vDB}
          v_and_b32 v21, 1, v21
          v_lshl_add_u32 v{vDB}, v21, 5, v{vDB}
          v_and_b32 v21, 3, v0
          v_lshl_add_u32 v{vDB}, v21, 3, v{vDB}
          v_add_u32 v{vDB}, {98304 + 16384}, v{vDB}
          v_xor_b32 v{vDB+1}, 32, v{vDB}""", lo, G0[7] - 2, name="gate")
    chain(gxupd, BAR[5] + 6, G0[6] + 30, name="gx", sep=0)
    if P1PF:
        for lo in (OPT.get("q1", 80), OPT.get("q2", 210)):
            S.add("M", wpf(SB), lo, lo + 10, chain="pf1", pre=[f"s_add_u32 s83, s83, {1<<20}"])
            S.add("M", wpf(SC), lo + 20, lo + 30, chain="pf1")
    if OPT.get("tlb"):
        sh = OPT["tlb"]
        S.add("A", f"v_lshlrev_b32 v22, {sh}, v0", 0, 10, chain="tlb")
        S.add("S", f"s_lshl_b32 s84, s{sPF}, {sh + 6}", 0, 12, chain="tlb")
        S.add("S", f"s_min_u32 s84, s84, 0x10000000", 0, 14, chain="tlb")
        S.add("M", f"buffer_load_dword a{aDUM}, v22, {srd(SD)}, s84 offen sc1 ;@dummy", 60, 70, chain="tlb")
    if not OPT.get("nopf"):
        P0, PS = OPT.get("p0", 300), OPT.get("ps", 40); order_ = "qkqkqqkqkqqkqk"
        SK = OPT.get("sk", 0)
        for k, c in enumerate(order_):
            if k < SK: continue
            r = 81 if c == "q" else 82; nb_ = order_[:k].count(c); inc = nb_ if order_[SK:k].count(c) == 0 else 1
            S.add("M", f"buffer_load_dword a{aDUM}, v{vL16 if c == 'q' else 1}, {srd(SG if c == 'q' else SH)}, s{r} offen ;@dummy", P0 + (k-SK)*PS, P0 + (k-SK)*PS + 16, chain="pf",
                  pre=[f"s_add_u32 s{r}, s{r}, {inc<<20}"] if inc else [])
    if OPT.get("wo", "M") == "P":
        chain(mk_srd(84, sWOA, 8 << 20) + [f"s_lshl2_add_u32 s83, s2, s{sW}", "s_lshl_b32 s83, s83, 11", "v_lshlrev_b32 v22, 5, v0"], 20, 100, name="wp", sep=0)
        for k in range(4):
            x = OPT.get("wp0", 120) + k * OPT.get("wps", 144)
            S.add("M", f"buffer_load_dword a{aDUM}, v22, s[84:87], s83 offen ;@dummy", x, x + 10, chain="wp", pre=[f"s_add_u32 s83, s83, {2<<20}"] if k else [])
    n0 = G0[8]; frs = []
    for t in range(4):
        for rb in (3, 2, 1, 0): frs.append(((2*t, rb), (2*t + 1, rb), (rb >> 1)*16384 + (rb & 1)*4096 + t*1024))
    for db in range(8):
        for u in snake(2, db): frs.append(((8 + db, 2*u), (8 + db, 2*u + 1), u*16384 + 8192 + db*1024))
    ns = 0; later = []
    tmpA, tmpB = HK, HV
    for q, (ta, tb, off) in enumerate(frs):
        ka, kb = pos1[ta], pos1[tb]; A, B_ = treg(ka), treg(kb)
        lo = G0[7] + 2*max(ka, kb) + 1 + 8; hi = n0 + 2*min(ka, kb) - 1; hi2 = n0 + 2*max(ka, kb) - 3
        D_ = B_ if kb > ka else A
        ch = ("drain",)
        if min(ka, kb) >= 56: hi = hi2 = G0[10]
        if A.f == "a":
            for r in range(4): S.add("A", f"v_accvgpr_read_b32 {tmpA[r]}, {A[r]}", lo, hi, chain=ch, sep=2 if r == 0 else 0)
            for r in range(4): S.add("A", f"v_accvgpr_read_b32 {tmpB[r]}, {B_[r]}", lo, hi, chain=ch)
            A, B_ = tmpA, tmpB; D_ = B_
        direct = q % 4 == 0
        if direct: S.add("S", f"s_add_u32 s{t1_}, s{sKV}, {off}", lo - 2, hi, chain=ch)
        if D_ is B_: cv = ((3, B_, 2), (2, B_, 0), (0, A, 0), (1, A, 2))
        else: cv = ((0, A, 0), (1, A, 2), (2, B_, 0), (3, B_, 2))
        for d_, src, r in cv: S.add("A", f"v_cvt_pk_bf16_f32 {D_[d_]}, {src[r]}, {src[r+1]}", lo, hi, chain=ch)
        if direct and OPT.get("x_nodirect"): pass
        elif direct: S.add("M", f"buffer_store_dwordx4 {D_}, v{vL16}, {srd(SD)}, s{t1_} offen {OPT.get('kvst', ST).replace('+', ' ').replace('-', '')} ;@tag=kv", lo, hi2, chain=ch, sep=1)
        else:
            for r in range(4): S.add("A", f"v_accvgpr_write_b32 {stash(ns)[r]}, {D_[r]}", lo, hi2, chain=ch)
            later.append((ns, off)); ns += 1
    assert ns == 24 and pos1[frs[27][0]] in (54, 55) and pos1[frs[28][0]] in (56, 57), (pos1[frs[27][0]],)
    NSTG = OPT.get("nstg", 10); KVP = OPT.get("kvp", 21)
    t_a, t_b = G0[9] + 2, BAR[8 + NSTG] - 14
    sts = [([f"s_add_u32 s{sT2}, s{sKV}, {off}"], f"buffer_store_dwordx4 {stash(i)}, v{vL16}, {srd(SD)}, s{sT2} offen {OPT.get('kvst', ST).replace('+', ' ').replace('-', '')} ;@tag=kv") for i, off in later]
    sts.append(([], f"buffer_store_dwordx4 a[240:243], v{vL16}, {srd(SD)}, s{sXh} offen {ST} ;@tag=kv"))
    for q, (pre, d) in enumerate(sts if not OPT.get("x_nost") else []):
        lo = t_a + (q * (t_b - t_a)) // (len(sts) - 1)
        S.add("M", d, lo - 6, lo, chain="kvst", sep=3, pre=pre)
    pre, d = signal(SF, f"s{t2_}", 0, "z")
    chain(pre + [f"s_lshr_b32 s{t0_}, s{sJ}, 1", f"s_lshl_b32 s{t0_}, s{t0_}, 12"], G0[7], BAR[7], name="sig")
    for k in range(4):
        lo = BAR[8 + k] + 20
        S.add("X", one_lane(d), lo, lo + 14, chain="sig", sep=3, pre=[f"s_xor_b32 s{t2_}, s{t0_}, {k << 12}"])
    E0 = max(NSTG + 7, 14)
    S.add("X", L(f"s_cmp_eq_u32 s{sW}, 0\ns_cselect_b32 s81, 256, 0"), G0[E0 - 2], G0[E0 - 2] + 40, chain="sig")
    PE = OPT.get("pe", 1)
    x = BAR[E0 - 2] + 5 if PE else BAR[E0 - 1] - 14
    S.add("M", f"buffer_load_dword v1, off, {srd(SF)}, s{sLH} sc1", x, x + 6, chain="sig")
    S.add("X", g.spin(1, SF, f"s{sLH}", 0, "s81"), G0[E0] + XW + 12, G0[E0] + XW + 24, chain="sig")
    S.add("X", mk_srd(SF, sWS, 16384, WS_CNT)[:3], BAR[E0] - 4, BAR[E0] + 30, chain="sig")
    E1 = max(NSTG + 9, 16)
    pre, d = signal(SF, "s70", 0, "kv")
    chain(pre + [f"s_lshl_b32 s70, s{sH}, 8"], G0[E1], BAR[E1], name="sig")
    S.add("X", one_lane(d), BAR[E1] + 1, BAR[E1] + 12, chain="sig", sep=1)
    chain([f"s_lshl4_add_u32 s70, s{sLH}, s70", "s_lshr_b32 s81, s81, 5"], BAR[E1] + 1, name="sig")
    x = BAR[KVP - 2] + 5 if (PE and E1 < KVP - 2) else BAR[KVP - 1] + 1 if PE else BAR[KVP - 1] - 14
    S.add("M", f"buffer_load_dword v1, off, {srd(SF)}, s70 sc1", x, x + 6, chain="sig")
    S.add("X", g.spin(1, SF, "s70", 0, "s81"), G0[KVP] + XW + 6 if not PE else BAR[KVP] - 4, BAR[KVP] - 1, chain="sig")
    if OPT.get("pg", 1):
        for k, e_ in enumerate(["L_F1-L_pc", "L_F1-L_pc+4096"][:OPT.get("vf", 0)]):
            pre, d = cpf(e_); S.add("M", d, G0[22] + 50 + 6 * k, G0[22] + 84, chain="cpf", pre=pre, sep=3)
    elif not OPT.get("nocpf"):
        for sg in range(0, 22, OPT.get("cps", 2)):
            pre, d = cpf(".-L_pc+6144"); S.add("M", d, G0[sg] + 4, G0[sg] + 30, chain="cpf", pre=pre)
        for k, e_ in enumerate([".-L_pc+6144", ".-L_pc+9984", ".-L_pc+13824", "L_F1-L_pc", "L_F1-L_pc+4096"]):
            x = G0[22] + (50 if OPT.get("wo", "M") != "E" else 0)
            pre, d = cpf(e_); S.add("M", d, x + 6 * k, x + 34, chain="cpf", pre=pre, sep=3)
    S.add("X", L(f"s_lshl_b32 s{t2_}, s{sH}, 20\ns_add_u32 s{SA}, s{sWS}, s{t2_}\ns_addc_u32 s{SA+1}, s{sWS+1}, 0"), G0[21], G0[21] + 40, chain="sa")
    S.add("X", L(f"s_add_u32 s{t2_}, s{sBHi}, 1\ns_lshl_b32 s{SA+2}, s{t2_}, 16"), G0[21], G0[21] + 50, chain="sa")
    pace(att_first_dmas(sLX), BAR[KVP] + 5, BAR[KVP] + 5 + 12 * OPT.get("kvs", 8), "dma", slack=2)
    chain("v_and_b32 v22, 15, v0\nv_lshrrev_b32 v17, 4, v0\nv_lshlrev_b32 v17, 2, v17\nv_sub_u32 v22, v22, v17", G0[13], name="bm", sep=0)
    for r in range(4):
        chain(f"""v_subrev_u32 v17, {r}, v22
              v_lshlrev_b32 v18, 31, v17
              v_or_b32 v21, v17, v18
              v_ashrrev_i32 v21, 31, v21
              v_and_b32 {HK[r]}, 0xff800000, v21
              v_not_b32 v17, v17
              v_or_b32 v21, v17, v18
              v_ashrrev_i32 v21, 31, v21
              v_and_b32 {HV[r]}, 0xff800000, v21""", G0[13], name="bm", sep=0)
    chain(f"""s_lshl_b32 s{t3_}, s{sW}, 4
          v_add_u32 v18, s{t3_}, v22
          s_lshr_b32 s{t3_}, s{sW}, 1
          s_mul_i32 s{t3_}, s{t3_}, {XS - 2048}
          s_add_u32 s{t3_}, s{t3_}, s{sLH}
          s_add_u32 s{t3_}, s{t3_}, 32768
          v_add_u32 v17, s{t3_}, v{vL16}
          v_lshlrev_b32 v21, 5, v0""", G0[13], G0[16], name="bm")
    chain([f"v_cmp_gt_i32 {msk(k)}, {16*(k >> 2) + (k & 3)}, v18" for k in range(16)], BAR[21] + 1, name="l0", sep=0)
    chain([c.replace("s81", f"s{t1_}") for c in p5_setup()], Z0, name="l0", sep=0)
    chain(f"""s_lshl2_add_u32 s73, s2, s{sW}
          s_lshl_b32 s73, s73, 11
          s_lshl1_add_u32 s{t0_}, s{sLH}, 32768""", Z0, name="l0", sep=0)
    chain(f"v_add_u32 v2, s{t0_}, v{vL16}", BAR[22] - 4, Z0 + 62, name="l0")
    S.add("X", L(f"s_or_b32 s{t0_}, s{sJ}, s{sW}\ns_cmp_eq_u32 s{t0_}, 0\ns_cselect_b32 s{t0_}, 0xff800000, 0"), Z0, Z0 + 96, chain="l0", sep=1)
    S.add("X", [f"s_and_b32 s{t1_}, s{sXh}, 0x7800", f"s_cselect_b32 s{t1_}, 0, 0x70000000", f"s_add_u32 s77, s{sXh}, s{t1_}"], Z0, Z0 + 100, chain="l0")
    chain(f"s_sub_u32 s77, s77, 2048\ns_mov_b32 s{t2_}, {f32(QSCALE)}\ns_mov_b32 s{t3_}, s{t2_}", Z0, Z0 + 104, name="l0")
    chain(f"""v_and_b32 v22, 15, v0
          v_lshlrev_b32 v22, 3, v22
          s_lshl_b32 s85, s{sW}, 7
          s_add_u32 s85, s85, {WS_G}
          s_lshl_b32 s86, s{sJ}, 10
          s_add_u32 s86, s86, s85
          s_lshl_b32 s87, s{sBHi}, 10
          s_add_u32 s87, s87, s85""", G0[21], name="g", sep=0)
    for rb in range(4):
        S.add("M", f"buffer_load_dwordx2 a[{64+2*rb}:{65+2*rb}], v22, {srd(SD)}, s{86 + (rb>>1)} offen offset:{(rb&1)*512} sc1", BAR[21] - 4, G0[22] - 2, chain="g", sep=1)
    chain(f"""s_mov_b32 s{SB}, s{sWOB}
          s_mov_b32 s{SB+1}, s{sWOB+1}
          s_mov_b32 s{SB+2}, {2<<20}
          s_mov_b32 s{SC}, s{sWOA}
          s_mov_b32 s{SC+1}, s{sWOA+1}
          s_mov_b32 s{SC+2}, {8<<20}""", G0[12], G0[13], name="pf")
    if not OPT.get("nopf"):
        S.add("M", f"buffer_load_dword a{aDUM}, v21, {srd(SB)}, s73 offen ;@dummy", Z0 + 74, Z0 + 94, chain="wpf")
    chain(f"s_lshl2_add_u32 s72, s2, s{sW}\ns_lshl_b32 s72, s72, 12\ns_add_u32 s72, s72, {WS_XCH}", BAR[21] + 2, G0[22], name="pre")
    g.prefill = [f"buffer_store_dwordx4 a[240:243], v{vL16}, {srd(SD)}, s72 offen offset:{k*1024} {ST} ;@tag=ob" for k in range(4)]
    PRIN = OPT.get("prin", -16)
    if PRIN < 200:
        for k, d in enumerate(g.prefill): S.add("M", d, G0[22] + PRIN + 14*k, G0[22] + PRIN + 14*k + 6, chain="pre")
        g.prefill = []
    def rdy(*tiles): return max(done[(23, cb, rb)] for cb, rb in tiles) + 8
    def pk(d, a, b, lo): S.add("A", f"v_cvt_pk_bf16_f32 {d}, {a}, {b}", lo, chain="la")
    def xo(rb): return (rb >> 1) * XS + (rb & 1) * 8192
    for rb in (3, 2, 1, 0):
        a, b = bt(1, 0, rb), bt(1, 1, rb); lo = rdy((11, rb))
        pk(a[0], a[0], a[1], lo); pk(a[1], a[2], a[3], lo); pk(a[2], b[0], b[1], lo); pk(a[3], b[2], b[3], lo)
        S.add("M", f"ds_write_b128 v2, {a} offset:{xo(rb) + 2048}", lo, lo + 12, chain="la", sep=1)
    for rb in (3, 2, 1, 0):
        lo = rdy((13, rb)); a, b = bt(2, 0, rb), bt(2, 1, rb)
        pk(a[3], a[2], a[3], lo - 8); pk(a[2], a[0], a[1], lo - 8); pk(a[0], b[0], b[1], lo); pk(a[1], b[2], b[3], lo)
        S.add("M", f"ds_write_b128 v2, {a} offset:{xo(rb) + 3072}", lo, lo + 16, chain="la", sep=1)
        S.add("A", f"v_mov_b32 {b[2]}, {a[0]}", lo, chain="la"); S.add("A", f"v_mov_b32 {b[3]}, {a[1]}", lo, chain="la")
    x = lo + 19
    S.add("X", ["s_waitcnt lgkmcnt(0)", "s_barrier"], lo, x, chain="la", sep=2)
    S.add("D", "ds_read_b128 a[192:195], v17 offset:16384", lo, x + 1, chain="la", sep=1)
    def prevrd(rbs):
        return [f"ds_read_b128 {KP(rb)}, v2 offset:{xo(rb)}" for rb in rbs] + \
               [f"ds_read_b64 {bt(2, db, rb)[0:2]}, v2 offset:{xo(rb) + 1024 + (1 - db)*8}" for rb in rbs for db in range(2)]
    S.add("M", f"buffer_store_dwordx4 a[192:195], v{vL16}, {srd(SD)}, s{sXh} offen {ST}", lo, x + 7, chain="la", sep=6)
    for c in prevrd((1, 3)): S.add("D", c, lo, chain="la")
    hin = aq(1, 3); N = S.n; HL = N - OPT.get("hl", 54); HC = N - OPT.get("hc", 14)
    hld = f"buffer_load_dwordx4 {hin}, v{vL16}, {srd(SD)}, s77 offen sc1"
    S.add("M", hld, HL, HL + 4, chain="la")
    hmx = [f"v_max3_u32 v1, {hin[0]}, {hin[1]}, {hin[2]}", f"v_max_u32 v1, v1, {hin[3]}"]
    for c in hmx: S.add("A", c, HC, HC, chain="la")
    S.add("X", ["v_cmp_eq_u32 vcc, -1, v1", "s_cbranch_vccnz L_hretry", "L_hgo:"], HC + 1, HC + 1, chain="la")
    g.ool += ["L_hretry:", "s_sub_u32 s72, s72, 1", "s_cbranch_scc1 L_hgo ;@nottaken", hld, "s_waitcnt vmcnt(0)"] + hmx + \
             ["v_cmp_eq_u32 vcc, -1, v1", "s_cbranch_vccnz L_hretry ;@nottaken", "s_branch L_hgo"]
    S.add("M", f"ds_write_b128 v17, {hin}", HC + 2, HC + 2, chain="la")
    S.add("X", ["s_waitcnt lgkmcnt(0)", "s_barrier"], HC + 6, HC + 6, chain="la")
    for k, c in enumerate(prevrd((0, 2))): S.add("D", c, HC + 7, HC + 7 + k, chain="la")
    for rb in (3, 2, 1, 0):
        a, b = bt(0, 0, rb), bt(0, 1, rb); lo = max(rdy((9, rb)), Z0 + 105)
        for d_, src, r in ((0, a, 0), (1, a, 2), (2, b, 0), (3, b, 2)): S.add("A", f"v_cvt_pk_bf16_f32 {a[d_]}, {src[r]}, {src[r+1]}", lo, chain="lq")
    if OPT.get("sm", 1):
        chain(["v_bfe_u32 v1, v0, 1, 1", "v_subrev_u32 v1, 1, v1", "v_and_b32 v1, 0x3f803f80, v1"] + [f"v_accvgpr_write_b32 {ONES2[r]}, v1" for r in range(4)], Z0 + 44, Z0 + 120, name="o2", sep=0)
    chain(L(f"""s_sub_u32 s81, s{sJ}, 1
          s_sub_u32 s{t1_}, s{sJ}, 2
          s_mul_i32 s81, s81, s{t1_}
          s_lshl4_add_u32 s81, s81, s{sH}
          s_lshl2_add_u32 s81, s81, s{sW}
          s_mul_i32 s81, s81, 3328
          s_mov_b32 s73, 0
          s_mov_b32 s72, 0x20000
          s_lshl_b32 s{t1_}, s{sH}, 15
          s_add_u32 s{t1_}, s{t1_}, s{sLH}
          s_add_u32 s{t1_}, s{t1_}, {WS_CTX}
          s_mul_i32 s74, s{sJ}, {160*8192}
          s_add_u32 s74, s74, s{t1_}
          s_mul_i32 s75, s{sBHi}, {160*8192}
          s_add_u32 s75, s75, s{t1_}
          s_mul_i32 s{t1_}, s{sH}, {3*8192}
          s_sub_u32 s{t1_}, {128*8192}, s{t1_}
          s_add_u32 s{sT}, s74, s{t1_}
          s_add_u32 s{sT2}, s75, s{t1_}""") + att_scalars(), x + 9, HC - 1, name="lx")
    chain([f"v_or_b32 v{20+r}, s{t0_}, {HV[r]}" for r in range(4)], lo, name="lq", sep=0)
    S.add("S", f"s_mov_b32 s{t0_}, {f32(BSCALE)}", lo, chain="lq", sep=1)
    NQ = OPT.get("nq", 12); g.qdone = []
    for t, rb in [(t, rb) for t in range(4) for rb in (3, 2, 1, 0)][:NQ]:
        a, b = aq(2*t, rb), aq(2*t+1, rb); lo = rdy((2*t + 1, rb)); g.qdone.append((t, rb))
        for r_ in (a, b):
            for k in range(4): S.add("A", f"v_mul_f32 {r_[k]}, s{t2_}, {r_[k]}", lo, chain="lq")
        for d_, src, r in ((0, a, 0), (1, a, 2), (2, b, 0), (3, b, 2)): S.add("A", f"v_cvt_pk_bf16_f32 {a[d_]}, {src[r]}, {src[r+1]}", lo, HL - 1 if (t, rb) == (0, 3) else None, chain="lq")
    g.emit(S.run("gemm12"), eager=10, name="gemm12")
    g.emit(stamp(5))
    if OPT.get("x_sleep"): g.emit([f"s_sleep {OPT['x_sleep']}"])
    local_attention(g)

def att_head():
    o = L(f"""v_mov_b32 v2, v{vL16}
          v_add_u32 v3, 0x10000, v{vL16}
          v_mov_b32 v1, 0
          s_mov_b32 m0, s71
          WAITVM k0 L
          s_barrier""")
    o += [f"ds_read_b128 a[{144+4*f}:{147+4*f}], v2 offset:{f*1024}" for f in range(8)]
    o += [f"buffer_load_dwordx4 v{vL16}, {srd(SA)}, s70 offen offset:{k*1024} sc1 lds ;@tag=kvA" for k in range(2)]
    return o

def att_scalars():
    return L(f"""s_and_b32 s70, s{sW}, 1
          s_lshr_b32 s{t1_}, s{sW}, 1
          s_lshl3_add_u32 s71, s{t1_}, s70
          s_add_u32 s71, s71, 4
          s_lshl_b32 s71, s71, 13
          s_lshl_b32 s70, s70, 14
          s_mul_i32 s{t1_}, s{t1_}, 24576
          s_sub_u32 s70, s70, s{t1_}
          s_add_u32 s70, s70, 65536""")

def att_first_dmas(sLX):
    d = []
    for k in range(8):
        sal = []
        if k == 0: sal = [f"s_mov_b32 m0, s{sLX}", f"s_lshl_b32 s{sT}, s{sW}, 14"]
        if k == 4: sal = [f"s_add_u32 m0, s{sLX}, 4096", f"s_add_u32 s{sT}, s{sT}, 4096"]
        d.append((sal, f"buffer_load_dwordx4 v{vL16}, {srd(SA)}, s{sT} offen offset:{(k&3)*1024} sc1 lds ;@tag=k0"))
    for k in range(4):
        sal = []
        if k == 0: sal = [f"s_lshr_b32 s{sT}, s{sLX}, 1", f"s_add_u32 m0, s{sT}, {65536 + 16384}", f"s_and_b32 s71, s{sT}, 8192",
                          f"s_add_u32 s{sT}, s{sT}, s71", f"s_add_u32 s{sT}, s{sT}, 8192"]
        d.append((sal, f"buffer_load_dwordx4 v{vL16}, {srd(SA)}, s{sT} offen offset:{k*1024} sc1 lds ;@tag=v0"))
    return d

def local_attention(g):
    q = []
    def e(s): q.extend(L(s))
    def pk(d, a, b): return f"v_cvt_pk_bf16_f32 {d}, {a}, {b}"
    mO, mP, mP0 = HK, HV, R("v", 20)
    qp = []
    for t in range(4):
        for rb in range(4):
            if (t, rb) in g.qdone: continue
            a, b = aq(2*t, rb), aq(2*t+1, rb)
            for r in (a, b): qp += [f"v_pk_mul_f32 {r[0:2]}, {r[0:2]}, s[{t2_}:{t3_}]", f"v_pk_mul_f32 {r[2:4]}, {r[2:4]}, s[{t2_}:{t3_}]"]
            qp += [pk(a[0], a[0], a[1]), pk(a[1], a[2], a[3]), pk(a[2], b[0], b[1]), pk(a[3], b[2], b[3])]
    assert all((0, rb) in g.qdone for rb in range(4))
    def fill(n):
        assert len(qp) >= n
        q.extend(qp[:n]); del qp[:n]
    def Sp(rb): return bt(0, 1, rb)
    def So(rb): return bt(1, 1, rb)
    mx, mc = aq(1, 2), aq(1, 1); rbs = (1, 3, 0, 2)
    for rb in rbs: e(mfma(So(rb), bt(1, 0, rb), bt(0, 0, rb), mO))
    for rb in rbs: e(mfma(Sp(rb), KP(rb), bt(0, 0, rb), mP0 if rb == 0 else mP))
    for k in range(8): e(f"v_accvgpr_read_b32 v{vG+k}, a{64+k}")
    for rb in rbs:
        a, b = Sp(rb), So(rb)
        e(f"v_max3_f32 {mx[rb]}, {b[0]}, {b[1]}, {b[2]}\nv_max3_f32 {mx[rb]}, {mx[rb]}, {b[3]}, {a[0]}")
        e(f"v_max3_f32 {mx[rb]}, {mx[rb]}, {a[1]}, {a[2]}\nv_max_f32 {mx[rb]}, {mx[rb]}, {a[3]}")
    for op in ("v_permlane16_swap_b32", "v_permlane32_swap_b32"):
        for rb in rbs: e(f"v_mov_b32 {mc[rb]}, {mx[rb]}")
        for rb in rbs: e(f"{op} {mc[rb]}, {mx[rb]}")
        for rb in rbs: e(f"v_max_f32 {mx[rb]}, {mx[rb]}, {mc[rb]}")
    for rb in rbs: e(f"v_mul_f32 {mx[rb]}, s{t0_}, {mx[rb]}")
    for rb in rbs:
        a, b = Sp(rb), So(rb)
        for r in (a, b):
            for k in range(4): e(f"v_fma_f32 {r[k]}, {r[k]}, s{t0_}, -{mx[rb]}")
        for r in (a, b):
            for k in range(4): e(f"v_exp_f32 {r[k]}, {r[k]}")
        q.extend([pk(a[0], a[0], a[1]), pk(a[1], a[2], a[3]), pk(a[2], b[0], b[1]), pk(a[3], b[2], b[3])])
        fill(2)
        e(mfma(So(rb), ONES, Sp(rb), 0))
        for db in range(2): e(mfma(bt(db, 0, rb), bt(2, db, rb), Sp(rb), 0))
    fill(len(qp))
    if OPT.get("probe"): q.extend(stamp(29))
    for rb in rbs: e(f"v_rcp_f32 {mx[rb]}, {So(rb)[0]}")
    for rb in rbs: e(f"v_mul_f32 {mx[rb]}, {mx[rb]}, v{vG+2*rb+1}")
    for n_, rb in enumerate((0, 2, 1, 3)):
        a, b = bt(0, 0, rb), bt(1, 0, rb)
        pr = R("v", mx.b + (rb & 2), 2); sel = "op_sel_hi:[1,0]" if rb % 2 == 0 else "op_sel:[0,1]"
        for r in (a, b):
            for k in (0, 2): e(f"v_pk_mul_f32 {r[k:k+2]}, {r[k:k+2]}, {pr} {sel}")
        q.extend([pk(a[0], a[0], a[1]), pk(a[1], a[2], a[3]), pk(a[2], b[0], b[1]), pk(a[3], b[2], b[3])])
        if rb & 1: e(f"s_add_u32 s{sT + (rb>>1)}, s{sT + (rb>>1)}, 4096")
        e(f"buffer_store_dwordx4 {a}, v{vL16}, {srd(SD)}, s{sT + (rb>>1)} offen {ST} ;@tag=ob")
        if n_ == 0: q.extend(att_head())
    g.emit(q, name="local")

sR5, sKh, sCtx, sWo5, sL5, sCol, sSig, sWt = 82, 83, 84, 85, 86, 87, 79, 80
vG5, vC5 = 12, 14
def p5_ctx(sl, rb, s):
    f, b = (("a", 208), ("v", 152), ("a", 0), ("a", 32), ("a", 64))[sl]
    return R(f, b + 8*rb + 4*s)
def p5_lds(sl): return (131072, 32768, 65536, 98304, 0)[sl]
def p5_wdma(sl, rel, sr=SB):
    rot = OPT.get("rot", 1) and sr == SC
    return [([f"s_xor_b32 m0, s76, {p5_lds(sl) + i*1024}", f"s_xor_b32 s{sT}, s{sWo5}, {rel*262144 + i*8192}"] if rot else
             [f"s_add_u32 m0, s{sL5}, {p5_lds(sl) + i*1024}", f"s_add_u32 s{sT}, s{sWo5}, {rel*262144 + i*8192}"],
             f"buffer_load_dwordx4 v{vG5 + (i&1)}, {srd(sr)}, s{sT} offen lds ;@tag=w5_{sl}") for i in range(8)]
def p5_cld(sl, rel, xr=False):
    o = []
    for s in range(2):
        for rb in range(4):
            o.append(([f"{'s_xor_b32' if xr else 's_add_u32'} s{sT2}, s{sCtx}, {rel*32768 + s*8192}"] if rb == 0 else [],
                      f"buffer_load_dwordx4 {p5_ctx(sl, rb, s)}, v{vC5 + (rb>>1)}, {srd(SD)}, s{sT2} offen offset:{(rb&1)*1024} sc1"))
    return o
def NB0(): return OPT.get("nb0", 5)
def p5_setup():
    CI = OPT.get("ci", 0)
    return L(f"""s_and_b32 s{t0_}, s2, 7
          s_lshr_b32 s{t1_}, s2, 3
          s_and_b32 s{sKh}, s{t0_}, 1
          s_and_b32 s{t2_}, s{t0_}, 2
          {f"s_and_b32 s{t3_}, s{t1_}, 7" if not OPT.get("rm", 0) else f"s_lshr_b32 s{t3_}, s{t1_}, 2"}
          s_lshl2_add_u32 s{sR5}, s{t2_}, s{t3_}
          s_and_b32 s{t2_}, s{t0_}, 4
          {f"s_lshr_b32 s{t3_}, s{t1_}, 3" if not OPT.get("rm", 0) else f"s_and_b32 s{t3_}, s{t1_}, 3"}
          s_xor_b32 s{t3_}, s{t3_}, {OPT.get("rm", 0)}
          s_add_u32 s{sCol}, s{t2_}, s{t3_}
          s_lshl_b32 s{sCol}, s{sCol}, 8
          s_lshl_b32 s{sL5}, s{sW}, 13
          s_lshl_b32 s{sWo5}, s{sW}, 16
          s_add_u32 s{sWo5}, s{sWo5}, s{sCol}
          {f"s_xor_b32 s{t2_}, s{t3_}, 1" if OPT.get("x_c3") else ""}
          {f"s_min_u32 s{t2_}, s{t2_}, 1" if OPT.get("x_c3") else ""}
          {f"s_xor_b32 s{t2_}, s{t2_}, 1" if OPT.get("x_c3") else ""}
          {f"s_mul_i32 s{t2_}, s{t2_}, 0x500" if OPT.get("x_c3") else ""}
          {f"s_xor_b32 s{sWo5}, s{sWo5}, s{t2_}" if OPT.get("x_c3") else ""}
          s_mul_i32 s{t0_}, s{sKh}, {NB0()*262144}
          s_add_u32 s{sWo5}, s{sWo5}, s{t0_}
          s_mul_i32 s{sCtx}, s{sR5}, {160*8192}
          s_and_b32 s{t0_}, s{sW}, 1
          s_lshl_b32 s{t0_}, s{t0_}, 14
          s_add_u32 s{sCtx}, s{sCtx}, s{t0_}
          s_mul_i32 s{t0_}, s{sKh}, {NB0()*32768}
          s_add_u32 s{sCtx}, s{sCtx}, s{t0_}
          s_add_u32 s{sCtx}, s{sCtx}, {WS_CTX + 128*8192}
          s_sub_u32 s{t0_}, 15, s{sR5}
          s_min_u32 s{t0_}, s{t0_}, s{sR5}
          s_lshl1_add_u32 s{t0_}, s{t0_}, s{sKh}
          s_lshl_b32 s{sWt}, s{t0_}, 8
          s_add_u32 s{sWt}, s{sWt}, {32*256}
          s_and_b32 s81, s{sW}, 1
          s_lshl_b32 s81, s81, 7
          s_add_u32 s81, s81, s{sKh}
          s_lshl_b32 s81, s81, 7
          s_add_u32 s81, s81, 98304
          s_lshl_b32 s{t0_}, s{sW}, 11
          v_lshrrev_b32 v{vC5}, 4, v0
          v_bfe_u32 v{vG5}, v0, 1, 3
          v_xor_b32 v{vG5}, v{vG5}, v{vC5}
          v_lshlrev_b32 v{vG5}, 5, v{vG5}
          v_lshl_add_u32 v{vG5}, v{vC5}, 11, v{vG5}
          v_and_b32 v{vC5}, 1, v0
          v_lshl_add_u32 v{vG5}, v{vC5}, 4, v{vG5}
          v_xor_b32 v{vG5+1}, {512 if CI else 128}, v{vG5}
          v_lshrrev_b32 v{vC5}, 4, v0
          v_bfe_u32 v18, v0, 2, 2
          v_lshl_add_u32 v{vC5}, v{vC5}, 2, v18
          v_and_b32 v18, 3, v0
          v_lshlrev_b32 v18, 3, v18
          v_lshl_add_u32 v18, v{vC5}, 8, v18
          v_and_b32 v{vC5}, 7, v{vC5}
          v_lshl_add_u32 v18, v{vC5}, 5, v18
          v_xor_b32 v18, s81, v18
          v_add_u32 v{vC5}, s{t0_}, v{vL16}
          v_xor_b32 v{vC5+1}, 0x800, v{vC5}""")

def attention(g):
    p = g.p
    RA = 8
    vDK, vDV, vNI, vBad = 2, 3, 17, 1
    sSrc, sM0, sCnt, sFB, sLX, sCb = 70, 71, 72, 73, 76, 74
    def Q(qb, t): return R("v", vQ + 16*qb + 4*t)
    def S_(kb, qb): return R("v", 88 + 16*qb + 4*kb)
    def Pp(b, u, qb): return R("v", 152 + 32*(qb >> 1) + 16*b + 8*(qb & 1) + 4*u)
    def NM(qb): return R("v", 216 + 4*qb)
    def O(db, qb): return R("a", 32*qb + 4*db)
    def Lr(qb): return R("a", 128 + 4*qb)
    def F(f): return R("a", 144 + 4*(f & 15))
    mx, mc, mt, TMP = 20, 248, 252, (232, 240)
    lab = {k: "L_" + k for k in ("F1", "D", "DD", "T", "T1", "S", "SD", "TAIL")}
    def rdK(f, i): return f"ds_read_b128 {F(f)}, v{vDK} offset:{i*16384 + f*1024}"
    def rdV(f, i): return f"ds_read_b128 {F(f)}, v{vDV} offset:{i*16384 + (f & 1)*8192 + (f >> 1)*1024}"
    def dma(k, tag):
        sal = []
        if k == 0: sal = [f"s_mov_b32 m0, s{sM0}"]
        if k == 4: sal = [f"s_add_u32 m0, s{sM0}, 4096", f"s_add_u32 s{sT}, s{sSrc}, 4096"]
        return sal, f"buffer_load_dwordx4 v{vL16}, {srd(SA)}, s{sSrc if k < 4 else sT} offen offset:{(k&3)*1024} sc1 lds ;@tag={tag}"
    def act(st, i, base):
        if st == "full" or (st == "diag" and i == 0): return [base, base + 1]
        if st == "diag": return [base + 1]
        return []
    def acts(sts, i): return act(sts[0], i, 0) + act(sts[1], i, 2)
    def masked(sts, i):
        for b, st in enumerate(sts):
            if st == "diag": return 2*b + i
        return None
    SM = OPT.get("sm", 1)
    def rowsum(qb, b, zero=False):
        if SM: return [f"v_smfmac_f32_16x16x64_bf16 {Lr(qb)}, {ONES2}, {R('v', Pp(b, 0, qb).b, 8)}, v{vIDX}"]
        return [mfma(Lr(qb), ONES, Pp(b, u, qb), 0 if (zero and u == 0) else None) for u in range(2)]
    def epi_head(qb):
        return [f"v_accvgpr_read_b32 v{mx+qb}, {Lr(qb)[0]}"] + ([f"v_accvgpr_read_b32 v{mc}, {Lr(qb)[1]}", f"v_add_f32 v{mx+qb}, v{mx+qb}, v{mc}"] if SM else []) + [f"v_max_f32 v{vBad}, v{vBad}, v{mx+qb}", f"v_rcp_f32 v{mx+qb}, v{mx+qb}"]
    def epi_frag(qb, t, pkm=False):
        o = []; tmp = R("v", TMP[t & 1], 8)
        for r in range(8): o.append(f"v_accvgpr_read_b32 {tmp[r]}, {O(2*t + (r >> 2), qb)[r & 3]}")
        if t == 0: o.append(f"v_mul_f32 v{mx+qb}, v{mx+qb}, v{vG+2*qb}")
        if pkm:
            sel = "op_sel_hi:[1,0]" if qb % 2 == 0 else "op_sel:[0,1]"
            for r in range(4): o.append(f"v_pk_mul_f32 {tmp[2*r:2*r+2]}, {tmp[2*r:2*r+2]}, v[{mx+(qb&2)}:{mx+(qb&2)+1}] {sel}")
        else:
            for r in range(8): o.append(f"v_mul_f32 {tmp[r]}, {tmp[r]}, v{mx+qb}")
        for r in range(4): o.append(f"v_cvt_pk_bf16_f32 {tmp[r]}, {tmp[2*r]}, {tmp[2*r+1]}")
        o.append(f"s_add_u32 s77, s{sCb + (qb>>1)}, {t*8192 + (qb&1)*4096}")
        o.append(f"buffer_store_dwordx4 {tmp[0:4]}, v{vL16}, {srd(SD)}, s77 offen {ST} ;@tag=ctx")
        return o
    def xmax():
        o = []
        for op in ("v_permlane16_swap_b32", "v_permlane32_swap_b32"):
            o += [f"v_mov_b32 v{mc+qb}, v{mx+qb}" for qb in range(4)]
            o += [f"{op} v{mc+qb}, v{mx+qb}" for qb in range(4)]
            o += [f"v_max_f32 v{mx+qb}, v{mx+qb}, v{mc+qb}" for qb in range(4)]
        return o

    def group(cur, prev, first=False, lastg=False, hook=None, name=None, extra=None):
        mf = []; rs = []
        for i in range(2):
            qk = acts(cur, i); pv = acts(cur, 0) if i == 1 else acts(prev, 1); mq = masked(cur, i)
            r = dict(g0=len(mf), qk=qk, pv=pv, mq=mq, tiles=[], fu=[None]*32, lu=[None]*32)
            k = 0
            for kb in range(4):
                qs = [qk[x] for x in snake(len(qk), kb)]
                if mq is not None and kb == 0: qs = [x for x in qs if x != mq] + [mq]
                for qb in qs:
                    st = len(mf)
                    for q_, t in enumerate(snake(4, k)):
                        c = None
                        if q_ == 0 and qb != mq: c = 0 if (first and i == 0 and kb == 0) else NM(qb)
                        f = 4*kb + t
                        if r["fu"][f] is None: r["fu"][f] = len(mf)
                        r["lu"][f] = len(mf)
                        mf.append(mfma(S_(kb, qb), F(f), Q(qb, t), c))
                    k += 1
                    r["tiles"].append((kb, qb, st, len(mf) - 1))
            r["pv0"] = len(mf); k = 0; r["od"] = {}
            for qb in pv:
                mf += rowsum(qb, i ^ 1, first)
                r["od"][("l", qb)] = len(mf) - 1
            for db in range(8):
                for qb in [pv[x] for x in snake(len(pv), db)]:
                    for q_, u in enumerate(snake(2, k)):
                        f = 16 + 2*db + u
                        if r["fu"][f] is None: r["fu"][f] = len(mf)
                        r["lu"][f] = len(mf)
                        mf.append(mfma(O(db, qb), F(f), Pp(i ^ 1, u, qb), 0 if (first and q_ == 0) else None))
                    k += 1; r["od"][(db, qb)] = len(mf) - 1
            r["end"] = len(mf); rs.append(r)
        N = len(mf); S = Sched(mf)
        head = []
        for i, r in enumerate(rs):
            g0, n = r["g0"], r["end"] - r["g0"]; nq, npv = len(r["qk"]), len(r["pv"])
            single = (nq, npv) == (2, 2)
            knext = not (lastg and i == 1)
            if single:
                dg = [0, 0, 1, 3, 3, 4, 6, 6, 12, 14, 16, 18, 22, 24, 24, 26, 30, 32, 32, 34, 38, 40, 42, 46, 50, 52, 54, 58, 60, 62, 66, 67]
                mg = [2, 5, 20, 28, 36, 44, None, 56, 64]; bg = 48
                eg = [7, 8, 9, 10, 11] + [13 + 2*x for x in range(27)]
                cg = [12, 14, 16] + [4*x + 6 for x in range(3, 16)]
                if SM:
                    dg = [0, 0, 2, 2, 4, 4, 6, 6, 12, 14, 16, 18, 22, 24, 24, 26, 28, 30, 32, 33, 37, 39, 41, 45, 49, 51, 51, 53, 57, 59, 61, 65]
                    mg = [1, 3, 5, 20, 28, 43, None, 55, 63]; bg = 47
                    eg = [7, 8, 9, 10, 11] + [13 + 2*x for x in range(10)] + [34, 35, 36] + [38 + 2*x for x in range(14)]
                    cg = [12, 14, 16, 18, 22, 26, 30, 37, 39] + [41 + 4*x for x in range(7)]
            else:
                bg = n - max(int(n * 0.27), 12)
                if npv == 0: bg = n - 18
                dg = None
                mg = [2 + (q_ * (bg - 4)) // 6 for q_ in range(6)] + [None] + [bg + 4, bg + 4 + (n - bg - 4) // 2]
            for d in range(32):
                f = d + RA
                if d == 32 - RA:
                    wt = ("kvB" if i == 0 else "kvA") + (",v0,ob" if first else "")
                    S.add("X", [f"WAITVM {wt}", "s_barrier"], g0 + bg, g0 + bg, chain="rd")
                if f < 16:
                    txt = rdK(f, i); fu = r["fu"][f]; free = g0
                elif f < 32:
                    if npv == 0: continue
                    txt = rdV(f - 16, i); fu = r["fu"][f]; free = r["lu"][f - 16]
                else:
                    f -= 32
                    if knext: txt = rdK(f, i ^ 1)
                    else: txt = rdV(f, 0)
                    fu = r["end"] + 4 + f; free = r["lu"][16 + f] if npv else r["lu"][f]
                if dg: lo = hi = g0 + dg[d]; assert lo >= free and lo <= fu - 6, (d, lo, free, fu)
                else:
                    if d < 32 - RA: hi = min(fu - 8, g0 + bg - 1); lo = min(max(free, g0 + (d * bg) // 24 - 6), hi)
                    else: hi = min(r["end"] - 1, fu - 10 + (f >> 2) * 4); lo = min(max(free, g0 + bg + 1), hi)
                    hi = max(hi, free); lo = max(lo, free)
                it = S.add("D", txt, lo, hi, chain="rd"); it["dd"] = first or lastg
                if not dg: it["early"] = free if d < 32 - RA else lo
            tA, tB = ("kvA", "kvB") if i == 0 else ("kvB", "kvA")
            for q_, gq in enumerate(mg):
                if gq is None: continue
                k = q_ + 2 if q_ < 6 else q_ - 7
                if lastg and (i == 1 or q_ > 6): continue
                sal, dd = dma(k, tA if q_ < 6 else tB)
                if k == 0: sal = [f"s_xor_b32 s{sM0}, s{sM0}, {16384 if i == 0 else 16384 + 32768}", f"s_add_u32 s{sSrc}, s{sSrc}, 32768"] + sal
                if single:
                    sg_ = ({0: (45, 49, 53), 4: (9, 13)} if not SM else {0: (44, 46, 48), 4: (4, 2)}).get(k, ())
                    for x, s_ in zip(sg_, sal): S.add("S", s_, g0 + x, g0 + x, chain="m" if x != 2 else None)
                    S.add("M", dd, g0 + gq, g0 + gq, chain="m")
                else:
                    S.add("M", dd, g0 + gq, min(g0 + gq + 3, (g0 + bg - 1) if q_ < 6 else r["end"] - 1), chain="m", pre=sal, sep=3)
                    if extra and extra[0] == i and k in (3, 7):
                        for sal2, d2 in extra[1][(k >> 2)*4:(k >> 2)*4 + 4]: S.add("M", d2, g0 + gq, chain="m", pre=sal2, sep=3)
            if i == 1:
                lastK = g0 + (dg[15 - RA] if dg else r["fu"][15] - g0 - 8)
                S.add("A", f"v_xor_b32 v{vDK}, 0x8000, v{vDK}", max(lastK + 1, g0), g0 + bg - 1)
                if knext: S.add("A", f"v_xor_b32 v{vDV}, 0x8000, v{vDV}", g0 + bg + 1, N - 1)
                else: S.chains["rd"][[x["kind"] for x in S.chains["rd"]].index("X", len(S.chains["rd"]) - RA - 1)]["text"].append(f"v_xor_b32 v{vDV}, 0x8000, v{vDV}")
            nt = len(r["tiles"]); e = 0
            nxt = {(kb, qb): st for kb, qb, st, _ in rs[1]["tiles"]} if i == 0 else {}
            span0 = g0 + 8; span1 = r["end"] - 2
            if first and i == 0: span0 = g0 + 4*nq; span1 = r["end"] + 40
            if first and i == 1: span0 = g0 + 40
            for x, (kb, qb, st, en) in enumerate(r["tiles"]):
                s = S_(kb, qb); ch = ("sm", kb, qb); pdst = Pp(i, kb >> 1, qb)
                lim = nxt[(kb, qb)] - (7 if rs[1]["mq"] == qb else 1) if (kb, qb) in nxt else N - 1
                if not first: lim = min(lim, r["end"] - 1)
                if i == 0 and qb in rs[1]["pv"]: lim = min(lim, rs[1]["pv0"] - 3)
                if qb == r["mq"]:
                    src = "0" if (first and i == 0 and kb == 0) else str(NM(qb)[0])
                    for r_ in range(4):
                        c = f"v_cndmask_b32 {s[r_]}, {src}, v{vNI}, {msk(4*kb + r_)}"
                        if st - 3 < 0: head.append(c)
                        else: S.add("A", c, (g0 + 4*nq) if (first and i == 0 and kb > 0) else (0 if i == 0 else max(g0 - 20, 0)), st - 3, chain=ch)
                lo = en + 7
                if first and i == 0 and kb == 0:
                    lo = g0 + 4*nq
                    for r_ in range(4): S.add("A", f"v_add_f32 {s[r_]}, {s[r_]}, {NM(qb)[0]}", lo, lim - 4, chain=ch)
                for r_ in range(4):
                    pace_ = span0 + ((e + 1) * (span1 - span0)) // (4 * nt)
                    elo, ehi, clo, chi = min(lo, lim - 1), min(max(pace_, lo), lim - 1), min(lo, lim), min(lim, max(pace_, lo) + 8)
                    if single: elo = ehi = g0 + eg[e]; clo = chi = g0 + cg[e >> 1]
                    e += 1
                    S.add("E", f"v_exp_f32 {s[r_]}, {s[r_]}", elo, ehi, chain=ch)
                    if r_ & 1:
                        it = S.add("A", f"v_cvt_pk_bf16_f32 {pdst[2*(kb & 1) + (r_ >> 1)]}, {s[r_-1]}, {s[r_]}", clo, chi, chain=("cv", i, kb, qb, r_), sep=1)
                        it["after"] = S.chains[ch][-1]; it["soft"] = True
                        if r_ == 3: r.setdefault("lastcv", {})[(kb, qb)] = [it, S.chains[("cv", i, kb, qb, 1)][0]]
            if first and i == 0 and SM:
                for qb in range(4):
                    for r_ in range(4): S.add("A", f"v_accvgpr_write_b32 {Lr(qb)[r_]}, 0", 0, rs[1]["pv0"] - 3)
            if first and i == 0:
                blk = ["s_nop 1"]
                for qb in [x[1] for x in r["tiles"][:4]]:
                    a = S_(0, qb); blk += [f"v_max3_f32 v{mx+qb}, {a[0]}, {a[1]}, {a[2]}", f"v_max_f32 v{mx+qb}, v{mx+qb}, {a[3]}"]
                blk += xmax() + [f"s_cmp_eq_u32 s{sFB}, 0", "s_cselect_b64 vcc, 0, -1"]
                blk += [f"v_cndmask_b32 v{mx+qb}, v{mx+qb}, v{mt+qb}, vcc" for qb in range(4)]
                for qb in (3, 2, 1, 0): blk += [f"v_sub_f32 {NM(qb)[r_]}, 0, v{mx+qb}" for r_ in range(4)]
                S.add("X", blk, g0 + 4*nq - 1, g0 + 4*nq - 1)
        if rs[1]["mq"] is not None:
            for kb in range(4):
                key = (kb, rs[1]["mq"]); its = S.chains[("sm",) + key]
                k0 = [x for x in its if "cndmask" in x["text"][0]][-4]
                k0["after"] = rs[0]["lastcv"][key]
        if hook: hook(S, rs)
        return head + (["s_nop 0"] if head else []) + S.run(name)

    FULL2, LD, TR, TD, NONE = ("full", "full"), ("diag", "full"), ("off", "full"), ("off", "diag"), ("off", "off")
    def add_cpf(S, lo, hi, exprs):
        if OPT.get("nocpf"): return
        if OPT.get("pg", 1): exprs = [e_ for e_ in exprs if e_.startswith("L_T1")][:OPT.get("vf", 0)]
        for e_ in exprs:
            pre, d = cpf(e_); S.add("M", d, lo, hi, chain="cpf", pre=pre, sep=3 if lo >= 0 else 0)
    def hook_first(S, rs):
        lo = rs[1]["g0"] + 40; N = rs[1]["end"]
        pre, d = signal(SF, f"s{t1_}", 0, "ob")
        for c in [pre[0], pre[1].replace("v1,", "v19,")] + L(f"""s_lshr_b32 s{t1_}, s{sH}, 4
              s_lshl1_add_u32 s{t1_}, s{sJ}, s{t1_}
              s_lshl_b32 s{sSig}, s{t1_}, 8
              s_add_u32 s{sSig}, s{sSig}, {32*256}
              s_add_u32 s{t3_}, s{sH}, {32 - 4*NB0()}
              s_lshr_b32 s{t3_}, s{t3_}, 5
              s_lshl1_add_u32 s{t3_}, s{sJ}, s{t3_}
              s_lshl_b32 s{t3_}, s{t3_}, 8
              s_add_u32 s{t3_}, s{t3_}, {32*256}
              s_lshl_b32 s{t1_}, s{sFB}, 16
              s_xor_b32 s{t2_}, s{sWt}, 256
              s_add_u32 s{t2_}, s{t2_}, s{t1_}
              s_add_u32 s{t1_}, s{t1_}, s{t3_}"""): S.add(kind(c), c, lo, chain="sig", sep=1)
        d = d.replace("v1,", "v19,"); ol = one_lane(d); ol.insert(2, d.replace(f"s{t1_} offen", f"s{t2_} offen"))
        S.add("X", ol, lo, N - 2, chain="sig", sep=1)
        S.add("A", "v_mul_u32_u24 v19, 52, v0", lo, N - 1, chain="sig", sep=1)
        if rs[1]["mq"] is None: add_cpf(S, lo, N - 1, [f"{lab['D']}-L_pc+{4096*k}" for k in range(3)])
        else: add_cpf(S, lo, N - 1, [f"{lab['T']}-L_pc+{4096*k}" for k in range(2)])
    def add_epi(S, r, qb, ts, hi, head=False):
        def put(cs_, lo):
            for c in cs_: S.add("M" if c.startswith("buffer") else kind(c), c, min(lo, hi), hi, chain="epi")
        if head: put(epi_head(qb), r["od"][("l", qb)] + 8)
        for t in ts: put(epi_frag(qb, t), r["od"][(2*t + 1, qb)] + 8 if r else 8)
    def hook_dd(S, rs):
        add_cpf(S, 2, rs[1]["end"] - 1, [f"{lab['T']}-L_pc", f"{lab['T']}-L_pc+4096", f"{lab['T1']}-L_pc", f"{lab['T1']}-L_pc+4096"])
    def hook_e0(S, rs): add_epi(S, rs[1], 0, (0, 1, 2), rs[1]["end"], True)
    def hook_t(S, rs):
        add_epi(S, None, 0, (3,), rs[0]["pv0"] + 10); add_epi(S, rs[0], 1, (0, 1, 2, 3), rs[1]["g0"] + 10, True)
    def hook_last(S, rs):
        g1 = rs[1]["g0"]; N = rs[1]["end"]
        S.add("M", f"buffer_load_dword v19, off, {srd(SF)}, s{sWt} sc1", -1, -1, chain="p5")
        for c in (f"s_mul_i32 s{t3_}, s{sKh}, {8*NB0() - 32}", f"s_sub_u32 s{t3_}, {16 + 4*NB0()}, s{t3_}"): S.add("S", c, 14, g1 - 20, chain="p5")
        S.add("X", g.spin(19, SF, f"s{sWt}", 0, f"s{t3_}"), g1 - 16, g1 - 16, chain="p5")
        for k, (sal, d) in enumerate(p5_cld(0, 0) + p5_cld(1, 1)): S.add("M", d, g1 - 14 if k < 8 else g1, N - 1, chain="p5", pre=sal, sep=2)
        add_cpf(S, -1, -1, [f"{lab['TAIL']}-L_pc", f"{lab['TAIL']}-L_pc+4096", "L_p5f0-L_pc", "L_p5f0-L_pc+4096"][:OPT.get("ncp", 4)])
        add_epi(S, rs[1], 2, (0,), N, True)
    def both(*hs):
        def h(S, rs):
            for x in hs: x(S, rs)
        return h
    def first_group(cur, name, hook, extra=None):
        seq = []
        return seq + group(cur, NONE, first=True, hook=hook, name=name, extra=extra)

    START = p.new("attstart")
    q = [f"v_mov_b32 v{vNI}, 0xff800000"]
    if SM: q += [f"v_and_b32 v{vIDX}, 1, v0", f"v_mul_u32_u24 v{vIDX}, 0xaaaa, v{vIDX}", f"v_add_u32 v{vIDX}, 0x4444, v{vIDX}", f"v_lshl_or_b32 v{vIDX}, v{vIDX}, 16, v{vIDX}"]
    q += [START + ":"] + stamp(6)
    g.emit(q)
    st0 = (list(g.lg), list(g.vm))
    def setst(s): g.lg, g.vm = list(s[0]), list(s[1])
    def getst(): return (list(g.lg), list(g.vm))
    cs = ([([("a", 144 + 4*f + r) for r in range(4)], 0) for f in range(RA)], [("kvB", [])] * 8 + [("kvA", [])] * 2)
    def chk():
        a = [r for r, _ in g.lg]; b = [r for r, _ in cs[0]]
        assert a == b[len(b) - len(a):], a
    EG = 6; PG = OPT.get("pg", 1)
    p(f"s_cmp_eq_u32 s{sJ}, 0\ns_cbranch_scc1 {lab['F1']}")
    g.emit(first_group(FULL2, "F0", hook_first), EG); chk()
    g.emit(stamp(12))
    p(f"s_sub_u32 s{sCnt}, s{sJ}, 1\ns_cmp_eq_u32 s{sCnt}, 0\ns_cbranch_scc1 {lab['DD']}")
    def hook_cnt(S, rs):
        N = rs[1]["end"]
        S.add("S", f"s_sub_u32 s{sCnt}, s{sCnt}, 1", N - 11 + SM, N - 11 + SM); S.add("S", f"s_cmp_lg_u32 s{sCnt}, 0", N - 7 + SM, N - 7 + SM)
        if not OPT.get("wb", 0) and not OPT.get("nopf") and N > 200:
            S.add("M", f"buffer_load_dword a{aDUM}, v19, {srd(SC)}, s81 offen ;@dummy", 5, 5, chain="wo")
            S.add("S", f"s_add_u32 s81, s81, {128*3328}", 15, 17, chain="wo")
        if N > 200: add_cpf(S, N - 30, N - 14, [f"{lab['DD']}-L_pc", f"{lab['DD']}-L_pc+4096"])
        elif OPT.get("cs", 0): add_cpf(S, 59, 59, [f"{lab['SD']}-L_pc"])
    pass; p.label(lab["D"]); setst(cs)
    g.emit(group(FULL2, FULL2, hook=hook_cnt, name="D"), EG); chk()
    p(f"s_cbranch_scc1 {lab['D']}")
    p.label(lab["DD"]); setst(cs)
    g.emit(stamp(13) + group(LD, FULL2, hook=both(hook_dd, hook_e0), name="DD", extra=(0, p5_wdma(0, 0))), EG); chk()
    p(f"s_cmp_eq_u32 s{sJ}, 7\ns_cbranch_scc1 {lab['T1']}")
    p.label(lab["T"]); setst(cs)
    g.emit(stamp(14) + group(TR, LD, hook=hook_t, name="T") + stamp(15), EG); chk()
    p(f"s_lshl_b32 s{sCnt}, s{sJ}, 1\ns_sub_u32 s{sCnt}, 13, s{sCnt}")
    pass; p.label(lab["S"]); setst(cs)
    g.emit(group(TR, TR, hook=hook_cnt, name="S"), EG); chk()
    p(f"s_cbranch_scc1 {lab['S']}")
    setst(cs); p.label(lab["SD"])
    g.emit(stamp(16) + group(TD, TR, lastg=True, hook=hook_last, name="SD"), EG, name="SD"); chk()
    ts = (cs[0], list(g.vm)); setst(ts)
    p.label(lab["TAIL"])
    mf = rowsum(3, 1)
    for db in range(8): mf += [mfma(O(db, 3), F(2*db + u), Pp(1, u, 3)) for u in snake(2, db)]
    S = Sched(mf)
    for f in range(8, 16): S.add("D", rdV(f, 0), -1 if f < 12 else 0, -1 if f < 12 else 1, chain="rd")["dd"] = True
    for k, (sal, d) in enumerate(p5_wdma(1, 1)): S.add("M", d, 3 - SM + 2*k, 3 - SM + 2*k, chain="p5", pre=sal)
    e1 = epi_frag(2, 1)
    for c in e1[:-2]: S.add("A", c, 2, chain="epi")
    seq = stamp(17) + S.run("tail") + e1[-2:] + stamp(7)
    seq += epi_head(3) + L(f"""s_mov_b32 s{t0_}, {f32(LTHR if not OPT.get('forcefb') else 0.0)}
          v_cmp_le_f32 vcc, s{t0_}, v{vBad}
          s_lshl_b32 s{t1_}, s{sW}, 2
          s_cmp_lg_u64 vcc, 0
          s_cselect_b32 s{t0_}, 1, 0
          v_mov_b32 v248, s{t1_}
          v_mov_b32 v249, s{t0_}
          ds_write_b32 v248, v249""")
    rest = [(2, 2), (2, 3), (3, 0), (3, 1), (3, 2), (3, 3)]; NX = OPT.get("nx", 6)
    NL = OPT.get("nl", 2); g.late = []
    for k, (qb, t) in enumerate(rest[:NX]):
        if k < NX - NL: seq += epi_frag(qb, t, True)
        else: g.late += epi_frag(qb, t, True)
    g.epi = [epi_frag(qb, t) for qb, t in rest[NX:]]
    FB = p.new("fallback")
    seq += L(f"""v_mov_b32 v248, 0
          s_waitcnt lgkmcnt(0)
          s_barrier
          ds_read_b128 v[248:251], v248""") + stamp(8)
    g.emit(seq)
    g.fbcheck = L(f"""v_or3_b32 v248, v248, v249, v250
          v_or_b32 v248, v248, v251
          s_nop 0
          v_readfirstlane_b32 s{t0_}, v248 ;@val=0
          s_nop 0
          s_cmp_gt_u32 s{t0_}, s{sFB}
          s_cbranch_scc1 {FB} ;@br=fb""")
    es = getst()
    main = g.p; g.p = P(); g.p.uid = main.uid + 1000
    if PG: g.p.l += [";@batch -1"]
    g.p.label(lab["F1"]); setst(st0)
    g.emit(first_group(LD, "F1", both(hook_first, hook_e0), (1, p5_wdma(0, 0))) + stamp(12) + stamp(13), EG); chk()
    g.p(f"s_branch {lab['T']}")
    g.p.label(lab["T1"]); setst(cs)
    g.emit(stamp(14) + stamp(15) + stamp(16) + group(TD, LD, lastg=True, hook=both(hook_t, hook_last), name="T1"), EG); chk()
    def sig_(vm): return [(t, tuple(r)) for t, r in vm if (t and t.startswith("w5")) or r]
    assert sig_(g.vm) == sig_(ts[1])[len(sig_(ts[1])) - len(sig_(g.vm)):], (sig_(g.vm), sig_(ts[1]))
    g.p(f"s_branch {lab['TAIL']}")
    g.p.label(FB); setst(([], []))
    sU = 81
    q = L(f"""s_waitcnt vmcnt(0) lgkmcnt(0)
          s_barrier
          s_mov_b32 s{sFB}, 1
          s_mov_b32 s{sU}, 0
          v_and_b32 v232, 15, v0
          v_lshrrev_b32 v233, 4, v0
          v_lshlrev_b32 v233, 2, v233
          v_sub_u32 v232, v232, v233
          s_lshl_b32 s{t0_}, s{sW}, 4
          v_add_u32 v232, s{t0_}, v232
          s_lshl_b32 s{t0_}, s{sBHi}, 7
          v_add_u32 v234, s{t0_}, v232
          s_lshl_b32 s{t0_}, s{sJ}, 7
          v_add_u32 v232, s{t0_}, v232
          v_add_u32 v233, 64, v232
          v_add_u32 v235, 64, v234""")
    for sal, d in att_first_dmas(sLX): q += sal + ["s_nop 0", d]
    for qb in range(4): q.append(f"v_mov_b32 v{mx+qb}, 0xff800000")
    FL = g.p.new("fbl"); q.append(FL + ":")
    for f in range(8):
        if f == 4: q.append(f"s_add_u32 s{sT}, s{sU}, 4096")
        q.append(f"buffer_load_dwordx4 {F(f)}, v{vL16}, {srd(SA)}, s{sU if f < 4 else sT} offen offset:{(f&3)*1024} sc1")
    for qb in range(4):
        for kb in range(2):
            for r in range(4):
                c = S_(kb, qb)[r]
                q += [f"v_subrev_u32 {c}, {16*kb + r}, v{232+qb}", f"v_ashrrev_i32 {c}, 31, {c}", f"v_and_b32 {c}, 0xff800000, {c}"]
        q.append(f"v_subrev_u32 v{232+qb}, 32, v{232+qb}")
    q.append("s_waitcnt vmcnt(0)")
    for f in range(8):
        for qb in range(4): q.append(mfma(S_(f >> 2, qb), F(f), Q(qb, f & 3)))
    q.append("s_nop 7")
    for qb in range(4):
        for kb in range(2):
            a = S_(kb, qb)
            q += [f"v_max3_f32 v{mx+qb}, v{mx+qb}, {a[0]}, {a[1]}", f"v_max3_f32 v{mx+qb}, v{mx+qb}, {a[2]}, {a[3]}"]
    q += L(f"s_add_u32 s{sU}, s{sU}, 16384\ns_cmp_lt_u32 s{sU}, s{SA+2}\ns_cbranch_scc1 {FL}")
    q += xmax()
    q += [f"v_mov_b32 v{mt+qb}, v{mx+qb}" for qb in range(4)] + att_scalars() + att_head() + ["s_waitcnt vmcnt(0) lgkmcnt(0)"]
    q.append(f"s_branch {START}")
    g.emit(q)
    g.ool += g.p.l; main.uid = g.p.uid + 1000; g.p = main
    setst(es)

def phase5(g):
    p = g.p
    vD = 184
    sCnt = 70
    CO = [4, 5, 6, 7, 0, 1, 2, 3]
    def acc(rb, cb): return R("v", 24 + 32*rb + 4*cb)
    def fw(j, s): return R("a", 144 + 8*j + 4*s)
    def wread(sl, j, slot=None):
        win, off = ((0, 32768), (1, 0), (1, 32768), (0, 0), (2, 0))[sl]
        return [f"ds_read_b64_tr_b16 {fw(j if slot is None else slot, s)[2*i:2*i+2]}, v{vD + 8*win + CO[j]} offset:{off + s*8192 + i*4096}" for s in range(2) for i in range(2)]
    NPRE = 3
    q = [f"v_xor_b32 v{vD+n}, {32*n}, v18" for n in CO[:NPRE]]
    for j in range(NPRE): q += wread(0, j)
    q += [f"v_xor_b32 v{vD+n}, {32*n}, v18" for n in CO[NPRE:]] + g.late + g.fbcheck
    g.emit(q)
    BP = OPT.get("bp", 43)
    xs = L(f"""s_xor_b32 s{t0_}, s2, 1
          s_lshl2_add_u32 s{t0_}, s{t0_}, s{sW}
          s_lshl_b32 s73, s{t0_}, 12
          s_add_u32 s73, s73, {WS_XCH}
          s_lshl2_add_u32 s{t0_}, s2, s{sW}
          s_lshl_b32 s75, s{t0_}, 12
          s_add_u32 s75, s75, {WS_XCH}
          s_lshl_b32 s77, s{sR5}, 18
          s_lshl_b32 s{t0_}, s{sW}, 16
          s_add_u32 s77, s77, s{t0_}
          s_add_u32 s77, s77, s{sCol}
          s_lshl_b32 s{t0_}, s{sKh}, {9 if OPT.get("ci", 0) else 7}
          s_add_u32 s77, s77, s{t0_}
          v_lshlrev_b32 v1, 24, v0
          v_and_b32 v8, 7, v0
          v_lshlrev_b32 v8, 11, v8
          v_bfe_u32 v10, v0, 3, 1
          v_lshl_add_u32 v8, v10, 6, v8
          v_bfe_u32 v10, v0, 4, 1
          v_lshl_add_u32 v8, v10, 5, v8
          v_lshrrev_b32 v10, 5, v0
          v_lshl_add_u32 v8, v10, 4, v8
          v_add_u32 v2, s{sL5}, v{vL16}
          v_xor_b32 v3, 0x2000, v2
          v_add_u32 v4, 0x20000, v2
          v_add_u32 v5, 0x20000, v3
          v_mov_b32 v232, 0
          v_mov_b32 v233, 0
          v_mov_b32 v236, 0
          v_mov_b32 v237, 0
          v_and_b32 v9, 1, v0
          v_lshlrev_b32 v9, 4, v9
          v_mov_b32 v10, 0x3f80
          v_lshlrev_b32 v9, v9, v10
          v_lshrrev_b32 v10, 4, v0
          v_lshlrev_b32 v10, 1, v10
          v_bfe_u32 v11, v0, 1, 3
          v_xor_b32 v10, v10, v11
          v_subrev_u32 v11, 1, v10
          v_ashrrev_i32 v11, 31, v11
          v_and_b32 v234, v11, v9
          v_xor_b32 v10, 1, v10
          v_subrev_u32 v11, 1, v10
          v_ashrrev_i32 v11, 31, v11
          v_and_b32 v235, v11, v9""")
    def tmp(rb, c): return R("v", 200 + 16*rb + 4*c)
    def rx(k): return R("v", 152 + 4*k)
    ldx = [f"buffer_load_dwordx4 {rx(k)}, v{vL16}, {srd(SD)}, s75 offen offset:{k*1024} sc1" for k in range(4)]
    G2 = OPT.get("g2", 1)
    def mfs(prs, czero):
        mf = []; dn = {}; k = 0
        for x, (sl, j) in enumerate(prs):
            for rb in snake(4, j + 1):
                for q_, s in enumerate(snake(2, k)):
                    mf.append(mfma(acc(rb, CO[j]), fw(x & 7, s), p5_ctx(sl, rb, s), 0 if (czero and x < 8 and q_ == 0) else None))
                k += 1; dn[(rb, CO[j])] = len(mf) - 1
        return mf, dn
    def pacer(S):
        def pace(items, lo, hi):
            its = []
            for k, (sal, d) in enumerate(items):
                x = lo + (k * (hi - lo)) // len(items)
                its.append(S.add("M", d, x, min(x + 2, S.n - 1), chain="ld", pre=sal, sep=2))
            return its[0]
        return pace
    def first(role):
        nb = NB0() if role == 0 else 8 - NB0()
        na4 = 4 if nb == 2 else 0
        ns = nb + na4
        sl = {3: [0, 1, 3], 4: [0, 1, 2, 3], 5: [0, 1, 2, 4, 3], 6: [0, 1, 3, 4, 2, 3]}[ns] + [0, 1, 2]
        S = Sched(mfs([(sl[st], j) for st in range(ns) for j in range(8)], True)[0]); pace = pacer(S)
        gs = 8 if G2 else 4
        def arel(k): return k - nb if (k < ns or not na4) else k - ns + gs
        def W(k): return p5_wdma(sl[k], k, SB) if k < nb else p5_wdma(sl[k], arel(k), SC)
        def C(k): return p5_cld(sl[k], k if k < nb else arel(k), k >= nb)
        sigst = OPT.get("sig%d" % role, 1)
        EG_ = OPT.get("eg%d" % role, role if nb > 2 else 0)
        swW = f"s_add_u32 s{sWo5}, s{sWo5}, {(4<<20) - NB0()*262144}"
        if nb == 2 and role: S.add("S", swW, -1, -1, chain="ld")
        for st in range(ns):
            g0 = 64 * st; B = g0 + BP; dr = sl[st + 3] == sl[st]
            for j in range(NPRE, 8):
                for r in wread(sl[st], j): S.add("T", r, max(g0 + 8*j - 30, g0), min(g0 + 8*j - 8, B - (5 if dr else 1)), chain="t")
            S.add("X", [f"WAITVM w5_{sl[st+1]}" + (",ctx" if st == sigst else "") + (" L" if dr else ""), "s_barrier"], B, B, chain="t")
            for j in range(NPRE):
                for r in wread(sl[st + 1], j): S.add("T", r, B + 1, min(g0 + 64 + 8*j - 8, g0 + 63), chain="t")
            na = 6 if (st == nb - 2 and not EG_) else 5
            gate = g.spin(19, SF, "s72", 0, 8 if G2 else 16) + [f"s_sub_u32 s{sCtx}, s{sCtx}, {128*8192 - role*(64*8192 - NB0()*32768)}", f"s_add_u32 s{sCtx}, s{sCtx}, s{t3_}"] + stamp(9) if st == nb - 1 - EG_ else None
            poll = f"buffer_load_dword v19, off, {srd(SF)}, s72 sc1"
            wr = W(2) if st == 0 else W(st + 2)[5:]
            if EG_:
                if gate: S.add("X", gate, g0, g0, chain="ld")
                pace(wr + C(st + 2), g0 + 2, B - 1)
                if st == nb - 3: S.add("M", poll, B - 1, B + 2, chain="ld")
            elif st == nb - 2:
                pace(wr, g0 + 2, g0 + 28)
                S.add("M", poll, g0 + 30, g0 + 36, chain="ld")
            elif st == nb - 1:
                S.add("X", gate, g0, g0, chain="ld")
                pace(C(nb) + W(nb + 1)[6:] + C(nb + 1), g0 + 2, B - 1)
            else: pace(wr + C(st + 2), g0 + 2, B - 1)
            if st + 3 == nb and role: S.add("S", swW, B - 1, B + 3, chain="ld")
            if st + 3 == nb and OPT.get("rot", 1):
                W8 = OPT.get("w8", 0)
                for c in (f"s_and_b32 s{t2_}, s{sR5}, {7 if W8 else 3}", f"s_lshl_b32 s{t2_}, s{t2_}, {10 if W8 else 11}", f"s_add_u32 s76, s{sL5}, s{t2_}"): S.add("S", c, g0 + 16, B - 2, chain="rot")
                if W8:
                    for c in (f"s_and_b32 s17, s{sR5}, 1", "s_lshl_b32 s17, s17, 7"): S.add("S", c, g0 + 16, B - 2, chain="rot")
                    for r_ in range(2): S.add("A", f"v_xor_b32 v{vG5+r_}, s17, v{vG5+r_}", B - 1, B + 2, chain="ld")
                for c in (f"s_lshr_b32 s{t3_}, s{sCol}, 8", f"s_lshr_b32 s{t1_}, s{sR5}, {OPT.get('srs', 1)}", f"s_xor_b32 s{t3_}, s{t3_}, s{t1_}", f"s_and_b32 s{t3_}, s{t3_}, {OPT.get('sr', 2)}",
                          f"s_lshl_b32 s{t3_}, s{t3_}, 15", f"s_add_u32 s{t2_}, s{t2_}, s{t3_}"): S.add("S", c, g0 + 16, B - 2, chain="rot")
                S.add("S", f"s_lshl3_add_u32 s{sWo5}, s{t2_}, s{sWo5}", B - 1, B + 3, chain="ld")
            pace(W(st + 3)[:na], B + 5, g0 + 64)
            if st == sigst:
                pre, d = signal(SF, "s71", 0, "ctx")
                S.add("S", pre[0], B - 12, B - 4, chain="sig"); S.add("A", pre[1], B - 12, B - 1, chain="sig", sep=1)
                S.add("X", one_lane(d), B + 1, B + 1, chain="sig")
        EH = 64*sigst + BP - OPT.get("eh", 24)
        for k, fr in enumerate(g.epi):
            for c in fr: S.add("M" if c.startswith("buffer") else kind(c), c, 0, min(60, EH) if "a6" <= c.split()[-1][:2] <= "a9" and len(c.split()[-1]) == 3 else EH, chain="epi")
        fin = [f"s_mov_b32 s{sCnt}, {2 if na4 else 3}", f"s_mov_b32 s73, {1 if not G2 else -1 if na4 else 2}"]
        if na4: fin += [f"s_add_u32 s{sWo5}, s{sWo5}, {gs*262144}", f"s_add_u32 s{sCtx}, s{sCtx}, {gs*32768}"]
        for c in fin: S.add("S", c, S.n - 6, S.n, chain="ld")
        nb = ns
        for n in range(8): S.add("A", f"v_xor_b32 v{vD+8+n}, 0x10000, v{vD+n}", 0, BP - 1)
        if nb >= 5:
            for n in range(8): S.add("A", f"v_xor_b32 v{vD+16+n}, 0x18000, v{vD+n}", 64, 128)
        for c in [f"s_and_b32 s71, s{sH}, {4 if G2 else 0}", "s_lshl_b32 s71, s71, 5", f"s_add_u32 s71, s71, s{sSig}", "s_add_u32 s71, s71, 4096", f"s_add_u32 s72, s{sWt}, 4096"]: S.add("S", c, 18, 36, chain="sc")
        if not OPT.get("nocpf") and not OPT.get("pg", 1):
            for k in range(2 if OPT.get("cl", 0) else 3):
                pre, d = cpf("L_p5loop-L_pc+%d" % (4096*k)); x = 64*(nb - 2) + 18
                S.add("M", d, x + 3*k, x + 20, chain="cpf", pre=pre, sep=3)
        return S.run("p5first%d" % role)
    def body(kd):
        prs = [(st, j) for st in range(4) for j in range(8)]
        X2 = 0; NZ = OPT.get("nz", 3); Z = 4 - NZ
        if kd == "last": prs = prs[:8*Z] + [(st, j) for h in range(2) for st in range(Z, 4) for j in range(4*h, 4*h + 4)]
        mf, dn = mfs(prs, False)
        S = Sched(mf); pace = pacer(S)
        for st in range(4):
            g0 = 64 * st; B = g0 + BP
            if kd == "last" and st >= Z:
                for x in range(8*st + (NPRE if st == Z else 0), 8*st + 8):
                    if prs[x][1] == 0: S.add("X", [f"WAITVM w5_{prs[x][0]}", "s_barrier"], 8*x - OPT.get("zb", 26), 8*x - OPT.get("zb", 26), chain="t")
                    for r in wread(prs[x][0], prs[x][1], x & 7): S.add("T", r, max(8*x - 30, 64*Z), 8*x - 8, chain="t")
                if st == 1: pace(p5_wdma(3, 3, SC)[5:] + p5_cld(3, 3, True), g0 + 1, g0 + OPT.get("zl", 36))
                continue
            for j in range(NPRE, 8):
                for r in wread(st, j): S.add("T", r, max(g0 + 8*j - 30, g0), min(g0 + 8*j - 8, B - 1), chain="t")
            S.add("X", [f"WAITVM w5_{(st+1)&3}", "s_barrier"], B, B, chain="t")
            for j in range(NPRE):
                for r in wread((st + 1) & 3, j): S.add("T", r, B + 1, min(g0 + 64 + 8*j - 8, g0 + 63), chain="t")
            def batch(x): return [] if (kd == "last" and x >= 4) else p5_wdma(x & 3, x & 3, SC) + p5_cld(x & 3, x & 3, True)
            if kd == "loop" and st == 2:
                if G2: S.add("X", g.spin(19, SF, "s72", 128, "s74"), g0, g0, chain="ld")
                for c in (f"s_lshl_b32 s75, s73, 17", f"s_add_u32 s{sCtx}, s{sCtx}, s75"): S.add("S", c, g0 - 20, g0 + 6, chain="ac")
            if batch(st + 2): pace(batch(st + 2)[5:], g0 + (3 if st == 2 else 1), B + OPT.get("pa", 2))
            if kd == "loop" and st == 1:
                for c in (f"s_lshl_b32 s75, s73, 20", f"s_add_u32 s{sWo5}, s{sWo5}, s75", "s_lshr_b32 s74, s73, 28", "s_and_b32 s74, s74, 8"): S.add("S", c, g0 + 16, B, chain="ac")
                if G2: S.add("M", f"buffer_load_dword v19, off, {srd(SF)}, s72 offset:128 sc1", g0 - 1, g0, chain="pl")
            if batch(st + 3): pace(batch(st + 3)[:5], B + OPT.get("pb", 3), g0 + OPT.get("pc", 65))["prelo"] = B + 1
        if kd == "loop" and OPT.get("cl", 0) and not OPT.get("nocpf"):
            for k in range(2):
                pre, d = cpf("L_p5last-L_pc+%d" % (4096*k)); S.add("M", d, 128 + 64*k + 30, 128 + 64*k + BP - 1, chain="cpf", pre=pre)
        if kd == "loop":
            for c in ([f"s_sub_u32 s73, 1, s73"] if G2 else []) + [f"s_sub_u32 s{sCnt}, s{sCnt}, 1", f"s_cmp_lg_u32 s{sCnt}, 0"]: S.add("S", c, 250, 256, chain="ld")
        if kd == "last":
            for c in xs + mk_srd(SE, sOUT, 4 << 20): S.add(kind(c), c, 30, 120, chain="x")
            XQ = OPT.get("xq", 2)
            if OPT.get("er", 226):
                for c in ldx: S.add("M", c, OPT.get("er", 226), OPT.get("er", 226) + 12, chain="er", sep=2)
            for cs_ in ([(0, 1)] if not X2 else [(0,), (1,)]):
                for c in [2*c2 + h for c2 in cs_ for h in range(2)]:
                    for rb in snake(2, c + 1):
                        x = dn[(2 + rb, 4 + c)]
                        S.add("M", f"ds_write_b128 v3, {acc(2 + rb, 4 + c)} offset:{rb*4096 + c*1024}", x + 8, x + 10, chain="x")
                x += 13
                S.add("X", ["s_waitcnt lgkmcnt(0)", "s_barrier"], 0, x, chain="x", sep=3)
                k = 0
                for rb in range(2):
                    for c in [2*c2 + h for c2 in cs_ for h in range(2)]:
                        S.add("D", f"ds_read_b128 {tmp(rb, c)}, v2 offset:{rb*4096 + c*1024}", 0, x + 1 + (k >> 1), chain="x")["dd"] = True; k += 1
                x += 6; x0 = x
                for rb in range(2):
                    for c2 in cs_:
                        a, b = tmp(rb, 2*c2), tmp(rb, 2*c2 + 1); x += XQ
                        for c in (2*c2, 2*c2 + 1):
                            for r in range(4): S.add("A", f"v_add_f32 {tmp(rb, c)[r]}, {tmp(rb, c)[r]}, {acc(rb, 4 + c)[r]}", x0, x - 1, chain="x")
                        for d_, src, r in ((0, a, 0), (1, a, 2), (2, b, 0), (3, b, 2)): S.add("A", f"v_cvt_pk_bf16_f32 {a[d_]}, {src[r]}, {src[r+1]}", 0, x - 1, chain="x")
                        S.add("M", f"buffer_store_dwordx4 {a}, v{vL16}, {srd(SD)}, s73 offen offset:{(2*rb + c2)*1024} {ST}", 0, x, chain="x", sep=1)
            for c in range(3):
                for rb in snake(2, c + 1):
                    S.add("M", f"ds_write_b128 v5, {acc(2 + rb, c)} offset:{rb*4096 + c*1024}", dn[(2 + rb, c)] + 8, chain="x")
        return S.run("p5" + kd)
    st0 = (list(g.lg), list(g.vm))
    p(f"s_cmp_eq_u32 s{sKh}, 0\ns_cbranch_scc1 L_p5f0")
    g.emit(first(1), 8, name="p5first1")
    ent = (list(g.lg), list(g.vm))
    main = g.p; g.p = P(); g.p.uid = main.uid + 1000
    if OPT.get("pg", 1): g.p.l += [";@batch 1", ";@palign"]
    g.p.label("L_p5f0"); g.lg, g.vm = st0
    g.emit(first(0), 8); g.p("s_branch L_p5join")
    def cregs(sl): return [(None, [(p5_ctx(sl, rb, s_).f, p5_ctx(sl, rb, s_).b + k) for k in range(4)]) for s_ in range(2) for rb in range(4)]
    ent = (None, cregs(0) + [("w5_1", [])] * 2 + cregs(1) + [("w5_2", [])] * 5)
    g.ool += g.p.l; main.uid = g.p.uid + 1000; g.p = main
    if OPT.get("pg", 1): p.l += ["s_branch L_p5join", ";@palign"]
    p.label("L_p5join")
    p(stamp(4))
    p.label("L_p5loop")
    pre_ = [([("a", 144 + 2*k), ("a", 145 + 2*k)], 0) for k in range(4 * NPRE)]
    g.lg = pre_; g.vm = ent[1]
    g.emit(body("loop"), 8)
    p("s_cbranch_scc1 L_p5loop")
    g.lg = pre_; p.label("L_p5last")
    g.emit(stamp(3) + body("last") + stamp(10), 8, name="p5last")
    SEL = R("v", 232, 6); FO = OPT.get("fo", 1)
    chk = ["USE v[152:167]", "L_xchk:", "v_max3_u32 v9, v152, v153, v154"] + [f"v_max3_u32 v9, v9, v{155+2*k}, v{156+2*k}" for k in range(6)]
    chk += L("""v_max_u32 v9, v9, v167
          v_cmp_eq_u32 vcc, -1, v9
          s_cbranch_vccnz L_xretry
          L_xgo:""")
    g.ool[0:0] = ["L_xretry:", "s_sub_u32 s72, s72, 1", "s_cbranch_scc1 L_xgo ;@nottaken"] + ldx + ["s_waitcnt vmcnt(0)", "s_branch L_xchk"]
    adx = [mfma(acc(rb, c), SEL[2:6] if c % 2 == 0 else SEL[0:4], rx(2*rb + (c >> 1))) for rb in range(2) for c in range(4)]
    q = ["s_mov_b32 s72, 0x20000", "s_nop 6"]
    for rb in range(2): q.append(f"ds_write_b128 v5, {acc(2 + rb, 3)} offset:{rb*4096 + 3*1024}")
    q += ["s_waitcnt lgkmcnt(0)", "s_barrier"]
    for rb in range(2):
        for c in range(4): q.append(f"ds_read_b128 {acc(2 + rb, c)}, v4 offset:{rb*4096 + c*1024}")
    if FO: q += chk + adx + ["s_nop 0"]
    for rb in range(2):
        for c in range(4):
            for r in range(4): q.append(f"v_add_f32 {acc(rb, c)[r]}, {acc(rb, c)[r]}, {acc(2 + rb, c)[r]}")
    if not FO: q += chk + adx + ["s_nop 1"]
    for rb in range(2):
        for c2 in range(2):
            a, b = acc(rb, 2*c2), acc(rb, 2*c2+1)
            q += L(f"""v_cvt_pk_bf16_f32 {a[0]}, {a[0]}, {a[1]}
                  v_cvt_pk_bf16_f32 {a[1]}, {a[2]}, {a[3]}
                  v_cvt_pk_bf16_f32 {a[2]}, {b[0]}, {b[1]}
                  v_cvt_pk_bf16_f32 {a[3]}, {b[2]}, {b[3]}""")
        a, b, t_ = acc(rb, 0), acc(rb, 2), acc(rb, 1)
        q += [f"v_permlane16_swap_b32 {a[0]}, {a[2]}", f"v_permlane16_swap_b32 {a[1]}, {a[3]}", f"v_permlane16_swap_b32 {b[0]}, {b[2]}", f"v_permlane16_swap_b32 {b[1]}, {b[3]}"]
        q += [f"v_mov_b32 {t_[r]}, {a[r]}" for r in range(4)]
        q += [f"v_mov_b32_dpp {a[r]}, {b[r]} row_ror:8 row_mask:0xf bank_mask:0xc" for r in range(4)]
        q += [f"v_mov_b32_dpp {b[r]}, {t_[r]} row_ror:8 row_mask:0xf bank_mask:0x3" for r in range(4)]
        q += [f"buffer_store_dwordx4 {a}, v8, {srd(SE)}, s77 offen {OPT.get('ost', 'sc1')}", "s_add_u32 s77, s77, 16384",
              f"buffer_store_dwordx4 {b}, v8, {srd(SE)}, s77 offen {OPT.get('ost', 'sc1')}", "s_add_u32 s77, s77, 16384"]
    if OPT.get("dbgt"):
        q += L(f"""s_waitcnt vmcnt(0)
            s_memtime s[70:71]
            s_memrealtime s[72:73]
            s_waitcnt lgkmcnt(0)
            s_sub_u32 s70, s70, s96
            s_sub_u32 s72, s72, s98
            v_mov_b32 v2, s70
            v_mov_b32 v3, s72
            s_lshl_b32 s70, s2, 3
            s_add_u32 s70, s70, 8
            s_lshl_b32 s71, s{sW}, 12
            s_add_u32 s70, s70, s71""") + mk_srd(SF, 94, 64) + [f"buffer_store_dwordx2 v[2:3], v1, {srd(SF)}, s70 offen"]
    q += stamp(11) + stamp_flush()
    g.emit(q, name="final")

def build():
    g = G(); p = g.p
    hdr = open("/code/" + NAME + ".s.ref").read()
    p.l += [l for l in hdr.split("\n") if l.startswith(";") and "@launch" not in l]
    p.l.append(f"; @launch grid=(256,1,1) block=(256,1,1) lds={LDS_BYTES}")
    k = NAME + "_kernel"
    p(f'.amdgcn_target "amdgcn-amd-amdhsa--gfx950"\n.text\n.globl {k}\n.p2align 8\n.type {k},@function'); p.label(k)
    gemm12(g); attention(g); phase5(g)
    p.label("L_end"); p("s_endpgm")
    p(g.ool)
    p.label("L_codeend")
    p('.section .rodata,"a"\n.p2align 6')
    p.l += f""".amdhsa_kernel {k}
  .amdhsa_next_free_vgpr 512
  .amdhsa_next_free_sgpr 102
  .amdhsa_accum_offset 256
  .amdhsa_group_segment_fixed_size 0
  .amdhsa_kernarg_size 104
  .amdhsa_user_sgpr_count 2
  .amdhsa_user_sgpr_kernarg_segment_ptr 1
  .amdhsa_system_sgpr_workgroup_id_x 1
.end_amdhsa_kernel""".split("\n")
    return p.text()

if __name__ == "__main__":
    out = sys.argv[1]
    for a in sys.argv[2:]:
        k, _, v = a.partition("=")
        OPT[k] = True if v == "" else (int(v) if v.lstrip("-").isdigit() else v)
    txt = build()
    if OPT.get("pg", 1):
        from pages import pages
        plan = {}
        if OPT.get("na", 1): plan[9] = [(0, OPT.get("na", 1))]
        plan[0] = [(0, OPT.get("n0", 4))]
        ts = TSITES()
        for k in range(len(ts)): plan[k + 1] = [(0, OPT.get("n1", 8))] if k + 1 < len(ts) else [(0, 99), (1, 99)]
        txt, info = pages(txt, sW, plan, OPT.get('half')); print("page stubs", info)
    if OPT.get("al"):
        from align import align
        txt, n_ = align(txt, OPT["al"]); print("widened", n_)
    import subprocess, re, os
    open("_sz.s", "w").write(txt.replace("NCHUNK", "100"))
    subprocess.check_call(["clang", "-x", "assembler", "-target", "amdgcn-amd-amdhsa", "-mcpu=gfx950", "-c", "_sz.s", "-o", "_sz.o"])
    sz = int(re.search(r"\.text\s+PROGBITS\s+\S+\s+\S+\s+(\S+)", subprocess.check_output(["llvm-readelf", "-S", "_sz.o"]).decode()).group(1), 16)
    nch = 0
    print("code bytes", sz, "file", len(txt))
    open(out, "w").write(txt.replace("NCHUNK", str(nch)))
```

```python
import sys, math, struct
from genlib import P, R, mfma
from sched import Sched, resolve

NAME = "gated_mix__compressed_kv_cla__sliding_local_dilated__prompt"
WS_HALO = 58 << 20
WS_KV, WS_CTX, WS_G, WS_CNT, WS_INBOX, WS_XCH, WS_STAMP = 0, 32 << 20, 56 << 20, 57 << 20, (57 << 20) + 65536, 64 << 20, 96 << 20
LDS_BYTES = 160 * 1024
def f32(x): return "0x%08x" % struct.unpack("<I", struct.pack("<f", x))[0]
QSCALE = 128 ** -0.5 * math.log2(math.e)
BSCALE = 32 ** -0.5 * math.log2(math.e)
LTHR = 2.0 ** 60

sX, sC, sWQ, sWUK, sWUV, sWOA, sWQKV, sWOB, sGATE, sOUT, sDBG, sWS = 4, 6, 8, 10, 12, 14, 18, 20, 22, 24, 26, 28
sW, sH, sJ = 30, 31, 3
SA, SB, SC, SD, SE, SF, SG, SH = 32, 36, 40, 44, 48, 52, 56, 60
sT, sT2, sBHi = 64, 65, 16
t0_, t1_, t2_, t3_ = 66, 67, 68, 69
def srd(b): return f"s[{b}:{b+3}]"
OPT = dict(stamps=False)
ST = "sc1" if "x_plain" not in sys.argv else ""

vDX, vDQ, vGX, vGW, vL16, vDH, vDB, vDBH, vGH, vGB = 2, 4, 12, 14, 16, 17, 19, 21, 22, 23
vQ, vG = 24, 4
aONE, aDUM = 251, 252
ONES = R("a", 244)
ONES2, vIDX = R("a", 240), 5
MSK = [0, 4, 6, 8, 10, 12, 18, 22, 26, 56, 58, 60, 62, 48, 50, 100]
def msk(k): return f"s[{MSK[k]}:{MSK[k]+1}]"
def kind(c): return "S" if c.startswith("s_") else ("E" if c.startswith(("v_exp", "v_rcp")) else "A")

def L(s): return [x.strip() for x in s.strip().split("\n") if x.strip()]
def mk_srd(b, ptr, nbytes, off=None):
    if off is None: o = [f"s_mov_b32 s{b}, s{ptr}", f"s_mov_b32 s{b+1}, s{ptr+1}"]
    else: o = [f"s_add_u32 s{b}, s{ptr}, {off}", f"s_addc_u32 s{b+1}, s{ptr+1}, 0"]
    return o + [f"s_mov_b32 s{b+2}, {nbytes}", f"s_mov_b32 s{b+3}, 0x20000"]

NST = [0]
def stamp(idx):
    if not OPT["stamps"]: return []
    return L(f"""s_waitcnt lgkmcnt(0)
        s_memtime s[92:93]
        s_memrealtime s[94:95]
        v_accvgpr_write_b32 a253, v1
        v_accvgpr_read_b32 v1, a249
        s_waitcnt lgkmcnt(0)
        v_writelane_b32 v1, s92, {2*idx}
        v_writelane_b32 v1, s94, {2*idx+1}
        v_accvgpr_write_b32 a249, v1
        v_accvgpr_read_b32 v1, a253
        s_nop 1""")
def stamp_flush():
    if not OPT["stamps"]: return []
    return L(f"""s_lshl_b32 s96, s2, 2
        s_add_u32 s96, s96, s{sW}
        s_lshl_b32 s96, s96, 8
        s_add_u32 s96, s96, {WS_STAMP}
        v_lshlrev_b32 v1, 2, v0
        buffer_store_dword a249, v1, {srd(SD)}, s96 offen
        s_waitcnt vmcnt(0)""")

class G:
    def __init__(self):
        self.p = P(); self.lg = []; self.vm = []; self.ool = []
    def emit(self, seq, eager=0, name=None):
        if name: self.p.l.append(";@seg " + name)
        out, self.lg, self.vm = resolve(seq, self.lg, self.vm, eager)
        self.p(out)
    def spin(self, vreg, srdb, soff, imm, target):
        st, bk, lp = self.p.new("spin"), self.p.new("spinbk"), self.p.new("spinlp")
        self.ool += L(f"""{st}:
            s_mov_b32 vcc_hi, 0x80000
            {lp}:
            s_sleep 1
            buffer_load_dword v{vreg}, off, {srd(srdb)}, {soff} offset:{imm} sc1
            s_waitcnt vmcnt(0)
            v_readfirstlane_b32 vcc_lo, v{vreg}
            s_sub_u32 vcc_hi, vcc_hi, 1
            s_cbranch_scc1 {bk} ;@nottaken
            s_cmp_lt_u32 vcc_lo, {target}
            s_cbranch_scc1 {lp} ;@nottaken
            s_branch {bk}""")
        return L(f"""v_readfirstlane_b32 vcc_lo, v{vreg}
            s_nop 0
            s_cmp_lt_u32 vcc_lo, {target}
            s_cbranch_scc1 {st}
            {bk}:""")

sLH = 78
def cpf(expr):
    return ([f"s_add_u32 s17, s{sLH}, {expr}"], f"buffer_load_dword a{aDUM}, v{vL16}, s[88:91], s17 offen ;@dummy")
def one_lane(d): return ["s_mov_b64 exec, 1", d, "s_mov_b64 exec, -1"]
def signal(srdb, soff, imm, tags):
    return ([f"s_lshl_b32 s{t0_}, s{sW}, 30", f"v_lshl_add_u32 v1, v0, 24, s{t0_}"],
            f"buffer_atomic_add a{aONE}, v1, {srd(srdb)}, {soff} offen offset:{imm} sc1 ;@sig=wg:{tags}")

JIT = [0]
def jit():
    if not OPT.get("jit"): return []
    JIT[0] += 1; k = JIT[0]
    return L(f"""s_mul_i32 s92, s2, {(OPT['jit'] * 2654435761 + k * 40503 * 977) & 0x7fffffff | 1}
        s_lshr_b32 s92, s92, 9
        s_xor_b32 s92, s92, s{sW}
        s_and_b32 s92, s92, 15
        L_jit{k}:
        s_sleep 12
        s_sub_u32 s92, s92, 1
        s_cbranch_scc0 L_jit{k}""")
def TSITES(): return [int(x) for x in str(OPT.get("ts", "1_20")).split("_")]
def snake(n, k): return list(range(n)) if k % 2 == 0 else list(range(n - 1, -1, -1))

def aq(db, rb): return R("v", (vQ if db % 2 == 0 else 88) + 16 * rb + 4 * (db // 2))
def bt(part, db, rb): return R("v", 152 + 32 * part + 8 * rb + 4 * db)
HK, HV = R("v", 248), R("v", 252)
XS = 20480
def KP(rb): return R("a", 176 + 4 * rb)
P2ORD = [10, 11, 12, 13, 8, 9, 0, 1, 2, 3, 4, 5, 6, 7]
def p2tile(cb, rb):
    if cb < 8: return aq(cb, rb)
    if cb < 14: return bt((cb - 8) >> 1, cb & 1, rb)
    return HK if cb == 14 else HV

def gemm12(g):
    p = g.p
    sCo, sWo, sXlo, sXhi, sXh, sBo, sLX, sLW, sKV, sPF = 70, 71, 72, 73, 74, 75, 76, 77, 79, 80
    NR = 6
    def fx(sg, rb, s): return R("a", 32 * (sg & 1) + 8 * rb + 4 * s) if rb < 4 else R("a", 64 + 4 * s)
    ES = OPT.get("es", 1)
    def fw(J, s): return R("a", 176 + 8 * J + 4 * s) if (ES and J < 2) else R("a", 72 + 8 * (J % NR) + 4 * s)
    def stash(i): return R("a", 144 + 4 * i)
    GA = 144
    def order(sg):
        o = []; k = 0
        for j, cb in enumerate(range(16) if sg < 8 else P2ORD):
            if sg >= 8 and cb >= 14: o.append((j, cb, 4))
            else:
                o += [(j, cb, rb) for rb in snake(4, k)]; k += 1
        return o
    o1, o2 = order(0), order(8)
    pos1 = {(cb, rb): k for k, (j, cb, rb) in enumerate(o1)}
    def treg(k): return p2tile(o2[k][1], o2[k][2]) if k < 56 else (HK, HV)[k - 56] if k < 58 else R("a", 120 + 4 * (k - 58))
    FS = [(22, j) for j in range(6)] + [(23, j) for j in range(6)] + [(sg, j) for j in range(6, 14) for sg in (22, 23)]
    def Jx(sg, j): return 16 * sg + j if sg < 8 else 128 + 14 * (sg - 8) + j if sg < 22 else 128 + 14 * 14 + FS.index((sg, j))
    p("s_cmp_ge_u32 s2, 256\ns_cbranch_scc1 L_end")
    p("s_load_dwordx16 s[4:19], s[0:1], 0\ns_load_dwordx8 s[20:27], s[0:1], 64\ns_load_dwordx2 s[28:29], s[0:1], 96")
    if OPT["stamps"] or OPT.get("dbgt"): p("s_memtime s[96:97]\ns_memrealtime s[98:99]")
    if OPT.get("dbgt"): p("s_load_dwordx2 s[94:95], s[0:1], 88")
    p("s_getpc_b64 s[88:89]"); p.label("L_pc")
    p(f"""v_lshrrev_b32 v1, 6, v0
          s_lshr_b32 s{t1_}, s2, 3
          v_lshl_add_u32 v24, s{t1_}, 2, v1
          s_mov_b32 s90, L_codeend-L_pc
          s_mov_b32 s91, 0x20000
          v_and_b32 v25, 7, v0
          v_lshlrev_b32 v25, 7, v25
          v_lshl_add_u32 v24, v24, 10, v25
          buffer_load_dword a{aDUM}, v24, s[88:91], 0 offen ;@dummy
          v_and_b32 v0, 63, v0
          v_readfirstlane_b32 s{sW}, v1 ;@val=wave
          v_lshrrev_b32 v24, 3, v0
          v_lshrrev_b32 v25, 4, v0
          v_and_b32 v26, 7, v0
          v_xor_b32 v26, v26, v25
          v_lshlrev_b32 v26, 4, v26
          v_lshl_add_u32 v{vGX}, v24, 10, v26
          v_xor_b32 v{vGX+1}, 64, v{vGX}
          v_bfe_u32 v26, v0, 1, 3
          v_xor_b32 v26, v26, v25
          v_lshlrev_b32 v26, 5, v26
          v_and_b32 v24, 1, v0
          v_lshl_add_u32 v26, v24, 4, v26
          v_lshl_add_u32 v{vGW}, v25, 13, v26
          v_xor_b32 v{vGW+1}, 128, v{vGW}
          s_and_b32 s{t0_}, s2, 7
          s_and_b32 s{t2_}, s{t1_}, 3
          s_lshl2_add_u32 s{sH}, s{t0_}, s{t2_}
          s_cmp_eq_u32 s{t2_}, 0
          {"s_cselect_b32 s90, s90, 0" if OPT.get("c4", 1) else ""}
          s_lshr_b32 s{sJ}, s{t1_}, 2
          s_lshl2_add_u32 s{sPF}, s{t1_}, s{sW}
          s_lshl_b32 s{sCo}, s{sJ}, 18
          s_lshl_b32 s{t0_}, s{sW}, 16
          s_add_u32 s{sCo}, s{sCo}, s{t0_}
          s_lshl_b32 s{sWo}, s{sW}, 17
          s_lshl_b32 s{t0_}, s{sH}, 8
          s_add_u32 s{sWo}, s{sWo}, s{t0_}
          {f"s_xor_b32 s{t2_}, s{t2_}, 1" if OPT.get("x_h1") else ""}
          {f"s_min_u32 s{t2_}, s{t2_}, 1" if OPT.get("x_h1") else ""}
          {f"s_xor_b32 s{t2_}, s{t2_}, 1" if OPT.get("x_h1") else ""}
          {f"s_mul_i32 s{t2_}, s{t2_}, 128" if OPT.get("x_h1") else ""}
          {f"s_sub_u32 s{sWo}, s{sWo}, s{t2_}" if OPT.get("x_h1") else ""}
          s_lshl_b32 s{sLX}, s{sW}, 13
          s_lshl_b32 s{sLW}, s{sW}, 12
          s_lshl_b32 s{sLH}, s{sW}, 10
          {";@touch 9" if OPT.get("na", 1) and OPT.get("pg", 1) else ""}
          s_waitcnt lgkmcnt(0)""")
    if OPT.get("pst"): p("s_memtime s[84:85]\ns_memrealtime s[86:87]")
    p(mk_srd(SA, sC, 2 << 20) + mk_srd(SB, sWUK, 4 << 20) + mk_srd(SC, sWUV, 4 << 20))
    def xdma(sg):
        par = sg & 1; d = []
        for i in range(8 if not (OPT.get("x_nox") and sg > 9) else 1):
            if sg < 8: so, sr = f"s_xor_b32 s{sT}, s{sCo}, {sg*128 + i*8192}", SA
            else: so, sr = f"s_xor_b32 s{sT}, s{sXlo if i < 4 else sXhi}, {(sg-8)*128 + ((i>>1)&1)*64*2048 + (i&1)*16384}", SE
            d.append(([f"s_xor_b32 m0, s{sLX if sg == 0 else 84}, {par*32768 + i*1024}", so], f"buffer_load_dwordx4 v{vGX + (i&1)}, {srd(sr)}, s{sT} offen lds ;@tag=x{sg}"))
        return d
    def wdma(sg):
        d = []; B = 65536 + (sg % 3) * 32768
        for kv in range(2 if sg < 8 else 1):
            for i in range(4):
                st = sg if sg < 8 else sg - 8
                d.append(([f"s_xor_b32 m0, s{sLW}, {B + kv*16384 + i*1024}", f"s_xor_b32 s{sT}, s{sWo}, {st*64*8192 + i*32768}"],
                          f"buffer_load_dwordx4 v{vGW + (i>>1)}, {srd((SB, SC)[kv] if sg < 8 else SG)}, s{sT} offen lds ;@tag=w{sg}"))
        if sg >= 8:
            for pp in range(3):
                d.append(([f"s_add_u32 m0, s{sLH}, {B + 16384 + pp*4096}", f"s_add_u32 s{sT}, s{sBo}, {(sg-8)*64*6144 + pp*2048}"],
                          f"buffer_load_dwordx4 v{vGB}, {srd(SH)}, s{sT} offen lds ;@tag=w{sg}"))
            d = [d[k] for k in (0, 4, 1, 5, 2, 6, 3)]
            if sg > 10 and OPT.get("x_now") == 1: d = d[:1]
            if sg > 10 and OPT.get("x_now") == 2: d = d[::2]
        return d
    seq = []
    x0, w0 = xdma(0), wdma(0)
    b0, b1 = (x0[:4] + w0[:4], x0[4:] + w0[4:]) if ES else (x0 + w0, [])
    for sal, d in b0: seq += sal + [d.replace("@tag=w0", "@tag=a0") if ES else d]
    if OPT.get("cpre") == 2: seq += [f"s_lshl2_add_u32 s84, s2, s{sW}", "s_lshl_b32 s84, s84, 11", "v_lshlrev_b32 v22, 5, v0", f"buffer_load_dword a{aDUM}, v22, {srd(SA)}, s84 offen ;@dummy"]
    seq += mk_srd(SD, sWS, 128 << 20) + mk_srd(SE, sX, 4 << 20) + mk_srd(SF, sDBG, 256) + mk_srd(SG, sWQ, 8 << 20) + mk_srd(SH, sWQKV, 6 << 20)
    seq += [f"v_accvgpr_write_b32 a{aONE}, 1"]
    if OPT["stamps"]: seq += ["v_mov_b32 v30, 0", "v_writelane_b32 v30, s96, 60", "v_writelane_b32 v30, s98, 61", "s_getreg_b32 s96, hwreg(HW_REG_XCC_ID)", "v_writelane_b32 v30, s96, 62"] + (["s_waitcnt lgkmcnt(0)", "v_writelane_b32 v30, s84, 58", "v_writelane_b32 v30, s86, 59", "v_writelane_b32 v30, s100, 56", "v_writelane_b32 v30, s0, 57"] if OPT.get("pst") else []) + [ "v_accvgpr_write_b32 a249, v30"] + stamp(0)
    seq += L(f"""v_and_b32 v24, 15, v0
          v_lshrrev_b32 v26, 1, v24
          v_xor_b32 v26, v26, v25
          v_lshlrev_b32 v26, 4, v26
          v_lshl_add_u32 v26, v24, 7, v26
          v_add_u32 v{vDX}, s{sLX}, v26
          v_xor_b32 v{vDX+1}, 64, v{vDX}
          v_bfe_u32 v24, v0, 2, 2
          v_lshl_add_u32 v27, v25, 3, v24
          v_and_b32 v1, 3, v0
          v_cmp_eq_u32 vcc, 0, v1
          v_lshlrev_b32 v1, 3, v1
          v_lshl_add_u32 v26, v27, 8, v1
          v_add_u32 v26, 65536, v26
          v_and_b32 v1, 1, v25
          v_lshl_add_u32 v24, v1, 2, v24
          v_lshlrev_b32 v{vL16}, 4, v0
          v_mov_b32 v28, 0x3f803f80
          v_cndmask_b32 v28, 0, v28, vcc""")
    seq += [f"v_accvgpr_write_b32 {ONES[r]}, v28" for r in range(4)]
    for n in range(8): seq += [f"v_xor_b32 v1, {n}, v24", f"v_lshl_add_u32 v{vDQ+n}, v1, 5, v26"]
    seq += L(f"""s_sub_u32 s{sBHi}, 15, s{sJ}
          s_lshl_b32 s{sXlo}, s{sJ}, 18
          s_lshl_b32 s{sXhi}, s{sBHi}, 18
          s_cmp_lt_u32 s{sW}, 2
          s_cselect_b32 s{t1_}, s{sJ}, s{sBHi}
          s_lshl4_add_u32 s{sXh}, s{sH}, s{t1_}
          s_and_b32 s{t0_}, s{sW}, 1
          s_lshl1_add_u32 s{sXh}, s{sXh}, s{t0_}
          s_lshl_b32 s{sXh}, s{sXh}, 10
          s_add_u32 s{sXh}, s{sXh}, {WS_HALO}
          s_lshl_b32 s{t0_}, s{sW}, 15
          s_add_u32 s{sXlo}, s{sXlo}, s{t0_}
          s_add_u32 s{sXhi}, s{sXhi}, s{t0_}
          s_mul_i32 s{sBo}, s{sW}, {16*6144}
          s_lshl_b32 s{t0_}, s{sH}, 6
          s_add_u32 s{sBo}, s{sBo}, s{t0_}
          s_lshl_b32 s{sKV}, s{sH}, 20
          s_lshl_b32 s{t0_}, s{sJ}, 17
          s_add_u32 s{sKV}, s{sKV}, s{t0_}
          s_lshl_b32 s{t0_}, s{sW}, 15
          s_add_u32 s{sKV}, s{sKV}, s{t0_}
          v_bfe_u32 v{vGB}, v0, 1, 1
          v_lshrrev_b32 v1, 5, v0
          v_xor_b32 v{vGB}, v{vGB}, v1
          v_lshlrev_b32 v{vGB}, 5, v{vGB}
          v_and_b32 v1, 1, v0
          v_lshl_add_u32 v{vGB}, v1, 4, v{vGB}
          v_lshrrev_b32 v1, 2, v0
          v_mul_u32_u24 v1, 6144, v1
          v_add_u32 v{vGB}, v1, v{vGB}
          s_lshl_b32 s81, s{sPF}, 13
          s_and_b32 s{t1_}, s2, 7
          s_lshl_b32 s82, s{t1_}, 8
          s_add_u32 s82, s82, s81
          s_lshl_b32 s{t1_}, s{t1_}, 10
          s_add_u32 s81, s81, s{t1_}
          s_add_u32 s83, s81, {1<<20}
          v_mul_u32_u24 v1, 1792, v25
          v_add_u32 v1, v1, v{vL16}
          s_lshl_b32 s{t2_}, s2, 3
          s_lshl1_add_u32 s{t2_}, s{sW}, s{t2_}
          v_lshrrev_b32 v18, 5, v0
          v_add_u32 v18, s{t2_}, v18
          v_and_b32 v19, 31, v0
          v_lshlrev_b32 v19, 4, v19
          v_lshl_add_u32 v18, v18, 11, v19
          v_mov_b32 v21, 0
          v_min_u32 v20, 1, v0
          v_lshlrev_b32 v20, 30, v20
          v_accvgpr_write_b32 a240, -1
          v_accvgpr_write_b32 a241, -1
          v_accvgpr_write_b32 a242, -1
          v_accvgpr_write_b32 a243, -1
          s_lshr_b32 s{t3_}, s2, 7
          s_or_b32 s{t3_}, s{t3_}, s{sW}
          s_lshl_b32 s{t3_}, s{t3_}, 21
          s_add_u32 s{t3_}, s{t3_}, s2
          s_lshl_b32 s{t3_}, s{t3_}, 7
          s_add_u32 s{t3_}, s{t3_}, {WS_CNT}""")
    def xread(sg): return [f"ds_read_b128 {fx(sg, rb, s)}, v{vDX+s} offset:{(sg&1)*32768 + rb*2048}" for rb in range(4) for s in range(2)]
    def hread(sg): return [f"ds_read_b128 {fx(sg, 4, s)}, v{vDH+s} offset:{min(sg % 3, 1)*32768}" for s in range(2)]
    def wread(sg, j):
        par = min(sg % 3, 1) if sg != 22 else 0; o = []; cb = j if sg < 8 else P2ORD[j]
        for s in range(2):
            for i in range(2):
                if sg < 8 or cb < 8: a, off = vDQ + (cb & 7), par*32768 + (cb >> 3)*16384 + s*8192 + i*1024
                elif cb < 14: a, off = vDB + (cb & 1), par*32768 + ((cb-8) >> 1)*4096 + s*2048 + i*256
                else: a, off = vDBH, par*32768 + (cb-13)*4096 + s*2048 + i*256
                o.append((a, f"ds_read_b64_tr_b16 {fw(Jx(sg, j), s)[2*i:2*i+2]}, v{a} offset:{off}"))
        return o
    if OPT.get("pg", 1): seq += ([";@touch 0"] if OPT.get("n0", 4) else []) + ["s_branch L_base", ".p2align 12", ";@base", ";@batch 0", ";@stub 0", "L_base:"]
    if OPT.get("pst"): seq += stamp(26)
    def wpf(sr): return f"buffer_load_dword a{aDUM}, v{vL16}, {srd(sr)}, s83 offen ;@dummy"
    P1PF = OPT.get("p1pf", 0)
    if P1PF == 2: seq += [wpf(SB), wpf(SC)]
    LATE, WD = OPT.get("late1", 1), OPT.get("wd", 3)
    for sal, d in b1 + ([] if ES else xdma(1) + wdma(1) if LATE == 0 else wdma(1) if LATE == 1 else []): seq += sal + [d]
    if ES: LATE = 2
    RX, RW = OPT.get("rx", 3), OPT.get("rw", 7)
    assert ES
    seq += L(f"""s_and_b32 s{t0_}, s{sH}, {RX}
          s_lshl_b32 s{t1_}, s{t0_}, 11
          s_add_u32 s84, s{sLX}, s{t1_}
          s_lshl3_add_u32 s{sCo}, s{t1_}, s{sCo}
          s_and_b32 s{t1_}, s{t0_}, 1
          s_lshl_b32 s{t1_}, s{t1_}, 17
          s_add_u32 s{sXlo}, s{sXlo}, s{t1_}
          s_add_u32 s{t1_}, s{sXhi}, s{t1_}
          s_bitcmp1_b32 s{t0_}, 1
          s_cselect_b32 s{sXhi}, s{sXlo}, s{t1_}
          s_cselect_b32 s{sXlo}, s{t1_}, s{sXlo}
          s_and_b32 s{t0_}, s{sJ}, {RW & 3}
          s_lshl_b32 s{t1_}, s{t0_}, 10
          s_add_u32 s{sLW}, s{sLW}, s{t1_}
          s_lshl_b32 s{t1_}, s{t0_}, 15
          s_add_u32 s{sWo}, s{sWo}, s{t1_}
          s_and_b32 s{t1_}, s{t0_}, 2
          s_lshl_b32 s{t1_}, s{t1_}, 6
          v_xor_b32 v{vGW}, s{t1_}, v{vGW}
          v_xor_b32 v{vGW+1}, s{t1_}, v{vGW+1}
          s_and_b32 s{t0_}, s{sJ}, {RW & 4}
          s_cselect_b64 s[{SB}:{SB+1}], s[{sWUV}:{sWUV+1}], s[{sWUK}:{sWUK+1}]
          s_cselect_b64 s[{SC}:{SC+1}], s[{sWUK}:{sWUK+1}], s[{sWUV}:{sWUV+1}]
          s_lshl_b32 s{t0_}, s{t0_}, 12
          s_add_u32 s{sLW}, s{sLW}, s{t0_}""")
    if P1PF == 1: seq += [wpf(SB), wpf(SC)]
    cpf_c = [f"s_lshl2_add_u32 s84, s2, s{sW}", "s_lshl_b32 s84, s84, 11", "v_lshlrev_b32 v22, 5, v0", f"buffer_load_dword a{aDUM}, v22, {srd(SA)}, s84 offen ;@dummy"]
    if OPT.get("cpre") == 1: seq += cpf_c
    seq += ["WAITVM a0" if ES else "WAITVM w0,x0", "s_barrier"] + stamp(1)
    xr = xread(0); NPRE = 3
    seq += xr[:2] + [r for _, r in wread(0, 0)] + xr[2:4 if ES else 8]
    for j in range(1, NPRE): seq += [r for _, r in wread(0, j)]
    if OPT.get("pst"): seq += stamp(27)
    g.emit(seq)
    mf = []; G0 = []; FU = {}; LU = {}; done = {}
    def tile_mf(k, cb, rb, sgs, j, swap):
        ops = [(sg, s) for sg in sgs for s in range(2)]
        for q, x in enumerate(snake(len(ops), k)):
            sg, s = ops[x]; J = Jx(sg, j)
            FU.setdefault(J, len(mf)); LU[J] = len(mf)
            c0 = 0 if (q == 0 and sg in (0, 8)) else None
            mf.append(mfma(treg(k), fx(sg, rb, s), fw(J, s), c0) if swap else mfma(treg(k), fw(J, s), fx(sg, rb, s), c0))
        done[(sgs[-1], cb, rb)] = len(mf) - 1
    for sg in range(22):
        G0.append(len(mf))
        oo = list(enumerate(o1 if sg < 8 else o2))
        if sg == 0:
            oo = [(pos1[(cb, rb)], (cb, cb, rb)) for cb in range(8) for rb in snake(2, cb)] + \
                 [(pos1[(cb, rb + 2)], (cb, cb, rb + 2)) for cb in (2, 3, 4, 5, 6, 7, 0, 1) for rb in snake(2, cb)] + oo[32:]
        for k, (j, cb, rb) in oo: tile_mf(k, cb, rb, [sg], j, (cb >= 8) if sg < 8 else (cb in (12, 13)))
    Z0 = len(mf); G0.append(Z0)
    for sg in (22, 23):
        for k, (j, cb, rb) in list(enumerate(o2))[:24]: tile_mf(k, cb, rb, [sg], j, cb in (12, 13))
    for k, (j, cb, rb) in list(enumerate(o2))[24:]: tile_mf(k, cb, rb, [22, 23], j, False)
    S = Sched(mf)
    def pace(items, lo, hi, chain, slack=5):
        n = len(items)
        for q, (sal, d) in enumerate(items):
            x = lo + int(q * (hi - lo) / n)
            it = S.add("M", d, x, x + slack, chain=chain, sep=3, pre=sal)
            if q == 0: it["prelo"] = lo - 2
    def chain(txt, lo, hi=None, name=None, sep=1):
        for c in (L(txt) if isinstance(txt, str) else txt): S.add(kind(c), c, lo, hi, chain=name, sep=sep)
    BAR = {sg: G0[sg + 1] - 30 for sg in range(22)}; BAR[-1] = -1; BAR[22] = Z0 + 18
    XW = 54; X0 = 70
    gxupd = f"v_lshrrev_b32 v{vGX+1}, 3, v0\nv_lshl_add_u32 v{vGX}, v{vGX+1}, 10, v{vGX}\nv_xor_b32 v{vGX+1}, 64, v{vGX}"
    pace(wdma(1) + xdma(1), 2, X0 - 2, "dma", slack=2)
    for sg in range(22):
        g0, nx, B = G0[sg], G0[sg + 1], BAR[sg]
        lastuse = {}
        for j in range(16 if sg < 8 else 14):
            J = Jx(sg, j)
            if J < NPRE: continue
            lo = max(LU[J - NR] if J >= NR + 2 else 0, BAR[sg - 1] + 1, FU[J] - 44)
            hi = min(FU[J] - (8 if J >= 8 else 6), B - 5)
            if J == 8:
                S.add("S", "WAITVM x0", 22, 22, chain="t")
                for r in xr[4:]: S.add("D", r, 0, 27, chain="t")["dd"] = True
                S.add("X", ["WAITVM w0", "s_barrier"], 38, 38, chain="t")
            for a, r in wread(sg, j): S.add("T", r, lo, hi, chain="t"); lastuse[a] = hi
        if sg % 3 or sg == 21:
            for r, lu in lastuse.items():
                S.add("A", f"v_add_u32 v{r}, 0x8000, v{r}" if sg % 3 != 2 else f"v_subrev_u32 v{r}, 0x8000, v{r}", lu + 1, B - 1)
        blk = [f"WAITVM w{sg+1} L", "s_barrier"]
        if OPT.get("pg", 1) and sg == 1: blk = [";@touch 1"] + blk
        if sg == 7: blk += stamp(2)
        if sg in (0, 6, 9, 17, 19, 21): blk += jit()
        fine = (0, 1, 2, 3, 4, 5, 9, 11, 13, 15, 17, 19) if OPT.get("fine") != 2 else (15, 16, 17, 18, 19, 20, 21)
        if OPT.get("fine") and sg in fine: blk += stamp(18 + fine.index(sg))
        S.add("X", blk, B, B)
        xw, xh = (g0 + XW, B - 5) if sg else (B + 8, nx - 8)
        S.add("S", f"WAITVM x{sg+1}", xw, xw, chain=("xn", sg))
        for q, r in enumerate(xread(sg + 1)): S.add("D", r, xw, xh, chain=("xn", sg))
        if sg == 0:
            pace(wdma(2) + xdma(2), X0, nx + 2, "dma", slack=2); pace(wdma(3), nx + 4, nx + 38, "dma", slack=2)
            continue
        if sg < 21: pace(xdma(sg + 2), g0 + 40, B - 2, "dma")
        if sg == 5: S.add("S", f"s_and_b32 s{sLW}, s{sLW}, 0x3fff", B - 4, B + 1, chain="dma")
        if sg < 20: pace(wdma(sg + 3), B + 3, nx + 38, "dma")
        if sg == 20: pace(xdma(23) + wdma(23), B + 3, BAR[21] - 16, "dma")
    if OPT.get("pg", 1):
        x = Z0 + OPT.get("tz", 40)
        S.add("X", [";@touch 2"], x, x + 6)
        for c in ("v_lshrrev_b32 v23, 2, v0", "v_mul_u32_u24 v23, 3584, v23", "v_lshl_add_u32 v23, v0, 7, v23"): S.add("A", c, BAR[21] - 8, BAR[21] + 10, chain="pgp")
        S.add("M", f"buffer_load_dword a{aDUM}, v23, s[88:91], s17 offen ;@dummy", BAR[21] + 2, Z0 - 4, chain="pgp", sep=3,
              pre=[f"s_lshr_b32 s17, s{sLH}, 1", f"s_add_u32 s17, s17, L_base-L_pc-4+{4096*13}"])
    if OPT.get("probe"):
        for k, x in enumerate((20, 38, 50, 62, 70, 78, 86, 94, 102, 112, 150)): S.add("X", stamp(18 + k), Z0 + x, Z0 + x)
    S.add("S", "WAITVM x23", Z0, Z0, chain="xz")
    for r in xread(23): S.add("D", r, Z0, Z0 + 12, chain="xz")
    for x, (sg, j) in enumerate(FS):
        J = Jx(sg, j)
        if x == 6: S.add("X", ["WAITVM w23 L", "s_barrier"], BAR[22], BAR[22], chain="t")
        for a, r in wread(sg, j):
            S.add("T", r, max(LU[J - NR], BAR[21] + 1, FU[J] - 44), FU[J] - 8 if x >= 6 else min(FU[J] - 8, BAR[22] - 4), chain="t")
    GS = OPT.get("gs", 44); lo = OPT.get("g0", 100)
    for i in range(4):
        S.add("M", f"global_load_dwordx4 a[{GA+4*i}:{GA+3+4*i}], v18, s[{sX}:{sX+1}] offset:{512*i}", lo + GS*i, lo + GS*i + 10, chain="gate")
        S.add("M", f"global_load_dwordx4 a[{GA+16+4*i}:{GA+19+4*i}], v19, s[{sGATE}:{sGATE+1}] offset:{512*i}", lo + GS*i + GS//2, lo + GS*i + GS//2 + 10, chain="gate")
    S.add("M", f"buffer_store_dword v21, v20, {srd(SD)}, s{t3_} offen {ST} ;@tag=z", G0[2] + 20, G0[2] + 40, chain="gate", sep=1)
    a0, a1, a2, a3, acc = 18, 19, 20, 21, 17
    ch = [f"v_mov_b32 v{acc}, 0"]
    for i in range(16):
        ch += L(f"""v_accvgpr_read_b32 v{a1}, a{GA+i}
            v_accvgpr_read_b32 v{a3}, a{GA+16+i}
            v_lshlrev_b32 v{a0}, 16, v{a1}
            v_and_b32 v{a1}, 0xffff0000, v{a1}
            v_lshlrev_b32 v{a2}, 16, v{a3}
            v_and_b32 v{a3}, 0xffff0000, v{a3}
            v_mul_f32 v{a0}, v{a0}, v{a2}
            v_mul_f32 v{a1}, v{a1}, v{a3}
            v_cvt_pk_bf16_f32 v{a0}, v{a0}, v{a1}
            v_lshlrev_b32 v{a1}, 16, v{a0}
            v_and_b32 v{a0}, 0xffff0000, v{a0}
            v_add_f32 v{acc}, v{acc}, v{a1}
            v_add_f32 v{acc}, v{acc}, v{a0}""")
    lo = G0[3]
    chain(ch, lo, name="gate", sep=0)
    chain([f"v_add_f32_dpp v{acc}, v{acc}, v{acc} row_ror:{r} row_mask:0xf bank_mask:0xf" for r in (8, 4, 2, 1)], lo, name="gate", sep=2)
    chain([f"v_mov_b32 v{a0}, v{acc}"], lo, name="gate", sep=0)
    chain([f"v_permlane16_swap_b32 v{a0}, v{acc}"], lo, name="gate", sep=2)
    chain(f"""v_add_f32 v{acc}, v{acc}, v{a0}
            v_cvt_pk_bf16_f32 v{acc}, v{acc}, v{acc}
            v_and_b32 v{acc}, 0xffff0000, v{acc}
            v_mul_f32 v{acc}, 0xbfb8aa3b, v{acc}
            v_exp_f32 v{acc}, v{acc}
            v_add_f32 v{acc}, 1.0, v{acc}
            v_rcp_f32 v{acc}, v{acc}
            v_cvt_pk_bf16_f32 v{a0}, v{acc}, v{acc}
            v_and_b32 v{a0}, 0xffff0000, v{a0}
            v_sub_f32 v{a1}, 1.0, v{a0}
            v_cvt_pk_bf16_f32 v{a1}, v{a1}, v{a1}
            v_and_b32 v{a1}, 0xffff0000, v{a1}
            v_and_b32 v{a2}, 31, v0
            v_lshlrev_b32 v{a2}, 27, v{a2}
            v_lshrrev_b32 v{a3}, 2, v0
            v_add_u32 v{a2}, v{a2}, v{a3}""", lo, name="gate")
    S.add("M", f"buffer_store_dwordx2 v[{a0}:{a1}], v{a2}, {srd(SD)}, s{sT2} offen {ST} ;@tag=z", lo, G0[6] + 30, chain="gate", sep=4,
          pre=[f"s_lshl2_add_u32 s{sT2}, s2, s{sW}", f"s_lshl4_add_u32 s{sT2}, s{sT2}, {WS_G}"])
    chain(f"""v_lshrrev_b32 v21, 4, v0
          v_bfe_u32 v{vDB}, v0, 2, 2
          v_lshl_add_u32 v{vDB}, v21, 3, v{vDB}
          v_lshlrev_b32 v{vDB}, 6, v{vDB}
          v_and_b32 v21, 1, v21
          v_lshl_add_u32 v{vDB}, v21, 5, v{vDB}
          v_and_b32 v21, 3, v0
          v_lshl_add_u32 v{vDB}, v21, 3, v{vDB}
          v_add_u32 v{vDB}, {98304 + 16384}, v{vDB}
          v_xor_b32 v{vDB+1}, 32, v{vDB}""", lo, G0[7] - 2, name="gate")
    chain(gxupd, BAR[5] + 6, G0[6] + 30, name="gx", sep=0)
    if P1PF:
        for lo in (OPT.get("q1", 80), OPT.get("q2", 210)):
            S.add("M", wpf(SB), lo, lo + 10, chain="pf1", pre=[f"s_add_u32 s83, s83, {1<<20}"])
            S.add("M", wpf(SC), lo + 20, lo + 30, chain="pf1")
    if OPT.get("tlb"):
        sh = OPT["tlb"]
        S.add("A", f"v_lshlrev_b32 v22, {sh}, v0", 0, 10, chain="tlb")
        S.add("S", f"s_lshl_b32 s84, s{sPF}, {sh + 6}", 0, 12, chain="tlb")
        S.add("S", f"s_min_u32 s84, s84, 0x10000000", 0, 14, chain="tlb")
        S.add("M", f"buffer_load_dword a{aDUM}, v22, {srd(SD)}, s84 offen sc1 ;@dummy", 60, 70, chain="tlb")
    if not OPT.get("nopf"):
        P0, PS = OPT.get("p0", 300), OPT.get("ps", 40); order_ = "qkqkqqkqkqqkqk"
        SK = OPT.get("sk", 0)
        for k, c in enumerate(order_):
            if k < SK: continue
            r = 81 if c == "q" else 82; nb_ = order_[:k].count(c); inc = nb_ if order_[SK:k].count(c) == 0 else 1
            S.add("M", f"buffer_load_dword a{aDUM}, v{vL16 if c == 'q' else 1}, {srd(SG if c == 'q' else SH)}, s{r} offen ;@dummy", P0 + (k-SK)*PS, P0 + (k-SK)*PS + 16, chain="pf",
                  pre=[f"s_add_u32 s{r}, s{r}, {inc<<20}"] if inc else [])
    if OPT.get("wo", "M") == "P":
        chain(mk_srd(84, sWOA, 8 << 20) + [f"s_lshl2_add_u32 s83, s2, s{sW}", "s_lshl_b32 s83, s83, 11", "v_lshlrev_b32 v22, 5, v0"], 20, 100, name="wp", sep=0)
        for k in range(4):
            x = OPT.get("wp0", 120) + k * OPT.get("wps", 144)
            S.add("M", f"buffer_load_dword a{aDUM}, v22, s[84:87], s83 offen ;@dummy", x, x + 10, chain="wp", pre=[f"s_add_u32 s83, s83, {2<<20}"] if k else [])
    n0 = G0[8]; frs = []
    for t in range(4):
        for rb in (3, 2, 1, 0): frs.append(((2*t, rb), (2*t + 1, rb), (rb >> 1)*16384 + (rb & 1)*4096 + t*1024))
    for db in range(8):
        for u in snake(2, db): frs.append(((8 + db, 2*u), (8 + db, 2*u + 1), u*16384 + 8192 + db*1024))
    ns = 0; later = []
    tmpA, tmpB = HK, HV
    for q, (ta, tb, off) in enumerate(frs):
        ka, kb = pos1[ta], pos1[tb]; A, B_ = treg(ka), treg(kb)
        lo = G0[7] + 2*max(ka, kb) + 1 + 8; hi = n0 + 2*min(ka, kb) - 1; hi2 = n0 + 2*max(ka, kb) - 3
        D_ = B_ if kb > ka else A
        ch = ("drain",)
        if min(ka, kb) >= 56: hi = hi2 = G0[10]
        if A.f == "a":
            for r in range(4): S.add("A", f"v_accvgpr_read_b32 {tmpA[r]}, {A[r]}", lo, hi, chain=ch, sep=2 if r == 0 else 0)
            for r in range(4): S.add("A", f"v_accvgpr_read_b32 {tmpB[r]}, {B_[r]}", lo, hi, chain=ch)
            A, B_ = tmpA, tmpB; D_ = B_
        direct = q % 4 == 0
        if direct: S.add("S", f"s_add_u32 s{t1_}, s{sKV}, {off}", lo - 2, hi, chain=ch)
        if D_ is B_: cv = ((3, B_, 2), (2, B_, 0), (0, A, 0), (1, A, 2))
        else: cv = ((0, A, 0), (1, A, 2), (2, B_, 0), (3, B_, 2))
        for d_, src, r in cv: S.add("A", f"v_cvt_pk_bf16_f32 {D_[d_]}, {src[r]}, {src[r+1]}", lo, hi, chain=ch)
        if direct and OPT.get("x_nodirect"): pass
        elif direct: S.add("M", f"buffer_store_dwordx4 {D_}, v{vL16}, {srd(SD)}, s{t1_} offen {OPT.get('kvst', ST).replace('+', ' ').replace('-', '')} ;@tag=kv", lo, hi2, chain=ch, sep=1)
        else:
            for r in range(4): S.add("A", f"v_accvgpr_write_b32 {stash(ns)[r]}, {D_[r]}", lo, hi2, chain=ch)
            later.append((ns, off)); ns += 1
    assert ns == 24 and pos1[frs[27][0]] in (54, 55) and pos1[frs[28][0]] in (56, 57), (pos1[frs[27][0]],)
    NSTG = OPT.get("nstg", 10); KVP = OPT.get("kvp", 21)
    t_a, t_b = G0[9] + 2, BAR[8 + NSTG] - 14
    sts = [([f"s_add_u32 s{sT2}, s{sKV}, {off}"], f"buffer_store_dwordx4 {stash(i)}, v{vL16}, {srd(SD)}, s{sT2} offen {OPT.get('kvst', ST).replace('+', ' ').replace('-', '')} ;@tag=kv") for i, off in later]
    sts.append(([], f"buffer_store_dwordx4 a[240:243], v{vL16}, {srd(SD)}, s{sXh} offen {ST} ;@tag=kv"))
    for q, (pre, d) in enumerate(sts if not OPT.get("x_nost") else []):
        lo = t_a + (q * (t_b - t_a)) // (len(sts) - 1)
        S.add("M", d, lo - 6, lo, chain="kvst", sep=3, pre=pre)
    pre, d = signal(SF, f"s{t2_}", 0, "z")
    chain(pre + [f"s_lshr_b32 s{t0_}, s{sJ}, 1", f"s_lshl_b32 s{t0_}, s{t0_}, 12"], G0[7], BAR[7], name="sig")
    for k in range(4):
        lo = BAR[8 + k] + 20
        S.add("X", one_lane(d), lo, lo + 14, chain="sig", sep=3, pre=[f"s_xor_b32 s{t2_}, s{t0_}, {k << 12}"])
    E0 = max(NSTG + 7, 14)
    S.add("X", L(f"s_cmp_eq_u32 s{sW}, 0\ns_cselect_b32 s81, 256, 0"), G0[E0 - 2], G0[E0 - 2] + 40, chain="sig")
    PE = OPT.get("pe", 1)
    x = BAR[E0 - 2] + 5 if PE else BAR[E0 - 1] - 14
    S.add("M", f"buffer_load_dword v1, off, {srd(SF)}, s{sLH} sc1", x, x + 6, chain="sig")
    S.add("X", g.spin(1, SF, f"s{sLH}", 0, "s81"), G0[E0] + XW + 12, G0[E0] + XW + 24, chain="sig")
    S.add("X", mk_srd(SF, sWS, 16384, WS_CNT)[:3], BAR[E0] - 4, BAR[E0] + 30, chain="sig")
    E1 = max(NSTG + 9, 16)
    pre, d = signal(SF, "s70", 0, "kv")
    chain(pre + [f"s_lshl_b32 s70, s{sH}, 8"], G0[E1], BAR[E1], name="sig")
    S.add("X", one_lane(d), BAR[E1] + 1, BAR[E1] + 12, chain="sig", sep=1)
    chain([f"s_lshl4_add_u32 s70, s{sLH}, s70", "s_lshr_b32 s81, s81, 5"], BAR[E1] + 1, name="sig")
    x = BAR[KVP - 2] + 5 if (PE and E1 < KVP - 2) else BAR[KVP - 1] + 1 if PE else BAR[KVP - 1] - 14
    S.add("M", f"buffer_load_dword v1, off, {srd(SF)}, s70 sc1", x, x + 6, chain="sig")
    S.add("X", g.spin(1, SF, "s70", 0, "s81"), G0[KVP] + XW + 6 if not PE else BAR[KVP] - 4, BAR[KVP] - 1, chain="sig")
    if OPT.get("pg", 1):
        for k, e_ in enumerate(["L_F1-L_pc", "L_F1-L_pc+4096"][:OPT.get("vf", 0)]):
            pre, d = cpf(e_); S.add("M", d, G0[22] + 50 + 6 * k, G0[22] + 84, chain="cpf", pre=pre, sep=3)
    elif not OPT.get("nocpf"):
        for sg in range(0, 22, OPT.get("cps", 2)):
            pre, d = cpf(".-L_pc+6144"); S.add("M", d, G0[sg] + 4, G0[sg] + 30, chain="cpf", pre=pre)
        for k, e_ in enumerate([".-L_pc+6144", ".-L_pc+9984", ".-L_pc+13824", "L_F1-L_pc", "L_F1-L_pc+4096"]):
            x = G0[22] + (50 if OPT.get("wo", "M") != "E" else 0)
            pre, d = cpf(e_); S.add("M", d, x + 6 * k, x + 34, chain="cpf", pre=pre, sep=3)
    S.add("X", L(f"s_lshl_b32 s{t2_}, s{sH}, 20\ns_add_u32 s{SA}, s{sWS}, s{t2_}\ns_addc_u32 s{SA+1}, s{sWS+1}, 0"), G0[21], G0[21] + 40, chain="sa")
    S.add("X", L(f"s_add_u32 s{t2_}, s{sBHi}, 1\ns_lshl_b32 s{SA+2}, s{t2_}, 16"), G0[21], G0[21] + 50, chain="sa")
    pace(att_first_dmas(sLX), BAR[KVP] + 5, BAR[KVP] + 5 + 12 * OPT.get("kvs", 8), "dma", slack=2)
    chain("v_and_b32 v22, 15, v0\nv_lshrrev_b32 v17, 4, v0\nv_lshlrev_b32 v17, 2, v17\nv_sub_u32 v22, v22, v17", G0[13], name="bm", sep=0)
    for r in range(4):
        chain(f"""v_subrev_u32 v17, {r}, v22
              v_lshlrev_b32 v18, 31, v17
              v_or_b32 v21, v17, v18
              v_ashrrev_i32 v21, 31, v21
              v_and_b32 {HK[r]}, 0xff800000, v21
              v_not_b32 v17, v17
              v_or_b32 v21, v17, v18
              v_ashrrev_i32 v21, 31, v21
              v_and_b32 {HV[r]}, 0xff800000, v21""", G0[13], name="bm", sep=0)
    chain(f"""s_lshl_b32 s{t3_}, s{sW}, 4
          v_add_u32 v18, s{t3_}, v22
          s_lshr_b32 s{t3_}, s{sW}, 1
          s_mul_i32 s{t3_}, s{t3_}, {XS - 2048}
          s_add_u32 s{t3_}, s{t3_}, s{sLH}
          s_add_u32 s{t3_}, s{t3_}, 32768
          v_add_u32 v17, s{t3_}, v{vL16}
          v_lshlrev_b32 v21, 5, v0""", G0[13], G0[16], name="bm")
    chain([f"v_cmp_gt_i32 {msk(k)}, {16*(k >> 2) + (k & 3)}, v18" for k in range(16)], BAR[21] + 1, name="l0", sep=0)
    chain([c.replace("s81", f"s{t1_}") for c in p5_setup()], Z0, name="l0", sep=0)
    chain(f"""s_lshl2_add_u32 s73, s2, s{sW}
          s_lshl_b32 s73, s73, 11
          s_lshl1_add_u32 s{t0_}, s{sLH}, 32768""", Z0, name="l0", sep=0)
    chain(f"v_add_u32 v2, s{t0_}, v{vL16}", BAR[22] - 4, Z0 + 62, name="l0")
    S.add("X", L(f"s_or_b32 s{t0_}, s{sJ}, s{sW}\ns_cmp_eq_u32 s{t0_}, 0\ns_cselect_b32 s{t0_}, 0xff800000, 0"), Z0, Z0 + 96, chain="l0", sep=1)
    S.add("X", [f"s_and_b32 s{t1_}, s{sXh}, 0x7800", f"s_cselect_b32 s{t1_}, 0, 0x70000000", f"s_add_u32 s77, s{sXh}, s{t1_}"], Z0, Z0 + 100, chain="l0")
    chain(f"s_sub_u32 s77, s77, 2048\ns_mov_b32 s{t2_}, {f32(QSCALE)}\ns_mov_b32 s{t3_}, s{t2_}", Z0, Z0 + 104, name="l0")
    chain(f"""v_and_b32 v22, 15, v0
          v_lshlrev_b32 v22, 3, v22
          s_lshl_b32 s85, s{sW}, 7
          s_add_u32 s85, s85, {WS_G}
          s_lshl_b32 s86, s{sJ}, 10
          s_add_u32 s86, s86, s85
          s_lshl_b32 s87, s{sBHi}, 10
          s_add_u32 s87, s87, s85""", G0[21], name="g", sep=0)
    for rb in range(4):
        S.add("M", f"buffer_load_dwordx2 a[{64+2*rb}:{65+2*rb}], v22, {srd(SD)}, s{86 + (rb>>1)} offen offset:{(rb&1)*512} sc1", BAR[21] - 4, G0[22] - 2, chain="g", sep=1)
    chain(f"""s_mov_b32 s{SB}, s{sWOB}
          s_mov_b32 s{SB+1}, s{sWOB+1}
          s_mov_b32 s{SB+2}, {2<<20}
          s_mov_b32 s{SC}, s{sWOA}
          s_mov_b32 s{SC+1}, s{sWOA+1}
          s_mov_b32 s{SC+2}, {8<<20}""", G0[12], G0[13], name="pf")
    if not OPT.get("nopf"):
        S.add("M", f"buffer_load_dword a{aDUM}, v21, {srd(SB)}, s73 offen ;@dummy", Z0 + 74, Z0 + 94, chain="wpf")
    chain(f"s_lshl2_add_u32 s72, s2, s{sW}\ns_lshl_b32 s72, s72, 12\ns_add_u32 s72, s72, {WS_XCH}", BAR[21] + 2, G0[22], name="pre")
    g.prefill = [f"buffer_store_dwordx4 a[240:243], v{vL16}, {srd(SD)}, s72 offen offset:{k*1024} {ST} ;@tag=ob" for k in range(4)]
    PRIN = OPT.get("prin", -16)
    if PRIN < 200:
        for k, d in enumerate(g.prefill): S.add("M", d, G0[22] + PRIN + 14*k, G0[22] + PRIN + 14*k + 6, chain="pre")
        g.prefill = []
    def rdy(*tiles): return max(done[(23, cb, rb)] for cb, rb in tiles) + 8
    def pk(d, a, b, lo): S.add("A", f"v_cvt_pk_bf16_f32 {d}, {a}, {b}", lo, chain="la")
    def xo(rb): return (rb >> 1) * XS + (rb & 1) * 8192
    for rb in (3, 2, 1, 0):
        a, b = bt(1, 0, rb), bt(1, 1, rb); lo = rdy((11, rb))
        pk(a[0], a[0], a[1], lo); pk(a[1], a[2], a[3], lo); pk(a[2], b[0], b[1], lo); pk(a[3], b[2], b[3], lo)
        S.add("M", f"ds_write_b128 v2, {a} offset:{xo(rb) + 2048}", lo, lo + 12, chain="la", sep=1)
    for rb in (3, 2, 1, 0):
        lo = rdy((13, rb)); a, b = bt(2, 0, rb), bt(2, 1, rb)
        pk(a[3], a[2], a[3], lo - 8); pk(a[2], a[0], a[1], lo - 8); pk(a[0], b[0], b[1], lo); pk(a[1], b[2], b[3], lo)
        S.add("M", f"ds_write_b128 v2, {a} offset:{xo(rb) + 3072}", lo, lo + 16, chain="la", sep=1)
        S.add("A", f"v_mov_b32 {b[2]}, {a[0]}", lo, chain="la"); S.add("A", f"v_mov_b32 {b[3]}, {a[1]}", lo, chain="la")
    x = lo + 19
    S.add("X", ["s_waitcnt lgkmcnt(0)", "s_barrier"], lo, x, chain="la", sep=2)
    S.add("D", "ds_read_b128 a[192:195], v17 offset:16384", lo, x + 1, chain="la", sep=1)
    def prevrd(rbs):
        return [f"ds_read_b128 {KP(rb)}, v2 offset:{xo(rb)}" for rb in rbs] + \
               [f"ds_read_b64 {bt(2, db, rb)[0:2]}, v2 offset:{xo(rb) + 1024 + (1 - db)*8}" for rb in rbs for db in range(2)]
    S.add("M", f"buffer_store_dwordx4 a[192:195], v{vL16}, {srd(SD)}, s{sXh} offen {ST}", lo, x + 7, chain="la", sep=6)
    for c in prevrd((1, 3)): S.add("D", c, lo, chain="la")
    hin = aq(1, 3); N = S.n; HL = N - OPT.get("hl", 54); HC = N - OPT.get("hc", 14)
    hld = f"buffer_load_dwordx4 {hin}, v{vL16}, {srd(SD)}, s77 offen sc1"
    S.add("M", hld, HL, HL + 4, chain="la")
    hmx = [f"v_max3_u32 v1, {hin[0]}, {hin[1]}, {hin[2]}", f"v_max_u32 v1, v1, {hin[3]}"]
    for c in hmx: S.add("A", c, HC, HC, chain="la")
    S.add("X", ["v_cmp_eq_u32 vcc, -1, v1", "s_cbranch_vccnz L_hretry", "L_hgo:"], HC + 1, HC + 1, chain="la")
    g.ool += ["L_hretry:", "s_sub_u32 s72, s72, 1", "s_cbranch_scc1 L_hgo ;@nottaken", hld, "s_waitcnt vmcnt(0)"] + hmx + \
             ["v_cmp_eq_u32 vcc, -1, v1", "s_cbranch_vccnz L_hretry ;@nottaken", "s_branch L_hgo"]
    S.add("M", f"ds_write_b128 v17, {hin}", HC + 2, HC + 2, chain="la")
    S.add("X", ["s_waitcnt lgkmcnt(0)", "s_barrier"], HC + 6, HC + 6, chain="la")
    for k, c in enumerate(prevrd((0, 2))): S.add("D", c, HC + 7, HC + 7 + k, chain="la")
    for rb in (3, 2, 1, 0):
        a, b = bt(0, 0, rb), bt(0, 1, rb); lo = max(rdy((9, rb)), Z0 + 105)
        for d_, src, r in ((0, a, 0), (1, a, 2), (2, b, 0), (3, b, 2)): S.add("A", f"v_cvt_pk_bf16_f32 {a[d_]}, {src[r]}, {src[r+1]}", lo, chain="lq")
    if OPT.get("sm", 1):
        chain(["v_bfe_u32 v1, v0, 1, 1", "v_subrev_u32 v1, 1, v1", "v_and_b32 v1, 0x3f803f80, v1"] + [f"v_accvgpr_write_b32 {ONES2[r]}, v1" for r in range(4)], Z0 + 44, Z0 + 120, name="o2", sep=0)
    chain(L(f"""s_sub_u32 s81, s{sJ}, 1
          s_sub_u32 s{t1_}, s{sJ}, 2
          s_mul_i32 s81, s81, s{t1_}
          s_lshl4_add_u32 s81, s81, s{sH}
          s_lshl2_add_u32 s81, s81, s{sW}
          s_mul_i32 s81, s81, 3328
          s_mov_b32 s73, 0
          s_mov_b32 s72, 0x20000
          s_lshl_b32 s{t1_}, s{sH}, 15
          s_add_u32 s{t1_}, s{t1_}, s{sLH}
          s_add_u32 s{t1_}, s{t1_}, {WS_CTX}
          s_mul_i32 s74, s{sJ}, {160*8192}
          s_add_u32 s74, s74, s{t1_}
          s_mul_i32 s75, s{sBHi}, {160*8192}
          s_add_u32 s75, s75, s{t1_}
          s_mul_i32 s{t1_}, s{sH}, {3*8192}
          s_sub_u32 s{t1_}, {128*8192}, s{t1_}
          s_add_u32 s{sT}, s74, s{t1_}
          s_add_u32 s{sT2}, s75, s{t1_}""") + att_scalars(), x + 9, HC - 1, name="lx")
    chain([f"v_or_b32 v{20+r}, s{t0_}, {HV[r]}" for r in range(4)], lo, name="lq", sep=0)
    S.add("S", f"s_mov_b32 s{t0_}, {f32(BSCALE)}", lo, chain="lq", sep=1)
    NQ = OPT.get("nq", 12); g.qdone = []
    for t, rb in [(t, rb) for t in range(4) for rb in (3, 2, 1, 0)][:NQ]:
        a, b = aq(2*t, rb), aq(2*t+1, rb); lo = rdy((2*t + 1, rb)); g.qdone.append((t, rb))
        for r_ in (a, b):
            for k in range(4): S.add("A", f"v_mul_f32 {r_[k]}, s{t2_}, {r_[k]}", lo, chain="lq")
        for d_, src, r in ((0, a, 0), (1, a, 2), (2, b, 0), (3, b, 2)): S.add("A", f"v_cvt_pk_bf16_f32 {a[d_]}, {src[r]}, {src[r+1]}", lo, HL - 1 if (t, rb) == (0, 3) else None, chain="lq")
    g.emit(S.run("gemm12"), eager=10, name="gemm12")
    g.emit(stamp(5) + jit())
    if OPT.get("x_sleep"): g.emit([f"s_sleep {OPT['x_sleep']}"])
    local_attention(g)

def att_head():
    o = L(f"""v_mov_b32 v2, v{vL16}
          v_add_u32 v3, 0x10000, v{vL16}
          v_mov_b32 v1, 0
          s_mov_b32 m0, s71
          WAITVM k0 L
          s_barrier""")
    o += [f"ds_read_b128 a[{144+4*f}:{147+4*f}], v2 offset:{f*1024}" for f in range(8)]
    o += [f"buffer_load_dwordx4 v{vL16}, {srd(SA)}, s70 offen offset:{k*1024} sc1 lds ;@tag=kvA" for k in range(2)]
    return o

def att_scalars():
    return L(f"""s_and_b32 s70, s{sW}, 1
          s_lshr_b32 s{t1_}, s{sW}, 1
          s_lshl3_add_u32 s71, s{t1_}, s70
          s_add_u32 s71, s71, 4
          s_lshl_b32 s71, s71, 13
          s_lshl_b32 s70, s70, 14
          s_mul_i32 s{t1_}, s{t1_}, 24576
          s_sub_u32 s70, s70, s{t1_}
          s_add_u32 s70, s70, 65536""")

def att_first_dmas(sLX):
    d = []
    for k in range(8):
        sal = []
        if k == 0: sal = [f"s_mov_b32 m0, s{sLX}", f"s_lshl_b32 s{sT}, s{sW}, 14"]
        if k == 4: sal = [f"s_add_u32 m0, s{sLX}, 4096", f"s_add_u32 s{sT}, s{sT}, 4096"]
        d.append((sal, f"buffer_load_dwordx4 v{vL16}, {srd(SA)}, s{sT} offen offset:{(k&3)*1024} sc1 lds ;@tag=k0"))
    for k in range(4):
        sal = []
        if k == 0: sal = [f"s_lshr_b32 s{sT}, s{sLX}, 1", f"s_add_u32 m0, s{sT}, {65536 + 16384}", f"s_and_b32 s71, s{sT}, 8192",
                          f"s_add_u32 s{sT}, s{sT}, s71", f"s_add_u32 s{sT}, s{sT}, 8192"]
        d.append((sal, f"buffer_load_dwordx4 v{vL16}, {srd(SA)}, s{sT} offen offset:{k*1024} sc1 lds ;@tag=v0"))
    return d

def local_attention(g):
    q = []
    def e(s): q.extend(L(s))
    def pk(d, a, b): return f"v_cvt_pk_bf16_f32 {d}, {a}, {b}"
    mO, mP, mP0 = HK, HV, R("v", 20)
    qp = []
    for t in range(4):
        for rb in range(4):
            if (t, rb) in g.qdone: continue
            a, b = aq(2*t, rb), aq(2*t+1, rb)
            for r in (a, b): qp += [f"v_pk_mul_f32 {r[0:2]}, {r[0:2]}, s[{t2_}:{t3_}]", f"v_pk_mul_f32 {r[2:4]}, {r[2:4]}, s[{t2_}:{t3_}]"]
            qp += [pk(a[0], a[0], a[1]), pk(a[1], a[2], a[3]), pk(a[2], b[0], b[1]), pk(a[3], b[2], b[3])]
    assert all((0, rb) in g.qdone for rb in range(4))
    def fill(n):
        assert len(qp) >= n
        q.extend(qp[:n]); del qp[:n]
    def Sp(rb): return bt(0, 1, rb)
    def So(rb): return bt(1, 1, rb)
    mx, mc = aq(1, 2), aq(1, 1); rbs = (1, 3, 0, 2)
    for rb in rbs: e(mfma(So(rb), bt(1, 0, rb), bt(0, 0, rb), mO))
    for rb in rbs: e(mfma(Sp(rb), KP(rb), bt(0, 0, rb), mP0 if rb == 0 else mP))
    for k in range(8): e(f"v_accvgpr_read_b32 v{vG+k}, a{64+k}")
    for rb in rbs:
        a, b = Sp(rb), So(rb)
        e(f"v_max3_f32 {mx[rb]}, {b[0]}, {b[1]}, {b[2]}\nv_max3_f32 {mx[rb]}, {mx[rb]}, {b[3]}, {a[0]}")
        e(f"v_max3_f32 {mx[rb]}, {mx[rb]}, {a[1]}, {a[2]}\nv_max_f32 {mx[rb]}, {mx[rb]}, {a[3]}")
    for op in ("v_permlane16_swap_b32", "v_permlane32_swap_b32"):
        for rb in rbs: e(f"v_mov_b32 {mc[rb]}, {mx[rb]}")
        for rb in rbs: e(f"{op} {mc[rb]}, {mx[rb]}")
        for rb in rbs: e(f"v_max_f32 {mx[rb]}, {mx[rb]}, {mc[rb]}")
    for rb in rbs: e(f"v_mul_f32 {mx[rb]}, s{t0_}, {mx[rb]}")
    for rb in rbs:
        a, b = Sp(rb), So(rb)
        for r in (a, b):
            for k in range(4): e(f"v_fma_f32 {r[k]}, {r[k]}, s{t0_}, -{mx[rb]}")
        for r in (a, b):
            for k in range(4): e(f"v_exp_f32 {r[k]}, {r[k]}")
        q.extend([pk(a[0], a[0], a[1]), pk(a[1], a[2], a[3]), pk(a[2], b[0], b[1]), pk(a[3], b[2], b[3])])
        fill(2)
        e(mfma(So(rb), ONES, Sp(rb), 0))
        for db in range(2): e(mfma(bt(db, 0, rb), bt(2, db, rb), Sp(rb), 0))
    fill(len(qp))
    if OPT.get("probe"): q.extend(stamp(29))
    for rb in rbs: e(f"v_rcp_f32 {mx[rb]}, {So(rb)[0]}")
    for rb in rbs: e(f"v_mul_f32 {mx[rb]}, {mx[rb]}, v{vG+2*rb+1}")
    for n_, rb in enumerate((0, 2, 1, 3)):
        a, b = bt(0, 0, rb), bt(1, 0, rb)
        pr = R("v", mx.b + (rb & 2), 2); sel = "op_sel_hi:[1,0]" if rb % 2 == 0 else "op_sel:[0,1]"
        for r in (a, b):
            for k in (0, 2): e(f"v_pk_mul_f32 {r[k:k+2]}, {r[k:k+2]}, {pr} {sel}")
        q.extend([pk(a[0], a[0], a[1]), pk(a[1], a[2], a[3]), pk(a[2], b[0], b[1]), pk(a[3], b[2], b[3])])
        if rb & 1: e(f"s_add_u32 s{sT + (rb>>1)}, s{sT + (rb>>1)}, 4096")
        e(f"buffer_store_dwordx4 {a}, v{vL16}, {srd(SD)}, s{sT + (rb>>1)} offen {ST} ;@tag=ob")
        if n_ == 0: q.extend(att_head())
    g.emit(q, name="local")

sR5, sKh, sCtx, sWo5, sL5, sCol, sSig, sWt = 82, 83, 84, 85, 86, 87, 79, 80
vG5, vC5 = 12, 14
def p5_ctx(sl, rb, s):
    f, b = (("a", 208), ("v", 152), ("a", 0), ("a", 32), ("a", 64))[sl]
    return R(f, b + 8*rb + 4*s)
def p5_lds(sl): return (131072, 32768, 65536, 98304, 0)[sl]
def p5_wdma(sl, rel, sr=SB):
    rot = OPT.get("rot", 1) and sr == SC
    return [([f"s_xor_b32 m0, s76, {p5_lds(sl) + i*1024}", f"s_xor_b32 s{sT}, s{sWo5}, {rel*262144 + i*8192}"] if rot else
             [f"s_add_u32 m0, s{sL5}, {p5_lds(sl) + i*1024}", f"s_add_u32 s{sT}, s{sWo5}, {rel*262144 + i*8192}"],
             f"buffer_load_dwordx4 v{vG5 + (i&1)}, {srd(sr)}, s{sT} offen lds ;@tag=w5_{sl}") for i in range(8)]
def p5_cld(sl, rel, xr=False):
    o = []
    for s in range(2):
        for rb in range(4):
            o.append(([f"{'s_xor_b32' if xr else 's_add_u32'} s{sT2}, s{sCtx}, {rel*32768 + s*8192}"] if rb == 0 else [],
                      f"buffer_load_dwordx4 {p5_ctx(sl, rb, s)}, v{vC5 + (rb>>1)}, {srd(SD)}, s{sT2} offen offset:{(rb&1)*1024} sc1"))
    return o
def NB0(): return OPT.get("nb0", 5)
def p5_setup():
    CI = OPT.get("ci", 0)
    return L(f"""s_and_b32 s{t0_}, s2, 7
          s_lshr_b32 s{t1_}, s2, 3
          s_and_b32 s{sKh}, s{t0_}, 1
          s_and_b32 s{t2_}, s{t0_}, 2
          {f"s_and_b32 s{t3_}, s{t1_}, 7" if not OPT.get("rm", 0) else f"s_lshr_b32 s{t3_}, s{t1_}, 2"}
          s_lshl2_add_u32 s{sR5}, s{t2_}, s{t3_}
          s_and_b32 s{t2_}, s{t0_}, 4
          {f"s_lshr_b32 s{t3_}, s{t1_}, 3" if not OPT.get("rm", 0) else f"s_and_b32 s{t3_}, s{t1_}, 3"}
          s_xor_b32 s{t3_}, s{t3_}, {OPT.get("rm", 0)}
          s_add_u32 s{sCol}, s{t2_}, s{t3_}
          s_lshl_b32 s{sCol}, s{sCol}, 8
          s_lshl_b32 s{sL5}, s{sW}, 13
          s_lshl_b32 s{sWo5}, s{sW}, 16
          s_add_u32 s{sWo5}, s{sWo5}, s{sCol}
          {f"s_xor_b32 s{t2_}, s{t3_}, 1" if OPT.get("x_c3") else ""}
          {f"s_min_u32 s{t2_}, s{t2_}, 1" if OPT.get("x_c3") else ""}
          {f"s_xor_b32 s{t2_}, s{t2_}, 1" if OPT.get("x_c3") else ""}
          {f"s_mul_i32 s{t2_}, s{t2_}, 0x500" if OPT.get("x_c3") else ""}
          {f"s_xor_b32 s{sWo5}, s{sWo5}, s{t2_}" if OPT.get("x_c3") else ""}
          s_mul_i32 s{t0_}, s{sKh}, {NB0()*262144}
          s_add_u32 s{sWo5}, s{sWo5}, s{t0_}
          s_mul_i32 s{sCtx}, s{sR5}, {160*8192}
          s_and_b32 s{t0_}, s{sW}, 1
          s_lshl_b32 s{t0_}, s{t0_}, 14
          s_add_u32 s{sCtx}, s{sCtx}, s{t0_}
          s_mul_i32 s{t0_}, s{sKh}, {NB0()*32768}
          s_add_u32 s{sCtx}, s{sCtx}, s{t0_}
          s_add_u32 s{sCtx}, s{sCtx}, {WS_CTX + 128*8192}
          s_sub_u32 s{t0_}, 15, s{sR5}
          s_min_u32 s{t0_}, s{t0_}, s{sR5}
          s_lshl1_add_u32 s{t0_}, s{t0_}, s{sKh}
          s_lshl_b32 s{sWt}, s{t0_}, 8
          s_add_u32 s{sWt}, s{sWt}, {32*256}
          s_and_b32 s81, s{sW}, 1
          s_lshl_b32 s81, s81, 7
          s_add_u32 s81, s81, s{sKh}
          s_lshl_b32 s81, s81, 7
          s_add_u32 s81, s81, 98304
          s_lshl_b32 s{t0_}, s{sW}, 11
          v_lshrrev_b32 v{vC5}, 4, v0
          v_bfe_u32 v{vG5}, v0, 1, 3
          v_xor_b32 v{vG5}, v{vG5}, v{vC5}
          v_lshlrev_b32 v{vG5}, 5, v{vG5}
          v_lshl_add_u32 v{vG5}, v{vC5}, 11, v{vG5}
          v_and_b32 v{vC5}, 1, v0
          v_lshl_add_u32 v{vG5}, v{vC5}, 4, v{vG5}
          v_xor_b32 v{vG5+1}, {512 if CI else 128}, v{vG5}
          v_lshrrev_b32 v{vC5}, 4, v0
          v_bfe_u32 v18, v0, 2, 2
          v_lshl_add_u32 v{vC5}, v{vC5}, 2, v18
          v_and_b32 v18, 3, v0
          v_lshlrev_b32 v18, 3, v18
          v_lshl_add_u32 v18, v{vC5}, 8, v18
          v_and_b32 v{vC5}, 7, v{vC5}
          v_lshl_add_u32 v18, v{vC5}, 5, v18
          v_xor_b32 v18, s81, v18
          v_add_u32 v{vC5}, s{t0_}, v{vL16}
          v_xor_b32 v{vC5+1}, 0x800, v{vC5}""")

def attention(g):
    p = g.p
    RA = 8
    vDK, vDV, vNI, vBad = 2, 3, 17, 1
    sSrc, sM0, sCnt, sFB, sLX, sCb = 70, 71, 72, 73, 76, 74
    def Q(qb, t): return R("v", vQ + 16*qb + 4*t)
    def S_(kb, qb): return R("v", 88 + 16*qb + 4*kb)
    def Pp(b, u, qb): return R("v", 152 + 32*(qb >> 1) + 16*b + 8*(qb & 1) + 4*u)
    def NM(qb): return R("v", 216 + 4*qb)
    def O(db, qb): return R("a", 32*qb + 4*db)
    def Lr(qb): return R("a", 128 + 4*qb)
    def F(f): return R("a", 144 + 4*(f & 15))
    mx, mc, mt, TMP = 20, 248, 252, (232, 240)
    lab = {k: "L_" + k for k in ("F1", "D", "DD", "T", "T1", "S", "SD", "TAIL")}
    def rdK(f, i): return f"ds_read_b128 {F(f)}, v{vDK} offset:{i*16384 + f*1024}"
    def rdV(f, i): return f"ds_read_b128 {F(f)}, v{vDV} offset:{i*16384 + (f & 1)*8192 + (f >> 1)*1024}"
    def dma(k, tag):
        sal = []
        if k == 0: sal = [f"s_mov_b32 m0, s{sM0}"]
        if k == 4: sal = [f"s_add_u32 m0, s{sM0}, 4096", f"s_add_u32 s{sT}, s{sSrc}, 4096"]
        return sal, f"buffer_load_dwordx4 v{vL16}, {srd(SA)}, s{sSrc if k < 4 else sT} offen offset:{(k&3)*1024} sc1 lds ;@tag={tag}"
    def act(st, i, base):
        if st == "full" or (st == "diag" and i == 0): return [base, base + 1]
        if st == "diag": return [base + 1]
        return []
    def acts(sts, i): return act(sts[0], i, 0) + act(sts[1], i, 2)
    def masked(sts, i):
        for b, st in enumerate(sts):
            if st == "diag": return 2*b + i
        return None
    SM = OPT.get("sm", 1)
    def rowsum(qb, b, zero=False):
        if SM: return [f"v_smfmac_f32_16x16x64_bf16 {Lr(qb)}, {ONES2}, {R('v', Pp(b, 0, qb).b, 8)}, v{vIDX}"]
        return [mfma(Lr(qb), ONES, Pp(b, u, qb), 0 if (zero and u == 0) else None) for u in range(2)]
    def epi_head(qb):
        return [f"v_accvgpr_read_b32 v{mx+qb}, {Lr(qb)[0]}"] + ([f"v_accvgpr_read_b32 v{mc}, {Lr(qb)[1]}", f"v_add_f32 v{mx+qb}, v{mx+qb}, v{mc}"] if SM else []) + [f"v_max_f32 v{vBad}, v{vBad}, v{mx+qb}", f"v_rcp_f32 v{mx+qb}, v{mx+qb}"]
    def epi_frag(qb, t, pkm=False):
        o = []; tmp = R("v", TMP[t & 1], 8)
        for r in range(8): o.append(f"v_accvgpr_read_b32 {tmp[r]}, {O(2*t + (r >> 2), qb)[r & 3]}")
        if t == 0: o.append(f"v_mul_f32 v{mx+qb}, v{mx+qb}, v{vG+2*qb}")
        if pkm:
            sel = "op_sel_hi:[1,0]" if qb % 2 == 0 else "op_sel:[0,1]"
            for r in range(4): o.append(f"v_pk_mul_f32 {tmp[2*r:2*r+2]}, {tmp[2*r:2*r+2]}, v[{mx+(qb&2)}:{mx+(qb&2)+1}] {sel}")
        else:
            for r in range(8): o.append(f"v_mul_f32 {tmp[r]}, {tmp[r]}, v{mx+qb}")
        for r in range(4): o.append(f"v_cvt_pk_bf16_f32 {tmp[r]}, {tmp[2*r]}, {tmp[2*r+1]}")
        o.append(f"s_add_u32 s77, s{sCb + (qb>>1)}, {t*8192 + (qb&1)*4096}")
        o.append(f"buffer_store_dwordx4 {tmp[0:4]}, v{vL16}, {srd(SD)}, s77 offen {ST} ;@tag=ctx")
        return o
    def xmax():
        o = []
        for op in ("v_permlane16_swap_b32", "v_permlane32_swap_b32"):
            o += [f"v_mov_b32 v{mc+qb}, v{mx+qb}" for qb in range(4)]
            o += [f"{op} v{mc+qb}, v{mx+qb}" for qb in range(4)]
            o += [f"v_max_f32 v{mx+qb}, v{mx+qb}, v{mc+qb}" for qb in range(4)]
        return o

    def group(cur, prev, first=False, lastg=False, hook=None, name=None, extra=None):
        mf = []; rs = []
        for i in range(2):
            qk = acts(cur, i); pv = acts(cur, 0) if i == 1 else acts(prev, 1); mq = masked(cur, i)
            r = dict(g0=len(mf), qk=qk, pv=pv, mq=mq, tiles=[], fu=[None]*32, lu=[None]*32)
            k = 0
            for kb in range(4):
                qs = [qk[x] for x in snake(len(qk), kb)]
                if mq is not None and kb == 0: qs = [x for x in qs if x != mq] + [mq]
                for qb in qs:
                    st = len(mf)
                    for q_, t in enumerate(snake(4, k)):
                        c = None
                        if q_ == 0 and qb != mq: c = 0 if (first and i == 0 and kb == 0) else NM(qb)
                        f = 4*kb + t
                        if r["fu"][f] is None: r["fu"][f] = len(mf)
                        r["lu"][f] = len(mf)
                        mf.append(mfma(S_(kb, qb), F(f), Q(qb, t), c))
                    k += 1
                    r["tiles"].append((kb, qb, st, len(mf) - 1))
            r["pv0"] = len(mf); k = 0; r["od"] = {}
            for qb in pv:
                mf += rowsum(qb, i ^ 1, first)
                r["od"][("l", qb)] = len(mf) - 1
            for db in range(8):
                for qb in [pv[x] for x in snake(len(pv), db)]:
                    for q_, u in enumerate(snake(2, k)):
                        f = 16 + 2*db + u
                        if r["fu"][f] is None: r["fu"][f] = len(mf)
                        r["lu"][f] = len(mf)
                        mf.append(mfma(O(db, qb), F(f), Pp(i ^ 1, u, qb), 0 if (first and q_ == 0) else None))
                    k += 1; r["od"][(db, qb)] = len(mf) - 1
            r["end"] = len(mf); rs.append(r)
        N = len(mf); S = Sched(mf)
        head = []
        for i, r in enumerate(rs):
            g0, n = r["g0"], r["end"] - r["g0"]; nq, npv = len(r["qk"]), len(r["pv"])
            single = (nq, npv) == (2, 2)
            knext = not (lastg and i == 1)
            if single:
                dg = [0, 0, 1, 3, 3, 4, 6, 6, 12, 14, 16, 18, 22, 24, 24, 26, 30, 32, 32, 34, 38, 40, 42, 46, 50, 52, 54, 58, 60, 62, 66, 67]
                mg = [2, 5, 20, 28, 36, 44, None, 56, 64]; bg = 48
                eg = [7, 8, 9, 10, 11] + [13 + 2*x for x in range(27)]
                cg = [12, 14, 16] + [4*x + 6 for x in range(3, 16)]
                if SM:
                    dg = [0, 0, 2, 2, 4, 4, 6, 6, 12, 14, 16, 18, 22, 24, 24, 26, 28, 30, 32, 33, 37, 39, 41, 45, 49, 51, 51, 53, 57, 59, 61, 65]
                    mg = [1, 3, 5, 20, 28, 43, None, 55, 63]; bg = 47
                    eg = [7, 8, 9, 10, 11] + [13 + 2*x for x in range(10)] + [34, 35, 36] + [38 + 2*x for x in range(14)]
                    cg = [12, 14, 16, 18, 22, 26, 30, 37, 39] + [41 + 4*x for x in range(7)]
            else:
                bg = n - max(int(n * 0.27), 12)
                if npv == 0: bg = n - 18
                dg = None
                mg = [2 + (q_ * (bg - 4)) // 6 for q_ in range(6)] + [None] + [bg + 4, bg + 4 + (n - bg - 4) // 2]
            for d in range(32):
                f = d + RA
                if d == 32 - RA:
                    wt = ("kvB" if i == 0 else "kvA") + (",v0,ob" if first else "")
                    S.add("X", [f"WAITVM {wt}", "s_barrier"], g0 + bg, g0 + bg, chain="rd")
                if f < 16:
                    txt = rdK(f, i); fu = r["fu"][f]; free = g0
                elif f < 32:
                    if npv == 0: continue
                    txt = rdV(f - 16, i); fu = r["fu"][f]; free = r["lu"][f - 16]
                else:
                    f -= 32
                    if knext: txt = rdK(f, i ^ 1)
                    else: txt = rdV(f, 0)
                    fu = r["end"] + 4 + f; free = r["lu"][16 + f] if npv else r["lu"][f]
                if dg: lo = hi = g0 + dg[d]; assert lo >= free and lo <= fu - 6, (d, lo, free, fu)
                else:
                    if d < 32 - RA: hi = min(fu - 8, g0 + bg - 1); lo = min(max(free, g0 + (d * bg) // 24 - 6), hi)
                    else: hi = min(r["end"] - 1, fu - 10 + (f >> 2) * 4); lo = min(max(free, g0 + bg + 1), hi)
                    hi = max(hi, free); lo = max(lo, free)
                it = S.add("D", txt, lo, hi, chain="rd"); it["dd"] = first or lastg
                if not dg: it["early"] = free if d < 32 - RA else lo
            tA, tB = ("kvA", "kvB") if i == 0 else ("kvB", "kvA")
            for q_, gq in enumerate(mg):
                if gq is None: continue
                k = q_ + 2 if q_ < 6 else q_ - 7
                if lastg and (i == 1 or q_ > 6): continue
                sal, dd = dma(k, tA if q_ < 6 else tB)
                if k == 0: sal = [f"s_xor_b32 s{sM0}, s{sM0}, {16384 if i == 0 else 16384 + 32768}", f"s_add_u32 s{sSrc}, s{sSrc}, 32768"] + sal
                if single:
                    sg_ = ({0: (45, 49, 53), 4: (9, 13)} if not SM else {0: (44, 46, 48), 4: (4, 2)}).get(k, ())
                    for x, s_ in zip(sg_, sal): S.add("S", s_, g0 + x, g0 + x, chain="m" if x != 2 else None)
                    S.add("M", dd, g0 + gq, g0 + gq, chain="m")
                else:
                    S.add("M", dd, g0 + gq, min(g0 + gq + 3, (g0 + bg - 1) if q_ < 6 else r["end"] - 1), chain="m", pre=sal, sep=3)
                    if extra and extra[0] == i and k in (3, 7):
                        for sal2, d2 in extra[1][(k >> 2)*4:(k >> 2)*4 + 4]: S.add("M", d2, g0 + gq, chain="m", pre=sal2, sep=3)
            if i == 1:
                lastK = g0 + (dg[15 - RA] if dg else r["fu"][15] - g0 - 8)
                S.add("A", f"v_xor_b32 v{vDK}, 0x8000, v{vDK}", max(lastK + 1, g0), g0 + bg - 1)
                if knext: S.add("A", f"v_xor_b32 v{vDV}, 0x8000, v{vDV}", g0 + bg + 1, N - 1)
                else: S.chains["rd"][[x["kind"] for x in S.chains["rd"]].index("X", len(S.chains["rd"]) - RA - 1)]["text"].append(f"v_xor_b32 v{vDV}, 0x8000, v{vDV}")
            nt = len(r["tiles"]); e = 0
            nxt = {(kb, qb): st for kb, qb, st, _ in rs[1]["tiles"]} if i == 0 else {}
            span0 = g0 + 8; span1 = r["end"] - 2
            if first and i == 0: span0 = g0 + 4*nq; span1 = r["end"] + 40
            if first and i == 1: span0 = g0 + 40
            for x, (kb, qb, st, en) in enumerate(r["tiles"]):
                s = S_(kb, qb); ch = ("sm", kb, qb); pdst = Pp(i, kb >> 1, qb)
                lim = nxt[(kb, qb)] - (7 if rs[1]["mq"] == qb else 1) if (kb, qb) in nxt else N - 1
                if not first: lim = min(lim, r["end"] - 1)
                if i == 0 and qb in rs[1]["pv"]: lim = min(lim, rs[1]["pv0"] - 3)
                if qb == r["mq"]:
                    src = "0" if (first and i == 0 and kb == 0) else str(NM(qb)[0])
                    for r_ in range(4):
                        c = f"v_cndmask_b32 {s[r_]}, {src}, v{vNI}, {msk(4*kb + r_)}"
                        if st - 3 < 0: head.append(c)
                        else: S.add("A", c, (g0 + 4*nq) if (first and i == 0 and kb > 0) else (0 if i == 0 else max(g0 - 20, 0)), st - 3, chain=ch)
                lo = en + 7
                if first and i == 0 and kb == 0:
                    lo = g0 + 4*nq
                    for r_ in range(4): S.add("A", f"v_add_f32 {s[r_]}, {s[r_]}, {NM(qb)[0]}", lo, lim - 4, chain=ch)
                for r_ in range(4):
                    pace_ = span0 + ((e + 1) * (span1 - span0)) // (4 * nt)
                    elo, ehi, clo, chi = min(lo, lim - 1), min(max(pace_, lo), lim - 1), min(lo, lim), min(lim, max(pace_, lo) + 8)
                    if single: elo = ehi = g0 + eg[e]; clo = chi = g0 + cg[e >> 1]
                    e += 1
                    S.add("E", f"v_exp_f32 {s[r_]}, {s[r_]}", elo, ehi, chain=ch)
                    if r_ & 1:
                        it = S.add("A", f"v_cvt_pk_bf16_f32 {pdst[2*(kb & 1) + (r_ >> 1)]}, {s[r_-1]}, {s[r_]}", clo, chi, chain=("cv", i, kb, qb, r_), sep=1)
                        it["after"] = S.chains[ch][-1]; it["soft"] = True
                        if r_ == 3: r.setdefault("lastcv", {})[(kb, qb)] = [it, S.chains[("cv", i, kb, qb, 1)][0]]
            if first and i == 0 and SM:
                for qb in range(4):
                    for r_ in range(4): S.add("A", f"v_accvgpr_write_b32 {Lr(qb)[r_]}, 0", 0, rs[1]["pv0"] - 3)
            if first and i == 0:
                blk = ["s_nop 1"]
                for qb in [x[1] for x in r["tiles"][:4]]:
                    a = S_(0, qb); blk += [f"v_max3_f32 v{mx+qb}, {a[0]}, {a[1]}, {a[2]}", f"v_max_f32 v{mx+qb}, v{mx+qb}, {a[3]}"]
                blk += xmax() + [f"s_cmp_eq_u32 s{sFB}, 0", "s_cselect_b64 vcc, 0, -1"]
                blk += [f"v_cndmask_b32 v{mx+qb}, v{mx+qb}, v{mt+qb}, vcc" for qb in range(4)]
                for qb in (3, 2, 1, 0): blk += [f"v_sub_f32 {NM(qb)[r_]}, 0, v{mx+qb}" for r_ in range(4)]
                S.add("X", blk, g0 + 4*nq - 1, g0 + 4*nq - 1)
        if rs[1]["mq"] is not None:
            for kb in range(4):
                key = (kb, rs[1]["mq"]); its = S.chains[("sm",) + key]
                k0 = [x for x in its if "cndmask" in x["text"][0]][-4]
                k0["after"] = rs[0]["lastcv"][key]
        if hook: hook(S, rs)
        return head + (["s_nop 0"] if head else []) + S.run(name)

    FULL2, LD, TR, TD, NONE = ("full", "full"), ("diag", "full"), ("off", "full"), ("off", "diag"), ("off", "off")
    def add_cpf(S, lo, hi, exprs):
        if OPT.get("nocpf"): return
        if OPT.get("pg", 1): exprs = [e_ for e_ in exprs if e_.startswith("L_T1")][:OPT.get("vf", 0)]
        for e_ in exprs:
            pre, d = cpf(e_); S.add("M", d, lo, hi, chain="cpf", pre=pre, sep=3 if lo >= 0 else 0)
    def hook_first(S, rs):
        lo = rs[1]["g0"] + 40; N = rs[1]["end"]
        pre, d = signal(SF, f"s{t1_}", 0, "ob")
        for c in [pre[0], pre[1].replace("v1,", "v19,")] + L(f"""s_lshr_b32 s{t1_}, s{sH}, 4
              s_lshl1_add_u32 s{t1_}, s{sJ}, s{t1_}
              s_lshl_b32 s{sSig}, s{t1_}, 8
              s_add_u32 s{sSig}, s{sSig}, {32*256}
              s_add_u32 s{t3_}, s{sH}, {32 - 4*NB0()}
              s_lshr_b32 s{t3_}, s{t3_}, 5
              s_lshl1_add_u32 s{t3_}, s{sJ}, s{t3_}
              s_lshl_b32 s{t3_}, s{t3_}, 8
              s_add_u32 s{t3_}, s{t3_}, {32*256}
              s_lshl_b32 s{t1_}, s{sFB}, 16
              s_xor_b32 s{t2_}, s{sWt}, 256
              s_add_u32 s{t2_}, s{t2_}, s{t1_}
              s_add_u32 s{t1_}, s{t1_}, s{t3_}"""): S.add(kind(c), c, lo, chain="sig", sep=1)
        d = d.replace("v1,", "v19,"); ol = one_lane(d); ol.insert(2, d.replace(f"s{t1_} offen", f"s{t2_} offen"))
        S.add("X", ol, lo, N - 2, chain="sig", sep=1)
        S.add("A", "v_mul_u32_u24 v19, 52, v0", lo, N - 1, chain="sig", sep=1)
        if rs[1]["mq"] is None: add_cpf(S, lo, N - 1, [f"{lab['D']}-L_pc+{4096*k}" for k in range(3)])
        else: add_cpf(S, lo, N - 1, [f"{lab['T']}-L_pc+{4096*k}" for k in range(2)])
    def add_epi(S, r, qb, ts, hi, head=False):
        def put(cs_, lo):
            for c in cs_: S.add("M" if c.startswith("buffer") else kind(c), c, min(lo, hi), hi, chain="epi")
        if head: put(epi_head(qb), r["od"][("l", qb)] + 8)
        for t in ts: put(epi_frag(qb, t), r["od"][(2*t + 1, qb)] + 8 if r else 8)
    def hook_dd(S, rs):
        add_cpf(S, 2, rs[1]["end"] - 1, [f"{lab['T']}-L_pc", f"{lab['T']}-L_pc+4096", f"{lab['T1']}-L_pc", f"{lab['T1']}-L_pc+4096"])
    def hook_e0(S, rs): add_epi(S, rs[1], 0, (0, 1, 2), rs[1]["end"], True)
    def hook_t(S, rs):
        add_epi(S, None, 0, (3,), rs[0]["pv0"] + 10); add_epi(S, rs[0], 1, (0, 1, 2, 3), rs[1]["g0"] + 10, True)
    def hook_last(S, rs):
        g1 = rs[1]["g0"]; N = rs[1]["end"]
        S.add("M", f"buffer_load_dword v19, off, {srd(SF)}, s{sWt} sc1", -1, -1, chain="p5")
        for c in (f"s_mul_i32 s{t3_}, s{sKh}, {8*NB0() - 32}", f"s_sub_u32 s{t3_}, {16 + 4*NB0()}, s{t3_}"): S.add("S", c, 14, g1 - 20, chain="p5")
        S.add("X", g.spin(19, SF, f"s{sWt}", 0, f"s{t3_}"), g1 - 16, g1 - 16, chain="p5")
        for k, (sal, d) in enumerate(p5_cld(0, 0) + p5_cld(1, 1)): S.add("M", d, g1 - 14 if k < 8 else g1, N - 1, chain="p5", pre=sal, sep=2)
        add_cpf(S, -1, -1, [f"{lab['TAIL']}-L_pc", f"{lab['TAIL']}-L_pc+4096", "L_p5f0-L_pc", "L_p5f0-L_pc+4096"][:OPT.get("ncp", 4)])
        add_epi(S, rs[1], 2, (0,), N, True)
    def both(*hs):
        def h(S, rs):
            for x in hs: x(S, rs)
        return h
    def first_group(cur, name, hook, extra=None):
        seq = []
        return seq + group(cur, NONE, first=True, hook=hook, name=name, extra=extra)

    START = p.new("attstart")
    q = [f"v_mov_b32 v{vNI}, 0xff800000"]
    if SM: q += [f"v_and_b32 v{vIDX}, 1, v0", f"v_mul_u32_u24 v{vIDX}, 0xaaaa, v{vIDX}", f"v_add_u32 v{vIDX}, 0x4444, v{vIDX}", f"v_lshl_or_b32 v{vIDX}, v{vIDX}, 16, v{vIDX}"]
    q += [START + ":"] + stamp(6)
    g.emit(q)
    st0 = (list(g.lg), list(g.vm))
    def setst(s): g.lg, g.vm = list(s[0]), list(s[1])
    def getst(): return (list(g.lg), list(g.vm))
    cs = ([([("a", 144 + 4*f + r) for r in range(4)], 0) for f in range(RA)], [("kvB", [])] * 8 + [("kvA", [])] * 2)
    def chk():
        a = [r for r, _ in g.lg]; b = [r for r, _ in cs[0]]
        assert a == b[len(b) - len(a):], a
    EG = 6; PG = OPT.get("pg", 1)
    p(f"s_cmp_eq_u32 s{sJ}, 0\ns_cbranch_scc1 {lab['F1']}")
    g.emit(first_group(FULL2, "F0", hook_first), EG); chk()
    g.emit(stamp(12))
    p(f"s_sub_u32 s{sCnt}, s{sJ}, 1\ns_cmp_eq_u32 s{sCnt}, 0\ns_cbranch_scc1 {lab['DD']}")
    def hook_cnt(S, rs):
        N = rs[1]["end"]
        S.add("S", f"s_sub_u32 s{sCnt}, s{sCnt}, 1", N - 11 + SM, N - 11 + SM); S.add("S", f"s_cmp_lg_u32 s{sCnt}, 0", N - 7 + SM, N - 7 + SM)
        if not OPT.get("wb", 0) and not OPT.get("nopf") and N > 200:
            S.add("M", f"buffer_load_dword a{aDUM}, v19, {srd(SC)}, s81 offen ;@dummy", 5, 5, chain="wo")
            S.add("S", f"s_add_u32 s81, s81, {128*3328}", 15, 17, chain="wo")
        if N > 200: add_cpf(S, N - 30, N - 14, [f"{lab['DD']}-L_pc", f"{lab['DD']}-L_pc+4096"])
        elif OPT.get("cs", 0): add_cpf(S, 59, 59, [f"{lab['SD']}-L_pc"])
    pass; p.label(lab["D"]); setst(cs)
    g.emit(group(FULL2, FULL2, hook=hook_cnt, name="D"), EG); chk()
    p(f"s_cbranch_scc1 {lab['D']}")
    p.label(lab["DD"]); setst(cs)
    g.emit(stamp(13) + group(LD, FULL2, hook=both(hook_dd, hook_e0), name="DD", extra=(0, p5_wdma(0, 0))), EG); chk()
    p(f"s_cmp_eq_u32 s{sJ}, 7\ns_cbranch_scc1 {lab['T1']}")
    p.label(lab["T"]); setst(cs)
    g.emit(stamp(14) + jit() + group(TR, LD, hook=hook_t, name="T") + stamp(15), EG); chk()
    p(f"s_lshl_b32 s{sCnt}, s{sJ}, 1\ns_sub_u32 s{sCnt}, 13, s{sCnt}")
    pass; p.label(lab["S"]); setst(cs)
    g.emit(group(TR, TR, hook=hook_cnt, name="S"), EG); chk()
    p(f"s_cbranch_scc1 {lab['S']}")
    setst(cs); p.label(lab["SD"])
    g.emit(stamp(16) + group(TD, TR, lastg=True, hook=hook_last, name="SD"), EG, name="SD"); chk()
    ts = (cs[0], list(g.vm)); setst(ts)
    p.label(lab["TAIL"])
    mf = rowsum(3, 1)
    for db in range(8): mf += [mfma(O(db, 3), F(2*db + u), Pp(1, u, 3)) for u in snake(2, db)]
    S = Sched(mf)
    for f in range(8, 16): S.add("D", rdV(f, 0), -1 if f < 12 else 0, -1 if f < 12 else 1, chain="rd")["dd"] = True
    for k, (sal, d) in enumerate(p5_wdma(1, 1)): S.add("M", d, 3 - SM + 2*k, 3 - SM + 2*k, chain="p5", pre=sal)
    e1 = epi_frag(2, 1)
    for c in e1[:-2]: S.add("A", c, 2, chain="epi")
    seq = stamp(17) + jit() + S.run("tail") + e1[-2:] + stamp(7)
    seq += epi_head(3) + L(f"""s_mov_b32 s{t0_}, {f32(LTHR if not OPT.get('forcefb') else 0.0)}
          v_cmp_le_f32 vcc, s{t0_}, v{vBad}
          s_lshl_b32 s{t1_}, s{sW}, 2
          s_cmp_lg_u64 vcc, 0
          s_cselect_b32 s{t0_}, 1, 0
          v_mov_b32 v248, s{t1_}
          v_mov_b32 v249, s{t0_}
          ds_write_b32 v248, v249""")
    rest = [(2, 2), (2, 3), (3, 0), (3, 1), (3, 2), (3, 3)]; NX = OPT.get("nx", 6)
    NL = OPT.get("nl", 2); g.late = []
    for k, (qb, t) in enumerate(rest[:NX]):
        if k < NX - NL: seq += epi_frag(qb, t, True)
        else: g.late += epi_frag(qb, t, True)
    g.epi = [epi_frag(qb, t) for qb, t in rest[NX:]]
    FB = p.new("fallback")
    seq += L(f"""v_mov_b32 v248, 0
          s_waitcnt lgkmcnt(0)
          s_barrier
          ds_read_b128 v[248:251], v248""") + stamp(8)
    g.emit(seq)
    g.fbcheck = L(f"""v_or3_b32 v248, v248, v249, v250
          v_or_b32 v248, v248, v251
          s_nop 0
          v_readfirstlane_b32 s{t0_}, v248 ;@val=0
          s_nop 0
          s_cmp_gt_u32 s{t0_}, s{sFB}
          s_cbranch_scc1 {FB} ;@br=fb""")
    es = getst()
    main = g.p; g.p = P(); g.p.uid = main.uid + 1000
    if PG: g.p.l += [";@batch -1"]
    g.p.label(lab["F1"]); setst(st0)
    g.emit(first_group(LD, "F1", both(hook_first, hook_e0), (1, p5_wdma(0, 0))) + stamp(12) + stamp(13), EG); chk()
    g.p(f"s_branch {lab['T']}")
    g.p.label(lab["T1"]); setst(cs)
    g.emit(stamp(14) + stamp(15) + stamp(16) + group(TD, LD, lastg=True, hook=both(hook_t, hook_last), name="T1"), EG); chk()
    def sig_(vm): return [(t, tuple(r)) for t, r in vm if (t and t.startswith("w5")) or r]
    assert sig_(g.vm) == sig_(ts[1])[len(sig_(ts[1])) - len(sig_(g.vm)):], (sig_(g.vm), sig_(ts[1]))
    g.p(f"s_branch {lab['TAIL']}")
    g.p.label(FB); setst(([], []))
    sU = 81
    q = L(f"""s_waitcnt vmcnt(0) lgkmcnt(0)
          s_barrier
          s_mov_b32 s{sFB}, 1
          s_mov_b32 s{sU}, 0
          v_and_b32 v232, 15, v0
          v_lshrrev_b32 v233, 4, v0
          v_lshlrev_b32 v233, 2, v233
          v_sub_u32 v232, v232, v233
          s_lshl_b32 s{t0_}, s{sW}, 4
          v_add_u32 v232, s{t0_}, v232
          s_lshl_b32 s{t0_}, s{sBHi}, 7
          v_add_u32 v234, s{t0_}, v232
          s_lshl_b32 s{t0_}, s{sJ}, 7
          v_add_u32 v232, s{t0_}, v232
          v_add_u32 v233, 64, v232
          v_add_u32 v235, 64, v234""")
    for sal, d in att_first_dmas(sLX): q += sal + ["s_nop 0", d]
    for qb in range(4): q.append(f"v_mov_b32 v{mx+qb}, 0xff800000")
    FL = g.p.new("fbl"); q.append(FL + ":")
    for f in range(8):
        if f == 4: q.append(f"s_add_u32 s{sT}, s{sU}, 4096")
        q.append(f"buffer_load_dwordx4 {F(f)}, v{vL16}, {srd(SA)}, s{sU if f < 4 else sT} offen offset:{(f&3)*1024} sc1")
    for qb in range(4):
        for kb in range(2):
            for r in range(4):
                c = S_(kb, qb)[r]
                q += [f"v_subrev_u32 {c}, {16*kb + r}, v{232+qb}", f"v_ashrrev_i32 {c}, 31, {c}", f"v_and_b32 {c}, 0xff800000, {c}"]
        q.append(f"v_subrev_u32 v{232+qb}, 32, v{232+qb}")
    q.append("s_waitcnt vmcnt(0)")
    for f in range(8):
        for qb in range(4): q.append(mfma(S_(f >> 2, qb), F(f), Q(qb, f & 3)))
    q.append("s_nop 7")
    for qb in range(4):
        for kb in range(2):
            a = S_(kb, qb)
            q += [f"v_max3_f32 v{mx+qb}, v{mx+qb}, {a[0]}, {a[1]}", f"v_max3_f32 v{mx+qb}, v{mx+qb}, {a[2]}, {a[3]}"]
    q += L(f"s_add_u32 s{sU}, s{sU}, 16384\ns_cmp_lt_u32 s{sU}, s{SA+2}\ns_cbranch_scc1 {FL}")
    q += xmax()
    q += [f"v_mov_b32 v{mt+qb}, v{mx+qb}" for qb in range(4)] + att_scalars() + att_head() + ["s_waitcnt vmcnt(0) lgkmcnt(0)"]
    q.append(f"s_branch {START}")
    g.emit(q)
    g.ool += g.p.l; main.uid = g.p.uid + 1000; g.p = main
    setst(es)

def phase5(g):
    p = g.p
    vD = 184
    sCnt = 70
    CO = [4, 5, 6, 7, 0, 1, 2, 3]
    def acc(rb, cb): return R("v", 24 + 32*rb + 4*cb)
    def fw(j, s): return R("a", 144 + 8*j + 4*s)
    def wread(sl, j, slot=None):
        win, off = ((0, 32768), (1, 0), (1, 32768), (0, 0), (2, 0))[sl]
        return [f"ds_read_b64_tr_b16 {fw(j if slot is None else slot, s)[2*i:2*i+2]}, v{vD + 8*win + CO[j]} offset:{off + s*8192 + i*4096}" for s in range(2) for i in range(2)]
    NPRE = 3
    q = [f"v_xor_b32 v{vD+n}, {32*n}, v18" for n in CO[:NPRE]]
    for j in range(NPRE): q += wread(0, j)
    q += [f"v_xor_b32 v{vD+n}, {32*n}, v18" for n in CO[NPRE:]] + g.late + g.fbcheck
    g.emit(q)
    BP = OPT.get("bp", 43)
    xs = L(f"""s_xor_b32 s{t0_}, s2, 1
          s_lshl2_add_u32 s{t0_}, s{t0_}, s{sW}
          s_lshl_b32 s73, s{t0_}, 12
          s_add_u32 s73, s73, {WS_XCH}
          s_lshl2_add_u32 s{t0_}, s2, s{sW}
          s_lshl_b32 s75, s{t0_}, 12
          s_add_u32 s75, s75, {WS_XCH}
          s_lshl_b32 s77, s{sR5}, 18
          s_lshl_b32 s{t0_}, s{sW}, 16
          s_add_u32 s77, s77, s{t0_}
          s_add_u32 s77, s77, s{sCol}
          s_lshl_b32 s{t0_}, s{sKh}, {9 if OPT.get("ci", 0) else 7}
          s_add_u32 s77, s77, s{t0_}
          v_lshlrev_b32 v1, 24, v0
          v_and_b32 v8, 7, v0
          v_lshlrev_b32 v8, 11, v8
          v_bfe_u32 v10, v0, 3, 1
          v_lshl_add_u32 v8, v10, {6 if OPT.get("fl", 1) else 14}, v8
          v_bfe_u32 v10, v0, 4, 1
          v_lshl_add_u32 v8, v10, 5, v8
          v_lshrrev_b32 v10, 5, v0
          v_lshl_add_u32 v8, v10, 4, v8
          v_add_u32 v2, s{sL5}, v{vL16}
          v_xor_b32 v3, 0x2000, v2
          v_add_u32 v4, 0x20000, v2
          v_add_u32 v5, 0x20000, v3
          v_mov_b32 v232, 0
          v_mov_b32 v233, 0
          v_mov_b32 v236, 0
          v_mov_b32 v237, 0
          v_and_b32 v9, 1, v0
          v_lshlrev_b32 v9, 4, v9
          v_mov_b32 v10, 0x3f80
          v_lshlrev_b32 v9, v9, v10
          v_lshrrev_b32 v10, 4, v0
          v_lshlrev_b32 v10, 1, v10
          v_bfe_u32 v11, v0, 1, 3
          v_xor_b32 v10, v10, v11
          v_subrev_u32 v11, 1, v10
          v_ashrrev_i32 v11, 31, v11
          v_and_b32 v234, v11, v9
          v_xor_b32 v10, 1, v10
          v_subrev_u32 v11, 1, v10
          v_ashrrev_i32 v11, 31, v11
          v_and_b32 v235, v11, v9""")
    def tmp(rb, c): return R("v", 200 + 16*rb + 4*c)
    def rx(k): return R("v", 152 + 4*k)
    ldx = [f"buffer_load_dwordx4 {rx(k)}, v{vL16}, {srd(SD)}, s75 offen offset:{k*1024} sc1" for k in range(4)]
    G2 = OPT.get("g2", 1)
    RM = OPT.get("rmj", 1); RS = OPT.get("rms", 1); XS0 = 28 - 4*OPT.get("nz", 3)
    def mfs(prs, czero, last=False):
        mf = []; dn = {}; k = 0
        tl = [(x, rb) for x, (sl, j) in enumerate(prs) for rb in snake(4, j + 1)]
        def rbm(x0): tl[4*x0:4*x0 + 16] = [(x0 + y, rb) for n_, rb in enumerate((2, 3, 0, 1)) for y in snake(4, n_)]
        if last and RM: rbm(28)
        if last and RS: rbm(XS0)
        for x, rb in tl:
            sl, j = prs[x]
            for q_, s in enumerate(snake(2, k)):
                mf.append(mfma(acc(rb, CO[j]), fw(x & 7, s), p5_ctx(sl, rb, s), 0 if (czero and x < 8 and q_ == 0) else None))
            k += 1; dn[(rb, CO[j])] = len(mf) - 1
        return mf, dn
    def pacer(S):
        def pace(items, lo, hi):
            its = []
            for k, (sal, d) in enumerate(items):
                x = lo + (k * (hi - lo)) // len(items)
                its.append(S.add("M", d, x, min(x + 2, S.n - 1), chain="ld", pre=sal, sep=2))
            return its[0]
        return pace
    def first(role):
        nb = NB0() if role == 0 else 8 - NB0()
        na4 = 4 if nb == 2 else 0
        ns = nb + na4
        sl = {3: [0, 1, 3], 4: [0, 1, 2, 3], 5: [0, 1, 2, 4, 3], 6: [0, 1, 3, 4, 2, 3]}[ns] + [0, 1, 2]
        S = Sched(mfs([(sl[st], j) for st in range(ns) for j in range(8)], True)[0]); pace = pacer(S)
        gs = 8 if G2 else 4
        def arel(k): return k - nb if (k < ns or not na4) else k - ns + gs
        def W(k): return p5_wdma(sl[k], k, SB) if k < nb else p5_wdma(sl[k], arel(k), SC)
        def C(k): return p5_cld(sl[k], k if k < nb else arel(k), k >= nb)
        sigst = OPT.get("sig%d" % role, 1)
        EG_ = OPT.get("eg%d" % role, role if nb > 2 else 0)
        swW = f"s_add_u32 s{sWo5}, s{sWo5}, {(4<<20) - NB0()*262144}"
        if nb == 2 and role: S.add("S", swW, -1, -1, chain="ld")
        for st in range(ns):
            g0 = 64 * st; B = g0 + BP; dr = sl[st + 3] == sl[st]
            for j in range(NPRE, 8):
                for r in wread(sl[st], j): S.add("T", r, max(g0 + 8*j - 30, g0), min(g0 + 8*j - 8, B - (5 if dr else 1)), chain="t")
            S.add("X", [f"WAITVM w5_{sl[st+1]}" + (",ctx" if st == sigst else "") + (" L" if dr else ""), "s_barrier"], B, B, chain="t")
            for j in range(NPRE):
                for r in wread(sl[st + 1], j): S.add("T", r, B + 1, min(g0 + 64 + 8*j - 8, g0 + 63), chain="t")
            na = 6 if (st == nb - 2 and not EG_) else 5
            gate = g.spin(19, SF, "s72", 0, 8 if G2 else 16) + [f"s_sub_u32 s{sCtx}, s{sCtx}, {128*8192 - role*(64*8192 - NB0()*32768)}", f"s_add_u32 s{sCtx}, s{sCtx}, s{t3_}"] + stamp(9) if st == nb - 1 - EG_ else None
            poll = f"buffer_load_dword v19, off, {srd(SF)}, s72 sc1"
            wr = W(2) if st == 0 else W(st + 2)[5:]
            if EG_:
                if gate: S.add("X", gate, g0, g0, chain="ld")
                pace(wr + C(st + 2), g0 + 2, B - 1)
                if st == nb - 3: S.add("M", poll, B - 1, B + 2, chain="ld")
            elif st == nb - 2:
                pace(wr, g0 + 2, g0 + 28)
                S.add("M", poll, g0 + 30, g0 + 36, chain="ld")
            elif st == nb - 1:
                S.add("X", gate, g0, g0, chain="ld")
                pace(C(nb) + W(nb + 1)[6:] + C(nb + 1), g0 + 2, B - 1)
            else: pace(wr + C(st + 2), g0 + 2, B - 1)
            if st + 3 == nb and role: S.add("S", swW, B - 1, B + 3, chain="ld")
            if st + 3 == nb and OPT.get("rot", 1):
                W8 = OPT.get("w8", 0)
                for c in (f"s_and_b32 s{t2_}, s{sR5}, {7 if W8 else 3}", f"s_lshl_b32 s{t2_}, s{t2_}, {10 if W8 else 11}", f"s_add_u32 s76, s{sL5}, s{t2_}"): S.add("S", c, g0 + 16, B - 2, chain="rot")
                if W8:
                    for c in (f"s_and_b32 s17, s{sR5}, 1", "s_lshl_b32 s17, s17, 7"): S.add("S", c, g0 + 16, B - 2, chain="rot")
                    for r_ in range(2): S.add("A", f"v_xor_b32 v{vG5+r_}, s17, v{vG5+r_}", B - 1, B + 2, chain="ld")
                for c in (f"s_lshr_b32 s{t3_}, s{sCol}, 8", f"s_lshr_b32 s{t1_}, s{sR5}, {OPT.get('srs', 1)}", f"s_xor_b32 s{t3_}, s{t3_}, s{t1_}", f"s_and_b32 s{t3_}, s{t3_}, {OPT.get('sr', 2)}",
                          f"s_lshl_b32 s{t3_}, s{t3_}, 15", f"s_add_u32 s{t2_}, s{t2_}, s{t3_}"): S.add("S", c, g0 + 16, B - 2, chain="rot")
                S.add("S", f"s_lshl3_add_u32 s{sWo5}, s{t2_}, s{sWo5}", B - 1, B + 3, chain="ld")
            pace(W(st + 3)[:na], B + 5, g0 + 64)
            if st == sigst:
                pre, d = signal(SF, "s71", 0, "ctx")
                S.add("S", pre[0], B - 12, B - 4, chain="sig"); S.add("A", pre[1], B - 12, B - 1, chain="sig", sep=1)
                S.add("X", one_lane(d), B + 1, B + 1, chain="sig")
        EH = 64*sigst + BP - OPT.get("eh", 24)
        for k, fr in enumerate(g.epi):
            for c in fr: S.add("M" if c.startswith("buffer") else kind(c), c, 0, min(60, EH) if "a6" <= c.split()[-1][:2] <= "a9" and len(c.split()[-1]) == 3 else EH, chain="epi")
        fin = [f"s_mov_b32 s{sCnt}, {2 if na4 else 3}", f"s_mov_b32 s73, {1 if not G2 else -1 if na4 else 2}"]
        if na4: fin += [f"s_add_u32 s{sWo5}, s{sWo5}, {gs*262144}", f"s_add_u32 s{sCtx}, s{sCtx}, {gs*32768}"]
        for c in fin: S.add("S", c, S.n - 6, S.n, chain="ld")
        nb = ns
        for n in range(8): S.add("A", f"v_xor_b32 v{vD+8+n}, 0x10000, v{vD+n}", 0, BP - 1)
        if nb >= 5:
            for n in range(8): S.add("A", f"v_xor_b32 v{vD+16+n}, 0x18000, v{vD+n}", 64, 128)
        for c in [f"s_and_b32 s71, s{sH}, {4 if G2 else 0}", "s_lshl_b32 s71, s71, 5", f"s_add_u32 s71, s71, s{sSig}", "s_add_u32 s71, s71, 4096", f"s_add_u32 s72, s{sWt}, 4096"]: S.add("S", c, 18, 36, chain="sc")
        if not OPT.get("nocpf") and not OPT.get("pg", 1):
            for k in range(2 if OPT.get("cl", 0) else 3):
                pre, d = cpf("L_p5loop-L_pc+%d" % (4096*k)); x = 64*(nb - 2) + 18
                S.add("M", d, x + 3*k, x + 20, chain="cpf", pre=pre, sep=3)
        return S.run("p5first%d" % role)
    def body(kd):
        prs = [(st, j) for st in range(4) for j in range(8)]
        X2 = 0; NZ = OPT.get("nz", 3); Z = 4 - NZ
        if kd == "last": prs = prs[:8*Z] + [(st, j) for h in range(2) for st in range(Z, 4) for j in range(4*h, 4*h + 4)]
        mf, dn = mfs(prs, False, kd == "last")
        S = Sched(mf); pace = pacer(S)
        for st in range(4):
            g0 = 64 * st; B = g0 + BP
            if kd == "last" and st >= Z:
                for x in range(8*st + (NPRE if st == Z else 0), 8*st + 8):
                    if prs[x][1] == 0: S.add("X", [f"WAITVM w5_{prs[x][0]}", "s_barrier"], 8*x - OPT.get("zb", 26), 8*x - OPT.get("zb", 26), chain="t")
                    x0 = x & ~3; rm_ = (RM and x0 == 28) or (RS and x0 == XS0)
                    for r in wread(prs[x][0], prs[x][1], x & 7): S.add("T", r, max(8*(x0 if rm_ else x) - 30, 64*Z), 8*x - 8 if not rm_ else 8*x0 - 8 + 2*(x - x0), chain="t")
                if st == 1: pace(p5_wdma(3, 3, SC)[5:] + p5_cld(3, 3, True), g0 + 1, g0 + OPT.get("zl", 36))
                continue
            for j in range(NPRE, 8):
                for r in wread(st, j): S.add("T", r, max(g0 + 8*j - 30, g0), min(g0 + 8*j - 8, B - 1), chain="t")
            S.add("X", [f"WAITVM w5_{(st+1)&3}", "s_barrier"], B, B, chain="t")
            for j in range(NPRE):
                for r in wread((st + 1) & 3, j): S.add("T", r, B + 1, min(g0 + 64 + 8*j - 8, g0 + 63), chain="t")
            def batch(x): return [] if (kd == "last" and x >= 4) else p5_wdma(x & 3, x & 3, SC) + p5_cld(x & 3, x & 3, True)
            if kd == "loop" and st == 2:
                if G2: S.add("X", g.spin(19, SF, "s72", 128, "s74"), g0, g0, chain="ld")
                for c in (f"s_lshl_b32 s75, s73, 17", f"s_add_u32 s{sCtx}, s{sCtx}, s75"): S.add("S", c, g0 - 20, g0 + 6, chain="ac")
            if batch(st + 2): pace(batch(st + 2)[5:], g0 + (3 if st == 2 else 1), B + OPT.get("pa", 2))
            if kd == "loop" and st == 1:
                for c in (f"s_lshl_b32 s75, s73, 20", f"s_add_u32 s{sWo5}, s{sWo5}, s75", "s_lshr_b32 s74, s73, 28", "s_and_b32 s74, s74, 8"): S.add("S", c, g0 + 16, B, chain="ac")
                if G2: S.add("M", f"buffer_load_dword v19, off, {srd(SF)}, s72 offset:128 sc1", g0 - 1, g0, chain="pl")
            if batch(st + 3): pace(batch(st + 3)[:5], B + OPT.get("pb", 3), g0 + OPT.get("pc", 65))["prelo"] = B + 1
        if kd == "loop" and OPT.get("cl", 0) and not OPT.get("nocpf"):
            for k in range(2):
                pre, d = cpf("L_p5last-L_pc+%d" % (4096*k)); S.add("M", d, 128 + 64*k + 30, 128 + 64*k + BP - 1, chain="cpf", pre=pre)
        if kd == "loop":
            for c in ([f"s_sub_u32 s73, 1, s73"] if G2 else []) + [f"s_sub_u32 s{sCnt}, s{sCnt}, 1", f"s_cmp_lg_u32 s{sCnt}, 0"]: S.add("S", c, 250, 256, chain="ld")
        if kd == "last":
            for c in xs + mk_srd(SE, sOUT, 4 << 20): S.add(kind(c), c, 30, 120, chain="x")
            XQ = OPT.get("xq", 4)
            if OPT.get("er", 226):
                for c in ldx: S.add("M", c, OPT.get("er", 226), OPT.get("er", 226) + 12, chain="er", sep=2)
            for cs_ in ([(0, 1)] if not X2 else [(0,), (1,)]):
                for rb, c in sorted([(rb, c) for rb in range(2) for c in range(4)], key=lambda t: dn[(2 + t[0], 4 + t[1])]):
                    x = dn[(2 + rb, 4 + c)]
                    S.add("M", f"ds_write_b128 v3, {acc(2 + rb, 4 + c)} offset:{rb*4096 + c*1024}", x + 8, x + 10, chain="x")
                x += 13
                S.add("X", ["s_waitcnt lgkmcnt(0)", "s_barrier"], 0, x, chain="x", sep=3)
                k = 0
                for rb in range(2):
                    for c in [2*c2 + h for c2 in cs_ for h in range(2)]:
                        S.add("D", f"ds_read_b128 {tmp(rb, c)}, v2 offset:{rb*4096 + c*1024}", 0, x + 1 + (k >> 1), chain="x")["dd"] = True; k += 1
                x += 6; x0 = x
                for rb in range(2):
                    for c2 in cs_:
                        a, b = tmp(rb, 2*c2), tmp(rb, 2*c2 + 1); x += XQ
                        for c in (2*c2, 2*c2 + 1):
                            for r in range(4): S.add("A", f"v_add_f32 {tmp(rb, c)[r]}, {tmp(rb, c)[r]}, {acc(rb, 4 + c)[r]}", x0, x - 1, chain="x")
                        for d_, src, r in ((0, a, 0), (1, a, 2), (2, b, 0), (3, b, 2)): S.add("A", f"v_cvt_pk_bf16_f32 {a[d_]}, {src[r]}, {src[r+1]}", 0, x - 1, chain="x")
                        S.add("M", f"buffer_store_dwordx4 {a}, v{vL16}, {srd(SD)}, s73 offen offset:{(2*rb + c2)*1024} {ST}", 0, x, chain="x", sep=1)
            if RM:
                for rb, c in sorted([(rb, c) for rb in range(2) for c in range(4)], key=lambda t: dn[(2 + t[0], t[1])]):
                    S.add("M", f"ds_write_b128 v5, {acc(2 + rb, c)} offset:{rb*4096 + c*1024}", dn[(2 + rb, c)] + 8, dn[(2 + rb, c)] + 9, chain="x")
                S.add("X", ["s_waitcnt lgkmcnt(0)", "s_barrier"], 251, 251, chain="x")
                for k in range(8): S.add("D", f"ds_read_b128 {tmp(k >> 2, k & 3)}, v4 offset:{k*1024}", 252, 252 + (k >> 1), chain="x")["dd"] = True
            else:
                for c in range(3):
                    for rb in snake(2, c + 1):
                        S.add("M", f"ds_write_b128 v5, {acc(2 + rb, c)} offset:{rb*4096 + c*1024}", dn[(2 + rb, c)] + 8, chain="x")
        return S.run("p5" + kd)
    st0 = (list(g.lg), list(g.vm))
    p(f"s_cmp_eq_u32 s{sKh}, 0\ns_cbranch_scc1 L_p5f0")
    g.emit(first(1), 8, name="p5first1")
    ent = (list(g.lg), list(g.vm))
    main = g.p; g.p = P(); g.p.uid = main.uid + 1000
    if OPT.get("pg", 1): g.p.l += [";@batch 1", ";@palign"]
    g.p.label("L_p5f0"); g.lg, g.vm = st0
    g.emit(first(0), 8); g.p("s_branch L_p5join")
    def cregs(sl): return [(None, [(p5_ctx(sl, rb, s_).f, p5_ctx(sl, rb, s_).b + k) for k in range(4)]) for s_ in range(2) for rb in range(4)]
    ent = (None, cregs(0) + [("w5_1", [])] * 2 + cregs(1) + [("w5_2", [])] * 5)
    g.ool += g.p.l; main.uid = g.p.uid + 1000; g.p = main
    if OPT.get("pg", 1): p.l += ["s_branch L_p5join", ";@palign"]
    p.label("L_p5join")
    p(stamp(4) + jit())
    p.label("L_p5loop")
    pre_ = [([("a", 144 + 2*k), ("a", 145 + 2*k)], 0) for k in range(4 * NPRE)]
    g.lg = pre_; g.vm = ent[1]
    g.emit(body("loop"), 8)
    p("s_cbranch_scc1 L_p5loop")
    g.lg = pre_; p.label("L_p5last")
    g.emit(stamp(3) + jit() + body("last") + stamp(10) + jit(), 8, name="p5last")
    SEL = R("v", 232, 6); FO = OPT.get("fo", 0)
    chk = ["USE v[152:167]", "L_xchk:", "v_max3_u32 v9, v152, v153, v154"] + [f"v_max3_u32 v9, v9, v{155+2*k}, v{156+2*k}" for k in range(6)]
    chk += L("""v_max_u32 v9, v9, v167
          v_cmp_eq_u32 vcc, -1, v9
          s_cbranch_vccnz L_xretry
          L_xgo:""")
    g.ool[0:0] = ["L_xretry:", "s_sub_u32 s72, s72, 1", "s_cbranch_scc1 L_xgo ;@nottaken"] + ldx + ["s_waitcnt vmcnt(0)", "s_branch L_xchk"]
    adx = [mfma(acc(rb, c), SEL[2:6] if c % 2 == 0 else SEL[0:4], rx(2*rb + (c >> 1))) for rb in range(2) for c in range(4)]
    q = ["s_mov_b32 s72, 0x20000"]
    if not RM:
        q += ["s_nop 6"] + [f"ds_write_b128 v5, {acc(2 + rb, 3)} offset:{rb*4096 + 3*1024}" for rb in range(2)] + ["s_waitcnt lgkmcnt(0)", "s_barrier"]
        q += [f"ds_read_b128 {tmp(rb, c)}, v4 offset:{rb*4096 + c*1024}" for rb in range(2) for c in range(4)]
    if FO: q += chk + adx + ["s_nop 0"]
    for rb in range(2):
        for c in range(4):
            for r in range(4): q.append(f"v_add_f32 {acc(rb, c)[r]}, {acc(rb, c)[r]}, {tmp(rb, c)[r]}")
    if not FO: q += chk + adx + ["s_nop 1"]
    for rb in range(2):
        for c2 in range(2):
            a, b = acc(rb, 2*c2), acc(rb, 2*c2+1)
            q += L(f"""v_cvt_pk_bf16_f32 {a[0]}, {a[0]}, {a[1]}
                  v_cvt_pk_bf16_f32 {a[1]}, {a[2]}, {a[3]}
                  v_cvt_pk_bf16_f32 {a[2]}, {b[0]}, {b[1]}
                  v_cvt_pk_bf16_f32 {a[3]}, {b[2]}, {b[3]}""")
        a, b, t_ = acc(rb, 0), acc(rb, 2), acc(rb, 1)
        q += [f"v_permlane16_swap_b32 {a[0]}, {a[2]}", f"v_permlane16_swap_b32 {a[1]}, {a[3]}", f"v_permlane16_swap_b32 {b[0]}, {b[2]}", f"v_permlane16_swap_b32 {b[1]}, {b[3]}"]
        ost = OPT.get('ost', 'sc1').replace('-', '')
        if OPT.get("fl", 1):
            q += [f"v_mov_b32 {t_[r]}, {a[r]}" for r in range(4)]
            q += [f"v_mov_b32_dpp {a[r]}, {b[r]} row_ror:8 row_mask:0xf bank_mask:0xc" for r in range(4)]
            q += [f"v_mov_b32_dpp {b[r]}, {t_[r]} row_ror:8 row_mask:0xf bank_mask:0x3" for r in range(4)]
            q += [f"buffer_store_dwordx4 {a}, v8, {srd(SE)}, s77 offen {ost}", "s_add_u32 s77, s77, 16384",
                  f"buffer_store_dwordx4 {b}, v8, {srd(SE)}, s77 offen {ost}", "s_add_u32 s77, s77, 16384"]
        else:
            q += [f"buffer_store_dwordx4 {a}, v8, {srd(SE)}, s77 offen {ost}", f"buffer_store_dwordx4 {b}, v8, {srd(SE)}, s77 offen offset:64 {ost}", "s_add_u32 s77, s77, 32768"]
    if OPT.get("dbgt"):
        q += L(f"""s_waitcnt vmcnt(0)
            s_memtime s[70:71]
            s_memrealtime s[72:73]
            s_waitcnt lgkmcnt(0)
            s_sub_u32 s70, s70, s96
            s_sub_u32 s72, s72, s98
            v_mov_b32 v2, s70
            v_mov_b32 v3, s72
            s_lshl_b32 s70, s2, 3
            s_add_u32 s70, s70, 8
            s_lshl_b32 s71, s{sW}, 12
            s_add_u32 s70, s70, s71""") + mk_srd(SF, 94, 64) + [f"buffer_store_dwordx2 v[2:3], v1, {srd(SF)}, s70 offen"]
    q += stamp(11) + stamp_flush()
    g.emit(q, name="final")

def build():
    g = G(); p = g.p
    hdr = open("/code/" + NAME + ".s.ref").read()
    p.l += [l for l in hdr.split("\n") if l.startswith(";") and "@launch" not in l]
    p.l.append(f"; @launch grid=(256,1,1) block=(256,1,1) lds={LDS_BYTES}")
    k = NAME + "_kernel"
    p(f'.amdgcn_target "amdgcn-amd-amdhsa--gfx950"\n.text\n.globl {k}\n.p2align 8\n.type {k},@function'); p.label(k)
    gemm12(g); attention(g); phase5(g)
    p.label("L_end"); p("s_endpgm")
    p(g.ool)
    p.label("L_codeend")
    p('.section .rodata,"a"\n.p2align 6')
    p.l += f""".amdhsa_kernel {k}
  .amdhsa_next_free_vgpr 512
  .amdhsa_next_free_sgpr 102
  .amdhsa_accum_offset 256
  .amdhsa_group_segment_fixed_size 0
  .amdhsa_kernarg_size 104
  .amdhsa_user_sgpr_count 2
  .amdhsa_user_sgpr_kernarg_segment_ptr 1
  .amdhsa_system_sgpr_workgroup_id_x 1
.end_amdhsa_kernel""".split("\n")
    return p.text()

if __name__ == "__main__":
    out = sys.argv[1]
    for a in sys.argv[2:]:
        k, _, v = a.partition("=")
        OPT[k] = True if v == "" else (int(v) if v.lstrip("-").isdigit() else v)
    txt = build()
    if OPT.get("pg", 1):
        from pages import pages
        plan = {}
        if OPT.get("na", 1): plan[9] = [(0, OPT.get("na", 1))]
        plan[0] = [(0, OPT.get("n0", 4))]
        ts = TSITES()
        for k in range(len(ts)): plan[k + 1] = [(0, OPT.get("n1", 8))] if k + 1 < len(ts) else [(0, 99), (1, 99)]
        txt, info = pages(txt, sW, plan, OPT.get('half')); print("page stubs", info)
    if OPT.get("al"):
        from align import align
        txt, n_ = align(txt, OPT["al"]); print("widened", n_)
    import subprocess, re, os
    open("_sz.s", "w").write(txt.replace("NCHUNK", "100"))
    subprocess.check_call(["clang", "-x", "assembler", "-target", "amdgcn-amd-amdhsa", "-mcpu=gfx950", "-c", "_sz.s", "-o", "_sz.o"])
    sz = int(re.search(r"\.text\s+PROGBITS\s+\S+\s+\S+\s+(\S+)", subprocess.check_output(["llvm-readelf", "-S", "_sz.o"]).decode()).group(1), 16)
    nch = 0
    print("code bytes", sz, "file", len(txt))
    open(out, "w").write(txt.replace("NCHUNK", str(nch)))
```

```python
import sys, math, struct
from genlib import P, R, mfma
from sched import Sched, resolve

NAME = "gated_mix__compressed_kv_cla__sliding_local_dilated__prompt"
WS_HALO = 58 << 20
WS_KV, WS_CTX, WS_G, WS_CNT, WS_INBOX, WS_XCH, WS_STAMP = 0, 32 << 20, 56 << 20, 57 << 20, (57 << 20) + 65536, 64 << 20, 96 << 20
LDS_BYTES = 160 * 1024
def f32(x): return "0x%08x" % struct.unpack("<I", struct.pack("<f", x))[0]
QSCALE = 128 ** -0.5 * math.log2(math.e)
BSCALE = 32 ** -0.5 * math.log2(math.e)
LTHR = 2.0 ** 60

sX, sC, sWQ, sWUK, sWUV, sWOA, sWQKV, sWOB, sGATE, sOUT, sDBG, sWS = 4, 6, 8, 10, 12, 14, 18, 20, 22, 24, 26, 28
sW, sH, sJ = 30, 31, 3
SA, SB, SC, SD, SE, SF, SG, SH = 32, 36, 40, 44, 48, 52, 56, 60
sT, sT2, sBHi = 64, 65, 16
t0_, t1_, t2_, t3_ = 66, 67, 68, 69
def srd(b): return f"s[{b}:{b+3}]"
OPT = dict(stamps=False)
ST = "sc1" if "x_plain" not in sys.argv else ""

vDX, vDQ, vGX, vGW, vL16, vDH, vDB, vDBH, vGH, vGB = 2, 4, 12, 14, 16, 17, 19, 21, 22, 23
vQ, vG = 24, 4
aONE, aDUM = 251, 252
ONES = R("a", 244)
ONES2, vIDX = R("a", 240), 5
MSK = [0, 4, 6, 8, 10, 12, 18, 22, 26, 56, 58, 60, 62, 48, 50, 100]
def msk(k): return f"s[{MSK[k]}:{MSK[k]+1}]"
def kind(c): return "S" if c.startswith("s_") else ("E" if c.startswith(("v_exp", "v_rcp")) else "A")

def L(s): return [x.strip() for x in s.strip().split("\n") if x.strip()]
def mk_srd(b, ptr, nbytes, off=None):
    if off is None: o = [f"s_mov_b32 s{b}, s{ptr}", f"s_mov_b32 s{b+1}, s{ptr+1}"]
    else: o = [f"s_add_u32 s{b}, s{ptr}, {off}", f"s_addc_u32 s{b+1}, s{ptr+1}, 0"]
    return o + [f"s_mov_b32 s{b+2}, {nbytes}", f"s_mov_b32 s{b+3}, 0x20000"]

NST = [0]
def stamp(idx):
    if not OPT["stamps"]: return []
    return L(f"""s_waitcnt lgkmcnt(0)
        s_memtime s[92:93]
        s_memrealtime s[94:95]
        v_accvgpr_write_b32 a253, v1
        v_accvgpr_read_b32 v1, a249
        s_waitcnt lgkmcnt(0)
        v_writelane_b32 v1, s92, {2*idx}
        v_writelane_b32 v1, s94, {2*idx+1}
        v_accvgpr_write_b32 a249, v1
        v_accvgpr_read_b32 v1, a253
        s_nop 1""")
def stamp_flush():
    if not OPT["stamps"]: return []
    return L(f"""s_lshl_b32 s96, s2, 2
        s_add_u32 s96, s96, s{sW}
        s_lshl_b32 s96, s96, 8
        s_add_u32 s96, s96, {WS_STAMP}
        v_lshlrev_b32 v1, 2, v0
        buffer_store_dword a249, v1, {srd(SD)}, s96 offen
        s_waitcnt vmcnt(0)""")

class G:
    def __init__(self):
        self.p = P(); self.lg = []; self.vm = []; self.ool = []
    def emit(self, seq, eager=0, name=None):
        if name: self.p.l.append(";@seg " + name)
        out, self.lg, self.vm = resolve(seq, self.lg, self.vm, eager)
        self.p(out)
    def spin(self, vreg, srdb, soff, imm, target):
        st, bk, lp = self.p.new("spin"), self.p.new("spinbk"), self.p.new("spinlp")
        self.ool += L(f"""{st}:
            s_mov_b32 vcc_hi, 0x80000
            {lp}:
            s_sleep 1
            buffer_load_dword v{vreg}, off, {srd(srdb)}, {soff} offset:{imm} sc1
            s_waitcnt vmcnt(0)
            v_readfirstlane_b32 vcc_lo, v{vreg}
            s_sub_u32 vcc_hi, vcc_hi, 1
            s_cbranch_scc1 {bk} ;@nottaken
            s_cmp_lt_u32 vcc_lo, {target}
            s_cbranch_scc1 {lp} ;@nottaken
            s_branch {bk}""")
        return L(f"""v_readfirstlane_b32 vcc_lo, v{vreg}
            s_nop 0
            s_cmp_lt_u32 vcc_lo, {target}
            s_cbranch_scc1 {st}
            {bk}:""")

sLH = 78
def cpf(expr):
    return ([f"s_add_u32 s17, s{sLH}, {expr}"], f"buffer_load_dword a{aDUM}, v{vL16}, s[88:91], s17 offen ;@dummy")
def one_lane(d): return ["s_mov_b64 exec, 1", d, "s_mov_b64 exec, -1"]
def signal(srdb, soff, imm, tags):
    return ([f"s_lshl_b32 s{t0_}, s{sW}, 30", f"v_lshl_add_u32 v1, v0, 24, s{t0_}"],
            f"buffer_atomic_add a{aONE}, v1, {srd(srdb)}, {soff} offen offset:{imm} sc1 ;@sig=wg:{tags}")

JIT = [0]
def jit():
    if not OPT.get("jit"): return []
    JIT[0] += 1; k = JIT[0]
    return L(f"""s_mul_i32 s92, s2, {(OPT['jit'] * 2654435761 + k * 40503 * 977) & 0x7fffffff | 1}
        s_lshr_b32 s92, s92, 9
        s_xor_b32 s92, s92, s{sW}
        s_and_b32 s92, s92, 15
        L_jit{k}:
        s_sleep 12
        s_sub_u32 s92, s92, 1
        s_cbranch_scc0 L_jit{k}""")
def TSITES(): return [int(x) for x in str(OPT.get("ts", "1_20")).split("_")]
def snake(n, k): return list(range(n)) if k % 2 == 0 else list(range(n - 1, -1, -1))

def aq(db, rb): return R("v", (vQ if db % 2 == 0 else 88) + 16 * rb + 4 * (db // 2))
def bt(part, db, rb): return R("v", 152 + 32 * part + 8 * rb + 4 * db)
HK, HV = R("v", 248), R("v", 252)
XS = 20480
def KP(rb): return R("a", 176 + 4 * rb)
P2ORD = [10, 11, 12, 13, 8, 9, 0, 1, 2, 3, 4, 5, 6, 7]
def p2tile(cb, rb):
    if cb < 8: return aq(cb, rb)
    if cb < 14: return bt((cb - 8) >> 1, cb & 1, rb)
    return HK if cb == 14 else HV

def gemm12(g):
    p = g.p
    sCo, sWo, sXlo, sXhi, sXh, sBo, sLX, sLW, sKV, sPF = 70, 71, 72, 73, 74, 75, 76, 77, 79, 80
    NR = 6
    def fx(sg, rb, s): return R("a", 32 * (sg & 1) + 8 * rb + 4 * s) if rb < 4 else R("a", 64 + 4 * s)
    ES = OPT.get("es", 1)
    def fw(J, s): return R("a", 176 + 8 * J + 4 * s) if (ES and J < 2) else R("a", 72 + 8 * (J % NR) + 4 * s)
    def stash(i): return R("a", 144 + 4 * i)
    GA = 144
    def order(sg):
        o = []; k = 0
        for j, cb in enumerate(range(16) if sg < 8 else P2ORD):
            if sg >= 8 and cb >= 14: o.append((j, cb, 4))
            else:
                o += [(j, cb, rb) for rb in snake(4, k)]; k += 1
        return o
    o1, o2 = order(0), order(8)
    pos1 = {(cb, rb): k for k, (j, cb, rb) in enumerate(o1)}
    def treg(k): return p2tile(o2[k][1], o2[k][2]) if k < 56 else (HK, HV)[k - 56] if k < 58 else R("a", 120 + 4 * (k - 58))
    FS = [(22, j) for j in range(6)] + [(23, j) for j in range(6)] + [(sg, j) for j in range(6, 14) for sg in (22, 23)]
    def Jx(sg, j): return 16 * sg + j if sg < 8 else 128 + 14 * (sg - 8) + j if sg < 22 else 128 + 14 * 14 + FS.index((sg, j))
    p("s_cmp_ge_u32 s2, 256\ns_cbranch_scc1 L_end")
    p("s_load_dwordx16 s[4:19], s[0:1], 0\ns_load_dwordx8 s[20:27], s[0:1], 64\ns_load_dwordx2 s[28:29], s[0:1], 96")
    if OPT["stamps"] or OPT.get("dbgt"): p("s_memtime s[96:97]\ns_memrealtime s[98:99]")
    if OPT.get("dbgt"): p("s_load_dwordx2 s[94:95], s[0:1], 88")
    p("s_getpc_b64 s[88:89]"); p.label("L_pc")
    p(f"""v_lshrrev_b32 v1, 6, v0
          s_lshr_b32 s{t1_}, s2, 3
          v_lshl_add_u32 v24, s{t1_}, 2, v1
          s_mov_b32 s90, L_codeend-L_pc
          s_mov_b32 s91, 0x20000
          v_and_b32 v25, 7, v0
          v_lshlrev_b32 v25, 7, v25
          v_lshl_add_u32 v24, v24, 10, v25
          buffer_load_dword a{aDUM}, v24, s[88:91], 0 offen ;@dummy
          v_and_b32 v0, 63, v0
          v_readfirstlane_b32 s{sW}, v1 ;@val=wave
          v_lshrrev_b32 v24, 3, v0
          v_lshrrev_b32 v25, 4, v0
          v_and_b32 v26, 7, v0
          v_xor_b32 v26, v26, v25
          v_lshlrev_b32 v26, 4, v26
          v_lshl_add_u32 v{vGX}, v24, 10, v26
          v_xor_b32 v{vGX+1}, 64, v{vGX}
          v_bfe_u32 v26, v0, 1, 3
          v_xor_b32 v26, v26, v25
          v_lshlrev_b32 v26, 5, v26
          v_and_b32 v24, 1, v0
          v_lshl_add_u32 v26, v24, 4, v26
          v_lshl_add_u32 v{vGW}, v25, 13, v26
          v_xor_b32 v{vGW+1}, 128, v{vGW}
          s_and_b32 s{t0_}, s2, 7
          s_and_b32 s{t2_}, s{t1_}, 3
          s_lshl2_add_u32 s{sH}, s{t0_}, s{t2_}
          s_cmp_eq_u32 s{t2_}, 0
          {"s_cselect_b32 s90, s90, 0" if OPT.get("c4", 1) else ""}
          s_lshr_b32 s{sJ}, s{t1_}, 2
          s_lshl2_add_u32 s{sPF}, s{t1_}, s{sW}
          s_lshl_b32 s{sCo}, s{sJ}, 18
          s_lshl_b32 s{t0_}, s{sW}, 16
          s_add_u32 s{sCo}, s{sCo}, s{t0_}
          s_lshl_b32 s{sWo}, s{sW}, 17
          s_lshl_b32 s{t0_}, s{sH}, 8
          s_add_u32 s{sWo}, s{sWo}, s{t0_}
          {f"s_xor_b32 s{t2_}, s{t2_}, 1" if OPT.get("x_h1") else ""}
          {f"s_min_u32 s{t2_}, s{t2_}, 1" if OPT.get("x_h1") else ""}
          {f"s_xor_b32 s{t2_}, s{t2_}, 1" if OPT.get("x_h1") else ""}
          {f"s_mul_i32 s{t2_}, s{t2_}, 128" if OPT.get("x_h1") else ""}
          {f"s_sub_u32 s{sWo}, s{sWo}, s{t2_}" if OPT.get("x_h1") else ""}
          s_lshl_b32 s{sLX}, s{sW}, 13
          s_lshl_b32 s{sLW}, s{sW}, 12
          s_lshl_b32 s{sLH}, s{sW}, 10
          {";@touch 9" if OPT.get("na", 1) and OPT.get("pg", 1) else ""}
          s_waitcnt lgkmcnt(0)""")
    if OPT.get("pst"): p("s_memtime s[84:85]\ns_memrealtime s[86:87]")
    p(mk_srd(SA, sC, 2 << 20) + mk_srd(SB, sWUK, 4 << 20) + mk_srd(SC, sWUV, 4 << 20))
    def xdma(sg):
        par = sg & 1; d = []
        for i in range(8 if not (OPT.get("x_nox") and sg > 9) else 1):
            if sg < 8: so, sr = f"s_xor_b32 s{sT}, s{sCo}, {sg*128 + i*8192}", SA
            else: so, sr = f"s_xor_b32 s{sT}, s{sXlo if i < 4 else sXhi}, {(sg-8)*128 + ((i>>1)&1)*64*2048 + (i&1)*16384}", SE
            d.append(([f"s_xor_b32 m0, s{sLX if sg == 0 else 84}, {par*32768 + i*1024}", so], f"buffer_load_dwordx4 v{vGX + (i&1)}, {srd(sr)}, s{sT} offen lds ;@tag=x{sg}"))
        return d
    def wdma(sg):
        d = []; B = 65536 + (sg % 3) * 32768
        for kv in range(2 if sg < 8 else 1):
            for i in range(4):
                st = sg if sg < 8 else sg - 8
                d.append(([f"s_xor_b32 m0, s{sLW}, {B + kv*16384 + i*1024}", f"s_xor_b32 s{sT}, s{sWo}, {st*64*8192 + i*32768}"],
                          f"buffer_load_dwordx4 v{vGW + (i>>1)}, {srd((SB, SC)[kv] if sg < 8 else SG)}, s{sT} offen lds ;@tag=w{sg}"))
        if sg >= 8:
            for pp in range(3):
                d.append(([f"s_add_u32 m0, s{sLH}, {B + 16384 + pp*4096}", f"s_add_u32 s{sT}, s{sBo}, {(sg-8)*64*6144 + pp*2048}"],
                          f"buffer_load_dwordx4 v{vGB}, {srd(SH)}, s{sT} offen lds ;@tag=w{sg}"))
            d = [d[k] for k in (0, 4, 1, 5, 2, 6, 3)]
            if sg > 10 and OPT.get("x_now") == 1: d = d[:1]
            if sg > 10 and OPT.get("x_now") == 2: d = d[::2]
        return d
    seq = []
    x0, w0 = xdma(0), wdma(0)
    b0, b1 = (x0[:4] + w0[:4], x0[4:] + w0[4:]) if ES else (x0 + w0, [])
    for sal, d in b0: seq += sal + [d.replace("@tag=w0", "@tag=a0") if ES else d]
    if OPT.get("cpre") == 2: seq += [f"s_lshl2_add_u32 s84, s2, s{sW}", "s_lshl_b32 s84, s84, 11", "v_lshlrev_b32 v22, 5, v0", f"buffer_load_dword a{aDUM}, v22, {srd(SA)}, s84 offen ;@dummy"]
    seq += mk_srd(SD, sWS, 128 << 20) + mk_srd(SE, sX, 4 << 20) + mk_srd(SF, sDBG, 256) + mk_srd(SG, sWQ, 8 << 20) + mk_srd(SH, sWQKV, 6 << 20)
    seq += [f"v_accvgpr_write_b32 a{aONE}, 1"]
    if OPT["stamps"]: seq += ["v_mov_b32 v30, 0", "v_writelane_b32 v30, s96, 60", "v_writelane_b32 v30, s98, 61", "s_getreg_b32 s96, hwreg(HW_REG_XCC_ID)", "v_writelane_b32 v30, s96, 62"] + (["s_waitcnt lgkmcnt(0)", "v_writelane_b32 v30, s84, 58", "v_writelane_b32 v30, s86, 59", "v_writelane_b32 v30, s100, 56", "v_writelane_b32 v30, s0, 57"] if OPT.get("pst") else []) + [ "v_accvgpr_write_b32 a249, v30"] + stamp(0)
    seq += L(f"""v_and_b32 v24, 15, v0
          v_lshrrev_b32 v26, 1, v24
          v_xor_b32 v26, v26, v25
          v_lshlrev_b32 v26, 4, v26
          v_lshl_add_u32 v26, v24, 7, v26
          v_add_u32 v{vDX}, s{sLX}, v26
          v_xor_b32 v{vDX+1}, 64, v{vDX}
          v_bfe_u32 v24, v0, 2, 2
          v_lshl_add_u32 v27, v25, 3, v24
          v_and_b32 v1, 3, v0
          v_cmp_eq_u32 vcc, 0, v1
          v_lshlrev_b32 v1, 3, v1
          v_lshl_add_u32 v26, v27, 8, v1
          v_add_u32 v26, 65536, v26
          v_and_b32 v1, 1, v25
          v_lshl_add_u32 v24, v1, 2, v24
          v_lshlrev_b32 v{vL16}, 4, v0
          v_mov_b32 v28, 0x3f803f80
          v_cndmask_b32 v28, 0, v28, vcc""")
    seq += [f"v_accvgpr_write_b32 {ONES[r]}, v28" for r in range(4)]
    for n in range(8): seq += [f"v_xor_b32 v1, {n}, v24", f"v_lshl_add_u32 v{vDQ+n}, v1, 5, v26"]
    seq += L(f"""s_sub_u32 s{sBHi}, 15, s{sJ}
          s_lshl_b32 s{sXlo}, s{sJ}, 18
          s_lshl_b32 s{sXhi}, s{sBHi}, 18
          s_cmp_lt_u32 s{sW}, 2
          s_cselect_b32 s{t1_}, s{sJ}, s{sBHi}
          s_lshl4_add_u32 s{sXh}, s{sH}, s{t1_}
          s_and_b32 s{t0_}, s{sW}, 1
          s_lshl1_add_u32 s{sXh}, s{sXh}, s{t0_}
          s_lshl_b32 s{sXh}, s{sXh}, 10
          s_add_u32 s{sXh}, s{sXh}, {WS_HALO}
          s_lshl_b32 s{t0_}, s{sW}, 15
          s_add_u32 s{sXlo}, s{sXlo}, s{t0_}
          s_add_u32 s{sXhi}, s{sXhi}, s{t0_}
          s_mul_i32 s{sBo}, s{sW}, {16*6144}
          s_lshl_b32 s{t0_}, s{sH}, 6
          s_add_u32 s{sBo}, s{sBo}, s{t0_}
          s_lshl_b32 s{sKV}, s{sH}, 20
          s_lshl_b32 s{t0_}, s{sJ}, 17
          s_add_u32 s{sKV}, s{sKV}, s{t0_}
          s_lshl_b32 s{t0_}, s{sW}, 15
          s_add_u32 s{sKV}, s{sKV}, s{t0_}
          v_bfe_u32 v{vGB}, v0, 1, 1
          v_lshrrev_b32 v1, 5, v0
          v_xor_b32 v{vGB}, v{vGB}, v1
          v_lshlrev_b32 v{vGB}, 5, v{vGB}
          v_and_b32 v1, 1, v0
          v_lshl_add_u32 v{vGB}, v1, 4, v{vGB}
          v_lshrrev_b32 v1, 2, v0
          v_mul_u32_u24 v1, 6144, v1
          v_add_u32 v{vGB}, v1, v{vGB}
          s_lshl_b32 s81, s{sPF}, 13
          s_and_b32 s{t1_}, s2, 7
          s_lshl_b32 s82, s{t1_}, 8
          s_add_u32 s82, s82, s81
          s_lshl_b32 s{t1_}, s{t1_}, 10
          s_add_u32 s81, s81, s{t1_}
          s_add_u32 s83, s81, {1<<20}
          v_mul_u32_u24 v1, 1792, v25
          v_add_u32 v1, v1, v{vL16}
          s_lshl_b32 s{t2_}, s2, 3
          s_lshl1_add_u32 s{t2_}, s{sW}, s{t2_}
          v_lshrrev_b32 v18, 5, v0
          v_add_u32 v18, s{t2_}, v18
          v_and_b32 v19, 31, v0
          v_lshlrev_b32 v19, 4, v19
          v_lshl_add_u32 v18, v18, 11, v19
          v_mov_b32 v21, 0
          v_min_u32 v20, 1, v0
          v_lshlrev_b32 v20, 30, v20
          v_accvgpr_write_b32 a240, -1
          v_accvgpr_write_b32 a241, -1
          v_accvgpr_write_b32 a242, -1
          v_accvgpr_write_b32 a243, -1
          s_lshr_b32 s{t3_}, s2, 7
          s_or_b32 s{t3_}, s{t3_}, s{sW}
          s_lshl_b32 s{t3_}, s{t3_}, 21
          s_add_u32 s{t3_}, s{t3_}, s2
          s_lshl_b32 s{t3_}, s{t3_}, 7
          s_add_u32 s{t3_}, s{t3_}, {WS_CNT}""")
    def xread(sg): return [f"ds_read_b128 {fx(sg, rb, s)}, v{vDX+s} offset:{(sg&1)*32768 + rb*2048}" for rb in range(4) for s in range(2)]
    def hread(sg): return [f"ds_read_b128 {fx(sg, 4, s)}, v{vDH+s} offset:{min(sg % 3, 1)*32768}" for s in range(2)]
    def wread(sg, j):
        par = min(sg % 3, 1) if sg != 22 else 0; o = []; cb = j if sg < 8 else P2ORD[j]
        for s in range(2):
            for i in range(2):
                if sg < 8 or cb < 8: a, off = vDQ + (cb & 7), par*32768 + (cb >> 3)*16384 + s*8192 + i*1024
                elif cb < 14: a, off = vDB + (cb & 1), par*32768 + ((cb-8) >> 1)*4096 + s*2048 + i*256
                else: a, off = vDBH, par*32768 + (cb-13)*4096 + s*2048 + i*256
                o.append((a, f"ds_read_b64_tr_b16 {fw(Jx(sg, j), s)[2*i:2*i+2]}, v{a} offset:{off}"))
        return o
    if OPT.get("pg", 1): seq += ([";@touch 0"] if OPT.get("n0", 4) else []) + ["s_branch L_base", ".p2align 12", ";@base", ";@batch 0", ";@stub 0", "L_base:"]
    if OPT.get("pst"): seq += stamp(26)
    def wpf(sr): return f"buffer_load_dword a{aDUM}, v{vL16}, {srd(sr)}, s83 offen ;@dummy"
    P1PF = OPT.get("p1pf", 0)
    if P1PF == 2: seq += [wpf(SB), wpf(SC)]
    LATE, WD = OPT.get("late1", 1), OPT.get("wd", 3)
    for sal, d in b1 + ([] if ES else xdma(1) + wdma(1) if LATE == 0 else wdma(1) if LATE == 1 else []): seq += sal + [d]
    if ES: LATE = 2
    RX, RW = OPT.get("rx", 3), OPT.get("rw", 7)
    assert ES
    seq += L(f"""s_and_b32 s{t0_}, s{sH}, {RX}
          s_lshl_b32 s{t1_}, s{t0_}, 11
          s_add_u32 s84, s{sLX}, s{t1_}
          s_lshl3_add_u32 s{sCo}, s{t1_}, s{sCo}
          s_and_b32 s{t1_}, s{t0_}, 1
          s_lshl_b32 s{t1_}, s{t1_}, 17
          s_add_u32 s{sXlo}, s{sXlo}, s{t1_}
          s_add_u32 s{t1_}, s{sXhi}, s{t1_}
          s_bitcmp1_b32 s{t0_}, 1
          s_cselect_b32 s{sXhi}, s{sXlo}, s{t1_}
          s_cselect_b32 s{sXlo}, s{t1_}, s{sXlo}
          s_and_b32 s{t0_}, s{sJ}, {RW & 3}
          s_lshl_b32 s{t1_}, s{t0_}, 10
          s_add_u32 s{sLW}, s{sLW}, s{t1_}
          s_lshl_b32 s{t1_}, s{t0_}, 15
          s_add_u32 s{sWo}, s{sWo}, s{t1_}
          s_and_b32 s{t1_}, s{t0_}, 2
          s_lshl_b32 s{t1_}, s{t1_}, 6
          v_xor_b32 v{vGW}, s{t1_}, v{vGW}
          v_xor_b32 v{vGW+1}, s{t1_}, v{vGW+1}
          s_and_b32 s{t0_}, s{sJ}, {RW & 4}
          s_cselect_b64 s[{SB}:{SB+1}], s[{sWUV}:{sWUV+1}], s[{sWUK}:{sWUK+1}]
          s_cselect_b64 s[{SC}:{SC+1}], s[{sWUK}:{sWUK+1}], s[{sWUV}:{sWUV+1}]
          s_lshl_b32 s{t0_}, s{t0_}, 12
          s_add_u32 s{sLW}, s{sLW}, s{t0_}""")
    if P1PF == 1: seq += [wpf(SB), wpf(SC)]
    cpf_c = [f"s_lshl2_add_u32 s84, s2, s{sW}", "s_lshl_b32 s84, s84, 11", "v_lshlrev_b32 v22, 5, v0", f"buffer_load_dword a{aDUM}, v22, {srd(SA)}, s84 offen ;@dummy"]
    if OPT.get("cpre") == 1: seq += cpf_c
    seq += ["WAITVM a0" if ES else "WAITVM w0,x0", "s_barrier"] + stamp(1)
    xr = xread(0); NPRE = 3
    seq += xr[:2] + [r for _, r in wread(0, 0)] + xr[2:4 if ES else 8]
    for j in range(1, NPRE): seq += [r for _, r in wread(0, j)]
    if OPT.get("pst"): seq += stamp(27)
    g.emit(seq)
    mf = []; G0 = []; FU = {}; LU = {}; done = {}
    def tile_mf(k, cb, rb, sgs, j, swap):
        ops = [(sg, s) for sg in sgs for s in range(2)]
        for q, x in enumerate(snake(len(ops), k)):
            sg, s = ops[x]; J = Jx(sg, j)
            FU.setdefault(J, len(mf)); LU[J] = len(mf)
            c0 = 0 if (q == 0 and sg in (0, 8)) else None
            mf.append(mfma(treg(k), fx(sg, rb, s), fw(J, s), c0) if swap else mfma(treg(k), fw(J, s), fx(sg, rb, s), c0))
        done[(sgs[-1], cb, rb)] = len(mf) - 1
    for sg in range(22):
        G0.append(len(mf))
        oo = list(enumerate(o1 if sg < 8 else o2))
        if sg == 0:
            oo = [(pos1[(cb, rb)], (cb, cb, rb)) for cb in range(8) for rb in snake(2, cb)] + \
                 [(pos1[(cb, rb + 2)], (cb, cb, rb + 2)) for cb in (2, 3, 4, 5, 6, 7, 0, 1) for rb in snake(2, cb)] + oo[32:]
        for k, (j, cb, rb) in oo: tile_mf(k, cb, rb, [sg], j, (cb >= 8) if sg < 8 else (cb in (12, 13)))
    Z0 = len(mf); G0.append(Z0)
    for sg in (22, 23):
        for k, (j, cb, rb) in list(enumerate(o2))[:24]: tile_mf(k, cb, rb, [sg], j, cb in (12, 13))
    for k, (j, cb, rb) in list(enumerate(o2))[24:]: tile_mf(k, cb, rb, [22, 23], j, False)
    S = Sched(mf)
    def pace(items, lo, hi, chain, slack=5):
        n = len(items)
        for q, (sal, d) in enumerate(items):
            x = lo + int(q * (hi - lo) / n)
            it = S.add("M", d, x, x + slack, chain=chain, sep=3, pre=sal)
            if q == 0: it["prelo"] = lo - 2
    def chain(txt, lo, hi=None, name=None, sep=1):
        for c in (L(txt) if isinstance(txt, str) else txt): S.add(kind(c), c, lo, hi, chain=name, sep=sep)
    BAR = {sg: G0[sg + 1] - 30 for sg in range(22)}; BAR[-1] = -1; BAR[22] = Z0 + 18
    XW = 54; X0 = 70
    gxupd = f"v_lshrrev_b32 v{vGX+1}, 3, v0\nv_lshl_add_u32 v{vGX}, v{vGX+1}, 10, v{vGX}\nv_xor_b32 v{vGX+1}, 64, v{vGX}"
    pace(wdma(1) + xdma(1), 2, X0 - 2, "dma", slack=2)
    for sg in range(22):
        g0, nx, B = G0[sg], G0[sg + 1], BAR[sg]
        lastuse = {}
        for j in range(16 if sg < 8 else 14):
            J = Jx(sg, j)
            if J < NPRE: continue
            lo = max(LU[J - NR] if J >= NR + 2 else 0, BAR[sg - 1] + 1, FU[J] - 44)
            hi = min(FU[J] - (8 if J >= 8 else 6), B - 5)
            if J == 8:
                S.add("S", "WAITVM x0", 22, 22, chain="t")
                for r in xr[4:]: S.add("D", r, 0, 27, chain="t")["dd"] = True
                S.add("X", ["WAITVM w0", "s_barrier"], 38, 38, chain="t")
            for a, r in wread(sg, j): S.add("T", r, lo, hi, chain="t"); lastuse[a] = hi
        if sg % 3 or sg == 21:
            for r, lu in lastuse.items():
                S.add("A", f"v_add_u32 v{r}, 0x8000, v{r}" if sg % 3 != 2 else f"v_subrev_u32 v{r}, 0x8000, v{r}", lu + 1, B - 1)
        blk = [f"WAITVM w{sg+1} L", "s_barrier"]
        if OPT.get("pg", 1) and sg == OPT.get("t1", 1): blk = [";@touch 1"] + blk
        if sg == 7: blk += stamp(2)
        if sg in (0, 6, 9, 17, 19, 21): blk += jit()
        fine = (0, 1, 2, 3, 4, 5, 9, 11, 13, 15, 17, 19) if OPT.get("fine") != 2 else (15, 16, 17, 18, 19, 20, 21)
        if OPT.get("fine") and sg in fine: blk += stamp(18 + fine.index(sg))
        S.add("X", blk, B, B)
        RP = OPT.get("ramp", 4)
        xw, xh = (g0 + XW, B - 5) if sg > RP else (B + 8, nx - 8)
        S.add("S", f"WAITVM x{sg+1}", xw, xw, chain=("xn", sg))
        for q, r in enumerate(xread(sg + 1)): S.add("D", r, xw, xh, chain=("xn", sg))
        if RP and sg <= RP:
            if sg == 0:
                its = []
                for k in range(2, RP + 3): its += wdma(k) + xdma(k)
                pace(its + wdma(RP + 3), X0, G0[RP + 1] + 38, "dma", slack=2)
            continue
        if sg == 0:
            pace(wdma(2) + xdma(2), X0, nx + 2, "dma", slack=2); pace(wdma(3), nx + 4, nx + 38, "dma", slack=2)
            continue
        if sg < 21: pace(xdma(sg + 2), g0 + 40, B - 2, "dma")
        if sg == 5: S.add("S", f"s_and_b32 s{sLW}, s{sLW}, 0x3fff", B - 4, B + 1, chain="dma")
        if sg < 20: pace(wdma(sg + 3), B + 3, nx + 38, "dma")
        if sg == 20: pace(xdma(23) + wdma(23), B + 3, BAR[21] - 16, "dma")
    if OPT.get("pg", 1):
        x = Z0 + OPT.get("tz", 40)
        blk = [";@touch 2"]
        if OPT.get("vs", 1):
            for k, jj in ((3, 0), (4, 7)): blk += [f"s_cmp_lg_u32 s{sJ}, {jj}", f"s_cbranch_scc1 L_tr{k}", f";@touch {k}"]
        S.add("X", blk, x, x + 6)
        for c in ("v_lshrrev_b32 v23, 2, v0", "v_mul_u32_u24 v23, 3584, v23", "v_lshl_add_u32 v23, v0, 7, v23"): S.add("A", c, BAR[21] - 8, BAR[21] + 10, chain="pgp")
        S.add("M", f"buffer_load_dword a{aDUM}, v23, s[88:91], s17 offen ;@dummy", BAR[21] + 2, Z0 - 4, chain="pgp", sep=3,
              pre=[f"s_lshr_b32 s17, s{sLH}, 1", f"s_add_u32 s17, s17, L_base-L_pc-4+{4096*13}"])
        if OPT.get("d2", 0): S.add("M", f"buffer_load_dword a{aDUM}, v23, s[88:91], s17 offen offset:2048 ;@dummy", BAR[21] + 2, Z0 + 4, chain="pgp", sep=4)
    if OPT.get("probe"):
        for k, x in enumerate((20, 38, 50, 62, 70, 78, 86, 94, 102, 112, 150)): S.add("X", stamp(18 + k), Z0 + x, Z0 + x)
    S.add("S", "WAITVM x23", Z0, Z0, chain="xz")
    for r in xread(23): S.add("D", r, Z0, Z0 + 12, chain="xz")
    for x, (sg, j) in enumerate(FS):
        J = Jx(sg, j)
        if x == 6: S.add("X", ["WAITVM w23 L", "s_barrier"], BAR[22], BAR[22], chain="t")
        for a, r in wread(sg, j):
            S.add("T", r, max(LU[J - NR], BAR[21] + 1, FU[J] - 44), FU[J] - 8 if x >= 6 else min(FU[J] - 8, BAR[22] - 4), chain="t")
    GS = OPT.get("gs", 44); lo = OPT.get("g0", 100)
    for i in range(4):
        S.add("M", f"global_load_dwordx4 a[{GA+4*i}:{GA+3+4*i}], v18, s[{sX}:{sX+1}] offset:{512*i}", lo + GS*i, lo + GS*i + 10, chain="gate")
        S.add("M", f"global_load_dwordx4 a[{GA+16+4*i}:{GA+19+4*i}], v19, s[{sGATE}:{sGATE+1}] offset:{512*i}", lo + GS*i + GS//2, lo + GS*i + GS//2 + 10, chain="gate")
    S.add("M", f"buffer_store_dword v21, v20, {srd(SD)}, s{t3_} offen {ST} ;@tag=z", G0[2] + 20, G0[2] + 40, chain="gate", sep=1)
    a0, a1, a2, a3, acc = 18, 19, 20, 21, 17
    ch = [f"v_mov_b32 v{acc}, 0"]
    for i in range(16):
        ch += L(f"""v_accvgpr_read_b32 v{a1}, a{GA+i}
            v_accvgpr_read_b32 v{a3}, a{GA+16+i}
            v_lshlrev_b32 v{a0}, 16, v{a1}
            v_and_b32 v{a1}, 0xffff0000, v{a1}
            v_lshlrev_b32 v{a2}, 16, v{a3}
            v_and_b32 v{a3}, 0xffff0000, v{a3}
            v_mul_f32 v{a0}, v{a0}, v{a2}
            v_mul_f32 v{a1}, v{a1}, v{a3}
            v_cvt_pk_bf16_f32 v{a0}, v{a0}, v{a1}
            v_lshlrev_b32 v{a1}, 16, v{a0}
            v_and_b32 v{a0}, 0xffff0000, v{a0}
            v_add_f32 v{acc}, v{acc}, v{a1}
            v_add_f32 v{acc}, v{acc}, v{a0}""")
    lo = G0[3]
    chain(ch, lo, name="gate", sep=0)
    chain([f"v_add_f32_dpp v{acc}, v{acc}, v{acc} row_ror:{r} row_mask:0xf bank_mask:0xf" for r in (8, 4, 2, 1)], lo, name="gate", sep=2)
    chain([f"v_mov_b32 v{a0}, v{acc}"], lo, name="gate", sep=0)
    chain([f"v_permlane16_swap_b32 v{a0}, v{acc}"], lo, name="gate", sep=2)
    chain(f"""v_add_f32 v{acc}, v{acc}, v{a0}
            v_cvt_pk_bf16_f32 v{acc}, v{acc}, v{acc}
            v_and_b32 v{acc}, 0xffff0000, v{acc}
            v_mul_f32 v{acc}, 0xbfb8aa3b, v{acc}
            v_exp_f32 v{acc}, v{acc}
            v_add_f32 v{acc}, 1.0, v{acc}
            v_rcp_f32 v{acc}, v{acc}
            v_cvt_pk_bf16_f32 v{a0}, v{acc}, v{acc}
            v_and_b32 v{a0}, 0xffff0000, v{a0}
            v_sub_f32 v{a1}, 1.0, v{a0}
            v_cvt_pk_bf16_f32 v{a1}, v{a1}, v{a1}
            v_and_b32 v{a1}, 0xffff0000, v{a1}
            v_and_b32 v{a2}, 31, v0
            v_lshlrev_b32 v{a2}, 27, v{a2}
            v_lshrrev_b32 v{a3}, 2, v0
            v_add_u32 v{a2}, v{a2}, v{a3}""", lo, name="gate")
    S.add("M", f"buffer_store_dwordx2 v[{a0}:{a1}], v{a2}, {srd(SD)}, s{sT2} offen {ST} ;@tag=z", lo, G0[6] + 30, chain="gate", sep=4,
          pre=[f"s_lshl2_add_u32 s{sT2}, s2, s{sW}", f"s_lshl4_add_u32 s{sT2}, s{sT2}, {WS_G}"])
    chain(f"""v_lshrrev_b32 v21, 4, v0
          v_bfe_u32 v{vDB}, v0, 2, 2
          v_lshl_add_u32 v{vDB}, v21, 3, v{vDB}
          v_lshlrev_b32 v{vDB}, 6, v{vDB}
          v_and_b32 v21, 1, v21
          v_lshl_add_u32 v{vDB}, v21, 5, v{vDB}
          v_and_b32 v21, 3, v0
          v_lshl_add_u32 v{vDB}, v21, 3, v{vDB}
          v_add_u32 v{vDB}, {98304 + 16384}, v{vDB}
          v_xor_b32 v{vDB+1}, 32, v{vDB}""", lo, G0[7] - 2, name="gate")
    chain(gxupd, BAR[5] + 6, G0[6] + 30, name="gx", sep=0)
    if P1PF:
        for lo in (OPT.get("q1", 80), OPT.get("q2", 210)):
            S.add("M", wpf(SB), lo, lo + 10, chain="pf1", pre=[f"s_add_u32 s83, s83, {1<<20}"])
            S.add("M", wpf(SC), lo + 20, lo + 30, chain="pf1")
    if OPT.get("tlb"):
        sh = OPT["tlb"]
        S.add("A", f"v_lshlrev_b32 v22, {sh}, v0", 0, 10, chain="tlb")
        S.add("S", f"s_lshl_b32 s84, s{sPF}, {sh + 6}", 0, 12, chain="tlb")
        S.add("S", f"s_min_u32 s84, s84, 0x10000000", 0, 14, chain="tlb")
        S.add("M", f"buffer_load_dword a{aDUM}, v22, {srd(SD)}, s84 offen sc1 ;@dummy", 60, 70, chain="tlb")
    if not OPT.get("nopf"):
        P0, PS = OPT.get("p0", 300), OPT.get("ps", 40); order_ = "qkqkqqkqkqqkqk"
        SK = OPT.get("sk", 0)
        for k, c in enumerate(order_):
            if k < SK: continue
            r = 81 if c == "q" else 82; nb_ = order_[:k].count(c); inc = nb_ if order_[SK:k].count(c) == 0 else 1
            S.add("M", f"buffer_load_dword a{aDUM}, v{vL16 if c == 'q' else 1}, {srd(SG if c == 'q' else SH)}, s{r} offen ;@dummy", P0 + (k-SK)*PS, P0 + (k-SK)*PS + 16, chain="pf",
                  pre=[f"s_add_u32 s{r}, s{r}, {inc<<20}"] if inc else [])
    if OPT.get("wo", "M") == "P":
        chain(mk_srd(84, sWOA, 8 << 20) + [f"s_lshl2_add_u32 s83, s2, s{sW}", "s_lshl_b32 s83, s83, 11", "v_lshlrev_b32 v22, 5, v0"], 20, 100, name="wp", sep=0)
        for k in range(4):
            x = OPT.get("wp0", 120) + k * OPT.get("wps", 144)
            S.add("M", f"buffer_load_dword a{aDUM}, v22, s[84:87], s83 offen ;@dummy", x, x + 10, chain="wp", pre=[f"s_add_u32 s83, s83, {2<<20}"] if k else [])
    n0 = G0[8]; frs = []
    for t in range(4):
        for rb in (3, 2, 1, 0): frs.append(((2*t, rb), (2*t + 1, rb), (rb >> 1)*16384 + (rb & 1)*4096 + t*1024))
    for db in range(8):
        for u in snake(2, db): frs.append(((8 + db, 2*u), (8 + db, 2*u + 1), u*16384 + 8192 + db*1024))
    ns = 0; later = []
    tmpA, tmpB = HK, HV
    for q, (ta, tb, off) in enumerate(frs):
        ka, kb = pos1[ta], pos1[tb]; A, B_ = treg(ka), treg(kb)
        lo = G0[7] + 2*max(ka, kb) + 1 + 8; hi = n0 + 2*min(ka, kb) - 1; hi2 = n0 + 2*max(ka, kb) - 3
        D_ = B_ if kb > ka else A
        ch = ("drain",)
        if min(ka, kb) >= 56: hi = hi2 = G0[10]
        if A.f == "a":
            for r in range(4): S.add("A", f"v_accvgpr_read_b32 {tmpA[r]}, {A[r]}", lo, hi, chain=ch, sep=2 if r == 0 else 0)
            for r in range(4): S.add("A", f"v_accvgpr_read_b32 {tmpB[r]}, {B_[r]}", lo, hi, chain=ch)
            A, B_ = tmpA, tmpB; D_ = B_
        direct = q % 4 == 0
        if direct: S.add("S", f"s_add_u32 s{t1_}, s{sKV}, {off}", lo - 2, hi, chain=ch)
        if D_ is B_: cv = ((3, B_, 2), (2, B_, 0), (0, A, 0), (1, A, 2))
        else: cv = ((0, A, 0), (1, A, 2), (2, B_, 0), (3, B_, 2))
        for d_, src, r in cv: S.add("A", f"v_cvt_pk_bf16_f32 {D_[d_]}, {src[r]}, {src[r+1]}", lo, hi, chain=ch)
        if direct and OPT.get("x_nodirect"): pass
        elif direct: S.add("M", f"buffer_store_dwordx4 {D_}, v{vL16}, {srd(SD)}, s{t1_} offen {OPT.get('kvst', ST).replace('+', ' ').replace('-', '')} ;@tag=kv", lo, hi2, chain=ch, sep=1)
        else:
            for r in range(4): S.add("A", f"v_accvgpr_write_b32 {stash(ns)[r]}, {D_[r]}", lo, hi2, chain=ch)
            later.append((ns, off)); ns += 1
    assert ns == 24 and pos1[frs[27][0]] in (54, 55) and pos1[frs[28][0]] in (56, 57), (pos1[frs[27][0]],)
    NSTG = OPT.get("nstg", 10); KVP = OPT.get("kvp", 21)
    t_a, t_b = G0[9] + 2, BAR[8 + NSTG] - 14
    sts = [([f"s_add_u32 s{sT2}, s{sKV}, {off}"], f"buffer_store_dwordx4 {stash(i)}, v{vL16}, {srd(SD)}, s{sT2} offen {OPT.get('kvst', ST).replace('+', ' ').replace('-', '')} ;@tag=kv") for i, off in later]
    sts.append(([], f"buffer_store_dwordx4 a[240:243], v{vL16}, {srd(SD)}, s{sXh} offen {ST} ;@tag=kv"))
    for q, (pre, d) in enumerate(sts if not OPT.get("x_nost") else []):
        lo = t_a + (q * (t_b - t_a)) // (len(sts) - 1)
        S.add("M", d, lo - 6, lo, chain="kvst", sep=3, pre=pre)
    pre, d = signal(SF, f"s{t2_}", 0, "z")
    chain(pre + [f"s_lshr_b32 s{t0_}, s{sJ}, 1", f"s_lshl_b32 s{t0_}, s{t0_}, 12"], G0[7], BAR[7], name="sig")
    for k in range(4):
        lo = BAR[8 + k] + 20
        S.add("X", one_lane(d), lo, lo + 14, chain="sig", sep=3, pre=[f"s_xor_b32 s{t2_}, s{t0_}, {k << 12}"])
    E0 = max(NSTG + 7, 14)
    S.add("X", L(f"s_cmp_eq_u32 s{sW}, 0\ns_cselect_b32 s81, 256, 0"), G0[E0 - 2], G0[E0 - 2] + 40, chain="sig")
    PE = OPT.get("pe", 1)
    x = BAR[E0 - 2] + 5 if PE else BAR[E0 - 1] - 14
    S.add("M", f"buffer_load_dword v1, off, {srd(SF)}, s{sLH} sc1", x, x + 6, chain="sig")
    S.add("X", g.spin(1, SF, f"s{sLH}", 0, "s81"), G0[E0] + XW + 12, G0[E0] + XW + 24, chain="sig")
    S.add("X", mk_srd(SF, sWS, 16384, WS_CNT)[:3], BAR[E0] - 4, BAR[E0] + 30, chain="sig")
    E1 = max(NSTG + 9, 16)
    pre, d = signal(SF, "s70", 0, "kv")
    chain(pre + [f"s_lshl_b32 s70, s{sH}, 8"], G0[E1], BAR[E1], name="sig")
    S.add("X", one_lane(d), BAR[E1] + 1, BAR[E1] + 12, chain="sig", sep=1)
    chain([f"s_lshl4_add_u32 s70, s{sLH}, s70", "s_lshr_b32 s81, s81, 5"], BAR[E1] + 1, name="sig")
    x = BAR[KVP - 2] + 5 if (PE and E1 < KVP - 2) else BAR[KVP - 1] + 1 if PE else BAR[KVP - 1] - 14
    S.add("M", f"buffer_load_dword v1, off, {srd(SF)}, s70 sc1", x, x + 6, chain="sig")
    S.add("X", g.spin(1, SF, "s70", 0, "s81"), G0[KVP] + XW + 6 if not PE else BAR[KVP] - 4, BAR[KVP] - 1, chain="sig")
    if OPT.get("pg", 1):
        for k, e_ in enumerate(["L_F1-L_pc", "L_F1-L_pc+4096"][:OPT.get("vf", 0)]):
            pre, d = cpf(e_); S.add("M", d, G0[22] + 50 + 6 * k, G0[22] + 84, chain="cpf", pre=pre, sep=3)
    elif not OPT.get("nocpf"):
        for sg in range(0, 22, OPT.get("cps", 2)):
            pre, d = cpf(".-L_pc+6144"); S.add("M", d, G0[sg] + 4, G0[sg] + 30, chain="cpf", pre=pre)
        for k, e_ in enumerate([".-L_pc+6144", ".-L_pc+9984", ".-L_pc+13824", "L_F1-L_pc", "L_F1-L_pc+4096"]):
            x = G0[22] + (50 if OPT.get("wo", "M") != "E" else 0)
            pre, d = cpf(e_); S.add("M", d, x + 6 * k, x + 34, chain="cpf", pre=pre, sep=3)
    S.add("X", L(f"s_lshl_b32 s{t2_}, s{sH}, 20\ns_add_u32 s{SA}, s{sWS}, s{t2_}\ns_addc_u32 s{SA+1}, s{sWS+1}, 0"), G0[21], G0[21] + 40, chain="sa")
    S.add("X", L(f"s_add_u32 s{t2_}, s{sBHi}, 1\ns_lshl_b32 s{SA+2}, s{t2_}, 16"), G0[21], G0[21] + 50, chain="sa")
    pace(att_first_dmas(sLX), BAR[KVP] + 5, BAR[KVP] + 5 + 12 * OPT.get("kvs", 8), "dma", slack=2)
    chain("v_and_b32 v22, 15, v0\nv_lshrrev_b32 v17, 4, v0\nv_lshlrev_b32 v17, 2, v17\nv_sub_u32 v22, v22, v17", G0[13], name="bm", sep=0)
    for r in range(4):
        chain(f"""v_subrev_u32 v17, {r}, v22
              v_lshlrev_b32 v18, 31, v17
              v_or_b32 v21, v17, v18
              v_ashrrev_i32 v21, 31, v21
              v_and_b32 {HK[r]}, 0xff800000, v21
              v_not_b32 v17, v17
              v_or_b32 v21, v17, v18
              v_ashrrev_i32 v21, 31, v21
              v_and_b32 {HV[r]}, 0xff800000, v21""", G0[13], name="bm", sep=0)
    chain(f"""s_lshl_b32 s{t3_}, s{sW}, 4
          v_add_u32 v18, s{t3_}, v22
          s_lshr_b32 s{t3_}, s{sW}, 1
          s_mul_i32 s{t3_}, s{t3_}, {XS - 2048}
          s_add_u32 s{t3_}, s{t3_}, s{sLH}
          s_add_u32 s{t3_}, s{t3_}, 32768
          v_add_u32 v17, s{t3_}, v{vL16}
          v_lshlrev_b32 v21, 5, v0""", G0[13], G0[16], name="bm")
    chain([f"v_cmp_gt_i32 {msk(k)}, {16*(k >> 2) + (k & 3)}, v18" for k in range(16)], BAR[21] + 1, name="l0", sep=0)
    chain([c.replace("s81", f"s{t1_}") for c in p5_setup()], Z0, name="l0", sep=0)
    chain(f"""s_lshl2_add_u32 s73, s2, s{sW}
          s_lshl_b32 s73, s73, 11
          s_lshl1_add_u32 s{t0_}, s{sLH}, 32768""", Z0, name="l0", sep=0)
    chain(f"v_add_u32 v2, s{t0_}, v{vL16}", BAR[22] - 4, Z0 + 62, name="l0")
    S.add("X", L(f"s_or_b32 s{t0_}, s{sJ}, s{sW}\ns_cmp_eq_u32 s{t0_}, 0\ns_cselect_b32 s{t0_}, 0xff800000, 0"), Z0, Z0 + 96, chain="l0", sep=1)
    S.add("X", [f"s_and_b32 s{t1_}, s{sXh}, 0x7800", f"s_cselect_b32 s{t1_}, 0, 0x70000000", f"s_add_u32 s77, s{sXh}, s{t1_}"], Z0, Z0 + 100, chain="l0")
    chain(f"s_sub_u32 s77, s77, 2048\ns_mov_b32 s{t2_}, {f32(QSCALE)}\ns_mov_b32 s{t3_}, s{t2_}", Z0, Z0 + 104, name="l0")
    chain(f"""v_and_b32 v22, 15, v0
          v_lshlrev_b32 v22, 3, v22
          s_lshl_b32 s85, s{sW}, 7
          s_add_u32 s85, s85, {WS_G}
          s_lshl_b32 s86, s{sJ}, 10
          s_add_u32 s86, s86, s85
          s_lshl_b32 s87, s{sBHi}, 10
          s_add_u32 s87, s87, s85""", G0[21], name="g", sep=0)
    for rb in range(4):
        S.add("M", f"buffer_load_dwordx2 a[{64+2*rb}:{65+2*rb}], v22, {srd(SD)}, s{86 + (rb>>1)} offen offset:{(rb&1)*512} sc1", BAR[21] - 4, G0[22] - 2, chain="g", sep=1)
    chain(f"""s_mov_b32 s{SB}, s{sWOB}
          s_mov_b32 s{SB+1}, s{sWOB+1}
          s_mov_b32 s{SB+2}, {2<<20}
          s_mov_b32 s{SC}, s{sWOA}
          s_mov_b32 s{SC+1}, s{sWOA+1}
          s_mov_b32 s{SC+2}, {8<<20}""", G0[12], G0[13], name="pf")
    if not OPT.get("nopf"):
        S.add("M", f"buffer_load_dword a{aDUM}, v21, {srd(SB)}, s73 offen ;@dummy", Z0 + 74, Z0 + 94, chain="wpf")
    chain(f"s_lshl2_add_u32 s72, s2, s{sW}\ns_lshl_b32 s72, s72, 12\ns_add_u32 s72, s72, {WS_XCH}", BAR[21] + 2, G0[22], name="pre")
    g.prefill = [f"buffer_store_dwordx4 a[240:243], v{vL16}, {srd(SD)}, s72 offen offset:{k*1024} {ST} ;@tag=ob" for k in range(4)]
    PRIN = OPT.get("prin", -16)
    if PRIN < 200:
        for k, d in enumerate(g.prefill): S.add("M", d, G0[22] + PRIN + 14*k, G0[22] + PRIN + 14*k + 6, chain="pre")
        g.prefill = []
    def rdy(*tiles): return max(done[(23, cb, rb)] for cb, rb in tiles) + 8
    def pk(d, a, b, lo): S.add("A", f"v_cvt_pk_bf16_f32 {d}, {a}, {b}", lo, chain="la")
    def xo(rb): return (rb >> 1) * XS + (rb & 1) * 8192
    for rb in (3, 2, 1, 0):
        a, b = bt(1, 0, rb), bt(1, 1, rb); lo = rdy((11, rb))
        pk(a[0], a[0], a[1], lo); pk(a[1], a[2], a[3], lo); pk(a[2], b[0], b[1], lo); pk(a[3], b[2], b[3], lo)
        S.add("M", f"ds_write_b128 v2, {a} offset:{xo(rb) + 2048}", lo, lo + 12, chain="la", sep=1)
    for rb in (3, 2, 1, 0):
        lo = rdy((13, rb)); a, b = bt(2, 0, rb), bt(2, 1, rb)
        pk(a[3], a[2], a[3], lo - 8); pk(a[2], a[0], a[1], lo - 8); pk(a[0], b[0], b[1], lo); pk(a[1], b[2], b[3], lo)
        S.add("M", f"ds_write_b128 v2, {a} offset:{xo(rb) + 3072}", lo, lo + 16, chain="la", sep=1)
        S.add("A", f"v_mov_b32 {b[2]}, {a[0]}", lo, chain="la"); S.add("A", f"v_mov_b32 {b[3]}, {a[1]}", lo, chain="la")
    x = lo + 19
    S.add("X", ["s_waitcnt lgkmcnt(0)", "s_barrier"], lo, x, chain="la", sep=2)
    S.add("D", "ds_read_b128 a[192:195], v17 offset:16384", lo, x + 1, chain="la", sep=1)
    def prevrd(rbs):
        return [f"ds_read_b128 {KP(rb)}, v2 offset:{xo(rb)}" for rb in rbs] + \
               [f"ds_read_b64 {bt(2, db, rb)[0:2]}, v2 offset:{xo(rb) + 1024 + (1 - db)*8}" for rb in rbs for db in range(2)]
    S.add("M", f"buffer_store_dwordx4 a[192:195], v{vL16}, {srd(SD)}, s{sXh} offen {ST}", lo, x + 7, chain="la", sep=6)
    for c in prevrd((1, 3)): S.add("D", c, lo, chain="la")
    hin = aq(1, 3); N = S.n; HL = N - OPT.get("hl", 54); HC = N - OPT.get("hc", 14)
    hld = f"buffer_load_dwordx4 {hin}, v{vL16}, {srd(SD)}, s77 offen sc1"
    S.add("M", hld, HL, HL + 4, chain="la")
    hmx = [f"v_max3_u32 v1, {hin[0]}, {hin[1]}, {hin[2]}", f"v_max_u32 v1, v1, {hin[3]}"]
    for c in hmx: S.add("A", c, HC, HC, chain="la")
    S.add("X", ["v_cmp_eq_u32 vcc, -1, v1", "s_cbranch_vccnz L_hretry", "L_hgo:"], HC + 1, HC + 1, chain="la")
    g.ool += ["L_hretry:", "s_sub_u32 s72, s72, 1", "s_cbranch_scc1 L_hgo ;@nottaken", hld, "s_waitcnt vmcnt(0)"] + hmx + \
             ["v_cmp_eq_u32 vcc, -1, v1", "s_cbranch_vccnz L_hretry ;@nottaken", "s_branch L_hgo"]
    S.add("M", f"ds_write_b128 v17, {hin}", HC + 2, HC + 2, chain="la")
    S.add("X", ["s_waitcnt lgkmcnt(0)", "s_barrier"], HC + 6, HC + 6, chain="la")
    for k, c in enumerate(prevrd((0, 2))): S.add("D", c, HC + 7, HC + 7 + k, chain="la")
    for rb in (3, 2, 1, 0):
        a, b = bt(0, 0, rb), bt(0, 1, rb); lo = max(rdy((9, rb)), Z0 + 105)
        for d_, src, r in ((0, a, 0), (1, a, 2), (2, b, 0), (3, b, 2)): S.add("A", f"v_cvt_pk_bf16_f32 {a[d_]}, {src[r]}, {src[r+1]}", lo, chain="lq")
    if OPT.get("sm", 1):
        chain(["v_bfe_u32 v1, v0, 1, 1", "v_subrev_u32 v1, 1, v1", "v_and_b32 v1, 0x3f803f80, v1"] + [f"v_accvgpr_write_b32 {ONES2[r]}, v1" for r in range(4)], Z0 + 44, Z0 + 120, name="o2", sep=0)
    chain(L(f"""s_sub_u32 s81, s{sJ}, 1
          s_sub_u32 s{t1_}, s{sJ}, 2
          s_mul_i32 s81, s81, s{t1_}
          s_lshl4_add_u32 s81, s81, s{sH}
          s_lshl2_add_u32 s81, s81, s{sW}
          s_mul_i32 s81, s81, 3328
          s_mov_b32 s73, 0
          s_mov_b32 s72, 0x20000
          s_lshl_b32 s{t1_}, s{sH}, 15
          s_add_u32 s{t1_}, s{t1_}, s{sLH}
          s_add_u32 s{t1_}, s{t1_}, {WS_CTX}
          s_mul_i32 s74, s{sJ}, {160*8192}
          s_add_u32 s74, s74, s{t1_}
          s_mul_i32 s75, s{sBHi}, {160*8192}
          s_add_u32 s75, s75, s{t1_}
          s_mul_i32 s{t1_}, s{sH}, {3*8192}
          s_sub_u32 s{t1_}, {128*8192}, s{t1_}
          s_add_u32 s{sT}, s74, s{t1_}
          s_add_u32 s{sT2}, s75, s{t1_}""") + att_scalars(), x + 9, HC - 1, name="lx")
    chain([f"v_or_b32 v{20+r}, s{t0_}, {HV[r]}" for r in range(4)], lo, name="lq", sep=0)
    S.add("S", f"s_mov_b32 s{t0_}, {f32(BSCALE)}", lo, chain="lq", sep=1)
    NQ = OPT.get("nq", 12); g.qdone = []
    for t, rb in [(t, rb) for t in range(4) for rb in (3, 2, 1, 0)][:NQ]:
        a, b = aq(2*t, rb), aq(2*t+1, rb); lo = rdy((2*t + 1, rb)); g.qdone.append((t, rb))
        for r_ in (a, b):
            for k in range(4): S.add("A", f"v_mul_f32 {r_[k]}, s{t2_}, {r_[k]}", lo, chain="lq")
        for d_, src, r in ((0, a, 0), (1, a, 2), (2, b, 0), (3, b, 2)): S.add("A", f"v_cvt_pk_bf16_f32 {a[d_]}, {src[r]}, {src[r+1]}", lo, HL - 1 if (t, rb) == (0, 3) else None, chain="lq")
    g.emit(S.run("gemm12"), eager=10, name="gemm12")
    g.emit(stamp(5) + jit())
    if OPT.get("x_sleep"): g.emit([f"s_sleep {OPT['x_sleep']}"])
    local_attention(g)

def att_head():
    o = L(f"""v_mov_b32 v2, v{vL16}
          v_add_u32 v3, 0x10000, v{vL16}
          v_mov_b32 v1, 0
          s_mov_b32 m0, s71
          WAITVM k0 L
          s_barrier""")
    o += [f"ds_read_b128 a[{144+4*f}:{147+4*f}], v2 offset:{f*1024}" for f in range(8)]
    o += [f"buffer_load_dwordx4 v{vL16}, {srd(SA)}, s70 offen offset:{k*1024} sc1 lds ;@tag=kvA" for k in range(2)]
    return o

def att_scalars():
    return L(f"""s_and_b32 s70, s{sW}, 1
          s_lshr_b32 s{t1_}, s{sW}, 1
          s_lshl3_add_u32 s71, s{t1_}, s70
          s_add_u32 s71, s71, 4
          s_lshl_b32 s71, s71, 13
          s_lshl_b32 s70, s70, 14
          s_mul_i32 s{t1_}, s{t1_}, 24576
          s_sub_u32 s70, s70, s{t1_}
          s_add_u32 s70, s70, 65536""")

def att_first_dmas(sLX):
    d = []
    for k in range(8):
        sal = []
        if k == 0: sal = [f"s_mov_b32 m0, s{sLX}", f"s_lshl_b32 s{sT}, s{sW}, 14"]
        if k == 4: sal = [f"s_add_u32 m0, s{sLX}, 4096", f"s_add_u32 s{sT}, s{sT}, 4096"]
        d.append((sal, f"buffer_load_dwordx4 v{vL16}, {srd(SA)}, s{sT} offen offset:{(k&3)*1024} sc1 lds ;@tag=k0"))
    for k in range(4):
        sal = []
        if k == 0: sal = [f"s_lshr_b32 s{sT}, s{sLX}, 1", f"s_add_u32 m0, s{sT}, {65536 + 16384}", f"s_and_b32 s71, s{sT}, 8192",
                          f"s_add_u32 s{sT}, s{sT}, s71", f"s_add_u32 s{sT}, s{sT}, 8192"]
        d.append((sal, f"buffer_load_dwordx4 v{vL16}, {srd(SA)}, s{sT} offen offset:{k*1024} sc1 lds ;@tag=v0"))
    return d

def local_attention(g):
    q = []
    def e(s): q.extend(L(s))
    def pk(d, a, b): return f"v_cvt_pk_bf16_f32 {d}, {a}, {b}"
    mO, mP, mP0 = HK, HV, R("v", 20)
    qp = []
    for t in range(4):
        for rb in range(4):
            if (t, rb) in g.qdone: continue
            a, b = aq(2*t, rb), aq(2*t+1, rb)
            for r in (a, b): qp += [f"v_pk_mul_f32 {r[0:2]}, {r[0:2]}, s[{t2_}:{t3_}]", f"v_pk_mul_f32 {r[2:4]}, {r[2:4]}, s[{t2_}:{t3_}]"]
            qp += [pk(a[0], a[0], a[1]), pk(a[1], a[2], a[3]), pk(a[2], b[0], b[1]), pk(a[3], b[2], b[3])]
    assert all((0, rb) in g.qdone for rb in range(4))
    def fill(n):
        assert len(qp) >= n
        q.extend(qp[:n]); del qp[:n]
    def Sp(rb): return bt(0, 1, rb)
    def So(rb): return bt(1, 1, rb)
    mx, mc = aq(1, 2), aq(1, 1); rbs = (1, 3, 0, 2)
    for rb in rbs: e(mfma(So(rb), bt(1, 0, rb), bt(0, 0, rb), mO))
    for rb in rbs: e(mfma(Sp(rb), KP(rb), bt(0, 0, rb), mP0 if rb == 0 else mP))
    for k in range(8): e(f"v_accvgpr_read_b32 v{vG+k}, a{64+k}")
    for rb in rbs:
        a, b = Sp(rb), So(rb)
        e(f"v_max3_f32 {mx[rb]}, {b[0]}, {b[1]}, {b[2]}\nv_max3_f32 {mx[rb]}, {mx[rb]}, {b[3]}, {a[0]}")
        e(f"v_max3_f32 {mx[rb]}, {mx[rb]}, {a[1]}, {a[2]}\nv_max_f32 {mx[rb]}, {mx[rb]}, {a[3]}")
    for op in ("v_permlane16_swap_b32", "v_permlane32_swap_b32"):
        for rb in rbs: e(f"v_mov_b32 {mc[rb]}, {mx[rb]}")
        for rb in rbs: e(f"{op} {mc[rb]}, {mx[rb]}")
        for rb in rbs: e(f"v_max_f32 {mx[rb]}, {mx[rb]}, {mc[rb]}")
    for rb in rbs: e(f"v_mul_f32 {mx[rb]}, s{t0_}, {mx[rb]}")
    for rb in rbs:
        a, b = Sp(rb), So(rb)
        for r in (a, b):
            for k in range(4): e(f"v_fma_f32 {r[k]}, {r[k]}, s{t0_}, -{mx[rb]}")
        for r in (a, b):
            for k in range(4): e(f"v_exp_f32 {r[k]}, {r[k]}")
        q.extend([pk(a[0], a[0], a[1]), pk(a[1], a[2], a[3]), pk(a[2], b[0], b[1]), pk(a[3], b[2], b[3])])
        fill(2)
        e(mfma(So(rb), ONES, Sp(rb), 0))
        for db in range(2): e(mfma(bt(db, 0, rb), bt(2, db, rb), Sp(rb), 0))
    fill(len(qp))
    if OPT.get("probe"): q.extend(stamp(29))
    for rb in rbs: e(f"v_rcp_f32 {mx[rb]}, {So(rb)[0]}")
    for rb in rbs: e(f"v_mul_f32 {mx[rb]}, {mx[rb]}, v{vG+2*rb+1}")
    for n_, rb in enumerate((0, 2, 1, 3)):
        a, b = bt(0, 0, rb), bt(1, 0, rb)
        pr = R("v", mx.b + (rb & 2), 2); sel = "op_sel_hi:[1,0]" if rb % 2 == 0 else "op_sel:[0,1]"
        for r in (a, b):
            for k in (0, 2): e(f"v_pk_mul_f32 {r[k:k+2]}, {r[k:k+2]}, {pr} {sel}")
        q.extend([pk(a[0], a[0], a[1]), pk(a[1], a[2], a[3]), pk(a[2], b[0], b[1]), pk(a[3], b[2], b[3])])
        if rb & 1: e(f"s_add_u32 s{sT + (rb>>1)}, s{sT + (rb>>1)}, 4096")
        e(f"buffer_store_dwordx4 {a}, v{vL16}, {srd(SD)}, s{sT + (rb>>1)} offen {ST} ;@tag=ob")
        if n_ == 0: q.extend(att_head())
    g.emit(q, name="local")

sR5, sKh, sCtx, sWo5, sL5, sCol, sSig, sWt = 82, 83, 84, 85, 86, 87, 79, 80
vG5, vC5 = 12, 14
def p5_ctx(sl, rb, s):
    f, b = (("a", 208), ("v", 152), ("a", 0), ("a", 32), ("a", 64))[sl]
    return R(f, b + 8*rb + 4*s)
def p5_lds(sl): return (131072, 32768, 65536, 98304, 0)[sl]
def p5_wdma(sl, rel, sr=SB):
    rot = OPT.get("rot", 1) and sr == SC
    return [([f"s_xor_b32 m0, s76, {p5_lds(sl) + i*1024}", f"s_xor_b32 s{sT}, s{sWo5}, {rel*262144 + i*8192}"] if rot else
             [f"s_add_u32 m0, s{sL5}, {p5_lds(sl) + i*1024}", f"s_add_u32 s{sT}, s{sWo5}, {rel*262144 + i*8192}"],
             f"buffer_load_dwordx4 v{vG5 + (i&1)}, {srd(sr)}, s{sT} offen lds ;@tag=w5_{sl}") for i in range(8)]
def p5_cld(sl, rel, xr=False):
    o = []
    for s in range(2):
        for rb in range(4):
            o.append(([f"{'s_xor_b32' if xr else 's_add_u32'} s{sT2}, s{sCtx}, {rel*32768 + s*8192}"] if rb == 0 else [],
                      f"buffer_load_dwordx4 {p5_ctx(sl, rb, s)}, v{vC5 + (rb>>1)}, {srd(SD)}, s{sT2} offen offset:{(rb&1)*1024} sc1"))
    return o
def NB0(): return OPT.get("nb0", 5)
def p5_setup():
    CI = OPT.get("ci", 0)
    return L(f"""s_and_b32 s{t0_}, s2, 7
          s_lshr_b32 s{t1_}, s2, 3
          s_and_b32 s{sKh}, s{t0_}, 1
          s_and_b32 s{t2_}, s{t0_}, 2
          {f"s_and_b32 s{t3_}, s{t1_}, 7" if not OPT.get("rm", 0) else f"s_lshr_b32 s{t3_}, s{t1_}, 2"}
          s_lshl2_add_u32 s{sR5}, s{t2_}, s{t3_}
          s_and_b32 s{t2_}, s{t0_}, 4
          {f"s_lshr_b32 s{t3_}, s{t1_}, 3" if not OPT.get("rm", 0) else f"s_and_b32 s{t3_}, s{t1_}, 3"}
          s_xor_b32 s{t3_}, s{t3_}, {OPT.get("rm", 0)}
          s_add_u32 s{sCol}, s{t2_}, s{t3_}
          s_lshl_b32 s{sCol}, s{sCol}, 8
          s_lshl_b32 s{sL5}, s{sW}, 13
          s_lshl_b32 s{sWo5}, s{sW}, 16
          s_add_u32 s{sWo5}, s{sWo5}, s{sCol}
          {f"s_xor_b32 s{t2_}, s{t3_}, 1" if OPT.get("x_c3") else ""}
          {f"s_min_u32 s{t2_}, s{t2_}, 1" if OPT.get("x_c3") else ""}
          {f"s_xor_b32 s{t2_}, s{t2_}, 1" if OPT.get("x_c3") else ""}
          {f"s_mul_i32 s{t2_}, s{t2_}, 0x500" if OPT.get("x_c3") else ""}
          {f"s_xor_b32 s{sWo5}, s{sWo5}, s{t2_}" if OPT.get("x_c3") else ""}
          s_mul_i32 s{t0_}, s{sKh}, {NB0()*262144}
          s_add_u32 s{sWo5}, s{sWo5}, s{t0_}
          s_mul_i32 s{sCtx}, s{sR5}, {160*8192}
          s_and_b32 s{t0_}, s{sW}, 1
          s_lshl_b32 s{t0_}, s{t0_}, 14
          s_add_u32 s{sCtx}, s{sCtx}, s{t0_}
          s_mul_i32 s{t0_}, s{sKh}, {NB0()*32768}
          s_add_u32 s{sCtx}, s{sCtx}, s{t0_}
          s_add_u32 s{sCtx}, s{sCtx}, {WS_CTX + 128*8192}
          s_sub_u32 s{t0_}, 15, s{sR5}
          s_min_u32 s{t0_}, s{t0_}, s{sR5}
          s_lshl1_add_u32 s{t0_}, s{t0_}, s{sKh}
          s_lshl_b32 s{sWt}, s{t0_}, 8
          s_add_u32 s{sWt}, s{sWt}, {32*256}
          s_and_b32 s81, s{sW}, 1
          s_lshl_b32 s81, s81, 7
          s_add_u32 s81, s81, s{sKh}
          s_lshl_b32 s81, s81, 7
          s_add_u32 s81, s81, 98304
          s_lshl_b32 s{t0_}, s{sW}, 11
          v_lshrrev_b32 v{vC5}, 4, v0
          v_bfe_u32 v{vG5}, v0, 1, 3
          v_xor_b32 v{vG5}, v{vG5}, v{vC5}
          v_lshlrev_b32 v{vG5}, 5, v{vG5}
          v_lshl_add_u32 v{vG5}, v{vC5}, 11, v{vG5}
          v_and_b32 v{vC5}, 1, v0
          v_lshl_add_u32 v{vG5}, v{vC5}, 4, v{vG5}
          v_xor_b32 v{vG5+1}, {512 if CI else 128}, v{vG5}
          v_lshrrev_b32 v{vC5}, 4, v0
          v_bfe_u32 v18, v0, 2, 2
          v_lshl_add_u32 v{vC5}, v{vC5}, 2, v18
          v_and_b32 v18, 3, v0
          v_lshlrev_b32 v18, 3, v18
          v_lshl_add_u32 v18, v{vC5}, 8, v18
          v_and_b32 v{vC5}, 7, v{vC5}
          v_lshl_add_u32 v18, v{vC5}, 5, v18
          v_xor_b32 v18, s81, v18
          v_add_u32 v{vC5}, s{t0_}, v{vL16}
          v_xor_b32 v{vC5+1}, 0x800, v{vC5}""")

def attention(g):
    p = g.p
    RA = 8
    vDK, vDV, vNI, vBad = 2, 3, 17, 1
    sSrc, sM0, sCnt, sFB, sLX, sCb = 70, 71, 72, 73, 76, 74
    def Q(qb, t): return R("v", vQ + 16*qb + 4*t)
    def S_(kb, qb): return R("v", 88 + 16*qb + 4*kb)
    def Pp(b, u, qb): return R("v", 152 + 32*(qb >> 1) + 16*b + 8*(qb & 1) + 4*u)
    def NM(qb): return R("v", 216 + 4*qb)
    def O(db, qb): return R("a", 32*qb + 4*db)
    def Lr(qb): return R("a", 128 + 4*qb)
    def F(f): return R("a", 144 + 4*(f & 15))
    mx, mc, mt, TMP = 20, 248, 252, (232, 240)
    lab = {k: "L_" + k for k in ("F1", "D", "DD", "T", "T1", "S", "SD", "TAIL")}
    def rdK(f, i): return f"ds_read_b128 {F(f)}, v{vDK} offset:{i*16384 + f*1024}"
    def rdV(f, i): return f"ds_read_b128 {F(f)}, v{vDV} offset:{i*16384 + (f & 1)*8192 + (f >> 1)*1024}"
    def dma(k, tag):
        sal = []
        if k == 0: sal = [f"s_mov_b32 m0, s{sM0}"]
        if k == 4: sal = [f"s_add_u32 m0, s{sM0}, 4096", f"s_add_u32 s{sT}, s{sSrc}, 4096"]
        return sal, f"buffer_load_dwordx4 v{vL16}, {srd(SA)}, s{sSrc if k < 4 else sT} offen offset:{(k&3)*1024} sc1 lds ;@tag={tag}"
    def act(st, i, base):
        if st == "full" or (st == "diag" and i == 0): return [base, base + 1]
        if st == "diag": return [base + 1]
        return []
    def acts(sts, i): return act(sts[0], i, 0) + act(sts[1], i, 2)
    def masked(sts, i):
        for b, st in enumerate(sts):
            if st == "diag": return 2*b + i
        return None
    SM = OPT.get("sm", 1)
    def rowsum(qb, b, zero=False):
        if SM: return [f"v_smfmac_f32_16x16x64_bf16 {Lr(qb)}, {ONES2}, {R('v', Pp(b, 0, qb).b, 8)}, v{vIDX}"]
        return [mfma(Lr(qb), ONES, Pp(b, u, qb), 0 if (zero and u == 0) else None) for u in range(2)]
    def epi_head(qb):
        return [f"v_accvgpr_read_b32 v{mx+qb}, {Lr(qb)[0]}"] + ([f"v_accvgpr_read_b32 v{mc}, {Lr(qb)[1]}", f"v_add_f32 v{mx+qb}, v{mx+qb}, v{mc}"] if SM else []) + [f"v_max_f32 v{vBad}, v{vBad}, v{mx+qb}", f"v_rcp_f32 v{mx+qb}, v{mx+qb}"]
    def epi_frag(qb, t, pkm=False):
        o = []; tmp = R("v", TMP[t & 1], 8)
        for r in range(8): o.append(f"v_accvgpr_read_b32 {tmp[r]}, {O(2*t + (r >> 2), qb)[r & 3]}")
        if t == 0: o.append(f"v_mul_f32 v{mx+qb}, v{mx+qb}, v{vG+2*qb}")
        if pkm:
            sel = "op_sel_hi:[1,0]" if qb % 2 == 0 else "op_sel:[0,1]"
            for r in range(4): o.append(f"v_pk_mul_f32 {tmp[2*r:2*r+2]}, {tmp[2*r:2*r+2]}, v[{mx+(qb&2)}:{mx+(qb&2)+1}] {sel}")
        else:
            for r in range(8): o.append(f"v_mul_f32 {tmp[r]}, {tmp[r]}, v{mx+qb}")
        for r in range(4): o.append(f"v_cvt_pk_bf16_f32 {tmp[r]}, {tmp[2*r]}, {tmp[2*r+1]}")
        o.append(f"s_add_u32 s77, s{sCb + (qb>>1)}, {t*8192 + (qb&1)*4096}")
        o.append(f"buffer_store_dwordx4 {tmp[0:4]}, v{vL16}, {srd(SD)}, s77 offen {ST} ;@tag=ctx")
        return o
    def xmax():
        o = []
        for op in ("v_permlane16_swap_b32", "v_permlane32_swap_b32"):
            o += [f"v_mov_b32 v{mc+qb}, v{mx+qb}" for qb in range(4)]
            o += [f"{op} v{mc+qb}, v{mx+qb}" for qb in range(4)]
            o += [f"v_max_f32 v{mx+qb}, v{mx+qb}, v{mc+qb}" for qb in range(4)]
        return o

    def group(cur, prev, first=False, lastg=False, hook=None, name=None, extra=None):
        mf = []; rs = []
        for i in range(2):
            qk = acts(cur, i); pv = acts(cur, 0) if i == 1 else acts(prev, 1); mq = masked(cur, i)
            r = dict(g0=len(mf), qk=qk, pv=pv, mq=mq, tiles=[], fu=[None]*32, lu=[None]*32)
            k = 0
            for kb in range(4):
                qs = [qk[x] for x in snake(len(qk), kb)]
                if mq is not None and kb == 0: qs = [x for x in qs if x != mq] + [mq]
                for qb in qs:
                    st = len(mf)
                    for q_, t in enumerate(snake(4, k)):
                        c = None
                        if q_ == 0 and qb != mq: c = 0 if (first and i == 0 and kb == 0) else NM(qb)
                        f = 4*kb + t
                        if r["fu"][f] is None: r["fu"][f] = len(mf)
                        r["lu"][f] = len(mf)
                        mf.append(mfma(S_(kb, qb), F(f), Q(qb, t), c))
                    k += 1
                    r["tiles"].append((kb, qb, st, len(mf) - 1))
            r["pv0"] = len(mf); k = 0; r["od"] = {}
            for qb in pv:
                mf += rowsum(qb, i ^ 1, first)
                r["od"][("l", qb)] = len(mf) - 1
            for db in range(8):
                for qb in [pv[x] for x in snake(len(pv), db)]:
                    for q_, u in enumerate(snake(2, k)):
                        f = 16 + 2*db + u
                        if r["fu"][f] is None: r["fu"][f] = len(mf)
                        r["lu"][f] = len(mf)
                        mf.append(mfma(O(db, qb), F(f), Pp(i ^ 1, u, qb), 0 if (first and q_ == 0) else None))
                    k += 1; r["od"][(db, qb)] = len(mf) - 1
            r["end"] = len(mf); rs.append(r)
        N = len(mf); S = Sched(mf)
        head = []
        for i, r in enumerate(rs):
            g0, n = r["g0"], r["end"] - r["g0"]; nq, npv = len(r["qk"]), len(r["pv"])
            single = (nq, npv) == (2, 2)
            knext = not (lastg and i == 1)
            if single:
                dg = [0, 0, 1, 3, 3, 4, 6, 6, 12, 14, 16, 18, 22, 24, 24, 26, 30, 32, 32, 34, 38, 40, 42, 46, 50, 52, 54, 58, 60, 62, 66, 67]
                mg = [2, 5, 20, 28, 36, 44, None, 56, 64]; bg = 48
                eg = [7, 8, 9, 10, 11] + [13 + 2*x for x in range(27)]
                cg = [12, 14, 16] + [4*x + 6 for x in range(3, 16)]
                if SM:
                    dg = [0, 0, 2, 2, 4, 4, 6, 6, 12, 14, 16, 18, 22, 24, 24, 26, 28, 30, 32, 33, 37, 39, 41, 45, 49, 51, 51, 53, 57, 59, 61, 65]
                    mg = [1, 3, 5, 20, 28, 43, None, 55, 63]; bg = 47
                    eg = [7, 8, 9, 10, 11] + [13 + 2*x for x in range(10)] + [34, 35, 36] + [38 + 2*x for x in range(14)]
                    cg = [12, 14, 16, 18, 22, 26, 30, 37, 39] + [41 + 4*x for x in range(7)]
            else:
                bg = n - max(int(n * 0.27), 12)
                if npv == 0: bg = n - 18
                dg = None
                mg = [2 + (q_ * (bg - 4)) // 6 for q_ in range(6)] + [None] + [bg + 4, bg + 4 + (n - bg - 4) // 2]
            for d in range(32):
                f = d + RA
                if d == 32 - RA:
                    wt = ("kvB" if i == 0 else "kvA") + (",v0,ob" if first else "")
                    S.add("X", [f"WAITVM {wt}", "s_barrier"], g0 + bg, g0 + bg, chain="rd")
                if f < 16:
                    txt = rdK(f, i); fu = r["fu"][f]; free = g0
                elif f < 32:
                    if npv == 0: continue
                    txt = rdV(f - 16, i); fu = r["fu"][f]; free = r["lu"][f - 16]
                else:
                    f -= 32
                    if knext: txt = rdK(f, i ^ 1)
                    else: txt = rdV(f, 0)
                    fu = r["end"] + 4 + f; free = r["lu"][16 + f] if npv else r["lu"][f]
                if dg: lo = hi = g0 + dg[d]; assert lo >= free and lo <= fu - 6, (d, lo, free, fu)
                else:
                    if d < 32 - RA: hi = min(fu - 8, g0 + bg - 1); lo = min(max(free, g0 + (d * bg) // 24 - 6), hi)
                    else: hi = min(r["end"] - 1, fu - 10 + (f >> 2) * 4); lo = min(max(free, g0 + bg + 1), hi)
                    hi = max(hi, free); lo = max(lo, free)
                it = S.add("D", txt, lo, hi, chain="rd"); it["dd"] = first or lastg
                if not dg: it["early"] = free if d < 32 - RA else lo
            tA, tB = ("kvA", "kvB") if i == 0 else ("kvB", "kvA")
            for q_, gq in enumerate(mg):
                if gq is None: continue
                k = q_ + 2 if q_ < 6 else q_ - 7
                if lastg and (i == 1 or q_ > 6): continue
                sal, dd = dma(k, tA if q_ < 6 else tB)
                if k == 0: sal = [f"s_xor_b32 s{sM0}, s{sM0}, {16384 if i == 0 else 16384 + 32768}", f"s_add_u32 s{sSrc}, s{sSrc}, 32768"] + sal
                if single:
                    sg_ = ({0: (45, 49, 53), 4: (9, 13)} if not SM else {0: (44, 46, 48), 4: (4, 2)}).get(k, ())
                    for x, s_ in zip(sg_, sal): S.add("S", s_, g0 + x, g0 + x, chain="m" if x != 2 else None)
                    S.add("M", dd, g0 + gq, g0 + gq, chain="m")
                else:
                    S.add("M", dd, g0 + gq, min(g0 + gq + 3, (g0 + bg - 1) if q_ < 6 else r["end"] - 1), chain="m", pre=sal, sep=3)
                    if extra and extra[0] == i and k in (3, 7):
                        for sal2, d2 in extra[1][(k >> 2)*4:(k >> 2)*4 + 4]: S.add("M", d2, g0 + gq, chain="m", pre=sal2, sep=3)
            if i == 1:
                lastK = g0 + (dg[15 - RA] if dg else r["fu"][15] - g0 - 8)
                S.add("A", f"v_xor_b32 v{vDK}, 0x8000, v{vDK}", max(lastK + 1, g0), g0 + bg - 1)
                if knext: S.add("A", f"v_xor_b32 v{vDV}, 0x8000, v{vDV}", g0 + bg + 1, N - 1)
                else: S.chains["rd"][[x["kind"] for x in S.chains["rd"]].index("X", len(S.chains["rd"]) - RA - 1)]["text"].append(f"v_xor_b32 v{vDV}, 0x8000, v{vDV}")
            nt = len(r["tiles"]); e = 0
            nxt = {(kb, qb): st for kb, qb, st, _ in rs[1]["tiles"]} if i == 0 else {}
            span0 = g0 + 8; span1 = r["end"] - 2
            if first and i == 0: span0 = g0 + 4*nq; span1 = r["end"] + 40
            if first and i == 1: span0 = g0 + 40
            for x, (kb, qb, st, en) in enumerate(r["tiles"]):
                s = S_(kb, qb); ch = ("sm", kb, qb); pdst = Pp(i, kb >> 1, qb)
                lim = nxt[(kb, qb)] - (7 if rs[1]["mq"] == qb else 1) if (kb, qb) in nxt else N - 1
                if not first: lim = min(lim, r["end"] - 1)
                if i == 0 and qb in rs[1]["pv"]: lim = min(lim, rs[1]["pv0"] - 3)
                if qb == r["mq"]:
                    src = "0" if (first and i == 0 and kb == 0) else str(NM(qb)[0])
                    for r_ in range(4):
                        c = f"v_cndmask_b32 {s[r_]}, {src}, v{vNI}, {msk(4*kb + r_)}"
                        if st - 3 < 0: head.append(c)
                        else: S.add("A", c, (g0 + 4*nq) if (first and i == 0 and kb > 0) else (0 if i == 0 else max(g0 - 20, 0)), st - 3, chain=ch)
                lo = en + 7
                if first and i == 0 and kb == 0:
                    lo = g0 + 4*nq
                    for r_ in range(4): S.add("A", f"v_add_f32 {s[r_]}, {s[r_]}, {NM(qb)[0]}", lo, lim - 4, chain=ch)
                for r_ in range(4):
                    pace_ = span0 + ((e + 1) * (span1 - span0)) // (4 * nt)
                    elo, ehi, clo, chi = min(lo, lim - 1), min(max(pace_, lo), lim - 1), min(lo, lim), min(lim, max(pace_, lo) + 8)
                    if single: elo = ehi = g0 + eg[e]; clo = chi = g0 + cg[e >> 1]
                    e += 1
                    S.add("E", f"v_exp_f32 {s[r_]}, {s[r_]}", elo, ehi, chain=ch)
                    if r_ & 1:
                        it = S.add("A", f"v_cvt_pk_bf16_f32 {pdst[2*(kb & 1) + (r_ >> 1)]}, {s[r_-1]}, {s[r_]}", clo, chi, chain=("cv", i, kb, qb, r_), sep=1)
                        it["after"] = S.chains[ch][-1]; it["soft"] = True
                        if r_ == 3: r.setdefault("lastcv", {})[(kb, qb)] = [it, S.chains[("cv", i, kb, qb, 1)][0]]
            if first and i == 0 and SM:
                for qb in range(4):
                    for r_ in range(4): S.add("A", f"v_accvgpr_write_b32 {Lr(qb)[r_]}, 0", 0, rs[1]["pv0"] - 3)
            if first and i == 0:
                blk = ["s_nop 1"]
                for qb in [x[1] for x in r["tiles"][:4]]:
                    a = S_(0, qb); blk += [f"v_max3_f32 v{mx+qb}, {a[0]}, {a[1]}, {a[2]}", f"v_max_f32 v{mx+qb}, v{mx+qb}, {a[3]}"]
                blk += xmax() + [f"s_cmp_eq_u32 s{sFB}, 0", "s_cselect_b64 vcc, 0, -1"]
                blk += [f"v_cndmask_b32 v{mx+qb}, v{mx+qb}, v{mt+qb}, vcc" for qb in range(4)]
                for qb in (3, 2, 1, 0): blk += [f"v_sub_f32 {NM(qb)[r_]}, 0, v{mx+qb}" for r_ in range(4)]
                S.add("X", blk, g0 + 4*nq - 1, g0 + 4*nq - 1)
        if rs[1]["mq"] is not None:
            for kb in range(4):
                key = (kb, rs[1]["mq"]); its = S.chains[("sm",) + key]
                k0 = [x for x in its if "cndmask" in x["text"][0]][-4]
                k0["after"] = rs[0]["lastcv"][key]
        if hook: hook(S, rs)
        return head + (["s_nop 0"] if head else []) + S.run(name)

    FULL2, LD, TR, TD, NONE = ("full", "full"), ("diag", "full"), ("off", "full"), ("off", "diag"), ("off", "off")
    def add_cpf(S, lo, hi, exprs):
        if OPT.get("nocpf"): return
        if OPT.get("pg", 1): exprs = [e_ for e_ in exprs if e_.startswith("L_T1")][:OPT.get("vf", 0)]
        for e_ in exprs:
            pre, d = cpf(e_); S.add("M", d, lo, hi, chain="cpf", pre=pre, sep=3 if lo >= 0 else 0)
    def hook_first(S, rs):
        lo = rs[1]["g0"] + 40; N = rs[1]["end"]
        pre, d = signal(SF, f"s{t1_}", 0, "ob")
        for c in [pre[0], pre[1].replace("v1,", "v19,")] + L(f"""s_lshr_b32 s{t1_}, s{sH}, 4
              s_lshl1_add_u32 s{t1_}, s{sJ}, s{t1_}
              s_lshl_b32 s{sSig}, s{t1_}, 8
              s_add_u32 s{sSig}, s{sSig}, {32*256}
              s_add_u32 s{t3_}, s{sH}, {32 - 4*NB0()}
              s_lshr_b32 s{t3_}, s{t3_}, 5
              s_lshl1_add_u32 s{t3_}, s{sJ}, s{t3_}
              s_lshl_b32 s{t3_}, s{t3_}, 8
              s_add_u32 s{t3_}, s{t3_}, {32*256}
              s_lshl_b32 s{t1_}, s{sFB}, 16
              s_xor_b32 s{t2_}, s{sWt}, 256
              s_add_u32 s{t2_}, s{t2_}, s{t1_}
              s_add_u32 s{t1_}, s{t1_}, s{t3_}"""): S.add(kind(c), c, lo, chain="sig", sep=1)
        d = d.replace("v1,", "v19,"); ol = one_lane(d); ol.insert(2, d.replace(f"s{t1_} offen", f"s{t2_} offen"))
        S.add("X", ol, lo, N - 2, chain="sig", sep=1)
        S.add("A", "v_mul_u32_u24 v19, 52, v0", lo, N - 1, chain="sig", sep=1)
        if rs[1]["mq"] is None: add_cpf(S, lo, N - 1, [f"{lab['D']}-L_pc+{4096*k}" for k in range(3)])
        else: add_cpf(S, lo, N - 1, [f"{lab['T']}-L_pc+{4096*k}" for k in range(2)])
    def add_epi(S, r, qb, ts, hi, head=False):
        def put(cs_, lo):
            for c in cs_: S.add("M" if c.startswith("buffer") else kind(c), c, min(lo, hi), hi, chain="epi")
        if head: put(epi_head(qb), r["od"][("l", qb)] + 8)
        for t in ts: put(epi_frag(qb, t), r["od"][(2*t + 1, qb)] + 8 if r else 8)
    def hook_dd(S, rs):
        add_cpf(S, 2, rs[1]["end"] - 1, [f"{lab['T']}-L_pc", f"{lab['T']}-L_pc+4096", f"{lab['T1']}-L_pc", f"{lab['T1']}-L_pc+4096"])
    def hook_e0(S, rs): add_epi(S, rs[1], 0, (0, 1, 2), rs[1]["end"], True)
    def hook_t(S, rs):
        add_epi(S, None, 0, (3,), rs[0]["pv0"] + 10); add_epi(S, rs[0], 1, (0, 1, 2, 3), rs[1]["g0"] + 10, True)
    def hook_last(S, rs):
        g1 = rs[1]["g0"]; N = rs[1]["end"]
        S.add("M", f"buffer_load_dword v19, off, {srd(SF)}, s{sWt} sc1", -1, -1, chain="p5")
        for c in (f"s_mul_i32 s{t3_}, s{sKh}, {8*NB0() - 32}", f"s_sub_u32 s{t3_}, {16 + 4*NB0()}, s{t3_}"): S.add("S", c, 14, g1 - 20, chain="p5")
        S.add("X", g.spin(19, SF, f"s{sWt}", 0, f"s{t3_}"), g1 - 16, g1 - 16, chain="p5")
        for k, (sal, d) in enumerate(p5_cld(0, 0) + p5_cld(1, 1)): S.add("M", d, g1 - 14 if k < 8 else g1, N - 1, chain="p5", pre=sal, sep=2)
        add_cpf(S, -1, -1, [f"{lab['TAIL']}-L_pc", f"{lab['TAIL']}-L_pc+4096", "L_p5f0-L_pc", "L_p5f0-L_pc+4096"][:OPT.get("ncp", 4)])
        add_epi(S, rs[1], 2, (0,), N, True)
    def both(*hs):
        def h(S, rs):
            for x in hs: x(S, rs)
        return h
    def first_group(cur, name, hook, extra=None):
        seq = []
        return seq + group(cur, NONE, first=True, hook=hook, name=name, extra=extra)

    START = p.new("attstart")
    q = [f"v_mov_b32 v{vNI}, 0xff800000"]
    if SM: q += [f"v_and_b32 v{vIDX}, 1, v0", f"v_mul_u32_u24 v{vIDX}, 0xaaaa, v{vIDX}", f"v_add_u32 v{vIDX}, 0x4444, v{vIDX}", f"v_lshl_or_b32 v{vIDX}, v{vIDX}, 16, v{vIDX}"]
    q += [START + ":"] + stamp(6)
    g.emit(q)
    st0 = (list(g.lg), list(g.vm))
    def setst(s): g.lg, g.vm = list(s[0]), list(s[1])
    def getst(): return (list(g.lg), list(g.vm))
    cs = ([([("a", 144 + 4*f + r) for r in range(4)], 0) for f in range(RA)], [("kvB", [])] * 8 + [("kvA", [])] * 2)
    def chk():
        a = [r for r, _ in g.lg]; b = [r for r, _ in cs[0]]
        assert a == b[len(b) - len(a):], a
    EG = 6; PG = OPT.get("pg", 1); VS = OPT.get("vs", 1)
    p(f"s_cmp_eq_u32 s{sJ}, 0\ns_cbranch_scc1 {lab['F1']}")
    g.emit(first_group(FULL2, "F0", hook_first), EG); chk()
    g.emit(stamp(12))
    p(f"s_sub_u32 s{sCnt}, s{sJ}, 1\ns_cmp_eq_u32 s{sCnt}, 0\ns_cbranch_scc1 {lab['DD']}")
    def hook_cnt(S, rs):
        N = rs[1]["end"]
        S.add("S", f"s_sub_u32 s{sCnt}, s{sCnt}, 1", N - 11 + SM, N - 11 + SM); S.add("S", f"s_cmp_lg_u32 s{sCnt}, 0", N - 7 + SM, N - 7 + SM)
        if not OPT.get("wb", 0) and not OPT.get("nopf") and N > 200:
            S.add("M", f"buffer_load_dword a{aDUM}, v19, {srd(SC)}, s81 offen ;@dummy", 5, 5, chain="wo")
            S.add("S", f"s_add_u32 s81, s81, {128*3328}", 15, 17, chain="wo")
        if N > 200: add_cpf(S, N - 30, N - 14, [f"{lab['DD']}-L_pc", f"{lab['DD']}-L_pc+4096"])
        elif OPT.get("cs", 0): add_cpf(S, 59, 59, [f"{lab['SD']}-L_pc"])
    pass; p.label(lab["D"]); setst(cs)
    g.emit(group(FULL2, FULL2, hook=hook_cnt, name="D"), EG); chk()
    p(f"s_cbranch_scc1 {lab['D']}")
    p.label(lab["DD"]); setst(cs)
    g.emit(stamp(13) + group(LD, FULL2, hook=both(hook_dd, hook_e0), name="DD", extra=(0, p5_wdma(0, 0))), EG); chk()
    p(f"s_cmp_eq_u32 s{sJ}, 7\ns_cbranch_scc1 {lab['T1']}")
    if PG and VS: p.l.append(";@stub 3 fall")
    p.label(lab["T"]); setst(cs)
    g.emit(stamp(14) + jit() + group(TR, LD, hook=hook_t, name="T") + stamp(15), EG); chk()
    p(f"s_lshl_b32 s{sCnt}, s{sJ}, 1\ns_sub_u32 s{sCnt}, 13, s{sCnt}")
    pass; p.label(lab["S"]); setst(cs)
    g.emit(group(TR, TR, hook=hook_cnt, name="S"), EG); chk()
    p(f"s_cbranch_scc1 {lab['S']}")
    setst(cs); p.label(lab["SD"])
    g.emit(stamp(16) + group(TD, TR, lastg=True, hook=hook_last, name="SD"), EG, name="SD"); chk()
    ts = (cs[0], list(g.vm)); setst(ts)
    if PG and VS: p.l.append(";@stub 4 fall")
    p.label(lab["TAIL"])
    mf = rowsum(3, 1)
    for db in range(8): mf += [mfma(O(db, 3), F(2*db + u), Pp(1, u, 3)) for u in snake(2, db)]
    S = Sched(mf)
    for f in range(8, 16): S.add("D", rdV(f, 0), -1 if f < 12 else 0, -1 if f < 12 else 1, chain="rd")["dd"] = True
    for k, (sal, d) in enumerate(p5_wdma(1, 1)): S.add("M", d, 3 - SM + 2*k, 3 - SM + 2*k, chain="p5", pre=sal)
    e1 = epi_frag(2, 1)
    for c in e1[:-2]: S.add("A", c, 2, chain="epi")
    seq = stamp(17) + jit() + S.run("tail") + e1[-2:] + stamp(7)
    seq += epi_head(3) + L(f"""s_mov_b32 s{t0_}, {f32(LTHR if not OPT.get('forcefb') else 0.0)}
          v_cmp_le_f32 vcc, s{t0_}, v{vBad}
          s_lshl_b32 s{t1_}, s{sW}, 2
          s_cmp_lg_u64 vcc, 0
          s_cselect_b32 s{t0_}, 1, 0
          v_mov_b32 v248, s{t1_}
          v_mov_b32 v249, s{t0_}
          ds_write_b32 v248, v249""")
    rest = [(2, 2), (2, 3), (3, 0), (3, 1), (3, 2), (3, 3)]; NX = OPT.get("nx", 6)
    NL = OPT.get("nl", 2); g.late = []
    for k, (qb, t) in enumerate(rest[:NX]):
        if k < NX - NL: seq += epi_frag(qb, t, True)
        else: g.late += epi_frag(qb, t, True)
    g.epi = [epi_frag(qb, t) for qb, t in rest[NX:]]
    FB = p.new("fallback")
    seq += L(f"""v_mov_b32 v248, 0
          s_waitcnt lgkmcnt(0)
          s_barrier
          ds_read_b128 v[248:251], v248""") + stamp(8)
    g.emit(seq)
    g.fbcheck = L(f"""v_or3_b32 v248, v248, v249, v250
          v_or_b32 v248, v248, v251
          s_nop 0
          v_readfirstlane_b32 s{t0_}, v248 ;@val=0
          s_nop 0
          s_cmp_gt_u32 s{t0_}, s{sFB}
          s_cbranch_scc1 {FB} ;@br=fb""")
    es = getst()
    main = g.p; g.p = P(); g.p.uid = main.uid + 1000
    if PG: g.p.l += [";@batch 3", ";@stub 3"] if VS else [";@batch -1"]
    g.p.label(lab["F1"]); setst(st0)
    g.emit(first_group(LD, "F1", both(hook_first, hook_e0), (1, p5_wdma(0, 0))) + stamp(12) + stamp(13), EG); chk()
    g.p(f"s_branch {lab['T']}")
    if PG and VS: g.p.l += [";@batch 4", ";@stub 4"]
    g.p.label(lab["T1"]); setst(cs)
    g.emit(stamp(14) + stamp(15) + stamp(16) + group(TD, LD, lastg=True, hook=both(hook_t, hook_last), name="T1"), EG); chk()
    def sig_(vm): return [(t, tuple(r)) for t, r in vm if (t and t.startswith("w5")) or r]
    assert sig_(g.vm) == sig_(ts[1])[len(sig_(ts[1])) - len(sig_(g.vm)):], (sig_(g.vm), sig_(ts[1]))
    g.p(f"s_branch {lab['TAIL']}")
    if PG: g.p.l += [";@batch -1"]
    g.p.label(FB); setst(([], []))
    sU = 81
    q = L(f"""s_waitcnt vmcnt(0) lgkmcnt(0)
          s_barrier
          s_mov_b32 s{sFB}, 1
          s_mov_b32 s{sU}, 0
          v_and_b32 v232, 15, v0
          v_lshrrev_b32 v233, 4, v0
          v_lshlrev_b32 v233, 2, v233
          v_sub_u32 v232, v232, v233
          s_lshl_b32 s{t0_}, s{sW}, 4
          v_add_u32 v232, s{t0_}, v232
          s_lshl_b32 s{t0_}, s{sBHi}, 7
          v_add_u32 v234, s{t0_}, v232
          s_lshl_b32 s{t0_}, s{sJ}, 7
          v_add_u32 v232, s{t0_}, v232
          v_add_u32 v233, 64, v232
          v_add_u32 v235, 64, v234""")
    for sal, d in att_first_dmas(sLX): q += sal + ["s_nop 0", d]
    for qb in range(4): q.append(f"v_mov_b32 v{mx+qb}, 0xff800000")
    FL = g.p.new("fbl"); q.append(FL + ":")
    for f in range(8):
        if f == 4: q.append(f"s_add_u32 s{sT}, s{sU}, 4096")
        q.append(f"buffer_load_dwordx4 {F(f)}, v{vL16}, {srd(SA)}, s{sU if f < 4 else sT} offen offset:{(f&3)*1024} sc1")
    for qb in range(4):
        for kb in range(2):
            for r in range(4):
                c = S_(kb, qb)[r]
                q += [f"v_subrev_u32 {c}, {16*kb + r}, v{232+qb}", f"v_ashrrev_i32 {c}, 31, {c}", f"v_and_b32 {c}, 0xff800000, {c}"]
        q.append(f"v_subrev_u32 v{232+qb}, 32, v{232+qb}")
    q.append("s_waitcnt vmcnt(0)")
    for f in range(8):
        for qb in range(4): q.append(mfma(S_(f >> 2, qb), F(f), Q(qb, f & 3)))
    q.append("s_nop 7")
    for qb in range(4):
        for kb in range(2):
            a = S_(kb, qb)
            q += [f"v_max3_f32 v{mx+qb}, v{mx+qb}, {a[0]}, {a[1]}", f"v_max3_f32 v{mx+qb}, v{mx+qb}, {a[2]}, {a[3]}"]
    q += L(f"s_add_u32 s{sU}, s{sU}, 16384\ns_cmp_lt_u32 s{sU}, s{SA+2}\ns_cbranch_scc1 {FL}")
    q += xmax()
    q += [f"v_mov_b32 v{mt+qb}, v{mx+qb}" for qb in range(4)] + att_scalars() + att_head() + ["s_waitcnt vmcnt(0) lgkmcnt(0)"]
    q.append(f"s_branch {START}")
    g.emit(q)
    g.ool += g.p.l; main.uid = g.p.uid + 1000; g.p = main
    setst(es)

def phase5(g):
    p = g.p
    vD = 184
    sCnt = 70
    CO = [4, 5, 6, 7, 0, 1, 2, 3]
    def acc(rb, cb): return R("v", 24 + 32*rb + 4*cb)
    def fw(j, s): return R("a", 144 + 8*j + 4*s)
    def wread(sl, j, slot=None):
        win, off = ((0, 32768), (1, 0), (1, 32768), (0, 0), (2, 0))[sl]
        return [f"ds_read_b64_tr_b16 {fw(j if slot is None else slot, s)[2*i:2*i+2]}, v{vD + 8*win + CO[j]} offset:{off + s*8192 + i*4096}" for s in range(2) for i in range(2)]
    NPRE = 3
    q = [f"v_xor_b32 v{vD+n}, {32*n}, v18" for n in CO[:NPRE]]
    for j in range(NPRE): q += wread(0, j)
    q += [f"v_xor_b32 v{vD+n}, {32*n}, v18" for n in CO[NPRE:]] + g.late + g.fbcheck
    g.emit(q)
    BP = OPT.get("bp", 43)
    xs = L(f"""s_xor_b32 s{t0_}, s2, 1
          s_lshl2_add_u32 s{t0_}, s{t0_}, s{sW}
          s_lshl_b32 s73, s{t0_}, 12
          s_add_u32 s73, s73, {WS_XCH}
          s_lshl2_add_u32 s{t0_}, s2, s{sW}
          s_lshl_b32 s75, s{t0_}, 12
          s_add_u32 s75, s75, {WS_XCH}
          s_lshl_b32 s77, s{sR5}, 18
          s_lshl_b32 s{t0_}, s{sW}, 16
          s_add_u32 s77, s77, s{t0_}
          s_add_u32 s77, s77, s{sCol}
          s_lshl_b32 s{t0_}, s{sKh}, {9 if OPT.get("ci", 0) else 7}
          s_add_u32 s77, s77, s{t0_}
          v_lshlrev_b32 v1, 24, v0
          v_and_b32 v8, 7, v0
          v_lshlrev_b32 v8, 11, v8
          v_bfe_u32 v10, v0, 3, 1
          v_lshl_add_u32 v8, v10, {6 if OPT.get("fl", 1) else 14}, v8
          v_bfe_u32 v10, v0, 4, 1
          v_lshl_add_u32 v8, v10, 5, v8
          v_lshrrev_b32 v10, 5, v0
          v_lshl_add_u32 v8, v10, 4, v8
          v_add_u32 v2, s{sL5}, v{vL16}
          v_xor_b32 v3, 0x2000, v2
          v_add_u32 v4, 0x20000, v2
          v_add_u32 v5, 0x20000, v3
          v_mov_b32 v232, 0
          v_mov_b32 v233, 0
          v_mov_b32 v236, 0
          v_mov_b32 v237, 0
          v_and_b32 v9, 1, v0
          v_lshlrev_b32 v9, 4, v9
          v_mov_b32 v10, 0x3f80
          v_lshlrev_b32 v9, v9, v10
          v_lshrrev_b32 v10, 4, v0
          v_lshlrev_b32 v10, 1, v10
          v_bfe_u32 v11, v0, 1, 3
          v_xor_b32 v10, v10, v11
          v_subrev_u32 v11, 1, v10
          v_ashrrev_i32 v11, 31, v11
          v_and_b32 v234, v11, v9
          v_xor_b32 v10, 1, v10
          v_subrev_u32 v11, 1, v10
          v_ashrrev_i32 v11, 31, v11
          v_and_b32 v235, v11, v9""")
    def tmp(rb, c): return R("v", 200 + 16*rb + 4*c)
    def rx(k): return R("v", 152 + 4*k)
    ldx = [f"buffer_load_dwordx4 {rx(k)}, v{vL16}, {srd(SD)}, s75 offen offset:{k*1024} sc1" for k in range(4)]
    G2 = OPT.get("g2", 1)
    RM = OPT.get("rmj", 1); RS = OPT.get("rms", 1); XS0 = 28 - 4*OPT.get("nz", 3)
    def mfs(prs, czero, last=False):
        mf = []; dn = {}; k = 0
        tl = [(x, rb) for x, (sl, j) in enumerate(prs) for rb in snake(4, j + 1)]
        def rbm(x0): tl[4*x0:4*x0 + 16] = [(x0 + y, rb) for n_, rb in enumerate((2, 3, 0, 1)) for y in snake(4, n_)]
        if last and RM: rbm(28)
        if last and RS: rbm(XS0)
        for x, rb in tl:
            sl, j = prs[x]
            for q_, s in enumerate(snake(2, k)):
                mf.append(mfma(acc(rb, CO[j]), fw(x & 7, s), p5_ctx(sl, rb, s), 0 if (czero and x < 8 and q_ == 0) else None))
            k += 1; dn[(rb, CO[j])] = len(mf) - 1
        return mf, dn
    def pacer(S):
        def pace(items, lo, hi):
            its = []
            for k, (sal, d) in enumerate(items):
                x = lo + (k * (hi - lo)) // len(items)
                its.append(S.add("M", d, x, min(x + 2, S.n - 1), chain="ld", pre=sal, sep=2))
            return its[0]
        return pace
    def first(role):
        nb = NB0() if role == 0 else 8 - NB0()
        na4 = 4 if nb == 2 else 0
        ns = nb + na4
        sl = {3: [0, 1, 3], 4: [0, 1, 2, 3], 5: [0, 1, 2, 4, 3], 6: [0, 1, 3, 4, 2, 3]}[ns] + [0, 1, 2]
        S = Sched(mfs([(sl[st], j) for st in range(ns) for j in range(8)], True)[0]); pace = pacer(S)
        gs = 8 if G2 else 4
        def arel(k): return k - nb if (k < ns or not na4) else k - ns + gs
        def W(k): return p5_wdma(sl[k], k, SB) if k < nb else p5_wdma(sl[k], arel(k), SC)
        def C(k): return p5_cld(sl[k], k if k < nb else arel(k), k >= nb)
        sigst = OPT.get("sig%d" % role, 1)
        EG_ = OPT.get("eg%d" % role, role if nb > 2 else 0)
        swW = f"s_add_u32 s{sWo5}, s{sWo5}, {(4<<20) - NB0()*262144}"
        if nb == 2 and role: S.add("S", swW, -1, -1, chain="ld")
        for st in range(ns):
            g0 = 64 * st; B = g0 + BP; dr = sl[st + 3] == sl[st]
            for j in range(NPRE, 8):
                for r in wread(sl[st], j): S.add("T", r, max(g0 + 8*j - 30, g0), min(g0 + 8*j - 8, B - (5 if dr else 1)), chain="t")
            S.add("X", [f"WAITVM w5_{sl[st+1]}" + (",ctx" if st == sigst else "") + (" L" if dr else ""), "s_barrier"], B, B, chain="t")
            for j in range(NPRE):
                for r in wread(sl[st + 1], j): S.add("T", r, B + 1, min(g0 + 64 + 8*j - 8, g0 + 63), chain="t")
            na = 6 if (st == nb - 2 and not EG_) else 5
            gate = g.spin(19, SF, "s72", 0, 8 if G2 else 16) + [f"s_sub_u32 s{sCtx}, s{sCtx}, {128*8192 - role*(64*8192 - NB0()*32768)}", f"s_add_u32 s{sCtx}, s{sCtx}, s{t3_}"] + stamp(9) if st == nb - 1 - EG_ else None
            poll = f"buffer_load_dword v19, off, {srd(SF)}, s72 sc1"
            wr = W(2) if st == 0 else W(st + 2)[5:]
            if EG_:
                if gate: S.add("X", gate, g0, g0, chain="ld")
                pace(wr + C(st + 2), g0 + 2, B - 1)
                if st == nb - 3: S.add("M", poll, B - 1, B + 2, chain="ld")
            elif st == nb - 2:
                pace(wr, g0 + 2, g0 + 28)
                S.add("M", poll, g0 + 30, g0 + 36, chain="ld")
            elif st == nb - 1:
                S.add("X", gate, g0, g0, chain="ld")
                pace(C(nb) + W(nb + 1)[6:] + C(nb + 1), g0 + 2, B - 1)
            else: pace(wr + C(st + 2), g0 + 2, B - 1)
            if st + 3 == nb and role: S.add("S", swW, B - 1, B + 3, chain="ld")
            if st + 3 == nb and OPT.get("rot", 1):
                W8 = OPT.get("w8", 0)
                for c in (f"s_and_b32 s{t2_}, s{sR5}, {7 if W8 else 3}", f"s_lshl_b32 s{t2_}, s{t2_}, {10 if W8 else 11}", f"s_add_u32 s76, s{sL5}, s{t2_}"): S.add("S", c, g0 + 16, B - 2, chain="rot")
                if W8:
                    for c in (f"s_and_b32 s17, s{sR5}, 1", "s_lshl_b32 s17, s17, 7"): S.add("S", c, g0 + 16, B - 2, chain="rot")
                    for r_ in range(2): S.add("A", f"v_xor_b32 v{vG5+r_}, s17, v{vG5+r_}", B - 1, B + 2, chain="ld")
                for c in (f"s_lshr_b32 s{t3_}, s{sCol}, 8", f"s_lshr_b32 s{t1_}, s{sR5}, {OPT.get('srs', 1)}", f"s_xor_b32 s{t3_}, s{t3_}, s{t1_}", f"s_and_b32 s{t3_}, s{t3_}, {OPT.get('sr', 2)}",
                          f"s_lshl_b32 s{t3_}, s{t3_}, 15", f"s_add_u32 s{t2_}, s{t2_}, s{t3_}"): S.add("S", c, g0 + 16, B - 2, chain="rot")
                S.add("S", f"s_lshl3_add_u32 s{sWo5}, s{t2_}, s{sWo5}", B - 1, B + 3, chain="ld")
            pace(W(st + 3)[:na], B + 5, g0 + 64)
            if st == sigst:
                pre, d = signal(SF, "s71", 0, "ctx")
                S.add("S", pre[0], B - 12, B - 4, chain="sig"); S.add("A", pre[1], B - 12, B - 1, chain="sig", sep=1)
                S.add("X", one_lane(d), B + 1, B + 1, chain="sig")
        EH = 64*sigst + BP - OPT.get("eh", 24)
        for k, fr in enumerate(g.epi):
            for c in fr: S.add("M" if c.startswith("buffer") else kind(c), c, 0, min(60, EH) if "a6" <= c.split()[-1][:2] <= "a9" and len(c.split()[-1]) == 3 else EH, chain="epi")
        fin = [f"s_mov_b32 s{sCnt}, {2 if na4 else 3}", f"s_mov_b32 s73, {1 if not G2 else -1 if na4 else 2}"]
        if na4: fin += [f"s_add_u32 s{sWo5}, s{sWo5}, {gs*262144}", f"s_add_u32 s{sCtx}, s{sCtx}, {gs*32768}"]
        for c in fin: S.add("S", c, S.n - 6, S.n, chain="ld")
        nb = ns
        for n in range(8): S.add("A", f"v_xor_b32 v{vD+8+n}, 0x10000, v{vD+n}", 0, BP - 1)
        if nb >= 5:
            for n in range(8): S.add("A", f"v_xor_b32 v{vD+16+n}, 0x18000, v{vD+n}", 64, 128)
        for c in [f"s_and_b32 s71, s{sH}, {4 if G2 else 0}", "s_lshl_b32 s71, s71, 5", f"s_add_u32 s71, s71, s{sSig}", "s_add_u32 s71, s71, 4096", f"s_add_u32 s72, s{sWt}, 4096"]: S.add("S", c, 18, 36, chain="sc")
        if not OPT.get("nocpf") and not OPT.get("pg", 1):
            for k in range(2 if OPT.get("cl", 0) else 3):
                pre, d = cpf("L_p5loop-L_pc+%d" % (4096*k)); x = 64*(nb - 2) + 18
                S.add("M", d, x + 3*k, x + 20, chain="cpf", pre=pre, sep=3)
        return S.run("p5first%d" % role)
    def body(kd):
        prs = [(st, j) for st in range(4) for j in range(8)]
        X2 = 0; NZ = OPT.get("nz", 3); Z = 4 - NZ
        if kd == "last": prs = prs[:8*Z] + [(st, j) for h in range(2) for st in range(Z, 4) for j in range(4*h, 4*h + 4)]
        mf, dn = mfs(prs, False, kd == "last")
        S = Sched(mf); pace = pacer(S)
        for st in range(4):
            g0 = 64 * st; B = g0 + BP
            if kd == "last" and st >= Z:
                for x in range(8*st + (NPRE if st == Z else 0), 8*st + 8):
                    if prs[x][1] == 0: S.add("X", [f"WAITVM w5_{prs[x][0]}", "s_barrier"], 8*x - OPT.get("zb", 26), 8*x - OPT.get("zb", 26), chain="t")
                    x0 = x & ~3; rm_ = (RM and x0 == 28) or (RS and x0 == XS0)
                    for r in wread(prs[x][0], prs[x][1], x & 7): S.add("T", r, max(8*(x0 if rm_ else x) - 30, 64*Z), 8*x - 8 if not rm_ else 8*x0 - 8 + 2*(x - x0), chain="t")
                if st == 1: pace(p5_wdma(3, 3, SC)[5:] + p5_cld(3, 3, True), g0 + 1, g0 + OPT.get("zl", 36))
                continue
            for j in range(NPRE, 8):
                for r in wread(st, j): S.add("T", r, max(g0 + 8*j - 30, g0), min(g0 + 8*j - 8, B - 1), chain="t")
            S.add("X", [f"WAITVM w5_{(st+1)&3}", "s_barrier"], B, B, chain="t")
            for j in range(NPRE):
                for r in wread((st + 1) & 3, j): S.add("T", r, B + 1, min(g0 + 64 + 8*j - 8, g0 + 63), chain="t")
            def batch(x): return [] if (kd == "last" and x >= 4) else p5_wdma(x & 3, x & 3, SC) + p5_cld(x & 3, x & 3, True)
            if kd == "loop" and st == 2:
                if G2: S.add("X", g.spin(19, SF, "s72", 128, "s74"), g0, g0, chain="ld")
                for c in (f"s_lshl_b32 s75, s73, 17", f"s_add_u32 s{sCtx}, s{sCtx}, s75"): S.add("S", c, g0 - 20, g0 + 6, chain="ac")
            if batch(st + 2): pace(batch(st + 2)[5:], g0 + (3 if st == 2 else 1), B + OPT.get("pa", 2))
            if kd == "loop" and st == 1:
                for c in (f"s_lshl_b32 s75, s73, 20", f"s_add_u32 s{sWo5}, s{sWo5}, s75", "s_lshr_b32 s74, s73, 28", "s_and_b32 s74, s74, 8"): S.add("S", c, g0 + 16, B, chain="ac")
                if G2: S.add("M", f"buffer_load_dword v19, off, {srd(SF)}, s72 offset:128 sc1", g0 - 1, g0, chain="pl")
            if batch(st + 3): pace(batch(st + 3)[:5], B + OPT.get("pb", 3), g0 + OPT.get("pc", 65))["prelo"] = B + 1
        if kd == "loop" and OPT.get("cl", 0) and not OPT.get("nocpf"):
            for k in range(2):
                pre, d = cpf("L_p5last-L_pc+%d" % (4096*k)); S.add("M", d, 128 + 64*k + 30, 128 + 64*k + BP - 1, chain="cpf", pre=pre)
        if kd == "loop":
            for c in ([f"s_sub_u32 s73, 1, s73"] if G2 else []) + [f"s_sub_u32 s{sCnt}, s{sCnt}, 1", f"s_cmp_lg_u32 s{sCnt}, 0"]: S.add("S", c, 250, 256, chain="ld")
        if kd == "last":
            for c in xs + mk_srd(SE, sOUT, 4 << 20): S.add(kind(c), c, 30, 120, chain="x")
            XQ = OPT.get("xq", 4)
            if OPT.get("er", 226):
                for c in ldx: S.add("M", c, OPT.get("er", 226), OPT.get("er", 226) + 12, chain="er", sep=2)
            for cs_ in ([(0, 1)] if not X2 else [(0,), (1,)]):
                for rb, c in sorted([(rb, c) for rb in range(2) for c in range(4)], key=lambda t: dn[(2 + t[0], 4 + t[1])]):
                    x = dn[(2 + rb, 4 + c)]
                    S.add("M", f"ds_write_b128 v3, {acc(2 + rb, 4 + c)} offset:{rb*4096 + c*1024}", x + 8, x + 10, chain="x")
                x += 13
                S.add("X", ["s_waitcnt lgkmcnt(0)", "s_barrier"], 0, x, chain="x", sep=3)
                k = 0
                for rb in range(2):
                    for c in [2*c2 + h for c2 in cs_ for h in range(2)]:
                        S.add("D", f"ds_read_b128 {tmp(rb, c)}, v2 offset:{rb*4096 + c*1024}", 0, x + 1 + (k >> 1), chain="x")["dd"] = True; k += 1
                x += 6; x0 = x
                for rb in range(2):
                    for c2 in cs_:
                        a, b = tmp(rb, 2*c2), tmp(rb, 2*c2 + 1); x += XQ
                        for c in (2*c2, 2*c2 + 1):
                            for r in range(4): S.add("A", f"v_add_f32 {tmp(rb, c)[r]}, {tmp(rb, c)[r]}, {acc(rb, 4 + c)[r]}", x0, x - 1, chain="x")
                        for d_, src, r in ((0, a, 0), (1, a, 2), (2, b, 0), (3, b, 2)): S.add("A", f"v_cvt_pk_bf16_f32 {a[d_]}, {src[r]}, {src[r+1]}", 0, x - 1, chain="x")
                        S.add("M", f"buffer_store_dwordx4 {a}, v{vL16}, {srd(SD)}, s73 offen offset:{(2*rb + c2)*1024} {ST}", 0, x, chain="x", sep=1)
            if RM:
                for rb, c in sorted([(rb, c) for rb in range(2) for c in range(4)], key=lambda t: dn[(2 + t[0], t[1])]):
                    S.add("M", f"ds_write_b128 v5, {acc(2 + rb, c)} offset:{rb*4096 + c*1024}", dn[(2 + rb, c)] + 8, dn[(2 + rb, c)] + 9, chain="x")
                S.add("X", ["s_waitcnt lgkmcnt(0)", "s_barrier"], 251, 251, chain="x")
                for k in range(8): S.add("D", f"ds_read_b128 {tmp(k >> 2, k & 3)}, v4 offset:{k*1024}", 252, 252 + (k >> 1), chain="x")["dd"] = True
            else:
                for c in range(3):
                    for rb in snake(2, c + 1):
                        S.add("M", f"ds_write_b128 v5, {acc(2 + rb, c)} offset:{rb*4096 + c*1024}", dn[(2 + rb, c)] + 8, chain="x")
        return S.run("p5" + kd)
    st0 = (list(g.lg), list(g.vm))
    p(f"s_cmp_eq_u32 s{sKh}, 0\ns_cbranch_scc1 L_p5f0")
    g.emit(first(1), 8, name="p5first1")
    ent = (list(g.lg), list(g.vm))
    main = g.p; g.p = P(); g.p.uid = main.uid + 1000
    if OPT.get("pg", 1): g.p.l += [";@batch 1", ";@palign"]
    g.p.label("L_p5f0"); g.lg, g.vm = st0
    g.emit(first(0), 8); g.p("s_branch L_p5join")
    def cregs(sl): return [(None, [(p5_ctx(sl, rb, s_).f, p5_ctx(sl, rb, s_).b + k) for k in range(4)]) for s_ in range(2) for rb in range(4)]
    ent = (None, cregs(0) + [("w5_1", [])] * 2 + cregs(1) + [("w5_2", [])] * 5)
    g.ool += g.p.l; main.uid = g.p.uid + 1000; g.p = main
    if OPT.get("pg", 1): p.l += ["s_branch L_p5join", ";@palign"]
    p.label("L_p5join")
    p(stamp(4) + jit())
    p.label("L_p5loop")
    pre_ = [([("a", 144 + 2*k), ("a", 145 + 2*k)], 0) for k in range(4 * NPRE)]
    g.lg = pre_; g.vm = ent[1]
    g.emit(body("loop"), 8)
    p("s_cbranch_scc1 L_p5loop")
    g.lg = pre_; p.label("L_p5last")
    g.emit(stamp(3) + jit() + body("last") + stamp(10) + jit(), 8, name="p5last")
    SEL = R("v", 232, 6); FO = OPT.get("fo", 0)
    chk = ["USE v[152:167]", "L_xchk:", "v_max3_u32 v9, v152, v153, v154"] + [f"v_max3_u32 v9, v9, v{155+2*k}, v{156+2*k}" for k in range(6)]
    chk += L("""v_max_u32 v9, v9, v167
          v_cmp_eq_u32 vcc, -1, v9
          s_cbranch_vccnz L_xretry
          L_xgo:""")
    g.ool[0:0] = ["L_xretry:", "s_sub_u32 s72, s72, 1", "s_cbranch_scc1 L_xgo ;@nottaken"] + ldx + ["s_waitcnt vmcnt(0)", "s_branch L_xchk"]
    adx = [mfma(acc(rb, c), SEL[2:6] if c % 2 == 0 else SEL[0:4], rx(2*rb + (c >> 1))) for rb in range(2) for c in range(4)]
    q = ["s_mov_b32 s72, 0x20000"]
    if not RM:
        q += ["s_nop 6"] + [f"ds_write_b128 v5, {acc(2 + rb, 3)} offset:{rb*4096 + 3*1024}" for rb in range(2)] + ["s_waitcnt lgkmcnt(0)", "s_barrier"]
        q += [f"ds_read_b128 {tmp(rb, c)}, v4 offset:{rb*4096 + c*1024}" for rb in range(2) for c in range(4)]
    if FO: q += chk + adx + ["s_nop 0"]
    for rb in range(2):
        for c in range(4):
            for r in range(4): q.append(f"v_add_f32 {acc(rb, c)[r]}, {acc(rb, c)[r]}, {tmp(rb, c)[r]}")
    if not FO: q += chk + adx + ["s_nop 1"]
    for rb in range(2):
        for c2 in range(2):
            a, b = acc(rb, 2*c2), acc(rb, 2*c2+1)
            q += L(f"""v_cvt_pk_bf16_f32 {a[0]}, {a[0]}, {a[1]}
                  v_cvt_pk_bf16_f32 {a[1]}, {a[2]}, {a[3]}
                  v_cvt_pk_bf16_f32 {a[2]}, {b[0]}, {b[1]}
                  v_cvt_pk_bf16_f32 {a[3]}, {b[2]}, {b[3]}""")
        a, b, t_ = acc(rb, 0), acc(rb, 2), acc(rb, 1)
        q += [f"v_permlane16_swap_b32 {a[0]}, {a[2]}", f"v_permlane16_swap_b32 {a[1]}, {a[3]}", f"v_permlane16_swap_b32 {b[0]}, {b[2]}", f"v_permlane16_swap_b32 {b[1]}, {b[3]}"]
        ost = OPT.get('ost', 'sc1').replace('-', '')
        if OPT.get("fl", 1):
            q += [f"v_mov_b32 {t_[r]}, {a[r]}" for r in range(4)]
            q += [f"v_mov_b32_dpp {a[r]}, {b[r]} row_ror:8 row_mask:0xf bank_mask:0xc" for r in range(4)]
            q += [f"v_mov_b32_dpp {b[r]}, {t_[r]} row_ror:8 row_mask:0xf bank_mask:0x3" for r in range(4)]
            q += [f"buffer_store_dwordx4 {a}, v8, {srd(SE)}, s77 offen {ost}", "s_add_u32 s77, s77, 16384",
                  f"buffer_store_dwordx4 {b}, v8, {srd(SE)}, s77 offen {ost}", "s_add_u32 s77, s77, 16384"]
        else:
            q += [f"buffer_store_dwordx4 {a}, v8, {srd(SE)}, s77 offen {ost}", f"buffer_store_dwordx4 {b}, v8, {srd(SE)}, s77 offen offset:64 {ost}", "s_add_u32 s77, s77, 32768"]
    if OPT.get("dbgt"):
        q += L(f"""s_waitcnt vmcnt(0)
            s_memtime s[70:71]
            s_memrealtime s[72:73]
            s_waitcnt lgkmcnt(0)
            s_sub_u32 s70, s70, s96
            s_sub_u32 s72, s72, s98
            v_mov_b32 v2, s70
            v_mov_b32 v3, s72
            s_lshl_b32 s70, s2, 3
            s_add_u32 s70, s70, 8
            s_lshl_b32 s71, s{sW}, 12
            s_add_u32 s70, s70, s71""") + mk_srd(SF, 94, 64) + [f"buffer_store_dwordx2 v[2:3], v1, {srd(SF)}, s70 offen"]
    q += stamp(11) + stamp_flush()
    g.emit(q, name="final")

DOC = """
; ---------------------------------------------------------------------------------------------------------------
; One persistent launch, 256 workgroups (one per CU) x 4 waves.  Workgroup = (head h, q-block pair j / 15-j).
;  1. K,V = c_kv @ w_uk|w_uv for 256 keys of head h -> d_ws in MFMA fragment order; gate rows g, 1-g -> d_ws
;     max, so nothing can underflow); every row sum is checked at run time and if any reaches 2^60 the workgroup
;  4. out = [g*ctx | (1-g)*o_B] @ [w_o ; wo], 128x128 tile, K split between workgroups 2n and 2n+1
; Hand-offs: write-through stores, counters (d_debug[0], then words of d_ws zeroed inside the launch) or
; all-ones-prefilled mailboxes; all waits are bounded; nothing depends on workgroup placement except speed.
; ---------------------------------------------------------------------------------------------------------------
"""
def build():
    g = G(); p = g.p
    hdr = open("/code/" + NAME + ".s.ref").read()
    p.l += [l for l in hdr.split("\n") if l.startswith(";") and "@launch" not in l]
    p.l.append(f"; @launch grid=(256,1,1) block=(256,1,1) lds={LDS_BYTES}")
    p.l += DOC.strip().split("\n")
    k = NAME + "_kernel"
    p(f'.amdgcn_target "amdgcn-amd-amdhsa--gfx950"\n.text\n.globl {k}\n.p2align 8\n.type {k},@function'); p.label(k)
    gemm12(g); attention(g); phase5(g)
    p.label("L_end"); p("s_endpgm")
    p(g.ool)
    p.label("L_codeend")
    p('.section .rodata,"a"\n.p2align 6')
    p.l += f""".amdhsa_kernel {k}
  .amdhsa_next_free_vgpr 512
  .amdhsa_next_free_sgpr 102
  .amdhsa_accum_offset 256
  .amdhsa_group_segment_fixed_size 0
  .amdhsa_kernarg_size 104
  .amdhsa_user_sgpr_count 2
  .amdhsa_user_sgpr_kernarg_segment_ptr 1
  .amdhsa_system_sgpr_workgroup_id_x 1
.end_amdhsa_kernel""".split("\n")
    return p.text()

if __name__ == "__main__":
    out = sys.argv[1]
    for a in sys.argv[2:]:
        k, _, v = a.partition("=")
        OPT[k] = True if v == "" else (int(v) if v.lstrip("-").isdigit() else v)
    txt = build()
    if OPT.get("pg", 1):
        from pages import pages
        plan = {}
        if OPT.get("na", 1): plan[9] = [(0, OPT.get("na", 1))]
        plan[0] = [(0, OPT.get("n0", 4))]
        ts = TSITES()
        for k in range(len(ts)): plan[k + 1] = [(0, OPT.get("n1", 8))] if k + 1 < len(ts) else [(0, 99), (1, 99)]
        if OPT.get("vs", 1): plan[3] = [(3, 9)]; plan[4] = [(4, 9)]
        txt, info = pages(txt, sW, plan, OPT.get('half')); print("page stubs", info)
    if OPT.get("al"):
        from align import align
        txt, n_ = align(txt, OPT["al"]); print("widened", n_)
    import subprocess, re, os
    open("_sz.s", "w").write(txt.replace("NCHUNK", "100"))
    subprocess.check_call(["clang", "-x", "assembler", "-target", "amdgcn-amd-amdhsa", "-mcpu=gfx950", "-c", "_sz.s", "-o", "_sz.o"])
    sz = int(re.search(r"\.text\s+PROGBITS\s+\S+\s+\S+\s+(\S+)", subprocess.check_output(["llvm-readelf", "-S", "_sz.o"]).decode()).group(1), 16)
    nch = 0
    print("code bytes", sz, "file", len(txt))
    open(out, "w").write(txt.replace("NCHUNK", str(nch)))
```

```python
import sys, math, struct
from genlib import P, R, mfma
from sched import Sched, resolve

NAME = "gated_mix__compressed_kv_cla__sliding_local_dilated__prompt"
WS_HALO = 58 << 20
WS_KV, WS_CTX, WS_G, WS_CNT, WS_INBOX, WS_XCH, WS_STAMP = 0, 32 << 20, 56 << 20, 57 << 20, (57 << 20) + 65536, 64 << 20, 96 << 20
LDS_BYTES = 160 * 1024
def f32(x): return "0x%08x" % struct.unpack("<I", struct.pack("<f", x))[0]
QSCALE = 128 ** -0.5 * math.log2(math.e)
BSCALE = 32 ** -0.5 * math.log2(math.e)
LTHR = 2.0 ** 60

sX, sC, sWQ, sWUK, sWUV, sWOA, sWQKV, sWOB, sGATE, sOUT, sDBG, sWS = 4, 6, 8, 10, 12, 14, 18, 20, 22, 24, 26, 28
sW, sH, sJ = 30, 31, 3
SA, SB, SC, SD, SE, SF, SG, SH = 32, 36, 40, 44, 48, 52, 56, 60
sT, sT2, sBHi = 64, 65, 16
t0_, t1_, t2_, t3_ = 66, 67, 68, 69
def srd(b): return f"s[{b}:{b+3}]"
OPT = dict(stamps=False)
ST = "sc1" if "x_plain" not in sys.argv else ""

vDX, vDQ, vGX, vGW, vL16, vDH, vDB, vDBH, vGH, vGB = 2, 4, 12, 14, 16, 17, 19, 21, 22, 23
vQ, vG = 24, 4
aONE, aDUM = 251, 252
ONES = R("a", 244)
ONES2, vIDX = R("a", 240), 5
MSK = [0, 4, 6, 8, 10, 12, 18, 22, 26, 56, 58, 60, 62, 48, 50, 100]
def msk(k): return f"s[{MSK[k]}:{MSK[k]+1}]"
def kind(c): return "S" if c.startswith("s_") else ("E" if c.startswith(("v_exp", "v_rcp")) else "A")

def L(s): return [x.strip() for x in s.strip().split("\n") if x.strip()]
def mk_srd(b, ptr, nbytes, off=None):
    if off is None: o = [f"s_mov_b32 s{b}, s{ptr}", f"s_mov_b32 s{b+1}, s{ptr+1}"]
    else: o = [f"s_add_u32 s{b}, s{ptr}, {off}", f"s_addc_u32 s{b+1}, s{ptr+1}, 0"]
    return o + [f"s_mov_b32 s{b+2}, {nbytes}", f"s_mov_b32 s{b+3}, 0x20000"]

NST = [0]
def stamp(idx):
    if not OPT["stamps"]: return []
    return L(f"""s_waitcnt lgkmcnt(0)
        s_memtime s[92:93]
        s_memrealtime s[94:95]
        v_accvgpr_write_b32 a253, v1
        v_accvgpr_read_b32 v1, a249
        s_waitcnt lgkmcnt(0)
        v_writelane_b32 v1, s92, {2*idx}
        v_writelane_b32 v1, s94, {2*idx+1}
        v_accvgpr_write_b32 a249, v1
        v_accvgpr_read_b32 v1, a253
        s_nop 1""")
def stamp_flush():
    if not OPT["stamps"]: return []
    return L(f"""s_lshl_b32 s96, s2, 2
        s_add_u32 s96, s96, s{sW}
        s_lshl_b32 s96, s96, 8
        s_add_u32 s96, s96, {WS_STAMP}
        v_lshlrev_b32 v1, 2, v0
        buffer_store_dword a249, v1, {srd(SD)}, s96 offen
        s_waitcnt vmcnt(0)""")

class G:
    def __init__(self):
        self.p = P(); self.lg = []; self.vm = []; self.ool = []
    def emit(self, seq, eager=0, name=None):
        if name: self.p.l.append(";@seg " + name)
        out, self.lg, self.vm = resolve(seq, self.lg, self.vm, eager)
        self.p(out)
    def spin(self, vreg, srdb, soff, imm, target):
        st, bk, lp = self.p.new("spin"), self.p.new("spinbk"), self.p.new("spinlp")
        self.ool += L(f"""{st}:
            s_mov_b32 vcc_hi, 0x80000
            {lp}:
            s_sleep 1
            buffer_load_dword v{vreg}, off, {srd(srdb)}, {soff} offset:{imm} sc1
            s_waitcnt vmcnt(0)
            v_readfirstlane_b32 vcc_lo, v{vreg}
            s_sub_u32 vcc_hi, vcc_hi, 1
            s_cbranch_scc1 {bk} ;@nottaken
            s_cmp_lt_u32 vcc_lo, {target}
            s_cbranch_scc1 {lp} ;@nottaken
            s_branch {bk}""")
        return L(f"""v_readfirstlane_b32 vcc_lo, v{vreg}
            s_nop 0
            s_cmp_lt_u32 vcc_lo, {target}
            s_cbranch_scc1 {st}
            {bk}:""")

sLH = 78
def cpf(expr):
    return ([f"s_add_u32 s17, s{sLH}, {expr}"], f"buffer_load_dword a{aDUM}, v{vL16}, s[88:91], s17 offen ;@dummy")
def one_lane(d): return ["s_mov_b64 exec, 1", d, "s_mov_b64 exec, -1"]
def signal(srdb, soff, imm, tags):
    return ([f"s_lshl_b32 s{t0_}, s{sW}, 30", f"v_lshl_add_u32 v1, v0, 24, s{t0_}"],
            f"buffer_atomic_add a{aONE}, v1, {srd(srdb)}, {soff} offen offset:{imm} sc1 ;@sig=wg:{tags}")

JIT = [0]
def jit():
    if not OPT.get("jit"): return []
    JIT[0] += 1; k = JIT[0]
    return L(f"""s_mul_i32 s92, s2, {(OPT['jit'] * 2654435761 + k * 40503 * 977) & 0x7fffffff | 1}
        s_lshr_b32 s92, s92, 9
        s_xor_b32 s92, s92, s{sW}
        s_and_b32 s92, s92, 15
        L_jit{k}:
        s_sleep 12
        s_sub_u32 s92, s92, 1
        s_cbranch_scc0 L_jit{k}""")
def TSITES(): return [int(x) for x in str(OPT.get("ts", "1_20")).split("_")]
def snake(n, k): return list(range(n)) if k % 2 == 0 else list(range(n - 1, -1, -1))

def aq(db, rb): return R("v", (vQ if db % 2 == 0 else 88) + 16 * rb + 4 * (db // 2))
def bt(part, db, rb): return R("v", 152 + 32 * part + 8 * rb + 4 * db)
HK, HV = R("v", 248), R("v", 252)
XS = 20480
def KP(rb): return R("a", 176 + 4 * rb)
P2ORD = [10, 11, 12, 13, 8, 9, 0, 1, 2, 3, 4, 5, 6, 7]
def p2tile(cb, rb):
    if cb < 8: return aq(cb, rb)
    if cb < 14: return bt((cb - 8) >> 1, cb & 1, rb)
    return HK if cb == 14 else HV

def gemm12(g):
    p = g.p
    sCo, sWo, sXlo, sXhi, sXh, sBo, sLX, sLW, sKV, sPF = 70, 71, 72, 73, 74, 75, 76, 77, 79, 80
    NR = 6
    def fx(sg, rb, s): return R("a", 32 * (sg & 1) + 8 * rb + 4 * s) if rb < 4 else R("a", 64 + 4 * s)
    ES = OPT.get("es", 1)
    def fw(J, s): return R("a", 176 + 8 * J + 4 * s) if (ES and J < 2) else R("a", 72 + 8 * (J % NR) + 4 * s)
    def stash(i): return R("a", 144 + 4 * i)
    GA = 144
    def order(sg):
        o = []; k = 0
        for j, cb in enumerate(range(16) if sg < 8 else P2ORD):
            if sg >= 8 and cb >= 14: o.append((j, cb, 4))
            else:
                o += [(j, cb, rb) for rb in snake(4, k)]; k += 1
        return o
    o1, o2 = order(0), order(8)
    pos1 = {(cb, rb): k for k, (j, cb, rb) in enumerate(o1)}
    def treg(k): return p2tile(o2[k][1], o2[k][2]) if k < 56 else (HK, HV)[k - 56] if k < 58 else R("a", 120 + 4 * (k - 58))
    FS = [(22, j) for j in range(6)] + [(23, j) for j in range(6)] + [(sg, j) for j in range(6, 14) for sg in (22, 23)]
    def Jx(sg, j): return 16 * sg + j if sg < 8 else 128 + 14 * (sg - 8) + j if sg < 22 else 128 + 14 * 14 + FS.index((sg, j))
    p("s_cmp_ge_u32 s2, 256\ns_cbranch_scc1 L_end")
    p("s_load_dwordx16 s[4:19], s[0:1], 0\ns_load_dwordx8 s[20:27], s[0:1], 64\ns_load_dwordx2 s[28:29], s[0:1], 96")
    if OPT["stamps"] or OPT.get("dbgt"): p("s_memtime s[96:97]\ns_memrealtime s[98:99]")
    if OPT.get("dbgt"): p("s_load_dwordx2 s[94:95], s[0:1], 88")
    p("s_getpc_b64 s[88:89]"); p.label("L_pc")
    p(f"""v_lshrrev_b32 v1, 6, v0
          s_lshr_b32 s{t1_}, s2, 3
          v_lshl_add_u32 v24, s{t1_}, 2, v1
          s_mov_b32 s90, L_codeend-L_pc
          s_mov_b32 s91, 0x20000
          v_and_b32 v25, 7, v0
          v_lshlrev_b32 v25, 7, v25
          v_lshl_add_u32 v24, v24, 10, v25
          buffer_load_dword a{aDUM}, v24, s[88:91], 0 offen ;@dummy
          v_and_b32 v0, 63, v0
          v_readfirstlane_b32 s{sW}, v1 ;@val=wave
          v_lshrrev_b32 v24, 3, v0
          v_lshrrev_b32 v25, 4, v0
          v_and_b32 v26, 7, v0
          v_xor_b32 v26, v26, v25
          v_lshlrev_b32 v26, 4, v26
          v_lshl_add_u32 v{vGX}, v24, 10, v26
          v_xor_b32 v{vGX+1}, 64, v{vGX}
          v_bfe_u32 v26, v0, 1, 3
          v_xor_b32 v26, v26, v25
          v_lshlrev_b32 v26, 5, v26
          v_and_b32 v24, 1, v0
          v_lshl_add_u32 v26, v24, 4, v26
          v_lshl_add_u32 v{vGW}, v25, 13, v26
          v_xor_b32 v{vGW+1}, 128, v{vGW}
          s_and_b32 s{t0_}, s2, 7
          s_and_b32 s{t2_}, s{t1_}, 3
          s_lshl2_add_u32 s{sH}, s{t0_}, s{t2_}
          s_cmp_eq_u32 s{t2_}, 0
          {"s_cselect_b32 s90, s90, 0" if OPT.get("c4", 1) else ""}
          s_lshr_b32 s{sJ}, s{t1_}, 2
          s_lshl2_add_u32 s{sPF}, s{t1_}, s{sW}
          s_lshl_b32 s{sCo}, s{sJ}, 18
          s_lshl_b32 s{t0_}, s{sW}, 16
          s_add_u32 s{sCo}, s{sCo}, s{t0_}
          s_lshl_b32 s{sWo}, s{sW}, 17
          s_lshl_b32 s{t0_}, s{sH}, 8
          s_add_u32 s{sWo}, s{sWo}, s{t0_}
          {f"s_xor_b32 s{t2_}, s{t2_}, 1" if OPT.get("x_h1") else ""}
          {f"s_min_u32 s{t2_}, s{t2_}, 1" if OPT.get("x_h1") else ""}
          {f"s_xor_b32 s{t2_}, s{t2_}, 1" if OPT.get("x_h1") else ""}
          {f"s_mul_i32 s{t2_}, s{t2_}, 128" if OPT.get("x_h1") else ""}
          {f"s_sub_u32 s{sWo}, s{sWo}, s{t2_}" if OPT.get("x_h1") else ""}
          s_lshl_b32 s{sLX}, s{sW}, 13
          s_lshl_b32 s{sLW}, s{sW}, 12
          s_lshl_b32 s{sLH}, s{sW}, 10
          {";@touch 9" if OPT.get("na", 1) and OPT.get("pg", 1) else ""}
          s_waitcnt lgkmcnt(0)""")
    if OPT.get("pst"): p("s_memtime s[84:85]\ns_memrealtime s[86:87]")
    p(mk_srd(SA, sC, 2 << 20) + mk_srd(SB, sWUK, 4 << 20) + mk_srd(SC, sWUV, 4 << 20))
    def xdma(sg):
        par = sg & 1; d = []
        for i in range(8 if not (OPT.get("x_nox") and sg > 9) else 1):
            if sg < 8: so, sr = f"s_xor_b32 s{sT}, s{sCo}, {sg*128 + i*8192}", SA
            else: so, sr = f"s_xor_b32 s{sT}, s{sXlo if i < 4 else sXhi}, {(sg-8)*128 + ((i>>1)&1)*64*2048 + (i&1)*16384}", SE
            d.append(([f"s_xor_b32 m0, s{sLX if sg == 0 else 84}, {par*32768 + i*1024}", so], f"buffer_load_dwordx4 v{vGX + (i&1)}, {srd(sr)}, s{sT} offen lds ;@tag=x{sg}"))
        return d
    def wdma(sg):
        d = []; B = 65536 + (sg % 3) * 32768
        for kv in range(2 if sg < 8 else 1):
            for i in range(4):
                st = sg if sg < 8 else sg - 8
                d.append(([f"s_xor_b32 m0, s{sLW}, {B + kv*16384 + i*1024}", f"s_xor_b32 s{sT}, s{sWo}, {st*64*8192 + i*32768}"],
                          f"buffer_load_dwordx4 v{vGW + (i>>1)}, {srd((SB, SC)[kv] if sg < 8 else SG)}, s{sT} offen lds ;@tag=w{sg}"))
        if sg >= 8:
            for pp in range(3):
                d.append(([f"s_add_u32 m0, s{sLH}, {B + 16384 + pp*4096}", f"s_add_u32 s{sT}, s{sBo}, {(sg-8)*64*6144 + pp*2048}"],
                          f"buffer_load_dwordx4 v{vGB}, {srd(SH)}, s{sT} offen lds ;@tag=w{sg}"))
            d = [d[k] for k in (0, 4, 1, 5, 2, 6, 3)]
            if sg > 10 and OPT.get("x_now") == 1: d = d[:1]
            if sg > 10 and OPT.get("x_now") == 2: d = d[::2]
        return d
    seq = []
    x0, w0 = xdma(0), wdma(0)
    b0, b1 = (x0[:4] + w0[:4], x0[4:] + w0[4:]) if ES else (x0 + w0, [])
    for sal, d in b0: seq += sal + [d.replace("@tag=w0", "@tag=a0") if ES else d]
    if OPT.get("cpre") == 2: seq += [f"s_lshl2_add_u32 s84, s2, s{sW}", "s_lshl_b32 s84, s84, 11", "v_lshlrev_b32 v22, 5, v0", f"buffer_load_dword a{aDUM}, v22, {srd(SA)}, s84 offen ;@dummy"]
    seq += mk_srd(SD, sWS, 128 << 20) + mk_srd(SE, sX, 4 << 20) + mk_srd(SF, sDBG, 256) + mk_srd(SG, sWQ, 8 << 20) + mk_srd(SH, sWQKV, 6 << 20)
    seq += [f"v_accvgpr_write_b32 a{aONE}, 1"]
    if OPT["stamps"]: seq += ["v_mov_b32 v30, 0", "v_writelane_b32 v30, s96, 60", "v_writelane_b32 v30, s98, 61", "s_getreg_b32 s96, hwreg(HW_REG_XCC_ID)", "v_writelane_b32 v30, s96, 62"] + (["s_waitcnt lgkmcnt(0)", "v_writelane_b32 v30, s84, 58", "v_writelane_b32 v30, s86, 59", "v_writelane_b32 v30, s100, 56", "v_writelane_b32 v30, s0, 57"] if OPT.get("pst") else []) + [ "v_accvgpr_write_b32 a249, v30"] + stamp(0)
    seq += L(f"""v_and_b32 v24, 15, v0
          v_lshrrev_b32 v26, 1, v24
          v_xor_b32 v26, v26, v25
          v_lshlrev_b32 v26, 4, v26
          v_lshl_add_u32 v26, v24, 7, v26
          v_add_u32 v{vDX}, s{sLX}, v26
          v_xor_b32 v{vDX+1}, 64, v{vDX}
          v_bfe_u32 v24, v0, 2, 2
          v_lshl_add_u32 v27, v25, 3, v24
          v_and_b32 v1, 3, v0
          v_cmp_eq_u32 vcc, 0, v1
          v_lshlrev_b32 v1, 3, v1
          v_lshl_add_u32 v26, v27, 8, v1
          v_add_u32 v26, 65536, v26
          v_and_b32 v1, 1, v25
          v_lshl_add_u32 v24, v1, 2, v24
          v_lshlrev_b32 v{vL16}, 4, v0
          v_mov_b32 v28, 0x3f803f80
          v_cndmask_b32 v28, 0, v28, vcc""")
    seq += [f"v_accvgpr_write_b32 {ONES[r]}, v28" for r in range(4)]
    for n in range(8): seq += [f"v_xor_b32 v1, {n}, v24", f"v_lshl_add_u32 v{vDQ+n}, v1, 5, v26"]
    seq += L(f"""s_sub_u32 s{sBHi}, 15, s{sJ}
          s_lshl_b32 s{sXlo}, s{sJ}, 18
          s_lshl_b32 s{sXhi}, s{sBHi}, 18
          s_cmp_lt_u32 s{sW}, 2
          s_cselect_b32 s{t1_}, s{sJ}, s{sBHi}
          s_lshl4_add_u32 s{sXh}, s{sH}, s{t1_}
          s_and_b32 s{t0_}, s{sW}, 1
          s_lshl1_add_u32 s{sXh}, s{sXh}, s{t0_}
          s_lshl_b32 s{sXh}, s{sXh}, 10
          s_add_u32 s{sXh}, s{sXh}, {WS_HALO}
          s_lshl_b32 s{t0_}, s{sW}, 15
          s_add_u32 s{sXlo}, s{sXlo}, s{t0_}
          s_add_u32 s{sXhi}, s{sXhi}, s{t0_}
          s_mul_i32 s{sBo}, s{sW}, {16*6144}
          s_lshl_b32 s{t0_}, s{sH}, 6
          s_add_u32 s{sBo}, s{sBo}, s{t0_}
          s_lshl_b32 s{sKV}, s{sH}, 20
          s_lshl_b32 s{t0_}, s{sJ}, 17
          s_add_u32 s{sKV}, s{sKV}, s{t0_}
          s_lshl_b32 s{t0_}, s{sW}, 15
          s_add_u32 s{sKV}, s{sKV}, s{t0_}
          v_bfe_u32 v{vGB}, v0, 1, 1
          v_lshrrev_b32 v1, 5, v0
          v_xor_b32 v{vGB}, v{vGB}, v1
          v_lshlrev_b32 v{vGB}, 5, v{vGB}
          v_and_b32 v1, 1, v0
          v_lshl_add_u32 v{vGB}, v1, 4, v{vGB}
          v_lshrrev_b32 v1, 2, v0
          v_mul_u32_u24 v1, 6144, v1
          v_add_u32 v{vGB}, v1, v{vGB}
          s_lshl_b32 s81, s{sPF}, 13
          s_and_b32 s{t1_}, s2, 7
          s_lshl_b32 s82, s{t1_}, 8
          s_add_u32 s82, s82, s81
          s_lshl_b32 s{t1_}, s{t1_}, 10
          s_add_u32 s81, s81, s{t1_}
          s_add_u32 s83, s81, {1<<20}
          v_mul_u32_u24 v1, 1792, v25
          v_add_u32 v1, v1, v{vL16}
          s_lshl_b32 s{t2_}, s2, 3
          s_lshl1_add_u32 s{t2_}, s{sW}, s{t2_}
          v_lshrrev_b32 v18, 5, v0
          v_add_u32 v18, s{t2_}, v18
          v_and_b32 v19, 31, v0
          v_lshlrev_b32 v19, 4, v19
          v_lshl_add_u32 v18, v18, 11, v19
          v_mov_b32 v21, 0
          v_min_u32 v20, 1, v0
          v_lshlrev_b32 v20, 30, v20
          v_accvgpr_write_b32 a240, -1
          v_accvgpr_write_b32 a241, -1
          v_accvgpr_write_b32 a242, -1
          v_accvgpr_write_b32 a243, -1
          s_lshl_b32 s{t3_}, s{sW}, 22
          s_add_u32 s{t3_}, s{t3_}, s2
          s_lshl_b32 s{t3_}, s{t3_}, 6
          s_add_u32 s{t3_}, s{t3_}, {WS_CNT}""")
    def xread(sg): return [f"ds_read_b128 {fx(sg, rb, s)}, v{vDX+s} offset:{(sg&1)*32768 + rb*2048}" for rb in range(4) for s in range(2)]
    def hread(sg): return [f"ds_read_b128 {fx(sg, 4, s)}, v{vDH+s} offset:{min(sg % 3, 1)*32768}" for s in range(2)]
    def wread(sg, j):
        par = min(sg % 3, 1) if sg != 22 else 0; o = []; cb = j if sg < 8 else P2ORD[j]
        for s in range(2):
            for i in range(2):
                if sg < 8 or cb < 8: a, off = vDQ + (cb & 7), par*32768 + (cb >> 3)*16384 + s*8192 + i*1024
                elif cb < 14: a, off = vDB + (cb & 1), par*32768 + ((cb-8) >> 1)*4096 + s*2048 + i*256
                else: a, off = vDBH, par*32768 + (cb-13)*4096 + s*2048 + i*256
                o.append((a, f"ds_read_b64_tr_b16 {fw(Jx(sg, j), s)[2*i:2*i+2]}, v{a} offset:{off}"))
        return o
    if OPT.get("pg", 1): seq += ([";@touch 0"] if OPT.get("n0", 4) else []) + ["s_branch L_base", ".p2align 12", ";@base", ";@batch 0", ";@stub 0", "L_base:"]
    if OPT.get("pst"): seq += stamp(26)
    def wpf(sr): return f"buffer_load_dword a{aDUM}, v{vL16}, {srd(sr)}, s83 offen ;@dummy"
    P1PF = OPT.get("p1pf", 0)
    if P1PF == 2: seq += [wpf(SB), wpf(SC)]
    LATE, WD = OPT.get("late1", 1), OPT.get("wd", 3)
    for sal, d in b1 + ([] if ES else xdma(1) + wdma(1) if LATE == 0 else wdma(1) if LATE == 1 else []): seq += sal + [d]
    if ES: LATE = 2
    RX, RW = OPT.get("rx", 3), OPT.get("rw", 7)
    assert ES
    seq += L(f"""s_and_b32 s{t0_}, s{sH}, {RX}
          s_lshl_b32 s{t1_}, s{t0_}, 11
          s_add_u32 s84, s{sLX}, s{t1_}
          s_lshl3_add_u32 s{sCo}, s{t1_}, s{sCo}
          s_and_b32 s{t1_}, s{t0_}, 1
          s_lshl_b32 s{t1_}, s{t1_}, 17
          s_add_u32 s{sXlo}, s{sXlo}, s{t1_}
          s_add_u32 s{t1_}, s{sXhi}, s{t1_}
          s_bitcmp1_b32 s{t0_}, 1
          s_cselect_b32 s{sXhi}, s{sXlo}, s{t1_}
          s_cselect_b32 s{sXlo}, s{t1_}, s{sXlo}
          s_and_b32 s{t0_}, s{sJ}, {RW & 3}
          s_lshl_b32 s{t1_}, s{t0_}, 10
          s_add_u32 s{sLW}, s{sLW}, s{t1_}
          s_lshl_b32 s{t1_}, s{t0_}, 15
          s_add_u32 s{sWo}, s{sWo}, s{t1_}
          s_and_b32 s{t1_}, s{t0_}, 2
          s_lshl_b32 s{t1_}, s{t1_}, 6
          v_xor_b32 v{vGW}, s{t1_}, v{vGW}
          v_xor_b32 v{vGW+1}, s{t1_}, v{vGW+1}
          s_and_b32 s{t0_}, s{sJ}, {RW & 4}
          s_cselect_b64 s[{SB}:{SB+1}], s[{sWUV}:{sWUV+1}], s[{sWUK}:{sWUK+1}]
          s_cselect_b64 s[{SC}:{SC+1}], s[{sWUK}:{sWUK+1}], s[{sWUV}:{sWUV+1}]
          s_lshl_b32 s{t0_}, s{t0_}, 12
          s_add_u32 s{sLW}, s{sLW}, s{t0_}""")
    if P1PF == 1: seq += [wpf(SB), wpf(SC)]
    cpf_c = [f"s_lshl2_add_u32 s84, s2, s{sW}", "s_lshl_b32 s84, s84, 11", "v_lshlrev_b32 v22, 5, v0", f"buffer_load_dword a{aDUM}, v22, {srd(SA)}, s84 offen ;@dummy"]
    if OPT.get("cpre") == 1: seq += cpf_c
    seq += ["WAITVM a0" if ES else "WAITVM w0,x0", "s_barrier"] + stamp(1)
    xr = xread(0); NPRE = 3
    seq += xr[:2] + [r for _, r in wread(0, 0)] + xr[2:4 if ES else 8]
    for j in range(1, NPRE): seq += [r for _, r in wread(0, j)]
    if OPT.get("pst"): seq += stamp(27)
    g.emit(seq)
    mf = []; G0 = []; FU = {}; LU = {}; done = {}
    def tile_mf(k, cb, rb, sgs, j, swap):
        ops = [(sg, s) for sg in sgs for s in range(2)]
        for q, x in enumerate(snake(len(ops), k)):
            sg, s = ops[x]; J = Jx(sg, j)
            FU.setdefault(J, len(mf)); LU[J] = len(mf)
            c0 = 0 if (q == 0 and sg in (0, 8)) else None
            mf.append(mfma(treg(k), fx(sg, rb, s), fw(J, s), c0) if swap else mfma(treg(k), fw(J, s), fx(sg, rb, s), c0))
        done[(sgs[-1], cb, rb)] = len(mf) - 1
    for sg in range(22):
        G0.append(len(mf))
        oo = list(enumerate(o1 if sg < 8 else o2))
        if sg == 0:
            oo = [(pos1[(cb, rb)], (cb, cb, rb)) for cb in range(8) for rb in snake(2, cb)] + \
                 [(pos1[(cb, rb + 2)], (cb, cb, rb + 2)) for cb in (2, 3, 4, 5, 6, 7, 0, 1) for rb in snake(2, cb)] + oo[32:]
        for k, (j, cb, rb) in oo: tile_mf(k, cb, rb, [sg], j, (cb >= 8) if sg < 8 else (cb in (12, 13)))
    Z0 = len(mf); G0.append(Z0)
    for sg in (22, 23):
        for k, (j, cb, rb) in list(enumerate(o2))[:24]: tile_mf(k, cb, rb, [sg], j, cb in (12, 13))
    for k, (j, cb, rb) in list(enumerate(o2))[24:]: tile_mf(k, cb, rb, [22, 23], j, False)
    S = Sched(mf)
    def pace(items, lo, hi, chain, slack=5):
        n = len(items)
        for q, (sal, d) in enumerate(items):
            x = lo + int(q * (hi - lo) / n)
            it = S.add("M", d, x, x + slack, chain=chain, sep=3, pre=sal)
            if q == 0: it["prelo"] = lo - 2
    def chain(txt, lo, hi=None, name=None, sep=1):
        for c in (L(txt) if isinstance(txt, str) else txt): S.add(kind(c), c, lo, hi, chain=name, sep=sep)
    BAR = {sg: G0[sg + 1] - 30 for sg in range(22)}; BAR[-1] = -1; BAR[22] = Z0 + 18
    XW = 54; X0 = 70
    gxupd = f"v_lshrrev_b32 v{vGX+1}, 3, v0\nv_lshl_add_u32 v{vGX}, v{vGX+1}, 10, v{vGX}\nv_xor_b32 v{vGX+1}, 64, v{vGX}"
    pace(wdma(1) + xdma(1), 2, X0 - 2, "dma", slack=2)
    for sg in range(22):
        g0, nx, B = G0[sg], G0[sg + 1], BAR[sg]
        lastuse = {}
        for j in range(16 if sg < 8 else 14):
            J = Jx(sg, j)
            if J < NPRE: continue
            lo = max(LU[J - NR] if J >= NR + 2 else 0, BAR[sg - 1] + 1, FU[J] - 44)
            hi = min(FU[J] - (8 if J >= 8 else 6), B - 5)
            if J == 8:
                S.add("S", "WAITVM x0", 22, 22, chain="t")
                for r in xr[4:]: S.add("D", r, 0, 27, chain="t")["dd"] = True
                S.add("X", ["WAITVM w0", "s_barrier"], 38, 38, chain="t")
            for a, r in wread(sg, j): S.add("T", r, lo, hi, chain="t"); lastuse[a] = hi
        if sg % 3 or sg == 21:
            for r, lu in lastuse.items():
                S.add("A", f"v_add_u32 v{r}, 0x8000, v{r}" if sg % 3 != 2 else f"v_subrev_u32 v{r}, 0x8000, v{r}", lu + 1, B - 1)
        blk = [f"WAITVM w{sg+1} L", "s_barrier"]
        if OPT.get("pg", 1) and sg == OPT.get("t1", 1): blk = [";@touch 1"] + blk
        if sg == 7: blk += stamp(2)
        if sg in (0, 6, 9, 17, 19, 21): blk += jit()
        fine = (0, 1, 2, 3, 4, 5, 9, 11, 13, 15, 17, 19) if OPT.get("fine") != 2 else (15, 16, 17, 18, 19, 20, 21)
        if OPT.get("fine") and sg in fine: blk += stamp(18 + fine.index(sg))
        S.add("X", blk, B, B)
        RP = OPT.get("ramp", 4)
        xw, xh = (g0 + XW, B - 5) if sg > RP else (B + 8, nx - 8)
        S.add("S", f"WAITVM x{sg+1}", xw, xw, chain=("xn", sg))
        for q, r in enumerate(xread(sg + 1)): S.add("D", r, xw, xh, chain=("xn", sg))
        if RP and sg <= RP:
            if sg == 0:
                its = []
                for k in range(2, RP + 3): its += wdma(k) + xdma(k)
                pace(its + wdma(RP + 3), X0, G0[RP + 1] + 38, "dma", slack=2)
            continue
        if sg == 0:
            pace(wdma(2) + xdma(2), X0, nx + 2, "dma", slack=2); pace(wdma(3), nx + 4, nx + 38, "dma", slack=2)
            continue
        if sg < 21: pace(xdma(sg + 2), g0 + 40, B - 2, "dma")
        if sg == 5: S.add("S", f"s_and_b32 s{sLW}, s{sLW}, 0x3fff", B - 4, B + 1, chain="dma")
        if sg < 20: pace(wdma(sg + 3), B + 3, nx + 38, "dma")
        if sg == 20: pace(xdma(23) + wdma(23), B + 3, BAR[21] - 16, "dma")
    if OPT.get("pg", 1):
        x = Z0 + OPT.get("tz", 40)
        blk = [";@touch 2"]
        if OPT.get("vs", 1):
            for k, jj in ((3, 0), (4, 7)): blk += [f"s_cmp_lg_u32 s{sJ}, {jj}", f"s_cbranch_scc1 L_tr{k}", f";@touch {k}"]
        S.add("X", blk, x, x + 6)
        for c in ("v_lshrrev_b32 v23, 2, v0", "v_mul_u32_u24 v23, 3584, v23", "v_lshl_add_u32 v23, v0, 7, v23"): S.add("A", c, BAR[21] - 8, BAR[21] + 10, chain="pgp")
        S.add("M", f"buffer_load_dword a{aDUM}, v23, s[88:91], s17 offen ;@dummy", BAR[21] + 2, Z0 - 4, chain="pgp", sep=3,
              pre=[f"s_lshr_b32 s17, s{sLH}, 1", f"s_add_u32 s17, s17, L_base-L_pc-4+{4096*13}"])
        if OPT.get("d2", 0): S.add("M", f"buffer_load_dword a{aDUM}, v23, s[88:91], s17 offen offset:2048 ;@dummy", BAR[21] + 2, Z0 + 4, chain="pgp", sep=4)
    if OPT.get("probe"):
        for k, x in enumerate((20, 38, 50, 62, 70, 78, 86, 94, 102, 112, 150)): S.add("X", stamp(18 + k), Z0 + x, Z0 + x)
    S.add("S", "WAITVM x23", Z0, Z0, chain="xz")
    for r in xread(23): S.add("D", r, Z0, Z0 + 12, chain="xz")
    for x, (sg, j) in enumerate(FS):
        J = Jx(sg, j)
        if x == 6: S.add("X", ["WAITVM w23 L", "s_barrier"], BAR[22], BAR[22], chain="t")
        for a, r in wread(sg, j):
            S.add("T", r, max(LU[J - NR], BAR[21] + 1, FU[J] - 44), FU[J] - 8 if x >= 6 else min(FU[J] - 8, BAR[22] - 4), chain="t")
    GS = OPT.get("gs", 44); lo = OPT.get("g0", 100)
    for i in range(4):
        S.add("M", f"global_load_dwordx4 a[{GA+4*i}:{GA+3+4*i}], v18, s[{sX}:{sX+1}] offset:{512*i}", lo + GS*i, lo + GS*i + 10, chain="gate")
        S.add("M", f"global_load_dwordx4 a[{GA+16+4*i}:{GA+19+4*i}], v19, s[{sGATE}:{sGATE+1}] offset:{512*i}", lo + GS*i + GS//2, lo + GS*i + GS//2 + 10, chain="gate")
    S.add("M", f"buffer_store_dword v21, v20, {srd(SD)}, s{t3_} offen {ST} ;@tag=z", G0[2] + 20, G0[2] + 40, chain="gate", sep=1)
    a0, a1, a2, a3, acc = 18, 19, 20, 21, 17
    ch = [f"v_mov_b32 v{acc}, 0"]
    for i in range(16):
        ch += L(f"""v_accvgpr_read_b32 v{a1}, a{GA+i}
            v_accvgpr_read_b32 v{a3}, a{GA+16+i}
            v_lshlrev_b32 v{a0}, 16, v{a1}
            v_and_b32 v{a1}, 0xffff0000, v{a1}
            v_lshlrev_b32 v{a2}, 16, v{a3}
            v_and_b32 v{a3}, 0xffff0000, v{a3}
            v_mul_f32 v{a0}, v{a0}, v{a2}
            v_mul_f32 v{a1}, v{a1}, v{a3}
            v_cvt_pk_bf16_f32 v{a0}, v{a0}, v{a1}
            v_lshlrev_b32 v{a1}, 16, v{a0}
            v_and_b32 v{a0}, 0xffff0000, v{a0}
            v_add_f32 v{acc}, v{acc}, v{a1}
            v_add_f32 v{acc}, v{acc}, v{a0}""")
    lo = G0[3]
    chain(ch, lo, name="gate", sep=0)
    chain([f"v_add_f32_dpp v{acc}, v{acc}, v{acc} row_ror:{r} row_mask:0xf bank_mask:0xf" for r in (8, 4, 2, 1)], lo, name="gate", sep=2)
    chain([f"v_mov_b32 v{a0}, v{acc}"], lo, name="gate", sep=0)
    chain([f"v_permlane16_swap_b32 v{a0}, v{acc}"], lo, name="gate", sep=2)
    chain(f"""v_add_f32 v{acc}, v{acc}, v{a0}
            v_cvt_pk_bf16_f32 v{acc}, v{acc}, v{acc}
            v_and_b32 v{acc}, 0xffff0000, v{acc}
            v_mul_f32 v{acc}, 0xbfb8aa3b, v{acc}
            v_exp_f32 v{acc}, v{acc}
            v_add_f32 v{acc}, 1.0, v{acc}
            v_rcp_f32 v{acc}, v{acc}
            v_cvt_pk_bf16_f32 v{a0}, v{acc}, v{acc}
            v_and_b32 v{a0}, 0xffff0000, v{a0}
            v_sub_f32 v{a1}, 1.0, v{a0}
            v_cvt_pk_bf16_f32 v{a1}, v{a1}, v{a1}
            v_and_b32 v{a1}, 0xffff0000, v{a1}
            v_and_b32 v{a2}, 31, v0
            v_lshlrev_b32 v{a2}, 27, v{a2}
            v_lshrrev_b32 v{a3}, 2, v0
            v_add_u32 v{a2}, v{a2}, v{a3}""", lo, name="gate")
    S.add("M", f"buffer_store_dwordx2 v[{a0}:{a1}], v{a2}, {srd(SD)}, s{sT2} offen {ST} ;@tag=z", lo, G0[6] + 30, chain="gate", sep=4,
          pre=[f"s_lshl2_add_u32 s{sT2}, s2, s{sW}", f"s_lshl4_add_u32 s{sT2}, s{sT2}, {WS_G}"])
    chain(f"""v_lshrrev_b32 v21, 4, v0
          v_bfe_u32 v{vDB}, v0, 2, 2
          v_lshl_add_u32 v{vDB}, v21, 3, v{vDB}
          v_lshlrev_b32 v{vDB}, 6, v{vDB}
          v_and_b32 v21, 1, v21
          v_lshl_add_u32 v{vDB}, v21, 5, v{vDB}
          v_and_b32 v21, 3, v0
          v_lshl_add_u32 v{vDB}, v21, 3, v{vDB}
          v_add_u32 v{vDB}, {98304 + 16384}, v{vDB}
          v_xor_b32 v{vDB+1}, 32, v{vDB}""", lo, G0[7] - 2, name="gate")
    chain(gxupd, BAR[5] + 6, G0[6] + 30, name="gx", sep=0)
    if P1PF:
        for lo in (OPT.get("q1", 80), OPT.get("q2", 210)):
            S.add("M", wpf(SB), lo, lo + 10, chain="pf1", pre=[f"s_add_u32 s83, s83, {1<<20}"])
            S.add("M", wpf(SC), lo + 20, lo + 30, chain="pf1")
    if OPT.get("tlb"):
        sh = OPT["tlb"]
        S.add("A", f"v_lshlrev_b32 v22, {sh}, v0", 0, 10, chain="tlb")
        S.add("S", f"s_lshl_b32 s84, s{sPF}, {sh + 6}", 0, 12, chain="tlb")
        S.add("S", f"s_min_u32 s84, s84, 0x10000000", 0, 14, chain="tlb")
        S.add("M", f"buffer_load_dword a{aDUM}, v22, {srd(SD)}, s84 offen sc1 ;@dummy", 60, 70, chain="tlb")
    if not OPT.get("nopf"):
        P0, PS = OPT.get("p0", 300), OPT.get("ps", 40); order_ = "qkqkqqkqkqqkqk"
        SK = OPT.get("sk", 0)
        for k, c in enumerate(order_):
            if k < SK: continue
            r = 81 if c == "q" else 82; nb_ = order_[:k].count(c); inc = nb_ if order_[SK:k].count(c) == 0 else 1
            S.add("M", f"buffer_load_dword a{aDUM}, v{vL16 if c == 'q' else 1}, {srd(SG if c == 'q' else SH)}, s{r} offen ;@dummy", P0 + (k-SK)*PS, P0 + (k-SK)*PS + 16, chain="pf",
                  pre=[f"s_add_u32 s{r}, s{r}, {inc<<20}"] if inc else [])
    if OPT.get("wo", "M") == "P":
        chain(mk_srd(84, sWOA, 8 << 20) + [f"s_lshl2_add_u32 s83, s2, s{sW}", "s_lshl_b32 s83, s83, 11", "v_lshlrev_b32 v22, 5, v0"], 20, 100, name="wp", sep=0)
        for k in range(4):
            x = OPT.get("wp0", 120) + k * OPT.get("wps", 144)
            S.add("M", f"buffer_load_dword a{aDUM}, v22, s[84:87], s83 offen ;@dummy", x, x + 10, chain="wp", pre=[f"s_add_u32 s83, s83, {2<<20}"] if k else [])
    n0 = G0[8]; frs = []
    for t in range(4):
        for rb in (3, 2, 1, 0): frs.append(((2*t, rb), (2*t + 1, rb), (rb >> 1)*16384 + (rb & 1)*4096 + t*1024))
    for db in range(8):
        for u in snake(2, db): frs.append(((8 + db, 2*u), (8 + db, 2*u + 1), u*16384 + 8192 + db*1024))
    ns = 0; later = []
    tmpA, tmpB = HK, HV
    for q, (ta, tb, off) in enumerate(frs):
        ka, kb = pos1[ta], pos1[tb]; A, B_ = treg(ka), treg(kb)
        lo = G0[7] + 2*max(ka, kb) + 1 + 8; hi = n0 + 2*min(ka, kb) - 1; hi2 = n0 + 2*max(ka, kb) - 3
        D_ = B_ if kb > ka else A
        ch = ("drain",)
        if min(ka, kb) >= 56: hi = hi2 = G0[10]
        if A.f == "a":
            for r in range(4): S.add("A", f"v_accvgpr_read_b32 {tmpA[r]}, {A[r]}", lo, hi, chain=ch, sep=2 if r == 0 else 0)
            for r in range(4): S.add("A", f"v_accvgpr_read_b32 {tmpB[r]}, {B_[r]}", lo, hi, chain=ch)
            A, B_ = tmpA, tmpB; D_ = B_
        direct = q % 4 == 0
        if direct: S.add("S", f"s_add_u32 s{t1_}, s{sKV}, {off}", lo - 2, hi, chain=ch)
        if D_ is B_: cv = ((3, B_, 2), (2, B_, 0), (0, A, 0), (1, A, 2))
        else: cv = ((0, A, 0), (1, A, 2), (2, B_, 0), (3, B_, 2))
        for d_, src, r in cv: S.add("A", f"v_cvt_pk_bf16_f32 {D_[d_]}, {src[r]}, {src[r+1]}", lo, hi, chain=ch)
        if direct and OPT.get("x_nodirect"): pass
        elif direct: S.add("M", f"buffer_store_dwordx4 {D_}, v{vL16}, {srd(SD)}, s{t1_} offen {OPT.get('kvst', ST).replace('+', ' ').replace('-', '')} ;@tag=kv", lo, hi2, chain=ch, sep=1)
        else:
            for r in range(4): S.add("A", f"v_accvgpr_write_b32 {stash(ns)[r]}, {D_[r]}", lo, hi2, chain=ch)
            later.append((ns, off)); ns += 1
    assert ns == 24 and pos1[frs[27][0]] in (54, 55) and pos1[frs[28][0]] in (56, 57), (pos1[frs[27][0]],)
    NSTG = OPT.get("nstg", 10); KVP = OPT.get("kvp", 21)
    t_a, t_b = G0[9] + 2, BAR[8 + NSTG] - 14
    sts = [([f"s_add_u32 s{sT2}, s{sKV}, {off}"], f"buffer_store_dwordx4 {stash(i)}, v{vL16}, {srd(SD)}, s{sT2} offen {OPT.get('kvst', ST).replace('+', ' ').replace('-', '')} ;@tag=kv") for i, off in later]
    sts.append(([], f"buffer_store_dwordx4 a[240:243], v{vL16}, {srd(SD)}, s{sXh} offen {ST} ;@tag=kv"))
    for q, (pre, d) in enumerate(sts if not OPT.get("x_nost") else []):
        lo = t_a + (q * (t_b - t_a)) // (len(sts) - 1)
        S.add("M", d, lo - 6, lo, chain="kvst", sep=3, pre=pre)
    pre, d = signal(SF, f"s{t2_}", 0, "z")
    chain(pre + [f"s_lshr_b32 s{t0_}, s{sJ}, 1", f"s_lshl_b32 s{t0_}, s{t0_}, 12"], G0[7], BAR[7], name="sig")
    for k in range(4):
        lo = BAR[8 + k] + 20
        S.add("X", one_lane(d), lo, lo + 14, chain="sig", sep=3, pre=[f"s_xor_b32 s{t2_}, s{t0_}, {k << 12}"])
    E0 = max(NSTG + 7, 14)
    S.add("X", L(f"s_cmp_eq_u32 s{sW}, 0\ns_cselect_b32 s81, 256, 0"), G0[E0 - 2], G0[E0 - 2] + 40, chain="sig")
    PE = OPT.get("pe", 1)
    x = BAR[E0 - 2] + 5 if PE else BAR[E0 - 1] - 14
    S.add("M", f"buffer_load_dword v1, off, {srd(SF)}, s{sLH} sc1", x, x + 6, chain="sig")
    S.add("X", g.spin(1, SF, f"s{sLH}", 0, "s81"), G0[E0] + XW + 12, G0[E0] + XW + 24, chain="sig")
    S.add("X", mk_srd(SF, sWS, 16384, WS_CNT)[:3], BAR[E0] - 4, BAR[E0] + 30, chain="sig")
    E1 = max(NSTG + 9, 16)
    pre, d = signal(SF, "s70", 0, "kv")
    chain(pre + [f"s_lshl_b32 s70, s{sH}, 8"], G0[E1], BAR[E1], name="sig")
    S.add("X", one_lane(d), BAR[E1] + 1, BAR[E1] + 12, chain="sig", sep=1)
    chain([f"s_lshl4_add_u32 s70, s{sLH}, s70", "s_lshr_b32 s81, s81, 5"], BAR[E1] + 1, name="sig")
    x = BAR[KVP - 2] + 5 if (PE and E1 < KVP - 2) else BAR[KVP - 1] + 1 if PE else BAR[KVP - 1] - 14
    S.add("M", f"buffer_load_dword v1, off, {srd(SF)}, s70 sc1", x, x + 6, chain="sig")
    S.add("X", g.spin(1, SF, "s70", 0, "s81"), G0[KVP] + XW + 6 if not PE else BAR[KVP] - 4, BAR[KVP] - 1, chain="sig")
    if OPT.get("pg", 1):
        for k, e_ in enumerate(["L_F1-L_pc", "L_F1-L_pc+4096"][:OPT.get("vf", 0)]):
            pre, d = cpf(e_); S.add("M", d, G0[22] + 50 + 6 * k, G0[22] + 84, chain="cpf", pre=pre, sep=3)
    elif not OPT.get("nocpf"):
        for sg in range(0, 22, OPT.get("cps", 2)):
            pre, d = cpf(".-L_pc+6144"); S.add("M", d, G0[sg] + 4, G0[sg] + 30, chain="cpf", pre=pre)
        for k, e_ in enumerate([".-L_pc+6144", ".-L_pc+9984", ".-L_pc+13824", "L_F1-L_pc", "L_F1-L_pc+4096"]):
            x = G0[22] + (50 if OPT.get("wo", "M") != "E" else 0)
            pre, d = cpf(e_); S.add("M", d, x + 6 * k, x + 34, chain="cpf", pre=pre, sep=3)
    S.add("X", L(f"s_lshl_b32 s{t2_}, s{sH}, 20\ns_add_u32 s{SA}, s{sWS}, s{t2_}\ns_addc_u32 s{SA+1}, s{sWS+1}, 0"), G0[21], G0[21] + 40, chain="sa")
    S.add("X", L(f"s_add_u32 s{t2_}, s{sBHi}, 1\ns_lshl_b32 s{SA+2}, s{t2_}, 16"), G0[21], G0[21] + 50, chain="sa")
    pace(att_first_dmas(sLX), BAR[KVP] + 5, BAR[KVP] + 5 + 12 * OPT.get("kvs", 8), "dma", slack=2)
    chain("v_and_b32 v22, 15, v0\nv_lshrrev_b32 v17, 4, v0\nv_lshlrev_b32 v17, 2, v17\nv_sub_u32 v22, v22, v17", G0[13], name="bm", sep=0)
    for r in range(4):
        chain(f"""v_subrev_u32 v17, {r}, v22
              v_lshlrev_b32 v18, 31, v17
              v_or_b32 v21, v17, v18
              v_ashrrev_i32 v21, 31, v21
              v_and_b32 {HK[r]}, 0xff800000, v21
              v_not_b32 v17, v17
              v_or_b32 v21, v17, v18
              v_ashrrev_i32 v21, 31, v21
              v_and_b32 {HV[r]}, 0xff800000, v21""", G0[13], name="bm", sep=0)
    chain(f"""s_lshl_b32 s{t3_}, s{sW}, 4
          v_add_u32 v18, s{t3_}, v22
          s_lshr_b32 s{t3_}, s{sW}, 1
          s_mul_i32 s{t3_}, s{t3_}, {XS - 2048}
          s_add_u32 s{t3_}, s{t3_}, s{sLH}
          s_add_u32 s{t3_}, s{t3_}, 32768
          v_add_u32 v17, s{t3_}, v{vL16}
          v_lshlrev_b32 v21, 5, v0""", G0[13], G0[16], name="bm")
    chain([f"v_cmp_gt_i32 {msk(k)}, {16*(k >> 2) + (k & 3)}, v18" for k in range(16)], BAR[21] + 1, name="l0", sep=0)
    chain([c.replace("s81", f"s{t1_}") for c in p5_setup()], Z0, name="l0", sep=0)
    chain(f"""s_lshl2_add_u32 s73, s2, s{sW}
          s_lshl_b32 s73, s73, 11
          s_lshl1_add_u32 s{t0_}, s{sLH}, 32768""", Z0, name="l0", sep=0)
    chain(f"v_add_u32 v2, s{t0_}, v{vL16}", BAR[22] - 4, Z0 + 62, name="l0")
    S.add("X", L(f"s_or_b32 s{t0_}, s{sJ}, s{sW}\ns_cmp_eq_u32 s{t0_}, 0\ns_cselect_b32 s{t0_}, 0xff800000, 0"), Z0, Z0 + 96, chain="l0", sep=1)
    S.add("X", [f"s_and_b32 s{t1_}, s{sXh}, 0x7800", f"s_cselect_b32 s{t1_}, 0, 0x70000000", f"s_add_u32 s77, s{sXh}, s{t1_}"], Z0, Z0 + 100, chain="l0")
    chain(f"s_sub_u32 s77, s77, 2048\ns_mov_b32 s{t2_}, {f32(QSCALE)}\ns_mov_b32 s{t3_}, s{t2_}", Z0, Z0 + 104, name="l0")
    chain(f"""v_and_b32 v22, 15, v0
          v_lshlrev_b32 v22, 3, v22
          s_lshl_b32 s85, s{sW}, 7
          s_add_u32 s85, s85, {WS_G}
          s_lshl_b32 s86, s{sJ}, 10
          s_add_u32 s86, s86, s85
          s_lshl_b32 s87, s{sBHi}, 10
          s_add_u32 s87, s87, s85""", G0[21], name="g", sep=0)
    for rb in range(4):
        S.add("M", f"buffer_load_dwordx2 a[{64+2*rb}:{65+2*rb}], v22, {srd(SD)}, s{86 + (rb>>1)} offen offset:{(rb&1)*512} sc1", BAR[21] - 4, G0[22] - 2, chain="g", sep=1)
    chain(f"""s_mov_b32 s{SB}, s{sWOB}
          s_mov_b32 s{SB+1}, s{sWOB+1}
          s_mov_b32 s{SB+2}, {2<<20}
          s_mov_b32 s{SC}, s{sWOA}
          s_mov_b32 s{SC+1}, s{sWOA+1}
          s_mov_b32 s{SC+2}, {8<<20}""", G0[12], G0[13], name="pf")
    if not OPT.get("nopf"):
        S.add("M", f"buffer_load_dword a{aDUM}, v21, {srd(SB)}, s73 offen ;@dummy", Z0 + 74, Z0 + 94, chain="wpf")
    chain(f"s_lshl2_add_u32 s72, s2, s{sW}\ns_lshl_b32 s72, s72, 12\ns_add_u32 s72, s72, {WS_XCH}", BAR[21] + 2, G0[22], name="pre")
    g.prefill = [f"buffer_store_dwordx4 a[240:243], v{vL16}, {srd(SD)}, s72 offen offset:{k*1024} {ST} ;@tag=ob" for k in range(4)]
    PRIN = OPT.get("prin", -16)
    if PRIN < 200:
        for k, d in enumerate(g.prefill): S.add("M", d, G0[22] + PRIN + 14*k, G0[22] + PRIN + 14*k + 6, chain="pre")
        g.prefill = []
    def rdy(*tiles): return max(done[(23, cb, rb)] for cb, rb in tiles) + 8
    def pk(d, a, b, lo): S.add("A", f"v_cvt_pk_bf16_f32 {d}, {a}, {b}", lo, chain="la")
    def xo(rb): return (rb >> 1) * XS + (rb & 1) * 8192
    for rb in (3, 2, 1, 0):
        a, b = bt(1, 0, rb), bt(1, 1, rb); lo = rdy((11, rb))
        pk(a[0], a[0], a[1], lo); pk(a[1], a[2], a[3], lo); pk(a[2], b[0], b[1], lo); pk(a[3], b[2], b[3], lo)
        S.add("M", f"ds_write_b128 v2, {a} offset:{xo(rb) + 2048}", lo, lo + 12, chain="la", sep=1)
    for rb in (3, 2, 1, 0):
        lo = rdy((13, rb)); a, b = bt(2, 0, rb), bt(2, 1, rb)
        pk(a[3], a[2], a[3], lo - 8); pk(a[2], a[0], a[1], lo - 8); pk(a[0], b[0], b[1], lo); pk(a[1], b[2], b[3], lo)
        S.add("M", f"ds_write_b128 v2, {a} offset:{xo(rb) + 3072}", lo, lo + 16, chain="la", sep=1)
        S.add("A", f"v_mov_b32 {b[2]}, {a[0]}", lo, chain="la"); S.add("A", f"v_mov_b32 {b[3]}, {a[1]}", lo, chain="la")
    x = lo + 19
    S.add("X", ["s_waitcnt lgkmcnt(0)", "s_barrier"], lo, x, chain="la", sep=2)
    S.add("D", "ds_read_b128 a[192:195], v17 offset:16384", lo, x + 1, chain="la", sep=1)
    def prevrd(rbs):
        return [f"ds_read_b128 {KP(rb)}, v2 offset:{xo(rb)}" for rb in rbs] + \
               [f"ds_read_b64 {bt(2, db, rb)[0:2]}, v2 offset:{xo(rb) + 1024 + (1 - db)*8}" for rb in rbs for db in range(2)]
    S.add("M", f"buffer_store_dwordx4 a[192:195], v{vL16}, {srd(SD)}, s{sXh} offen {ST}", lo, x + 7, chain="la", sep=6)
    for c in prevrd((1, 3)): S.add("D", c, lo, chain="la")
    hin = aq(1, 3); N = S.n; HL = N - OPT.get("hl", 54); HC = N - OPT.get("hc", 14)
    hld = f"buffer_load_dwordx4 {hin}, v{vL16}, {srd(SD)}, s77 offen sc1"
    S.add("M", hld, HL, HL + 4, chain="la")
    hmx = [f"v_max3_u32 v1, {hin[0]}, {hin[1]}, {hin[2]}", f"v_max_u32 v1, v1, {hin[3]}"]
    for c in hmx: S.add("A", c, HC, HC, chain="la")
    S.add("X", ["v_cmp_eq_u32 vcc, -1, v1", "s_cbranch_vccnz L_hretry", "L_hgo:"], HC + 1, HC + 1, chain="la")
    g.ool += ["L_hretry:", "s_sub_u32 s72, s72, 1", "s_cbranch_scc1 L_hgo ;@nottaken", hld, "s_waitcnt vmcnt(0)"] + hmx + \
             ["v_cmp_eq_u32 vcc, -1, v1", "s_cbranch_vccnz L_hretry ;@nottaken", "s_branch L_hgo"]
    S.add("M", f"ds_write_b128 v17, {hin}", HC + 2, HC + 2, chain="la")
    S.add("X", ["s_waitcnt lgkmcnt(0)", "s_barrier"], HC + 6, HC + 6, chain="la")
    for k, c in enumerate(prevrd((0, 2))): S.add("D", c, HC + 7, HC + 7 + k, chain="la")
    for rb in (3, 2, 1, 0):
        a, b = bt(0, 0, rb), bt(0, 1, rb); lo = max(rdy((9, rb)), Z0 + 105)
        for d_, src, r in ((0, a, 0), (1, a, 2), (2, b, 0), (3, b, 2)): S.add("A", f"v_cvt_pk_bf16_f32 {a[d_]}, {src[r]}, {src[r+1]}", lo, chain="lq")
    if OPT.get("sm", 1):
        chain(["v_bfe_u32 v1, v0, 1, 1", "v_subrev_u32 v1, 1, v1", "v_and_b32 v1, 0x3f803f80, v1"] + [f"v_accvgpr_write_b32 {ONES2[r]}, v1" for r in range(4)], Z0 + 44, Z0 + 120, name="o2", sep=0)
    chain(L(f"""s_sub_u32 s81, s{sJ}, 1
          s_sub_u32 s{t1_}, s{sJ}, 2
          s_mul_i32 s81, s81, s{t1_}
          s_lshl4_add_u32 s81, s81, s{sH}
          s_lshl2_add_u32 s81, s81, s{sW}
          s_mul_i32 s81, s81, 3328
          s_mov_b32 s73, 0
          s_mov_b32 s72, 0x20000
          s_lshl_b32 s{t1_}, s{sH}, 15
          s_add_u32 s{t1_}, s{t1_}, s{sLH}
          s_add_u32 s{t1_}, s{t1_}, {WS_CTX}
          s_mul_i32 s74, s{sJ}, {160*8192}
          s_add_u32 s74, s74, s{t1_}
          s_mul_i32 s75, s{sBHi}, {160*8192}
          s_add_u32 s75, s75, s{t1_}
          s_mul_i32 s{t1_}, s{sH}, {3*8192}
          s_sub_u32 s{t1_}, {128*8192}, s{t1_}
          s_add_u32 s{sT}, s74, s{t1_}
          s_add_u32 s{sT2}, s75, s{t1_}""") + att_scalars(), x + 9, HC - 1, name="lx")
    chain([f"v_or_b32 v{20+r}, s{t0_}, {HV[r]}" for r in range(4)], lo, name="lq", sep=0)
    S.add("S", f"s_mov_b32 s{t0_}, {f32(BSCALE)}", lo, chain="lq", sep=1)
    NQ = OPT.get("nq", 12); g.qdone = []
    for t, rb in [(t, rb) for t in range(4) for rb in (3, 2, 1, 0)][:NQ]:
        a, b = aq(2*t, rb), aq(2*t+1, rb); lo = rdy((2*t + 1, rb)); g.qdone.append((t, rb))
        for r_ in (a, b):
            for k in range(4): S.add("A", f"v_mul_f32 {r_[k]}, s{t2_}, {r_[k]}", lo, chain="lq")
        for d_, src, r in ((0, a, 0), (1, a, 2), (2, b, 0), (3, b, 2)): S.add("A", f"v_cvt_pk_bf16_f32 {a[d_]}, {src[r]}, {src[r+1]}", lo, HL - 1 if (t, rb) == (0, 3) else None, chain="lq")
    g.emit(S.run("gemm12"), eager=10, name="gemm12")
    g.emit(stamp(5) + jit())
    if OPT.get("x_sleep"): g.emit([f"s_sleep {OPT['x_sleep']}"])
    local_attention(g)

def att_head():
    o = L(f"""v_mov_b32 v2, v{vL16}
          v_add_u32 v3, 0x10000, v{vL16}
          v_mov_b32 v1, 0
          s_mov_b32 m0, s71
          WAITVM k0 L
          s_barrier""")
    o += [f"ds_read_b128 a[{144+4*f}:{147+4*f}], v2 offset:{f*1024}" for f in range(8)]
    o += [f"buffer_load_dwordx4 v{vL16}, {srd(SA)}, s70 offen offset:{k*1024} sc1 lds ;@tag=kvA" for k in range(2)]
    return o

def att_scalars():
    return L(f"""s_and_b32 s70, s{sW}, 1
          s_lshr_b32 s{t1_}, s{sW}, 1
          s_lshl3_add_u32 s71, s{t1_}, s70
          s_add_u32 s71, s71, 4
          s_lshl_b32 s71, s71, 13
          s_lshl_b32 s70, s70, 14
          s_mul_i32 s{t1_}, s{t1_}, 24576
          s_sub_u32 s70, s70, s{t1_}
          s_add_u32 s70, s70, 65536""")

def att_first_dmas(sLX):
    d = []
    for k in range(8):
        sal = []
        if k == 0: sal = [f"s_mov_b32 m0, s{sLX}", f"s_lshl_b32 s{sT}, s{sW}, 14"]
        if k == 4: sal = [f"s_add_u32 m0, s{sLX}, 4096", f"s_add_u32 s{sT}, s{sT}, 4096"]
        d.append((sal, f"buffer_load_dwordx4 v{vL16}, {srd(SA)}, s{sT} offen offset:{(k&3)*1024} sc1 lds ;@tag=k0"))
    for k in range(4):
        sal = []
        if k == 0: sal = [f"s_lshr_b32 s{sT}, s{sLX}, 1", f"s_add_u32 m0, s{sT}, {65536 + 16384}", f"s_and_b32 s71, s{sT}, 8192",
                          f"s_add_u32 s{sT}, s{sT}, s71", f"s_add_u32 s{sT}, s{sT}, 8192"]
        d.append((sal, f"buffer_load_dwordx4 v{vL16}, {srd(SA)}, s{sT} offen offset:{k*1024} sc1 lds ;@tag=v0"))
    return d

def local_attention(g):
    q = []
    def e(s): q.extend(L(s))
    def pk(d, a, b): return f"v_cvt_pk_bf16_f32 {d}, {a}, {b}"
    mO, mP, mP0 = HK, HV, R("v", 20)
    qp = []
    for t in range(4):
        for rb in range(4):
            if (t, rb) in g.qdone: continue
            a, b = aq(2*t, rb), aq(2*t+1, rb)
            for r in (a, b): qp += [f"v_pk_mul_f32 {r[0:2]}, {r[0:2]}, s[{t2_}:{t3_}]", f"v_pk_mul_f32 {r[2:4]}, {r[2:4]}, s[{t2_}:{t3_}]"]
            qp += [pk(a[0], a[0], a[1]), pk(a[1], a[2], a[3]), pk(a[2], b[0], b[1]), pk(a[3], b[2], b[3])]
    assert all((0, rb) in g.qdone for rb in range(4))
    def fill(n):
        assert len(qp) >= n
        q.extend(qp[:n]); del qp[:n]
    def Sp(rb): return bt(0, 1, rb)
    def So(rb): return bt(1, 1, rb)
    mx, mc = aq(1, 2), aq(1, 1); rbs = (1, 3, 0, 2)
    for rb in rbs: e(mfma(So(rb), bt(1, 0, rb), bt(0, 0, rb), mO))
    for rb in rbs: e(mfma(Sp(rb), KP(rb), bt(0, 0, rb), mP0 if rb == 0 else mP))
    for k in range(8): e(f"v_accvgpr_read_b32 v{vG+k}, a{64+k}")
    for rb in rbs:
        a, b = Sp(rb), So(rb)
        e(f"v_max3_f32 {mx[rb]}, {b[0]}, {b[1]}, {b[2]}\nv_max3_f32 {mx[rb]}, {mx[rb]}, {b[3]}, {a[0]}")
        e(f"v_max3_f32 {mx[rb]}, {mx[rb]}, {a[1]}, {a[2]}\nv_max_f32 {mx[rb]}, {mx[rb]}, {a[3]}")
    for op in ("v_permlane16_swap_b32", "v_permlane32_swap_b32"):
        for rb in rbs: e(f"v_mov_b32 {mc[rb]}, {mx[rb]}")
        for rb in rbs: e(f"{op} {mc[rb]}, {mx[rb]}")
        for rb in rbs: e(f"v_max_f32 {mx[rb]}, {mx[rb]}, {mc[rb]}")
    for rb in rbs: e(f"v_mul_f32 {mx[rb]}, s{t0_}, {mx[rb]}")
    for rb in rbs:
        a, b = Sp(rb), So(rb)
        for r in (a, b):
            for k in range(4): e(f"v_fma_f32 {r[k]}, {r[k]}, s{t0_}, -{mx[rb]}")
        for r in (a, b):
            for k in range(4): e(f"v_exp_f32 {r[k]}, {r[k]}")
        q.extend([pk(a[0], a[0], a[1]), pk(a[1], a[2], a[3]), pk(a[2], b[0], b[1]), pk(a[3], b[2], b[3])])
        fill(2)
        e(mfma(So(rb), ONES, Sp(rb), 0))
        for db in range(2): e(mfma(bt(db, 0, rb), bt(2, db, rb), Sp(rb), 0))
    fill(len(qp))
    if OPT.get("probe"): q.extend(stamp(29))
    for rb in rbs: e(f"v_rcp_f32 {mx[rb]}, {So(rb)[0]}")
    for rb in rbs: e(f"v_mul_f32 {mx[rb]}, {mx[rb]}, v{vG+2*rb+1}")
    for n_, rb in enumerate((0, 2, 1, 3)):
        a, b = bt(0, 0, rb), bt(1, 0, rb)
        pr = R("v", mx.b + (rb & 2), 2); sel = "op_sel_hi:[1,0]" if rb % 2 == 0 else "op_sel:[0,1]"
        for r in (a, b):
            for k in (0, 2): e(f"v_pk_mul_f32 {r[k:k+2]}, {r[k:k+2]}, {pr} {sel}")
        q.extend([pk(a[0], a[0], a[1]), pk(a[1], a[2], a[3]), pk(a[2], b[0], b[1]), pk(a[3], b[2], b[3])])
        if rb & 1: e(f"s_add_u32 s{sT + (rb>>1)}, s{sT + (rb>>1)}, 4096")
        e(f"buffer_store_dwordx4 {a}, v{vL16}, {srd(SD)}, s{sT + (rb>>1)} offen {ST} ;@tag=ob")
        if n_ == 0: q.extend(att_head())
    g.emit(q, name="local")

sR5, sKh, sCtx, sWo5, sL5, sCol, sSig, sWt = 82, 83, 84, 85, 86, 87, 79, 80
vG5, vC5 = 12, 14
def p5_ctx(sl, rb, s):
    f, b = (("a", 208), ("v", 152), ("a", 0), ("a", 32), ("a", 64))[sl]
    return R(f, b + 8*rb + 4*s)
def p5_lds(sl): return (131072, 32768, 65536, 98304, 0)[sl]
def p5_wdma(sl, rel, sr=SB):
    rot = OPT.get("rot", 1) and sr == SC
    return [([f"s_xor_b32 m0, s76, {p5_lds(sl) + i*1024}", f"s_xor_b32 s{sT}, s{sWo5}, {rel*262144 + i*8192}"] if rot else
             [f"s_add_u32 m0, s{sL5}, {p5_lds(sl) + i*1024}", f"s_add_u32 s{sT}, s{sWo5}, {rel*262144 + i*8192}"],
             f"buffer_load_dwordx4 v{vG5 + (i&1)}, {srd(sr)}, s{sT} offen lds ;@tag=w5_{sl}") for i in range(8)]
def p5_cld(sl, rel, xr=False):
    o = []
    for s in range(2):
        for rb in range(4):
            o.append(([f"{'s_xor_b32' if xr else 's_add_u32'} s{sT2}, s{sCtx}, {rel*32768 + s*8192}"] if rb == 0 else [],
                      f"buffer_load_dwordx4 {p5_ctx(sl, rb, s)}, v{vC5 + (rb>>1)}, {srd(SD)}, s{sT2} offen offset:{(rb&1)*1024} sc1"))
    return o
def NB0(): return OPT.get("nb0", 5)
def p5_setup():
    CI = OPT.get("ci", 0)
    return L(f"""s_and_b32 s{t0_}, s2, 7
          s_lshr_b32 s{t1_}, s2, 3
          s_and_b32 s{sKh}, s{t0_}, 1
          s_and_b32 s{t2_}, s{t0_}, 2
          {f"s_and_b32 s{t3_}, s{t1_}, 7" if not OPT.get("rm", 0) else f"s_lshr_b32 s{t3_}, s{t1_}, 2"}
          s_lshl2_add_u32 s{sR5}, s{t2_}, s{t3_}
          s_and_b32 s{t2_}, s{t0_}, 4
          {f"s_lshr_b32 s{t3_}, s{t1_}, 3" if not OPT.get("rm", 0) else f"s_and_b32 s{t3_}, s{t1_}, 3"}
          s_xor_b32 s{t3_}, s{t3_}, {OPT.get("rm", 0)}
          s_add_u32 s{sCol}, s{t2_}, s{t3_}
          s_lshl_b32 s{sCol}, s{sCol}, 8
          s_lshl_b32 s{sL5}, s{sW}, 13
          s_lshl_b32 s{sWo5}, s{sW}, 16
          s_add_u32 s{sWo5}, s{sWo5}, s{sCol}
          {f"s_xor_b32 s{t2_}, s{t3_}, 1" if OPT.get("x_c3") else ""}
          {f"s_min_u32 s{t2_}, s{t2_}, 1" if OPT.get("x_c3") else ""}
          {f"s_xor_b32 s{t2_}, s{t2_}, 1" if OPT.get("x_c3") else ""}
          {f"s_mul_i32 s{t2_}, s{t2_}, 0x500" if OPT.get("x_c3") else ""}
          {f"s_xor_b32 s{sWo5}, s{sWo5}, s{t2_}" if OPT.get("x_c3") else ""}
          s_mul_i32 s{t0_}, s{sKh}, {NB0()*262144}
          s_add_u32 s{sWo5}, s{sWo5}, s{t0_}
          s_mul_i32 s{sCtx}, s{sR5}, {160*8192}
          s_and_b32 s{t0_}, s{sW}, 1
          s_lshl_b32 s{t0_}, s{t0_}, 14
          s_add_u32 s{sCtx}, s{sCtx}, s{t0_}
          s_mul_i32 s{t0_}, s{sKh}, {NB0()*32768}
          s_add_u32 s{sCtx}, s{sCtx}, s{t0_}
          s_add_u32 s{sCtx}, s{sCtx}, {WS_CTX + 128*8192}
          s_sub_u32 s{t0_}, 15, s{sR5}
          s_min_u32 s{t0_}, s{t0_}, s{sR5}
          s_lshl1_add_u32 s{t0_}, s{t0_}, s{sKh}
          s_lshl_b32 s{sWt}, s{t0_}, 8
          s_add_u32 s{sWt}, s{sWt}, {32*256}
          s_and_b32 s81, s{sW}, 1
          s_lshl_b32 s81, s81, 7
          s_add_u32 s81, s81, s{sKh}
          s_lshl_b32 s81, s81, 7
          s_add_u32 s81, s81, 98304
          s_lshl_b32 s{t0_}, s{sW}, 11
          v_lshrrev_b32 v{vC5}, 4, v0
          v_bfe_u32 v{vG5}, v0, 1, 3
          v_xor_b32 v{vG5}, v{vG5}, v{vC5}
          v_lshlrev_b32 v{vG5}, 5, v{vG5}
          v_lshl_add_u32 v{vG5}, v{vC5}, 11, v{vG5}
          v_and_b32 v{vC5}, 1, v0
          v_lshl_add_u32 v{vG5}, v{vC5}, 4, v{vG5}
          v_xor_b32 v{vG5+1}, {512 if CI else 128}, v{vG5}
          v_lshrrev_b32 v{vC5}, 4, v0
          v_bfe_u32 v18, v0, 2, 2
          v_lshl_add_u32 v{vC5}, v{vC5}, 2, v18
          v_and_b32 v18, 3, v0
          v_lshlrev_b32 v18, 3, v18
          v_lshl_add_u32 v18, v{vC5}, 8, v18
          v_and_b32 v{vC5}, 7, v{vC5}
          v_lshl_add_u32 v18, v{vC5}, 5, v18
          v_xor_b32 v18, s81, v18
          v_add_u32 v{vC5}, s{t0_}, v{vL16}
          v_xor_b32 v{vC5+1}, 0x800, v{vC5}""")

def attention(g):
    p = g.p
    RA = 8
    vDK, vDV, vNI, vBad = 2, 3, 17, 1
    sSrc, sM0, sCnt, sFB, sLX, sCb = 70, 71, 72, 73, 76, 74
    def Q(qb, t): return R("v", vQ + 16*qb + 4*t)
    def S_(kb, qb): return R("v", 88 + 16*qb + 4*kb)
    def Pp(b, u, qb): return R("v", 152 + 32*(qb >> 1) + 16*b + 8*(qb & 1) + 4*u)
    def NM(qb): return R("v", 216 + 4*qb)
    def O(db, qb): return R("a", 32*qb + 4*db)
    def Lr(qb): return R("a", 128 + 4*qb)
    def F(f): return R("a", 144 + 4*(f & 15))
    mx, mc, mt, TMP = 20, 248, 252, (232, 240)
    lab = {k: "L_" + k for k in ("F1", "D", "DD", "T", "T1", "S", "SD", "TAIL")}
    def rdK(f, i): return f"ds_read_b128 {F(f)}, v{vDK} offset:{i*16384 + f*1024}"
    def rdV(f, i): return f"ds_read_b128 {F(f)}, v{vDV} offset:{i*16384 + (f & 1)*8192 + (f >> 1)*1024}"
    def dma(k, tag):
        sal = []
        if k == 0: sal = [f"s_mov_b32 m0, s{sM0}"]
        if k == 4: sal = [f"s_add_u32 m0, s{sM0}, 4096", f"s_add_u32 s{sT}, s{sSrc}, 4096"]
        return sal, f"buffer_load_dwordx4 v{vL16}, {srd(SA)}, s{sSrc if k < 4 else sT} offen offset:{(k&3)*1024} sc1 lds ;@tag={tag}"
    def act(st, i, base):
        if st == "full" or (st == "diag" and i == 0): return [base, base + 1]
        if st == "diag": return [base + 1]
        return []
    def acts(sts, i): return act(sts[0], i, 0) + act(sts[1], i, 2)
    def masked(sts, i):
        for b, st in enumerate(sts):
            if st == "diag": return 2*b + i
        return None
    SM = OPT.get("sm", 1)
    def rowsum(qb, b, zero=False):
        if SM: return [f"v_smfmac_f32_16x16x64_bf16 {Lr(qb)}, {ONES2}, {R('v', Pp(b, 0, qb).b, 8)}, v{vIDX}"]
        return [mfma(Lr(qb), ONES, Pp(b, u, qb), 0 if (zero and u == 0) else None) for u in range(2)]
    def epi_head(qb):
        return [f"v_accvgpr_read_b32 v{mx+qb}, {Lr(qb)[0]}"] + ([f"v_accvgpr_read_b32 v{mc}, {Lr(qb)[1]}", f"v_add_f32 v{mx+qb}, v{mx+qb}, v{mc}"] if SM else []) + [f"v_max_f32 v{vBad}, v{vBad}, v{mx+qb}", f"v_rcp_f32 v{mx+qb}, v{mx+qb}"]
    def epi_frag(qb, t, pkm=False):
        o = []; tmp = R("v", TMP[t & 1], 8)
        for r in range(8): o.append(f"v_accvgpr_read_b32 {tmp[r]}, {O(2*t + (r >> 2), qb)[r & 3]}")
        if t == 0: o.append(f"v_mul_f32 v{mx+qb}, v{mx+qb}, v{vG+2*qb}")
        if pkm:
            sel = "op_sel_hi:[1,0]" if qb % 2 == 0 else "op_sel:[0,1]"
            for r in range(4): o.append(f"v_pk_mul_f32 {tmp[2*r:2*r+2]}, {tmp[2*r:2*r+2]}, v[{mx+(qb&2)}:{mx+(qb&2)+1}] {sel}")
        else:
            for r in range(8): o.append(f"v_mul_f32 {tmp[r]}, {tmp[r]}, v{mx+qb}")
        for r in range(4): o.append(f"v_cvt_pk_bf16_f32 {tmp[r]}, {tmp[2*r]}, {tmp[2*r+1]}")
        o.append(f"s_add_u32 s77, s{sCb + (qb>>1)}, {t*8192 + (qb&1)*4096}")
        o.append(f"buffer_store_dwordx4 {tmp[0:4]}, v{vL16}, {srd(SD)}, s77 offen {ST} ;@tag=ctx")
        return o
    def xmax():
        o = []
        for op in ("v_permlane16_swap_b32", "v_permlane32_swap_b32"):
            o += [f"v_mov_b32 v{mc+qb}, v{mx+qb}" for qb in range(4)]
            o += [f"{op} v{mc+qb}, v{mx+qb}" for qb in range(4)]
            o += [f"v_max_f32 v{mx+qb}, v{mx+qb}, v{mc+qb}" for qb in range(4)]
        return o

    def group(cur, prev, first=False, lastg=False, hook=None, name=None, extra=None):
        mf = []; rs = []
        for i in range(2):
            qk = acts(cur, i); pv = acts(cur, 0) if i == 1 else acts(prev, 1); mq = masked(cur, i)
            r = dict(g0=len(mf), qk=qk, pv=pv, mq=mq, tiles=[], fu=[None]*32, lu=[None]*32)
            k = 0
            for kb in range(4):
                qs = [qk[x] for x in snake(len(qk), kb)]
                if mq is not None and kb == 0: qs = [x for x in qs if x != mq] + [mq]
                for qb in qs:
                    st = len(mf)
                    for q_, t in enumerate(snake(4, k)):
                        c = None
                        if q_ == 0 and qb != mq: c = 0 if (first and i == 0 and kb == 0) else NM(qb)
                        f = 4*kb + t
                        if r["fu"][f] is None: r["fu"][f] = len(mf)
                        r["lu"][f] = len(mf)
                        mf.append(mfma(S_(kb, qb), F(f), Q(qb, t), c))
                    k += 1
                    r["tiles"].append((kb, qb, st, len(mf) - 1))
            r["pv0"] = len(mf); k = 0; r["od"] = {}
            for qb in pv:
                mf += rowsum(qb, i ^ 1, first)
                r["od"][("l", qb)] = len(mf) - 1
            for db in range(8):
                for qb in [pv[x] for x in snake(len(pv), db)]:
                    for q_, u in enumerate(snake(2, k)):
                        f = 16 + 2*db + u
                        if r["fu"][f] is None: r["fu"][f] = len(mf)
                        r["lu"][f] = len(mf)
                        mf.append(mfma(O(db, qb), F(f), Pp(i ^ 1, u, qb), 0 if (first and q_ == 0) else None))
                    k += 1; r["od"][(db, qb)] = len(mf) - 1
            r["end"] = len(mf); rs.append(r)
        N = len(mf); S = Sched(mf)
        head = []
        for i, r in enumerate(rs):
            g0, n = r["g0"], r["end"] - r["g0"]; nq, npv = len(r["qk"]), len(r["pv"])
            single = (nq, npv) == (2, 2)
            knext = not (lastg and i == 1)
            if single:
                dg = [0, 0, 1, 3, 3, 4, 6, 6, 12, 14, 16, 18, 22, 24, 24, 26, 30, 32, 32, 34, 38, 40, 42, 46, 50, 52, 54, 58, 60, 62, 66, 67]
                mg = [2, 5, 20, 28, 36, 44, None, 56, 64]; bg = 48
                eg = [7, 8, 9, 10, 11] + [13 + 2*x for x in range(27)]
                cg = [12, 14, 16] + [4*x + 6 for x in range(3, 16)]
                if SM:
                    dg = [0, 0, 2, 2, 4, 4, 6, 6, 12, 14, 16, 18, 22, 24, 24, 26, 28, 30, 32, 33, 37, 39, 41, 45, 49, 51, 51, 53, 57, 59, 61, 65]
                    mg = [1, 3, 5, 20, 28, 43, None, 55, 63]; bg = 47
                    eg = [7, 8, 9, 10, 11] + [13 + 2*x for x in range(10)] + [34, 35, 36] + [38 + 2*x for x in range(14)]
                    cg = [12, 14, 16, 18, 22, 26, 30, 37, 39] + [41 + 4*x for x in range(7)]
            else:
                bg = n - max(int(n * 0.27), 12)
                if npv == 0: bg = n - 18
                dg = None
                mg = [2 + (q_ * (bg - 4)) // 6 for q_ in range(6)] + [None] + [bg + 4, bg + 4 + (n - bg - 4) // 2]
            for d in range(32):
                f = d + RA
                if d == 32 - RA:
                    wt = ("kvB" if i == 0 else "kvA") + (",v0,ob" if first else "")
                    S.add("X", [f"WAITVM {wt}", "s_barrier"], g0 + bg, g0 + bg, chain="rd")
                if f < 16:
                    txt = rdK(f, i); fu = r["fu"][f]; free = g0
                elif f < 32:
                    if npv == 0: continue
                    txt = rdV(f - 16, i); fu = r["fu"][f]; free = r["lu"][f - 16]
                else:
                    f -= 32
                    if knext: txt = rdK(f, i ^ 1)
                    else: txt = rdV(f, 0)
                    fu = r["end"] + 4 + f; free = r["lu"][16 + f] if npv else r["lu"][f]
                if dg: lo = hi = g0 + dg[d]; assert lo >= free and lo <= fu - 6, (d, lo, free, fu)
                else:
                    if d < 32 - RA: hi = min(fu - 8, g0 + bg - 1); lo = min(max(free, g0 + (d * bg) // 24 - 6), hi)
                    else: hi = min(r["end"] - 1, fu - 10 + (f >> 2) * 4); lo = min(max(free, g0 + bg + 1), hi)
                    hi = max(hi, free); lo = max(lo, free)
                it = S.add("D", txt, lo, hi, chain="rd"); it["dd"] = first or lastg
                if not dg: it["early"] = free if d < 32 - RA else lo
            tA, tB = ("kvA", "kvB") if i == 0 else ("kvB", "kvA")
            for q_, gq in enumerate(mg):
                if gq is None: continue
                k = q_ + 2 if q_ < 6 else q_ - 7
                if lastg and (i == 1 or q_ > 6): continue
                sal, dd = dma(k, tA if q_ < 6 else tB)
                if k == 0: sal = [f"s_xor_b32 s{sM0}, s{sM0}, {16384 if i == 0 else 16384 + 32768}", f"s_add_u32 s{sSrc}, s{sSrc}, 32768"] + sal
                if single:
                    sg_ = ({0: (45, 49, 53), 4: (9, 13)} if not SM else {0: (44, 46, 48), 4: (4, 2)}).get(k, ())
                    for x, s_ in zip(sg_, sal): S.add("S", s_, g0 + x, g0 + x, chain="m" if x != 2 else None)
                    S.add("M", dd, g0 + gq, g0 + gq, chain="m")
                else:
                    S.add("M", dd, g0 + gq, min(g0 + gq + 3, (g0 + bg - 1) if q_ < 6 else r["end"] - 1), chain="m", pre=sal, sep=3)
                    if extra and extra[0] == i and k in (3, 7):
                        for sal2, d2 in extra[1][(k >> 2)*4:(k >> 2)*4 + 4]: S.add("M", d2, g0 + gq, chain="m", pre=sal2, sep=3)
            if i == 1:
                lastK = g0 + (dg[15 - RA] if dg else r["fu"][15] - g0 - 8)
                S.add("A", f"v_xor_b32 v{vDK}, 0x8000, v{vDK}", max(lastK + 1, g0), g0 + bg - 1)
                if knext: S.add("A", f"v_xor_b32 v{vDV}, 0x8000, v{vDV}", g0 + bg + 1, N - 1)
                else: S.chains["rd"][[x["kind"] for x in S.chains["rd"]].index("X", len(S.chains["rd"]) - RA - 1)]["text"].append(f"v_xor_b32 v{vDV}, 0x8000, v{vDV}")
            nt = len(r["tiles"]); e = 0
            nxt = {(kb, qb): st for kb, qb, st, _ in rs[1]["tiles"]} if i == 0 else {}
            span0 = g0 + 8; span1 = r["end"] - 2
            if first and i == 0: span0 = g0 + 4*nq; span1 = r["end"] + 40
            if first and i == 1: span0 = g0 + 40
            for x, (kb, qb, st, en) in enumerate(r["tiles"]):
                s = S_(kb, qb); ch = ("sm", kb, qb); pdst = Pp(i, kb >> 1, qb)
                lim = nxt[(kb, qb)] - (7 if rs[1]["mq"] == qb else 1) if (kb, qb) in nxt else N - 1
                if not first: lim = min(lim, r["end"] - 1)
                if i == 0 and qb in rs[1]["pv"]: lim = min(lim, rs[1]["pv0"] - 3)
                if qb == r["mq"]:
                    src = "0" if (first and i == 0 and kb == 0) else str(NM(qb)[0])
                    for r_ in range(4):
                        c = f"v_cndmask_b32 {s[r_]}, {src}, v{vNI}, {msk(4*kb + r_)}"
                        if st - 3 < 0: head.append(c)
                        else: S.add("A", c, (g0 + 4*nq) if (first and i == 0 and kb > 0) else (0 if i == 0 else max(g0 - 20, 0)), st - 3, chain=ch)
                lo = en + 7
                if first and i == 0 and kb == 0:
                    lo = g0 + 4*nq
                    for r_ in range(4): S.add("A", f"v_add_f32 {s[r_]}, {s[r_]}, {NM(qb)[0]}", lo, lim - 4, chain=ch)
                for r_ in range(4):
                    pace_ = span0 + ((e + 1) * (span1 - span0)) // (4 * nt)
                    elo, ehi, clo, chi = min(lo, lim - 1), min(max(pace_, lo), lim - 1), min(lo, lim), min(lim, max(pace_, lo) + 8)
                    if single: elo = ehi = g0 + eg[e]; clo = chi = g0 + cg[e >> 1]
                    e += 1
                    S.add("E", f"v_exp_f32 {s[r_]}, {s[r_]}", elo, ehi, chain=ch)
                    if r_ & 1:
                        it = S.add("A", f"v_cvt_pk_bf16_f32 {pdst[2*(kb & 1) + (r_ >> 1)]}, {s[r_-1]}, {s[r_]}", clo, chi, chain=("cv", i, kb, qb, r_), sep=1)
                        it["after"] = S.chains[ch][-1]; it["soft"] = True
                        if r_ == 3: r.setdefault("lastcv", {})[(kb, qb)] = [it, S.chains[("cv", i, kb, qb, 1)][0]]
            if first and i == 0 and SM:
                for qb in range(4):
                    for r_ in range(4): S.add("A", f"v_accvgpr_write_b32 {Lr(qb)[r_]}, 0", 0, rs[1]["pv0"] - 3)
            if first and i == 0:
                blk = ["s_nop 1"]
                for qb in [x[1] for x in r["tiles"][:4]]:
                    a = S_(0, qb); blk += [f"v_max3_f32 v{mx+qb}, {a[0]}, {a[1]}, {a[2]}", f"v_max_f32 v{mx+qb}, v{mx+qb}, {a[3]}"]
                blk += xmax() + [f"s_cmp_eq_u32 s{sFB}, 0", "s_cselect_b64 vcc, 0, -1"]
                blk += [f"v_cndmask_b32 v{mx+qb}, v{mx+qb}, v{mt+qb}, vcc" for qb in range(4)]
                for qb in (3, 2, 1, 0): blk += [f"v_sub_f32 {NM(qb)[r_]}, 0, v{mx+qb}" for r_ in range(4)]
                S.add("X", blk, g0 + 4*nq - 1, g0 + 4*nq - 1)
        if rs[1]["mq"] is not None:
            for kb in range(4):
                key = (kb, rs[1]["mq"]); its = S.chains[("sm",) + key]
                k0 = [x for x in its if "cndmask" in x["text"][0]][-4]
                k0["after"] = rs[0]["lastcv"][key]
        if hook: hook(S, rs)
        return head + (["s_nop 0"] if head else []) + S.run(name)

    FULL2, LD, TR, TD, NONE = ("full", "full"), ("diag", "full"), ("off", "full"), ("off", "diag"), ("off", "off")
    def add_cpf(S, lo, hi, exprs):
        if OPT.get("nocpf"): return
        if OPT.get("pg", 1): exprs = [e_ for e_ in exprs if e_.startswith("L_T1")][:OPT.get("vf", 0)]
        for e_ in exprs:
            pre, d = cpf(e_); S.add("M", d, lo, hi, chain="cpf", pre=pre, sep=3 if lo >= 0 else 0)
    def hook_first(S, rs):
        lo = rs[1]["g0"] + 40; N = rs[1]["end"]
        pre, d = signal(SF, f"s{t1_}", 0, "ob")
        for c in [pre[0], pre[1].replace("v1,", "v19,")] + L(f"""s_lshr_b32 s{t1_}, s{sH}, 4
              s_lshl1_add_u32 s{t1_}, s{sJ}, s{t1_}
              s_lshl_b32 s{sSig}, s{t1_}, 8
              s_add_u32 s{sSig}, s{sSig}, {32*256}
              s_add_u32 s{t3_}, s{sH}, {32 - 4*NB0()}
              s_lshr_b32 s{t3_}, s{t3_}, 5
              s_lshl1_add_u32 s{t3_}, s{sJ}, s{t3_}
              s_lshl_b32 s{t3_}, s{t3_}, 8
              s_add_u32 s{t3_}, s{t3_}, {32*256}
              s_lshl_b32 s{t1_}, s{sFB}, 16
              s_xor_b32 s{t2_}, s{sWt}, 256
              s_add_u32 s{t2_}, s{t2_}, s{t1_}
              s_add_u32 s{t1_}, s{t1_}, s{t3_}"""): S.add(kind(c), c, lo, chain="sig", sep=1)
        d = d.replace("v1,", "v19,"); ol = one_lane(d); ol.insert(2, d.replace(f"s{t1_} offen", f"s{t2_} offen"))
        S.add("X", ol, lo, N - 2, chain="sig", sep=1)
        S.add("A", "v_mul_u32_u24 v19, 52, v0", lo, N - 1, chain="sig", sep=1)
        if rs[1]["mq"] is None: add_cpf(S, lo, N - 1, [f"{lab['D']}-L_pc+{4096*k}" for k in range(3)])
        else: add_cpf(S, lo, N - 1, [f"{lab['T']}-L_pc+{4096*k}" for k in range(2)])
    def add_epi(S, r, qb, ts, hi, head=False):
        def put(cs_, lo):
            for c in cs_: S.add("M" if c.startswith("buffer") else kind(c), c, min(lo, hi), hi, chain="epi")
        if head: put(epi_head(qb), r["od"][("l", qb)] + 8)
        for t in ts: put(epi_frag(qb, t), r["od"][(2*t + 1, qb)] + 8 if r else 8)
    def hook_dd(S, rs):
        add_cpf(S, 2, rs[1]["end"] - 1, [f"{lab['T']}-L_pc", f"{lab['T']}-L_pc+4096", f"{lab['T1']}-L_pc", f"{lab['T1']}-L_pc+4096"])
    def hook_e0(S, rs): add_epi(S, rs[1], 0, (0, 1, 2), rs[1]["end"], True)
    def hook_t(S, rs):
        add_epi(S, None, 0, (3,), rs[0]["pv0"] + 10); add_epi(S, rs[0], 1, (0, 1, 2, 3), rs[1]["g0"] + 10, True)
    def hook_last(S, rs):
        g1 = rs[1]["g0"]; N = rs[1]["end"]
        S.add("M", f"buffer_load_dword v19, off, {srd(SF)}, s{sWt} sc1", -1, -1, chain="p5")
        for c in (f"s_mul_i32 s{t3_}, s{sKh}, {8*NB0() - 32}", f"s_sub_u32 s{t3_}, {16 + 4*NB0()}, s{t3_}"): S.add("S", c, 14, g1 - 20, chain="p5")
        S.add("X", g.spin(19, SF, f"s{sWt}", 0, f"s{t3_}"), g1 - 16, g1 - 16, chain="p5")
        for k, (sal, d) in enumerate(p5_cld(0, 0) + p5_cld(1, 1)): S.add("M", d, g1 - 14 if k < 8 else g1, N - 1, chain="p5", pre=sal, sep=2)
        add_cpf(S, -1, -1, [f"{lab['TAIL']}-L_pc", f"{lab['TAIL']}-L_pc+4096", "L_p5f0-L_pc", "L_p5f0-L_pc+4096"][:OPT.get("ncp", 4)])
        add_epi(S, rs[1], 2, (0,), N, True)
    def both(*hs):
        def h(S, rs):
            for x in hs: x(S, rs)
        return h
    def first_group(cur, name, hook, extra=None):
        seq = []
        return seq + group(cur, NONE, first=True, hook=hook, name=name, extra=extra)

    START = p.new("attstart")
    q = [f"v_mov_b32 v{vNI}, 0xff800000"]
    if SM: q += [f"v_and_b32 v{vIDX}, 1, v0", f"v_mul_u32_u24 v{vIDX}, 0xaaaa, v{vIDX}", f"v_add_u32 v{vIDX}, 0x4444, v{vIDX}", f"v_lshl_or_b32 v{vIDX}, v{vIDX}, 16, v{vIDX}"]
    q += [START + ":"] + stamp(6)
    g.emit(q)
    st0 = (list(g.lg), list(g.vm))
    def setst(s): g.lg, g.vm = list(s[0]), list(s[1])
    def getst(): return (list(g.lg), list(g.vm))
    cs = ([([("a", 144 + 4*f + r) for r in range(4)], 0) for f in range(RA)], [("kvB", [])] * 8 + [("kvA", [])] * 2)
    def chk():
        a = [r for r, _ in g.lg]; b = [r for r, _ in cs[0]]
        assert a == b[len(b) - len(a):], a
    EG = 6; PG = OPT.get("pg", 1); VS = OPT.get("vs", 1)
    p(f"s_cmp_eq_u32 s{sJ}, 0\ns_cbranch_scc1 {lab['F1']}")
    g.emit(first_group(FULL2, "F0", hook_first), EG); chk()
    g.emit(stamp(12))
    p(f"s_sub_u32 s{sCnt}, s{sJ}, 1\ns_cmp_eq_u32 s{sCnt}, 0\ns_cbranch_scc1 {lab['DD']}")
    def hook_cnt(S, rs):
        N = rs[1]["end"]
        S.add("S", f"s_sub_u32 s{sCnt}, s{sCnt}, 1", N - 11 + SM, N - 11 + SM); S.add("S", f"s_cmp_lg_u32 s{sCnt}, 0", N - 7 + SM, N - 7 + SM)
        if not OPT.get("wb", 0) and not OPT.get("nopf") and N > 200:
            S.add("M", f"buffer_load_dword a{aDUM}, v19, {srd(SC)}, s81 offen ;@dummy", 5, 5, chain="wo")
            S.add("S", f"s_add_u32 s81, s81, {128*3328}", 15, 17, chain="wo")
        if N > 200: add_cpf(S, N - 30, N - 14, [f"{lab['DD']}-L_pc", f"{lab['DD']}-L_pc+4096"])
        elif OPT.get("cs", 0): add_cpf(S, 59, 59, [f"{lab['SD']}-L_pc"])
    pass; p.label(lab["D"]); setst(cs)
    g.emit(group(FULL2, FULL2, hook=hook_cnt, name="D"), EG); chk()
    p(f"s_cbranch_scc1 {lab['D']}")
    p.label(lab["DD"]); setst(cs)
    g.emit(stamp(13) + group(LD, FULL2, hook=both(hook_dd, hook_e0), name="DD", extra=(0, p5_wdma(0, 0))), EG); chk()
    p(f"s_cmp_eq_u32 s{sJ}, 7\ns_cbranch_scc1 {lab['T1']}")
    if PG and VS: p.l.append(";@stub 3 fall")
    p.label(lab["T"]); setst(cs)
    g.emit(stamp(14) + jit() + group(TR, LD, hook=hook_t, name="T") + stamp(15), EG); chk()
    p(f"s_lshl_b32 s{sCnt}, s{sJ}, 1\ns_sub_u32 s{sCnt}, 13, s{sCnt}")
    pass; p.label(lab["S"]); setst(cs)
    g.emit(group(TR, TR, hook=hook_cnt, name="S"), EG); chk()
    p(f"s_cbranch_scc1 {lab['S']}")
    setst(cs); p.label(lab["SD"])
    g.emit(stamp(16) + group(TD, TR, lastg=True, hook=hook_last, name="SD"), EG, name="SD"); chk()
    ts = (cs[0], list(g.vm)); setst(ts)
    if PG and VS: p.l.append(";@stub 4 fall")
    p.label(lab["TAIL"])
    mf = rowsum(3, 1)
    for db in range(8): mf += [mfma(O(db, 3), F(2*db + u), Pp(1, u, 3)) for u in snake(2, db)]
    S = Sched(mf)
    for f in range(8, 16): S.add("D", rdV(f, 0), -1 if f < 12 else 0, -1 if f < 12 else 1, chain="rd")["dd"] = True
    for k, (sal, d) in enumerate(p5_wdma(1, 1)): S.add("M", d, 3 - SM + 2*k, 3 - SM + 2*k, chain="p5", pre=sal)
    e1 = epi_frag(2, 1)
    for c in e1[:-2]: S.add("A", c, 2, chain="epi")
    seq = stamp(17) + jit() + S.run("tail") + e1[-2:] + stamp(7)
    seq += epi_head(3) + L(f"""s_mov_b32 s{t0_}, {f32(LTHR if not OPT.get('forcefb') else 0.0)}
          v_cmp_le_f32 vcc, s{t0_}, v{vBad}
          s_lshl_b32 s{t1_}, s{sW}, 2
          s_cmp_lg_u64 vcc, 0
          s_cselect_b32 s{t0_}, 1, 0
          v_mov_b32 v248, s{t1_}
          v_mov_b32 v249, s{t0_}
          ds_write_b32 v248, v249""")
    rest = [(2, 2), (2, 3), (3, 0), (3, 1), (3, 2), (3, 3)]; NX = OPT.get("nx", 6)
    NL = OPT.get("nl", 2); g.late = []
    for k, (qb, t) in enumerate(rest[:NX]):
        if k < NX - NL: seq += epi_frag(qb, t, True)
        else: g.late += epi_frag(qb, t, True)
    g.epi = [epi_frag(qb, t) for qb, t in rest[NX:]]
    FB = p.new("fallback")
    seq += L(f"""v_mov_b32 v248, 0
          s_waitcnt lgkmcnt(0)
          s_barrier
          ds_read_b128 v[248:251], v248""") + stamp(8)
    g.emit(seq)
    g.fbcheck = L(f"""v_or3_b32 v248, v248, v249, v250
          v_or_b32 v248, v248, v251
          s_nop 0
          v_readfirstlane_b32 s{t0_}, v248 ;@val=0
          s_nop 0
          s_cmp_gt_u32 s{t0_}, s{sFB}
          s_cbranch_scc1 {FB} ;@br=fb""")
    es = getst()
    main = g.p; g.p = P(); g.p.uid = main.uid + 1000
    if PG: g.p.l += [";@batch 3", ";@stub 3"] if VS else [";@batch -1"]
    g.p.label(lab["F1"]); setst(st0)
    g.emit(first_group(LD, "F1", both(hook_first, hook_e0), (1, p5_wdma(0, 0))) + stamp(12) + stamp(13), EG); chk()
    g.p(f"s_branch {lab['T']}")
    if PG and VS: g.p.l += [";@batch 4", ";@stub 4"]
    g.p.label(lab["T1"]); setst(cs)
    g.emit(stamp(14) + stamp(15) + stamp(16) + group(TD, LD, lastg=True, hook=both(hook_t, hook_last), name="T1"), EG); chk()
    def sig_(vm): return [(t, tuple(r)) for t, r in vm if (t and t.startswith("w5")) or r]
    assert sig_(g.vm) == sig_(ts[1])[len(sig_(ts[1])) - len(sig_(g.vm)):], (sig_(g.vm), sig_(ts[1]))
    g.p(f"s_branch {lab['TAIL']}")
    if PG: g.p.l += [";@batch -1"]
    g.p.label(FB); setst(([], []))
    sU = 81
    q = L(f"""s_waitcnt vmcnt(0) lgkmcnt(0)
          s_barrier
          s_mov_b32 s{sFB}, 1
          s_mov_b32 s{sU}, 0
          v_and_b32 v232, 15, v0
          v_lshrrev_b32 v233, 4, v0
          v_lshlrev_b32 v233, 2, v233
          v_sub_u32 v232, v232, v233
          s_lshl_b32 s{t0_}, s{sW}, 4
          v_add_u32 v232, s{t0_}, v232
          s_lshl_b32 s{t0_}, s{sBHi}, 7
          v_add_u32 v234, s{t0_}, v232
          s_lshl_b32 s{t0_}, s{sJ}, 7
          v_add_u32 v232, s{t0_}, v232
          v_add_u32 v233, 64, v232
          v_add_u32 v235, 64, v234""")
    for sal, d in att_first_dmas(sLX): q += sal + ["s_nop 0", d]
    for qb in range(4): q.append(f"v_mov_b32 v{mx+qb}, 0xff800000")
    FL = g.p.new("fbl"); q.append(FL + ":")
    for f in range(8):
        if f == 4: q.append(f"s_add_u32 s{sT}, s{sU}, 4096")
        q.append(f"buffer_load_dwordx4 {F(f)}, v{vL16}, {srd(SA)}, s{sU if f < 4 else sT} offen offset:{(f&3)*1024} sc1")
    for qb in range(4):
        for kb in range(2):
            for r in range(4):
                c = S_(kb, qb)[r]
                q += [f"v_subrev_u32 {c}, {16*kb + r}, v{232+qb}", f"v_ashrrev_i32 {c}, 31, {c}", f"v_and_b32 {c}, 0xff800000, {c}"]
        q.append(f"v_subrev_u32 v{232+qb}, 32, v{232+qb}")
    q.append("s_waitcnt vmcnt(0)")
    for f in range(8):
        for qb in range(4): q.append(mfma(S_(f >> 2, qb), F(f), Q(qb, f & 3)))
    q.append("s_nop 7")
    for qb in range(4):
        for kb in range(2):
            a = S_(kb, qb)
            q += [f"v_max3_f32 v{mx+qb}, v{mx+qb}, {a[0]}, {a[1]}", f"v_max3_f32 v{mx+qb}, v{mx+qb}, {a[2]}, {a[3]}"]
    q += L(f"s_add_u32 s{sU}, s{sU}, 16384\ns_cmp_lt_u32 s{sU}, s{SA+2}\ns_cbranch_scc1 {FL}")
    q += xmax()
    q += [f"v_mov_b32 v{mt+qb}, v{mx+qb}" for qb in range(4)] + att_scalars() + att_head() + ["s_waitcnt vmcnt(0) lgkmcnt(0)"]
    q.append(f"s_branch {START}")
    g.emit(q)
    g.ool += g.p.l; main.uid = g.p.uid + 1000; g.p = main
    setst(es)

def phase5(g):
    p = g.p
    vD = 184
    sCnt = 70
    CO = [4, 5, 6, 7, 0, 1, 2, 3]
    def acc(rb, cb): return R("v", 24 + 32*rb + 4*cb)
    def fw(j, s): return R("a", 144 + 8*j + 4*s)
    def wread(sl, j, slot=None):
        win, off = ((0, 32768), (1, 0), (1, 32768), (0, 0), (2, 0))[sl]
        return [f"ds_read_b64_tr_b16 {fw(j if slot is None else slot, s)[2*i:2*i+2]}, v{vD + 8*win + CO[j]} offset:{off + s*8192 + i*4096}" for s in range(2) for i in range(2)]
    NPRE = 3
    q = [f"v_xor_b32 v{vD+n}, {32*n}, v18" for n in CO[:NPRE]]
    for j in range(NPRE): q += wread(0, j)
    q += [f"v_xor_b32 v{vD+n}, {32*n}, v18" for n in CO[NPRE:]] + g.late + g.fbcheck
    g.emit(q)
    BP = OPT.get("bp", 43)
    xs = L(f"""s_xor_b32 s{t0_}, s2, 1
          s_lshl2_add_u32 s{t0_}, s{t0_}, s{sW}
          s_lshl_b32 s73, s{t0_}, 12
          s_add_u32 s73, s73, {WS_XCH}
          s_lshl2_add_u32 s{t0_}, s2, s{sW}
          s_lshl_b32 s75, s{t0_}, 12
          s_add_u32 s75, s75, {WS_XCH}
          s_lshl_b32 s77, s{sR5}, 18
          s_lshl_b32 s{t0_}, s{sW}, 16
          s_add_u32 s77, s77, s{t0_}
          s_add_u32 s77, s77, s{sCol}
          s_lshl_b32 s{t0_}, s{sKh}, {9 if OPT.get("ci", 0) else 7}
          s_add_u32 s77, s77, s{t0_}
          v_lshlrev_b32 v1, 24, v0
          v_and_b32 v8, 7, v0
          v_lshlrev_b32 v8, 11, v8
          v_bfe_u32 v10, v0, 3, 1
          v_lshl_add_u32 v8, v10, {6 if OPT.get("fl", 1) else 14}, v8
          v_bfe_u32 v10, v0, 4, 1
          v_lshl_add_u32 v8, v10, 5, v8
          v_lshrrev_b32 v10, 5, v0
          v_lshl_add_u32 v8, v10, 4, v8
          v_add_u32 v2, s{sL5}, v{vL16}
          v_xor_b32 v3, 0x2000, v2
          v_add_u32 v4, 0x20000, v2
          v_add_u32 v5, 0x20000, v3
          v_mov_b32 v232, 0
          v_mov_b32 v233, 0
          v_mov_b32 v236, 0
          v_mov_b32 v237, 0
          v_and_b32 v9, 1, v0
          v_lshlrev_b32 v9, 4, v9
          v_mov_b32 v10, 0x3f80
          v_lshlrev_b32 v9, v9, v10
          v_lshrrev_b32 v10, 4, v0
          v_lshlrev_b32 v10, 1, v10
          v_bfe_u32 v11, v0, 1, 3
          v_xor_b32 v10, v10, v11
          v_subrev_u32 v11, 1, v10
          v_ashrrev_i32 v11, 31, v11
          v_and_b32 v234, v11, v9
          v_xor_b32 v10, 1, v10
          v_subrev_u32 v11, 1, v10
          v_ashrrev_i32 v11, 31, v11
          v_and_b32 v235, v11, v9""")
    def tmp(rb, c): return R("v", 200 + 16*rb + 4*c)
    def rx(k): return R("v", 152 + 4*k)
    ldx = [f"buffer_load_dwordx4 {rx(k)}, v{vL16}, {srd(SD)}, s75 offen offset:{k*1024} sc1" for k in range(4)]
    G4 = OPT.get("g4", 1)
    G2 = OPT.get("g2", 1)
    RM = OPT.get("rmj", 1); RS = OPT.get("rms", 1); XS0 = 28 - 4*OPT.get("nz", 3)
    def mfs(prs, czero, last=False):
        mf = []; dn = {}; k = 0
        tl = [(x, rb) for x, (sl, j) in enumerate(prs) for rb in snake(4, j + 1)]
        def rbm(x0): tl[4*x0:4*x0 + 16] = [(x0 + y, rb) for n_, rb in enumerate((2, 3, 0, 1)) for y in snake(4, n_)]
        if last and RM: rbm(28)
        if last and RS: rbm(XS0)
        for x, rb in tl:
            sl, j = prs[x]
            for q_, s in enumerate(snake(2, k)):
                mf.append(mfma(acc(rb, CO[j]), fw(x & 7, s), p5_ctx(sl, rb, s), 0 if (czero and x < 8 and q_ == 0) else None))
            k += 1; dn[(rb, CO[j])] = len(mf) - 1
        return mf, dn
    def pacer(S):
        def pace(items, lo, hi):
            its = []
            for k, (sal, d) in enumerate(items):
                x = lo + (k * (hi - lo)) // len(items)
                its.append(S.add("M", d, x, min(x + 2, S.n - 1), chain="ld", pre=sal, sep=2))
            return its[0]
        return pace
    def first(role):
        nb = NB0() if role == 0 else 8 - NB0()
        na4 = 4 if nb == 2 else 0
        ns = nb + na4
        sl = {3: [0, 1, 3], 4: [0, 1, 2, 3], 5: [0, 1, 2, 4, 3], 6: [0, 1, 3, 4, 2, 3]}[ns] + [0, 1, 2]
        S = Sched(mfs([(sl[st], j) for st in range(ns) for j in range(8)], True)[0]); pace = pacer(S)
        gs = 8 if G2 else 4
        g1 = 2 if (G4 == 1 and role == 0) else 0
        assert not (G4 and na4)
        def arel(k): return k - nb if (k < ns or not na4) else k - ns
        def W(k): return p5_wdma(sl[k], k, SB) if k < nb else p5_wdma(sl[k], arel(k), SC)
        def C(k): return p5_cld(sl[k], k if k < nb else arel(k), k >= nb)
        sigst = OPT.get("sig%d" % role, 1)
        EG_ = OPT.get("eg%d" % role, 1 if nb > 2 else 0)
        swW = f"s_add_u32 s{sWo5}, s{sWo5}, {role*((4<<20) - NB0()*262144) + (g1 << 20)}"
        rot = [f"s_and_b32 s{t2_}, s{sR5}, 3", f"s_lshl_b32 s{t2_}, s{t2_}, 11", f"s_add_u32 s76, s{sL5}, s{t2_}",
               f"s_lshr_b32 s{t3_}, s{sCol}, 8", f"s_lshr_b32 s{t1_}, s{sR5}, 1", f"s_xor_b32 s{t3_}, s{t3_}, s{t1_}", f"s_and_b32 s{t3_}, s{t3_}, 2",
               f"s_lshl_b32 s{t3_}, s{t3_}, 15", f"s_add_u32 s{t2_}, s{t2_}, s{t3_}", f"s_lshl3_add_u32 s{sWo5}, s{t2_}, s{sWo5}"]
        if nb == 2:
            for c in [swW] + rot: S.add("S", c, -1, -1, chain="ld")
        for st in range(ns):
            g0 = 64 * st; B = g0 + BP; dr = sl[st + 3] == sl[st]
            for j in range(NPRE, 8):
                for r in wread(sl[st], j): S.add("T", r, max(g0 + 8*j - 30, g0), min(g0 + 8*j - 8, B - (5 if dr else 1)), chain="t")
            S.add("X", [f"WAITVM w5_{sl[st+1]}" + (",ctx" if st == sigst else "") + (" L" if dr else ""), "s_barrier"], B, B, chain="t")
            for j in range(NPRE):
                for r in wread(sl[st + 1], j): S.add("T", r, B + 1, min(g0 + 64 + 8*j - 8, g0 + 63), chain="t")
            na = 6 if (st == nb - 2 and not EG_) else 5
            gate = g.spin(19, SF, "s72", 0, 4 if G4 else 8 if G2 else 16) + [f"s_sub_u32 s{sCtx}, s{sCtx}, {128*8192 - role*(64*8192 - NB0()*32768) - g1*131072}", f"s_add_u32 s{sCtx}, s{sCtx}, s{t3_}"] + stamp(9) if st == nb - 1 - EG_ else None
            poll = f"buffer_load_dword v19, off, {srd(SF)}, s72 sc1"
            wr = W(2) if st == 0 else W(st + 2)[5:]
            if EG_:
                if gate: S.add("X", gate, g0, g0, chain="ld")
                pace(wr + C(st + 2), g0 + 2, B - 1)
                if st == nb - 3: S.add("M", poll, B - 1, B + 2, chain="ld")
            elif st == nb - 2:
                pace(wr, g0 + 2, g0 + 28)
                S.add("M", poll, g0 + 30, g0 + 36, chain="ld")
            elif st == nb - 1:
                S.add("X", gate, g0, g0, chain="ld")
                pace(C(nb) + W(nb + 1)[6:] + C(nb + 1), g0 + 2, B - 1)
            else: pace(wr + C(st + 2), g0 + 2, B - 1)
            if st + 3 == nb and (role or g1): S.add("S", swW, B - 1, B + 3, chain="ld")
            if st + 3 == nb:
                for c in rot[:-1]: S.add("S", c, g0 + 16, B - 2, chain="rot")
                S.add("S", rot[-1], B - 1, B + 3, chain="ld")
            if na4 and st + 3 == ns:
                S.add("S", f"s_add_u32 s{sWo5}, s{sWo5}, {gs*262144}", B - 1, B + 3, chain="ld")
                S.add("S", f"s_add_u32 s{sCtx}, s{sCtx}, {gs*32768}", B - 1, B + 3, chain="ld")
            pace(W(st + 3)[:na], B + 5, g0 + 64)
            if st == sigst:
                pre, d = signal(SF, "s71", 0, "ctx")
                S.add("S", pre[0], B - 12, B - 4, chain="sig"); S.add("A", pre[1], B - 12, B - 1, chain="sig", sep=1)
                S.add("X", one_lane(d), B + 1, B + 1, chain="sig")
        EH = 64*sigst + BP - OPT.get("eh", 24)
        for k, fr in enumerate(g.epi):
            for c in fr: S.add("M" if c.startswith("buffer") else kind(c), c, 0, min(60, EH) if "a6" <= c.split()[-1][:2] <= "a9" and len(c.split()[-1]) == 3 else EH, chain="epi")
        fin = [f"s_mov_b32 s{sCnt}, {2 if na4 else 3}", f"s_mov_b32 s73, {1 if not G2 else -1 if na4 else -2 if g1 else 2}"]
        for c in fin: S.add("S", c, S.n - 6, S.n, chain="ld")
        nb = ns
        for n in range(8): S.add("A", f"v_xor_b32 v{vD+8+n}, 0x10000, v{vD+n}", 0, BP - 1)
        if nb >= 5:
            for n in range(8): S.add("A", f"v_xor_b32 v{vD+16+n}, 0x18000, v{vD+n}", 64, 128)
        for c in [f"s_and_b32 s71, s{sH}, {12 if G4 else 4 if G2 else 0}", f"s_lshl_b32 s71, s71, {4 if G4 else 5}", f"s_add_u32 s71, s71, s{sSig}", "s_add_u32 s71, s71, 4096", f"s_add_u32 s72, s{sWt}, {4096 + 64*g1}"]: S.add("S", c, 18 if ns != 6 else 4, 36 if ns != 6 else 28, chain="sc")
        if not OPT.get("nocpf") and not OPT.get("pg", 1):
            for k in range(2 if OPT.get("cl", 0) else 3):
                pre, d = cpf("L_p5loop-L_pc+%d" % (4096*k)); x = 64*(nb - 2) + 18
                S.add("M", d, x + 3*k, x + 20, chain="cpf", pre=pre, sep=3)
        return S.run("p5first%d" % role)
    def body(kd):
        prs = [(st, j) for st in range(4) for j in range(8)]
        X2 = 0; NZ = OPT.get("nz", 3); Z = 4 - NZ
        if kd == "last": prs = prs[:8*Z] + [(st, j) for h in range(2) for st in range(Z, 4) for j in range(4*h, 4*h + 4)]
        mf, dn = mfs(prs, False, kd == "last")
        S = Sched(mf); pace = pacer(S)
        for st in range(4):
            g0 = 64 * st; B = g0 + BP
            if kd == "last" and st >= Z:
                for x in range(8*st + (NPRE if st == Z else 0), 8*st + 8):
                    if prs[x][1] == 0: S.add("X", [f"WAITVM w5_{prs[x][0]}", "s_barrier"], 8*x - OPT.get("zb", 26), 8*x - OPT.get("zb", 26), chain="t")
                    x0 = x & ~3; rm_ = (RM and x0 == 28) or (RS and x0 == XS0)
                    for r in wread(prs[x][0], prs[x][1], x & 7): S.add("T", r, max(8*(x0 if rm_ else x) - 30, 64*Z), 8*x - 8 if not rm_ else 8*x0 - 8 + 2*(x - x0), chain="t")
                if st == 1: pace(p5_wdma(3, 3, SC)[5:] + p5_cld(3, 3, True), g0 + 1, g0 + OPT.get("zl", 36))
                continue
            for j in range(NPRE, 8):
                for r in wread(st, j): S.add("T", r, max(g0 + 8*j - 30, g0), min(g0 + 8*j - 8, B - 1), chain="t")
            S.add("X", [f"WAITVM w5_{(st+1)&3}", "s_barrier"], B, B, chain="t")
            for j in range(NPRE):
                for r in wread((st + 1) & 3, j): S.add("T", r, B + 1, min(g0 + 64 + 8*j - 8, g0 + 63), chain="t")
            def batch(x): return [] if (kd == "last" and x >= 4) else p5_wdma(x & 3, x & 3, SC) + p5_cld(x & 3, x & 3, True)
            if kd == "loop" and st == 2:
                if G2: S.add("X", g.spin(19, SF, "s72", 0 if G4 else 128, 4 if G4 else "s74"), g0, g0, chain="ld")
                for c in (f"s_lshl_b32 s75, s73, 17", f"s_add_u32 s{sCtx}, s{sCtx}, s75"): S.add("S", c, g0 - 20, g0 + 6, chain="ac")
            if batch(st + 2): pace(batch(st + 2)[5:], g0 + (3 if st == 2 else 1), B + OPT.get("pa", 2))
            if kd == "loop" and st == 1:
                for c in (f"s_lshl_b32 s75, s73, 20", f"s_add_u32 s{sWo5}, s{sWo5}, s75") + (() if G4 else ("s_lshr_b32 s74, s73, 28", "s_and_b32 s74, s74, 8")): S.add("S", c, g0 + 16, B, chain="ac")
                if G4:
                    for c in ("s_lshl_b32 s74, s73, 6", "s_add_u32 s72, s72, s74"): S.add("S", c, 20, g0 - 2, chain="pl")
                if G2: S.add("M", f"buffer_load_dword v19, off, {srd(SF)}, s72 offset:{0 if G4 else 128} sc1", g0 - 1, g0, chain="pl")
            if batch(st + 3): pace(batch(st + 3)[:5], B + OPT.get("pb", 3), g0 + OPT.get("pc", 65))["prelo"] = B + 1
        if kd == "loop" and OPT.get("cl", 0) and not OPT.get("nocpf"):
            for k in range(2):
                pre, d = cpf("L_p5last-L_pc+%d" % (4096*k)); S.add("M", d, 128 + 64*k + 30, 128 + 64*k + BP - 1, chain="cpf", pre=pre)
        if kd == "loop":
            for c in ([f"s_sub_u32 s73, 1, s73"] if G2 else []) + [f"s_sub_u32 s{sCnt}, s{sCnt}, 1", f"s_cmp_lg_u32 s{sCnt}, 0"]: S.add("S", c, 250, 256, chain="ld")
        if kd == "last":
            for c in xs + mk_srd(SE, sOUT, 4 << 20): S.add(kind(c), c, 30, 120, chain="x")
            XQ = OPT.get("xq", 4)
            if OPT.get("er", 226):
                for c in ldx: S.add("M", c, OPT.get("er", 226), OPT.get("er", 226) + 12, chain="er", sep=2)
            for cs_ in ([(0, 1)] if not X2 else [(0,), (1,)]):
                for rb, c in sorted([(rb, c) for rb in range(2) for c in range(4)], key=lambda t: dn[(2 + t[0], 4 + t[1])]):
                    x = dn[(2 + rb, 4 + c)]
                    S.add("M", f"ds_write_b128 v3, {acc(2 + rb, 4 + c)} offset:{rb*4096 + c*1024}", x + 8, x + 10, chain="x")
                x += 13
                S.add("X", ["s_waitcnt lgkmcnt(0)", "s_barrier"], 0, x, chain="x", sep=3)
                k = 0
                for rb in range(2):
                    for c in [2*c2 + h for c2 in cs_ for h in range(2)]:
                        S.add("D", f"ds_read_b128 {tmp(rb, c)}, v2 offset:{rb*4096 + c*1024}", 0, x + 1 + (k >> 1), chain="x")["dd"] = True; k += 1
                x += 6; x0 = x
                for rb in range(2):
                    for c2 in cs_:
                        a, b = tmp(rb, 2*c2), tmp(rb, 2*c2 + 1); x += XQ
                        for c in (2*c2, 2*c2 + 1):
                            for r in range(4): S.add("A", f"v_add_f32 {tmp(rb, c)[r]}, {tmp(rb, c)[r]}, {acc(rb, 4 + c)[r]}", x0, x - 1, chain="x")
                        for d_, src, r in ((0, a, 0), (1, a, 2), (2, b, 0), (3, b, 2)): S.add("A", f"v_cvt_pk_bf16_f32 {a[d_]}, {src[r]}, {src[r+1]}", 0, x - 1, chain="x")
                        S.add("M", f"buffer_store_dwordx4 {a}, v{vL16}, {srd(SD)}, s73 offen offset:{(2*rb + c2)*1024} {ST}", 0, x, chain="x", sep=1)
            if RM:
                for rb, c in sorted([(rb, c) for rb in range(2) for c in range(4)], key=lambda t: dn[(2 + t[0], t[1])]):
                    S.add("M", f"ds_write_b128 v5, {acc(2 + rb, c)} offset:{rb*4096 + c*1024}", dn[(2 + rb, c)] + 8, dn[(2 + rb, c)] + 9, chain="x")
                S.add("X", ["s_waitcnt lgkmcnt(0)", "s_barrier"], 251, 251, chain="x")
                for k in range(8): S.add("D", f"ds_read_b128 {tmp(k >> 2, k & 3)}, v4 offset:{k*1024}", 252, 252 + (k >> 1), chain="x")["dd"] = True
            else:
                for c in range(3):
                    for rb in snake(2, c + 1):
                        S.add("M", f"ds_write_b128 v5, {acc(2 + rb, c)} offset:{rb*4096 + c*1024}", dn[(2 + rb, c)] + 8, chain="x")
        return S.run("p5" + kd)
    st0 = (list(g.lg), list(g.vm))
    p(f"s_cmp_eq_u32 s{sKh}, 0\ns_cbranch_scc1 L_p5f0")
    g.emit(first(1), 8, name="p5first1")
    ent = (list(g.lg), list(g.vm))
    main = g.p; g.p = P(); g.p.uid = main.uid + 1000
    if OPT.get("pg", 1): g.p.l += [";@batch 1", ";@palign"]
    g.p.label("L_p5f0"); g.lg, g.vm = st0
    g.emit(first(0), 8); g.p("s_branch L_p5join")
    def cregs(sl): return [(None, [(p5_ctx(sl, rb, s_).f, p5_ctx(sl, rb, s_).b + k) for k in range(4)]) for s_ in range(2) for rb in range(4)]
    ent = (None, cregs(0) + [("w5_1", [])] * 2 + cregs(1) + [("w5_2", [])] * 5)
    g.ool += g.p.l; main.uid = g.p.uid + 1000; g.p = main
    if OPT.get("pg", 1): p.l += ["s_branch L_p5join", ";@palign"]
    p.label("L_p5join")
    p(stamp(4) + jit())
    p.label("L_p5loop")
    pre_ = [([("a", 144 + 2*k), ("a", 145 + 2*k)], 0) for k in range(4 * NPRE)]
    g.lg = pre_; g.vm = ent[1]
    g.emit(body("loop"), 8)
    p("s_cbranch_scc1 L_p5loop")
    g.lg = pre_; p.label("L_p5last")
    g.emit(stamp(3) + jit() + body("last") + stamp(10) + jit(), 8, name="p5last")
    SEL = R("v", 232, 6); FO = OPT.get("fo", 0)
    chk = ["USE v[152:167]", "L_xchk:", "v_max3_u32 v9, v152, v153, v154"] + [f"v_max3_u32 v9, v9, v{155+2*k}, v{156+2*k}" for k in range(6)]
    chk += L("""v_max_u32 v9, v9, v167
          v_cmp_eq_u32 vcc, -1, v9
          s_cbranch_vccnz L_xretry
          L_xgo:""")
    g.ool[0:0] = ["L_xretry:", "s_sub_u32 s72, s72, 1", "s_cbranch_scc1 L_xgo ;@nottaken"] + ldx + ["s_waitcnt vmcnt(0)", "s_branch L_xchk"]
    adx = [mfma(acc(rb, c), SEL[2:6] if c % 2 == 0 else SEL[0:4], rx(2*rb + (c >> 1))) for rb in range(2) for c in range(4)]
    q = ["s_mov_b32 s72, 0x20000"]
    if not RM:
        q += ["s_nop 6"] + [f"ds_write_b128 v5, {acc(2 + rb, 3)} offset:{rb*4096 + 3*1024}" for rb in range(2)] + ["s_waitcnt lgkmcnt(0)", "s_barrier"]
        q += [f"ds_read_b128 {tmp(rb, c)}, v4 offset:{rb*4096 + c*1024}" for rb in range(2) for c in range(4)]
    if FO: q += chk + adx + ["s_nop 0"]
    for rb in range(2):
        for c in range(4):
            for r in range(4): q.append(f"v_add_f32 {acc(rb, c)[r]}, {acc(rb, c)[r]}, {tmp(rb, c)[r]}")
    if not FO: q += chk + adx + ["s_nop 1"]
    for rb in range(2):
        for c2 in range(2):
            a, b = acc(rb, 2*c2), acc(rb, 2*c2+1)
            q += L(f"""v_cvt_pk_bf16_f32 {a[0]}, {a[0]}, {a[1]}
                  v_cvt_pk_bf16_f32 {a[1]}, {a[2]}, {a[3]}
                  v_cvt_pk_bf16_f32 {a[2]}, {b[0]}, {b[1]}
                  v_cvt_pk_bf16_f32 {a[3]}, {b[2]}, {b[3]}""")
        a, b, t_ = acc(rb, 0), acc(rb, 2), acc(rb, 1)
        q += [f"v_permlane16_swap_b32 {a[0]}, {a[2]}", f"v_permlane16_swap_b32 {a[1]}, {a[3]}", f"v_permlane16_swap_b32 {b[0]}, {b[2]}", f"v_permlane16_swap_b32 {b[1]}, {b[3]}"]
        ost = OPT.get('ost', 'sc1').replace('-', '')
        if OPT.get("fl", 1):
            q += [f"v_mov_b32 {t_[r]}, {a[r]}" for r in range(4)]
            q += [f"v_mov_b32_dpp {a[r]}, {b[r]} row_ror:8 row_mask:0xf bank_mask:0xc" for r in range(4)]
            q += [f"v_mov_b32_dpp {b[r]}, {t_[r]} row_ror:8 row_mask:0xf bank_mask:0x3" for r in range(4)]
            q += [f"buffer_store_dwordx4 {a}, v8, {srd(SE)}, s77 offen {ost}", "s_add_u32 s77, s77, 16384",
                  f"buffer_store_dwordx4 {b}, v8, {srd(SE)}, s77 offen {ost}", "s_add_u32 s77, s77, 16384"]
        else:
            q += [f"buffer_store_dwordx4 {a}, v8, {srd(SE)}, s77 offen {ost}", f"buffer_store_dwordx4 {b}, v8, {srd(SE)}, s77 offen offset:64 {ost}", "s_add_u32 s77, s77, 32768"]
    if OPT.get("dbgt"):
        q += L(f"""s_waitcnt vmcnt(0)
            s_memtime s[70:71]
            s_memrealtime s[72:73]
            s_waitcnt lgkmcnt(0)
            s_sub_u32 s70, s70, s96
            s_sub_u32 s72, s72, s98
            v_mov_b32 v2, s70
            v_mov_b32 v3, s72
            s_lshl_b32 s70, s2, 3
            s_add_u32 s70, s70, 8
            s_lshl_b32 s71, s{sW}, 12
            s_add_u32 s70, s70, s71""") + mk_srd(SF, 94, 64) + [f"buffer_store_dwordx2 v[2:3], v1, {srd(SF)}, s70 offen"]
    q += stamp(11) + stamp_flush()
    g.emit(q, name="final")

DOC = """
; ---------------------------------------------------------------------------------------------------------------
; One persistent launch, 256 workgroups (one per CU) x 4 waves.  Workgroup = (head h, q-block pair j / 15-j).
;  1. K,V = c_kv @ w_uk|w_uv for 256 keys of head h -> d_ws in MFMA fragment order; gate rows g, 1-g -> d_ws
;     max, so nothing can underflow); every row sum is checked at run time and if any reaches 2^60 the workgroup
;  4. out = [g*ctx | (1-g)*o_B] @ [w_o ; wo], 128x128 tile, K split between workgroups 2n and 2n+1
; Hand-offs: write-through stores, counters (d_debug[0], then words of d_ws zeroed inside the launch) or
; all-ones-prefilled mailboxes; all waits are bounded; nothing depends on workgroup placement except speed.
; ---------------------------------------------------------------------------------------------------------------
"""
def build():
    g = G(); p = g.p
    hdr = open("/code/" + NAME + ".s.ref").read()
    p.l += [l for l in hdr.split("\n") if l.startswith(";") and "@launch" not in l]
    p.l.append(f"; @launch grid=(256,1,1) block=(256,1,1) lds={LDS_BYTES}")
    p.l += DOC.strip().split("\n")
    k = NAME + "_kernel"
    p(f'.amdgcn_target "amdgcn-amd-amdhsa--gfx950"\n.text\n.globl {k}\n.p2align 8\n.type {k},@function'); p.label(k)
    gemm12(g); attention(g); phase5(g)
    p.label("L_end"); p("s_endpgm")
    p(g.ool)
    p.label("L_codeend")
    p('.section .rodata,"a"\n.p2align 6')
    p.l += f""".amdhsa_kernel {k}
  .amdhsa_next_free_vgpr 512
  .amdhsa_next_free_sgpr 102
  .amdhsa_accum_offset 256
  .amdhsa_group_segment_fixed_size 0
  .amdhsa_kernarg_size 104
  .amdhsa_user_sgpr_count 2
  .amdhsa_user_sgpr_kernarg_segment_ptr 1
  .amdhsa_system_sgpr_workgroup_id_x 1
.end_amdhsa_kernel""".split("\n")
    return p.text()

if __name__ == "__main__":
    out = sys.argv[1]
    for a in sys.argv[2:]:
        k, _, v = a.partition("=")
        OPT[k] = True if v == "" else (int(v) if v.lstrip("-").isdigit() else v)
    txt = build()
    if OPT.get("pg", 1):
        from pages import pages
        plan = {}
        if OPT.get("na", 1): plan[9] = [(0, OPT.get("na", 1))]
        plan[0] = [(0, OPT.get("n0", 4))]
        ts = TSITES()
        for k in range(len(ts)): plan[k + 1] = [(0, OPT.get("n1", 8))] if k + 1 < len(ts) else [(0, 99), (1, 99)]
        if OPT.get("vs", 1): plan[3] = [(3, 9)]; plan[4] = [(4, 9)]
        txt, info = pages(txt, sW, plan, OPT.get('half')); print("page stubs", info)
    if OPT.get("al"):
        from align import align
        txt, n_ = align(txt, OPT["al"]); print("widened", n_)
    import subprocess, re, os
    open("_sz.s", "w").write(txt.replace("NCHUNK", "100"))
    subprocess.check_call(["clang", "-x", "assembler", "-target", "amdgcn-amd-amdhsa", "-mcpu=gfx950", "-c", "_sz.s", "-o", "_sz.o"])
    sz = int(re.search(r"\.text\s+PROGBITS\s+\S+\s+\S+\s+(\S+)", subprocess.check_output(["llvm-readelf", "-S", "_sz.o"]).decode()).group(1), 16)
    nch = 0
    print("code bytes", sz, "file", len(txt))
    open(out, "w").write(txt.replace("NCHUNK", str(nch)))
```
